```python
import torch

def _softmax(x, axis=-1):
    return torch.softmax(x, dim=axis)
def _gelu(x):
    return torch.nn.functional.gelu(x, approximate="tanh")
def _silu(x):
    return torch.nn.functional.silu(x)
def _sigmoid(x):
    return torch.sigmoid(x)
def _layernorm(x, axis=-1, eps=1e-5):
    m = x.mean(dim=axis, keepdim=True)
    v = x.var(dim=axis, keepdim=True, unbiased=False)
    return (x - m) / torch.sqrt(v + eps)
def _scatter_add(tgt, idx, src, axis=0):
    return tgt.clone().index_add_(axis, idx, src)
def _segment_sum(src, seg, n):
    out = torch.zeros((n,) + src.shape[1:], dtype=src.dtype)
    return out.index_add_(0, seg, src)
def _pad(x, pw):
    flat = tuple(v for pair in reversed(pw) for v in pair)
    return torch.nn.functional.pad(x, flat)

kernel_name = 'gated_mix__linear_attn_block__glu_gated_glu__prompt'

def setup_inputs():

    _w = (lambda a: (lambda t: t.to(torch.bfloat16) if t.is_floating_point() else t)(torch.as_tensor(a)))
    def _A_setup():
        B, S, D = 1, 2048, 640
        return {
            "x": _w((lambda *s: torch.randn(*s, dtype=torch.bfloat16) * 0.05)(B, S, D)),
            "wqkv": _w((lambda *s: torch.randn(*s, dtype=torch.bfloat16) * 0.8)(D, 3 * D)),
            "wo": _w((lambda *s: torch.randn(*s, dtype=torch.bfloat16) * 0.2)(D, D)),
        }
    _A_in = _A_setup()

    def _B_setup():
        B, S, D, F = 1, 2048, 640, 1536
        return {
            "x": _w((lambda *s: torch.randn(*s, dtype=torch.bfloat16) * 0.05)(B, S, D)),
            "w_gate": _w((lambda *s: torch.randn(*s, dtype=torch.bfloat16) * 0.4)(D, F)),
            "w_up": _w((lambda *s: torch.randn(*s, dtype=torch.bfloat16) * 0.05)(D, F)),
            "w_down": _w((lambda *s: torch.randn(*s, dtype=torch.bfloat16) * 0.05)(F, D)),
        }
    _B_in = _B_setup()

    return {
        "A_x": _A_in["x"],
        "A_wqkv": _A_in["wqkv"],
        "A_wo": _A_in["wo"],
        "B_x": _B_in["x"],
        "B_w_gate": _B_in["w_gate"],
        "B_w_up": _B_in["w_up"],
        "B_w_down": _B_in["w_down"],
        "gate_w": _w((lambda *s: torch.randn(*s, dtype=torch.bfloat16) * 0.05)(640) * 16.0),
    }

def reference(A_x, A_wqkv, A_wo, B_x, B_w_gate, B_w_up, B_w_down, gate_w):
    def _A_ref(x, wqkv, wo):
        B, S, D = x.shape
        H = 32; Dh = D // H
        qkv = (lambda x, *d: x.permute(*d))((x @ wqkv).reshape(B, S, 3, H, Dh), 2, 0, 3, 1, 4)
        q, k, v = qkv[0], qkv[1], qkv[2]
        phi = lambda t: torch.where(t > 0, t + 1, torch.exp(t)) + 1e-6
        pq, pk = phi(q), phi(k)
        kv = torch.einsum("bhsd,bhse->bhde", pk, v)
        z = torch.einsum("bhsd->bhd", pk)
        num = torch.einsum("bhqd,bhde->bhqe", pq, kv)
        den = torch.einsum("bhqd,bhd->bhq", pq, z)[..., None] + 1e-6
        o = num / den
        return (lambda x, *d: x.permute(*d))(o, 0, 2, 1, 3).reshape(B, S, D) @ wo

    def _B_ref(x, w_gate, w_up, w_down):
        g = torch.einsum("bsd,df->bsf", x, w_gate)
        u = torch.einsum("bsd,df->bsf", x, w_up)
        h = _sigmoid(g) * u
        return torch.einsum("bsf,fd->bsd", h, w_down)

    x = A_x
    g = _sigmoid((x * gate_w).sum(-1, keepdims=True))
    a = _A_ref(x, A_wqkv, A_wo)
    b = _B_ref(x, B_w_gate, B_w_up, B_w_down)
    return g * a + (1 - g) * b
```

```python
import sys

NAME = 'gated_mix__linear_attn_block__glu_gated_glu__prompt'

HB_OFF = 0
W2_OFF = 0x900000
KVP_OFF = 0xC00000
G_OFF = 0xF00000
ZB_OFF = 0xF10000
WS_USED = 0x1000000
OOB = 0x7FFF0000

XSLOT = 16384; NX = 3
WBASE = NX * XSLOT
WSLOT = 20480; NW = 5
GWBASE = WBASE + NW * WSLOT
K1_LDS = GWBASE + 5120


class Asm:
    def __init__(self):
        self.L = []
    def __call__(self, s):
        for line in s.split('\n'):
            line = line.strip()
            if line:
                self.L.append(line if line.endswith(':') else '    ' + line)
    def c(self, s):
        self.L.append('    ; ' + s)
    def text(self):
        return '\n'.join(self.L) + '\n'


def vr(b, n=4):
    return f'v[{b}:{b+n-1}]'


def srd(A, d, lo, nbytes):
    A(f's_mov_b32 s{d}, s{lo}\ns_mov_b32 s{d+1}, s{lo+1}\ns_mov_b32 s{d+2}, {nbytes}\ns_mov_b32 s{d+3}, 0x20000')


LOG2E = 0x3fb8aa3b
NLOG2E = 0xbfb8aa3b
EPS = 0x358637bd

ACC = 96
XF = 64
WF = 24
def acc(i, t): return ACC + 20 * i + 4 * t


def k1_mainloop(A, kv, tag):
    def addr_update(par_next):
        A(f's_add_u32 s50, s50, {WSLOT}\ns_cmp_ge_u32 s50, {NW*WSLOT}\ns_cselect_b32 s50, 0, s50')
        if par_next == 0:
            A(f's_add_u32 s51, s51, {XSLOT}\ns_cmp_ge_u32 s51, {NX*XSLOT}\ns_cselect_b32 s51, 0, s51')
        if not kv:
            A('s_add_u32 s53, s53, 1\ns_cmp_ge_u32 s53, 20\ns_cselect_b32 s53, 0, s53')
            tile4off()
        setaddr(par_next)
    def tile4off():
        A('s_lshr_b32 s56, s53, 2\ns_lshl_b32 s56, s56, 10\ns_and_b32 s57, s53, 3\ns_lshl_b32 s57, s57, 7\ns_add_u32 s56, s56, s57')
        A('s_cmp_lg_u32 s55, 0\ns_cselect_b32 s52, s56, s50')
    def setaddr(par):
        for t in range(4):
            A(f'v_add_u32 v{15+t}, s50, v{10+t}')
        A(f'v_add_u32 v19, s{50 if kv else 52}, v14')
        A(f'v_add_u32 v22, s51, v{20+par}')
    def rdW(p, t, h):
        b = WF + 20 * p + 4 * t + 2 * h
        A(f'ds_read_b64_tr_b16 {vr(b,2)}, v{15+t} offset:{512*h}')
    def rdX(i):
        A(f'ds_read_b128 {vr(XF+4*i)}, v22 offset:{2048*i}')
    def mfma(i, t, p):
        w = vr(WF + 20 * p + 4 * t); x = vr(XF + 4 * i); d = vr(acc(i, t))
        if kv:
            A(f'v_mfma_f32_16x16x32_bf16 {d}, {x}, {w}, {d}')
        else:
            A(f'v_mfma_f32_16x16x32_bf16 {d}, {w}, {x}, {d}')
    A('s_mov_b32 s50, 0\ns_mov_b32 s51, 0\ns_mov_b32 s54, 0')
    if not kv:
        tile4off()
    setaddr(0)
    A('s_barrier')
    for t in range(5):
        rdW(0, t, 0); rdW(0, t, 1)
    A('s_waitcnt lgkmcnt(6)')
    for i in range(8):
        rdX(i)
    addr_update(1)
    A(f'L_{tag}_loop:')
    for p in range(2):
        A('s_waitcnt lgkmcnt(2)')
        A('s_barrier')
        for i in range(8):
            if i == 2:
                A('s_waitcnt lgkmcnt(6)')
            for t in range(5):
                mfma(i, t, p)
                if i < 5 and t in (0, 2):
                    rdW(1 - p, i, t // 2)
            rdX(i)
        addr_update(p)
    A(f's_add_u32 s54, s54, 1\ns_cmp_lt_u32 s54, 10\ns_cbranch_scc1 L_{tag}_loop')
    A('s_waitcnt lgkmcnt(0)')
    A('s_nop 7')


def phi_inplace(A, regs):
    T = 24
    for n, b in enumerate(regs):
        t = T + 4 * (n % 4)
        A(f'v_pk_mul_f32 {vr(t,2)}, {vr(b,2)}, s[60:61]')
        A(f'v_pk_mul_f32 {vr(t+2,2)}, {vr(b+2,2)}, s[60:61]')
        for j in range(4):
            A(f'v_exp_f32 v{t+j}, v{t+j} clamp')
        for j in range(4):
            A(f'v_max_f32 v{b+j}, s66, v{b+j}')
        A(f'v_pk_add_f32 {vr(b,2)}, {vr(b,2)}, {vr(t,2)}')
        A(f'v_pk_add_f32 {vr(b+2,2)}, {vr(b+2,2)}, {vr(t+2,2)}')


def k1_loader(A, gc, tag):
    issued = []
    piece = [0]
    def issueW(n):
        base = (n % NW) * WSLOT
        for L in range(5):
            if L == 4 and gc and n >= 15:
                continue
            A(f's_add_u32 m0, s77, {base + L*1024}')
            sr = 28 if L < 2 else (32 if L < 4 else 36)
            so = 70 if L < 4 else 71
            A('s_nop 0')
            A(f'buffer_load_dwordx4 v{10+L}, s[{sr}:{sr+3}], s{so} offen lds')
            issued.append(('W', n))
        A('s_add_u32 s70, s70, s73\ns_cmp_ge_u32 s70, s74\ns_cselect_b32 s70, 0, s70')
        if gc:
            inc = 128 if (n % 5) != 4 else 32 * 1280 - 512
            A(f's_add_u32 s71, s71, {inc}')
        else:
            A('s_add_u32 s71, s71, s75\ns_cmp_ge_u32 s71, s76\ns_cselect_b32 s71, 0, s71')
    def issueX(b):
        base = (b % NX) * XSLOT
        for i in range(4):
            A(f's_add_u32 m0, s78, {base + i*1024}')
            A('s_nop 0')
            A(f'buffer_load_dwordx4 v{16+i}, s[24:27], s72 offen lds')
            issued.append(('X', b))
        A('s_add_u32 s72, s72, 128\ns_cmp_ge_u32 s72, 1280\ns_cselect_b32 s72, 0, s72')
    def wait_for(n):
        need = [k for k, it in enumerate(issued) if it == ('W', n) or it == ('X', n >> 1)]
        last = max(need)
        A(f's_waitcnt vmcnt({len(issued) - 1 - last})')
    if gc:
        A('v_lshlrev_b32 v30, 1, v2')
        for j in range(10):
            A(f'buffer_load_ushort v{40+j}, v30, s[44:47], 0 offen offset:{128*j}')
    issueX(0); issueW(0); issueW(1); issueX(1); issueW(2); issueW(3); issueX(2); issueW(4)
    if gc:
        A('v_and_b32 v31, 3, v2\nv_lshlrev_b32 v31, 3, v31')
        A('v_bfe_u32 v32, v2, 2, 1\nv_lshl_add_u32 v31, v32, 9, v31')
        A('v_bfe_u32 v32, v2, 3, 2\nv_lshl_add_u32 v31, v32, 5, v31')
        A('v_bfe_u32 v32, v2, 5, 1\nv_lshl_add_u32 v31, v32, 7, v31')
        A(f'v_add_u32 v31, {GWBASE}, v31')
        A(f's_waitcnt vmcnt({len(issued)})')
        for j in range(10):
            A(f'v_lshl_or_b32 v{60+2*j}, v{40+j}, 16, v{40+j}\nv_mov_b32 v{61+2*j}, v{60+2*j}')
            A(f'ds_write_b64 v31, v[{60+2*j}:{61+2*j}] offset:{(j>>1)*1024 + (j&1)*256}')
    for n in range(21):
        if n <= 19:
            wait_for(n)
        if gc:
            A('s_waitcnt lgkmcnt(0)')
        A('s_barrier')
        if gc and n < 15:
            base = (n % NW) * WSLOT
            A(f'v_add_u32 v25, {base}, v24')
            A('ds_read_b64_tr_b16 v[28:29], v25')
            A('ds_read_b64_tr_b16 v[30:31], v25 offset:10240')
        j = n - 1
        if 0 <= j and j + NW <= 19:
            issueW(j + NW)
        if n >= 3 and n % 2 == 1 and (n - 3) // 2 + NX <= 9:
            issueX((n - 3) // 2 + NX)
        if gc and n < 15:
            A(f's_add_u32 s82, s80, {4*(n%5)}')
            A('s_mul_i32 s83, s82, 52429\ns_lshr_b32 s83, s83, 18')
            A('s_mul_i32 s84, s83, 5\ns_sub_u32 s84, s82, s84')
            A(f's_mul_i32 s83, s83, 68\ns_add_u32 s83, s83, s81\ns_add_u32 s83, s83, {n//5}')
            A('s_mul_i32 s83, s83, 5\ns_add_u32 s83, s83, s84\ns_lshl_b32 s83, s83, 10')
            A(f's_add_u32 s83, s83, {W2_OFF}')
            A('s_waitcnt lgkmcnt(0)')
            A('buffer_store_dwordx4 v[28:31], v26, s[40:43], s83 offen')
            A('s_nop 1')
    A('s_endpgm')


def gen_k1(A):
    A('.globl k1_kernel\n.p2align 8\n.type k1_kernel,@function\nk1_kernel:')
    A('s_cmp_ge_u32 s2, 256\ns_cbranch_scc1 L_k1_end')
    A('s_load_dwordx4 s[4:7], s[0:1], 0')
    A('s_load_dwordx4 s[8:11], s[0:1], 32')
    A('s_load_dwordx4 s[12:15], s[0:1], 48')
    A('s_load_dwordx2 s[16:17], s[0:1], 80')
    A.c('decode: s18 rb, s19 cq, s20 m, s21 wave, s22 gtype, s23 rot')
    A('s_and_b32 s3, s2, 7\ns_lshr_b32 s48, s2, 3')
    A('s_and_b32 s18, s3, 1\ns_lshl_b32 s18, s18, 3\ns_and_b32 s49, s48, 7\ns_add_u32 s18, s18, s49')
    A('s_lshr_b32 s19, s3, 1\ns_lshr_b32 s20, s48, 3')
    A('s_mul_i32 s22, s19, 3\ns_add_u32 s22, s22, s20\ns_sub_u32 s22, s22, 1')
    A('s_mul_i32 s23, s49, 5\ns_lshr_b32 s23, s23, 2\ns_mul_i32 s48, s20, 5\ns_lshr_b32 s48, s48, 1\ns_add_u32 s23, s23, s48')
    A('s_cmp_ge_u32 s23, 10\ns_cselect_b32 s48, 10, 0\ns_sub_u32 s23, s23, s48')
    if not ROT:
        A('s_mov_b32 s23, 0')
    A('v_lshrrev_b32 v1, 6, v0\nv_and_b32 v2, 63, v0\ns_nop 0\nv_readfirstlane_b32 s21, v1')
    A.c('s55 = is_gc (m != 0 and gtype >= 10)')
    A('s_cmp_ge_u32 s22, 10\ns_cselect_b32 s55, 1, 0\ns_cmp_eq_u32 s20, 0\ns_cselect_b32 s55, 0, s55')
    A('s_waitcnt lgkmcnt(0)')
    srd(A, 24, 4, 2621440)
    srd(A, 40, 16, WS_USED)
    srd(A, 44, 14, 1280)
    A('s_cmp_eq_u32 s20, 0')
    A('s_cselect_b32 s28, s6, s8\ns_cselect_b32 s29, s7, s9\ns_cselect_b32 s30, 2457600, 1966080\ns_mov_b32 s31, 0x20000'.replace('s_cselect_b32 s30, 2457600, 1966080', 's_mov_b32 s48, 1966080\ns_cselect_b32 s30, 2457600, s48'))
    A('s_cselect_b32 s32, s6, s10\ns_cselect_b32 s33, s7, s11\ns_mov_b32 s34, s30\ns_mov_b32 s35, 0x20000')
    A('s_cmp_lg_u32 s55, 0')
    A('s_cselect_b32 s36, s12, s6\ns_cselect_b32 s37, s13, s7\ns_cselect_b32 s38, s48, 2457600\ns_mov_b32 s39, 0x20000')
    A('s_cmp_ge_u32 s21, 4\ns_cbranch_scc1 L_k1_loader')

    A.c('compute wave setup: v3=q v4=r v5=c v6=f<<5 v7=rowpart')
    A('v_lshrrev_b32 v3, 4, v2\nv_bfe_u32 v4, v2, 2, 2\nv_and_b32 v5, 3, v2')
    A('v_lshrrev_b32 v6, 1, v4\nv_and_b32 v8, 1, v3\nv_lshl_add_u32 v6, v8, 1, v6\nv_lshlrev_b32 v6, 5, v6')
    A(f'v_mul_u32_u24 v7, 5120, v3\nv_lshl_add_u32 v7, v4, 7, v7\nv_add_u32 v7, {WBASE}, v7')
    A('v_and_b32 v8, 15, v2\nv_lshrrev_b32 v9, 1, v8\nv_xor_b32 v9, v9, v3\nv_lshlrev_b32 v9, 4, v9\nv_lshl_add_u32 v20, v8, 7, v9\nv_xor_b32 v21, 64, v20')
    for r in range(ACC, 256):
        A(f'v_mov_b32 v{r}, 0')
    A(f's_mov_b32 s60, {LOG2E}\ns_mov_b32 s61, {LOG2E}\ns_mov_b32 s62, {NLOG2E}\ns_mov_b32 s63, {NLOG2E}')
    A(f's_mov_b32 s64, 1.0\ns_mov_b32 s65, 1.0\ns_mov_b32 s66, {EPS}')
    A('s_cmp_eq_u32 s20, 0\ns_cbranch_scc1 L_k1_kv')

    A('s_lshr_b32 s48, s21, 1\ns_lshl_b32 s48, s48, 10\ns_and_b32 s49, s21, 1\ns_lshl_b32 s49, s49, 3')
    A('v_add_u32 v8, s49, v5\nv_lshlrev_b32 v8, 3, v8\nv_xor_b32 v9, v8, v6\nv_add3_u32 v10, v9, v7, s48')
    A('v_add_u32 v8, 32, v8\nv_xor_b32 v9, v8, v6\nv_add3_u32 v11, v9, v7, s48')
    A('v_add_u32 v12, 2048, v10\nv_add_u32 v13, 2048, v11')
    A('s_lshl_b32 s49, s21, 2\nv_add_u32 v8, s49, v5\nv_lshlrev_b32 v8, 3, v8\nv_xor_b32 v9, v8, v6\nv_add_u32 v14, v9, v7\nv_add_u32 v14, 4096, v14')
    A('s_cmp_eq_u32 s55, 0\ns_cbranch_scc1 L_k1_g_notgc')
    A(f'v_lshlrev_b32 v14, 5, v3\nv_lshl_add_u32 v14, v4, 3, v14\nv_add_u32 v14, {GWBASE}, v14')
    A('L_k1_g_notgc:')
    A('s_lshl_b32 s53, s23, 1')
    k1_mainloop(A, False, 'k1g')
    A.c('h = u * sigmoid(g)')
    A('v_lshlrev_b32 v4, 4, v2')
    A(f's_mul_i32 s72, s18, {2*68*4096}\ns_add_u32 s73, s72, {68*4096}')
    A('s_lshl_b32 s48, s22, 2\ns_add_u32 s48, s48, s21\ns_lshl_b32 s48, s48, 12\ns_add_u32 s70, s72, s48\ns_add_u32 s71, s73, s48')
    for i in range(8):
        g = acc(i, 0); u = acc(i, 2)
        for j in range(4):
            A(f'v_pk_mul_f32 {vr(g+2*j,2)}, {vr(g+2*j,2)}, s[62:63]')
        for j in range(8):
            A(f'v_exp_f32 v{g+j}, v{g+j}')
        for j in range(4):
            A(f'v_pk_add_f32 {vr(g+2*j,2)}, {vr(g+2*j,2)}, s[64:65]')
        for j in range(8):
            A(f'v_rcp_f32 v{g+j}, v{g+j}')
        for j in range(4):
            A(f'v_pk_mul_f32 {vr(u+2*j,2)}, {vr(u+2*j,2)}, {vr(g+2*j,2)}')
        for j in range(4):
            A(f'v_cvt_pk_bf16_f32 v{g+j}, v{u+2*j}, v{u+2*j+1}')
        A(f'buffer_store_dwordx4 {vr(g)}, v4, s[40:43], s{70 + (i>>2)} offen offset:{(i&3)*1024}')
    A('s_cmp_lg_u32 s55, 0\ns_cbranch_scc1 L_k1_gc_epi')
    A.c('pq = phi(q)')
    A('s_lshl_b32 s48, s22, 4\ns_lshl_b32 s49, s21, 2\ns_add_u32 s48, s48, s49\nv_add_u32 v5, s48, v3')
    A('v_mul_u32_u24 v6, 6554, v5\nv_lshrrev_b32 v6, 16, v6')
    A('v_mul_u32_u24 v7, 10, v6\nv_sub_u32 v7, v5, v7')
    A('v_lshrrev_b32 v8, 2, v6\nv_and_b32 v6, 3, v6')
    A('v_mul_u32_u24 v8, 5, v8\nv_lshrrev_b32 v9, 1, v7\nv_add3_u32 v8, v8, v9, 48\nv_lshlrev_b32 v8, 12, v8')
    A('v_and_b32 v9, 15, v2\nv_lshl_add_u32 v9, v6, 4, v9\nv_lshl_add_u32 v8, v9, 4, v8')
    A('v_and_b32 v7, 1, v7\nv_lshl_add_u32 v8, v7, 3, v8')
    phi_inplace(A, [acc(i, 4) for i in range(8)])
    for i in range(8):
        b = acc(i, 4)
        A(f'v_cvt_pk_bf16_f32 v{b}, v{b}, v{b+1}\nv_cvt_pk_bf16_f32 v{b+1}, v{b+2}, v{b+3}')
        A(f'buffer_store_dwordx2 {vr(b,2)}, v8, s[40:43], s{72 + (i>>2)} offen offset:{(i&3)*1024}')
    A('s_endpgm')
    A('L_k1_gc_epi:')
    A.c('gate g = sigmoid(logit)')
    A('v_and_b32 v8, 15, v2\nv_lshlrev_b32 v8, 2, v8')
    A(f's_lshl_b32 s48, s18, 9\ns_add_u32 s48, s48, {G_OFF}')
    for i in range(8):
        A(f'v_mul_f32 v{acc(i,4)}, s62, v{acc(i,4)}')
    for i in range(8):
        A(f'v_exp_f32 v{acc(i,4)}, v{acc(i,4)}')
    for i in range(8):
        A(f'v_add_f32 v{acc(i,4)}, 1.0, v{acc(i,4)}')
    for i in range(8):
        A(f'v_rcp_f32 v{acc(i,4)}, v{acc(i,4)}')
    A('s_nop 0')
    for i in range(8):
        A(f'buffer_store_dword v{acc(i,4)}, v8, s[40:43], s48 offen offset:{64*i}')
    A('s_endpgm')

    A('L_k1_kv:')
    A('s_mul_i32 s48, s21, 10\ns_and_b32 s49, s19, 1\ns_lshl_b32 s49, s49, 3\ns_sub_u32 s48, s48, s49')
    def kvaddr(dst, uexpr_v, isv_v):
        A(f'v_add_u32 v9, 40, {uexpr_v}\nv_cmp_gt_i32 vcc, 0, {uexpr_v}\ns_nop 1\nv_cndmask_b32 v8, {uexpr_v}, v9, vcc')
        A(f'v_lshrrev_b32 v9, 4, v8\nv_lshl_add_u32 v9, {isv_v}, 1, v9\nv_and_b32 v23, 15, v8')
        A(f'v_lshl_add_u32 v1, {isv_v}, 3, v23')
        A('v_cmp_gt_u32 vcc, 32, v8\ns_nop 1\nv_cndmask_b32 v9, 4, v9, vcc\nv_cndmask_b32 v23, v1, v23, vcc')
        A(f'v_lshlrev_b32 v23, 3, v23\nv_xor_b32 v23, v23, v6\nv_lshlrev_b32 v1, 4, {isv_v}\nv_xor_b32 v23, v23, v1')
        A(f'v_lshl_add_u32 v23, v9, 10, v23\nv_add_u32 v{dst}, v23, v7')
    A('v_mov_b32 v16, 0\nv_mov_b32 v17, 1\nv_add_u32 v15, s48, v5')
    kvaddr(10, 'v15', 'v16'); kvaddr(12, 'v15', 'v17')
    A('v_add_u32 v15, 4, v15')
    kvaddr(11, 'v15', 'v16'); kvaddr(13, 'v15', 'v17')
    A('v_and_b32 v15, 1, v5\nv_add3_u32 v15, v15, s48, 8\nv_lshrrev_b32 v16, 1, v5')
    kvaddr(14, 'v15', 'v16')
    k1_mainloop(A, True, 'k1kv')
    A.c('KV epilogue')
    A('v_and_b32 v8, 15, v2\nv_cmp_gt_u32 s[68:69], 8, v8')
    phi_inplace(A, [acc(i, t) for i in range(8) for t in (0, 1)])
    for i in range(8):
        b = acc(i, 4); t = 24 + 4 * (i % 4); s = 40 + 4 * (i % 4)
        A(f'v_pk_mul_f32 {vr(t,2)}, {vr(b,2)}, s[60:61]\nv_pk_mul_f32 {vr(t+2,2)}, {vr(b+2,2)}, s[60:61]')
        for j in range(4):
            A(f'v_exp_f32 v{t+j}, v{t+j} clamp')
        for j in range(4):
            A(f'v_max_f32 v{s+j}, s66, v{b+j}')
        A(f'v_pk_add_f32 {vr(s,2)}, {vr(s,2)}, {vr(t,2)}\nv_pk_add_f32 {vr(s+2,2)}, {vr(s+2,2)}, {vr(t+2,2)}')
        for j in range(4):
            A(f'v_cndmask_b32 v{b+j}, v{b+j}, v{s+j}, s[68:69]')
    for kk in range(4):
        for t in range(5):
            a = acc(2 * kk, t); b = acc(2 * kk + 1, t)
            A(f'v_cvt_pk_bf16_f32 v{a}, v{a}, v{a+1}\nv_cvt_pk_bf16_f32 v{a+1}, v{a+2}, v{a+3}')
            A(f'v_cvt_pk_bf16_f32 v{a+2}, v{b}, v{b+1}\nv_cvt_pk_bf16_f32 v{a+3}, v{b+2}, v{b+3}')
    A('v_mov_b32 v12, 0x3f803f80\nv_mov_b32 v13, v12\nv_mov_b32 v14, v12\nv_mov_b32 v15, v12')
    A('v_lshlrev_b32 v4, 4, v2\nv_lshlrev_b32 v5, 2, v2')
    KT = {0: 0, 1: 1, 2: 4}; VT = {0: 2, 1: 3, 2: 4}
    prods = [(0, 0), (1, 0), (0, 1), (1, 1), (2, 1), (1, 2), (2, 2)]
    A('s_nop 1')
    for kk in range(4):
        for n, (tv, tk) in enumerate(prods):
            d = vr(24 + 4 * n)
            A(f'v_mfma_f32_16x16x32_bf16 {d}, {vr(acc(2*kk,VT[tv]))}, {vr(acc(2*kk,KT[tk]))}, {d if kk else 0}')
        for tk in range(3):
            d = vr(52 + 4 * tk)
            A(f'v_mfma_f32_16x16x32_bf16 {d}, v[12:15], {vr(acc(2*kk,KT[tk]))}, {d if kk else 0}')
    A(f's_lshl_b32 s48, s19, 2\ns_add_u32 s48, s48, s21\ns_lshl_b32 s48, s48, 4\ns_add_u32 s48, s48, s18\ns_mul_i32 s48, s48, 10240\ns_add_u32 s70, s48, {KVP_OFF}')
    A('s_add_u32 s71, s70, 4096\ns_add_u32 s72, s70, 8192')
    A('s_nop 7')
    for n, (tv, tk) in enumerate(prods):
        slot = tv * 3 + tk
        A(f'buffer_store_dwordx4 {vr(24+4*n)}, v4, s[40:43], s{70 + (slot>>2)} offen offset:{(slot&3)*1024}')
    for tk in range(3):
        A(f'buffer_store_dword v{52+4*tk}, v5, s[40:43], s72 offen offset:{1024 + 256*tk}')
    A('s_endpgm')

    A('L_k1_loader:')
    A.c('s79 = lw ; v3=row8 v4=cs v5=R v6 = logical chunk')
    A('s_sub_u32 s79, s21, 4')
    A('v_lshrrev_b32 v3, 3, v2\nv_and_b32 v4, 7, v2\ns_lshl_b32 s48, s79, 3\nv_add_u32 v5, s48, v3')
    A('v_bfe_u32 v6, v3, 1, 1\ns_and_b32 s48, s79, 1\ns_lshl_b32 s48, s48, 1\nv_add_u32 v6, s48, v6\nv_lshlrev_b32 v6, 1, v6\nv_xor_b32 v6, v6, v4')
    A('s_lshl_b32 s48, s18, 7\ns_lshl_b32 s49, s79, 5\ns_add_u32 s48, s48, s49\nv_add_u32 v7, s48, v3\nv_mul_u32_u24 v7, 1280, v7')
    A('v_lshrrev_b32 v8, 4, v2\nv_xor_b32 v8, v8, v4\nv_lshl_add_u32 v16, v8, 4, v7')
    A('v_xor_b32 v8, 4, v8\nv_lshl_add_u32 v17, v8, 4, v7\nv_add_u32 v17, 10240, v17')
    A('v_add_u32 v18, 20480, v16\nv_add_u32 v19, 20480, v17')
    A(f's_mul_i32 s77, s79, 5120\ns_add_u32 s77, s77, {WBASE}\ns_lshl_b32 s78, s79, 12')
    A('s_lshl_b32 s72, s23, 7')
    A(f's_mov_b32 s75, {32*3840}\ns_mov_b32 s76, {640*3840}\ns_mul_i32 s71, s23, {64*3840}')
    A('s_cmp_eq_u32 s20, 0\ns_cbranch_scc1 L_k1_ld_kv')
    A(f's_mov_b32 s73, {32*3072}\ns_mov_b32 s74, {640*3072}\ns_mul_i32 s70, s23, {64*3072}')
    A('v_mul_u32_u24 v7, 3072, v5\nv_lshl_add_u32 v7, v6, 4, v7\ns_lshl_b32 s48, s22, 8\nv_add_u32 v10, s48, v7\nv_add_u32 v11, 128, v10\nv_mov_b32 v12, v10\nv_mov_b32 v13, v11')
    A('s_cmp_lg_u32 s55, 0\ns_cbranch_scc1 L_k1_ld_gc')
    A('v_mul_u32_u24 v7, 3840, v5\nv_lshl_add_u32 v7, v6, 4, v7\ns_lshl_b32 s48, s22, 7\nv_add_u32 v14, s48, v7')
    A('s_branch L_k1_ld_run')
    A('L_k1_ld_kv:')
    A('s_mov_b32 s73, s75\ns_mov_b32 s74, s76\ns_mov_b32 s70, s71')
    A('s_mul_i32 s48, s19, 320\ns_add_u32 s48, s48, 1280\ns_and_b32 s49, s19, 1\ns_lshl_b32 s58, s49, 6\ns_add_u32 s58, s58, s48')
    A('v_mul_u32_u24 v7, 3840, v5\nv_lshl_add_u32 v8, v6, 4, v7\nv_add_u32 v10, s58, v8\nv_add_u32 v11, 128, v10')
    A('v_xor_b32 v9, 1, v6\nv_lshl_add_u32 v8, v9, 4, v7\nv_add_u32 v12, s58, v8\nv_add_u32 v12, 1280, v12\nv_add_u32 v13, 128, v12')
    A('s_cmp_eq_u32 s49, 0\ns_cselect_b32 s58, 256, 0\ns_add_u32 s58, s58, s48')
    A('v_lshrrev_b32 v8, 2, v6\nv_and_b32 v9, 3, v6\nv_xor_b32 v9, v9, v8\nv_lshl_add_u32 v9, v9, 4, v7\nv_mul_u32_u24 v8, 1280, v8\nv_add3_u32 v14, v9, v8, s58')
    A('L_k1_ld_run:')
    k1_loader(A, False, 'k1l')
    A('L_k1_ld_gc:')
    A('v_mul_u32_u24 v7, 1280, v5\nv_lshl_add_u32 v14, v6, 4, v7')
    A('s_sub_u32 s48, s22, 10\ns_mul_i32 s80, s48, 20\ns_add_u32 s80, s80, s79\ns_mul_i32 s81, s18, 3')
    A(f's_mul_i32 s71, s81, {32*1280}\ns_mul_i32 s48, s48, 640\ns_add_u32 s71, s71, s48')
    A('v_lshrrev_b32 v20, 4, v2\nv_bfe_u32 v21, v2, 2, 2\nv_and_b32 v22, 3, v2')
    A('v_lshrrev_b32 v23, 1, v20\nv_mul_u32_u24 v24, 5120, v23')
    A('v_lshrrev_b32 v25, 1, v21\nv_lshl_add_u32 v25, v23, 1, v25\nv_xor_b32 v25, s79, v25\nv_lshl_add_u32 v24, v25, 5, v24')
    A('v_and_b32 v25, 1, v20\nv_lshl_add_u32 v25, v25, 2, v21\nv_lshl_add_u32 v24, v25, 7, v24\nv_lshl_add_u32 v24, v22, 3, v24')
    A(f'v_add_u32 v24, {WBASE + 4096}, v24\nv_lshlrev_b32 v26, 4, v2')
    k1_loader(A, True, 'k1lgc')
    A('L_k1_end:\ns_endpgm')


K2_LDS = 65536
def gen_k2(A):
    A('.globl k2_kernel\n.p2align 8\n.type k2_kernel,@function\nk2_kernel:')
    A('s_cmp_ge_u32 s2, 256\ns_cbranch_scc1 L_k2_end')
    A('s_load_dwordx2 s[4:5], s[0:1], 16')
    A('s_load_dwordx4 s[8:11], s[0:1], 64')
    A('s_load_dwordx2 s[12:13], s[0:1], 80')
    A.c('s18 rb64, s19 cg, s21 wave')
    A('s_and_b32 s3, s2, 7\ns_lshr_b32 s48, s2, 3')
    A('s_and_b32 s18, s3, 1\ns_lshl_b32 s18, s18, 4\ns_bfe_u32 s49, s3, 0x10001\ns_lshl_b32 s49, s49, 3\ns_add_u32 s18, s18, s49\ns_and_b32 s22, s48, 7\ns_add_u32 s18, s18, s22')
    A('s_lshr_b32 s19, s3, 2\ns_lshl_b32 s19, s19, 2\ns_lshr_b32 s20, s48, 3\ns_add_u32 s19, s19, s20')
    A('v_lshrrev_b32 v1, 6, v0\nv_and_b32 v2, 63, v0\ns_nop 0\nv_readfirstlane_b32 s21, v1')
    A('v_lshrrev_b32 v3, 4, v2\nv_and_b32 v4, 15, v2\nv_lshlrev_b32 v5, 4, v2')
    A('s_waitcnt lgkmcnt(0)')
    srd(A, 24, 4, 819200)
    srd(A, 28, 8, 2621440)
    srd(A, 40, 12, WS_USED)
    A('s_cmp_eq_u32 s21, 4\ns_cbranch_scc1 L_k2_helper')

    AC = 16
    BUF = 96
    NB = 2
    PQ = 168
    def a2(rt, t): return AC + 20 * rt + 4 * t
    def hb(s, rt): return BUF + 36 * (s % NB) + 4 * rt
    def wb(s, t): return BUF + 36 * (s % NB) + 16 + 4 * t
    def pq(kk, rt): return PQ + 16 * kk + 4 * rt
    A('s_mul_i32 s23, s22, 3\ns_lshr_b32 s23, s23, 1\ns_mul_i32 s48, s20, 3\ns_add_u32 s23, s23, s48\ns_cmp_ge_u32 s23, 12\ns_cselect_b32 s48, 12, 0\ns_sub_u32 s23, s23, s48')
    if not ROT:
        A('s_mov_b32 s23, 0')
    A('s_mul_i32 s48, s21, 12\ns_mul_i32 s50, s18, 68\ns_add_u32 s52, s50, s48\ns_lshl_b32 s52, s52, 12')
    A(f's_mul_i32 s51, s19, 68\ns_add_u32 s53, s51, s48\ns_mul_i32 s53, s53, 5120\ns_add_u32 s53, s53, {W2_OFF}')
    A('s_mul_i32 s48, s21, 5\ns_add_u32 s48, s48, 48\ns_add_u32 s54, s50, s48\ns_lshl_b32 s54, s54, 12')
    A(f's_add_u32 s55, s51, s48\ns_mul_i32 s55, s55, 5120\ns_add_u32 s55, s55, {W2_OFF}')
    A('v_add_u32 v6, 4096, v5')
    A(f's_lshl_b32 s48, s18, 8\ns_add_u32 s48, s48, {G_OFF}\nv_lshlrev_b32 v7, 2, v4')
    Q = []
    def ld(tag, txt):
        A(txt); Q.append(tag)
    def wait(tags):
        last = max(k for k, t in enumerate(Q) if t in tags)
        A(f's_waitcnt vmcnt({min(63, len(Q) - 1 - last)})')
    def issueB(s):
        A('s_lshl_b32 s56, s23, 12\ns_add_u32 s56, s56, s52\ns_mul_i32 s57, s23, 5120\ns_add_u32 s57, s57, s53')
        for rt in range(4):
            ld(('B', s), f'buffer_load_dwordx4 {vr(hb(s,rt))}, v5, s[40:43], s56 offen offset:{1024*rt}')
        for t in range(4):
            ld(('B', s), f'buffer_load_dwordx4 {vr(wb(s,t))}, v5, s[40:43], s57 offen offset:{1024*t}')
        ld(('B', s), f'buffer_load_dwordx4 {vr(wb(s,4))}, v6, s[40:43], s57 offen')
        A('s_add_u32 s23, s23, 1\ns_cmp_ge_u32 s23, 12\ns_cselect_b32 s23, 0, s23')
    def issueM(kk):
        s = 12 + kk
        A(f's_add_u32 s57, s55, {5120*kk}')
        for t in range(4):
            ld(('B', s), f'buffer_load_dwordx4 {vr(wb(s,t))}, v5, s[40:43], s57 offen offset:{1024*t} sc1')
        ld(('B', s), f'buffer_load_dwordx4 {vr(wb(s,4))}, v6, s[40:43], s57 offen sc1')
    def issuePQ(kk):
        A(f's_add_u32 s56, s54, {4096*kk}')
        for rt in range(4):
            ld(('P', kk), f'buffer_load_dwordx4 {vr(pq(kk,rt))}, v5, s[40:43], s56 offen offset:{1024*rt}')
    for s in range(NB):
        issueB(s)
    for rt in range(4):
        ld(('G', 0), f'buffer_load_dword v{8+rt}, v7, s[40:43], s48 offen offset:{64*rt}')
    for s in range(12):
        wait([('B', s)])
        for rt in range(4):
            for t in range(5):
                d = vr(a2(rt, t))
                A(f'v_mfma_f32_16x16x32_bf16 {d}, {vr(wb(s,t))}, {vr(hb(s,rt))}, {d if s else 0}')
        if s + NB < 12:
            issueB(s + NB)
        if 4 <= s < 9:
            issuePQ(s - 4)
    A('s_barrier')
    A(f's_lshl_b32 s48, s19, 11\ns_mul_i32 s49, s21, 320\ns_add_u32 s48, s48, s49\ns_add_u32 s48, s48, {ZB_OFF}')
    A('v_mul_u32_u24 v7, 80, v3')
    ZR = BUF
    zreg = [hb(0, 0), hb(0, 1), hb(0, 2), hb(0, 3), hb(1, 0)]
    for kk in range(5):
        ld(('Z', 0), f'buffer_load_dwordx4 {vr(zreg[kk])}, v7, s[40:43], s48 offen offset:{16*kk} sc1')
    issueM(0); issueM(1)
    wait([('G', 0)])
    for rt in range(4):
        A(f'v_sub_f32 v{12+rt}, 1.0, v{8+rt}')
    A('s_nop 4')
    for rt in range(4):
        for t in range(5):
            for j in range(4):
                A(f'v_mul_f32 v{a2(rt,t)+j}, v{12+rt}, v{a2(rt,t)+j}')
    A('v_lshrrev_b32 v12, 2, v4\nv_cmp_eq_u32 s[60:61], v12, v3\nv_and_b32 v12, 1, v4\nv_cmp_eq_u32 s[62:63], 0, v12')
    A('s_and_b64 s[64:65], s[60:61], s[62:63]\ns_andn2_b64 s[66:67], s[60:61], s[62:63]')
    wait([('Z', 0), ('P', 4)])
    for kk in range(5):
        for j in range(4):
            odd = (4 * kk + j) >= 10
            m = 's[66:67]' if odd else 's[64:65]'
            A(f'v_cndmask_b32 v{zreg[kk]+j}, 0, v{zreg[kk]+j}, {m}')
    DEN = hb(1, 1)
    den = [hb(1, 1), hb(1, 2), hb(1, 3), 248]
    A('s_nop 1')
    for kk in range(5):
        for rt in range(4):
            d = vr(den[rt])
            A(f'v_mfma_f32_16x16x32_bf16 {d}, {vr(zreg[kk])}, {vr(pq(kk,rt))}, {d if kk else 0}')
    A('s_nop 7')
    A(f's_mov_b32 s68, {EPS}\ns_mov_b32 s69, 0xffff0000')
    for rt in range(4):
        A(f'v_add_f32 v{den[rt]}, s68, v{den[rt]}\nv_add_f32 v{den[rt]+1}, s68, v{den[rt]+1}')
    for rt in range(4):
        A(f'v_rcp_f32 v{den[rt]}, v{den[rt]}\nv_rcp_f32 v{den[rt]+1}, v{den[rt]+1}')
    A('s_nop 0')
    for rt in range(4):
        A(f'v_mul_f32 v{den[rt]}, v{8+rt}, v{den[rt]}\nv_mul_f32 v{den[rt]+1}, v{8+rt}, v{den[rt]+1}')
    for kk in range(5):
        for rt in range(4):
            for j in range(4):
                r = pq(kk, rt) + j
                sc = den[rt] + (1 if (4 * kk + j) >= 10 else 0)
                t0 = 252 + 2 * (j & 1)
                A(f'v_lshlrev_b32 v{t0}, 16, v{r}\nv_and_b32 v{t0+1}, s69, v{r}')
                A(f'v_mul_f32 v{t0}, v{sc}, v{t0}\nv_mul_f32 v{t0+1}, v{sc}, v{t0+1}')
                A(f'v_cvt_pk_bf16_f32 v{r}, v{t0}, v{t0+1}')
        s = 12 + kk
        wait([('B', s)])
        A('s_nop 0')
        for rt in range(4):
            for t in range(5):
                d = vr(a2(rt, t))
                A(f'v_mfma_f32_16x16x32_bf16 {d}, {vr(wb(s,t))}, {vr(pq(kk,rt))}, {d}')
        if kk + NB < 5:
            issueM(kk + NB)
    A('s_nop 7')
    A('s_mul_i32 s48, s21, 5120\nv_add_u32 v7, s48, v5')
    for w in range(4):
        A(f's_cmp_lg_u32 s21, {w}\ns_cbranch_scc1 L_k2_red{w}')
        for rt in range(4):
            if rt == w: continue
            slot = w if w < rt else w - 1
            for t in range(5):
                A(f'ds_write_b128 v5, {vr(a2(rt,t))} offset:{rt*15360 + slot*5120 + t*1024}')
        for t in range(5):
            for j in range(4):
                A(f'v_mov_b32 v{BUF+4*t+j}, v{a2(w,t)+j}')
        A(f'L_k2_red{w}:')
    A('s_mul_i32 s48, s21, 15360\nv_add_u32 v7, s48, v5')
    A('s_waitcnt lgkmcnt(0)\ns_barrier')
    for n in range(15):
        A(f'ds_read_b128 {vr(AC+4*n)}, v7 offset:{1024*n}')
    A('s_lshl_b32 s48, s18, 6\ns_lshl_b32 s49, s21, 4\ns_add_u32 s48, s48, s49\nv_add_u32 v8, s48, v4\nv_mul_u32_u24 v8, 1280, v8\nv_lshl_add_u32 v8, v3, 3, v8\ns_mul_i32 s48, s19, 160')
    for sl in range(3):
        A(f's_waitcnt lgkmcnt({10 - 5*sl})')
        for t in range(5):
            for j in range(0, 4, 2):
                A(f'v_pk_add_f32 {vr(BUF+4*t+j,2)}, {vr(BUF+4*t+j,2)}, {vr(AC+20*sl+4*t+j,2)}')
    for t in range(5):
        b = BUF + 4 * t
        A(f'v_cvt_pk_bf16_f32 v{b}, v{b}, v{b+1}\nv_cvt_pk_bf16_f32 v{b+1}, v{b+2}, v{b+3}')
        A(f'buffer_store_dwordx2 {vr(b,2)}, v8, s[28:31], s48 offen offset:{32*t}')
    A('s_endpgm')

    A('L_k2_helper:')
    HS = 61440
    WOI = 0
    HS = 8192
    A('s_lshr_b32 s50, s18, 1\ns_and_b32 s51, s18, 1')
    for ldi in range(2):
        A(f'v_add_u32 v12, {64*ldi}, v2\nv_mul_u32_u24 v13, 10923, v12\nv_lshrrev_b32 v13, 16, v13')
        A('v_mul_u32_u24 v14, 6, v13\nv_sub_u32 v14, v12, v14')
        A('s_mul_i32 s48, s51, 20\nv_add_u32 v15, s48, v13')
        A('v_lshrrev_b32 v16, 4, v15\nv_and_b32 v17, 15, v15')
        A('s_mul_i32 s48, s51, 5\nv_add_u32 v18, s48, v14\nv_lshrrev_b32 v19, 2, v18\nv_and_b32 v18, 3, v18')
        A('v_lshrrev_b32 v20, 1, v19\nv_lshl_add_u32 v18, v20, 1, v18')
        A('v_mul_u32_u24 v19, 3, v19\nv_add_u32 v19, v19, v16\nv_lshlrev_b32 v19, 10, v19')
        A('v_lshl_add_u32 v18, v18, 4, v17\nv_lshl_add_u32 v19, v18, 4, v19')
        A('v_lshlrev_b32 v20, 8, v16\nv_lshl_add_u32 v20, v17, 2, v20\nv_add_u32 v20, 9216, v20')
        A(f'v_cmp_eq_u32 vcc, 5, v14\ns_nop 1\nv_cndmask_b32 v19, v19, v20, vcc')
        A(f'v_mov_b32 v20, {OOB}\nv_cmp_gt_u32 vcc, 120, v12\ns_nop 1\nv_cndmask_b32 v{10+ldi}, v20, v19, vcc')
    A(f's_mul_i32 s52, s50, {16*10240}\ns_add_u32 s52, s52, {KVP_OFF}')
    for p in range(16):
        for ldi in range(2):
            A(f'buffer_load_dwordx4 {vr(64 + 8*p + 4*ldi)}, v{10+ldi}, s[40:43], s52 offen')
        A('s_add_u32 s52, s52, 10240')
    A('s_mul_i32 s52, s18, 25600\ns_mul_i32 s48, s19, 160\ns_add_u32 s52, s52, s48')
    for i in range(5):
        A(f'v_add_u32 v12, {64*i}, v2\nv_mul_u32_u24 v13, 6554, v12\nv_lshrrev_b32 v13, 16, v13\nv_mul_u32_u24 v14, 10, v13\nv_sub_u32 v14, v12, v14')
        A(f'v_mul_u32_u24 v13, 1280, v13\nv_lshl_add_u32 v13, v14, 4, v13\ns_mov_b32 m0, {WOI + 1024*i}\ns_nop 0')
        A('buffer_load_dwordx4 v13, s[24:27], s52 offen lds')
    for p in range(1, 16):
        A(f's_waitcnt vmcnt({5 + 2*(15-p)})')
        for j in range(0, 8, 2):
            A(f'v_pk_add_f32 {vr(64+j,2)}, {vr(64+j,2)}, {vr(64+8*p+j,2)}')
    A(f'ds_write_b128 v5, v[64:67] offset:{HS}\nds_write_b128 v5, v[68:71] offset:{HS+1024}')
    A('v_mul_u32_u24 v12, 96, v4\nv_lshl_add_u32 v12, v3, 5, v12')
    A('v_mul_u32_u24 v13, 192, v4')
    A('s_waitcnt lgkmcnt(0)')
    for mt in range(2):
        A(f'ds_read_b128 {vr(80+8*mt)}, v12 offset:{HS + 1536*mt}\nds_read_b128 {vr(84+8*mt)}, v12 offset:{HS + 1536*mt + 16}')
    A(f'ds_read_b32 v96, v13 offset:{HS+80}\nds_read_b32 v97, v13 offset:{HS+176}')
    A('v_bfe_u32 v14, v2, 2, 2\nv_lshl_add_u32 v14, v3, 3, v14\nv_mul_u32_u24 v14, 160, v14\nv_and_b32 v15, 3, v2\nv_lshl_add_u32 v14, v15, 3, v14')
    A('v_cmp_gt_u32 s[60:61], 3, v3\nv_cmp_gt_u32 s[62:63], 2, v3')
    A('s_waitcnt vmcnt(0)')
    for t in range(5):
        A(f'ds_read_b64_tr_b16 {vr(100+4*t,2)}, v14 offset:{WOI + 32*t}\nds_read_b64_tr_b16 {vr(102+4*t,2)}, v14 offset:{WOI + 32*t + 640}')
    A('s_waitcnt lgkmcnt(10)')
    for mt in range(2):
        b = 80 + 8 * mt
        for j in range(4):
            A(f'v_cvt_pk_bf16_f32 v{b+j}, v{b+2*j}, v{b+2*j+1}')
        for j in range(4):
            A(f'v_cndmask_b32 v{b+j}, 0, v{b+j}, {"s[60:61]" if j < 2 else "s[62:63]"}')
    A('v_cvt_pk_bf16_f32 v96, v96, v97')
    A('s_mul_i32 s48, s51, 5\ns_and_b32 s49, s50, 3\ns_lshl_b32 s49, s49, 8')
    for mt in range(2):
        A(f'v_add3_u32 v15, v3, s48, {4*mt}\nv_lshrrev_b32 v16, 1, v15\nv_mul_u32_u24 v16, 5120, v16\nv_and_b32 v15, 1, v15\nv_lshl_add_u32 v16, v15, 3, v16')
        A(f'v_lshl_add_u32 v16, v4, 4, v16\nv_add_u32 v{20+mt}, s49, v16')
    A(f'v_mov_b32 v16, {OOB}\nv_cmp_eq_u32 vcc, 0, v3\ns_nop 1\nv_cndmask_b32 v21, v16, v21, vcc')
    A(f'v_lshlrev_b32 v22, 2, v2\nv_cmp_gt_u32 vcc, 10, v2\ns_nop 1\nv_cndmask_b32 v22, v16, v22, vcc')
    A(f's_lshr_b32 s48, s18, 3\ns_mul_i32 s48, s48, 5\ns_mul_i32 s49, s19, 68\ns_add_u32 s48, s48, s49\ns_add_u32 s48, s48, 48\ns_mul_i32 s48, s48, 5120\ns_add_u32 s52, s48, {W2_OFF}\ns_add_u32 s53, s52, 4096')
    A(f's_lshl_b32 s54, s19, 11\ns_mul_i32 s49, s18, 40\ns_add_u32 s54, s54, s49\ns_add_u32 s54, s54, {ZB_OFF}')
    A('s_waitcnt lgkmcnt(0)')
    for mt in range(2):
        for t in range(5):
            A(f'v_mfma_f32_16x16x32_bf16 {vr(128+20*mt+4*t)}, {vr(80+8*mt)}, {vr(100+4*t)}, 0')
    A('buffer_store_dword v96, v22, s[40:43], s54 offen sc1')
    A('s_nop 7')
    for mt in range(2):
        for t in range(5):
            b = 128 + 20 * mt + 4 * t
            A(f'v_cvt_pk_bf16_f32 v{b}, v{b}, v{b+1}\nv_cvt_pk_bf16_f32 v{b+1}, v{b+2}, v{b+3}')
            so, off = (52, 1024 * t) if t < 4 else (53, 0)
            A(f'buffer_store_dwordx2 {vr(b,2)}, v{20+mt}, s[40:43], s{so} offen offset:{off} sc1')
    A('s_waitcnt vmcnt(0)')
    A('s_lshl_b32 s48, s19, 5\nv_mov_b32 v12, s48\nv_mov_b32 v13, 1')
    A('s_mov_b64 s[70:71], exec\ns_mov_b64 exec, 1')
    A('global_atomic_add v12, v13, s[10:11]')
    A('s_mov_b32 s49, 0')
    A('L_k2_poll:')
    A('global_load_dword v14, v12, s[10:11] sc1\ns_waitcnt vmcnt(0)\nv_readfirstlane_b32 s48, v14')
    A('s_cmp_ge_u32 s48, 32\ns_cbranch_scc1 L_k2_polled\ns_sleep 2\ns_add_u32 s49, s49, 1\ns_cmp_lt_u32 s49, 0x40000\ns_cbranch_scc1 L_k2_poll')
    A('L_k2_polled:')
    A('s_barrier')
    A('L_k2_end:\ns_endpgm')


def kd(name, vg=256):
    return f'''.amdhsa_kernel {name}
  .amdhsa_next_free_vgpr {vg}
  .amdhsa_next_free_sgpr 102
  .amdhsa_accum_offset {vg}
  .amdhsa_group_segment_fixed_size 0
  .amdhsa_kernarg_size 88
  .amdhsa_user_sgpr_count 2
  .amdhsa_user_sgpr_kernarg_segment_ptr 1
  .amdhsa_system_sgpr_workgroup_id_x 1
.end_amdhsa_kernel
'''

ROT = True
def main(out):
    A = Asm()
    gen_k1(A)
    gen_k2(A)
    hdr = open('cdna_kernels/' + NAME + '.s.ref').read().split('; Override')[0]
    txt = hdr
    txt += f'; @launch kernel=k1_kernel grid=(256,1,1) block=(512,1,1) lds={K1_LDS}\n'
    txt += f'; @launch kernel=k2_kernel grid=(256,1,1) block=(320,1,1) lds={K2_LDS}\n'
    txt += '.amdgcn_target "amdgcn-amd-amdhsa--gfx950"\n.text\n'
    txt += A.text()
    txt += '.section .rodata,"a"\n.p2align 6\n' + kd('k1_kernel') + '.p2align 6\n' + kd('k2_kernel')
    open(out, 'w').write(txt)

if __name__ == '__main__':
    main(sys.argv[1] if len(sys.argv) > 1 else 'cdna_kernels/' + NAME + '.s')
```

```python
import sys

NAME = 'gated_mix__linear_attn_block__glu_gated_glu__prompt'

HB_OFF = 0
W2_OFF = 0x900000
KVP_OFF = 0xC00000
G_OFF = 0xF00000
ZB_OFF = 0xF10000
WS_USED = 0x1100000
OOB = 0x7FFF0000

XSLOT = 16384; NX = 3
WBASE = NX * XSLOT
WSLOT = 20480; NW = 5
GWBASE = WBASE + NW * WSLOT
K1_LDS = GWBASE + 5120


class Asm:
    def __init__(self):
        self.L = []
    def __call__(self, s):
        for line in s.split('\n'):
            line = line.strip()
            if line:
                self.L.append(line if line.endswith(':') else '    ' + line)
    def c(self, s):
        self.L.append('    ; ' + s)
    def text(self):
        return '\n'.join(self.L) + '\n'


def vr(b, n=4):
    return f'v[{b}:{b+n-1}]'


def srd(A, d, lo, nbytes):
    A(f's_mov_b32 s{d}, s{lo}\ns_mov_b32 s{d+1}, s{lo+1}\ns_mov_b32 s{d+2}, {nbytes}\ns_mov_b32 s{d+3}, 0x20000')


STAMP = False
STAMP_OFF = 0x1000000
def stamp(A, n):
    if STAMP:
        A(f's_memtime s[{86+2*n}:{87+2*n}]')
def stamp_begin(A):
    if STAMP:
        A('s_memrealtime s[100:101]')
        for n in range(7):
            A(f's_mov_b32 s{86+2*n}, 0')
        A('s_memtime s[86:87]')
def stamp_end(A, kern):
    if STAMP:
        A('s_waitcnt vmcnt(0)')
        A('s_memtime s[98:99]')
        A('s_waitcnt lgkmcnt(0)')
        A('s_mov_b64 exec, -1')
        for n in range(7):
            A(f'v_mov_b32 v{100+n}, s{86+2*n}')
        A('v_mov_b32 v107, s100')
        A('s_memrealtime s[100:101]')
        A('s_waitcnt lgkmcnt(0)')
        A('v_mov_b32 v108, s100')
        A(f's_lshl_b32 s3, s2, 3\ns_add_u32 s3, s3, s21\ns_lshl_b32 s3, s3, 6\ns_add_u32 s3, s3, {STAMP_OFF + kern*0x20000}')
        A('v_mov_b32 v109, 0')
        A('s_mov_b64 exec, 1')
        A('buffer_store_dwordx4 v[100:103], v109, s[40:43], s3 offen')
        A('buffer_store_dwordx4 v[104:107], v109, s[40:43], s3 offen offset:16')
        A('buffer_store_dword v108, v109, s[40:43], s3 offen offset:32')
    A('s_endpgm')

LOG2E = 0x3fb8aa3b
NLOG2E = 0xbfb8aa3b
EPS = 0x358637bd

ACC = 96
XF = 64
WF = 24
def acc(i, t): return ACC + 20 * i + 4 * t


def k1_mainloop(A, kv, tag):
    def addr_update(par_next):
        A(f's_add_u32 s50, s50, {WSLOT}\ns_cmp_ge_u32 s50, {NW*WSLOT}\ns_cselect_b32 s50, 0, s50')
        if par_next == 0:
            A(f's_add_u32 s51, s51, {XSLOT}\ns_cmp_ge_u32 s51, {NX*XSLOT}\ns_cselect_b32 s51, 0, s51')
        if not kv:
            A('s_add_u32 s53, s53, 1\ns_cmp_ge_u32 s53, 20\ns_cselect_b32 s53, 0, s53')
            tile4off()
        setaddr(par_next)
    def tile4off():
        A('s_lshr_b32 s56, s53, 2\ns_lshl_b32 s56, s56, 10\ns_and_b32 s57, s53, 3\ns_lshl_b32 s57, s57, 7\ns_add_u32 s56, s56, s57')
        A('s_cmp_lg_u32 s55, 0\ns_cselect_b32 s52, s56, s50')
    def setaddr(par):
        for t in range(4):
            A(f'v_add_u32 v{15+t}, s50, v{10+t}')
        A(f'v_add_u32 v19, s{50 if kv else 52}, v14')
        A(f'v_add_u32 v22, s51, v{20+par}')
    def rdW(p, t, h):
        b = WF + 20 * p + 4 * t + 2 * h
        A(f'ds_read_b64_tr_b16 {vr(b,2)}, v{15+t} offset:{512*h}')
    def rdX(i):
        A(f'ds_read_b128 {vr(XF+4*i)}, v22 offset:{2048*i}')
    def mfma(i, t, p):
        w = vr(WF + 20 * p + 4 * t); x = vr(XF + 4 * i); d = vr(acc(i, t))
        if kv:
            A(f'v_mfma_f32_16x16x32_bf16 {d}, {x}, {w}, {d}')
        else:
            A(f'v_mfma_f32_16x16x32_bf16 {d}, {w}, {x}, {d}')
    A('s_mov_b32 s50, 0\ns_mov_b32 s51, 0\ns_mov_b32 s54, 0')
    if not kv:
        tile4off()
    setaddr(0)
    stamp(A, 1)
    A('s_barrier')
    stamp(A, 2)
    for t in range(5):
        rdW(0, t, 0); rdW(0, t, 1)
    A('s_waitcnt lgkmcnt(6)')
    for i in range(8):
        rdX(i)
    addr_update(1)
    A(f'L_{tag}_loop:')
    for p in range(2):
        A('s_waitcnt lgkmcnt(2)')
        A('s_barrier')
        for i in range(8):
            if i == 2:
                A('s_waitcnt lgkmcnt(6)')
            for t in range(5):
                mfma(i, t, p)
                if i < 5 and t in (0, 2):
                    rdW(1 - p, i, t // 2)
            rdX(i)
        addr_update(p)
    A(f's_add_u32 s54, s54, 1\ns_cmp_lt_u32 s54, 10\ns_cbranch_scc1 L_{tag}_loop')
    stamp(A, 3)
    A('s_waitcnt lgkmcnt(0)')
    A('s_nop 7')


def phi_inplace(A, regs):
    T = 24
    for n, b in enumerate(regs):
        t = T + 4 * (n % 4)
        A(f'v_pk_mul_f32 {vr(t,2)}, {vr(b,2)}, s[60:61]')
        A(f'v_pk_mul_f32 {vr(t+2,2)}, {vr(b+2,2)}, s[60:61]')
        for j in range(4):
            A(f'v_exp_f32 v{t+j}, v{t+j} clamp')
        for j in range(4):
            A(f'v_max_f32 v{b+j}, s66, v{b+j}')
        A(f'v_pk_add_f32 {vr(b,2)}, {vr(b,2)}, {vr(t,2)}')
        A(f'v_pk_add_f32 {vr(b+2,2)}, {vr(b+2,2)}, {vr(t+2,2)}')


def k1_loader(A, gc, tag):
    issued = []
    piece = [0]
    def issueW(n):
        base = (n % NW) * WSLOT
        for L in range(5):
            if L == 4 and gc and n >= 15:
                continue
            A(f's_add_u32 m0, s77, {base + L*1024}')
            sr = 28 if L < 2 else (32 if L < 4 else 36)
            so = 70 if L < 4 else 71
            A('s_nop 0')
            A(f'buffer_load_dwordx4 v{10+L}, s[{sr}:{sr+3}], s{so} offen lds')
            issued.append(('W', n))
        A('s_add_u32 s70, s70, s73\ns_cmp_ge_u32 s70, s74\ns_cselect_b32 s70, 0, s70')
        if gc:
            inc = 128 if (n % 5) != 4 else 32 * 1280 - 512
            A(f's_add_u32 s71, s71, {inc}')
        else:
            A('s_add_u32 s71, s71, s75\ns_cmp_ge_u32 s71, s76\ns_cselect_b32 s71, 0, s71')
    def issueX(b):
        base = (b % NX) * XSLOT
        for i in range(4):
            A(f's_add_u32 m0, s78, {base + i*1024}')
            A('s_nop 0')
            A(f'buffer_load_dwordx4 v{16+i}, s[24:27], s72 offen lds')
            issued.append(('X', b))
        A('s_add_u32 s72, s72, 128\ns_cmp_ge_u32 s72, 1280\ns_cselect_b32 s72, 0, s72')
    def wait_for(n):
        need = [k for k, it in enumerate(issued) if it == ('W', n) or it == ('X', n >> 1)]
        last = max(need)
        A(f's_waitcnt vmcnt({len(issued) - 1 - last})')
    if gc:
        A('v_lshlrev_b32 v30, 1, v2')
        for j in range(10):
            A(f'buffer_load_ushort v{40+j}, v30, s[44:47], 0 offen offset:{128*j}')
    issueX(0); issueW(0); issueW(1); issueX(1); issueW(2); issueW(3); issueX(2); issueW(4)
    if gc:
        A('v_and_b32 v31, 3, v2\nv_lshlrev_b32 v31, 3, v31')
        A('v_bfe_u32 v32, v2, 2, 1\nv_lshl_add_u32 v31, v32, 9, v31')
        A('v_bfe_u32 v32, v2, 3, 2\nv_lshl_add_u32 v31, v32, 5, v31')
        A('v_bfe_u32 v32, v2, 5, 1\nv_lshl_add_u32 v31, v32, 7, v31')
        A(f'v_add_u32 v31, {GWBASE}, v31')
        A(f's_waitcnt vmcnt({len(issued)})')
        for j in range(10):
            A(f'v_lshl_or_b32 v{60+2*j}, v{40+j}, 16, v{40+j}\nv_mov_b32 v{61+2*j}, v{60+2*j}')
            A(f'ds_write_b64 v31, v[{60+2*j}:{61+2*j}] offset:{(j>>1)*1024 + (j&1)*256}')
    stamp(A, 1)
    for n in range(21):
        if n <= 19:
            wait_for(n)
        if n == 0: stamp(A, 2)
        if n == 10: stamp(A, 3)
        if gc:
            A('s_waitcnt lgkmcnt(0)')
        A('s_barrier')
        if gc and n < 15:
            base = (n % NW) * WSLOT
            A(f'v_add_u32 v25, {base}, v24')
            A('ds_read_b64_tr_b16 v[28:29], v25')
            A('ds_read_b64_tr_b16 v[30:31], v25 offset:10240')
        j = n - 1
        if 0 <= j and j + NW <= 19:
            issueW(j + NW)
        if n >= 3 and n % 2 == 1 and (n - 3) // 2 + NX <= 9:
            issueX((n - 3) // 2 + NX)
        if gc and n < 15:
            A(f's_add_u32 s82, s80, {4*(n%5)}')
            A('s_mul_i32 s83, s82, 52429\ns_lshr_b32 s83, s83, 18')
            A('s_mul_i32 s84, s83, 5\ns_sub_u32 s84, s82, s84')
            A(f's_mul_i32 s83, s83, 68\ns_add_u32 s83, s83, s81\ns_add_u32 s83, s83, {n//5}')
            A('s_mul_i32 s83, s83, 5\ns_add_u32 s83, s83, s84\ns_lshl_b32 s83, s83, 10')
            A(f's_add_u32 s83, s83, {W2_OFF}')
            A('s_waitcnt lgkmcnt(0)')
            A('buffer_store_dwordx4 v[28:31], v26, s[40:43], s83 offen')
            A('s_nop 1')
    stamp(A, 4)
    stamp_end(A, 0)


def gen_k1(A):
    A('.globl k1_kernel\n.p2align 8\n.type k1_kernel,@function\nk1_kernel:')
    A('s_cmp_ge_u32 s2, 256\ns_cbranch_scc1 L_k1_end')
    stamp_begin(A)
    A('s_load_dwordx4 s[4:7], s[0:1], 0')
    A('s_load_dwordx4 s[8:11], s[0:1], 32')
    A('s_load_dwordx4 s[12:15], s[0:1], 48')
    A('s_load_dwordx2 s[16:17], s[0:1], 80')
    A.c('decode: s18 rb, s19 cq, s20 m, s21 wave, s22 gtype, s23 rot')
    A('s_and_b32 s3, s2, 7\ns_lshr_b32 s48, s2, 3')
    A('s_and_b32 s18, s3, 1\ns_lshl_b32 s18, s18, 3\ns_and_b32 s49, s48, 7\ns_add_u32 s18, s18, s49')
    A('s_lshr_b32 s19, s3, 1\ns_lshr_b32 s20, s48, 3')
    A('s_mul_i32 s22, s19, 3\ns_add_u32 s22, s22, s20\ns_sub_u32 s22, s22, 1')
    A('s_mul_i32 s23, s49, 5\ns_lshr_b32 s23, s23, 2\ns_mul_i32 s48, s20, 5\ns_lshr_b32 s48, s48, 1\ns_add_u32 s23, s23, s48')
    A('s_cmp_ge_u32 s23, 10\ns_cselect_b32 s48, 10, 0\ns_sub_u32 s23, s23, s48')
    if not ROT:
        A('s_mov_b32 s23, 0')
    A('v_lshrrev_b32 v1, 6, v0\nv_and_b32 v2, 63, v0\ns_nop 0\nv_readfirstlane_b32 s21, v1')
    A.c('s55 = is_gc (m != 0 and gtype >= 10)')
    A('s_cmp_ge_u32 s22, 10\ns_cselect_b32 s55, 1, 0\ns_cmp_eq_u32 s20, 0\ns_cselect_b32 s55, 0, s55')
    A('s_waitcnt lgkmcnt(0)')
    srd(A, 24, 4, 2621440)
    srd(A, 40, 16, WS_USED)
    srd(A, 44, 14, 1280)
    A('s_cmp_eq_u32 s20, 0')
    A('s_cselect_b32 s28, s6, s8\ns_cselect_b32 s29, s7, s9\ns_cselect_b32 s30, 2457600, 1966080\ns_mov_b32 s31, 0x20000'.replace('s_cselect_b32 s30, 2457600, 1966080', 's_mov_b32 s48, 1966080\ns_cselect_b32 s30, 2457600, s48'))
    A('s_cselect_b32 s32, s6, s10\ns_cselect_b32 s33, s7, s11\ns_mov_b32 s34, s30\ns_mov_b32 s35, 0x20000')
    A('s_cmp_lg_u32 s55, 0')
    A('s_cselect_b32 s36, s12, s6\ns_cselect_b32 s37, s13, s7\ns_cselect_b32 s38, s48, 2457600\ns_mov_b32 s39, 0x20000')
    A('s_cmp_ge_u32 s21, 4\ns_cbranch_scc1 L_k1_loader')

    A.c('compute wave setup: v3=q v4=r v5=c v6=f<<5 v7=rowpart')
    A('v_lshrrev_b32 v3, 4, v2\nv_bfe_u32 v4, v2, 2, 2\nv_and_b32 v5, 3, v2')
    A('v_lshrrev_b32 v6, 1, v4\nv_and_b32 v8, 1, v3\nv_lshl_add_u32 v6, v8, 1, v6\nv_lshlrev_b32 v6, 5, v6')
    A(f'v_mul_u32_u24 v7, 5120, v3\nv_lshl_add_u32 v7, v4, 7, v7\nv_add_u32 v7, {WBASE}, v7')
    A('v_and_b32 v8, 15, v2\nv_lshrrev_b32 v9, 1, v8\nv_xor_b32 v9, v9, v3\nv_lshlrev_b32 v9, 4, v9\nv_lshl_add_u32 v20, v8, 7, v9\nv_xor_b32 v21, 64, v20')
    for r in range(ACC, 256):
        A(f'v_mov_b32 v{r}, 0')
    A(f's_mov_b32 s60, {LOG2E}\ns_mov_b32 s61, {LOG2E}\ns_mov_b32 s62, {NLOG2E}\ns_mov_b32 s63, {NLOG2E}')
    A(f's_mov_b32 s64, 1.0\ns_mov_b32 s65, 1.0\ns_mov_b32 s66, {EPS}')
    A('s_cmp_eq_u32 s20, 0\ns_cbranch_scc1 L_k1_kv')

    A('s_lshr_b32 s48, s21, 1\ns_lshl_b32 s48, s48, 10\ns_and_b32 s49, s21, 1\ns_lshl_b32 s49, s49, 3')
    A('v_add_u32 v8, s49, v5\nv_lshlrev_b32 v8, 3, v8\nv_xor_b32 v9, v8, v6\nv_add3_u32 v10, v9, v7, s48')
    A('v_add_u32 v8, 32, v8\nv_xor_b32 v9, v8, v6\nv_add3_u32 v11, v9, v7, s48')
    A('v_add_u32 v12, 2048, v10\nv_add_u32 v13, 2048, v11')
    A('s_lshl_b32 s49, s21, 2\nv_add_u32 v8, s49, v5\nv_lshlrev_b32 v8, 3, v8\nv_xor_b32 v9, v8, v6\nv_add_u32 v14, v9, v7\nv_add_u32 v14, 4096, v14')
    A('s_cmp_eq_u32 s55, 0\ns_cbranch_scc1 L_k1_g_notgc')
    A(f'v_lshlrev_b32 v14, 5, v3\nv_lshl_add_u32 v14, v4, 3, v14\nv_add_u32 v14, {GWBASE}, v14')
    A('L_k1_g_notgc:')
    A('s_lshl_b32 s53, s23, 1')
    k1_mainloop(A, False, 'k1g')
    A.c('h = u * sigmoid(g)')
    A('v_lshlrev_b32 v4, 4, v2')
    A(f's_mul_i32 s72, s18, {2*68*4096}\ns_add_u32 s73, s72, {68*4096}')
    A('s_lshl_b32 s48, s22, 2\ns_add_u32 s48, s48, s21\ns_lshl_b32 s48, s48, 12\ns_add_u32 s70, s72, s48\ns_add_u32 s71, s73, s48')
    for i in range(8):
        g = acc(i, 0); u = acc(i, 2)
        for j in range(4):
            A(f'v_pk_mul_f32 {vr(g+2*j,2)}, {vr(g+2*j,2)}, s[62:63]')
        for j in range(8):
            A(f'v_exp_f32 v{g+j}, v{g+j}')
        for j in range(4):
            A(f'v_pk_add_f32 {vr(g+2*j,2)}, {vr(g+2*j,2)}, s[64:65]')
        for j in range(8):
            A(f'v_rcp_f32 v{g+j}, v{g+j}')
        for j in range(4):
            A(f'v_pk_mul_f32 {vr(u+2*j,2)}, {vr(u+2*j,2)}, {vr(g+2*j,2)}')
        for j in range(4):
            A(f'v_cvt_pk_bf16_f32 v{g+j}, v{u+2*j}, v{u+2*j+1}')
        A(f'buffer_store_dwordx4 {vr(g)}, v4, s[40:43], s{70 + (i>>2)} offen offset:{(i&3)*1024}')
    A('s_cmp_lg_u32 s55, 0\ns_cbranch_scc1 L_k1_gc_epi')
    A.c('pq = phi(q)')
    A('s_lshl_b32 s48, s22, 4\ns_lshl_b32 s49, s21, 2\ns_add_u32 s48, s48, s49\nv_add_u32 v5, s48, v3')
    A('v_mul_u32_u24 v6, 6554, v5\nv_lshrrev_b32 v6, 16, v6')
    A('v_mul_u32_u24 v7, 10, v6\nv_sub_u32 v7, v5, v7')
    A('v_lshrrev_b32 v8, 2, v6\nv_and_b32 v6, 3, v6')
    A('v_mul_u32_u24 v8, 5, v8\nv_lshrrev_b32 v9, 1, v7\nv_add3_u32 v8, v8, v9, 48\nv_lshlrev_b32 v8, 12, v8')
    A('v_and_b32 v9, 15, v2\nv_lshl_add_u32 v9, v6, 4, v9\nv_lshl_add_u32 v8, v9, 4, v8')
    A('v_and_b32 v7, 1, v7\nv_lshl_add_u32 v8, v7, 3, v8')
    phi_inplace(A, [acc(i, 4) for i in range(8)])
    for i in range(8):
        b = acc(i, 4)
        A(f'v_cvt_pk_bf16_f32 v{b}, v{b}, v{b+1}\nv_cvt_pk_bf16_f32 v{b+1}, v{b+2}, v{b+3}')
        A(f'buffer_store_dwordx2 {vr(b,2)}, v8, s[40:43], s{72 + (i>>2)} offen offset:{(i&3)*1024}')
    stamp(A, 4)
    stamp_end(A, 0)
    A('L_k1_gc_epi:')
    A.c('gate g = sigmoid(logit)')
    A('v_and_b32 v8, 15, v2\nv_lshlrev_b32 v8, 2, v8')
    A(f's_lshl_b32 s48, s18, 9\ns_add_u32 s48, s48, {G_OFF}')
    for i in range(8):
        A(f'v_mul_f32 v{acc(i,4)}, s62, v{acc(i,4)}')
    for i in range(8):
        A(f'v_exp_f32 v{acc(i,4)}, v{acc(i,4)}')
    for i in range(8):
        A(f'v_add_f32 v{acc(i,4)}, 1.0, v{acc(i,4)}')
    for i in range(8):
        A(f'v_rcp_f32 v{acc(i,4)}, v{acc(i,4)}')
    A('s_nop 0')
    for i in range(8):
        A(f'buffer_store_dword v{acc(i,4)}, v8, s[40:43], s48 offen offset:{64*i}')
    stamp(A, 4)
    stamp_end(A, 0)

    A('L_k1_kv:')
    A('s_mul_i32 s48, s21, 10\ns_and_b32 s49, s19, 1\ns_lshl_b32 s49, s49, 3\ns_sub_u32 s48, s48, s49')
    def kvaddr(dst, uexpr_v, isv_v):
        A(f'v_add_u32 v9, 40, {uexpr_v}\nv_cmp_gt_i32 vcc, 0, {uexpr_v}\ns_nop 1\nv_cndmask_b32 v8, {uexpr_v}, v9, vcc')
        A(f'v_lshrrev_b32 v9, 4, v8\nv_lshl_add_u32 v9, {isv_v}, 1, v9\nv_and_b32 v23, 15, v8')
        A(f'v_lshl_add_u32 v1, {isv_v}, 3, v23')
        A('v_cmp_gt_u32 vcc, 32, v8\ns_nop 1\nv_cndmask_b32 v9, 4, v9, vcc\nv_cndmask_b32 v23, v1, v23, vcc')
        A(f'v_lshlrev_b32 v23, 3, v23\nv_xor_b32 v23, v23, v6\nv_lshlrev_b32 v1, 4, {isv_v}\nv_xor_b32 v23, v23, v1')
        A(f'v_lshl_add_u32 v23, v9, 10, v23\nv_add_u32 v{dst}, v23, v7')
    A('v_mov_b32 v16, 0\nv_mov_b32 v17, 1\nv_add_u32 v15, s48, v5')
    kvaddr(10, 'v15', 'v16'); kvaddr(12, 'v15', 'v17')
    A('v_add_u32 v15, 4, v15')
    kvaddr(11, 'v15', 'v16'); kvaddr(13, 'v15', 'v17')
    A('v_and_b32 v15, 1, v5\nv_add3_u32 v15, v15, s48, 8\nv_lshrrev_b32 v16, 1, v5')
    kvaddr(14, 'v15', 'v16')
    k1_mainloop(A, True, 'k1kv')
    A.c('KV epilogue')
    A('v_and_b32 v8, 15, v2\nv_cmp_gt_u32 s[68:69], 8, v8')
    phi_inplace(A, [acc(i, t) for i in range(8) for t in (0, 1)])
    for i in range(8):
        b = acc(i, 4); t = 24 + 4 * (i % 4); s = 40 + 4 * (i % 4)
        A(f'v_pk_mul_f32 {vr(t,2)}, {vr(b,2)}, s[60:61]\nv_pk_mul_f32 {vr(t+2,2)}, {vr(b+2,2)}, s[60:61]')
        for j in range(4):
            A(f'v_exp_f32 v{t+j}, v{t+j} clamp')
        for j in range(4):
            A(f'v_max_f32 v{s+j}, s66, v{b+j}')
        A(f'v_pk_add_f32 {vr(s,2)}, {vr(s,2)}, {vr(t,2)}\nv_pk_add_f32 {vr(s+2,2)}, {vr(s+2,2)}, {vr(t+2,2)}')
        for j in range(4):
            A(f'v_cndmask_b32 v{b+j}, v{b+j}, v{s+j}, s[68:69]')
    for kk in range(4):
        for t in range(5):
            a = acc(2 * kk, t); b = acc(2 * kk + 1, t)
            A(f'v_cvt_pk_bf16_f32 v{a}, v{a}, v{a+1}\nv_cvt_pk_bf16_f32 v{a+1}, v{a+2}, v{a+3}')
            A(f'v_cvt_pk_bf16_f32 v{a+2}, v{b}, v{b+1}\nv_cvt_pk_bf16_f32 v{a+3}, v{b+2}, v{b+3}')
    A('v_mov_b32 v12, 0x3f803f80\nv_mov_b32 v13, v12\nv_mov_b32 v14, v12\nv_mov_b32 v15, v12')
    A('v_lshlrev_b32 v4, 4, v2\nv_lshlrev_b32 v5, 2, v2')
    KT = {0: 0, 1: 1, 2: 4}; VT = {0: 2, 1: 3, 2: 4}
    prods = [(0, 0), (1, 0), (0, 1), (1, 1), (2, 1), (1, 2), (2, 2)]
    A('s_nop 1')
    for kk in range(4):
        for n, (tv, tk) in enumerate(prods):
            d = vr(24 + 4 * n)
            A(f'v_mfma_f32_16x16x32_bf16 {d}, {vr(acc(2*kk,VT[tv]))}, {vr(acc(2*kk,KT[tk]))}, {d if kk else 0}')
        for tk in range(3):
            d = vr(52 + 4 * tk)
            A(f'v_mfma_f32_16x16x32_bf16 {d}, v[12:15], {vr(acc(2*kk,KT[tk]))}, {d if kk else 0}')
    A(f's_lshl_b32 s48, s19, 2\ns_add_u32 s48, s48, s21\ns_lshl_b32 s48, s48, 4\ns_add_u32 s48, s48, s18\ns_mul_i32 s48, s48, 10240\ns_add_u32 s70, s48, {KVP_OFF}')
    A('s_add_u32 s71, s70, 4096\ns_add_u32 s72, s70, 8192')
    A('s_nop 7')
    for n, (tv, tk) in enumerate(prods):
        slot = tv * 3 + tk
        A(f'buffer_store_dwordx4 {vr(24+4*n)}, v4, s[40:43], s{70 + (slot>>2)} offen offset:{(slot&3)*1024}')
    for tk in range(3):
        A(f'buffer_store_dword v{52+4*tk}, v5, s[40:43], s72 offen offset:{1024 + 256*tk}')
    stamp(A, 4)
    stamp_end(A, 0)

    A('L_k1_loader:')
    A.c('s79 = lw ; v3=row8 v4=cs v5=R v6 = logical chunk')
    A('s_sub_u32 s79, s21, 4')
    A('v_lshrrev_b32 v3, 3, v2\nv_and_b32 v4, 7, v2\ns_lshl_b32 s48, s79, 3\nv_add_u32 v5, s48, v3')
    A('v_bfe_u32 v6, v3, 1, 1\ns_and_b32 s48, s79, 1\ns_lshl_b32 s48, s48, 1\nv_add_u32 v6, s48, v6\nv_lshlrev_b32 v6, 1, v6\nv_xor_b32 v6, v6, v4')
    A('s_lshl_b32 s48, s18, 7\ns_lshl_b32 s49, s79, 5\ns_add_u32 s48, s48, s49\nv_add_u32 v7, s48, v3\nv_mul_u32_u24 v7, 1280, v7')
    A('v_lshrrev_b32 v8, 4, v2\nv_xor_b32 v8, v8, v4\nv_lshl_add_u32 v16, v8, 4, v7')
    A('v_xor_b32 v8, 4, v8\nv_lshl_add_u32 v17, v8, 4, v7\nv_add_u32 v17, 10240, v17')
    A('v_add_u32 v18, 20480, v16\nv_add_u32 v19, 20480, v17')
    A(f's_mul_i32 s77, s79, 5120\ns_add_u32 s77, s77, {WBASE}\ns_lshl_b32 s78, s79, 12')
    A('s_lshl_b32 s72, s23, 7')
    A(f's_mov_b32 s75, {32*3840}\ns_mov_b32 s76, {640*3840}\ns_mul_i32 s71, s23, {64*3840}')
    A('s_cmp_eq_u32 s20, 0\ns_cbranch_scc1 L_k1_ld_kv')
    A(f's_mov_b32 s73, {32*3072}\ns_mov_b32 s74, {640*3072}\ns_mul_i32 s70, s23, {64*3072}')
    A('v_mul_u32_u24 v7, 3072, v5\nv_lshl_add_u32 v7, v6, 4, v7\ns_lshl_b32 s48, s22, 8\nv_add_u32 v10, s48, v7\nv_add_u32 v11, 128, v10\nv_mov_b32 v12, v10\nv_mov_b32 v13, v11')
    A('s_cmp_lg_u32 s55, 0\ns_cbranch_scc1 L_k1_ld_gc')
    A('v_mul_u32_u24 v7, 3840, v5\nv_lshl_add_u32 v7, v6, 4, v7\ns_lshl_b32 s48, s22, 7\nv_add_u32 v14, s48, v7')
    A('s_branch L_k1_ld_run')
    A('L_k1_ld_kv:')
    A('s_mov_b32 s73, s75\ns_mov_b32 s74, s76\ns_mov_b32 s70, s71')
    A('s_mul_i32 s48, s19, 320\ns_add_u32 s48, s48, 1280\ns_and_b32 s49, s19, 1\ns_lshl_b32 s58, s49, 6\ns_add_u32 s58, s58, s48')
    A('v_mul_u32_u24 v7, 3840, v5\nv_lshl_add_u32 v8, v6, 4, v7\nv_add_u32 v10, s58, v8\nv_add_u32 v11, 128, v10')
    A('v_xor_b32 v9, 1, v6\nv_lshl_add_u32 v8, v9, 4, v7\nv_add_u32 v12, s58, v8\nv_add_u32 v12, 1280, v12\nv_add_u32 v13, 128, v12')
    A('s_cmp_eq_u32 s49, 0\ns_cselect_b32 s58, 256, 0\ns_add_u32 s58, s58, s48')
    A('v_lshrrev_b32 v8, 2, v6\nv_and_b32 v9, 3, v6\nv_xor_b32 v9, v9, v8\nv_lshl_add_u32 v9, v9, 4, v7\nv_mul_u32_u24 v8, 1280, v8\nv_add3_u32 v14, v9, v8, s58')
    A('L_k1_ld_run:')
    k1_loader(A, False, 'k1l')
    A('L_k1_ld_gc:')
    A('v_mul_u32_u24 v7, 1280, v5\nv_lshl_add_u32 v14, v6, 4, v7')
    A('s_sub_u32 s48, s22, 10\ns_mul_i32 s80, s48, 20\ns_add_u32 s80, s80, s79\ns_mul_i32 s81, s18, 3')
    A(f's_mul_i32 s71, s81, {32*1280}\ns_mul_i32 s48, s48, 640\ns_add_u32 s71, s71, s48')
    A('v_lshrrev_b32 v20, 4, v2\nv_bfe_u32 v21, v2, 2, 2\nv_and_b32 v22, 3, v2')
    A('v_lshrrev_b32 v23, 1, v20\nv_mul_u32_u24 v24, 5120, v23')
    A('v_lshrrev_b32 v25, 1, v21\nv_lshl_add_u32 v25, v23, 1, v25\nv_xor_b32 v25, s79, v25\nv_lshl_add_u32 v24, v25, 5, v24')
    A('v_and_b32 v25, 1, v20\nv_lshl_add_u32 v25, v25, 2, v21\nv_lshl_add_u32 v24, v25, 7, v24\nv_lshl_add_u32 v24, v22, 3, v24')
    A(f'v_add_u32 v24, {WBASE + 4096}, v24\nv_lshlrev_b32 v26, 4, v2')
    k1_loader(A, True, 'k1lgc')
    A('L_k1_end:\ns_endpgm')


K2_LDS = 65536
def gen_k2(A):
    A('.globl k2_kernel\n.p2align 8\n.type k2_kernel,@function\nk2_kernel:')
    A('s_cmp_ge_u32 s2, 256\ns_cbranch_scc1 L_k2_end')
    stamp_begin(A)
    A('s_load_dwordx2 s[4:5], s[0:1], 16')
    A('s_load_dwordx4 s[8:11], s[0:1], 64')
    A('s_load_dwordx2 s[12:13], s[0:1], 80')
    A.c('s18 rb64, s19 cg, s21 wave')
    A('s_and_b32 s3, s2, 7\ns_lshr_b32 s48, s2, 3')
    A('s_and_b32 s18, s3, 1\ns_lshl_b32 s18, s18, 4\ns_bfe_u32 s49, s3, 0x10001\ns_lshl_b32 s49, s49, 3\ns_add_u32 s18, s18, s49\ns_and_b32 s22, s48, 7\ns_add_u32 s18, s18, s22')
    A('s_lshr_b32 s19, s3, 2\ns_lshl_b32 s19, s19, 2\ns_lshr_b32 s20, s48, 3\ns_add_u32 s19, s19, s20')
    A('v_lshrrev_b32 v1, 6, v0\nv_and_b32 v2, 63, v0\ns_nop 0\nv_readfirstlane_b32 s21, v1')
    A('v_lshrrev_b32 v3, 4, v2\nv_and_b32 v4, 15, v2\nv_lshlrev_b32 v5, 4, v2')
    A('s_waitcnt lgkmcnt(0)')
    srd(A, 24, 4, 819200)
    srd(A, 28, 8, 2621440)
    srd(A, 40, 12, WS_USED)
    A('s_cmp_eq_u32 s21, 4\ns_cbranch_scc1 L_k2_helper')

    AC = 16
    BUF = 96
    NB = 2
    PQ = 168
    def a2(rt, t): return AC + 20 * rt + 4 * t
    def hb(s, rt): return BUF + 36 * (s % NB) + 4 * rt
    def wb(s, t): return BUF + 36 * (s % NB) + 16 + 4 * t
    def pq(kk, rt): return PQ + 16 * kk + 4 * rt
    A('s_mul_i32 s23, s22, 3\ns_lshr_b32 s23, s23, 1\ns_mul_i32 s48, s20, 3\ns_add_u32 s23, s23, s48\ns_cmp_ge_u32 s23, 12\ns_cselect_b32 s48, 12, 0\ns_sub_u32 s23, s23, s48')
    if not ROT:
        A('s_mov_b32 s23, 0')
    A('s_mul_i32 s48, s21, 12\ns_mul_i32 s50, s18, 68\ns_add_u32 s52, s50, s48\ns_lshl_b32 s52, s52, 12')
    A(f's_mul_i32 s51, s19, 68\ns_add_u32 s53, s51, s48\ns_mul_i32 s53, s53, 5120\ns_add_u32 s53, s53, {W2_OFF}')
    A('s_mul_i32 s48, s21, 5\ns_add_u32 s48, s48, 48\ns_add_u32 s54, s50, s48\ns_lshl_b32 s54, s54, 12')
    A(f's_add_u32 s55, s51, s48\ns_mul_i32 s55, s55, 5120\ns_add_u32 s55, s55, {W2_OFF}')
    A('v_add_u32 v6, 4096, v5')
    A(f's_lshl_b32 s48, s18, 8\ns_add_u32 s48, s48, {G_OFF}\nv_lshlrev_b32 v7, 2, v4')
    Q = []
    def ld(tag, txt):
        A(txt); Q.append(tag)
    def wait(tags):
        last = max(k for k, t in enumerate(Q) if t in tags)
        A(f's_waitcnt vmcnt({min(63, len(Q) - 1 - last)})')
    def issueB(s):
        A('s_lshl_b32 s56, s23, 12\ns_add_u32 s56, s56, s52\ns_mul_i32 s57, s23, 5120\ns_add_u32 s57, s57, s53')
        for rt in range(4):
            ld(('B', s), f'buffer_load_dwordx4 {vr(hb(s,rt))}, v5, s[40:43], s56 offen offset:{1024*rt}')
        for t in range(4):
            ld(('B', s), f'buffer_load_dwordx4 {vr(wb(s,t))}, v5, s[40:43], s57 offen offset:{1024*t}')
        ld(('B', s), f'buffer_load_dwordx4 {vr(wb(s,4))}, v6, s[40:43], s57 offen')
        A('s_add_u32 s23, s23, 1\ns_cmp_ge_u32 s23, 12\ns_cselect_b32 s23, 0, s23')
    def issueM(kk):
        s = 12 + kk
        A(f's_add_u32 s57, s55, {5120*kk}')
        for t in range(4):
            ld(('B', s), f'buffer_load_dwordx4 {vr(wb(s,t))}, v5, s[40:43], s57 offen offset:{1024*t} sc1')
        ld(('B', s), f'buffer_load_dwordx4 {vr(wb(s,4))}, v6, s[40:43], s57 offen sc1')
    def issuePQ(kk):
        A(f's_add_u32 s56, s54, {4096*kk}')
        for rt in range(4):
            ld(('P', kk), f'buffer_load_dwordx4 {vr(pq(kk,rt))}, v5, s[40:43], s56 offen offset:{1024*rt}')
    for s in range(NB):
        issueB(s)
    for rt in range(4):
        ld(('G', 0), f'buffer_load_dword v{8+rt}, v7, s[40:43], s48 offen offset:{64*rt}')
    for s in range(12):
        wait([('B', s)])
        if s == 0: stamp(A, 1)
        for rt in range(4):
            for t in range(5):
                d = vr(a2(rt, t))
                A(f'v_mfma_f32_16x16x32_bf16 {d}, {vr(wb(s,t))}, {vr(hb(s,rt))}, {d if s else 0}')
        if s + NB < 12:
            issueB(s + NB)
        if 4 <= s < 9:
            issuePQ(s - 4)
    stamp(A, 2)
    A('s_barrier')
    stamp(A, 3)
    A(f's_lshl_b32 s48, s19, 11\ns_mul_i32 s49, s21, 320\ns_add_u32 s48, s48, s49\ns_add_u32 s48, s48, {ZB_OFF}')
    A('v_mul_u32_u24 v7, 80, v3')
    ZR = BUF
    zreg = [hb(0, 0), hb(0, 1), hb(0, 2), hb(0, 3), hb(1, 0)]
    for kk in range(5):
        ld(('Z', 0), f'buffer_load_dwordx4 {vr(zreg[kk])}, v7, s[40:43], s48 offen offset:{16*kk} sc1')
    issueM(0); issueM(1)
    wait([('G', 0)])
    for rt in range(4):
        A(f'v_sub_f32 v{12+rt}, 1.0, v{8+rt}')
    A('s_nop 4')
    for rt in range(4):
        for t in range(5):
            for j in range(4):
                A(f'v_mul_f32 v{a2(rt,t)+j}, v{12+rt}, v{a2(rt,t)+j}')
    A('v_lshrrev_b32 v12, 2, v4\nv_cmp_eq_u32 s[60:61], v12, v3\nv_and_b32 v12, 1, v4\nv_cmp_eq_u32 s[62:63], 0, v12')
    A('s_and_b64 s[64:65], s[60:61], s[62:63]\ns_andn2_b64 s[66:67], s[60:61], s[62:63]')
    wait([('Z', 0), ('P', 4)])
    for kk in range(5):
        for j in range(4):
            odd = (4 * kk + j) >= 10
            m = 's[66:67]' if odd else 's[64:65]'
            A(f'v_cndmask_b32 v{zreg[kk]+j}, 0, v{zreg[kk]+j}, {m}')
    DEN = hb(1, 1)
    den = [hb(1, 1), hb(1, 2), hb(1, 3), 248]
    A('s_nop 1')
    for kk in range(5):
        for rt in range(4):
            d = vr(den[rt])
            A(f'v_mfma_f32_16x16x32_bf16 {d}, {vr(zreg[kk])}, {vr(pq(kk,rt))}, {d if kk else 0}')
    A('s_nop 7')
    A(f's_mov_b32 s68, {EPS}\ns_mov_b32 s69, 0xffff0000')
    for rt in range(4):
        A(f'v_add_f32 v{den[rt]}, s68, v{den[rt]}\nv_add_f32 v{den[rt]+1}, s68, v{den[rt]+1}')
    for rt in range(4):
        A(f'v_rcp_f32 v{den[rt]}, v{den[rt]}\nv_rcp_f32 v{den[rt]+1}, v{den[rt]+1}')
    A('s_nop 0')
    for rt in range(4):
        A(f'v_mul_f32 v{den[rt]}, v{8+rt}, v{den[rt]}\nv_mul_f32 v{den[rt]+1}, v{8+rt}, v{den[rt]+1}')
    for kk in range(5):
        for rt in range(4):
            for j in range(4):
                r = pq(kk, rt) + j
                sc = den[rt] + (1 if (4 * kk + j) >= 10 else 0)
                t0 = 252 + 2 * (j & 1)
                A(f'v_lshlrev_b32 v{t0}, 16, v{r}\nv_and_b32 v{t0+1}, s69, v{r}')
                A(f'v_mul_f32 v{t0}, v{sc}, v{t0}\nv_mul_f32 v{t0+1}, v{sc}, v{t0+1}')
                A(f'v_cvt_pk_bf16_f32 v{r}, v{t0}, v{t0+1}')
        s = 12 + kk
        wait([('B', s)])
        A('s_nop 0')
        for rt in range(4):
            for t in range(5):
                d = vr(a2(rt, t))
                A(f'v_mfma_f32_16x16x32_bf16 {d}, {vr(wb(s,t))}, {vr(pq(kk,rt))}, {d}')
        if kk + NB < 5:
            issueM(kk + NB)
    stamp(A, 4)
    A('s_nop 7')
    A('s_mul_i32 s48, s21, 5120\nv_add_u32 v7, s48, v5')
    for w in range(4):
        A(f's_cmp_lg_u32 s21, {w}\ns_cbranch_scc1 L_k2_red{w}')
        for rt in range(4):
            if rt == w: continue
            slot = w if w < rt else w - 1
            for t in range(5):
                A(f'ds_write_b128 v5, {vr(a2(rt,t))} offset:{rt*15360 + slot*5120 + t*1024}')
        for t in range(5):
            for j in range(4):
                A(f'v_mov_b32 v{BUF+4*t+j}, v{a2(w,t)+j}')
        A(f'L_k2_red{w}:')
    A('s_mul_i32 s48, s21, 15360\nv_add_u32 v7, s48, v5')
    A('s_waitcnt lgkmcnt(0)\ns_barrier')
    for n in range(15):
        A(f'ds_read_b128 {vr(AC+4*n)}, v7 offset:{1024*n}')
    A('s_lshl_b32 s48, s18, 6\ns_lshl_b32 s49, s21, 4\ns_add_u32 s48, s48, s49\nv_add_u32 v8, s48, v4\nv_mul_u32_u24 v8, 1280, v8\nv_lshl_add_u32 v8, v3, 3, v8\ns_mul_i32 s48, s19, 160')
    for sl in range(3):
        A(f's_waitcnt lgkmcnt({10 - 5*sl})')
        for t in range(5):
            for j in range(0, 4, 2):
                A(f'v_pk_add_f32 {vr(BUF+4*t+j,2)}, {vr(BUF+4*t+j,2)}, {vr(AC+20*sl+4*t+j,2)}')
    for t in range(5):
        b = BUF + 4 * t
        A(f'v_cvt_pk_bf16_f32 v{b}, v{b}, v{b+1}\nv_cvt_pk_bf16_f32 v{b+1}, v{b+2}, v{b+3}')
        A(f'buffer_store_dwordx2 {vr(b,2)}, v8, s[28:31], s48 offen offset:{32*t}')
    stamp(A, 5)
    stamp_end(A, 1)

    A('L_k2_helper:')
    HS = 61440
    WOI = 0
    HS = 8192
    A('s_lshr_b32 s50, s18, 1\ns_and_b32 s51, s18, 1')
    for ldi in range(2):
        A(f'v_add_u32 v12, {64*ldi}, v2\nv_mul_u32_u24 v13, 10923, v12\nv_lshrrev_b32 v13, 16, v13')
        A('v_mul_u32_u24 v14, 6, v13\nv_sub_u32 v14, v12, v14')
        A('s_mul_i32 s48, s51, 20\nv_add_u32 v15, s48, v13')
        A('v_lshrrev_b32 v16, 4, v15\nv_and_b32 v17, 15, v15')
        A('s_mul_i32 s48, s51, 5\nv_add_u32 v18, s48, v14\nv_lshrrev_b32 v19, 2, v18\nv_and_b32 v18, 3, v18')
        A('v_lshrrev_b32 v20, 1, v19\nv_lshl_add_u32 v18, v20, 1, v18')
        A('v_mul_u32_u24 v19, 3, v19\nv_add_u32 v19, v19, v16\nv_lshlrev_b32 v19, 10, v19')
        A('v_lshl_add_u32 v18, v18, 4, v17\nv_lshl_add_u32 v19, v18, 4, v19')
        A('v_lshlrev_b32 v20, 8, v16\nv_lshl_add_u32 v20, v17, 2, v20\nv_add_u32 v20, 9216, v20')
        A(f'v_cmp_eq_u32 vcc, 5, v14\ns_nop 1\nv_cndmask_b32 v19, v19, v20, vcc')
        A(f'v_mov_b32 v20, {OOB}\nv_cmp_gt_u32 vcc, 120, v12\ns_nop 1\nv_cndmask_b32 v{10+ldi}, v20, v19, vcc')
    A(f's_mul_i32 s52, s50, {16*10240}\ns_add_u32 s52, s52, {KVP_OFF}')
    for p in range(16):
        for ldi in range(2):
            A(f'buffer_load_dwordx4 {vr(64 + 8*p + 4*ldi)}, v{10+ldi}, s[40:43], s52 offen')
        A('s_add_u32 s52, s52, 10240')
    A('s_mul_i32 s52, s18, 25600\ns_mul_i32 s48, s19, 160\ns_add_u32 s52, s52, s48')
    for i in range(5):
        A(f'v_add_u32 v12, {64*i}, v2\nv_mul_u32_u24 v13, 6554, v12\nv_lshrrev_b32 v13, 16, v13\nv_mul_u32_u24 v14, 10, v13\nv_sub_u32 v14, v12, v14')
        A(f'v_mul_u32_u24 v13, 1280, v13\nv_lshl_add_u32 v13, v14, 4, v13\ns_mov_b32 m0, {WOI + 1024*i}\ns_nop 0')
        A('buffer_load_dwordx4 v13, s[24:27], s52 offen lds')
    for p in range(1, 16):
        A(f's_waitcnt vmcnt({5 + 2*(15-p)})')
        for j in range(0, 8, 2):
            A(f'v_pk_add_f32 {vr(64+j,2)}, {vr(64+j,2)}, {vr(64+8*p+j,2)}')
    stamp(A, 1)
    A(f'ds_write_b128 v5, v[64:67] offset:{HS}\nds_write_b128 v5, v[68:71] offset:{HS+1024}')
    A('v_mul_u32_u24 v12, 96, v4\nv_lshl_add_u32 v12, v3, 5, v12')
    A('v_mul_u32_u24 v13, 192, v4')
    A('s_waitcnt lgkmcnt(0)')
    for mt in range(2):
        A(f'ds_read_b128 {vr(80+8*mt)}, v12 offset:{HS + 1536*mt}\nds_read_b128 {vr(84+8*mt)}, v12 offset:{HS + 1536*mt + 16}')
    A(f'ds_read_b32 v96, v13 offset:{HS+80}\nds_read_b32 v97, v13 offset:{HS+176}')
    A('v_bfe_u32 v14, v2, 2, 2\nv_lshl_add_u32 v14, v3, 3, v14\nv_mul_u32_u24 v14, 160, v14\nv_and_b32 v15, 3, v2\nv_lshl_add_u32 v14, v15, 3, v14')
    A('v_cmp_gt_u32 s[60:61], 3, v3\nv_cmp_gt_u32 s[62:63], 2, v3')
    A('s_waitcnt vmcnt(0)')
    for t in range(5):
        A(f'ds_read_b64_tr_b16 {vr(100+4*t,2)}, v14 offset:{WOI + 32*t}\nds_read_b64_tr_b16 {vr(102+4*t,2)}, v14 offset:{WOI + 32*t + 640}')
    A('s_waitcnt lgkmcnt(10)')
    for mt in range(2):
        b = 80 + 8 * mt
        for j in range(4):
            A(f'v_cvt_pk_bf16_f32 v{b+j}, v{b+2*j}, v{b+2*j+1}')
        for j in range(4):
            A(f'v_cndmask_b32 v{b+j}, 0, v{b+j}, {"s[60:61]" if j < 2 else "s[62:63]"}')
    A('v_cvt_pk_bf16_f32 v96, v96, v97')
    A('s_mul_i32 s48, s51, 5\ns_and_b32 s49, s50, 3\ns_lshl_b32 s49, s49, 8')
    for mt in range(2):
        A(f'v_add3_u32 v15, v3, s48, {4*mt}\nv_lshrrev_b32 v16, 1, v15\nv_mul_u32_u24 v16, 5120, v16\nv_and_b32 v15, 1, v15\nv_lshl_add_u32 v16, v15, 3, v16')
        A(f'v_lshl_add_u32 v16, v4, 4, v16\nv_add_u32 v{20+mt}, s49, v16')
    A(f'v_mov_b32 v16, {OOB}\nv_cmp_eq_u32 vcc, 0, v3\ns_nop 1\nv_cndmask_b32 v21, v16, v21, vcc')
    A(f'v_lshlrev_b32 v22, 2, v2\nv_cmp_gt_u32 vcc, 10, v2\ns_nop 1\nv_cndmask_b32 v22, v16, v22, vcc')
    A(f's_lshr_b32 s48, s18, 3\ns_mul_i32 s48, s48, 5\ns_mul_i32 s49, s19, 68\ns_add_u32 s48, s48, s49\ns_add_u32 s48, s48, 48\ns_mul_i32 s48, s48, 5120\ns_add_u32 s52, s48, {W2_OFF}\ns_add_u32 s53, s52, 4096')
    A(f's_lshl_b32 s54, s19, 11\ns_mul_i32 s49, s18, 40\ns_add_u32 s54, s54, s49\ns_add_u32 s54, s54, {ZB_OFF}')
    A('s_waitcnt lgkmcnt(0)')
    for mt in range(2):
        for t in range(5):
            A(f'v_mfma_f32_16x16x32_bf16 {vr(128+20*mt+4*t)}, {vr(80+8*mt)}, {vr(100+4*t)}, 0')
    A('buffer_store_dword v96, v22, s[40:43], s54 offen sc1')
    A('s_nop 7')
    for mt in range(2):
        for t in range(5):
            b = 128 + 20 * mt + 4 * t
            A(f'v_cvt_pk_bf16_f32 v{b}, v{b}, v{b+1}\nv_cvt_pk_bf16_f32 v{b+1}, v{b+2}, v{b+3}')
            so, off = (52, 1024 * t) if t < 4 else (53, 0)
            A(f'buffer_store_dwordx2 {vr(b,2)}, v{20+mt}, s[40:43], s{so} offen offset:{off} sc1')
    stamp(A, 2)
    A('s_waitcnt vmcnt(0)')
    stamp(A, 3)
    A('s_lshl_b32 s48, s19, 5\nv_mov_b32 v12, s48\nv_mov_b32 v13, 1')
    A('s_mov_b64 s[70:71], exec\ns_mov_b64 exec, 1')
    A('global_atomic_add v12, v13, s[10:11]')
    A('s_mov_b32 s49, 0')
    A('L_k2_poll:')
    A('global_load_dword v14, v12, s[10:11] sc1\ns_waitcnt vmcnt(0)\nv_readfirstlane_b32 s48, v14')
    A('s_cmp_ge_u32 s48, 32\ns_cbranch_scc1 L_k2_polled\ns_sleep 2\ns_add_u32 s49, s49, 1\ns_cmp_lt_u32 s49, 0x40000\ns_cbranch_scc1 L_k2_poll')
    A('L_k2_polled:')
    stamp(A, 4)
    A('s_barrier')
    stamp_end(A, 1)
    A('L_k2_end:\ns_endpgm')


def kd(name, vg=256):
    return f'''.amdhsa_kernel {name}
  .amdhsa_next_free_vgpr {vg}
  .amdhsa_next_free_sgpr 102
  .amdhsa_accum_offset {vg}
  .amdhsa_group_segment_fixed_size 0
  .amdhsa_kernarg_size 88
  .amdhsa_user_sgpr_count 2
  .amdhsa_user_sgpr_kernarg_segment_ptr 1
  .amdhsa_system_sgpr_workgroup_id_x 1
.end_amdhsa_kernel
'''

ROT = True
def main(out):
    A = Asm()
    gen_k1(A)
    gen_k2(A)
    hdr = open('cdna_kernels/' + NAME + '.s.ref').read().split('; Override')[0]
    txt = hdr
    txt += f'; @launch kernel=k1_kernel grid=(256,1,1) block=(512,1,1) lds={K1_LDS}\n'
    txt += f'; @launch kernel=k2_kernel grid=(256,1,1) block=(320,1,1) lds={K2_LDS}\n'
    txt += '.amdgcn_target "amdgcn-amd-amdhsa--gfx950"\n.text\n'
    txt += A.text()
    txt += '.section .rodata,"a"\n.p2align 6\n' + kd('k1_kernel') + '.p2align 6\n' + kd('k2_kernel')
    open(out, 'w').write(txt)

if __name__ == '__main__':
    for a in sys.argv[2:]:
        k, v = a.split('=')
        globals()[k] = eval(v)
    main(sys.argv[1] if len(sys.argv) > 1 else 'cdna_kernels/' + NAME + '.s')
```

```python
import sys

NAME = 'gated_mix__linear_attn_block__glu_gated_glu__prompt'

HB_OFF = 0
W2_OFF = 0x900000
KVP_OFF = 0xC00000
G_OFF = 0xF00000
ZB_OFF = 0xF10000
WS_USED = 0x1100000
OOB = 0x7FFF0000

XSLOT = 12288; NX = 3
WBASE = NX * XSLOT
WSLOT = 20480; NW = 3
EBASE = WBASE + NW * WSLOT
ESLOT = 9216; NE = 6
GWBASE = EBASE + NE * ESLOT
K1_LDS = GWBASE + 6144


class Asm:
    def __init__(self):
        self.L = []
    def __call__(self, s):
        for line in s.split('\n'):
            line = line.strip()
            if line:
                self.L.append(line if line.endswith(':') else '    ' + line)
    def c(self, s):
        self.L.append('    ; ' + s)
    def text(self):
        return '\n'.join(self.L) + '\n'


def vr(b, n=4):
    return f'v[{b}:{b+n-1}]'


def srd(A, d, lo, nbytes):
    A(f's_mov_b32 s{d}, s{lo}\ns_mov_b32 s{d+1}, s{lo+1}\ns_mov_b32 s{d+2}, {nbytes}\ns_mov_b32 s{d+3}, 0x20000')


STAMP = False
STAMP_OFF = 0x1000000
def stamp(A, n):
    if STAMP:
        A(f's_memtime s[{86+2*n}:{87+2*n}]')
def stamp_begin(A):
    if STAMP:
        A('s_memrealtime s[100:101]')
        for n in range(7):
            A(f's_mov_b32 s{86+2*n}, 0')
        A('s_memtime s[86:87]')
def stamp_end(A, kern):
    if STAMP:
        A('s_waitcnt vmcnt(0)')
        A('s_memtime s[98:99]')
        A('s_waitcnt lgkmcnt(0)')
        A('s_mov_b64 exec, -1')
        for n in range(7):
            A(f'v_mov_b32 v{100+n}, s{86+2*n}')
        A('v_mov_b32 v107, s100')
        A('s_memrealtime s[100:101]')
        A('s_waitcnt lgkmcnt(0)')
        A('v_mov_b32 v108, s100')
        A(f's_lshl_b32 s3, s2, 3\ns_add_u32 s3, s3, s21\ns_lshl_b32 s3, s3, 6\ns_add_u32 s3, s3, {STAMP_OFF + kern*0x20000}')
        A('v_mov_b32 v109, 0')
        A('s_mov_b64 exec, 1')
        A('buffer_store_dwordx4 v[100:103], v109, s[40:43], s3 offen')
        A('buffer_store_dwordx4 v[104:107], v109, s[40:43], s3 offen offset:16')
        A('buffer_store_dword v108, v109, s[40:43], s3 offen offset:32')
    A('s_endpgm')

LOG2E = 0x3fb8aa3b
NLOG2E = 0xbfb8aa3b
EPS = 0x358637bd

ACC = 96
XF = 64
WF = 24
def acc(i, t): return ACC + 20 * i + 4 * t


def k1_mainloop(A, kv, tag):
    def upd_w(par):
        L = [f's_add_u32 s50, s50, {WSLOT}', f's_cmp_ge_u32 s50, {WBASE + NW*WSLOT}', f's_cselect_b32 s50, {WBASE}, s50']
        L += set_w(par, True)
        return L
    def set_w(par, adv):
        L = []
        if not kv:
            if adv:
                L += ['s_add_u32 s53, s53, 1']
            L += ['s_lshr_b32 s56, s53, 2', 's_lshl_b32 s56, s56, 10', 's_and_b32 s57, s53, 3', 's_lshl_b32 s57, s57, 7', 's_add_u32 s56, s56, s57']
        if par == 0:
            L += ['s_sub_u32 s59, s58, s50', 'v_mul_i32_i24 v9, s59, v8']
            L += [f'v_add3_u32 v{15+t}, v{10+t}, v9, s50' for t in range(4)]
            if kv:
                L += ['v_add3_u32 v19, v14, v9, s50']
            else:
                L += ['s_cmp_lg_u32 s55, 0', 's_cselect_b32 s52, s56, s50', 's_cselect_b32 s59, 0, s59', 'v_mul_i32_i24 v22, s59, v8', 'v_add3_u32 v19, v14, v22, s52']
        else:
            L += [f'v_add_u32 v{15+t}, s50, v{10+t}' for t in range(4)]
            if kv:
                L += ['v_add_u32 v19, s50, v14']
            else:
                L += ['s_cmp_lg_u32 s55, 0', 's_cselect_b32 s52, s56, s50', 'v_add_u32 v19, s52, v14']
        return L
    def upd_blk():
        return [f's_add_u32 s51, s51, {XSLOT}', f's_cmp_ge_u32 s51, {NX*XSLOT}', 's_cselect_b32 s51, 0, s51',
                f's_add_u32 s58, s58, {ESLOT}', f's_cmp_ge_u32 s58, {EBASE + NE*ESLOT}', f's_cselect_b32 s58, {EBASE}, s58']
    def set_x(par):
        return [f'v_add_u32 v{4+par}, s58, v{20+par}', f'v_add_u32 v{6+par}, s51, v{20+par}']
    def rdW(p, t, h):
        b = WF + 20 * p + 4 * t + 2 * h
        A(f'ds_read_b64_tr_b16 {vr(b,2)}, v{15+t} offset:{512*h}')
    def rdX(i, par):
        if i < 2:
            A(f'ds_read_b128 {vr(XF+4*i)}, v{4+par} offset:{5120 + 2048*i}')
        else:
            A(f'ds_read_b128 {vr(XF+4*i)}, v{6+par} offset:{2048*(i-2)}')
    def mfma(i, t, p):
        w = vr(WF + 20 * p + 4 * t); x = vr(XF + 4 * i); d = vr(acc(i, t))
        if kv:
            A(f'v_mfma_f32_16x16x32_bf16 {d}, {x}, {w}, {d}')
        else:
            A(f'v_mfma_f32_16x16x32_bf16 {d}, {w}, {x}, {d}')
    A(f's_mov_b32 s50, {WBASE}\ns_mov_b32 s51, 0\ns_mov_b32 s54, 0\ns_mov_b32 s58, {EBASE}\ns_mov_b32 s53, 0')
    A('v_cmp_gt_u32 vcc, 16, v2\ns_nop 1\nv_cndmask_b32 v8, 0, 1, vcc')
    for l in set_w(0, False) + set_x(0) + set_x(1):
        A(l)
    stamp(A, 1)
    A('s_barrier')
    stamp(A, 2)
    for t in range(5):
        rdW(0, t, 0); rdW(0, t, 1)
    A('s_waitcnt lgkmcnt(6)')
    for i in range(8):
        rdX(i, 0)
    for l in upd_w(1):
        A(l)
    A('.p2align 3')
    A(f'L_{tag}_loop:')
    for p in range(2):
        fill = (upd_blk() if p == 0 else []) + set_x(p) + upd_w(p)
        if p == 1:
            fill = fill + ['s_add_u32 s54, s54, 1', 's_cmp_lt_u32 s54, 10']
        A('s_waitcnt lgkmcnt(2)')
        A('s_barrier')
        for i in range(8):
            if i == 2:
                A('s_waitcnt lgkmcnt(6)')
            for t in range(5):
                mfma(i, t, p)
                if i < 5 and t in (0, 2):
                    rdW(1 - p, i, t // 2)
                if (i >= 5 or (i == 4 and t >= 3)):
                    for _ in range(2):
                        if fill: A(fill.pop(0))
            rdX(i, 1 - p)
        assert not fill
    A(f's_cbranch_scc1 L_{tag}_loop')
    stamp(A, 3)
    A('s_waitcnt lgkmcnt(0)')
    A('s_nop 7')


def phi_inplace(A, regs):
    T = 24
    for n, b in enumerate(regs):
        t = T + 4 * (n % 4)
        A(f'v_pk_mul_f32 {vr(t,2)}, {vr(b,2)}, s[60:61]')
        A(f'v_pk_mul_f32 {vr(t+2,2)}, {vr(b+2,2)}, s[60:61]')
        for j in range(4):
            A(f'v_exp_f32 v{t+j}, v{t+j} clamp')
        for j in range(4):
            A(f'v_max_f32 v{b+j}, s66, v{b+j}')
        A(f'v_pk_add_f32 {vr(b,2)}, {vr(b,2)}, {vr(t,2)}')
        A(f'v_pk_add_f32 {vr(b+2,2)}, {vr(b+2,2)}, {vr(t+2,2)}')


NT_E = ''
NT_L = ''
def dma(A, m0expr, voff, sr, so):
    A(m0expr)
    A('s_nop 0')
    fl = NT_E if m0expr.startswith('s_mov') else NT_L
    A(f'buffer_load_dwordx4 v{voff}, s[{sr}:{sr+3}], s{so} offen {fl} lds')


NI = 4
def k1_late(A, gc, tag):
    issued = []
    def issueW(n):
        base = (n % NW) * WSLOT
        par = n & 1
        for L in range(5):
            if L == 4 and gc:
                continue
            sr = 28 if L < 2 else (32 if L < 4 else 36)
            so = (70 if L < 4 else 72) + par
            dma(A, f's_add_u32 m0, s77, {base + L*1024}', 10 + L, sr, so)
            issued.append(('W', n))
        if par:
            for e in range(2):
                dma(A, f's_add_u32 m0, s{79 if e == 0 else 66}, {base}', 20 + e, 80, 84)
                issued.append(('W', n))
            A('s_add_u32 s84, s84, s85')
        A(f's_add_u32 s{70+par}, s{70+par}, s75\ns_add_u32 s{72+par}, s{72+par}, s76')
    def issueX(b):
        base = (b % NX) * XSLOT
        for i in range(4):
            dma(A, f's_add_u32 m0, s78, {base + i*1024}', 16 + i, 24, 74)
            issued.append(('X', b))
        A('s_add_u32 s74, s74, 128')
    def wait_for(n):
        need = [k for k, it in enumerate(issued) if it == ('W', n) or it == ('X', n >> 1)]
        A(f's_waitcnt vmcnt({len(issued) - 1 - max(need)})')
    if STAMP:
        A('s_mov_b32 s65, s2\ns_getreg_b32 s2, hwreg(HW_REG_XCC_ID)\nv_mov_b32 v60, 0\nv_writelane_b32 v60, s2, 31\nv_writelane_b32 v60, s86, 30')
    A('s_waitcnt vmcnt(0)')
    stamp(A, 1)
    issueX(0); issueW(0); issueW(1)
    for n in range(21):
        if n <= 19:
            wait_for(n)
        if n == 0: stamp(A, 2)
        if n == 10: stamp(A, 3)
        if STAMP:
            A(f's_memtime s[2:3]\ns_waitcnt lgkmcnt(0)\nv_writelane_b32 v60, s2, {n}')
        A('s_barrier')
        if STAMP:
            A(f's_memtime s[2:3]\ns_waitcnt lgkmcnt(0)\nv_writelane_b32 v60, s2, {32+n}')
        if n % 2 == 0 and n // 2 + 1 <= 9:
            issueX(n // 2 + 1)
        if n + 2 <= 19:
            issueW(n + 2)
    if STAMP:
        A(f's_mov_b32 s2, s65\ns_lshl_b32 s3, s2, 3\ns_add_u32 s3, s3, s21\ns_lshl_b32 s3, s3, 8\ns_add_u32 s3, s3, {STAMP_OFF + 0x40000}\nv_lshlrev_b32 v61, 2, v2')
        A('buffer_store_dword v60, v61, s[40:43], s3 offen')
    stamp(A, 4)
    stamp_end(A, 0)


def k1_early(A, gc, tag):
    issued = [('E', 0)] * 9
    def issueE(b):
        base = EBASE + (b % NE) * ESLOT
        for i in range(4):
            dma(A, f's_mov_b32 m0, {base + 5120 + i*1024}', 46 + i, 24, 74)
            issued.append(('E', b))
        for L in range(5):
            if L == 4 and gc:
                continue
            sr = 28 if L < 2 else (32 if L < 4 else 36)
            so = 70 if L < 4 else 72
            dma(A, f's_mov_b32 m0, {base + L*1024}', 40 + L, sr, so)
            issued.append(('E', b))
        A('s_add_u32 s74, s74, 128\ns_add_u32 s70, s70, s75\ns_add_u32 s72, s72, s76')
    def issueP(n):
        base = WBASE + (n % NW) * WSLOT + 4096
        for g in range(4):
            dma(A, f's_mov_b32 m0, {base + g*5120}', 32 + g, 36, 73)
            issued.append(('P', n))
        inc = 128 if (n % 5) != 4 else 32 * 1280 - 512
        A(f's_add_u32 s73, s73, {inc}')
    def wait_tag(tag_):
        need = [k for k, it in enumerate(issued) if it == tag_]
        A(f's_waitcnt vmcnt({min(63, len(issued) - 1 - max(need))})')
    def repack(n):
        wait_tag(('P', n))
        base = (n % NW) * WSLOT
        for tl in range(4):
            A(f'ds_read_b64_tr_b16 {vr(64+4*tl,2)}, v{24+tl} offset:{base}')
            A(f'ds_read_b64_tr_b16 {vr(66+4*tl,2)}, v{24+tl} offset:{base + 10240}')
        for tl in range(4):
            t16 = 4 * (n % 5) + tl
            off = ((t16 // 5) * 68 + n // 5) * 5120 + (t16 % 5) * 1024
            A(f's_add_u32 s83, s80, {off}')
            A(f's_waitcnt lgkmcnt({6 - 2*tl})')
            A(f'buffer_store_dwordx4 {vr(64+4*tl)}, v28, s[40:43], s83 offen')
        A('s_nop 1')
    if gc:
        A('v_lshlrev_b32 v30, 1, v2')
        for j in range(10):
            A(f'buffer_load_ushort v{50+j}, v30, s[44:47], 0 offen offset:{128*j}')
    n0 = len(issued)
    A(f's_movk_i32 s74, {128*NI}\ns_mul_i32 s56, s75, {NI}\ns_add_u32 s70, s70, s56\ns_add_u32 s72, s72, {NI*64*3840}')
    issueE(NI)
    if gc:
        A('s_lshl_b32 s48, s23, 3\nv_xor_b32 v29, s48, v2')
        A('v_and_b32 v31, 3, v29\nv_lshlrev_b32 v31, 3, v31')
        A('v_bfe_u32 v30, v29, 2, 1\nv_lshl_add_u32 v31, v30, 9, v31')
        A('v_bfe_u32 v30, v29, 3, 2\nv_lshl_add_u32 v31, v30, 5, v31')
        A('v_bfe_u32 v30, v29, 5, 1\nv_lshl_add_u32 v31, v30, 7, v31')
        A(f'v_add_u32 v31, {GWBASE}, v31')
        A(f's_waitcnt vmcnt({len(issued) - n0})')
        for j in range(10):
            A(f'v_lshl_or_b32 v{80+2*j}, v{50+j}, 16, v{50+j}\nv_mov_b32 v{81+2*j}, v{80+2*j}')
            A(f'ds_write_b64 v31, v[{80+2*j}:{81+2*j}] offset:{(j>>1)*1024 + (j&1)*256}')
        A('s_waitcnt lgkmcnt(0)')
    stamp(A, 1)
    nextE = NI + 1
    nextP = 0; doneP = 0
    for n in range(21):
        if n <= 19 and n % 2 == 0 and (n == 0 or n // 2 >= NI):
            wait_tag(('E', n // 2))
        if n == 0: stamp(A, 2)
        if n == 10: stamp(A, 3)
        A('s_barrier')
        cnt = 0
        while nextE <= 9 and (nextE < NE or n >= 2 * (nextE - NE) + 2) and cnt < 2:
            issueE(nextE); nextE += 1; cnt += 1
        if gc and n >= 2:
            if doneP < nextP and (nextP - doneP >= NW or nextP >= 15):
                repack(doneP); doneP += 1
            if nextP < 15 and nextP - doneP < NW:
                issueP(nextP); nextP += 1
    while gc and doneP < 15:
        repack(doneP); doneP += 1
    stamp(A, 4)
    stamp_end(A, 0)


def gen_k1(A):
    A('.globl k1_kernel\n.p2align 8\n.type k1_kernel,@function\nk1_kernel:')
    A('s_cmp_ge_u32 s2, 256\ns_cbranch_scc1 L_k1_end')
    stamp_begin(A)
    A('s_load_dwordx4 s[4:7], s[0:1], 0')
    A('s_load_dwordx4 s[8:11], s[0:1], 32')
    A('s_load_dwordx4 s[12:15], s[0:1], 48')
    A('s_load_dwordx2 s[16:17], s[0:1], 80')
    A.c('decode: s18 rb, s19 cq, s20 m, s21 wave, s22 gtype, s23 rbl, s55 is_gc')
    A('v_lshrrev_b32 v1, 6, v0\nv_and_b32 v2, 63, v0')
    A('s_bfe_u32 s23, s2, 0x30003\ns_and_b32 s18, s2, 1\ns_lshl_b32 s18, s18, 3\ns_add_u32 s18, s18, s23')
    A('v_readfirstlane_b32 s21, v1')
    A('s_bfe_u32 s19, s2, 0x20001\ns_lshr_b32 s20, s2, 6')
    A('s_mul_i32 s22, s19, 3\ns_add_u32 s22, s22, s20\ns_sub_u32 s22, s22, 1')
    A('s_cmp_ge_u32 s22, 10\ns_cselect_b32 s55, 1, 0\ns_cmp_eq_u32 s20, 0\ns_cselect_b32 s55, 0, s55')
    A('s_cmp_lt_u32 s21, 4\ns_cbranch_scc1 L_k1_compute')
    A.c('s67 = lw ; v3=row8 v4=cs ; role constants: s68 strideA, s60 cA, s61 cB, s62 xB, s63 c4, s64 hi-mult')
    A('s_sub_u32 s67, s21, 4')
    A('v_lshrrev_b32 v3, 3, v2\nv_and_b32 v4, 7, v2')
    A('s_mul_i32 s48, s19, 320\ns_add_u32 s48, s48, 1280\ns_and_b32 s57, s19, 1\ns_lshl_b32 s58, s57, 6\ns_add_u32 s58, s58, s48')
    A('s_xor_b32 s57, s57, 1\ns_lshl_b32 s57, s57, 8\ns_add_u32 s57, s57, s48\ns_add_u32 s59, s58, 1280')
    A('s_lshl_b32 s48, s22, 8\ns_lshl_b32 s49, s22, 7\ns_movk_i32 s56, 3072')
    A('s_cmp_eq_u32 s20, 0')
    A('s_cselect_b32 s68, 3840, s56\ns_cselect_b32 s60, s58, s48\ns_cselect_b32 s61, s59, s48\ns_cselect_b32 s62, 1, 0\ns_cselect_b32 s63, s57, s49\ns_cselect_b32 s64, 1280, 64')
    A(f's_cmp_lg_u32 s55, 0\ns_cselect_b32 s63, {OOB}, s63')
    def wvoff(grp, dst):
        if grp == '0':
            A('s_and_b32 s56, s23, 3\ns_lshl_b32 s56, s56, 3\nv_add_u32 v5, s56, v3')
            A('v_and_b32 v6, 2, v3\nv_xor_b32 v6, v6, v4')
        else:
            A(f's_and_b32 s56, s23, 3\ns_xor_b32 s56, s56, {grp}\ns_lshl_b32 s56, s56, 3\nv_add_u32 v5, s56, v3')
            A(f's_and_b32 s56, {grp}, 1\ns_lshl_b32 s56, s56, 2\nv_and_b32 v6, 2, v3\nv_xor_b32 v6, v6, v4\nv_xor_b32 v6, s56, v6')
        A(f'v_mul_u32_u24 v7, s68, v5\nv_lshl_add_u32 v8, v6, 4, v7\nv_add_u32 v{dst}, s60, v8\nv_add_u32 v{dst+1}, 128, v{dst}')
        A(f'v_xor_b32 v9, s62, v6\nv_lshl_add_u32 v8, v9, 4, v7\nv_add_u32 v{dst+2}, s61, v8\nv_add_u32 v{dst+3}, 128, v{dst+2}')
        A('v_lshrrev_b32 v8, 2, v6\nv_and_b32 v9, s62, v8\nv_and_b32 v6, 3, v6\nv_xor_b32 v6, v6, v9\nv_mul_u32_u24 v7, 3840, v5')
        A(f'v_lshl_add_u32 v7, v6, 4, v7\nv_mul_u32_u24 v8, s64, v8\nv_add3_u32 v{dst+4}, v7, v8, s63')
    A('s_lshl_b32 s48, s18, 7\ns_lshl_b32 s56, s20, 5\ns_add_u32 s48, s48, s56\nv_add_u32 v7, s48, v3\nv_mul_u32_u24 v7, 1280, v7')
    A('v_lshrrev_b32 v8, 4, v2\nv_xor_b32 v8, v8, v4\nv_xor_b32 v8, s23, v8\nv_lshl_add_u32 v46, v8, 4, v7')
    A('v_xor_b32 v8, 4, v8\nv_lshl_add_u32 v47, v8, 4, v7\nv_add_u32 v47, 10240, v47')
    A('v_add_u32 v48, 20480, v46\nv_add_u32 v49, 20480, v47')
    wvoff('0', 40)
    A(f's_lshl_b32 s75, s68, 6\ns_mov_b32 s76, {64*3840}\ns_lshl_b32 s56, s68, 5')
    A(f's_bitcmp1_b32 s23, 2\ns_cselect_b32 s70, s56, 0\ns_cselect_b32 s71, 0, s56\ns_cselect_b32 s72, {32*3840}, 0\ns_cselect_b32 s73, 0, {32*3840}')
    A(f's_lshl_b32 s74, s67, 7\ns_mul_i32 s56, s67, s75\ns_add_u32 s56, s56, s70\ns_mul_i32 s57, s67, s76\ns_add_u32 s57, s57, s72\ns_mul_i32 s58, s67, {ESLOT}')
    A('s_mov_b32 s26, 2621440\ns_mov_b32 s27, 0x20000\ns_mov_b32 s31, 0x20000\ns_mov_b32 s35, 0x20000\ns_mov_b32 s39, 0x20000\ns_mov_b32 s48, 1966080')
    A('s_cmp_eq_u32 s20, 0\ns_cselect_b32 s30, 2457600, s48\ns_mov_b32 s34, s30')
    A('s_waitcnt lgkmcnt(0)')
    A('s_mov_b32 s24, s4\ns_mov_b32 s25, s5')
    A('s_cselect_b32 s28, s6, s8\ns_cselect_b32 s29, s7, s9\ns_cselect_b32 s32, s6, s10\ns_cselect_b32 s33, s7, s11')
    A('s_cmp_lg_u32 s55, 0')
    A('s_cselect_b32 s36, s12, s6\ns_cselect_b32 s37, s13, s7\ns_cselect_b32 s38, s48, 2457600')
    stamp(A, 5)
    for i in range(4):
        dma(A, f's_add_u32 m0, s58, {EBASE + 5120 + i*1024}', 46 + i, 24, 74)
    for L in range(5):
        dma(A, f's_add_u32 m0, s58, {EBASE + L*1024}', 40 + L, 28 if L < 2 else (32 if L < 4 else 36), 56 if L < 4 else 57)
    srd(A, 40, 16, WS_USED)
    A('s_cmp_eq_u32 s67, 0\ns_cbranch_scc1 L_k1_ld_early')
    wvoff('s67', 10)
    A('s_xor_b32 s56, s67, s20\ns_sub_i32 s56, s56, s20\ns_mul_i32 s56, s56, 40960')
    for i in range(4):
        A(f'v_add_u32 v{16+i}, s56, v{46+i}')
    A(f's_mul_i32 s77, s67, 5120\ns_add_u32 s77, s77, {WBASE}\ns_sub_u32 s78, s67, 1\ns_lshl_b32 s78, s78, 12\ns_mov_b32 s74, 0')
    A('s_cmp_eq_u32 s67, 1\ns_cselect_b32 s80, s28, s32\ns_cselect_b32 s81, s29, s33\ns_mov_b32 s82, s30\ns_mov_b32 s83, 0x20000')
    A('s_cselect_b64 vcc, -1, 0\ns_nop 1\nv_cndmask_b32 v20, v42, v40, vcc\nv_cndmask_b32 v21, v43, v41, vcc')
    A('s_mov_b32 s84, s71\ns_mov_b32 s85, s75')
    A(f's_lshr_b32 s79, s78, 1\ns_add_u32 s79, s79, {WBASE}\ns_add_u32 s66, s79, 1024')
    A('s_cmp_lg_u32 s67, 3\ns_cbranch_scc1 L_k1_ld_x3')
    A(f's_mov_b32 s80, s36\ns_mov_b32 s81, s37\ns_mov_b32 s82, s38\ns_mov_b32 s84, s73\ns_mov_b32 s85, s76\nv_mov_b32 v20, v44')
    A(f'v_mov_b32 v21, {OOB}\ns_mov_b32 s66, 0x28000')
    A('s_cmp_eq_u32 s55, 0\ns_cbranch_scc1 L_k1_ld_x3')
    A(f's_mov_b32 s79, 0x28000')
    A('L_k1_ld_x3:')
    A('s_cmp_lg_u32 s55, 0\ns_cbranch_scc1 L_k1_ld_late_gc')
    k1_late(A, False, 'k1l')
    A('L_k1_ld_late_gc:')
    k1_late(A, True, 'k1lgc')
    A('L_k1_ld_early:')
    A('s_cmp_lg_u32 s55, 0\ns_cbranch_scc1 L_k1_ld_early_gc')
    k1_early(A, False, 'k1e')
    A('L_k1_ld_early_gc:')
    srd(A, 44, 14, 1280)
    A('v_and_b32 v6, 2, v3\nv_xor_b32 v6, v6, v4\nv_mul_u32_u24 v7, 1280, v3\nv_lshl_add_u32 v32, v6, 4, v7')
    A('v_xor_b32 v6, 4, v6\nv_lshl_add_u32 v33, v6, 4, v7\nv_add_u32 v33, 10240, v33\nv_add_u32 v34, 20480, v32\nv_add_u32 v35, 20480, v33')
    A(f's_sub_u32 s48, s22, 10\ns_mul_i32 s81, s18, 3\ns_mul_i32 s73, s81, {32*1280}\ns_mul_i32 s56, s48, 640\ns_add_u32 s73, s73, s56')
    A(f's_mul_i32 s80, s48, {4*68}\ns_add_u32 s80, s80, s81\ns_mul_i32 s80, s80, 5120\ns_add_u32 s80, s80, {W2_OFF}')
    A('v_lshrrev_b32 v20, 4, v2\nv_bfe_u32 v21, v2, 2, 2\nv_and_b32 v22, 3, v2')
    A('v_lshrrev_b32 v23, 1, v20\nv_mul_u32_u24 v36, 5120, v23')
    A('v_and_b32 v37, 1, v20\nv_lshl_add_u32 v37, v37, 2, v21\nv_lshl_add_u32 v36, v37, 7, v36\nv_lshl_add_u32 v36, v22, 3, v36')
    A(f'v_add_u32 v36, {WBASE + 4096}, v36\nv_lshrrev_b32 v37, 1, v21\nv_lshl_add_u32 v37, v23, 1, v37')
    for tl in range(4):
        A(f'v_xor_b32 v38, {tl}, v37\nv_lshl_add_u32 v{24+tl}, v38, 5, v36')
    A('v_lshlrev_b32 v28, 4, v2')
    k1_early(A, True, 'k1egc')

    A('L_k1_compute:')
    A('s_waitcnt lgkmcnt(0)')
    srd(A, 40, 16, WS_USED)
    A.c('compute wave setup: v3=q v4=r v5=c v6=f<<5 v7=rowpart')
    A('v_lshrrev_b32 v3, 4, v2\nv_bfe_u32 v4, v2, 2, 2\nv_and_b32 v5, 3, v2')
    A('v_lshrrev_b32 v6, 1, v4\nv_and_b32 v8, 1, v3\nv_lshl_add_u32 v6, v8, 1, v6\nv_lshlrev_b32 v6, 5, v6')
    A(f'v_mul_u32_u24 v7, 5120, v3\nv_lshl_add_u32 v7, v4, 7, v7')
    A('v_and_b32 v8, 15, v2\nv_lshrrev_b32 v9, 1, v8\nv_xor_b32 v9, v9, v3\nv_lshlrev_b32 v9, 4, v9\nv_lshl_add_u32 v20, v8, 7, v9\nv_xor_b32 v21, 64, v20')
    for r in range(ACC, 256):
        A(f'v_mov_b32 v{r}, 0')
    A(f's_mov_b32 s60, {LOG2E}\ns_mov_b32 s61, {LOG2E}\ns_mov_b32 s62, {NLOG2E}\ns_mov_b32 s63, {NLOG2E}')
    A(f's_mov_b32 s64, 1.0\ns_mov_b32 s65, 1.0\ns_mov_b32 s66, {EPS}')
    A('s_cmp_eq_u32 s20, 0\ns_cbranch_scc1 L_k1_kv')

    A('s_lshr_b32 s48, s21, 1\ns_lshl_b32 s48, s48, 10\ns_and_b32 s49, s21, 1\ns_lshl_b32 s49, s49, 3')
    A('v_add_u32 v8, s49, v5\nv_lshlrev_b32 v8, 3, v8\nv_xor_b32 v9, v8, v6\nv_add3_u32 v10, v9, v7, s48')
    A('v_add_u32 v8, 32, v8\nv_xor_b32 v9, v8, v6\nv_add3_u32 v11, v9, v7, s48')
    A('v_add_u32 v12, 2048, v10\nv_add_u32 v13, 2048, v11')
    A('s_lshl_b32 s49, s21, 2\nv_add_u32 v8, s49, v5\nv_lshlrev_b32 v8, 3, v8\nv_xor_b32 v9, v8, v6\nv_add_u32 v14, v9, v7\nv_add_u32 v14, 4096, v14')
    A('s_cmp_eq_u32 s55, 0\ns_cbranch_scc1 L_k1_g_notgc')
    A(f'v_lshlrev_b32 v14, 5, v3\nv_lshl_add_u32 v14, v4, 3, v14\nv_add_u32 v14, {GWBASE}, v14')
    A('L_k1_g_notgc:')
    k1_mainloop(A, False, 'k1g')
    A.c('h = u * sigmoid(g)')
    A('v_lshlrev_b32 v4, 4, v2')
    A('v_lshrrev_b32 v3, 4, v2')
    A('s_lshl_b32 s48, s22, 2\ns_add_u32 s48, s48, s21\ns_lshl_b32 s48, s48, 12')
    for ip in range(4):
        A(f's_xor_b32 s49, s20, {ip}\ns_lshr_b32 s56, s49, 1\ns_lshl_b32 s57, s18, 1\ns_add_u32 s56, s56, s57\ns_mul_i32 s56, s56, {68*4096}')
        A(f's_and_b32 s49, s49, 1\ns_lshl_b32 s49, s49, 11\ns_add_u32 s{74+ip}, s56, s49\ns_add_u32 s{70+ip}, s{74+ip}, s48')
    for i in range(8):
        g = acc(i, 0); u = acc(i, 2)
        for j in range(4):
            A(f'v_pk_mul_f32 {vr(g+2*j,2)}, {vr(g+2*j,2)}, s[62:63]')
        for j in range(8):
            A(f'v_exp_f32 v{g+j}, v{g+j}')
        for j in range(4):
            A(f'v_pk_add_f32 {vr(g+2*j,2)}, {vr(g+2*j,2)}, s[64:65]')
        for j in range(8):
            A(f'v_rcp_f32 v{g+j}, v{g+j}')
        for j in range(4):
            A(f'v_pk_mul_f32 {vr(u+2*j,2)}, {vr(u+2*j,2)}, {vr(g+2*j,2)}')
        for j in range(4):
            A(f'v_cvt_pk_bf16_f32 v{g+j}, v{u+2*j}, v{u+2*j+1}')
        A(f'buffer_store_dwordx4 {vr(g)}, v4, s[40:43], s{70 + (i>>1)} offen offset:{(i&1)*1024}')
    A('s_cmp_lg_u32 s55, 0\ns_cbranch_scc1 L_k1_gc_epi')
    A.c('pq = phi(q)')
    A('s_lshl_b32 s48, s22, 4\ns_lshl_b32 s49, s21, 2\ns_add_u32 s48, s48, s49\nv_add_u32 v5, s48, v3')
    A('v_mul_u32_u24 v6, 6554, v5\nv_lshrrev_b32 v6, 16, v6')
    A('v_mul_u32_u24 v7, 10, v6\nv_sub_u32 v7, v5, v7')
    A('v_lshrrev_b32 v8, 2, v6\nv_and_b32 v6, 3, v6')
    A('v_mul_u32_u24 v8, 5, v8\nv_lshrrev_b32 v9, 1, v7\nv_add3_u32 v8, v8, v9, 48\nv_lshlrev_b32 v8, 12, v8')
    A('v_and_b32 v9, 15, v2\nv_lshl_add_u32 v9, v6, 4, v9\nv_lshl_add_u32 v8, v9, 4, v8')
    A('v_and_b32 v7, 1, v7\nv_lshl_add_u32 v8, v7, 3, v8')
    phi_inplace(A, [acc(i, 4) for i in range(8)])
    for i in range(8):
        b = acc(i, 4)
        A(f'v_cvt_pk_bf16_f32 v{b}, v{b}, v{b+1}\nv_cvt_pk_bf16_f32 v{b+1}, v{b+2}, v{b+3}')
        A(f'buffer_store_dwordx2 {vr(b,2)}, v8, s[40:43], s{74 + (i>>1)} offen offset:{(i&1)*1024}')
    stamp(A, 4)
    stamp_end(A, 0)
    A('L_k1_gc_epi:')
    A.c('gate g = sigmoid(logit)')
    A('v_and_b32 v8, 15, v2\nv_lshlrev_b32 v8, 2, v8')
    A(f's_lshl_b32 s48, s18, 9\ns_add_u32 s48, s48, {G_OFF}')
    A(f's_cmp_eq_u32 s22, 10\ns_cselect_b32 s48, s48, {OOB}')
    for ip in range(4):
        A(f's_xor_b32 s49, s20, {ip}\ns_lshl_b32 s49, s49, 7\ns_add_u32 s{70+ip}, s48, s49')
    for i in range(8):
        A(f'v_mul_f32 v{acc(i,4)}, s62, v{acc(i,4)}')
    for i in range(8):
        A(f'v_exp_f32 v{acc(i,4)}, v{acc(i,4)}')
    for i in range(8):
        A(f'v_add_f32 v{acc(i,4)}, 1.0, v{acc(i,4)}')
    for i in range(8):
        A(f'v_rcp_f32 v{acc(i,4)}, v{acc(i,4)}')
    A('s_nop 0')
    for i in range(8):
        A(f'buffer_store_dword v{acc(i,4)}, v8, s[40:43], s{70+(i>>1)} offen offset:{64*(i&1)}')
    stamp(A, 4)
    stamp_end(A, 0)

    A('L_k1_kv:')
    A('s_mul_i32 s48, s21, 10\ns_and_b32 s49, s19, 1\ns_lshl_b32 s49, s49, 3\ns_sub_u32 s48, s48, s49')
    def kvaddr(dst, uexpr_v, isv_v):
        A(f'v_add_u32 v9, 40, {uexpr_v}\nv_cmp_gt_i32 vcc, 0, {uexpr_v}\ns_nop 1\nv_cndmask_b32 v8, {uexpr_v}, v9, vcc')
        A(f'v_lshrrev_b32 v9, 4, v8\nv_lshl_add_u32 v9, {isv_v}, 1, v9\nv_and_b32 v23, 15, v8')
        A(f'v_lshl_add_u32 v1, {isv_v}, 3, v23')
        A('v_cmp_gt_u32 vcc, 32, v8\ns_nop 1\nv_cndmask_b32 v9, 4, v9, vcc\nv_cndmask_b32 v23, v1, v23, vcc')
        A(f'v_lshlrev_b32 v23, 3, v23\nv_xor_b32 v23, v23, v6\nv_lshlrev_b32 v1, 4, {isv_v}\nv_xor_b32 v23, v23, v1')
        A(f'v_lshl_add_u32 v23, v9, 10, v23\nv_add_u32 v{dst}, v23, v7')
    A('v_mov_b32 v16, 0\nv_mov_b32 v17, 1\nv_add_u32 v15, s48, v5')
    kvaddr(10, 'v15', 'v16'); kvaddr(12, 'v15', 'v17')
    A('v_add_u32 v15, 4, v15')
    kvaddr(11, 'v15', 'v16'); kvaddr(13, 'v15', 'v17')
    A('v_and_b32 v15, 1, v5\nv_add3_u32 v15, v15, s48, 8\nv_lshrrev_b32 v16, 1, v5')
    kvaddr(14, 'v15', 'v16')
    k1_mainloop(A, True, 'k1kv')
    A.c('KV epilogue')
    A('v_and_b32 v8, 15, v2\nv_cmp_gt_u32 s[68:69], 8, v8')
    phi_inplace(A, [acc(i, t) for i in range(8) for t in (0, 1)])
    for i in range(8):
        b = acc(i, 4); t = 24 + 4 * (i % 4); s = 40 + 4 * (i % 4)
        A(f'v_pk_mul_f32 {vr(t,2)}, {vr(b,2)}, s[60:61]\nv_pk_mul_f32 {vr(t+2,2)}, {vr(b+2,2)}, s[60:61]')
        for j in range(4):
            A(f'v_exp_f32 v{t+j}, v{t+j} clamp')
        for j in range(4):
            A(f'v_max_f32 v{s+j}, s66, v{b+j}')
        A(f'v_pk_add_f32 {vr(s,2)}, {vr(s,2)}, {vr(t,2)}\nv_pk_add_f32 {vr(s+2,2)}, {vr(s+2,2)}, {vr(t+2,2)}')
        for j in range(4):
            A(f'v_cndmask_b32 v{b+j}, v{b+j}, v{s+j}, s[68:69]')
    for kk in range(4):
        for t in range(5):
            a = acc(2 * kk, t); b = acc(2 * kk + 1, t)
            A(f'v_cvt_pk_bf16_f32 v{a}, v{a}, v{a+1}\nv_cvt_pk_bf16_f32 v{a+1}, v{a+2}, v{a+3}')
            A(f'v_cvt_pk_bf16_f32 v{a+2}, v{b}, v{b+1}\nv_cvt_pk_bf16_f32 v{a+3}, v{b+2}, v{b+3}')
    A('v_mov_b32 v12, 0x3f803f80\nv_mov_b32 v13, v12\nv_mov_b32 v14, v12\nv_mov_b32 v15, v12')
    A('v_lshlrev_b32 v4, 4, v2\nv_lshlrev_b32 v5, 2, v2')
    KT = {0: 0, 1: 1, 2: 4}; VT = {0: 2, 1: 3, 2: 4}
    prods = [(0, 0), (1, 0), (0, 1), (1, 1), (2, 1), (1, 2), (2, 2)]
    A('s_nop 1')
    for kk in range(4):
        for n, (tv, tk) in enumerate(prods):
            d = vr(24 + 4 * n)
            A(f'v_mfma_f32_16x16x32_bf16 {d}, {vr(acc(2*kk,VT[tv]))}, {vr(acc(2*kk,KT[tk]))}, {d if kk else 0}')
        for tk in range(3):
            d = vr(52 + 4 * tk)
            A(f'v_mfma_f32_16x16x32_bf16 {d}, v[12:15], {vr(acc(2*kk,KT[tk]))}, {d if kk else 0}')
    A(f's_lshl_b32 s48, s19, 2\ns_add_u32 s48, s48, s21\ns_lshl_b32 s48, s48, 4\ns_add_u32 s48, s48, s18\ns_mul_i32 s48, s48, 10240\ns_add_u32 s70, s48, {KVP_OFF}')
    A('s_add_u32 s71, s70, 4096\ns_add_u32 s72, s70, 8192')
    A('s_nop 7')
    for n, (tv, tk) in enumerate(prods):
        slot = tv * 3 + tk
        A(f'buffer_store_dwordx4 {vr(24+4*n)}, v4, s[40:43], s{70 + (slot>>2)} offen offset:{(slot&3)*1024}')
    for tk in range(3):
        A(f'buffer_store_dword v{52+4*tk}, v5, s[40:43], s72 offen offset:{1024 + 256*tk}')
    stamp(A, 4)
    stamp_end(A, 0)

    A('L_k1_end:\ns_endpgm')


K2_LDS = 65536
def gen_k2(A):
    A('.globl k2_kernel\n.p2align 8\n.type k2_kernel,@function\nk2_kernel:')
    A('s_cmp_ge_u32 s2, 256\ns_cbranch_scc1 L_k2_end')
    stamp_begin(A)
    A('s_load_dwordx2 s[4:5], s[0:1], 16')
    A('s_load_dwordx4 s[8:11], s[0:1], 64')
    A('s_load_dwordx2 s[12:13], s[0:1], 80')
    A.c('s18 rb64, s19 cg, s21 wave')
    A('s_and_b32 s3, s2, 7\ns_lshr_b32 s48, s2, 3')
    A('s_and_b32 s18, s3, 1\ns_lshl_b32 s18, s18, 4\ns_bfe_u32 s49, s3, 0x10001\ns_lshl_b32 s49, s49, 3\ns_add_u32 s18, s18, s49\ns_and_b32 s22, s48, 7\ns_add_u32 s18, s18, s22')
    A('s_lshr_b32 s19, s3, 2\ns_lshl_b32 s19, s19, 2\ns_lshr_b32 s20, s48, 3\ns_add_u32 s19, s19, s20')
    A('v_lshrrev_b32 v1, 6, v0\nv_and_b32 v2, 63, v0\ns_nop 0\nv_readfirstlane_b32 s21, v1')
    A('v_lshrrev_b32 v3, 4, v2\nv_and_b32 v4, 15, v2\nv_lshlrev_b32 v5, 4, v2')
    A('s_waitcnt lgkmcnt(0)')
    srd(A, 24, 4, 819200)
    srd(A, 28, 8, 2621440)
    srd(A, 40, 12, WS_USED)
    A('s_cmp_eq_u32 s21, 4\ns_cbranch_scc1 L_k2_helper')

    AC = 16
    BUF = 96
    NB = 2
    PQ = 168
    def a2(rt, t): return AC + 20 * rt + 4 * t
    def hb(s, rt): return BUF + 36 * (s % NB) + 4 * rt
    def wb(s, t): return BUF + 36 * (s % NB) + 16 + 4 * t
    def pq(kk, rt): return PQ + 16 * kk + 4 * rt
    A('s_mul_i32 s23, s22, 3\ns_lshr_b32 s23, s23, 1\ns_mul_i32 s48, s20, 3\ns_add_u32 s23, s23, s48\ns_cmp_ge_u32 s23, 12\ns_cselect_b32 s48, 12, 0\ns_sub_u32 s23, s23, s48')
    if not ROT:
        A('s_mov_b32 s23, 0')
    A('s_mul_i32 s48, s21, 12\ns_mul_i32 s50, s18, 68\ns_add_u32 s52, s50, s48\ns_lshl_b32 s52, s52, 12')
    A(f's_mul_i32 s51, s19, 68\ns_add_u32 s53, s51, s48\ns_mul_i32 s53, s53, 5120\ns_add_u32 s53, s53, {W2_OFF}')
    A('s_mul_i32 s48, s21, 5\ns_add_u32 s48, s48, 48\ns_add_u32 s54, s50, s48\ns_lshl_b32 s54, s54, 12')
    A(f's_add_u32 s55, s51, s48\ns_mul_i32 s55, s55, 5120\ns_add_u32 s55, s55, {W2_OFF}')
    A('v_add_u32 v6, 4096, v5')
    A(f's_lshl_b32 s48, s18, 8\ns_add_u32 s48, s48, {G_OFF}\nv_lshlrev_b32 v7, 2, v4')
    Q = []
    def ld(tag, txt):
        A(txt); Q.append(tag)
    def wait(tags):
        last = max(k for k, t in enumerate(Q) if t in tags)
        A(f's_waitcnt vmcnt({min(63, len(Q) - 1 - last)})')
    def issueB(s):
        A('s_lshl_b32 s56, s23, 12\ns_add_u32 s56, s56, s52\ns_mul_i32 s57, s23, 5120\ns_add_u32 s57, s57, s53')
        for rt in range(4):
            ld(('B', s), f'buffer_load_dwordx4 {vr(hb(s,rt))}, v5, s[40:43], s56 offen offset:{1024*rt}')
        for t in range(4):
            ld(('B', s), f'buffer_load_dwordx4 {vr(wb(s,t))}, v5, s[40:43], s57 offen offset:{1024*t}')
        ld(('B', s), f'buffer_load_dwordx4 {vr(wb(s,4))}, v6, s[40:43], s57 offen')
        A('s_add_u32 s23, s23, 1\ns_cmp_ge_u32 s23, 12\ns_cselect_b32 s23, 0, s23')
    def issueM(kk):
        s = 12 + kk
        A(f's_add_u32 s57, s55, {5120*kk}')
        for t in range(4):
            ld(('B', s), f'buffer_load_dwordx4 {vr(wb(s,t))}, v5, s[40:43], s57 offen offset:{1024*t} sc1')
        ld(('B', s), f'buffer_load_dwordx4 {vr(wb(s,4))}, v6, s[40:43], s57 offen sc1')
    def issuePQ(kk):
        A(f's_add_u32 s56, s54, {4096*kk}')
        for rt in range(4):
            ld(('P', kk), f'buffer_load_dwordx4 {vr(pq(kk,rt))}, v5, s[40:43], s56 offen offset:{1024*rt}')
    for s in range(NB):
        issueB(s)
    for rt in range(4):
        ld(('G', 0), f'buffer_load_dword v{8+rt}, v7, s[40:43], s48 offen offset:{64*rt}')
    for s in range(12):
        wait([('B', s)])
        if s == 0: stamp(A, 1)
        for rt in range(4):
            for t in range(5):
                d = vr(a2(rt, t))
                A(f'v_mfma_f32_16x16x32_bf16 {d}, {vr(wb(s,t))}, {vr(hb(s,rt))}, {d if s else 0}')
        if s + NB < 12:
            issueB(s + NB)
        if 4 <= s < 9:
            issuePQ(s - 4)
    stamp(A, 2)
    A('s_barrier')
    stamp(A, 3)
    A(f's_lshl_b32 s48, s19, 11\ns_mul_i32 s49, s21, 320\ns_add_u32 s48, s48, s49\ns_add_u32 s48, s48, {ZB_OFF}')
    A('v_mul_u32_u24 v7, 80, v3')
    ZR = BUF
    zreg = [hb(0, 0), hb(0, 1), hb(0, 2), hb(0, 3), hb(1, 0)]
    for kk in range(5):
        ld(('Z', 0), f'buffer_load_dwordx4 {vr(zreg[kk])}, v7, s[40:43], s48 offen offset:{16*kk} sc1')
    issueM(0); issueM(1)
    wait([('G', 0)])
    for rt in range(4):
        A(f'v_sub_f32 v{12+rt}, 1.0, v{8+rt}')
    A('s_nop 4')
    for rt in range(4):
        for t in range(5):
            for j in range(4):
                A(f'v_mul_f32 v{a2(rt,t)+j}, v{12+rt}, v{a2(rt,t)+j}')
    A('v_lshrrev_b32 v12, 2, v4\nv_cmp_eq_u32 s[60:61], v12, v3\nv_and_b32 v12, 1, v4\nv_cmp_eq_u32 s[62:63], 0, v12')
    A('s_and_b64 s[64:65], s[60:61], s[62:63]\ns_andn2_b64 s[66:67], s[60:61], s[62:63]')
    wait([('Z', 0), ('P', 4)])
    for kk in range(5):
        for j in range(4):
            odd = (4 * kk + j) >= 10
            m = 's[66:67]' if odd else 's[64:65]'
            A(f'v_cndmask_b32 v{zreg[kk]+j}, 0, v{zreg[kk]+j}, {m}')
    DEN = hb(1, 1)
    den = [hb(1, 1), hb(1, 2), hb(1, 3), 248]
    A('s_nop 1')
    for kk in range(5):
        for rt in range(4):
            d = vr(den[rt])
            A(f'v_mfma_f32_16x16x32_bf16 {d}, {vr(zreg[kk])}, {vr(pq(kk,rt))}, {d if kk else 0}')
    A('s_nop 7')
    A(f's_mov_b32 s68, {EPS}\ns_mov_b32 s69, 0xffff0000')
    for rt in range(4):
        A(f'v_add_f32 v{den[rt]}, s68, v{den[rt]}\nv_add_f32 v{den[rt]+1}, s68, v{den[rt]+1}')
    for rt in range(4):
        A(f'v_rcp_f32 v{den[rt]}, v{den[rt]}\nv_rcp_f32 v{den[rt]+1}, v{den[rt]+1}')
    A('s_nop 0')
    for rt in range(4):
        A(f'v_mul_f32 v{den[rt]}, v{8+rt}, v{den[rt]}\nv_mul_f32 v{den[rt]+1}, v{8+rt}, v{den[rt]+1}')
    for kk in range(5):
        for rt in range(4):
            for j in range(4):
                r = pq(kk, rt) + j
                sc = den[rt] + (1 if (4 * kk + j) >= 10 else 0)
                t0 = 252 + 2 * (j & 1)
                A(f'v_lshlrev_b32 v{t0}, 16, v{r}\nv_and_b32 v{t0+1}, s69, v{r}')
                A(f'v_mul_f32 v{t0}, v{sc}, v{t0}\nv_mul_f32 v{t0+1}, v{sc}, v{t0+1}')
                A(f'v_cvt_pk_bf16_f32 v{r}, v{t0}, v{t0+1}')
        s = 12 + kk
        wait([('B', s)])
        A('s_nop 0')
        for rt in range(4):
            for t in range(5):
                d = vr(a2(rt, t))
                A(f'v_mfma_f32_16x16x32_bf16 {d}, {vr(wb(s,t))}, {vr(pq(kk,rt))}, {d}')
        if kk + NB < 5:
            issueM(kk + NB)
    stamp(A, 4)
    A('s_nop 7')
    A('s_mul_i32 s48, s21, 5120\nv_add_u32 v7, s48, v5')
    for w in range(4):
        A(f's_cmp_lg_u32 s21, {w}\ns_cbranch_scc1 L_k2_red{w}')
        for rt in range(4):
            if rt == w: continue
            slot = w if w < rt else w - 1
            for t in range(5):
                A(f'ds_write_b128 v5, {vr(a2(rt,t))} offset:{rt*15360 + slot*5120 + t*1024}')
        for t in range(5):
            for j in range(4):
                A(f'v_mov_b32 v{BUF+4*t+j}, v{a2(w,t)+j}')
        A(f'L_k2_red{w}:')
    A('s_mul_i32 s48, s21, 15360\nv_add_u32 v7, s48, v5')
    A('s_waitcnt lgkmcnt(0)\ns_barrier')
    for n in range(15):
        A(f'ds_read_b128 {vr(AC+4*n)}, v7 offset:{1024*n}')
    A('s_lshl_b32 s48, s18, 6\ns_lshl_b32 s49, s21, 4\ns_add_u32 s48, s48, s49\nv_add_u32 v8, s48, v4\nv_mul_u32_u24 v8, 1280, v8\nv_lshl_add_u32 v8, v3, 3, v8\ns_mul_i32 s48, s19, 160')
    for sl in range(3):
        A(f's_waitcnt lgkmcnt({10 - 5*sl})')
        for t in range(5):
            for j in range(0, 4, 2):
                A(f'v_pk_add_f32 {vr(BUF+4*t+j,2)}, {vr(BUF+4*t+j,2)}, {vr(AC+20*sl+4*t+j,2)}')
    for t in range(5):
        b = BUF + 4 * t
        A(f'v_cvt_pk_bf16_f32 v{b}, v{b}, v{b+1}\nv_cvt_pk_bf16_f32 v{b+1}, v{b+2}, v{b+3}')
        A(f'buffer_store_dwordx2 {vr(b,2)}, v8, s[28:31], s48 offen offset:{32*t}')
    stamp(A, 5)
    stamp_end(A, 1)

    A('L_k2_helper:')
    HS = 61440
    WOI = 0
    HS = 8192
    A('s_lshr_b32 s50, s18, 1\ns_and_b32 s51, s18, 1')
    for ldi in range(2):
        A(f'v_add_u32 v12, {64*ldi}, v2\nv_mul_u32_u24 v13, 10923, v12\nv_lshrrev_b32 v13, 16, v13')
        A('v_mul_u32_u24 v14, 6, v13\nv_sub_u32 v14, v12, v14')
        A('s_mul_i32 s48, s51, 20\nv_add_u32 v15, s48, v13')
        A('v_lshrrev_b32 v16, 4, v15\nv_and_b32 v17, 15, v15')
        A('s_mul_i32 s48, s51, 5\nv_add_u32 v18, s48, v14\nv_lshrrev_b32 v19, 2, v18\nv_and_b32 v18, 3, v18')
        A('v_lshrrev_b32 v20, 1, v19\nv_lshl_add_u32 v18, v20, 1, v18')
        A('v_mul_u32_u24 v19, 3, v19\nv_add_u32 v19, v19, v16\nv_lshlrev_b32 v19, 10, v19')
        A('v_lshl_add_u32 v18, v18, 4, v17\nv_lshl_add_u32 v19, v18, 4, v19')
        A('v_lshlrev_b32 v20, 8, v16\nv_lshl_add_u32 v20, v17, 2, v20\nv_add_u32 v20, 9216, v20')
        A(f'v_cmp_eq_u32 vcc, 5, v14\ns_nop 1\nv_cndmask_b32 v19, v19, v20, vcc')
        A(f'v_mov_b32 v20, {OOB}\nv_cmp_gt_u32 vcc, 120, v12\ns_nop 1\nv_cndmask_b32 v{10+ldi}, v20, v19, vcc')
    A(f's_mul_i32 s52, s50, {16*10240}\ns_add_u32 s52, s52, {KVP_OFF}')
    for p in range(16):
        for ldi in range(2):
            A(f'buffer_load_dwordx4 {vr(64 + 8*p + 4*ldi)}, v{10+ldi}, s[40:43], s52 offen')
        A('s_add_u32 s52, s52, 10240')
    A('s_mul_i32 s52, s18, 25600\ns_mul_i32 s48, s19, 160\ns_add_u32 s52, s52, s48')
    for i in range(5):
        A(f'v_add_u32 v12, {64*i}, v2\nv_mul_u32_u24 v13, 6554, v12\nv_lshrrev_b32 v13, 16, v13\nv_mul_u32_u24 v14, 10, v13\nv_sub_u32 v14, v12, v14')
        A(f'v_mul_u32_u24 v13, 1280, v13\nv_lshl_add_u32 v13, v14, 4, v13\ns_mov_b32 m0, {WOI + 1024*i}\ns_nop 0')
        A('buffer_load_dwordx4 v13, s[24:27], s52 offen lds')
    for p in range(1, 16):
        A(f's_waitcnt vmcnt({5 + 2*(15-p)})')
        for j in range(0, 8, 2):
            A(f'v_pk_add_f32 {vr(64+j,2)}, {vr(64+j,2)}, {vr(64+8*p+j,2)}')
    stamp(A, 1)
    A(f'ds_write_b128 v5, v[64:67] offset:{HS}\nds_write_b128 v5, v[68:71] offset:{HS+1024}')
    A('v_mul_u32_u24 v12, 96, v4\nv_lshl_add_u32 v12, v3, 5, v12')
    A('v_mul_u32_u24 v13, 192, v4')
    A('s_waitcnt lgkmcnt(0)')
    for mt in range(2):
        A(f'ds_read_b128 {vr(80+8*mt)}, v12 offset:{HS + 1536*mt}\nds_read_b128 {vr(84+8*mt)}, v12 offset:{HS + 1536*mt + 16}')
    A(f'ds_read_b32 v96, v13 offset:{HS+80}\nds_read_b32 v97, v13 offset:{HS+176}')
    A('v_bfe_u32 v14, v2, 2, 2\nv_lshl_add_u32 v14, v3, 3, v14\nv_mul_u32_u24 v14, 160, v14\nv_and_b32 v15, 3, v2\nv_lshl_add_u32 v14, v15, 3, v14')
    A('v_cmp_gt_u32 s[60:61], 3, v3\nv_cmp_gt_u32 s[62:63], 2, v3')
    A('s_waitcnt vmcnt(0)')
    for t in range(5):
        A(f'ds_read_b64_tr_b16 {vr(100+4*t,2)}, v14 offset:{WOI + 32*t}\nds_read_b64_tr_b16 {vr(102+4*t,2)}, v14 offset:{WOI + 32*t + 640}')
    A('s_waitcnt lgkmcnt(10)')
    for mt in range(2):
        b = 80 + 8 * mt
        for j in range(4):
            A(f'v_cvt_pk_bf16_f32 v{b+j}, v{b+2*j}, v{b+2*j+1}')
        for j in range(4):
            A(f'v_cndmask_b32 v{b+j}, 0, v{b+j}, {"s[60:61]" if j < 2 else "s[62:63]"}')
    A('v_cvt_pk_bf16_f32 v96, v96, v97')
    A('s_mul_i32 s48, s51, 5\ns_and_b32 s49, s50, 3\ns_lshl_b32 s49, s49, 8')
    for mt in range(2):
        A(f'v_add3_u32 v15, v3, s48, {4*mt}\nv_lshrrev_b32 v16, 1, v15\nv_mul_u32_u24 v16, 5120, v16\nv_and_b32 v15, 1, v15\nv_lshl_add_u32 v16, v15, 3, v16')
        A(f'v_lshl_add_u32 v16, v4, 4, v16\nv_add_u32 v{20+mt}, s49, v16')
    A(f'v_mov_b32 v16, {OOB}\nv_cmp_eq_u32 vcc, 0, v3\ns_nop 1\nv_cndmask_b32 v21, v16, v21, vcc')
    A(f'v_lshlrev_b32 v22, 2, v2\nv_cmp_gt_u32 vcc, 10, v2\ns_nop 1\nv_cndmask_b32 v22, v16, v22, vcc')
    A(f's_lshr_b32 s48, s18, 3\ns_mul_i32 s48, s48, 5\ns_mul_i32 s49, s19, 68\ns_add_u32 s48, s48, s49\ns_add_u32 s48, s48, 48\ns_mul_i32 s48, s48, 5120\ns_add_u32 s52, s48, {W2_OFF}\ns_add_u32 s53, s52, 4096')
    A(f's_lshl_b32 s54, s19, 11\ns_mul_i32 s49, s18, 40\ns_add_u32 s54, s54, s49\ns_add_u32 s54, s54, {ZB_OFF}')
    A('s_waitcnt lgkmcnt(0)')
    for mt in range(2):
        for t in range(5):
            A(f'v_mfma_f32_16x16x32_bf16 {vr(128+20*mt+4*t)}, {vr(80+8*mt)}, {vr(100+4*t)}, 0')
    A('buffer_store_dword v96, v22, s[40:43], s54 offen sc1')
    A('s_nop 7')
    for mt in range(2):
        for t in range(5):
            b = 128 + 20 * mt + 4 * t
            A(f'v_cvt_pk_bf16_f32 v{b}, v{b}, v{b+1}\nv_cvt_pk_bf16_f32 v{b+1}, v{b+2}, v{b+3}')
            so, off = (52, 1024 * t) if t < 4 else (53, 0)
            A(f'buffer_store_dwordx2 {vr(b,2)}, v{20+mt}, s[40:43], s{so} offen offset:{off} sc1')
    stamp(A, 2)
    A('s_waitcnt vmcnt(0)')
    stamp(A, 3)
    A('s_lshl_b32 s48, s19, 5\nv_mov_b32 v12, s48\nv_mov_b32 v13, 1')
    A('s_mov_b64 s[70:71], exec\ns_mov_b64 exec, 1')
    A('global_atomic_add v12, v13, s[10:11]')
    A('s_mov_b32 s49, 0')
    A('L_k2_poll:')
    A('global_load_dword v14, v12, s[10:11] sc1\ns_waitcnt vmcnt(0)\nv_readfirstlane_b32 s48, v14')
    A('s_cmp_ge_u32 s48, 32\ns_cbranch_scc1 L_k2_polled\ns_sleep 2\ns_add_u32 s49, s49, 1\ns_cmp_lt_u32 s49, 0x40000\ns_cbranch_scc1 L_k2_poll')
    A('L_k2_polled:')
    stamp(A, 4)
    A('s_barrier')
    stamp_end(A, 1)
    A('L_k2_end:\ns_endpgm')


def kd(name, vg=256):
    return f'''.amdhsa_kernel {name}
  .amdhsa_next_free_vgpr {vg}
  .amdhsa_next_free_sgpr 102
  .amdhsa_accum_offset {vg}
  .amdhsa_group_segment_fixed_size 0
  .amdhsa_kernarg_size 88
  .amdhsa_user_sgpr_count 2
  .amdhsa_user_sgpr_kernarg_segment_ptr 1
  .amdhsa_system_sgpr_workgroup_id_x 1
.end_amdhsa_kernel
'''

ROT = True
def main(out):
    A = Asm()
    gen_k1(A)
    gen_k2(A)
    hdr = open('cdna_kernels/' + NAME + '.s.ref').read().split('; Override')[0]
    txt = hdr
    txt += f'; @launch kernel=k1_kernel grid=(256,1,1) block=(512,1,1) lds={K1_LDS}\n'
    txt += f'; @launch kernel=k2_kernel grid=(256,1,1) block=(320,1,1) lds={K2_LDS}\n'
    txt += '.amdgcn_target "amdgcn-amd-amdhsa--gfx950"\n.text\n'
    txt += A.text()
    txt += '.section .rodata,"a"\n.p2align 6\n' + kd('k1_kernel') + '.p2align 6\n' + kd('k2_kernel')
    open(out, 'w').write(txt)

if __name__ == '__main__':
    for a in sys.argv[2:]:
        k, v = a.split('=')
        globals()[k] = eval(v)
    main(sys.argv[1] if len(sys.argv) > 1 else 'cdna_kernels/' + NAME + '.s')
```

```python
import sys

NAME = 'gated_mix__linear_attn_block__glu_gated_glu__prompt'

HB_OFF = 0
W2_OFF = 0x900000
M_OFF = 0xB00000
KVP_OFF = 0xC00000
G_OFF = 0xF00000
ZB_OFF = 0xF10000
FSH = 13
FG_OFF = 0xF40000
FK_OFF = 0xF60800
FM_OFF = 0xF81000
FW_OFF = 0xFA1800
STAMP_OFF = 0x1000000
WS_USED = 0x1100000
OOB = 0x7FFF0000

XSLOT = 16384; NX = 3
WBASE = NX * XSLOT
WSLOT = 20480; NW = 5
GWBASE = WBASE + NW * WSLOT
LDS_TOTAL = 163840
CT = 159744
P2_SCR = 0
RPK = GWBASE
CODEPF = True
RND = ((0, 4), (2, 4))
STAMP = False
GWS = 320
PRIO = 2
LSLEEP = 3
DEPTH = 2
EXP = ''
STG_THR = 3
PSLEEP = 4
STG_EARLY = True
SPIN_MAX = 0x20000


class Asm:
    def __init__(self):
        self.L = []
        self.nl = 0
    def __call__(self, s):
        for line in s.split('\n'):
            line = line.strip()
            if line:
                self.L.append(line if line.endswith(':') else '    ' + line)
    def c(self, s):
        self.L.append('    ; ' + s)
    def label(self, p='L'):
        self.nl += 1
        return f'{p}_{self.nl}'
    def text(self):
        return '\n'.join(self.L) + '\n'


def vr(b, n=4):
    return f'v[{b}:{b+n-1}]'

def srd(A, d, lo, nbytes):
    A(f's_mov_b32 s{d}, s{lo}\ns_mov_b32 s{d+1}, s{lo+1}\ns_mov_b32 s{d+2}, {nbytes}\ns_mov_b32 s{d+3}, 0x20000')

def stamp(A, n):
    if STAMP:
        A(f's_memtime s[98:99]\ns_waitcnt lgkmcnt(0)\nv_writelane_b32 v1, s98, {n}')
def stamp_rt(A, n):
    if STAMP:
        A(f's_memrealtime s[98:99]\ns_waitcnt lgkmcnt(0)\nv_writelane_b32 v1, s98, {n}')
def tbeg(A):
    if STAMP and 'quiet' not in EXP: A('s_memtime s[98:99]\ns_waitcnt lgkmcnt(0)\ns_mov_b32 s3, s98')
def tend(A, r):
    if STAMP and 'quiet' not in EXP: A(f's_memtime s[98:99]\ns_waitcnt lgkmcnt(0)\ns_sub_u32 s3, s98, s3\ns_add_u32 s{r}, s{r}, s3')
def finish(A):
    if STAMP:
        A('s_waitcnt vmcnt(0)')
        stamp(A, 61); stamp_rt(A, 63)
        A('v_writelane_b32 v1, s100, 59\nv_writelane_b32 v1, s101, 60')
        A('s_mov_b64 exec, -1')
        A(f's_lshl_b32 s3, s2, 3\ns_add_u32 s3, s3, s21\ns_lshl_b32 s3, s3, 8\ns_add_u32 s3, s3, {STAMP_OFF}\nv_lshlrev_b32 v2, 2, v2')
        A('buffer_store_dword v1, v2, s[40:43], s3 offen')
    A('s_endpgm')

LOG2E = 0x3fb8aa3b
NLOG2E = 0xbfb8aa3b
EPS = 0x358637bd

ACC = 96; XF = 64; WF = 24
def acc(i, t): return ACC + 20 * i + 4 * t


THR = 0
def dma(A, m0expr, voff, sr, so):
    A(m0expr)
    A(f's_waitcnt vmcnt({THR-1})' if THR else 's_nop 0')
    A(f'buffer_load_dwordx4 v{voff}, s[{sr}:{sr+3}], s{so} offen lds')


def poll(A, soff, nl, vt, vaddr):
    l0 = A.label('L_poll'); l1 = A.label('L_polled')
    A('s_mov_b32 s90, 0')
    A(f's_mov_b64 exec, {hex((1 << nl) - 1)}' if nl <= 31 else f's_mov_b32 exec_lo, -1\ns_mov_b32 exec_hi, {hex((1 << (nl - 32)) - 1)}')
    A(f'{l0}:')
    A(f'buffer_load_dwordx2 {vr(vt,2)}, v{vaddr}, s[40:43], s{soff} offen sc1')
    A('s_waitcnt vmcnt(0)')
    A(f'v_cmp_ne_u64 vcc, s[88:89], {vr(vt,2)}')
    A(f's_cbranch_vccz {l1}')
    A(f's_sleep {PSLEEP}\ns_add_u32 s90, s90, 1\ns_cmp_lt_u32 s90, {SPIN_MAX}\ns_cbranch_scc1 {l0}')
    A(f'{l1}:')
    A('s_mov_b64 exec, -1')


def spoll(A, parts, sleep=2):
    l0 = A.label('L_sp'); l1 = A.label('L_spd')
    A('s_mov_b32 s96, 0')
    A(f'{l0}:')
    regs = []
    for so, imm, n, sb in parts:
        A(f's_load_dwordx{2*n} s[{sb}:{sb+2*n-1}], s[16:17], s{so} offset:{imm} glc')
        regs += [sb + 2 * k for k in range(n)]
    A('s_waitcnt lgkmcnt(0)')
    for r in regs:
        A(f's_xor_b64 s[{r}:{r+1}], s[{r}:{r+1}], s[88:89]')
    for r in regs[1:]:
        A(f's_or_b64 s[{regs[0]}:{regs[0]+1}], s[{regs[0]}:{regs[0]+1}], s[{r}:{r+1}]')
    A(f's_cbranch_scc0 {l1}')
    A(f's_sleep {sleep}\ns_add_u32 s96, s96, 1\ns_cmp_lt_u32 s96, {SPIN_MAX}\ns_cbranch_scc1 {l0}')
    A(f'{l1}:')


def set_flag(A, soff, vt):
    A(f'v_mov_b32 v{vt}, s88\nv_mov_b32 v{vt+1}, s89\nv_mov_b32 v{vt+2}, 0')
    A('s_waitcnt vmcnt(0)')
    A('s_mov_b64 exec, 1')
    A(f'buffer_store_dwordx2 {vr(vt,2)}, v{vt+2}, s[40:43], s{soff} offen sc1')
    A('s_mov_b64 exec, -1')


def table_srd(A, d):
    l = A.label('L_pc')
    A(f's_getpc_b64 s[{d}:{d+1}]\n{l}:\ns_add_u32 s{d}, s{d}, L_table-{l}\ns_addc_u32 s{d+1}, s{d+1}, 0\ns_movk_i32 s{d+2}, 128\ns_mov_b32 s{d+3}, 0x20000')


def lds_free(A, vaddr, vt, sdst):
    A(f'ds_read_b32 v{vt}, v{vaddr}\ns_waitcnt lgkmcnt(0)')
    A(f'v_readlane_b32 s{sdst}, v{vt}, 0\nv_readlane_b32 s48, v{vt}, 1\ns_min_u32 s{sdst}, s{sdst}, s48\nv_readlane_b32 s48, v{vt}, 2\ns_min_u32 s{sdst}, s{sdst}, s48\nv_readlane_b32 s48, v{vt}, 3\ns_min_u32 s{sdst}, s{sdst}, s48')


def lds_min4(A, vaddr, off, vt, sdst):
    A(f'ds_read_b128 {vr(vt)}, v{vaddr} offset:{off}\ns_waitcnt lgkmcnt(0)')
    A(f'v_min3_u32 v{vt}, v{vt}, v{vt+1}, v{vt+2}\nv_min_u32 v{vt}, v{vt}, v{vt+3}\ns_nop 0\nv_readfirstlane_b32 s{sdst}, v{vt}')


def lds_wait(A, vaddr, off, vt, need, four=True, sdst=90, sleep=1):
    l0 = A.label('L_lw'); l1 = A.label('L_lwd')
    A('s_mov_b32 s96, 0')
    A(f'{l0}:')
    if four == 'free':
        lds_free(A, vaddr, vt, sdst)
    elif four:
        lds_min4(A, vaddr, off, vt, sdst)
    else:
        A(f'ds_read_b32 v{vt}, v{vaddr} offset:{off}\ns_waitcnt lgkmcnt(0)\nv_readfirstlane_b32 s{sdst}, v{vt}')
    A(f's_cmp_ge_i32 s{sdst}, {need}\ns_cbranch_scc1 {l1}')
    A(f's_sleep {sleep}\ns_add_u32 s96, s96, 1\ns_cmp_lt_u32 s96, {SPIN_MAX*16}\ns_cbranch_scc1 {l0}')
    A(f'{l1}:')


def mainloop(A, kv, tag):
    def upd_s():
        L = [f's_add_u32 s50, s50, {WSLOT}', f's_cmp_ge_u32 s50, {WBASE + NW*WSLOT}', f's_cselect_b32 s50, {WBASE}, s50']
        if not kv:
            L += ['s_add_u32 s52, s52, s53', 's_cmp_ge_u32 s52, s57', f's_cselect_b32 s52, {WBASE}, s52']
        return L
    def set_w():
        return [f'v_add_u32 v{15+t}, s50, v{10+t}' for t in range(4)] + [f'v_add_u32 v19, s{50 if kv else 52}, v14']
    def upd_blk():
        return [f's_add_u32 s51, s51, {XSLOT}', f's_cmp_ge_u32 s51, {NX*XSLOT}', 's_cselect_b32 s51, 0, s51']
    def set_x(par):
        return [f'v_add_u32 v{4+par}, s51, v{20+par}']
    def rdW(p, t, h):
        b = WF + 20 * p + 4 * t + 2 * h
        return f'ds_read_b64_tr_b16 {vr(b,2)}, v{15+t} offset:{512*h}'
    def rdX(i, par):
        return f'ds_read_b128 {vr(XF+4*i)}, v{4+par} offset:{2048*i}'
    def mfma(i, t, p):
        w = vr(WF + 20 * p + 4 * t); x = vr(XF + 4 * i); d = vr(acc(i, t))
        A(f'v_mfma_f32_16x16x32_bf16 {d}, {x}, {w}, {d}' if kv else f'v_mfma_f32_16x16x32_bf16 {d}, {w}, {x}, {d}')
    A(f's_mov_b32 s50, {WBASE}\ns_mov_b32 s51, 0\ns_mov_b32 s54, 0')
    if not kv:
        A(f's_cmp_lg_u32 s55, 0\ns_cselect_b32 s52, {GWBASE}, s50\ns_movk_i32 s53, {WSLOT}\ns_cselect_b32 s53, {GWS}, s53\ns_mov_b32 s57, {WBASE + NW*WSLOT}\ns_cselect_b32 s57, -1, s57')
    for l in set_w() + set_x(0) + set_x(1):
        A(l)
    A(f'v_mov_b32 v3, {CT}\ns_lshl_b32 s48, s21, 8\ns_add_u32 m0, s48, {CT+256}\nv_mov_b32 v0, {OOB}\nv_writelane_b32 v0, 0, 0')
    table_srd(A, 44)
    stamp(A, 1)
    lds_wait(A, 3, 0, 6, 1, sdst=59)
    A('s_waitcnt vmcnt(0)')
    A(f's_setprio {PRIO}')
    stamp(A, 2)
    for t in range(5):
        A(rdW(0, t, 0)); A(rdW(0, t, 1))
    A('s_waitcnt lgkmcnt(6)')
    for i in range(8):
        A(rdX(i, 0))
    for l in upd_s() + set_w():
        A(l)
    A('s_mov_b32 s58, 2\ns_cmp_ge_i32 s59, s58')
    A(f's_cbranch_scc0 L_{tag}_slow0')
    A('.p2align 3')
    for p in range(2):
        gap = {k: [] for k in range(40)}
        for i in range(5):
            gap[5*i].append(rdW(1 - p, i, 0)); gap[5*i + 2].append(rdW(1 - p, i, 1))
        for i in range(8):
            gap[5*i + 4].append(rdX(i, 1 - p))
        gap[9].append('s_waitcnt lgkmcnt(6)')
        gap[1].append('s_add_u32 s54, s54, 4')
        gap[11].append('buffer_load_dword v0, s[44:47], s54 offen lds')
        gap[6].append('s_add_u32 s58, s58, 1'); gap[8].append('s_min_u32 s58, s58, 20')
        sal = upd_s() + (upd_blk() if p == 0 else [])
        for k in (13, 13, 16, 16, 18, 18, 21, 21, 23):
            if sal: gap[k].append(sal.pop(0))
        assert not sal
        gap[23].append('ds_read_b128 v[6:9], v3')
        for k, l in zip((25, 26, 27, 28, 30, 31), set_w() + set_x(p)):
            gap[k].append(l)
        gap[32].append('s_waitcnt lgkmcnt(2)'); gap[32].append('v_min3_u32 v6, v6, v7, v8')
        gap[33].append('v_min_u32 v6, v6, v9')
        gap[35].append('v_readfirstlane_b32 s59, v6')
        if p == 1:
            gap[36].append('s_cmp_lt_u32 s54, 80'); gap[37].append(f's_cbranch_scc0 L_{tag}_last')
        gap[38].append('s_cmp_ge_i32 s59, s58' if 'nowait' not in EXP else 's_cmp_eq_u32 s59, s59')
        if 'novalu' in EXP:
            for k in gap: gap[k] = [l for l in gap[k] if not l.startswith('v_')]
        if 'nods' in EXP:
            for k in gap: gap[k] = [l for l in gap[k] if not l.startswith('ds_')]
        if 'nosalu' in EXP:
            for k in gap: gap[k] = [l for l in gap[k] if not (l.startswith('s_') and 13 <= k <= 23)]
        if 'noctl' in EXP:
            for k in gap: gap[k] = [l for l in gap[k] if not (' v6' in l or 'v[6:9]' in l)]
        if 'nowr' in EXP:
            for k in gap: gap[k] = [l for l in gap[k] if not l.startswith('ds_write')]
        if 'now32' in EXP:
            gap[32] = [l for l in gap[32] if not l.startswith('s_waitcnt')]
        if 'nopub' in EXP: pass
        if p == 0:
            A(f'L_{tag}_go0:')
        else:
            A(f's_cbranch_scc0 L_{tag}_slow1')
            A(f'L_{tag}_go1:')
        A('s_waitcnt lgkmcnt(2)')
        for i in range(8):
            for t in range(5):
                mfma(i, t, p)
                for l in gap[5*i + t]: A(l)
    A(f's_cbranch_scc1 L_{tag}_go0')
    for p in range(2):
        A(f'L_{tag}_slow{p}:')
        tbeg(A)
        lds_wait(A, 3, 0, 6, 's58', sdst=59)
        tend(A, 100)
        if STAMP: A('s_add_u32 s101, s101, 1')
        A(f's_branch L_{tag}_go{p}')
    A(f'L_{tag}_last:')
    mfma(7, 3, 1); mfma(7, 4, 1)
    A('ds_read_b64 v[6:7], v3 offset:32')
    A('s_waitcnt lgkmcnt(0)')
    A('v_readfirstlane_b32 s88, v6\nv_readfirstlane_b32 s89, v7')
    stamp(A, 3)
    A('s_nop 4')
    if 'p1' in EXP: finish(A)


def phi_q(A, b, t, dst=None):
    dst = b if dst is None else dst
    A(f'v_pk_mul_f32 {vr(t,2)}, {vr(b,2)}, s[60:61]\nv_pk_mul_f32 {vr(t+2,2)}, {vr(b+2,2)}, s[60:61]')
    for j in range(4):
        A(f'v_exp_f32 v{t+j}, v{t+j} clamp')
    for j in range(4):
        A(f'v_max_f32 v{dst+j}, s66, v{b+j}')
    A(f'v_pk_add_f32 {vr(dst,2)}, {vr(dst,2)}, {vr(t,2)}\nv_pk_add_f32 {vr(dst+2,2)}, {vr(dst+2,2)}, {vr(t+2,2)}')


def gen_compute(A):
    A('L_compute:')
    if CODEPF:
        A('s_cmp_lg_u32 s21, 0\ns_cbranch_scc1 L_nocpf')
        A(f's_getpc_b64 s[44:45]\nL_pc:\ns_sub_u32 s44, s44, L_pc-{NAME}_kernel\ns_subb_u32 s45, s45, 0\ns_mov_b32 s46, L_end-{NAME}_kernel\ns_mov_b32 s47, 0x20000')
        A('s_lshr_b32 s48, s2, 3\ns_lshl_b32 s48, s48, 11\nv_lshlrev_b32 v3, 7, v2\ns_mov_b64 exec, 0xffff')
        A('buffer_load_dword v95, v3, s[44:47], s48 offen\ns_mov_b64 exec, -1')
        A('L_nocpf:')
    A('s_barrier')
    A.c('compute wave setup: v3=q v4=r v5=c v6=f<<5 v7=rowpart')
    for r in range(ACC, 256, 2):
        A(f'v_mov_b64 {vr(r,2)}, 0')
    A('v_lshrrev_b32 v3, 4, v2\nv_bfe_u32 v4, v2, 2, 2\nv_and_b32 v5, 3, v2')
    A('v_lshrrev_b32 v6, 1, v4\nv_and_b32 v8, 1, v3\nv_lshl_add_u32 v6, v8, 1, v6\nv_lshlrev_b32 v6, 5, v6')
    A('v_mul_u32_u24 v7, 5120, v3\nv_lshl_add_u32 v7, v4, 7, v7')
    A('v_and_b32 v8, 15, v2\nv_lshrrev_b32 v9, 1, v8\nv_xor_b32 v9, v9, v3\nv_lshlrev_b32 v9, 4, v9\nv_lshl_add_u32 v20, v8, 7, v9\nv_xor_b32 v21, 64, v20')
    A(f's_mov_b32 s60, {LOG2E}\ns_mov_b32 s61, {LOG2E}\ns_mov_b32 s62, {NLOG2E}\ns_mov_b32 s63, {NLOG2E}')
    A(f's_mov_b32 s64, 1.0\ns_mov_b32 s65, 1.0\ns_mov_b32 s66, {EPS}')
    A('s_waitcnt lgkmcnt(0)')
    srd(A, 40, 16, WS_USED)
    A('s_cmp_eq_u32 s20, 0\ns_cbranch_scc1 L_kv')

    A('s_lshr_b32 s48, s21, 1\ns_lshl_b32 s48, s48, 10\ns_and_b32 s49, s21, 1\ns_lshl_b32 s49, s49, 3')
    A('v_add_u32 v8, s49, v5\nv_lshlrev_b32 v8, 3, v8\nv_xor_b32 v9, v8, v6\nv_add3_u32 v10, v9, v7, s48')
    A('v_add_u32 v8, 32, v8\nv_xor_b32 v9, v8, v6\nv_add3_u32 v11, v9, v7, s48')
    A('v_add_u32 v12, 2048, v10\nv_add_u32 v13, 2048, v11')
    A('s_lshl_b32 s49, s21, 2\nv_add_u32 v8, s49, v5\nv_lshlrev_b32 v8, 3, v8\nv_xor_b32 v9, v8, v6\nv_add_u32 v14, v9, v7\nv_add_u32 v14, 4096, v14')
    A('s_cmp_eq_u32 s55, 0\ns_cbranch_scc1 L_g_notgc')
    A('v_lshlrev_b32 v14, 5, v3\nv_lshl_add_u32 v14, v4, 3, v14')
    A('L_g_notgc:')
    A('v_lshlrev_b32 v22, 4, v2')
    A(f's_mul_i32 s72, s18, {2*68*4096}\ns_add_u32 s73, s72, {68*4096}')
    A('s_lshl_b32 s48, s22, 2\ns_add_u32 s48, s48, s21\ns_lshl_b32 s49, s48, 12\ns_add_u32 s70, s72, s49\ns_add_u32 s71, s73, s49')
    A(f's_lshl_b32 s74, s18, {FSH}\ns_lshl_b32 s49, s48, 3\ns_add_u32 s74, s74, s49\ns_add_u32 s74, s74, {FG_OFF}')
    A('s_lshl_b32 s48, s48, 2\nv_add_u32 v5, s48, v3')
    A('v_mul_u32_u24 v6, 6554, v5\nv_lshrrev_b32 v6, 16, v6\nv_mul_u32_u24 v7, 10, v6\nv_sub_u32 v7, v5, v7')
    A('v_lshrrev_b32 v8, 2, v6\nv_and_b32 v6, 3, v6')
    A('v_mul_u32_u24 v8, 5, v8\nv_lshrrev_b32 v9, 1, v7\nv_add3_u32 v8, v8, v9, 48\nv_lshlrev_b32 v8, 12, v8')
    A('v_and_b32 v9, 15, v2\nv_lshl_add_u32 v9, v6, 4, v9\nv_lshl_add_u32 v8, v9, 4, v8')
    A('v_and_b32 v7, 1, v7\nv_lshl_add_u32 v23, v7, 10, v8')
    mainloop(A, False, 'g')
    A.c('h = u * sigmoid(g)')
    for i in range(8):
        g = acc(i, 0); u = acc(i, 2)
        for j in range(4):
            A(f'v_pk_mul_f32 {vr(g+2*j,2)}, {vr(g+2*j,2)}, s[62:63]')
        for j in range(8):
            A(f'v_exp_f32 v{g+j}, v{g+j}')
        for j in range(4):
            A(f'v_pk_add_f32 {vr(g+2*j,2)}, {vr(g+2*j,2)}, s[64:65]')
        for j in range(8):
            A(f'v_rcp_f32 v{g+j}, v{g+j}')
        for j in range(4):
            A(f'v_pk_mul_f32 {vr(u+2*j,2)}, {vr(u+2*j,2)}, {vr(g+2*j,2)}')
        for j in range(4):
            A(f'v_cvt_pk_bf16_f32 v{g+j}, v{u+2*j}, v{u+2*j+1}')
        A(f'buffer_store_dwordx4 {vr(g)}, v22, s[40:43], s{70 + (i>>2)} offen offset:{(i&3)*1024} sc1')
    A('s_cmp_lg_u32 s91, 0\ns_cbranch_scc1 L_gc_epi')
    A.c('pq = phi(q)')
    for i in range(0, 8, 2):
        a0 = acc(i, 4); b0 = acc(i + 1, 4)
        phi_q(A, a0, 24 + 8 * ((i >> 1) & 1))
        phi_q(A, b0, 28 + 8 * ((i >> 1) & 1))
        A(f'v_cvt_pk_bf16_f32 v{a0}, v{a0}, v{a0+1}\nv_cvt_pk_bf16_f32 v{a0+1}, v{a0+2}, v{a0+3}')
        A(f'v_cvt_pk_bf16_f32 v{a0+2}, v{b0}, v{b0+1}\nv_cvt_pk_bf16_f32 v{a0+3}, v{b0+2}, v{b0+3}')
        A('s_nop 1')
        A(f'v_permlane16_swap_b32 v{a0}, v{a0+2}\nv_permlane16_swap_b32 v{a0+1}, v{a0+3}')
        A(f'buffer_store_dwordx4 {vr(a0)}, v23, s[40:43], s{72 + (i>>2)} offen offset:{(i&3)*1024} sc1')
    A('s_branch L_p1_done')
    A('L_gc_epi:')
    A.c('gate g = sigmoid(logit); stored by gtype 10, wave 0')
    A('v_and_b32 v8, 15, v2\nv_lshlrev_b32 v8, 2, v8')
    A(f's_lshl_b32 s48, s18, 9\ns_add_u32 s48, s48, {G_OFF}\ns_lshl_b32 s49, s22, 2\ns_add_u32 s49, s49, s21')
    A(f's_cmp_eq_u32 s49, 40\ns_cselect_b32 s48, s48, {OOB}')
    for i in range(8):
        A(f'v_mul_f32 v{acc(i,4)}, s62, v{acc(i,4)}')
    for i in range(8):
        A(f'v_exp_f32 v{acc(i,4)}, v{acc(i,4)}')
    for i in range(8):
        A(f'v_add_f32 v{acc(i,4)}, 1.0, v{acc(i,4)}')
    for i in range(8):
        A(f'v_rcp_f32 v{acc(i,4)}, v{acc(i,4)}')
    A('s_nop 0\ns_mov_b64 exec, 0xffff')
    for i in range(8):
        A(f'buffer_store_dword v{acc(i,4)}, v8, s[40:43], s48 offen offset:{64*i} sc1')
    A('s_mov_b64 exec, -1')
    A('s_branch L_p1_done')

    A('L_kv:')
    A('s_mul_i32 s48, s21, 10\ns_and_b32 s49, s19, 1\ns_lshl_b32 s49, s49, 3\ns_sub_u32 s48, s48, s49')
    def kvaddr(dst, u, isv):
        A(f'v_add_u32 v9, 40, {u}\nv_cmp_gt_i32 vcc, 0, {u}\ns_nop 1\nv_cndmask_b32 v8, {u}, v9, vcc')
        A(f'v_lshrrev_b32 v9, 4, v8\nv_lshl_add_u32 v9, {isv}, 1, v9\nv_and_b32 v23, 15, v8')
        A(f'v_lshl_add_u32 v22, {isv}, 3, v23')
        A('v_cmp_gt_u32 vcc, 32, v8\ns_nop 1\nv_cndmask_b32 v9, 4, v9, vcc\nv_cndmask_b32 v23, v22, v23, vcc')
        A(f'v_lshlrev_b32 v23, 3, v23\nv_xor_b32 v23, v23, v6\nv_lshlrev_b32 v22, 4, {isv}\nv_xor_b32 v23, v23, v22')
        A(f'v_lshl_add_u32 v23, v9, 10, v23\nv_add_u32 v{dst}, v23, v7')
    A('v_mov_b32 v16, 0\nv_mov_b32 v17, 1\nv_add_u32 v15, s48, v5')
    kvaddr(10, 'v15', 'v16'); kvaddr(12, 'v15', 'v17')
    A('v_add_u32 v15, 5, v15')
    kvaddr(11, 'v15', 'v16'); kvaddr(13, 'v15', 'v17')
    A('v_and_b32 v15, 1, v5\nv_mul_u32_u24 v15, 5, v15\nv_add3_u32 v15, v15, s48, 4\nv_lshrrev_b32 v16, 1, v5')
    kvaddr(14, 'v15', 'v16')
    A('v_lshlrev_b32 v22, 4, v2\nv_lshlrev_b32 v23, 4, v3')
    A('v_and_b32 v8, 15, v2\nv_cmp_gt_u32 s[68:69], 8, v8')
    A(f's_lshl_b32 s48, s19, 2\ns_add_u32 s48, s48, s21\ns_lshl_b32 s48, s48, 4\ns_add_u32 s48, s48, s18\ns_mul_i32 s70, s48, 10240\ns_add_u32 s70, s70, {KVP_OFF}')
    A(f's_add_u32 s71, s70, 4096\ns_add_u32 s72, s70, 8192\ns_lshr_b32 s74, s48, 4\ns_lshl_b32 s74, s74, {FSH}\ns_lshl_b32 s49, s18, 3\ns_add_u32 s74, s74, s49\ns_add_u32 s74, s74, {FK_OFF}')
    mainloop(A, True, 'kv')
    A.c('KV epilogue')
    A('v_mov_b32 v12, 0x3f803f80\nv_mov_b32 v13, v12\nv_mov_b32 v14, v12\nv_mov_b32 v15, v12')
    KT = {0: 0, 1: 1, 2: 4}; VT = {0: 2, 1: 3, 2: 4}
    prods = [(0, 0), (1, 1), (2, 0), (2, 1), (0, 2), (1, 2), (2, 2)]
    PR = 24
    pend = []
    def flush(k):
        for _ in range(k):
            if pend: A(pend.pop(0))
    for kk in range(4):
        n = 0
        for i in (2 * kk, 2 * kk + 1):
            for t in (0, 1):
                phi_q(A, acc(i, t), 64 + 4 * (n % 4)); n += 1
                flush(2)
            b = acc(i, 4); s = 80 + 4 * (i & 1)
            phi_q(A, b, 64 + 4 * (n % 4), s); n += 1
            for j in range(4):
                A(f'v_cndmask_b32 v{b+j}, v{b+j}, v{s+j}, s[68:69]')
            flush(1)
        assert not pend
        for t in range(5):
            a = acc(2 * kk, t); b = acc(2 * kk + 1, t)
            A(f'v_cvt_pk_bf16_f32 v{a}, v{a}, v{a+1}\nv_cvt_pk_bf16_f32 v{a+1}, v{a+2}, v{a+3}')
            A(f'v_cvt_pk_bf16_f32 v{a+2}, v{b}, v{b+1}\nv_cvt_pk_bf16_f32 v{a+3}, v{b+2}, v{b+3}')
        for n, (tv, tk) in enumerate(prods):
            d = vr(PR + 4 * n)
            pend.append(f'v_mfma_f32_16x16x32_bf16 {d}, {vr(acc(2*kk,VT[tv]))}, {vr(acc(2*kk,KT[tk]))}, {d if kk else 0}')
        for tk in range(3):
            d = vr(52 + 4 * tk)
            pend.append(f'v_mfma_f32_16x16x32_bf16 {d}, {vr(acc(2*kk,KT[tk]))}, v[12:15], {d if kk else 0}')
    A('s_nop 1')
    flush(10)
    A('s_nop 7')
    masks = {(0,0): None, (1,1): None, (2,0): (0, 0xffff), (2,1): (0, 0xffff0000), (0,2): (0x000f000f, 0x000f000f),
             (1,2): (0x00f000f0, 0x00f000f0), (2,2): (0, 0x00f0000f)}
    for n, (tv, tk) in enumerate(prods):
        slot = tv * 3 + tk
        if masks[(tv, tk)]:
            A(f's_mov_b32 exec_lo, {hex(masks[(tv,tk)][0])}\ns_mov_b32 exec_hi, {hex(masks[(tv,tk)][1])}')
        A(f'buffer_store_dwordx4 {vr(PR+4*n)}, v22, s[40:43], s{70 + (slot>>2)} offen offset:{(slot&3)*1024} sc1')
    A('s_mov_b32 exec_lo, 0x00010001\ns_mov_b32 exec_hi, 0x00010001')
    for tk in range(3):
        A(f'buffer_store_dwordx4 {vr(52+4*tk)}, v23, s[40:43], s72 offen offset:{1024 + 64*tk} sc1')
    A('s_mov_b64 exec, -1')
    A('L_p1_done:')
    stamp(A, 4)
    gen_awave(A)


def p2_ids(A):
    A('s_and_b32 s18, s2, 1\ns_lshl_b32 s18, s18, 4\ns_bfe_u32 s48, s2, 0x20001\ns_lshl_b32 s48, s48, 2\ns_add_u32 s18, s18, s48\ns_bfe_u32 s48, s2, 0x20003\ns_add_u32 s18, s18, s48')
    A('s_lshr_b32 s19, s2, 5')


def gen_awave(A):
    AC = 16; PQ = 96; MB = 176
    def a2(rt, t): return AC + 20 * rt + 4 * t
    def pq(kk, rt): return PQ + 16 * kk + 4 * rt
    def mb(kk, t): return MB + 20 * (kk % 3) + 4 * t
    A('s_load_dwordx2 s[4:5], s[0:1], 16\ns_load_dwordx2 s[8:9], s[0:1], 64')
    p2_ids(A)
    A('v_lshrrev_b32 v3, 4, v2\nv_and_b32 v4, 15, v2\nv_lshlrev_b32 v5, 4, v2\nv_lshlrev_b32 v6, 3, v2\nv_add_u32 v7, 4096, v5')
    set_flag(A, 74, 8)
    A(f'v_mov_b32 v8, 1\nv_mov_b32 v0, {CT}\ns_lshl_b32 s48, s21, 2\nv_add_u32 v9, s48, v0\ns_mov_b64 exec, 1\nds_write_b32 v9, v8 offset:48\ns_mov_b64 exec, -1')
    stamp(A, 5)
    A('s_waitcnt lgkmcnt(0)')
    srd(A, 24, 4, 819200)
    srd(A, 28, 8, 2621440)
    A('s_cmp_lg_u32 s21, 0\ns_cbranch_scc1 L_a_main')

    WOI = P2_SCR; HS = P2_SCR + 8192
    A('s_lshr_b32 s50, s18, 1\ns_and_b32 s51, s18, 1')
    A('s_mul_i32 s52, s18, 25600\ns_mul_i32 s48, s19, 160\ns_add_u32 s52, s52, s48')
    for i in range(5):
        A(f'v_add_u32 v12, {64*i}, v2\nv_mul_u32_u24 v13, 6554, v12\nv_lshrrev_b32 v13, 16, v13\nv_mul_u32_u24 v14, 10, v13\nv_sub_u32 v14, v12, v14')
        A(f'v_mul_u32_u24 v13, 1280, v13\nv_lshl_add_u32 v13, v14, 4, v13\ns_mov_b32 m0, {WOI + 1024*i}\ns_nop 0')
        A('buffer_load_dwordx4 v13, s[24:27], s52 offen lds')
    A('s_lshl_b32 s48, s51, 12\nv_add_u32 v10, s48, v5')
    A('s_mul_i32 s48, s51, 1280\ns_add_u32 s48, s48, 6656\nv_add_u32 v11, s48, v5')
    A('v_mul_u32_u24 v20, 96, v2\nv_add_u32 v20, 64, v20')
    A('v_subrev_u32 v12, 16, v2\nv_mul_u32_u24 v13, 13108, v12\nv_lshrrev_b32 v13, 16, v13\nv_and_b32 v13, 3, v13\nv_mul_u32_u24 v14, 5, v13\nv_sub_u32 v14, v12, v14')
    A('s_mul_i32 s48, s51, 3136\ns_add_u32 s48, s48, 2048\nv_lshlrev_b32 v15, 8, v14\nv_lshl_add_u32 v15, v13, 4, v15\nv_add_u32 v15, s48, v15')
    A('s_mul_i32 s48, s51, 320\ns_add_u32 s48, s48, 8704\nv_lshlrev_b32 v16, 4, v13\nv_add_u32 v16, s48, v16')
    A('v_cmp_eq_u32 vcc, 4, v14\ns_nop 1\nv_cndmask_b32 v15, v15, v16, vcc')
    A('v_mul_u32_u24 v16, 96, v13\nv_lshl_add_u32 v16, v14, 4, v16\nv_add_u32 v16, 1536, v16')
    A('v_cmp_lt_u32 vcc, 15, v2\ns_nop 1\nv_cndmask_b32 v11, v11, v15, vcc\nv_cndmask_b32 v20, v20, v16, vcc')
    A('v_subrev_u32 v12, 36, v2\ns_lshl_b32 s48, s51, 6\ns_add_u32 s48, s48, 9216\nv_lshlrev_b32 v16, 4, v12\nv_add_u32 v15, s48, v16\nv_add_u32 v16, 3104, v16')
    A('v_cmp_lt_u32 vcc, 35, v2\ns_nop 1\nv_cndmask_b32 v11, v11, v15, vcc\nv_cndmask_b32 v20, v20, v16, vcc')
    A('s_lshl_b32 s48, s51, 4\ns_add_u32 s48, s48, 9344\nv_writelane_b32 v11, s48, 40')
    A(f'v_mov_b32 v15, {OOB}\nv_cmp_lt_u32 vcc, 40, v2\ns_nop 1\nv_cndmask_b32 v11, v11, v15, vcc')
    A('v_mul_u32_u24 v21, 96, v4\nv_lshl_add_u32 v19, v3, 4, v21')
    A('v_lshl_add_u32 v12, v3, 5, v21\nv_lshlrev_b32 v13, 3, v4')
    A('v_bfe_u32 v14, v2, 2, 2\nv_lshl_add_u32 v14, v3, 3, v14\nv_mul_u32_u24 v14, 160, v14\nv_and_b32 v15, 3, v2\nv_lshl_add_u32 v14, v15, 3, v14')
    A('v_cmp_gt_u32 s[60:61], 3, v3\nv_cmp_gt_u32 s[62:63], 2, v3')
    A('s_mul_i32 s48, s51, 5\ns_and_b32 s49, s50, 3\ns_lshl_b32 s49, s49, 8')
    for mt in range(2):
        A(f'v_add3_u32 v15, v3, s48, {4*mt}\nv_lshrrev_b32 v16, 1, v15\nv_mul_u32_u24 v16, 5120, v16\nv_and_b32 v15, 1, v15\nv_lshl_add_u32 v16, v15, 3, v16')
        A(f'v_lshl_add_u32 v16, v4, 4, v16\nv_add_u32 v{17+mt}, s49, v16')
    A(f'v_mov_b32 v16, {OOB}\nv_cmp_eq_u32 vcc, 0, v3\ns_nop 1\nv_cndmask_b32 v18, v16, v18, vcc')
    A('v_lshlrev_b32 v22, 2, v2\nv_cmp_gt_u32 vcc, 10, v2\ns_nop 1\nv_cndmask_b32 v22, v16, v22, vcc')
    A(f's_lshr_b32 s48, s18, 3\ns_mul_i32 s48, s48, 5\ns_mul_i32 s49, s19, 20\ns_add_u32 s48, s48, s49\ns_mul_i32 s48, s48, 5120\ns_add_u32 s56, s48, {M_OFF}\ns_add_u32 s57, s56, 4096')
    A(f's_lshl_b32 s54, s19, 11\ns_mul_i32 s49, s18, 40\ns_add_u32 s54, s54, s49\ns_add_u32 s54, s54, {ZB_OFF}')
    A(f's_lshl_b32 s58, s19, {FSH}\ns_lshl_b32 s49, s18, 3\ns_add_u32 s58, s58, s49\ns_add_u32 s58, s58, {FM_OFF}')
    A(f's_lshl_b32 s59, s50, {FSH}\ns_add_u32 s59, s59, {FK_OFF}')
    A(f's_mul_i32 s52, s50, {16*10240}\ns_add_u32 s52, s52, {KVP_OFF}')
    poll(A, 59, 16, 8, 6)
    stamp(A, 6)
    for p in range(16):
        for ldi in range(2):
            A(f'buffer_load_dwordx4 {vr(64 + 8*p + 4*ldi)}, v{10+ldi}, s[40:43], s52 offen sc1')
        A('s_add_u32 s52, s52, 10240')
    for t in range(5):
        A(f'ds_read_b64_tr_b16 {vr(24+4*t,2)}, v14 offset:{WOI + 32*t}\nds_read_b64_tr_b16 {vr(26+4*t,2)}, v14 offset:{WOI + 32*t + 640}')
    for p in range(1, 16):
        A(f's_waitcnt vmcnt({2*(15-p)})')
        for j in range(0, 8, 2):
            A(f'v_pk_add_f32 {vr(64+j,2)}, {vr(64+j,2)}, {vr(64+8*p+j,2)}')
    stamp(A, 7)
    A(f'ds_write_b128 v19, v[64:67] offset:{HS}\nds_write_b128 v20, v[68:71] offset:{HS}')
    A('s_waitcnt lgkmcnt(0)')
    for mt in range(2):
        A(f'ds_read_b128 {vr(80+8*mt)}, v12 offset:{HS + 1536*mt}\nds_read_b128 {vr(84+8*mt)}, v12 offset:{HS + 1536*mt + 16}')
    A(f'ds_read_b64 v[96:97], v13 offset:{HS+3104}')
    for mt in range(2):
        b = 80 + 8 * mt
        A(f's_waitcnt lgkmcnt({3 - 2*mt})')
        for j in range(4):
            A(f'v_cvt_pk_bf16_f32 v{b+j}, v{b+2*j}, v{b+2*j+1}')
        for j in range(4):
            A(f'v_cndmask_b32 v{b+j}, 0, v{b+j}, {"s[60:61]" if j < 2 else "s[62:63]"}')
    A('s_waitcnt lgkmcnt(0)\nv_cvt_pk_bf16_f32 v96, v96, v97')
    for mt in range(2):
        for t in range(5):
            A(f'v_mfma_f32_16x16x32_bf16 {vr(128+20*mt+4*t)}, {vr(80+8*mt)}, {vr(24+4*t)}, 0')
    A('buffer_store_dword v96, v22, s[40:43], s54 offen sc1')
    A('s_nop 2')
    for mt in range(2):
        if mt == 1: A('s_nop 3')
        for t in range(5):
            b = 128 + 20 * mt + 4 * t
            A(f'v_cvt_pk_bf16_f32 v{b}, v{b}, v{b+1}\nv_cvt_pk_bf16_f32 v{b+1}, v{b+2}, v{b+3}')
            so, off = (56, 1024 * t) if t < 4 else (57, 0)
            A(f'buffer_store_dwordx2 {vr(b,2)}, v{17+mt}, s[40:43], s{so} offen offset:{off} sc1')
    stamp(A, 8)
    set_flag(A, 58, 8)
    stamp(A, 9)

    A('L_a_main:')
    A(f's_lshr_b32 s48, s18, 1\ns_lshl_b32 s59, s48, {FSH}\ns_add_u32 s59, s59, {FG_OFF}')
    A('s_mul_i32 s48, s21, 5\ns_mul_i32 s54, s18, 68\ns_add_u32 s54, s54, s48\ns_add_u32 s54, s54, 48\ns_lshl_b32 s54, s54, 12')
    A(f's_mul_i32 s55, s19, 20\ns_add_u32 s55, s55, s48\ns_mul_i32 s55, s55, 5120\ns_add_u32 s55, s55, {M_OFF}')
    A(f's_lshl_b32 s53, s18, 8\ns_add_u32 s53, s53, {G_OFF}')
    A(f's_lshl_b32 s52, s19, 11\ns_mul_i32 s49, s21, 320\ns_add_u32 s52, s52, s49\ns_add_u32 s52, s52, {ZB_OFF}')
    A(f's_lshl_b32 s58, s19, {FSH}\ns_add_u32 s58, s58, {FM_OFF}')
    A('v_lshlrev_b32 v14, 2, v4\nv_mul_u32_u24 v15, 80, v3')
    A('v_lshrrev_b32 v12, 2, v4\nv_cmp_eq_u32 s[60:61], v12, v3\nv_and_b32 v12, 1, v4\nv_cmp_eq_u32 s[62:63], 0, v12')
    A('s_and_b64 s[64:65], s[60:61], s[62:63]\ns_andn2_b64 s[66:67], s[60:61], s[62:63]')
    A(f's_mov_b32 s68, {EPS}\ns_mov_b32 s69, 0xffff0000')
    A('s_cmp_lg_u32 s21, 2\ns_cbranch_scc1 L_a_nopollg')
    poll(A, 59, 48, 8, 6)
    A('v_mov_b32 v8, 1\ns_mov_b64 exec, 1\nds_write_b32 v0, v8 offset:64\ns_mov_b64 exec, -1')
    A('L_a_nopollg:')
    lds_wait(A, 0, 64, 8, 1, four=False, sleep=2)
    stamp(A, 10)
    for kk in range(5):
        A(f's_add_u32 s56, s54, {4096*kk}')
        for rt in range(4):
            A(f'buffer_load_dwordx4 {vr(pq(kk,rt))}, v5, s[40:43], s56 offen offset:{1024*rt} sc1')
    for rt in range(4):
        A(f'buffer_load_dword v{10+rt}, v14, s[40:43], s53 offen offset:{64*rt} sc1')
    A('s_cmp_lg_u32 s21, 0\ns_cbranch_scc1 L_a_nopoll')
    poll(A, 58, 32, 8, 6)
    A('v_mov_b32 v8, 1\ns_mov_b64 exec, 1\nds_write_b32 v0, v8 offset:68\ns_mov_b64 exec, -1')
    A('L_a_nopoll:')
    lds_wait(A, 0, 68, 8, 1, four=False, sleep=2)
    A('s_waitcnt vmcnt(0)')
    stamp(A, 11)
    Q = []
    def ld(tag, txt):
        A(txt); Q.append(tag)
    def wait(tag):
        last = max(k for k, t in enumerate(Q) if t == tag)
        A(f's_waitcnt vmcnt({len(Q) - 1 - last})')
    def issueM(kk):
        A(f's_add_u32 s57, s55, {5120*kk}')
        for t in range(4):
            ld(('M', kk), f'buffer_load_dwordx4 {vr(mb(kk,t))}, v5, s[40:43], s57 offen offset:{1024*t} sc1')
        ld(('M', kk), f'buffer_load_dwordx4 {vr(mb(kk,4))}, v7, s[40:43], s57 offen sc1')
    ZR = 236
    for kk in range(5):
        ld('Z', f'buffer_load_dwordx4 {vr(ZR+4*kk)}, v15, s[40:43], s52 offen offset:{16*kk} sc1')
    issueM(0); issueM(1); issueM(2)
    wait('Z')
    for kk in range(5):
        for j in range(4):
            m = 's[66:67]' if (4 * kk + j) >= 10 else 's[64:65]'
            A(f'v_cndmask_b32 v{ZR+4*kk+j}, 0, v{ZR+4*kk+j}, {m}')
    den = [AC + 4 * rt for rt in range(4)]
    A('s_nop 1')
    for kk in range(5):
        for rt in range(4):
            d = vr(den[rt])
            A(f'v_mfma_f32_16x16x32_bf16 {d}, {vr(ZR+4*kk)}, {vr(pq(kk,rt))}, {d if kk else 0}')
    A('s_nop 7')
    SC = ZR
    for rt in range(4):
        A(f'v_add_f32 v{den[rt]}, s68, v{den[rt]}\nv_add_f32 v{den[rt]+1}, s68, v{den[rt]+1}')
    for rt in range(4):
        A(f'v_rcp_f32 v{den[rt]}, v{den[rt]}\nv_rcp_f32 v{den[rt]+1}, v{den[rt]+1}')
    A('s_nop 0')
    for rt in range(4):
        A(f'v_mul_f32 v{SC+4*rt}, v{10+rt}, v{den[rt]}\nv_mul_f32 v{SC+4*rt+2}, v{10+rt}, v{den[rt]+1}')
        A(f'v_mov_b32 v{SC+4*rt+1}, v{SC+4*rt}\nv_mov_b32 v{SC+4*rt+3}, v{SC+4*rt+2}')
    def norm_ops(kk):
        L = []
        for rt in range(4):
            for j in range(4):
                r = pq(kk, rt) + j
                sc = SC + 4 * rt + (2 if (4 * kk + j) >= 10 else 0)
                t0 = 252 + 2 * (j & 1)
                L += [f'v_lshlrev_b32 v{t0}, 16, v{r}', f'v_and_b32 v{t0+1}, s69, v{r}',
                      f'v_pk_mul_f32 {vr(t0,2)}, {vr(t0,2)}, {vr(sc,2)}', f'v_cvt_pk_bf16_f32 v{r}, v{t0}, v{t0+1}']
        return L
    for l in norm_ops(0): A(l)
    for kk in range(5):
        nxt = norm_ops(kk + 1) if kk < 4 else []
        wait(('M', kk))
        A('s_nop 0')
        for rt in range(4):
            for t in range(5):
                d = vr(a2(rt, t))
                A(f'v_mfma_f32_16x16x32_bf16 {d}, {vr(mb(kk,t))}, {vr(pq(kk,rt))}, {d if kk else 0}')
                for _ in range(4 if (rt * 5 + t) % 5 != 4 else 0):
                    if nxt: A(nxt.pop(0))
        assert not nxt
        if kk + 3 < 5:
            issueM(kk + 3)
    stamp(A, 12)
    A('s_barrier')
    stamp(A, 13)
    XCH = [0, 15360, 30720, WBASE + 4 * WSLOT]
    A(f'v_add_u32 v9, {XCH[3]}, v5')
    OWN = 176
    A('s_nop 3')
    for w in range(4):
        l = A.label('L_red')
        A(f's_cmp_lg_u32 s21, {w}\ns_cbranch_scc1 {l}')
        for rt in range(4):
            if rt == w: continue
            slot = w if w < rt else w - 1
            for t in range(5):
                A(f'ds_write_b128 v{9 if rt == 3 else 5}, {vr(a2(rt,t))} offset:{(XCH[rt] if rt < 3 else 0) + slot*5120 + t*1024}')
        for t in range(5):
            for j in range(0, 4, 2):
                A(f'v_mov_b64 {vr(OWN+4*t+j,2)}, {vr(a2(w,t)+j,2)}')
        A(f'v_sub_f32 v14, 1.0, v{10+w}\ns_mov_b32 s50, {XCH[w]}')
        A(f'{l}:')
    A(f's_mul_i32 s48, s21, {WSLOT}\ns_add_u32 s48, s48, {WBASE}\nv_add_u32 v8, s48, v5\nv_mov_b32 v15, v14')
    A('s_waitcnt lgkmcnt(0)')
    for r in range(4):
        if r == 3: A('s_waitcnt lgkmcnt(10)')
        for t in range(5):
            A(f'ds_read_b128 {vr(PQ+20*r+4*t)}, v8 offset:{r*5120 + 1024*t}')
    A('s_barrier')
    A('v_add_u32 v8, s50, v5')
    A('s_waitcnt lgkmcnt(0)')
    for n in range(15):
        A(f'ds_read_b128 {vr(AC+4*n)}, v8 offset:{1024*n}')
    A('s_lshl_b32 s48, s18, 6\ns_lshl_b32 s49, s21, 4\ns_add_u32 s48, s48, s49\nv_add_u32 v9, s48, v4\nv_mul_u32_u24 v9, 1280, v9\nv_lshl_add_u32 v9, v3, 3, v9\ns_mul_i32 s48, s19, 160')
    for k in range(0, 20, 2):
        A(f'v_pk_add_f32 {vr(PQ+k,2)}, {vr(PQ+k,2)}, {vr(PQ+20+k,2)}')
        A(f'v_pk_add_f32 {vr(PQ+40+k,2)}, {vr(PQ+40+k,2)}, {vr(PQ+60+k,2)}')
    for k in range(0, 20, 2):
        A(f'v_pk_add_f32 {vr(PQ+k,2)}, {vr(PQ+k,2)}, {vr(PQ+40+k,2)}')
    for k in range(0, 20, 2):
        A(f'v_pk_fma_f32 {vr(OWN+k,2)}, {vr(PQ+k,2)}, v[14:15], {vr(OWN+k,2)}')
    for sl in range(3):
        A(f's_waitcnt lgkmcnt({10 - 5*sl})')
        for k in range(0, 20, 2):
            A(f'v_pk_add_f32 {vr(OWN+k,2)}, {vr(OWN+k,2)}, {vr(AC+20*sl+k,2)}')
    for t in range(5):
        b = OWN + 4 * t
        A(f'v_cvt_pk_bf16_f32 v{b}, v{b}, v{b+1}\nv_cvt_pk_bf16_f32 v{b+1}, v{b+2}, v{b+3}')
        A(f'buffer_store_dwordx2 {vr(b,2)}, v9, s[28:31], s48 offen offset:{32*t}')
    stamp(A, 14)
    finish(A)


def gen_loader(A):
    A.c('s67 = lw ; role constants: s68 strideA, s60 cA, s61 cB, s62 xB, s63 c4, s64 hi-mult')
    A('s_sub_u32 s67, s21, 4')
    A('s_mul_i32 s48, s19, 320\ns_add_u32 s48, s48, 1280\ns_and_b32 s57, s19, 1\ns_lshl_b32 s58, s57, 6\ns_add_u32 s58, s58, s48')
    A('s_xor_b32 s57, s57, 1\ns_lshl_b32 s57, s57, 8\ns_add_u32 s57, s57, s48\ns_add_u32 s59, s58, 1280')
    A('s_lshl_b32 s48, s22, 8\ns_lshl_b32 s49, s22, 7\ns_movk_i32 s56, 3072')
    A('s_cmp_eq_u32 s20, 0')
    A('s_cselect_b32 s68, 3840, s56\ns_cselect_b32 s60, s58, s48\ns_cselect_b32 s61, s59, s48\ns_cselect_b32 s62, 1, 0\ns_cselect_b32 s63, s57, s49\ns_cselect_b32 s64, 1280, 64')
    A(f's_cmp_lg_u32 s91, 0\ns_cselect_b32 s63, {OOB}, s63')
    A('s_xor_b32 s69, s23, s20\ns_and_b32 s69, s69, 1')
    A(f'v_mov_b32 v29, {OOB}\nv_and_b32 v3, 15, v2\ns_lshr_b32 s48, s23, 1\ns_lshl_b32 s48, s48, 4\nv_add_u32 v3, s48, v3\nv_bfe_u32 v4, v2, 4, 1\nv_lshrrev_b32 v5, 5, v2')
    A('s_lshr_b32 s49, s67, 1\ns_lshl_b32 s48, s49, 6\nv_add_u32 v6, s48, v3\nv_mul_u32_u24 v6, 3840, v6\ns_and_b32 s48, s67, 1\ns_mul_i32 s48, s48, s64\ns_add_u32 s48, s48, s63\nv_add_u32 v6, s48, v6')
    A('v_cmp_gt_u32 vcc, 16, v2\nv_mov_b32 v33, s49\ns_lshl_b32 s75, s68, 5\nv_cndmask_b32 v31, v29, v6, vcc')
    A('s_cmp_lt_u32 s67, 2\ns_cbranch_scc1 L_pfx')
    A('v_lshl_add_u32 v6, v5, 6, v3\nv_mul_u32_u24 v6, s68, v6\nv_lshl_add_u32 v6, v4, 7, v6\ns_cmp_eq_u32 s67, 2\ns_cselect_b32 s48, s60, s61\nv_add_u32 v30, s48, v6\nv_mov_b32 v32, v5\ns_lshl_b32 s85, s68, 6')
    A('s_branch L_pfd')
    A('L_pfx:')
    A('s_lshl_b32 s48, s18, 7\ns_lshr_b32 s49, s20, 1\ns_lshl_b32 s49, s49, 6\ns_add_u32 s48, s48, s49\nv_add_u32 v6, s48, v2\nv_mul_u32_u24 v6, 1280, v6')
    A('v_mov_b32 v32, s67\ns_lshl_b32 s49, s67, 7\nv_add_u32 v30, s49, v6\ns_movk_i32 s85, 128')
    A('L_pfd:')
    A('v_cmp_eq_u32 vcc, 0, v32\ns_mul_i32 s56, s85, s69\ns_nop 0\nv_cndmask_b32 v34, v29, v30, vcc')
    A(f'v_cmp_eq_u32 vcc, 0, v33\ns_mul_i32 s57, s69, {64*3840}\ns_nop 0\nv_cndmask_b32 v35, v29, v31, vcc')
    A('s_mov_b32 s26, 2621440\ns_mov_b32 s27, 0x20000\ns_mov_b32 s31, 0x20000\ns_mov_b32 s35, 0x20000\ns_mov_b32 s39, 0x20000\ns_mov_b32 s83, 0x20000\ns_mov_b32 s48, 1966080\ns_mov_b32 s38, 2457600')
    A('s_cmp_eq_u32 s20, 0\ns_cselect_b32 s30, s38, s48\ns_mov_b32 s34, s30')
    A(f'v_mov_b32 v38, {CT}\nv_lshl_add_u32 v39, v2, 2, v38\nv_mov_b32 v44, 0\ns_lshl_b32 s71, s67, 8\nds_write_b32 v39, v44\nv_add_u32 v39, s71, v39\nds_write_b32 v39, v44 offset:256')
    A(f'v_and_b32 v39, 3, v2\nv_lshlrev_b32 v39, 8, v39\nv_add_u32 v39, {CT+256}, v39\ns_lshl_b32 s71, s67, 2\ns_add_u32 s71, s71, {CT}')
    A('s_cmp_eq_u32 s20, 0')
    A('s_waitcnt lgkmcnt(0)')
    A('s_mov_b32 s24, s4\ns_mov_b32 s25, s5\ns_mov_b32 s36, s6\ns_mov_b32 s37, s7')
    A('s_cselect_b32 s28, s6, s8\ns_cselect_b32 s29, s7, s9\ns_cselect_b32 s32, s6, s10\ns_cselect_b32 s33, s7, s11')
    A('s_cmp_eq_u32 s67, 2\ns_cselect_b32 s80, s28, s32\ns_cselect_b32 s81, s29, s33')
    A('s_cmp_lt_u32 s67, 2\ns_cselect_b32 s80, s4, s80\ns_cselect_b32 s81, s5, s81\ns_cselect_b32 s82, s26, s30')
    stamp(A, 1)
    def issueW():
        for L in range(5):
            sr = 28 if L < 2 else (32 if L < 4 else 36)
            dma(A, f's_add_u32 m0, s77, {L*1024}', 10 + L, sr, 70 if L < 4 else 72)
        A('s_add_u32 s70, s70, s75\ns_add_u32 s72, s72, s76')
        A(f's_add_u32 s77, s77, {WSLOT}\ns_cmp_ge_u32 s77, {WBASE + NW*WSLOT}\ns_cselect_b32 s48, {NW*WSLOT}, 0\ns_sub_u32 s77, s77, s48')
    def issueX():
        for i in range(4):
            dma(A, f's_add_u32 m0, s78, {i*1024}', 16 + i, 24, 74)
        A('s_add_u32 s74, s74, 128')
        A(f's_add_u32 s78, s78, {XSLOT}\ns_cmp_ge_u32 s78, {NX*XSLOT}\ns_cselect_b32 s48, {NX*XSLOT}, 0\ns_sub_u32 s78, s78, s48')
    def flag():
        A('s_mov_b32 m0, s71\ns_lshl_b32 s48, s65, 2\ns_mov_b64 exec, 1\nbuffer_load_dword v44, s[8:11], s48 offen offset:0 lds\ns_mov_b64 exec, -1')
    A('buffer_load_dword v36, v34, s[80:83], s56 offen')
    A('buffer_load_dword v37, v35, s[36:39], s57 offen')
    A('s_cmp_eq_u32 s55, 0\ns_cbranch_scc1 L_nogw0')
    srd(A, 44, 14, 1280)
    A('v_lshlrev_b32 v40, 1, v2')
    for j in range(10):
        A(f'buffer_load_ushort v{50+j}, v40, s[44:47], 0 offen offset:{128*j}')
    A('L_nogw0:')
    A('v_lshrrev_b32 v3, 3, v2\nv_and_b32 v4, 7, v2')
    A('s_lshl_b32 s48, s18, 7\ns_lshl_b32 s56, s67, 5\ns_add_u32 s48, s48, s56\nv_add_u32 v7, s48, v3\nv_mul_u32_u24 v7, 1280, v7')
    A('v_lshrrev_b32 v8, 4, v2\nv_xor_b32 v8, v8, v4\nv_lshl_add_u32 v16, v8, 4, v7')
    A('v_xor_b32 v8, 4, v8\nv_lshl_add_u32 v17, v8, 4, v7\nv_add_u32 v17, 10240, v17')
    A('v_add_u32 v18, 20480, v16\nv_add_u32 v19, 20480, v17')
    A('s_lshl_b32 s56, s67, 3\nv_add_u32 v5, s56, v3')
    A('s_and_b32 s56, s67, 1\ns_lshl_b32 s56, s56, 2\nv_and_b32 v6, 2, v3\nv_xor_b32 v6, v6, v4\nv_xor_b32 v6, s56, v6')
    A('v_mul_u32_u24 v7, s68, v5\nv_lshl_add_u32 v8, v6, 4, v7\nv_add_u32 v10, s60, v8\nv_add_u32 v11, 128, v10')
    A('v_xor_b32 v9, s62, v6\nv_lshl_add_u32 v8, v9, 4, v7\nv_add_u32 v12, s61, v8\nv_add_u32 v13, 128, v12')
    A('v_lshrrev_b32 v8, 2, v6\nv_and_b32 v9, s62, v8\nv_and_b32 v6, 3, v6\nv_xor_b32 v6, v6, v9\nv_mul_u32_u24 v7, 3840, v5')
    A('v_lshl_add_u32 v7, v6, 4, v7\nv_mul_u32_u24 v8, s64, v8\nv_add3_u32 v14, v7, v8, s63')
    A(f's_mov_b32 s76, {32*3840}\ns_mov_b32 s70, 0\ns_mov_b32 s72, 0\ns_mov_b32 s74, 0')
    A(f's_mul_i32 s77, s67, 5120\ns_add_u32 s77, s77, {WBASE}\ns_lshl_b32 s78, s67, 12')
    issueX(); issueW()
    A('s_waitcnt lgkmcnt(0)\ns_barrier')
    A('s_load_dwordx2 s[86:87], s[0:1], 72')
    A('s_cmp_eq_u32 s55, 0\ns_cbranch_scc1 L_nogw')
    A('v_and_b32 v41, 3, v2\nv_lshlrev_b32 v41, 3, v41')
    A('v_bfe_u32 v40, v2, 2, 1\nv_lshl_add_u32 v41, v40, 9, v41')
    A('v_bfe_u32 v40, v2, 3, 2\nv_lshl_add_u32 v41, v40, 5, v41')
    A(f'v_bfe_u32 v40, v2, 5, 1\nv_mul_u32_u24 v40, {GWS}, v40\nv_add_u32 v41, v40, v41')
    A(f'v_add_u32 v41, {GWBASE}, v41')
    A('s_waitcnt vmcnt(9)')
    for j in range(10):
        A(f'v_lshl_or_b32 v{80+2*j}, v{50+j}, 16, v{50+j}\nv_mov_b32 v{81+2*j}, v{80+2*j}')
        A(f'ds_write_b64 v41, v[{80+2*j}:{81+2*j}] offset:{2*GWS*j}')
    A('L_nogw:')
    srd(A, 40, 16, WS_USED)
    srd(A, 44, 12, 1966080)
    A('s_waitcnt lgkmcnt(0)')
    A('s_lshl_b32 s48, s2, 2\ns_add_u32 s48, s48, s67\ns_cmp_lg_u32 s48, 0\ns_cbranch_scc1 L_noep')
    A('s_memrealtime s[94:95]\ns_waitcnt lgkmcnt(0)\ns_or_b32 s94, s94, 1\nv_mov_b32 v42, s94\nv_mov_b32 v43, s95')
    A('s_mov_b64 exec, 1\nglobal_store_dwordx2 v44, v[42:43], s[86:87] sc1\ns_mov_b64 exec, -1')
    A('L_noep:')
    A('s_min_u32 s48, s22, 10\ns_add_u32 s48, s48, 4\ns_cmp_eq_u32 s20, 0\ns_cselect_b32 s48, s19, s48\ns_mul_i32 s49, s18, 15\ns_add_u32 s92, s48, s49')
    A('s_mul_i32 s48, s92, 52429\ns_lshr_b32 s48, s48, 18\ns_mul_i32 s49, s48, 5\ns_sub_u32 s49, s92, s49\ns_lshl_b32 s49, s49, 1\ns_add_u32 s49, s49, s67')
    A(f's_mul_i32 s79, s48, {32*1280}\ns_lshl_b32 s56, s49, 7\ns_add_u32 s79, s79, s56')
    for tl in range(4):
        A(f's_lshl_b32 s56, s49, 2\ns_add_u32 s56, s56, {tl}\ns_mul_i32 s57, s56, 52429\ns_lshr_b32 s57, s57, 18')
        A(f's_mul_i32 s{60+tl}, s57, 235\ns_add_u32 s{60+tl}, s{60+tl}, s56\ns_mul_i32 s57, s48, 5\ns_add_u32 s{60+tl}, s{60+tl}, s57\ns_lshl_b32 s{60+tl}, s{60+tl}, 10\ns_add_u32 s{60+tl}, s{60+tl}, {W2_OFF}')
    A(f's_lshl_b32 s92, s92, 1\ns_add_u32 s92, s92, s67\ns_lshl_b32 s92, s92, 3\ns_add_u32 s92, s92, {FW_OFF}\ns_lshl_b32 s93, s67, 12\ns_add_u32 s93, s93, {RPK}')
    A('s_cmp_lt_u32 s67, 2\ns_cselect_b32 s64, 1, 0\ns_cmp_lg_u32 s55, 0\ns_cselect_b32 s64, 0, s64')
    A('v_and_b32 v6, 2, v3\nv_xor_b32 v6, v6, v4\nv_mul_u32_u24 v7, 1280, v3\nv_lshl_add_u32 v20, v6, 4, v7')
    A('v_xor_b32 v6, 4, v6\nv_lshl_add_u32 v21, v6, 4, v7\nv_add_u32 v21, 10240, v21\nv_add_u32 v22, 20480, v20\nv_add_u32 v23, 20480, v21')
    A('v_lshrrev_b32 v5, 2, v2\nv_and_b32 v7, 3, v2\nv_lshlrev_b32 v8, 7, v5\nv_lshl_add_u32 v8, v7, 3, v8\nv_add_u32 v8, s93, v8')
    A('v_bfe_u32 v9, v2, 3, 1\nv_lshrrev_b32 v6, 5, v2\nv_lshl_add_u32 v9, v6, 1, v9')
    for tl in range(4):
        A(f'v_xor_b32 v6, {tl}, v9\nv_lshl_add_u32 v{24+tl}, v6, 5, v8')
    A('v_lshlrev_b32 v5, 4, v2\nv_lshlrev_b32 v6, 3, v2\nv_add_u32 v7, 4096, v5')
    A(f's_cmp_eq_u32 s69, 0\ns_cselect_b32 s58, {RND[0][0]}, {RND[1][0]}\ns_cselect_b32 s59, 2, 4\ns_cselect_b32 s84, {RND[0][1]}, {RND[1][1]}')
    A('s_mov_b32 s97, s58\ns_add_u32 s94, s58, 2\ns_add_u32 s95, s58, 3')
    p2_ids(A)
    AC = 24; WR = 104; HBUF = 224
    def a2(rt, t): return AC + 20 * rt + 4 * t
    regset = {0: 0, 1: 1, 2: 2, 9: 3, 10: 4, 11: 5}
    lds_unit = {3: WBASE, 4: WBASE + WSLOT, 5: WBASE + 2*WSLOT, 6: WBASE + 3*WSLOT, 7: 20480, 8: WBASE + 4*WSLOT}
    A('s_mul_i32 s23, s19, 3\ns_lshr_b32 s23, s23, 1\ns_and_b32 s48, s18, 3\ns_mul_i32 s48, s48, 3\ns_add_u32 s23, s23, s48\ns_cmp_ge_u32 s23, 12\ns_cselect_b32 s48, 12, 0\ns_sub_u32 s23, s23, s48')
    A(f's_mul_i32 s48, s67, 12\ns_mul_i32 s50, s19, 48\ns_add_u32 s50, s50, s48\ns_mul_i32 s50, s50, 5120\ns_add_u32 s50, s50, {W2_OFF}')
    A('s_mul_i32 s51, s18, 68\ns_add_u32 s51, s51, s48\ns_lshl_b32 s51, s51, 12')
    A('s_mul_i32 s52, s67, 5120')
    A(f's_mul_i32 s53, s67, 960\ns_mul_i32 s48, s19, 5\ns_lshr_b32 s48, s48, 2\ns_lshl_b32 s48, s48, 3\ns_add_u32 s53, s53, s48\ns_add_u32 s53, s53, {FW_OFF}')
    A('v_lshrrev_b32 v8, 1, v2\nv_mul_u32_u24 v8, 80, v8\nv_and_b32 v9, 1, v2\nv_lshl_add_u32 v28, v9, 3, v8')
    A(f's_lshr_b32 s48, s18, 1\ns_lshl_b32 s54, s48, 9\ns_mul_i32 s49, s67, 96\ns_add_u32 s54, s54, s49\ns_add_u32 s54, s54, {FG_OFF}')
    def kidx(i, dst):
        A(f's_add_u32 s{dst}, s23, {i}\ns_cmp_ge_u32 s{dst}, 12\ns_cselect_b32 s48, 12, 0\ns_sub_u32 s{dst}, s{dst}, s48')
    def w2reg(i):
        kidx(i, 56)
        A('s_mul_i32 s56, s56, 5120\ns_add_u32 s56, s56, s50')
        for t in range(5):
            b = WR + 20 * regset[i] + 4 * t
            if t == 0: A(f's_waitcnt vmcnt({STG_THR})')
            A(f'buffer_load_dwordx4 {vr(b)}, v{5 if t < 4 else 7}, s[40:43], s56 offen offset:{1024*(t&3)} sc1')
    def w2lds(i):
        kidx(i, 56)
        A('s_mul_i32 s56, s56, 5120\ns_add_u32 s56, s56, s50')
        A(f's_add_u32 m0, s52, {lds_unit[i]}\ns_waitcnt vmcnt({STG_THR})')
        for t in range(4):
            A(f'buffer_load_dwordx4 v5, s[40:43], s56 offen offset:{1024*t} sc1 lds')
        A(f's_add_u32 m0, s52, {lds_unit[i] + 4096}\ns_nop 0')
        A('buffer_load_dwordx4 v7, s[40:43], s56 offen sc1 lds')
    def trace():
        if STAMP and 'quiet' not in EXP:
            A('s_memtime s[98:99]\ns_add_u32 s48, s65, 38\ns_mov_b32 m0, s48\ns_waitcnt lgkmcnt(0)\nv_writelane_b32 v1, s98, m0')
    def ensure_free():
        if 'nofree' in EXP: return
        l = A.label('L_free')
        A(f's_sub_u32 s57, s65, 4\ns_cmp_ge_i32 s66, s57\ns_cbranch_scc1 {l}')
        tbeg(A)
        lds_wait(A, 39, 0, 48, 's57', four='free', sdst=66, sleep=LSLEEP)
        tend(A, 100)
        A(f'{l}:')
    stamp(A, 2)
    table_srd(A, 8)
    A('s_mov_b32 s65, 1\ns_mov_b32 s66, 0')
    flag()
    A('s_branch L_ld_odd')
    A('.p2align 3')
    A('L_ld_loop:')
    ensure_free()
    issueX(); issueW()
    trace()
    A('s_add_u32 s65, s65, 1')
    flag()
    A('L_ld_odd:')
    ensure_free()
    issueW()
    trace()
    A('s_lshr_b32 s49, s65, 1\ns_add_u32 s65, s65, 1')
    flag()
    A('s_cmp_eq_u32 s49, s58\ns_cbranch_scc1 L_ev_round')
    A('L_ev_r1:')
    A('s_cmp_eq_u32 s49, s94\ns_cbranch_scc1 L_ev_rpst')
    A('L_ev_r2:')
    A('s_cmp_eq_u32 s49, s95\ns_cbranch_scc1 L_ev_rpfl')
    A('L_ev_r3:')
    A('s_cmp_lt_u32 s65, 20\ns_cbranch_scc1 L_ld_loop')
    A('s_branch L_ld_done')
    A('L_ev_round:')
    lds_wait(A, 38, 0, 48, 's65')
    A(f's_mul_i32 s56, s85, s59\ns_mul_i32 s57, s59, {64*3840}')
    A('buffer_load_dword v36, v30, s[80:83], s56 offen')
    A('buffer_load_dword v37, v31, s[36:39], s57 offen')
    A('s_add_u32 s59, s59, 4\ns_add_u32 s58, s58, s84\ns_cmp_gt_u32 s59, 8\ns_cselect_b32 s58, 99, s58')
    A('s_cmp_lg_u32 s49, s97\ns_cbranch_scc1 L_ev_rw')
    A('global_load_dwordx2 v[42:43], v44, s[86:87] sc1')
    A('s_cmp_eq_u32 s64, 0\ns_cbranch_scc1 L_ev_rw')
    for g in range(4):
        dma(A, f's_add_u32 m0, s93, {g*1024}', 20 + g, 44, 79)
    A('L_ev_rw:')
    A('s_waitcnt vmcnt(0)')
    A('s_branch L_ev_r1')
    A('L_ev_rpst:')
    l0 = A.label('L_ep'); l1 = A.label('L_epok')
    A('s_mov_b32 s90, 0')
    A(f'{l0}:')
    A('v_readfirstlane_b32 s88, v42\nv_readfirstlane_b32 s89, v43')
    A(f's_cmp_lg_u32 s88, 0\ns_cbranch_scc1 {l1}')
    A('s_sleep 4\nglobal_load_dwordx2 v[42:43], v44, s[86:87] sc1\ns_waitcnt vmcnt(0)')
    A(f's_add_u32 s90, s90, 1\ns_cmp_lt_u32 s90, {SPIN_MAX}\ns_cbranch_scc1 {l0}')
    A(f'{l1}:')
    A(f's_mov_b32 m0, {CT+32}\nv_lshlrev_b32 v45, 2, v2\ns_mov_b64 exec, 3\nglobal_load_lds_dword v45, s[86:87] sc1\ns_mov_b64 exec, -1')
    A('s_cmp_eq_u32 s64, 0\ns_cbranch_scc1 L_ev_r2')
    for tl in range(4):
        A(f'ds_read_b64_tr_b16 {vr(64+4*tl,2)}, v{24+tl}\nds_read_b64_tr_b16 {vr(66+4*tl,2)}, v{24+tl} offset:2048')
    for tl in range(4):
        A(f's_waitcnt lgkmcnt({6-2*tl})\nbuffer_store_dwordx4 {vr(64+4*tl)}, v5, s[40:43], s{60+tl} offen sc1')
    A('s_branch L_ev_r2')
    A('L_ev_rpfl:')
    A('s_cmp_eq_u32 s64, 0\ns_cbranch_scc1 L_ev_r3')
    A('s_waitcnt vmcnt(0)')
    A('s_mov_b64 exec, 1\nbuffer_store_dwordx2 v[42:43], v44, s[40:43], s92 offen sc1\ns_mov_b64 exec, -1')
    A('s_branch L_ev_r3')
    A('L_ld_done:')
    A('s_waitcnt vmcnt(0)')
    trace()
    if 'p1' in EXP: finish(A)
    poll(A, 53, 24, 46, 28)
    stamp(A, 8)
    A('s_cmp_lg_u32 s67, 0\ns_cbranch_scc1 L_nowo')
    A('s_load_dwordx2 s[24:25], s[0:1], 16\ns_mov_b32 s26, 819200\ns_mov_b32 s27, 0x20000')
    A('s_mul_i32 s48, s18, 25600\ns_mul_i32 s49, s19, 160\ns_add_u32 s48, s48, s49\nv_lshrrev_b32 v8, 1, v2\nv_mul_u32_u24 v8, 1280, v8\nv_and_b32 v9, 1, v2\nv_mul_u32_u24 v9, 156, v9\nv_add_u32 v8, v8, v9')
    A('s_waitcnt lgkmcnt(0)\nbuffer_load_dword v36, v8, s[24:27], s48 offen')
    A('L_nowo:')
    for i in (0, 1, 2):
        w2reg(i)
    if not STG_EARLY:
        lds_wait(A, 38, 48, 48, 1, sleep=4)
    else:
        A('s_waitcnt vmcnt(0)')
    stamp(A, 9)
    for i in (9, 10, 11):
        w2reg(i)
    lds_wait(A, 39, 0, 48, 20, four='free', sleep=LSLEEP)
    for i in (3, 4, 5, 6, 7, 8):
        w2lds(i)
    hbufs = [HBUF, HBUF + 16, WR + 40]
    def hb(i, rt):
        k = i if i < 2 else (0 if i == 2 else (i - 3 + 1) % 3 if False else None)
        return None
    hmap = {0: 0, 1: 1, 2: 0, 3: 1}
    for i in range(4, 12):
        hmap[i] = [0, 2, 1][(i - 4) % 3]
    def hb(i, rt): return hbufs[hmap[i]] + 4 * rt
    A('v_add_u32 v8, s52, v5')
    A(f'v_add_u32 v9, {WBASE + 2*WSLOT}, v8')
    def rdW(i, rs):
        u = lds_unit[i]
        va, off = (8, u) if u < WBASE + WSLOT - 5120 else ((9, u - (WBASE + 2*WSLOT)) if u >= WBASE + 2*WSLOT else (12, 0))
        for t in range(5):
            A(f'ds_read_b128 {vr(WR+20*rs+4*t)}, v{va} offset:{off + 1024*t}')
    A(f'v_add_u32 v12, {WBASE + WSLOT}, v8')
    stamp(A, 3)
    lds_wait(A, 38, 48, 48, 1, sleep=2)
    lds_wait(A, 38, 64, 10, 1, four=False, sleep=2)
    A('s_waitcnt vmcnt(0)')
    stamp(A, 4)
    Q = []
    def wait(tag):
        last = max(k for k, t in enumerate(Q) if t == tag)
        A(f's_waitcnt vmcnt({min(63, len(Q) - 1 - last)})')
    def issueH(i):
        kidx(i, 56)
        A('s_lshl_b32 s56, s56, 12\ns_add_u32 s56, s56, s51')
        for rt in range(4):
            A(f'buffer_load_dwordx4 {vr(hb(i,rt))}, v5, s[40:43], s56 offen offset:{1024*rt} sc1')
            Q.append(('H', i))
    issueH(0); issueH(1)
    nH = 2
    for i in range(12):
        rs = regset[i] if i in regset else (i - 3) % 2
        wait(('H', i))
        if i == 0: stamp(A, 5)
        if i not in regset:
            A('s_waitcnt lgkmcnt(5)' if (i + 1) not in regset else 's_waitcnt lgkmcnt(0)')
        for rt in range(4):
            for t in range(5):
                d = vr(a2(rt, t))
                A(f'v_mfma_f32_16x16x32_bf16 {d}, {vr(WR+20*rs+4*t)}, {vr(hb(i,rt))}, {d if i else 0}')
        while nH < 12 and all(hmap[j] != hmap[nH] for j in range(i + 1, nH)) and not (hmap[nH] == 2 and i < 2):
            issueH(nH); nH += 1
        tgt = {0: 3, 1: 4}.get(i, i + 2 if 5 <= i + 2 <= 8 else None)
        if tgt is not None:
            rdW(tgt, (tgt - 3) % 2)
    stamp(A, 6)
    A('s_nop 7')
    for rt in range(4):
        va, off = [(8, WBASE), (12, 0), (9, 0), (9, WSLOT)][rt]
        for t in range(5):
            A(f'ds_write_b128 v{va}, {vr(a2(rt,t))} offset:{off + t*1024}')
    A('s_waitcnt lgkmcnt(0)')
    stamp(A, 7)
    A('s_barrier')
    finish(A)


def gen(A):
    K = NAME + '_kernel'
    A(f'.globl {K}\n.p2align 8\n.type {K},@function\n{K}:')
    A('s_cmp_ge_u32 s2, 256\ns_cbranch_scc1 L_end')
    A('s_load_dwordx4 s[4:7], s[0:1], 0')
    A('s_load_dwordx4 s[8:11], s[0:1], 32')
    A('s_load_dwordx4 s[12:15], s[0:1], 48')
    A('s_load_dwordx2 s[16:17], s[0:1], 80')
    A.c('decode: s18 rb, s19 cq, s20 m, s21 wave, s22 gtype, s23 rbl, s55 is_gc')
    A('v_lshrrev_b32 v1, 6, v0\nv_and_b32 v2, 63, v0')
    A('s_bfe_u32 s23, s2, 0x30003\ns_and_b32 s18, s2, 1\ns_lshl_b32 s18, s18, 3\ns_add_u32 s18, s18, s23')
    A('v_readfirstlane_b32 s21, v1')
    A('s_bfe_u32 s19, s2, 0x20001\ns_lshr_b32 s20, s2, 6')
    A('s_mul_i32 s22, s19, 3\ns_add_u32 s22, s22, s20\ns_sub_u32 s22, s22, 1')
    A('s_cmp_eq_u32 s22, 10\ns_cselect_b32 s55, 1, 0\ns_cmp_ge_i32 s22, 10\ns_cselect_b32 s91, 1, 0')
    if STAMP:
        A('v_mov_b32 v1, 0\ns_mov_b32 s100, 0\ns_mov_b32 s101, 0')
        stamp(A, 0); stamp_rt(A, 62)
    A('s_cmp_lt_u32 s21, 4\ns_cbranch_scc1 L_compute')
    gen_loader(A)
    gen_compute(A)
    A('L_end:\ns_endpgm')
    A('.p2align 7\nL_table:')
    for i in range(32):
        A(f'.long {i}')


def main(out):
    A = Asm()
    gen(A)
    K = NAME + '_kernel'
    hdr = open('cdna_kernels/' + NAME + '.s.ref').read().split('; Override')[0]
    txt = hdr + f'; @launch grid=(256,1,1) block=(512,1,1) lds={LDS_TOTAL}\n'
    txt += '.amdgcn_target "amdgcn-amd-amdhsa--gfx950"\n.text\n' + A.text()
    txt += f'''.section .rodata,"a"
.p2align 6
.amdhsa_kernel {K}
  .amdhsa_next_free_vgpr 256
  .amdhsa_next_free_sgpr 102
  .amdhsa_accum_offset 256
  .amdhsa_group_segment_fixed_size 0
  .amdhsa_kernarg_size 88
  .amdhsa_user_sgpr_count 2
  .amdhsa_user_sgpr_kernarg_segment_ptr 1
  .amdhsa_system_sgpr_workgroup_id_x 1
.end_amdhsa_kernel
'''
    open(out, 'w').write(txt)

if __name__ == '__main__':
    for a in sys.argv[2:]:
        k, v = a.split('=', 1)
        globals()[k] = eval(v)
    main(sys.argv[1] if len(sys.argv) > 1 else 'cdna_kernels/' + NAME + '.s')
```

```python
import sys

NAME = 'gated_mix__linear_attn_block__glu_gated_glu__prompt'

HB_OFF = 0
W2_OFF = 0x900000
M_OFF = 0xB00000
KVP_OFF = 0xC00000
G_OFF = 0xF00000
ZB_OFF = 0xF10000
FSH = 13
FG_OFF = 0xF40000
FK_OFF = 0xF60800
FM_OFF = 0xF81000
FW_OFF = 0xFA1800
STAMP_OFF = 0x1000000
WS_USED = 0x1100000
OOB = 0x7FFF0000

XSLOT = 16384; NX = 3
WBASE = NX * XSLOT
WSLOT = 20480; NW = 5
GWBASE = WBASE + NW * WSLOT
LDS_TOTAL = 163840
CT = 159744
P2_SCR = 0
RPK = GWBASE
CODEPF = True
RND = ((0, 4), (2, 4))
STAMP = False
GWS = 320
PRIO = 2
LSLEEP = 3
DEPTH = 2
EXP = ''
PRETOUCH = False
STG_THR = 3
PSLEEP = 4
STG_EARLY = True
SPIN_MAX = 0x20000


class Asm:
    def __init__(self):
        self.L = []
        self.nl = 0
    def __call__(self, s):
        for line in s.split('\n'):
            line = line.strip()
            if line:
                self.L.append(line if line.endswith(':') else '    ' + line)
    def c(self, s):
        self.L.append('    ; ' + s)
    def label(self, p='L'):
        self.nl += 1
        return f'{p}_{self.nl}'
    def text(self):
        return '\n'.join(self.L) + '\n'


def vr(b, n=4):
    return f'v[{b}:{b+n-1}]'

def srd(A, d, lo, nbytes):
    A(f's_mov_b32 s{d}, s{lo}\ns_mov_b32 s{d+1}, s{lo+1}\ns_mov_b32 s{d+2}, {nbytes}\ns_mov_b32 s{d+3}, 0x20000')

def stamp(A, n):
    if STAMP:
        A(f's_memtime s[98:99]\ns_waitcnt lgkmcnt(0)\nv_writelane_b32 v1, s98, {n}')
def stamp_rt(A, n):
    if STAMP:
        A(f's_memrealtime s[98:99]\ns_waitcnt lgkmcnt(0)\nv_writelane_b32 v1, s98, {n}')
def tbeg(A):
    if STAMP and 'quiet' not in EXP: A('s_memtime s[98:99]\ns_waitcnt lgkmcnt(0)\ns_mov_b32 s3, s98')
def tend(A, r):
    if STAMP and 'quiet' not in EXP: A(f's_memtime s[98:99]\ns_waitcnt lgkmcnt(0)\ns_sub_u32 s3, s98, s3\ns_add_u32 s{r}, s{r}, s3')
def finish(A):
    if STAMP:
        A('s_waitcnt vmcnt(0)')
        stamp(A, 61); stamp_rt(A, 63)
        A('v_writelane_b32 v1, s100, 59\nv_writelane_b32 v1, s101, 60')
        A('s_mov_b64 exec, -1')
        A(f's_lshl_b32 s3, s2, 3\ns_add_u32 s3, s3, s21\ns_lshl_b32 s3, s3, 8\ns_add_u32 s3, s3, {STAMP_OFF}\nv_lshlrev_b32 v2, 2, v2')
        A('buffer_store_dword v1, v2, s[40:43], s3 offen')
    A('s_endpgm')

LOG2E = 0x3fb8aa3b
NLOG2E = 0xbfb8aa3b
EPS = 0x358637bd

ACC = 96; XF = 64; WF = 24
def acc(i, t): return ACC + 20 * i + 4 * t


THR = 0
def dma(A, m0expr, voff, sr, so):
    A(m0expr)
    A(f's_waitcnt vmcnt({THR-1})' if THR else 's_nop 0')
    A(f'buffer_load_dwordx4 v{voff}, s[{sr}:{sr+3}], s{so} offen lds')


def poll(A, soff, nl, vt, vaddr):
    l0 = A.label('L_poll'); l1 = A.label('L_polled')
    A('s_mov_b32 s90, 0')
    A(f's_mov_b64 exec, {hex((1 << nl) - 1)}' if nl <= 31 else f's_mov_b32 exec_lo, -1\ns_mov_b32 exec_hi, {hex((1 << (nl - 32)) - 1)}')
    A(f'{l0}:')
    A(f'buffer_load_dwordx2 {vr(vt,2)}, v{vaddr}, s[40:43], s{soff} offen sc1')
    A('s_waitcnt vmcnt(0)')
    A(f'v_cmp_ne_u64 vcc, s[88:89], {vr(vt,2)}')
    A(f's_cbranch_vccz {l1}')
    A(f's_sleep {PSLEEP}\ns_add_u32 s90, s90, 1\ns_cmp_lt_u32 s90, {SPIN_MAX}\ns_cbranch_scc1 {l0}')
    A(f'{l1}:')
    A('s_mov_b64 exec, -1')


def spoll(A, parts, sleep=2):
    l0 = A.label('L_sp'); l1 = A.label('L_spd')
    A('s_mov_b32 s96, 0')
    A(f'{l0}:')
    regs = []
    for so, imm, n, sb in parts:
        A(f's_load_dwordx{2*n} s[{sb}:{sb+2*n-1}], s[16:17], s{so} offset:{imm} glc')
        regs += [sb + 2 * k for k in range(n)]
    A('s_waitcnt lgkmcnt(0)')
    for r in regs:
        A(f's_xor_b64 s[{r}:{r+1}], s[{r}:{r+1}], s[88:89]')
    for r in regs[1:]:
        A(f's_or_b64 s[{regs[0]}:{regs[0]+1}], s[{regs[0]}:{regs[0]+1}], s[{r}:{r+1}]')
    A(f's_cbranch_scc0 {l1}')
    A(f's_sleep {sleep}\ns_add_u32 s96, s96, 1\ns_cmp_lt_u32 s96, {SPIN_MAX}\ns_cbranch_scc1 {l0}')
    A(f'{l1}:')


def set_flag(A, soff, vt):
    A(f'v_mov_b32 v{vt}, s88\nv_mov_b32 v{vt+1}, s89\nv_mov_b32 v{vt+2}, 0')
    A('s_waitcnt vmcnt(0)')
    A('s_mov_b64 exec, 1')
    A(f'buffer_store_dwordx2 {vr(vt,2)}, v{vt+2}, s[40:43], s{soff} offen sc1')
    A('s_mov_b64 exec, -1')


def table_srd(A, d):
    l = A.label('L_pc')
    A(f's_getpc_b64 s[{d}:{d+1}]\n{l}:\ns_add_u32 s{d}, s{d}, L_table-{l}\ns_addc_u32 s{d+1}, s{d+1}, 0\ns_movk_i32 s{d+2}, 128\ns_mov_b32 s{d+3}, 0x20000')


def lds_free(A, vaddr, vt, sdst):
    A(f'ds_read_b32 v{vt}, v{vaddr}\ns_waitcnt lgkmcnt(0)')
    A(f'v_readlane_b32 s{sdst}, v{vt}, 0\nv_readlane_b32 s48, v{vt}, 1\ns_min_u32 s{sdst}, s{sdst}, s48\nv_readlane_b32 s48, v{vt}, 2\ns_min_u32 s{sdst}, s{sdst}, s48\nv_readlane_b32 s48, v{vt}, 3\ns_min_u32 s{sdst}, s{sdst}, s48')


def lds_min4(A, vaddr, off, vt, sdst):
    A(f'ds_read_b128 {vr(vt)}, v{vaddr} offset:{off}\ns_waitcnt lgkmcnt(0)')
    A(f'v_min3_u32 v{vt}, v{vt}, v{vt+1}, v{vt+2}\nv_min_u32 v{vt}, v{vt}, v{vt+3}\ns_nop 0\nv_readfirstlane_b32 s{sdst}, v{vt}')


def lds_wait(A, vaddr, off, vt, need, four=True, sdst=90, sleep=1):
    l0 = A.label('L_lw'); l1 = A.label('L_lwd')
    A('s_mov_b32 s96, 0')
    A(f'{l0}:')
    if four == 'free':
        lds_free(A, vaddr, vt, sdst)
    elif four:
        lds_min4(A, vaddr, off, vt, sdst)
    else:
        A(f'ds_read_b32 v{vt}, v{vaddr} offset:{off}\ns_waitcnt lgkmcnt(0)\nv_readfirstlane_b32 s{sdst}, v{vt}')
    A(f's_cmp_ge_i32 s{sdst}, {need}\ns_cbranch_scc1 {l1}')
    A(f's_sleep {sleep}\ns_add_u32 s96, s96, 1\ns_cmp_lt_u32 s96, {SPIN_MAX*16}\ns_cbranch_scc1 {l0}')
    A(f'{l1}:')


def mainloop(A, kv, tag):
    def upd_s():
        L = [f's_add_u32 s50, s50, {WSLOT}', f's_cmp_ge_u32 s50, {WBASE + NW*WSLOT}', f's_cselect_b32 s50, {WBASE}, s50']
        if not kv:
            L += ['s_add_u32 s52, s52, s53', 's_cmp_ge_u32 s52, s57', f's_cselect_b32 s52, {WBASE}, s52']
        return L
    def set_w():
        return [f'v_add_u32 v{15+t}, s50, v{10+t}' for t in range(4)] + [f'v_add_u32 v19, s{50 if kv else 52}, v14']
    def upd_blk():
        return [f's_add_u32 s51, s51, {XSLOT}', f's_cmp_ge_u32 s51, {NX*XSLOT}', 's_cselect_b32 s51, 0, s51']
    def set_x(par):
        return [f'v_add_u32 v{4+par}, s51, v{20+par}']
    def rdW(p, t, h):
        b = WF + 20 * p + 4 * t + 2 * h
        return f'ds_read_b64_tr_b16 {vr(b,2)}, v{15+t} offset:{512*h}'
    def rdX(i, par):
        return f'ds_read_b128 {vr(XF+4*i)}, v{4+par} offset:{2048*i}'
    def mfma(i, t, p):
        w = vr(WF + 20 * p + 4 * t); x = vr(XF + 4 * i); d = vr(acc(i, t))
        A(f'v_mfma_f32_16x16x32_bf16 {d}, {x}, {w}, {d}' if kv else f'v_mfma_f32_16x16x32_bf16 {d}, {w}, {x}, {d}')
    A(f's_mov_b32 s50, {WBASE}\ns_mov_b32 s51, 0\ns_mov_b32 s54, 0')
    if not kv:
        A(f's_cmp_lg_u32 s55, 0\ns_cselect_b32 s52, {GWBASE}, s50\ns_movk_i32 s53, {WSLOT}\ns_cselect_b32 s53, {GWS}, s53\ns_mov_b32 s57, {WBASE + NW*WSLOT}\ns_cselect_b32 s57, -1, s57')
    for l in set_w() + set_x(0) + set_x(1):
        A(l)
    A(f'v_mov_b32 v3, {CT}\ns_lshl_b32 s48, s21, 8\ns_add_u32 m0, s48, {CT+256}\nv_mov_b32 v0, {OOB}\nv_writelane_b32 v0, 0, 0')
    table_srd(A, 44)
    stamp(A, 1)
    lds_wait(A, 3, 0, 6, 1, sdst=59)
    A('s_waitcnt vmcnt(0)')
    A(f's_setprio {PRIO}')
    stamp(A, 2)
    for t in range(5):
        A(rdW(0, t, 0)); A(rdW(0, t, 1))
    A('s_waitcnt lgkmcnt(6)')
    for i in range(8):
        A(rdX(i, 0))
    for l in upd_s() + set_w():
        A(l)
    A('s_mov_b32 s58, 2\ns_cmp_ge_i32 s59, s58')
    A(f's_cbranch_scc0 L_{tag}_slow0')
    A('.p2align 3')
    for p in range(2):
        gap = {k: [] for k in range(40)}
        for i in range(5):
            gap[5*i].append(rdW(1 - p, i, 0)); gap[5*i + 2].append(rdW(1 - p, i, 1))
        for i in range(8):
            gap[5*i + 4].append(rdX(i, 1 - p))
        gap[9].append('s_waitcnt lgkmcnt(6)')
        gap[1].append('s_add_u32 s54, s54, 4')
        gap[11].append('buffer_load_dword v0, s[44:47], s54 offen lds')
        gap[6].append('s_add_u32 s58, s58, 1'); gap[8].append('s_min_u32 s58, s58, 20')
        sal = upd_s() + (upd_blk() if p == 0 else [])
        for k in (13, 13, 16, 16, 18, 18, 21, 21, 23):
            if sal: gap[k].append(sal.pop(0))
        assert not sal
        gap[23].append('ds_read_b128 v[6:9], v3')
        for k, l in zip((25, 26, 27, 28, 30, 31), set_w() + set_x(p)):
            gap[k].append(l)
        gap[32].append('s_waitcnt lgkmcnt(2)'); gap[32].append('v_min3_u32 v6, v6, v7, v8')
        gap[33].append('v_min_u32 v6, v6, v9')
        gap[35].append('v_readfirstlane_b32 s59, v6')
        if p == 1:
            gap[36].append('s_cmp_lt_u32 s54, 80'); gap[37].append(f's_cbranch_scc0 L_{tag}_last')
        gap[38].append('s_cmp_ge_i32 s59, s58' if 'nowait' not in EXP else 's_cmp_eq_u32 s59, s59')
        if 'novalu' in EXP:
            for k in gap: gap[k] = [l for l in gap[k] if not l.startswith('v_')]
        if 'nods' in EXP:
            for k in gap: gap[k] = [l for l in gap[k] if not l.startswith('ds_')]
        if 'nosalu' in EXP:
            for k in gap: gap[k] = [l for l in gap[k] if not (l.startswith('s_') and 13 <= k <= 23)]
        if 'noctl' in EXP:
            for k in gap: gap[k] = [l for l in gap[k] if not (' v6' in l or 'v[6:9]' in l)]
        if 'nowr' in EXP:
            for k in gap: gap[k] = [l for l in gap[k] if not l.startswith('ds_write')]
        if 'now32' in EXP:
            gap[32] = [l for l in gap[32] if not l.startswith('s_waitcnt')]
        if 'nopub' in EXP: pass
        if p == 0:
            A(f'L_{tag}_go0:')
        else:
            A(f's_cbranch_scc0 L_{tag}_slow1')
            A(f'L_{tag}_go1:')
        A('s_waitcnt lgkmcnt(2)')
        for i in range(8):
            for t in range(5):
                mfma(i, t, p)
                for l in gap[5*i + t]: A(l)
    A(f's_cbranch_scc1 L_{tag}_go0')
    for p in range(2):
        A(f'L_{tag}_slow{p}:')
        tbeg(A)
        lds_wait(A, 3, 0, 6, 's58', sdst=59)
        tend(A, 100)
        if STAMP: A('s_add_u32 s101, s101, 1')
        A(f's_branch L_{tag}_go{p}')
    A(f'L_{tag}_last:')
    mfma(7, 3, 1); mfma(7, 4, 1)
    A('ds_read_b64 v[6:7], v3 offset:32')
    A('s_waitcnt lgkmcnt(0)')
    A('v_readfirstlane_b32 s88, v6\nv_readfirstlane_b32 s89, v7')
    stamp(A, 3)
    A('s_nop 4')
    if 'p1' in EXP: finish(A)


def phi_q(A, b, t, dst=None):
    dst = b if dst is None else dst
    A(f'v_pk_mul_f32 {vr(t,2)}, {vr(b,2)}, s[60:61]\nv_pk_mul_f32 {vr(t+2,2)}, {vr(b+2,2)}, s[60:61]')
    for j in range(4):
        A(f'v_exp_f32 v{t+j}, v{t+j} clamp')
    for j in range(4):
        A(f'v_max_f32 v{dst+j}, s66, v{b+j}')
    A(f'v_pk_add_f32 {vr(dst,2)}, {vr(dst,2)}, {vr(t,2)}\nv_pk_add_f32 {vr(dst+2,2)}, {vr(dst+2,2)}, {vr(t+2,2)}')


def gen_compute(A):
    A('L_compute:')
    if CODEPF:
        A('s_cmp_lg_u32 s21, 0\ns_cbranch_scc1 L_nocpf')
        A(f's_getpc_b64 s[44:45]\nL_pc:\ns_sub_u32 s44, s44, L_pc-{NAME}_kernel\ns_subb_u32 s45, s45, 0\ns_mov_b32 s46, L_end-{NAME}_kernel\ns_mov_b32 s47, 0x20000')
        A('s_lshr_b32 s48, s2, 3\ns_lshl_b32 s48, s48, 11\nv_lshlrev_b32 v3, 7, v2\ns_mov_b64 exec, 0xffff')
        A('buffer_load_dword v95, v3, s[44:47], s48 offen\ns_mov_b64 exec, -1')
        A('L_nocpf:')
    A('s_barrier')
    A.c('compute wave setup: v3=q v4=r v5=c v6=f<<5 v7=rowpart')
    for r in range(ACC, 256, 2):
        A(f'v_mov_b64 {vr(r,2)}, 0')
    A('v_lshrrev_b32 v3, 4, v2\nv_bfe_u32 v4, v2, 2, 2\nv_and_b32 v5, 3, v2')
    A('v_lshrrev_b32 v6, 1, v4\nv_and_b32 v8, 1, v3\nv_lshl_add_u32 v6, v8, 1, v6\nv_lshlrev_b32 v6, 5, v6')
    A('v_mul_u32_u24 v7, 5120, v3\nv_lshl_add_u32 v7, v4, 7, v7')
    A('v_and_b32 v8, 15, v2\nv_lshrrev_b32 v9, 1, v8\nv_xor_b32 v9, v9, v3\nv_lshlrev_b32 v9, 4, v9\nv_lshl_add_u32 v20, v8, 7, v9\nv_xor_b32 v21, 64, v20')
    A(f's_mov_b32 s60, {LOG2E}\ns_mov_b32 s61, {LOG2E}\ns_mov_b32 s62, {NLOG2E}\ns_mov_b32 s63, {NLOG2E}')
    A(f's_mov_b32 s64, 1.0\ns_mov_b32 s65, 1.0\ns_mov_b32 s66, {EPS}')
    A('s_waitcnt lgkmcnt(0)')
    srd(A, 40, 16, WS_USED)
    if PRETOUCH:
        A('s_cmp_lg_u32 s21, 1\ns_cbranch_scc1 L_nopt')
        A('s_load_dwordx2 s[28:29], s[0:1], 64\ns_load_dwordx2 s[32:33], s[0:1], 16\ns_mov_b32 s30, 2621440\ns_mov_b32 s31, 0x20000\ns_mov_b32 s34, 819200\ns_mov_b32 s35, 0x20000')
        srd(A, 36, 12, 1966080)
        A('v_lshlrev_b32 v8, 18, v2\nv_lshlrev_b32 v9, 16, v2')
        A('buffer_load_dword v92, v8, s[40:43], 0 offen\nbuffer_load_dword v93, v9, s[36:39], 0 offen\ns_waitcnt lgkmcnt(0)')
        A('buffer_load_dword v94, v9, s[28:31], 0 offen\nbuffer_load_dword v95, v9, s[32:35], 0 offen')
        A('L_nopt:')
    A('s_cmp_eq_u32 s20, 0\ns_cbranch_scc1 L_kv')

    A('s_lshr_b32 s48, s21, 1\ns_lshl_b32 s48, s48, 10\ns_and_b32 s49, s21, 1\ns_lshl_b32 s49, s49, 3')
    A('v_add_u32 v8, s49, v5\nv_lshlrev_b32 v8, 3, v8\nv_xor_b32 v9, v8, v6\nv_add3_u32 v10, v9, v7, s48')
    A('v_add_u32 v8, 32, v8\nv_xor_b32 v9, v8, v6\nv_add3_u32 v11, v9, v7, s48')
    A('v_add_u32 v12, 2048, v10\nv_add_u32 v13, 2048, v11')
    A('s_lshl_b32 s49, s21, 2\nv_add_u32 v8, s49, v5\nv_lshlrev_b32 v8, 3, v8\nv_xor_b32 v9, v8, v6\nv_add_u32 v14, v9, v7\nv_add_u32 v14, 4096, v14')
    A('s_cmp_eq_u32 s55, 0\ns_cbranch_scc1 L_g_notgc')
    A('v_lshlrev_b32 v14, 5, v3\nv_lshl_add_u32 v14, v4, 3, v14')
    A('L_g_notgc:')
    A('v_lshlrev_b32 v22, 4, v2')
    A(f's_mul_i32 s72, s18, {2*68*4096}\ns_add_u32 s73, s72, {68*4096}')
    A('s_lshl_b32 s48, s22, 2\ns_add_u32 s48, s48, s21\ns_lshl_b32 s49, s48, 12\ns_add_u32 s70, s72, s49\ns_add_u32 s71, s73, s49')
    A(f's_lshl_b32 s74, s18, {FSH}\ns_lshl_b32 s49, s48, 3\ns_add_u32 s74, s74, s49\ns_add_u32 s74, s74, {FG_OFF}')
    A('s_lshl_b32 s48, s48, 2\nv_add_u32 v5, s48, v3')
    A('v_mul_u32_u24 v6, 6554, v5\nv_lshrrev_b32 v6, 16, v6\nv_mul_u32_u24 v7, 10, v6\nv_sub_u32 v7, v5, v7')
    A('v_lshrrev_b32 v8, 2, v6\nv_and_b32 v6, 3, v6')
    A('v_mul_u32_u24 v8, 5, v8\nv_lshrrev_b32 v9, 1, v7\nv_add3_u32 v8, v8, v9, 48\nv_lshlrev_b32 v8, 12, v8')
    A('v_and_b32 v9, 15, v2\nv_lshl_add_u32 v9, v6, 4, v9\nv_lshl_add_u32 v8, v9, 4, v8')
    A('v_and_b32 v7, 1, v7\nv_lshl_add_u32 v23, v7, 10, v8')
    mainloop(A, False, 'g')
    A.c('h = u * sigmoid(g)')
    for i in range(8):
        g = acc(i, 0); u = acc(i, 2)
        for j in range(4):
            A(f'v_pk_mul_f32 {vr(g+2*j,2)}, {vr(g+2*j,2)}, s[62:63]')
        for j in range(8):
            A(f'v_exp_f32 v{g+j}, v{g+j}')
        for j in range(4):
            A(f'v_pk_add_f32 {vr(g+2*j,2)}, {vr(g+2*j,2)}, s[64:65]')
        for j in range(8):
            A(f'v_rcp_f32 v{g+j}, v{g+j}')
        for j in range(4):
            A(f'v_pk_mul_f32 {vr(u+2*j,2)}, {vr(u+2*j,2)}, {vr(g+2*j,2)}')
        for j in range(4):
            A(f'v_cvt_pk_bf16_f32 v{g+j}, v{u+2*j}, v{u+2*j+1}')
        A(f'buffer_store_dwordx4 {vr(g)}, v22, s[40:43], s{70 + (i>>2)} offen offset:{(i&3)*1024} sc1')
    A('s_cmp_lg_u32 s91, 0\ns_cbranch_scc1 L_gc_epi')
    A.c('pq = phi(q)')
    for i in range(0, 8, 2):
        a0 = acc(i, 4); b0 = acc(i + 1, 4)
        phi_q(A, a0, 24 + 8 * ((i >> 1) & 1))
        phi_q(A, b0, 28 + 8 * ((i >> 1) & 1))
        A(f'v_cvt_pk_bf16_f32 v{a0}, v{a0}, v{a0+1}\nv_cvt_pk_bf16_f32 v{a0+1}, v{a0+2}, v{a0+3}')
        A(f'v_cvt_pk_bf16_f32 v{a0+2}, v{b0}, v{b0+1}\nv_cvt_pk_bf16_f32 v{a0+3}, v{b0+2}, v{b0+3}')
        A('s_nop 1')
        A(f'v_permlane16_swap_b32 v{a0}, v{a0+2}\nv_permlane16_swap_b32 v{a0+1}, v{a0+3}')
        A(f'buffer_store_dwordx4 {vr(a0)}, v23, s[40:43], s{72 + (i>>2)} offen offset:{(i&3)*1024} sc1')
    A('s_branch L_p1_done')
    A('L_gc_epi:')
    A.c('gate g = sigmoid(logit); stored by gtype 10, wave 0')
    A('v_and_b32 v8, 15, v2\nv_lshlrev_b32 v8, 2, v8')
    A(f's_lshl_b32 s48, s18, 9\ns_add_u32 s48, s48, {G_OFF}\ns_lshl_b32 s49, s22, 2\ns_add_u32 s49, s49, s21')
    A(f's_cmp_eq_u32 s49, 40\ns_cselect_b32 s48, s48, {OOB}')
    for i in range(8):
        A(f'v_mul_f32 v{acc(i,4)}, s62, v{acc(i,4)}')
    for i in range(8):
        A(f'v_exp_f32 v{acc(i,4)}, v{acc(i,4)}')
    for i in range(8):
        A(f'v_add_f32 v{acc(i,4)}, 1.0, v{acc(i,4)}')
    for i in range(8):
        A(f'v_rcp_f32 v{acc(i,4)}, v{acc(i,4)}')
    A('s_nop 0\ns_mov_b64 exec, 0xffff')
    for i in range(8):
        A(f'buffer_store_dword v{acc(i,4)}, v8, s[40:43], s48 offen offset:{64*i} sc1')
    A('s_mov_b64 exec, -1')
    A('s_branch L_p1_done')

    A('L_kv:')
    A('s_mul_i32 s48, s21, 10\ns_and_b32 s49, s19, 1\ns_lshl_b32 s49, s49, 3\ns_sub_u32 s48, s48, s49')
    def kvaddr(dst, u, isv):
        A(f'v_add_u32 v9, 40, {u}\nv_cmp_gt_i32 vcc, 0, {u}\ns_nop 1\nv_cndmask_b32 v8, {u}, v9, vcc')
        A(f'v_lshrrev_b32 v9, 4, v8\nv_lshl_add_u32 v9, {isv}, 1, v9\nv_and_b32 v23, 15, v8')
        A(f'v_lshl_add_u32 v22, {isv}, 3, v23')
        A('v_cmp_gt_u32 vcc, 32, v8\ns_nop 1\nv_cndmask_b32 v9, 4, v9, vcc\nv_cndmask_b32 v23, v22, v23, vcc')
        A(f'v_lshlrev_b32 v23, 3, v23\nv_xor_b32 v23, v23, v6\nv_lshlrev_b32 v22, 4, {isv}\nv_xor_b32 v23, v23, v22')
        A(f'v_lshl_add_u32 v23, v9, 10, v23\nv_add_u32 v{dst}, v23, v7')
    A('v_mov_b32 v16, 0\nv_mov_b32 v17, 1\nv_add_u32 v15, s48, v5')
    kvaddr(10, 'v15', 'v16'); kvaddr(12, 'v15', 'v17')
    A('v_add_u32 v15, 5, v15')
    kvaddr(11, 'v15', 'v16'); kvaddr(13, 'v15', 'v17')
    A('v_and_b32 v15, 1, v5\nv_mul_u32_u24 v15, 5, v15\nv_add3_u32 v15, v15, s48, 4\nv_lshrrev_b32 v16, 1, v5')
    kvaddr(14, 'v15', 'v16')
    A('v_lshlrev_b32 v22, 4, v2\nv_lshlrev_b32 v23, 4, v3')
    A('v_and_b32 v8, 15, v2\nv_cmp_gt_u32 s[68:69], 8, v8')
    A(f's_lshl_b32 s48, s19, 2\ns_add_u32 s48, s48, s21\ns_lshl_b32 s48, s48, 4\ns_add_u32 s48, s48, s18\ns_mul_i32 s70, s48, 10240\ns_add_u32 s70, s70, {KVP_OFF}')
    A(f's_add_u32 s71, s70, 4096\ns_add_u32 s72, s70, 8192\ns_lshr_b32 s74, s48, 4\ns_lshl_b32 s74, s74, {FSH}\ns_lshl_b32 s49, s18, 3\ns_add_u32 s74, s74, s49\ns_add_u32 s74, s74, {FK_OFF}')
    mainloop(A, True, 'kv')
    A.c('KV epilogue')
    A('v_mov_b32 v12, 0x3f803f80\nv_mov_b32 v13, v12\nv_mov_b32 v14, v12\nv_mov_b32 v15, v12')
    KT = {0: 0, 1: 1, 2: 4}; VT = {0: 2, 1: 3, 2: 4}
    prods = [(0, 0), (1, 1), (2, 0), (2, 1), (0, 2), (1, 2), (2, 2)]
    PR = 24
    pend = []
    def flush(k):
        for _ in range(k):
            if pend: A(pend.pop(0))
    for kk in range(4):
        n = 0
        for i in (2 * kk, 2 * kk + 1):
            for t in (0, 1):
                phi_q(A, acc(i, t), 64 + 4 * (n % 4)); n += 1
                flush(2)
            b = acc(i, 4); s = 80 + 4 * (i & 1)
            phi_q(A, b, 64 + 4 * (n % 4), s); n += 1
            for j in range(4):
                A(f'v_cndmask_b32 v{b+j}, v{b+j}, v{s+j}, s[68:69]')
            flush(1)
        assert not pend
        for t in range(5):
            a = acc(2 * kk, t); b = acc(2 * kk + 1, t)
            A(f'v_cvt_pk_bf16_f32 v{a}, v{a}, v{a+1}\nv_cvt_pk_bf16_f32 v{a+1}, v{a+2}, v{a+3}')
            A(f'v_cvt_pk_bf16_f32 v{a+2}, v{b}, v{b+1}\nv_cvt_pk_bf16_f32 v{a+3}, v{b+2}, v{b+3}')
        for n, (tv, tk) in enumerate(prods):
            d = vr(PR + 4 * n)
            pend.append(f'v_mfma_f32_16x16x32_bf16 {d}, {vr(acc(2*kk,VT[tv]))}, {vr(acc(2*kk,KT[tk]))}, {d if kk else 0}')
        for tk in range(3):
            d = vr(52 + 4 * tk)
            pend.append(f'v_mfma_f32_16x16x32_bf16 {d}, {vr(acc(2*kk,KT[tk]))}, v[12:15], {d if kk else 0}')
    A('s_nop 1')
    flush(10)
    A('s_nop 7')
    masks = {(0,0): None, (1,1): None, (2,0): (0, 0xffff), (2,1): (0, 0xffff0000), (0,2): (0x000f000f, 0x000f000f),
             (1,2): (0x00f000f0, 0x00f000f0), (2,2): (0, 0x00f0000f)}
    for n, (tv, tk) in enumerate(prods):
        slot = tv * 3 + tk
        if masks[(tv, tk)]:
            A(f's_mov_b32 exec_lo, {hex(masks[(tv,tk)][0])}\ns_mov_b32 exec_hi, {hex(masks[(tv,tk)][1])}')
        A(f'buffer_store_dwordx4 {vr(PR+4*n)}, v22, s[40:43], s{70 + (slot>>2)} offen offset:{(slot&3)*1024} sc1')
    A('s_mov_b32 exec_lo, 0x00010001\ns_mov_b32 exec_hi, 0x00010001')
    for tk in range(3):
        A(f'buffer_store_dwordx4 {vr(52+4*tk)}, v23, s[40:43], s72 offen offset:{1024 + 64*tk} sc1')
    A('s_mov_b64 exec, -1')
    A('L_p1_done:')
    stamp(A, 4)
    gen_awave(A)


def p2_ids(A):
    A('s_and_b32 s18, s2, 1\ns_lshl_b32 s18, s18, 4\ns_bfe_u32 s48, s2, 0x20001\ns_lshl_b32 s48, s48, 2\ns_add_u32 s18, s18, s48\ns_bfe_u32 s48, s2, 0x20003\ns_add_u32 s18, s18, s48')
    A('s_lshr_b32 s19, s2, 5')


def gen_awave(A):
    AC = 16; PQ = 96; MB = 176
    def a2(rt, t): return AC + 20 * rt + 4 * t
    def pq(kk, rt): return PQ + 16 * kk + 4 * rt
    def mb(kk, t): return MB + 20 * (kk % 3) + 4 * t
    A('s_load_dwordx2 s[4:5], s[0:1], 16\ns_load_dwordx2 s[8:9], s[0:1], 64')
    p2_ids(A)
    A('v_lshrrev_b32 v3, 4, v2\nv_and_b32 v4, 15, v2\nv_lshlrev_b32 v5, 4, v2\nv_lshlrev_b32 v6, 3, v2\nv_add_u32 v7, 4096, v5')
    set_flag(A, 74, 8)
    A(f'v_mov_b32 v8, 1\nv_mov_b32 v0, {CT}\ns_lshl_b32 s48, s21, 2\nv_add_u32 v9, s48, v0\ns_mov_b64 exec, 1\nds_write_b32 v9, v8 offset:48\ns_mov_b64 exec, -1')
    stamp(A, 5)
    if 'NOA' in EXP:
        A('s_sleep 127\ns_sleep 127\ns_sleep 127')
    A('s_waitcnt lgkmcnt(0)')
    srd(A, 24, 4, 819200)
    srd(A, 28, 8, 2621440)
    A('s_cmp_lg_u32 s21, 0\ns_cbranch_scc1 L_a_main')

    WOI = P2_SCR; HS = P2_SCR + 8192
    A('s_lshr_b32 s50, s18, 1\ns_and_b32 s51, s18, 1')
    A('s_mul_i32 s52, s18, 25600\ns_mul_i32 s48, s19, 160\ns_add_u32 s52, s52, s48')
    for i in range(5):
        A(f'v_add_u32 v12, {64*i}, v2\nv_mul_u32_u24 v13, 6554, v12\nv_lshrrev_b32 v13, 16, v13\nv_mul_u32_u24 v14, 10, v13\nv_sub_u32 v14, v12, v14')
        A(f'v_mul_u32_u24 v13, 1280, v13\nv_lshl_add_u32 v13, v14, 4, v13\ns_mov_b32 m0, {WOI + 1024*i}\ns_nop 0')
        A('buffer_load_dwordx4 v13, s[24:27], s52 offen lds')
    A('s_lshl_b32 s48, s51, 12\nv_add_u32 v10, s48, v5')
    A('s_mul_i32 s48, s51, 1280\ns_add_u32 s48, s48, 6656\nv_add_u32 v11, s48, v5')
    A('v_mul_u32_u24 v20, 96, v2\nv_add_u32 v20, 64, v20')
    A('v_subrev_u32 v12, 16, v2\nv_mul_u32_u24 v13, 13108, v12\nv_lshrrev_b32 v13, 16, v13\nv_and_b32 v13, 3, v13\nv_mul_u32_u24 v14, 5, v13\nv_sub_u32 v14, v12, v14')
    A('s_mul_i32 s48, s51, 3136\ns_add_u32 s48, s48, 2048\nv_lshlrev_b32 v15, 8, v14\nv_lshl_add_u32 v15, v13, 4, v15\nv_add_u32 v15, s48, v15')
    A('s_mul_i32 s48, s51, 320\ns_add_u32 s48, s48, 8704\nv_lshlrev_b32 v16, 4, v13\nv_add_u32 v16, s48, v16')
    A('v_cmp_eq_u32 vcc, 4, v14\ns_nop 1\nv_cndmask_b32 v15, v15, v16, vcc')
    A('v_mul_u32_u24 v16, 96, v13\nv_lshl_add_u32 v16, v14, 4, v16\nv_add_u32 v16, 1536, v16')
    A('v_cmp_lt_u32 vcc, 15, v2\ns_nop 1\nv_cndmask_b32 v11, v11, v15, vcc\nv_cndmask_b32 v20, v20, v16, vcc')
    A('v_subrev_u32 v12, 36, v2\ns_lshl_b32 s48, s51, 6\ns_add_u32 s48, s48, 9216\nv_lshlrev_b32 v16, 4, v12\nv_add_u32 v15, s48, v16\nv_add_u32 v16, 3104, v16')
    A('v_cmp_lt_u32 vcc, 35, v2\ns_nop 1\nv_cndmask_b32 v11, v11, v15, vcc\nv_cndmask_b32 v20, v20, v16, vcc')
    A('s_lshl_b32 s48, s51, 4\ns_add_u32 s48, s48, 9344\nv_writelane_b32 v11, s48, 40')
    A(f'v_mov_b32 v15, {OOB}\nv_cmp_lt_u32 vcc, 40, v2\ns_nop 1\nv_cndmask_b32 v11, v11, v15, vcc')
    A('v_mul_u32_u24 v21, 96, v4\nv_lshl_add_u32 v19, v3, 4, v21')
    A('v_lshl_add_u32 v12, v3, 5, v21\nv_lshlrev_b32 v13, 3, v4')
    A('v_bfe_u32 v14, v2, 2, 2\nv_lshl_add_u32 v14, v3, 3, v14\nv_mul_u32_u24 v14, 160, v14\nv_and_b32 v15, 3, v2\nv_lshl_add_u32 v14, v15, 3, v14')
    A('v_cmp_gt_u32 s[60:61], 3, v3\nv_cmp_gt_u32 s[62:63], 2, v3')
    A('s_mul_i32 s48, s51, 5\ns_and_b32 s49, s50, 3\ns_lshl_b32 s49, s49, 8')
    for mt in range(2):
        A(f'v_add3_u32 v15, v3, s48, {4*mt}\nv_lshrrev_b32 v16, 1, v15\nv_mul_u32_u24 v16, 5120, v16\nv_and_b32 v15, 1, v15\nv_lshl_add_u32 v16, v15, 3, v16')
        A(f'v_lshl_add_u32 v16, v4, 4, v16\nv_add_u32 v{17+mt}, s49, v16')
    A(f'v_mov_b32 v16, {OOB}\nv_cmp_eq_u32 vcc, 0, v3\ns_nop 1\nv_cndmask_b32 v18, v16, v18, vcc')
    A('v_lshlrev_b32 v22, 2, v2\nv_cmp_gt_u32 vcc, 10, v2\ns_nop 1\nv_cndmask_b32 v22, v16, v22, vcc')
    A(f's_lshr_b32 s48, s18, 3\ns_mul_i32 s48, s48, 5\ns_mul_i32 s49, s19, 20\ns_add_u32 s48, s48, s49\ns_mul_i32 s48, s48, 5120\ns_add_u32 s56, s48, {M_OFF}\ns_add_u32 s57, s56, 4096')
    A(f's_lshl_b32 s54, s19, 11\ns_mul_i32 s49, s18, 40\ns_add_u32 s54, s54, s49\ns_add_u32 s54, s54, {ZB_OFF}')
    A(f's_lshl_b32 s58, s19, {FSH}\ns_lshl_b32 s49, s18, 3\ns_add_u32 s58, s58, s49\ns_add_u32 s58, s58, {FM_OFF}')
    A(f's_lshl_b32 s59, s50, {FSH}\ns_add_u32 s59, s59, {FK_OFF}')
    A(f's_mul_i32 s52, s50, {16*10240}\ns_add_u32 s52, s52, {KVP_OFF}')
    poll(A, 59, 16, 8, 6)
    stamp(A, 6)
    for p in range(16):
        for ldi in range(2):
            A(f'buffer_load_dwordx4 {vr(64 + 8*p + 4*ldi)}, v{10+ldi}, s[40:43], s52 offen sc1')
        A('s_add_u32 s52, s52, 10240')
    for t in range(5):
        A(f'ds_read_b64_tr_b16 {vr(24+4*t,2)}, v14 offset:{WOI + 32*t}\nds_read_b64_tr_b16 {vr(26+4*t,2)}, v14 offset:{WOI + 32*t + 640}')
    for p in range(1, 16):
        A(f's_waitcnt vmcnt({2*(15-p)})')
        for j in range(0, 8, 2):
            A(f'v_pk_add_f32 {vr(64+j,2)}, {vr(64+j,2)}, {vr(64+8*p+j,2)}')
    stamp(A, 7)
    A(f'ds_write_b128 v19, v[64:67] offset:{HS}\nds_write_b128 v20, v[68:71] offset:{HS}')
    A('s_waitcnt lgkmcnt(0)')
    for mt in range(2):
        A(f'ds_read_b128 {vr(80+8*mt)}, v12 offset:{HS + 1536*mt}\nds_read_b128 {vr(84+8*mt)}, v12 offset:{HS + 1536*mt + 16}')
    A(f'ds_read_b64 v[96:97], v13 offset:{HS+3104}')
    for mt in range(2):
        b = 80 + 8 * mt
        A(f's_waitcnt lgkmcnt({3 - 2*mt})')
        for j in range(4):
            A(f'v_cvt_pk_bf16_f32 v{b+j}, v{b+2*j}, v{b+2*j+1}')
        for j in range(4):
            A(f'v_cndmask_b32 v{b+j}, 0, v{b+j}, {"s[60:61]" if j < 2 else "s[62:63]"}')
    A('s_waitcnt lgkmcnt(0)\nv_cvt_pk_bf16_f32 v96, v96, v97')
    for mt in range(2):
        for t in range(5):
            A(f'v_mfma_f32_16x16x32_bf16 {vr(128+20*mt+4*t)}, {vr(80+8*mt)}, {vr(24+4*t)}, 0')
    A('buffer_store_dword v96, v22, s[40:43], s54 offen sc1')
    A('s_nop 2')
    for mt in range(2):
        if mt == 1: A('s_nop 3')
        for t in range(5):
            b = 128 + 20 * mt + 4 * t
            A(f'v_cvt_pk_bf16_f32 v{b}, v{b}, v{b+1}\nv_cvt_pk_bf16_f32 v{b+1}, v{b+2}, v{b+3}')
            so, off = (56, 1024 * t) if t < 4 else (57, 0)
            A(f'buffer_store_dwordx2 {vr(b,2)}, v{17+mt}, s[40:43], s{so} offen offset:{off} sc1')
    stamp(A, 8)
    set_flag(A, 58, 8)
    stamp(A, 9)

    A('L_a_main:')
    A(f's_lshr_b32 s48, s18, 1\ns_lshl_b32 s59, s48, {FSH}\ns_add_u32 s59, s59, {FG_OFF}')
    A('s_mul_i32 s48, s21, 5\ns_mul_i32 s54, s18, 68\ns_add_u32 s54, s54, s48\ns_add_u32 s54, s54, 48\ns_lshl_b32 s54, s54, 12')
    A(f's_mul_i32 s55, s19, 20\ns_add_u32 s55, s55, s48\ns_mul_i32 s55, s55, 5120\ns_add_u32 s55, s55, {M_OFF}')
    A(f's_lshl_b32 s53, s18, 8\ns_add_u32 s53, s53, {G_OFF}')
    A(f's_lshl_b32 s52, s19, 11\ns_mul_i32 s49, s21, 320\ns_add_u32 s52, s52, s49\ns_add_u32 s52, s52, {ZB_OFF}')
    A(f's_lshl_b32 s58, s19, {FSH}\ns_add_u32 s58, s58, {FM_OFF}')
    A('v_lshlrev_b32 v14, 2, v4\nv_mul_u32_u24 v15, 80, v3')
    A('v_lshrrev_b32 v12, 2, v4\nv_cmp_eq_u32 s[60:61], v12, v3\nv_and_b32 v12, 1, v4\nv_cmp_eq_u32 s[62:63], 0, v12')
    A('s_and_b64 s[64:65], s[60:61], s[62:63]\ns_andn2_b64 s[66:67], s[60:61], s[62:63]')
    A(f's_mov_b32 s68, {EPS}\ns_mov_b32 s69, 0xffff0000')
    A('s_cmp_lg_u32 s21, 2\ns_cbranch_scc1 L_a_nopollg')
    poll(A, 59, 48, 8, 6)
    A('v_mov_b32 v8, 1\ns_mov_b64 exec, 1\nds_write_b32 v0, v8 offset:64\ns_mov_b64 exec, -1')
    A('L_a_nopollg:')
    lds_wait(A, 0, 64, 8, 1, four=False, sleep=2)
    stamp(A, 10)
    for kk in range(5):
        A(f's_add_u32 s56, s54, {4096*kk}')
        for rt in range(4):
            A(f'buffer_load_dwordx4 {vr(pq(kk,rt))}, v5, s[40:43], s56 offen offset:{1024*rt} sc1')
    for rt in range(4):
        A(f'buffer_load_dword v{10+rt}, v14, s[40:43], s53 offen offset:{64*rt} sc1')
    A('s_cmp_lg_u32 s21, 0\ns_cbranch_scc1 L_a_nopoll')
    poll(A, 58, 32, 8, 6)
    A('v_mov_b32 v8, 1\ns_mov_b64 exec, 1\nds_write_b32 v0, v8 offset:68\ns_mov_b64 exec, -1')
    A('L_a_nopoll:')
    lds_wait(A, 0, 68, 8, 1, four=False, sleep=2)
    A('s_waitcnt vmcnt(0)')
    stamp(A, 11)
    Q = []
    def ld(tag, txt):
        A(txt); Q.append(tag)
    def wait(tag):
        last = max(k for k, t in enumerate(Q) if t == tag)
        A(f's_waitcnt vmcnt({len(Q) - 1 - last})')
    def issueM(kk):
        A(f's_add_u32 s57, s55, {5120*kk}')
        for t in range(4):
            ld(('M', kk), f'buffer_load_dwordx4 {vr(mb(kk,t))}, v5, s[40:43], s57 offen offset:{1024*t} sc1')
        ld(('M', kk), f'buffer_load_dwordx4 {vr(mb(kk,4))}, v7, s[40:43], s57 offen sc1')
    ZR = 236
    for kk in range(5):
        ld('Z', f'buffer_load_dwordx4 {vr(ZR+4*kk)}, v15, s[40:43], s52 offen offset:{16*kk} sc1')
    issueM(0); issueM(1); issueM(2)
    wait('Z')
    for kk in range(5):
        for j in range(4):
            m = 's[66:67]' if (4 * kk + j) >= 10 else 's[64:65]'
            A(f'v_cndmask_b32 v{ZR+4*kk+j}, 0, v{ZR+4*kk+j}, {m}')
    den = [AC + 4 * rt for rt in range(4)]
    A('s_nop 1')
    for kk in range(5):
        for rt in range(4):
            d = vr(den[rt])
            A(f'v_mfma_f32_16x16x32_bf16 {d}, {vr(ZR+4*kk)}, {vr(pq(kk,rt))}, {d if kk else 0}')
    A('s_nop 7')
    SC = ZR
    for rt in range(4):
        A(f'v_add_f32 v{den[rt]}, s68, v{den[rt]}\nv_add_f32 v{den[rt]+1}, s68, v{den[rt]+1}')
    for rt in range(4):
        A(f'v_rcp_f32 v{den[rt]}, v{den[rt]}\nv_rcp_f32 v{den[rt]+1}, v{den[rt]+1}')
    A('s_nop 0')
    for rt in range(4):
        A(f'v_mul_f32 v{SC+4*rt}, v{10+rt}, v{den[rt]}\nv_mul_f32 v{SC+4*rt+2}, v{10+rt}, v{den[rt]+1}')
        A(f'v_mov_b32 v{SC+4*rt+1}, v{SC+4*rt}\nv_mov_b32 v{SC+4*rt+3}, v{SC+4*rt+2}')
    def norm_ops(kk):
        L = []
        for rt in range(4):
            for j in range(4):
                r = pq(kk, rt) + j
                sc = SC + 4 * rt + (2 if (4 * kk + j) >= 10 else 0)
                t0 = 252 + 2 * (j & 1)
                L += [f'v_lshlrev_b32 v{t0}, 16, v{r}', f'v_and_b32 v{t0+1}, s69, v{r}',
                      f'v_pk_mul_f32 {vr(t0,2)}, {vr(t0,2)}, {vr(sc,2)}', f'v_cvt_pk_bf16_f32 v{r}, v{t0}, v{t0+1}']
        return L
    for l in norm_ops(0): A(l)
    for kk in range(5):
        nxt = norm_ops(kk + 1) if kk < 4 else []
        wait(('M', kk))
        A('s_nop 0')
        for rt in range(4):
            for t in range(5):
                d = vr(a2(rt, t))
                A(f'v_mfma_f32_16x16x32_bf16 {d}, {vr(mb(kk,t))}, {vr(pq(kk,rt))}, {d if kk else 0}')
                for _ in range(4 if (rt * 5 + t) % 5 != 4 else 0):
                    if nxt: A(nxt.pop(0))
        assert not nxt
        if kk + 3 < 5:
            issueM(kk + 3)
    stamp(A, 12)
    A('s_barrier')
    stamp(A, 13)
    XCH = [0, 15360, 30720, WBASE + 4 * WSLOT]
    A(f'v_add_u32 v9, {XCH[3]}, v5')
    OWN = 176
    A('s_nop 3')
    for w in range(4):
        l = A.label('L_red')
        A(f's_cmp_lg_u32 s21, {w}\ns_cbranch_scc1 {l}')
        for rt in range(4):
            if rt == w: continue
            slot = w if w < rt else w - 1
            for t in range(5):
                A(f'ds_write_b128 v{9 if rt == 3 else 5}, {vr(a2(rt,t))} offset:{(XCH[rt] if rt < 3 else 0) + slot*5120 + t*1024}')
        for t in range(5):
            for j in range(0, 4, 2):
                A(f'v_mov_b64 {vr(OWN+4*t+j,2)}, {vr(a2(w,t)+j,2)}')
        A(f'v_sub_f32 v14, 1.0, v{10+w}\ns_mov_b32 s50, {XCH[w]}')
        A(f'{l}:')
    A(f's_mul_i32 s48, s21, {WSLOT}\ns_add_u32 s48, s48, {WBASE}\nv_add_u32 v8, s48, v5\nv_mov_b32 v15, v14')
    A('s_waitcnt lgkmcnt(0)')
    for r in range(4):
        if r == 3: A('s_waitcnt lgkmcnt(10)')
        for t in range(5):
            A(f'ds_read_b128 {vr(PQ+20*r+4*t)}, v8 offset:{r*5120 + 1024*t}')
    A('s_barrier')
    A('v_add_u32 v8, s50, v5')
    A('s_waitcnt lgkmcnt(0)')
    for n in range(15):
        A(f'ds_read_b128 {vr(AC+4*n)}, v8 offset:{1024*n}')
    A('s_lshl_b32 s48, s18, 6\ns_lshl_b32 s49, s21, 4\ns_add_u32 s48, s48, s49\nv_add_u32 v9, s48, v4\nv_mul_u32_u24 v9, 1280, v9\nv_lshl_add_u32 v9, v3, 3, v9\ns_mul_i32 s48, s19, 160')
    for k in range(0, 20, 2):
        A(f'v_pk_add_f32 {vr(PQ+k,2)}, {vr(PQ+k,2)}, {vr(PQ+20+k,2)}')
        A(f'v_pk_add_f32 {vr(PQ+40+k,2)}, {vr(PQ+40+k,2)}, {vr(PQ+60+k,2)}')
    for k in range(0, 20, 2):
        A(f'v_pk_add_f32 {vr(PQ+k,2)}, {vr(PQ+k,2)}, {vr(PQ+40+k,2)}')
    for k in range(0, 20, 2):
        A(f'v_pk_fma_f32 {vr(OWN+k,2)}, {vr(PQ+k,2)}, v[14:15], {vr(OWN+k,2)}')
    for sl in range(3):
        A(f's_waitcnt lgkmcnt({10 - 5*sl})')
        for k in range(0, 20, 2):
            A(f'v_pk_add_f32 {vr(OWN+k,2)}, {vr(OWN+k,2)}, {vr(AC+20*sl+k,2)}')
    for t in range(5):
        b = OWN + 4 * t
        A(f'v_cvt_pk_bf16_f32 v{b}, v{b}, v{b+1}\nv_cvt_pk_bf16_f32 v{b+1}, v{b+2}, v{b+3}')
        A(f'buffer_store_dwordx2 {vr(b,2)}, v9, s[28:31], s48 offen offset:{32*t}')
    stamp(A, 14)
    finish(A)


def gen_loader(A):
    A.c('s67 = lw ; role constants: s68 strideA, s60 cA, s61 cB, s62 xB, s63 c4, s64 hi-mult')
    A('s_sub_u32 s67, s21, 4')
    A('s_mul_i32 s48, s19, 320\ns_add_u32 s48, s48, 1280\ns_and_b32 s57, s19, 1\ns_lshl_b32 s58, s57, 6\ns_add_u32 s58, s58, s48')
    A('s_xor_b32 s57, s57, 1\ns_lshl_b32 s57, s57, 8\ns_add_u32 s57, s57, s48\ns_add_u32 s59, s58, 1280')
    A('s_lshl_b32 s48, s22, 8\ns_lshl_b32 s49, s22, 7\ns_movk_i32 s56, 3072')
    A('s_cmp_eq_u32 s20, 0')
    A('s_cselect_b32 s68, 3840, s56\ns_cselect_b32 s60, s58, s48\ns_cselect_b32 s61, s59, s48\ns_cselect_b32 s62, 1, 0\ns_cselect_b32 s63, s57, s49\ns_cselect_b32 s64, 1280, 64')
    A(f's_cmp_lg_u32 s91, 0\ns_cselect_b32 s63, {OOB}, s63')
    A('s_xor_b32 s69, s23, s20\ns_and_b32 s69, s69, 1')
    A(f'v_mov_b32 v29, {OOB}\nv_and_b32 v3, 15, v2\ns_lshr_b32 s48, s23, 1\ns_lshl_b32 s48, s48, 4\nv_add_u32 v3, s48, v3\nv_bfe_u32 v4, v2, 4, 1\nv_lshrrev_b32 v5, 5, v2')
    A('s_lshr_b32 s49, s67, 1\ns_lshl_b32 s48, s49, 6\nv_add_u32 v6, s48, v3\nv_mul_u32_u24 v6, 3840, v6\ns_and_b32 s48, s67, 1\ns_mul_i32 s48, s48, s64\ns_add_u32 s48, s48, s63\nv_add_u32 v6, s48, v6')
    A('v_cmp_gt_u32 vcc, 16, v2\nv_mov_b32 v33, s49\ns_lshl_b32 s75, s68, 5\nv_cndmask_b32 v31, v29, v6, vcc')
    A('s_cmp_lt_u32 s67, 2\ns_cbranch_scc1 L_pfx')
    A('v_lshl_add_u32 v6, v5, 6, v3\nv_mul_u32_u24 v6, s68, v6\nv_lshl_add_u32 v6, v4, 7, v6\ns_cmp_eq_u32 s67, 2\ns_cselect_b32 s48, s60, s61\nv_add_u32 v30, s48, v6\nv_mov_b32 v32, v5\ns_lshl_b32 s85, s68, 6')
    A('s_branch L_pfd')
    A('L_pfx:')
    A('s_lshl_b32 s48, s18, 7\ns_lshr_b32 s49, s20, 1\ns_lshl_b32 s49, s49, 6\ns_add_u32 s48, s48, s49\nv_add_u32 v6, s48, v2\nv_mul_u32_u24 v6, 1280, v6')
    A('v_mov_b32 v32, s67\ns_lshl_b32 s49, s67, 7\nv_add_u32 v30, s49, v6\ns_movk_i32 s85, 128')
    A('L_pfd:')
    A('v_cmp_eq_u32 vcc, 0, v32\ns_mul_i32 s56, s85, s69\ns_nop 0\nv_cndmask_b32 v34, v29, v30, vcc')
    A(f'v_cmp_eq_u32 vcc, 0, v33\ns_mul_i32 s57, s69, {64*3840}\ns_nop 0\nv_cndmask_b32 v35, v29, v31, vcc')
    A('s_mov_b32 s26, 2621440\ns_mov_b32 s27, 0x20000\ns_mov_b32 s31, 0x20000\ns_mov_b32 s35, 0x20000\ns_mov_b32 s39, 0x20000\ns_mov_b32 s83, 0x20000\ns_mov_b32 s48, 1966080\ns_mov_b32 s38, 2457600')
    A('s_cmp_eq_u32 s20, 0\ns_cselect_b32 s30, s38, s48\ns_mov_b32 s34, s30')
    A(f'v_mov_b32 v38, {CT}\nv_lshl_add_u32 v39, v2, 2, v38\nv_mov_b32 v44, 0\ns_lshl_b32 s71, s67, 8\nds_write_b32 v39, v44\nv_add_u32 v39, s71, v39\nds_write_b32 v39, v44 offset:256')
    A(f'v_and_b32 v39, 3, v2\nv_lshlrev_b32 v39, 8, v39\nv_add_u32 v39, {CT+256}, v39\ns_lshl_b32 s71, s67, 2\ns_add_u32 s71, s71, {CT}')
    A('s_cmp_eq_u32 s20, 0')
    A('s_waitcnt lgkmcnt(0)')
    A('s_mov_b32 s24, s4\ns_mov_b32 s25, s5\ns_mov_b32 s36, s6\ns_mov_b32 s37, s7')
    A('s_cselect_b32 s28, s6, s8\ns_cselect_b32 s29, s7, s9\ns_cselect_b32 s32, s6, s10\ns_cselect_b32 s33, s7, s11')
    A('s_cmp_eq_u32 s67, 2\ns_cselect_b32 s80, s28, s32\ns_cselect_b32 s81, s29, s33')
    A('s_cmp_lt_u32 s67, 2\ns_cselect_b32 s80, s4, s80\ns_cselect_b32 s81, s5, s81\ns_cselect_b32 s82, s26, s30')
    stamp(A, 1)
    def issueW():
        for L in range(5):
            sr = 28 if L < 2 else (32 if L < 4 else 36)
            dma(A, f's_add_u32 m0, s77, {L*1024}', 10 + L, sr, 70 if L < 4 else 72)
        A('s_add_u32 s70, s70, s75\ns_add_u32 s72, s72, s76')
        A(f's_add_u32 s77, s77, {WSLOT}\ns_cmp_ge_u32 s77, {WBASE + NW*WSLOT}\ns_cselect_b32 s48, {NW*WSLOT}, 0\ns_sub_u32 s77, s77, s48')
    def issueX():
        for i in range(4):
            dma(A, f's_add_u32 m0, s78, {i*1024}', 16 + i, 24, 74)
        A('s_add_u32 s74, s74, 128')
        A(f's_add_u32 s78, s78, {XSLOT}\ns_cmp_ge_u32 s78, {NX*XSLOT}\ns_cselect_b32 s48, {NX*XSLOT}, 0\ns_sub_u32 s78, s78, s48')
    def flag():
        A('s_mov_b32 m0, s71\ns_lshl_b32 s48, s65, 2\ns_mov_b64 exec, 1\nbuffer_load_dword v44, s[8:11], s48 offen offset:0 lds\ns_mov_b64 exec, -1')
    A('buffer_load_dword v36, v34, s[80:83], s56 offen')
    A('buffer_load_dword v37, v35, s[36:39], s57 offen')
    A('s_cmp_eq_u32 s55, 0\ns_cbranch_scc1 L_nogw0')
    srd(A, 44, 14, 1280)
    A('v_lshlrev_b32 v40, 1, v2')
    for j in range(10):
        A(f'buffer_load_ushort v{50+j}, v40, s[44:47], 0 offen offset:{128*j}')
    A('L_nogw0:')
    A('v_lshrrev_b32 v3, 3, v2\nv_and_b32 v4, 7, v2')
    A('s_lshl_b32 s48, s18, 7\ns_lshl_b32 s56, s67, 5\ns_add_u32 s48, s48, s56\nv_add_u32 v7, s48, v3\nv_mul_u32_u24 v7, 1280, v7')
    A('v_lshrrev_b32 v8, 4, v2\nv_xor_b32 v8, v8, v4\nv_lshl_add_u32 v16, v8, 4, v7')
    A('v_xor_b32 v8, 4, v8\nv_lshl_add_u32 v17, v8, 4, v7\nv_add_u32 v17, 10240, v17')
    A('v_add_u32 v18, 20480, v16\nv_add_u32 v19, 20480, v17')
    A('s_lshl_b32 s56, s67, 3\nv_add_u32 v5, s56, v3')
    A('s_and_b32 s56, s67, 1\ns_lshl_b32 s56, s56, 2\nv_and_b32 v6, 2, v3\nv_xor_b32 v6, v6, v4\nv_xor_b32 v6, s56, v6')
    A('v_mul_u32_u24 v7, s68, v5\nv_lshl_add_u32 v8, v6, 4, v7\nv_add_u32 v10, s60, v8\nv_add_u32 v11, 128, v10')
    A('v_xor_b32 v9, s62, v6\nv_lshl_add_u32 v8, v9, 4, v7\nv_add_u32 v12, s61, v8\nv_add_u32 v13, 128, v12')
    A('v_lshrrev_b32 v8, 2, v6\nv_and_b32 v9, s62, v8\nv_and_b32 v6, 3, v6\nv_xor_b32 v6, v6, v9\nv_mul_u32_u24 v7, 3840, v5')
    A('v_lshl_add_u32 v7, v6, 4, v7\nv_mul_u32_u24 v8, s64, v8\nv_add3_u32 v14, v7, v8, s63')
    A(f's_mov_b32 s76, {32*3840}\ns_mov_b32 s70, 0\ns_mov_b32 s72, 0\ns_mov_b32 s74, 0')
    A(f's_mul_i32 s77, s67, 5120\ns_add_u32 s77, s77, {WBASE}\ns_lshl_b32 s78, s67, 12')
    issueX(); issueW()
    A('s_waitcnt lgkmcnt(0)\ns_barrier')
    A('s_load_dwordx2 s[86:87], s[0:1], 72')
    A('s_cmp_eq_u32 s55, 0\ns_cbranch_scc1 L_nogw')
    A('v_and_b32 v41, 3, v2\nv_lshlrev_b32 v41, 3, v41')
    A('v_bfe_u32 v40, v2, 2, 1\nv_lshl_add_u32 v41, v40, 9, v41')
    A('v_bfe_u32 v40, v2, 3, 2\nv_lshl_add_u32 v41, v40, 5, v41')
    A(f'v_bfe_u32 v40, v2, 5, 1\nv_mul_u32_u24 v40, {GWS}, v40\nv_add_u32 v41, v40, v41')
    A(f'v_add_u32 v41, {GWBASE}, v41')
    A('s_waitcnt vmcnt(9)')
    for j in range(10):
        A(f'v_lshl_or_b32 v{80+2*j}, v{50+j}, 16, v{50+j}\nv_mov_b32 v{81+2*j}, v{80+2*j}')
        A(f'ds_write_b64 v41, v[{80+2*j}:{81+2*j}] offset:{2*GWS*j}')
    A('L_nogw:')
    srd(A, 40, 16, WS_USED)
    srd(A, 44, 12, 1966080)
    A('s_waitcnt lgkmcnt(0)')
    A('s_lshl_b32 s48, s2, 2\ns_add_u32 s48, s48, s67\ns_cmp_lg_u32 s48, 0\ns_cbranch_scc1 L_noep')
    A('s_memrealtime s[94:95]\ns_waitcnt lgkmcnt(0)\ns_or_b32 s94, s94, 1\nv_mov_b32 v42, s94\nv_mov_b32 v43, s95')
    A('s_mov_b64 exec, 1\nglobal_store_dwordx2 v44, v[42:43], s[86:87] sc1\ns_mov_b64 exec, -1')
    A('L_noep:')
    A('s_min_u32 s48, s22, 10\ns_add_u32 s48, s48, 4\ns_cmp_eq_u32 s20, 0\ns_cselect_b32 s48, s19, s48\ns_mul_i32 s49, s18, 15\ns_add_u32 s92, s48, s49')
    A('s_mul_i32 s48, s92, 52429\ns_lshr_b32 s48, s48, 18\ns_mul_i32 s49, s48, 5\ns_sub_u32 s49, s92, s49\ns_lshl_b32 s49, s49, 1\ns_add_u32 s49, s49, s67')
    A(f's_mul_i32 s79, s48, {32*1280}\ns_lshl_b32 s56, s49, 7\ns_add_u32 s79, s79, s56')
    for tl in range(4):
        A(f's_lshl_b32 s56, s49, 2\ns_add_u32 s56, s56, {tl}\ns_mul_i32 s57, s56, 52429\ns_lshr_b32 s57, s57, 18')
        A(f's_mul_i32 s{60+tl}, s57, 235\ns_add_u32 s{60+tl}, s{60+tl}, s56\ns_mul_i32 s57, s48, 5\ns_add_u32 s{60+tl}, s{60+tl}, s57\ns_lshl_b32 s{60+tl}, s{60+tl}, 10\ns_add_u32 s{60+tl}, s{60+tl}, {W2_OFF}')
    A(f's_lshl_b32 s92, s92, 1\ns_add_u32 s92, s92, s67\ns_lshl_b32 s92, s92, 3\ns_add_u32 s92, s92, {FW_OFF}\ns_lshl_b32 s93, s67, 12\ns_add_u32 s93, s93, {RPK}')
    A('s_cmp_lt_u32 s67, 2\ns_cselect_b32 s64, 1, 0\ns_cmp_lg_u32 s55, 0\ns_cselect_b32 s64, 0, s64')
    A('v_and_b32 v6, 2, v3\nv_xor_b32 v6, v6, v4\nv_mul_u32_u24 v7, 1280, v3\nv_lshl_add_u32 v20, v6, 4, v7')
    A('v_xor_b32 v6, 4, v6\nv_lshl_add_u32 v21, v6, 4, v7\nv_add_u32 v21, 10240, v21\nv_add_u32 v22, 20480, v20\nv_add_u32 v23, 20480, v21')
    A('v_lshrrev_b32 v5, 2, v2\nv_and_b32 v7, 3, v2\nv_lshlrev_b32 v8, 7, v5\nv_lshl_add_u32 v8, v7, 3, v8\nv_add_u32 v8, s93, v8')
    A('v_bfe_u32 v9, v2, 3, 1\nv_lshrrev_b32 v6, 5, v2\nv_lshl_add_u32 v9, v6, 1, v9')
    for tl in range(4):
        A(f'v_xor_b32 v6, {tl}, v9\nv_lshl_add_u32 v{24+tl}, v6, 5, v8')
    A('v_lshlrev_b32 v5, 4, v2\nv_lshlrev_b32 v6, 3, v2\nv_add_u32 v7, 4096, v5')
    A(f's_cmp_eq_u32 s69, 0\ns_cselect_b32 s58, {RND[0][0]}, {RND[1][0]}\ns_cselect_b32 s59, 2, 4\ns_cselect_b32 s84, {RND[0][1]}, {RND[1][1]}')
    A('s_mov_b32 s97, s58\ns_add_u32 s94, s58, 2\ns_add_u32 s95, s58, 3')
    p2_ids(A)
    AC = 24; WR = 104; HBUF = 224
    def a2(rt, t): return AC + 20 * rt + 4 * t
    regset = {0: 0, 1: 1, 2: 2, 9: 3, 10: 4, 11: 5}
    lds_unit = {3: WBASE, 4: WBASE + WSLOT, 5: WBASE + 2*WSLOT, 6: WBASE + 3*WSLOT, 7: 20480, 8: WBASE + 4*WSLOT}
    A('s_mul_i32 s23, s19, 3\ns_lshr_b32 s23, s23, 1\ns_and_b32 s48, s18, 3\ns_mul_i32 s48, s48, 3\ns_add_u32 s23, s23, s48\ns_cmp_ge_u32 s23, 12\ns_cselect_b32 s48, 12, 0\ns_sub_u32 s23, s23, s48')
    A(f's_mul_i32 s48, s67, 12\ns_mul_i32 s50, s19, 48\ns_add_u32 s50, s50, s48\ns_mul_i32 s50, s50, 5120\ns_add_u32 s50, s50, {W2_OFF}')
    A('s_mul_i32 s51, s18, 68\ns_add_u32 s51, s51, s48\ns_lshl_b32 s51, s51, 12')
    A('s_mul_i32 s52, s67, 5120')
    A(f's_mul_i32 s53, s67, 960\ns_mul_i32 s48, s19, 5\ns_lshr_b32 s48, s48, 2\ns_lshl_b32 s48, s48, 3\ns_add_u32 s53, s53, s48\ns_add_u32 s53, s53, {FW_OFF}')
    A('v_lshrrev_b32 v8, 1, v2\nv_mul_u32_u24 v8, 80, v8\nv_and_b32 v9, 1, v2\nv_lshl_add_u32 v28, v9, 3, v8')
    A(f's_lshr_b32 s48, s18, 1\ns_lshl_b32 s54, s48, 9\ns_mul_i32 s49, s67, 96\ns_add_u32 s54, s54, s49\ns_add_u32 s54, s54, {FG_OFF}')
    def kidx(i, dst):
        A(f's_add_u32 s{dst}, s23, {i}\ns_cmp_ge_u32 s{dst}, 12\ns_cselect_b32 s48, 12, 0\ns_sub_u32 s{dst}, s{dst}, s48')
    def w2reg(i):
        kidx(i, 56)
        A('s_mul_i32 s56, s56, 5120\ns_add_u32 s56, s56, s50')
        for t in range(5):
            b = WR + 20 * regset[i] + 4 * t
            if t == 0: A(f's_waitcnt vmcnt({STG_THR})')
            A(f'buffer_load_dwordx4 {vr(b)}, v{5 if t < 4 else 7}, s[40:43], s56 offen offset:{1024*(t&3)} sc1')
    def w2lds(i):
        kidx(i, 56)
        A('s_mul_i32 s56, s56, 5120\ns_add_u32 s56, s56, s50')
        A(f's_add_u32 m0, s52, {lds_unit[i]}\ns_waitcnt vmcnt({STG_THR})')
        for t in range(4):
            A(f'buffer_load_dwordx4 v5, s[40:43], s56 offen offset:{1024*t} sc1 lds')
        A(f's_add_u32 m0, s52, {lds_unit[i] + 4096}\ns_nop 0')
        A('buffer_load_dwordx4 v7, s[40:43], s56 offen sc1 lds')
    def trace():
        if STAMP and 'quiet' not in EXP:
            A('s_memtime s[98:99]\ns_add_u32 s48, s65, 38\ns_mov_b32 m0, s48\ns_waitcnt lgkmcnt(0)\nv_writelane_b32 v1, s98, m0')
    def ensure_free():
        if 'nofree' in EXP: return
        l = A.label('L_free')
        A(f's_sub_u32 s57, s65, 4\ns_cmp_ge_i32 s66, s57\ns_cbranch_scc1 {l}')
        tbeg(A)
        lds_wait(A, 39, 0, 48, 's57', four='free', sdst=66, sleep=LSLEEP)
        tend(A, 100)
        A(f'{l}:')
    stamp(A, 2)
    table_srd(A, 8)
    A('s_mov_b32 s65, 1\ns_mov_b32 s66, 0')
    flag()
    A('s_branch L_ld_odd')
    A('.p2align 3')
    A('L_ld_loop:')
    ensure_free()
    issueX(); issueW()
    trace()
    A('s_add_u32 s65, s65, 1')
    flag()
    A('L_ld_odd:')
    ensure_free()
    issueW()
    trace()
    A('s_lshr_b32 s49, s65, 1\ns_add_u32 s65, s65, 1')
    flag()
    A('s_cmp_eq_u32 s49, s58\ns_cbranch_scc1 L_ev_round')
    A('L_ev_r1:')
    A('s_cmp_eq_u32 s49, s94\ns_cbranch_scc1 L_ev_rpst')
    A('L_ev_r2:')
    A('s_cmp_eq_u32 s49, s95\ns_cbranch_scc1 L_ev_rpfl')
    A('L_ev_r3:')
    A('s_cmp_lt_u32 s65, 20\ns_cbranch_scc1 L_ld_loop')
    A('s_branch L_ld_done')
    A('L_ev_round:')
    lds_wait(A, 38, 0, 48, 's65')
    A(f's_mul_i32 s56, s85, s59\ns_mul_i32 s57, s59, {64*3840}')
    A('buffer_load_dword v36, v30, s[80:83], s56 offen')
    A('buffer_load_dword v37, v31, s[36:39], s57 offen')
    A('s_add_u32 s59, s59, 4\ns_add_u32 s58, s58, s84\ns_cmp_gt_u32 s59, 8\ns_cselect_b32 s58, 99, s58')
    A('s_cmp_lg_u32 s49, s97\ns_cbranch_scc1 L_ev_rw')
    A('global_load_dwordx2 v[42:43], v44, s[86:87] sc1')
    A('s_cmp_eq_u32 s64, 0\ns_cbranch_scc1 L_ev_rw')
    for g in range(4):
        dma(A, f's_add_u32 m0, s93, {g*1024}', 20 + g, 44, 79)
    A('L_ev_rw:')
    A('s_waitcnt vmcnt(0)')
    A('s_branch L_ev_r1')
    A('L_ev_rpst:')
    l0 = A.label('L_ep'); l1 = A.label('L_epok')
    A('s_mov_b32 s90, 0')
    A(f'{l0}:')
    A('v_readfirstlane_b32 s88, v42\nv_readfirstlane_b32 s89, v43')
    A(f's_cmp_lg_u32 s88, 0\ns_cbranch_scc1 {l1}')
    A('s_sleep 4\nglobal_load_dwordx2 v[42:43], v44, s[86:87] sc1\ns_waitcnt vmcnt(0)')
    A(f's_add_u32 s90, s90, 1\ns_cmp_lt_u32 s90, {SPIN_MAX}\ns_cbranch_scc1 {l0}')
    A(f'{l1}:')
    A(f's_mov_b32 m0, {CT+32}\nv_lshlrev_b32 v45, 2, v2\ns_mov_b64 exec, 3\nglobal_load_lds_dword v45, s[86:87] sc1\ns_mov_b64 exec, -1')
    A('s_cmp_eq_u32 s64, 0\ns_cbranch_scc1 L_ev_r2')
    for tl in range(4):
        A(f'ds_read_b64_tr_b16 {vr(64+4*tl,2)}, v{24+tl}\nds_read_b64_tr_b16 {vr(66+4*tl,2)}, v{24+tl} offset:2048')
    for tl in range(4):
        A(f's_waitcnt lgkmcnt({6-2*tl})\nbuffer_store_dwordx4 {vr(64+4*tl)}, v5, s[40:43], s{60+tl} offen sc1')
    A('s_branch L_ev_r2')
    A('L_ev_rpfl:')
    A('s_cmp_eq_u32 s64, 0\ns_cbranch_scc1 L_ev_r3')
    A('s_waitcnt vmcnt(0)')
    A('s_mov_b64 exec, 1\nbuffer_store_dwordx2 v[42:43], v44, s[40:43], s92 offen sc1\ns_mov_b64 exec, -1')
    A('s_branch L_ev_r3')
    A('L_ld_done:')
    A('s_waitcnt vmcnt(0)')
    trace()
    if 'p1' in EXP: finish(A)
    poll(A, 53, 24, 46, 28)
    stamp(A, 8)
    A('s_cmp_lg_u32 s67, 0\ns_cbranch_scc1 L_nowo')
    A('s_load_dwordx2 s[24:25], s[0:1], 16\ns_mov_b32 s26, 819200\ns_mov_b32 s27, 0x20000')
    A('s_mul_i32 s48, s18, 25600\ns_mul_i32 s49, s19, 160\ns_add_u32 s48, s48, s49\nv_lshrrev_b32 v8, 1, v2\nv_mul_u32_u24 v8, 1280, v8\nv_and_b32 v9, 1, v2\nv_mul_u32_u24 v9, 156, v9\nv_add_u32 v8, v8, v9')
    A('s_waitcnt lgkmcnt(0)\nbuffer_load_dword v36, v8, s[24:27], s48 offen')
    A('L_nowo:')
    for i in (0, 1, 2):
        w2reg(i)
    if not STG_EARLY:
        lds_wait(A, 38, 48, 48, 1, sleep=4)
    else:
        A('s_waitcnt vmcnt(0)')
    stamp(A, 9)
    for k, i in enumerate((9, 10, 11)):
        w2reg(i); stamp(A, 16 + k)
    lds_wait(A, 39, 0, 48, 20, four='free', sleep=LSLEEP)
    for k, i in enumerate((3, 4, 5, 6, 7, 8)):
        w2lds(i); stamp(A, 19 + k)
    hbufs = [HBUF, HBUF + 16, WR + 40]
    def hb(i, rt):
        k = i if i < 2 else (0 if i == 2 else (i - 3 + 1) % 3 if False else None)
        return None
    hmap = {0: 0, 1: 1, 2: 0, 3: 1}
    for i in range(4, 12):
        hmap[i] = [0, 2, 1][(i - 4) % 3]
    def hb(i, rt): return hbufs[hmap[i]] + 4 * rt
    A('v_add_u32 v8, s52, v5')
    A(f'v_add_u32 v9, {WBASE + 2*WSLOT}, v8')
    def rdW(i, rs):
        u = lds_unit[i]
        va, off = (8, u) if u < WBASE + WSLOT - 5120 else ((9, u - (WBASE + 2*WSLOT)) if u >= WBASE + 2*WSLOT else (12, 0))
        for t in range(5):
            A(f'ds_read_b128 {vr(WR+20*rs+4*t)}, v{va} offset:{off + 1024*t}')
    A(f'v_add_u32 v12, {WBASE + WSLOT}, v8')
    stamp(A, 3)
    lds_wait(A, 38, 48, 48, 1, sleep=2)
    lds_wait(A, 38, 64, 10, 1, four=False, sleep=2)
    A('s_waitcnt vmcnt(0)')
    stamp(A, 4)
    Q = []
    def wait(tag):
        last = max(k for k, t in enumerate(Q) if t == tag)
        A(f's_waitcnt vmcnt({min(63, len(Q) - 1 - last)})')
    def issueH(i):
        kidx(i, 56)
        A('s_lshl_b32 s56, s56, 12\ns_add_u32 s56, s56, s51')
        for rt in range(4):
            A(f'buffer_load_dwordx4 {vr(hb(i,rt))}, v5, s[40:43], s56 offen offset:{1024*rt} sc1')
            Q.append(('H', i))
    issueH(0); issueH(1)
    nH = 2
    for i in range(12):
        rs = regset[i] if i in regset else (i - 3) % 2
        wait(('H', i))
        if i == 0: stamp(A, 5)
        stamp(A, 25 + i)
        if i not in regset:
            A('s_waitcnt lgkmcnt(5)' if (i + 1) not in regset else 's_waitcnt lgkmcnt(0)')
        for rt in range(4):
            for t in range(5):
                d = vr(a2(rt, t))
                A(f'v_mfma_f32_16x16x32_bf16 {d}, {vr(WR+20*rs+4*t)}, {vr(hb(i,rt))}, {d if i else 0}')
        while nH < 12 and all(hmap[j] != hmap[nH] for j in range(i + 1, nH)) and not (hmap[nH] == 2 and i < 2):
            issueH(nH); nH += 1
        tgt = {0: 3, 1: 4}.get(i, i + 2 if 5 <= i + 2 <= 8 else None)
        if tgt is not None:
            rdW(tgt, (tgt - 3) % 2)
    stamp(A, 6)
    A('s_nop 7')
    for rt in range(4):
        va, off = [(8, WBASE), (12, 0), (9, 0), (9, WSLOT)][rt]
        for t in range(5):
            A(f'ds_write_b128 v{va}, {vr(a2(rt,t))} offset:{off + t*1024}')
    A('s_waitcnt lgkmcnt(0)')
    stamp(A, 7)
    A('s_barrier')
    finish(A)


def gen(A):
    K = NAME + '_kernel'
    A(f'.globl {K}\n.p2align 8\n.type {K},@function\n{K}:')
    A('s_cmp_ge_u32 s2, 256\ns_cbranch_scc1 L_end')
    A('s_load_dwordx4 s[4:7], s[0:1], 0')
    A('s_load_dwordx4 s[8:11], s[0:1], 32')
    A('s_load_dwordx4 s[12:15], s[0:1], 48')
    A('s_load_dwordx2 s[16:17], s[0:1], 80')
    A.c('decode: s18 rb, s19 cq, s20 m, s21 wave, s22 gtype, s23 rbl, s55 is_gc')
    A('v_lshrrev_b32 v1, 6, v0\nv_and_b32 v2, 63, v0')
    A('s_bfe_u32 s23, s2, 0x30003\ns_and_b32 s18, s2, 1\ns_lshl_b32 s18, s18, 3\ns_add_u32 s18, s18, s23')
    A('v_readfirstlane_b32 s21, v1')
    A('s_bfe_u32 s19, s2, 0x20001\ns_lshr_b32 s20, s2, 6')
    A('s_mul_i32 s22, s19, 3\ns_add_u32 s22, s22, s20\ns_sub_u32 s22, s22, 1')
    A('s_cmp_eq_u32 s22, 10\ns_cselect_b32 s55, 1, 0\ns_cmp_ge_i32 s22, 10\ns_cselect_b32 s91, 1, 0')
    if STAMP:
        A('v_mov_b32 v1, 0\ns_mov_b32 s100, 0\ns_mov_b32 s101, 0')
        stamp(A, 0); stamp_rt(A, 62)
    A('s_cmp_lt_u32 s21, 4\ns_cbranch_scc1 L_compute')
    gen_loader(A)
    gen_compute(A)
    A('L_end:\ns_endpgm')
    A('.p2align 7\nL_table:')
    for i in range(32):
        A(f'.long {i}')


def main(out):
    A = Asm()
    gen(A)
    K = NAME + '_kernel'
    hdr = open('cdna_kernels/' + NAME + '.s.ref').read().split('; Override')[0]
    txt = hdr + f'; @launch grid=(256,1,1) block=(512,1,1) lds={LDS_TOTAL}\n'
    txt += '.amdgcn_target "amdgcn-amd-amdhsa--gfx950"\n.text\n' + A.text()
    txt += f'''.section .rodata,"a"
.p2align 6
.amdhsa_kernel {K}
  .amdhsa_next_free_vgpr 256
  .amdhsa_next_free_sgpr 102
  .amdhsa_accum_offset 256
  .amdhsa_group_segment_fixed_size 0
  .amdhsa_kernarg_size 88
  .amdhsa_user_sgpr_count 2
  .amdhsa_user_sgpr_kernarg_segment_ptr 1
  .amdhsa_system_sgpr_workgroup_id_x 1
.end_amdhsa_kernel
'''
    open(out, 'w').write(txt)

if __name__ == '__main__':
    for a in sys.argv[2:]:
        k, v = a.split('=', 1)
        globals()[k] = eval(v)
    main(sys.argv[1] if len(sys.argv) > 1 else 'cdna_kernels/' + NAME + '.s')
```

```python
import sys

NAME = 'gated_mix__linear_attn_block__glu_gated_glu__prompt'

HB_OFF = 0
W2_OFF = 0x900000
M_OFF = 0xB00000
KVP_OFF = 0xC00000
G_OFF = 0xF00000
ZB_OFF = 0xF10000
FSH = 13
FG_OFF = 0xF40000
FP_OFF = 0xF60800
FM_OFF = 0xF81000
FW_OFF = 0xFA1800
STAMP_OFF = 0x1000000
WS_USED = 0x1100000
OOB = 0x7FFF0000

XSLOT = 16384; NX = 3
WBASE = NX * XSLOT
WSLOT = 20480; NW = 5
GWBASE = WBASE + NW * WSLOT
LDS_TOTAL = 163840
CT = 159744
P2_SCR = 0
RPK = GWBASE
CODEPF = True
EV = {1: (0, [(0, 3), (2, 15)]), 2: (1, [(1, 5), (3, 15)]), 3: (2, [(2, 7), (4, 15)])}
THIRD = True
STAMP = False
GWS = 320
PRIO = 2
LSLEEP = 3
DEPTH = 2
EXP = ''
APRIO = 0
BPRIO = 0
MAP84 = True
LS = 'sc1'
LL = 'sc1'
KPRE = 6
LPS = 1
LP0 = 0
GPOLL = 'A'
GD = 8
KVG = 1
T1N = 3
PRETOUCH = False
STG_THR = 3
PSLEEP = 8
MSLEEP = 12
MDELAY = 64
GDELAY = 8
STG_EARLY = False
SPIN_MAX = 0x20000


class Asm:
    def __init__(self):
        self.L = []
        self.nl = 0
    def __call__(self, s):
        for line in s.split('\n'):
            line = line.strip()
            if line:
                self.L.append(line if line.endswith(':') else '    ' + line)
    def c(self, s):
        self.L.append('    ; ' + s)
    def label(self, p='L'):
        self.nl += 1
        return f'{p}_{self.nl}'
    def text(self):
        return '\n'.join(self.L) + '\n'


def vr(b, n=4):
    return f'v[{b}:{b+n-1}]'

def srd(A, d, lo, nbytes):
    A(f's_mov_b32 s{d}, s{lo}\ns_mov_b32 s{d+1}, s{lo+1}\ns_mov_b32 s{d+2}, {nbytes}\ns_mov_b32 s{d+3}, 0x20000')

def stamp(A, n):
    if STAMP:
        A(f's_memtime s[98:99]\ns_waitcnt lgkmcnt(0)\nv_writelane_b32 v1, s98, {n}')
def stamp_rt(A, n):
    if STAMP:
        A(f's_memrealtime s[98:99]\ns_waitcnt lgkmcnt(0)\nv_writelane_b32 v1, s98, {n}')
def tbeg(A):
    if STAMP and 'quiet' not in EXP: A('s_memtime s[98:99]\ns_waitcnt lgkmcnt(0)\ns_mov_b32 s3, s98')
def tend(A, r):
    if STAMP and 'quiet' not in EXP: A(f's_memtime s[98:99]\ns_waitcnt lgkmcnt(0)\ns_sub_u32 s3, s98, s3\ns_add_u32 s{r}, s{r}, s3')
def finish(A):
    if STAMP:
        A('s_waitcnt vmcnt(0)')
        stamp(A, 61); stamp_rt(A, 63)
        A('v_writelane_b32 v1, s100, 59\nv_writelane_b32 v1, s101, 60')
        A('s_mov_b64 exec, -1')
        A(f's_lshl_b32 s3, s2, 3\ns_add_u32 s3, s3, s21\ns_lshl_b32 s3, s3, 8\ns_add_u32 s3, s3, {STAMP_OFF}\nv_lshlrev_b32 v2, 2, v2')
        A('buffer_store_dword v1, v2, s[40:43], s3 offen')
    A('s_endpgm')

LOG2E = 0x3fb8aa3b
NLOG2E = 0xbfb8aa3b
EPS = 0x358637bd

ACC = 96; XF = 64; WF = 24
def acc(i, t): return ACC + 20 * i + 4 * t


THR = 0
def dma(A, m0expr, voff, sr, so):
    A(m0expr)
    A(f's_waitcnt vmcnt({THR-1})' if THR else 's_nop 0')
    A(f'buffer_load_dwordx4 v{voff}, s[{sr}:{sr+3}], s{so} offen lds')


def poll(A, soff, nl, vt, vaddr, sleep=None):
    l0 = A.label('L_poll'); l1 = A.label('L_polled')
    A('s_mov_b32 s90, 0')
    A(f's_mov_b64 exec, {hex((1 << nl) - 1)}' if nl <= 31 else f's_mov_b32 exec_lo, -1\ns_mov_b32 exec_hi, {hex((1 << (nl - 32)) - 1)}')
    A(f'{l0}:')
    A(f'buffer_load_dwordx2 {vr(vt,2)}, v{vaddr}, s[40:43], s{soff} offen sc1')
    A('s_waitcnt vmcnt(0)')
    A(f'v_cmp_ne_u64 vcc, s[88:89], {vr(vt,2)}')
    A(f's_cbranch_vccz {l1}')
    A(f's_sleep {PSLEEP if sleep is None else sleep}\ns_add_u32 s90, s90, 1\ns_cmp_lt_u32 s90, {SPIN_MAX}\ns_cbranch_scc1 {l0}')
    A(f'{l1}:')
    A('s_mov_b64 exec, -1')


def spoll(A, parts, sleep=2):
    l0 = A.label('L_sp'); l1 = A.label('L_spd')
    A('s_mov_b32 s96, 0')
    A(f'{l0}:')
    regs = []
    for so, imm, n, sb in parts:
        A(f's_load_dwordx{2*n} s[{sb}:{sb+2*n-1}], s[16:17], s{so} offset:{imm} glc')
        regs += [sb + 2 * k for k in range(n)]
    A('s_waitcnt lgkmcnt(0)')
    for r in regs:
        A(f's_xor_b64 s[{r}:{r+1}], s[{r}:{r+1}], s[88:89]')
    for r in regs[1:]:
        A(f's_or_b64 s[{regs[0]}:{regs[0]+1}], s[{regs[0]}:{regs[0]+1}], s[{r}:{r+1}]')
    A(f's_cbranch_scc0 {l1}')
    A(f's_sleep {sleep}\ns_add_u32 s96, s96, 1\ns_cmp_lt_u32 s96, {SPIN_MAX}\ns_cbranch_scc1 {l0}')
    A(f'{l1}:')


def set_flag(A, soff, vt):
    A(f'v_mov_b32 v{vt}, s88\nv_mov_b32 v{vt+1}, s89\nv_mov_b32 v{vt+2}, 0')
    A('s_waitcnt vmcnt(0)')
    A('s_mov_b64 exec, 1')
    A(f'buffer_store_dwordx2 {vr(vt,2)}, v{vt+2}, s[40:43], s{soff} offen sc1')
    A('s_mov_b64 exec, -1')


def table_srd(A, d):
    l = A.label('L_pc')
    A(f's_getpc_b64 s[{d}:{d+1}]\n{l}:\ns_add_u32 s{d}, s{d}, L_table-{l}\ns_addc_u32 s{d+1}, s{d+1}, 0\ns_movk_i32 s{d+2}, 128\ns_mov_b32 s{d+3}, 0x20000')


def lds_free(A, vaddr, vt, sdst):
    A(f'ds_read_b32 v{vt}, v{vaddr}\ns_waitcnt lgkmcnt(0)')
    A(f'v_readlane_b32 s{sdst}, v{vt}, 0\nv_readlane_b32 s48, v{vt}, 1\ns_min_u32 s{sdst}, s{sdst}, s48\nv_readlane_b32 s48, v{vt}, 2\ns_min_u32 s{sdst}, s{sdst}, s48\nv_readlane_b32 s48, v{vt}, 3\ns_min_u32 s{sdst}, s{sdst}, s48')


def lds_min4(A, vaddr, off, vt, sdst):
    A(f'ds_read_b128 {vr(vt)}, v{vaddr} offset:{off}\ns_waitcnt lgkmcnt(0)')
    A(f'v_min3_u32 v{vt}, v{vt}, v{vt+1}, v{vt+2}\nv_min_u32 v{vt}, v{vt}, v{vt+3}\ns_nop 0\nv_readfirstlane_b32 s{sdst}, v{vt}')


def lds_wait(A, vaddr, off, vt, need, four=True, sdst=90, sleep=1):
    l0 = A.label('L_lw'); l1 = A.label('L_lwd')
    A('s_mov_b32 s96, 0')
    A(f'{l0}:')
    if four == 'free':
        lds_free(A, vaddr, vt, sdst)
    elif four:
        lds_min4(A, vaddr, off, vt, sdst)
    else:
        A(f'ds_read_b32 v{vt}, v{vaddr} offset:{off}\ns_waitcnt lgkmcnt(0)\nv_readfirstlane_b32 s{sdst}, v{vt}')
    A(f's_cmp_ge_i32 s{sdst}, {need}\ns_cbranch_scc1 {l1}')
    A(f's_sleep {sleep}\ns_add_u32 s96, s96, 1\ns_cmp_lt_u32 s96, {SPIN_MAX*16}\ns_cbranch_scc1 {l0}')
    A(f'{l1}:')


def mainloop(A, kv, tag):
    def upd_s():
        L = [f's_add_u32 s50, s50, {WSLOT}', f's_cmp_ge_u32 s50, {WBASE + NW*WSLOT}', f's_cselect_b32 s50, {WBASE}, s50']
        if not kv:
            L += ['s_add_u32 s52, s52, s53', 's_cmp_ge_u32 s52, s57', f's_cselect_b32 s52, {WBASE}, s52']
        return L
    def set_w():
        return [f'v_add_u32 v{15+t}, s50, v{10+t}' for t in range(4)] + [f'v_add_u32 v19, s{50 if kv else 52}, v14']
    def upd_blk():
        return [f's_add_u32 s51, s51, {XSLOT}', f's_cmp_ge_u32 s51, {NX*XSLOT}', 's_cselect_b32 s51, 0, s51']
    def set_x(par):
        return [f'v_add_u32 v{4+par}, s51, v{20+par}']
    def rdW(p, t, h):
        b = WF + 20 * p + 4 * t + 2 * h
        return f'ds_read_b64_tr_b16 {vr(b,2)}, v{15+t} offset:{512*h}'
    def rdX(i, par):
        return f'ds_read_b128 {vr(XF+4*i)}, v{4+par} offset:{2048*i}'
    def mfma(i, t, p):
        w = vr(WF + 20 * p + 4 * t); x = vr(XF + 4 * i); d = vr(acc(i, t))
        A(f'v_mfma_f32_16x16x32_bf16 {d}, {x}, {w}, {d}' if kv else f'v_mfma_f32_16x16x32_bf16 {d}, {w}, {x}, {d}')
    A(f's_mov_b32 s50, {WBASE}\ns_mov_b32 s51, 0\ns_mov_b32 s54, 0')
    if not kv:
        A(f's_cmp_lg_u32 s55, 0\ns_cselect_b32 s52, {GWBASE}, s50\ns_movk_i32 s53, {WSLOT}\ns_cselect_b32 s53, {GWS}, s53\ns_mov_b32 s57, {WBASE + NW*WSLOT}\ns_cselect_b32 s57, -1, s57')
    for l in set_w() + set_x(0) + set_x(1):
        A(l)
    A(f'v_mov_b32 v3, {CT}\ns_lshl_b32 s48, s21, 8\ns_add_u32 m0, s48, {CT+256}\nv_mov_b32 v0, {OOB}\nv_writelane_b32 v0, 0, 0')
    table_srd(A, 44)
    stamp(A, 1)
    lds_wait(A, 3, 0, 6, 1, sdst=59)
    A('s_waitcnt vmcnt(0)')
    A(f's_setprio {PRIO}')
    stamp(A, 2)
    for t in range(5):
        A(rdW(0, t, 0)); A(rdW(0, t, 1))
    A('s_waitcnt lgkmcnt(6)')
    for i in range(8):
        A(rdX(i, 0))
    for l in upd_s() + set_w():
        A(l)
    A('s_mov_b32 s58, 2\ns_cmp_ge_i32 s59, s58')
    A(f's_cbranch_scc0 L_{tag}_slow0')
    A('.p2align 3')
    for p in range(2):
        gap = {k: [] for k in range(40)}
        for i in range(5):
            gap[5*i].append(rdW(1 - p, i, 0)); gap[5*i + 2].append(rdW(1 - p, i, 1))
        for i in range(8):
            gap[5*i + 4].append(rdX(i, 1 - p))
        gap[9].append('s_waitcnt lgkmcnt(6)')
        gap[1].append('s_add_u32 s54, s54, 4')
        gap[11].append('buffer_load_dword v0, s[44:47], s54 offen lds')
        gap[6].append('s_add_u32 s58, s58, 1'); gap[8].append('s_min_u32 s58, s58, 20')
        sal = upd_s() + (upd_blk() if p == 0 else [])
        for k in (13, 13, 16, 16, 18, 18, 21, 21, 23):
            if sal: gap[k].append(sal.pop(0))
        assert not sal
        gap[23].append('ds_read_b128 v[6:9], v3')
        for k, l in zip((25, 26, 27, 28, 30, 31), set_w() + set_x(p)):
            gap[k].append(l)
        gap[32].append('s_waitcnt lgkmcnt(2)'); gap[32].append('v_min3_u32 v6, v6, v7, v8')
        gap[33].append('v_min_u32 v6, v6, v9')
        gap[35].append('v_readfirstlane_b32 s59, v6')
        if p == 1:
            gap[36].append('s_cmp_lt_u32 s54, 80'); gap[37].append(f's_cbranch_scc0 L_{tag}_last')
        gap[38].append('s_cmp_ge_i32 s59, s58' if 'nowait' not in EXP else 's_cmp_eq_u32 s59, s59')
        if 'novalu' in EXP:
            for k in gap: gap[k] = [l for l in gap[k] if not l.startswith('v_')]
        if 'nods' in EXP:
            for k in gap: gap[k] = [l for l in gap[k] if not l.startswith('ds_')]
        if 'nosalu' in EXP:
            for k in gap: gap[k] = [l for l in gap[k] if not (l.startswith('s_') and 13 <= k <= 23)]
        if 'noctl' in EXP:
            for k in gap: gap[k] = [l for l in gap[k] if not (' v6' in l or 'v[6:9]' in l)]
        if 'nowr' in EXP:
            for k in gap: gap[k] = [l for l in gap[k] if not l.startswith('ds_write')]
        if 'now32' in EXP:
            gap[32] = [l for l in gap[32] if not l.startswith('s_waitcnt')]
        if 'nopub' in EXP: pass
        if p == 0:
            A(f'L_{tag}_go0:')
        else:
            A(f's_cbranch_scc0 L_{tag}_slow1')
            A(f'L_{tag}_go1:')
        A('s_waitcnt lgkmcnt(2)')
        for i in range(8):
            for t in range(5):
                mfma(i, t, p)
                for l in gap[5*i + t]: A(l)
    A(f's_cbranch_scc1 L_{tag}_go0')
    for p in range(2):
        A(f'L_{tag}_slow{p}:')
        tbeg(A)
        lds_wait(A, 3, 0, 6, 's58', sdst=59)
        tend(A, 100)
        if STAMP: A('s_add_u32 s101, s101, 1')
        A(f's_branch L_{tag}_go{p}')
    A(f'L_{tag}_last:')
    mfma(7, 3, 1); mfma(7, 4, 1)
    A('s_waitcnt lgkmcnt(0)')
    stamp(A, 3)
    A('s_nop 6')
    if 'p1' in EXP: finish(A)


def phi_q(A, b, t, dst=None):
    dst = b if dst is None else dst
    A(f'v_pk_mul_f32 {vr(t,2)}, {vr(b,2)}, s[60:61]\nv_pk_mul_f32 {vr(t+2,2)}, {vr(b+2,2)}, s[60:61]')
    for j in range(4):
        A(f'v_exp_f32 v{t+j}, v{t+j} clamp')
    for j in range(4):
        A(f'v_max_f32 v{dst+j}, s66, v{b+j}')
    A(f'v_pk_add_f32 {vr(dst,2)}, {vr(dst,2)}, {vr(t,2)}\nv_pk_add_f32 {vr(dst+2,2)}, {vr(dst+2,2)}, {vr(t+2,2)}')


def gen_compute(A):
    A('L_compute:')
    if CODEPF:
        A('s_cmp_lg_u32 s21, 0\ns_cbranch_scc1 L_nocpf')
        A(f's_getpc_b64 s[44:45]\nL_pc:\ns_sub_u32 s44, s44, L_pc-{NAME}_kernel\ns_subb_u32 s45, s45, 0\ns_mov_b32 s46, L_end-{NAME}_kernel\ns_mov_b32 s47, 0x20000')
        A('s_lshr_b32 s48, s2, 3\ns_lshl_b32 s48, s48, 11\nv_lshlrev_b32 v3, 7, v2\ns_mov_b64 exec, 0xffff')
        A('buffer_load_dword v95, v3, s[44:47], s48 offen\ns_mov_b64 exec, -1')
        A('L_nocpf:')
    A('s_barrier')
    A.c('compute wave setup: v3=q v4=r v5=c v6=f<<5 v7=rowpart')
    for r in range(ACC, 256, 2):
        A(f'v_mov_b64 {vr(r,2)}, 0')
    A('v_lshrrev_b32 v3, 4, v2\nv_bfe_u32 v4, v2, 2, 2\nv_and_b32 v5, 3, v2')
    A('v_lshrrev_b32 v6, 1, v4\nv_and_b32 v8, 1, v3\nv_lshl_add_u32 v6, v8, 1, v6\nv_lshlrev_b32 v6, 5, v6')
    A('v_mul_u32_u24 v7, 5120, v3\nv_lshl_add_u32 v7, v4, 7, v7')
    A('v_and_b32 v8, 15, v2\nv_lshrrev_b32 v9, 1, v8\nv_xor_b32 v9, v9, v3\nv_lshlrev_b32 v9, 4, v9\nv_lshl_add_u32 v20, v8, 7, v9\nv_xor_b32 v21, 64, v20')
    A(f's_mov_b32 s60, {LOG2E}\ns_mov_b32 s61, {LOG2E}\ns_mov_b32 s62, {NLOG2E}\ns_mov_b32 s63, {NLOG2E}')
    A(f's_mov_b32 s64, 1.0\ns_mov_b32 s65, 1.0\ns_mov_b32 s66, {EPS}')
    A('s_waitcnt lgkmcnt(0)')
    srd(A, 40, 16, WS_USED)
    if PRETOUCH:
        A('s_cmp_lg_u32 s21, 1\ns_cbranch_scc1 L_nopt')
        A('s_load_dwordx2 s[28:29], s[0:1], 64\ns_load_dwordx2 s[32:33], s[0:1], 16\ns_mov_b32 s30, 2621440\ns_mov_b32 s31, 0x20000\ns_mov_b32 s34, 819200\ns_mov_b32 s35, 0x20000')
        srd(A, 36, 12, 1966080)
        A('v_lshlrev_b32 v8, 18, v2\nv_lshlrev_b32 v9, 16, v2')
        A('buffer_load_dword v92, v8, s[40:43], 0 offen\nbuffer_load_dword v93, v9, s[36:39], 0 offen\ns_waitcnt lgkmcnt(0)')
        A('buffer_load_dword v94, v9, s[28:31], 0 offen\nbuffer_load_dword v95, v9, s[32:35], 0 offen')
        A('L_nopt:')
    A('s_cmp_eq_u32 s20, 0\ns_cbranch_scc1 L_kv')

    A('s_lshr_b32 s48, s21, 1\ns_lshl_b32 s48, s48, 10\ns_and_b32 s49, s21, 1\ns_lshl_b32 s49, s49, 3')
    A('v_add_u32 v8, s49, v5\nv_lshlrev_b32 v8, 3, v8\nv_xor_b32 v9, v8, v6\nv_add3_u32 v10, v9, v7, s48')
    A('v_add_u32 v8, 32, v8\nv_xor_b32 v9, v8, v6\nv_add3_u32 v11, v9, v7, s48')
    A('v_add_u32 v12, 2048, v10\nv_add_u32 v13, 2048, v11')
    A('s_lshl_b32 s49, s21, 2\nv_add_u32 v8, s49, v5\nv_lshlrev_b32 v8, 3, v8\nv_xor_b32 v9, v8, v6\nv_add_u32 v14, v9, v7\nv_add_u32 v14, 4096, v14')
    A('s_cmp_eq_u32 s55, 0\ns_cbranch_scc1 L_g_notgc')
    A('v_lshlrev_b32 v14, 5, v3\nv_lshl_add_u32 v14, v4, 3, v14')
    A('L_g_notgc:')
    A('v_lshlrev_b32 v22, 4, v2')
    A(f's_mul_i32 s72, s18, {2*68*4096}\ns_add_u32 s73, s72, {68*4096}')
    A('s_lshl_b32 s48, s22, 2\ns_add_u32 s48, s48, s21\ns_lshl_b32 s49, s48, 12\ns_add_u32 s70, s72, s49\ns_add_u32 s71, s73, s49')
    A(f's_lshl_b32 s74, s18, {FSH}\ns_lshl_b32 s49, s48, 3\ns_add_u32 s74, s74, s49\ns_add_u32 s74, s74, {FG_OFF}')
    A('s_lshl_b32 s48, s48, 2\nv_add_u32 v5, s48, v3')
    A('v_mul_u32_u24 v6, 6554, v5\nv_lshrrev_b32 v6, 16, v6\nv_mul_u32_u24 v7, 10, v6\nv_sub_u32 v7, v5, v7')
    A('v_lshrrev_b32 v8, 2, v6\nv_and_b32 v6, 3, v6')
    A('v_mul_u32_u24 v8, 5, v8\nv_lshrrev_b32 v9, 1, v7\nv_add3_u32 v8, v8, v9, 48\nv_lshlrev_b32 v8, 12, v8')
    A('v_and_b32 v9, 15, v2\nv_lshl_add_u32 v9, v6, 4, v9\nv_lshl_add_u32 v8, v9, 4, v8')
    A('v_and_b32 v7, 1, v7\nv_lshl_add_u32 v23, v7, 10, v8')
    mainloop(A, False, 'g')
    A.c('h = u * sigmoid(g)')
    for i in range(8):
        g = acc(i, 0); u = acc(i, 2)
        for j in range(4):
            A(f'v_pk_mul_f32 {vr(g+2*j,2)}, {vr(g+2*j,2)}, s[62:63]')
        for j in range(8):
            A(f'v_exp_f32 v{g+j}, v{g+j}')
        for j in range(4):
            A(f'v_pk_add_f32 {vr(g+2*j,2)}, {vr(g+2*j,2)}, s[64:65]')
        for j in range(8):
            A(f'v_rcp_f32 v{g+j}, v{g+j}')
        for j in range(4):
            A(f'v_pk_mul_f32 {vr(u+2*j,2)}, {vr(u+2*j,2)}, {vr(g+2*j,2)}')
        for j in range(4):
            A(f'v_cvt_pk_bf16_f32 v{g+j}, v{u+2*j}, v{u+2*j+1}')
        A(f'buffer_store_dwordx4 {vr(g)}, v22, s[40:43], s{70 + (i>>2)} offen offset:{(i&3)*1024} {LS}')
    A('s_cmp_lg_u32 s91, 0\ns_cbranch_scc1 L_gc_epi')
    A.c('pq = phi(q)')
    for i in range(0, 8, 2):
        a0 = acc(i, 4); b0 = acc(i + 1, 4)
        phi_q(A, a0, 24 + 8 * ((i >> 1) & 1))
        phi_q(A, b0, 28 + 8 * ((i >> 1) & 1))
        A(f'v_cvt_pk_bf16_f32 v{a0}, v{a0}, v{a0+1}\nv_cvt_pk_bf16_f32 v{a0+1}, v{a0+2}, v{a0+3}')
        A(f'v_cvt_pk_bf16_f32 v{a0+2}, v{b0}, v{b0+1}\nv_cvt_pk_bf16_f32 v{a0+3}, v{b0+2}, v{b0+3}')
        A('s_nop 1')
        A(f'v_permlane16_swap_b32 v{a0}, v{a0+2}\nv_permlane16_swap_b32 v{a0+1}, v{a0+3}')
        A(f'buffer_store_dwordx4 {vr(a0)}, v23, s[40:43], s{72 + (i>>2)} offen offset:{(i&3)*1024} {LS}')
    A('s_branch L_p1_done')
    A('L_gc_epi:')
    A.c('gate g = sigmoid(logit); stored by gtype 10, wave 0')
    A('v_and_b32 v8, 15, v2\nv_lshlrev_b32 v8, 2, v8')
    A(f's_lshl_b32 s48, s18, 9\ns_add_u32 s48, s48, {G_OFF}\ns_lshl_b32 s49, s22, 2\ns_add_u32 s49, s49, s21')
    A(f's_cmp_eq_u32 s49, 40\ns_cselect_b32 s48, s48, {OOB}')
    for i in range(8):
        A(f'v_mul_f32 v{acc(i,4)}, s62, v{acc(i,4)}')
    for i in range(8):
        A(f'v_exp_f32 v{acc(i,4)}, v{acc(i,4)}')
    for i in range(8):
        A(f'v_add_f32 v{acc(i,4)}, 1.0, v{acc(i,4)}')
    for i in range(8):
        A(f'v_rcp_f32 v{acc(i,4)}, v{acc(i,4)}')
    A('s_nop 0\ns_mov_b64 exec, 0xffff')
    for i in range(8):
        A(f'buffer_store_dword v{acc(i,4)}, v8, s[40:43], s48 offen offset:{64*i} {LS}')
    A('s_mov_b64 exec, -1')
    A('s_branch L_p1_done')

    A('L_kv:')
    A('s_mul_i32 s48, s21, 10\ns_and_b32 s49, s19, 1\ns_lshl_b32 s49, s49, 3\ns_sub_u32 s48, s48, s49')
    def kvaddr(dst, u, isv):
        A(f'v_add_u32 v9, 40, {u}\nv_cmp_gt_i32 vcc, 0, {u}\ns_nop 1\nv_cndmask_b32 v8, {u}, v9, vcc')
        A(f'v_lshrrev_b32 v9, 4, v8\nv_lshl_add_u32 v9, {isv}, 1, v9\nv_and_b32 v23, 15, v8')
        A(f'v_lshl_add_u32 v22, {isv}, 3, v23')
        A('v_cmp_gt_u32 vcc, 32, v8\ns_nop 1\nv_cndmask_b32 v9, 4, v9, vcc\nv_cndmask_b32 v23, v22, v23, vcc')
        A(f'v_lshlrev_b32 v23, 3, v23\nv_xor_b32 v23, v23, v6\nv_lshlrev_b32 v22, 4, {isv}\nv_xor_b32 v23, v23, v22')
        A(f'v_lshl_add_u32 v23, v9, 10, v23\nv_add_u32 v{dst}, v23, v7')
    A('v_mov_b32 v16, 0\nv_mov_b32 v17, 1\nv_add_u32 v15, s48, v5')
    kvaddr(10, 'v15', 'v16'); kvaddr(12, 'v15', 'v17')
    A('v_add_u32 v15, 5, v15')
    kvaddr(11, 'v15', 'v16'); kvaddr(13, 'v15', 'v17')
    A('v_and_b32 v15, 1, v5\nv_mul_u32_u24 v15, 5, v15\nv_add3_u32 v15, v15, s48, 4\nv_lshrrev_b32 v16, 1, v5')
    kvaddr(14, 'v15', 'v16')
    A('v_lshlrev_b32 v22, 4, v2\nv_lshlrev_b32 v23, 4, v3')
    A('v_and_b32 v8, 15, v2\nv_cmp_gt_u32 s[68:69], 8, v8')
    A(f's_lshl_b32 s48, s19, 2\ns_add_u32 s48, s48, s21\ns_lshl_b32 s48, s48, 4\ns_add_u32 s48, s48, s18\ns_mul_i32 s70, s48, 10240\ns_add_u32 s70, s70, {KVP_OFF}')
    A('s_add_u32 s71, s70, 4096\ns_add_u32 s72, s70, 8192')
    prods = [(0, 0), (1, 1), (2, 0), (2, 1), (0, 2), (1, 2), (2, 2)]
    masks = {(0,0): None, (1,1): None, (2,0): (0, 0xffff), (2,1): (0, 0xffff0000), (0,2): (0x000f000f, 0x000f000f),
             (1,2): (0x00f000f0, 0x00f000f0), (2,2): (0, 0x00f0000f)}
    def kv_stores(reg):
        for n, (tv, tk) in enumerate(prods):
            slot = tv * 3 + tk
            if masks[(tv, tk)]:
                A(f's_mov_b32 exec_lo, {hex(masks[(tv,tk)][0])}\ns_mov_b32 exec_hi, {hex(masks[(tv,tk)][1])}')
            A(f'buffer_store_dwordx4 {vr(reg(n))}, v22, s[40:43], s{70 + (slot>>2)} offen offset:{(slot&3)*1024} sc1')
        A('s_mov_b32 exec_lo, 0x00010001\ns_mov_b32 exec_hi, 0x00010001')
        for tk in range(3):
            A(f'buffer_store_dwordx4 {vr(reg(7+tk))}, v23, s[40:43], s72 offen offset:{1024 + 64*tk} sc1')
        A('s_mov_b64 exec, -1')
    mainloop(A, True, 'kv')
    A.c('KV epilogue')
    A('v_mov_b32 v12, 0x3f803f80\nv_mov_b32 v13, v12\nv_mov_b32 v14, v12\nv_mov_b32 v15, v12')
    KT = {0: 0, 1: 1, 2: 4}; VT = {0: 2, 1: 3, 2: 4}
    PR = 24
    pend = []
    def flush(k):
        for _ in range(k):
            if pend: A(pend.pop(0))
    for kk in range(4):
        n = 0
        for i in (2 * kk, 2 * kk + 1):
            for t in (0, 1):
                phi_q(A, acc(i, t), 64 + 4 * (n % 4)); n += 1
                flush(2)
            b = acc(i, 4); s = 80 + 4 * (i & 1)
            phi_q(A, b, 64 + 4 * (n % 4), s); n += 1
            for j in range(4):
                A(f'v_cndmask_b32 v{b+j}, v{b+j}, v{s+j}, s[68:69]')
            flush(1)
        assert not pend
        for t in range(5):
            a = acc(2 * kk, t); b = acc(2 * kk + 1, t)
            A(f'v_cvt_pk_bf16_f32 v{a}, v{a}, v{a+1}\nv_cvt_pk_bf16_f32 v{a+1}, v{a+2}, v{a+3}')
            A(f'v_cvt_pk_bf16_f32 v{a+2}, v{b}, v{b+1}\nv_cvt_pk_bf16_f32 v{a+3}, v{b+2}, v{b+3}')
        for n, (tv, tk) in enumerate(prods):
            d = vr(PR + 4 * n)
            pend.append(f'v_mfma_f32_16x16x32_bf16 {d}, {vr(acc(2*kk,VT[tv]))}, {vr(acc(2*kk,KT[tk]))}, {d if kk else 0}')
        for tk in range(3):
            d = vr(52 + 4 * tk)
            pend.append(f'v_mfma_f32_16x16x32_bf16 {d}, {vr(acc(2*kk,KT[tk]))}, v[12:15], {d if kk else 0}')
    A('s_nop 1')
    flush(10)
    get_epoch(A, 3, 6)
    A('s_and_b32 s76, s88, 0xfff\ns_bfe_u32 s77, s88, 0xc000c\ns_lshr_b64 s[78:79], s[88:89], 24\ns_xor_b32 s78, s78, s88\ns_bfe_u32 s79, s78, 0xc000c\ns_and_b32 s78, s78, 0xfff')
    A('v_mov_b32 v6, 0xfffff000')
    for r in range(PR, PR + 40):
        A(f'v_and_or_b32 v{r}, v{r}, v6, s{76 + (r & 3)}')
    kv_stores(lambda n: PR + 4 * n)
    A('L_p1_done:')
    stamp(A, 4)
    gen_awave(A)


def p2_ids(A):
    A('s_and_b32 s18, s2, 7\ns_lshl_b32 s18, s18, 2\ns_lshr_b32 s48, s2, 6\ns_add_u32 s18, s18, s48')
    A('s_bfe_u32 s19, s2, 0x30003')


def get_epoch(A, vct, vt):
    l0 = A.label('L_ep')
    A('s_mov_b32 s96, 0')
    A(f'{l0}:')
    A(f'ds_read_b64 {vr(vt,2)}, v{vct} offset:32\ns_waitcnt lgkmcnt(0)\nv_readfirstlane_b32 s88, v{vt}\nv_readfirstlane_b32 s89, v{vt+1}')
    A(f's_add_u32 s96, s96, 1\ns_cmp_eq_u32 s88, 0\ns_cselect_b32 s48, s96, -1\ns_cmp_lt_u32 s48, {SPIN_MAX*16}\ns_cbranch_scc1 {l0}')


def phase_a(A):
    WOI = 0; HS = 0; HSTR = 5120
    A('s_load_dwordx2 s[24:25], s[0:1], 16\ns_mov_b32 s26, 819200\ns_mov_b32 s27, 0x20000')
    A('v_lshrrev_b32 v3, 4, v2\nv_and_b32 v4, 15, v2')
    A('s_mul_i32 s70, s67, 5120')
    A(f'v_and_b32 v9, 3, v2\nv_lshlrev_b32 v9, 8, v9\nv_add_u32 v9, {CT+256}, v9')
    lds_wait(A, 9, 0, 8, 20, four='free', sleep=LSLEEP)
    A('s_lshr_b32 s50, s18, 1\ns_and_b32 s51, s18, 1')
    A('s_mul_i32 s52, s18, 25600\ns_mul_i32 s48, s19, 160\ns_add_u32 s52, s52, s48')
    for i in range(5):
        A(f'v_add_u32 v12, {64*i}, v2\nv_mul_u32_u24 v13, 6554, v12\nv_lshrrev_b32 v13, 16, v13\nv_mul_u32_u24 v14, 10, v13\nv_sub_u32 v14, v12, v14')
        A(f'v_mul_u32_u24 v13, 1280, v13\nv_lshl_add_u32 v13, v14, 4, v13\ns_add_u32 m0, s70, {1024*i}\ns_nop 0')
        A('buffer_load_dwordx4 v13, s[24:27], s52 offen lds')
    A('s_lshl_b32 s48, s51, 12\nv_add_u32 v10, s48, v5')
    A('s_mul_i32 s48, s51, 1280\ns_add_u32 s48, s48, 6656\nv_add_u32 v11, s48, v5')
    A('v_mul_u32_u24 v20, 96, v2\nv_add_u32 v20, 64, v20')
    A('v_subrev_u32 v12, 16, v2\nv_mul_u32_u24 v13, 13108, v12\nv_lshrrev_b32 v13, 16, v13\nv_and_b32 v13, 3, v13\nv_mul_u32_u24 v14, 5, v13\nv_sub_u32 v14, v12, v14')
    A('s_mul_i32 s48, s51, 3136\ns_add_u32 s48, s48, 2048\nv_lshlrev_b32 v15, 8, v14\nv_lshl_add_u32 v15, v13, 4, v15\nv_add_u32 v15, s48, v15')
    A('s_mul_i32 s48, s51, 320\ns_add_u32 s48, s48, 8704\nv_lshlrev_b32 v16, 4, v13\nv_add_u32 v16, s48, v16')
    A('v_cmp_eq_u32 vcc, 4, v14\ns_nop 1\nv_cndmask_b32 v15, v15, v16, vcc')
    A('v_mul_u32_u24 v16, 96, v13\nv_lshl_add_u32 v16, v14, 4, v16\nv_add_u32 v16, 1536, v16')
    A('v_cmp_lt_u32 vcc, 15, v2\ns_nop 1\nv_cndmask_b32 v11, v11, v15, vcc\nv_cndmask_b32 v20, v20, v16, vcc')
    A('v_subrev_u32 v12, 36, v2\ns_lshl_b32 s48, s51, 6\ns_add_u32 s48, s48, 9216\nv_lshlrev_b32 v16, 4, v12\nv_add_u32 v15, s48, v16\nv_add_u32 v16, 3104, v16')
    A('v_cmp_lt_u32 vcc, 35, v2\ns_nop 1\nv_cndmask_b32 v11, v11, v15, vcc\nv_cndmask_b32 v20, v20, v16, vcc')
    A('s_lshl_b32 s48, s51, 4\ns_add_u32 s48, s48, 9344\nv_writelane_b32 v11, s48, 40')
    A(f'v_mov_b32 v15, {OOB}\nv_cmp_lt_u32 vcc, 40, v2\ns_nop 1\nv_cndmask_b32 v11, v11, v15, vcc')
    A('v_mul_u32_u24 v21, 96, v4\nv_lshl_add_u32 v19, v3, 4, v21')
    A('v_lshl_add_u32 v12, v3, 5, v21\nv_lshlrev_b32 v13, 3, v4')
    A('v_bfe_u32 v14, v2, 2, 2\nv_lshl_add_u32 v14, v3, 3, v14\nv_mul_u32_u24 v14, 160, v14\nv_and_b32 v15, 3, v2\nv_lshl_add_u32 v14, v15, 3, v14\nv_add_u32 v14, s70, v14')
    A(f'v_add_u32 v19, s70, v19\nv_add_u32 v20, s70, v20\ns_mul_i32 s48, s51, 5120\nv_add_u32 v12, s48, v12\nv_add_u32 v13, s48, v13')
    A('v_cmp_gt_u32 s[60:61], 3, v3\nv_cmp_gt_u32 s[62:63], 2, v3\nv_cmp_gt_u32 s[64:65], 41, v2')
    A(f's_mul_i32 s48, s51, 5\ns_lshr_b32 s49, s67, 1\ns_mul_i32 s49, s49, {RPK - 40960}\ns_add_u32 s49, s49, 40960')
    for mt in range(2):
        A(f'v_add3_u32 v15, v3, s48, {4*mt}\nv_lshrrev_b32 v16, 1, v15\nv_mul_u32_u24 v16, 1280, v16\nv_and_b32 v15, 1, v15\nv_lshl_add_u32 v16, v15, 3, v16')
        A(f'v_lshl_add_u32 v16, v4, 4, v16\nv_add_u32 v{17+mt}, s49, v16')
    A('s_mul_i32 s48, s51, 40\ns_add_u32 s48, s48, s49\ns_add_u32 s48, s48, 6400\nv_lshlrev_b32 v22, 2, v2\nv_add_u32 v22, s48, v22')
    A('s_mul_i32 s48, s51, 3328\ns_add_u32 s48, s48, s49\nv_add_u32 v21, s48, v5\nv_lshlrev_b32 v15, 10, v3\nv_lshl_add_u32 v15, v4, 4, v15')
    A(f's_lshr_b32 s48, s18, 3\ns_mul_i32 s48, s48, 5\ns_mul_i32 s49, s19, 20\ns_add_u32 s48, s48, s49\ns_mul_i32 s48, s48, 5120\ns_and_b32 s49, s50, 3\ns_lshl_b32 s49, s49, 8\ns_add_u32 s48, s48, s49')
    A(f's_mul_i32 s49, s51, 13312\ns_add_u32 s48, s48, s49\ns_add_u32 s55, s48, {M_OFF}\ns_add_u32 s56, s55, 4096\ns_add_u32 s57, s55, 8192\ns_add_u32 s48, s55, 12288')
    A(f's_lshl_b32 s54, s19, 11\ns_lshl_b32 s49, s50, 7\ns_add_u32 s54, s54, s49\ns_add_u32 s54, s54, {ZB_OFF}')
    A('s_cmp_eq_u32 s51, 0\ns_cselect_b32 s54, s48, s54\ns_cselect_b32 s58, 0xffff, 31\ns_mov_b32 s59, 0')
    A('s_and_b32 s76, s88, 0xfff\ns_bfe_u32 s77, s88, 0xc000c\ns_lshr_b64 s[78:79], s[88:89], 24\ns_xor_b32 s78, s78, s88\ns_bfe_u32 s79, s78, 0xc000c\ns_and_b32 s78, s78, 0xfff')
    A(f's_mul_i32 s52, s50, {16*10240}\ns_lshr_b32 s49, s67, 1\ns_mul_i32 s49, s49, {8*10240}\ns_add_u32 s52, s52, s49\ns_add_u32 s52, s52, {KVP_OFF}')
    A(f's_lshl_b32 s48, s67, 2\nv_add_u32 v23, s48, v0\nv_mov_b32 v244, 1\nv_mov_b32 v245, 2\nv_mov_b32 v246, 3')
    A('s_waitcnt vmcnt(0)')
    for t in range(5):
        A(f'ds_read_b64_tr_b16 {vr(224+4*t,2)}, v14 offset:{32*t}\nds_read_b64_tr_b16 {vr(226+4*t,2)}, v14 offset:{32*t + 640}')
    stamp(A, 10)
    lds_wait(A, 0, 72, 248, 1, four=False, sleep=2)
    lds_wait(A, 0, 48, 248, 1, sleep=2)
    A(f's_sleep {GDELAY}')
    stamp(A, 11)
    A('s_mov_b32 s96, 0')
    A('L_pa_gather:')
    for p in range(8):
        A(f's_add_u32 s53, s52, {10240*p}')
        for ldi in range(2):
            A(f'buffer_load_dwordx4 {vr(24 + 8*p + 4*ldi)}, v{10+ldi}, s[40:43], s53 offen sc1')
    for p in range(8):
        A(f's_waitcnt vmcnt({2*(7-p)})')
        for r in range(24 + 8 * p, 32 + 8 * p):
            A(f'v_xor_b32 v{r}, s{76 + (r & 3)}, v{r}')
        for ldi in range(2):
            r = 24 + 8 * p + 4 * ldi; d = 8 + ldi
            if p == 0:
                A(f'v_or3_b32 v{d}, v{r}, v{r+1}, v{r+2}\nv_or_b32 v{d}, v{d}, v{r+3}')
            else:
                A(f'v_or3_b32 v{d}, v{d}, v{r}, v{r+1}\nv_or3_b32 v{d}, v{d}, v{r+2}, v{r+3}')
        if p:
            for j in range(0, 8, 2):
                A(f'v_pk_add_f32 {vr(24+j,2)}, {vr(24+j,2)}, {vr(24+8*p+j,2)}')
    A('v_cndmask_b32 v9, 0, v9, s[64:65]\nv_or_b32 v8, v8, v9\nv_and_b32 v8, 0xfff, v8\nv_cmp_ne_u32 vcc, 0, v8')
    A('s_cbranch_vccz L_pa_got')
    A(f's_sleep {PSLEEP}\ns_add_u32 s96, s96, 1\ns_cmp_lt_u32 s96, {SPIN_MAX}\ns_cbranch_scc1 L_pa_gather')
    A('L_pa_got:')
    stamp(A, 12)
    A('ds_write_b128 v19, v[24:27]\nds_write_b128 v20, v[28:31]')
    A('s_mov_b64 exec, 1\nds_write_b32 v23, v244 offset:80\ns_mov_b64 exec, -1')
    lds_wait(A, 0, 80, 248, 1, sleep=0)
    stamp(A, 13)
    for w in range(2):
        for mt in range(2):
            A(f'ds_read_b128 {vr(24+20*w+8*mt)}, v12 offset:{2*w*HSTR + 1536*mt}\nds_read_b128 {vr(28+20*w+8*mt)}, v12 offset:{2*w*HSTR + 1536*mt + 16}')
        A(f'ds_read_b64 {vr(40+20*w,2)}, v13 offset:{2*w*HSTR + 3104}')
    A('s_waitcnt lgkmcnt(0)')
    for j in range(0, 18, 2):
        A(f'v_pk_add_f32 {vr(24+j,2)}, {vr(24+j,2)}, {vr(44+j,2)}')
    for mt in range(2):
        b = 24 + 8 * mt
        for j in range(4):
            A(f'v_cvt_pk_bf16_f32 v{b+j}, v{b+2*j}, v{b+2*j+1}')
        for j in range(4):
            A(f'v_cndmask_b32 v{b+j}, 0, v{b+j}, {"s[60:61]" if j < 2 else "s[62:63]"}')
    A('v_cvt_pk_bf16_f32 v40, v40, v41\ns_nop 0')
    for mt in range(2):
        for t in range(5):
            A(f'v_mfma_f32_16x16x32_bf16 {vr(64+20*mt+4*t)}, {vr(24+8*mt)}, {vr(224+4*t)}, 0')
    A('s_mov_b64 exec, 0x3ff\nds_write_b32 v22, v40\ns_mov_b64 exec, -1\ns_nop 0')
    for mt in range(2):
        if mt == 1: A('s_mov_b64 exec, 0xffff')
        for t in range(5):
            b = 64 + 20 * mt + 4 * t
            A(f'v_cvt_pk_bf16_f32 v{b}, v{b}, v{b+1}\nv_cvt_pk_bf16_f32 v{b+1}, v{b+2}, v{b+3}')
            A(f'ds_write_b64 v{17+mt}, {vr(b,2)} offset:{256*t}')
    A('s_mov_b64 exec, 1\nds_write_b32 v23, v245 offset:80\ns_mov_b64 exec, -1')
    lds_wait(A, 0, 80, 248, 2, sleep=0)
    for i in range(4):
        A(f'ds_read_b128 {vr(24+4*i)}, v21 offset:{1024*i}')
    for i in range(3):
        A(f's_waitcnt lgkmcnt({3-i})\nbuffer_store_dwordx4 {vr(24+4*i)}, v15, s[40:43], s{55+i} offen sc1')
    A('s_waitcnt lgkmcnt(0)\ns_mov_b64 exec, s[58:59]\nbuffer_store_dwordx4 v[36:39], v15, s[40:43], s54 offen sc1')
    stamp(A, 14)
    A('s_mov_b64 exec, 1\nds_write_b32 v23, v246 offset:80\ns_mov_b64 exec, -1')
    lds_wait(A, 0, 80, 248, 3, sleep=1)
    stamp(A, 15)


XCH = [0, 15360, 30720, WBASE + 4 * WSLOT]
def gen_awave(A):
    AC = 16; PQ = 96; MB = 176
    def a2(rt, t): return AC + 20 * rt + 4 * t
    def pq(kk, rt): return PQ + 16 * kk + 4 * rt
    def mb(kk, t): return MB + 20 * (kk % 3) + 4 * t
    A('s_load_dwordx2 s[8:9], s[0:1], 64')
    A(f'v_mov_b32 v0, {CT}')
    A('v_lshrrev_b32 v3, 4, v2\nv_and_b32 v4, 15, v2\nv_lshlrev_b32 v5, 4, v2\nv_lshlrev_b32 v6, 3, v2\nv_add_u32 v7, 4096, v5')
    A('s_cmp_eq_u32 s20, 0\ns_cbranch_scc1 L_a_sig')
    A('L_a_g:')
    get_epoch(A, 0, 8)
    set_flag(A, 74, 8)
    A('L_a_sig:')
    A(f'v_mov_b32 v8, 1\ns_lshl_b32 s48, s21, 2\nv_add_u32 v9, s48, v0\ns_mov_b64 exec, 1\nds_write_b32 v9, v8 offset:48\ns_mov_b64 exec, -1')
    stamp(A, 5)
    A('s_waitcnt lgkmcnt(0)')
    srd(A, 28, 8, 2621440)
    A('L_a_main:')
    A(f's_setprio {APRIO}')
    p2_ids(A)
    A(f's_lshr_b32 s48, s18, 1\ns_lshl_b32 s59, s48, {FSH}\ns_add_u32 s59, s59, {FG_OFF}')
    A('s_mul_i32 s48, s21, 5\ns_mul_i32 s54, s18, 68\ns_add_u32 s54, s54, s48\ns_add_u32 s54, s54, 48\ns_lshl_b32 s54, s54, 12')
    A(f's_mul_i32 s55, s19, 20\ns_add_u32 s55, s55, s48\ns_mul_i32 s55, s55, 5120\ns_add_u32 s55, s55, {M_OFF}')
    A(f's_lshl_b32 s53, s18, 8\ns_add_u32 s53, s53, {G_OFF}')
    A(f's_lshl_b32 s52, s19, 11\ns_lshl_b32 s49, s21, 9\ns_add_u32 s52, s52, s49\ns_add_u32 s52, s52, {ZB_OFF}')
    A(f's_lshl_b32 s58, s19, 11\ns_add_u32 s58, s58, {ZB_OFF}')
    A('v_lshlrev_b32 v14, 2, v4\nv_lshlrev_b32 v15, 7, v3')
    A('v_lshrrev_b32 v12, 2, v4\nv_cmp_eq_u32 s[60:61], v12, v3\nv_and_b32 v12, 1, v4\nv_cmp_eq_u32 s[62:63], 0, v12')
    A('s_and_b64 s[64:65], s[60:61], s[62:63]\ns_andn2_b64 s[66:67], s[60:61], s[62:63]')
    A(f's_mov_b32 s68, {EPS}\ns_mov_b32 s69, 0xffff0000')
    Q = []
    def ld(tag, txt):
        A(txt); Q.append(tag)
    def wait(tag):
        last = max(k for k, t in enumerate(Q) if t == tag)
        A(f's_waitcnt vmcnt({len(Q) - 1 - last})')
    def issueM(kk):
        A(f's_add_u32 s57, s55, {5120*kk}')
        for t in range(4):
            ld(('M', kk), f'buffer_load_dwordx4 {vr(mb(kk,t))}, v5, s[40:43], s57 offen offset:{1024*t} sc1')
        ld(('M', kk), f'buffer_load_dwordx4 {vr(mb(kk,4))}, v7, s[40:43], s57 offen sc1')
    ZR = 236
    def loadP():
        for kk in range(5):
            A(f's_add_u32 s56, s54, {4096*kk}')
            for rt in range(4):
                A(f'buffer_load_dwordx4 {vr(pq(kk,rt))}, v5, s[40:43], s56 offen offset:{1024*rt} {LL}')
        for rt in range(4):
            A(f'buffer_load_dword v{10+rt}, v14, s[40:43], s53 offen offset:{64*rt} {LL}')
    def loadZM():
        for kk in range(5):
            A(f'buffer_load_dwordx4 {vr(ZR+4*kk)}, v15, s[40:43], s52 offen offset:{16*kk} sc1')
        n = len(Q)
        issueM(0); issueM(1); issueM(2)
        del Q[n:]
    A('s_cmp_lg_u32 s21, 1\ns_cbranch_scc1 L_a_nopoll')
    A('s_cmp_lg_u32 s20, 0\ns_cbranch_scc1 L_a_zg' if 'ORACLE' not in EXP else 's_branch L_a_zg')
    lds_wait(A, 0, 80, 8, 3, sleep=4)
    A('s_sleep 12\ns_branch L_a_zg2')
    A('L_a_zg:')
    A(f's_sleep {MDELAY}')
    A('L_a_zg2:')
    lds_wait(A, 0, 72, 8, 1, four=False, sleep=2)
    A('v_lshrrev_b32 v8, 2, v2\nv_lshlrev_b32 v8, 7, v8\nv_and_b32 v9, 3, v2\nv_lshl_add_u32 v8, v9, 4, v8\ns_mov_b32 s96, 0')
    A('L_a_zpoll:')
    A('buffer_load_dwordx4 v[16:19], v8, s[40:43], s58 offen sc1\nbuffer_load_dwordx4 v[20:23], v8, s[40:43], s58 offen offset:16 sc1\ns_waitcnt vmcnt(0)')
    A('v_max3_u32 v16, v16, v18, v20\nv_max_u32 v16, v16, v22\nv_cmp_eq_u32 vcc, -1, v16')
    A('s_cbranch_vccz L_a_zok' if 'ORACLE' not in EXP else 's_branch L_a_zok')
    A(f's_sleep {MSLEEP}\ns_add_u32 s96, s96, 1\ns_cmp_lt_u32 s96, {SPIN_MAX}\ns_cbranch_scc1 L_a_zpoll')
    A('L_a_zok:')
    A('v_mov_b32 v8, 1\ns_mov_b64 exec, 1\nds_write_b32 v0, v8 offset:68\ns_mov_b64 exec, -1')
    A('L_a_nopoll:')
    if GPOLL == 'A':
        A('s_cmp_lg_u32 s21, 2\ns_cbranch_scc1 L_a_nopollg')
        A('s_cmp_lg_u32 s20, 0\ns_cbranch_scc1 L_a_gg' if 'ORACLE' not in EXP else 's_branch L_a_gg')
        lds_wait(A, 0, 80, 8, KVG, sleep=4)
        A('L_a_gg:')
        lds_wait(A, 0, 48, 8, 1, sleep=2)
        A(f's_sleep {GD}')
        poll(A, 59, 48, 8, 6)
        A('v_mov_b32 v8, 1\ns_mov_b64 exec, 1\nds_write_b32 v0, v8 offset:64\ns_mov_b64 exec, -1')
        A('L_a_nopollg:')
    A('s_mov_b32 s96, 0')
    A('L_a_wait2:')
    A('ds_read_b64 v[8:9], v0 offset:64\ns_waitcnt lgkmcnt(0)\nv_readfirstlane_b32 s48, v8\nv_readfirstlane_b32 s49, v9')
    A('s_cmp_lg_u32 s49, 0\ns_cbranch_scc1 L_a_mfirst\ns_cmp_lg_u32 s48, 0\ns_cbranch_scc1 L_a_gfirst')
    A(f's_sleep 2\ns_add_u32 s96, s96, 1\ns_cmp_lt_u32 s96, {SPIN_MAX*16}\ns_cbranch_scc1 L_a_wait2')
    A('L_a_gfirst:')
    stamp(A, 11)
    loadP()
    lds_wait(A, 0, 68, 8, 1, four=False, sleep=2)
    stamp(A, 10)
    loadZM()
    A('s_waitcnt vmcnt(15)')
    A('s_branch L_a_both')
    A('L_a_mfirst:')
    stamp(A, 10)
    loadZM()
    lds_wait(A, 0, 64, 8, 1, four=False, sleep=2)
    stamp(A, 11)
    loadP()
    A('s_waitcnt vmcnt(0)')
    A('L_a_both:')
    Q.extend([('M', 0)] * 5 + [('M', 1)] * 5 + [('M', 2)] * 5)
    for kk in range(5):
        for j in range(4):
            m = 's[66:67]' if (4 * kk + j) >= 10 else 's[64:65]'
            A(f'v_cndmask_b32 v{ZR+4*kk+j}, 0, v{ZR+4*kk+j}, {m}')
    den = [AC + 4 * rt for rt in range(4)]
    stamp(A, 17)
    A('s_nop 1')
    for kk in range(5):
        for rt in range(4):
            d = vr(den[rt])
            A(f'v_mfma_f32_16x16x32_bf16 {d}, {vr(ZR+4*kk)}, {vr(pq(kk,rt))}, {d if kk else 0}')
    A('s_nop 7')
    SC = ZR
    for rt in range(4):
        A(f'v_add_f32 v{den[rt]}, s68, v{den[rt]}\nv_add_f32 v{den[rt]+1}, s68, v{den[rt]+1}')
    for rt in range(4):
        A(f'v_rcp_f32 v{den[rt]}, v{den[rt]}\nv_rcp_f32 v{den[rt]+1}, v{den[rt]+1}')
    A('s_nop 0')
    for rt in range(4):
        A(f'v_mul_f32 v{SC+4*rt}, v{10+rt}, v{den[rt]}\nv_mul_f32 v{SC+4*rt+2}, v{10+rt}, v{den[rt]+1}')
    def norm_ops(kk):
        L = []
        for rt in range(4):
            for j in range(4):
                r = pq(kk, rt) + j
                sc = SC + 4 * rt + (2 if (4 * kk + j) >= 10 else 0)
                t0 = 252 + 2 * (j & 1)
                L += [f'v_lshlrev_b32 v{t0}, 16, v{r}', f'v_and_b32 v{t0+1}, s69, v{r}',
                      f'v_mul_f32 v{t0}, v{sc}, v{t0}', f'v_mul_f32 v{t0+1}, v{sc}, v{t0+1}', f'v_cvt_pk_bf16_f32 v{r}, v{t0}, v{t0+1}']
        return L
    for l in norm_ops(0): A(l)
    for kk in range(5):
        nxt = norm_ops(kk + 1) if kk < 4 else []
        wait(('M', kk))
        A('s_mov_b32 s96, 0')
        A(f'L_a_mchk{kk}:')
        m0 = mb(kk, 0)
        A(f'v_max3_u32 v8, v{m0}, v{m0+2}, v{m0+4}')
        for k in (3, 5, 7):
            A(f'v_max3_u32 v8, v8, v{m0+2*k}, v{m0+2*k+2}')
        A(f'v_max_u32 v8, v8, v{m0+18}\nv_cmp_eq_u32 vcc, -1, v8')
        if 'ORACLE' not in EXP: A(f's_cbranch_vccnz L_a_mre{kk}')
        A(f'L_a_mok{kk}:')
        for rt in range(4):
            for t in range(5):
                d = vr(a2(rt, t))
                A(f'v_mfma_f32_16x16x32_bf16 {d}, {vr(mb(kk,t))}, {vr(pq(kk,rt))}, {d if kk else 0}')
                for _ in range(4):
                    if nxt: A(nxt.pop(0))
        assert not nxt
        if kk + 3 < 5:
            issueM(kk + 3)
    stamp(A, 12)
    lds_wait(A, 0, 96, 236, 1, sleep=1)
    A(f'v_add_u32 v9, {XCH[3]}, v5')
    OWN = 176
    for w in range(4):
        l = A.label('L_red')
        A(f's_cmp_lg_u32 s21, {w}\ns_cbranch_scc1 {l}')
        for rt in range(4):
            if rt == w:
                for t in (3, 4):
                    A(f'ds_write_b128 v9, {vr(a2(rt,t))} offset:{15360 + w*2048 + (t-3)*1024}')
                continue
            slot = w if w < rt else w - 1
            for t in range(5):
                A(f'ds_write_b128 v{9 if rt == 3 else 5}, {vr(a2(rt,t))} offset:{(XCH[rt] if rt < 3 else 0) + slot*5120 + t*1024}')
        for k in range(0, 12, 2):
            A(f'v_mov_b64 {vr(OWN+k,2)}, {vr(a2(w,0)+k,2)}')
        A(f'v_sub_f32 v14, 1.0, v{10+w}\ns_mov_b32 s50, {XCH[w]}')
        A(f'{l}:')
    A(f's_lshl_b32 s48, s21, 8\nv_lshlrev_b32 v8, 2, v2\nv_add_u32 v8, s48, v8\nds_write_b32 v8, v14 offset:{46080}')
    A(f's_mul_i32 s48, s21, {WSLOT}\ns_add_u32 s48, s48, {WBASE}\nv_add_u32 v8, s48, v5\nv_mov_b32 v15, v14\nv_add_u32 v7, s50, v5')
    A('s_lshl_b32 s48, s18, 6\ns_lshl_b32 s49, s21, 4\ns_add_u32 s48, s48, s49\nv_add_u32 v9, s48, v4\nv_mul_u32_u24 v9, 1280, v9\nv_lshl_add_u32 v9, v3, 3, v9\ns_mul_i32 s48, s19, 160')
    A('s_waitcnt lgkmcnt(0)')
    A('s_barrier')
    stamp(A, 13)
    for r in range(4):
        for t in range(3):
            A(f'ds_read_b128 {vr(PQ+12*r+4*t)}, v8 offset:{r*5120 + 1024*t}')
    A('s_waitcnt lgkmcnt(6)')
    for r in range(3):
        for t in range(3):
            A(f'ds_read_b128 {vr(AC+12*r+4*t)}, v7 offset:{r*5120 + 1024*t}')
    for k in range(0, 12, 2):
        A(f'v_pk_add_f32 {vr(PQ+k,2)}, {vr(PQ+k,2)}, {vr(PQ+12+k,2)}')
    A('s_waitcnt lgkmcnt(9)')
    for k in range(0, 12, 2):
        A(f'v_pk_add_f32 {vr(PQ+24+k,2)}, {vr(PQ+24+k,2)}, {vr(PQ+36+k,2)}')
    for k in range(0, 12, 2):
        A(f'v_pk_add_f32 {vr(PQ+k,2)}, {vr(PQ+k,2)}, {vr(PQ+24+k,2)}')
    for k in range(0, 12, 2):
        A(f'v_pk_fma_f32 {vr(OWN+k,2)}, {vr(PQ+k,2)}, v[14:15], {vr(OWN+k,2)}')
    for sl in range(3):
        A(f's_waitcnt lgkmcnt({6 - 3*sl})')
        for k in range(0, 12, 2):
            A(f'v_pk_add_f32 {vr(OWN+k,2)}, {vr(OWN+k,2)}, {vr(AC+12*sl+k,2)}')
    for t in range(3):
        b = OWN + 4 * t
        A(f'v_cvt_pk_bf16_f32 v{b}, v{b}, v{b+1}\nv_cvt_pk_bf16_f32 v{b+1}, v{b+2}, v{b+3}')
        A(f'buffer_store_dwordx2 {vr(b,2)}, v9, s[28:31], s48 offen offset:{32*t}')
    stamp(A, 14)
    finish(A)
    for kk in range(5):
        A(f'L_a_mre{kk}:')
        A('s_sleep 4')
        issueM(kk)
        A(f's_waitcnt vmcnt(0)\ns_add_u32 s96, s96, 1\ns_cmp_lt_u32 s96, {SPIN_MAX}\ns_cbranch_scc1 L_a_mchk{kk}')
        A(f's_branch L_a_mok{kk}')


def gen_loader(A):
    A.c('s67 = lw ; role constants: s68 strideA, s60 cA, s61 cB, s62 xB, s63 c4, s64 hi-mult')
    A('s_sub_u32 s67, s21, 4')
    A('s_mul_i32 s48, s19, 320\ns_add_u32 s48, s48, 1280\ns_and_b32 s57, s19, 1\ns_lshl_b32 s58, s57, 6\ns_add_u32 s58, s58, s48')
    A('s_xor_b32 s57, s57, 1\ns_lshl_b32 s57, s57, 8\ns_add_u32 s57, s57, s48\ns_add_u32 s59, s58, 1280')
    A('s_lshl_b32 s48, s22, 8\ns_lshl_b32 s49, s22, 7\ns_movk_i32 s56, 3072')
    A('s_cmp_eq_u32 s20, 0')
    A('s_cselect_b32 s68, 3840, s56\ns_cselect_b32 s60, s58, s48\ns_cselect_b32 s61, s59, s48\ns_cselect_b32 s62, 1, 0\ns_cselect_b32 s63, s57, s49\ns_cselect_b32 s64, 1280, 64')
    A(f's_cmp_lg_u32 s91, 0\ns_cselect_b32 s63, {OOB}, s63')
    A(f'v_mov_b32 v29, {OOB}\ns_lshl_b32 s75, s68, 5\ns_lshl_b32 s69, s18, 2\ns_add_u32 s69, s69, s19\nv_and_b32 v3, 31, v2\nv_lshrrev_b32 v4, 5, v2')
    A('s_movk_i32 s48, 3072\ns_cmp_eq_u32 s67, 1\ns_cselect_b32 s48, 3840, s48\ns_lshr_b32 s49, s48, 7\ns_lshl_b32 s85, s48, 6\ns_movk_i32 s56, 128')
    A('s_cmp_eq_u32 s67, 0\ns_cselect_b32 s48, 40960, s48\ns_cselect_b32 s49, 32, s49\ns_cselect_b32 s85, 128, s85\ns_cselect_b32 s56, 1280, s56\ns_mul_i32 s48, s48, s69')
    A('v_mul_u32_u24 v5, s56, v3\nv_mul_u32_u24 v6, s85, v4\nv_add3_u32 v5, v5, v6, s48\nv_cmp_gt_u32 vcc, s49, v3')
    st0 = sum(EV[m][0] << (4 * m) for m in EV)
    A(f's_lshl_b32 s56, s20, 2\ns_lshr_b32 s56, {hex(st0)}, s56\ns_and_b32 s56, s56, 15\nv_cndmask_b32 v30, v29, v5, vcc\ns_mul_i32 s56, s56, s85')
    A('s_mov_b32 s26, 2621440\ns_mov_b32 s27, 0x20000\ns_mov_b32 s31, 0x20000\ns_mov_b32 s35, 0x20000\ns_mov_b32 s39, 0x20000\ns_mov_b32 s83, 0x20000\ns_mov_b32 s48, 1966080\ns_mov_b32 s38, 2457600')
    A('s_cmp_eq_u32 s20, 0\ns_cselect_b32 s30, s38, s48\ns_mov_b32 s34, s30')
    A(f'v_mov_b32 v38, {CT}\nv_lshl_add_u32 v39, v2, 2, v38\nv_mov_b32 v44, 0\ns_lshl_b32 s71, s67, 8\nds_write_b32 v39, v44\nv_add_u32 v39, s71, v39\nds_write_b32 v39, v44 offset:256')
    A(f'v_and_b32 v39, 3, v2\nv_lshlrev_b32 v39, 8, v39\nv_add_u32 v39, {CT+256}, v39\ns_lshl_b32 s71, s67, 2\ns_add_u32 s71, s71, {CT}')
    A('s_cmp_eq_u32 s20, 0')
    A('s_waitcnt lgkmcnt(0)')
    A('s_mov_b32 s24, s4\ns_mov_b32 s25, s5\ns_mov_b32 s36, s6\ns_mov_b32 s37, s7')
    A('s_cselect_b32 s28, s6, s8\ns_cselect_b32 s29, s7, s9\ns_cselect_b32 s32, s6, s10\ns_cselect_b32 s33, s7, s11')
    A('s_cmp_eq_u32 s67, 2\ns_cselect_b32 s80, s8, s10\ns_cselect_b32 s81, s9, s11')
    A('s_cmp_eq_u32 s67, 1\ns_cselect_b32 s80, s6, s80\ns_cselect_b32 s81, s7, s81\ns_cselect_b32 s82, s38, s48')
    A('s_cmp_eq_u32 s67, 0\ns_cselect_b32 s80, s4, s80\ns_cselect_b32 s81, s5, s81\ns_cselect_b32 s82, s26, s82')
    stamp(A, 1)
    def issueW():
        for L in range(5):
            sr = 28 if L < 2 else (32 if L < 4 else 36)
            dma(A, f's_add_u32 m0, s77, {L*1024}', 10 + L, sr, 70 if L < 4 else 72)
        A('s_add_u32 s70, s70, s75\ns_add_u32 s72, s72, s76')
        A(f's_add_u32 s77, s77, {WSLOT}\ns_cmp_ge_u32 s77, {WBASE + NW*WSLOT}\ns_cselect_b32 s48, {NW*WSLOT}, 0\ns_sub_u32 s77, s77, s48')
    def issueX():
        for i in range(4):
            dma(A, f's_add_u32 m0, s78, {i*1024}', 16 + i, 24, 74)
        A('s_add_u32 s74, s74, 128')
        A(f's_add_u32 s78, s78, {XSLOT}\ns_cmp_ge_u32 s78, {NX*XSLOT}\ns_cselect_b32 s48, {NX*XSLOT}, 0\ns_sub_u32 s78, s78, s48')
    def flag():
        A('s_mov_b32 m0, s71\ns_lshl_b32 s48, s65, 2\ns_mov_b64 exec, 1\nbuffer_load_dword v44, s[8:11], s48 offen offset:0 lds\ns_mov_b64 exec, -1')
    A('s_cmp_eq_u32 s20, 0\ns_cbranch_scc1 L_nor0')
    A('s_mov_b32 exec_hi, 0\nbuffer_load_dword v36, v30, s[80:83], s56 offen\ns_mov_b32 exec_hi, -1')
    A('L_nor0:')
    A('s_barrier')
    A('s_cmp_eq_u32 s55, 0\ns_cbranch_scc1 L_nogw0')
    srd(A, 44, 14, 1280)
    A('v_lshlrev_b32 v40, 1, v2')
    for j in range(10):
        A(f'buffer_load_ushort v{50+j}, v40, s[44:47], 0 offen offset:{128*j}')
    A('L_nogw0:')
    A('v_lshrrev_b32 v3, 3, v2\nv_and_b32 v4, 7, v2')
    A('s_lshl_b32 s48, s18, 7\ns_lshl_b32 s56, s67, 5\ns_add_u32 s48, s48, s56\nv_add_u32 v7, s48, v3\nv_mul_u32_u24 v7, 1280, v7')
    A('v_lshrrev_b32 v8, 4, v2\nv_xor_b32 v8, v8, v4\nv_lshl_add_u32 v16, v8, 4, v7')
    A('v_xor_b32 v8, 4, v8\nv_lshl_add_u32 v17, v8, 4, v7\nv_add_u32 v17, 10240, v17')
    A('v_add_u32 v18, 20480, v16\nv_add_u32 v19, 20480, v17')
    A('s_lshl_b32 s56, s67, 3\nv_add_u32 v5, s56, v3')
    A('s_and_b32 s56, s67, 1\ns_lshl_b32 s56, s56, 2\nv_and_b32 v6, 2, v3\nv_xor_b32 v6, v6, v4\nv_xor_b32 v6, s56, v6')
    A('v_mul_u32_u24 v7, s68, v5\nv_lshl_add_u32 v8, v6, 4, v7\nv_add_u32 v10, s60, v8\nv_add_u32 v11, 128, v10')
    A('v_xor_b32 v9, s62, v6\nv_lshl_add_u32 v8, v9, 4, v7\nv_add_u32 v12, s61, v8\nv_add_u32 v13, 128, v12')
    A('v_lshrrev_b32 v8, 2, v6\nv_and_b32 v9, s62, v8\nv_and_b32 v6, 3, v6\nv_xor_b32 v6, v6, v9\nv_mul_u32_u24 v7, 3840, v5')
    A('v_lshl_add_u32 v7, v6, 4, v7\nv_mul_u32_u24 v8, s64, v8\nv_add3_u32 v14, v7, v8, s63')
    A(f's_mov_b32 s76, {32*3840}\ns_mov_b32 s70, 0\ns_mov_b32 s72, 0\ns_mov_b32 s74, 0')
    A(f's_mul_i32 s77, s67, 5120\ns_add_u32 s77, s77, {WBASE}\ns_lshl_b32 s78, s67, 12')
    issueX(); issueW()
    A('s_load_dwordx2 s[86:87], s[0:1], 72')
    A('s_cmp_eq_u32 s55, 0\ns_cbranch_scc1 L_nogw')
    A('v_and_b32 v41, 3, v2\nv_lshlrev_b32 v41, 3, v41')
    A('v_bfe_u32 v40, v2, 2, 1\nv_lshl_add_u32 v41, v40, 9, v41')
    A('v_bfe_u32 v40, v2, 3, 2\nv_lshl_add_u32 v41, v40, 5, v41')
    A(f'v_bfe_u32 v40, v2, 5, 1\nv_mul_u32_u24 v40, {GWS}, v40\nv_add_u32 v41, v40, v41')
    A(f'v_add_u32 v41, {GWBASE}, v41')
    A('s_waitcnt vmcnt(9)')
    for j in range(10):
        A(f'v_lshl_or_b32 v{80+2*j}, v{50+j}, 16, v{50+j}\nv_mov_b32 v{81+2*j}, v{80+2*j}')
        A(f'ds_write_b64 v41, v[{80+2*j}:{81+2*j}] offset:{2*GWS*j}')
    A('L_nogw:')
    srd(A, 40, 16, WS_USED)
    srd(A, 44, 12, 1966080)
    A('s_waitcnt lgkmcnt(0)')
    A('s_lshl_b32 s48, s2, 2\ns_add_u32 s48, s48, s67\ns_cmp_lg_u32 s48, 0\ns_cbranch_scc1 L_noep')
    A('s_memrealtime s[94:95]\ns_waitcnt lgkmcnt(0)\ns_or_b32 s94, s94, 1\nv_mov_b32 v42, s94\nv_mov_b32 v43, s95')
    A('s_mov_b64 exec, 1\nglobal_store_dwordx2 v44, v[42:43], s[86:87] sc1\ns_mov_b64 exec, -1')
    A('L_noep:')
    A('v_lshlrev_b32 v5, 4, v2\nv_lshlrev_b32 v6, 3, v2\nv_add_u32 v7, 4096, v5')
    A('s_sub_u32 s48, 11, s22\ns_cmp_gt_u32 s48, 1\ns_subb_u32 s48, s48, 0\ns_cmp_lg_u32 s55, 0\ns_cselect_b32 s48, 11, s48\ns_lshl_b32 s48, s48, 4\ns_add_u32 s48, s48, s18')
    A('s_sub_u32 s60, s48, 120\ns_lshl_b32 s60, s60, 2\ns_add_u32 s60, s60, s67\ns_lshl_b32 s92, s48, 1\ns_add_u32 s92, s92, s67')
    A('s_cmp_lt_u32 s67, 2\ns_cselect_b32 s92, s92, 999\ns_cmp_lt_u32 s92, 240\ns_cselect_b32 s64, 1, 0\ns_cmp_lt_u32 s60, 256\ns_cselect_b32 s64, 2, s64')
    A('s_mul_i32 s62, s92, 52429\ns_lshr_b32 s62, s62, 18\ns_mul_i32 s63, s62, 5\ns_sub_u32 s63, s92, s63')
    A(f's_mul_i32 s79, s62, {32*1280}\ns_lshl_b32 s56, s63, 8\ns_add_u32 s79, s79, s56\ns_lshl_b32 s63, s63, 3\ns_mul_i32 s62, s62, 5')
    A(f's_lshl_b32 s92, s92, 3\ns_add_u32 s92, s92, {FW_OFF}\ns_lshl_b32 s93, s67, 12\ns_add_u32 s93, s93, {RPK}')
    A(f's_lshl_b32 s48, s60, 3\ns_add_u32 s48, s48, {FP_OFF}\ns_cmp_eq_u32 s64, 2\ns_cselect_b32 s92, s48, s92')
    A('v_and_b32 v8, 2, v3\nv_xor_b32 v8, v8, v4\nv_mul_u32_u24 v9, 1280, v3\nv_lshl_add_u32 v20, v8, 4, v9')
    A('v_xor_b32 v8, 4, v8\nv_lshl_add_u32 v21, v8, 4, v9\nv_add_u32 v21, 10240, v21\nv_add_u32 v22, 20480, v20\nv_add_u32 v23, 20480, v21')
    A('v_lshrrev_b32 v8, 2, v2\nv_and_b32 v9, 3, v2\nv_lshlrev_b32 v8, 7, v8\nv_lshl_add_u32 v8, v9, 3, v8\nv_add_u32 v8, s93, v8')
    A('v_bfe_u32 v9, v2, 3, 1\nv_lshrrev_b32 v28, 5, v2\nv_lshl_add_u32 v9, v28, 1, v9')
    for tl in range(4):
        A(f'v_xor_b32 v28, {tl}, v9\nv_lshl_add_u32 v{24+tl}, v28, 5, v8')
    A('v_mul_u32_u24 v31, 1280, v2')
    pk = {m: sum(((t | (b0 << 4)) << (8 * k)) for k, (t, b0) in enumerate(EV[m][1])) | (0xFF << (8 * len(EV[m][1]))) for m in EV}
    A(f's_mov_b32 s84, -1\ns_cmp_eq_u32 s20, 1\ns_cselect_b32 s84, {hex(pk[1])}, s84\ns_cmp_eq_u32 s20, 2\ns_cselect_b32 s84, {hex(pk[2])}, s84\ns_cmp_eq_u32 s20, 3\ns_cselect_b32 s84, {hex(pk[3])}, s84\ns_and_b32 s58, s84, 15')
    AC = 24; WR = 104; HBUF = 224
    def a2(rt, t): return AC + 20 * rt + 4 * t
    regset = {0: 0, 1: 1, 2: 2, 9: 3, 10: 4, 11: 5}
    lds_unit = {3: WBASE, 4: WBASE + WSLOT, 5: WBASE + 2*WSLOT, 6: WBASE + 3*WSLOT, 7: 20480, 8: WBASE + 4*WSLOT}
    def kidx(i, dst):
        A(f's_add_u32 s{dst}, s23, {i}\ns_cmp_ge_u32 s{dst}, 12\ns_cselect_b32 s48, 12, 0\ns_sub_u32 s{dst}, s{dst}, s48')
    def w2reg(i):
        kidx(i, 56)
        A('s_mul_i32 s56, s56, 5120\ns_add_u32 s56, s56, s50')
        for t in range(5):
            b = WR + 20 * regset[i] + 4 * t
            if t == 0: A(f's_waitcnt vmcnt({STG_THR})')
            A(f'buffer_load_dwordx4 {vr(b)}, v{5 if t < 4 else 7}, s[40:43], s56 offen offset:{1024*(t&3)} sc1')
    def w2lds(i):
        kidx(i, 56)
        A('s_mul_i32 s56, s56, 5120\ns_add_u32 s56, s56, s50')
        A(f's_add_u32 m0, s52, {lds_unit[i]}\ns_waitcnt vmcnt({STG_THR})')
        for t in range(4):
            A(f'buffer_load_dwordx4 v5, s[40:43], s56 offen offset:{1024*t} sc1 lds')
        A(f's_add_u32 m0, s52, {lds_unit[i] + 4096}\ns_nop 0')
        A('buffer_load_dwordx4 v7, s[40:43], s56 offen sc1 lds')
    def trace():
        if STAMP and 'quiet' not in EXP:
            A('s_memtime s[98:99]\ns_add_u32 s48, s65, 38\ns_mov_b32 m0, s48\ns_waitcnt lgkmcnt(0)\nv_writelane_b32 v1, s98, m0')
    def ensure_free():
        if 'nofree' in EXP: return
        l = A.label('L_free')
        A(f's_sub_u32 s57, s65, 4\ns_cmp_ge_i32 s66, s57\ns_cbranch_scc1 {l}')
        tbeg(A)
        lds_wait(A, 39, 0, 48, 's57', four='free', sdst=66, sleep=LSLEEP)
        tend(A, 100)
        A(f'{l}:')
    stamp(A, 2)
    table_srd(A, 8)
    A('s_mov_b32 s65, 1\ns_mov_b32 s66, 0')
    flag()
    A('s_branch L_ld_odd')
    A('.p2align 3')
    A('L_ld_loop:')
    ensure_free()
    issueX(); issueW()
    trace()
    A('s_add_u32 s65, s65, 1')
    flag()
    A('L_ld_odd:')
    ensure_free()
    issueW()
    trace()
    A('s_lshr_b32 s49, s65, 1\ns_add_u32 s65, s65, 1')
    flag()
    A('s_cmp_eq_u32 s49, s58\ns_cbranch_scc1 L_ev_round')
    A('L_ev_r1:')
    A('s_cmp_lt_u32 s65, 20\ns_cbranch_scc1 L_ld_loop')
    A('s_branch L_ld_done')
    A('L_ev_round:')
    A('s_bfe_u32 s59, s84, 0x40004\ns_lshr_b32 s84, s84, 8\ns_and_b32 s58, s84, 15')
    A('s_cmp_gt_u32 s59, 9\ns_cbranch_scc1 L_ev_flag')
    lds_wait(A, 38, 0, 48, 's65')
    A('s_mul_i32 s56, s85, s59\nbuffer_load_dword v36, v30, s[80:83], s56 offen')
    if THIRD:
        A('s_cmp_lg_u32 s59, 7\ns_cbranch_scc1 L_ev_no3')
        A('s_mul_i32 s56, s85, 9\ns_mov_b32 exec_hi, 0\nbuffer_load_dword v37, v30, s[80:83], s56 offen\ns_mov_b32 exec_hi, -1')
        A('L_ev_no3:')
    A('s_cmp_eq_u32 s64, 0\ns_cbranch_scc1 L_ev_rw')
    A('global_load_dwordx2 v[42:43], v44, s[86:87] sc1')
    A('s_cmp_eq_u32 s64, 2\ns_cbranch_scc1 L_ev_poison')
    A('s_mov_b32 exec_hi, 0\nbuffer_load_dword v37, v31, s[44:47], s79 offen offset:128\ns_mov_b32 exec_hi, -1')
    for e in range(2):
        for g in range(4):
            dma(A, f's_add_u32 m0, s93, {g*1024}', 20 + g, 44, 79)
        A('s_add_u32 s79, s79, 128')
        A('s_waitcnt vmcnt(0)')
        for tl in range(4):
            A(f'ds_read_b64_tr_b16 {vr(64+16*e+4*tl,2)}, v{24+tl}\nds_read_b64_tr_b16 {vr(66+16*e+4*tl,2)}, v{24+tl} offset:2048')
        A('s_waitcnt lgkmcnt(0)')
    for tl in range(8):
        A(f's_add_u32 s56, s63, {tl}\ns_mul_i32 s57, s56, 52429\ns_lshr_b32 s57, s57, 18\ns_mul_i32 s57, s57, 235\ns_add_u32 s57, s57, s56\ns_add_u32 s57, s57, s62\ns_lshl_b32 s57, s57, 10\ns_add_u32 s57, s57, {W2_OFF}')
        A(f'buffer_store_dwordx4 {vr(64+4*tl)}, v5, s[40:43], s57 offen sc1')
    A('s_branch L_ev_r1')
    A('L_ev_poison:')
    A('v_mov_b32 v64, -1\nv_mov_b32 v65, -1\nv_mov_b32 v66, -1\nv_mov_b32 v67, -1')
    A(f's_mul_i32 s56, s60, 3200\ns_add_u32 s56, s56, {M_OFF}\ns_lshl_b32 s57, s60, 7\ns_add_u32 s57, s57, {ZB_OFF}\ns_cmp_lt_u32 s60, 128\ns_cselect_b32 s57, s57, {OOB}')
    for k in range(3):
        A(f'buffer_store_dwordx4 v[64:67], v5, s[40:43], s56 offen offset:{1024*k} sc1')
    A('s_mov_b64 exec, 0xff\nbuffer_store_dwordx4 v[64:67], v5, s[40:43], s56 offen offset:3072 sc1')
    A('buffer_store_dwordx4 v[64:67], v5, s[40:43], s57 offen sc1\ns_mov_b64 exec, -1')
    A('L_ev_rw:')
    A('s_waitcnt vmcnt(0)')
    A('s_branch L_ev_r1')
    A('L_ev_flag:')
    A('s_cmp_eq_u32 s64, 0\ns_cbranch_scc1 L_ev_r1')
    l0 = A.label('L_ep'); l1 = A.label('L_epok')
    A('s_mov_b32 s90, 0\ns_waitcnt vmcnt(16)')
    A(f'{l0}:')
    A('v_readfirstlane_b32 s88, v42')
    A(f's_cmp_lg_u32 s88, 0\ns_cbranch_scc1 {l1}')
    A('s_sleep 4\nglobal_load_dwordx2 v[42:43], v44, s[86:87] sc1\ns_waitcnt vmcnt(0)')
    A(f's_add_u32 s90, s90, 1\ns_cmp_lt_u32 s90, {SPIN_MAX}\ns_cbranch_scc1 {l0}')
    A(f'{l1}:')
    A('s_mov_b64 exec, 1\nbuffer_store_dwordx2 v[42:43], v44, s[40:43], s92 offen sc1\ns_mov_b64 exec, -1')
    A('s_branch L_ev_r1')
    A('L_ld_done:')
    trace()
    if 'p1' in EXP: finish(A)
    A('s_cmp_lg_u32 s20, 0\ns_cbranch_scc1 L_nowo')
    A('s_load_dwordx2 s[24:25], s[0:1], 16\ns_mov_b32 s26, 819200\ns_mov_b32 s27, 0x20000')
    A('s_lshr_b32 s48, s69, 2\ns_lshl_b32 s48, s48, 1\ns_and_b32 s49, s67, 1\ns_add_u32 s48, s48, s49\ns_mul_i32 s48, s48, 25600')
    A('s_and_b32 s49, s69, 3\ns_lshl_b32 s49, s49, 1\ns_lshr_b32 s56, s67, 1\ns_add_u32 s49, s49, s56\ns_mul_i32 s49, s49, 160\ns_add_u32 s48, s48, s49')
    A('v_lshrrev_b32 v8, 1, v2\nv_mul_u32_u24 v8, 1280, v8\nv_and_b32 v9, 1, v2\nv_mul_u32_u24 v9, 156, v9\nv_add_u32 v8, v8, v9')
    A('s_waitcnt lgkmcnt(0)\nbuffer_load_dword v36, v8, s[24:27], s48 offen')
    A('L_nowo:')
    def bsetup():
        p2_ids(A)
        A('s_mul_i32 s23, s19, 3\ns_lshr_b32 s23, s23, 1\ns_and_b32 s48, s18, 3\ns_mul_i32 s48, s48, 3\ns_add_u32 s23, s23, s48\ns_cmp_ge_u32 s23, 12\ns_cselect_b32 s48, 12, 0\ns_sub_u32 s23, s23, s48')
        A(f's_mul_i32 s48, s67, 12\ns_mul_i32 s50, s19, 48\ns_add_u32 s50, s50, s48\ns_mul_i32 s50, s50, 5120\ns_add_u32 s50, s50, {W2_OFF}')
        A('s_mul_i32 s51, s18, 68\ns_add_u32 s51, s51, s48\ns_lshl_b32 s51, s51, 12')
        A('s_mul_i32 s52, s67, 5120')
    A(f'v_mov_b32 v0, {CT}')
    bsetup()
    A(f's_mul_i32 s53, s67, 480\ns_mul_i32 s48, s19, 5\ns_lshr_b32 s48, s48, 2\ns_add_u32 s53, s53, {FW_OFF}')
    A('v_lshrrev_b32 v8, 1, v2\nv_mul_u32_u24 v8, 40, v8\nv_and_b32 v9, 1, v2\nv_add_u32 v9, s48, v9\nv_lshrrev_b32 v9, 1, v9\nv_lshl_add_u32 v28, v9, 3, v8')
    A(f's_lshr_b32 s48, s18, 1\ns_lshl_b32 s54, s48, {FSH}\ns_add_u32 s54, s54, {FG_OFF}')
    A(f's_mov_b32 s55, {FP_OFF}\ns_mov_b32 s90, 0\nv_cmp_gt_u32 s[58:59], 24, v2')
    A('L_b_chk:')
    A('global_load_dwordx2 v[42:43], v44, s[86:87] sc1')
    A('s_mov_b64 exec, s[58:59]\nbuffer_load_dwordx2 v[46:47], v28, s[40:43], s53 offen sc1\ns_mov_b64 exec, -1')
    A('s_cmp_lg_u32 s67, 1\ns_cbranch_scc1 L_b_chk1')
    A('buffer_load_dwordx4 v[48:51], v5, s[40:43], s55 offen sc1\nbuffer_load_dwordx4 v[52:55], v5, s[40:43], s55 offen offset:1024 sc1')
    A('L_b_chk1:')
    A('s_waitcnt vmcnt(0)')
    A('v_readfirstlane_b32 s88, v42\nv_readfirstlane_b32 s89, v43\ns_nop 1')
    A('v_cmp_ne_u64 s[60:61], s[88:89], v[46:47]\ns_and_b64 s[60:61], s[60:61], s[58:59]')
    A('s_cmp_lg_u32 s67, 1\ns_cbranch_scc1 L_b_chk2')
    A('v_cmp_ne_u64 s[62:63], s[88:89], v[48:49]\ns_or_b64 s[60:61], s[60:61], s[62:63]\nv_cmp_ne_u64 s[62:63], s[88:89], v[50:51]\ns_or_b64 s[60:61], s[60:61], s[62:63]')
    A('v_cmp_ne_u64 s[62:63], s[88:89], v[52:53]\ns_or_b64 s[60:61], s[60:61], s[62:63]\nv_cmp_ne_u64 s[62:63], s[88:89], v[54:55]\ns_or_b64 s[60:61], s[60:61], s[62:63]')
    A('L_b_chk2:')
    A('s_cmp_eq_u32 s88, 0\ns_cselect_b32 s60, 1, s60\ns_cmp_eq_u64 s[60:61], 0\ns_cbranch_scc1 L_b_chkok')
    A(f's_sleep 24\ns_add_u32 s90, s90, 1\ns_cmp_lt_u32 s90, {SPIN_MAX}\ns_cbranch_scc1 L_b_chk')
    A('L_b_chkok:')
    A('s_cmp_lg_u32 s67, 1\ns_cbranch_scc1 L_b_nofp')
    A('v_mov_b32 v46, 1\ns_mov_b64 exec, 1\nds_write_b64 v0, v[42:43] offset:32\nds_write_b32 v0, v46 offset:72\ns_mov_b64 exec, -1')
    A('L_b_nofp:')
    stamp(A, 37)
    t1 = [0, 1, 2, 9, 10, 11][:T1N]
    for i in t1:
        w2reg(i)
    rest = [i for i in (3, 4, 5, 6, 7, 8, 9, 10, 11) if i not in t1]
    def stage(i):
        (w2reg if i in regset else w2lds)(i)
    A('s_cmp_eq_u32 s20, 0\ns_cbranch_scc1 L_b_nosig')
    if not STG_EARLY:
        lds_wait(A, 38, 48, 48, 1, sleep=4)
    A('L_b_nosig:')
    stamp(A, 9)
    lds_wait(A, 39, 0, 48, 20, four='free', sleep=LSLEEP)
    for k, i in enumerate(rest[:KPRE]):
        stage(i); stamp(A, 16 + k)
    A('s_cmp_lg_u32 s20, 0\ns_cbranch_scc1 L_b_common' if 'ORACLE' not in EXP else 's_branch L_b_common')
    stamp(A, 8)
    A('s_lshr_b32 s18, s69, 2\ns_lshl_b32 s18, s18, 1\ns_and_b32 s48, s67, 1\ns_add_u32 s18, s18, s48\ns_and_b32 s19, s69, 3\ns_lshl_b32 s19, s19, 1\ns_lshr_b32 s48, s67, 1\ns_add_u32 s19, s19, s48')
    phase_a(A)
    bsetup()
    A(f's_lshr_b32 s48, s18, 1\ns_lshl_b32 s54, s48, {FSH}\ns_add_u32 s54, s54, {FG_OFF}')
    A('L_b_common:')
    hbufs = [HBUF, HBUF + 16, WR + 40]
    def hb(i, rt):
        k = i if i < 2 else (0 if i == 2 else (i - 3 + 1) % 3 if False else None)
        return None
    hmap = {0: 0, 1: 1, 2: 0, 3: 1}
    for i in range(4, 12):
        hmap[i] = [0, 2, 1][(i - 4) % 3]
    def hb(i, rt): return hbufs[hmap[i]] + 4 * rt
    A('v_add_u32 v8, s52, v5')
    A(f'v_add_u32 v9, {WBASE + 2*WSLOT}, v8')
    def rdW(i, rs):
        u = lds_unit[i]
        va, off = (8, u) if u < WBASE + WSLOT - 5120 else ((9, u - (WBASE + 2*WSLOT)) if u >= WBASE + 2*WSLOT else (12, 0))
        for t in range(5):
            A(f'ds_read_b128 {vr(WR+20*rs+4*t)}, v{va} offset:{off + 1024*t}')
    A(f'v_add_u32 v12, {WBASE + WSLOT}, v8')
    A('s_load_dwordx2 s[28:29], s[0:1], 64\ns_mov_b32 s30, 2621440\ns_mov_b32 s31, 0x20000')
    A(f's_lshl_b32 s48, s67, 2\nv_add_u32 v13, s48, v0\nv_mov_b32 v14, 1\ns_mul_i32 s48, s67, {WSLOT}\ns_add_u32 s48, s48, {WBASE}\nv_add_u32 v15, s48, v5')
    A(f's_mul_i32 s48, s67, 15360\ns_cmp_eq_u32 s67, 3\ns_cselect_b32 s48, {XCH[3]}, s48\nv_add_u32 v16, s48, v5')
    A(f's_lshl_b32 s48, s67, 11\ns_add_u32 s48, s48, {XCH[3] + 15360}\nv_add_u32 v17, s48, v5\ns_lshl_b32 s48, s67, 8\nv_lshlrev_b32 v19, 2, v2\nv_add_u32 v19, s48, v19')
    A('s_lshl_b32 s48, s18, 6\ns_lshl_b32 s49, s67, 4\ns_add_u32 s48, s48, s49\nv_and_b32 v20, 15, v2\nv_add_u32 v20, s48, v20\nv_mul_u32_u24 v20, 1280, v20\nv_lshrrev_b32 v21, 4, v2\nv_lshl_add_u32 v20, v21, 3, v20\ns_mul_i32 s55, s19, 160')
    A(f's_setprio {BPRIO}')
    stamp(A, 3)
    if GPOLL == 'B':
        A('s_cmp_lg_u32 s67, 3\ns_cbranch_scc1 L_b_nopoll')
        poll(A, 54, 48, 10, 6)
        A('v_mov_b32 v10, 1\ns_mov_b64 exec, 1\nds_write_b32 v0, v10 offset:64\ns_mov_b64 exec, -1')
        A('L_b_nopoll:')
    lds_wait(A, 0, 64, 10, 1, four=False, sleep=2)
    A('s_waitcnt vmcnt(0)')
    stamp(A, 4)
    Q = []
    def wait(tag):
        last = max(k for k, t in enumerate(Q) if t == tag)
        A(f's_waitcnt vmcnt({min(63, len(Q) - 1 - last)})')
    def issueH(i):
        kidx(i, 56)
        A('s_lshl_b32 s56, s56, 12\ns_add_u32 s56, s56, s51')
        for rt in range(4):
            A(f'buffer_load_dwordx4 {vr(hb(i,rt))}, v5, s[40:43], s56 offen offset:{1024*rt} {LL}')
            Q.append(('H', i))
    issueH(0); issueH(1)
    nH = 2
    late = rest[KPRE:]
    def issue_late():
        if not late: return
        j = late.pop(0)
        kidx(j, 56)
        A('s_mul_i32 s56, s56, 5120\ns_add_u32 s56, s56, s50')
        if j in regset:
            for t in range(5):
                A(f'buffer_load_dwordx4 {vr(WR + 20*regset[j] + 4*t)}, v{5 if t < 4 else 7}, s[40:43], s56 offen offset:{1024*(t&3)} sc1')
        else:
            A(f's_add_u32 m0, s52, {lds_unit[j]}\ns_nop 0')
            for t in range(4):
                A(f'buffer_load_dwordx4 v5, s[40:43], s56 offen offset:{1024*t} sc1 lds')
            A(f's_add_u32 m0, s52, {lds_unit[j] + 4096}\ns_nop 0')
            A('buffer_load_dwordx4 v7, s[40:43], s56 offen sc1 lds')
        Q.extend([('W', j)] * 5)
    for _ in range(LP0):
        issue_late()
    for i in range(12):
        rs = regset[i] if i in regset else (i - 3) % 2
        wait(('H', i))
        assert i not in late
        if ('W', i) in Q and i in regset: wait(('W', i))
        if i == 0: stamp(A, 5)
        stamp(A, 25 + i)
        if i not in regset:
            A('s_waitcnt lgkmcnt(5)' if (i + 1) not in regset else 's_waitcnt lgkmcnt(0)')
        if i == 8:
            A('s_mov_b64 exec, 1\nds_write_b32 v13, v14 offset:96\ns_mov_b64 exec, -1')
        dump = [(8, WBASE), (12, 0), (9, 0), (9, WSLOT)]
        for rt in range(4):
            for t in range(5):
                d = vr(a2(rt, t))
                A(f'v_mfma_f32_16x16x32_bf16 {d}, {vr(WR+20*rs+4*t)}, {vr(hb(i,rt))}, {d if i else 0}')
                if i == 11 and rt >= 2:
                    A(f'ds_write_b128 v{dump[rt-2][0]}, {vr(a2(rt-2,t))} offset:{dump[rt-2][1] + t*1024}')
        for _ in range(LPS):
            issue_late()
        while nH < 12 and all(hmap[j] != hmap[nH] for j in range(i + 1, nH)) and not (hmap[nH] == 2 and i < 2):
            issueH(nH); nH += 1
        tgt = {0: 3, 1: 4}.get(i, i + 2 if 5 <= i + 2 <= 8 else None)
        if tgt is not None:
            assert tgt not in late
            if ('W', tgt) in Q: wait(('W', tgt))
            rdW(tgt, (tgt - 3) % 2)
    stamp(A, 6)
    for rt in (2, 3):
        for t in range(5):
            A(f'ds_write_b128 v{dump[rt][0]}, {vr(a2(rt,t))} offset:{dump[rt][1] + t*1024}')
    A('s_waitcnt lgkmcnt(0)')
    stamp(A, 7)
    A('s_barrier')
    R = WR
    for r in range(4):
        for t in (3, 4):
            A(f'ds_read_b128 {vr(R+8*r+4*(t-3))}, v15 offset:{r*5120 + 1024*t}')
    A(f'ds_read_b32 v18, v19 offset:{46080}')
    A('s_waitcnt lgkmcnt(5)')
    for r in range(3):
        for t in (3, 4):
            A(f'ds_read_b128 {vr(R+32+8*r+4*(t-3))}, v16 offset:{r*5120 + 1024*t}')
    for t in (3, 4):
        A(f'ds_read_b128 {vr(R+56+4*(t-3))}, v17 offset:{1024*(t-3)}')
    for k in range(0, 8, 2):
        A(f'v_pk_add_f32 {vr(R+k,2)}, {vr(R+k,2)}, {vr(R+8+k,2)}')
    A('s_waitcnt lgkmcnt(8)\nv_mov_b32 v19, v18')
    for k in range(0, 8, 2):
        A(f'v_pk_add_f32 {vr(R+16+k,2)}, {vr(R+16+k,2)}, {vr(R+24+k,2)}')
    for k in range(0, 8, 2):
        A(f'v_pk_add_f32 {vr(R+k,2)}, {vr(R+k,2)}, {vr(R+16+k,2)}')
    A('s_waitcnt lgkmcnt(0)')
    for k in range(0, 8, 2):
        A(f'v_pk_fma_f32 {vr(R+k,2)}, {vr(R+k,2)}, v[18:19], {vr(R+56+k,2)}')
    for sl in range(3):
        for k in range(0, 8, 2):
            A(f'v_pk_add_f32 {vr(R+k,2)}, {vr(R+k,2)}, {vr(R+32+8*sl+k,2)}')
    for t in (3, 4):
        b = R + 4 * (t - 3)
        A(f'v_cvt_pk_bf16_f32 v{b}, v{b}, v{b+1}\nv_cvt_pk_bf16_f32 v{b+1}, v{b+2}, v{b+3}')
        A(f'buffer_store_dwordx2 {vr(b,2)}, v20, s[28:31], s55 offen offset:{32*t}')
    finish(A)


def gen(A):
    K = NAME + '_kernel'
    A(f'.globl {K}\n.p2align 8\n.type {K},@function\n{K}:')
    A('s_cmp_ge_u32 s2, 256\ns_cbranch_scc1 L_end')
    A('s_load_dwordx4 s[4:7], s[0:1], 0')
    A('s_load_dwordx4 s[8:11], s[0:1], 32')
    A('s_load_dwordx4 s[12:15], s[0:1], 48')
    A('s_load_dwordx2 s[16:17], s[0:1], 80')
    A.c('decode: s18 rb, s19 cq, s20 m, s21 wave, s22 gtype, s23 rbl, s55 is_gc')
    A('v_lshrrev_b32 v1, 6, v0\nv_and_b32 v2, 63, v0')
    A('s_bfe_u32 s23, s2, 0x10003\ns_and_b32 s18, s2, 7\ns_lshl_b32 s18, s18, 1\ns_add_u32 s18, s18, s23' if not MAP84 else 's_bfe_u32 s23, s2, 0x30003\ns_and_b32 s18, s2, 1\ns_lshl_b32 s18, s18, 3\ns_add_u32 s18, s18, s23')
    A('v_readfirstlane_b32 s21, v1')
    A('s_bfe_u32 s19, s2, 0x20004\ns_lshr_b32 s20, s2, 6' if not MAP84 else 's_bfe_u32 s19, s2, 0x20001\ns_lshr_b32 s20, s2, 6')
    A('s_mul_i32 s22, s19, 3\ns_add_u32 s22, s22, s20\ns_sub_u32 s22, s22, 1')
    A('s_cmp_eq_u32 s22, 10\ns_cselect_b32 s55, 1, 0\ns_cmp_ge_i32 s22, 10\ns_cselect_b32 s91, 1, 0')
    if STAMP:
        A('v_mov_b32 v1, 0\ns_mov_b32 s100, 0\ns_mov_b32 s101, 0')
        stamp(A, 0); stamp_rt(A, 62)
    A('s_cmp_lt_u32 s21, 4\ns_cbranch_scc1 L_compute')
    gen_loader(A)
    gen_compute(A)
    A('L_end:\ns_endpgm')
    A('.p2align 7\nL_table:')
    for i in range(32):
        A(f'.long {i}')


def main(out):
    A = Asm()
    gen(A)
    K = NAME + '_kernel'
    hdr = open('cdna_kernels/' + NAME + '.s.ref').read().split('; Override')[0]
    txt = hdr + f'; @launch grid=(256,1,1) block=(512,1,1) lds={LDS_TOTAL}\n'
    txt += '.amdgcn_target "amdgcn-amd-amdhsa--gfx950"\n.text\n' + A.text()
    txt += f'''.section .rodata,"a"
.p2align 6
.amdhsa_kernel {K}
  .amdhsa_next_free_vgpr 256
  .amdhsa_next_free_sgpr 102
  .amdhsa_accum_offset 256
  .amdhsa_group_segment_fixed_size 0
  .amdhsa_kernarg_size 88
  .amdhsa_user_sgpr_count 2
  .amdhsa_user_sgpr_kernarg_segment_ptr 1
  .amdhsa_system_sgpr_workgroup_id_x 1
.end_amdhsa_kernel
'''
    open(out, 'w').write(txt)

if __name__ == '__main__':
    for a in sys.argv[2:]:
        k, v = a.split('=', 1)
        globals()[k] = eval(v)
    main(sys.argv[1] if len(sys.argv) > 1 else 'cdna_kernels/' + NAME + '.s')
```

```python
import sys

NAME = 'gated_mix__linear_attn_block__glu_gated_glu__prompt'

HB_OFF = 0
W2_OFF = 0x900000
M_OFF = 0xB00000
KVS = 3584
KVP_OFF = 0xC00000
G_OFF = 0xF00000
ZB_OFF = 0xF10000
FSH = 13
FG_OFF = 0xF40000
FP_OFF = 0xF60800
FM_OFF = 0xF81000
FW_OFF = 0xFA1800
STAMP_OFF = 0x1000000
WS_USED = 0x1100000
OOB = 0x7FFF0000

XSLOT = 16384; NX = 3
WBASE = NX * XSLOT
WSLOT = 20480; NW = 5
GWBASE = WBASE + NW * WSLOT
LDS_TOTAL = 163840
CT = 159744
P2_SCR = 0
RPK = GWBASE
CODEPF = True
EV = {1: (0, [(0, 3), (2, 15)]), 2: (1, [(1, 5), (3, 15)]), 3: (2, [(2, 7), (4, 15)])}
THIRD = 3
RPORD = (11, 1, 4, 7, 2, 5, 8, 0, 3, 6, 9, 10)
STAMP = False
GWS = 320
PRIO = 2
LSLEEP = 3
DEPTH = 2
EXP = ''
KVL = 6
DEFER = False
BURST = 0
FINEG = True
GEARLY = 0
START2 = 0
RTS = False
WSM = 1
KVACK = True
R0LATE = False
L2PF = 0
KVPRE = 6
PAX = 2
ZM = 255
MACK = False
SPEC_M = True
NRC = 4
BST = True
PQ_AT = 3
NLEAD = 2
COOP_P = True
COOP_M = True
MK0 = 2
NPK = True
KVX = False
APRIO = 2
BPRIO = 0
MAP84 = True
LS = 'sc1'
LL = 'sc1'
KPRE = 6
LPS = 1
LP0 = 0
GPOLL = 'A'
GD = 8
KVG = 3
T1N = 6
PRETOUCH = False
STG_THR = 6
PSLEEP = 8
MSLEEP = 12
MDELAY = 64
GDELAY = 0
STG_EARLY = False
SPIN_MAX = 0x20000


class Asm:
    def __init__(self):
        self.L = []
        self.nl = 0
    def __call__(self, s):
        for line in s.split('\n'):
            line = line.strip()
            if line:
                self.L.append(line if line.endswith(':') else '    ' + line)
    def c(self, s):
        self.L.append('    ; ' + s)
    def label(self, p='L'):
        self.nl += 1
        return f'{p}_{self.nl}'
    def text(self):
        return '\n'.join(self.L) + '\n'


def vr(b, n=4):
    return f'v[{b}:{b+n-1}]'

def srd(A, d, lo, nbytes):
    A(f's_mov_b32 s{d}, s{lo}\ns_mov_b32 s{d+1}, s{lo+1}\ns_mov_b32 s{d+2}, {nbytes}\ns_mov_b32 s{d+3}, 0x20000')

def stamp(A, n):
    if STAMP:
        A(f'{"s_memrealtime" if RTS else "s_memtime"} s[98:99]\ns_waitcnt lgkmcnt(0)\nv_writelane_b32 v1, s98, {n}')
def stamp_rt(A, n):
    if STAMP:
        A(f's_memrealtime s[98:99]\ns_waitcnt lgkmcnt(0)\nv_writelane_b32 v1, s98, {n}')
def tbeg(A):
    if STAMP and 'quiet' not in EXP: A('s_memtime s[98:99]\ns_waitcnt lgkmcnt(0)\ns_mov_b32 s3, s98')
def tend(A, r):
    if STAMP and 'quiet' not in EXP: A(f's_memtime s[98:99]\ns_waitcnt lgkmcnt(0)\ns_sub_u32 s3, s98, s3\ns_add_u32 s{r}, s{r}, s3')
def finish(A):
    if STAMP:
        A('s_waitcnt vmcnt(0)')
        stamp(A, 61); stamp_rt(A, 63)
        A('v_writelane_b32 v1, s100, 59\nv_writelane_b32 v1, s101, 60')
        A('s_mov_b64 exec, -1')
        A(f's_lshl_b32 s3, s2, 3\ns_add_u32 s3, s3, s21\ns_lshl_b32 s3, s3, 8\ns_add_u32 s3, s3, {STAMP_OFF}\nv_lshlrev_b32 v2, 2, v2')
        A('buffer_store_dword v1, v2, s[40:43], s3 offen')
    A('s_endpgm')

LOG2E = 0x3fb8aa3b
NLOG2E = 0xbfb8aa3b
EPS = 0x358637bd

ACC = 96; XF = 64; WF = 24
def acc(i, t): return ACC + 20 * i + 4 * t


THR = 0
def dma(A, m0expr, voff, sr, so):
    A(m0expr)
    A(f's_waitcnt vmcnt({THR-1})' if THR else 's_nop 0')
    A(f'buffer_load_dwordx4 v{voff}, s[{sr}:{sr+3}], s{so} offen lds')


def poll(A, soff, nl, vt, vaddr, sleep=None, first_sleep=False):
    l0 = A.label('L_poll'); l1 = A.label('L_polled')
    A('s_mov_b32 s90, 0')
    A(f's_mov_b64 exec, {hex((1 << nl) - 1)}' if nl <= 31 else f's_mov_b32 exec_lo, -1\ns_mov_b32 exec_hi, {hex((1 << (nl - 32)) - 1)}')
    A(f'{l0}:')
    A(f'buffer_load_dwordx2 {vr(vt,2)}, v{vaddr}, s[40:43], s{soff} offen sc1')
    A('s_waitcnt vmcnt(0)')
    A(f'v_cmp_ne_u64 vcc, s[88:89], {vr(vt,2)}')
    A(f's_cbranch_vccz {l1}')
    A(f's_sleep {PSLEEP if sleep is None else sleep}\ns_add_u32 s90, s90, 1\ns_cmp_lt_u32 s90, {SPIN_MAX}\ns_cbranch_scc1 {l0}')
    A(f'{l1}:')
    A('s_mov_b64 exec, -1')


def spoll(A, parts, sleep=2):
    l0 = A.label('L_sp'); l1 = A.label('L_spd')
    A('s_mov_b32 s96, 0')
    A(f'{l0}:')
    regs = []
    for so, imm, n, sb in parts:
        A(f's_load_dwordx{2*n} s[{sb}:{sb+2*n-1}], s[16:17], s{so} offset:{imm} glc')
        regs += [sb + 2 * k for k in range(n)]
    A('s_waitcnt lgkmcnt(0)')
    for r in regs:
        A(f's_xor_b64 s[{r}:{r+1}], s[{r}:{r+1}], s[88:89]')
    for r in regs[1:]:
        A(f's_or_b64 s[{regs[0]}:{regs[0]+1}], s[{regs[0]}:{regs[0]+1}], s[{r}:{r+1}]')
    A(f's_cbranch_scc0 {l1}')
    A(f's_sleep {sleep}\ns_add_u32 s96, s96, 1\ns_cmp_lt_u32 s96, {SPIN_MAX}\ns_cbranch_scc1 {l0}')
    A(f'{l1}:')


def set_flag(A, soff, vt):
    A(f'v_mov_b32 v{vt}, s88\nv_mov_b32 v{vt+1}, s89\nv_mov_b32 v{vt+2}, 0')
    A('s_waitcnt vmcnt(0)')
    A('s_mov_b64 exec, 1')
    A(f'buffer_store_dwordx2 {vr(vt,2)}, v{vt+2}, s[40:43], s{soff} offen sc1')
    A('s_mov_b64 exec, -1')


def table_srd(A, d):
    l = A.label('L_pc')
    A(f's_getpc_b64 s[{d}:{d+1}]\n{l}:\ns_add_u32 s{d}, s{d}, L_table-{l}\ns_addc_u32 s{d+1}, s{d+1}, 0\ns_movk_i32 s{d+2}, 128\ns_mov_b32 s{d+3}, 0x20000')


def lds_free(A, vaddr, vt, sdst):
    A(f'ds_read_b32 v{vt}, v{vaddr}\ns_waitcnt lgkmcnt(0)')
    A(f'v_readlane_b32 s{sdst}, v{vt}, 0\nv_readlane_b32 s48, v{vt}, 1\ns_min_u32 s{sdst}, s{sdst}, s48\nv_readlane_b32 s48, v{vt}, 2\ns_min_u32 s{sdst}, s{sdst}, s48\nv_readlane_b32 s48, v{vt}, 3\ns_min_u32 s{sdst}, s{sdst}, s48')


def lds_min4(A, vaddr, off, vt, sdst):
    A(f'ds_read_b128 {vr(vt)}, v{vaddr} offset:{off}\ns_waitcnt lgkmcnt(0)')
    A(f'v_min3_u32 v{vt}, v{vt}, v{vt+1}, v{vt+2}\nv_min_u32 v{vt}, v{vt}, v{vt+3}\ns_nop 0\nv_readfirstlane_b32 s{sdst}, v{vt}')


def lds_wait(A, vaddr, off, vt, need, four=True, sdst=90, sleep=1):
    l0 = A.label('L_lw'); l1 = A.label('L_lwd')
    if sleep in (2, 4): sleep *= WSM
    A('s_mov_b32 s96, 0')
    A(f'{l0}:')
    if four == 'free':
        lds_free(A, vaddr, vt, sdst)
    elif four:
        lds_min4(A, vaddr, off, vt, sdst)
    else:
        A(f'ds_read_b32 v{vt}, v{vaddr} offset:{off}\ns_waitcnt lgkmcnt(0)\nv_readfirstlane_b32 s{sdst}, v{vt}')
    A(f's_cmp_ge_i32 s{sdst}, {need}\ns_cbranch_scc1 {l1}')
    A(f's_sleep {sleep}\ns_add_u32 s96, s96, 1\ns_cmp_lt_u32 s96, {SPIN_MAX*16}\ns_cbranch_scc1 {l0}')
    A(f'{l1}:')


def lds_wait_mask(A, vaddr, off, vt, smask, sleep=2):
    l0 = A.label('L_mw'); l1 = A.label('L_mwd')
    A('s_mov_b32 s96, 0')
    A(f'{l0}:')
    A(f'ds_read_b32 v{vt}, v{vaddr} offset:{off}\ns_waitcnt lgkmcnt(0)\nv_readfirstlane_b32 s90, v{vt}')
    A(f's_andn2_b32 s90, {smask}, s90\ns_cbranch_scc0 {l1}')
    A(f's_sleep {sleep}\ns_add_u32 s96, s96, 1\ns_cmp_lt_u32 s96, {SPIN_MAX*16}\ns_cbranch_scc1 {l0}')
    A(f'{l1}:')


def mainloop(A, kv, tag):
    def upd_s():
        L = [f's_add_u32 s50, s50, {WSLOT}', f's_cmp_ge_u32 s50, {WBASE + NW*WSLOT}', f's_cselect_b32 s50, {WBASE}, s50']
        if not kv:
            L += ['s_add_u32 s52, s52, s53', 's_cmp_ge_u32 s52, s57', f's_cselect_b32 s52, {WBASE}, s52']
        return L
    def set_w():
        return [f'v_add_u32 v{15+t}, s50, v{10+t}' for t in range(4)] + [f'v_add_u32 v19, s{50 if kv else 52}, v14']
    def upd_blk():
        return [f's_add_u32 s51, s51, {XSLOT}', f's_cmp_ge_u32 s51, {NX*XSLOT}', 's_cselect_b32 s51, 0, s51']
    def set_x(par):
        return [f'v_add_u32 v{4+par}, s51, v{20+par}']
    def rdW(p, t, h):
        b = WF + 20 * p + 4 * t + 2 * h
        return f'ds_read_b64_tr_b16 {vr(b,2)}, v{15+t} offset:{512*h}'
    def rdX(i, par):
        return f'ds_read_b128 {vr(XF+4*i)}, v{4+par} offset:{2048*i}'
    def mfma(i, t, p):
        w = vr(WF + 20 * p + 4 * t); x = vr(XF + 4 * i); d = vr(acc(i, t))
        A(f'v_mfma_f32_16x16x32_bf16 {d}, {x}, {w}, {d}' if kv else f'v_mfma_f32_16x16x32_bf16 {d}, {w}, {x}, {d}')
    A(f's_mov_b32 s50, {WBASE}\ns_mov_b32 s51, 0\ns_mov_b32 s54, 0')
    if not kv:
        A(f's_cmp_lg_u32 s55, 0\ns_cselect_b32 s52, {GWBASE}, s50\ns_movk_i32 s53, {WSLOT}\ns_cselect_b32 s53, {GWS}, s53\ns_mov_b32 s57, {WBASE + NW*WSLOT}\ns_cselect_b32 s57, -1, s57')
    for l in set_w() + set_x(0) + set_x(1):
        A(l)
    A(f'v_mov_b32 v3, {CT}\ns_lshl_b32 s48, s21, 8\ns_add_u32 m0, s48, {CT+256}\nv_mov_b32 v0, {OOB}\nv_writelane_b32 v0, 0, 0')
    table_srd(A, 44)
    stamp(A, 1)
    lds_wait(A, 3, 0, 6, 1, sdst=59)
    A('s_waitcnt vmcnt(0)')
    A(f's_setprio {PRIO}')
    stamp(A, 2)
    for t in range(5):
        A(rdW(0, t, 0)); A(rdW(0, t, 1))
    A('s_waitcnt lgkmcnt(6)')
    for i in range(8):
        A(rdX(i, 0))
    for l in upd_s() + set_w():
        A(l)
    A('s_mov_b32 s58, 2\ns_cmp_ge_i32 s59, s58')
    A(f's_cbranch_scc0 L_{tag}_slow0')
    A('.p2align 3')
    for p in range(2):
        gap = {k: [] for k in range(40)}
        for i in range(5):
            gap[5*i].append(rdW(1 - p, i, 0)); gap[5*i + 2].append(rdW(1 - p, i, 1))
        for i in range(8):
            gap[5*i + 4].append(rdX(i, 1 - p))
        gap[9].append('s_waitcnt lgkmcnt(6)')
        gap[1].append('s_add_u32 s54, s54, 4')
        gap[11].append('buffer_load_dword v0, s[44:47], s54 offen lds')
        gap[6].append('s_add_u32 s58, s58, 1'); gap[8].append('s_min_u32 s58, s58, 20')
        sal = upd_s() + (upd_blk() if p == 0 else [])
        for k in (13, 13, 16, 16, 18, 18, 21, 21, 23):
            if sal: gap[k].append(sal.pop(0))
        assert not sal
        gap[23].append('ds_read_b128 v[6:9], v3')
        for k, l in zip((25, 26, 27, 28, 30, 31), set_w() + set_x(p)):
            gap[k].append(l)
        gap[32].append('s_waitcnt lgkmcnt(2)'); gap[32].append('v_min3_u32 v6, v6, v7, v8')
        gap[33].append('v_min_u32 v6, v6, v9')
        gap[35].append('v_readfirstlane_b32 s59, v6')
        if p == 1:
            gap[36].append('s_cmp_lt_u32 s54, 80'); gap[37].append(f's_cbranch_scc0 L_{tag}_last')
        gap[38].append('s_cmp_ge_i32 s59, s58' if 'nowait' not in EXP else 's_cmp_eq_u32 s59, s59')
        if 'novalu' in EXP:
            for k in gap: gap[k] = [l for l in gap[k] if not l.startswith('v_')]
        if 'nods' in EXP:
            for k in gap: gap[k] = [l for l in gap[k] if not l.startswith('ds_')]
        if 'nosalu' in EXP:
            for k in gap: gap[k] = [l for l in gap[k] if not (l.startswith('s_') and 13 <= k <= 23)]
        if 'noctl' in EXP:
            for k in gap: gap[k] = [l for l in gap[k] if not (' v6' in l or 'v[6:9]' in l)]
        if 'nowr' in EXP:
            for k in gap: gap[k] = [l for l in gap[k] if not l.startswith('ds_write')]
        if 'now32' in EXP:
            gap[32] = [l for l in gap[32] if not l.startswith('s_waitcnt')]
        if 'nopub' in EXP: pass
        if p == 0:
            A(f'L_{tag}_go0:')
        else:
            A(f's_cbranch_scc0 L_{tag}_slow1')
            A(f'L_{tag}_go1:')
        A('s_waitcnt lgkmcnt(2)')
        for i in range(8):
            for t in range(5):
                mfma(i, t, p)
                for l in gap[5*i + t]: A(l)
    A(f's_cbranch_scc1 L_{tag}_go0')
    for p in range(2):
        A(f'L_{tag}_slow{p}:')
        tbeg(A)
        lds_wait(A, 3, 0, 6, 's58', sdst=59)
        tend(A, 100)
        if STAMP: A('s_add_u32 s101, s101, 1')
        A(f's_branch L_{tag}_go{p}')
    A(f'L_{tag}_last:')
    mfma(7, 3, 1); mfma(7, 4, 1)
    A('s_waitcnt lgkmcnt(0)')
    stamp(A, 3)
    A('s_nop 6')
    if 'p1' in EXP: finish(A)


def phi_q(A, b, t, dst=None):
    dst = b if dst is None else dst
    A(f'v_pk_mul_f32 {vr(t,2)}, {vr(b,2)}, s[60:61]\nv_pk_mul_f32 {vr(t+2,2)}, {vr(b+2,2)}, s[60:61]')
    for j in range(4):
        A(f'v_exp_f32 v{t+j}, v{t+j} clamp')
    for j in range(4):
        A(f'v_max_f32 v{dst+j}, s66, v{b+j}')
    A(f'v_pk_add_f32 {vr(dst,2)}, {vr(dst,2)}, {vr(t,2)}\nv_pk_add_f32 {vr(dst+2,2)}, {vr(dst+2,2)}, {vr(t+2,2)}')


def gen_compute(A):
    A('L_compute:')
    if CODEPF:
        A('s_cmp_lg_u32 s21, 0\ns_cbranch_scc1 L_nocpf')
        A(f's_getpc_b64 s[44:45]\nL_pc:\ns_sub_u32 s44, s44, L_pc-{NAME}_kernel\ns_subb_u32 s45, s45, 0\ns_mov_b32 s46, L_end-{NAME}_kernel\ns_mov_b32 s47, 0x20000')
        A('s_lshr_b32 s48, s2, 3\ns_lshl_b32 s48, s48, 11\nv_lshlrev_b32 v3, 7, v2\ns_mov_b64 exec, 0xffff')
        A('buffer_load_dword v95, v3, s[44:47], s48 offen\ns_mov_b64 exec, -1')
        A('L_nocpf:')
    A('s_barrier')
    A.c('compute wave setup: v3=q v4=r v5=c v6=f<<5 v7=rowpart')
    for r in range(ACC, 256, 2):
        A(f'v_mov_b64 {vr(r,2)}, 0')
    A('v_lshrrev_b32 v3, 4, v2\nv_bfe_u32 v4, v2, 2, 2\nv_and_b32 v5, 3, v2')
    A('v_lshrrev_b32 v6, 1, v4\nv_and_b32 v8, 1, v3\nv_lshl_add_u32 v6, v8, 1, v6\nv_lshlrev_b32 v6, 5, v6')
    A('v_mul_u32_u24 v7, 5120, v3\nv_lshl_add_u32 v7, v4, 7, v7')
    A('v_and_b32 v8, 15, v2\nv_lshrrev_b32 v9, 1, v8\nv_xor_b32 v9, v9, v3\nv_lshlrev_b32 v9, 4, v9\nv_lshl_add_u32 v20, v8, 7, v9\nv_xor_b32 v21, 64, v20')
    A(f's_mov_b32 s60, {LOG2E}\ns_mov_b32 s61, {LOG2E}\ns_mov_b32 s62, {NLOG2E}\ns_mov_b32 s63, {NLOG2E}')
    A(f's_mov_b32 s64, 1.0\ns_mov_b32 s65, 1.0\ns_mov_b32 s66, {EPS}')
    A('s_waitcnt lgkmcnt(0)')
    srd(A, 40, 16, WS_USED)
    if PRETOUCH:
        A('s_cmp_lg_u32 s21, 1\ns_cbranch_scc1 L_nopt')
        A('s_load_dwordx2 s[28:29], s[0:1], 64\ns_load_dwordx2 s[32:33], s[0:1], 16\ns_mov_b32 s30, 2621440\ns_mov_b32 s31, 0x20000\ns_mov_b32 s34, 819200\ns_mov_b32 s35, 0x20000')
        srd(A, 36, 12, 1966080)
        A('v_lshlrev_b32 v8, 18, v2\nv_lshlrev_b32 v9, 16, v2')
        A('buffer_load_dword v92, v8, s[40:43], 0 offen\nbuffer_load_dword v93, v9, s[36:39], 0 offen\ns_waitcnt lgkmcnt(0)')
        A('buffer_load_dword v94, v9, s[28:31], 0 offen\nbuffer_load_dword v95, v9, s[32:35], 0 offen')
        A('L_nopt:')
    A('s_cmp_eq_u32 s20, 0\ns_cbranch_scc1 L_kv')

    A('s_lshr_b32 s48, s21, 1\ns_lshl_b32 s48, s48, 10\ns_and_b32 s49, s21, 1\ns_lshl_b32 s49, s49, 3')
    A('v_add_u32 v8, s49, v5\nv_lshlrev_b32 v8, 3, v8\nv_xor_b32 v9, v8, v6\nv_add3_u32 v10, v9, v7, s48')
    A('v_add_u32 v8, 32, v8\nv_xor_b32 v9, v8, v6\nv_add3_u32 v11, v9, v7, s48')
    A('v_add_u32 v12, 2048, v10\nv_add_u32 v13, 2048, v11')
    A('s_lshl_b32 s49, s21, 2\nv_add_u32 v8, s49, v5\nv_lshlrev_b32 v8, 3, v8\nv_xor_b32 v9, v8, v6\nv_add_u32 v14, v9, v7\nv_add_u32 v14, 4096, v14')
    A('s_cmp_eq_u32 s55, 0\ns_cbranch_scc1 L_g_notgc')
    A('v_lshlrev_b32 v14, 5, v3\nv_lshl_add_u32 v14, v4, 3, v14')
    A('L_g_notgc:')
    A('v_lshlrev_b32 v22, 4, v2')
    A(f's_mul_i32 s72, s18, {2*68*4096}\ns_add_u32 s73, s72, {68*4096}')
    A('s_lshl_b32 s48, s22, 2\ns_add_u32 s48, s48, s21\ns_lshl_b32 s49, s48, 12\ns_add_u32 s70, s72, s49\ns_add_u32 s71, s73, s49')
    A(f's_lshl_b32 s74, s18, {FSH}\ns_lshl_b32 s49, s48, 3\ns_add_u32 s74, s74, s49\ns_add_u32 s74, s74, {FG_OFF}')
    A('s_lshl_b32 s48, s48, 2\nv_add_u32 v5, s48, v3')
    A('v_mul_u32_u24 v6, 6554, v5\nv_lshrrev_b32 v6, 16, v6\nv_mul_u32_u24 v7, 10, v6\nv_sub_u32 v7, v5, v7')
    A('v_lshrrev_b32 v8, 2, v6\nv_and_b32 v6, 3, v6')
    A('v_mul_u32_u24 v8, 5, v8\nv_lshrrev_b32 v9, 1, v7\nv_add3_u32 v8, v8, v9, 48\nv_lshlrev_b32 v8, 12, v8')
    A('v_and_b32 v9, 15, v2\nv_lshl_add_u32 v9, v6, 4, v9\nv_lshl_add_u32 v8, v9, 4, v8')
    A('v_and_b32 v7, 1, v7\nv_lshl_add_u32 v23, v7, 10, v8')
    mainloop(A, False, 'g')
    A.c('h = u * sigmoid(g)')
    hst = []; pst = []
    for i in range(8):
        g = acc(i, 0); u = acc(i, 2)
        for j in range(4):
            A(f'v_pk_mul_f32 {vr(g+2*j,2)}, {vr(g+2*j,2)}, s[62:63]')
        for j in range(8):
            A(f'v_exp_f32 v{g+j}, v{g+j}')
        for j in range(4):
            A(f'v_pk_add_f32 {vr(g+2*j,2)}, {vr(g+2*j,2)}, s[64:65]')
        for j in range(8):
            A(f'v_rcp_f32 v{g+j}, v{g+j}')
        for j in range(4):
            A(f'v_pk_mul_f32 {vr(u+2*j,2)}, {vr(u+2*j,2)}, {vr(g+2*j,2)}')
        for j in range(4):
            A(f'v_cvt_pk_bf16_f32 v{g+j}, v{u+2*j}, v{u+2*j+1}')
        hst.append(f'buffer_store_dwordx4 {vr(g)}, v22, s[40:43], s{70 + (i>>2)} offen offset:{(i&3)*1024} {LS}')
        if not BURST: A(hst.pop())
    if BURST == 1:
        for l in hst: A(l)
        hst = []
    A('s_cmp_lg_u32 s91, 0\ns_cbranch_scc1 L_gc_epi')
    A.c('pq = phi(q)')
    for i in range(0, 8, 2):
        a0 = acc(i, 4); b0 = acc(i + 1, 4)
        phi_q(A, a0, 24 + 8 * ((i >> 1) & 1))
        phi_q(A, b0, 28 + 8 * ((i >> 1) & 1))
        A(f'v_cvt_pk_bf16_f32 v{a0}, v{a0}, v{a0+1}\nv_cvt_pk_bf16_f32 v{a0+1}, v{a0+2}, v{a0+3}')
        A(f'v_cvt_pk_bf16_f32 v{a0+2}, v{b0}, v{b0+1}\nv_cvt_pk_bf16_f32 v{a0+3}, v{b0+2}, v{b0+3}')
        A('s_nop 1')
        A(f'v_permlane16_swap_b32 v{a0}, v{a0+2}\nv_permlane16_swap_b32 v{a0+1}, v{a0+3}')
        pst.append(f'buffer_store_dwordx4 {vr(a0)}, v23, s[40:43], s{72 + (i>>2)} offen offset:{(i&3)*1024} {LS}')
        if BURST != 2: A(pst.pop())
    for l in hst + pst: A(l)
    A('s_branch L_p1_done')
    A('L_gc_epi:')
    for l in hst: A(l)
    A.c('gate g = sigmoid(logit); stored by gtype 10, wave 0')
    A('v_and_b32 v8, 15, v2\nv_lshlrev_b32 v8, 2, v8')
    A(f's_lshl_b32 s48, s18, 9\ns_add_u32 s48, s48, {G_OFF}\ns_lshl_b32 s49, s22, 2\ns_add_u32 s49, s49, s21')
    A(f's_cmp_eq_u32 s49, 40\ns_cselect_b32 s48, s48, {OOB}')
    for i in range(8):
        A(f'v_mul_f32 v{acc(i,4)}, s62, v{acc(i,4)}')
    for i in range(8):
        A(f'v_exp_f32 v{acc(i,4)}, v{acc(i,4)}')
    for i in range(8):
        A(f'v_add_f32 v{acc(i,4)}, 1.0, v{acc(i,4)}')
    for i in range(8):
        A(f'v_rcp_f32 v{acc(i,4)}, v{acc(i,4)}')
    A('s_nop 0\ns_mov_b64 exec, 0xffff')
    for i in range(8):
        A(f'buffer_store_dword v{acc(i,4)}, v8, s[40:43], s48 offen offset:{64*i} {LS}')
    A('s_mov_b64 exec, -1')
    A('s_branch L_p1_done')

    A('L_kv:')
    A('s_mul_i32 s48, s21, 10\ns_and_b32 s49, s19, 1\ns_lshl_b32 s49, s49, 3\ns_sub_u32 s48, s48, s49')
    def kvaddr(dst, u, isv):
        A(f'v_add_u32 v9, 40, {u}\nv_cmp_gt_i32 vcc, 0, {u}\ns_nop 1\nv_cndmask_b32 v8, {u}, v9, vcc')
        A(f'v_lshrrev_b32 v9, 4, v8\nv_lshl_add_u32 v9, {isv}, 1, v9\nv_and_b32 v23, 15, v8')
        A(f'v_lshl_add_u32 v22, {isv}, 3, v23')
        A('v_cmp_gt_u32 vcc, 32, v8\ns_nop 1\nv_cndmask_b32 v9, 4, v9, vcc\nv_cndmask_b32 v23, v22, v23, vcc')
        A(f'v_lshlrev_b32 v23, 3, v23\nv_xor_b32 v23, v23, v6\nv_lshlrev_b32 v22, 4, {isv}\nv_xor_b32 v23, v23, v22')
        A(f'v_lshl_add_u32 v23, v9, 10, v23\nv_add_u32 v{dst}, v23, v7')
    A('v_mov_b32 v16, 0\nv_mov_b32 v17, 1\nv_add_u32 v15, s48, v5')
    kvaddr(10, 'v15', 'v16'); kvaddr(12, 'v15', 'v17')
    A('v_add_u32 v15, 5, v15')
    kvaddr(11, 'v15', 'v16'); kvaddr(13, 'v15', 'v17')
    A('v_and_b32 v15, 1, v5\nv_mul_u32_u24 v15, 5, v15\nv_add3_u32 v15, v15, s48, 4\nv_lshrrev_b32 v16, 1, v5')
    kvaddr(14, 'v15', 'v16')
    A('v_lshlrev_b32 v22, 4, v2\nv_lshlrev_b32 v23, 4, v3')
    A('v_and_b32 v8, 15, v2\nv_cmp_gt_u32 s[68:69], 8, v8')
    A(f's_lshl_b32 s48, s19, 2\ns_add_u32 s48, s48, s21\ns_lshl_b32 s48, s48, 4\ns_add_u32 s48, s48, s18\ns_mul_i32 s70, s48, {KVS}\ns_add_u32 s70, s70, {KVP_OFF}')
    prods = [(0, 0), (1, 1), (2, 0), (2, 1), (0, 2), (1, 2), (2, 2)]
    A(f's_lshr_b32 s71, s21, 1\ns_mul_i32 s71, s71, {RPK - 40960}\ns_and_b32 s49, s21, 1\ns_lshl_b32 s49, s49, 12\ns_add_u32 s71, s71, s49\ns_add_u32 s71, s71, 40960')
    A('v_mul_u32_u24 v23, 5, v8\nv_add_u32 v23, v23, v3\nv_lshlrev_b32 v23, 4, v23\nv_add_u32 v23, s71, v23')
    mainloop(A, True, 'kv')
    A.c('KV epilogue')
    A('v_mov_b32 v12, 0x3f803f80\nv_mov_b32 v13, v12\nv_mov_b32 v14, v12\nv_mov_b32 v15, v12')
    KT = {0: 0, 1: 1, 2: 4}; VT = {0: 2, 1: 3, 2: 4}
    PR = 24
    n = 0
    for i in range(8):
        for t in (0, 1):
            phi_q(A, acc(i, t), 64 + 4 * (n % 4)); n += 1
        b = acc(i, 4); sv = 80 + 4 * (i & 1)
        phi_q(A, b, 64 + 4 * (n % 4), sv); n += 1
        for j in range(4):
            A(f'v_cndmask_b32 v{b+j}, v{b+j}, v{sv+j}, s[68:69]')
    stamp(A, 18)
    get_epoch(A, 3, 6)
    A(f'v_and_b32 v9, 3, v2\nv_lshlrev_b32 v9, 8, v9\nv_add_u32 v9, {CT+256}, v9')
    lds_wait(A, 9, 0, 8, 18, four='free', sleep=1)
    pend = []
    for kk in range(4):
        c = 0
        for t in range(5):
            a = acc(2 * kk, t); b = acc(2 * kk + 1, t)
            for l in (f'v_cvt_pk_bf16_f32 v{a}, v{a}, v{a+1}', f'v_cvt_pk_bf16_f32 v{a+1}, v{a+2}, v{a+3}',
                      f'v_cvt_pk_bf16_f32 v{a+2}, v{b}, v{b+1}', f'v_cvt_pk_bf16_f32 v{a+3}, v{b+2}, v{b+3}'):
                A(l); c += 1
                if c % 2 == 0 and pend: A(pend.pop(0))
        assert not pend
        for n, (tv, tk) in enumerate(prods):
            d = vr(PR + 4 * n)
            pend.append(f'v_mfma_f32_16x16x32_bf16 {d}, {vr(acc(2*kk,VT[tv]))}, {vr(acc(2*kk,KT[tk]))}, {d if kk else 0}')
        for tk in range(3):
            d = vr(52 + 4 * tk)
            pend.append(f'v_mfma_f32_16x16x32_bf16 {d}, {vr(acc(2*kk,KT[tk]))}, v[12:15], {d if kk else 0}')
    A('s_nop 1')
    for l in pend: A(l)
    stamp(A, 19)
    A('s_nop 6')
    HB_ = 1792
    wr = [(0, None, 0), (1, None, HB_), (2, (0, 0xffff), 32), (3, (0, 0xffff0000), HB_ + 16), (4, (0x000f000f, 0x000f000f), 1280),
          (5, (0x00f000f0, 0x00f000f0), HB_ + 960), (6, (0, 0x0000000f), 1280 + 32), (6, (0, 0x00f00000), HB_ + 960 + 16),
          (7, (0x00010001, 0x00010001), 1600), (8, (0x00010001, 0x00010001), HB_ + 1600), (9, (1, 0), 1664), (9, (0x10000, 0), HB_ + 1648)]
    for n, m, off in wr:
        if m: A(f's_mov_b32 exec_lo, {hex(m[0])}\ns_mov_b32 exec_hi, {hex(m[1])}')
        A(f'ds_write_b128 v23, {vr(PR+4*n)} offset:{off}')
    A('s_mov_b64 exec, -1\nv_add_u32 v9, s71, v22')
    for i in range(4):
        A(f'ds_read_b128 {vr(64+4*i)}, v9 offset:{1024*i}')
    A('s_and_b32 s76, s88, 0xfff\ns_bfe_u32 s77, s88, 0xc000c\ns_lshr_b64 s[78:79], s[88:89], 24\ns_xor_b32 s78, s78, s88\ns_bfe_u32 s79, s78, 0xc000c\ns_and_b32 s78, s78, 0xfff')
    A('v_mov_b32 v6, 0xfffff000')
    for i in range(4):
        A(f's_waitcnt lgkmcnt({3-i})')
        for r in range(64 + 4 * i, 68 + 4 * i):
            A(f'v_and_or_b32 v{r}, v{r}, v6, s{76 + (r & 3)}')
        if i == 3: A('s_mov_b32 exec_hi, 0')
        A(f'buffer_store_dwordx4 {vr(64+4*i)}, v22, s[40:43], s70 offen offset:{1024*i} sc1')
    A('s_mov_b64 exec, -1')
    A('L_p1_done:')
    stamp(A, 4)
    gen_awave(A)


def p2_ids(A):
    A('s_and_b32 s18, s2, 7\ns_lshl_b32 s18, s18, 2\ns_lshr_b32 s48, s2, 6\ns_add_u32 s18, s18, s48')
    A('s_bfe_u32 s19, s2, 0x30003')


def get_epoch(A, vct, vt):
    l0 = A.label('L_ep')
    A('s_mov_b32 s96, 0')
    A(f'{l0}:')
    A(f'ds_read_b64 {vr(vt,2)}, v{vct} offset:32\ns_waitcnt lgkmcnt(0)\nv_readfirstlane_b32 s88, v{vt}\nv_readfirstlane_b32 s89, v{vt+1}')
    A(f's_add_u32 s96, s96, 1\ns_cmp_eq_u32 s88, 0\ns_cselect_b32 s48, s96, -1\ns_cmp_lt_u32 s48, {SPIN_MAX*16}\ns_cbranch_scc1 {l0}')


def phase_a(A):
    WOI = 0; HS = 0; HSTR = 5120
    A('v_lshrrev_b32 v3, 4, v2\nv_and_b32 v4, 15, v2')
    A('s_mul_i32 s70, s67, 5120')
    A('s_lshr_b32 s50, s18, 1\ns_and_b32 s51, s18, 1')
    A(f's_mul_i32 s48, s51, 1792\nv_add_u32 v10, s48, v5\nv_add_u32 v11, 1024, v10\nv_mov_b32 v15, {OOB}\nv_cmp_lt_u32 vcc, 40, v2\ns_nop 1\nv_cndmask_b32 v11, v11, v15, vcc')
    A('v_mov_b32 v19, v5\nv_add_u32 v20, 1024, v5\nv_mul_u32_u24 v21, 80, v4\nv_lshl_add_u32 v12, v3, 5, v21\nv_lshlrev_b32 v13, 3, v4')
    A('v_bfe_u32 v14, v2, 2, 2\nv_lshl_add_u32 v14, v3, 3, v14\nv_mul_u32_u24 v14, 160, v14\nv_and_b32 v15, 3, v2\nv_lshl_add_u32 v14, v15, 3, v14\nv_add_u32 v14, s70, v14')
    A(f'v_add_u32 v19, s70, v19\nv_add_u32 v20, s70, v20\ns_mul_i32 s48, s51, 5120\nv_add_u32 v12, s48, v12\nv_add_u32 v13, s48, v13')
    A('v_cmp_gt_u32 s[60:61], 3, v3\nv_cmp_gt_u32 s[62:63], 2, v3\nv_cmp_gt_u32 s[64:65], 41, v2')
    A(f's_mul_i32 s48, s51, 5\ns_lshr_b32 s49, s67, 1\ns_mul_i32 s49, s49, {RPK - 40960}\ns_add_u32 s49, s49, 40960')
    for mt in range(2):
        A(f'v_add3_u32 v15, v3, s48, {4*mt}\nv_lshrrev_b32 v16, 1, v15\nv_mul_u32_u24 v16, 1280, v16\nv_and_b32 v15, 1, v15\nv_lshl_add_u32 v16, v15, 3, v16')
        A(f'v_lshl_add_u32 v16, v4, 4, v16\nv_add_u32 v{17+mt}, s49, v16')
    A('s_mul_i32 s48, s51, 40\ns_add_u32 s48, s48, s49\ns_add_u32 s48, s48, 6400\nv_lshlrev_b32 v22, 2, v2\nv_add_u32 v22, s48, v22')
    A('s_mul_i32 s48, s51, 3328\ns_add_u32 s48, s48, s49\nv_add_u32 v21, s48, v5\nv_lshlrev_b32 v15, 10, v3\nv_lshl_add_u32 v15, v4, 4, v15')
    A(f's_lshr_b32 s48, s18, 3\ns_mul_i32 s48, s48, 5\ns_mul_i32 s49, s19, 20\ns_add_u32 s48, s48, s49\ns_mul_i32 s48, s48, 5120\ns_and_b32 s49, s50, 3\ns_lshl_b32 s49, s49, 8\ns_add_u32 s48, s48, s49')
    A(f's_mul_i32 s49, s51, 13312\ns_add_u32 s48, s48, s49\ns_add_u32 s55, s48, {M_OFF}\ns_add_u32 s56, s55, 4096\ns_add_u32 s57, s55, 8192\ns_add_u32 s48, s55, 12288')
    A(f's_lshl_b32 s54, s19, 11\ns_lshl_b32 s49, s50, 7\ns_add_u32 s54, s54, s49\ns_add_u32 s54, s54, {ZB_OFF}')
    A(f's_cmp_eq_u32 s51, 0\ns_cselect_b32 s54, s48, s54\ns_movk_i32 s48, {ZM}\ns_cselect_b32 s58, 0xffff, s48\ns_mov_b32 s59, 0')
    A('s_and_b32 s76, s88, 0xfff\ns_bfe_u32 s77, s88, 0xc000c\ns_lshr_b64 s[78:79], s[88:89], 24\ns_xor_b32 s78, s78, s88\ns_bfe_u32 s79, s78, 0xc000c\ns_and_b32 s78, s78, 0xfff')
    A(f's_mul_i32 s52, s50, {16*KVS}\ns_lshr_b32 s49, s67, 1\ns_mul_i32 s49, s49, {8*KVS}\ns_add_u32 s52, s52, s49\ns_add_u32 s52, s52, {KVP_OFF}')
    A(f's_lshl_b32 s48, s67, 2\nv_add_u32 v23, s48, v0\nv_mov_b32 v244, 1\nv_mov_b32 v245, 2\nv_mov_b32 v246, 3')
    A('s_waitcnt vmcnt(0)')
    for t in range(5):
        A(f'ds_read_b64_tr_b16 {vr(224+4*t,2)}, v14 offset:{32*t}\nds_read_b64_tr_b16 {vr(226+4*t,2)}, v14 offset:{32*t + 640}')
    stamp(A, 10)
    lds_wait(A, 0, 72, 248, 1, four=False, sleep=2)
    lds_wait(A, 0, 48, 248, 1, sleep=2)
    if GDELAY: A(f's_sleep {GDELAY}')
    stamp(A, 11)
    A('s_mov_b32 s96, 0')
    A('L_pa_gather:')
    for p in range(8):
        if PAX:
            A(f's_lshl_b32 s53, s69, 1\ns_add_u32 s53, s53, {p}\ns_and_b32 s53, s53, 7\ns_mul_i32 s53, s53, {KVS}\ns_add_u32 s53, s53, s52')
            if p == 2 and PAX == 2: A('s_waitcnt vmcnt(0)')
        else:
            A(f's_add_u32 s53, s52, {KVS*p}')
        for ldi in range(2):
            A(f'buffer_load_dwordx4 {vr(24 + 8*p + 4*ldi)}, v{10+ldi}, s[40:43], s53 offen sc1')
    for p in range(8):
        A(f's_waitcnt vmcnt({2*(7-p)})')
        for r in range(24 + 8 * p, 32 + 8 * p):
            A(f'v_xor_b32 v{r}, s{76 + (r & 3)}, v{r}')
        for ldi in range(2):
            r = 24 + 8 * p + 4 * ldi; d = 8 + ldi
            if p == 0:
                A(f'v_or3_b32 v{d}, v{r}, v{r+1}, v{r+2}\nv_or_b32 v{d}, v{d}, v{r+3}')
            else:
                A(f'v_or3_b32 v{d}, v{d}, v{r}, v{r+1}\nv_or3_b32 v{d}, v{d}, v{r+2}, v{r+3}')
        if p:
            for j in range(0, 8, 2):
                A(f'v_pk_add_f32 {vr(24+j,2)}, {vr(24+j,2)}, {vr(24+8*p+j,2)}')
    A('v_cndmask_b32 v9, 0, v9, s[64:65]\nv_or_b32 v8, v8, v9\nv_and_b32 v8, 0xfff, v8\nv_cmp_ne_u32 vcc, 0, v8')
    A('s_cbranch_vccz L_pa_got')
    stamp(A, 35)
    A(f's_sleep {PSLEEP}\ns_add_u32 s96, s96, 1\ns_cmp_lt_u32 s96, {SPIN_MAX}\ns_cbranch_scc1 L_pa_gather')
    A('L_pa_got:')
    if STAMP: A('v_writelane_b32 v1, s96, 36')
    stamp(A, 12)
    A('ds_write_b128 v19, v[24:27]\nds_write_b128 v20, v[28:31]')
    A('s_mov_b64 exec, 1\nds_write_b32 v23, v244 offset:80\ns_mov_b64 exec, -1')
    lds_wait(A, 0, 80, 248, 1, sleep=0)
    stamp(A, 13)
    for w in range(2):
        for mt in range(2):
            A(f'ds_read_b128 {vr(24+20*w+8*mt)}, v12 offset:{2*w*HSTR + 1280*mt}\nds_read_b128 {vr(28+20*w+8*mt)}, v12 offset:{2*w*HSTR + 1280*mt + 16}')
        A(f'ds_read_b64 {vr(40+20*w,2)}, v13 offset:{2*w*HSTR + 1600}')
    A('s_waitcnt lgkmcnt(0)')
    for j in range(0, 18, 2):
        A(f'v_pk_add_f32 {vr(24+j,2)}, {vr(24+j,2)}, {vr(44+j,2)}')
    for mt in range(2):
        b = 24 + 8 * mt
        for j in range(4):
            A(f'v_cvt_pk_bf16_f32 v{b+j}, v{b+2*j}, v{b+2*j+1}')
        for j in range(4):
            A(f'v_cndmask_b32 v{b+j}, 0, v{b+j}, {"s[60:61]" if j < 2 else "s[62:63]"}')
    A('v_cvt_pk_bf16_f32 v40, v40, v41\ns_nop 0')
    for mt in range(2):
        for t in range(5):
            A(f'v_mfma_f32_16x16x32_bf16 {vr(64+20*mt+4*t)}, {vr(24+8*mt)}, {vr(224+4*t)}, 0')
    A('s_mov_b64 exec, 0x3ff\nds_write_b32 v22, v40\ns_mov_b64 exec, -1\ns_nop 0')
    for mt in range(2):
        if mt == 1: A('s_mov_b64 exec, 0xffff')
        for t in range(5):
            b = 64 + 20 * mt + 4 * t
            A(f'v_cvt_pk_bf16_f32 v{b}, v{b}, v{b+1}\nv_cvt_pk_bf16_f32 v{b+1}, v{b+2}, v{b+3}')
            A(f'ds_write_b64 v{17+mt}, {vr(b,2)} offset:{256*t}')
    A('s_mov_b64 exec, 1\nds_write_b32 v23, v245 offset:80\ns_mov_b64 exec, -1')
    lds_wait(A, 0, 80, 248, 2, sleep=0)
    for i in range(4):
        A(f'ds_read_b128 {vr(24+4*i)}, v21 offset:{1024*i}')
    for i in range(3):
        A(f's_waitcnt lgkmcnt({3-i})\nbuffer_store_dwordx4 {vr(24+4*i)}, v15, s[40:43], s{55+i} offen sc1')
    A('s_waitcnt lgkmcnt(0)\ns_mov_b64 exec, s[58:59]\nbuffer_store_dwordx4 v[36:39], v15, s[40:43], s54 offen sc1')
    stamp(A, 14)
    if MACK: A('s_waitcnt vmcnt(0)')
    A('s_mov_b64 exec, 1\nds_write_b32 v23, v246 offset:80\ns_mov_b64 exec, -1')
    lds_wait(A, 0, 80, 248, 3, sleep=1)
    stamp(A, 15)


XCH = [0, 15360, 30720, WBASE + 4 * WSLOT]
def gen_awave(A):
    AC = 16; PQ = 96; MB = 176
    def a2(rt, t): return AC + 20 * rt + 4 * t
    def pq(kk, rt): return PQ + 16 * kk + 4 * rt
    A('s_load_dwordx2 s[8:9], s[0:1], 64')
    A(f'v_mov_b32 v0, {CT}')
    A('v_lshrrev_b32 v3, 4, v2\nv_and_b32 v4, 15, v2\nv_lshlrev_b32 v5, 4, v2\nv_lshlrev_b32 v6, 3, v2\nv_add_u32 v7, 4096, v5')
    if KVACK: A('s_waitcnt vmcnt(0)')
    A('s_cmp_eq_u32 s20, 0\ns_cbranch_scc1 L_a_sig')
    A('L_a_g:')
    get_epoch(A, 0, 8)
    set_flag(A, 74, 8)
    A('L_a_sig:')
    A(f'v_mov_b32 v8, 1\ns_lshl_b32 s48, s21, 2\nv_add_u32 v9, s48, v0\ns_mov_b64 exec, 1\nds_write_b32 v9, v8 offset:48\ns_mov_b64 exec, -1')
    stamp(A, 5)
    A('s_waitcnt lgkmcnt(0)')
    srd(A, 28, 8, 2621440)
    A('L_a_main:')
    A(f's_setprio {APRIO}')
    p2_ids(A)
    A(f's_lshr_b32 s48, s18, 1\ns_lshl_b32 s59, s48, {FSH}\ns_add_u32 s59, s59, {FG_OFF}')
    A('s_mul_i32 s48, s21, 5\ns_mul_i32 s54, s18, 68\ns_add_u32 s54, s54, s48\ns_add_u32 s54, s54, 48\ns_lshl_b32 s54, s54, 12')
    A(f's_mul_i32 s55, s19, 20\ns_add_u32 s55, s55, s48\ns_mul_i32 s55, s55, 5120\ns_add_u32 s55, s55, {M_OFF}')
    A(f's_lshl_b32 s53, s18, 8\ns_add_u32 s53, s53, {G_OFF}')
    A(f's_lshl_b32 s52, s19, 11\ns_lshl_b32 s49, s21, 9\ns_add_u32 s52, s52, s49\ns_add_u32 s52, s52, {ZB_OFF}')
    A(f's_lshl_b32 s58, s19, 11\ns_add_u32 s58, s58, {ZB_OFF}')
    A('v_lshlrev_b32 v14, 2, v4\nv_lshlrev_b32 v15, 7, v3')
    A('v_lshrrev_b32 v12, 2, v4\nv_cmp_eq_u32 s[60:61], v12, v3\nv_and_b32 v12, 1, v4\nv_cmp_eq_u32 s[62:63], 0, v12')
    A('s_and_b64 s[64:65], s[60:61], s[62:63]\ns_andn2_b64 s[66:67], s[60:61], s[62:63]')
    A(f's_mov_b32 s68, {EPS}\ns_mov_b32 s69, 0xffff0000')
    Q = []
    def ld(tag, txt):
        A(txt); Q.append(tag)
    def wait(tag):
        last = max(k for k, t in enumerate(Q) if t == tag)
        A(f's_waitcnt vmcnt({len(Q) - 1 - last})')
    def issueM(kk):
        A(f's_add_u32 s57, s55, {5120*kk}')
        for t in range(4):
            ld(('M', kk), f'buffer_load_dwordx4 {vr(mb(kk,t))}, v5, s[40:43], s57 offen offset:{1024*t} sc1')
        ld(('M', kk), f'buffer_load_dwordx4 {vr(mb(kk,4))}, v7, s[40:43], s57 offen sc1')
    ZR = 236
    ZIMG = CT + 1536
    mbuf = {0: MB, 1: MB + 20, 2: MB + 40, 3: MB, 4: MB + 20}
    def mb(kk, t): return mbuf[kk] + 4 * t
    for j in range(4):
        A(f's_add_u32 s48, s21, {j+1}\ns_and_b32 s{70+j}, s48, 3')
    A('s_cmp_lg_u32 s21, 2\ns_cbranch_scc1 L_a_nopollg')
    A('s_cmp_lg_u32 s20, 0\ns_cbranch_scc1 L_a_gg')
    lds_wait(A, 0, 80, 8, KVG, sleep=4)
    A('L_a_gg:')
    lds_wait(A, 0, 48, 8, 1, sleep=2)
    A('s_mov_b32 s96, 0\ns_mov_b32 s75, 0')
    A('L_a_gpoll:')
    A('s_mov_b32 exec_hi, 0xffff\nbuffer_load_dwordx2 v[8:9], v6, s[40:43], s59 offen sc1\ns_waitcnt vmcnt(0)\nv_cmp_ne_u64 vcc, s[88:89], v[8:9]\ns_mov_b32 exec_hi, -1')
    A('s_mov_b32 s74, 0')
    for g in range(4):
        A(f's_bfe_u64 s[76:77], vcc, {hex((12 << 16) | (12 * g))}\ns_cselect_b32 s48, 0, {1 << g}\ns_or_b32 s74, s74, s48')
    A('s_cmp_eq_u32 s74, s75\ns_cbranch_scc1 L_a_gsame')
    A('s_mov_b32 s75, s74\nv_mov_b32 v8, s74\ns_mov_b64 exec, 1\nds_write_b32 v0, v8 offset:64\ns_mov_b64 exec, -1')
    A('L_a_gsame:')
    A('s_cmp_eq_u32 s74, 15\ns_cbranch_scc1 L_a_nopollg')
    A(f's_sleep {PSLEEP}\ns_add_u32 s96, s96, 1\ns_cmp_lt_u32 s96, {SPIN_MAX}\ns_cbranch_scc1 L_a_gpoll')
    A('L_a_nopollg:')
    if FINEG:
        A('s_lshl_b32 s74, 3, s21\ns_lshr_b32 s74, s74, 1')
    else:
        A('s_mov_b32 s74, 15')
    lds_wait_mask(A, 0, 64, 8, 's74')
    stamp(A, 11)
    if COOP_P:
        A('s_mul_i32 s49, s19, 2560\ns_add_u32 s48, s54, s49')
        A('v_lshlrev_b32 v8, 7, v2\ns_mov_b64 exec, 0xfffff\nbuffer_load_dword v9, v8, s[40:43], s48 offen sc1\ns_mov_b64 exec, -1\ns_waitcnt vmcnt(0)')
    stamp(A, 21)
    for j in range(4):
        A(f's_lshl_b32 s48, s{70+j}, 10\ns_add_u32 s56, s54, s48')
        for kk in range(5 if j < NRC else 0):
            A(f'buffer_load_dwordx4 {vr(pq(kk,j))}, v5, s[40:43], s56 offen {LL}')
            if kk < 4: A('s_add_u32 s56, s56, 4096')
    stamp(A, 22)
    lds_wait_mask(A, 0, 64, 8, 8)
    stamp(A, 23)
    for j in range(4):
        A(f's_lshl_b32 s48, s{70+j}, 6\ns_add_u32 s56, s53, s48\nbuffer_load_dword v{10+j}, v14, s[40:43], s56 offen {LL}')
    A(f'v_lshrrev_b32 v8, 2, v2\nv_and_b32 v9, 3, v2\nv_mul_u32_u24 v24, 80, v8\nv_lshl_add_u32 v24, v9, 4, v24\nv_add_u32 v24, {ZIMG}, v24\nv_lshlrev_b32 v26, 7, v8\nv_lshl_add_u32 v26, v9, 4, v26')
    A(f's_mul_i32 s76, s19, 102400\ns_and_b32 s49, s18, 3\ns_mul_i32 s49, s49, 25600\ns_add_u32 s76, s76, s49\ns_mul_i32 s49, s21, 6400\ns_add_u32 s76, s76, s49\ns_add_u32 s76, s76, {M_OFF}\nv_lshlrev_b32 v27, 7, v2')
    lds_wait(A, 0, 72, 8, 1, four=False, sleep=2)
    A('s_cmp_lg_u32 s21, 1\ns_cbranch_scc1 L_a_oth2')
    A('s_cmp_eq_u32 s20, 0\ns_cbranch_scc1 L_a_nogate')
    lds_wait(A, 0, 144, 16, 1, sleep=1)
    A('L_a_nogate:')
    stamp(A, 24)
    A('buffer_load_dwordx4 v[16:19], v26, s[40:43], s58 offen sc1\nbuffer_load_dwordx4 v[20:23], v26, s[40:43], s58 offen offset:16 sc1')
    A('v_mov_b32 v8, 1\ns_mov_b64 exec, 1\nds_write_b32 v0, v8 offset:76\ns_mov_b64 exec, -1')
    A('L_a_oth2:')
    lds_wait(A, 0, 76, 8, 1, four=False, sleep=2)
    A('s_mov_b32 exec_hi, 0x3ffff\nbuffer_load_dword v95, v27, s[40:43], s76 offen sc1\ns_mov_b32 exec_hi, -1')
    A('s_cmp_lg_u32 s21, 1\ns_cbranch_scc1 L_a_nopoll')
    A('s_mov_b32 s96, 0\ns_waitcnt vmcnt(1)\ns_branch L_a_zchk')
    A('L_a_zpoll:')
    A('buffer_load_dwordx4 v[16:19], v26, s[40:43], s58 offen sc1\nbuffer_load_dwordx4 v[20:23], v26, s[40:43], s58 offen offset:16 sc1\ns_waitcnt vmcnt(0)')
    A('L_a_zchk:')
    A('v_max3_u32 v9, v16, v18, v20\nv_max_u32 v9, v9, v22\nv_cmp_eq_u32 vcc, -1, v9')
    A('s_cbranch_vccz L_a_zok')
    A(f's_sleep {MSLEEP}\ns_add_u32 s96, s96, 1\ns_cmp_lt_u32 s96, {SPIN_MAX}\ns_cbranch_scc1 L_a_zpoll')
    A('L_a_zok:')
    if STAMP: A('v_writelane_b32 v1, s96, 36')
    A('ds_write_b128 v24, v[16:19]\nds_write_b128 v24, v[20:23] offset:16')
    A('v_mov_b32 v8, 1\ns_mov_b64 exec, 1\nds_write_b32 v0, v8 offset:68\ns_mov_b64 exec, -1')
    A('L_a_nopoll:')
    A(f's_mul_i32 s48, s21, 320\ns_add_u32 s48, s48, {ZIMG}\nv_mul_u32_u24 v15, 80, v3\nv_add_u32 v15, s48, v15')
    lds_wait(A, 0, 68, 8, 1, four=False, sleep=2)
    stamp(A, 10)
    for kk in range(5):
        A(f'ds_read_b128 {vr(ZR+4*kk)}, v15 offset:{16*kk}')
    if SPEC_M:
        A('s_waitcnt vmcnt(1)')
    elif COOP_M:
        A(f's_mul_i32 s48, s19, 102400\ns_and_b32 s49, s18, 3\ns_mul_i32 s49, s49, 25600\ns_add_u32 s48, s48, s49\ns_mul_i32 s49, s21, 6400\ns_add_u32 s48, s48, s49\ns_add_u32 s48, s48, {M_OFF}')
        A('v_lshlrev_b32 v8, 7, v2\ns_mov_b32 exec_hi, 0x3ffff\nbuffer_load_dword v9, v8, s[40:43], s48 offen sc1\ns_mov_b32 exec_hi, -1')
    else:
        issueM(0); issueM(1); issueM(2)
    A('s_waitcnt lgkmcnt(0)')
    for kk in range(5):
        for j in range(4):
            m = 's[66:67]' if (4 * kk + j) >= 10 else 's[64:65]'
            A(f'v_cndmask_b32 v{ZR+4*kk+j}, 0, v{ZR+4*kk+j}, {m}')
    den = [AC + 4 * rt for rt in range(4)]
    if not SPEC_M: A(f's_waitcnt vmcnt({1 if COOP_M else 15})')
    stamp(A, 17)
    A('s_nop 0')
    for kk in range(5):
        for rt in range(NRC):
            d = vr(den[rt])
            A(f'v_mfma_f32_16x16x32_bf16 {d}, {vr(ZR+4*kk)}, {vr(pq(kk,rt))}, {d if kk else 0}')
    A('s_nop 7')
    SC = ZR; T0 = ZR + 8
    for rt in range(NRC):
        A(f'v_add_f32 v{den[rt]}, s68, v{den[rt]}\nv_add_f32 v{den[rt]+1}, s68, v{den[rt]+1}')
    for rt in range(NRC):
        A(f'v_rcp_f32 v{den[rt]}, v{den[rt]}\nv_rcp_f32 v{den[rt]+1}, v{den[rt]+1}')
    A('s_nop 0')
    for rt in range(NRC):
        A(f'v_mul_f32 v{SC+2*rt}, v{10+rt}, v{den[rt]}\nv_mul_f32 v{SC+2*rt+1}, v{10+rt}, v{den[rt]+1}')
    def norm_ops(kk):
        L = []
        for rt in range(NRC):
            r = pq(kk, rt)
            for j in range(4):
                L += [f'v_lshlrev_b32 v{T0+2*j}, 16, v{r+j}', f'v_and_b32 v{T0+2*j+1}, s69, v{r+j}']
            for j in range(4):
                odd = 1 if (4 * kk + j) >= 10 else 0
                L += [f'v_mul_f32 v{T0+2*j}, v{SC+2*rt+odd}, v{T0+2*j}', f'v_mul_f32 v{T0+2*j+1}, v{SC+2*rt+odd}, v{T0+2*j+1}']
            for j in range(4):
                L += [f'v_cvt_pk_bf16_f32 v{r+j}, v{T0+2*j}, v{T0+2*j+1}']
        return L
    stamp(A, 20)
    A('s_waitcnt vmcnt(0)')
    issueM(0); issueM(1)
    for kk in range(NLEAD):
        for l in norm_ops(kk): A(l)
        if kk == 0: issueM(2)
    stamp(A, 6)
    A('v_sub_f32 v14, 1.0, v13')
    for j in range(3):
        A(f's_mul_i32 s48, s{70+j}, 15360\ns_cmp_eq_u32 s{70+j}, 3\ns_cselect_b32 s48, {XCH[3]}, s48\ns_add_u32 s48, s48, {(2-j)*5120}\nv_add_u32 v{10+j}, s48, v5')
    A(f's_lshl_b32 s48, s21, 11\ns_add_u32 s48, s48, {XCH[3] + 15360 - 3072}\nv_add_u32 v13, s48, v5')
    A(f's_mul_i32 s48, s21, 5120\ns_add_u32 s48, s48, {WBASE + 2*WSLOT}\nv_add_u32 v15, s48, v5\ns_lshl_b32 s48, s21, 2\nv_add_u32 v6, s48, v0')
    for kk in range(5):
        nxt = norm_ops(kk + NLEAD) if kk + NLEAD < 5 else []
        wait(('M', kk))
        A('s_mov_b32 s96, 0')
        A(f'L_a_mchk{kk}:')
        m0 = mb(kk, 0)
        A(f'v_max3_u32 v8, v{m0}, v{m0+2}, v{m0+4}')
        for k in (3, 5, 7):
            A(f'v_max3_u32 v8, v8, v{m0+2*k}, v{m0+2*k+2}')
        A(f'v_max_u32 v8, v8, v{m0+18}\nv_cmp_eq_u32 vcc, -1, v8')
        A(f's_cbranch_vccnz L_a_mre{kk}')
        A(f'L_a_mok{kk}:')
        stamp(A, 31 + kk)
        if kk == 4:
            lds_wait(A, 0, 96, PQ, 1, sleep=1)
        if NRC == 2:
            lds_wait(A, 6, 160, 8, kk + 1, four=False, sleep=1)
            A(f'ds_read_b128 {vr(pq(kk,2))}, v15 offset:{1024*kk}\nds_read_b128 {vr(pq(kk,3))}, v15 offset:{WSLOT + 1024*kk}')
        for rt in range(4):
            if NRC == 2 and rt == 2:
                A('s_waitcnt lgkmcnt(0)')
                if kk == 4:
                    A('v_mov_b32 v8, 1\ns_mov_b64 exec, 1\nds_write_b32 v6, v8 offset:176\ns_mov_b64 exec, -1')
            for t in range(5):
                d = vr(a2(rt, t))
                A(f'v_mfma_f32_16x16x32_bf16 {d}, {vr(mb(kk,t))}, {vr(pq(kk,rt))}, {d if kk else 0}')
                for _ in range(NRC):
                    if nxt: A(nxt.pop(0))
                if kk == 4 and rt >= 2:
                    A(f'ds_write_b128 v{10+rt-2}, {vr(a2(rt-2,t))} offset:{t*1024}')
        if kk < 2:
            issueM(kk + 3)
    stamp(A, 12)
    for t in range(5):
        A(f'ds_write_b128 v12, {vr(a2(2,t))} offset:{t*1024}')
    A(f's_lshl_b32 s48, s21, 8\nv_lshlrev_b32 v8, 2, v2\nv_add_u32 v8, s48, v8\nds_write_b32 v8, v14 offset:{46080}')
    for t in (3, 4):
        A(f'ds_write_b128 v13, {vr(a2(3,t))} offset:{t*1024}')
    OWN = a2(3, 0)
    A(f's_mul_i32 s50, s21, 15360\ns_cmp_eq_u32 s21, 3\ns_cselect_b32 s50, {XCH[3]}, s50')
    A(f's_mul_i32 s48, s21, {WSLOT}\ns_add_u32 s48, s48, {WBASE}\nv_add_u32 v8, s48, v5\nv_mov_b32 v15, v14\nv_add_u32 v7, s50, v5')
    A('s_lshl_b32 s48, s18, 6\ns_lshl_b32 s49, s21, 4\ns_add_u32 s48, s48, s49\nv_add_u32 v9, s48, v4\nv_mul_u32_u24 v9, 1280, v9\nv_lshl_add_u32 v9, v3, 3, v9\ns_mul_i32 s48, s19, 160')
    A('s_waitcnt lgkmcnt(0)')
    A('s_barrier')
    stamp(A, 13)
    for r in range(4):
        for t in range(3):
            A(f'ds_read_b128 {vr(PQ+12*r+4*t)}, v8 offset:{r*5120 + 1024*t}')
    A('s_waitcnt lgkmcnt(6)')
    for r in range(3):
        for t in range(3):
            A(f'ds_read_b128 {vr(AC+12*r+4*t)}, v7 offset:{r*5120 + 1024*t}')
    for k in range(0, 12, 2):
        A(f'v_pk_add_f32 {vr(PQ+k,2)}, {vr(PQ+k,2)}, {vr(PQ+12+k,2)}')
    A('s_waitcnt lgkmcnt(9)')
    for k in range(0, 12, 2):
        A(f'v_pk_add_f32 {vr(PQ+24+k,2)}, {vr(PQ+24+k,2)}, {vr(PQ+36+k,2)}')
    for k in range(0, 12, 2):
        A(f'v_pk_add_f32 {vr(PQ+k,2)}, {vr(PQ+k,2)}, {vr(PQ+24+k,2)}')
    for k in range(0, 12, 2):
        A(f'v_pk_fma_f32 {vr(OWN+k,2)}, {vr(PQ+k,2)}, v[14:15], {vr(OWN+k,2)}')
    for sl in range(3):
        A(f's_waitcnt lgkmcnt({6 - 3*sl})')
        for k in range(0, 12, 2):
            A(f'v_pk_add_f32 {vr(OWN+k,2)}, {vr(OWN+k,2)}, {vr(AC+12*sl+k,2)}')
    for t in range(3):
        b = OWN + 4 * t
        A(f'v_cvt_pk_bf16_f32 v{b}, v{b}, v{b+1}\nv_cvt_pk_bf16_f32 v{b+1}, v{b+2}, v{b+3}')
        A(f'buffer_store_dwordx2 {vr(b,2)}, v9, s[28:31], s48 offen offset:{32*t}')
    stamp(A, 14)
    finish(A)
    for kk in range(5):
        A(f'L_a_mre{kk}:')
        A('s_sleep 4')
        issueM(kk)
        A(f's_waitcnt vmcnt(0)\ns_add_u32 s96, s96, 1\ns_cmp_lt_u32 s96, {SPIN_MAX}\ns_cbranch_scc1 L_a_mchk{kk}')
        A(f's_branch L_a_mok{kk}')


def gen_loader(A):
    A.c('s67 = lw ; role constants: s68 strideA, s60 cA, s61 cB, s62 xB, s63 c4, s64 hi-mult')
    A('s_sub_u32 s67, s21, 4')
    A('s_mul_i32 s48, s19, 320\ns_add_u32 s48, s48, 1280\ns_and_b32 s57, s19, 1\ns_lshl_b32 s58, s57, 6\ns_add_u32 s58, s58, s48')
    A('s_xor_b32 s57, s57, 1\ns_lshl_b32 s57, s57, 8\ns_add_u32 s57, s57, s48\ns_add_u32 s59, s58, 1280')
    A('s_lshl_b32 s48, s22, 8\ns_lshl_b32 s49, s22, 7\ns_movk_i32 s56, 3072')
    A('s_cmp_eq_u32 s20, 0')
    A('s_cselect_b32 s68, 3840, s56\ns_cselect_b32 s60, s58, s48\ns_cselect_b32 s61, s59, s48\ns_cselect_b32 s62, 1, 0\ns_cselect_b32 s63, s57, s49\ns_cselect_b32 s64, 1280, 64')
    A(f's_cmp_lg_u32 s91, 0\ns_cselect_b32 s63, {OOB}, s63')
    A(f'v_mov_b32 v29, {OOB}\ns_lshl_b32 s75, s68, 5\ns_lshl_b32 s69, s18, 2\ns_add_u32 s69, s69, s19\nv_and_b32 v3, 31, v2\nv_lshrrev_b32 v4, 5, v2')
    A('s_movk_i32 s48, 3072\ns_cmp_eq_u32 s67, 1\ns_cselect_b32 s48, 3840, s48\ns_lshr_b32 s49, s48, 7\ns_lshl_b32 s85, s48, 6\ns_movk_i32 s56, 128')
    A('s_cmp_eq_u32 s67, 0\ns_cselect_b32 s48, 40960, s48\ns_cselect_b32 s49, 32, s49\ns_cselect_b32 s85, 128, s85\ns_cselect_b32 s56, 1280, s56\ns_mul_i32 s48, s48, s69')
    A('v_mul_u32_u24 v5, s56, v3\nv_mul_u32_u24 v6, s85, v4\nv_add3_u32 v5, v5, v6, s48\nv_cmp_gt_u32 vcc, s49, v3')
    st0 = sum(EV[m][0] << (4 * m) for m in EV)
    A(f's_lshl_b32 s56, s20, 2\ns_lshr_b32 s56, {hex(st0)}, s56\ns_and_b32 s56, s56, 15\nv_cndmask_b32 v30, v29, v5, vcc\ns_mul_i32 s56, s56, s85')
    A('s_mov_b32 s26, 2621440\ns_mov_b32 s27, 0x20000\ns_mov_b32 s31, 0x20000\ns_mov_b32 s35, 0x20000\ns_mov_b32 s39, 0x20000\ns_mov_b32 s83, 0x20000\ns_mov_b32 s48, 1966080\ns_mov_b32 s38, 2457600')
    A('s_cmp_eq_u32 s20, 0\ns_cselect_b32 s30, s38, s48\ns_mov_b32 s34, s30')
    A(f'v_mov_b32 v38, {CT}\nv_lshl_add_u32 v39, v2, 2, v38\nv_mov_b32 v44, 0\ns_lshl_b32 s71, s67, 8\nds_write_b32 v39, v44\nv_add_u32 v39, s71, v39\nds_write_b32 v39, v44 offset:256')
    A(f'v_and_b32 v39, 3, v2\nv_lshlrev_b32 v39, 8, v39\nv_add_u32 v39, {CT+256}, v39\ns_lshl_b32 s71, s67, 2\ns_add_u32 s71, s71, {CT}')
    A('s_cmp_eq_u32 s20, 0')
    A('s_waitcnt lgkmcnt(0)')
    A('s_mov_b32 s24, s4\ns_mov_b32 s25, s5\ns_mov_b32 s36, s6\ns_mov_b32 s37, s7')
    A('s_cselect_b32 s28, s6, s8\ns_cselect_b32 s29, s7, s9\ns_cselect_b32 s32, s6, s10\ns_cselect_b32 s33, s7, s11')
    A('s_cmp_eq_u32 s67, 2\ns_cselect_b32 s80, s8, s10\ns_cselect_b32 s81, s9, s11')
    A('s_cmp_eq_u32 s67, 1\ns_cselect_b32 s80, s6, s80\ns_cselect_b32 s81, s7, s81\ns_cselect_b32 s82, s38, s48')
    A('s_cmp_eq_u32 s67, 0\ns_cselect_b32 s80, s4, s80\ns_cselect_b32 s81, s5, s81\ns_cselect_b32 s82, s26, s82')
    stamp(A, 1)
    def issueW():
        for L in range(5):
            sr = 28 if L < 2 else (32 if L < 4 else 36)
            dma(A, f's_add_u32 m0, s77, {L*1024}', 10 + L, sr, 70 if L < 4 else 72)
        A('s_add_u32 s70, s70, s75\ns_add_u32 s72, s72, s76')
        A(f's_add_u32 s77, s77, {WSLOT}\ns_cmp_ge_u32 s77, {WBASE + NW*WSLOT}\ns_cselect_b32 s48, {NW*WSLOT}, 0\ns_sub_u32 s77, s77, s48')
    def issueX():
        for i in range(4):
            dma(A, f's_add_u32 m0, s78, {i*1024}', 16 + i, 24, 74)
        A('s_add_u32 s74, s74, 128')
        A(f's_add_u32 s78, s78, {XSLOT}\ns_cmp_ge_u32 s78, {NX*XSLOT}\ns_cselect_b32 s48, {NX*XSLOT}, 0\ns_sub_u32 s78, s78, s48')
    def flag():
        A('s_mov_b32 m0, s71\ns_lshl_b32 s48, s65, 2\ns_mov_b64 exec, 1\nbuffer_load_dword v44, s[8:11], s48 offen offset:0 lds\ns_mov_b64 exec, -1')
    A('s_mov_b32 s97, s56')
    if START2:
        A('s_lshr_b32 s56, s85, 6\ns_lshr_b32 s57, s85, 13\ns_cmp_eq_u32 s67, 0\ns_cselect_b32 s56, 10240, s56\ns_cselect_b32 s57, 64, s57\ns_mul_i32 s56, s56, s2')
        A(f's_cmp_ge_u32 s2, {START2}\ns_cselect_b32 s48, s67, 0\ns_cmp_lg_u32 s48, 0\ns_cselect_b32 s57, 0, s57')
        A('v_lshlrev_b32 v34, 7, v2\nv_cmp_gt_u32 vcc, s57, v2\ns_nop 1\nv_cndmask_b32 v34, v29, v34, vcc')
        A('buffer_load_dword v36, v34, s[80:83], s56 offen')
        A('s_cmp_lg_u32 s67, 0\ns_cbranch_scc1 L_nor0')
        A('s_add_u32 s56, s56, 8192\ns_mov_b64 exec, 0xffff\nbuffer_load_dword v37, v34, s[80:83], s56 offen\ns_mov_b64 exec, -1\nv_mov_b32 v30, v29')
        A('s_branch L_nor0')
    A('s_cmp_eq_u32 s20, 0\ns_cbranch_scc1 L_nor0' if not R0LATE else 's_cmp_lg_u32 s20, 1\ns_cbranch_scc1 L_nor0')
    A('s_mov_b32 exec_hi, 0\nbuffer_load_dword v36, v30, s[80:83], s56 offen\ns_mov_b32 exec_hi, -1')
    A('L_nor0:')
    A('s_barrier')
    A('s_cmp_eq_u32 s55, 0\ns_cbranch_scc1 L_nogw0')
    srd(A, 44, 14, 1280)
    A('v_lshlrev_b32 v40, 1, v2')
    for j in range(10):
        A(f'buffer_load_ushort v{50+j}, v40, s[44:47], 0 offen offset:{128*j}')
    A('L_nogw0:')
    A('v_lshrrev_b32 v3, 3, v2\nv_and_b32 v4, 7, v2')
    A('s_lshl_b32 s48, s18, 7\ns_lshl_b32 s56, s67, 5\ns_add_u32 s48, s48, s56\nv_add_u32 v7, s48, v3\nv_mul_u32_u24 v7, 1280, v7')
    A('v_lshrrev_b32 v8, 4, v2\nv_xor_b32 v8, v8, v4\nv_lshl_add_u32 v16, v8, 4, v7')
    A('v_xor_b32 v8, 4, v8\nv_lshl_add_u32 v17, v8, 4, v7\nv_add_u32 v17, 10240, v17')
    A('v_add_u32 v18, 20480, v16\nv_add_u32 v19, 20480, v17')
    A('s_lshl_b32 s56, s67, 3\nv_add_u32 v5, s56, v3')
    A('s_and_b32 s56, s67, 1\ns_lshl_b32 s56, s56, 2\nv_and_b32 v6, 2, v3\nv_xor_b32 v6, v6, v4\nv_xor_b32 v6, s56, v6')
    A('v_mul_u32_u24 v7, s68, v5\nv_lshl_add_u32 v8, v6, 4, v7\nv_add_u32 v10, s60, v8\nv_add_u32 v11, 128, v10')
    A('v_xor_b32 v9, s62, v6\nv_lshl_add_u32 v8, v9, 4, v7\nv_add_u32 v12, s61, v8\nv_add_u32 v13, 128, v12')
    A('v_lshrrev_b32 v8, 2, v6\nv_and_b32 v9, s62, v8\nv_and_b32 v6, 3, v6\nv_xor_b32 v6, v6, v9\nv_mul_u32_u24 v7, 3840, v5')
    A('v_lshl_add_u32 v7, v6, 4, v7\nv_mul_u32_u24 v8, s64, v8\nv_add3_u32 v14, v7, v8, s63')
    A(f's_mov_b32 s76, {32*3840}\ns_mov_b32 s70, 0\ns_mov_b32 s72, 0\ns_mov_b32 s74, 0')
    A(f's_mul_i32 s77, s67, 5120\ns_add_u32 s77, s77, {WBASE}\ns_lshl_b32 s78, s67, 12')
    issueX(); issueW()
    if L2PF:
        A('s_cmp_eq_u32 s67, 2\ns_cselect_b32 s48, s60, s61\ns_cselect_b32 s4, s28, s32\ns_cselect_b32 s5, s29, s33\ns_mov_b32 s6, s30\ns_mov_b32 s49, s68\ns_movk_i32 s56, 128')
        A('s_cmp_eq_u32 s67, 1\ns_cselect_b32 s48, s63, s48\ns_cselect_b32 s4, s36, s4\ns_cselect_b32 s5, s37, s5\ns_cselect_b32 s6, s38, s6\ns_cselect_b32 s49, 3840, s49\ns_cselect_b32 s56, s64, s56')
        A('s_lshl_b32 s94, s49, 6\ns_lshl_b32 s57, s23, 3\nv_add_u32 v33, s57, v4\nv_bfe_u32 v34, v2, 4, 1\nv_lshl_add_u32 v33, v34, 6, v33\nv_mul_u32_u24 v33, s49, v33')
        A('v_bfe_u32 v34, v2, 3, 1\nv_mul_u32_u24 v34, s56, v34\nv_add3_u32 v33, v33, v34, s48\nv_cmp_gt_u32 vcc, 32, v2\ns_mov_b32 s7, 0x20000\ns_nop 0\nv_cndmask_b32 v33, v29, v33, vcc')
        A('s_cmp_lg_u32 s67, 0\ns_cbranch_scc1 L_l2x')
        A('s_mov_b32 s4, s24\ns_mov_b32 s5, s25\ns_mov_b32 s6, s26\ns_movk_i32 s94, 128\ns_lshl_b32 s48, s18, 7\ns_lshl_b32 s49, s20, 5\ns_add_u32 s48, s48, s49')
        A('v_and_b32 v33, 31, v2\nv_add_u32 v33, s48, v33\nv_mul_u32_u24 v33, 1280, v33\nv_lshrrev_b32 v34, 5, v2\nv_lshl_add_u32 v33, v34, 7, v33')
        A('L_l2x:')
        A(f's_mul_i32 s95, s94, {L2PF}\ns_lshl_b32 s94, s94, 1')
    A('s_load_dwordx2 s[86:87], s[0:1], 72')
    A('s_cmp_eq_u32 s55, 0\ns_cbranch_scc1 L_nogw')
    A('v_and_b32 v41, 3, v2\nv_lshlrev_b32 v41, 3, v41')
    A('v_bfe_u32 v40, v2, 2, 1\nv_lshl_add_u32 v41, v40, 9, v41')
    A('v_bfe_u32 v40, v2, 3, 2\nv_lshl_add_u32 v41, v40, 5, v41')
    A(f'v_bfe_u32 v40, v2, 5, 1\nv_mul_u32_u24 v40, {GWS}, v40\nv_add_u32 v41, v40, v41')
    A(f'v_add_u32 v41, {GWBASE}, v41')
    A('s_waitcnt vmcnt(9)')
    for j in range(10):
        A(f'v_lshl_or_b32 v{80+2*j}, v{50+j}, 16, v{50+j}\nv_mov_b32 v{81+2*j}, v{80+2*j}')
        A(f'ds_write_b64 v41, v[{80+2*j}:{81+2*j}] offset:{2*GWS*j}')
    A('L_nogw:')
    srd(A, 40, 16, WS_USED)
    srd(A, 44, 12, 1966080)
    A('s_waitcnt lgkmcnt(0)')
    A('s_lshl_b32 s48, s2, 2\ns_add_u32 s48, s48, s67\ns_cmp_lg_u32 s48, 0\ns_cbranch_scc1 L_noep')
    A('s_memrealtime s[88:89]\ns_waitcnt lgkmcnt(0)\ns_or_b32 s88, s88, 1\nv_mov_b32 v42, s88\nv_mov_b32 v43, s89')
    A('s_mov_b64 exec, 1\nglobal_store_dwordx2 v44, v[42:43], s[86:87] sc1\ns_mov_b64 exec, -1')
    A('L_noep:')
    A('v_lshlrev_b32 v5, 4, v2\nv_lshlrev_b32 v6, 3, v2\nv_add_u32 v7, 4096, v5')
    assert RPORD.index(10) >= 8
    tab = sum(RPORD.index(t) << (4 * t) for t in range(12))
    A(f's_mov_b32 s56, {hex(tab & 0xffffffff)}\ns_mov_b32 s57, {hex(tab >> 32)}\ns_lshl_b32 s48, s22, 2\ns_lshr_b64 s[56:57], s[56:57], s48\ns_and_b32 s48, s56, 15\ns_lshl_b32 s48, s48, 4\ns_add_u32 s48, s48, s18')
    A('s_sub_u32 s60, s48, 120\ns_lshl_b32 s60, s60, 2\ns_add_u32 s60, s60, s67\ns_lshl_b32 s92, s48, 1\ns_add_u32 s92, s92, s67')
    A('s_cmp_lt_u32 s67, 2\ns_cselect_b32 s92, s92, 999\ns_cmp_lt_u32 s92, 240\ns_cselect_b32 s64, 1, 0\ns_cmp_lt_u32 s60, 256\ns_cselect_b32 s64, 2, s64')
    A('s_mul_i32 s62, s92, 52429\ns_lshr_b32 s62, s62, 18\ns_mul_i32 s63, s62, 5\ns_sub_u32 s63, s92, s63')
    A(f's_mul_i32 s79, s62, {32*1280}\ns_lshl_b32 s56, s63, 8\ns_add_u32 s79, s79, s56\ns_lshl_b32 s63, s63, 3\ns_mul_i32 s62, s62, 5')
    A(f's_lshl_b32 s92, s92, 3\ns_add_u32 s92, s92, {FW_OFF}\ns_lshl_b32 s93, s67, 12\ns_add_u32 s93, s93, {RPK}')
    A(f's_lshl_b32 s48, s60, 3\ns_add_u32 s48, s48, {FP_OFF}\ns_cmp_eq_u32 s64, 2\ns_cselect_b32 s92, s48, s92')
    A('v_and_b32 v8, 2, v3\nv_xor_b32 v8, v8, v4\nv_mul_u32_u24 v9, 1280, v3\nv_lshl_add_u32 v20, v8, 4, v9')
    A('v_xor_b32 v8, 4, v8\nv_lshl_add_u32 v21, v8, 4, v9\nv_add_u32 v21, 10240, v21\nv_add_u32 v22, 20480, v20\nv_add_u32 v23, 20480, v21')
    A('v_lshrrev_b32 v8, 2, v2\nv_and_b32 v9, 3, v2\nv_lshlrev_b32 v8, 7, v8\nv_lshl_add_u32 v8, v9, 3, v8\nv_add_u32 v8, s93, v8')
    A('v_bfe_u32 v9, v2, 3, 1\nv_lshrrev_b32 v28, 5, v2\nv_lshl_add_u32 v9, v28, 1, v9')
    for tl in range(4):
        A(f'v_xor_b32 v28, {tl}, v9\nv_lshl_add_u32 v{24+tl}, v28, 5, v8')
    A('v_mul_u32_u24 v31, 1280, v2')
    if 'NODUTY' in EXP: A('s_mov_b32 s64, 0')
    pk = {m: sum(((t | (b0 << 4)) << (8 * k)) for k, (t, b0) in enumerate(EV[m][1])) | (0xFF << (8 * len(EV[m][1]))) for m in EV}
    A(f's_mov_b32 s84, -1\ns_cmp_eq_u32 s20, 1\ns_cselect_b32 s84, {hex(pk[1])}, s84\ns_cmp_eq_u32 s20, 2\ns_cselect_b32 s84, {hex(pk[2])}, s84\ns_cmp_eq_u32 s20, 3\ns_cselect_b32 s84, {hex(pk[3])}, s84\ns_and_b32 s58, s84, 15')
    AC = 24; WR = 104; HBUF = 224
    def a2(rt, t): return AC + 20 * rt + 4 * t
    regset = {0: 0, 1: 1, 2: 2, 9: 3, 10: 4, 11: 5}
    lds_unit = {3: WBASE, 4: WBASE + WSLOT, 5: WBASE + 2*WSLOT, 6: WBASE + 3*WSLOT, 7: 20480, 8: WBASE + 4*WSLOT}
    def kidx(i, dst):
        A(f's_add_u32 s{dst}, s23, {i}\ns_cmp_ge_u32 s{dst}, 12\ns_cselect_b32 s48, 12, 0\ns_sub_u32 s{dst}, s{dst}, s48')
    def w2reg(i):
        kidx(i, 56)
        A('s_mul_i32 s56, s56, 5120\ns_add_u32 s56, s56, s50')
        for t in range(5):
            b = WR + 20 * regset[i] + 4 * t
            if t == 0: A(f's_waitcnt vmcnt({STG_THR})')
            A(f'buffer_load_dwordx4 {vr(b)}, v{5 if t < 4 else 7}, s[40:43], s56 offen offset:{1024*(t&3)} sc1')
    def w2lds(i):
        kidx(i, 56)
        A('s_mul_i32 s56, s56, 5120\ns_add_u32 s56, s56, s50')
        A(f's_add_u32 m0, s52, {lds_unit[i]}\ns_waitcnt vmcnt({STG_THR})')
        for t in range(4):
            A(f'buffer_load_dwordx4 v5, s[40:43], s56 offen offset:{1024*t} sc1 lds')
        A(f's_add_u32 m0, s52, {lds_unit[i] + 4096}\ns_nop 0')
        A('buffer_load_dwordx4 v7, s[40:43], s56 offen sc1 lds')
    def trace():
        if STAMP and 'quiet' not in EXP:
            A('s_memtime s[98:99]\ns_add_u32 s48, s65, 38\ns_mov_b32 m0, s48\ns_waitcnt lgkmcnt(0)\nv_writelane_b32 v1, s98, m0')
    def ensure_free():
        if 'nofree' in EXP: return
        l = A.label('L_free')
        A(f's_sub_u32 s57, s65, 4\ns_cmp_ge_i32 s66, s57\ns_cbranch_scc1 {l}')
        tbeg(A)
        lds_wait(A, 39, 0, 48, 's57', four='free', sdst=66, sleep=LSLEEP)
        tend(A, 100)
        A(f'{l}:')
    stamp(A, 2)
    table_srd(A, 8)
    A('s_mov_b32 s65, 1\ns_mov_b32 s66, 0')
    flag()
    if R0LATE:
        A('s_cmp_lt_u32 s20, 2\ns_cbranch_scc1 L_nor1')
        A('s_mov_b32 exec_hi, 0\nbuffer_load_dword v36, v30, s[80:83], s97 offen\ns_mov_b32 exec_hi, -1')
        A('L_nor1:')
    A('s_branch L_ld_odd')
    A('.p2align 3')
    A('L_ld_loop:')
    ensure_free()
    if L2PF:
        A(f's_bitcmp1_b32 s65, 1\ns_cbranch_scc0 L_nol2\ns_cmp_gt_u32 s65, {2 + 4 * ((9 - L2PF) // 2)}\ns_cbranch_scc1 L_nol2')
        A('buffer_load_dword v35, v33, s[4:7], s95 offen\ns_add_u32 s95, s95, s94')
        A('L_nol2:')
    issueX(); issueW()
    trace()
    A('s_add_u32 s65, s65, 1')
    flag()
    A('L_ld_odd:')
    ensure_free()
    issueW()
    trace()
    A('s_lshr_b32 s49, s65, 1\ns_add_u32 s65, s65, 1')
    flag()
    A('s_cmp_eq_u32 s49, s58\ns_cbranch_scc1 L_ev_round')
    A('L_ev_r1:')
    A('s_cmp_lt_u32 s65, 20\ns_cbranch_scc1 L_ld_loop')
    A('s_branch L_ld_done')
    A('L_ev_round:')
    A('s_bfe_u32 s59, s84, 0x40004\ns_lshr_b32 s84, s84, 8\ns_and_b32 s58, s84, 15')
    A('s_cmp_gt_u32 s59, 9\ns_cbranch_scc1 L_ev_flag')
    lds_wait(A, 38, 0, 48, 's65')
    A('s_mul_i32 s56, s85, s59\nbuffer_load_dword v36, v30, s[80:83], s56 offen')
    if THIRD:
        A(f's_cmp_lg_u32 s59, {THIRD}\ns_cbranch_scc1 L_ev_no3')
        A('s_mul_i32 s56, s85, 9\ns_mov_b32 exec_hi, 0\nbuffer_load_dword v37, v30, s[80:83], s56 offen\ns_mov_b32 exec_hi, -1')
        A('L_ev_no3:')
    A('s_cmp_eq_u32 s64, 0\ns_cbranch_scc1 L_ev_rw')
    A('global_load_dwordx2 v[42:43], v44, s[86:87] sc1')
    A('s_cmp_eq_u32 s64, 2\ns_cbranch_scc1 L_ev_poison')
    A('s_mov_b32 exec_hi, 0\nbuffer_load_dword v37, v31, s[44:47], s79 offen offset:128\ns_mov_b32 exec_hi, -1')
    for e in range(2):
        for g in range(4):
            dma(A, f's_add_u32 m0, s93, {g*1024}', 20 + g, 44, 79)
        A('s_add_u32 s79, s79, 128')
        A('s_waitcnt vmcnt(0)')
        for tl in range(4):
            A(f'ds_read_b64_tr_b16 {vr(64+16*e+4*tl,2)}, v{24+tl}\nds_read_b64_tr_b16 {vr(66+16*e+4*tl,2)}, v{24+tl} offset:2048')
        A('s_waitcnt lgkmcnt(0)')
    if not DEFER:
        for tl in range(8):
            A(f's_add_u32 s56, s63, {tl}\ns_mul_i32 s57, s56, 52429\ns_lshr_b32 s57, s57, 18\ns_mul_i32 s57, s57, 235\ns_add_u32 s57, s57, s56\ns_add_u32 s57, s57, s62\ns_lshl_b32 s57, s57, 10\ns_add_u32 s57, s57, {W2_OFF}')
            A(f'buffer_store_dwordx4 {vr(64+4*tl)}, v5, s[40:43], s57 offen sc1')
    A('s_branch L_ev_r1')
    A('L_ev_poison:')
    A('v_mov_b32 v64, -1\nv_mov_b32 v65, -1\nv_mov_b32 v66, -1\nv_mov_b32 v67, -1')
    A(f's_mul_i32 s56, s60, 3200\ns_add_u32 s56, s56, {M_OFF}\ns_lshl_b32 s57, s60, 7\ns_add_u32 s57, s57, {ZB_OFF}\ns_cmp_lt_u32 s60, 128\ns_cselect_b32 s57, s57, {OOB}')
    for k in range(3):
        A(f'buffer_store_dwordx4 v[64:67], v5, s[40:43], s56 offen offset:{1024*k} sc1')
    A('s_mov_b64 exec, 0xff\nbuffer_store_dwordx4 v[64:67], v5, s[40:43], s56 offen offset:3072 sc1')
    A('buffer_store_dwordx4 v[64:67], v5, s[40:43], s57 offen sc1\ns_mov_b64 exec, -1')
    A('L_ev_rw:')
    A('s_waitcnt vmcnt(0)')
    A('s_branch L_ev_r1')
    A('L_ev_flag:')
    A('s_cmp_eq_u32 s64, 0\ns_cbranch_scc1 L_ev_r1')
    if DEFER:
        A('s_cmp_eq_u32 s59, 15\ns_cbranch_scc1 L_ev_fl2\ns_cmp_lg_u32 s64, 1\ns_cbranch_scc1 L_ev_r1')
        for tl in range(8):
            A(f's_add_u32 s56, s63, {tl}\ns_mul_i32 s57, s56, 52429\ns_lshr_b32 s57, s57, 18\ns_mul_i32 s57, s57, 235\ns_add_u32 s57, s57, s56\ns_add_u32 s57, s57, s62\ns_lshl_b32 s57, s57, 10\ns_add_u32 s57, s57, {W2_OFF}')
            A(f'buffer_store_dwordx4 {vr(64+4*tl)}, v5, s[40:43], s57 offen sc1')
        A('s_branch L_ev_r1')
        A('L_ev_fl2:')
    l0 = A.label('L_ep'); l1 = A.label('L_epok')
    A('s_mov_b32 s90, 0\ns_waitcnt vmcnt(15)')
    A(f'{l0}:')
    A('v_readfirstlane_b32 s88, v42')
    A(f's_cmp_lg_u32 s88, 0\ns_cbranch_scc1 {l1}')
    A('s_sleep 4\nglobal_load_dwordx2 v[42:43], v44, s[86:87] sc1\ns_waitcnt vmcnt(0)')
    A(f's_add_u32 s90, s90, 1\ns_cmp_lt_u32 s90, {SPIN_MAX}\ns_cbranch_scc1 {l0}')
    A(f'{l1}:')
    A('s_mov_b64 exec, 1\nbuffer_store_dwordx2 v[42:43], v44, s[40:43], s92 offen sc1\ns_mov_b64 exec, -1')
    A('s_branch L_ev_r1')
    A('L_ld_done:')
    trace()
    if 'p1' in EXP: finish(A)
    A('s_cmp_lg_u32 s20, 0\ns_cbranch_scc1 L_nowo')
    if PAX:
        A('s_and_b32 s69, s2, 7\ns_lshl_b32 s69, s69, 3\ns_bfe_u32 s48, s2, 0x30003\ns_add_u32 s69, s69, s48')
    A('s_load_dwordx2 s[24:25], s[0:1], 16\ns_mov_b32 s26, 819200\ns_mov_b32 s27, 0x20000')
    A('s_lshr_b32 s48, s69, 2\ns_lshl_b32 s48, s48, 1\ns_and_b32 s49, s67, 1\ns_add_u32 s48, s48, s49\ns_mul_i32 s48, s48, 25600')
    A('s_and_b32 s49, s69, 3\ns_lshl_b32 s49, s49, 1\ns_lshr_b32 s56, s67, 1\ns_add_u32 s49, s49, s56\ns_mul_i32 s49, s49, 160\ns_add_u32 s48, s48, s49')
    A('v_lshrrev_b32 v8, 1, v2\nv_mul_u32_u24 v8, 1280, v8\nv_and_b32 v9, 1, v2\nv_mul_u32_u24 v9, 156, v9\nv_add_u32 v8, v8, v9')
    A('s_mov_b32 s73, s48\ns_waitcnt lgkmcnt(0)\nbuffer_load_dword v36, v8, s[24:27], s48 offen')
    A('L_nowo:')
    def bsetup():
        p2_ids(A)
        A('s_mul_i32 s23, s19, 3\ns_lshr_b32 s23, s23, 1\ns_and_b32 s48, s18, 3\ns_mul_i32 s48, s48, 3\ns_add_u32 s23, s23, s48\ns_cmp_ge_u32 s23, 12\ns_cselect_b32 s48, 12, 0\ns_sub_u32 s23, s23, s48')
        A(f's_mul_i32 s48, s67, 12\ns_mul_i32 s50, s19, 48\ns_add_u32 s50, s50, s48\ns_mul_i32 s50, s50, 5120\ns_add_u32 s50, s50, {W2_OFF}')
        A('s_mul_i32 s51, s18, 68\ns_add_u32 s51, s51, s48\ns_lshl_b32 s51, s51, 12')
        A('s_mul_i32 s52, s67, 5120')
    A(f'v_mov_b32 v0, {CT}')
    bsetup()
    A(f's_mul_i32 s53, s67, 480\ns_mul_i32 s48, s19, 5\ns_lshr_b32 s48, s48, 2\ns_add_u32 s53, s53, {FW_OFF}')
    A('v_lshrrev_b32 v8, 1, v2\nv_mul_u32_u24 v8, 40, v8\nv_and_b32 v9, 1, v2\nv_add_u32 v9, s48, v9\nv_lshrrev_b32 v9, 1, v9\nv_lshl_add_u32 v28, v9, 3, v8')
    A(f's_lshr_b32 s48, s18, 1\ns_lshl_b32 s54, s48, {FSH}\ns_add_u32 s54, s54, {FG_OFF}')
    A(f's_mov_b32 s55, {FP_OFF}\ns_mov_b32 s90, 0\nv_cmp_gt_u32 s[58:59], 24, v2')
    A('L_b_chk:')
    A('global_load_dwordx2 v[42:43], v44, s[86:87] sc1')
    A('s_mov_b64 exec, s[58:59]\nbuffer_load_dwordx2 v[46:47], v28, s[40:43], s53 offen sc1\ns_mov_b64 exec, -1')
    A('s_cmp_lg_u32 s67, 1\ns_cbranch_scc1 L_b_chk1')
    A('buffer_load_dwordx4 v[48:51], v5, s[40:43], s55 offen sc1\nbuffer_load_dwordx4 v[52:55], v5, s[40:43], s55 offen offset:1024 sc1')
    A('L_b_chk1:')
    A('s_waitcnt vmcnt(0)')
    A('v_readfirstlane_b32 s88, v42\nv_readfirstlane_b32 s89, v43\ns_nop 1')
    A('v_cmp_ne_u64 s[60:61], s[88:89], v[46:47]\ns_and_b64 s[60:61], s[60:61], s[58:59]')
    A('s_cmp_lg_u32 s67, 1\ns_cbranch_scc1 L_b_chk2')
    A('v_cmp_ne_u64 s[62:63], s[88:89], v[48:49]\ns_or_b64 s[60:61], s[60:61], s[62:63]\nv_cmp_ne_u64 s[62:63], s[88:89], v[50:51]\ns_or_b64 s[60:61], s[60:61], s[62:63]')
    A('v_cmp_ne_u64 s[62:63], s[88:89], v[52:53]\ns_or_b64 s[60:61], s[60:61], s[62:63]\nv_cmp_ne_u64 s[62:63], s[88:89], v[54:55]\ns_or_b64 s[60:61], s[60:61], s[62:63]')
    A('L_b_chk2:')
    A('s_cmp_eq_u32 s88, 0\ns_cselect_b32 s60, 1, s60\ns_cmp_eq_u64 s[60:61], 0\ns_cbranch_scc1 L_b_chkok')
    if 'NODUTY' in EXP: A('s_branch L_b_chkok')
    A(f's_sleep 24\ns_add_u32 s90, s90, 1\ns_cmp_lt_u32 s90, {SPIN_MAX}\ns_cbranch_scc1 L_b_chk')
    A('L_b_chkok:')
    A('s_cmp_lg_u32 s67, 1\ns_cbranch_scc1 L_b_nofp')
    A('v_mov_b32 v46, 1\ns_mov_b64 exec, 1\nds_write_b64 v0, v[42:43] offset:32\nds_write_b32 v0, v46 offset:72\ns_mov_b64 exec, -1')
    A('L_b_nofp:')
    stamp(A, 37)
    rest = []
    A('s_cmp_eq_u32 s20, 0\ns_cbranch_scc1 L_b_kv')
    for i in (0, 1, 2, 9, 10, 11):
        w2reg(i)
    stamp(A, 22)
    lds_wait(A, 39, 0, 48, 20, four='free', sleep=LSLEEP)
    for k, i in enumerate((3, 4, 5, 6, 7, 8)):
        if k == GEARLY:
            lds_wait(A, 38, 48, 48, 1, sleep=4)
            stamp(A, 9)
        w2lds(i); stamp(A, 16 + k)
    A('s_branch L_b_common')
    A('L_b_kv:')
    pre = [0, 1, 2, 9, 10, 11]
    kl = ((16, 3), (17, 4), (18, 5), (18, 7), (19, 6), (20, 8))
    for need, i in kl[:KVL]:
        lds_wait(A, 39, 0, 48, need, four='free', sleep=LSLEEP)
        w2lds(i)
    lds_wait(A, 39, 0, 48, 20, four='free', sleep=LSLEEP)
    for i in range(5):
        A(f'v_add_u32 v12, {64*i}, v2\nv_mul_u32_u24 v13, 6554, v12\nv_lshrrev_b32 v13, 16, v13\nv_mul_u32_u24 v14, 10, v13\nv_sub_u32 v14, v12, v14')
        A(f'v_mul_u32_u24 v13, 1280, v13\nv_lshl_add_u32 v13, v14, 4, v13\ns_add_u32 m0, s52, {1024*i}\ns_nop 0')
        A('buffer_load_dwordx4 v13, s[24:27], s73 offen lds')
    stamp(A, 9)
    for i in pre[:KVPRE]:
        w2reg(i)
    stamp(A, 8)
    A('s_lshr_b32 s18, s69, 2\ns_lshl_b32 s18, s18, 1\ns_and_b32 s48, s67, 1\ns_add_u32 s18, s18, s48\ns_and_b32 s19, s69, 3\ns_lshl_b32 s19, s19, 1\ns_lshr_b32 s48, s67, 1\ns_add_u32 s19, s19, s48')
    phase_a(A)
    bsetup()
    for i in pre[KVPRE:]:
        w2reg(i)
    for need, i in kl[KVL:]:
        w2lds(i)
    A('L_b_common:')
    hbufs = [HBUF, HBUF + 16, WR + 40]
    def hb(i, rt):
        k = i if i < 2 else (0 if i == 2 else (i - 3 + 1) % 3 if False else None)
        return None
    hmap = {0: 0, 1: 1, 2: 0, 3: 1}
    for i in range(4, 12):
        hmap[i] = [0, 2, 1][(i - 4) % 3]
    def hb(i, rt): return hbufs[hmap[i]] + 4 * rt
    A('v_add_u32 v8, s52, v5')
    A(f'v_add_u32 v9, {WBASE + 2*WSLOT}, v8')
    def rdW(i, rs):
        u = lds_unit[i]
        va, off = (8, u) if u < WBASE + WSLOT - 5120 else ((9, u - (WBASE + 2*WSLOT)) if u >= WBASE + 2*WSLOT else (12, 0))
        for t in range(5):
            A(f'ds_read_b128 {vr(WR+20*rs+4*t)}, v{va} offset:{off + 1024*t}')
    A(f'v_add_u32 v12, {WBASE + WSLOT}, v8')
    A('s_load_dwordx2 s[28:29], s[0:1], 64\ns_mov_b32 s30, 2621440\ns_mov_b32 s31, 0x20000')
    A(f's_lshl_b32 s48, s67, 2\nv_add_u32 v13, s48, v0\nv_mov_b32 v14, 1\ns_mul_i32 s48, s67, {WSLOT}\ns_add_u32 s48, s48, {WBASE}\nv_add_u32 v15, s48, v5')
    A(f's_mul_i32 s48, s67, 15360\ns_cmp_eq_u32 s67, 3\ns_cselect_b32 s48, {XCH[3]}, s48\nv_add_u32 v16, s48, v5')
    A(f's_lshl_b32 s48, s67, 11\ns_add_u32 s48, s48, {XCH[3] + 15360}\nv_add_u32 v17, s48, v5\ns_lshl_b32 s48, s67, 8\nv_lshlrev_b32 v19, 2, v2\nv_add_u32 v19, s48, v19')
    A('s_lshl_b32 s48, s18, 6\ns_lshl_b32 s49, s67, 4\ns_add_u32 s48, s48, s49\nv_and_b32 v20, 15, v2\nv_add_u32 v20, s48, v20\nv_mul_u32_u24 v20, 1280, v20\nv_lshrrev_b32 v21, 4, v2\nv_lshl_add_u32 v20, v21, 3, v20\ns_mul_i32 s55, s19, 160')
    A('s_mul_i32 s48, s67, 5\ns_mul_i32 s57, s18, 68\ns_add_u32 s57, s57, s48\ns_add_u32 s57, s57, 48\ns_lshl_b32 s57, s57, 12')
    A(f's_lshl_b32 s58, s18, 8\ns_add_u32 s58, s58, {G_OFF}\nv_and_b32 v3, 15, v2\nv_lshlrev_b32 v11, 2, v3')
    A(f's_mul_i32 s48, s67, 320\ns_add_u32 s48, s48, {CT + 1536}\nv_mul_u32_u24 v4, 80, v21\nv_add_u32 v4, s48, v4')
    A('v_lshrrev_b32 v10, 2, v3\nv_cmp_eq_u32 s[64:65], v10, v21\nv_and_b32 v10, 1, v3\nv_cmp_eq_u32 s[62:63], 0, v10')
    A(f's_and_b64 s[60:61], s[64:65], s[62:63]\ns_andn2_b64 s[62:63], s[64:65], s[62:63]\ns_mov_b32 s64, {EPS}\ns_mov_b32 s65, 0xffff0000')
    A(f's_setprio {BPRIO}')
    stamp(A, 3)
    if GPOLL == 'B':
        A('s_cmp_lg_u32 s67, 3\ns_cbranch_scc1 L_b_nopoll')
        poll(A, 54, 48, 10, 6)
        A('v_mov_b32 v10, 1\ns_mov_b64 exec, 1\nds_write_b32 v0, v10 offset:64\ns_mov_b64 exec, -1')
        A('L_b_nopoll:')
    A('s_lshl_b32 s59, 1, s67' if FINEG else 's_mov_b32 s59, 15')
    lds_wait_mask(A, 0, 64, 10, 's59')
    A('s_waitcnt vmcnt(0)')
    stamp(A, 4)
    Q = []
    def wait(tag):
        last = max(k for k, t in enumerate(Q) if t == tag)
        A(f's_waitcnt vmcnt({min(63, len(Q) - 1 - last)})')
    def issueH(i):
        kidx(i, 56)
        A('s_lshl_b32 s56, s56, 12\ns_add_u32 s56, s56, s51')
        for rt in range(4):
            A(f'buffer_load_dwordx4 {vr(hb(i,rt))}, v5, s[40:43], s56 offen offset:{1024*rt} {LL}')
            Q.append(('H', i))
    assert not rest[KPRE:]
    issueH(0); issueH(1)
    nH = 2
    dump = [(8, WBASE), (12, 0), (9, 0), (9, WSLOT)]
    def haddr(i, dst):
        return [f's_add_u32 s{dst}, s23, {i}', f's_cmp_ge_u32 s{dst}, 12', 's_cselect_b32 s48, 12, 0', f's_sub_u32 s{dst}, s{dst}, s48',
                f's_lshl_b32 s{dst}, s{dst}, 12', f's_add_u32 s{dst}, s{dst}, s51']
    def rdW_l(i, rs):
        u = lds_unit[i]
        va, off = (8, u) if u < WBASE + WSLOT - 5120 else ((9, u - (WBASE + 2*WSLOT)) if u >= WBASE + 2*WSLOT else (12, 0))
        return [f'ds_read_b128 {vr(WR+20*rs+4*t)}, v{va} offset:{off + 1024*t}' for t in range(5)]
    pendW = []
    for i in range(12):
        rs = regset[i] if i in regset else (i - 3) % 2
        gaps = {k: [] for k in range(20)}
        for k, l in zip((1, 3, 6, 8, 11), pendW): gaps[k].append(l)
        reuse = nH if nH < 12 and hmap[nH] == hmap[i] else None
        extra = None
        if reuse is not None:
            for k, l in enumerate(haddr(reuse, 56)): gaps[k // 2].append(l)
            nH += 1
        if nH < 12 and hmap[nH] == 2 and i == 3:
            pass
        first = Q.index(('H', i))
        for rt in range(4):
            A(f's_waitcnt vmcnt({len(Q) - 1 - (first + rt)})')
            if rt == 0:
                if i == 0: stamp(A, 5)
                if BST: stamp(A, 25 + i)
                if i not in regset:
                    A('s_waitcnt lgkmcnt(0)')
                if i == PQ_AT:
                    A('s_mov_b64 exec, 1\nds_write_b32 v13, v14 offset:144\ns_mov_b64 exec, -1')
                if i == 8:
                    A('s_mov_b64 exec, 1\nds_write_b32 v13, v14 offset:96\ns_mov_b64 exec, -1')
            for t in range(5):
                d = vr(a2(rt, t))
                A(f'v_mfma_f32_16x16x32_bf16 {d}, {vr(WR+20*rs+4*t)}, {vr(hb(i,rt))}, {d if i else 0}')
                for l in gaps[5 * rt + t]: A(l)
                if i == 11 and rt >= 2:
                    A(f'ds_write_b128 v{dump[rt-2][0]}, {vr(a2(rt-2,t))} offset:{dump[rt-2][1] + t*1024}')
            if reuse is not None:
                A(f'buffer_load_dwordx4 {vr(hb(reuse,rt))}, v5, s[40:43], s56 offen offset:{1024*rt} {LL}')
                Q.append(('H', reuse))
        if NRC == 2 and i in (9, 10):
            j = i - 7
            A(f's_add_u32 s48, s67, {j+1}\ns_and_b32 s48, s48, 3\ns_lshl_b32 s49, s48, 10\ns_add_u32 s56, s57, s49\ns_lshl_b32 s49, s48, 6\ns_add_u32 s49, s49, s58')
            for kk in range(5):
                A(f'buffer_load_dwordx4 {vr(WR + 8*kk + 4*(j-2))}, v5, s[40:43], s56 offen {LL}')
                if kk < 4: A('s_add_u32 s56, s56, 4096')
                Q.append(('P', j))
            A(f'buffer_load_dword v{20+j}, v11, s[40:43], s49 offen {LL}')
            Q.append(('P', j))
        while nH < 12 and all(hmap[j] != hmap[nH] for j in range(i + 1, nH)) and not (hmap[nH] == 2 and i < 2):
            issueH(nH); nH += 1
        tgt = {0: 3, 2: 4}.get(i, i + 2 if 5 <= i + 2 <= 8 else None)
        pendW = rdW_l(tgt, (tgt - 3) % 2) if tgt is not None else []
    stamp(A, 6)
    if NRC == 2:
        ZR = HBUF; DN = AC; SC = HBUF + 20; T0 = HBUF + 24
        lds_wait(A, 0, 68, 10, 1, four=False, sleep=1)
        for kk in range(5):
            A(f'ds_read_b128 {vr(ZR+4*kk)}, v4 offset:{16*kk}')
        A('s_waitcnt lgkmcnt(0)')
        for kk in range(5):
            for j in range(4):
                m = 's[62:63]' if (4 * kk + j) >= 10 else 's[60:61]'
                A(f'v_cndmask_b32 v{ZR+4*kk+j}, 0, v{ZR+4*kk+j}, {m}')
        A('s_waitcnt vmcnt(0)\ns_nop 0')
        for kk in range(5):
            for r in range(2):
                d = vr(DN + 4 * r)
                A(f'v_mfma_f32_16x16x32_bf16 {d}, {vr(ZR+4*kk)}, {vr(WR+8*kk+4*r)}, {d if kk else 0}')
        A('s_nop 7')
        for r in range(2):
            A(f'v_add_f32 v{DN+4*r}, s64, v{DN+4*r}\nv_add_f32 v{DN+4*r+1}, s64, v{DN+4*r+1}')
        for r in range(2):
            A(f'v_rcp_f32 v{DN+4*r}, v{DN+4*r}\nv_rcp_f32 v{DN+4*r+1}, v{DN+4*r+1}')
        A('s_nop 0')
        for r in range(2):
            A(f'v_mul_f32 v{SC+2*r}, v{22+r}, v{DN+4*r}\nv_mul_f32 v{SC+2*r+1}, v{22+r}, v{DN+4*r+1}')
        for kk in range(5):
            for r in range(2):
                b = WR + 8 * kk + 4 * r
                for j in range(4):
                    A(f'v_lshlrev_b32 v{T0+2*j}, 16, v{b+j}\nv_and_b32 v{T0+2*j+1}, s65, v{b+j}')
                for j in range(4):
                    odd = 1 if (4 * kk + j) >= 10 else 0
                    A(f'v_mul_f32 v{T0+2*j}, v{SC+2*r+odd}, v{T0+2*j}\nv_mul_f32 v{T0+2*j+1}, v{SC+2*r+odd}, v{T0+2*j+1}')
                for j in range(4):
                    A(f'v_cvt_pk_bf16_f32 v{b+j}, v{T0+2*j}, v{T0+2*j+1}')
                A(f'ds_write_b128 v9, {vr(b)} offset:{r*WSLOT + 1024*kk}')
            A(f'v_mov_b32 v10, {kk+1}\ns_mov_b64 exec, 1\nds_write_b32 v13, v10 offset:160\ns_mov_b64 exec, -1')
        lds_wait(A, 13, 176, 10, 1, four=False, sleep=1)
    for rt in (2, 3):
        for t in range(5):
            A(f'ds_write_b128 v{dump[rt][0]}, {vr(a2(rt,t))} offset:{dump[rt][1] + t*1024}')
    A('s_waitcnt lgkmcnt(0)')
    stamp(A, 7)
    A('s_barrier')
    R = WR
    for r in range(4):
        for t in (3, 4):
            A(f'ds_read_b128 {vr(R+8*r+4*(t-3))}, v15 offset:{r*5120 + 1024*t}')
    A(f'ds_read_b32 v18, v19 offset:{46080}')
    A('s_waitcnt lgkmcnt(5)')
    for r in range(3):
        for t in (3, 4):
            A(f'ds_read_b128 {vr(R+32+8*r+4*(t-3))}, v16 offset:{r*5120 + 1024*t}')
    for t in (3, 4):
        A(f'ds_read_b128 {vr(R+56+4*(t-3))}, v17 offset:{1024*(t-3)}')
    for k in range(0, 8, 2):
        A(f'v_pk_add_f32 {vr(R+k,2)}, {vr(R+k,2)}, {vr(R+8+k,2)}')
    A('s_waitcnt lgkmcnt(8)\nv_mov_b32 v19, v18')
    for k in range(0, 8, 2):
        A(f'v_pk_add_f32 {vr(R+16+k,2)}, {vr(R+16+k,2)}, {vr(R+24+k,2)}')
    for k in range(0, 8, 2):
        A(f'v_pk_add_f32 {vr(R+k,2)}, {vr(R+k,2)}, {vr(R+16+k,2)}')
    A('s_waitcnt lgkmcnt(0)')
    for k in range(0, 8, 2):
        A(f'v_pk_fma_f32 {vr(R+k,2)}, {vr(R+k,2)}, v[18:19], {vr(R+56+k,2)}')
    for sl in range(3):
        for k in range(0, 8, 2):
            A(f'v_pk_add_f32 {vr(R+k,2)}, {vr(R+k,2)}, {vr(R+32+8*sl+k,2)}')
    for t in (3, 4):
        b = R + 4 * (t - 3)
        A(f'v_cvt_pk_bf16_f32 v{b}, v{b}, v{b+1}\nv_cvt_pk_bf16_f32 v{b+1}, v{b+2}, v{b+3}')
        A(f'buffer_store_dwordx2 {vr(b,2)}, v20, s[28:31], s55 offen offset:{32*t}')
    finish(A)


def gen(A):
    K = NAME + '_kernel'
    A(f'.globl {K}\n.p2align 8\n.type {K},@function\n{K}:')
    A('s_cmp_ge_u32 s2, 256\ns_cbranch_scc1 L_end')
    A('s_load_dwordx4 s[4:7], s[0:1], 0')
    A('s_load_dwordx4 s[8:11], s[0:1], 32')
    A('s_load_dwordx4 s[12:15], s[0:1], 48')
    A('s_load_dwordx2 s[16:17], s[0:1], 80')
    A.c('decode: s18 rb, s19 cq, s20 m, s21 wave, s22 gtype, s23 rbl, s55 is_gc')
    A('v_lshrrev_b32 v1, 6, v0\nv_and_b32 v2, 63, v0')
    A('s_bfe_u32 s23, s2, 0x10003\ns_and_b32 s18, s2, 7\ns_lshl_b32 s18, s18, 1\ns_add_u32 s18, s18, s23' if not MAP84 else 's_bfe_u32 s23, s2, 0x30003\ns_and_b32 s18, s2, 1\ns_lshl_b32 s18, s18, 3\ns_add_u32 s18, s18, s23')
    A('v_readfirstlane_b32 s21, v1')
    A('s_bfe_u32 s19, s2, 0x20004\ns_lshr_b32 s20, s2, 6' if not MAP84 else ('s_bfe_u32 s19, s2, 0x20001\ns_lshr_b32 s20, s2, 6' if not KVX else 's_bfe_u32 s20, s2, 0x20001\ns_lshr_b32 s19, s2, 6'))
    A('s_mul_i32 s22, s19, 3\ns_add_u32 s22, s22, s20\ns_sub_u32 s22, s22, 1')
    A('s_cmp_eq_u32 s22, 10\ns_cselect_b32 s55, 1, 0\ns_cmp_ge_i32 s22, 10\ns_cselect_b32 s91, 1, 0')
    if STAMP:
        A('v_mov_b32 v1, 0\ns_mov_b32 s100, 0\ns_mov_b32 s101, 0')
        stamp(A, 0); stamp_rt(A, 62)
    A('s_cmp_lt_u32 s21, 4\ns_cbranch_scc1 L_compute')
    gen_loader(A)
    gen_compute(A)
    A('L_end:\ns_endpgm')
    A('.p2align 7\nL_table:')
    for i in range(32):
        A(f'.long {i}')


def main(out):
    A = Asm()
    gen(A)
    K = NAME + '_kernel'
    hdr = open('cdna_kernels/' + NAME + '.s.ref').read().split('; Override')[0]
    txt = hdr + f'; @launch grid=(256,1,1) block=(512,1,1) lds={LDS_TOTAL}\n'
    txt += '.amdgcn_target "amdgcn-amd-amdhsa--gfx950"\n.text\n' + A.text()
    txt += f'''.section .rodata,"a"
.p2align 6
.amdhsa_kernel {K}
  .amdhsa_next_free_vgpr 256
  .amdhsa_next_free_sgpr 102
  .amdhsa_accum_offset 256
  .amdhsa_group_segment_fixed_size 0
  .amdhsa_kernarg_size 88
  .amdhsa_user_sgpr_count 2
  .amdhsa_user_sgpr_kernarg_segment_ptr 1
  .amdhsa_system_sgpr_workgroup_id_x 1
.end_amdhsa_kernel
'''
    open(out, 'w').write(txt)

if __name__ == '__main__':
    for a in sys.argv[2:]:
        k, v = a.split('=', 1)
        globals()[k] = eval(v)
    main(sys.argv[1] if len(sys.argv) > 1 else 'cdna_kernels/' + NAME + '.s')
```

```python
import sys

NAME = 'gated_mix__linear_attn_block__glu_gated_glu__prompt'

HB_OFF = 0
W2_OFF = 0x900000
M_OFF = 0xB00000
KVS = 3584
KVP_OFF = 0xC00000
G_OFF = 0xF00000
ZB_OFF = 0xF10000
FSH = 13
FG_OFF = 0xF40000
FP_OFF = 0xF60800
FM_OFF = 0xF81000
FW_OFF = 0xFA1800
STAMP_OFF = 0x1000000
WS_USED = 0x1100000
OOB = 0x7FFF0000

XSLOT = 16384; NX = 3
WBASE = NX * XSLOT
WSLOT = 20480; NW = 5
GWBASE = WBASE + NW * WSLOT
LDS_TOTAL = 163840
CT = 159744
P2_SCR = 0
RPK = GWBASE
CODEPF = True
EV = {1: (0, [(0, 3), (2, 15)]), 2: (1, [(1, 5), (3, 15)]), 3: (2, [(2, 7), (4, 15)])}
THIRD = 3
RPORD = (11, 1, 4, 7, 2, 5, 8, 0, 3, 6, 9, 10)
STAMP = False
GWS = 320
PRIO = 2
LSLEEP = 3
DEPTH = 2
EXP = ''
DBGOUT = False
DEFER = False
BURST = 0
FINEG = True
GEARLY = 0
START2 = 0
RTS = False
WSM = 1
KVACK = True
R0LATE = False
L2PF = 0
KVPRE = 6
PAX = 2
ZM = 255
MACK = False
SPEC_M = True
NRC = 4
BST = True
PQ_AT = 3
NLEAD = 2
COOP_P = True
COOP_M = True
MK0 = 2
NPK = True
KVX = False
APRIO = 2
BPRIO = 0
MAP84 = True
LS = 'sc1'
LL = 'sc1'
KPRE = 6
LPS = 1
LP0 = 0
GPOLL = 'A'
GD = 8
KVG = 3
T1N = 6
PRETOUCH = False
STG_THR = 6
PSLEEP = 8
MSLEEP = 12
MDELAY = 64
GDELAY = 0
STG_EARLY = False
SPIN_MAX = 0x20000


class Asm:
    def __init__(self):
        self.L = []
        self.nl = 0
    def __call__(self, s):
        for line in s.split('\n'):
            line = line.strip()
            if line:
                self.L.append(line if line.endswith(':') else '    ' + line)
    def c(self, s):
        self.L.append('    ; ' + s)
    def label(self, p='L'):
        self.nl += 1
        return f'{p}_{self.nl}'
    def text(self):
        return '\n'.join(self.L) + '\n'


def vr(b, n=4):
    return f'v[{b}:{b+n-1}]'

def srd(A, d, lo, nbytes):
    A(f's_mov_b32 s{d}, s{lo}\ns_mov_b32 s{d+1}, s{lo+1}\ns_mov_b32 s{d+2}, {nbytes}\ns_mov_b32 s{d+3}, 0x20000')

def stamp(A, n):
    if STAMP:
        A(f'{"s_memrealtime" if RTS else "s_memtime"} s[98:99]\ns_waitcnt lgkmcnt(0)\nv_writelane_b32 v1, s98, {n}')
def stamp_rt(A, n):
    if STAMP:
        A(f's_memrealtime s[98:99]\ns_waitcnt lgkmcnt(0)\nv_writelane_b32 v1, s98, {n}')
def tbeg(A):
    if STAMP and 'quiet' not in EXP: A('s_memtime s[98:99]\ns_waitcnt lgkmcnt(0)\ns_mov_b32 s3, s98')
def tend(A, r):
    if STAMP and 'quiet' not in EXP: A(f's_memtime s[98:99]\ns_waitcnt lgkmcnt(0)\ns_sub_u32 s3, s98, s3\ns_add_u32 s{r}, s{r}, s3')
def finish(A):
    if STAMP:
        A('s_waitcnt vmcnt(0)')
        stamp(A, 61); stamp_rt(A, 63)
        A('v_writelane_b32 v1, s100, 59\nv_writelane_b32 v1, s101, 60')
        A('s_mov_b64 exec, -1')
        A(f's_lshl_b32 s3, s2, 3\ns_add_u32 s3, s3, s21\ns_lshl_b32 s3, s3, 8\ns_add_u32 s3, s3, {STAMP_OFF}\nv_lshlrev_b32 v2, 2, v2')
        A('buffer_store_dword v1, v2, s[40:43], s3 offen')
        if DBGOUT:
            l = A.label('L_dbg')
            A(f's_cmp_lg_u32 s21, 0\ns_cbranch_scc1 {l}\ns_and_b32 s3, s2, 0xbf\ns_cmp_lg_u32 s3, 6\ns_cbranch_scc1 {l}')
            A('s_load_dwordx2 s[86:87], s[0:1], 72\ns_lshr_b32 s3, s2, 6\ns_mul_i32 s3, s3, 28\ns_add_u32 s3, s3, 8\ns_waitcnt lgkmcnt(0)\ns_mov_b64 exec, 1')
            for k, slot in enumerate((0, 2, 3, 5, 10, 12, 61)):
                A(f'v_readlane_b32 s48, v1, {slot}\nv_mov_b32 v3, s3\ns_nop 1\nv_mov_b32 v4, s48\nglobal_store_dword v3, v4, s[86:87] offset:{4*k}')
            A(f'{l}:')
    A('s_endpgm')

LOG2E = 0x3fb8aa3b
NLOG2E = 0xbfb8aa3b
EPS = 0x358637bd

ACC = 96; XF = 64; WF = 24
def acc(i, t): return ACC + 20 * i + 4 * t


THR = 0
def dma(A, m0expr, voff, sr, so):
    A(m0expr)
    A(f's_waitcnt vmcnt({THR-1})' if THR else 's_nop 0')
    A(f'buffer_load_dwordx4 v{voff}, s[{sr}:{sr+3}], s{so} offen lds')


def poll(A, soff, nl, vt, vaddr, sleep=None, first_sleep=False):
    l0 = A.label('L_poll'); l1 = A.label('L_polled')
    A('s_mov_b32 s90, 0')
    A(f's_mov_b64 exec, {hex((1 << nl) - 1)}' if nl <= 31 else f's_mov_b32 exec_lo, -1\ns_mov_b32 exec_hi, {hex((1 << (nl - 32)) - 1)}')
    A(f'{l0}:')
    A(f'buffer_load_dwordx2 {vr(vt,2)}, v{vaddr}, s[40:43], s{soff} offen sc1')
    A('s_waitcnt vmcnt(0)')
    A(f'v_cmp_ne_u64 vcc, s[88:89], {vr(vt,2)}')
    A(f's_cbranch_vccz {l1}')
    A(f's_sleep {PSLEEP if sleep is None else sleep}\ns_add_u32 s90, s90, 1\ns_cmp_lt_u32 s90, {SPIN_MAX}\ns_cbranch_scc1 {l0}')
    A(f'{l1}:')
    A('s_mov_b64 exec, -1')


def spoll(A, parts, sleep=2):
    l0 = A.label('L_sp'); l1 = A.label('L_spd')
    A('s_mov_b32 s96, 0')
    A(f'{l0}:')
    regs = []
    for so, imm, n, sb in parts:
        A(f's_load_dwordx{2*n} s[{sb}:{sb+2*n-1}], s[16:17], s{so} offset:{imm} glc')
        regs += [sb + 2 * k for k in range(n)]
    A('s_waitcnt lgkmcnt(0)')
    for r in regs:
        A(f's_xor_b64 s[{r}:{r+1}], s[{r}:{r+1}], s[88:89]')
    for r in regs[1:]:
        A(f's_or_b64 s[{regs[0]}:{regs[0]+1}], s[{regs[0]}:{regs[0]+1}], s[{r}:{r+1}]')
    A(f's_cbranch_scc0 {l1}')
    A(f's_sleep {sleep}\ns_add_u32 s96, s96, 1\ns_cmp_lt_u32 s96, {SPIN_MAX}\ns_cbranch_scc1 {l0}')
    A(f'{l1}:')


def set_flag(A, soff, vt):
    A(f'v_mov_b32 v{vt}, s88\nv_mov_b32 v{vt+1}, s89\nv_mov_b32 v{vt+2}, 0')
    A('s_waitcnt vmcnt(0)')
    A('s_mov_b64 exec, 1')
    A(f'buffer_store_dwordx2 {vr(vt,2)}, v{vt+2}, s[40:43], s{soff} offen sc1')
    A('s_mov_b64 exec, -1')


def table_srd(A, d):
    l = A.label('L_pc')
    A(f's_getpc_b64 s[{d}:{d+1}]\n{l}:\ns_add_u32 s{d}, s{d}, L_table-{l}\ns_addc_u32 s{d+1}, s{d+1}, 0\ns_movk_i32 s{d+2}, 128\ns_mov_b32 s{d+3}, 0x20000')


def lds_free(A, vaddr, vt, sdst):
    A(f'ds_read_b32 v{vt}, v{vaddr}\ns_waitcnt lgkmcnt(0)')
    A(f'v_readlane_b32 s{sdst}, v{vt}, 0\nv_readlane_b32 s48, v{vt}, 1\ns_min_u32 s{sdst}, s{sdst}, s48\nv_readlane_b32 s48, v{vt}, 2\ns_min_u32 s{sdst}, s{sdst}, s48\nv_readlane_b32 s48, v{vt}, 3\ns_min_u32 s{sdst}, s{sdst}, s48')


def lds_min4(A, vaddr, off, vt, sdst):
    A(f'ds_read_b128 {vr(vt)}, v{vaddr} offset:{off}\ns_waitcnt lgkmcnt(0)')
    A(f'v_min3_u32 v{vt}, v{vt}, v{vt+1}, v{vt+2}\nv_min_u32 v{vt}, v{vt}, v{vt+3}\ns_nop 0\nv_readfirstlane_b32 s{sdst}, v{vt}')


def lds_wait(A, vaddr, off, vt, need, four=True, sdst=90, sleep=1):
    l0 = A.label('L_lw'); l1 = A.label('L_lwd')
    if sleep in (2, 4): sleep *= WSM
    A('s_mov_b32 s96, 0')
    A(f'{l0}:')
    if four == 'free':
        lds_free(A, vaddr, vt, sdst)
    elif four:
        lds_min4(A, vaddr, off, vt, sdst)
    else:
        A(f'ds_read_b32 v{vt}, v{vaddr} offset:{off}\ns_waitcnt lgkmcnt(0)\nv_readfirstlane_b32 s{sdst}, v{vt}')
    A(f's_cmp_ge_i32 s{sdst}, {need}\ns_cbranch_scc1 {l1}')
    A(f's_sleep {sleep}\ns_add_u32 s96, s96, 1\ns_cmp_lt_u32 s96, {SPIN_MAX*16}\ns_cbranch_scc1 {l0}')
    A(f'{l1}:')


def lds_wait_mask(A, vaddr, off, vt, smask, sleep=2):
    l0 = A.label('L_mw'); l1 = A.label('L_mwd')
    A('s_mov_b32 s96, 0')
    A(f'{l0}:')
    A(f'ds_read_b32 v{vt}, v{vaddr} offset:{off}\ns_waitcnt lgkmcnt(0)\nv_readfirstlane_b32 s90, v{vt}')
    A(f's_andn2_b32 s90, {smask}, s90\ns_cbranch_scc0 {l1}')
    A(f's_sleep {sleep}\ns_add_u32 s96, s96, 1\ns_cmp_lt_u32 s96, {SPIN_MAX*16}\ns_cbranch_scc1 {l0}')
    A(f'{l1}:')


def mainloop(A, kv, tag):
    def upd_s():
        L = [f's_add_u32 s50, s50, {WSLOT}', f's_cmp_ge_u32 s50, {WBASE + NW*WSLOT}', f's_cselect_b32 s50, {WBASE}, s50']
        if not kv:
            L += ['s_add_u32 s52, s52, s53', 's_cmp_ge_u32 s52, s57', f's_cselect_b32 s52, {WBASE}, s52']
        return L
    def set_w():
        return [f'v_add_u32 v{15+t}, s50, v{10+t}' for t in range(4)] + [f'v_add_u32 v19, s{50 if kv else 52}, v14']
    def upd_blk():
        return [f's_add_u32 s51, s51, {XSLOT}', f's_cmp_ge_u32 s51, {NX*XSLOT}', 's_cselect_b32 s51, 0, s51']
    def set_x(par):
        return [f'v_add_u32 v{4+par}, s51, v{20+par}']
    def rdW(p, t, h):
        b = WF + 20 * p + 4 * t + 2 * h
        return f'ds_read_b64_tr_b16 {vr(b,2)}, v{15+t} offset:{512*h}'
    def rdX(i, par):
        return f'ds_read_b128 {vr(XF+4*i)}, v{4+par} offset:{2048*i}'
    def mfma(i, t, p):
        w = vr(WF + 20 * p + 4 * t); x = vr(XF + 4 * i); d = vr(acc(i, t))
        A(f'v_mfma_f32_16x16x32_bf16 {d}, {x}, {w}, {d}' if kv else f'v_mfma_f32_16x16x32_bf16 {d}, {w}, {x}, {d}')
    A(f's_mov_b32 s50, {WBASE}\ns_mov_b32 s51, 0\ns_mov_b32 s54, 0')
    if not kv:
        A(f's_cmp_lg_u32 s55, 0\ns_cselect_b32 s52, {GWBASE}, s50\ns_movk_i32 s53, {WSLOT}\ns_cselect_b32 s53, {GWS}, s53\ns_mov_b32 s57, {WBASE + NW*WSLOT}\ns_cselect_b32 s57, -1, s57')
    for l in set_w() + set_x(0) + set_x(1):
        A(l)
    A(f'v_mov_b32 v3, {CT}\ns_lshl_b32 s48, s21, 8\ns_add_u32 m0, s48, {CT+256}\nv_mov_b32 v0, {OOB}\nv_writelane_b32 v0, 0, 0')
    table_srd(A, 44)
    stamp(A, 1)
    lds_wait(A, 3, 0, 6, 1, sdst=59)
    A('s_waitcnt vmcnt(0)')
    A(f's_setprio {PRIO}')
    stamp(A, 2)
    for t in range(5):
        A(rdW(0, t, 0)); A(rdW(0, t, 1))
    A('s_waitcnt lgkmcnt(6)')
    for i in range(8):
        A(rdX(i, 0))
    for l in upd_s() + set_w():
        A(l)
    A('s_mov_b32 s58, 2\ns_cmp_ge_i32 s59, s58')
    A(f's_cbranch_scc0 L_{tag}_slow0')
    A('.p2align 3')
    for p in range(2):
        gap = {k: [] for k in range(40)}
        for i in range(5):
            gap[5*i].append(rdW(1 - p, i, 0)); gap[5*i + 2].append(rdW(1 - p, i, 1))
        for i in range(8):
            gap[5*i + 4].append(rdX(i, 1 - p))
        gap[9].append('s_waitcnt lgkmcnt(6)')
        gap[1].append('s_add_u32 s54, s54, 4')
        gap[11].append('buffer_load_dword v0, s[44:47], s54 offen lds')
        gap[6].append('s_add_u32 s58, s58, 1'); gap[8].append('s_min_u32 s58, s58, 20')
        sal = upd_s() + (upd_blk() if p == 0 else [])
        for k in (13, 13, 16, 16, 18, 18, 21, 21, 23):
            if sal: gap[k].append(sal.pop(0))
        assert not sal
        gap[23].append('ds_read_b128 v[6:9], v3')
        for k, l in zip((25, 26, 27, 28, 30, 31), set_w() + set_x(p)):
            gap[k].append(l)
        gap[32].append('s_waitcnt lgkmcnt(2)'); gap[32].append('v_min3_u32 v6, v6, v7, v8')
        gap[33].append('v_min_u32 v6, v6, v9')
        gap[35].append('v_readfirstlane_b32 s59, v6')
        if p == 1:
            gap[36].append('s_cmp_lt_u32 s54, 80'); gap[37].append(f's_cbranch_scc0 L_{tag}_last')
        gap[38].append('s_cmp_ge_i32 s59, s58' if 'nowait' not in EXP else 's_cmp_eq_u32 s59, s59')
        if 'novalu' in EXP:
            for k in gap: gap[k] = [l for l in gap[k] if not l.startswith('v_')]
        if 'nods' in EXP:
            for k in gap: gap[k] = [l for l in gap[k] if not l.startswith('ds_')]
        if 'nosalu' in EXP:
            for k in gap: gap[k] = [l for l in gap[k] if not (l.startswith('s_') and 13 <= k <= 23)]
        if 'noctl' in EXP:
            for k in gap: gap[k] = [l for l in gap[k] if not (' v6' in l or 'v[6:9]' in l)]
        if 'nowr' in EXP:
            for k in gap: gap[k] = [l for l in gap[k] if not l.startswith('ds_write')]
        if 'now32' in EXP:
            gap[32] = [l for l in gap[32] if not l.startswith('s_waitcnt')]
        if 'nopub' in EXP: pass
        if p == 0:
            A(f'L_{tag}_go0:')
        else:
            A(f's_cbranch_scc0 L_{tag}_slow1')
            A(f'L_{tag}_go1:')
        A('s_waitcnt lgkmcnt(2)')
        for i in range(8):
            for t in range(5):
                mfma(i, t, p)
                for l in gap[5*i + t]: A(l)
    A(f's_cbranch_scc1 L_{tag}_go0')
    for p in range(2):
        A(f'L_{tag}_slow{p}:')
        tbeg(A)
        lds_wait(A, 3, 0, 6, 's58', sdst=59)
        tend(A, 100)
        if STAMP: A('s_add_u32 s101, s101, 1')
        A(f's_branch L_{tag}_go{p}')
    A(f'L_{tag}_last:')
    mfma(7, 3, 1); mfma(7, 4, 1)
    A('s_waitcnt lgkmcnt(0)')
    stamp(A, 3)
    A('s_nop 6')
    if 'p1' in EXP: finish(A)


def phi_q(A, b, t, dst=None):
    dst = b if dst is None else dst
    A(f'v_pk_mul_f32 {vr(t,2)}, {vr(b,2)}, s[60:61]\nv_pk_mul_f32 {vr(t+2,2)}, {vr(b+2,2)}, s[60:61]')
    for j in range(4):
        A(f'v_exp_f32 v{t+j}, v{t+j} clamp')
    for j in range(4):
        A(f'v_max_f32 v{dst+j}, s66, v{b+j}')
    A(f'v_pk_add_f32 {vr(dst,2)}, {vr(dst,2)}, {vr(t,2)}\nv_pk_add_f32 {vr(dst+2,2)}, {vr(dst+2,2)}, {vr(t+2,2)}')


def gen_compute(A):
    A('L_compute:')
    if CODEPF:
        A('s_cmp_lg_u32 s21, 0\ns_cbranch_scc1 L_nocpf')
        A(f's_getpc_b64 s[44:45]\nL_pc:\ns_sub_u32 s44, s44, L_pc-{NAME}_kernel\ns_subb_u32 s45, s45, 0\ns_mov_b32 s46, L_end-{NAME}_kernel\ns_mov_b32 s47, 0x20000')
        A('s_lshr_b32 s48, s2, 3\ns_lshl_b32 s48, s48, 11\nv_lshlrev_b32 v3, 7, v2\ns_mov_b64 exec, 0xffff')
        A('buffer_load_dword v95, v3, s[44:47], s48 offen\ns_mov_b64 exec, -1')
        A('L_nocpf:')
    A('s_barrier')
    A.c('compute wave setup: v3=q v4=r v5=c v6=f<<5 v7=rowpart')
    for r in range(ACC, 256, 2):
        A(f'v_mov_b64 {vr(r,2)}, 0')
    A('v_lshrrev_b32 v3, 4, v2\nv_bfe_u32 v4, v2, 2, 2\nv_and_b32 v5, 3, v2')
    A('v_lshrrev_b32 v6, 1, v4\nv_and_b32 v8, 1, v3\nv_lshl_add_u32 v6, v8, 1, v6\nv_lshlrev_b32 v6, 5, v6')
    A('v_mul_u32_u24 v7, 5120, v3\nv_lshl_add_u32 v7, v4, 7, v7')
    A('v_and_b32 v8, 15, v2\nv_lshrrev_b32 v9, 1, v8\nv_xor_b32 v9, v9, v3\nv_lshlrev_b32 v9, 4, v9\nv_lshl_add_u32 v20, v8, 7, v9\nv_xor_b32 v21, 64, v20')
    A(f's_mov_b32 s60, {LOG2E}\ns_mov_b32 s61, {LOG2E}\ns_mov_b32 s62, {NLOG2E}\ns_mov_b32 s63, {NLOG2E}')
    A(f's_mov_b32 s64, 1.0\ns_mov_b32 s65, 1.0\ns_mov_b32 s66, {EPS}')
    A('s_waitcnt lgkmcnt(0)')
    srd(A, 40, 16, WS_USED)
    if PRETOUCH:
        A('s_cmp_lg_u32 s21, 1\ns_cbranch_scc1 L_nopt')
        A('s_load_dwordx2 s[28:29], s[0:1], 64\ns_load_dwordx2 s[32:33], s[0:1], 16\ns_mov_b32 s30, 2621440\ns_mov_b32 s31, 0x20000\ns_mov_b32 s34, 819200\ns_mov_b32 s35, 0x20000')
        srd(A, 36, 12, 1966080)
        A('v_lshlrev_b32 v8, 18, v2\nv_lshlrev_b32 v9, 16, v2')
        A('buffer_load_dword v92, v8, s[40:43], 0 offen\nbuffer_load_dword v93, v9, s[36:39], 0 offen\ns_waitcnt lgkmcnt(0)')
        A('buffer_load_dword v94, v9, s[28:31], 0 offen\nbuffer_load_dword v95, v9, s[32:35], 0 offen')
        A('L_nopt:')
    A('s_cmp_eq_u32 s20, 0\ns_cbranch_scc1 L_kv')

    A('s_lshr_b32 s48, s21, 1\ns_lshl_b32 s48, s48, 10\ns_and_b32 s49, s21, 1\ns_lshl_b32 s49, s49, 3')
    A('v_add_u32 v8, s49, v5\nv_lshlrev_b32 v8, 3, v8\nv_xor_b32 v9, v8, v6\nv_add3_u32 v10, v9, v7, s48')
    A('v_add_u32 v8, 32, v8\nv_xor_b32 v9, v8, v6\nv_add3_u32 v11, v9, v7, s48')
    A('v_add_u32 v12, 2048, v10\nv_add_u32 v13, 2048, v11')
    A('s_lshl_b32 s49, s21, 2\nv_add_u32 v8, s49, v5\nv_lshlrev_b32 v8, 3, v8\nv_xor_b32 v9, v8, v6\nv_add_u32 v14, v9, v7\nv_add_u32 v14, 4096, v14')
    A('s_cmp_eq_u32 s55, 0\ns_cbranch_scc1 L_g_notgc')
    A('v_lshlrev_b32 v14, 5, v3\nv_lshl_add_u32 v14, v4, 3, v14')
    A('L_g_notgc:')
    A('v_lshlrev_b32 v22, 4, v2')
    A(f's_mul_i32 s72, s18, {2*68*4096}\ns_add_u32 s73, s72, {68*4096}')
    A('s_lshl_b32 s48, s22, 2\ns_add_u32 s48, s48, s21\ns_lshl_b32 s49, s48, 12\ns_add_u32 s70, s72, s49\ns_add_u32 s71, s73, s49')
    A(f's_lshl_b32 s74, s18, {FSH}\ns_lshl_b32 s49, s48, 3\ns_add_u32 s74, s74, s49\ns_add_u32 s74, s74, {FG_OFF}')
    A('s_lshl_b32 s48, s48, 2\nv_add_u32 v5, s48, v3')
    A('v_mul_u32_u24 v6, 6554, v5\nv_lshrrev_b32 v6, 16, v6\nv_mul_u32_u24 v7, 10, v6\nv_sub_u32 v7, v5, v7')
    A('v_lshrrev_b32 v8, 2, v6\nv_and_b32 v6, 3, v6')
    A('v_mul_u32_u24 v8, 5, v8\nv_lshrrev_b32 v9, 1, v7\nv_add3_u32 v8, v8, v9, 48\nv_lshlrev_b32 v8, 12, v8')
    A('v_and_b32 v9, 15, v2\nv_lshl_add_u32 v9, v6, 4, v9\nv_lshl_add_u32 v8, v9, 4, v8')
    A('v_and_b32 v7, 1, v7\nv_lshl_add_u32 v23, v7, 10, v8')
    mainloop(A, False, 'g')
    A.c('h = u * sigmoid(g)')
    hst = []; pst = []
    for i in range(8):
        g = acc(i, 0); u = acc(i, 2)
        for j in range(4):
            A(f'v_pk_mul_f32 {vr(g+2*j,2)}, {vr(g+2*j,2)}, s[62:63]')
        for j in range(8):
            A(f'v_exp_f32 v{g+j}, v{g+j}')
        for j in range(4):
            A(f'v_pk_add_f32 {vr(g+2*j,2)}, {vr(g+2*j,2)}, s[64:65]')
        for j in range(8):
            A(f'v_rcp_f32 v{g+j}, v{g+j}')
        for j in range(4):
            A(f'v_pk_mul_f32 {vr(u+2*j,2)}, {vr(u+2*j,2)}, {vr(g+2*j,2)}')
        for j in range(4):
            A(f'v_cvt_pk_bf16_f32 v{g+j}, v{u+2*j}, v{u+2*j+1}')
        hst.append(f'buffer_store_dwordx4 {vr(g)}, v22, s[40:43], s{70 + (i>>2)} offen offset:{(i&3)*1024} {LS}')
        if not BURST: A(hst.pop())
    if BURST == 1:
        for l in hst: A(l)
        hst = []
    A('s_cmp_lg_u32 s91, 0\ns_cbranch_scc1 L_gc_epi')
    A.c('pq = phi(q)')
    for i in range(0, 8, 2):
        a0 = acc(i, 4); b0 = acc(i + 1, 4)
        phi_q(A, a0, 24 + 8 * ((i >> 1) & 1))
        phi_q(A, b0, 28 + 8 * ((i >> 1) & 1))
        A(f'v_cvt_pk_bf16_f32 v{a0}, v{a0}, v{a0+1}\nv_cvt_pk_bf16_f32 v{a0+1}, v{a0+2}, v{a0+3}')
        A(f'v_cvt_pk_bf16_f32 v{a0+2}, v{b0}, v{b0+1}\nv_cvt_pk_bf16_f32 v{a0+3}, v{b0+2}, v{b0+3}')
        A('s_nop 1')
        A(f'v_permlane16_swap_b32 v{a0}, v{a0+2}\nv_permlane16_swap_b32 v{a0+1}, v{a0+3}')
        pst.append(f'buffer_store_dwordx4 {vr(a0)}, v23, s[40:43], s{72 + (i>>2)} offen offset:{(i&3)*1024} {LS}')
        if BURST != 2: A(pst.pop())
    for l in hst + pst: A(l)
    A('s_branch L_p1_done')
    A('L_gc_epi:')
    for l in hst: A(l)
    A.c('gate g = sigmoid(logit); stored by gtype 10, wave 0')
    A('v_and_b32 v8, 15, v2\nv_lshlrev_b32 v8, 2, v8')
    A(f's_lshl_b32 s48, s18, 9\ns_add_u32 s48, s48, {G_OFF}\ns_lshl_b32 s49, s22, 2\ns_add_u32 s49, s49, s21')
    A(f's_cmp_eq_u32 s49, 40\ns_cselect_b32 s48, s48, {OOB}')
    for i in range(8):
        A(f'v_mul_f32 v{acc(i,4)}, s62, v{acc(i,4)}')
    for i in range(8):
        A(f'v_exp_f32 v{acc(i,4)}, v{acc(i,4)}')
    for i in range(8):
        A(f'v_add_f32 v{acc(i,4)}, 1.0, v{acc(i,4)}')
    for i in range(8):
        A(f'v_rcp_f32 v{acc(i,4)}, v{acc(i,4)}')
    A('s_nop 0\ns_mov_b64 exec, 0xffff')
    for i in range(8):
        A(f'buffer_store_dword v{acc(i,4)}, v8, s[40:43], s48 offen offset:{64*i} {LS}')
    A('s_mov_b64 exec, -1')
    A('s_branch L_p1_done')

    A('L_kv:')
    A('s_mul_i32 s48, s21, 10\ns_and_b32 s49, s19, 1\ns_lshl_b32 s49, s49, 3\ns_sub_u32 s48, s48, s49')
    def kvaddr(dst, u, isv):
        A(f'v_add_u32 v9, 40, {u}\nv_cmp_gt_i32 vcc, 0, {u}\ns_nop 1\nv_cndmask_b32 v8, {u}, v9, vcc')
        A(f'v_lshrrev_b32 v9, 4, v8\nv_lshl_add_u32 v9, {isv}, 1, v9\nv_and_b32 v23, 15, v8')
        A(f'v_lshl_add_u32 v22, {isv}, 3, v23')
        A('v_cmp_gt_u32 vcc, 32, v8\ns_nop 1\nv_cndmask_b32 v9, 4, v9, vcc\nv_cndmask_b32 v23, v22, v23, vcc')
        A(f'v_lshlrev_b32 v23, 3, v23\nv_xor_b32 v23, v23, v6\nv_lshlrev_b32 v22, 4, {isv}\nv_xor_b32 v23, v23, v22')
        A(f'v_lshl_add_u32 v23, v9, 10, v23\nv_add_u32 v{dst}, v23, v7')
    A('v_mov_b32 v16, 0\nv_mov_b32 v17, 1\nv_add_u32 v15, s48, v5')
    kvaddr(10, 'v15', 'v16'); kvaddr(12, 'v15', 'v17')
    A('v_add_u32 v15, 5, v15')
    kvaddr(11, 'v15', 'v16'); kvaddr(13, 'v15', 'v17')
    A('v_and_b32 v15, 1, v5\nv_mul_u32_u24 v15, 5, v15\nv_add3_u32 v15, v15, s48, 4\nv_lshrrev_b32 v16, 1, v5')
    kvaddr(14, 'v15', 'v16')
    A('v_lshlrev_b32 v22, 4, v2\nv_lshlrev_b32 v23, 4, v3')
    A('v_and_b32 v8, 15, v2\nv_cmp_gt_u32 s[68:69], 8, v8')
    A(f's_lshl_b32 s48, s19, 2\ns_add_u32 s48, s48, s21\ns_lshl_b32 s48, s48, 4\ns_add_u32 s48, s48, s18\ns_mul_i32 s70, s48, {KVS}\ns_add_u32 s70, s70, {KVP_OFF}')
    prods = [(0, 0), (1, 1), (2, 0), (2, 1), (0, 2), (1, 2), (2, 2)]
    A(f's_lshr_b32 s71, s21, 1\ns_mul_i32 s71, s71, {RPK - 40960}\ns_and_b32 s49, s21, 1\ns_lshl_b32 s49, s49, 12\ns_add_u32 s71, s71, s49\ns_add_u32 s71, s71, 40960')
    A('v_mul_u32_u24 v23, 5, v8\nv_add_u32 v23, v23, v3\nv_lshlrev_b32 v23, 4, v23\nv_add_u32 v23, s71, v23')
    mainloop(A, True, 'kv')
    A.c('KV epilogue')
    A('v_mov_b32 v12, 0x3f803f80\nv_mov_b32 v13, v12\nv_mov_b32 v14, v12\nv_mov_b32 v15, v12')
    KT = {0: 0, 1: 1, 2: 4}; VT = {0: 2, 1: 3, 2: 4}
    PR = 24
    pend = []
    def flush(k):
        for _ in range(k):
            if pend: A(pend.pop(0))
    for kk in range(4):
        n = 0
        for i in (2 * kk, 2 * kk + 1):
            for t in (0, 1):
                phi_q(A, acc(i, t), 64 + 4 * (n % 4)); n += 1
                flush(2)
            b = acc(i, 4); s = 80 + 4 * (i & 1)
            phi_q(A, b, 64 + 4 * (n % 4), s); n += 1
            for j in range(4):
                A(f'v_cndmask_b32 v{b+j}, v{b+j}, v{s+j}, s[68:69]')
            flush(1)
        assert not pend
        for t in range(5):
            a = acc(2 * kk, t); b = acc(2 * kk + 1, t)
            A(f'v_cvt_pk_bf16_f32 v{a}, v{a}, v{a+1}\nv_cvt_pk_bf16_f32 v{a+1}, v{a+2}, v{a+3}')
            A(f'v_cvt_pk_bf16_f32 v{a+2}, v{b}, v{b+1}\nv_cvt_pk_bf16_f32 v{a+3}, v{b+2}, v{b+3}')
        for n, (tv, tk) in enumerate(prods):
            d = vr(PR + 4 * n)
            pend.append(f'v_mfma_f32_16x16x32_bf16 {d}, {vr(acc(2*kk,VT[tv]))}, {vr(acc(2*kk,KT[tk]))}, {d if kk else 0}')
        for tk in range(3):
            d = vr(52 + 4 * tk)
            pend.append(f'v_mfma_f32_16x16x32_bf16 {d}, {vr(acc(2*kk,KT[tk]))}, v[12:15], {d if kk else 0}')
    A('s_nop 1')
    flush(10)
    get_epoch(A, 3, 6)
    A(f'v_and_b32 v9, 3, v2\nv_lshlrev_b32 v9, 8, v9\nv_add_u32 v9, {CT+256}, v9')
    lds_wait(A, 9, 0, 8, 18, four='free', sleep=1)
    HB_ = 1792
    wr = [(0, None, 0), (1, None, HB_), (2, (0, 0xffff), 32), (3, (0, 0xffff0000), HB_ + 16), (4, (0x000f000f, 0x000f000f), 1280),
          (5, (0x00f000f0, 0x00f000f0), HB_ + 960), (6, (0, 0x0000000f), 1280 + 32), (6, (0, 0x00f00000), HB_ + 960 + 16),
          (7, (0x00010001, 0x00010001), 1600), (8, (0x00010001, 0x00010001), HB_ + 1600), (9, (1, 0), 1664), (9, (0x10000, 0), HB_ + 1648)]
    for n, m, off in wr:
        if m: A(f's_mov_b32 exec_lo, {hex(m[0])}\ns_mov_b32 exec_hi, {hex(m[1])}')
        A(f'ds_write_b128 v23, {vr(PR+4*n)} offset:{off}')
    A('s_mov_b64 exec, -1\nv_add_u32 v9, s71, v22')
    for i in range(4):
        A(f'ds_read_b128 {vr(64+4*i)}, v9 offset:{1024*i}')
    A('s_and_b32 s76, s88, 0xfff\ns_bfe_u32 s77, s88, 0xc000c\ns_lshr_b64 s[78:79], s[88:89], 24\ns_xor_b32 s78, s78, s88\ns_bfe_u32 s79, s78, 0xc000c\ns_and_b32 s78, s78, 0xfff')
    A('v_mov_b32 v6, 0xfffff000')
    for i in range(4):
        A(f's_waitcnt lgkmcnt({3-i})')
        for r in range(64 + 4 * i, 68 + 4 * i):
            A(f'v_and_or_b32 v{r}, v{r}, v6, s{76 + (r & 3)}')
        if i == 3: A('s_mov_b32 exec_hi, 0')
        A(f'buffer_store_dwordx4 {vr(64+4*i)}, v22, s[40:43], s70 offen offset:{1024*i} sc1')
    A('s_mov_b64 exec, -1')
    A('L_p1_done:')
    stamp(A, 4)
    gen_awave(A)


def p2_ids(A):
    A('s_and_b32 s18, s2, 7\ns_lshl_b32 s18, s18, 2\ns_lshr_b32 s48, s2, 6\ns_add_u32 s18, s18, s48')
    A('s_bfe_u32 s19, s2, 0x30003')


def get_epoch(A, vct, vt):
    l0 = A.label('L_ep')
    A('s_mov_b32 s96, 0')
    A(f'{l0}:')
    A(f'ds_read_b64 {vr(vt,2)}, v{vct} offset:32\ns_waitcnt lgkmcnt(0)\nv_readfirstlane_b32 s88, v{vt}\nv_readfirstlane_b32 s89, v{vt+1}')
    A(f's_add_u32 s96, s96, 1\ns_cmp_eq_u32 s88, 0\ns_cselect_b32 s48, s96, -1\ns_cmp_lt_u32 s48, {SPIN_MAX*16}\ns_cbranch_scc1 {l0}')


def phase_a(A):
    WOI = 0; HS = 0; HSTR = 5120
    A('v_lshrrev_b32 v3, 4, v2\nv_and_b32 v4, 15, v2')
    A('s_mul_i32 s70, s67, 5120')
    A('s_lshr_b32 s50, s18, 1\ns_and_b32 s51, s18, 1')
    A(f's_mul_i32 s48, s51, 1792\nv_add_u32 v10, s48, v5\nv_add_u32 v11, 1024, v10\nv_mov_b32 v15, {OOB}\nv_cmp_lt_u32 vcc, 40, v2\ns_nop 1\nv_cndmask_b32 v11, v11, v15, vcc')
    A('v_mov_b32 v19, v5\nv_add_u32 v20, 1024, v5\nv_mul_u32_u24 v21, 80, v4\nv_lshl_add_u32 v12, v3, 5, v21\nv_lshlrev_b32 v13, 3, v4')
    A('v_bfe_u32 v14, v2, 2, 2\nv_lshl_add_u32 v14, v3, 3, v14\nv_mul_u32_u24 v14, 160, v14\nv_and_b32 v15, 3, v2\nv_lshl_add_u32 v14, v15, 3, v14\nv_add_u32 v14, s70, v14')
    A(f'v_add_u32 v19, s70, v19\nv_add_u32 v20, s70, v20\ns_mul_i32 s48, s51, 5120\nv_add_u32 v12, s48, v12\nv_add_u32 v13, s48, v13')
    A('v_cmp_gt_u32 s[60:61], 3, v3\nv_cmp_gt_u32 s[62:63], 2, v3\nv_cmp_gt_u32 s[64:65], 41, v2')
    A(f's_mul_i32 s48, s51, 5\ns_lshr_b32 s49, s67, 1\ns_mul_i32 s49, s49, {RPK - 40960}\ns_add_u32 s49, s49, 40960')
    for mt in range(2):
        A(f'v_add3_u32 v15, v3, s48, {4*mt}\nv_lshrrev_b32 v16, 1, v15\nv_mul_u32_u24 v16, 1280, v16\nv_and_b32 v15, 1, v15\nv_lshl_add_u32 v16, v15, 3, v16')
        A(f'v_lshl_add_u32 v16, v4, 4, v16\nv_add_u32 v{17+mt}, s49, v16')
    A('s_mul_i32 s48, s51, 40\ns_add_u32 s48, s48, s49\ns_add_u32 s48, s48, 6400\nv_lshlrev_b32 v22, 2, v2\nv_add_u32 v22, s48, v22')
    A('s_mul_i32 s48, s51, 3328\ns_add_u32 s48, s48, s49\nv_add_u32 v21, s48, v5\nv_lshlrev_b32 v15, 10, v3\nv_lshl_add_u32 v15, v4, 4, v15')
    A(f's_lshr_b32 s48, s18, 3\ns_mul_i32 s48, s48, 5\ns_mul_i32 s49, s19, 20\ns_add_u32 s48, s48, s49\ns_mul_i32 s48, s48, 5120\ns_and_b32 s49, s50, 3\ns_lshl_b32 s49, s49, 8\ns_add_u32 s48, s48, s49')
    A(f's_mul_i32 s49, s51, 13312\ns_add_u32 s48, s48, s49\ns_add_u32 s55, s48, {M_OFF}\ns_add_u32 s56, s55, 4096\ns_add_u32 s57, s55, 8192\ns_add_u32 s48, s55, 12288')
    A(f's_lshl_b32 s54, s19, 11\ns_lshl_b32 s49, s50, 7\ns_add_u32 s54, s54, s49\ns_add_u32 s54, s54, {ZB_OFF}')
    A(f's_cmp_eq_u32 s51, 0\ns_cselect_b32 s54, s48, s54\ns_movk_i32 s48, {ZM}\ns_cselect_b32 s58, 0xffff, s48\ns_mov_b32 s59, 0')
    A('s_and_b32 s76, s88, 0xfff\ns_bfe_u32 s77, s88, 0xc000c\ns_lshr_b64 s[78:79], s[88:89], 24\ns_xor_b32 s78, s78, s88\ns_bfe_u32 s79, s78, 0xc000c\ns_and_b32 s78, s78, 0xfff')
    A(f's_mul_i32 s52, s50, {16*KVS}\ns_lshr_b32 s49, s67, 1\ns_mul_i32 s49, s49, {8*KVS}\ns_add_u32 s52, s52, s49\ns_add_u32 s52, s52, {KVP_OFF}')
    A(f's_lshl_b32 s48, s67, 2\nv_add_u32 v23, s48, v0\nv_mov_b32 v244, 1\nv_mov_b32 v245, 2\nv_mov_b32 v246, 3')
    A('s_waitcnt vmcnt(0)')
    for t in range(5):
        A(f'ds_read_b64_tr_b16 {vr(224+4*t,2)}, v14 offset:{32*t}\nds_read_b64_tr_b16 {vr(226+4*t,2)}, v14 offset:{32*t + 640}')
    stamp(A, 10)
    lds_wait(A, 0, 72, 248, 1, four=False, sleep=2)
    lds_wait(A, 0, 48, 248, 1, sleep=2)
    if GDELAY: A(f's_sleep {GDELAY}')
    stamp(A, 11)
    A('s_mov_b32 s96, 0')
    A('L_pa_gather:')
    for p in range(8):
        if PAX:
            A(f's_lshl_b32 s53, s69, 1\ns_add_u32 s53, s53, {p}\ns_and_b32 s53, s53, 7\ns_mul_i32 s53, s53, {KVS}\ns_add_u32 s53, s53, s52')
            if p == 2 and PAX == 2: A('s_waitcnt vmcnt(0)')
        else:
            A(f's_add_u32 s53, s52, {KVS*p}')
        for ldi in range(2):
            A(f'buffer_load_dwordx4 {vr(24 + 8*p + 4*ldi)}, v{10+ldi}, s[40:43], s53 offen sc1')
    for p in range(8):
        A(f's_waitcnt vmcnt({2*(7-p)})')
        for r in range(24 + 8 * p, 32 + 8 * p):
            A(f'v_xor_b32 v{r}, s{76 + (r & 3)}, v{r}')
        for ldi in range(2):
            r = 24 + 8 * p + 4 * ldi; d = 8 + ldi
            if p == 0:
                A(f'v_or3_b32 v{d}, v{r}, v{r+1}, v{r+2}\nv_or_b32 v{d}, v{d}, v{r+3}')
            else:
                A(f'v_or3_b32 v{d}, v{d}, v{r}, v{r+1}\nv_or3_b32 v{d}, v{d}, v{r+2}, v{r+3}')
        if p:
            for j in range(0, 8, 2):
                A(f'v_pk_add_f32 {vr(24+j,2)}, {vr(24+j,2)}, {vr(24+8*p+j,2)}')
    A('v_cndmask_b32 v9, 0, v9, s[64:65]\nv_or_b32 v8, v8, v9\nv_and_b32 v8, 0xfff, v8\nv_cmp_ne_u32 vcc, 0, v8')
    A('s_cbranch_vccz L_pa_got')
    stamp(A, 35)
    A(f's_sleep {PSLEEP}\ns_add_u32 s96, s96, 1\ns_cmp_lt_u32 s96, {SPIN_MAX}\ns_cbranch_scc1 L_pa_gather')
    A('L_pa_got:')
    if STAMP: A('v_writelane_b32 v1, s96, 36')
    stamp(A, 12)
    A('ds_write_b128 v19, v[24:27]\nds_write_b128 v20, v[28:31]')
    A('s_mov_b64 exec, 1\nds_write_b32 v23, v244 offset:80\ns_mov_b64 exec, -1')
    lds_wait(A, 0, 80, 248, 1, sleep=0)
    stamp(A, 13)
    for w in range(2):
        for mt in range(2):
            A(f'ds_read_b128 {vr(24+20*w+8*mt)}, v12 offset:{2*w*HSTR + 1280*mt}\nds_read_b128 {vr(28+20*w+8*mt)}, v12 offset:{2*w*HSTR + 1280*mt + 16}')
        A(f'ds_read_b64 {vr(40+20*w,2)}, v13 offset:{2*w*HSTR + 1600}')
    A('s_waitcnt lgkmcnt(0)')
    for j in range(0, 18, 2):
        A(f'v_pk_add_f32 {vr(24+j,2)}, {vr(24+j,2)}, {vr(44+j,2)}')
    for mt in range(2):
        b = 24 + 8 * mt
        for j in range(4):
            A(f'v_cvt_pk_bf16_f32 v{b+j}, v{b+2*j}, v{b+2*j+1}')
        for j in range(4):
            A(f'v_cndmask_b32 v{b+j}, 0, v{b+j}, {"s[60:61]" if j < 2 else "s[62:63]"}')
    A('v_cvt_pk_bf16_f32 v40, v40, v41\ns_nop 0')
    for mt in range(2):
        for t in range(5):
            A(f'v_mfma_f32_16x16x32_bf16 {vr(64+20*mt+4*t)}, {vr(24+8*mt)}, {vr(224+4*t)}, 0')
    A('s_mov_b64 exec, 0x3ff\nds_write_b32 v22, v40\ns_mov_b64 exec, -1\ns_nop 0')
    for mt in range(2):
        if mt == 1: A('s_mov_b64 exec, 0xffff')
        for t in range(5):
            b = 64 + 20 * mt + 4 * t
            A(f'v_cvt_pk_bf16_f32 v{b}, v{b}, v{b+1}\nv_cvt_pk_bf16_f32 v{b+1}, v{b+2}, v{b+3}')
            A(f'ds_write_b64 v{17+mt}, {vr(b,2)} offset:{256*t}')
    A('s_mov_b64 exec, 1\nds_write_b32 v23, v245 offset:80\ns_mov_b64 exec, -1')
    lds_wait(A, 0, 80, 248, 2, sleep=0)
    for i in range(4):
        A(f'ds_read_b128 {vr(24+4*i)}, v21 offset:{1024*i}')
    for i in range(3):
        A(f's_waitcnt lgkmcnt({3-i})\nbuffer_store_dwordx4 {vr(24+4*i)}, v15, s[40:43], s{55+i} offen sc1')
    A('s_waitcnt lgkmcnt(0)\ns_mov_b64 exec, s[58:59]\nbuffer_store_dwordx4 v[36:39], v15, s[40:43], s54 offen sc1')
    stamp(A, 14)
    if MACK: A('s_waitcnt vmcnt(0)')
    A('s_mov_b64 exec, 1\nds_write_b32 v23, v246 offset:80\ns_mov_b64 exec, -1')
    lds_wait(A, 0, 80, 248, 3, sleep=1)
    stamp(A, 15)


XCH = [0, 15360, 30720, WBASE + 4 * WSLOT]
def gen_awave(A):
    AC = 16; PQ = 96; MB = 176
    def a2(rt, t): return AC + 20 * rt + 4 * t
    def pq(kk, rt): return PQ + 16 * kk + 4 * rt
    A('s_load_dwordx2 s[8:9], s[0:1], 64')
    A(f'v_mov_b32 v0, {CT}')
    A('v_lshrrev_b32 v3, 4, v2\nv_and_b32 v4, 15, v2\nv_lshlrev_b32 v5, 4, v2\nv_lshlrev_b32 v6, 3, v2\nv_add_u32 v7, 4096, v5')
    if KVACK: A('s_waitcnt vmcnt(0)')
    A('s_cmp_eq_u32 s20, 0\ns_cbranch_scc1 L_a_sig')
    A('L_a_g:')
    get_epoch(A, 0, 8)
    set_flag(A, 74, 8)
    A('L_a_sig:')
    A(f'v_mov_b32 v8, 1\ns_lshl_b32 s48, s21, 2\nv_add_u32 v9, s48, v0\ns_mov_b64 exec, 1\nds_write_b32 v9, v8 offset:48\ns_mov_b64 exec, -1')
    stamp(A, 5)
    A('s_waitcnt lgkmcnt(0)')
    srd(A, 28, 8, 2621440)
    A('L_a_main:')
    A(f's_setprio {APRIO}')
    p2_ids(A)
    A(f's_lshr_b32 s48, s18, 1\ns_lshl_b32 s59, s48, {FSH}\ns_add_u32 s59, s59, {FG_OFF}')
    A('s_mul_i32 s48, s21, 5\ns_mul_i32 s54, s18, 68\ns_add_u32 s54, s54, s48\ns_add_u32 s54, s54, 48\ns_lshl_b32 s54, s54, 12')
    A(f's_mul_i32 s55, s19, 20\ns_add_u32 s55, s55, s48\ns_mul_i32 s55, s55, 5120\ns_add_u32 s55, s55, {M_OFF}')
    A(f's_lshl_b32 s53, s18, 8\ns_add_u32 s53, s53, {G_OFF}')
    A(f's_lshl_b32 s52, s19, 11\ns_lshl_b32 s49, s21, 9\ns_add_u32 s52, s52, s49\ns_add_u32 s52, s52, {ZB_OFF}')
    A(f's_lshl_b32 s58, s19, 11\ns_add_u32 s58, s58, {ZB_OFF}')
    A('v_lshlrev_b32 v14, 2, v4\nv_lshlrev_b32 v15, 7, v3')
    A('v_lshrrev_b32 v12, 2, v4\nv_cmp_eq_u32 s[60:61], v12, v3\nv_and_b32 v12, 1, v4\nv_cmp_eq_u32 s[62:63], 0, v12')
    A('s_and_b64 s[64:65], s[60:61], s[62:63]\ns_andn2_b64 s[66:67], s[60:61], s[62:63]')
    A(f's_mov_b32 s68, {EPS}\ns_mov_b32 s69, 0xffff0000')
    Q = []
    def ld(tag, txt):
        A(txt); Q.append(tag)
    def wait(tag):
        last = max(k for k, t in enumerate(Q) if t == tag)
        A(f's_waitcnt vmcnt({len(Q) - 1 - last})')
    def issueM(kk):
        A(f's_add_u32 s57, s55, {5120*kk}')
        for t in range(4):
            ld(('M', kk), f'buffer_load_dwordx4 {vr(mb(kk,t))}, v5, s[40:43], s57 offen offset:{1024*t} sc1')
        ld(('M', kk), f'buffer_load_dwordx4 {vr(mb(kk,4))}, v7, s[40:43], s57 offen sc1')
    ZR = 236
    ZIMG = CT + 1536
    mbuf = {0: MB, 1: MB + 20, 2: MB + 40, 3: MB, 4: MB + 20}
    def mb(kk, t): return mbuf[kk] + 4 * t
    for j in range(4):
        A(f's_add_u32 s48, s21, {j+1}\ns_and_b32 s{70+j}, s48, 3')
    A('s_cmp_lg_u32 s21, 2\ns_cbranch_scc1 L_a_nopollg')
    A('s_cmp_lg_u32 s20, 0\ns_cbranch_scc1 L_a_gg')
    lds_wait(A, 0, 80, 8, KVG, sleep=4)
    A('L_a_gg:')
    lds_wait(A, 0, 48, 8, 1, sleep=2)
    A('s_mov_b32 s96, 0\ns_mov_b32 s75, 0')
    A('L_a_gpoll:')
    A('s_mov_b32 exec_hi, 0xffff\nbuffer_load_dwordx2 v[8:9], v6, s[40:43], s59 offen sc1\ns_waitcnt vmcnt(0)\nv_cmp_ne_u64 vcc, s[88:89], v[8:9]\ns_mov_b32 exec_hi, -1')
    A('s_mov_b32 s74, 0')
    for g in range(4):
        A(f's_bfe_u64 s[76:77], vcc, {hex((12 << 16) | (12 * g))}\ns_cselect_b32 s48, 0, {1 << g}\ns_or_b32 s74, s74, s48')
    A('s_cmp_eq_u32 s74, s75\ns_cbranch_scc1 L_a_gsame')
    A('s_mov_b32 s75, s74\nv_mov_b32 v8, s74\ns_mov_b64 exec, 1\nds_write_b32 v0, v8 offset:64\ns_mov_b64 exec, -1')
    A('L_a_gsame:')
    A('s_cmp_eq_u32 s74, 15\ns_cbranch_scc1 L_a_nopollg')
    A(f's_sleep {PSLEEP}\ns_add_u32 s96, s96, 1\ns_cmp_lt_u32 s96, {SPIN_MAX}\ns_cbranch_scc1 L_a_gpoll')
    A('L_a_nopollg:')
    if FINEG:
        A('s_lshl_b32 s74, 3, s21\ns_lshr_b32 s74, s74, 1')
    else:
        A('s_mov_b32 s74, 15')
    lds_wait_mask(A, 0, 64, 8, 's74')
    stamp(A, 11)
    if COOP_P:
        A('s_mul_i32 s49, s19, 2560\ns_add_u32 s48, s54, s49')
        A('v_lshlrev_b32 v8, 7, v2\ns_mov_b64 exec, 0xfffff\nbuffer_load_dword v9, v8, s[40:43], s48 offen sc1\ns_mov_b64 exec, -1\ns_waitcnt vmcnt(0)')
    stamp(A, 21)
    for j in range(4):
        A(f's_lshl_b32 s48, s{70+j}, 10\ns_add_u32 s56, s54, s48')
        for kk in range(5 if j < NRC else 0):
            A(f'buffer_load_dwordx4 {vr(pq(kk,j))}, v5, s[40:43], s56 offen {LL}')
            if kk < 4: A('s_add_u32 s56, s56, 4096')
    stamp(A, 22)
    lds_wait_mask(A, 0, 64, 8, 8)
    stamp(A, 23)
    for j in range(4):
        A(f's_lshl_b32 s48, s{70+j}, 6\ns_add_u32 s56, s53, s48\nbuffer_load_dword v{10+j}, v14, s[40:43], s56 offen {LL}')
    A(f'v_lshrrev_b32 v8, 2, v2\nv_and_b32 v9, 3, v2\nv_mul_u32_u24 v24, 80, v8\nv_lshl_add_u32 v24, v9, 4, v24\nv_add_u32 v24, {ZIMG}, v24\nv_lshlrev_b32 v26, 7, v8\nv_lshl_add_u32 v26, v9, 4, v26')
    A(f's_mul_i32 s76, s19, 102400\ns_and_b32 s49, s18, 3\ns_mul_i32 s49, s49, 25600\ns_add_u32 s76, s76, s49\ns_mul_i32 s49, s21, 6400\ns_add_u32 s76, s76, s49\ns_add_u32 s76, s76, {M_OFF}\nv_lshlrev_b32 v27, 7, v2')
    lds_wait(A, 0, 72, 8, 1, four=False, sleep=2)
    A('s_cmp_lg_u32 s21, 1\ns_cbranch_scc1 L_a_oth2')
    A('s_cmp_eq_u32 s20, 0\ns_cbranch_scc1 L_a_nogate')
    lds_wait(A, 0, 144, 16, 1, sleep=1)
    A('L_a_nogate:')
    stamp(A, 24)
    A('buffer_load_dwordx4 v[16:19], v26, s[40:43], s58 offen sc1\nbuffer_load_dwordx4 v[20:23], v26, s[40:43], s58 offen offset:16 sc1')
    A('v_mov_b32 v8, 1\ns_mov_b64 exec, 1\nds_write_b32 v0, v8 offset:76\ns_mov_b64 exec, -1')
    A('L_a_oth2:')
    lds_wait(A, 0, 76, 8, 1, four=False, sleep=2)
    A('s_mov_b32 exec_hi, 0x3ffff\nbuffer_load_dword v95, v27, s[40:43], s76 offen sc1\ns_mov_b32 exec_hi, -1')
    A('s_cmp_lg_u32 s21, 1\ns_cbranch_scc1 L_a_nopoll')
    A('s_mov_b32 s96, 0\ns_waitcnt vmcnt(1)\ns_branch L_a_zchk')
    A('L_a_zpoll:')
    A('buffer_load_dwordx4 v[16:19], v26, s[40:43], s58 offen sc1\nbuffer_load_dwordx4 v[20:23], v26, s[40:43], s58 offen offset:16 sc1\ns_waitcnt vmcnt(0)')
    A('L_a_zchk:')
    A('v_max3_u32 v9, v16, v18, v20\nv_max_u32 v9, v9, v22\nv_cmp_eq_u32 vcc, -1, v9')
    A('s_cbranch_vccz L_a_zok')
    A(f's_sleep {MSLEEP}\ns_add_u32 s96, s96, 1\ns_cmp_lt_u32 s96, {SPIN_MAX}\ns_cbranch_scc1 L_a_zpoll')
    A('L_a_zok:')
    if STAMP: A('v_writelane_b32 v1, s96, 36')
    A('ds_write_b128 v24, v[16:19]\nds_write_b128 v24, v[20:23] offset:16')
    A('v_mov_b32 v8, 1\ns_mov_b64 exec, 1\nds_write_b32 v0, v8 offset:68\ns_mov_b64 exec, -1')
    A('L_a_nopoll:')
    A(f's_mul_i32 s48, s21, 320\ns_add_u32 s48, s48, {ZIMG}\nv_mul_u32_u24 v15, 80, v3\nv_add_u32 v15, s48, v15')
    lds_wait(A, 0, 68, 8, 1, four=False, sleep=2)
    stamp(A, 10)
    for kk in range(5):
        A(f'ds_read_b128 {vr(ZR+4*kk)}, v15 offset:{16*kk}')
    if SPEC_M:
        A('s_waitcnt vmcnt(1)')
    elif COOP_M:
        A(f's_mul_i32 s48, s19, 102400\ns_and_b32 s49, s18, 3\ns_mul_i32 s49, s49, 25600\ns_add_u32 s48, s48, s49\ns_mul_i32 s49, s21, 6400\ns_add_u32 s48, s48, s49\ns_add_u32 s48, s48, {M_OFF}')
        A('v_lshlrev_b32 v8, 7, v2\ns_mov_b32 exec_hi, 0x3ffff\nbuffer_load_dword v9, v8, s[40:43], s48 offen sc1\ns_mov_b32 exec_hi, -1')
    else:
        issueM(0); issueM(1); issueM(2)
    A('s_waitcnt lgkmcnt(0)')
    for kk in range(5):
        for j in range(4):
            m = 's[66:67]' if (4 * kk + j) >= 10 else 's[64:65]'
            A(f'v_cndmask_b32 v{ZR+4*kk+j}, 0, v{ZR+4*kk+j}, {m}')
    den = [AC + 4 * rt for rt in range(4)]
    if not SPEC_M: A(f's_waitcnt vmcnt({1 if COOP_M else 15})')
    stamp(A, 17)
    A('s_nop 0')
    for kk in range(5):
        for rt in range(NRC):
            d = vr(den[rt])
            A(f'v_mfma_f32_16x16x32_bf16 {d}, {vr(ZR+4*kk)}, {vr(pq(kk,rt))}, {d if kk else 0}')
    A('s_nop 7')
    SC = ZR; T0 = ZR + 8
    for rt in range(NRC):
        A(f'v_add_f32 v{den[rt]}, s68, v{den[rt]}\nv_add_f32 v{den[rt]+1}, s68, v{den[rt]+1}')
    for rt in range(NRC):
        A(f'v_rcp_f32 v{den[rt]}, v{den[rt]}\nv_rcp_f32 v{den[rt]+1}, v{den[rt]+1}')
    A('s_nop 0')
    for rt in range(NRC):
        A(f'v_mul_f32 v{SC+2*rt}, v{10+rt}, v{den[rt]}\nv_mul_f32 v{SC+2*rt+1}, v{10+rt}, v{den[rt]+1}')
    def norm_ops(kk):
        L = []
        for rt in range(NRC):
            r = pq(kk, rt)
            for j in range(4):
                L += [f'v_lshlrev_b32 v{T0+2*j}, 16, v{r+j}', f'v_and_b32 v{T0+2*j+1}, s69, v{r+j}']
            for j in range(4):
                odd = 1 if (4 * kk + j) >= 10 else 0
                L += [f'v_mul_f32 v{T0+2*j}, v{SC+2*rt+odd}, v{T0+2*j}', f'v_mul_f32 v{T0+2*j+1}, v{SC+2*rt+odd}, v{T0+2*j+1}']
            for j in range(4):
                L += [f'v_cvt_pk_bf16_f32 v{r+j}, v{T0+2*j}, v{T0+2*j+1}']
        return L
    stamp(A, 20)
    A('s_waitcnt vmcnt(0)')
    issueM(0); issueM(1)
    for kk in range(NLEAD):
        for l in norm_ops(kk): A(l)
        if kk == 0: issueM(2)
    stamp(A, 6)
    A('v_sub_f32 v14, 1.0, v13')
    for j in range(3):
        A(f's_mul_i32 s48, s{70+j}, 15360\ns_cmp_eq_u32 s{70+j}, 3\ns_cselect_b32 s48, {XCH[3]}, s48\ns_add_u32 s48, s48, {(2-j)*5120}\nv_add_u32 v{10+j}, s48, v5')
    A(f's_lshl_b32 s48, s21, 11\ns_add_u32 s48, s48, {XCH[3] + 15360 - 3072}\nv_add_u32 v13, s48, v5')
    A(f's_mul_i32 s48, s21, 5120\ns_add_u32 s48, s48, {WBASE + 2*WSLOT}\nv_add_u32 v15, s48, v5\ns_lshl_b32 s48, s21, 2\nv_add_u32 v6, s48, v0')
    for kk in range(5):
        nxt = norm_ops(kk + NLEAD) if kk + NLEAD < 5 else []
        wait(('M', kk))
        A('s_mov_b32 s96, 0')
        A(f'L_a_mchk{kk}:')
        m0 = mb(kk, 0)
        A(f'v_max3_u32 v8, v{m0}, v{m0+2}, v{m0+4}')
        for k in (3, 5, 7):
            A(f'v_max3_u32 v8, v8, v{m0+2*k}, v{m0+2*k+2}')
        A(f'v_max_u32 v8, v8, v{m0+18}\nv_cmp_eq_u32 vcc, -1, v8')
        A(f's_cbranch_vccnz L_a_mre{kk}')
        A(f'L_a_mok{kk}:')
        stamp(A, 31 + kk)
        if kk == 4:
            lds_wait(A, 0, 96, PQ, 1, sleep=1)
        if NRC == 2:
            lds_wait(A, 6, 160, 8, kk + 1, four=False, sleep=1)
            A(f'ds_read_b128 {vr(pq(kk,2))}, v15 offset:{1024*kk}\nds_read_b128 {vr(pq(kk,3))}, v15 offset:{WSLOT + 1024*kk}')
        for rt in range(4):
            if NRC == 2 and rt == 2:
                A('s_waitcnt lgkmcnt(0)')
                if kk == 4:
                    A('v_mov_b32 v8, 1\ns_mov_b64 exec, 1\nds_write_b32 v6, v8 offset:176\ns_mov_b64 exec, -1')
            for t in range(5):
                d = vr(a2(rt, t))
                A(f'v_mfma_f32_16x16x32_bf16 {d}, {vr(mb(kk,t))}, {vr(pq(kk,rt))}, {d if kk else 0}')
                for _ in range(NRC):
                    if nxt: A(nxt.pop(0))
                if kk == 4 and rt >= 2:
                    A(f'ds_write_b128 v{10+rt-2}, {vr(a2(rt-2,t))} offset:{t*1024}')
        if kk < 2:
            issueM(kk + 3)
    stamp(A, 12)
    for t in range(5):
        A(f'ds_write_b128 v12, {vr(a2(2,t))} offset:{t*1024}')
    A(f's_lshl_b32 s48, s21, 8\nv_lshlrev_b32 v8, 2, v2\nv_add_u32 v8, s48, v8\nds_write_b32 v8, v14 offset:{46080}')
    for t in (3, 4):
        A(f'ds_write_b128 v13, {vr(a2(3,t))} offset:{t*1024}')
    OWN = a2(3, 0)
    A(f's_mul_i32 s50, s21, 15360\ns_cmp_eq_u32 s21, 3\ns_cselect_b32 s50, {XCH[3]}, s50')
    A(f's_mul_i32 s48, s21, {WSLOT}\ns_add_u32 s48, s48, {WBASE}\nv_add_u32 v8, s48, v5\nv_mov_b32 v15, v14\nv_add_u32 v7, s50, v5')
    A('s_lshl_b32 s48, s18, 6\ns_lshl_b32 s49, s21, 4\ns_add_u32 s48, s48, s49\nv_add_u32 v9, s48, v4\nv_mul_u32_u24 v9, 1280, v9\nv_lshl_add_u32 v9, v3, 3, v9\ns_mul_i32 s48, s19, 160')
    A('s_waitcnt lgkmcnt(0)')
    A('s_barrier')
    stamp(A, 13)
    for r in range(4):
        for t in range(3):
            A(f'ds_read_b128 {vr(PQ+12*r+4*t)}, v8 offset:{r*5120 + 1024*t}')
    A('s_waitcnt lgkmcnt(6)')
    for r in range(3):
        for t in range(3):
            A(f'ds_read_b128 {vr(AC+12*r+4*t)}, v7 offset:{r*5120 + 1024*t}')
    for k in range(0, 12, 2):
        A(f'v_pk_add_f32 {vr(PQ+k,2)}, {vr(PQ+k,2)}, {vr(PQ+12+k,2)}')
    A('s_waitcnt lgkmcnt(9)')
    for k in range(0, 12, 2):
        A(f'v_pk_add_f32 {vr(PQ+24+k,2)}, {vr(PQ+24+k,2)}, {vr(PQ+36+k,2)}')
    for k in range(0, 12, 2):
        A(f'v_pk_add_f32 {vr(PQ+k,2)}, {vr(PQ+k,2)}, {vr(PQ+24+k,2)}')
    for k in range(0, 12, 2):
        A(f'v_pk_fma_f32 {vr(OWN+k,2)}, {vr(PQ+k,2)}, v[14:15], {vr(OWN+k,2)}')
    for sl in range(3):
        A(f's_waitcnt lgkmcnt({6 - 3*sl})')
        for k in range(0, 12, 2):
            A(f'v_pk_add_f32 {vr(OWN+k,2)}, {vr(OWN+k,2)}, {vr(AC+12*sl+k,2)}')
    for t in range(3):
        b = OWN + 4 * t
        A(f'v_cvt_pk_bf16_f32 v{b}, v{b}, v{b+1}\nv_cvt_pk_bf16_f32 v{b+1}, v{b+2}, v{b+3}')
        A(f'buffer_store_dwordx2 {vr(b,2)}, v9, s[28:31], s48 offen offset:{32*t}')
    stamp(A, 14)
    finish(A)
    for kk in range(5):
        A(f'L_a_mre{kk}:')
        A('s_sleep 4')
        issueM(kk)
        A(f's_waitcnt vmcnt(0)\ns_add_u32 s96, s96, 1\ns_cmp_lt_u32 s96, {SPIN_MAX}\ns_cbranch_scc1 L_a_mchk{kk}')
        A(f's_branch L_a_mok{kk}')


def gen_loader(A):
    A.c('s67 = lw ; role constants: s68 strideA, s60 cA, s61 cB, s62 xB, s63 c4, s64 hi-mult')
    A('s_sub_u32 s67, s21, 4')
    A('s_mul_i32 s48, s19, 320\ns_add_u32 s48, s48, 1280\ns_and_b32 s57, s19, 1\ns_lshl_b32 s58, s57, 6\ns_add_u32 s58, s58, s48')
    A('s_xor_b32 s57, s57, 1\ns_lshl_b32 s57, s57, 8\ns_add_u32 s57, s57, s48\ns_add_u32 s59, s58, 1280')
    A('s_lshl_b32 s48, s22, 8\ns_lshl_b32 s49, s22, 7\ns_movk_i32 s56, 3072')
    A('s_cmp_eq_u32 s20, 0')
    A('s_cselect_b32 s68, 3840, s56\ns_cselect_b32 s60, s58, s48\ns_cselect_b32 s61, s59, s48\ns_cselect_b32 s62, 1, 0\ns_cselect_b32 s63, s57, s49\ns_cselect_b32 s64, 1280, 64')
    A(f's_cmp_lg_u32 s91, 0\ns_cselect_b32 s63, {OOB}, s63')
    A(f'v_mov_b32 v29, {OOB}\ns_lshl_b32 s75, s68, 5\ns_lshl_b32 s69, s18, 2\ns_add_u32 s69, s69, s19\nv_and_b32 v3, 31, v2\nv_lshrrev_b32 v4, 5, v2')
    A('s_movk_i32 s48, 3072\ns_cmp_eq_u32 s67, 1\ns_cselect_b32 s48, 3840, s48\ns_lshr_b32 s49, s48, 7\ns_lshl_b32 s85, s48, 6\ns_movk_i32 s56, 128')
    A('s_cmp_eq_u32 s67, 0\ns_cselect_b32 s48, 40960, s48\ns_cselect_b32 s49, 32, s49\ns_cselect_b32 s85, 128, s85\ns_cselect_b32 s56, 1280, s56\ns_mul_i32 s48, s48, s69')
    A('v_mul_u32_u24 v5, s56, v3\nv_mul_u32_u24 v6, s85, v4\nv_add3_u32 v5, v5, v6, s48\nv_cmp_gt_u32 vcc, s49, v3')
    st0 = sum(EV[m][0] << (4 * m) for m in EV)
    A(f's_lshl_b32 s56, s20, 2\ns_lshr_b32 s56, {hex(st0)}, s56\ns_and_b32 s56, s56, 15\nv_cndmask_b32 v30, v29, v5, vcc\ns_mul_i32 s56, s56, s85')
    A('s_mov_b32 s26, 2621440\ns_mov_b32 s27, 0x20000\ns_mov_b32 s31, 0x20000\ns_mov_b32 s35, 0x20000\ns_mov_b32 s39, 0x20000\ns_mov_b32 s83, 0x20000\ns_mov_b32 s48, 1966080\ns_mov_b32 s38, 2457600')
    A('s_cmp_eq_u32 s20, 0\ns_cselect_b32 s30, s38, s48\ns_mov_b32 s34, s30')
    A(f'v_mov_b32 v38, {CT}\nv_lshl_add_u32 v39, v2, 2, v38\nv_mov_b32 v44, 0\ns_lshl_b32 s71, s67, 8\nds_write_b32 v39, v44\nv_add_u32 v39, s71, v39\nds_write_b32 v39, v44 offset:256')
    A(f'v_and_b32 v39, 3, v2\nv_lshlrev_b32 v39, 8, v39\nv_add_u32 v39, {CT+256}, v39\ns_lshl_b32 s71, s67, 2\ns_add_u32 s71, s71, {CT}')
    A('s_cmp_eq_u32 s20, 0')
    A('s_waitcnt lgkmcnt(0)')
    A('s_mov_b32 s24, s4\ns_mov_b32 s25, s5\ns_mov_b32 s36, s6\ns_mov_b32 s37, s7')
    A('s_cselect_b32 s28, s6, s8\ns_cselect_b32 s29, s7, s9\ns_cselect_b32 s32, s6, s10\ns_cselect_b32 s33, s7, s11')
    A('s_cmp_eq_u32 s67, 2\ns_cselect_b32 s80, s8, s10\ns_cselect_b32 s81, s9, s11')
    A('s_cmp_eq_u32 s67, 1\ns_cselect_b32 s80, s6, s80\ns_cselect_b32 s81, s7, s81\ns_cselect_b32 s82, s38, s48')
    A('s_cmp_eq_u32 s67, 0\ns_cselect_b32 s80, s4, s80\ns_cselect_b32 s81, s5, s81\ns_cselect_b32 s82, s26, s82')
    stamp(A, 1)
    def issueW():
        for L in range(5):
            sr = 28 if L < 2 else (32 if L < 4 else 36)
            dma(A, f's_add_u32 m0, s77, {L*1024}', 10 + L, sr, 70 if L < 4 else 72)
        A('s_add_u32 s70, s70, s75\ns_add_u32 s72, s72, s76')
        A(f's_add_u32 s77, s77, {WSLOT}\ns_cmp_ge_u32 s77, {WBASE + NW*WSLOT}\ns_cselect_b32 s48, {NW*WSLOT}, 0\ns_sub_u32 s77, s77, s48')
    def issueX():
        for i in range(4):
            dma(A, f's_add_u32 m0, s78, {i*1024}', 16 + i, 24, 74)
        A('s_add_u32 s74, s74, 128')
        A(f's_add_u32 s78, s78, {XSLOT}\ns_cmp_ge_u32 s78, {NX*XSLOT}\ns_cselect_b32 s48, {NX*XSLOT}, 0\ns_sub_u32 s78, s78, s48')
    def flag():
        A('s_mov_b32 m0, s71\ns_lshl_b32 s48, s65, 2\ns_mov_b64 exec, 1\nbuffer_load_dword v44, s[8:11], s48 offen offset:0 lds\ns_mov_b64 exec, -1')
    A('s_mov_b32 s97, s56')
    if START2:
        A('s_lshr_b32 s56, s85, 6\ns_lshr_b32 s57, s85, 13\ns_cmp_eq_u32 s67, 0\ns_cselect_b32 s56, 10240, s56\ns_cselect_b32 s57, 64, s57\ns_mul_i32 s56, s56, s2')
        A(f's_cmp_ge_u32 s2, {START2}\ns_cselect_b32 s48, s67, 0\ns_cmp_lg_u32 s48, 0\ns_cselect_b32 s57, 0, s57')
        A('v_lshlrev_b32 v34, 7, v2\nv_cmp_gt_u32 vcc, s57, v2\ns_nop 1\nv_cndmask_b32 v34, v29, v34, vcc')
        A('buffer_load_dword v36, v34, s[80:83], s56 offen')
        A('s_cmp_lg_u32 s67, 0\ns_cbranch_scc1 L_nor0')
        A('s_add_u32 s56, s56, 8192\ns_mov_b64 exec, 0xffff\nbuffer_load_dword v37, v34, s[80:83], s56 offen\ns_mov_b64 exec, -1\nv_mov_b32 v30, v29')
        A('s_branch L_nor0')
    A('s_cmp_eq_u32 s20, 0\ns_cbranch_scc1 L_nor0' if not R0LATE else 's_cmp_lg_u32 s20, 1\ns_cbranch_scc1 L_nor0')
    A('s_mov_b32 exec_hi, 0\nbuffer_load_dword v36, v30, s[80:83], s56 offen\ns_mov_b32 exec_hi, -1')
    A('L_nor0:')
    A('s_barrier')
    A('s_cmp_eq_u32 s55, 0\ns_cbranch_scc1 L_nogw0')
    srd(A, 44, 14, 1280)
    A('v_lshlrev_b32 v40, 1, v2')
    for j in range(10):
        A(f'buffer_load_ushort v{50+j}, v40, s[44:47], 0 offen offset:{128*j}')
    A('L_nogw0:')
    A('v_lshrrev_b32 v3, 3, v2\nv_and_b32 v4, 7, v2')
    A('s_lshl_b32 s48, s18, 7\ns_lshl_b32 s56, s67, 5\ns_add_u32 s48, s48, s56\nv_add_u32 v7, s48, v3\nv_mul_u32_u24 v7, 1280, v7')
    A('v_lshrrev_b32 v8, 4, v2\nv_xor_b32 v8, v8, v4\nv_lshl_add_u32 v16, v8, 4, v7')
    A('v_xor_b32 v8, 4, v8\nv_lshl_add_u32 v17, v8, 4, v7\nv_add_u32 v17, 10240, v17')
    A('v_add_u32 v18, 20480, v16\nv_add_u32 v19, 20480, v17')
    A('s_lshl_b32 s56, s67, 3\nv_add_u32 v5, s56, v3')
    A('s_and_b32 s56, s67, 1\ns_lshl_b32 s56, s56, 2\nv_and_b32 v6, 2, v3\nv_xor_b32 v6, v6, v4\nv_xor_b32 v6, s56, v6')
    A('v_mul_u32_u24 v7, s68, v5\nv_lshl_add_u32 v8, v6, 4, v7\nv_add_u32 v10, s60, v8\nv_add_u32 v11, 128, v10')
    A('v_xor_b32 v9, s62, v6\nv_lshl_add_u32 v8, v9, 4, v7\nv_add_u32 v12, s61, v8\nv_add_u32 v13, 128, v12')
    A('v_lshrrev_b32 v8, 2, v6\nv_and_b32 v9, s62, v8\nv_and_b32 v6, 3, v6\nv_xor_b32 v6, v6, v9\nv_mul_u32_u24 v7, 3840, v5')
    A('v_lshl_add_u32 v7, v6, 4, v7\nv_mul_u32_u24 v8, s64, v8\nv_add3_u32 v14, v7, v8, s63')
    A(f's_mov_b32 s76, {32*3840}\ns_mov_b32 s70, 0\ns_mov_b32 s72, 0\ns_mov_b32 s74, 0')
    A(f's_mul_i32 s77, s67, 5120\ns_add_u32 s77, s77, {WBASE}\ns_lshl_b32 s78, s67, 12')
    issueX(); issueW()
    if L2PF:
        A('s_cmp_eq_u32 s67, 2\ns_cselect_b32 s48, s60, s61\ns_cselect_b32 s4, s28, s32\ns_cselect_b32 s5, s29, s33\ns_mov_b32 s6, s30\ns_mov_b32 s49, s68\ns_movk_i32 s56, 128')
        A('s_cmp_eq_u32 s67, 1\ns_cselect_b32 s48, s63, s48\ns_cselect_b32 s4, s36, s4\ns_cselect_b32 s5, s37, s5\ns_cselect_b32 s6, s38, s6\ns_cselect_b32 s49, 3840, s49\ns_cselect_b32 s56, s64, s56')
        A('s_lshl_b32 s94, s49, 6\ns_lshl_b32 s57, s23, 3\nv_add_u32 v33, s57, v4\nv_bfe_u32 v34, v2, 4, 1\nv_lshl_add_u32 v33, v34, 6, v33\nv_mul_u32_u24 v33, s49, v33')
        A('v_bfe_u32 v34, v2, 3, 1\nv_mul_u32_u24 v34, s56, v34\nv_add3_u32 v33, v33, v34, s48\nv_cmp_gt_u32 vcc, 32, v2\ns_mov_b32 s7, 0x20000\ns_nop 0\nv_cndmask_b32 v33, v29, v33, vcc')
        A('s_cmp_lg_u32 s67, 0\ns_cbranch_scc1 L_l2x')
        A('s_mov_b32 s4, s24\ns_mov_b32 s5, s25\ns_mov_b32 s6, s26\ns_movk_i32 s94, 128\ns_lshl_b32 s48, s18, 7\ns_lshl_b32 s49, s20, 5\ns_add_u32 s48, s48, s49')
        A('v_and_b32 v33, 31, v2\nv_add_u32 v33, s48, v33\nv_mul_u32_u24 v33, 1280, v33\nv_lshrrev_b32 v34, 5, v2\nv_lshl_add_u32 v33, v34, 7, v33')
        A('L_l2x:')
        A(f's_mul_i32 s95, s94, {L2PF}\ns_lshl_b32 s94, s94, 1')
    A('s_load_dwordx2 s[86:87], s[0:1], 72')
    A('s_cmp_eq_u32 s55, 0\ns_cbranch_scc1 L_nogw')
    A('v_and_b32 v41, 3, v2\nv_lshlrev_b32 v41, 3, v41')
    A('v_bfe_u32 v40, v2, 2, 1\nv_lshl_add_u32 v41, v40, 9, v41')
    A('v_bfe_u32 v40, v2, 3, 2\nv_lshl_add_u32 v41, v40, 5, v41')
    A(f'v_bfe_u32 v40, v2, 5, 1\nv_mul_u32_u24 v40, {GWS}, v40\nv_add_u32 v41, v40, v41')
    A(f'v_add_u32 v41, {GWBASE}, v41')
    A('s_waitcnt vmcnt(9)')
    for j in range(10):
        A(f'v_lshl_or_b32 v{80+2*j}, v{50+j}, 16, v{50+j}\nv_mov_b32 v{81+2*j}, v{80+2*j}')
        A(f'ds_write_b64 v41, v[{80+2*j}:{81+2*j}] offset:{2*GWS*j}')
    A('L_nogw:')
    srd(A, 40, 16, WS_USED)
    srd(A, 44, 12, 1966080)
    A('s_waitcnt lgkmcnt(0)')
    A('s_lshl_b32 s48, s2, 2\ns_add_u32 s48, s48, s67\ns_cmp_lg_u32 s48, 0\ns_cbranch_scc1 L_noep')
    A('s_memrealtime s[88:89]\ns_waitcnt lgkmcnt(0)\ns_or_b32 s88, s88, 1\nv_mov_b32 v42, s88\nv_mov_b32 v43, s89')
    A('s_mov_b64 exec, 1\nglobal_store_dwordx2 v44, v[42:43], s[86:87] sc1\ns_mov_b64 exec, -1')
    A('L_noep:')
    A('v_lshlrev_b32 v5, 4, v2\nv_lshlrev_b32 v6, 3, v2\nv_add_u32 v7, 4096, v5')
    assert RPORD.index(10) >= 8
    tab = sum(RPORD.index(t) << (4 * t) for t in range(12))
    A(f's_mov_b32 s56, {hex(tab & 0xffffffff)}\ns_mov_b32 s57, {hex(tab >> 32)}\ns_lshl_b32 s48, s22, 2\ns_lshr_b64 s[56:57], s[56:57], s48\ns_and_b32 s48, s56, 15\ns_lshl_b32 s48, s48, 4\ns_add_u32 s48, s48, s18')
    A('s_sub_u32 s60, s48, 120\ns_lshl_b32 s60, s60, 2\ns_add_u32 s60, s60, s67\ns_lshl_b32 s92, s48, 1\ns_add_u32 s92, s92, s67')
    A('s_cmp_lt_u32 s67, 2\ns_cselect_b32 s92, s92, 999\ns_cmp_lt_u32 s92, 240\ns_cselect_b32 s64, 1, 0\ns_cmp_lt_u32 s60, 256\ns_cselect_b32 s64, 2, s64')
    A('s_mul_i32 s62, s92, 52429\ns_lshr_b32 s62, s62, 18\ns_mul_i32 s63, s62, 5\ns_sub_u32 s63, s92, s63')
    A(f's_mul_i32 s79, s62, {32*1280}\ns_lshl_b32 s56, s63, 8\ns_add_u32 s79, s79, s56\ns_lshl_b32 s63, s63, 3\ns_mul_i32 s62, s62, 5')
    A(f's_lshl_b32 s92, s92, 3\ns_add_u32 s92, s92, {FW_OFF}\ns_lshl_b32 s93, s67, 12\ns_add_u32 s93, s93, {RPK}')
    A(f's_lshl_b32 s48, s60, 3\ns_add_u32 s48, s48, {FP_OFF}\ns_cmp_eq_u32 s64, 2\ns_cselect_b32 s92, s48, s92')
    A('v_and_b32 v8, 2, v3\nv_xor_b32 v8, v8, v4\nv_mul_u32_u24 v9, 1280, v3\nv_lshl_add_u32 v20, v8, 4, v9')
    A('v_xor_b32 v8, 4, v8\nv_lshl_add_u32 v21, v8, 4, v9\nv_add_u32 v21, 10240, v21\nv_add_u32 v22, 20480, v20\nv_add_u32 v23, 20480, v21')
    A('v_lshrrev_b32 v8, 2, v2\nv_and_b32 v9, 3, v2\nv_lshlrev_b32 v8, 7, v8\nv_lshl_add_u32 v8, v9, 3, v8\nv_add_u32 v8, s93, v8')
    A('v_bfe_u32 v9, v2, 3, 1\nv_lshrrev_b32 v28, 5, v2\nv_lshl_add_u32 v9, v28, 1, v9')
    for tl in range(4):
        A(f'v_xor_b32 v28, {tl}, v9\nv_lshl_add_u32 v{24+tl}, v28, 5, v8')
    A('v_mul_u32_u24 v31, 1280, v2')
    if 'NODUTY' in EXP: A('s_mov_b32 s64, 0')
    pk = {m: sum(((t | (b0 << 4)) << (8 * k)) for k, (t, b0) in enumerate(EV[m][1])) | (0xFF << (8 * len(EV[m][1]))) for m in EV}
    A(f's_mov_b32 s84, -1\ns_cmp_eq_u32 s20, 1\ns_cselect_b32 s84, {hex(pk[1])}, s84\ns_cmp_eq_u32 s20, 2\ns_cselect_b32 s84, {hex(pk[2])}, s84\ns_cmp_eq_u32 s20, 3\ns_cselect_b32 s84, {hex(pk[3])}, s84\ns_and_b32 s58, s84, 15')
    AC = 24; WR = 104; HBUF = 224
    def a2(rt, t): return AC + 20 * rt + 4 * t
    regset = {0: 0, 1: 1, 2: 2, 9: 3, 10: 4, 11: 5}
    lds_unit = {3: WBASE, 4: WBASE + WSLOT, 5: WBASE + 2*WSLOT, 6: WBASE + 3*WSLOT, 7: 20480, 8: WBASE + 4*WSLOT}
    def kidx(i, dst):
        A(f's_add_u32 s{dst}, s23, {i}\ns_cmp_ge_u32 s{dst}, 12\ns_cselect_b32 s48, 12, 0\ns_sub_u32 s{dst}, s{dst}, s48')
    def w2reg(i):
        kidx(i, 56)
        A('s_mul_i32 s56, s56, 5120\ns_add_u32 s56, s56, s50')
        for t in range(5):
            b = WR + 20 * regset[i] + 4 * t
            if t == 0: A(f's_waitcnt vmcnt({STG_THR})')
            A(f'buffer_load_dwordx4 {vr(b)}, v{5 if t < 4 else 7}, s[40:43], s56 offen offset:{1024*(t&3)} sc1')
    def w2lds(i):
        kidx(i, 56)
        A('s_mul_i32 s56, s56, 5120\ns_add_u32 s56, s56, s50')
        A(f's_add_u32 m0, s52, {lds_unit[i]}\ns_waitcnt vmcnt({STG_THR})')
        for t in range(4):
            A(f'buffer_load_dwordx4 v5, s[40:43], s56 offen offset:{1024*t} sc1 lds')
        A(f's_add_u32 m0, s52, {lds_unit[i] + 4096}\ns_nop 0')
        A('buffer_load_dwordx4 v7, s[40:43], s56 offen sc1 lds')
    def trace():
        if STAMP and 'quiet' not in EXP:
            A('s_memtime s[98:99]\ns_add_u32 s48, s65, 38\ns_mov_b32 m0, s48\ns_waitcnt lgkmcnt(0)\nv_writelane_b32 v1, s98, m0')
    def ensure_free():
        if 'nofree' in EXP: return
        l = A.label('L_free')
        A(f's_sub_u32 s57, s65, 4\ns_cmp_ge_i32 s66, s57\ns_cbranch_scc1 {l}')
        tbeg(A)
        lds_wait(A, 39, 0, 48, 's57', four='free', sdst=66, sleep=LSLEEP)
        tend(A, 100)
        A(f'{l}:')
    stamp(A, 2)
    table_srd(A, 8)
    A('s_mov_b32 s65, 1\ns_mov_b32 s66, 0')
    flag()
    if R0LATE:
        A('s_cmp_lt_u32 s20, 2\ns_cbranch_scc1 L_nor1')
        A('s_mov_b32 exec_hi, 0\nbuffer_load_dword v36, v30, s[80:83], s97 offen\ns_mov_b32 exec_hi, -1')
        A('L_nor1:')
    A('s_branch L_ld_odd')
    A('.p2align 3')
    A('L_ld_loop:')
    ensure_free()
    if L2PF:
        A(f's_bitcmp1_b32 s65, 1\ns_cbranch_scc0 L_nol2\ns_cmp_gt_u32 s65, {2 + 4 * ((9 - L2PF) // 2)}\ns_cbranch_scc1 L_nol2')
        A('buffer_load_dword v35, v33, s[4:7], s95 offen\ns_add_u32 s95, s95, s94')
        A('L_nol2:')
    issueX(); issueW()
    trace()
    A('s_add_u32 s65, s65, 1')
    flag()
    A('L_ld_odd:')
    ensure_free()
    issueW()
    trace()
    A('s_lshr_b32 s49, s65, 1\ns_add_u32 s65, s65, 1')
    flag()
    A('s_cmp_eq_u32 s49, s58\ns_cbranch_scc1 L_ev_round')
    A('L_ev_r1:')
    A('s_cmp_lt_u32 s65, 20\ns_cbranch_scc1 L_ld_loop')
    A('s_branch L_ld_done')
    A('L_ev_round:')
    A('s_bfe_u32 s59, s84, 0x40004\ns_lshr_b32 s84, s84, 8\ns_and_b32 s58, s84, 15')
    A('s_cmp_gt_u32 s59, 9\ns_cbranch_scc1 L_ev_flag')
    lds_wait(A, 38, 0, 48, 's65')
    A('s_mul_i32 s56, s85, s59\nbuffer_load_dword v36, v30, s[80:83], s56 offen')
    if THIRD:
        A(f's_cmp_lg_u32 s59, {THIRD}\ns_cbranch_scc1 L_ev_no3')
        A('s_mul_i32 s56, s85, 9\ns_mov_b32 exec_hi, 0\nbuffer_load_dword v37, v30, s[80:83], s56 offen\ns_mov_b32 exec_hi, -1')
        A('L_ev_no3:')
    A('s_cmp_eq_u32 s64, 0\ns_cbranch_scc1 L_ev_rw')
    A('global_load_dwordx2 v[42:43], v44, s[86:87] sc1')
    A('s_cmp_eq_u32 s64, 2\ns_cbranch_scc1 L_ev_poison')
    A('s_mov_b32 exec_hi, 0\nbuffer_load_dword v37, v31, s[44:47], s79 offen offset:128\ns_mov_b32 exec_hi, -1')
    for e in range(2):
        for g in range(4):
            dma(A, f's_add_u32 m0, s93, {g*1024}', 20 + g, 44, 79)
        A('s_add_u32 s79, s79, 128')
        A('s_waitcnt vmcnt(0)')
        for tl in range(4):
            A(f'ds_read_b64_tr_b16 {vr(64+16*e+4*tl,2)}, v{24+tl}\nds_read_b64_tr_b16 {vr(66+16*e+4*tl,2)}, v{24+tl} offset:2048')
        A('s_waitcnt lgkmcnt(0)')
    if not DEFER:
        for tl in range(8):
            A(f's_add_u32 s56, s63, {tl}\ns_mul_i32 s57, s56, 52429\ns_lshr_b32 s57, s57, 18\ns_mul_i32 s57, s57, 235\ns_add_u32 s57, s57, s56\ns_add_u32 s57, s57, s62\ns_lshl_b32 s57, s57, 10\ns_add_u32 s57, s57, {W2_OFF}')
            A(f'buffer_store_dwordx4 {vr(64+4*tl)}, v5, s[40:43], s57 offen sc1')
    A('s_branch L_ev_r1')
    A('L_ev_poison:')
    A('v_mov_b32 v64, -1\nv_mov_b32 v65, -1\nv_mov_b32 v66, -1\nv_mov_b32 v67, -1')
    A(f's_mul_i32 s56, s60, 3200\ns_add_u32 s56, s56, {M_OFF}\ns_lshl_b32 s57, s60, 7\ns_add_u32 s57, s57, {ZB_OFF}\ns_cmp_lt_u32 s60, 128\ns_cselect_b32 s57, s57, {OOB}')
    for k in range(3):
        A(f'buffer_store_dwordx4 v[64:67], v5, s[40:43], s56 offen offset:{1024*k} sc1')
    A('s_mov_b64 exec, 0xff\nbuffer_store_dwordx4 v[64:67], v5, s[40:43], s56 offen offset:3072 sc1')
    A('buffer_store_dwordx4 v[64:67], v5, s[40:43], s57 offen sc1\ns_mov_b64 exec, -1')
    A('L_ev_rw:')
    A('s_waitcnt vmcnt(0)')
    A('s_branch L_ev_r1')
    A('L_ev_flag:')
    A('s_cmp_eq_u32 s64, 0\ns_cbranch_scc1 L_ev_r1')
    if DEFER:
        A('s_cmp_eq_u32 s59, 15\ns_cbranch_scc1 L_ev_fl2\ns_cmp_lg_u32 s64, 1\ns_cbranch_scc1 L_ev_r1')
        for tl in range(8):
            A(f's_add_u32 s56, s63, {tl}\ns_mul_i32 s57, s56, 52429\ns_lshr_b32 s57, s57, 18\ns_mul_i32 s57, s57, 235\ns_add_u32 s57, s57, s56\ns_add_u32 s57, s57, s62\ns_lshl_b32 s57, s57, 10\ns_add_u32 s57, s57, {W2_OFF}')
            A(f'buffer_store_dwordx4 {vr(64+4*tl)}, v5, s[40:43], s57 offen sc1')
        A('s_branch L_ev_r1')
        A('L_ev_fl2:')
    l0 = A.label('L_ep'); l1 = A.label('L_epok')
    A('s_mov_b32 s90, 0\ns_waitcnt vmcnt(15)')
    A(f'{l0}:')
    A('v_readfirstlane_b32 s88, v42')
    A(f's_cmp_lg_u32 s88, 0\ns_cbranch_scc1 {l1}')
    A('s_sleep 4\nglobal_load_dwordx2 v[42:43], v44, s[86:87] sc1\ns_waitcnt vmcnt(0)')
    A(f's_add_u32 s90, s90, 1\ns_cmp_lt_u32 s90, {SPIN_MAX}\ns_cbranch_scc1 {l0}')
    A(f'{l1}:')
    A('s_mov_b64 exec, 1\nbuffer_store_dwordx2 v[42:43], v44, s[40:43], s92 offen sc1\ns_mov_b64 exec, -1')
    A('s_branch L_ev_r1')
    A('L_ld_done:')
    trace()
    if 'p1' in EXP: finish(A)
    A('s_cmp_lg_u32 s20, 0\ns_cbranch_scc1 L_nowo')
    if PAX:
        A('s_and_b32 s69, s2, 7\ns_lshl_b32 s69, s69, 3\ns_bfe_u32 s48, s2, 0x30003\ns_add_u32 s69, s69, s48')
    A('s_load_dwordx2 s[24:25], s[0:1], 16\ns_mov_b32 s26, 819200\ns_mov_b32 s27, 0x20000')
    A('s_lshr_b32 s48, s69, 2\ns_lshl_b32 s48, s48, 1\ns_and_b32 s49, s67, 1\ns_add_u32 s48, s48, s49\ns_mul_i32 s48, s48, 25600')
    A('s_and_b32 s49, s69, 3\ns_lshl_b32 s49, s49, 1\ns_lshr_b32 s56, s67, 1\ns_add_u32 s49, s49, s56\ns_mul_i32 s49, s49, 160\ns_add_u32 s48, s48, s49')
    A('v_lshrrev_b32 v8, 1, v2\nv_mul_u32_u24 v8, 1280, v8\nv_and_b32 v9, 1, v2\nv_mul_u32_u24 v9, 156, v9\nv_add_u32 v8, v8, v9')
    A('s_mov_b32 s73, s48\ns_waitcnt lgkmcnt(0)\nbuffer_load_dword v36, v8, s[24:27], s48 offen')
    A('L_nowo:')
    def bsetup():
        p2_ids(A)
        A('s_mul_i32 s23, s19, 3\ns_lshr_b32 s23, s23, 1\ns_and_b32 s48, s18, 3\ns_mul_i32 s48, s48, 3\ns_add_u32 s23, s23, s48\ns_cmp_ge_u32 s23, 12\ns_cselect_b32 s48, 12, 0\ns_sub_u32 s23, s23, s48')
        A(f's_mul_i32 s48, s67, 12\ns_mul_i32 s50, s19, 48\ns_add_u32 s50, s50, s48\ns_mul_i32 s50, s50, 5120\ns_add_u32 s50, s50, {W2_OFF}')
        A('s_mul_i32 s51, s18, 68\ns_add_u32 s51, s51, s48\ns_lshl_b32 s51, s51, 12')
        A('s_mul_i32 s52, s67, 5120')
    A(f'v_mov_b32 v0, {CT}')
    bsetup()
    A(f's_mul_i32 s53, s67, 480\ns_mul_i32 s48, s19, 5\ns_lshr_b32 s48, s48, 2\ns_add_u32 s53, s53, {FW_OFF}')
    A('v_lshrrev_b32 v8, 1, v2\nv_mul_u32_u24 v8, 40, v8\nv_and_b32 v9, 1, v2\nv_add_u32 v9, s48, v9\nv_lshrrev_b32 v9, 1, v9\nv_lshl_add_u32 v28, v9, 3, v8')
    A(f's_lshr_b32 s48, s18, 1\ns_lshl_b32 s54, s48, {FSH}\ns_add_u32 s54, s54, {FG_OFF}')
    A(f's_mov_b32 s55, {FP_OFF}\ns_mov_b32 s90, 0\nv_cmp_gt_u32 s[58:59], 24, v2')
    A('L_b_chk:')
    A('global_load_dwordx2 v[42:43], v44, s[86:87] sc1')
    A('s_mov_b64 exec, s[58:59]\nbuffer_load_dwordx2 v[46:47], v28, s[40:43], s53 offen sc1\ns_mov_b64 exec, -1')
    A('s_cmp_lg_u32 s67, 1\ns_cbranch_scc1 L_b_chk1')
    A('buffer_load_dwordx4 v[48:51], v5, s[40:43], s55 offen sc1\nbuffer_load_dwordx4 v[52:55], v5, s[40:43], s55 offen offset:1024 sc1')
    A('L_b_chk1:')
    A('s_waitcnt vmcnt(0)')
    A('v_readfirstlane_b32 s88, v42\nv_readfirstlane_b32 s89, v43\ns_nop 1')
    A('v_cmp_ne_u64 s[60:61], s[88:89], v[46:47]\ns_and_b64 s[60:61], s[60:61], s[58:59]')
    A('s_cmp_lg_u32 s67, 1\ns_cbranch_scc1 L_b_chk2')
    A('v_cmp_ne_u64 s[62:63], s[88:89], v[48:49]\ns_or_b64 s[60:61], s[60:61], s[62:63]\nv_cmp_ne_u64 s[62:63], s[88:89], v[50:51]\ns_or_b64 s[60:61], s[60:61], s[62:63]')
    A('v_cmp_ne_u64 s[62:63], s[88:89], v[52:53]\ns_or_b64 s[60:61], s[60:61], s[62:63]\nv_cmp_ne_u64 s[62:63], s[88:89], v[54:55]\ns_or_b64 s[60:61], s[60:61], s[62:63]')
    A('L_b_chk2:')
    A('s_cmp_eq_u32 s88, 0\ns_cselect_b32 s60, 1, s60\ns_cmp_eq_u64 s[60:61], 0\ns_cbranch_scc1 L_b_chkok')
    if 'NODUTY' in EXP: A('s_branch L_b_chkok')
    A(f's_sleep 24\ns_add_u32 s90, s90, 1\ns_cmp_lt_u32 s90, {SPIN_MAX}\ns_cbranch_scc1 L_b_chk')
    A('L_b_chkok:')
    A('s_cmp_lg_u32 s67, 1\ns_cbranch_scc1 L_b_nofp')
    A('v_mov_b32 v46, 1\ns_mov_b64 exec, 1\nds_write_b64 v0, v[42:43] offset:32\nds_write_b32 v0, v46 offset:72\ns_mov_b64 exec, -1')
    A('L_b_nofp:')
    stamp(A, 37)
    rest = []
    A('s_cmp_eq_u32 s20, 0\ns_cbranch_scc1 L_b_kv')
    for i in (0, 1, 2, 9, 10, 11):
        w2reg(i)
    stamp(A, 22)
    lds_wait(A, 39, 0, 48, 20, four='free', sleep=LSLEEP)
    for k, i in enumerate((3, 4, 5, 6, 7, 8)):
        if k == GEARLY:
            lds_wait(A, 38, 48, 48, 1, sleep=4)
            stamp(A, 9)
        w2lds(i); stamp(A, 16 + k)
    A('s_branch L_b_common')
    A('L_b_kv:')
    pre = [0, 1, 2, 9, 10, 11]
    for need, i in ((16, 3), (17, 4), (18, 5), (18, 7), (19, 6), (20, 8)):
        lds_wait(A, 39, 0, 48, need, four='free', sleep=LSLEEP)
        w2lds(i)
    for i in range(5):
        A(f'v_add_u32 v12, {64*i}, v2\nv_mul_u32_u24 v13, 6554, v12\nv_lshrrev_b32 v13, 16, v13\nv_mul_u32_u24 v14, 10, v13\nv_sub_u32 v14, v12, v14')
        A(f'v_mul_u32_u24 v13, 1280, v13\nv_lshl_add_u32 v13, v14, 4, v13\ns_add_u32 m0, s52, {1024*i}\ns_nop 0')
        A('buffer_load_dwordx4 v13, s[24:27], s73 offen lds')
    stamp(A, 9)
    for i in pre[:KVPRE]:
        w2reg(i)
    stamp(A, 8)
    A('s_lshr_b32 s18, s69, 2\ns_lshl_b32 s18, s18, 1\ns_and_b32 s48, s67, 1\ns_add_u32 s18, s18, s48\ns_and_b32 s19, s69, 3\ns_lshl_b32 s19, s19, 1\ns_lshr_b32 s48, s67, 1\ns_add_u32 s19, s19, s48')
    phase_a(A)
    bsetup()
    for i in pre[KVPRE:]:
        w2reg(i)
    A('L_b_common:')
    hbufs = [HBUF, HBUF + 16, WR + 40]
    def hb(i, rt):
        k = i if i < 2 else (0 if i == 2 else (i - 3 + 1) % 3 if False else None)
        return None
    hmap = {0: 0, 1: 1, 2: 0, 3: 1}
    for i in range(4, 12):
        hmap[i] = [0, 2, 1][(i - 4) % 3]
    def hb(i, rt): return hbufs[hmap[i]] + 4 * rt
    A('v_add_u32 v8, s52, v5')
    A(f'v_add_u32 v9, {WBASE + 2*WSLOT}, v8')
    def rdW(i, rs):
        u = lds_unit[i]
        va, off = (8, u) if u < WBASE + WSLOT - 5120 else ((9, u - (WBASE + 2*WSLOT)) if u >= WBASE + 2*WSLOT else (12, 0))
        for t in range(5):
            A(f'ds_read_b128 {vr(WR+20*rs+4*t)}, v{va} offset:{off + 1024*t}')
    A(f'v_add_u32 v12, {WBASE + WSLOT}, v8')
    A('s_load_dwordx2 s[28:29], s[0:1], 64\ns_mov_b32 s30, 2621440\ns_mov_b32 s31, 0x20000')
    A(f's_lshl_b32 s48, s67, 2\nv_add_u32 v13, s48, v0\nv_mov_b32 v14, 1\ns_mul_i32 s48, s67, {WSLOT}\ns_add_u32 s48, s48, {WBASE}\nv_add_u32 v15, s48, v5')
    A(f's_mul_i32 s48, s67, 15360\ns_cmp_eq_u32 s67, 3\ns_cselect_b32 s48, {XCH[3]}, s48\nv_add_u32 v16, s48, v5')
    A(f's_lshl_b32 s48, s67, 11\ns_add_u32 s48, s48, {XCH[3] + 15360}\nv_add_u32 v17, s48, v5\ns_lshl_b32 s48, s67, 8\nv_lshlrev_b32 v19, 2, v2\nv_add_u32 v19, s48, v19')
    A('s_lshl_b32 s48, s18, 6\ns_lshl_b32 s49, s67, 4\ns_add_u32 s48, s48, s49\nv_and_b32 v20, 15, v2\nv_add_u32 v20, s48, v20\nv_mul_u32_u24 v20, 1280, v20\nv_lshrrev_b32 v21, 4, v2\nv_lshl_add_u32 v20, v21, 3, v20\ns_mul_i32 s55, s19, 160')
    A('s_mul_i32 s48, s67, 5\ns_mul_i32 s57, s18, 68\ns_add_u32 s57, s57, s48\ns_add_u32 s57, s57, 48\ns_lshl_b32 s57, s57, 12')
    A(f's_lshl_b32 s58, s18, 8\ns_add_u32 s58, s58, {G_OFF}\nv_and_b32 v3, 15, v2\nv_lshlrev_b32 v11, 2, v3')
    A(f's_mul_i32 s48, s67, 320\ns_add_u32 s48, s48, {CT + 1536}\nv_mul_u32_u24 v4, 80, v21\nv_add_u32 v4, s48, v4')
    A('v_lshrrev_b32 v10, 2, v3\nv_cmp_eq_u32 s[64:65], v10, v21\nv_and_b32 v10, 1, v3\nv_cmp_eq_u32 s[62:63], 0, v10')
    A(f's_and_b64 s[60:61], s[64:65], s[62:63]\ns_andn2_b64 s[62:63], s[64:65], s[62:63]\ns_mov_b32 s64, {EPS}\ns_mov_b32 s65, 0xffff0000')
    A(f's_setprio {BPRIO}')
    stamp(A, 3)
    if GPOLL == 'B':
        A('s_cmp_lg_u32 s67, 3\ns_cbranch_scc1 L_b_nopoll')
        poll(A, 54, 48, 10, 6)
        A('v_mov_b32 v10, 1\ns_mov_b64 exec, 1\nds_write_b32 v0, v10 offset:64\ns_mov_b64 exec, -1')
        A('L_b_nopoll:')
    A('s_lshl_b32 s59, 1, s67' if FINEG else 's_mov_b32 s59, 15')
    lds_wait_mask(A, 0, 64, 10, 's59')
    A('s_waitcnt vmcnt(0)')
    stamp(A, 4)
    Q = []
    def wait(tag):
        last = max(k for k, t in enumerate(Q) if t == tag)
        A(f's_waitcnt vmcnt({min(63, len(Q) - 1 - last)})')
    def issueH(i):
        kidx(i, 56)
        A('s_lshl_b32 s56, s56, 12\ns_add_u32 s56, s56, s51')
        for rt in range(4):
            A(f'buffer_load_dwordx4 {vr(hb(i,rt))}, v5, s[40:43], s56 offen offset:{1024*rt} {LL}')
            Q.append(('H', i))
    assert not rest[KPRE:]
    issueH(0); issueH(1)
    nH = 2
    dump = [(8, WBASE), (12, 0), (9, 0), (9, WSLOT)]
    def haddr(i, dst):
        return [f's_add_u32 s{dst}, s23, {i}', f's_cmp_ge_u32 s{dst}, 12', 's_cselect_b32 s48, 12, 0', f's_sub_u32 s{dst}, s{dst}, s48',
                f's_lshl_b32 s{dst}, s{dst}, 12', f's_add_u32 s{dst}, s{dst}, s51']
    def rdW_l(i, rs):
        u = lds_unit[i]
        va, off = (8, u) if u < WBASE + WSLOT - 5120 else ((9, u - (WBASE + 2*WSLOT)) if u >= WBASE + 2*WSLOT else (12, 0))
        return [f'ds_read_b128 {vr(WR+20*rs+4*t)}, v{va} offset:{off + 1024*t}' for t in range(5)]
    pendW = []
    for i in range(12):
        rs = regset[i] if i in regset else (i - 3) % 2
        gaps = {k: [] for k in range(20)}
        for k, l in zip((1, 3, 6, 8, 11), pendW): gaps[k].append(l)
        reuse = nH if nH < 12 and hmap[nH] == hmap[i] else None
        extra = None
        if reuse is not None:
            for k, l in enumerate(haddr(reuse, 56)): gaps[k // 2].append(l)
            nH += 1
        if nH < 12 and hmap[nH] == 2 and i == 3:
            pass
        first = Q.index(('H', i))
        for rt in range(4):
            A(f's_waitcnt vmcnt({len(Q) - 1 - (first + rt)})')
            if rt == 0:
                if i == 0: stamp(A, 5)
                if BST: stamp(A, 25 + i)
                if i not in regset:
                    A('s_waitcnt lgkmcnt(0)')
                if i == PQ_AT:
                    A('s_mov_b64 exec, 1\nds_write_b32 v13, v14 offset:144\ns_mov_b64 exec, -1')
                if i == 8:
                    A('s_mov_b64 exec, 1\nds_write_b32 v13, v14 offset:96\ns_mov_b64 exec, -1')
            for t in range(5):
                d = vr(a2(rt, t))
                A(f'v_mfma_f32_16x16x32_bf16 {d}, {vr(WR+20*rs+4*t)}, {vr(hb(i,rt))}, {d if i else 0}')
                for l in gaps[5 * rt + t]: A(l)
                if i == 11 and rt >= 2:
                    A(f'ds_write_b128 v{dump[rt-2][0]}, {vr(a2(rt-2,t))} offset:{dump[rt-2][1] + t*1024}')
            if reuse is not None:
                A(f'buffer_load_dwordx4 {vr(hb(reuse,rt))}, v5, s[40:43], s56 offen offset:{1024*rt} {LL}')
                Q.append(('H', reuse))
        if NRC == 2 and i in (9, 10):
            j = i - 7
            A(f's_add_u32 s48, s67, {j+1}\ns_and_b32 s48, s48, 3\ns_lshl_b32 s49, s48, 10\ns_add_u32 s56, s57, s49\ns_lshl_b32 s49, s48, 6\ns_add_u32 s49, s49, s58')
            for kk in range(5):
                A(f'buffer_load_dwordx4 {vr(WR + 8*kk + 4*(j-2))}, v5, s[40:43], s56 offen {LL}')
                if kk < 4: A('s_add_u32 s56, s56, 4096')
                Q.append(('P', j))
            A(f'buffer_load_dword v{20+j}, v11, s[40:43], s49 offen {LL}')
            Q.append(('P', j))
        while nH < 12 and all(hmap[j] != hmap[nH] for j in range(i + 1, nH)) and not (hmap[nH] == 2 and i < 2):
            issueH(nH); nH += 1
        tgt = {0: 3, 2: 4}.get(i, i + 2 if 5 <= i + 2 <= 8 else None)
        pendW = rdW_l(tgt, (tgt - 3) % 2) if tgt is not None else []
    stamp(A, 6)
    if NRC == 2:
        ZR = HBUF; DN = AC; SC = HBUF + 20; T0 = HBUF + 24
        lds_wait(A, 0, 68, 10, 1, four=False, sleep=1)
        for kk in range(5):
            A(f'ds_read_b128 {vr(ZR+4*kk)}, v4 offset:{16*kk}')
        A('s_waitcnt lgkmcnt(0)')
        for kk in range(5):
            for j in range(4):
                m = 's[62:63]' if (4 * kk + j) >= 10 else 's[60:61]'
                A(f'v_cndmask_b32 v{ZR+4*kk+j}, 0, v{ZR+4*kk+j}, {m}')
        A('s_waitcnt vmcnt(0)\ns_nop 0')
        for kk in range(5):
            for r in range(2):
                d = vr(DN + 4 * r)
                A(f'v_mfma_f32_16x16x32_bf16 {d}, {vr(ZR+4*kk)}, {vr(WR+8*kk+4*r)}, {d if kk else 0}')
        A('s_nop 7')
        for r in range(2):
            A(f'v_add_f32 v{DN+4*r}, s64, v{DN+4*r}\nv_add_f32 v{DN+4*r+1}, s64, v{DN+4*r+1}')
        for r in range(2):
            A(f'v_rcp_f32 v{DN+4*r}, v{DN+4*r}\nv_rcp_f32 v{DN+4*r+1}, v{DN+4*r+1}')
        A('s_nop 0')
        for r in range(2):
            A(f'v_mul_f32 v{SC+2*r}, v{22+r}, v{DN+4*r}\nv_mul_f32 v{SC+2*r+1}, v{22+r}, v{DN+4*r+1}')
        for kk in range(5):
            for r in range(2):
                b = WR + 8 * kk + 4 * r
                for j in range(4):
                    A(f'v_lshlrev_b32 v{T0+2*j}, 16, v{b+j}\nv_and_b32 v{T0+2*j+1}, s65, v{b+j}')
                for j in range(4):
                    odd = 1 if (4 * kk + j) >= 10 else 0
                    A(f'v_mul_f32 v{T0+2*j}, v{SC+2*r+odd}, v{T0+2*j}\nv_mul_f32 v{T0+2*j+1}, v{SC+2*r+odd}, v{T0+2*j+1}')
                for j in range(4):
                    A(f'v_cvt_pk_bf16_f32 v{b+j}, v{T0+2*j}, v{T0+2*j+1}')
                A(f'ds_write_b128 v9, {vr(b)} offset:{r*WSLOT + 1024*kk}')
            A(f'v_mov_b32 v10, {kk+1}\ns_mov_b64 exec, 1\nds_write_b32 v13, v10 offset:160\ns_mov_b64 exec, -1')
        lds_wait(A, 13, 176, 10, 1, four=False, sleep=1)
    for rt in (2, 3):
        for t in range(5):
            A(f'ds_write_b128 v{dump[rt][0]}, {vr(a2(rt,t))} offset:{dump[rt][1] + t*1024}')
    A('s_waitcnt lgkmcnt(0)')
    stamp(A, 7)
    A('s_barrier')
    R = WR
    for r in range(4):
        for t in (3, 4):
            A(f'ds_read_b128 {vr(R+8*r+4*(t-3))}, v15 offset:{r*5120 + 1024*t}')
    A(f'ds_read_b32 v18, v19 offset:{46080}')
    A('s_waitcnt lgkmcnt(5)')
    for r in range(3):
        for t in (3, 4):
            A(f'ds_read_b128 {vr(R+32+8*r+4*(t-3))}, v16 offset:{r*5120 + 1024*t}')
    for t in (3, 4):
        A(f'ds_read_b128 {vr(R+56+4*(t-3))}, v17 offset:{1024*(t-3)}')
    for k in range(0, 8, 2):
        A(f'v_pk_add_f32 {vr(R+k,2)}, {vr(R+k,2)}, {vr(R+8+k,2)}')
    A('s_waitcnt lgkmcnt(8)\nv_mov_b32 v19, v18')
    for k in range(0, 8, 2):
        A(f'v_pk_add_f32 {vr(R+16+k,2)}, {vr(R+16+k,2)}, {vr(R+24+k,2)}')
    for k in range(0, 8, 2):
        A(f'v_pk_add_f32 {vr(R+k,2)}, {vr(R+k,2)}, {vr(R+16+k,2)}')
    A('s_waitcnt lgkmcnt(0)')
    for k in range(0, 8, 2):
        A(f'v_pk_fma_f32 {vr(R+k,2)}, {vr(R+k,2)}, v[18:19], {vr(R+56+k,2)}')
    for sl in range(3):
        for k in range(0, 8, 2):
            A(f'v_pk_add_f32 {vr(R+k,2)}, {vr(R+k,2)}, {vr(R+32+8*sl+k,2)}')
    for t in (3, 4):
        b = R + 4 * (t - 3)
        A(f'v_cvt_pk_bf16_f32 v{b}, v{b}, v{b+1}\nv_cvt_pk_bf16_f32 v{b+1}, v{b+2}, v{b+3}')
        A(f'buffer_store_dwordx2 {vr(b,2)}, v20, s[28:31], s55 offen offset:{32*t}')
    finish(A)


def gen(A):
    K = NAME + '_kernel'
    A(f'.globl {K}\n.p2align 8\n.type {K},@function\n{K}:')
    A('s_cmp_ge_u32 s2, 256\ns_cbranch_scc1 L_end')
    A('s_load_dwordx4 s[4:7], s[0:1], 0')
    A('s_load_dwordx4 s[8:11], s[0:1], 32')
    A('s_load_dwordx4 s[12:15], s[0:1], 48')
    A('s_load_dwordx2 s[16:17], s[0:1], 80')
    A.c('decode: s18 rb, s19 cq, s20 m, s21 wave, s22 gtype, s23 rbl, s55 is_gc')
    A('v_lshrrev_b32 v1, 6, v0\nv_and_b32 v2, 63, v0')
    A('s_bfe_u32 s23, s2, 0x10003\ns_and_b32 s18, s2, 7\ns_lshl_b32 s18, s18, 1\ns_add_u32 s18, s18, s23' if not MAP84 else 's_bfe_u32 s23, s2, 0x30003\ns_and_b32 s18, s2, 1\ns_lshl_b32 s18, s18, 3\ns_add_u32 s18, s18, s23')
    A('v_readfirstlane_b32 s21, v1')
    A('s_bfe_u32 s19, s2, 0x20004\ns_lshr_b32 s20, s2, 6' if not MAP84 else ('s_bfe_u32 s19, s2, 0x20001\ns_lshr_b32 s20, s2, 6' if not KVX else 's_bfe_u32 s20, s2, 0x20001\ns_lshr_b32 s19, s2, 6'))
    A('s_mul_i32 s22, s19, 3\ns_add_u32 s22, s22, s20\ns_sub_u32 s22, s22, 1')
    A('s_cmp_eq_u32 s22, 10\ns_cselect_b32 s55, 1, 0\ns_cmp_ge_i32 s22, 10\ns_cselect_b32 s91, 1, 0')
    if STAMP:
        A('v_mov_b32 v1, 0\ns_mov_b32 s100, 0\ns_mov_b32 s101, 0')
        stamp(A, 0); stamp_rt(A, 62)
    A('s_cmp_lt_u32 s21, 4\ns_cbranch_scc1 L_compute')
    gen_loader(A)
    gen_compute(A)
    A('L_end:\ns_endpgm')
    A('.p2align 7\nL_table:')
    for i in range(32):
        A(f'.long {i}')


def main(out):
    A = Asm()
    gen(A)
    K = NAME + '_kernel'
    hdr = open('cdna_kernels/' + NAME + '.s.ref').read().split('; Override')[0]
    txt = hdr + f'; @launch grid=(256,1,1) block=(512,1,1) lds={LDS_TOTAL}\n'
    txt += '.amdgcn_target "amdgcn-amd-amdhsa--gfx950"\n.text\n' + A.text()
    txt += f'''.section .rodata,"a"
.p2align 6
.amdhsa_kernel {K}
  .amdhsa_next_free_vgpr 256
  .amdhsa_next_free_sgpr 102
  .amdhsa_accum_offset 256
  .amdhsa_group_segment_fixed_size 0
  .amdhsa_kernarg_size 88
  .amdhsa_user_sgpr_count 2
  .amdhsa_user_sgpr_kernarg_segment_ptr 1
  .amdhsa_system_sgpr_workgroup_id_x 1
.end_amdhsa_kernel
'''
    open(out, 'w').write(txt)

if __name__ == '__main__':
    for a in sys.argv[2:]:
        k, v = a.split('=', 1)
        globals()[k] = eval(v)
    main(sys.argv[1] if len(sys.argv) > 1 else 'cdna_kernels/' + NAME + '.s')
```

```python
import sys

NAME = 'gated_mix__linear_attn_block__glu_gated_glu__prompt'

HB_OFF = 0
W2_OFF = 0x900000
M_OFF = 0xB00000
KVS = 3584
KVP_OFF = 0xC00000
G_OFF = 0xF00000
ZB_OFF = 0xF10000
FSH = 13
FG_OFF = 0xF40000
FP_OFF = 0xF60800
FM_OFF = 0xF81000
FW_OFF = 0xFA1800
STAMP_OFF = 0x1000000
WS_USED = 0x1100000
OOB = 0x7FFF0000

XSLOT = 16384; NX = 3
WBASE = NX * XSLOT
WSLOT = 20480; NW = 5
GWBASE = WBASE + NW * WSLOT
LDS_TOTAL = 163840
CT = 159744
P2_SCR = 0
RPK = GWBASE
CODEPF = True
EV = {1: (0, [(0, 3), (2, 15)]), 2: (1, [(1, 5), (3, 15)]), 3: (2, [(2, 7), (4, 15)])}
THIRD = 3
RPORD = (11, 1, 4, 7, 2, 5, 8, 0, 3, 6, 9, 10)
STAMP = False
GWS = 320
PRIO = 2
LSLEEP = 3
DEPTH = 2
EXP = ''
DIAG = None
DBGOUT = False
DEFER = False
BURST = 0
FINEG = True
GEARLY = 0
START2 = 0
RTS = False
WSM = 1
KVACK = True
R0LATE = False
L2PF = 0
KVPRE = 6
PAX = 2
ZM = 255
MACK = False
SPEC_M = True
NRC = 4
BST = True
PQ_AT = 3
NLEAD = 2
COOP_P = True
COOP_M = True
MK0 = 2
NPK = True
KVX = False
APRIO = 2
BPRIO = 0
MAP84 = True
LS = 'sc1'
LL = 'sc1'
KPRE = 6
LPS = 1
LP0 = 0
GPOLL = 'A'
GD = 8
KVG = 3
T1N = 6
PRETOUCH = False
STG_THR = 6
PSLEEP = 8
MSLEEP = 12
MDELAY = 64
GDELAY = 0
STG_EARLY = False
SPIN_MAX = 0x20000


class Asm:
    def __init__(self):
        self.L = []
        self.nl = 0
    def __call__(self, s):
        for line in s.split('\n'):
            line = line.strip()
            if line:
                self.L.append(line if line.endswith(':') else '    ' + line)
    def c(self, s):
        self.L.append('    ; ' + s)
    def label(self, p='L'):
        self.nl += 1
        return f'{p}_{self.nl}'
    def text(self):
        return '\n'.join(self.L) + '\n'


def vr(b, n=4):
    return f'v[{b}:{b+n-1}]'

def srd(A, d, lo, nbytes):
    A(f's_mov_b32 s{d}, s{lo}\ns_mov_b32 s{d+1}, s{lo+1}\ns_mov_b32 s{d+2}, {nbytes}\ns_mov_b32 s{d+3}, 0x20000')

def stamp(A, n):
    if STAMP:
        A(f'{"s_memrealtime" if RTS else "s_memtime"} s[98:99]\ns_waitcnt lgkmcnt(0)\nv_writelane_b32 v1, s98, {n}')
def stamp_rt(A, n):
    if STAMP:
        A(f's_memrealtime s[98:99]\ns_waitcnt lgkmcnt(0)\nv_writelane_b32 v1, s98, {n}')
def tbeg(A):
    if STAMP and 'quiet' not in EXP: A('s_memtime s[98:99]\ns_waitcnt lgkmcnt(0)\ns_mov_b32 s3, s98')
def tend(A, r):
    if STAMP and 'quiet' not in EXP: A(f's_memtime s[98:99]\ns_waitcnt lgkmcnt(0)\ns_sub_u32 s3, s98, s3\ns_add_u32 s{r}, s{r}, s3')
def finish(A):
    if STAMP:
        A('s_waitcnt vmcnt(0)')
        stamp(A, 61); stamp_rt(A, 63)
        A('v_writelane_b32 v1, s100, 59\nv_writelane_b32 v1, s101, 60')
        if DIAG:
            slot, mult = DIAG
            l = A.label('L_dg'); l2 = A.label('L_dg')
            A(f's_cmp_lg_u32 s21, 0\ns_cbranch_scc1 {l2}')
            A(f'v_readlane_b32 s48, v1, {slot}\nv_readlane_b32 s49, v1, 0\nv_readlane_b32 s50, v1, 61\ns_sub_u32 s48, s48, s49\ns_mul_i32 s48, s48, {mult}\ns_min_u32 s48, s48, 20000')
            A(f'{l}:\ns_memrealtime s[98:99]\ns_waitcnt lgkmcnt(0)\ns_sub_u32 s51, s98, s50\ns_cmp_lt_u32 s51, s48\ns_cbranch_scc1 {l}')
            A(f'{l2}:')
        A('s_mov_b64 exec, -1')
        A(f's_lshl_b32 s3, s2, 3\ns_add_u32 s3, s3, s21\ns_lshl_b32 s3, s3, 8\ns_add_u32 s3, s3, {STAMP_OFF}\nv_lshlrev_b32 v2, 2, v2')
        A('buffer_store_dword v1, v2, s[40:43], s3 offen')
        if DBGOUT:
            l = A.label('L_dbg')
            A(f's_cmp_lg_u32 s21, 0\ns_cbranch_scc1 {l}\ns_and_b32 s3, s2, 0xbf\ns_cmp_lg_u32 s3, 6\ns_cbranch_scc1 {l}')
            A('s_load_dwordx2 s[86:87], s[0:1], 72\ns_lshr_b32 s3, s2, 6\ns_mul_i32 s3, s3, 28\ns_add_u32 s3, s3, 8\ns_waitcnt lgkmcnt(0)\ns_mov_b64 exec, 1')
            for k, slot in enumerate((0, 2, 3, 5, 10, 12, 61)):
                A(f'v_readlane_b32 s48, v1, {slot}\nv_mov_b32 v3, s3\ns_nop 1\nv_mov_b32 v4, s48\nglobal_store_dword v3, v4, s[86:87] offset:{4*k}')
            A(f'{l}:')
    A('s_endpgm')

LOG2E = 0x3fb8aa3b
NLOG2E = 0xbfb8aa3b
EPS = 0x358637bd

ACC = 96; XF = 64; WF = 24
def acc(i, t): return ACC + 20 * i + 4 * t


THR = 0
def dma(A, m0expr, voff, sr, so):
    A(m0expr)
    A(f's_waitcnt vmcnt({THR-1})' if THR else 's_nop 0')
    A(f'buffer_load_dwordx4 v{voff}, s[{sr}:{sr+3}], s{so} offen lds')


def poll(A, soff, nl, vt, vaddr, sleep=None, first_sleep=False):
    l0 = A.label('L_poll'); l1 = A.label('L_polled')
    A('s_mov_b32 s90, 0')
    A(f's_mov_b64 exec, {hex((1 << nl) - 1)}' if nl <= 31 else f's_mov_b32 exec_lo, -1\ns_mov_b32 exec_hi, {hex((1 << (nl - 32)) - 1)}')
    A(f'{l0}:')
    A(f'buffer_load_dwordx2 {vr(vt,2)}, v{vaddr}, s[40:43], s{soff} offen sc1')
    A('s_waitcnt vmcnt(0)')
    A(f'v_cmp_ne_u64 vcc, s[88:89], {vr(vt,2)}')
    A(f's_cbranch_vccz {l1}')
    A(f's_sleep {PSLEEP if sleep is None else sleep}\ns_add_u32 s90, s90, 1\ns_cmp_lt_u32 s90, {SPIN_MAX}\ns_cbranch_scc1 {l0}')
    A(f'{l1}:')
    A('s_mov_b64 exec, -1')


def spoll(A, parts, sleep=2):
    l0 = A.label('L_sp'); l1 = A.label('L_spd')
    A('s_mov_b32 s96, 0')
    A(f'{l0}:')
    regs = []
    for so, imm, n, sb in parts:
        A(f's_load_dwordx{2*n} s[{sb}:{sb+2*n-1}], s[16:17], s{so} offset:{imm} glc')
        regs += [sb + 2 * k for k in range(n)]
    A('s_waitcnt lgkmcnt(0)')
    for r in regs:
        A(f's_xor_b64 s[{r}:{r+1}], s[{r}:{r+1}], s[88:89]')
    for r in regs[1:]:
        A(f's_or_b64 s[{regs[0]}:{regs[0]+1}], s[{regs[0]}:{regs[0]+1}], s[{r}:{r+1}]')
    A(f's_cbranch_scc0 {l1}')
    A(f's_sleep {sleep}\ns_add_u32 s96, s96, 1\ns_cmp_lt_u32 s96, {SPIN_MAX}\ns_cbranch_scc1 {l0}')
    A(f'{l1}:')


def set_flag(A, soff, vt):
    A(f'v_mov_b32 v{vt}, s88\nv_mov_b32 v{vt+1}, s89\nv_mov_b32 v{vt+2}, 0')
    A('s_waitcnt vmcnt(0)')
    A('s_mov_b64 exec, 1')
    A(f'buffer_store_dwordx2 {vr(vt,2)}, v{vt+2}, s[40:43], s{soff} offen sc1')
    A('s_mov_b64 exec, -1')


def table_srd(A, d):
    l = A.label('L_pc')
    A(f's_getpc_b64 s[{d}:{d+1}]\n{l}:\ns_add_u32 s{d}, s{d}, L_table-{l}\ns_addc_u32 s{d+1}, s{d+1}, 0\ns_movk_i32 s{d+2}, 128\ns_mov_b32 s{d+3}, 0x20000')


def lds_free(A, vaddr, vt, sdst):
    A(f'ds_read_b32 v{vt}, v{vaddr}\ns_waitcnt lgkmcnt(0)')
    A(f'v_readlane_b32 s{sdst}, v{vt}, 0\nv_readlane_b32 s48, v{vt}, 1\ns_min_u32 s{sdst}, s{sdst}, s48\nv_readlane_b32 s48, v{vt}, 2\ns_min_u32 s{sdst}, s{sdst}, s48\nv_readlane_b32 s48, v{vt}, 3\ns_min_u32 s{sdst}, s{sdst}, s48')


def lds_min4(A, vaddr, off, vt, sdst):
    A(f'ds_read_b128 {vr(vt)}, v{vaddr} offset:{off}\ns_waitcnt lgkmcnt(0)')
    A(f'v_min3_u32 v{vt}, v{vt}, v{vt+1}, v{vt+2}\nv_min_u32 v{vt}, v{vt}, v{vt+3}\ns_nop 0\nv_readfirstlane_b32 s{sdst}, v{vt}')


def lds_wait(A, vaddr, off, vt, need, four=True, sdst=90, sleep=1):
    l0 = A.label('L_lw'); l1 = A.label('L_lwd')
    if sleep in (2, 4): sleep *= WSM
    A('s_mov_b32 s96, 0')
    A(f'{l0}:')
    if four == 'free':
        lds_free(A, vaddr, vt, sdst)
    elif four:
        lds_min4(A, vaddr, off, vt, sdst)
    else:
        A(f'ds_read_b32 v{vt}, v{vaddr} offset:{off}\ns_waitcnt lgkmcnt(0)\nv_readfirstlane_b32 s{sdst}, v{vt}')
    A(f's_cmp_ge_i32 s{sdst}, {need}\ns_cbranch_scc1 {l1}')
    A(f's_sleep {sleep}\ns_add_u32 s96, s96, 1\ns_cmp_lt_u32 s96, {SPIN_MAX*16}\ns_cbranch_scc1 {l0}')
    A(f'{l1}:')


def lds_wait_mask(A, vaddr, off, vt, smask, sleep=2):
    l0 = A.label('L_mw'); l1 = A.label('L_mwd')
    A('s_mov_b32 s96, 0')
    A(f'{l0}:')
    A(f'ds_read_b32 v{vt}, v{vaddr} offset:{off}\ns_waitcnt lgkmcnt(0)\nv_readfirstlane_b32 s90, v{vt}')
    A(f's_andn2_b32 s90, {smask}, s90\ns_cbranch_scc0 {l1}')
    A(f's_sleep {sleep}\ns_add_u32 s96, s96, 1\ns_cmp_lt_u32 s96, {SPIN_MAX*16}\ns_cbranch_scc1 {l0}')
    A(f'{l1}:')


def mainloop(A, kv, tag):
    def upd_s():
        L = [f's_add_u32 s50, s50, {WSLOT}', f's_cmp_ge_u32 s50, {WBASE + NW*WSLOT}', f's_cselect_b32 s50, {WBASE}, s50']
        if not kv:
            L += ['s_add_u32 s52, s52, s53', 's_cmp_ge_u32 s52, s57', f's_cselect_b32 s52, {WBASE}, s52']
        return L
    def set_w():
        return [f'v_add_u32 v{15+t}, s50, v{10+t}' for t in range(4)] + [f'v_add_u32 v19, s{50 if kv else 52}, v14']
    def upd_blk():
        return [f's_add_u32 s51, s51, {XSLOT}', f's_cmp_ge_u32 s51, {NX*XSLOT}', 's_cselect_b32 s51, 0, s51']
    def set_x(par):
        return [f'v_add_u32 v{4+par}, s51, v{20+par}']
    def rdW(p, t, h):
        b = WF + 20 * p + 4 * t + 2 * h
        return f'ds_read_b64_tr_b16 {vr(b,2)}, v{15+t} offset:{512*h}'
    def rdX(i, par):
        return f'ds_read_b128 {vr(XF+4*i)}, v{4+par} offset:{2048*i}'
    def mfma(i, t, p):
        w = vr(WF + 20 * p + 4 * t); x = vr(XF + 4 * i); d = vr(acc(i, t))
        A(f'v_mfma_f32_16x16x32_bf16 {d}, {x}, {w}, {d}' if kv else f'v_mfma_f32_16x16x32_bf16 {d}, {w}, {x}, {d}')
    A(f's_mov_b32 s50, {WBASE}\ns_mov_b32 s51, 0\ns_mov_b32 s54, 0')
    if not kv:
        A(f's_cmp_lg_u32 s55, 0\ns_cselect_b32 s52, {GWBASE}, s50\ns_movk_i32 s53, {WSLOT}\ns_cselect_b32 s53, {GWS}, s53\ns_mov_b32 s57, {WBASE + NW*WSLOT}\ns_cselect_b32 s57, -1, s57')
    for l in set_w() + set_x(0) + set_x(1):
        A(l)
    A(f'v_mov_b32 v3, {CT}\ns_lshl_b32 s48, s21, 8\ns_add_u32 m0, s48, {CT+256}\nv_mov_b32 v0, {OOB}\nv_writelane_b32 v0, 0, 0')
    table_srd(A, 44)
    stamp(A, 1)
    lds_wait(A, 3, 0, 6, 1, sdst=59)
    A('s_waitcnt vmcnt(0)')
    A(f's_setprio {PRIO}')
    stamp(A, 2)
    for t in range(5):
        A(rdW(0, t, 0)); A(rdW(0, t, 1))
    A('s_waitcnt lgkmcnt(6)')
    for i in range(8):
        A(rdX(i, 0))
    for l in upd_s() + set_w():
        A(l)
    A('s_mov_b32 s58, 2\ns_cmp_ge_i32 s59, s58')
    A(f's_cbranch_scc0 L_{tag}_slow0')
    A('.p2align 3')
    for p in range(2):
        gap = {k: [] for k in range(40)}
        for i in range(5):
            gap[5*i].append(rdW(1 - p, i, 0)); gap[5*i + 2].append(rdW(1 - p, i, 1))
        for i in range(8):
            gap[5*i + 4].append(rdX(i, 1 - p))
        gap[9].append('s_waitcnt lgkmcnt(6)')
        gap[1].append('s_add_u32 s54, s54, 4')
        gap[11].append('buffer_load_dword v0, s[44:47], s54 offen lds')
        gap[6].append('s_add_u32 s58, s58, 1'); gap[8].append('s_min_u32 s58, s58, 20')
        sal = upd_s() + (upd_blk() if p == 0 else [])
        for k in (13, 13, 16, 16, 18, 18, 21, 21, 23):
            if sal: gap[k].append(sal.pop(0))
        assert not sal
        gap[23].append('ds_read_b128 v[6:9], v3')
        for k, l in zip((25, 26, 27, 28, 30, 31), set_w() + set_x(p)):
            gap[k].append(l)
        gap[32].append('s_waitcnt lgkmcnt(2)'); gap[32].append('v_min3_u32 v6, v6, v7, v8')
        gap[33].append('v_min_u32 v6, v6, v9')
        gap[35].append('v_readfirstlane_b32 s59, v6')
        if p == 1:
            gap[36].append('s_cmp_lt_u32 s54, 80'); gap[37].append(f's_cbranch_scc0 L_{tag}_last')
        gap[38].append('s_cmp_ge_i32 s59, s58' if 'nowait' not in EXP else 's_cmp_eq_u32 s59, s59')
        if 'novalu' in EXP:
            for k in gap: gap[k] = [l for l in gap[k] if not l.startswith('v_')]
        if 'nods' in EXP:
            for k in gap: gap[k] = [l for l in gap[k] if not l.startswith('ds_')]
        if 'nosalu' in EXP:
            for k in gap: gap[k] = [l for l in gap[k] if not (l.startswith('s_') and 13 <= k <= 23)]
        if 'noctl' in EXP:
            for k in gap: gap[k] = [l for l in gap[k] if not (' v6' in l or 'v[6:9]' in l)]
        if 'nowr' in EXP:
            for k in gap: gap[k] = [l for l in gap[k] if not l.startswith('ds_write')]
        if 'now32' in EXP:
            gap[32] = [l for l in gap[32] if not l.startswith('s_waitcnt')]
        if 'nopub' in EXP: pass
        if p == 0:
            A(f'L_{tag}_go0:')
        else:
            A(f's_cbranch_scc0 L_{tag}_slow1')
            A(f'L_{tag}_go1:')
        A('s_waitcnt lgkmcnt(2)')
        for i in range(8):
            for t in range(5):
                mfma(i, t, p)
                for l in gap[5*i + t]: A(l)
    A(f's_cbranch_scc1 L_{tag}_go0')
    for p in range(2):
        A(f'L_{tag}_slow{p}:')
        tbeg(A)
        lds_wait(A, 3, 0, 6, 's58', sdst=59)
        tend(A, 100)
        if STAMP: A('s_add_u32 s101, s101, 1')
        A(f's_branch L_{tag}_go{p}')
    A(f'L_{tag}_last:')
    mfma(7, 3, 1); mfma(7, 4, 1)
    A('s_waitcnt lgkmcnt(0)')
    stamp(A, 3)
    A('s_nop 6')
    if 'p1' in EXP: finish(A)


def phi_q(A, b, t, dst=None):
    dst = b if dst is None else dst
    A(f'v_pk_mul_f32 {vr(t,2)}, {vr(b,2)}, s[60:61]\nv_pk_mul_f32 {vr(t+2,2)}, {vr(b+2,2)}, s[60:61]')
    for j in range(4):
        A(f'v_exp_f32 v{t+j}, v{t+j} clamp')
    for j in range(4):
        A(f'v_max_f32 v{dst+j}, s66, v{b+j}')
    A(f'v_pk_add_f32 {vr(dst,2)}, {vr(dst,2)}, {vr(t,2)}\nv_pk_add_f32 {vr(dst+2,2)}, {vr(dst+2,2)}, {vr(t+2,2)}')


def gen_compute(A):
    A('L_compute:')
    if CODEPF:
        A('s_cmp_lg_u32 s21, 0\ns_cbranch_scc1 L_nocpf')
        A(f's_getpc_b64 s[44:45]\nL_pc:\ns_sub_u32 s44, s44, L_pc-{NAME}_kernel\ns_subb_u32 s45, s45, 0\ns_mov_b32 s46, L_end-{NAME}_kernel\ns_mov_b32 s47, 0x20000')
        A('s_lshr_b32 s48, s2, 3\ns_lshl_b32 s48, s48, 11\nv_lshlrev_b32 v3, 7, v2\ns_mov_b64 exec, 0xffff')
        A('buffer_load_dword v95, v3, s[44:47], s48 offen\ns_mov_b64 exec, -1')
        A('L_nocpf:')
    A('s_barrier')
    A.c('compute wave setup: v3=q v4=r v5=c v6=f<<5 v7=rowpart')
    for r in range(ACC, 256, 2):
        A(f'v_mov_b64 {vr(r,2)}, 0')
    A('v_lshrrev_b32 v3, 4, v2\nv_bfe_u32 v4, v2, 2, 2\nv_and_b32 v5, 3, v2')
    A('v_lshrrev_b32 v6, 1, v4\nv_and_b32 v8, 1, v3\nv_lshl_add_u32 v6, v8, 1, v6\nv_lshlrev_b32 v6, 5, v6')
    A('v_mul_u32_u24 v7, 5120, v3\nv_lshl_add_u32 v7, v4, 7, v7')
    A('v_and_b32 v8, 15, v2\nv_lshrrev_b32 v9, 1, v8\nv_xor_b32 v9, v9, v3\nv_lshlrev_b32 v9, 4, v9\nv_lshl_add_u32 v20, v8, 7, v9\nv_xor_b32 v21, 64, v20')
    A(f's_mov_b32 s60, {LOG2E}\ns_mov_b32 s61, {LOG2E}\ns_mov_b32 s62, {NLOG2E}\ns_mov_b32 s63, {NLOG2E}')
    A(f's_mov_b32 s64, 1.0\ns_mov_b32 s65, 1.0\ns_mov_b32 s66, {EPS}')
    A('s_waitcnt lgkmcnt(0)')
    srd(A, 40, 16, WS_USED)
    if PRETOUCH:
        A('s_cmp_lg_u32 s21, 1\ns_cbranch_scc1 L_nopt')
        A('s_load_dwordx2 s[28:29], s[0:1], 64\ns_load_dwordx2 s[32:33], s[0:1], 16\ns_mov_b32 s30, 2621440\ns_mov_b32 s31, 0x20000\ns_mov_b32 s34, 819200\ns_mov_b32 s35, 0x20000')
        srd(A, 36, 12, 1966080)
        A('v_lshlrev_b32 v8, 18, v2\nv_lshlrev_b32 v9, 16, v2')
        A('buffer_load_dword v92, v8, s[40:43], 0 offen\nbuffer_load_dword v93, v9, s[36:39], 0 offen\ns_waitcnt lgkmcnt(0)')
        A('buffer_load_dword v94, v9, s[28:31], 0 offen\nbuffer_load_dword v95, v9, s[32:35], 0 offen')
        A('L_nopt:')
    A('s_cmp_eq_u32 s20, 0\ns_cbranch_scc1 L_kv')

    A('s_lshr_b32 s48, s21, 1\ns_lshl_b32 s48, s48, 10\ns_and_b32 s49, s21, 1\ns_lshl_b32 s49, s49, 3')
    A('v_add_u32 v8, s49, v5\nv_lshlrev_b32 v8, 3, v8\nv_xor_b32 v9, v8, v6\nv_add3_u32 v10, v9, v7, s48')
    A('v_add_u32 v8, 32, v8\nv_xor_b32 v9, v8, v6\nv_add3_u32 v11, v9, v7, s48')
    A('v_add_u32 v12, 2048, v10\nv_add_u32 v13, 2048, v11')
    A('s_lshl_b32 s49, s21, 2\nv_add_u32 v8, s49, v5\nv_lshlrev_b32 v8, 3, v8\nv_xor_b32 v9, v8, v6\nv_add_u32 v14, v9, v7\nv_add_u32 v14, 4096, v14')
    A('s_cmp_eq_u32 s55, 0\ns_cbranch_scc1 L_g_notgc')
    A('v_lshlrev_b32 v14, 5, v3\nv_lshl_add_u32 v14, v4, 3, v14')
    A('L_g_notgc:')
    A('v_lshlrev_b32 v22, 4, v2')
    A(f's_mul_i32 s72, s18, {2*68*4096}\ns_add_u32 s73, s72, {68*4096}')
    A('s_lshl_b32 s48, s22, 2\ns_add_u32 s48, s48, s21\ns_lshl_b32 s49, s48, 12\ns_add_u32 s70, s72, s49\ns_add_u32 s71, s73, s49')
    A(f's_lshl_b32 s74, s18, {FSH}\ns_lshl_b32 s49, s48, 3\ns_add_u32 s74, s74, s49\ns_add_u32 s74, s74, {FG_OFF}')
    A('s_lshl_b32 s48, s48, 2\nv_add_u32 v5, s48, v3')
    A('v_mul_u32_u24 v6, 6554, v5\nv_lshrrev_b32 v6, 16, v6\nv_mul_u32_u24 v7, 10, v6\nv_sub_u32 v7, v5, v7')
    A('v_lshrrev_b32 v8, 2, v6\nv_and_b32 v6, 3, v6')
    A('v_mul_u32_u24 v8, 5, v8\nv_lshrrev_b32 v9, 1, v7\nv_add3_u32 v8, v8, v9, 48\nv_lshlrev_b32 v8, 12, v8')
    A('v_and_b32 v9, 15, v2\nv_lshl_add_u32 v9, v6, 4, v9\nv_lshl_add_u32 v8, v9, 4, v8')
    A('v_and_b32 v7, 1, v7\nv_lshl_add_u32 v23, v7, 10, v8')
    mainloop(A, False, 'g')
    A.c('h = u * sigmoid(g)')
    hst = []; pst = []
    for i in range(8):
        g = acc(i, 0); u = acc(i, 2)
        for j in range(4):
            A(f'v_pk_mul_f32 {vr(g+2*j,2)}, {vr(g+2*j,2)}, s[62:63]')
        for j in range(8):
            A(f'v_exp_f32 v{g+j}, v{g+j}')
        for j in range(4):
            A(f'v_pk_add_f32 {vr(g+2*j,2)}, {vr(g+2*j,2)}, s[64:65]')
        for j in range(8):
            A(f'v_rcp_f32 v{g+j}, v{g+j}')
        for j in range(4):
            A(f'v_pk_mul_f32 {vr(u+2*j,2)}, {vr(u+2*j,2)}, {vr(g+2*j,2)}')
        for j in range(4):
            A(f'v_cvt_pk_bf16_f32 v{g+j}, v{u+2*j}, v{u+2*j+1}')
        hst.append(f'buffer_store_dwordx4 {vr(g)}, v22, s[40:43], s{70 + (i>>2)} offen offset:{(i&3)*1024} {LS}')
        if not BURST: A(hst.pop())
    if BURST == 1:
        for l in hst: A(l)
        hst = []
    A('s_cmp_lg_u32 s91, 0\ns_cbranch_scc1 L_gc_epi')
    A.c('pq = phi(q)')
    for i in range(0, 8, 2):
        a0 = acc(i, 4); b0 = acc(i + 1, 4)
        phi_q(A, a0, 24 + 8 * ((i >> 1) & 1))
        phi_q(A, b0, 28 + 8 * ((i >> 1) & 1))
        A(f'v_cvt_pk_bf16_f32 v{a0}, v{a0}, v{a0+1}\nv_cvt_pk_bf16_f32 v{a0+1}, v{a0+2}, v{a0+3}')
        A(f'v_cvt_pk_bf16_f32 v{a0+2}, v{b0}, v{b0+1}\nv_cvt_pk_bf16_f32 v{a0+3}, v{b0+2}, v{b0+3}')
        A('s_nop 1')
        A(f'v_permlane16_swap_b32 v{a0}, v{a0+2}\nv_permlane16_swap_b32 v{a0+1}, v{a0+3}')
        pst.append(f'buffer_store_dwordx4 {vr(a0)}, v23, s[40:43], s{72 + (i>>2)} offen offset:{(i&3)*1024} {LS}')
        if BURST != 2: A(pst.pop())
    for l in hst + pst: A(l)
    A('s_branch L_p1_done')
    A('L_gc_epi:')
    for l in hst: A(l)
    A.c('gate g = sigmoid(logit); stored by gtype 10, wave 0')
    A('v_and_b32 v8, 15, v2\nv_lshlrev_b32 v8, 2, v8')
    A(f's_lshl_b32 s48, s18, 9\ns_add_u32 s48, s48, {G_OFF}\ns_lshl_b32 s49, s22, 2\ns_add_u32 s49, s49, s21')
    A(f's_cmp_eq_u32 s49, 40\ns_cselect_b32 s48, s48, {OOB}')
    for i in range(8):
        A(f'v_mul_f32 v{acc(i,4)}, s62, v{acc(i,4)}')
    for i in range(8):
        A(f'v_exp_f32 v{acc(i,4)}, v{acc(i,4)}')
    for i in range(8):
        A(f'v_add_f32 v{acc(i,4)}, 1.0, v{acc(i,4)}')
    for i in range(8):
        A(f'v_rcp_f32 v{acc(i,4)}, v{acc(i,4)}')
    A('s_nop 0\ns_mov_b64 exec, 0xffff')
    for i in range(8):
        A(f'buffer_store_dword v{acc(i,4)}, v8, s[40:43], s48 offen offset:{64*i} {LS}')
    A('s_mov_b64 exec, -1')
    A('s_branch L_p1_done')

    A('L_kv:')
    A('s_mul_i32 s48, s21, 10\ns_and_b32 s49, s19, 1\ns_lshl_b32 s49, s49, 3\ns_sub_u32 s48, s48, s49')
    def kvaddr(dst, u, isv):
        A(f'v_add_u32 v9, 40, {u}\nv_cmp_gt_i32 vcc, 0, {u}\ns_nop 1\nv_cndmask_b32 v8, {u}, v9, vcc')
        A(f'v_lshrrev_b32 v9, 4, v8\nv_lshl_add_u32 v9, {isv}, 1, v9\nv_and_b32 v23, 15, v8')
        A(f'v_lshl_add_u32 v22, {isv}, 3, v23')
        A('v_cmp_gt_u32 vcc, 32, v8\ns_nop 1\nv_cndmask_b32 v9, 4, v9, vcc\nv_cndmask_b32 v23, v22, v23, vcc')
        A(f'v_lshlrev_b32 v23, 3, v23\nv_xor_b32 v23, v23, v6\nv_lshlrev_b32 v22, 4, {isv}\nv_xor_b32 v23, v23, v22')
        A(f'v_lshl_add_u32 v23, v9, 10, v23\nv_add_u32 v{dst}, v23, v7')
    A('v_mov_b32 v16, 0\nv_mov_b32 v17, 1\nv_add_u32 v15, s48, v5')
    kvaddr(10, 'v15', 'v16'); kvaddr(12, 'v15', 'v17')
    A('v_add_u32 v15, 5, v15')
    kvaddr(11, 'v15', 'v16'); kvaddr(13, 'v15', 'v17')
    A('v_and_b32 v15, 1, v5\nv_mul_u32_u24 v15, 5, v15\nv_add3_u32 v15, v15, s48, 4\nv_lshrrev_b32 v16, 1, v5')
    kvaddr(14, 'v15', 'v16')
    A('v_lshlrev_b32 v22, 4, v2\nv_lshlrev_b32 v23, 4, v3')
    A('v_and_b32 v8, 15, v2\nv_cmp_gt_u32 s[68:69], 8, v8')
    A(f's_lshl_b32 s48, s19, 2\ns_add_u32 s48, s48, s21\ns_lshl_b32 s48, s48, 4\ns_add_u32 s48, s48, s18\ns_mul_i32 s70, s48, {KVS}\ns_add_u32 s70, s70, {KVP_OFF}')
    prods = [(0, 0), (1, 1), (2, 0), (2, 1), (0, 2), (1, 2), (2, 2)]
    A(f's_lshr_b32 s71, s21, 1\ns_mul_i32 s71, s71, {RPK - 40960}\ns_and_b32 s49, s21, 1\ns_lshl_b32 s49, s49, 12\ns_add_u32 s71, s71, s49\ns_add_u32 s71, s71, 40960')
    A('v_mul_u32_u24 v23, 5, v8\nv_add_u32 v23, v23, v3\nv_lshlrev_b32 v23, 4, v23\nv_add_u32 v23, s71, v23')
    mainloop(A, True, 'kv')
    A.c('KV epilogue')
    A('v_mov_b32 v12, 0x3f803f80\nv_mov_b32 v13, v12\nv_mov_b32 v14, v12\nv_mov_b32 v15, v12')
    KT = {0: 0, 1: 1, 2: 4}; VT = {0: 2, 1: 3, 2: 4}
    PR = 24
    pend = []
    def flush(k):
        for _ in range(k):
            if pend: A(pend.pop(0))
    for kk in range(4):
        n = 0
        for i in (2 * kk, 2 * kk + 1):
            for t in (0, 1):
                phi_q(A, acc(i, t), 64 + 4 * (n % 4)); n += 1
                flush(2)
            b = acc(i, 4); s = 80 + 4 * (i & 1)
            phi_q(A, b, 64 + 4 * (n % 4), s); n += 1
            for j in range(4):
                A(f'v_cndmask_b32 v{b+j}, v{b+j}, v{s+j}, s[68:69]')
            flush(1)
        assert not pend
        for t in range(5):
            a = acc(2 * kk, t); b = acc(2 * kk + 1, t)
            A(f'v_cvt_pk_bf16_f32 v{a}, v{a}, v{a+1}\nv_cvt_pk_bf16_f32 v{a+1}, v{a+2}, v{a+3}')
            A(f'v_cvt_pk_bf16_f32 v{a+2}, v{b}, v{b+1}\nv_cvt_pk_bf16_f32 v{a+3}, v{b+2}, v{b+3}')
        for n, (tv, tk) in enumerate(prods):
            d = vr(PR + 4 * n)
            pend.append(f'v_mfma_f32_16x16x32_bf16 {d}, {vr(acc(2*kk,VT[tv]))}, {vr(acc(2*kk,KT[tk]))}, {d if kk else 0}')
        for tk in range(3):
            d = vr(52 + 4 * tk)
            pend.append(f'v_mfma_f32_16x16x32_bf16 {d}, {vr(acc(2*kk,KT[tk]))}, v[12:15], {d if kk else 0}')
    A('s_nop 1')
    flush(10)
    get_epoch(A, 3, 6)
    A(f'v_and_b32 v9, 3, v2\nv_lshlrev_b32 v9, 8, v9\nv_add_u32 v9, {CT+256}, v9')
    lds_wait(A, 9, 0, 8, 18, four='free', sleep=1)
    HB_ = 1792
    wr = [(0, None, 0), (1, None, HB_), (2, (0, 0xffff), 32), (3, (0, 0xffff0000), HB_ + 16), (4, (0x000f000f, 0x000f000f), 1280),
          (5, (0x00f000f0, 0x00f000f0), HB_ + 960), (6, (0, 0x0000000f), 1280 + 32), (6, (0, 0x00f00000), HB_ + 960 + 16),
          (7, (0x00010001, 0x00010001), 1600), (8, (0x00010001, 0x00010001), HB_ + 1600), (9, (1, 0), 1664), (9, (0x10000, 0), HB_ + 1648)]
    for n, m, off in wr:
        if m: A(f's_mov_b32 exec_lo, {hex(m[0])}\ns_mov_b32 exec_hi, {hex(m[1])}')
        A(f'ds_write_b128 v23, {vr(PR+4*n)} offset:{off}')
    A('s_mov_b64 exec, -1\nv_add_u32 v9, s71, v22')
    for i in range(4):
        A(f'ds_read_b128 {vr(64+4*i)}, v9 offset:{1024*i}')
    A('s_and_b32 s76, s88, 0xfff\ns_bfe_u32 s77, s88, 0xc000c\ns_lshr_b64 s[78:79], s[88:89], 24\ns_xor_b32 s78, s78, s88\ns_bfe_u32 s79, s78, 0xc000c\ns_and_b32 s78, s78, 0xfff')
    A('v_mov_b32 v6, 0xfffff000')
    for i in range(4):
        A(f's_waitcnt lgkmcnt({3-i})')
        for r in range(64 + 4 * i, 68 + 4 * i):
            A(f'v_and_or_b32 v{r}, v{r}, v6, s{76 + (r & 3)}')
        if i == 3: A('s_mov_b32 exec_hi, 0')
        A(f'buffer_store_dwordx4 {vr(64+4*i)}, v22, s[40:43], s70 offen offset:{1024*i} sc1')
    A('s_mov_b64 exec, -1')
    A('L_p1_done:')
    stamp(A, 4)
    gen_awave(A)


def p2_ids(A):
    A('s_and_b32 s18, s2, 7\ns_lshl_b32 s18, s18, 2\ns_lshr_b32 s48, s2, 6\ns_add_u32 s18, s18, s48')
    A('s_bfe_u32 s19, s2, 0x30003')


def get_epoch(A, vct, vt):
    l0 = A.label('L_ep')
    A('s_mov_b32 s96, 0')
    A(f'{l0}:')
    A(f'ds_read_b64 {vr(vt,2)}, v{vct} offset:32\ns_waitcnt lgkmcnt(0)\nv_readfirstlane_b32 s88, v{vt}\nv_readfirstlane_b32 s89, v{vt+1}')
    A(f's_add_u32 s96, s96, 1\ns_cmp_eq_u32 s88, 0\ns_cselect_b32 s48, s96, -1\ns_cmp_lt_u32 s48, {SPIN_MAX*16}\ns_cbranch_scc1 {l0}')


def phase_a(A):
    WOI = 0; HS = 0; HSTR = 5120
    A('v_lshrrev_b32 v3, 4, v2\nv_and_b32 v4, 15, v2')
    A('s_mul_i32 s70, s67, 5120')
    A('s_lshr_b32 s50, s18, 1\ns_and_b32 s51, s18, 1')
    A(f's_mul_i32 s48, s51, 1792\nv_add_u32 v10, s48, v5\nv_add_u32 v11, 1024, v10\nv_mov_b32 v15, {OOB}\nv_cmp_lt_u32 vcc, 40, v2\ns_nop 1\nv_cndmask_b32 v11, v11, v15, vcc')
    A('v_mov_b32 v19, v5\nv_add_u32 v20, 1024, v5\nv_mul_u32_u24 v21, 80, v4\nv_lshl_add_u32 v12, v3, 5, v21\nv_lshlrev_b32 v13, 3, v4')
    A('v_bfe_u32 v14, v2, 2, 2\nv_lshl_add_u32 v14, v3, 3, v14\nv_mul_u32_u24 v14, 160, v14\nv_and_b32 v15, 3, v2\nv_lshl_add_u32 v14, v15, 3, v14\nv_add_u32 v14, s70, v14')
    A(f'v_add_u32 v19, s70, v19\nv_add_u32 v20, s70, v20\ns_mul_i32 s48, s51, 5120\nv_add_u32 v12, s48, v12\nv_add_u32 v13, s48, v13')
    A('v_cmp_gt_u32 s[60:61], 3, v3\nv_cmp_gt_u32 s[62:63], 2, v3\nv_cmp_gt_u32 s[64:65], 41, v2')
    A(f's_mul_i32 s48, s51, 5\ns_lshr_b32 s49, s67, 1\ns_mul_i32 s49, s49, {RPK - 40960}\ns_add_u32 s49, s49, 40960')
    for mt in range(2):
        A(f'v_add3_u32 v15, v3, s48, {4*mt}\nv_lshrrev_b32 v16, 1, v15\nv_mul_u32_u24 v16, 1280, v16\nv_and_b32 v15, 1, v15\nv_lshl_add_u32 v16, v15, 3, v16')
        A(f'v_lshl_add_u32 v16, v4, 4, v16\nv_add_u32 v{17+mt}, s49, v16')
    A('s_mul_i32 s48, s51, 40\ns_add_u32 s48, s48, s49\ns_add_u32 s48, s48, 6400\nv_lshlrev_b32 v22, 2, v2\nv_add_u32 v22, s48, v22')
    A('s_mul_i32 s48, s51, 3328\ns_add_u32 s48, s48, s49\nv_add_u32 v21, s48, v5\nv_lshlrev_b32 v15, 10, v3\nv_lshl_add_u32 v15, v4, 4, v15')
    A(f's_lshr_b32 s48, s18, 3\ns_mul_i32 s48, s48, 5\ns_mul_i32 s49, s19, 20\ns_add_u32 s48, s48, s49\ns_mul_i32 s48, s48, 5120\ns_and_b32 s49, s50, 3\ns_lshl_b32 s49, s49, 8\ns_add_u32 s48, s48, s49')
    A(f's_mul_i32 s49, s51, 13312\ns_add_u32 s48, s48, s49\ns_add_u32 s55, s48, {M_OFF}\ns_add_u32 s56, s55, 4096\ns_add_u32 s57, s55, 8192\ns_add_u32 s48, s55, 12288')
    A(f's_lshl_b32 s54, s19, 11\ns_lshl_b32 s49, s50, 7\ns_add_u32 s54, s54, s49\ns_add_u32 s54, s54, {ZB_OFF}')
    A(f's_cmp_eq_u32 s51, 0\ns_cselect_b32 s54, s48, s54\ns_movk_i32 s48, {ZM}\ns_cselect_b32 s58, 0xffff, s48\ns_mov_b32 s59, 0')
    A('s_and_b32 s76, s88, 0xfff\ns_bfe_u32 s77, s88, 0xc000c\ns_lshr_b64 s[78:79], s[88:89], 24\ns_xor_b32 s78, s78, s88\ns_bfe_u32 s79, s78, 0xc000c\ns_and_b32 s78, s78, 0xfff')
    A(f's_mul_i32 s52, s50, {16*KVS}\ns_lshr_b32 s49, s67, 1\ns_mul_i32 s49, s49, {8*KVS}\ns_add_u32 s52, s52, s49\ns_add_u32 s52, s52, {KVP_OFF}')
    A(f's_lshl_b32 s48, s67, 2\nv_add_u32 v23, s48, v0\nv_mov_b32 v244, 1\nv_mov_b32 v245, 2\nv_mov_b32 v246, 3')
    A('s_waitcnt vmcnt(0)')
    for t in range(5):
        A(f'ds_read_b64_tr_b16 {vr(224+4*t,2)}, v14 offset:{32*t}\nds_read_b64_tr_b16 {vr(226+4*t,2)}, v14 offset:{32*t + 640}')
    stamp(A, 10)
    lds_wait(A, 0, 72, 248, 1, four=False, sleep=2)
    lds_wait(A, 0, 48, 248, 1, sleep=2)
    if GDELAY: A(f's_sleep {GDELAY}')
    stamp(A, 11)
    A('s_mov_b32 s96, 0')
    A('L_pa_gather:')
    for p in range(8):
        if PAX:
            A(f's_lshl_b32 s53, s69, 1\ns_add_u32 s53, s53, {p}\ns_and_b32 s53, s53, 7\ns_mul_i32 s53, s53, {KVS}\ns_add_u32 s53, s53, s52')
            if p == 2 and PAX == 2: A('s_waitcnt vmcnt(0)')
        else:
            A(f's_add_u32 s53, s52, {KVS*p}')
        for ldi in range(2):
            A(f'buffer_load_dwordx4 {vr(24 + 8*p + 4*ldi)}, v{10+ldi}, s[40:43], s53 offen sc1')
    for p in range(8):
        A(f's_waitcnt vmcnt({2*(7-p)})')
        for r in range(24 + 8 * p, 32 + 8 * p):
            A(f'v_xor_b32 v{r}, s{76 + (r & 3)}, v{r}')
        for ldi in range(2):
            r = 24 + 8 * p + 4 * ldi; d = 8 + ldi
            if p == 0:
                A(f'v_or3_b32 v{d}, v{r}, v{r+1}, v{r+2}\nv_or_b32 v{d}, v{d}, v{r+3}')
            else:
                A(f'v_or3_b32 v{d}, v{d}, v{r}, v{r+1}\nv_or3_b32 v{d}, v{d}, v{r+2}, v{r+3}')
        if p:
            for j in range(0, 8, 2):
                A(f'v_pk_add_f32 {vr(24+j,2)}, {vr(24+j,2)}, {vr(24+8*p+j,2)}')
    A('v_cndmask_b32 v9, 0, v9, s[64:65]\nv_or_b32 v8, v8, v9\nv_and_b32 v8, 0xfff, v8\nv_cmp_ne_u32 vcc, 0, v8')
    A('s_cbranch_vccz L_pa_got')
    stamp(A, 35)
    A(f's_sleep {PSLEEP}\ns_add_u32 s96, s96, 1\ns_cmp_lt_u32 s96, {SPIN_MAX}\ns_cbranch_scc1 L_pa_gather')
    A('L_pa_got:')
    if STAMP: A('v_writelane_b32 v1, s96, 36')
    stamp(A, 12)
    A('ds_write_b128 v19, v[24:27]\nds_write_b128 v20, v[28:31]')
    A('s_mov_b64 exec, 1\nds_write_b32 v23, v244 offset:80\ns_mov_b64 exec, -1')
    lds_wait(A, 0, 80, 248, 1, sleep=0)
    stamp(A, 13)
    for w in range(2):
        for mt in range(2):
            A(f'ds_read_b128 {vr(24+20*w+8*mt)}, v12 offset:{2*w*HSTR + 1280*mt}\nds_read_b128 {vr(28+20*w+8*mt)}, v12 offset:{2*w*HSTR + 1280*mt + 16}')
        A(f'ds_read_b64 {vr(40+20*w,2)}, v13 offset:{2*w*HSTR + 1600}')
    A('s_waitcnt lgkmcnt(0)')
    for j in range(0, 18, 2):
        A(f'v_pk_add_f32 {vr(24+j,2)}, {vr(24+j,2)}, {vr(44+j,2)}')
    for mt in range(2):
        b = 24 + 8 * mt
        for j in range(4):
            A(f'v_cvt_pk_bf16_f32 v{b+j}, v{b+2*j}, v{b+2*j+1}')
        for j in range(4):
            A(f'v_cndmask_b32 v{b+j}, 0, v{b+j}, {"s[60:61]" if j < 2 else "s[62:63]"}')
    A('v_cvt_pk_bf16_f32 v40, v40, v41\ns_nop 0')
    for mt in range(2):
        for t in range(5):
            A(f'v_mfma_f32_16x16x32_bf16 {vr(64+20*mt+4*t)}, {vr(24+8*mt)}, {vr(224+4*t)}, 0')
    A('s_mov_b64 exec, 0x3ff\nds_write_b32 v22, v40\ns_mov_b64 exec, -1\ns_nop 0')
    for mt in range(2):
        if mt == 1: A('s_mov_b64 exec, 0xffff')
        for t in range(5):
            b = 64 + 20 * mt + 4 * t
            A(f'v_cvt_pk_bf16_f32 v{b}, v{b}, v{b+1}\nv_cvt_pk_bf16_f32 v{b+1}, v{b+2}, v{b+3}')
            A(f'ds_write_b64 v{17+mt}, {vr(b,2)} offset:{256*t}')
    A('s_mov_b64 exec, 1\nds_write_b32 v23, v245 offset:80\ns_mov_b64 exec, -1')
    lds_wait(A, 0, 80, 248, 2, sleep=0)
    for i in range(4):
        A(f'ds_read_b128 {vr(24+4*i)}, v21 offset:{1024*i}')
    for i in range(3):
        A(f's_waitcnt lgkmcnt({3-i})\nbuffer_store_dwordx4 {vr(24+4*i)}, v15, s[40:43], s{55+i} offen sc1')
    A('s_waitcnt lgkmcnt(0)\ns_mov_b64 exec, s[58:59]\nbuffer_store_dwordx4 v[36:39], v15, s[40:43], s54 offen sc1')
    stamp(A, 14)
    if MACK: A('s_waitcnt vmcnt(0)')
    A('s_mov_b64 exec, 1\nds_write_b32 v23, v246 offset:80\ns_mov_b64 exec, -1')
    lds_wait(A, 0, 80, 248, 3, sleep=1)
    stamp(A, 15)


XCH = [0, 15360, 30720, WBASE + 4 * WSLOT]
def gen_awave(A):
    AC = 16; PQ = 96; MB = 176
    def a2(rt, t): return AC + 20 * rt + 4 * t
    def pq(kk, rt): return PQ + 16 * kk + 4 * rt
    A('s_load_dwordx2 s[8:9], s[0:1], 64')
    A(f'v_mov_b32 v0, {CT}')
    A('v_lshrrev_b32 v3, 4, v2\nv_and_b32 v4, 15, v2\nv_lshlrev_b32 v5, 4, v2\nv_lshlrev_b32 v6, 3, v2\nv_add_u32 v7, 4096, v5')
    if KVACK: A('s_waitcnt vmcnt(0)')
    A('s_cmp_eq_u32 s20, 0\ns_cbranch_scc1 L_a_sig')
    A('L_a_g:')
    get_epoch(A, 0, 8)
    set_flag(A, 74, 8)
    A('L_a_sig:')
    A(f'v_mov_b32 v8, 1\ns_lshl_b32 s48, s21, 2\nv_add_u32 v9, s48, v0\ns_mov_b64 exec, 1\nds_write_b32 v9, v8 offset:48\ns_mov_b64 exec, -1')
    stamp(A, 5)
    A('s_waitcnt lgkmcnt(0)')
    srd(A, 28, 8, 2621440)
    A('L_a_main:')
    A(f's_setprio {APRIO}')
    p2_ids(A)
    A(f's_lshr_b32 s48, s18, 1\ns_lshl_b32 s59, s48, {FSH}\ns_add_u32 s59, s59, {FG_OFF}')
    A('s_mul_i32 s48, s21, 5\ns_mul_i32 s54, s18, 68\ns_add_u32 s54, s54, s48\ns_add_u32 s54, s54, 48\ns_lshl_b32 s54, s54, 12')
    A(f's_mul_i32 s55, s19, 20\ns_add_u32 s55, s55, s48\ns_mul_i32 s55, s55, 5120\ns_add_u32 s55, s55, {M_OFF}')
    A(f's_lshl_b32 s53, s18, 8\ns_add_u32 s53, s53, {G_OFF}')
    A(f's_lshl_b32 s52, s19, 11\ns_lshl_b32 s49, s21, 9\ns_add_u32 s52, s52, s49\ns_add_u32 s52, s52, {ZB_OFF}')
    A(f's_lshl_b32 s58, s19, 11\ns_add_u32 s58, s58, {ZB_OFF}')
    A('v_lshlrev_b32 v14, 2, v4\nv_lshlrev_b32 v15, 7, v3')
    A('v_lshrrev_b32 v12, 2, v4\nv_cmp_eq_u32 s[60:61], v12, v3\nv_and_b32 v12, 1, v4\nv_cmp_eq_u32 s[62:63], 0, v12')
    A('s_and_b64 s[64:65], s[60:61], s[62:63]\ns_andn2_b64 s[66:67], s[60:61], s[62:63]')
    A(f's_mov_b32 s68, {EPS}\ns_mov_b32 s69, 0xffff0000')
    Q = []
    def ld(tag, txt):
        A(txt); Q.append(tag)
    def wait(tag):
        last = max(k for k, t in enumerate(Q) if t == tag)
        A(f's_waitcnt vmcnt({len(Q) - 1 - last})')
    def issueM(kk):
        A(f's_add_u32 s57, s55, {5120*kk}')
        for t in range(4):
            ld(('M', kk), f'buffer_load_dwordx4 {vr(mb(kk,t))}, v5, s[40:43], s57 offen offset:{1024*t} sc1')
        ld(('M', kk), f'buffer_load_dwordx4 {vr(mb(kk,4))}, v7, s[40:43], s57 offen sc1')
    ZR = 236
    ZIMG = CT + 1536
    mbuf = {0: MB, 1: MB + 20, 2: MB + 40, 3: MB, 4: MB + 20}
    def mb(kk, t): return mbuf[kk] + 4 * t
    for j in range(4):
        A(f's_add_u32 s48, s21, {j+1}\ns_and_b32 s{70+j}, s48, 3')
    A('s_cmp_lg_u32 s21, 2\ns_cbranch_scc1 L_a_nopollg')
    A('s_cmp_lg_u32 s20, 0\ns_cbranch_scc1 L_a_gg')
    lds_wait(A, 0, 80, 8, KVG, sleep=4)
    A('L_a_gg:')
    lds_wait(A, 0, 48, 8, 1, sleep=2)
    A('s_mov_b32 s96, 0\ns_mov_b32 s75, 0')
    A('L_a_gpoll:')
    A('s_mov_b32 exec_hi, 0xffff\nbuffer_load_dwordx2 v[8:9], v6, s[40:43], s59 offen sc1\ns_waitcnt vmcnt(0)\nv_cmp_ne_u64 vcc, s[88:89], v[8:9]\ns_mov_b32 exec_hi, -1')
    A('s_mov_b32 s74, 0')
    for g in range(4):
        A(f's_bfe_u64 s[76:77], vcc, {hex((12 << 16) | (12 * g))}\ns_cselect_b32 s48, 0, {1 << g}\ns_or_b32 s74, s74, s48')
    A('s_cmp_eq_u32 s74, s75\ns_cbranch_scc1 L_a_gsame')
    A('s_mov_b32 s75, s74\nv_mov_b32 v8, s74\ns_mov_b64 exec, 1\nds_write_b32 v0, v8 offset:64\ns_mov_b64 exec, -1')
    A('L_a_gsame:')
    A('s_cmp_eq_u32 s74, 15\ns_cbranch_scc1 L_a_nopollg')
    A(f's_sleep {PSLEEP}\ns_add_u32 s96, s96, 1\ns_cmp_lt_u32 s96, {SPIN_MAX}\ns_cbranch_scc1 L_a_gpoll')
    A('L_a_nopollg:')
    if FINEG:
        A('s_lshl_b32 s74, 3, s21\ns_lshr_b32 s74, s74, 1')
    else:
        A('s_mov_b32 s74, 15')
    lds_wait_mask(A, 0, 64, 8, 's74')
    stamp(A, 11)
    if COOP_P:
        A('s_mul_i32 s49, s19, 2560\ns_add_u32 s48, s54, s49')
        A('v_lshlrev_b32 v8, 7, v2\ns_mov_b64 exec, 0xfffff\nbuffer_load_dword v9, v8, s[40:43], s48 offen sc1\ns_mov_b64 exec, -1\ns_waitcnt vmcnt(0)')
    stamp(A, 21)
    for j in range(4):
        A(f's_lshl_b32 s48, s{70+j}, 10\ns_add_u32 s56, s54, s48')
        for kk in range(5 if j < NRC else 0):
            A(f'buffer_load_dwordx4 {vr(pq(kk,j))}, v5, s[40:43], s56 offen {LL}')
            if kk < 4: A('s_add_u32 s56, s56, 4096')
    stamp(A, 22)
    lds_wait_mask(A, 0, 64, 8, 8)
    stamp(A, 23)
    for j in range(4):
        A(f's_lshl_b32 s48, s{70+j}, 6\ns_add_u32 s56, s53, s48\nbuffer_load_dword v{10+j}, v14, s[40:43], s56 offen {LL}')
    A(f'v_lshrrev_b32 v8, 2, v2\nv_and_b32 v9, 3, v2\nv_mul_u32_u24 v24, 80, v8\nv_lshl_add_u32 v24, v9, 4, v24\nv_add_u32 v24, {ZIMG}, v24\nv_lshlrev_b32 v26, 7, v8\nv_lshl_add_u32 v26, v9, 4, v26')
    A(f's_mul_i32 s76, s19, 102400\ns_and_b32 s49, s18, 3\ns_mul_i32 s49, s49, 25600\ns_add_u32 s76, s76, s49\ns_mul_i32 s49, s21, 6400\ns_add_u32 s76, s76, s49\ns_add_u32 s76, s76, {M_OFF}\nv_lshlrev_b32 v27, 7, v2')
    lds_wait(A, 0, 72, 8, 1, four=False, sleep=2)
    A('s_cmp_lg_u32 s21, 1\ns_cbranch_scc1 L_a_oth2')
    A('s_cmp_eq_u32 s20, 0\ns_cbranch_scc1 L_a_nogate')
    lds_wait(A, 0, 144, 16, 1, sleep=1)
    A('L_a_nogate:')
    stamp(A, 24)
    A('buffer_load_dwordx4 v[16:19], v26, s[40:43], s58 offen sc1\nbuffer_load_dwordx4 v[20:23], v26, s[40:43], s58 offen offset:16 sc1')
    A('v_mov_b32 v8, 1\ns_mov_b64 exec, 1\nds_write_b32 v0, v8 offset:76\ns_mov_b64 exec, -1')
    A('L_a_oth2:')
    lds_wait(A, 0, 76, 8, 1, four=False, sleep=2)
    A('s_mov_b32 exec_hi, 0x3ffff\nbuffer_load_dword v95, v27, s[40:43], s76 offen sc1\ns_mov_b32 exec_hi, -1')
    A('s_cmp_lg_u32 s21, 1\ns_cbranch_scc1 L_a_nopoll')
    A('s_mov_b32 s96, 0\ns_waitcnt vmcnt(1)\ns_branch L_a_zchk')
    A('L_a_zpoll:')
    A('buffer_load_dwordx4 v[16:19], v26, s[40:43], s58 offen sc1\nbuffer_load_dwordx4 v[20:23], v26, s[40:43], s58 offen offset:16 sc1\ns_waitcnt vmcnt(0)')
    A('L_a_zchk:')
    A('v_max3_u32 v9, v16, v18, v20\nv_max_u32 v9, v9, v22\nv_cmp_eq_u32 vcc, -1, v9')
    A('s_cbranch_vccz L_a_zok')
    A(f's_sleep {MSLEEP}\ns_add_u32 s96, s96, 1\ns_cmp_lt_u32 s96, {SPIN_MAX}\ns_cbranch_scc1 L_a_zpoll')
    A('L_a_zok:')
    if STAMP: A('v_writelane_b32 v1, s96, 36')
    A('ds_write_b128 v24, v[16:19]\nds_write_b128 v24, v[20:23] offset:16')
    A('v_mov_b32 v8, 1\ns_mov_b64 exec, 1\nds_write_b32 v0, v8 offset:68\ns_mov_b64 exec, -1')
    A('L_a_nopoll:')
    A(f's_mul_i32 s48, s21, 320\ns_add_u32 s48, s48, {ZIMG}\nv_mul_u32_u24 v15, 80, v3\nv_add_u32 v15, s48, v15')
    lds_wait(A, 0, 68, 8, 1, four=False, sleep=2)
    stamp(A, 10)
    for kk in range(5):
        A(f'ds_read_b128 {vr(ZR+4*kk)}, v15 offset:{16*kk}')
    if SPEC_M:
        A('s_waitcnt vmcnt(1)')
    elif COOP_M:
        A(f's_mul_i32 s48, s19, 102400\ns_and_b32 s49, s18, 3\ns_mul_i32 s49, s49, 25600\ns_add_u32 s48, s48, s49\ns_mul_i32 s49, s21, 6400\ns_add_u32 s48, s48, s49\ns_add_u32 s48, s48, {M_OFF}')
        A('v_lshlrev_b32 v8, 7, v2\ns_mov_b32 exec_hi, 0x3ffff\nbuffer_load_dword v9, v8, s[40:43], s48 offen sc1\ns_mov_b32 exec_hi, -1')
    else:
        issueM(0); issueM(1); issueM(2)
    A('s_waitcnt lgkmcnt(0)')
    for kk in range(5):
        for j in range(4):
            m = 's[66:67]' if (4 * kk + j) >= 10 else 's[64:65]'
            A(f'v_cndmask_b32 v{ZR+4*kk+j}, 0, v{ZR+4*kk+j}, {m}')
    den = [AC + 4 * rt for rt in range(4)]
    if not SPEC_M: A(f's_waitcnt vmcnt({1 if COOP_M else 15})')
    stamp(A, 17)
    A('s_nop 0')
    for kk in range(5):
        for rt in range(NRC):
            d = vr(den[rt])
            A(f'v_mfma_f32_16x16x32_bf16 {d}, {vr(ZR+4*kk)}, {vr(pq(kk,rt))}, {d if kk else 0}')
    A('s_nop 7')
    SC = ZR; T0 = ZR + 8
    for rt in range(NRC):
        A(f'v_add_f32 v{den[rt]}, s68, v{den[rt]}\nv_add_f32 v{den[rt]+1}, s68, v{den[rt]+1}')
    for rt in range(NRC):
        A(f'v_rcp_f32 v{den[rt]}, v{den[rt]}\nv_rcp_f32 v{den[rt]+1}, v{den[rt]+1}')
    A('s_nop 0')
    for rt in range(NRC):
        A(f'v_mul_f32 v{SC+2*rt}, v{10+rt}, v{den[rt]}\nv_mul_f32 v{SC+2*rt+1}, v{10+rt}, v{den[rt]+1}')
    def norm_ops(kk):
        L = []
        for rt in range(NRC):
            r = pq(kk, rt)
            for j in range(4):
                L += [f'v_lshlrev_b32 v{T0+2*j}, 16, v{r+j}', f'v_and_b32 v{T0+2*j+1}, s69, v{r+j}']
            for j in range(4):
                odd = 1 if (4 * kk + j) >= 10 else 0
                L += [f'v_mul_f32 v{T0+2*j}, v{SC+2*rt+odd}, v{T0+2*j}', f'v_mul_f32 v{T0+2*j+1}, v{SC+2*rt+odd}, v{T0+2*j+1}']
            for j in range(4):
                L += [f'v_cvt_pk_bf16_f32 v{r+j}, v{T0+2*j}, v{T0+2*j+1}']
        return L
    stamp(A, 20)
    A('s_waitcnt vmcnt(0)')
    issueM(0); issueM(1)
    for kk in range(NLEAD):
        for l in norm_ops(kk): A(l)
        if kk == 0: issueM(2)
    stamp(A, 6)
    A('v_sub_f32 v14, 1.0, v13')
    for j in range(3):
        A(f's_mul_i32 s48, s{70+j}, 15360\ns_cmp_eq_u32 s{70+j}, 3\ns_cselect_b32 s48, {XCH[3]}, s48\ns_add_u32 s48, s48, {(2-j)*5120}\nv_add_u32 v{10+j}, s48, v5')
    A(f's_lshl_b32 s48, s21, 11\ns_add_u32 s48, s48, {XCH[3] + 15360 - 3072}\nv_add_u32 v13, s48, v5')
    A(f's_mul_i32 s48, s21, 5120\ns_add_u32 s48, s48, {WBASE + 2*WSLOT}\nv_add_u32 v15, s48, v5\ns_lshl_b32 s48, s21, 2\nv_add_u32 v6, s48, v0')
    for kk in range(5):
        nxt = norm_ops(kk + NLEAD) if kk + NLEAD < 5 else []
        wait(('M', kk))
        A('s_mov_b32 s96, 0')
        A(f'L_a_mchk{kk}:')
        m0 = mb(kk, 0)
        A(f'v_max3_u32 v8, v{m0}, v{m0+2}, v{m0+4}')
        for k in (3, 5, 7):
            A(f'v_max3_u32 v8, v8, v{m0+2*k}, v{m0+2*k+2}')
        A(f'v_max_u32 v8, v8, v{m0+18}\nv_cmp_eq_u32 vcc, -1, v8')
        A(f's_cbranch_vccnz L_a_mre{kk}')
        A(f'L_a_mok{kk}:')
        stamp(A, 31 + kk)
        if kk == 4:
            lds_wait(A, 0, 96, PQ, 1, sleep=1)
        if NRC == 2:
            lds_wait(A, 6, 160, 8, kk + 1, four=False, sleep=1)
            A(f'ds_read_b128 {vr(pq(kk,2))}, v15 offset:{1024*kk}\nds_read_b128 {vr(pq(kk,3))}, v15 offset:{WSLOT + 1024*kk}')
        for rt in range(4):
            if NRC == 2 and rt == 2:
                A('s_waitcnt lgkmcnt(0)')
                if kk == 4:
                    A('v_mov_b32 v8, 1\ns_mov_b64 exec, 1\nds_write_b32 v6, v8 offset:176\ns_mov_b64 exec, -1')
            for t in range(5):
                d = vr(a2(rt, t))
                A(f'v_mfma_f32_16x16x32_bf16 {d}, {vr(mb(kk,t))}, {vr(pq(kk,rt))}, {d if kk else 0}')
                for _ in range(NRC):
                    if nxt: A(nxt.pop(0))
                if kk == 4 and rt >= 2:
                    A(f'ds_write_b128 v{10+rt-2}, {vr(a2(rt-2,t))} offset:{t*1024}')
        if kk < 2:
            issueM(kk + 3)
    stamp(A, 12)
    for t in range(5):
        A(f'ds_write_b128 v12, {vr(a2(2,t))} offset:{t*1024}')
    A(f's_lshl_b32 s48, s21, 8\nv_lshlrev_b32 v8, 2, v2\nv_add_u32 v8, s48, v8\nds_write_b32 v8, v14 offset:{46080}')
    for t in (3, 4):
        A(f'ds_write_b128 v13, {vr(a2(3,t))} offset:{t*1024}')
    OWN = a2(3, 0)
    A(f's_mul_i32 s50, s21, 15360\ns_cmp_eq_u32 s21, 3\ns_cselect_b32 s50, {XCH[3]}, s50')
    A(f's_mul_i32 s48, s21, {WSLOT}\ns_add_u32 s48, s48, {WBASE}\nv_add_u32 v8, s48, v5\nv_mov_b32 v15, v14\nv_add_u32 v7, s50, v5')
    A('s_lshl_b32 s48, s18, 6\ns_lshl_b32 s49, s21, 4\ns_add_u32 s48, s48, s49\nv_add_u32 v9, s48, v4\nv_mul_u32_u24 v9, 1280, v9\nv_lshl_add_u32 v9, v3, 3, v9\ns_mul_i32 s48, s19, 160')
    A('s_waitcnt lgkmcnt(0)')
    A('s_barrier')
    stamp(A, 13)
    for r in range(4):
        for t in range(3):
            A(f'ds_read_b128 {vr(PQ+12*r+4*t)}, v8 offset:{r*5120 + 1024*t}')
    A('s_waitcnt lgkmcnt(6)')
    for r in range(3):
        for t in range(3):
            A(f'ds_read_b128 {vr(AC+12*r+4*t)}, v7 offset:{r*5120 + 1024*t}')
    for k in range(0, 12, 2):
        A(f'v_pk_add_f32 {vr(PQ+k,2)}, {vr(PQ+k,2)}, {vr(PQ+12+k,2)}')
    A('s_waitcnt lgkmcnt(9)')
    for k in range(0, 12, 2):
        A(f'v_pk_add_f32 {vr(PQ+24+k,2)}, {vr(PQ+24+k,2)}, {vr(PQ+36+k,2)}')
    for k in range(0, 12, 2):
        A(f'v_pk_add_f32 {vr(PQ+k,2)}, {vr(PQ+k,2)}, {vr(PQ+24+k,2)}')
    for k in range(0, 12, 2):
        A(f'v_pk_fma_f32 {vr(OWN+k,2)}, {vr(PQ+k,2)}, v[14:15], {vr(OWN+k,2)}')
    for sl in range(3):
        A(f's_waitcnt lgkmcnt({6 - 3*sl})')
        for k in range(0, 12, 2):
            A(f'v_pk_add_f32 {vr(OWN+k,2)}, {vr(OWN+k,2)}, {vr(AC+12*sl+k,2)}')
    for t in range(3):
        b = OWN + 4 * t
        A(f'v_cvt_pk_bf16_f32 v{b}, v{b}, v{b+1}\nv_cvt_pk_bf16_f32 v{b+1}, v{b+2}, v{b+3}')
        A(f'buffer_store_dwordx2 {vr(b,2)}, v9, s[28:31], s48 offen offset:{32*t}')
    stamp(A, 14)
    finish(A)
    for kk in range(5):
        A(f'L_a_mre{kk}:')
        A('s_sleep 4')
        issueM(kk)
        A(f's_waitcnt vmcnt(0)\ns_add_u32 s96, s96, 1\ns_cmp_lt_u32 s96, {SPIN_MAX}\ns_cbranch_scc1 L_a_mchk{kk}')
        A(f's_branch L_a_mok{kk}')


def gen_loader(A):
    A.c('s67 = lw ; role constants: s68 strideA, s60 cA, s61 cB, s62 xB, s63 c4, s64 hi-mult')
    A('s_sub_u32 s67, s21, 4')
    A('s_mul_i32 s48, s19, 320\ns_add_u32 s48, s48, 1280\ns_and_b32 s57, s19, 1\ns_lshl_b32 s58, s57, 6\ns_add_u32 s58, s58, s48')
    A('s_xor_b32 s57, s57, 1\ns_lshl_b32 s57, s57, 8\ns_add_u32 s57, s57, s48\ns_add_u32 s59, s58, 1280')
    A('s_lshl_b32 s48, s22, 8\ns_lshl_b32 s49, s22, 7\ns_movk_i32 s56, 3072')
    A('s_cmp_eq_u32 s20, 0')
    A('s_cselect_b32 s68, 3840, s56\ns_cselect_b32 s60, s58, s48\ns_cselect_b32 s61, s59, s48\ns_cselect_b32 s62, 1, 0\ns_cselect_b32 s63, s57, s49\ns_cselect_b32 s64, 1280, 64')
    A(f's_cmp_lg_u32 s91, 0\ns_cselect_b32 s63, {OOB}, s63')
    A(f'v_mov_b32 v29, {OOB}\ns_lshl_b32 s75, s68, 5\ns_lshl_b32 s69, s18, 2\ns_add_u32 s69, s69, s19\nv_and_b32 v3, 31, v2\nv_lshrrev_b32 v4, 5, v2')
    A('s_movk_i32 s48, 3072\ns_cmp_eq_u32 s67, 1\ns_cselect_b32 s48, 3840, s48\ns_lshr_b32 s49, s48, 7\ns_lshl_b32 s85, s48, 6\ns_movk_i32 s56, 128')
    A('s_cmp_eq_u32 s67, 0\ns_cselect_b32 s48, 40960, s48\ns_cselect_b32 s49, 32, s49\ns_cselect_b32 s85, 128, s85\ns_cselect_b32 s56, 1280, s56\ns_mul_i32 s48, s48, s69')
    A('v_mul_u32_u24 v5, s56, v3\nv_mul_u32_u24 v6, s85, v4\nv_add3_u32 v5, v5, v6, s48\nv_cmp_gt_u32 vcc, s49, v3')
    st0 = sum(EV[m][0] << (4 * m) for m in EV)
    A(f's_lshl_b32 s56, s20, 2\ns_lshr_b32 s56, {hex(st0)}, s56\ns_and_b32 s56, s56, 15\nv_cndmask_b32 v30, v29, v5, vcc\ns_mul_i32 s56, s56, s85')
    A('s_mov_b32 s26, 2621440\ns_mov_b32 s27, 0x20000\ns_mov_b32 s31, 0x20000\ns_mov_b32 s35, 0x20000\ns_mov_b32 s39, 0x20000\ns_mov_b32 s83, 0x20000\ns_mov_b32 s48, 1966080\ns_mov_b32 s38, 2457600')
    A('s_cmp_eq_u32 s20, 0\ns_cselect_b32 s30, s38, s48\ns_mov_b32 s34, s30')
    A(f'v_mov_b32 v38, {CT}\nv_lshl_add_u32 v39, v2, 2, v38\nv_mov_b32 v44, 0\ns_lshl_b32 s71, s67, 8\nds_write_b32 v39, v44\nv_add_u32 v39, s71, v39\nds_write_b32 v39, v44 offset:256')
    A(f'v_and_b32 v39, 3, v2\nv_lshlrev_b32 v39, 8, v39\nv_add_u32 v39, {CT+256}, v39\ns_lshl_b32 s71, s67, 2\ns_add_u32 s71, s71, {CT}')
    A('s_cmp_eq_u32 s20, 0')
    A('s_waitcnt lgkmcnt(0)')
    A('s_mov_b32 s24, s4\ns_mov_b32 s25, s5\ns_mov_b32 s36, s6\ns_mov_b32 s37, s7')
    A('s_cselect_b32 s28, s6, s8\ns_cselect_b32 s29, s7, s9\ns_cselect_b32 s32, s6, s10\ns_cselect_b32 s33, s7, s11')
    A('s_cmp_eq_u32 s67, 2\ns_cselect_b32 s80, s8, s10\ns_cselect_b32 s81, s9, s11')
    A('s_cmp_eq_u32 s67, 1\ns_cselect_b32 s80, s6, s80\ns_cselect_b32 s81, s7, s81\ns_cselect_b32 s82, s38, s48')
    A('s_cmp_eq_u32 s67, 0\ns_cselect_b32 s80, s4, s80\ns_cselect_b32 s81, s5, s81\ns_cselect_b32 s82, s26, s82')
    stamp(A, 1)
    def issueW():
        for L in range(5):
            sr = 28 if L < 2 else (32 if L < 4 else 36)
            dma(A, f's_add_u32 m0, s77, {L*1024}', 10 + L, sr, 70 if L < 4 else 72)
        A('s_add_u32 s70, s70, s75\ns_add_u32 s72, s72, s76')
        A(f's_add_u32 s77, s77, {WSLOT}\ns_cmp_ge_u32 s77, {WBASE + NW*WSLOT}\ns_cselect_b32 s48, {NW*WSLOT}, 0\ns_sub_u32 s77, s77, s48')
    def issueX():
        for i in range(4):
            dma(A, f's_add_u32 m0, s78, {i*1024}', 16 + i, 24, 74)
        A('s_add_u32 s74, s74, 128')
        A(f's_add_u32 s78, s78, {XSLOT}\ns_cmp_ge_u32 s78, {NX*XSLOT}\ns_cselect_b32 s48, {NX*XSLOT}, 0\ns_sub_u32 s78, s78, s48')
    def flag():
        A('s_mov_b32 m0, s71\ns_lshl_b32 s48, s65, 2\ns_mov_b64 exec, 1\nbuffer_load_dword v44, s[8:11], s48 offen offset:0 lds\ns_mov_b64 exec, -1')
    A('s_mov_b32 s97, s56')
    if START2:
        A('s_lshr_b32 s56, s85, 6\ns_lshr_b32 s57, s85, 13\ns_cmp_eq_u32 s67, 0\ns_cselect_b32 s56, 10240, s56\ns_cselect_b32 s57, 64, s57\ns_mul_i32 s56, s56, s2')
        A(f's_cmp_ge_u32 s2, {START2}\ns_cselect_b32 s48, s67, 0\ns_cmp_lg_u32 s48, 0\ns_cselect_b32 s57, 0, s57')
        A('v_lshlrev_b32 v34, 7, v2\nv_cmp_gt_u32 vcc, s57, v2\ns_nop 1\nv_cndmask_b32 v34, v29, v34, vcc')
        A('buffer_load_dword v36, v34, s[80:83], s56 offen')
        A('s_cmp_lg_u32 s67, 0\ns_cbranch_scc1 L_nor0')
        A('s_add_u32 s56, s56, 8192\ns_mov_b64 exec, 0xffff\nbuffer_load_dword v37, v34, s[80:83], s56 offen\ns_mov_b64 exec, -1\nv_mov_b32 v30, v29')
        A('s_branch L_nor0')
    A('s_cmp_eq_u32 s20, 0\ns_cbranch_scc1 L_nor0' if not R0LATE else 's_cmp_lg_u32 s20, 1\ns_cbranch_scc1 L_nor0')
    A('s_mov_b32 exec_hi, 0\nbuffer_load_dword v36, v30, s[80:83], s56 offen\ns_mov_b32 exec_hi, -1')
    A('L_nor0:')
    A('s_barrier')
    A('s_cmp_eq_u32 s55, 0\ns_cbranch_scc1 L_nogw0')
    srd(A, 44, 14, 1280)
    A('v_lshlrev_b32 v40, 1, v2')
    for j in range(10):
        A(f'buffer_load_ushort v{50+j}, v40, s[44:47], 0 offen offset:{128*j}')
    A('L_nogw0:')
    A('v_lshrrev_b32 v3, 3, v2\nv_and_b32 v4, 7, v2')
    A('s_lshl_b32 s48, s18, 7\ns_lshl_b32 s56, s67, 5\ns_add_u32 s48, s48, s56\nv_add_u32 v7, s48, v3\nv_mul_u32_u24 v7, 1280, v7')
    A('v_lshrrev_b32 v8, 4, v2\nv_xor_b32 v8, v8, v4\nv_lshl_add_u32 v16, v8, 4, v7')
    A('v_xor_b32 v8, 4, v8\nv_lshl_add_u32 v17, v8, 4, v7\nv_add_u32 v17, 10240, v17')
    A('v_add_u32 v18, 20480, v16\nv_add_u32 v19, 20480, v17')
    A('s_lshl_b32 s56, s67, 3\nv_add_u32 v5, s56, v3')
    A('s_and_b32 s56, s67, 1\ns_lshl_b32 s56, s56, 2\nv_and_b32 v6, 2, v3\nv_xor_b32 v6, v6, v4\nv_xor_b32 v6, s56, v6')
    A('v_mul_u32_u24 v7, s68, v5\nv_lshl_add_u32 v8, v6, 4, v7\nv_add_u32 v10, s60, v8\nv_add_u32 v11, 128, v10')
    A('v_xor_b32 v9, s62, v6\nv_lshl_add_u32 v8, v9, 4, v7\nv_add_u32 v12, s61, v8\nv_add_u32 v13, 128, v12')
    A('v_lshrrev_b32 v8, 2, v6\nv_and_b32 v9, s62, v8\nv_and_b32 v6, 3, v6\nv_xor_b32 v6, v6, v9\nv_mul_u32_u24 v7, 3840, v5')
    A('v_lshl_add_u32 v7, v6, 4, v7\nv_mul_u32_u24 v8, s64, v8\nv_add3_u32 v14, v7, v8, s63')
    A(f's_mov_b32 s76, {32*3840}\ns_mov_b32 s70, 0\ns_mov_b32 s72, 0\ns_mov_b32 s74, 0')
    A(f's_mul_i32 s77, s67, 5120\ns_add_u32 s77, s77, {WBASE}\ns_lshl_b32 s78, s67, 12')
    issueX(); issueW()
    if L2PF:
        A('s_cmp_eq_u32 s67, 2\ns_cselect_b32 s48, s60, s61\ns_cselect_b32 s4, s28, s32\ns_cselect_b32 s5, s29, s33\ns_mov_b32 s6, s30\ns_mov_b32 s49, s68\ns_movk_i32 s56, 128')
        A('s_cmp_eq_u32 s67, 1\ns_cselect_b32 s48, s63, s48\ns_cselect_b32 s4, s36, s4\ns_cselect_b32 s5, s37, s5\ns_cselect_b32 s6, s38, s6\ns_cselect_b32 s49, 3840, s49\ns_cselect_b32 s56, s64, s56')
        A('s_lshl_b32 s94, s49, 6\ns_lshl_b32 s57, s23, 3\nv_add_u32 v33, s57, v4\nv_bfe_u32 v34, v2, 4, 1\nv_lshl_add_u32 v33, v34, 6, v33\nv_mul_u32_u24 v33, s49, v33')
        A('v_bfe_u32 v34, v2, 3, 1\nv_mul_u32_u24 v34, s56, v34\nv_add3_u32 v33, v33, v34, s48\nv_cmp_gt_u32 vcc, 32, v2\ns_mov_b32 s7, 0x20000\ns_nop 0\nv_cndmask_b32 v33, v29, v33, vcc')
        A('s_cmp_lg_u32 s67, 0\ns_cbranch_scc1 L_l2x')
        A('s_mov_b32 s4, s24\ns_mov_b32 s5, s25\ns_mov_b32 s6, s26\ns_movk_i32 s94, 128\ns_lshl_b32 s48, s18, 7\ns_lshl_b32 s49, s20, 5\ns_add_u32 s48, s48, s49')
        A('v_and_b32 v33, 31, v2\nv_add_u32 v33, s48, v33\nv_mul_u32_u24 v33, 1280, v33\nv_lshrrev_b32 v34, 5, v2\nv_lshl_add_u32 v33, v34, 7, v33')
        A('L_l2x:')
        A(f's_mul_i32 s95, s94, {L2PF}\ns_lshl_b32 s94, s94, 1')
    A('s_load_dwordx2 s[86:87], s[0:1], 72')
    A('s_cmp_eq_u32 s55, 0\ns_cbranch_scc1 L_nogw')
    A('v_and_b32 v41, 3, v2\nv_lshlrev_b32 v41, 3, v41')
    A('v_bfe_u32 v40, v2, 2, 1\nv_lshl_add_u32 v41, v40, 9, v41')
    A('v_bfe_u32 v40, v2, 3, 2\nv_lshl_add_u32 v41, v40, 5, v41')
    A(f'v_bfe_u32 v40, v2, 5, 1\nv_mul_u32_u24 v40, {GWS}, v40\nv_add_u32 v41, v40, v41')
    A(f'v_add_u32 v41, {GWBASE}, v41')
    A('s_waitcnt vmcnt(9)')
    for j in range(10):
        A(f'v_lshl_or_b32 v{80+2*j}, v{50+j}, 16, v{50+j}\nv_mov_b32 v{81+2*j}, v{80+2*j}')
        A(f'ds_write_b64 v41, v[{80+2*j}:{81+2*j}] offset:{2*GWS*j}')
    A('L_nogw:')
    srd(A, 40, 16, WS_USED)
    srd(A, 44, 12, 1966080)
    A('s_waitcnt lgkmcnt(0)')
    A('s_lshl_b32 s48, s2, 2\ns_add_u32 s48, s48, s67\ns_cmp_lg_u32 s48, 0\ns_cbranch_scc1 L_noep')
    A('s_memrealtime s[88:89]\ns_waitcnt lgkmcnt(0)\ns_or_b32 s88, s88, 1\nv_mov_b32 v42, s88\nv_mov_b32 v43, s89')
    A('s_mov_b64 exec, 1\nglobal_store_dwordx2 v44, v[42:43], s[86:87] sc1\ns_mov_b64 exec, -1')
    A('L_noep:')
    A('v_lshlrev_b32 v5, 4, v2\nv_lshlrev_b32 v6, 3, v2\nv_add_u32 v7, 4096, v5')
    assert RPORD.index(10) >= 8
    tab = sum(RPORD.index(t) << (4 * t) for t in range(12))
    A(f's_mov_b32 s56, {hex(tab & 0xffffffff)}\ns_mov_b32 s57, {hex(tab >> 32)}\ns_lshl_b32 s48, s22, 2\ns_lshr_b64 s[56:57], s[56:57], s48\ns_and_b32 s48, s56, 15\ns_lshl_b32 s48, s48, 4\ns_add_u32 s48, s48, s18')
    A('s_sub_u32 s60, s48, 120\ns_lshl_b32 s60, s60, 2\ns_add_u32 s60, s60, s67\ns_lshl_b32 s92, s48, 1\ns_add_u32 s92, s92, s67')
    A('s_cmp_lt_u32 s67, 2\ns_cselect_b32 s92, s92, 999\ns_cmp_lt_u32 s92, 240\ns_cselect_b32 s64, 1, 0\ns_cmp_lt_u32 s60, 256\ns_cselect_b32 s64, 2, s64')
    A('s_mul_i32 s62, s92, 52429\ns_lshr_b32 s62, s62, 18\ns_mul_i32 s63, s62, 5\ns_sub_u32 s63, s92, s63')
    A(f's_mul_i32 s79, s62, {32*1280}\ns_lshl_b32 s56, s63, 8\ns_add_u32 s79, s79, s56\ns_lshl_b32 s63, s63, 3\ns_mul_i32 s62, s62, 5')
    A(f's_lshl_b32 s92, s92, 3\ns_add_u32 s92, s92, {FW_OFF}\ns_lshl_b32 s93, s67, 12\ns_add_u32 s93, s93, {RPK}')
    A(f's_lshl_b32 s48, s60, 3\ns_add_u32 s48, s48, {FP_OFF}\ns_cmp_eq_u32 s64, 2\ns_cselect_b32 s92, s48, s92')
    A('v_and_b32 v8, 2, v3\nv_xor_b32 v8, v8, v4\nv_mul_u32_u24 v9, 1280, v3\nv_lshl_add_u32 v20, v8, 4, v9')
    A('v_xor_b32 v8, 4, v8\nv_lshl_add_u32 v21, v8, 4, v9\nv_add_u32 v21, 10240, v21\nv_add_u32 v22, 20480, v20\nv_add_u32 v23, 20480, v21')
    A('v_lshrrev_b32 v8, 2, v2\nv_and_b32 v9, 3, v2\nv_lshlrev_b32 v8, 7, v8\nv_lshl_add_u32 v8, v9, 3, v8\nv_add_u32 v8, s93, v8')
    A('v_bfe_u32 v9, v2, 3, 1\nv_lshrrev_b32 v28, 5, v2\nv_lshl_add_u32 v9, v28, 1, v9')
    for tl in range(4):
        A(f'v_xor_b32 v28, {tl}, v9\nv_lshl_add_u32 v{24+tl}, v28, 5, v8')
    A('v_mul_u32_u24 v31, 1280, v2')
    if 'NODUTY' in EXP: A('s_mov_b32 s64, 0')
    pk = {m: sum(((t | (b0 << 4)) << (8 * k)) for k, (t, b0) in enumerate(EV[m][1])) | (0xFF << (8 * len(EV[m][1]))) for m in EV}
    A(f's_mov_b32 s84, -1\ns_cmp_eq_u32 s20, 1\ns_cselect_b32 s84, {hex(pk[1])}, s84\ns_cmp_eq_u32 s20, 2\ns_cselect_b32 s84, {hex(pk[2])}, s84\ns_cmp_eq_u32 s20, 3\ns_cselect_b32 s84, {hex(pk[3])}, s84\ns_and_b32 s58, s84, 15')
    AC = 24; WR = 104; HBUF = 224
    def a2(rt, t): return AC + 20 * rt + 4 * t
    regset = {0: 0, 1: 1, 2: 2, 9: 3, 10: 4, 11: 5}
    lds_unit = {3: WBASE, 4: WBASE + WSLOT, 5: WBASE + 2*WSLOT, 6: WBASE + 3*WSLOT, 7: 20480, 8: WBASE + 4*WSLOT}
    def kidx(i, dst):
        A(f's_add_u32 s{dst}, s23, {i}\ns_cmp_ge_u32 s{dst}, 12\ns_cselect_b32 s48, 12, 0\ns_sub_u32 s{dst}, s{dst}, s48')
    def w2reg(i):
        kidx(i, 56)
        A('s_mul_i32 s56, s56, 5120\ns_add_u32 s56, s56, s50')
        for t in range(5):
            b = WR + 20 * regset[i] + 4 * t
            if t == 0: A(f's_waitcnt vmcnt({STG_THR})')
            A(f'buffer_load_dwordx4 {vr(b)}, v{5 if t < 4 else 7}, s[40:43], s56 offen offset:{1024*(t&3)} sc1')
    def w2lds(i):
        kidx(i, 56)
        A('s_mul_i32 s56, s56, 5120\ns_add_u32 s56, s56, s50')
        A(f's_add_u32 m0, s52, {lds_unit[i]}\ns_waitcnt vmcnt({STG_THR})')
        for t in range(4):
            A(f'buffer_load_dwordx4 v5, s[40:43], s56 offen offset:{1024*t} sc1 lds')
        A(f's_add_u32 m0, s52, {lds_unit[i] + 4096}\ns_nop 0')
        A('buffer_load_dwordx4 v7, s[40:43], s56 offen sc1 lds')
    def trace():
        if STAMP and 'quiet' not in EXP:
            A('s_memtime s[98:99]\ns_add_u32 s48, s65, 38\ns_mov_b32 m0, s48\ns_waitcnt lgkmcnt(0)\nv_writelane_b32 v1, s98, m0')
    def ensure_free():
        if 'nofree' in EXP: return
        l = A.label('L_free')
        A(f's_sub_u32 s57, s65, 4\ns_cmp_ge_i32 s66, s57\ns_cbranch_scc1 {l}')
        tbeg(A)
        lds_wait(A, 39, 0, 48, 's57', four='free', sdst=66, sleep=LSLEEP)
        tend(A, 100)
        A(f'{l}:')
    stamp(A, 2)
    table_srd(A, 8)
    A('s_mov_b32 s65, 1\ns_mov_b32 s66, 0')
    flag()
    if R0LATE:
        A('s_cmp_lt_u32 s20, 2\ns_cbranch_scc1 L_nor1')
        A('s_mov_b32 exec_hi, 0\nbuffer_load_dword v36, v30, s[80:83], s97 offen\ns_mov_b32 exec_hi, -1')
        A('L_nor1:')
    A('s_branch L_ld_odd')
    A('.p2align 3')
    A('L_ld_loop:')
    ensure_free()
    if L2PF:
        A(f's_bitcmp1_b32 s65, 1\ns_cbranch_scc0 L_nol2\ns_cmp_gt_u32 s65, {2 + 4 * ((9 - L2PF) // 2)}\ns_cbranch_scc1 L_nol2')
        A('buffer_load_dword v35, v33, s[4:7], s95 offen\ns_add_u32 s95, s95, s94')
        A('L_nol2:')
    issueX(); issueW()
    trace()
    A('s_add_u32 s65, s65, 1')
    flag()
    A('L_ld_odd:')
    ensure_free()
    issueW()
    trace()
    A('s_lshr_b32 s49, s65, 1\ns_add_u32 s65, s65, 1')
    flag()
    A('s_cmp_eq_u32 s49, s58\ns_cbranch_scc1 L_ev_round')
    A('L_ev_r1:')
    A('s_cmp_lt_u32 s65, 20\ns_cbranch_scc1 L_ld_loop')
    A('s_branch L_ld_done')
    A('L_ev_round:')
    A('s_bfe_u32 s59, s84, 0x40004\ns_lshr_b32 s84, s84, 8\ns_and_b32 s58, s84, 15')
    A('s_cmp_gt_u32 s59, 9\ns_cbranch_scc1 L_ev_flag')
    lds_wait(A, 38, 0, 48, 's65')
    A('s_mul_i32 s56, s85, s59\nbuffer_load_dword v36, v30, s[80:83], s56 offen')
    if THIRD:
        A(f's_cmp_lg_u32 s59, {THIRD}\ns_cbranch_scc1 L_ev_no3')
        A('s_mul_i32 s56, s85, 9\ns_mov_b32 exec_hi, 0\nbuffer_load_dword v37, v30, s[80:83], s56 offen\ns_mov_b32 exec_hi, -1')
        A('L_ev_no3:')
    A('s_cmp_eq_u32 s64, 0\ns_cbranch_scc1 L_ev_rw')
    A('global_load_dwordx2 v[42:43], v44, s[86:87] sc1')
    A('s_cmp_eq_u32 s64, 2\ns_cbranch_scc1 L_ev_poison')
    A('s_mov_b32 exec_hi, 0\nbuffer_load_dword v37, v31, s[44:47], s79 offen offset:128\ns_mov_b32 exec_hi, -1')
    for e in range(2):
        for g in range(4):
            dma(A, f's_add_u32 m0, s93, {g*1024}', 20 + g, 44, 79)
        A('s_add_u32 s79, s79, 128')
        A('s_waitcnt vmcnt(0)')
        for tl in range(4):
            A(f'ds_read_b64_tr_b16 {vr(64+16*e+4*tl,2)}, v{24+tl}\nds_read_b64_tr_b16 {vr(66+16*e+4*tl,2)}, v{24+tl} offset:2048')
        A('s_waitcnt lgkmcnt(0)')
    if not DEFER:
        for tl in range(8):
            A(f's_add_u32 s56, s63, {tl}\ns_mul_i32 s57, s56, 52429\ns_lshr_b32 s57, s57, 18\ns_mul_i32 s57, s57, 235\ns_add_u32 s57, s57, s56\ns_add_u32 s57, s57, s62\ns_lshl_b32 s57, s57, 10\ns_add_u32 s57, s57, {W2_OFF}')
            A(f'buffer_store_dwordx4 {vr(64+4*tl)}, v5, s[40:43], s57 offen sc1')
    A('s_branch L_ev_r1')
    A('L_ev_poison:')
    A('v_mov_b32 v64, -1\nv_mov_b32 v65, -1\nv_mov_b32 v66, -1\nv_mov_b32 v67, -1')
    A(f's_mul_i32 s56, s60, 3200\ns_add_u32 s56, s56, {M_OFF}\ns_lshl_b32 s57, s60, 7\ns_add_u32 s57, s57, {ZB_OFF}\ns_cmp_lt_u32 s60, 128\ns_cselect_b32 s57, s57, {OOB}')
    for k in range(3):
        A(f'buffer_store_dwordx4 v[64:67], v5, s[40:43], s56 offen offset:{1024*k} sc1')
    A('s_mov_b64 exec, 0xff\nbuffer_store_dwordx4 v[64:67], v5, s[40:43], s56 offen offset:3072 sc1')
    A('buffer_store_dwordx4 v[64:67], v5, s[40:43], s57 offen sc1\ns_mov_b64 exec, -1')
    A('L_ev_rw:')
    A('s_waitcnt vmcnt(0)')
    A('s_branch L_ev_r1')
    A('L_ev_flag:')
    A('s_cmp_eq_u32 s64, 0\ns_cbranch_scc1 L_ev_r1')
    if DEFER:
        A('s_cmp_eq_u32 s59, 15\ns_cbranch_scc1 L_ev_fl2\ns_cmp_lg_u32 s64, 1\ns_cbranch_scc1 L_ev_r1')
        for tl in range(8):
            A(f's_add_u32 s56, s63, {tl}\ns_mul_i32 s57, s56, 52429\ns_lshr_b32 s57, s57, 18\ns_mul_i32 s57, s57, 235\ns_add_u32 s57, s57, s56\ns_add_u32 s57, s57, s62\ns_lshl_b32 s57, s57, 10\ns_add_u32 s57, s57, {W2_OFF}')
            A(f'buffer_store_dwordx4 {vr(64+4*tl)}, v5, s[40:43], s57 offen sc1')
        A('s_branch L_ev_r1')
        A('L_ev_fl2:')
    l0 = A.label('L_ep'); l1 = A.label('L_epok')
    A('s_mov_b32 s90, 0\ns_waitcnt vmcnt(15)')
    A(f'{l0}:')
    A('v_readfirstlane_b32 s88, v42')
    A(f's_cmp_lg_u32 s88, 0\ns_cbranch_scc1 {l1}')
    A('s_sleep 4\nglobal_load_dwordx2 v[42:43], v44, s[86:87] sc1\ns_waitcnt vmcnt(0)')
    A(f's_add_u32 s90, s90, 1\ns_cmp_lt_u32 s90, {SPIN_MAX}\ns_cbranch_scc1 {l0}')
    A(f'{l1}:')
    A('s_mov_b64 exec, 1\nbuffer_store_dwordx2 v[42:43], v44, s[40:43], s92 offen sc1\ns_mov_b64 exec, -1')
    A('s_branch L_ev_r1')
    A('L_ld_done:')
    trace()
    if 'p1' in EXP: finish(A)
    A('s_cmp_lg_u32 s20, 0\ns_cbranch_scc1 L_nowo')
    if PAX:
        A('s_and_b32 s69, s2, 7\ns_lshl_b32 s69, s69, 3\ns_bfe_u32 s48, s2, 0x30003\ns_add_u32 s69, s69, s48')
    A('s_load_dwordx2 s[24:25], s[0:1], 16\ns_mov_b32 s26, 819200\ns_mov_b32 s27, 0x20000')
    A('s_lshr_b32 s48, s69, 2\ns_lshl_b32 s48, s48, 1\ns_and_b32 s49, s67, 1\ns_add_u32 s48, s48, s49\ns_mul_i32 s48, s48, 25600')
    A('s_and_b32 s49, s69, 3\ns_lshl_b32 s49, s49, 1\ns_lshr_b32 s56, s67, 1\ns_add_u32 s49, s49, s56\ns_mul_i32 s49, s49, 160\ns_add_u32 s48, s48, s49')
    A('v_lshrrev_b32 v8, 1, v2\nv_mul_u32_u24 v8, 1280, v8\nv_and_b32 v9, 1, v2\nv_mul_u32_u24 v9, 156, v9\nv_add_u32 v8, v8, v9')
    A('s_mov_b32 s73, s48\ns_waitcnt lgkmcnt(0)\nbuffer_load_dword v36, v8, s[24:27], s48 offen')
    A('L_nowo:')
    def bsetup():
        p2_ids(A)
        A('s_mul_i32 s23, s19, 3\ns_lshr_b32 s23, s23, 1\ns_and_b32 s48, s18, 3\ns_mul_i32 s48, s48, 3\ns_add_u32 s23, s23, s48\ns_cmp_ge_u32 s23, 12\ns_cselect_b32 s48, 12, 0\ns_sub_u32 s23, s23, s48')
        A(f's_mul_i32 s48, s67, 12\ns_mul_i32 s50, s19, 48\ns_add_u32 s50, s50, s48\ns_mul_i32 s50, s50, 5120\ns_add_u32 s50, s50, {W2_OFF}')
        A('s_mul_i32 s51, s18, 68\ns_add_u32 s51, s51, s48\ns_lshl_b32 s51, s51, 12')
        A('s_mul_i32 s52, s67, 5120')
    A(f'v_mov_b32 v0, {CT}')
    bsetup()
    A(f's_mul_i32 s53, s67, 480\ns_mul_i32 s48, s19, 5\ns_lshr_b32 s48, s48, 2\ns_add_u32 s53, s53, {FW_OFF}')
    A('v_lshrrev_b32 v8, 1, v2\nv_mul_u32_u24 v8, 40, v8\nv_and_b32 v9, 1, v2\nv_add_u32 v9, s48, v9\nv_lshrrev_b32 v9, 1, v9\nv_lshl_add_u32 v28, v9, 3, v8')
    A(f's_lshr_b32 s48, s18, 1\ns_lshl_b32 s54, s48, {FSH}\ns_add_u32 s54, s54, {FG_OFF}')
    A(f's_mov_b32 s55, {FP_OFF}\ns_mov_b32 s90, 0\nv_cmp_gt_u32 s[58:59], 24, v2')
    A('L_b_chk:')
    A('global_load_dwordx2 v[42:43], v44, s[86:87] sc1')
    A('s_mov_b64 exec, s[58:59]\nbuffer_load_dwordx2 v[46:47], v28, s[40:43], s53 offen sc1\ns_mov_b64 exec, -1')
    A('s_cmp_lg_u32 s67, 1\ns_cbranch_scc1 L_b_chk1')
    A('buffer_load_dwordx4 v[48:51], v5, s[40:43], s55 offen sc1\nbuffer_load_dwordx4 v[52:55], v5, s[40:43], s55 offen offset:1024 sc1')
    A('L_b_chk1:')
    A('s_waitcnt vmcnt(0)')
    A('v_readfirstlane_b32 s88, v42\nv_readfirstlane_b32 s89, v43\ns_nop 1')
    A('v_cmp_ne_u64 s[60:61], s[88:89], v[46:47]\ns_and_b64 s[60:61], s[60:61], s[58:59]')
    A('s_cmp_lg_u32 s67, 1\ns_cbranch_scc1 L_b_chk2')
    A('v_cmp_ne_u64 s[62:63], s[88:89], v[48:49]\ns_or_b64 s[60:61], s[60:61], s[62:63]\nv_cmp_ne_u64 s[62:63], s[88:89], v[50:51]\ns_or_b64 s[60:61], s[60:61], s[62:63]')
    A('v_cmp_ne_u64 s[62:63], s[88:89], v[52:53]\ns_or_b64 s[60:61], s[60:61], s[62:63]\nv_cmp_ne_u64 s[62:63], s[88:89], v[54:55]\ns_or_b64 s[60:61], s[60:61], s[62:63]')
    A('L_b_chk2:')
    A('s_cmp_eq_u32 s88, 0\ns_cselect_b32 s60, 1, s60\ns_cmp_eq_u64 s[60:61], 0\ns_cbranch_scc1 L_b_chkok')
    if 'NODUTY' in EXP: A('s_branch L_b_chkok')
    A(f's_sleep 24\ns_add_u32 s90, s90, 1\ns_cmp_lt_u32 s90, {SPIN_MAX}\ns_cbranch_scc1 L_b_chk')
    A('L_b_chkok:')
    A('s_cmp_lg_u32 s67, 1\ns_cbranch_scc1 L_b_nofp')
    A('v_mov_b32 v46, 1\ns_mov_b64 exec, 1\nds_write_b64 v0, v[42:43] offset:32\nds_write_b32 v0, v46 offset:72\ns_mov_b64 exec, -1')
    A('L_b_nofp:')
    stamp(A, 37)
    rest = []
    A('s_cmp_eq_u32 s20, 0\ns_cbranch_scc1 L_b_kv')
    for i in (0, 1, 2, 9, 10, 11):
        w2reg(i)
    stamp(A, 22)
    lds_wait(A, 39, 0, 48, 20, four='free', sleep=LSLEEP)
    for k, i in enumerate((3, 4, 5, 6, 7, 8)):
        if k == GEARLY:
            lds_wait(A, 38, 48, 48, 1, sleep=4)
            stamp(A, 9)
        w2lds(i); stamp(A, 16 + k)
    A('s_branch L_b_common')
    A('L_b_kv:')
    pre = [0, 1, 2, 9, 10, 11]
    for need, i in ((16, 3), (17, 4), (18, 5), (18, 7), (19, 6), (20, 8)):
        lds_wait(A, 39, 0, 48, need, four='free', sleep=LSLEEP)
        w2lds(i)
    for i in range(5):
        A(f'v_add_u32 v12, {64*i}, v2\nv_mul_u32_u24 v13, 6554, v12\nv_lshrrev_b32 v13, 16, v13\nv_mul_u32_u24 v14, 10, v13\nv_sub_u32 v14, v12, v14')
        A(f'v_mul_u32_u24 v13, 1280, v13\nv_lshl_add_u32 v13, v14, 4, v13\ns_add_u32 m0, s52, {1024*i}\ns_nop 0')
        A('buffer_load_dwordx4 v13, s[24:27], s73 offen lds')
    stamp(A, 9)
    for i in pre[:KVPRE]:
        w2reg(i)
    stamp(A, 8)
    A('s_lshr_b32 s18, s69, 2\ns_lshl_b32 s18, s18, 1\ns_and_b32 s48, s67, 1\ns_add_u32 s18, s18, s48\ns_and_b32 s19, s69, 3\ns_lshl_b32 s19, s19, 1\ns_lshr_b32 s48, s67, 1\ns_add_u32 s19, s19, s48')
    phase_a(A)
    bsetup()
    for i in pre[KVPRE:]:
        w2reg(i)
    A('L_b_common:')
    hbufs = [HBUF, HBUF + 16, WR + 40]
    def hb(i, rt):
        k = i if i < 2 else (0 if i == 2 else (i - 3 + 1) % 3 if False else None)
        return None
    hmap = {0: 0, 1: 1, 2: 0, 3: 1}
    for i in range(4, 12):
        hmap[i] = [0, 2, 1][(i - 4) % 3]
    def hb(i, rt): return hbufs[hmap[i]] + 4 * rt
    A('v_add_u32 v8, s52, v5')
    A(f'v_add_u32 v9, {WBASE + 2*WSLOT}, v8')
    def rdW(i, rs):
        u = lds_unit[i]
        va, off = (8, u) if u < WBASE + WSLOT - 5120 else ((9, u - (WBASE + 2*WSLOT)) if u >= WBASE + 2*WSLOT else (12, 0))
        for t in range(5):
            A(f'ds_read_b128 {vr(WR+20*rs+4*t)}, v{va} offset:{off + 1024*t}')
    A(f'v_add_u32 v12, {WBASE + WSLOT}, v8')
    A('s_load_dwordx2 s[28:29], s[0:1], 64\ns_mov_b32 s30, 2621440\ns_mov_b32 s31, 0x20000')
    A(f's_lshl_b32 s48, s67, 2\nv_add_u32 v13, s48, v0\nv_mov_b32 v14, 1\ns_mul_i32 s48, s67, {WSLOT}\ns_add_u32 s48, s48, {WBASE}\nv_add_u32 v15, s48, v5')
    A(f's_mul_i32 s48, s67, 15360\ns_cmp_eq_u32 s67, 3\ns_cselect_b32 s48, {XCH[3]}, s48\nv_add_u32 v16, s48, v5')
    A(f's_lshl_b32 s48, s67, 11\ns_add_u32 s48, s48, {XCH[3] + 15360}\nv_add_u32 v17, s48, v5\ns_lshl_b32 s48, s67, 8\nv_lshlrev_b32 v19, 2, v2\nv_add_u32 v19, s48, v19')
    A('s_lshl_b32 s48, s18, 6\ns_lshl_b32 s49, s67, 4\ns_add_u32 s48, s48, s49\nv_and_b32 v20, 15, v2\nv_add_u32 v20, s48, v20\nv_mul_u32_u24 v20, 1280, v20\nv_lshrrev_b32 v21, 4, v2\nv_lshl_add_u32 v20, v21, 3, v20\ns_mul_i32 s55, s19, 160')
    A('s_mul_i32 s48, s67, 5\ns_mul_i32 s57, s18, 68\ns_add_u32 s57, s57, s48\ns_add_u32 s57, s57, 48\ns_lshl_b32 s57, s57, 12')
    A(f's_lshl_b32 s58, s18, 8\ns_add_u32 s58, s58, {G_OFF}\nv_and_b32 v3, 15, v2\nv_lshlrev_b32 v11, 2, v3')
    A(f's_mul_i32 s48, s67, 320\ns_add_u32 s48, s48, {CT + 1536}\nv_mul_u32_u24 v4, 80, v21\nv_add_u32 v4, s48, v4')
    A('v_lshrrev_b32 v10, 2, v3\nv_cmp_eq_u32 s[64:65], v10, v21\nv_and_b32 v10, 1, v3\nv_cmp_eq_u32 s[62:63], 0, v10')
    A(f's_and_b64 s[60:61], s[64:65], s[62:63]\ns_andn2_b64 s[62:63], s[64:65], s[62:63]\ns_mov_b32 s64, {EPS}\ns_mov_b32 s65, 0xffff0000')
    A(f's_setprio {BPRIO}')
    stamp(A, 3)
    if GPOLL == 'B':
        A('s_cmp_lg_u32 s67, 3\ns_cbranch_scc1 L_b_nopoll')
        poll(A, 54, 48, 10, 6)
        A('v_mov_b32 v10, 1\ns_mov_b64 exec, 1\nds_write_b32 v0, v10 offset:64\ns_mov_b64 exec, -1')
        A('L_b_nopoll:')
    A('s_lshl_b32 s59, 1, s67' if FINEG else 's_mov_b32 s59, 15')
    lds_wait_mask(A, 0, 64, 10, 's59')
    A('s_waitcnt vmcnt(0)')
    stamp(A, 4)
    Q = []
    def wait(tag):
        last = max(k for k, t in enumerate(Q) if t == tag)
        A(f's_waitcnt vmcnt({min(63, len(Q) - 1 - last)})')
    def issueH(i):
        kidx(i, 56)
        A('s_lshl_b32 s56, s56, 12\ns_add_u32 s56, s56, s51')
        for rt in range(4):
            A(f'buffer_load_dwordx4 {vr(hb(i,rt))}, v5, s[40:43], s56 offen offset:{1024*rt} {LL}')
            Q.append(('H', i))
    assert not rest[KPRE:]
    issueH(0); issueH(1)
    nH = 2
    dump = [(8, WBASE), (12, 0), (9, 0), (9, WSLOT)]
    def haddr(i, dst):
        return [f's_add_u32 s{dst}, s23, {i}', f's_cmp_ge_u32 s{dst}, 12', 's_cselect_b32 s48, 12, 0', f's_sub_u32 s{dst}, s{dst}, s48',
                f's_lshl_b32 s{dst}, s{dst}, 12', f's_add_u32 s{dst}, s{dst}, s51']
    def rdW_l(i, rs):
        u = lds_unit[i]
        va, off = (8, u) if u < WBASE + WSLOT - 5120 else ((9, u - (WBASE + 2*WSLOT)) if u >= WBASE + 2*WSLOT else (12, 0))
        return [f'ds_read_b128 {vr(WR+20*rs+4*t)}, v{va} offset:{off + 1024*t}' for t in range(5)]
    pendW = []
    for i in range(12):
        rs = regset[i] if i in regset else (i - 3) % 2
        gaps = {k: [] for k in range(20)}
        for k, l in zip((1, 3, 6, 8, 11), pendW): gaps[k].append(l)
        reuse = nH if nH < 12 and hmap[nH] == hmap[i] else None
        extra = None
        if reuse is not None:
            for k, l in enumerate(haddr(reuse, 56)): gaps[k // 2].append(l)
            nH += 1
        if nH < 12 and hmap[nH] == 2 and i == 3:
            pass
        first = Q.index(('H', i))
        for rt in range(4):
            A(f's_waitcnt vmcnt({len(Q) - 1 - (first + rt)})')
            if rt == 0:
                if i == 0: stamp(A, 5)
                if BST: stamp(A, 25 + i)
                if i not in regset:
                    A('s_waitcnt lgkmcnt(0)')
                if i == PQ_AT:
                    A('s_mov_b64 exec, 1\nds_write_b32 v13, v14 offset:144\ns_mov_b64 exec, -1')
                if i == 8:
                    A('s_mov_b64 exec, 1\nds_write_b32 v13, v14 offset:96\ns_mov_b64 exec, -1')
            for t in range(5):
                d = vr(a2(rt, t))
                A(f'v_mfma_f32_16x16x32_bf16 {d}, {vr(WR+20*rs+4*t)}, {vr(hb(i,rt))}, {d if i else 0}')
                for l in gaps[5 * rt + t]: A(l)
                if i == 11 and rt >= 2:
                    A(f'ds_write_b128 v{dump[rt-2][0]}, {vr(a2(rt-2,t))} offset:{dump[rt-2][1] + t*1024}')
            if reuse is not None:
                A(f'buffer_load_dwordx4 {vr(hb(reuse,rt))}, v5, s[40:43], s56 offen offset:{1024*rt} {LL}')
                Q.append(('H', reuse))
        if NRC == 2 and i in (9, 10):
            j = i - 7
            A(f's_add_u32 s48, s67, {j+1}\ns_and_b32 s48, s48, 3\ns_lshl_b32 s49, s48, 10\ns_add_u32 s56, s57, s49\ns_lshl_b32 s49, s48, 6\ns_add_u32 s49, s49, s58')
            for kk in range(5):
                A(f'buffer_load_dwordx4 {vr(WR + 8*kk + 4*(j-2))}, v5, s[40:43], s56 offen {LL}')
                if kk < 4: A('s_add_u32 s56, s56, 4096')
                Q.append(('P', j))
            A(f'buffer_load_dword v{20+j}, v11, s[40:43], s49 offen {LL}')
            Q.append(('P', j))
        while nH < 12 and all(hmap[j] != hmap[nH] for j in range(i + 1, nH)) and not (hmap[nH] == 2 and i < 2):
            issueH(nH); nH += 1
        tgt = {0: 3, 2: 4}.get(i, i + 2 if 5 <= i + 2 <= 8 else None)
        pendW = rdW_l(tgt, (tgt - 3) % 2) if tgt is not None else []
    stamp(A, 6)
    if NRC == 2:
        ZR = HBUF; DN = AC; SC = HBUF + 20; T0 = HBUF + 24
        lds_wait(A, 0, 68, 10, 1, four=False, sleep=1)
        for kk in range(5):
            A(f'ds_read_b128 {vr(ZR+4*kk)}, v4 offset:{16*kk}')
        A('s_waitcnt lgkmcnt(0)')
        for kk in range(5):
            for j in range(4):
                m = 's[62:63]' if (4 * kk + j) >= 10 else 's[60:61]'
                A(f'v_cndmask_b32 v{ZR+4*kk+j}, 0, v{ZR+4*kk+j}, {m}')
        A('s_waitcnt vmcnt(0)\ns_nop 0')
        for kk in range(5):
            for r in range(2):
                d = vr(DN + 4 * r)
                A(f'v_mfma_f32_16x16x32_bf16 {d}, {vr(ZR+4*kk)}, {vr(WR+8*kk+4*r)}, {d if kk else 0}')
        A('s_nop 7')
        for r in range(2):
            A(f'v_add_f32 v{DN+4*r}, s64, v{DN+4*r}\nv_add_f32 v{DN+4*r+1}, s64, v{DN+4*r+1}')
        for r in range(2):
            A(f'v_rcp_f32 v{DN+4*r}, v{DN+4*r}\nv_rcp_f32 v{DN+4*r+1}, v{DN+4*r+1}')
        A('s_nop 0')
        for r in range(2):
            A(f'v_mul_f32 v{SC+2*r}, v{22+r}, v{DN+4*r}\nv_mul_f32 v{SC+2*r+1}, v{22+r}, v{DN+4*r+1}')
        for kk in range(5):
            for r in range(2):
                b = WR + 8 * kk + 4 * r
                for j in range(4):
                    A(f'v_lshlrev_b32 v{T0+2*j}, 16, v{b+j}\nv_and_b32 v{T0+2*j+1}, s65, v{b+j}')
                for j in range(4):
                    odd = 1 if (4 * kk + j) >= 10 else 0
                    A(f'v_mul_f32 v{T0+2*j}, v{SC+2*r+odd}, v{T0+2*j}\nv_mul_f32 v{T0+2*j+1}, v{SC+2*r+odd}, v{T0+2*j+1}')
                for j in range(4):
                    A(f'v_cvt_pk_bf16_f32 v{b+j}, v{T0+2*j}, v{T0+2*j+1}')
                A(f'ds_write_b128 v9, {vr(b)} offset:{r*WSLOT + 1024*kk}')
            A(f'v_mov_b32 v10, {kk+1}\ns_mov_b64 exec, 1\nds_write_b32 v13, v10 offset:160\ns_mov_b64 exec, -1')
        lds_wait(A, 13, 176, 10, 1, four=False, sleep=1)
    for rt in (2, 3):
        for t in range(5):
            A(f'ds_write_b128 v{dump[rt][0]}, {vr(a2(rt,t))} offset:{dump[rt][1] + t*1024}')
    A('s_waitcnt lgkmcnt(0)')
    stamp(A, 7)
    A('s_barrier')
    R = WR
    for r in range(4):
        for t in (3, 4):
            A(f'ds_read_b128 {vr(R+8*r+4*(t-3))}, v15 offset:{r*5120 + 1024*t}')
    A(f'ds_read_b32 v18, v19 offset:{46080}')
    A('s_waitcnt lgkmcnt(5)')
    for r in range(3):
        for t in (3, 4):
            A(f'ds_read_b128 {vr(R+32+8*r+4*(t-3))}, v16 offset:{r*5120 + 1024*t}')
    for t in (3, 4):
        A(f'ds_read_b128 {vr(R+56+4*(t-3))}, v17 offset:{1024*(t-3)}')
    for k in range(0, 8, 2):
        A(f'v_pk_add_f32 {vr(R+k,2)}, {vr(R+k,2)}, {vr(R+8+k,2)}')
    A('s_waitcnt lgkmcnt(8)\nv_mov_b32 v19, v18')
    for k in range(0, 8, 2):
        A(f'v_pk_add_f32 {vr(R+16+k,2)}, {vr(R+16+k,2)}, {vr(R+24+k,2)}')
    for k in range(0, 8, 2):
        A(f'v_pk_add_f32 {vr(R+k,2)}, {vr(R+k,2)}, {vr(R+16+k,2)}')
    A('s_waitcnt lgkmcnt(0)')
    for k in range(0, 8, 2):
        A(f'v_pk_fma_f32 {vr(R+k,2)}, {vr(R+k,2)}, v[18:19], {vr(R+56+k,2)}')
    for sl in range(3):
        for k in range(0, 8, 2):
            A(f'v_pk_add_f32 {vr(R+k,2)}, {vr(R+k,2)}, {vr(R+32+8*sl+k,2)}')
    for t in (3, 4):
        b = R + 4 * (t - 3)
        A(f'v_cvt_pk_bf16_f32 v{b}, v{b}, v{b+1}\nv_cvt_pk_bf16_f32 v{b+1}, v{b+2}, v{b+3}')
        A(f'buffer_store_dwordx2 {vr(b,2)}, v20, s[28:31], s55 offen offset:{32*t}')
    finish(A)


def gen(A):
    K = NAME + '_kernel'
    A(f'.globl {K}\n.p2align 8\n.type {K},@function\n{K}:')
    A('s_cmp_ge_u32 s2, 256\ns_cbranch_scc1 L_end')
    A('s_load_dwordx4 s[4:7], s[0:1], 0')
    A('s_load_dwordx4 s[8:11], s[0:1], 32')
    A('s_load_dwordx4 s[12:15], s[0:1], 48')
    A('s_load_dwordx2 s[16:17], s[0:1], 80')
    A.c('decode: s18 rb, s19 cq, s20 m, s21 wave, s22 gtype, s23 rbl, s55 is_gc')
    A('v_lshrrev_b32 v1, 6, v0\nv_and_b32 v2, 63, v0')
    A('s_bfe_u32 s23, s2, 0x10003\ns_and_b32 s18, s2, 7\ns_lshl_b32 s18, s18, 1\ns_add_u32 s18, s18, s23' if not MAP84 else 's_bfe_u32 s23, s2, 0x30003\ns_and_b32 s18, s2, 1\ns_lshl_b32 s18, s18, 3\ns_add_u32 s18, s18, s23')
    A('v_readfirstlane_b32 s21, v1')
    A('s_bfe_u32 s19, s2, 0x20004\ns_lshr_b32 s20, s2, 6' if not MAP84 else ('s_bfe_u32 s19, s2, 0x20001\ns_lshr_b32 s20, s2, 6' if not KVX else 's_bfe_u32 s20, s2, 0x20001\ns_lshr_b32 s19, s2, 6'))
    A('s_mul_i32 s22, s19, 3\ns_add_u32 s22, s22, s20\ns_sub_u32 s22, s22, 1')
    A('s_cmp_eq_u32 s22, 10\ns_cselect_b32 s55, 1, 0\ns_cmp_ge_i32 s22, 10\ns_cselect_b32 s91, 1, 0')
    if STAMP:
        A('v_mov_b32 v1, 0\ns_mov_b32 s100, 0\ns_mov_b32 s101, 0')
        stamp(A, 0); stamp_rt(A, 62)
    A('s_cmp_lt_u32 s21, 4\ns_cbranch_scc1 L_compute')
    gen_loader(A)
    gen_compute(A)
    A('L_end:\ns_endpgm')
    A('.p2align 7\nL_table:')
    for i in range(32):
        A(f'.long {i}')


def main(out):
    A = Asm()
    gen(A)
    K = NAME + '_kernel'
    hdr = open('cdna_kernels/' + NAME + '.s.ref').read().split('; Override')[0]
    txt = hdr + f'; @launch grid=(256,1,1) block=(512,1,1) lds={LDS_TOTAL}\n'
    txt += '.amdgcn_target "amdgcn-amd-amdhsa--gfx950"\n.text\n' + A.text()
    txt += f'''.section .rodata,"a"
.p2align 6
.amdhsa_kernel {K}
  .amdhsa_next_free_vgpr 256
  .amdhsa_next_free_sgpr 102
  .amdhsa_accum_offset 256
  .amdhsa_group_segment_fixed_size 0
  .amdhsa_kernarg_size 88
  .amdhsa_user_sgpr_count 2
  .amdhsa_user_sgpr_kernarg_segment_ptr 1
  .amdhsa_system_sgpr_workgroup_id_x 1
.end_amdhsa_kernel
'''
    open(out, 'w').write(txt)

if __name__ == '__main__':
    for a in sys.argv[2:]:
        k, v = a.split('=', 1)
        globals()[k] = eval(v)
    main(sys.argv[1] if len(sys.argv) > 1 else 'cdna_kernels/' + NAME + '.s')
```

```python
import sys

NAME = 'gated_mix__linear_attn_block__glu_gated_glu__prompt'

HB_OFF = 0
W2_OFF = 0x900000
M_OFF = 0xB00000
KVS = 3584
KVP_OFF = 0xC00000
G_OFF = 0xF00000
ZB_OFF = 0xF10000
FSH = 13
FG_OFF = 0xF40000
FP_OFF = 0xF60800
FM_OFF = 0xF81000
FW_OFF = 0xFA1800
STAMP_OFF = 0x1000000
WS_USED = 0x1100000
OOB = 0x7FFF0000

XSLOT = 16384; NX = 3
WBASE = NX * XSLOT
WSLOT = 20480; NW = 5
GWBASE = WBASE + NW * WSLOT
LDS_TOTAL = 163840
CT = 159744
P2_SCR = 0
RPK = GWBASE
CODEPF = True
EV = {1: (0, [(0, 3), (2, 15)]), 2: (1, [(1, 5), (3, 15)]), 3: (2, [(2, 7), (4, 15)])}
THIRD = 3
RPORD = (11, 1, 4, 7, 2, 5, 8, 0, 3, 6, 9, 10)
STAMP = False
GWS = 320
PRIO = 2
LSLEEP = 3
DEPTH = 2
EXP = ''
KVFAST = 1
WOAT = 2
KVN = 12
NOPF = 2
DIAG = None
DBGOUT = False
DEFER = False
BURST = 0
FINEG = True
GEARLY = 0
START2 = 0
RTS = False
WSM = 1
KVACK = True
R0LATE = False
L2PF = 0
KVPRE = 6
PAX = 2
ZM = 255
MACK = False
SPEC_M = True
NRC = 4
BST = True
PQ_AT = 3
NLEAD = 2
COOP_P = True
COOP_M = True
MK0 = 2
NPK = True
KVX = False
APRIO = 2
BPRIO = 0
MAP84 = True
LS = 'sc1'
LL = 'sc1'
KPRE = 6
LPS = 1
LP0 = 0
GPOLL = 'A'
GD = 8
KVG = 1
T1N = 6
PRETOUCH = False
STG_THR = 6
PSLEEP = 8
MSLEEP = 12
MDELAY = 64
GDELAY = 0
STG_EARLY = False
SPIN_MAX = 0x20000


class Asm:
    def __init__(self):
        self.L = []
        self.nl = 0
    def __call__(self, s):
        for line in s.split('\n'):
            line = line.strip()
            if line:
                self.L.append(line if line.endswith(':') else '    ' + line)
    def c(self, s):
        self.L.append('    ; ' + s)
    def label(self, p='L'):
        self.nl += 1
        return f'{p}_{self.nl}'
    def text(self):
        return '\n'.join(self.L) + '\n'


def vr(b, n=4):
    return f'v[{b}:{b+n-1}]'

def srd(A, d, lo, nbytes):
    A(f's_mov_b32 s{d}, s{lo}\ns_mov_b32 s{d+1}, s{lo+1}\ns_mov_b32 s{d+2}, {nbytes}\ns_mov_b32 s{d+3}, 0x20000')

def stamp(A, n):
    if STAMP:
        A(f'{"s_memrealtime" if RTS else "s_memtime"} s[98:99]\ns_waitcnt lgkmcnt(0)\nv_writelane_b32 v1, s98, {n}')
def stamp_rt(A, n):
    if STAMP:
        A(f's_memrealtime s[98:99]\ns_waitcnt lgkmcnt(0)\nv_writelane_b32 v1, s98, {n}')
def tbeg(A):
    if STAMP and 'quiet' not in EXP: A('s_memtime s[98:99]\ns_waitcnt lgkmcnt(0)\ns_mov_b32 s3, s98')
def tend(A, r):
    if STAMP and 'quiet' not in EXP: A(f's_memtime s[98:99]\ns_waitcnt lgkmcnt(0)\ns_sub_u32 s3, s98, s3\ns_add_u32 s{r}, s{r}, s3')
def finish(A):
    if STAMP:
        A('s_waitcnt vmcnt(0)')
        stamp(A, 61); stamp_rt(A, 63)
        A('v_writelane_b32 v1, s100, 59\nv_writelane_b32 v1, s101, 60')
        if DIAG:
            slot, mult = DIAG
            l = A.label('L_dg'); l2 = A.label('L_dg')
            A(f's_cmp_lg_u32 s21, 0\ns_cbranch_scc1 {l2}')
            A(f'v_readlane_b32 s48, v1, {slot}\nv_readlane_b32 s49, v1, 0\nv_readlane_b32 s50, v1, 61\ns_sub_u32 s48, s48, s49\ns_mul_i32 s48, s48, {mult}\ns_min_u32 s48, s48, 20000')
            A(f'{l}:\ns_memrealtime s[98:99]\ns_waitcnt lgkmcnt(0)\ns_sub_u32 s51, s98, s50\ns_cmp_lt_u32 s51, s48\ns_cbranch_scc1 {l}')
            A(f'{l2}:')
        A('s_mov_b64 exec, -1')
        A(f's_lshl_b32 s3, s2, 3\ns_add_u32 s3, s3, s21\ns_lshl_b32 s3, s3, 8\ns_add_u32 s3, s3, {STAMP_OFF}\nv_lshlrev_b32 v2, 2, v2')
        A('buffer_store_dword v1, v2, s[40:43], s3 offen')
        if DBGOUT:
            l = A.label('L_dbg')
            A(f's_cmp_lg_u32 s21, 0\ns_cbranch_scc1 {l}\ns_and_b32 s3, s2, 0xbf\ns_cmp_lg_u32 s3, 6\ns_cbranch_scc1 {l}')
            A('s_load_dwordx2 s[86:87], s[0:1], 72\ns_lshr_b32 s3, s2, 6\ns_mul_i32 s3, s3, 28\ns_add_u32 s3, s3, 8\ns_waitcnt lgkmcnt(0)\ns_mov_b64 exec, 1')
            for k, slot in enumerate((0, 2, 3, 5, 10, 12, 61)):
                A(f'v_readlane_b32 s48, v1, {slot}\nv_mov_b32 v3, s3\ns_nop 1\nv_mov_b32 v4, s48\nglobal_store_dword v3, v4, s[86:87] offset:{4*k}')
            A(f'{l}:')
    A('s_endpgm')

LOG2E = 0x3fb8aa3b
NLOG2E = 0xbfb8aa3b
EPS = 0x358637bd

ACC = 96; XF = 64; WF = 24
def acc(i, t): return ACC + 20 * i + 4 * t


THR = 0
def dma(A, m0expr, voff, sr, so):
    A(m0expr)
    A(f's_waitcnt vmcnt({THR-1})' if THR else 's_nop 0')
    A(f'buffer_load_dwordx4 v{voff}, s[{sr}:{sr+3}], s{so} offen lds')


def poll(A, soff, nl, vt, vaddr, sleep=None, first_sleep=False):
    l0 = A.label('L_poll'); l1 = A.label('L_polled')
    A('s_mov_b32 s90, 0')
    A(f's_mov_b64 exec, {hex((1 << nl) - 1)}' if nl <= 31 else f's_mov_b32 exec_lo, -1\ns_mov_b32 exec_hi, {hex((1 << (nl - 32)) - 1)}')
    A(f'{l0}:')
    A(f'buffer_load_dwordx2 {vr(vt,2)}, v{vaddr}, s[40:43], s{soff} offen sc1')
    A('s_waitcnt vmcnt(0)')
    A(f'v_cmp_ne_u64 vcc, s[88:89], {vr(vt,2)}')
    A(f's_cbranch_vccz {l1}')
    A(f's_sleep {PSLEEP if sleep is None else sleep}\ns_add_u32 s90, s90, 1\ns_cmp_lt_u32 s90, {SPIN_MAX}\ns_cbranch_scc1 {l0}')
    A(f'{l1}:')
    A('s_mov_b64 exec, -1')


def spoll(A, parts, sleep=2):
    l0 = A.label('L_sp'); l1 = A.label('L_spd')
    A('s_mov_b32 s96, 0')
    A(f'{l0}:')
    regs = []
    for so, imm, n, sb in parts:
        A(f's_load_dwordx{2*n} s[{sb}:{sb+2*n-1}], s[16:17], s{so} offset:{imm} glc')
        regs += [sb + 2 * k for k in range(n)]
    A('s_waitcnt lgkmcnt(0)')
    for r in regs:
        A(f's_xor_b64 s[{r}:{r+1}], s[{r}:{r+1}], s[88:89]')
    for r in regs[1:]:
        A(f's_or_b64 s[{regs[0]}:{regs[0]+1}], s[{regs[0]}:{regs[0]+1}], s[{r}:{r+1}]')
    A(f's_cbranch_scc0 {l1}')
    A(f's_sleep {sleep}\ns_add_u32 s96, s96, 1\ns_cmp_lt_u32 s96, {SPIN_MAX}\ns_cbranch_scc1 {l0}')
    A(f'{l1}:')


def set_flag(A, soff, vt):
    A(f'v_mov_b32 v{vt}, s88\nv_mov_b32 v{vt+1}, s89\nv_mov_b32 v{vt+2}, 0')
    A('s_waitcnt vmcnt(0)')
    A('s_mov_b64 exec, 1')
    A(f'buffer_store_dwordx2 {vr(vt,2)}, v{vt+2}, s[40:43], s{soff} offen sc1')
    A('s_mov_b64 exec, -1')


def table_srd(A, d):
    l = A.label('L_pc')
    A(f's_getpc_b64 s[{d}:{d+1}]\n{l}:\ns_add_u32 s{d}, s{d}, L_table-{l}\ns_addc_u32 s{d+1}, s{d+1}, 0\ns_movk_i32 s{d+2}, 128\ns_mov_b32 s{d+3}, 0x20000')


def lds_free(A, vaddr, vt, sdst):
    A(f'ds_read_b32 v{vt}, v{vaddr}\ns_waitcnt lgkmcnt(0)')
    A(f'v_readlane_b32 s{sdst}, v{vt}, 0\nv_readlane_b32 s48, v{vt}, 1\ns_min_u32 s{sdst}, s{sdst}, s48\nv_readlane_b32 s48, v{vt}, 2\ns_min_u32 s{sdst}, s{sdst}, s48\nv_readlane_b32 s48, v{vt}, 3\ns_min_u32 s{sdst}, s{sdst}, s48')


def lds_min4(A, vaddr, off, vt, sdst):
    A(f'ds_read_b128 {vr(vt)}, v{vaddr} offset:{off}\ns_waitcnt lgkmcnt(0)')
    A(f'v_min3_u32 v{vt}, v{vt}, v{vt+1}, v{vt+2}\nv_min_u32 v{vt}, v{vt}, v{vt+3}\ns_nop 0\nv_readfirstlane_b32 s{sdst}, v{vt}')


def lds_wait(A, vaddr, off, vt, need, four=True, sdst=90, sleep=1):
    l0 = A.label('L_lw'); l1 = A.label('L_lwd')
    if sleep in (2, 4): sleep *= WSM
    A('s_mov_b32 s96, 0')
    A(f'{l0}:')
    if four == 'free':
        lds_free(A, vaddr, vt, sdst)
    elif four:
        lds_min4(A, vaddr, off, vt, sdst)
    else:
        A(f'ds_read_b32 v{vt}, v{vaddr} offset:{off}\ns_waitcnt lgkmcnt(0)\nv_readfirstlane_b32 s{sdst}, v{vt}')
    A(f's_cmp_ge_i32 s{sdst}, {need}\ns_cbranch_scc1 {l1}')
    A(f's_sleep {sleep}\ns_add_u32 s96, s96, 1\ns_cmp_lt_u32 s96, {SPIN_MAX*16}\ns_cbranch_scc1 {l0}')
    A(f'{l1}:')


def lds_wait_mask(A, vaddr, off, vt, smask, sleep=2):
    l0 = A.label('L_mw'); l1 = A.label('L_mwd')
    A('s_mov_b32 s96, 0')
    A(f'{l0}:')
    A(f'ds_read_b32 v{vt}, v{vaddr} offset:{off}\ns_waitcnt lgkmcnt(0)\nv_readfirstlane_b32 s90, v{vt}')
    A(f's_andn2_b32 s90, {smask}, s90\ns_cbranch_scc0 {l1}')
    A(f's_sleep {sleep}\ns_add_u32 s96, s96, 1\ns_cmp_lt_u32 s96, {SPIN_MAX*16}\ns_cbranch_scc1 {l0}')
    A(f'{l1}:')


def mainloop(A, kv, tag):
    def upd_s():
        L = [f's_add_u32 s50, s50, {WSLOT}', f's_cmp_ge_u32 s50, {WBASE + NW*WSLOT}', f's_cselect_b32 s50, {WBASE}, s50']
        if not kv:
            L += ['s_add_u32 s52, s52, s53', 's_cmp_ge_u32 s52, s57', f's_cselect_b32 s52, {WBASE}, s52']
        return L
    def set_w():
        return [f'v_add_u32 v{15+t}, s50, v{10+t}' for t in range(4)] + [f'v_add_u32 v19, s{50 if kv else 52}, v14']
    def upd_blk():
        return [f's_add_u32 s51, s51, {XSLOT}', f's_cmp_ge_u32 s51, {NX*XSLOT}', 's_cselect_b32 s51, 0, s51']
    def set_x(par):
        return [f'v_add_u32 v{4+par}, s51, v{20+par}']
    def rdW(p, t, h):
        b = WF + 20 * p + 4 * t + 2 * h
        return f'ds_read_b64_tr_b16 {vr(b,2)}, v{15+t} offset:{512*h}'
    def rdX(i, par):
        return f'ds_read_b128 {vr(XF+4*i)}, v{4+par} offset:{2048*i}'
    def mfma(i, t, p):
        w = vr(WF + 20 * p + 4 * t); x = vr(XF + 4 * i); d = vr(acc(i, t))
        A(f'v_mfma_f32_16x16x32_bf16 {d}, {x}, {w}, {d}' if kv else f'v_mfma_f32_16x16x32_bf16 {d}, {w}, {x}, {d}')
    A(f's_mov_b32 s50, {WBASE}\ns_mov_b32 s51, 0\ns_mov_b32 s54, 0')
    if not kv:
        A(f's_cmp_lg_u32 s55, 0\ns_cselect_b32 s52, {GWBASE}, s50\ns_movk_i32 s53, {WSLOT}\ns_cselect_b32 s53, {GWS}, s53\ns_mov_b32 s57, {WBASE + NW*WSLOT}\ns_cselect_b32 s57, -1, s57')
    for l in set_w() + set_x(0) + set_x(1):
        A(l)
    A(f'v_mov_b32 v3, {CT}\ns_lshl_b32 s48, s21, 8\ns_add_u32 m0, s48, {CT+256}\nv_mov_b32 v0, {OOB}\nv_writelane_b32 v0, 0, 0')
    table_srd(A, 44)
    stamp(A, 1)
    lds_wait(A, 3, 0, 6, 1, sdst=59)
    A('s_waitcnt vmcnt(0)')
    A(f's_setprio {PRIO}')
    stamp(A, 2)
    for t in range(5):
        A(rdW(0, t, 0)); A(rdW(0, t, 1))
    A('s_waitcnt lgkmcnt(6)')
    for i in range(8):
        A(rdX(i, 0))
    for l in upd_s() + set_w():
        A(l)
    A('s_mov_b32 s58, 2\ns_cmp_ge_i32 s59, s58')
    A(f's_cbranch_scc0 L_{tag}_slow0')
    A('.p2align 3')
    for p in range(2):
        gap = {k: [] for k in range(40)}
        for i in range(5):
            gap[5*i].append(rdW(1 - p, i, 0)); gap[5*i + 2].append(rdW(1 - p, i, 1))
        for i in range(8):
            gap[5*i + 4].append(rdX(i, 1 - p))
        gap[9].append('s_waitcnt lgkmcnt(6)')
        gap[1].append('s_add_u32 s54, s54, 4')
        gap[11].append('buffer_load_dword v0, s[44:47], s54 offen lds')
        gap[6].append('s_add_u32 s58, s58, 1'); gap[8].append('s_min_u32 s58, s58, 20')
        sal = upd_s() + (upd_blk() if p == 0 else [])
        for k in (13, 13, 16, 16, 18, 18, 21, 21, 23):
            if sal: gap[k].append(sal.pop(0))
        assert not sal
        gap[23].append('ds_read_b128 v[6:9], v3')
        for k, l in zip((25, 26, 27, 28, 30, 31), set_w() + set_x(p)):
            gap[k].append(l)
        gap[32].append('s_waitcnt lgkmcnt(2)'); gap[32].append('v_min3_u32 v6, v6, v7, v8')
        gap[33].append('v_min_u32 v6, v6, v9')
        gap[35].append('v_readfirstlane_b32 s59, v6')
        if p == 1:
            gap[36].append('s_cmp_lt_u32 s54, 80'); gap[37].append(f's_cbranch_scc0 L_{tag}_last')
        gap[38].append('s_cmp_ge_i32 s59, s58' if 'nowait' not in EXP else 's_cmp_eq_u32 s59, s59')
        if 'novalu' in EXP:
            for k in gap: gap[k] = [l for l in gap[k] if not l.startswith('v_')]
        if 'nods' in EXP:
            for k in gap: gap[k] = [l for l in gap[k] if not l.startswith('ds_')]
        if 'nosalu' in EXP:
            for k in gap: gap[k] = [l for l in gap[k] if not (l.startswith('s_') and 13 <= k <= 23)]
        if 'noctl' in EXP:
            for k in gap: gap[k] = [l for l in gap[k] if not (' v6' in l or 'v[6:9]' in l)]
        if 'nowr' in EXP:
            for k in gap: gap[k] = [l for l in gap[k] if not l.startswith('ds_write')]
        if 'now32' in EXP:
            gap[32] = [l for l in gap[32] if not l.startswith('s_waitcnt')]
        if 'nopub' in EXP: pass
        if p == 0:
            A(f'L_{tag}_go0:')
        else:
            A(f's_cbranch_scc0 L_{tag}_slow1')
            A(f'L_{tag}_go1:')
        A('s_waitcnt lgkmcnt(2)')
        for i in range(8):
            for t in range(5):
                mfma(i, t, p)
                for l in gap[5*i + t]: A(l)
    A(f's_cbranch_scc1 L_{tag}_go0')
    for p in range(2):
        A(f'L_{tag}_slow{p}:')
        tbeg(A)
        lds_wait(A, 3, 0, 6, 's58', sdst=59)
        tend(A, 100)
        if STAMP: A('s_add_u32 s101, s101, 1')
        A(f's_branch L_{tag}_go{p}')
    A(f'L_{tag}_last:')
    mfma(7, 3, 1); mfma(7, 4, 1)
    A('s_waitcnt lgkmcnt(0)')
    stamp(A, 3)
    A('s_nop 6')
    if 'p1' in EXP: finish(A)


def phi_q(A, b, t, dst=None):
    dst = b if dst is None else dst
    A(f'v_pk_mul_f32 {vr(t,2)}, {vr(b,2)}, s[60:61]\nv_pk_mul_f32 {vr(t+2,2)}, {vr(b+2,2)}, s[60:61]')
    for j in range(4):
        A(f'v_exp_f32 v{t+j}, v{t+j} clamp')
    for j in range(4):
        A(f'v_max_f32 v{dst+j}, s66, v{b+j}')
    A(f'v_pk_add_f32 {vr(dst,2)}, {vr(dst,2)}, {vr(t,2)}\nv_pk_add_f32 {vr(dst+2,2)}, {vr(dst+2,2)}, {vr(t+2,2)}')


def gen_compute(A):
    A('L_compute:')
    if CODEPF:
        A('s_cmp_lg_u32 s21, 0\ns_cbranch_scc1 L_nocpf')
        A(f's_getpc_b64 s[44:45]\nL_pc:\ns_sub_u32 s44, s44, L_pc-{NAME}_kernel\ns_subb_u32 s45, s45, 0\ns_mov_b32 s46, L_end-{NAME}_kernel\ns_mov_b32 s47, 0x20000')
        A('s_lshr_b32 s48, s2, 3\ns_lshl_b32 s48, s48, 11\nv_lshlrev_b32 v3, 7, v2\ns_mov_b64 exec, 0xffff')
        A('buffer_load_dword v95, v3, s[44:47], s48 offen\ns_mov_b64 exec, -1')
        A('L_nocpf:')
    A('s_barrier')
    A.c('compute wave setup: v3=q v4=r v5=c v6=f<<5 v7=rowpart')
    for r in range(ACC, 256, 2):
        A(f'v_mov_b64 {vr(r,2)}, 0')
    A('v_lshrrev_b32 v3, 4, v2\nv_bfe_u32 v4, v2, 2, 2\nv_and_b32 v5, 3, v2')
    A('v_lshrrev_b32 v6, 1, v4\nv_and_b32 v8, 1, v3\nv_lshl_add_u32 v6, v8, 1, v6\nv_lshlrev_b32 v6, 5, v6')
    A('v_mul_u32_u24 v7, 5120, v3\nv_lshl_add_u32 v7, v4, 7, v7')
    A('v_and_b32 v8, 15, v2\nv_lshrrev_b32 v9, 1, v8\nv_xor_b32 v9, v9, v3\nv_lshlrev_b32 v9, 4, v9\nv_lshl_add_u32 v20, v8, 7, v9\nv_xor_b32 v21, 64, v20')
    A(f's_mov_b32 s60, {LOG2E}\ns_mov_b32 s61, {LOG2E}\ns_mov_b32 s62, {NLOG2E}\ns_mov_b32 s63, {NLOG2E}')
    A(f's_mov_b32 s64, 1.0\ns_mov_b32 s65, 1.0\ns_mov_b32 s66, {EPS}')
    A('s_waitcnt lgkmcnt(0)')
    srd(A, 40, 16, WS_USED)
    if PRETOUCH:
        A('s_cmp_lg_u32 s21, 1\ns_cbranch_scc1 L_nopt')
        A('s_load_dwordx2 s[28:29], s[0:1], 64\ns_load_dwordx2 s[32:33], s[0:1], 16\ns_mov_b32 s30, 2621440\ns_mov_b32 s31, 0x20000\ns_mov_b32 s34, 819200\ns_mov_b32 s35, 0x20000')
        srd(A, 36, 12, 1966080)
        A('v_lshlrev_b32 v8, 18, v2\nv_lshlrev_b32 v9, 16, v2')
        A('buffer_load_dword v92, v8, s[40:43], 0 offen\nbuffer_load_dword v93, v9, s[36:39], 0 offen\ns_waitcnt lgkmcnt(0)')
        A('buffer_load_dword v94, v9, s[28:31], 0 offen\nbuffer_load_dword v95, v9, s[32:35], 0 offen')
        A('L_nopt:')
    A('s_cmp_eq_u32 s20, 0\ns_cbranch_scc1 L_kv')

    A('s_lshr_b32 s48, s21, 1\ns_lshl_b32 s48, s48, 10\ns_and_b32 s49, s21, 1\ns_lshl_b32 s49, s49, 3')
    A('v_add_u32 v8, s49, v5\nv_lshlrev_b32 v8, 3, v8\nv_xor_b32 v9, v8, v6\nv_add3_u32 v10, v9, v7, s48')
    A('v_add_u32 v8, 32, v8\nv_xor_b32 v9, v8, v6\nv_add3_u32 v11, v9, v7, s48')
    A('v_add_u32 v12, 2048, v10\nv_add_u32 v13, 2048, v11')
    A('s_lshl_b32 s49, s21, 2\nv_add_u32 v8, s49, v5\nv_lshlrev_b32 v8, 3, v8\nv_xor_b32 v9, v8, v6\nv_add_u32 v14, v9, v7\nv_add_u32 v14, 4096, v14')
    A('s_cmp_eq_u32 s55, 0\ns_cbranch_scc1 L_g_notgc')
    A('v_lshlrev_b32 v14, 5, v3\nv_lshl_add_u32 v14, v4, 3, v14')
    A('L_g_notgc:')
    A('v_lshlrev_b32 v22, 4, v2')
    A(f's_mul_i32 s72, s18, {2*68*4096}\ns_add_u32 s73, s72, {68*4096}')
    A('s_lshl_b32 s48, s22, 2\ns_add_u32 s48, s48, s21\ns_lshl_b32 s49, s48, 12\ns_add_u32 s70, s72, s49\ns_add_u32 s71, s73, s49')
    A(f's_lshl_b32 s74, s18, {FSH}\ns_lshl_b32 s49, s48, 3\ns_add_u32 s74, s74, s49\ns_add_u32 s74, s74, {FG_OFF}')
    A('s_lshl_b32 s48, s48, 2\nv_add_u32 v5, s48, v3')
    A('v_mul_u32_u24 v6, 6554, v5\nv_lshrrev_b32 v6, 16, v6\nv_mul_u32_u24 v7, 10, v6\nv_sub_u32 v7, v5, v7')
    A('v_lshrrev_b32 v8, 2, v6\nv_and_b32 v6, 3, v6')
    A('v_mul_u32_u24 v8, 5, v8\nv_lshrrev_b32 v9, 1, v7\nv_add3_u32 v8, v8, v9, 48\nv_lshlrev_b32 v8, 12, v8')
    A('v_and_b32 v9, 15, v2\nv_lshl_add_u32 v9, v6, 4, v9\nv_lshl_add_u32 v8, v9, 4, v8')
    A('v_and_b32 v7, 1, v7\nv_lshl_add_u32 v23, v7, 10, v8')
    mainloop(A, False, 'g')
    A.c('h = u * sigmoid(g)')
    hst = []; pst = []
    for i in range(8):
        g = acc(i, 0); u = acc(i, 2)
        for j in range(4):
            A(f'v_pk_mul_f32 {vr(g+2*j,2)}, {vr(g+2*j,2)}, s[62:63]')
        for j in range(8):
            A(f'v_exp_f32 v{g+j}, v{g+j}')
        for j in range(4):
            A(f'v_pk_add_f32 {vr(g+2*j,2)}, {vr(g+2*j,2)}, s[64:65]')
        for j in range(8):
            A(f'v_rcp_f32 v{g+j}, v{g+j}')
        for j in range(4):
            A(f'v_pk_mul_f32 {vr(u+2*j,2)}, {vr(u+2*j,2)}, {vr(g+2*j,2)}')
        for j in range(4):
            A(f'v_cvt_pk_bf16_f32 v{g+j}, v{u+2*j}, v{u+2*j+1}')
        hst.append(f'buffer_store_dwordx4 {vr(g)}, v22, s[40:43], s{70 + (i>>2)} offen offset:{(i&3)*1024} {LS}')
        if not BURST: A(hst.pop())
    if BURST == 1:
        for l in hst: A(l)
        hst = []
    A('s_cmp_lg_u32 s91, 0\ns_cbranch_scc1 L_gc_epi')
    A.c('pq = phi(q)')
    for i in range(0, 8, 2):
        a0 = acc(i, 4); b0 = acc(i + 1, 4)
        phi_q(A, a0, 24 + 8 * ((i >> 1) & 1))
        phi_q(A, b0, 28 + 8 * ((i >> 1) & 1))
        A(f'v_cvt_pk_bf16_f32 v{a0}, v{a0}, v{a0+1}\nv_cvt_pk_bf16_f32 v{a0+1}, v{a0+2}, v{a0+3}')
        A(f'v_cvt_pk_bf16_f32 v{a0+2}, v{b0}, v{b0+1}\nv_cvt_pk_bf16_f32 v{a0+3}, v{b0+2}, v{b0+3}')
        A('s_nop 1')
        A(f'v_permlane16_swap_b32 v{a0}, v{a0+2}\nv_permlane16_swap_b32 v{a0+1}, v{a0+3}')
        pst.append(f'buffer_store_dwordx4 {vr(a0)}, v23, s[40:43], s{72 + (i>>2)} offen offset:{(i&3)*1024} {LS}')
        if BURST != 2: A(pst.pop())
    for l in hst + pst: A(l)
    A('s_branch L_p1_done')
    A('L_gc_epi:')
    for l in hst: A(l)
    A.c('gate g = sigmoid(logit); stored by gtype 10, wave 0')
    A('v_and_b32 v8, 15, v2\nv_lshlrev_b32 v8, 2, v8')
    A(f's_lshl_b32 s48, s18, 9\ns_add_u32 s48, s48, {G_OFF}\ns_lshl_b32 s49, s22, 2\ns_add_u32 s49, s49, s21')
    A(f's_cmp_eq_u32 s49, 40\ns_cselect_b32 s48, s48, {OOB}')
    for i in range(8):
        A(f'v_mul_f32 v{acc(i,4)}, s62, v{acc(i,4)}')
    for i in range(8):
        A(f'v_exp_f32 v{acc(i,4)}, v{acc(i,4)}')
    for i in range(8):
        A(f'v_add_f32 v{acc(i,4)}, 1.0, v{acc(i,4)}')
    for i in range(8):
        A(f'v_rcp_f32 v{acc(i,4)}, v{acc(i,4)}')
    A('s_nop 0\ns_mov_b64 exec, 0xffff')
    for i in range(8):
        A(f'buffer_store_dword v{acc(i,4)}, v8, s[40:43], s48 offen offset:{64*i} {LS}')
    A('s_mov_b64 exec, -1')
    A('s_branch L_p1_done')

    A('L_kv:')
    A('s_mul_i32 s48, s21, 10\ns_and_b32 s49, s19, 1\ns_lshl_b32 s49, s49, 3\ns_sub_u32 s48, s48, s49')
    def kvaddr(dst, u, isv):
        A(f'v_add_u32 v9, 40, {u}\nv_cmp_gt_i32 vcc, 0, {u}\ns_nop 1\nv_cndmask_b32 v8, {u}, v9, vcc')
        A(f'v_lshrrev_b32 v9, 4, v8\nv_lshl_add_u32 v9, {isv}, 1, v9\nv_and_b32 v23, 15, v8')
        A(f'v_lshl_add_u32 v22, {isv}, 3, v23')
        A('v_cmp_gt_u32 vcc, 32, v8\ns_nop 1\nv_cndmask_b32 v9, 4, v9, vcc\nv_cndmask_b32 v23, v22, v23, vcc')
        A(f'v_lshlrev_b32 v23, 3, v23\nv_xor_b32 v23, v23, v6\nv_lshlrev_b32 v22, 4, {isv}\nv_xor_b32 v23, v23, v22')
        A(f'v_lshl_add_u32 v23, v9, 10, v23\nv_add_u32 v{dst}, v23, v7')
    A('v_mov_b32 v16, 0\nv_mov_b32 v17, 1\nv_add_u32 v15, s48, v5')
    kvaddr(10, 'v15', 'v16'); kvaddr(12, 'v15', 'v17')
    A('v_add_u32 v15, 5, v15')
    kvaddr(11, 'v15', 'v16'); kvaddr(13, 'v15', 'v17')
    A('v_and_b32 v15, 1, v5\nv_mul_u32_u24 v15, 5, v15\nv_add3_u32 v15, v15, s48, 4\nv_lshrrev_b32 v16, 1, v5')
    kvaddr(14, 'v15', 'v16')
    A('v_lshlrev_b32 v22, 4, v2\nv_lshlrev_b32 v23, 4, v3')
    A('v_and_b32 v8, 15, v2\nv_cmp_gt_u32 s[68:69], 8, v8')
    A(f's_lshl_b32 s48, s19, 2\ns_add_u32 s48, s48, s21\ns_lshl_b32 s48, s48, 4\ns_add_u32 s48, s48, s18\ns_mul_i32 s70, s48, {KVS}\ns_add_u32 s70, s70, {KVP_OFF}')
    prods = [(0, 0), (1, 1), (2, 0), (2, 1), (0, 2), (1, 2), (2, 2)]
    A(f's_lshr_b32 s71, s21, 1\ns_mul_i32 s71, s71, {RPK - 40960}\ns_and_b32 s49, s21, 1\ns_lshl_b32 s49, s49, 12\ns_add_u32 s71, s71, s49\ns_add_u32 s71, s71, 40960')
    A('v_mul_u32_u24 v23, 5, v8\nv_add_u32 v23, v23, v3\nv_lshlrev_b32 v23, 4, v23\nv_add_u32 v23, s71, v23')
    mainloop(A, True, 'kv')
    A.c('KV epilogue')
    A('v_mov_b32 v12, 0x3f803f80\nv_mov_b32 v13, v12\nv_mov_b32 v14, v12\nv_mov_b32 v15, v12')
    KT = {0: 0, 1: 1, 2: 4}; VT = {0: 2, 1: 3, 2: 4}
    PR = 24
    pend = []
    def flush(k):
        for _ in range(k):
            if pend: A(pend.pop(0))
    for kk in range(4):
        n = 0
        for i in (2 * kk, 2 * kk + 1):
            for t in (0, 1):
                phi_q(A, acc(i, t), 64 + 4 * (n % 4)); n += 1
                flush(2)
            b = acc(i, 4); s = 80 + 4 * (i & 1)
            phi_q(A, b, 64 + 4 * (n % 4), s); n += 1
            for j in range(4):
                A(f'v_cndmask_b32 v{b+j}, v{b+j}, v{s+j}, s[68:69]')
            flush(1)
        assert not pend
        for t in range(5):
            a = acc(2 * kk, t); b = acc(2 * kk + 1, t)
            A(f'v_cvt_pk_bf16_f32 v{a}, v{a}, v{a+1}\nv_cvt_pk_bf16_f32 v{a+1}, v{a+2}, v{a+3}')
            A(f'v_cvt_pk_bf16_f32 v{a+2}, v{b}, v{b+1}\nv_cvt_pk_bf16_f32 v{a+3}, v{b+2}, v{b+3}')
        for n, (tv, tk) in enumerate(prods):
            d = vr(PR + 4 * n)
            pend.append(f'v_mfma_f32_16x16x32_bf16 {d}, {vr(acc(2*kk,VT[tv]))}, {vr(acc(2*kk,KT[tk]))}, {d if kk else 0}')
        for tk in range(3):
            d = vr(52 + 4 * tk)
            pend.append(f'v_mfma_f32_16x16x32_bf16 {d}, {vr(acc(2*kk,KT[tk]))}, v[12:15], {d if kk else 0}')
    A('s_nop 1')
    flush(10)
    get_epoch(A, 3, 6)
    A(f'v_and_b32 v9, 3, v2\nv_lshlrev_b32 v9, 8, v9\nv_add_u32 v9, {CT+256}, v9')
    lds_wait(A, 9, 0, 8, 18, four='free', sleep=1)
    HB_ = 1792
    wr = [(0, None, 0), (1, None, HB_), (2, (0, 0xffff), 32), (3, (0, 0xffff0000), HB_ + 16), (4, (0x000f000f, 0x000f000f), 1280),
          (5, (0x00f000f0, 0x00f000f0), HB_ + 960), (6, (0, 0x0000000f), 1280 + 32), (6, (0, 0x00f00000), HB_ + 960 + 16),
          (7, (0x00010001, 0x00010001), 1600), (8, (0x00010001, 0x00010001), HB_ + 1600), (9, (1, 0), 1664), (9, (0x10000, 0), HB_ + 1648)]
    for n, m, off in wr:
        if m: A(f's_mov_b32 exec_lo, {hex(m[0])}\ns_mov_b32 exec_hi, {hex(m[1])}')
        A(f'ds_write_b128 v23, {vr(PR+4*n)} offset:{off}')
    A('s_mov_b64 exec, -1\nv_add_u32 v9, s71, v22')
    for i in range(4):
        A(f'ds_read_b128 {vr(64+4*i)}, v9 offset:{1024*i}')
    A('s_and_b32 s76, s88, 0xfff\ns_bfe_u32 s77, s88, 0xc000c\ns_lshr_b64 s[78:79], s[88:89], 24\ns_xor_b32 s78, s78, s88\ns_bfe_u32 s79, s78, 0xc000c\ns_and_b32 s78, s78, 0xfff')
    A('v_mov_b32 v6, 0xfffff000')
    for i in range(4):
        A(f's_waitcnt lgkmcnt({3-i})')
        for r in range(64 + 4 * i, 68 + 4 * i):
            A(f'v_and_or_b32 v{r}, v{r}, v6, s{76 + (r & 3)}')
        if i == 3: A('s_mov_b32 exec_hi, 0')
        A(f'buffer_store_dwordx4 {vr(64+4*i)}, v22, s[40:43], s70 offen offset:{1024*i} sc1')
    A('s_mov_b64 exec, -1')
    A('L_p1_done:')
    stamp(A, 4)
    gen_awave(A)


def p2_ids(A):
    A('s_and_b32 s18, s2, 7\ns_lshl_b32 s18, s18, 2\ns_lshr_b32 s48, s2, 6\ns_add_u32 s18, s18, s48')
    A('s_bfe_u32 s19, s2, 0x30003')


def gpoll(A, soff, vt):
    l0 = A.label('L_gp'); l1 = A.label('L_gs'); l2 = A.label('L_gd')
    A('s_mov_b32 s96, 0\ns_mov_b32 s75, 0')
    A(f'{l0}:')
    A(f's_mov_b32 exec_hi, 0xffff\nbuffer_load_dwordx2 {vr(vt,2)}, v6, s[40:43], s{soff} offen sc1\ns_waitcnt vmcnt(0)\nv_cmp_ne_u64 vcc, s[88:89], {vr(vt,2)}\ns_mov_b32 exec_hi, -1')
    A('s_mov_b32 s74, 0')
    for g in range(4):
        A(f's_bfe_u64 s[76:77], vcc, {hex((12 << 16) | (12 * g))}\ns_cselect_b32 s48, 0, {1 << g}\ns_or_b32 s74, s74, s48')
    A(f's_cmp_eq_u32 s74, s75\ns_cbranch_scc1 {l1}')
    A(f's_mov_b32 s75, s74\nv_mov_b32 v{vt}, s74\ns_mov_b64 exec, 1\nds_write_b32 v0, v{vt} offset:64\ns_mov_b64 exec, -1')
    A(f'{l1}:')
    A(f's_cmp_eq_u32 s74, 15\ns_cbranch_scc1 {l2}')
    A(f's_sleep {PSLEEP}\ns_add_u32 s96, s96, 1\ns_cmp_lt_u32 s96, {SPIN_MAX}\ns_cbranch_scc1 {l0}')
    A(f'{l2}:')


def get_epoch(A, vct, vt):
    l0 = A.label('L_ep')
    A('s_mov_b32 s96, 0')
    A(f'{l0}:')
    A(f'ds_read_b64 {vr(vt,2)}, v{vct} offset:32\ns_waitcnt lgkmcnt(0)\nv_readfirstlane_b32 s88, v{vt}\nv_readfirstlane_b32 s89, v{vt+1}')
    A(f's_add_u32 s96, s96, 1\ns_cmp_eq_u32 s88, 0\ns_cselect_b32 s48, s96, -1\ns_cmp_lt_u32 s48, {SPIN_MAX*16}\ns_cbranch_scc1 {l0}')


def phase_a(A):
    WOI = 0; HS = 0; HSTR = 5120
    A('v_lshrrev_b32 v3, 4, v2\nv_and_b32 v4, 15, v2')
    A('s_mul_i32 s70, s21, 5120')
    A('s_lshr_b32 s50, s18, 1\ns_and_b32 s51, s18, 1')
    A(f's_mul_i32 s48, s51, 1792\nv_add_u32 v10, s48, v5\nv_add_u32 v11, 1024, v10\nv_mov_b32 v15, {OOB}\nv_cmp_lt_u32 vcc, 40, v2\ns_nop 1\nv_cndmask_b32 v11, v11, v15, vcc')
    A('v_mov_b32 v19, v5\nv_add_u32 v20, 1024, v5\nv_mul_u32_u24 v21, 80, v4\nv_lshl_add_u32 v12, v3, 5, v21\nv_lshlrev_b32 v13, 3, v4')
    A('v_bfe_u32 v14, v2, 2, 2\nv_lshl_add_u32 v14, v3, 3, v14\nv_mul_u32_u24 v14, 160, v14\nv_and_b32 v15, 3, v2\nv_lshl_add_u32 v14, v15, 3, v14\nv_add_u32 v14, s70, v14')
    A(f'v_add_u32 v19, s70, v19\nv_add_u32 v20, s70, v20\ns_mul_i32 s48, s51, 5120\nv_add_u32 v12, s48, v12\nv_add_u32 v13, s48, v13')
    A('v_cmp_gt_u32 s[60:61], 3, v3\nv_cmp_gt_u32 s[62:63], 2, v3\nv_cmp_gt_u32 s[64:65], 41, v2')
    A(f's_mul_i32 s48, s51, 5\ns_lshr_b32 s49, s21, 1\ns_mul_i32 s49, s49, {RPK - 40960}\ns_add_u32 s49, s49, 40960')
    for mt in range(2):
        A(f'v_add3_u32 v15, v3, s48, {4*mt}\nv_lshrrev_b32 v16, 1, v15\nv_mul_u32_u24 v16, 1280, v16\nv_and_b32 v15, 1, v15\nv_lshl_add_u32 v16, v15, 3, v16')
        A(f'v_lshl_add_u32 v16, v4, 4, v16\nv_add_u32 v{17+mt}, s49, v16')
    A('s_mul_i32 s48, s51, 40\ns_add_u32 s48, s48, s49\ns_add_u32 s48, s48, 6400\nv_lshlrev_b32 v22, 2, v2\nv_add_u32 v22, s48, v22')
    A('s_mul_i32 s48, s51, 3328\ns_add_u32 s48, s48, s49\nv_add_u32 v21, s48, v5\nv_lshlrev_b32 v15, 10, v3\nv_lshl_add_u32 v15, v4, 4, v15')
    A(f's_lshr_b32 s48, s18, 3\ns_mul_i32 s48, s48, 5\ns_mul_i32 s49, s19, 20\ns_add_u32 s48, s48, s49\ns_mul_i32 s48, s48, 5120\ns_and_b32 s49, s50, 3\ns_lshl_b32 s49, s49, 8\ns_add_u32 s48, s48, s49')
    A(f's_mul_i32 s49, s51, 13312\ns_add_u32 s48, s48, s49\ns_add_u32 s55, s48, {M_OFF}\ns_add_u32 s56, s55, 4096\ns_add_u32 s57, s55, 8192\ns_add_u32 s48, s55, 12288')
    A(f's_lshl_b32 s54, s19, 11\ns_lshl_b32 s49, s50, 7\ns_add_u32 s54, s54, s49\ns_add_u32 s54, s54, {ZB_OFF}')
    A(f's_cmp_eq_u32 s51, 0\ns_cselect_b32 s54, s48, s54\ns_movk_i32 s48, {ZM}\ns_cselect_b32 s58, 0xffff, s48\ns_mov_b32 s59, 0')
    A('s_and_b32 s76, s88, 0xfff\ns_bfe_u32 s77, s88, 0xc000c\ns_lshr_b64 s[78:79], s[88:89], 24\ns_xor_b32 s78, s78, s88\ns_bfe_u32 s79, s78, 0xc000c\ns_and_b32 s78, s78, 0xfff')
    A(f's_mul_i32 s52, s50, {16*KVS}\ns_lshr_b32 s49, s21, 1\ns_mul_i32 s49, s49, {8*KVS}\ns_add_u32 s52, s52, s49\ns_add_u32 s52, s52, {KVP_OFF}')
    A(f's_lshl_b32 s48, s21, 2\nv_add_u32 v23, s48, v0\nv_mov_b32 v244, 1\nv_mov_b32 v245, 2\nv_mov_b32 v246, 3')
    lds_wait(A, 23, 112, 248, 1, four=False, sleep=1)
    for t in range(5):
        A(f'ds_read_b64_tr_b16 {vr(224+4*t,2)}, v14 offset:{32*t}\nds_read_b64_tr_b16 {vr(226+4*t,2)}, v14 offset:{32*t + 640}')
    stamp(A, 25)
    lds_wait(A, 0, 72, 248, 1, four=False, sleep=2)
    if KVACK: A('s_waitcnt vmcnt(0)')
    if GDELAY: A(f's_sleep {GDELAY}')
    stamp(A, 26)
    A('s_mov_b32 s96, 0')
    A('L_pa_gather:')
    for p in range(8):
        if PAX:
            A(f's_lshl_b32 s53, s69, 1\ns_add_u32 s53, s53, {p}\ns_and_b32 s53, s53, 7\ns_mul_i32 s53, s53, {KVS}\ns_add_u32 s53, s53, s52')
            if p == 2 and PAX == 2: A('s_waitcnt vmcnt(0)')
        else:
            A(f's_add_u32 s53, s52, {KVS*p}')
        for ldi in range(2):
            A(f'buffer_load_dwordx4 {vr(24 + 8*p + 4*ldi)}, v{10+ldi}, s[40:43], s53 offen sc1')
    for p in range(8):
        A(f's_waitcnt vmcnt({2*(7-p)})')
        for r in range(24 + 8 * p, 32 + 8 * p):
            A(f'v_xor_b32 v{r}, s{76 + (r & 3)}, v{r}')
        for ldi in range(2):
            r = 24 + 8 * p + 4 * ldi; d = 8 + ldi
            if p == 0:
                A(f'v_or3_b32 v{d}, v{r}, v{r+1}, v{r+2}\nv_or_b32 v{d}, v{d}, v{r+3}')
            else:
                A(f'v_or3_b32 v{d}, v{d}, v{r}, v{r+1}\nv_or3_b32 v{d}, v{d}, v{r+2}, v{r+3}')
        if p:
            for j in range(0, 8, 2):
                A(f'v_pk_add_f32 {vr(24+j,2)}, {vr(24+j,2)}, {vr(24+8*p+j,2)}')
    A('v_cndmask_b32 v9, 0, v9, s[64:65]\nv_or_b32 v8, v8, v9\nv_and_b32 v8, 0xfff, v8\nv_cmp_ne_u32 vcc, 0, v8')
    A('s_cbranch_vccz L_pa_got')
    stamp(A, 35)
    A(f's_sleep {PSLEEP}\ns_add_u32 s96, s96, 1\ns_cmp_lt_u32 s96, {SPIN_MAX}\ns_cbranch_scc1 L_pa_gather')
    A('L_pa_got:')
    if STAMP: A('v_writelane_b32 v1, s96, 36')
    stamp(A, 27)
    A('ds_write_b128 v19, v[24:27]\nds_write_b128 v20, v[28:31]')
    A('s_mov_b64 exec, 1\nds_write_b32 v23, v244 offset:80\ns_mov_b64 exec, -1')
    lds_wait(A, 0, 80, 248, 1, sleep=0)
    stamp(A, 28)
    for w in range(2):
        for mt in range(2):
            A(f'ds_read_b128 {vr(24+20*w+8*mt)}, v12 offset:{2*w*HSTR + 1280*mt}\nds_read_b128 {vr(28+20*w+8*mt)}, v12 offset:{2*w*HSTR + 1280*mt + 16}')
        A(f'ds_read_b64 {vr(40+20*w,2)}, v13 offset:{2*w*HSTR + 1600}')
    A('s_waitcnt lgkmcnt(0)')
    for j in range(0, 18, 2):
        A(f'v_pk_add_f32 {vr(24+j,2)}, {vr(24+j,2)}, {vr(44+j,2)}')
    for mt in range(2):
        b = 24 + 8 * mt
        for j in range(4):
            A(f'v_cvt_pk_bf16_f32 v{b+j}, v{b+2*j}, v{b+2*j+1}')
        for j in range(4):
            A(f'v_cndmask_b32 v{b+j}, 0, v{b+j}, {"s[60:61]" if j < 2 else "s[62:63]"}')
    A('v_cvt_pk_bf16_f32 v40, v40, v41\ns_nop 0')
    for mt in range(2):
        for t in range(5):
            A(f'v_mfma_f32_16x16x32_bf16 {vr(64+20*mt+4*t)}, {vr(24+8*mt)}, {vr(224+4*t)}, 0')
    A('s_mov_b64 exec, 0x3ff\nds_write_b32 v22, v40\ns_mov_b64 exec, -1\ns_nop 0')
    for mt in range(2):
        if mt == 1: A('s_mov_b64 exec, 0xffff')
        for t in range(5):
            b = 64 + 20 * mt + 4 * t
            A(f'v_cvt_pk_bf16_f32 v{b}, v{b}, v{b+1}\nv_cvt_pk_bf16_f32 v{b+1}, v{b+2}, v{b+3}')
            A(f'ds_write_b64 v{17+mt}, {vr(b,2)} offset:{256*t}')
    A('s_mov_b64 exec, 1\nds_write_b32 v23, v245 offset:80\ns_mov_b64 exec, -1')
    lds_wait(A, 0, 80, 248, 2, sleep=0)
    for i in range(4):
        A(f'ds_read_b128 {vr(24+4*i)}, v21 offset:{1024*i}')
    for i in range(3):
        A(f's_waitcnt lgkmcnt({3-i})\nbuffer_store_dwordx4 {vr(24+4*i)}, v15, s[40:43], s{55+i} offen sc1')
    A('s_waitcnt lgkmcnt(0)\ns_mov_b64 exec, s[58:59]\nbuffer_store_dwordx4 v[36:39], v15, s[40:43], s54 offen sc1')
    stamp(A, 29)
    if MACK: A('s_waitcnt vmcnt(0)')
    A('s_mov_b64 exec, 1\nds_write_b32 v23, v246 offset:80\ns_mov_b64 exec, -1')
    lds_wait(A, 0, 80, 248, 3, sleep=1)
    stamp(A, 30)


XCH = [0, 15360, 30720, WBASE + 4 * WSLOT]
def gen_awave(A):
    AC = 16; PQ = 96; MB = 176
    def a2(rt, t): return AC + 20 * rt + 4 * t
    def pq(kk, rt): return PQ + 16 * kk + 4 * rt
    A('s_load_dwordx2 s[8:9], s[0:1], 64')
    A(f'v_mov_b32 v0, {CT}')
    A('v_lshrrev_b32 v3, 4, v2\nv_and_b32 v4, 15, v2\nv_lshlrev_b32 v5, 4, v2\nv_lshlrev_b32 v6, 3, v2\nv_add_u32 v7, 4096, v5')
    A('s_cmp_lg_u32 s20, 0\ns_cbranch_scc1 L_a_g')
    A('s_and_b32 s69, s2, 7\ns_lshl_b32 s69, s69, 3\ns_bfe_u32 s48, s2, 0x30003\ns_add_u32 s69, s69, s48')
    A('s_lshr_b32 s18, s69, 2\ns_lshl_b32 s18, s18, 1\ns_and_b32 s48, s21, 1\ns_add_u32 s18, s18, s48\ns_and_b32 s19, s69, 3\ns_lshl_b32 s19, s19, 1\ns_lshr_b32 s48, s21, 1\ns_add_u32 s19, s19, s48')
    phase_a(A)
    A('s_branch L_a_sig')
    A('L_a_g:')
    get_epoch(A, 0, 8)
    set_flag(A, 74, 8)
    A('L_a_sig:')
    A(f'v_mov_b32 v8, 1\ns_lshl_b32 s48, s21, 2\nv_add_u32 v9, s48, v0\ns_mov_b64 exec, 1\nds_write_b32 v9, v8 offset:48\ns_mov_b64 exec, -1')
    stamp(A, 5)
    A('s_waitcnt lgkmcnt(0)')
    srd(A, 28, 8, 2621440)
    A('L_a_main:')
    A(f's_setprio {APRIO}')
    p2_ids(A)
    A(f's_lshr_b32 s48, s18, 1\ns_lshl_b32 s59, s48, {FSH}\ns_add_u32 s59, s59, {FG_OFF}')
    A('s_mul_i32 s48, s21, 5\ns_mul_i32 s54, s18, 68\ns_add_u32 s54, s54, s48\ns_add_u32 s54, s54, 48\ns_lshl_b32 s54, s54, 12')
    A(f's_mul_i32 s55, s19, 20\ns_add_u32 s55, s55, s48\ns_mul_i32 s55, s55, 5120\ns_add_u32 s55, s55, {M_OFF}')
    A(f's_lshl_b32 s53, s18, 8\ns_add_u32 s53, s53, {G_OFF}')
    A(f's_lshl_b32 s52, s19, 11\ns_lshl_b32 s49, s21, 9\ns_add_u32 s52, s52, s49\ns_add_u32 s52, s52, {ZB_OFF}')
    A(f's_lshl_b32 s58, s19, 11\ns_add_u32 s58, s58, {ZB_OFF}')
    A('v_lshlrev_b32 v14, 2, v4\nv_lshlrev_b32 v15, 7, v3')
    A('v_lshrrev_b32 v12, 2, v4\nv_cmp_eq_u32 s[60:61], v12, v3\nv_and_b32 v12, 1, v4\nv_cmp_eq_u32 s[62:63], 0, v12')
    A('s_and_b64 s[64:65], s[60:61], s[62:63]\ns_andn2_b64 s[66:67], s[60:61], s[62:63]')
    A(f's_mov_b32 s68, {EPS}\ns_mov_b32 s69, 0xffff0000')
    Q = []
    def ld(tag, txt):
        A(txt); Q.append(tag)
    def wait(tag):
        last = max(k for k, t in enumerate(Q) if t == tag)
        A(f's_waitcnt vmcnt({len(Q) - 1 - last})')
    def issueM(kk):
        A(f's_add_u32 s57, s55, {5120*kk}')
        for t in range(4):
            ld(('M', kk), f'buffer_load_dwordx4 {vr(mb(kk,t))}, v5, s[40:43], s57 offen offset:{1024*t} sc1')
        ld(('M', kk), f'buffer_load_dwordx4 {vr(mb(kk,4))}, v7, s[40:43], s57 offen sc1')
    ZR = 236
    ZIMG = CT + 1536
    mbuf = {0: MB, 1: MB + 20, 2: MB + 40, 3: MB, 4: MB + 20}
    def mb(kk, t): return mbuf[kk] + 4 * t
    for j in range(4):
        A(f's_add_u32 s48, s21, {j+1}\ns_and_b32 s{70+j}, s48, 3')
    A('s_cmp_lg_u32 s21, 2\ns_cbranch_scc1 L_a_nopollg')
    A('s_cmp_eq_u32 s20, 0\ns_cbranch_scc1 L_a_nopollg')
    lds_wait(A, 0, 48, 8, 1, sleep=2)
    gpoll(A, 59, 8)
    A('L_a_nopollg:')
    if FINEG:
        A('s_lshl_b32 s74, 3, s21\ns_lshr_b32 s74, s74, 1')
    else:
        A('s_mov_b32 s74, 15')
    lds_wait_mask(A, 0, 64, 8, 's74')
    stamp(A, 11)
    if COOP_P:
        if KVFAST: A('s_cmp_eq_u32 s20, 0\ns_cbranch_scc1 L_a_nocp')
        A('s_mul_i32 s49, s19, 2560\ns_add_u32 s48, s54, s49')
        A('v_lshlrev_b32 v8, 7, v2\ns_mov_b64 exec, 0xfffff\nbuffer_load_dword v9, v8, s[40:43], s48 offen sc1\ns_mov_b64 exec, -1\ns_waitcnt vmcnt(0)')
        A('L_a_nocp:')
    stamp(A, 21)
    for j in range(4):
        A(f's_lshl_b32 s48, s{70+j}, 10\ns_add_u32 s56, s54, s48')
        for kk in range(5 if j < NRC else 0):
            A(f'buffer_load_dwordx4 {vr(pq(kk,j))}, v5, s[40:43], s56 offen {LL}')
            if kk < 4: A('s_add_u32 s56, s56, 4096')
    stamp(A, 22)
    lds_wait_mask(A, 0, 64, 8, 8)
    stamp(A, 23)
    for j in range(4):
        A(f's_lshl_b32 s48, s{70+j}, 6\ns_add_u32 s56, s53, s48\nbuffer_load_dword v{10+j}, v14, s[40:43], s56 offen {LL}')
    A(f'v_lshrrev_b32 v8, 2, v2\nv_and_b32 v9, 3, v2\nv_mul_u32_u24 v24, 80, v8\nv_lshl_add_u32 v24, v9, 4, v24\nv_add_u32 v24, {ZIMG}, v24\nv_lshlrev_b32 v26, 7, v8\nv_lshl_add_u32 v26, v9, 4, v26')
    A(f's_mul_i32 s76, s19, 102400\ns_and_b32 s49, s18, 3\ns_mul_i32 s49, s49, 25600\ns_add_u32 s76, s76, s49\ns_mul_i32 s49, s21, 6400\ns_add_u32 s76, s76, s49\ns_add_u32 s76, s76, {M_OFF}\nv_lshlrev_b32 v27, 7, v2')
    lds_wait(A, 0, 72, 8, 1, four=False, sleep=2)
    A('s_cmp_lg_u32 s21, 1\ns_cbranch_scc1 L_a_oth2')
    if KVFAST == 2: A('s_cmp_eq_u32 s20, 0\ns_cbranch_scc1 L_a_nogate')
    lds_wait(A, 0, 144, 16, 1, sleep=1)
    A('L_a_nogate:')
    stamp(A, 24)
    A('buffer_load_dwordx4 v[16:19], v26, s[40:43], s58 offen sc1\nbuffer_load_dwordx4 v[20:23], v26, s[40:43], s58 offen offset:16 sc1')
    A('v_mov_b32 v8, 1\ns_mov_b64 exec, 1\nds_write_b32 v0, v8 offset:76\ns_mov_b64 exec, -1')
    A('L_a_oth2:')
    lds_wait(A, 0, 76, 8, 1, four=False, sleep=2)
    A('s_mov_b32 exec_hi, 0x3ffff\nbuffer_load_dword v95, v27, s[40:43], s76 offen sc1\ns_mov_b32 exec_hi, -1')
    A('s_cmp_lg_u32 s21, 1\ns_cbranch_scc1 L_a_nopoll')
    A('s_mov_b32 s96, 0\ns_waitcnt vmcnt(1)\ns_branch L_a_zchk')
    A('L_a_zpoll:')
    A('buffer_load_dwordx4 v[16:19], v26, s[40:43], s58 offen sc1\nbuffer_load_dwordx4 v[20:23], v26, s[40:43], s58 offen offset:16 sc1\ns_waitcnt vmcnt(0)')
    A('L_a_zchk:')
    A('v_max3_u32 v9, v16, v18, v20\nv_max_u32 v9, v9, v22\nv_cmp_eq_u32 vcc, -1, v9')
    A('s_cbranch_vccz L_a_zok')
    A(f's_sleep {MSLEEP}\ns_add_u32 s96, s96, 1\ns_cmp_lt_u32 s96, {SPIN_MAX}\ns_cbranch_scc1 L_a_zpoll')
    A('L_a_zok:')
    if STAMP: A('v_writelane_b32 v1, s96, 36')
    A('ds_write_b128 v24, v[16:19]\nds_write_b128 v24, v[20:23] offset:16')
    A('v_mov_b32 v8, 1\ns_mov_b64 exec, 1\nds_write_b32 v0, v8 offset:68\ns_mov_b64 exec, -1')
    A('L_a_nopoll:')
    A(f's_mul_i32 s48, s21, 320\ns_add_u32 s48, s48, {ZIMG}\nv_mul_u32_u24 v15, 80, v3\nv_add_u32 v15, s48, v15')
    lds_wait(A, 0, 68, 8, 1, four=False, sleep=2)
    stamp(A, 10)
    for kk in range(5):
        A(f'ds_read_b128 {vr(ZR+4*kk)}, v15 offset:{16*kk}')
    if SPEC_M:
        A('s_waitcnt vmcnt(1)')
    elif COOP_M:
        A(f's_mul_i32 s48, s19, 102400\ns_and_b32 s49, s18, 3\ns_mul_i32 s49, s49, 25600\ns_add_u32 s48, s48, s49\ns_mul_i32 s49, s21, 6400\ns_add_u32 s48, s48, s49\ns_add_u32 s48, s48, {M_OFF}')
        A('v_lshlrev_b32 v8, 7, v2\ns_mov_b32 exec_hi, 0x3ffff\nbuffer_load_dword v9, v8, s[40:43], s48 offen sc1\ns_mov_b32 exec_hi, -1')
    else:
        issueM(0); issueM(1); issueM(2)
    A('s_waitcnt lgkmcnt(0)')
    for kk in range(5):
        for j in range(4):
            m = 's[66:67]' if (4 * kk + j) >= 10 else 's[64:65]'
            A(f'v_cndmask_b32 v{ZR+4*kk+j}, 0, v{ZR+4*kk+j}, {m}')
    den = [AC + 4 * rt for rt in range(4)]
    if not SPEC_M: A(f's_waitcnt vmcnt({1 if COOP_M else 15})')
    stamp(A, 17)
    A('s_nop 0')
    for kk in range(5):
        for rt in range(NRC):
            d = vr(den[rt])
            A(f'v_mfma_f32_16x16x32_bf16 {d}, {vr(ZR+4*kk)}, {vr(pq(kk,rt))}, {d if kk else 0}')
    A('s_nop 7')
    SC = ZR; T0 = ZR + 8
    for rt in range(NRC):
        A(f'v_add_f32 v{den[rt]}, s68, v{den[rt]}\nv_add_f32 v{den[rt]+1}, s68, v{den[rt]+1}')
    for rt in range(NRC):
        A(f'v_rcp_f32 v{den[rt]}, v{den[rt]}\nv_rcp_f32 v{den[rt]+1}, v{den[rt]+1}')
    A('s_nop 0')
    for rt in range(NRC):
        A(f'v_mul_f32 v{SC+2*rt}, v{10+rt}, v{den[rt]}\nv_mul_f32 v{SC+2*rt+1}, v{10+rt}, v{den[rt]+1}')
    def norm_ops(kk):
        L = []
        for rt in range(NRC):
            r = pq(kk, rt)
            for j in range(4):
                L += [f'v_lshlrev_b32 v{T0+2*j}, 16, v{r+j}', f'v_and_b32 v{T0+2*j+1}, s69, v{r+j}']
            for j in range(4):
                odd = 1 if (4 * kk + j) >= 10 else 0
                L += [f'v_mul_f32 v{T0+2*j}, v{SC+2*rt+odd}, v{T0+2*j}', f'v_mul_f32 v{T0+2*j+1}, v{SC+2*rt+odd}, v{T0+2*j+1}']
            for j in range(4):
                L += [f'v_cvt_pk_bf16_f32 v{r+j}, v{T0+2*j}, v{T0+2*j+1}']
        return L
    stamp(A, 20)
    A('s_waitcnt vmcnt(0)')
    issueM(0); issueM(1)
    for kk in range(NLEAD):
        for l in norm_ops(kk): A(l)
        if kk == 0: issueM(2)
    stamp(A, 6)
    A('v_sub_f32 v14, 1.0, v13')
    for j in range(3):
        A(f's_mul_i32 s48, s{70+j}, 15360\ns_cmp_eq_u32 s{70+j}, 3\ns_cselect_b32 s48, {XCH[3]}, s48\ns_add_u32 s48, s48, {(2-j)*5120}\nv_add_u32 v{10+j}, s48, v5')
    A(f's_lshl_b32 s48, s21, 11\ns_add_u32 s48, s48, {XCH[3] + 15360 - 3072}\nv_add_u32 v13, s48, v5')
    A(f's_mul_i32 s48, s21, 5120\ns_add_u32 s48, s48, {WBASE + 2*WSLOT}\nv_add_u32 v15, s48, v5\ns_lshl_b32 s48, s21, 2\nv_add_u32 v6, s48, v0')
    for kk in range(5):
        nxt = norm_ops(kk + NLEAD) if kk + NLEAD < 5 else []
        wait(('M', kk))
        A('s_mov_b32 s96, 0')
        A(f'L_a_mchk{kk}:')
        m0 = mb(kk, 0)
        A(f'v_max3_u32 v8, v{m0}, v{m0+2}, v{m0+4}')
        for k in (3, 5, 7):
            A(f'v_max3_u32 v8, v8, v{m0+2*k}, v{m0+2*k+2}')
        A(f'v_max_u32 v8, v8, v{m0+18}\nv_cmp_eq_u32 vcc, -1, v8')
        A(f's_cbranch_vccnz L_a_mre{kk}')
        A(f'L_a_mok{kk}:')
        stamp(A, 31 + kk)
        if kk == 4:
            lds_wait(A, 0, 96, PQ, 1, sleep=1)
        if NRC == 2:
            lds_wait(A, 6, 160, 8, kk + 1, four=False, sleep=1)
            A(f'ds_read_b128 {vr(pq(kk,2))}, v15 offset:{1024*kk}\nds_read_b128 {vr(pq(kk,3))}, v15 offset:{WSLOT + 1024*kk}')
        for rt in range(4):
            if NRC == 2 and rt == 2:
                A('s_waitcnt lgkmcnt(0)')
                if kk == 4:
                    A('v_mov_b32 v8, 1\ns_mov_b64 exec, 1\nds_write_b32 v6, v8 offset:176\ns_mov_b64 exec, -1')
            for t in range(5):
                d = vr(a2(rt, t))
                A(f'v_mfma_f32_16x16x32_bf16 {d}, {vr(mb(kk,t))}, {vr(pq(kk,rt))}, {d if kk else 0}')
                for _ in range(NRC):
                    if nxt: A(nxt.pop(0))
                if kk == 4 and rt >= 2:
                    A(f'ds_write_b128 v{10+rt-2}, {vr(a2(rt-2,t))} offset:{t*1024}')
        if kk < 2:
            issueM(kk + 3)
    stamp(A, 12)
    for t in range(5):
        A(f'ds_write_b128 v12, {vr(a2(2,t))} offset:{t*1024}')
    A(f's_lshl_b32 s48, s21, 8\nv_lshlrev_b32 v8, 2, v2\nv_add_u32 v8, s48, v8\nds_write_b32 v8, v14 offset:{46080}')
    for t in (3, 4):
        A(f'ds_write_b128 v13, {vr(a2(3,t))} offset:{t*1024}')
    OWN = a2(3, 0)
    A(f's_mul_i32 s50, s21, 15360\ns_cmp_eq_u32 s21, 3\ns_cselect_b32 s50, {XCH[3]}, s50')
    A(f's_mul_i32 s48, s21, {WSLOT}\ns_add_u32 s48, s48, {WBASE}\nv_add_u32 v8, s48, v5\nv_mov_b32 v15, v14\nv_add_u32 v7, s50, v5')
    A('s_lshl_b32 s48, s18, 6\ns_lshl_b32 s49, s21, 4\ns_add_u32 s48, s48, s49\nv_add_u32 v9, s48, v4\nv_mul_u32_u24 v9, 1280, v9\nv_lshl_add_u32 v9, v3, 3, v9\ns_mul_i32 s48, s19, 160')
    A('s_waitcnt lgkmcnt(0)')
    A('s_barrier')
    stamp(A, 13)
    for r in range(4):
        for t in range(3):
            A(f'ds_read_b128 {vr(PQ+12*r+4*t)}, v8 offset:{r*5120 + 1024*t}')
    A('s_waitcnt lgkmcnt(6)')
    for r in range(3):
        for t in range(3):
            A(f'ds_read_b128 {vr(AC+12*r+4*t)}, v7 offset:{r*5120 + 1024*t}')
    for k in range(0, 12, 2):
        A(f'v_pk_add_f32 {vr(PQ+k,2)}, {vr(PQ+k,2)}, {vr(PQ+12+k,2)}')
    A('s_waitcnt lgkmcnt(9)')
    for k in range(0, 12, 2):
        A(f'v_pk_add_f32 {vr(PQ+24+k,2)}, {vr(PQ+24+k,2)}, {vr(PQ+36+k,2)}')
    for k in range(0, 12, 2):
        A(f'v_pk_add_f32 {vr(PQ+k,2)}, {vr(PQ+k,2)}, {vr(PQ+24+k,2)}')
    for k in range(0, 12, 2):
        A(f'v_pk_fma_f32 {vr(OWN+k,2)}, {vr(PQ+k,2)}, v[14:15], {vr(OWN+k,2)}')
    for sl in range(3):
        A(f's_waitcnt lgkmcnt({6 - 3*sl})')
        for k in range(0, 12, 2):
            A(f'v_pk_add_f32 {vr(OWN+k,2)}, {vr(OWN+k,2)}, {vr(AC+12*sl+k,2)}')
    for t in range(3):
        b = OWN + 4 * t
        A(f'v_cvt_pk_bf16_f32 v{b}, v{b}, v{b+1}\nv_cvt_pk_bf16_f32 v{b+1}, v{b+2}, v{b+3}')
        A(f'buffer_store_dwordx2 {vr(b,2)}, v9, s[28:31], s48 offen offset:{32*t}')
    stamp(A, 14)
    finish(A)
    for kk in range(5):
        A(f'L_a_mre{kk}:')
        A('s_sleep 4')
        issueM(kk)
        A(f's_waitcnt vmcnt(0)\ns_add_u32 s96, s96, 1\ns_cmp_lt_u32 s96, {SPIN_MAX}\ns_cbranch_scc1 L_a_mchk{kk}')
        A(f's_branch L_a_mok{kk}')


def gen_loader(A):
    A.c('s67 = lw ; role constants: s68 strideA, s60 cA, s61 cB, s62 xB, s63 c4, s64 hi-mult')
    A('s_sub_u32 s67, s21, 4')
    A('s_mul_i32 s48, s19, 320\ns_add_u32 s48, s48, 1280\ns_and_b32 s57, s19, 1\ns_lshl_b32 s58, s57, 6\ns_add_u32 s58, s58, s48')
    A('s_xor_b32 s57, s57, 1\ns_lshl_b32 s57, s57, 8\ns_add_u32 s57, s57, s48\ns_add_u32 s59, s58, 1280')
    A('s_lshl_b32 s48, s22, 8\ns_lshl_b32 s49, s22, 7\ns_movk_i32 s56, 3072')
    A('s_cmp_eq_u32 s20, 0')
    A('s_cselect_b32 s68, 3840, s56\ns_cselect_b32 s60, s58, s48\ns_cselect_b32 s61, s59, s48\ns_cselect_b32 s62, 1, 0\ns_cselect_b32 s63, s57, s49\ns_cselect_b32 s64, 1280, 64')
    A(f's_cmp_lg_u32 s91, 0\ns_cselect_b32 s63, {OOB}, s63')
    A(f'v_mov_b32 v29, {OOB}\ns_lshl_b32 s75, s68, 5\ns_lshl_b32 s69, s18, 2\ns_add_u32 s69, s69, s19\nv_and_b32 v3, 31, v2\nv_lshrrev_b32 v4, 5, v2')
    A('s_movk_i32 s48, 3072\ns_cmp_eq_u32 s67, 1\ns_cselect_b32 s48, 3840, s48\ns_lshr_b32 s49, s48, 7\ns_lshl_b32 s85, s48, 6\ns_movk_i32 s56, 128')
    A('s_cmp_eq_u32 s67, 0\ns_cselect_b32 s48, 40960, s48\ns_cselect_b32 s49, 32, s49\ns_cselect_b32 s85, 128, s85\ns_cselect_b32 s56, 1280, s56\ns_mul_i32 s48, s48, s69')
    A('v_mul_u32_u24 v5, s56, v3\nv_mul_u32_u24 v6, s85, v4\nv_add3_u32 v5, v5, v6, s48\nv_cmp_gt_u32 vcc, s49, v3')
    st0 = sum(EV[m][0] << (4 * m) for m in EV)
    A(f's_lshl_b32 s56, s20, 2\ns_lshr_b32 s56, {hex(st0)}, s56\ns_and_b32 s56, s56, 15\nv_cndmask_b32 v30, v29, v5, vcc\ns_mul_i32 s56, s56, s85')
    A('s_mov_b32 s26, 2621440\ns_mov_b32 s27, 0x20000\ns_mov_b32 s31, 0x20000\ns_mov_b32 s35, 0x20000\ns_mov_b32 s39, 0x20000\ns_mov_b32 s83, 0x20000\ns_mov_b32 s48, 1966080\ns_mov_b32 s38, 2457600')
    A('s_cmp_eq_u32 s20, 0\ns_cselect_b32 s30, s38, s48\ns_mov_b32 s34, s30')
    A(f'v_mov_b32 v38, {CT}\nv_lshl_add_u32 v39, v2, 2, v38\nv_mov_b32 v44, 0\ns_lshl_b32 s71, s67, 8\nds_write_b32 v39, v44\nv_add_u32 v39, s71, v39\nds_write_b32 v39, v44 offset:256')
    A(f'v_and_b32 v39, 3, v2\nv_lshlrev_b32 v39, 8, v39\nv_add_u32 v39, {CT+256}, v39\ns_lshl_b32 s71, s67, 2\ns_add_u32 s71, s71, {CT}')
    A('s_cmp_eq_u32 s20, 0')
    A('s_waitcnt lgkmcnt(0)')
    A('s_mov_b32 s24, s4\ns_mov_b32 s25, s5\ns_mov_b32 s36, s6\ns_mov_b32 s37, s7')
    A('s_cselect_b32 s28, s6, s8\ns_cselect_b32 s29, s7, s9\ns_cselect_b32 s32, s6, s10\ns_cselect_b32 s33, s7, s11')
    A('s_cmp_eq_u32 s67, 2\ns_cselect_b32 s80, s8, s10\ns_cselect_b32 s81, s9, s11')
    A('s_cmp_eq_u32 s67, 1\ns_cselect_b32 s80, s6, s80\ns_cselect_b32 s81, s7, s81\ns_cselect_b32 s82, s38, s48')
    A('s_cmp_eq_u32 s67, 0\ns_cselect_b32 s80, s4, s80\ns_cselect_b32 s81, s5, s81\ns_cselect_b32 s82, s26, s82')
    stamp(A, 1)
    def issueW():
        for L in range(5):
            sr = 28 if L < 2 else (32 if L < 4 else 36)
            dma(A, f's_add_u32 m0, s77, {L*1024}', 10 + L, sr, 70 if L < 4 else 72)
        A('s_add_u32 s70, s70, s75\ns_add_u32 s72, s72, s76')
        A(f's_add_u32 s77, s77, {WSLOT}\ns_cmp_ge_u32 s77, {WBASE + NW*WSLOT}\ns_cselect_b32 s48, {NW*WSLOT}, 0\ns_sub_u32 s77, s77, s48')
    def issueX():
        for i in range(4):
            dma(A, f's_add_u32 m0, s78, {i*1024}', 16 + i, 24, 74)
        A('s_add_u32 s74, s74, 128')
        A(f's_add_u32 s78, s78, {XSLOT}\ns_cmp_ge_u32 s78, {NX*XSLOT}\ns_cselect_b32 s48, {NX*XSLOT}, 0\ns_sub_u32 s78, s78, s48')
    def flag():
        A('s_mov_b32 m0, s71\ns_lshl_b32 s48, s65, 2\ns_mov_b64 exec, 1\nbuffer_load_dword v44, s[8:11], s48 offen offset:0 lds\ns_mov_b64 exec, -1')
    A('s_mov_b32 s97, s56')
    if START2:
        A('s_lshr_b32 s56, s85, 6\ns_lshr_b32 s57, s85, 13\ns_cmp_eq_u32 s67, 0\ns_cselect_b32 s56, 10240, s56\ns_cselect_b32 s57, 64, s57\ns_mul_i32 s56, s56, s2')
        A(f's_cmp_ge_u32 s2, {START2}\ns_cselect_b32 s48, s67, 0\ns_cmp_lg_u32 s48, 0\ns_cselect_b32 s57, 0, s57')
        A('v_lshlrev_b32 v34, 7, v2\nv_cmp_gt_u32 vcc, s57, v2\ns_nop 1\nv_cndmask_b32 v34, v29, v34, vcc')
        A('buffer_load_dword v36, v34, s[80:83], s56 offen')
        A('s_cmp_lg_u32 s67, 0\ns_cbranch_scc1 L_nor0')
        A('s_add_u32 s56, s56, 8192\ns_mov_b64 exec, 0xffff\nbuffer_load_dword v37, v34, s[80:83], s56 offen\ns_mov_b64 exec, -1\nv_mov_b32 v30, v29')
        A('s_branch L_nor0')
    A('s_cmp_eq_u32 s20, 0\ns_cbranch_scc1 L_nor0' if not R0LATE else 's_cmp_lg_u32 s20, 1\ns_cbranch_scc1 L_nor0')
    if NOPF != 2: A('s_mov_b32 exec_hi, 0\nbuffer_load_dword v36, v30, s[80:83], s56 offen\ns_mov_b32 exec_hi, -1')
    A('L_nor0:')
    A('s_barrier')
    A('s_cmp_eq_u32 s55, 0\ns_cbranch_scc1 L_nogw0')
    srd(A, 44, 14, 1280)
    A('v_lshlrev_b32 v40, 1, v2')
    for j in range(10):
        A(f'buffer_load_ushort v{50+j}, v40, s[44:47], 0 offen offset:{128*j}')
    A('L_nogw0:')
    A('v_lshrrev_b32 v3, 3, v2\nv_and_b32 v4, 7, v2')
    A('s_lshl_b32 s48, s18, 7\ns_lshl_b32 s56, s67, 5\ns_add_u32 s48, s48, s56\nv_add_u32 v7, s48, v3\nv_mul_u32_u24 v7, 1280, v7')
    A('v_lshrrev_b32 v8, 4, v2\nv_xor_b32 v8, v8, v4\nv_lshl_add_u32 v16, v8, 4, v7')
    A('v_xor_b32 v8, 4, v8\nv_lshl_add_u32 v17, v8, 4, v7\nv_add_u32 v17, 10240, v17')
    A('v_add_u32 v18, 20480, v16\nv_add_u32 v19, 20480, v17')
    A('s_lshl_b32 s56, s67, 3\nv_add_u32 v5, s56, v3')
    A('s_and_b32 s56, s67, 1\ns_lshl_b32 s56, s56, 2\nv_and_b32 v6, 2, v3\nv_xor_b32 v6, v6, v4\nv_xor_b32 v6, s56, v6')
    A('v_mul_u32_u24 v7, s68, v5\nv_lshl_add_u32 v8, v6, 4, v7\nv_add_u32 v10, s60, v8\nv_add_u32 v11, 128, v10')
    A('v_xor_b32 v9, s62, v6\nv_lshl_add_u32 v8, v9, 4, v7\nv_add_u32 v12, s61, v8\nv_add_u32 v13, 128, v12')
    A('v_lshrrev_b32 v8, 2, v6\nv_and_b32 v9, s62, v8\nv_and_b32 v6, 3, v6\nv_xor_b32 v6, v6, v9\nv_mul_u32_u24 v7, 3840, v5')
    A('v_lshl_add_u32 v7, v6, 4, v7\nv_mul_u32_u24 v8, s64, v8\nv_add3_u32 v14, v7, v8, s63')
    A(f's_mov_b32 s76, {32*3840}\ns_mov_b32 s70, 0\ns_mov_b32 s72, 0\ns_mov_b32 s74, 0')
    A(f's_mul_i32 s77, s67, 5120\ns_add_u32 s77, s77, {WBASE}\ns_lshl_b32 s78, s67, 12')
    issueX(); issueW()
    if L2PF:
        A('s_cmp_eq_u32 s67, 2\ns_cselect_b32 s48, s60, s61\ns_cselect_b32 s4, s28, s32\ns_cselect_b32 s5, s29, s33\ns_mov_b32 s6, s30\ns_mov_b32 s49, s68\ns_movk_i32 s56, 128')
        A('s_cmp_eq_u32 s67, 1\ns_cselect_b32 s48, s63, s48\ns_cselect_b32 s4, s36, s4\ns_cselect_b32 s5, s37, s5\ns_cselect_b32 s6, s38, s6\ns_cselect_b32 s49, 3840, s49\ns_cselect_b32 s56, s64, s56')
        A('s_lshl_b32 s94, s49, 6\ns_lshl_b32 s57, s23, 3\nv_add_u32 v33, s57, v4\nv_bfe_u32 v34, v2, 4, 1\nv_lshl_add_u32 v33, v34, 6, v33\nv_mul_u32_u24 v33, s49, v33')
        A('v_bfe_u32 v34, v2, 3, 1\nv_mul_u32_u24 v34, s56, v34\nv_add3_u32 v33, v33, v34, s48\nv_cmp_gt_u32 vcc, 32, v2\ns_mov_b32 s7, 0x20000\ns_nop 0\nv_cndmask_b32 v33, v29, v33, vcc')
        A('s_cmp_lg_u32 s67, 0\ns_cbranch_scc1 L_l2x')
        A('s_mov_b32 s4, s24\ns_mov_b32 s5, s25\ns_mov_b32 s6, s26\ns_movk_i32 s94, 128\ns_lshl_b32 s48, s18, 7\ns_lshl_b32 s49, s20, 5\ns_add_u32 s48, s48, s49')
        A('v_and_b32 v33, 31, v2\nv_add_u32 v33, s48, v33\nv_mul_u32_u24 v33, 1280, v33\nv_lshrrev_b32 v34, 5, v2\nv_lshl_add_u32 v33, v34, 7, v33')
        A('L_l2x:')
        A(f's_mul_i32 s95, s94, {L2PF}\ns_lshl_b32 s94, s94, 1')
    A('s_load_dwordx2 s[86:87], s[0:1], 72')
    A('s_cmp_eq_u32 s55, 0\ns_cbranch_scc1 L_nogw')
    A('v_and_b32 v41, 3, v2\nv_lshlrev_b32 v41, 3, v41')
    A('v_bfe_u32 v40, v2, 2, 1\nv_lshl_add_u32 v41, v40, 9, v41')
    A('v_bfe_u32 v40, v2, 3, 2\nv_lshl_add_u32 v41, v40, 5, v41')
    A(f'v_bfe_u32 v40, v2, 5, 1\nv_mul_u32_u24 v40, {GWS}, v40\nv_add_u32 v41, v40, v41')
    A(f'v_add_u32 v41, {GWBASE}, v41')
    A('s_waitcnt vmcnt(9)')
    for j in range(10):
        A(f'v_lshl_or_b32 v{80+2*j}, v{50+j}, 16, v{50+j}\nv_mov_b32 v{81+2*j}, v{80+2*j}')
        A(f'ds_write_b64 v41, v[{80+2*j}:{81+2*j}] offset:{2*GWS*j}')
    A('L_nogw:')
    srd(A, 40, 16, WS_USED)
    srd(A, 44, 12, 1966080)
    A('s_waitcnt lgkmcnt(0)')
    A('s_lshl_b32 s48, s2, 2\ns_add_u32 s48, s48, s67\ns_cmp_lg_u32 s48, 0\ns_cbranch_scc1 L_noep')
    A('s_memrealtime s[88:89]\ns_waitcnt lgkmcnt(0)\ns_or_b32 s88, s88, 1\nv_mov_b32 v42, s88\nv_mov_b32 v43, s89')
    A('s_mov_b64 exec, 1\nglobal_store_dwordx2 v44, v[42:43], s[86:87] sc1\ns_mov_b64 exec, -1')
    A('L_noep:')
    A('v_lshlrev_b32 v5, 4, v2\nv_lshlrev_b32 v6, 3, v2\nv_add_u32 v7, 4096, v5')
    assert RPORD.index(10) >= 8
    tab = sum(RPORD.index(t) << (4 * t) for t in range(12))
    A(f's_mov_b32 s56, {hex(tab & 0xffffffff)}\ns_mov_b32 s57, {hex(tab >> 32)}\ns_lshl_b32 s48, s22, 2\ns_lshr_b64 s[56:57], s[56:57], s48\ns_and_b32 s48, s56, 15\ns_lshl_b32 s48, s48, 4\ns_add_u32 s48, s48, s18')
    A('s_sub_u32 s60, s48, 120\ns_lshl_b32 s60, s60, 2\ns_add_u32 s60, s60, s67\ns_lshl_b32 s92, s48, 1\ns_add_u32 s92, s92, s67')
    A('s_cmp_lt_u32 s67, 2\ns_cselect_b32 s92, s92, 999\ns_cmp_lt_u32 s92, 240\ns_cselect_b32 s64, 1, 0\ns_cmp_lt_u32 s60, 256\ns_cselect_b32 s64, 2, s64')
    A('s_mul_i32 s62, s92, 52429\ns_lshr_b32 s62, s62, 18\ns_mul_i32 s63, s62, 5\ns_sub_u32 s63, s92, s63')
    A(f's_mul_i32 s79, s62, {32*1280}\ns_lshl_b32 s56, s63, 8\ns_add_u32 s79, s79, s56\ns_lshl_b32 s63, s63, 3\ns_mul_i32 s62, s62, 5')
    A(f's_lshl_b32 s92, s92, 3\ns_add_u32 s92, s92, {FW_OFF}\ns_lshl_b32 s93, s67, 12\ns_add_u32 s93, s93, {RPK}')
    A(f's_lshl_b32 s48, s60, 3\ns_add_u32 s48, s48, {FP_OFF}\ns_cmp_eq_u32 s64, 2\ns_cselect_b32 s92, s48, s92')
    A('v_and_b32 v8, 2, v3\nv_xor_b32 v8, v8, v4\nv_mul_u32_u24 v9, 1280, v3\nv_lshl_add_u32 v20, v8, 4, v9')
    A('v_xor_b32 v8, 4, v8\nv_lshl_add_u32 v21, v8, 4, v9\nv_add_u32 v21, 10240, v21\nv_add_u32 v22, 20480, v20\nv_add_u32 v23, 20480, v21')
    A('v_lshrrev_b32 v8, 2, v2\nv_and_b32 v9, 3, v2\nv_lshlrev_b32 v8, 7, v8\nv_lshl_add_u32 v8, v9, 3, v8\nv_add_u32 v8, s93, v8')
    A('v_bfe_u32 v9, v2, 3, 1\nv_lshrrev_b32 v28, 5, v2\nv_lshl_add_u32 v9, v28, 1, v9')
    for tl in range(4):
        A(f'v_xor_b32 v28, {tl}, v9\nv_lshl_add_u32 v{24+tl}, v28, 5, v8')
    A('v_mul_u32_u24 v31, 1280, v2')
    if 'NODUTY' in EXP: A('s_mov_b32 s64, 0')
    pk = {m: sum(((t | (b0 << 4)) << (8 * k)) for k, (t, b0) in enumerate(EV[m][1])) | (0xFF << (8 * len(EV[m][1]))) for m in EV}
    A(f's_mov_b32 s84, -1\ns_cmp_eq_u32 s20, 1\ns_cselect_b32 s84, {hex(pk[1])}, s84\ns_cmp_eq_u32 s20, 2\ns_cselect_b32 s84, {hex(pk[2])}, s84\ns_cmp_eq_u32 s20, 3\ns_cselect_b32 s84, {hex(pk[3])}, s84\ns_and_b32 s58, s84, 15')
    AC = 24; WR = 104; HBUF = 224
    def a2(rt, t): return AC + 20 * rt + 4 * t
    regset = {0: 0, 1: 1, 2: 2, 9: 3, 10: 4, 11: 5}
    lds_unit = {3: WBASE, 4: WBASE + WSLOT, 5: WBASE + 2*WSLOT, 6: WBASE + 3*WSLOT, 7: 20480, 8: WBASE + 4*WSLOT}
    def kidx(i, dst):
        A(f's_add_u32 s{dst}, s23, {i}\ns_cmp_ge_u32 s{dst}, 12\ns_cselect_b32 s48, 12, 0\ns_sub_u32 s{dst}, s{dst}, s48')
    def w2reg(i):
        kidx(i, 56)
        A('s_mul_i32 s56, s56, 5120\ns_add_u32 s56, s56, s50')
        for t in range(5):
            b = WR + 20 * regset[i] + 4 * t
            if t == 0: A(f's_waitcnt vmcnt({STG_THR})')
            A(f'buffer_load_dwordx4 {vr(b)}, v{5 if t < 4 else 7}, s[40:43], s56 offen offset:{1024*(t&3)} sc1')
    def w2lds(i):
        kidx(i, 56)
        A('s_mul_i32 s56, s56, 5120\ns_add_u32 s56, s56, s50')
        A(f's_add_u32 m0, s52, {lds_unit[i]}\ns_waitcnt vmcnt({STG_THR})')
        for t in range(4):
            A(f'buffer_load_dwordx4 v5, s[40:43], s56 offen offset:{1024*t} sc1 lds')
        A(f's_add_u32 m0, s52, {lds_unit[i] + 4096}\ns_nop 0')
        A('buffer_load_dwordx4 v7, s[40:43], s56 offen sc1 lds')
    def trace():
        if STAMP and 'quiet' not in EXP:
            A('s_memtime s[98:99]\ns_add_u32 s48, s65, 38\ns_mov_b32 m0, s48\ns_waitcnt lgkmcnt(0)\nv_writelane_b32 v1, s98, m0')
    def ensure_free():
        if 'nofree' in EXP: return
        l = A.label('L_free')
        A(f's_sub_u32 s57, s65, 4\ns_cmp_ge_i32 s66, s57\ns_cbranch_scc1 {l}')
        tbeg(A)
        lds_wait(A, 39, 0, 48, 's57', four='free', sdst=66, sleep=LSLEEP)
        tend(A, 100)
        A(f'{l}:')
    stamp(A, 2)
    table_srd(A, 8)
    A('s_mov_b32 s65, 1\ns_mov_b32 s66, 0')
    flag()
    if R0LATE:
        A('s_cmp_lt_u32 s20, 2\ns_cbranch_scc1 L_nor1')
        A('s_mov_b32 exec_hi, 0\nbuffer_load_dword v36, v30, s[80:83], s97 offen\ns_mov_b32 exec_hi, -1')
        A('L_nor1:')
    A('s_branch L_ld_odd')
    A('.p2align 3')
    A('L_ld_loop:')
    ensure_free()
    if L2PF:
        A(f's_bitcmp1_b32 s65, 1\ns_cbranch_scc0 L_nol2\ns_cmp_gt_u32 s65, {2 + 4 * ((9 - L2PF) // 2)}\ns_cbranch_scc1 L_nol2')
        A('buffer_load_dword v35, v33, s[4:7], s95 offen\ns_add_u32 s95, s95, s94')
        A('L_nol2:')
    issueX(); issueW()
    trace()
    A('s_add_u32 s65, s65, 1')
    flag()
    A('L_ld_odd:')
    ensure_free()
    issueW()
    trace()
    A('s_lshr_b32 s49, s65, 1\ns_add_u32 s65, s65, 1')
    flag()
    A('s_cmp_eq_u32 s49, s58\ns_cbranch_scc1 L_ev_round')
    A('L_ev_r1:')
    A('s_cmp_lt_u32 s65, 20\ns_cbranch_scc1 L_ld_loop')
    A('s_branch L_ld_done')
    A('L_ev_round:')
    A('s_bfe_u32 s59, s84, 0x40004\ns_lshr_b32 s84, s84, 8\ns_and_b32 s58, s84, 15')
    A('s_cmp_gt_u32 s59, 9\ns_cbranch_scc1 L_ev_flag')
    if NOPF:
        A('s_cmp_eq_u32 s64, 0\ns_cbranch_scc1 L_ev_r1')
    else:
        lds_wait(A, 38, 0, 48, 's65')
    if NOPF:
        pass
    else:
        A('s_mul_i32 s56, s85, s59\nbuffer_load_dword v36, v30, s[80:83], s56 offen')
    if THIRD and not NOPF:
        A(f's_cmp_lg_u32 s59, {THIRD}\ns_cbranch_scc1 L_ev_no3')
        A('s_mul_i32 s56, s85, 9\ns_mov_b32 exec_hi, 0\nbuffer_load_dword v37, v30, s[80:83], s56 offen\ns_mov_b32 exec_hi, -1')
        A('L_ev_no3:')
    A('s_cmp_eq_u32 s64, 0\ns_cbranch_scc1 L_ev_rw')
    A('global_load_dwordx2 v[42:43], v44, s[86:87] sc1')
    A('s_cmp_eq_u32 s64, 2\ns_cbranch_scc1 L_ev_poison')
    A('s_mov_b32 exec_hi, 0\nbuffer_load_dword v37, v31, s[44:47], s79 offen offset:128\ns_mov_b32 exec_hi, -1')
    for e in range(2):
        for g in range(4):
            dma(A, f's_add_u32 m0, s93, {g*1024}', 20 + g, 44, 79)
        A('s_add_u32 s79, s79, 128')
        A('s_waitcnt vmcnt(0)')
        for tl in range(4):
            A(f'ds_read_b64_tr_b16 {vr(64+16*e+4*tl,2)}, v{24+tl}\nds_read_b64_tr_b16 {vr(66+16*e+4*tl,2)}, v{24+tl} offset:2048')
        A('s_waitcnt lgkmcnt(0)')
    if not DEFER:
        for tl in range(8):
            A(f's_add_u32 s56, s63, {tl}\ns_mul_i32 s57, s56, 52429\ns_lshr_b32 s57, s57, 18\ns_mul_i32 s57, s57, 235\ns_add_u32 s57, s57, s56\ns_add_u32 s57, s57, s62\ns_lshl_b32 s57, s57, 10\ns_add_u32 s57, s57, {W2_OFF}')
            A(f'buffer_store_dwordx4 {vr(64+4*tl)}, v5, s[40:43], s57 offen sc1')
    A('s_branch L_ev_r1')
    A('L_ev_poison:')
    A('v_mov_b32 v64, -1\nv_mov_b32 v65, -1\nv_mov_b32 v66, -1\nv_mov_b32 v67, -1')
    A(f's_mul_i32 s56, s60, 3200\ns_add_u32 s56, s56, {M_OFF}\ns_lshl_b32 s57, s60, 7\ns_add_u32 s57, s57, {ZB_OFF}\ns_cmp_lt_u32 s60, 128\ns_cselect_b32 s57, s57, {OOB}')
    for k in range(3):
        A(f'buffer_store_dwordx4 v[64:67], v5, s[40:43], s56 offen offset:{1024*k} sc1')
    A('s_mov_b64 exec, 0xff\nbuffer_store_dwordx4 v[64:67], v5, s[40:43], s56 offen offset:3072 sc1')
    A('buffer_store_dwordx4 v[64:67], v5, s[40:43], s57 offen sc1\ns_mov_b64 exec, -1')
    A('L_ev_rw:')
    A('s_waitcnt vmcnt(0)')
    A('s_branch L_ev_r1')
    A('L_ev_flag:')
    A('s_cmp_eq_u32 s64, 0\ns_cbranch_scc1 L_ev_r1')
    if DEFER:
        A('s_cmp_eq_u32 s59, 15\ns_cbranch_scc1 L_ev_fl2\ns_cmp_lg_u32 s64, 1\ns_cbranch_scc1 L_ev_r1')
        for tl in range(8):
            A(f's_add_u32 s56, s63, {tl}\ns_mul_i32 s57, s56, 52429\ns_lshr_b32 s57, s57, 18\ns_mul_i32 s57, s57, 235\ns_add_u32 s57, s57, s56\ns_add_u32 s57, s57, s62\ns_lshl_b32 s57, s57, 10\ns_add_u32 s57, s57, {W2_OFF}')
            A(f'buffer_store_dwordx4 {vr(64+4*tl)}, v5, s[40:43], s57 offen sc1')
        A('s_branch L_ev_r1')
        A('L_ev_fl2:')
    l0 = A.label('L_ep'); l1 = A.label('L_epok')
    A('s_mov_b32 s90, 0\ns_waitcnt vmcnt(15)')
    A(f'{l0}:')
    A('v_readfirstlane_b32 s88, v42')
    A(f's_cmp_lg_u32 s88, 0\ns_cbranch_scc1 {l1}')
    A('s_sleep 4\nglobal_load_dwordx2 v[42:43], v44, s[86:87] sc1\ns_waitcnt vmcnt(0)')
    A(f's_add_u32 s90, s90, 1\ns_cmp_lt_u32 s90, {SPIN_MAX}\ns_cbranch_scc1 {l0}')
    A(f'{l1}:')
    A('s_mov_b64 exec, 1\nbuffer_store_dwordx2 v[42:43], v44, s[40:43], s92 offen sc1\ns_mov_b64 exec, -1')
    A('s_branch L_ev_r1')
    A('L_ld_done:')
    trace()
    if 'p1' in EXP: finish(A)
    A('s_cmp_lg_u32 s20, 0\ns_cbranch_scc1 L_nowo')
    if PAX:
        A('s_and_b32 s69, s2, 7\ns_lshl_b32 s69, s69, 3\ns_bfe_u32 s48, s2, 0x30003\ns_add_u32 s69, s69, s48')
    A('s_load_dwordx2 s[24:25], s[0:1], 16\ns_mov_b32 s26, 819200\ns_mov_b32 s27, 0x20000')
    A('s_lshr_b32 s48, s69, 2\ns_lshl_b32 s48, s48, 1\ns_and_b32 s49, s67, 1\ns_add_u32 s48, s48, s49\ns_mul_i32 s48, s48, 25600')
    A('s_and_b32 s49, s69, 3\ns_lshl_b32 s49, s49, 1\ns_lshr_b32 s56, s67, 1\ns_add_u32 s49, s49, s56\ns_mul_i32 s49, s49, 160\ns_add_u32 s48, s48, s49')
    A('v_lshrrev_b32 v8, 1, v2\nv_mul_u32_u24 v8, 1280, v8\nv_and_b32 v9, 1, v2\nv_mul_u32_u24 v9, 156, v9\nv_add_u32 v8, v8, v9')
    A('s_mov_b32 s73, s48\ns_waitcnt lgkmcnt(0)\nbuffer_load_dword v36, v8, s[24:27], s48 offen')
    A('L_nowo:')
    def bsetup():
        p2_ids(A)
        A('s_mul_i32 s23, s19, 3\ns_lshr_b32 s23, s23, 1\ns_and_b32 s48, s18, 3\ns_mul_i32 s48, s48, 3\ns_add_u32 s23, s23, s48\ns_cmp_ge_u32 s23, 12\ns_cselect_b32 s48, 12, 0\ns_sub_u32 s23, s23, s48')
        A(f's_mul_i32 s48, s67, 12\ns_mul_i32 s50, s19, 48\ns_add_u32 s50, s50, s48\ns_mul_i32 s50, s50, 5120\ns_add_u32 s50, s50, {W2_OFF}')
        A('s_mul_i32 s51, s18, 68\ns_add_u32 s51, s51, s48\ns_lshl_b32 s51, s51, 12')
        A('s_mul_i32 s52, s67, 5120')
    A(f'v_mov_b32 v0, {CT}')
    bsetup()
    A(f's_mul_i32 s53, s67, 480\ns_mul_i32 s48, s19, 5\ns_lshr_b32 s48, s48, 2\ns_add_u32 s53, s53, {FW_OFF}')
    A('v_lshrrev_b32 v8, 1, v2\nv_mul_u32_u24 v8, 40, v8\nv_and_b32 v9, 1, v2\nv_add_u32 v9, s48, v9\nv_lshrrev_b32 v9, 1, v9\nv_lshl_add_u32 v28, v9, 3, v8')
    A(f's_lshr_b32 s48, s18, 1\ns_lshl_b32 s54, s48, {FSH}\ns_add_u32 s54, s54, {FG_OFF}')
    A(f's_mov_b32 s55, {FP_OFF}\ns_mov_b32 s90, 0\nv_cmp_gt_u32 s[58:59], 24, v2')
    A('L_b_chk:')
    A('global_load_dwordx2 v[42:43], v44, s[86:87] sc1')
    A('s_mov_b64 exec, s[58:59]\nbuffer_load_dwordx2 v[46:47], v28, s[40:43], s53 offen sc1\ns_mov_b64 exec, -1')
    A('s_cmp_lg_u32 s67, 1\ns_cbranch_scc1 L_b_chk1')
    A('buffer_load_dwordx4 v[48:51], v5, s[40:43], s55 offen sc1\nbuffer_load_dwordx4 v[52:55], v5, s[40:43], s55 offen offset:1024 sc1')
    A('L_b_chk1:')
    A('s_waitcnt vmcnt(0)')
    A('v_readfirstlane_b32 s88, v42\nv_readfirstlane_b32 s89, v43\ns_nop 1')
    A('v_cmp_ne_u64 s[60:61], s[88:89], v[46:47]\ns_and_b64 s[60:61], s[60:61], s[58:59]')
    A('s_cmp_lg_u32 s67, 1\ns_cbranch_scc1 L_b_chk2')
    A('v_cmp_ne_u64 s[62:63], s[88:89], v[48:49]\ns_or_b64 s[60:61], s[60:61], s[62:63]\nv_cmp_ne_u64 s[62:63], s[88:89], v[50:51]\ns_or_b64 s[60:61], s[60:61], s[62:63]')
    A('v_cmp_ne_u64 s[62:63], s[88:89], v[52:53]\ns_or_b64 s[60:61], s[60:61], s[62:63]\nv_cmp_ne_u64 s[62:63], s[88:89], v[54:55]\ns_or_b64 s[60:61], s[60:61], s[62:63]')
    A('L_b_chk2:')
    A('s_cmp_eq_u32 s88, 0\ns_cselect_b32 s60, 1, s60\ns_cmp_eq_u64 s[60:61], 0\ns_cbranch_scc1 L_b_chkok')
    if 'NODUTY' in EXP: A('s_branch L_b_chkok')
    A(f's_sleep 24\ns_add_u32 s90, s90, 1\ns_cmp_lt_u32 s90, {SPIN_MAX}\ns_cbranch_scc1 L_b_chk')
    A('L_b_chkok:')
    A('s_cmp_lg_u32 s67, 1\ns_cbranch_scc1 L_b_nofp')
    A('v_mov_b32 v46, 1\ns_mov_b64 exec, 1\nds_write_b64 v0, v[42:43] offset:32\nds_write_b32 v0, v46 offset:72\ns_mov_b64 exec, -1')
    A('L_b_nofp:')
    stamp(A, 37)
    rest = []
    A('s_cmp_eq_u32 s20, 0\ns_cbranch_scc1 L_b_kv')
    for i in (0, 1, 2, 9, 10, 11):
        w2reg(i)
    stamp(A, 22)
    lds_wait(A, 39, 0, 48, 20, four='free', sleep=LSLEEP)
    for k, i in enumerate((3, 4, 5, 6, 7, 8)):
        if k == GEARLY:
            lds_wait(A, 38, 48, 48, 1, sleep=4)
            stamp(A, 9)
        w2lds(i); stamp(A, 16 + k)
    A('s_branch L_b_common')
    A('L_b_kv:')
    order = [3, 4, 5, 7, 6, 8, 0, 1, 2, 9, 10, 11]
    need = {3: 16, 4: 17, 5: 18}
    def stage(i):
        (w2reg if i in regset else w2lds)(i)
    for i in order[:WOAT]:
        lds_wait(A, 39, 0, 48, need[i], four='free', sleep=LSLEEP)
        w2lds(i)
    lds_wait(A, 39, 0, 48, 20, four='free', sleep=LSLEEP)
    for i in range(5):
        A(f'v_add_u32 v12, {64*i}, v2\nv_mul_u32_u24 v13, 6554, v12\nv_lshrrev_b32 v13, 16, v13\nv_mul_u32_u24 v14, 10, v13\nv_sub_u32 v14, v12, v14')
        A(f'v_mul_u32_u24 v13, 1280, v13\nv_lshl_add_u32 v13, v14, 4, v13\ns_add_u32 m0, s52, {1024*i}\ns_nop 0')
        A('buffer_load_dwordx4 v13, s[24:27], s73 offen lds')
    A(f's_lshl_b32 s48, s67, 2\ns_add_u32 m0, s48, {CT + 112}\ns_mov_b64 exec, 1\nbuffer_load_dword v44, s[8:11], 4 offen lds\ns_mov_b64 exec, -1')
    stamp(A, 9)
    for i in order[WOAT:KVN]:
        stage(i)
    stamp(A, 8)
    lds_wait(A, 0, 80, 48, KVG, sleep=4)
    for i in order[KVN:]:
        stage(i)
    A('s_cmp_lg_u32 s67, 3\ns_cbranch_scc1 L_b_common')
    gpoll(A, 54, 46)
    A('L_b_common:')
    hbufs = [HBUF, HBUF + 16, WR + 40]
    def hb(i, rt):
        k = i if i < 2 else (0 if i == 2 else (i - 3 + 1) % 3 if False else None)
        return None
    hmap = {0: 0, 1: 1, 2: 0, 3: 1}
    for i in range(4, 12):
        hmap[i] = [0, 2, 1][(i - 4) % 3]
    def hb(i, rt): return hbufs[hmap[i]] + 4 * rt
    A('v_add_u32 v8, s52, v5')
    A(f'v_add_u32 v9, {WBASE + 2*WSLOT}, v8')
    def rdW(i, rs):
        u = lds_unit[i]
        va, off = (8, u) if u < WBASE + WSLOT - 5120 else ((9, u - (WBASE + 2*WSLOT)) if u >= WBASE + 2*WSLOT else (12, 0))
        for t in range(5):
            A(f'ds_read_b128 {vr(WR+20*rs+4*t)}, v{va} offset:{off + 1024*t}')
    A(f'v_add_u32 v12, {WBASE + WSLOT}, v8')
    A('s_load_dwordx2 s[28:29], s[0:1], 64\ns_mov_b32 s30, 2621440\ns_mov_b32 s31, 0x20000')
    A(f's_lshl_b32 s48, s67, 2\nv_add_u32 v13, s48, v0\nv_mov_b32 v14, 1\ns_mul_i32 s48, s67, {WSLOT}\ns_add_u32 s48, s48, {WBASE}\nv_add_u32 v15, s48, v5')
    A(f's_mul_i32 s48, s67, 15360\ns_cmp_eq_u32 s67, 3\ns_cselect_b32 s48, {XCH[3]}, s48\nv_add_u32 v16, s48, v5')
    A(f's_lshl_b32 s48, s67, 11\ns_add_u32 s48, s48, {XCH[3] + 15360}\nv_add_u32 v17, s48, v5\ns_lshl_b32 s48, s67, 8\nv_lshlrev_b32 v19, 2, v2\nv_add_u32 v19, s48, v19')
    A('s_lshl_b32 s48, s18, 6\ns_lshl_b32 s49, s67, 4\ns_add_u32 s48, s48, s49\nv_and_b32 v20, 15, v2\nv_add_u32 v20, s48, v20\nv_mul_u32_u24 v20, 1280, v20\nv_lshrrev_b32 v21, 4, v2\nv_lshl_add_u32 v20, v21, 3, v20\ns_mul_i32 s55, s19, 160')
    A('s_mul_i32 s48, s67, 5\ns_mul_i32 s57, s18, 68\ns_add_u32 s57, s57, s48\ns_add_u32 s57, s57, 48\ns_lshl_b32 s57, s57, 12')
    A(f's_lshl_b32 s58, s18, 8\ns_add_u32 s58, s58, {G_OFF}\nv_and_b32 v3, 15, v2\nv_lshlrev_b32 v11, 2, v3')
    A(f's_mul_i32 s48, s67, 320\ns_add_u32 s48, s48, {CT + 1536}\nv_mul_u32_u24 v4, 80, v21\nv_add_u32 v4, s48, v4')
    A('v_lshrrev_b32 v10, 2, v3\nv_cmp_eq_u32 s[64:65], v10, v21\nv_and_b32 v10, 1, v3\nv_cmp_eq_u32 s[62:63], 0, v10')
    A(f's_and_b64 s[60:61], s[64:65], s[62:63]\ns_andn2_b64 s[62:63], s[64:65], s[62:63]\ns_mov_b32 s64, {EPS}\ns_mov_b32 s65, 0xffff0000')
    A(f's_setprio {BPRIO}')
    stamp(A, 3)
    if GPOLL == 'B':
        A('s_cmp_lg_u32 s67, 3\ns_cbranch_scc1 L_b_nopoll')
        poll(A, 54, 48, 10, 6)
        A('v_mov_b32 v10, 1\ns_mov_b64 exec, 1\nds_write_b32 v0, v10 offset:64\ns_mov_b64 exec, -1')
        A('L_b_nopoll:')
    A('s_lshl_b32 s59, 1, s67' if FINEG else 's_mov_b32 s59, 15')
    lds_wait_mask(A, 0, 64, 10, 's59')
    A('s_waitcnt vmcnt(0)')
    stamp(A, 4)
    Q = []
    def wait(tag):
        last = max(k for k, t in enumerate(Q) if t == tag)
        A(f's_waitcnt vmcnt({min(63, len(Q) - 1 - last)})')
    def issueH(i):
        kidx(i, 56)
        A('s_lshl_b32 s56, s56, 12\ns_add_u32 s56, s56, s51')
        for rt in range(4):
            A(f'buffer_load_dwordx4 {vr(hb(i,rt))}, v5, s[40:43], s56 offen offset:{1024*rt} {LL}')
            Q.append(('H', i))
    assert not rest[KPRE:]
    issueH(0); issueH(1)
    nH = 2
    dump = [(8, WBASE), (12, 0), (9, 0), (9, WSLOT)]
    def haddr(i, dst):
        return [f's_add_u32 s{dst}, s23, {i}', f's_cmp_ge_u32 s{dst}, 12', 's_cselect_b32 s48, 12, 0', f's_sub_u32 s{dst}, s{dst}, s48',
                f's_lshl_b32 s{dst}, s{dst}, 12', f's_add_u32 s{dst}, s{dst}, s51']
    def rdW_l(i, rs):
        u = lds_unit[i]
        va, off = (8, u) if u < WBASE + WSLOT - 5120 else ((9, u - (WBASE + 2*WSLOT)) if u >= WBASE + 2*WSLOT else (12, 0))
        return [f'ds_read_b128 {vr(WR+20*rs+4*t)}, v{va} offset:{off + 1024*t}' for t in range(5)]
    pendW = []
    for i in range(12):
        rs = regset[i] if i in regset else (i - 3) % 2
        gaps = {k: [] for k in range(20)}
        for k, l in zip((1, 3, 6, 8, 11), pendW): gaps[k].append(l)
        reuse = nH if nH < 12 and hmap[nH] == hmap[i] else None
        extra = None
        if reuse is not None:
            for k, l in enumerate(haddr(reuse, 56)): gaps[k // 2].append(l)
            nH += 1
        if nH < 12 and hmap[nH] == 2 and i == 3:
            pass
        first = Q.index(('H', i))
        for rt in range(4):
            A(f's_waitcnt vmcnt({len(Q) - 1 - (first + rt)})')
            if rt == 0:
                if i == 0: stamp(A, 5)
                if BST: stamp(A, 25 + i)
                if i not in regset:
                    A('s_waitcnt lgkmcnt(0)')
                if i == PQ_AT:
                    A('s_mov_b64 exec, 1\nds_write_b32 v13, v14 offset:144\ns_mov_b64 exec, -1')
                if i == 8:
                    A('s_mov_b64 exec, 1\nds_write_b32 v13, v14 offset:96\ns_mov_b64 exec, -1')
            for t in range(5):
                d = vr(a2(rt, t))
                A(f'v_mfma_f32_16x16x32_bf16 {d}, {vr(WR+20*rs+4*t)}, {vr(hb(i,rt))}, {d if i else 0}')
                for l in gaps[5 * rt + t]: A(l)
                if i == 11 and rt >= 2:
                    A(f'ds_write_b128 v{dump[rt-2][0]}, {vr(a2(rt-2,t))} offset:{dump[rt-2][1] + t*1024}')
            if reuse is not None:
                A(f'buffer_load_dwordx4 {vr(hb(reuse,rt))}, v5, s[40:43], s56 offen offset:{1024*rt} {LL}')
                Q.append(('H', reuse))
        if NRC == 2 and i in (9, 10):
            j = i - 7
            A(f's_add_u32 s48, s67, {j+1}\ns_and_b32 s48, s48, 3\ns_lshl_b32 s49, s48, 10\ns_add_u32 s56, s57, s49\ns_lshl_b32 s49, s48, 6\ns_add_u32 s49, s49, s58')
            for kk in range(5):
                A(f'buffer_load_dwordx4 {vr(WR + 8*kk + 4*(j-2))}, v5, s[40:43], s56 offen {LL}')
                if kk < 4: A('s_add_u32 s56, s56, 4096')
                Q.append(('P', j))
            A(f'buffer_load_dword v{20+j}, v11, s[40:43], s49 offen {LL}')
            Q.append(('P', j))
        while nH < 12 and all(hmap[j] != hmap[nH] for j in range(i + 1, nH)) and not (hmap[nH] == 2 and i < 2):
            issueH(nH); nH += 1
        tgt = {0: 3, 2: 4}.get(i, i + 2 if 5 <= i + 2 <= 8 else None)
        pendW = rdW_l(tgt, (tgt - 3) % 2) if tgt is not None else []
    stamp(A, 6)
    if NRC == 2:
        ZR = HBUF; DN = AC; SC = HBUF + 20; T0 = HBUF + 24
        lds_wait(A, 0, 68, 10, 1, four=False, sleep=1)
        for kk in range(5):
            A(f'ds_read_b128 {vr(ZR+4*kk)}, v4 offset:{16*kk}')
        A('s_waitcnt lgkmcnt(0)')
        for kk in range(5):
            for j in range(4):
                m = 's[62:63]' if (4 * kk + j) >= 10 else 's[60:61]'
                A(f'v_cndmask_b32 v{ZR+4*kk+j}, 0, v{ZR+4*kk+j}, {m}')
        A('s_waitcnt vmcnt(0)\ns_nop 0')
        for kk in range(5):
            for r in range(2):
                d = vr(DN + 4 * r)
                A(f'v_mfma_f32_16x16x32_bf16 {d}, {vr(ZR+4*kk)}, {vr(WR+8*kk+4*r)}, {d if kk else 0}')
        A('s_nop 7')
        for r in range(2):
            A(f'v_add_f32 v{DN+4*r}, s64, v{DN+4*r}\nv_add_f32 v{DN+4*r+1}, s64, v{DN+4*r+1}')
        for r in range(2):
            A(f'v_rcp_f32 v{DN+4*r}, v{DN+4*r}\nv_rcp_f32 v{DN+4*r+1}, v{DN+4*r+1}')
        A('s_nop 0')
        for r in range(2):
            A(f'v_mul_f32 v{SC+2*r}, v{22+r}, v{DN+4*r}\nv_mul_f32 v{SC+2*r+1}, v{22+r}, v{DN+4*r+1}')
        for kk in range(5):
            for r in range(2):
                b = WR + 8 * kk + 4 * r
                for j in range(4):
                    A(f'v_lshlrev_b32 v{T0+2*j}, 16, v{b+j}\nv_and_b32 v{T0+2*j+1}, s65, v{b+j}')
                for j in range(4):
                    odd = 1 if (4 * kk + j) >= 10 else 0
                    A(f'v_mul_f32 v{T0+2*j}, v{SC+2*r+odd}, v{T0+2*j}\nv_mul_f32 v{T0+2*j+1}, v{SC+2*r+odd}, v{T0+2*j+1}')
                for j in range(4):
                    A(f'v_cvt_pk_bf16_f32 v{b+j}, v{T0+2*j}, v{T0+2*j+1}')
                A(f'ds_write_b128 v9, {vr(b)} offset:{r*WSLOT + 1024*kk}')
            A(f'v_mov_b32 v10, {kk+1}\ns_mov_b64 exec, 1\nds_write_b32 v13, v10 offset:160\ns_mov_b64 exec, -1')
        lds_wait(A, 13, 176, 10, 1, four=False, sleep=1)
    for rt in (2, 3):
        for t in range(5):
            A(f'ds_write_b128 v{dump[rt][0]}, {vr(a2(rt,t))} offset:{dump[rt][1] + t*1024}')
    A('s_waitcnt lgkmcnt(0)')
    stamp(A, 7)
    A('s_barrier')
    R = WR
    for r in range(4):
        for t in (3, 4):
            A(f'ds_read_b128 {vr(R+8*r+4*(t-3))}, v15 offset:{r*5120 + 1024*t}')
    A(f'ds_read_b32 v18, v19 offset:{46080}')
    A('s_waitcnt lgkmcnt(5)')
    for r in range(3):
        for t in (3, 4):
            A(f'ds_read_b128 {vr(R+32+8*r+4*(t-3))}, v16 offset:{r*5120 + 1024*t}')
    for t in (3, 4):
        A(f'ds_read_b128 {vr(R+56+4*(t-3))}, v17 offset:{1024*(t-3)}')
    for k in range(0, 8, 2):
        A(f'v_pk_add_f32 {vr(R+k,2)}, {vr(R+k,2)}, {vr(R+8+k,2)}')
    A('s_waitcnt lgkmcnt(8)\nv_mov_b32 v19, v18')
    for k in range(0, 8, 2):
        A(f'v_pk_add_f32 {vr(R+16+k,2)}, {vr(R+16+k,2)}, {vr(R+24+k,2)}')
    for k in range(0, 8, 2):
        A(f'v_pk_add_f32 {vr(R+k,2)}, {vr(R+k,2)}, {vr(R+16+k,2)}')
    A('s_waitcnt lgkmcnt(0)')
    for k in range(0, 8, 2):
        A(f'v_pk_fma_f32 {vr(R+k,2)}, {vr(R+k,2)}, v[18:19], {vr(R+56+k,2)}')
    for sl in range(3):
        for k in range(0, 8, 2):
            A(f'v_pk_add_f32 {vr(R+k,2)}, {vr(R+k,2)}, {vr(R+32+8*sl+k,2)}')
    for t in (3, 4):
        b = R + 4 * (t - 3)
        A(f'v_cvt_pk_bf16_f32 v{b}, v{b}, v{b+1}\nv_cvt_pk_bf16_f32 v{b+1}, v{b+2}, v{b+3}')
        A(f'buffer_store_dwordx2 {vr(b,2)}, v20, s[28:31], s55 offen offset:{32*t}')
    finish(A)


def gen(A):
    K = NAME + '_kernel'
    A(f'.globl {K}\n.p2align 8\n.type {K},@function\n{K}:')
    A('s_cmp_ge_u32 s2, 256\ns_cbranch_scc1 L_end')
    A('s_load_dwordx4 s[4:7], s[0:1], 0')
    A('s_load_dwordx4 s[8:11], s[0:1], 32')
    A('s_load_dwordx4 s[12:15], s[0:1], 48')
    A('s_load_dwordx2 s[16:17], s[0:1], 80')
    A.c('decode: s18 rb, s19 cq, s20 m, s21 wave, s22 gtype, s23 rbl, s55 is_gc')
    A('v_lshrrev_b32 v1, 6, v0\nv_and_b32 v2, 63, v0')
    A('s_bfe_u32 s23, s2, 0x10003\ns_and_b32 s18, s2, 7\ns_lshl_b32 s18, s18, 1\ns_add_u32 s18, s18, s23' if not MAP84 else 's_bfe_u32 s23, s2, 0x30003\ns_and_b32 s18, s2, 1\ns_lshl_b32 s18, s18, 3\ns_add_u32 s18, s18, s23')
    A('v_readfirstlane_b32 s21, v1')
    A('s_bfe_u32 s19, s2, 0x20004\ns_lshr_b32 s20, s2, 6' if not MAP84 else ('s_bfe_u32 s19, s2, 0x20001\ns_lshr_b32 s20, s2, 6' if not KVX else 's_bfe_u32 s20, s2, 0x20001\ns_lshr_b32 s19, s2, 6'))
    A('s_mul_i32 s22, s19, 3\ns_add_u32 s22, s22, s20\ns_sub_u32 s22, s22, 1')
    A('s_cmp_eq_u32 s22, 10\ns_cselect_b32 s55, 1, 0\ns_cmp_ge_i32 s22, 10\ns_cselect_b32 s91, 1, 0')
    if STAMP:
        A('v_mov_b32 v1, 0\ns_mov_b32 s100, 0\ns_mov_b32 s101, 0')
        stamp(A, 0); stamp_rt(A, 62)
    A('s_cmp_lt_u32 s21, 4\ns_cbranch_scc1 L_compute')
    gen_loader(A)
    gen_compute(A)
    A('L_end:\ns_endpgm')
    A('.p2align 7\nL_table:')
    for i in range(32):
        A(f'.long {i}')


def main(out):
    A = Asm()
    gen(A)
    K = NAME + '_kernel'
    hdr = open('cdna_kernels/' + NAME + '.s.ref').read().split('; Override')[0]
    txt = hdr + f'; @launch grid=(256,1,1) block=(512,1,1) lds={LDS_TOTAL}\n'
    txt += '.amdgcn_target "amdgcn-amd-amdhsa--gfx950"\n.text\n' + A.text()
    txt += f'''.section .rodata,"a"
.p2align 6
.amdhsa_kernel {K}
  .amdhsa_next_free_vgpr 256
  .amdhsa_next_free_sgpr 102
  .amdhsa_accum_offset 256
  .amdhsa_group_segment_fixed_size 0
  .amdhsa_kernarg_size 88
  .amdhsa_user_sgpr_count 2
  .amdhsa_user_sgpr_kernarg_segment_ptr 1
  .amdhsa_system_sgpr_workgroup_id_x 1
.end_amdhsa_kernel
'''
    open(out, 'w').write(txt)

if __name__ == '__main__':
    for a in sys.argv[2:]:
        k, v = a.split('=', 1)
        globals()[k] = eval(v)
    main(sys.argv[1] if len(sys.argv) > 1 else 'cdna_kernels/' + NAME + '.s')
```

```python
import sys

NAME = 'gated_mix__linear_attn_block__glu_gated_glu__prompt'

HB_OFF = 0
W2_OFF = 0x900000
M_OFF = 0xB00000
KVS = 3584
KVP_OFF = 0xC00000
G_OFF = 0xF00000
ZB_OFF = 0xF10000
FSH = 13
FG_OFF = 0xF40000
FP_OFF = 0xF60800
FM_OFF = 0xF81000
FW_OFF = 0xFA1800
STAMP_OFF = 0x1000000
WS_USED = 0x1100000
OOB = 0x7FFF0000

XSLOT = 16384; NX = 3
WBASE = NX * XSLOT
WSLOT = 20480; NW = 5
GWBASE = WBASE + NW * WSLOT
LDS_TOTAL = 163840
CT = 159744
P2_SCR = 0
RPK = GWBASE
CODEPF = True
EV = {1: (0, [(0, 3), (2, 15)]), 2: (1, [(1, 5), (3, 15)]), 3: (2, [(2, 7), (4, 15)])}
THIRD = 3
RPORD = (11, 1, 4, 7, 2, 5, 8, 0, 3, 6, 9, 10)
STAMP = False
GWS = 320
PRIO = 2
LSLEEP = 3
DEPTH = 2
EXP = ''
DEFER = False
BURST = 0
FINEG = True
GEARLY = 0
START2 = 0
RTS = False
WSM = 1
KVACK = True
R0LATE = False
L2PF = 0
KVPRE = 6
PAX = 2
ZM = 255
MACK = False
SPEC_M = True
NRC = 4
BST = True
PQ_AT = 3
NLEAD = 2
COOP_P = True
COOP_M = True
MK0 = 2
NPK = True
KVX = False
APRIO = 2
BPRIO = 0
MAP84 = True
LS = 'sc1'
LL = 'sc1'
KPRE = 6
LPS = 1
LP0 = 0
GPOLL = 'A'
GD = 8
KVG = 3
T1N = 6
PRETOUCH = False
STG_THR = 6
PSLEEP = 8
MSLEEP = 12
MDELAY = 64
GDELAY = 0
STG_EARLY = False
SPIN_MAX = 0x20000


class Asm:
    def __init__(self):
        self.L = []
        self.nl = 0
    def __call__(self, s):
        for line in s.split('\n'):
            line = line.strip()
            if line:
                self.L.append(line if line.endswith(':') else '    ' + line)
    def c(self, s):
        self.L.append('    ; ' + s)
    def label(self, p='L'):
        self.nl += 1
        return f'{p}_{self.nl}'
    def text(self):
        return '\n'.join(self.L) + '\n'


def vr(b, n=4):
    return f'v[{b}:{b+n-1}]'

def srd(A, d, lo, nbytes):
    A(f's_mov_b32 s{d}, s{lo}\ns_mov_b32 s{d+1}, s{lo+1}\ns_mov_b32 s{d+2}, {nbytes}\ns_mov_b32 s{d+3}, 0x20000')

def stamp(A, n):
    if STAMP:
        A(f'{"s_memrealtime" if RTS else "s_memtime"} s[98:99]\ns_waitcnt lgkmcnt(0)\nv_writelane_b32 v1, s98, {n}')
def stamp_rt(A, n):
    if STAMP:
        A(f's_memrealtime s[98:99]\ns_waitcnt lgkmcnt(0)\nv_writelane_b32 v1, s98, {n}')
def tbeg(A):
    if STAMP and 'quiet' not in EXP: A('s_memtime s[98:99]\ns_waitcnt lgkmcnt(0)\ns_mov_b32 s3, s98')
def tend(A, r):
    if STAMP and 'quiet' not in EXP: A(f's_memtime s[98:99]\ns_waitcnt lgkmcnt(0)\ns_sub_u32 s3, s98, s3\ns_add_u32 s{r}, s{r}, s3')
def finish(A):
    if STAMP:
        A('s_waitcnt vmcnt(0)')
        stamp(A, 61); stamp_rt(A, 63)
        A('v_writelane_b32 v1, s100, 59\nv_writelane_b32 v1, s101, 60')
        A('s_mov_b64 exec, -1')
        A(f's_lshl_b32 s3, s2, 3\ns_add_u32 s3, s3, s21\ns_lshl_b32 s3, s3, 8\ns_add_u32 s3, s3, {STAMP_OFF}\nv_lshlrev_b32 v2, 2, v2')
        A('buffer_store_dword v1, v2, s[40:43], s3 offen')
    A('s_endpgm')

LOG2E = 0x3fb8aa3b
NLOG2E = 0xbfb8aa3b
EPS = 0x358637bd

ACC = 96; XF = 64; WF = 24
def acc(i, t): return ACC + 20 * i + 4 * t


THR = 0
def dma(A, m0expr, voff, sr, so):
    A(m0expr)
    A(f's_waitcnt vmcnt({THR-1})' if THR else 's_nop 0')
    A(f'buffer_load_dwordx4 v{voff}, s[{sr}:{sr+3}], s{so} offen lds')


def poll(A, soff, nl, vt, vaddr, sleep=None, first_sleep=False):
    l0 = A.label('L_poll'); l1 = A.label('L_polled')
    A('s_mov_b32 s90, 0')
    A(f's_mov_b64 exec, {hex((1 << nl) - 1)}' if nl <= 31 else f's_mov_b32 exec_lo, -1\ns_mov_b32 exec_hi, {hex((1 << (nl - 32)) - 1)}')
    A(f'{l0}:')
    A(f'buffer_load_dwordx2 {vr(vt,2)}, v{vaddr}, s[40:43], s{soff} offen sc1')
    A('s_waitcnt vmcnt(0)')
    A(f'v_cmp_ne_u64 vcc, s[88:89], {vr(vt,2)}')
    A(f's_cbranch_vccz {l1}')
    A(f's_sleep {PSLEEP if sleep is None else sleep}\ns_add_u32 s90, s90, 1\ns_cmp_lt_u32 s90, {SPIN_MAX}\ns_cbranch_scc1 {l0}')
    A(f'{l1}:')
    A('s_mov_b64 exec, -1')


def spoll(A, parts, sleep=2):
    l0 = A.label('L_sp'); l1 = A.label('L_spd')
    A('s_mov_b32 s96, 0')
    A(f'{l0}:')
    regs = []
    for so, imm, n, sb in parts:
        A(f's_load_dwordx{2*n} s[{sb}:{sb+2*n-1}], s[16:17], s{so} offset:{imm} glc')
        regs += [sb + 2 * k for k in range(n)]
    A('s_waitcnt lgkmcnt(0)')
    for r in regs:
        A(f's_xor_b64 s[{r}:{r+1}], s[{r}:{r+1}], s[88:89]')
    for r in regs[1:]:
        A(f's_or_b64 s[{regs[0]}:{regs[0]+1}], s[{regs[0]}:{regs[0]+1}], s[{r}:{r+1}]')
    A(f's_cbranch_scc0 {l1}')
    A(f's_sleep {sleep}\ns_add_u32 s96, s96, 1\ns_cmp_lt_u32 s96, {SPIN_MAX}\ns_cbranch_scc1 {l0}')
    A(f'{l1}:')


def set_flag(A, soff, vt):
    A(f'v_mov_b32 v{vt}, s88\nv_mov_b32 v{vt+1}, s89\nv_mov_b32 v{vt+2}, 0')
    A('s_waitcnt vmcnt(0)')
    A('s_mov_b64 exec, 1')
    A(f'buffer_store_dwordx2 {vr(vt,2)}, v{vt+2}, s[40:43], s{soff} offen sc1')
    A('s_mov_b64 exec, -1')


def table_srd(A, d):
    l = A.label('L_pc')
    A(f's_getpc_b64 s[{d}:{d+1}]\n{l}:\ns_add_u32 s{d}, s{d}, L_table-{l}\ns_addc_u32 s{d+1}, s{d+1}, 0\ns_movk_i32 s{d+2}, 128\ns_mov_b32 s{d+3}, 0x20000')


def lds_free(A, vaddr, vt, sdst):
    A(f'ds_read_b32 v{vt}, v{vaddr}\ns_waitcnt lgkmcnt(0)')
    A(f'v_readlane_b32 s{sdst}, v{vt}, 0\nv_readlane_b32 s48, v{vt}, 1\ns_min_u32 s{sdst}, s{sdst}, s48\nv_readlane_b32 s48, v{vt}, 2\ns_min_u32 s{sdst}, s{sdst}, s48\nv_readlane_b32 s48, v{vt}, 3\ns_min_u32 s{sdst}, s{sdst}, s48')


def lds_min4(A, vaddr, off, vt, sdst):
    A(f'ds_read_b128 {vr(vt)}, v{vaddr} offset:{off}\ns_waitcnt lgkmcnt(0)')
    A(f'v_min3_u32 v{vt}, v{vt}, v{vt+1}, v{vt+2}\nv_min_u32 v{vt}, v{vt}, v{vt+3}\ns_nop 0\nv_readfirstlane_b32 s{sdst}, v{vt}')


def lds_wait(A, vaddr, off, vt, need, four=True, sdst=90, sleep=1):
    l0 = A.label('L_lw'); l1 = A.label('L_lwd')
    if sleep in (2, 4): sleep *= WSM
    A('s_mov_b32 s96, 0')
    A(f'{l0}:')
    if four == 'free':
        lds_free(A, vaddr, vt, sdst)
    elif four:
        lds_min4(A, vaddr, off, vt, sdst)
    else:
        A(f'ds_read_b32 v{vt}, v{vaddr} offset:{off}\ns_waitcnt lgkmcnt(0)\nv_readfirstlane_b32 s{sdst}, v{vt}')
    A(f's_cmp_ge_i32 s{sdst}, {need}\ns_cbranch_scc1 {l1}')
    A(f's_sleep {sleep}\ns_add_u32 s96, s96, 1\ns_cmp_lt_u32 s96, {SPIN_MAX*16}\ns_cbranch_scc1 {l0}')
    A(f'{l1}:')


def lds_wait_mask(A, vaddr, off, vt, smask, sleep=2):
    l0 = A.label('L_mw'); l1 = A.label('L_mwd')
    A('s_mov_b32 s96, 0')
    A(f'{l0}:')
    A(f'ds_read_b32 v{vt}, v{vaddr} offset:{off}\ns_waitcnt lgkmcnt(0)\nv_readfirstlane_b32 s90, v{vt}')
    A(f's_andn2_b32 s90, {smask}, s90\ns_cbranch_scc0 {l1}')
    A(f's_sleep {sleep}\ns_add_u32 s96, s96, 1\ns_cmp_lt_u32 s96, {SPIN_MAX*16}\ns_cbranch_scc1 {l0}')
    A(f'{l1}:')


def mainloop(A, kv, tag):
    def upd_s():
        L = [f's_add_u32 s50, s50, {WSLOT}', f's_cmp_ge_u32 s50, {WBASE + NW*WSLOT}', f's_cselect_b32 s50, {WBASE}, s50']
        if not kv:
            L += ['s_add_u32 s52, s52, s53', 's_cmp_ge_u32 s52, s57', f's_cselect_b32 s52, {WBASE}, s52']
        return L
    def set_w():
        return [f'v_add_u32 v{15+t}, s50, v{10+t}' for t in range(4)] + [f'v_add_u32 v19, s{50 if kv else 52}, v14']
    def upd_blk():
        return [f's_add_u32 s51, s51, {XSLOT}', f's_cmp_ge_u32 s51, {NX*XSLOT}', 's_cselect_b32 s51, 0, s51']
    def set_x(par):
        return [f'v_add_u32 v{4+par}, s51, v{20+par}']
    def rdW(p, t, h):
        b = WF + 20 * p + 4 * t + 2 * h
        return f'ds_read_b64_tr_b16 {vr(b,2)}, v{15+t} offset:{512*h}'
    def rdX(i, par):
        return f'ds_read_b128 {vr(XF+4*i)}, v{4+par} offset:{2048*i}'
    def mfma(i, t, p):
        w = vr(WF + 20 * p + 4 * t); x = vr(XF + 4 * i); d = vr(acc(i, t))
        A(f'v_mfma_f32_16x16x32_bf16 {d}, {x}, {w}, {d}' if kv else f'v_mfma_f32_16x16x32_bf16 {d}, {w}, {x}, {d}')
    A(f's_mov_b32 s50, {WBASE}\ns_mov_b32 s51, 0\ns_mov_b32 s54, 0')
    if not kv:
        A(f's_cmp_lg_u32 s55, 0\ns_cselect_b32 s52, {GWBASE}, s50\ns_movk_i32 s53, {WSLOT}\ns_cselect_b32 s53, {GWS}, s53\ns_mov_b32 s57, {WBASE + NW*WSLOT}\ns_cselect_b32 s57, -1, s57')
    for l in set_w() + set_x(0) + set_x(1):
        A(l)
    A(f'v_mov_b32 v3, {CT}\ns_lshl_b32 s48, s21, 8\ns_add_u32 m0, s48, {CT+256}\nv_mov_b32 v0, {OOB}\nv_writelane_b32 v0, 0, 0')
    table_srd(A, 44)
    stamp(A, 1)
    lds_wait(A, 3, 0, 6, 1, sdst=59)
    A('s_waitcnt vmcnt(0)')
    A(f's_setprio {PRIO}')
    stamp(A, 2)
    for t in range(5):
        A(rdW(0, t, 0)); A(rdW(0, t, 1))
    A('s_waitcnt lgkmcnt(6)')
    for i in range(8):
        A(rdX(i, 0))
    for l in upd_s() + set_w():
        A(l)
    A('s_mov_b32 s58, 2\ns_cmp_ge_i32 s59, s58')
    A(f's_cbranch_scc0 L_{tag}_slow0')
    A('.p2align 3')
    for p in range(2):
        gap = {k: [] for k in range(40)}
        for i in range(5):
            gap[5*i].append(rdW(1 - p, i, 0)); gap[5*i + 2].append(rdW(1 - p, i, 1))
        for i in range(8):
            gap[5*i + 4].append(rdX(i, 1 - p))
        gap[9].append('s_waitcnt lgkmcnt(6)')
        gap[1].append('s_add_u32 s54, s54, 4')
        gap[11].append('buffer_load_dword v0, s[44:47], s54 offen lds')
        gap[6].append('s_add_u32 s58, s58, 1'); gap[8].append('s_min_u32 s58, s58, 20')
        sal = upd_s() + (upd_blk() if p == 0 else [])
        for k in (13, 13, 16, 16, 18, 18, 21, 21, 23):
            if sal: gap[k].append(sal.pop(0))
        assert not sal
        gap[23].append('ds_read_b128 v[6:9], v3')
        for k, l in zip((25, 26, 27, 28, 30, 31), set_w() + set_x(p)):
            gap[k].append(l)
        gap[32].append('s_waitcnt lgkmcnt(2)'); gap[32].append('v_min3_u32 v6, v6, v7, v8')
        gap[33].append('v_min_u32 v6, v6, v9')
        gap[35].append('v_readfirstlane_b32 s59, v6')
        if p == 1:
            gap[36].append('s_cmp_lt_u32 s54, 80'); gap[37].append(f's_cbranch_scc0 L_{tag}_last')
        gap[38].append('s_cmp_ge_i32 s59, s58' if 'nowait' not in EXP else 's_cmp_eq_u32 s59, s59')
        if 'novalu' in EXP:
            for k in gap: gap[k] = [l for l in gap[k] if not l.startswith('v_')]
        if 'nods' in EXP:
            for k in gap: gap[k] = [l for l in gap[k] if not l.startswith('ds_')]
        if 'nosalu' in EXP:
            for k in gap: gap[k] = [l for l in gap[k] if not (l.startswith('s_') and 13 <= k <= 23)]
        if 'noctl' in EXP:
            for k in gap: gap[k] = [l for l in gap[k] if not (' v6' in l or 'v[6:9]' in l)]
        if 'nowr' in EXP:
            for k in gap: gap[k] = [l for l in gap[k] if not l.startswith('ds_write')]
        if 'now32' in EXP:
            gap[32] = [l for l in gap[32] if not l.startswith('s_waitcnt')]
        if 'nopub' in EXP: pass
        if p == 0:
            A(f'L_{tag}_go0:')
        else:
            A(f's_cbranch_scc0 L_{tag}_slow1')
            A(f'L_{tag}_go1:')
        A('s_waitcnt lgkmcnt(2)')
        for i in range(8):
            for t in range(5):
                mfma(i, t, p)
                for l in gap[5*i + t]: A(l)
    A(f's_cbranch_scc1 L_{tag}_go0')
    for p in range(2):
        A(f'L_{tag}_slow{p}:')
        tbeg(A)
        lds_wait(A, 3, 0, 6, 's58', sdst=59)
        tend(A, 100)
        if STAMP: A('s_add_u32 s101, s101, 1')
        A(f's_branch L_{tag}_go{p}')
    A(f'L_{tag}_last:')
    mfma(7, 3, 1); mfma(7, 4, 1)
    A('s_waitcnt lgkmcnt(0)')
    stamp(A, 3)
    A('s_nop 6')
    if 'p1' in EXP: finish(A)


def phi_q(A, b, t, dst=None):
    dst = b if dst is None else dst
    A(f'v_pk_mul_f32 {vr(t,2)}, {vr(b,2)}, s[60:61]\nv_pk_mul_f32 {vr(t+2,2)}, {vr(b+2,2)}, s[60:61]')
    for j in range(4):
        A(f'v_exp_f32 v{t+j}, v{t+j} clamp')
    for j in range(4):
        A(f'v_max_f32 v{dst+j}, s66, v{b+j}')
    A(f'v_pk_add_f32 {vr(dst,2)}, {vr(dst,2)}, {vr(t,2)}\nv_pk_add_f32 {vr(dst+2,2)}, {vr(dst+2,2)}, {vr(t+2,2)}')


def gen_compute(A):
    A('L_compute:')
    if CODEPF:
        A('s_cmp_lg_u32 s21, 0\ns_cbranch_scc1 L_nocpf')
        A(f's_getpc_b64 s[44:45]\nL_pc:\ns_sub_u32 s44, s44, L_pc-{NAME}_kernel\ns_subb_u32 s45, s45, 0\ns_mov_b32 s46, L_end-{NAME}_kernel\ns_mov_b32 s47, 0x20000')
        A('s_lshr_b32 s48, s2, 3\ns_lshl_b32 s48, s48, 11\nv_lshlrev_b32 v3, 7, v2\ns_mov_b64 exec, 0xffff')
        A('buffer_load_dword v95, v3, s[44:47], s48 offen\ns_mov_b64 exec, -1')
        A('L_nocpf:')
    A('s_barrier')
    A.c('compute wave setup: v3=q v4=r v5=c v6=f<<5 v7=rowpart')
    for r in range(ACC, 256, 2):
        A(f'v_mov_b64 {vr(r,2)}, 0')
    A('v_lshrrev_b32 v3, 4, v2\nv_bfe_u32 v4, v2, 2, 2\nv_and_b32 v5, 3, v2')
    A('v_lshrrev_b32 v6, 1, v4\nv_and_b32 v8, 1, v3\nv_lshl_add_u32 v6, v8, 1, v6\nv_lshlrev_b32 v6, 5, v6')
    A('v_mul_u32_u24 v7, 5120, v3\nv_lshl_add_u32 v7, v4, 7, v7')
    A('v_and_b32 v8, 15, v2\nv_lshrrev_b32 v9, 1, v8\nv_xor_b32 v9, v9, v3\nv_lshlrev_b32 v9, 4, v9\nv_lshl_add_u32 v20, v8, 7, v9\nv_xor_b32 v21, 64, v20')
    A(f's_mov_b32 s60, {LOG2E}\ns_mov_b32 s61, {LOG2E}\ns_mov_b32 s62, {NLOG2E}\ns_mov_b32 s63, {NLOG2E}')
    A(f's_mov_b32 s64, 1.0\ns_mov_b32 s65, 1.0\ns_mov_b32 s66, {EPS}')
    A('s_waitcnt lgkmcnt(0)')
    srd(A, 40, 16, WS_USED)
    if PRETOUCH:
        A('s_cmp_lg_u32 s21, 1\ns_cbranch_scc1 L_nopt')
        A('s_load_dwordx2 s[28:29], s[0:1], 64\ns_load_dwordx2 s[32:33], s[0:1], 16\ns_mov_b32 s30, 2621440\ns_mov_b32 s31, 0x20000\ns_mov_b32 s34, 819200\ns_mov_b32 s35, 0x20000')
        srd(A, 36, 12, 1966080)
        A('v_lshlrev_b32 v8, 18, v2\nv_lshlrev_b32 v9, 16, v2')
        A('buffer_load_dword v92, v8, s[40:43], 0 offen\nbuffer_load_dword v93, v9, s[36:39], 0 offen\ns_waitcnt lgkmcnt(0)')
        A('buffer_load_dword v94, v9, s[28:31], 0 offen\nbuffer_load_dword v95, v9, s[32:35], 0 offen')
        A('L_nopt:')
    A('s_cmp_eq_u32 s20, 0\ns_cbranch_scc1 L_kv')

    A('s_lshr_b32 s48, s21, 1\ns_lshl_b32 s48, s48, 10\ns_and_b32 s49, s21, 1\ns_lshl_b32 s49, s49, 3')
    A('v_add_u32 v8, s49, v5\nv_lshlrev_b32 v8, 3, v8\nv_xor_b32 v9, v8, v6\nv_add3_u32 v10, v9, v7, s48')
    A('v_add_u32 v8, 32, v8\nv_xor_b32 v9, v8, v6\nv_add3_u32 v11, v9, v7, s48')
    A('v_add_u32 v12, 2048, v10\nv_add_u32 v13, 2048, v11')
    A('s_lshl_b32 s49, s21, 2\nv_add_u32 v8, s49, v5\nv_lshlrev_b32 v8, 3, v8\nv_xor_b32 v9, v8, v6\nv_add_u32 v14, v9, v7\nv_add_u32 v14, 4096, v14')
    A('s_cmp_eq_u32 s55, 0\ns_cbranch_scc1 L_g_notgc')
    A('v_lshlrev_b32 v14, 5, v3\nv_lshl_add_u32 v14, v4, 3, v14')
    A('L_g_notgc:')
    A('v_lshlrev_b32 v22, 4, v2')
    A(f's_mul_i32 s72, s18, {2*68*4096}\ns_add_u32 s73, s72, {68*4096}')
    A('s_lshl_b32 s48, s22, 2\ns_add_u32 s48, s48, s21\ns_lshl_b32 s49, s48, 12\ns_add_u32 s70, s72, s49\ns_add_u32 s71, s73, s49')
    A(f's_lshl_b32 s74, s18, {FSH}\ns_lshl_b32 s49, s48, 3\ns_add_u32 s74, s74, s49\ns_add_u32 s74, s74, {FG_OFF}')
    A('s_lshl_b32 s48, s48, 2\nv_add_u32 v5, s48, v3')
    A('v_mul_u32_u24 v6, 6554, v5\nv_lshrrev_b32 v6, 16, v6\nv_mul_u32_u24 v7, 10, v6\nv_sub_u32 v7, v5, v7')
    A('v_lshrrev_b32 v8, 2, v6\nv_and_b32 v6, 3, v6')
    A('v_mul_u32_u24 v8, 5, v8\nv_lshrrev_b32 v9, 1, v7\nv_add3_u32 v8, v8, v9, 48\nv_lshlrev_b32 v8, 12, v8')
    A('v_and_b32 v9, 15, v2\nv_lshl_add_u32 v9, v6, 4, v9\nv_lshl_add_u32 v8, v9, 4, v8')
    A('v_and_b32 v7, 1, v7\nv_lshl_add_u32 v23, v7, 10, v8')
    mainloop(A, False, 'g')
    A.c('h = u * sigmoid(g)')
    hst = []; pst = []
    for i in range(8):
        g = acc(i, 0); u = acc(i, 2)
        for j in range(4):
            A(f'v_pk_mul_f32 {vr(g+2*j,2)}, {vr(g+2*j,2)}, s[62:63]')
        for j in range(8):
            A(f'v_exp_f32 v{g+j}, v{g+j}')
        for j in range(4):
            A(f'v_pk_add_f32 {vr(g+2*j,2)}, {vr(g+2*j,2)}, s[64:65]')
        for j in range(8):
            A(f'v_rcp_f32 v{g+j}, v{g+j}')
        for j in range(4):
            A(f'v_pk_mul_f32 {vr(u+2*j,2)}, {vr(u+2*j,2)}, {vr(g+2*j,2)}')
        for j in range(4):
            A(f'v_cvt_pk_bf16_f32 v{g+j}, v{u+2*j}, v{u+2*j+1}')
        hst.append(f'buffer_store_dwordx4 {vr(g)}, v22, s[40:43], s{70 + (i>>2)} offen offset:{(i&3)*1024} {LS}')
        if not BURST: A(hst.pop())
    if BURST == 1:
        for l in hst: A(l)
        hst = []
    A('s_cmp_lg_u32 s91, 0\ns_cbranch_scc1 L_gc_epi')
    A.c('pq = phi(q)')
    for i in range(0, 8, 2):
        a0 = acc(i, 4); b0 = acc(i + 1, 4)
        phi_q(A, a0, 24 + 8 * ((i >> 1) & 1))
        phi_q(A, b0, 28 + 8 * ((i >> 1) & 1))
        A(f'v_cvt_pk_bf16_f32 v{a0}, v{a0}, v{a0+1}\nv_cvt_pk_bf16_f32 v{a0+1}, v{a0+2}, v{a0+3}')
        A(f'v_cvt_pk_bf16_f32 v{a0+2}, v{b0}, v{b0+1}\nv_cvt_pk_bf16_f32 v{a0+3}, v{b0+2}, v{b0+3}')
        A('s_nop 1')
        A(f'v_permlane16_swap_b32 v{a0}, v{a0+2}\nv_permlane16_swap_b32 v{a0+1}, v{a0+3}')
        pst.append(f'buffer_store_dwordx4 {vr(a0)}, v23, s[40:43], s{72 + (i>>2)} offen offset:{(i&3)*1024} {LS}')
        if BURST != 2: A(pst.pop())
    for l in hst + pst: A(l)
    A('s_branch L_p1_done')
    A('L_gc_epi:')
    for l in hst: A(l)
    A.c('gate g = sigmoid(logit); stored by gtype 10, wave 0')
    A('v_and_b32 v8, 15, v2\nv_lshlrev_b32 v8, 2, v8')
    A(f's_lshl_b32 s48, s18, 9\ns_add_u32 s48, s48, {G_OFF}\ns_lshl_b32 s49, s22, 2\ns_add_u32 s49, s49, s21')
    A(f's_cmp_eq_u32 s49, 40\ns_cselect_b32 s48, s48, {OOB}')
    for i in range(8):
        A(f'v_mul_f32 v{acc(i,4)}, s62, v{acc(i,4)}')
    for i in range(8):
        A(f'v_exp_f32 v{acc(i,4)}, v{acc(i,4)}')
    for i in range(8):
        A(f'v_add_f32 v{acc(i,4)}, 1.0, v{acc(i,4)}')
    for i in range(8):
        A(f'v_rcp_f32 v{acc(i,4)}, v{acc(i,4)}')
    A('s_nop 0\ns_mov_b64 exec, 0xffff')
    for i in range(8):
        A(f'buffer_store_dword v{acc(i,4)}, v8, s[40:43], s48 offen offset:{64*i} {LS}')
    A('s_mov_b64 exec, -1')
    A('s_branch L_p1_done')

    A('L_kv:')
    A('s_mul_i32 s48, s21, 10\ns_and_b32 s49, s19, 1\ns_lshl_b32 s49, s49, 3\ns_sub_u32 s48, s48, s49')
    def kvaddr(dst, u, isv):
        A(f'v_add_u32 v9, 40, {u}\nv_cmp_gt_i32 vcc, 0, {u}\ns_nop 1\nv_cndmask_b32 v8, {u}, v9, vcc')
        A(f'v_lshrrev_b32 v9, 4, v8\nv_lshl_add_u32 v9, {isv}, 1, v9\nv_and_b32 v23, 15, v8')
        A(f'v_lshl_add_u32 v22, {isv}, 3, v23')
        A('v_cmp_gt_u32 vcc, 32, v8\ns_nop 1\nv_cndmask_b32 v9, 4, v9, vcc\nv_cndmask_b32 v23, v22, v23, vcc')
        A(f'v_lshlrev_b32 v23, 3, v23\nv_xor_b32 v23, v23, v6\nv_lshlrev_b32 v22, 4, {isv}\nv_xor_b32 v23, v23, v22')
        A(f'v_lshl_add_u32 v23, v9, 10, v23\nv_add_u32 v{dst}, v23, v7')
    A('v_mov_b32 v16, 0\nv_mov_b32 v17, 1\nv_add_u32 v15, s48, v5')
    kvaddr(10, 'v15', 'v16'); kvaddr(12, 'v15', 'v17')
    A('v_add_u32 v15, 5, v15')
    kvaddr(11, 'v15', 'v16'); kvaddr(13, 'v15', 'v17')
    A('v_and_b32 v15, 1, v5\nv_mul_u32_u24 v15, 5, v15\nv_add3_u32 v15, v15, s48, 4\nv_lshrrev_b32 v16, 1, v5')
    kvaddr(14, 'v15', 'v16')
    A('v_lshlrev_b32 v22, 4, v2\nv_lshlrev_b32 v23, 4, v3')
    A('v_and_b32 v8, 15, v2\nv_cmp_gt_u32 s[68:69], 8, v8')
    A(f's_lshl_b32 s48, s19, 2\ns_add_u32 s48, s48, s21\ns_lshl_b32 s48, s48, 4\ns_add_u32 s48, s48, s18\ns_mul_i32 s70, s48, {KVS}\ns_add_u32 s70, s70, {KVP_OFF}')
    prods = [(0, 0), (1, 1), (2, 0), (2, 1), (0, 2), (1, 2), (2, 2)]
    A(f's_lshr_b32 s71, s21, 1\ns_mul_i32 s71, s71, {RPK - 40960}\ns_and_b32 s49, s21, 1\ns_lshl_b32 s49, s49, 12\ns_add_u32 s71, s71, s49\ns_add_u32 s71, s71, 40960')
    A('v_mul_u32_u24 v23, 5, v8\nv_add_u32 v23, v23, v3\nv_lshlrev_b32 v23, 4, v23\nv_add_u32 v23, s71, v23')
    mainloop(A, True, 'kv')
    A.c('KV epilogue')
    A('v_mov_b32 v12, 0x3f803f80\nv_mov_b32 v13, v12\nv_mov_b32 v14, v12\nv_mov_b32 v15, v12')
    KT = {0: 0, 1: 1, 2: 4}; VT = {0: 2, 1: 3, 2: 4}
    PR = 24
    pend = []
    def flush(k):
        for _ in range(k):
            if pend: A(pend.pop(0))
    for kk in range(4):
        n = 0
        for i in (2 * kk, 2 * kk + 1):
            for t in (0, 1):
                phi_q(A, acc(i, t), 64 + 4 * (n % 4)); n += 1
                flush(2)
            b = acc(i, 4); s = 80 + 4 * (i & 1)
            phi_q(A, b, 64 + 4 * (n % 4), s); n += 1
            for j in range(4):
                A(f'v_cndmask_b32 v{b+j}, v{b+j}, v{s+j}, s[68:69]')
            flush(1)
        assert not pend
        for t in range(5):
            a = acc(2 * kk, t); b = acc(2 * kk + 1, t)
            A(f'v_cvt_pk_bf16_f32 v{a}, v{a}, v{a+1}\nv_cvt_pk_bf16_f32 v{a+1}, v{a+2}, v{a+3}')
            A(f'v_cvt_pk_bf16_f32 v{a+2}, v{b}, v{b+1}\nv_cvt_pk_bf16_f32 v{a+3}, v{b+2}, v{b+3}')
        for n, (tv, tk) in enumerate(prods):
            d = vr(PR + 4 * n)
            pend.append(f'v_mfma_f32_16x16x32_bf16 {d}, {vr(acc(2*kk,VT[tv]))}, {vr(acc(2*kk,KT[tk]))}, {d if kk else 0}')
        for tk in range(3):
            d = vr(52 + 4 * tk)
            pend.append(f'v_mfma_f32_16x16x32_bf16 {d}, {vr(acc(2*kk,KT[tk]))}, v[12:15], {d if kk else 0}')
    A('s_nop 1')
    flush(10)
    get_epoch(A, 3, 6)
    A(f'v_and_b32 v9, 3, v2\nv_lshlrev_b32 v9, 8, v9\nv_add_u32 v9, {CT+256}, v9')
    lds_wait(A, 9, 0, 8, 18, four='free', sleep=1)
    HB_ = 1792
    wr = [(0, None, 0), (1, None, HB_), (2, (0, 0xffff), 32), (3, (0, 0xffff0000), HB_ + 16), (4, (0x000f000f, 0x000f000f), 1280),
          (5, (0x00f000f0, 0x00f000f0), HB_ + 960), (6, (0, 0x0000000f), 1280 + 32), (6, (0, 0x00f00000), HB_ + 960 + 16),
          (7, (0x00010001, 0x00010001), 1600), (8, (0x00010001, 0x00010001), HB_ + 1600), (9, (1, 0), 1664), (9, (0x10000, 0), HB_ + 1648)]
    for n, m, off in wr:
        if m: A(f's_mov_b32 exec_lo, {hex(m[0])}\ns_mov_b32 exec_hi, {hex(m[1])}')
        A(f'ds_write_b128 v23, {vr(PR+4*n)} offset:{off}')
    A('s_mov_b64 exec, -1\nv_add_u32 v9, s71, v22')
    for i in range(4):
        A(f'ds_read_b128 {vr(64+4*i)}, v9 offset:{1024*i}')
    A('s_and_b32 s76, s88, 0xfff\ns_bfe_u32 s77, s88, 0xc000c\ns_lshr_b64 s[78:79], s[88:89], 24\ns_xor_b32 s78, s78, s88\ns_bfe_u32 s79, s78, 0xc000c\ns_and_b32 s78, s78, 0xfff')
    A('v_mov_b32 v6, 0xfffff000')
    for i in range(4):
        A(f's_waitcnt lgkmcnt({3-i})')
        for r in range(64 + 4 * i, 68 + 4 * i):
            A(f'v_and_or_b32 v{r}, v{r}, v6, s{76 + (r & 3)}')
        if i == 3: A('s_mov_b32 exec_hi, 0')
        A(f'buffer_store_dwordx4 {vr(64+4*i)}, v22, s[40:43], s70 offen offset:{1024*i} sc1')
    A('s_mov_b64 exec, -1')
    A('L_p1_done:')
    stamp(A, 4)
    gen_awave(A)


def p2_ids(A):
    A('s_and_b32 s18, s2, 7\ns_lshl_b32 s18, s18, 2\ns_lshr_b32 s48, s2, 6\ns_add_u32 s18, s18, s48')
    A('s_bfe_u32 s19, s2, 0x30003')


def get_epoch(A, vct, vt):
    l0 = A.label('L_ep')
    A('s_mov_b32 s96, 0')
    A(f'{l0}:')
    A(f'ds_read_b64 {vr(vt,2)}, v{vct} offset:32\ns_waitcnt lgkmcnt(0)\nv_readfirstlane_b32 s88, v{vt}\nv_readfirstlane_b32 s89, v{vt+1}')
    A(f's_add_u32 s96, s96, 1\ns_cmp_eq_u32 s88, 0\ns_cselect_b32 s48, s96, -1\ns_cmp_lt_u32 s48, {SPIN_MAX*16}\ns_cbranch_scc1 {l0}')


def phase_a(A):
    WOI = 0; HS = 0; HSTR = 5120
    A('v_lshrrev_b32 v3, 4, v2\nv_and_b32 v4, 15, v2')
    A('s_mul_i32 s70, s67, 5120')
    A('s_lshr_b32 s50, s18, 1\ns_and_b32 s51, s18, 1')
    A(f's_mul_i32 s48, s51, 1792\nv_add_u32 v10, s48, v5\nv_add_u32 v11, 1024, v10\nv_mov_b32 v15, {OOB}\nv_cmp_lt_u32 vcc, 40, v2\ns_nop 1\nv_cndmask_b32 v11, v11, v15, vcc')
    A('v_mov_b32 v19, v5\nv_add_u32 v20, 1024, v5\nv_mul_u32_u24 v21, 80, v4\nv_lshl_add_u32 v12, v3, 5, v21\nv_lshlrev_b32 v13, 3, v4')
    A('v_bfe_u32 v14, v2, 2, 2\nv_lshl_add_u32 v14, v3, 3, v14\nv_mul_u32_u24 v14, 160, v14\nv_and_b32 v15, 3, v2\nv_lshl_add_u32 v14, v15, 3, v14\nv_add_u32 v14, s70, v14')
    A(f'v_add_u32 v19, s70, v19\nv_add_u32 v20, s70, v20\ns_mul_i32 s48, s51, 5120\nv_add_u32 v12, s48, v12\nv_add_u32 v13, s48, v13')
    A('v_cmp_gt_u32 s[60:61], 3, v3\nv_cmp_gt_u32 s[62:63], 2, v3\nv_cmp_gt_u32 s[64:65], 41, v2')
    A(f's_mul_i32 s48, s51, 5\ns_lshr_b32 s49, s67, 1\ns_mul_i32 s49, s49, {RPK - 40960}\ns_add_u32 s49, s49, 40960')
    for mt in range(2):
        A(f'v_add3_u32 v15, v3, s48, {4*mt}\nv_lshrrev_b32 v16, 1, v15\nv_mul_u32_u24 v16, 1280, v16\nv_and_b32 v15, 1, v15\nv_lshl_add_u32 v16, v15, 3, v16')
        A(f'v_lshl_add_u32 v16, v4, 4, v16\nv_add_u32 v{17+mt}, s49, v16')
    A('s_mul_i32 s48, s51, 40\ns_add_u32 s48, s48, s49\ns_add_u32 s48, s48, 6400\nv_lshlrev_b32 v22, 2, v2\nv_add_u32 v22, s48, v22')
    A('s_mul_i32 s48, s51, 3328\ns_add_u32 s48, s48, s49\nv_add_u32 v21, s48, v5\nv_lshlrev_b32 v15, 10, v3\nv_lshl_add_u32 v15, v4, 4, v15')
    A(f's_lshr_b32 s48, s18, 3\ns_mul_i32 s48, s48, 5\ns_mul_i32 s49, s19, 20\ns_add_u32 s48, s48, s49\ns_mul_i32 s48, s48, 5120\ns_and_b32 s49, s50, 3\ns_lshl_b32 s49, s49, 8\ns_add_u32 s48, s48, s49')
    A(f's_mul_i32 s49, s51, 13312\ns_add_u32 s48, s48, s49\ns_add_u32 s55, s48, {M_OFF}\ns_add_u32 s56, s55, 4096\ns_add_u32 s57, s55, 8192\ns_add_u32 s48, s55, 12288')
    A(f's_lshl_b32 s54, s19, 11\ns_lshl_b32 s49, s50, 7\ns_add_u32 s54, s54, s49\ns_add_u32 s54, s54, {ZB_OFF}')
    A(f's_cmp_eq_u32 s51, 0\ns_cselect_b32 s54, s48, s54\ns_movk_i32 s48, {ZM}\ns_cselect_b32 s58, 0xffff, s48\ns_mov_b32 s59, 0')
    A('s_and_b32 s76, s88, 0xfff\ns_bfe_u32 s77, s88, 0xc000c\ns_lshr_b64 s[78:79], s[88:89], 24\ns_xor_b32 s78, s78, s88\ns_bfe_u32 s79, s78, 0xc000c\ns_and_b32 s78, s78, 0xfff')
    A(f's_mul_i32 s52, s50, {16*KVS}\ns_lshr_b32 s49, s67, 1\ns_mul_i32 s49, s49, {8*KVS}\ns_add_u32 s52, s52, s49\ns_add_u32 s52, s52, {KVP_OFF}')
    A(f's_lshl_b32 s48, s67, 2\nv_add_u32 v23, s48, v0\nv_mov_b32 v244, 1\nv_mov_b32 v245, 2\nv_mov_b32 v246, 3')
    A('s_waitcnt vmcnt(0)')
    for t in range(5):
        A(f'ds_read_b64_tr_b16 {vr(224+4*t,2)}, v14 offset:{32*t}\nds_read_b64_tr_b16 {vr(226+4*t,2)}, v14 offset:{32*t + 640}')
    stamp(A, 10)
    lds_wait(A, 0, 72, 248, 1, four=False, sleep=2)
    lds_wait(A, 0, 48, 248, 1, sleep=2)
    if GDELAY: A(f's_sleep {GDELAY}')
    stamp(A, 11)
    A('s_mov_b32 s96, 0')
    A('L_pa_gather:')
    for p in range(8):
        if PAX:
            A(f's_lshl_b32 s53, s69, 1\ns_add_u32 s53, s53, {p}\ns_and_b32 s53, s53, 7\ns_mul_i32 s53, s53, {KVS}\ns_add_u32 s53, s53, s52')
            if p == 2 and PAX == 2: A('s_waitcnt vmcnt(0)')
        else:
            A(f's_add_u32 s53, s52, {KVS*p}')
        for ldi in range(2):
            A(f'buffer_load_dwordx4 {vr(24 + 8*p + 4*ldi)}, v{10+ldi}, s[40:43], s53 offen sc1')
    for p in range(8):
        A(f's_waitcnt vmcnt({2*(7-p)})')
        for r in range(24 + 8 * p, 32 + 8 * p):
            A(f'v_xor_b32 v{r}, s{76 + (r & 3)}, v{r}')
        for ldi in range(2):
            r = 24 + 8 * p + 4 * ldi; d = 8 + ldi
            if p == 0:
                A(f'v_or3_b32 v{d}, v{r}, v{r+1}, v{r+2}\nv_or_b32 v{d}, v{d}, v{r+3}')
            else:
                A(f'v_or3_b32 v{d}, v{d}, v{r}, v{r+1}\nv_or3_b32 v{d}, v{d}, v{r+2}, v{r+3}')
        if p:
            for j in range(0, 8, 2):
                A(f'v_pk_add_f32 {vr(24+j,2)}, {vr(24+j,2)}, {vr(24+8*p+j,2)}')
    A('v_cndmask_b32 v9, 0, v9, s[64:65]\nv_or_b32 v8, v8, v9\nv_and_b32 v8, 0xfff, v8\nv_cmp_ne_u32 vcc, 0, v8')
    A('s_cbranch_vccz L_pa_got')
    stamp(A, 35)
    A(f's_sleep {PSLEEP}\ns_add_u32 s96, s96, 1\ns_cmp_lt_u32 s96, {SPIN_MAX}\ns_cbranch_scc1 L_pa_gather')
    A('L_pa_got:')
    if STAMP: A('v_writelane_b32 v1, s96, 36')
    stamp(A, 12)
    A('ds_write_b128 v19, v[24:27]\nds_write_b128 v20, v[28:31]')
    A('s_mov_b64 exec, 1\nds_write_b32 v23, v244 offset:80\ns_mov_b64 exec, -1')
    lds_wait(A, 0, 80, 248, 1, sleep=0)
    stamp(A, 13)
    for w in range(2):
        for mt in range(2):
            A(f'ds_read_b128 {vr(24+20*w+8*mt)}, v12 offset:{2*w*HSTR + 1280*mt}\nds_read_b128 {vr(28+20*w+8*mt)}, v12 offset:{2*w*HSTR + 1280*mt + 16}')
        A(f'ds_read_b64 {vr(40+20*w,2)}, v13 offset:{2*w*HSTR + 1600}')
    A('s_waitcnt lgkmcnt(0)')
    for j in range(0, 18, 2):
        A(f'v_pk_add_f32 {vr(24+j,2)}, {vr(24+j,2)}, {vr(44+j,2)}')
    for mt in range(2):
        b = 24 + 8 * mt
        for j in range(4):
            A(f'v_cvt_pk_bf16_f32 v{b+j}, v{b+2*j}, v{b+2*j+1}')
        for j in range(4):
            A(f'v_cndmask_b32 v{b+j}, 0, v{b+j}, {"s[60:61]" if j < 2 else "s[62:63]"}')
    A('v_cvt_pk_bf16_f32 v40, v40, v41\ns_nop 0')
    for mt in range(2):
        for t in range(5):
            A(f'v_mfma_f32_16x16x32_bf16 {vr(64+20*mt+4*t)}, {vr(24+8*mt)}, {vr(224+4*t)}, 0')
    A('s_mov_b64 exec, 0x3ff\nds_write_b32 v22, v40\ns_mov_b64 exec, -1\ns_nop 0')
    for mt in range(2):
        if mt == 1: A('s_mov_b64 exec, 0xffff')
        for t in range(5):
            b = 64 + 20 * mt + 4 * t
            A(f'v_cvt_pk_bf16_f32 v{b}, v{b}, v{b+1}\nv_cvt_pk_bf16_f32 v{b+1}, v{b+2}, v{b+3}')
            A(f'ds_write_b64 v{17+mt}, {vr(b,2)} offset:{256*t}')
    A('s_mov_b64 exec, 1\nds_write_b32 v23, v245 offset:80\ns_mov_b64 exec, -1')
    lds_wait(A, 0, 80, 248, 2, sleep=0)
    for i in range(4):
        A(f'ds_read_b128 {vr(24+4*i)}, v21 offset:{1024*i}')
    for i in range(3):
        A(f's_waitcnt lgkmcnt({3-i})\nbuffer_store_dwordx4 {vr(24+4*i)}, v15, s[40:43], s{55+i} offen sc1')
    A('s_waitcnt lgkmcnt(0)\ns_mov_b64 exec, s[58:59]\nbuffer_store_dwordx4 v[36:39], v15, s[40:43], s54 offen sc1')
    stamp(A, 14)
    if MACK: A('s_waitcnt vmcnt(0)')
    A('s_mov_b64 exec, 1\nds_write_b32 v23, v246 offset:80\ns_mov_b64 exec, -1')
    lds_wait(A, 0, 80, 248, 3, sleep=1)
    stamp(A, 15)


XCH = [0, 15360, 30720, WBASE + 4 * WSLOT]
def gen_awave(A):
    AC = 16; PQ = 96; MB = 176
    def a2(rt, t): return AC + 20 * rt + 4 * t
    def pq(kk, rt): return PQ + 16 * kk + 4 * rt
    A('s_load_dwordx2 s[8:9], s[0:1], 64')
    A(f'v_mov_b32 v0, {CT}')
    A('v_lshrrev_b32 v3, 4, v2\nv_and_b32 v4, 15, v2\nv_lshlrev_b32 v5, 4, v2\nv_lshlrev_b32 v6, 3, v2\nv_add_u32 v7, 4096, v5')
    if KVACK: A('s_waitcnt vmcnt(0)')
    A('s_cmp_eq_u32 s20, 0\ns_cbranch_scc1 L_a_sig')
    A('L_a_g:')
    get_epoch(A, 0, 8)
    set_flag(A, 74, 8)
    A('L_a_sig:')
    A(f'v_mov_b32 v8, 1\ns_lshl_b32 s48, s21, 2\nv_add_u32 v9, s48, v0\ns_mov_b64 exec, 1\nds_write_b32 v9, v8 offset:48\ns_mov_b64 exec, -1')
    stamp(A, 5)
    A('s_waitcnt lgkmcnt(0)')
    srd(A, 28, 8, 2621440)
    A('L_a_main:')
    A(f's_setprio {APRIO}')
    p2_ids(A)
    A(f's_lshr_b32 s48, s18, 1\ns_lshl_b32 s59, s48, {FSH}\ns_add_u32 s59, s59, {FG_OFF}')
    A('s_mul_i32 s48, s21, 5\ns_mul_i32 s54, s18, 68\ns_add_u32 s54, s54, s48\ns_add_u32 s54, s54, 48\ns_lshl_b32 s54, s54, 12')
    A(f's_mul_i32 s55, s19, 20\ns_add_u32 s55, s55, s48\ns_mul_i32 s55, s55, 5120\ns_add_u32 s55, s55, {M_OFF}')
    A(f's_lshl_b32 s53, s18, 8\ns_add_u32 s53, s53, {G_OFF}')
    A(f's_lshl_b32 s52, s19, 11\ns_lshl_b32 s49, s21, 9\ns_add_u32 s52, s52, s49\ns_add_u32 s52, s52, {ZB_OFF}')
    A(f's_lshl_b32 s58, s19, 11\ns_add_u32 s58, s58, {ZB_OFF}')
    A('v_lshlrev_b32 v14, 2, v4\nv_lshlrev_b32 v15, 7, v3')
    A('v_lshrrev_b32 v12, 2, v4\nv_cmp_eq_u32 s[60:61], v12, v3\nv_and_b32 v12, 1, v4\nv_cmp_eq_u32 s[62:63], 0, v12')
    A('s_and_b64 s[64:65], s[60:61], s[62:63]\ns_andn2_b64 s[66:67], s[60:61], s[62:63]')
    A(f's_mov_b32 s68, {EPS}\ns_mov_b32 s69, 0xffff0000')
    Q = []
    def ld(tag, txt):
        A(txt); Q.append(tag)
    def wait(tag):
        last = max(k for k, t in enumerate(Q) if t == tag)
        A(f's_waitcnt vmcnt({len(Q) - 1 - last})')
    def issueM(kk):
        A(f's_add_u32 s57, s55, {5120*kk}')
        for t in range(4):
            ld(('M', kk), f'buffer_load_dwordx4 {vr(mb(kk,t))}, v5, s[40:43], s57 offen offset:{1024*t} sc1')
        ld(('M', kk), f'buffer_load_dwordx4 {vr(mb(kk,4))}, v7, s[40:43], s57 offen sc1')
    ZR = 236
    ZIMG = CT + 1536
    mbuf = {0: MB, 1: MB + 20, 2: MB + 40, 3: MB, 4: MB + 20}
    def mb(kk, t): return mbuf[kk] + 4 * t
    for j in range(4):
        A(f's_add_u32 s48, s21, {j+1}\ns_and_b32 s{70+j}, s48, 3')
    A('s_cmp_lg_u32 s21, 2\ns_cbranch_scc1 L_a_nopollg')
    A('s_cmp_lg_u32 s20, 0\ns_cbranch_scc1 L_a_gg')
    lds_wait(A, 0, 80, 8, KVG, sleep=4)
    A('L_a_gg:')
    lds_wait(A, 0, 48, 8, 1, sleep=2)
    A('s_mov_b32 s96, 0\ns_mov_b32 s75, 0')
    A('L_a_gpoll:')
    A('s_mov_b32 exec_hi, 0xffff\nbuffer_load_dwordx2 v[8:9], v6, s[40:43], s59 offen sc1\ns_waitcnt vmcnt(0)\nv_cmp_ne_u64 vcc, s[88:89], v[8:9]\ns_mov_b32 exec_hi, -1')
    A('s_mov_b32 s74, 0')
    for g in range(4):
        A(f's_bfe_u64 s[76:77], vcc, {hex((12 << 16) | (12 * g))}\ns_cselect_b32 s48, 0, {1 << g}\ns_or_b32 s74, s74, s48')
    A('s_cmp_eq_u32 s74, s75\ns_cbranch_scc1 L_a_gsame')
    A('s_mov_b32 s75, s74\nv_mov_b32 v8, s74\ns_mov_b64 exec, 1\nds_write_b32 v0, v8 offset:64\ns_mov_b64 exec, -1')
    A('L_a_gsame:')
    A('s_cmp_eq_u32 s74, 15\ns_cbranch_scc1 L_a_nopollg')
    A(f's_sleep {PSLEEP}\ns_add_u32 s96, s96, 1\ns_cmp_lt_u32 s96, {SPIN_MAX}\ns_cbranch_scc1 L_a_gpoll')
    A('L_a_nopollg:')
    if FINEG:
        A('s_lshl_b32 s74, 3, s21\ns_lshr_b32 s74, s74, 1')
    else:
        A('s_mov_b32 s74, 15')
    lds_wait_mask(A, 0, 64, 8, 's74')
    stamp(A, 11)
    if COOP_P:
        A('s_mul_i32 s49, s19, 2560\ns_add_u32 s48, s54, s49')
        A('v_lshlrev_b32 v8, 7, v2\ns_mov_b64 exec, 0xfffff\nbuffer_load_dword v9, v8, s[40:43], s48 offen sc1\ns_mov_b64 exec, -1\ns_waitcnt vmcnt(0)')
    stamp(A, 21)
    for j in range(4):
        A(f's_lshl_b32 s48, s{70+j}, 10\ns_add_u32 s56, s54, s48')
        for kk in range(5 if j < NRC else 0):
            A(f'buffer_load_dwordx4 {vr(pq(kk,j))}, v5, s[40:43], s56 offen {LL}')
            if kk < 4: A('s_add_u32 s56, s56, 4096')
    stamp(A, 22)
    lds_wait_mask(A, 0, 64, 8, 8)
    stamp(A, 23)
    for j in range(4):
        A(f's_lshl_b32 s48, s{70+j}, 6\ns_add_u32 s56, s53, s48\nbuffer_load_dword v{10+j}, v14, s[40:43], s56 offen {LL}')
    A(f'v_lshrrev_b32 v8, 2, v2\nv_and_b32 v9, 3, v2\nv_mul_u32_u24 v24, 80, v8\nv_lshl_add_u32 v24, v9, 4, v24\nv_add_u32 v24, {ZIMG}, v24\nv_lshlrev_b32 v26, 7, v8\nv_lshl_add_u32 v26, v9, 4, v26')
    A(f's_mul_i32 s76, s19, 102400\ns_and_b32 s49, s18, 3\ns_mul_i32 s49, s49, 25600\ns_add_u32 s76, s76, s49\ns_mul_i32 s49, s21, 6400\ns_add_u32 s76, s76, s49\ns_add_u32 s76, s76, {M_OFF}\nv_lshlrev_b32 v27, 7, v2')
    lds_wait(A, 0, 72, 8, 1, four=False, sleep=2)
    A('s_cmp_lg_u32 s21, 1\ns_cbranch_scc1 L_a_oth2')
    A('s_cmp_eq_u32 s20, 0\ns_cbranch_scc1 L_a_nogate')
    lds_wait(A, 0, 144, 16, 1, sleep=1)
    A('L_a_nogate:')
    stamp(A, 24)
    A('buffer_load_dwordx4 v[16:19], v26, s[40:43], s58 offen sc1\nbuffer_load_dwordx4 v[20:23], v26, s[40:43], s58 offen offset:16 sc1')
    A('v_mov_b32 v8, 1\ns_mov_b64 exec, 1\nds_write_b32 v0, v8 offset:76\ns_mov_b64 exec, -1')
    A('L_a_oth2:')
    lds_wait(A, 0, 76, 8, 1, four=False, sleep=2)
    A('s_mov_b32 exec_hi, 0x3ffff\nbuffer_load_dword v95, v27, s[40:43], s76 offen sc1\ns_mov_b32 exec_hi, -1')
    A('s_cmp_lg_u32 s21, 1\ns_cbranch_scc1 L_a_nopoll')
    A('s_mov_b32 s96, 0\ns_waitcnt vmcnt(1)\ns_branch L_a_zchk')
    A('L_a_zpoll:')
    A('buffer_load_dwordx4 v[16:19], v26, s[40:43], s58 offen sc1\nbuffer_load_dwordx4 v[20:23], v26, s[40:43], s58 offen offset:16 sc1\ns_waitcnt vmcnt(0)')
    A('L_a_zchk:')
    A('v_max3_u32 v9, v16, v18, v20\nv_max_u32 v9, v9, v22\nv_cmp_eq_u32 vcc, -1, v9')
    A('s_cbranch_vccz L_a_zok')
    A(f's_sleep {MSLEEP}\ns_add_u32 s96, s96, 1\ns_cmp_lt_u32 s96, {SPIN_MAX}\ns_cbranch_scc1 L_a_zpoll')
    A('L_a_zok:')
    if STAMP: A('v_writelane_b32 v1, s96, 36')
    A('ds_write_b128 v24, v[16:19]\nds_write_b128 v24, v[20:23] offset:16')
    A('v_mov_b32 v8, 1\ns_mov_b64 exec, 1\nds_write_b32 v0, v8 offset:68\ns_mov_b64 exec, -1')
    A('L_a_nopoll:')
    A(f's_mul_i32 s48, s21, 320\ns_add_u32 s48, s48, {ZIMG}\nv_mul_u32_u24 v15, 80, v3\nv_add_u32 v15, s48, v15')
    lds_wait(A, 0, 68, 8, 1, four=False, sleep=2)
    stamp(A, 10)
    for kk in range(5):
        A(f'ds_read_b128 {vr(ZR+4*kk)}, v15 offset:{16*kk}')
    if SPEC_M:
        A('s_waitcnt vmcnt(1)')
    elif COOP_M:
        A(f's_mul_i32 s48, s19, 102400\ns_and_b32 s49, s18, 3\ns_mul_i32 s49, s49, 25600\ns_add_u32 s48, s48, s49\ns_mul_i32 s49, s21, 6400\ns_add_u32 s48, s48, s49\ns_add_u32 s48, s48, {M_OFF}')
        A('v_lshlrev_b32 v8, 7, v2\ns_mov_b32 exec_hi, 0x3ffff\nbuffer_load_dword v9, v8, s[40:43], s48 offen sc1\ns_mov_b32 exec_hi, -1')
    else:
        issueM(0); issueM(1); issueM(2)
    A('s_waitcnt lgkmcnt(0)')
    for kk in range(5):
        for j in range(4):
            m = 's[66:67]' if (4 * kk + j) >= 10 else 's[64:65]'
            A(f'v_cndmask_b32 v{ZR+4*kk+j}, 0, v{ZR+4*kk+j}, {m}')
    den = [AC + 4 * rt for rt in range(4)]
    if not SPEC_M: A(f's_waitcnt vmcnt({1 if COOP_M else 15})')
    stamp(A, 17)
    A('s_nop 0')
    for kk in range(5):
        for rt in range(NRC):
            d = vr(den[rt])
            A(f'v_mfma_f32_16x16x32_bf16 {d}, {vr(ZR+4*kk)}, {vr(pq(kk,rt))}, {d if kk else 0}')
    A('s_nop 7')
    SC = ZR; T0 = ZR + 8
    for rt in range(NRC):
        A(f'v_add_f32 v{den[rt]}, s68, v{den[rt]}\nv_add_f32 v{den[rt]+1}, s68, v{den[rt]+1}')
    for rt in range(NRC):
        A(f'v_rcp_f32 v{den[rt]}, v{den[rt]}\nv_rcp_f32 v{den[rt]+1}, v{den[rt]+1}')
    A('s_nop 0')
    for rt in range(NRC):
        A(f'v_mul_f32 v{SC+2*rt}, v{10+rt}, v{den[rt]}\nv_mul_f32 v{SC+2*rt+1}, v{10+rt}, v{den[rt]+1}')
    def norm_ops(kk):
        L = []
        for rt in range(NRC):
            r = pq(kk, rt)
            for j in range(4):
                L += [f'v_lshlrev_b32 v{T0+2*j}, 16, v{r+j}', f'v_and_b32 v{T0+2*j+1}, s69, v{r+j}']
            for j in range(4):
                odd = 1 if (4 * kk + j) >= 10 else 0
                L += [f'v_mul_f32 v{T0+2*j}, v{SC+2*rt+odd}, v{T0+2*j}', f'v_mul_f32 v{T0+2*j+1}, v{SC+2*rt+odd}, v{T0+2*j+1}']
            for j in range(4):
                L += [f'v_cvt_pk_bf16_f32 v{r+j}, v{T0+2*j}, v{T0+2*j+1}']
        return L
    stamp(A, 20)
    A('s_waitcnt vmcnt(0)')
    issueM(0); issueM(1)
    for kk in range(NLEAD):
        for l in norm_ops(kk): A(l)
        if kk == 0: issueM(2)
    stamp(A, 6)
    A('v_sub_f32 v14, 1.0, v13')
    for j in range(3):
        A(f's_mul_i32 s48, s{70+j}, 15360\ns_cmp_eq_u32 s{70+j}, 3\ns_cselect_b32 s48, {XCH[3]}, s48\ns_add_u32 s48, s48, {(2-j)*5120}\nv_add_u32 v{10+j}, s48, v5')
    A(f's_lshl_b32 s48, s21, 11\ns_add_u32 s48, s48, {XCH[3] + 15360 - 3072}\nv_add_u32 v13, s48, v5')
    A(f's_mul_i32 s48, s21, 5120\ns_add_u32 s48, s48, {WBASE + 2*WSLOT}\nv_add_u32 v15, s48, v5\ns_lshl_b32 s48, s21, 2\nv_add_u32 v6, s48, v0')
    for kk in range(5):
        nxt = norm_ops(kk + NLEAD) if kk + NLEAD < 5 else []
        wait(('M', kk))
        A('s_mov_b32 s96, 0')
        A(f'L_a_mchk{kk}:')
        m0 = mb(kk, 0)
        A(f'v_max3_u32 v8, v{m0}, v{m0+2}, v{m0+4}')
        for k in (3, 5, 7):
            A(f'v_max3_u32 v8, v8, v{m0+2*k}, v{m0+2*k+2}')
        A(f'v_max_u32 v8, v8, v{m0+18}\nv_cmp_eq_u32 vcc, -1, v8')
        A(f's_cbranch_vccnz L_a_mre{kk}')
        A(f'L_a_mok{kk}:')
        stamp(A, 31 + kk)
        if kk == 4:
            lds_wait(A, 0, 96, PQ, 1, sleep=1)
        if NRC == 2:
            lds_wait(A, 6, 160, 8, kk + 1, four=False, sleep=1)
            A(f'ds_read_b128 {vr(pq(kk,2))}, v15 offset:{1024*kk}\nds_read_b128 {vr(pq(kk,3))}, v15 offset:{WSLOT + 1024*kk}')
        for rt in range(4):
            if NRC == 2 and rt == 2:
                A('s_waitcnt lgkmcnt(0)')
                if kk == 4:
                    A('v_mov_b32 v8, 1\ns_mov_b64 exec, 1\nds_write_b32 v6, v8 offset:176\ns_mov_b64 exec, -1')
            for t in range(5):
                d = vr(a2(rt, t))
                A(f'v_mfma_f32_16x16x32_bf16 {d}, {vr(mb(kk,t))}, {vr(pq(kk,rt))}, {d if kk else 0}')
                for _ in range(NRC):
                    if nxt: A(nxt.pop(0))
                if kk == 4 and rt >= 2:
                    A(f'ds_write_b128 v{10+rt-2}, {vr(a2(rt-2,t))} offset:{t*1024}')
        if kk < 2:
            issueM(kk + 3)
    stamp(A, 12)
    for t in range(5):
        A(f'ds_write_b128 v12, {vr(a2(2,t))} offset:{t*1024}')
    A(f's_lshl_b32 s48, s21, 8\nv_lshlrev_b32 v8, 2, v2\nv_add_u32 v8, s48, v8\nds_write_b32 v8, v14 offset:{46080}')
    for t in (3, 4):
        A(f'ds_write_b128 v13, {vr(a2(3,t))} offset:{t*1024}')
    OWN = a2(3, 0)
    A(f's_mul_i32 s50, s21, 15360\ns_cmp_eq_u32 s21, 3\ns_cselect_b32 s50, {XCH[3]}, s50')
    A(f's_mul_i32 s48, s21, {WSLOT}\ns_add_u32 s48, s48, {WBASE}\nv_add_u32 v8, s48, v5\nv_mov_b32 v15, v14\nv_add_u32 v7, s50, v5')
    A('s_lshl_b32 s48, s18, 6\ns_lshl_b32 s49, s21, 4\ns_add_u32 s48, s48, s49\nv_add_u32 v9, s48, v4\nv_mul_u32_u24 v9, 1280, v9\nv_lshl_add_u32 v9, v3, 3, v9\ns_mul_i32 s48, s19, 160')
    A('s_waitcnt lgkmcnt(0)')
    A('s_barrier')
    stamp(A, 13)
    for r in range(4):
        for t in range(3):
            A(f'ds_read_b128 {vr(PQ+12*r+4*t)}, v8 offset:{r*5120 + 1024*t}')
    A('s_waitcnt lgkmcnt(6)')
    for r in range(3):
        for t in range(3):
            A(f'ds_read_b128 {vr(AC+12*r+4*t)}, v7 offset:{r*5120 + 1024*t}')
    for k in range(0, 12, 2):
        A(f'v_pk_add_f32 {vr(PQ+k,2)}, {vr(PQ+k,2)}, {vr(PQ+12+k,2)}')
    A('s_waitcnt lgkmcnt(9)')
    for k in range(0, 12, 2):
        A(f'v_pk_add_f32 {vr(PQ+24+k,2)}, {vr(PQ+24+k,2)}, {vr(PQ+36+k,2)}')
    for k in range(0, 12, 2):
        A(f'v_pk_add_f32 {vr(PQ+k,2)}, {vr(PQ+k,2)}, {vr(PQ+24+k,2)}')
    for k in range(0, 12, 2):
        A(f'v_pk_fma_f32 {vr(OWN+k,2)}, {vr(PQ+k,2)}, v[14:15], {vr(OWN+k,2)}')
    for sl in range(3):
        A(f's_waitcnt lgkmcnt({6 - 3*sl})')
        for k in range(0, 12, 2):
            A(f'v_pk_add_f32 {vr(OWN+k,2)}, {vr(OWN+k,2)}, {vr(AC+12*sl+k,2)}')
    for t in range(3):
        b = OWN + 4 * t
        A(f'v_cvt_pk_bf16_f32 v{b}, v{b}, v{b+1}\nv_cvt_pk_bf16_f32 v{b+1}, v{b+2}, v{b+3}')
        A(f'buffer_store_dwordx2 {vr(b,2)}, v9, s[28:31], s48 offen offset:{32*t}')
    stamp(A, 14)
    finish(A)
    for kk in range(5):
        A(f'L_a_mre{kk}:')
        A('s_sleep 4')
        issueM(kk)
        A(f's_waitcnt vmcnt(0)\ns_add_u32 s96, s96, 1\ns_cmp_lt_u32 s96, {SPIN_MAX}\ns_cbranch_scc1 L_a_mchk{kk}')
        A(f's_branch L_a_mok{kk}')


def gen_loader(A):
    A.c('s67 = lw ; role constants: s68 strideA, s60 cA, s61 cB, s62 xB, s63 c4, s64 hi-mult')
    A('s_sub_u32 s67, s21, 4')
    A('s_mul_i32 s48, s19, 320\ns_add_u32 s48, s48, 1280\ns_and_b32 s57, s19, 1\ns_lshl_b32 s58, s57, 6\ns_add_u32 s58, s58, s48')
    A('s_xor_b32 s57, s57, 1\ns_lshl_b32 s57, s57, 8\ns_add_u32 s57, s57, s48\ns_add_u32 s59, s58, 1280')
    A('s_lshl_b32 s48, s22, 8\ns_lshl_b32 s49, s22, 7\ns_movk_i32 s56, 3072')
    A('s_cmp_eq_u32 s20, 0')
    A('s_cselect_b32 s68, 3840, s56\ns_cselect_b32 s60, s58, s48\ns_cselect_b32 s61, s59, s48\ns_cselect_b32 s62, 1, 0\ns_cselect_b32 s63, s57, s49\ns_cselect_b32 s64, 1280, 64')
    A(f's_cmp_lg_u32 s91, 0\ns_cselect_b32 s63, {OOB}, s63')
    A(f'v_mov_b32 v29, {OOB}\ns_lshl_b32 s75, s68, 5\ns_lshl_b32 s69, s18, 2\ns_add_u32 s69, s69, s19\nv_and_b32 v3, 31, v2\nv_lshrrev_b32 v4, 5, v2')
    A('s_movk_i32 s48, 3072\ns_cmp_eq_u32 s67, 1\ns_cselect_b32 s48, 3840, s48\ns_lshr_b32 s49, s48, 7\ns_lshl_b32 s85, s48, 6\ns_movk_i32 s56, 128')
    A('s_cmp_eq_u32 s67, 0\ns_cselect_b32 s48, 40960, s48\ns_cselect_b32 s49, 32, s49\ns_cselect_b32 s85, 128, s85\ns_cselect_b32 s56, 1280, s56\ns_mul_i32 s48, s48, s69')
    A('v_mul_u32_u24 v5, s56, v3\nv_mul_u32_u24 v6, s85, v4\nv_add3_u32 v5, v5, v6, s48\nv_cmp_gt_u32 vcc, s49, v3')
    st0 = sum(EV[m][0] << (4 * m) for m in EV)
    A(f's_lshl_b32 s56, s20, 2\ns_lshr_b32 s56, {hex(st0)}, s56\ns_and_b32 s56, s56, 15\nv_cndmask_b32 v30, v29, v5, vcc\ns_mul_i32 s56, s56, s85')
    A('s_mov_b32 s26, 2621440\ns_mov_b32 s27, 0x20000\ns_mov_b32 s31, 0x20000\ns_mov_b32 s35, 0x20000\ns_mov_b32 s39, 0x20000\ns_mov_b32 s83, 0x20000\ns_mov_b32 s48, 1966080\ns_mov_b32 s38, 2457600')
    A('s_cmp_eq_u32 s20, 0\ns_cselect_b32 s30, s38, s48\ns_mov_b32 s34, s30')
    A(f'v_mov_b32 v38, {CT}\nv_lshl_add_u32 v39, v2, 2, v38\nv_mov_b32 v44, 0\ns_lshl_b32 s71, s67, 8\nds_write_b32 v39, v44\nv_add_u32 v39, s71, v39\nds_write_b32 v39, v44 offset:256')
    A(f'v_and_b32 v39, 3, v2\nv_lshlrev_b32 v39, 8, v39\nv_add_u32 v39, {CT+256}, v39\ns_lshl_b32 s71, s67, 2\ns_add_u32 s71, s71, {CT}')
    A('s_cmp_eq_u32 s20, 0')
    A('s_waitcnt lgkmcnt(0)')
    A('s_mov_b32 s24, s4\ns_mov_b32 s25, s5\ns_mov_b32 s36, s6\ns_mov_b32 s37, s7')
    A('s_cselect_b32 s28, s6, s8\ns_cselect_b32 s29, s7, s9\ns_cselect_b32 s32, s6, s10\ns_cselect_b32 s33, s7, s11')
    A('s_cmp_eq_u32 s67, 2\ns_cselect_b32 s80, s8, s10\ns_cselect_b32 s81, s9, s11')
    A('s_cmp_eq_u32 s67, 1\ns_cselect_b32 s80, s6, s80\ns_cselect_b32 s81, s7, s81\ns_cselect_b32 s82, s38, s48')
    A('s_cmp_eq_u32 s67, 0\ns_cselect_b32 s80, s4, s80\ns_cselect_b32 s81, s5, s81\ns_cselect_b32 s82, s26, s82')
    stamp(A, 1)
    def issueW():
        for L in range(5):
            sr = 28 if L < 2 else (32 if L < 4 else 36)
            dma(A, f's_add_u32 m0, s77, {L*1024}', 10 + L, sr, 70 if L < 4 else 72)
        A('s_add_u32 s70, s70, s75\ns_add_u32 s72, s72, s76')
        A(f's_add_u32 s77, s77, {WSLOT}\ns_cmp_ge_u32 s77, {WBASE + NW*WSLOT}\ns_cselect_b32 s48, {NW*WSLOT}, 0\ns_sub_u32 s77, s77, s48')
    def issueX():
        for i in range(4):
            dma(A, f's_add_u32 m0, s78, {i*1024}', 16 + i, 24, 74)
        A('s_add_u32 s74, s74, 128')
        A(f's_add_u32 s78, s78, {XSLOT}\ns_cmp_ge_u32 s78, {NX*XSLOT}\ns_cselect_b32 s48, {NX*XSLOT}, 0\ns_sub_u32 s78, s78, s48')
    def flag():
        A('s_mov_b32 m0, s71\ns_lshl_b32 s48, s65, 2\ns_mov_b64 exec, 1\nbuffer_load_dword v44, s[8:11], s48 offen offset:0 lds\ns_mov_b64 exec, -1')
    A('s_mov_b32 s97, s56')
    if START2:
        A('s_lshr_b32 s56, s85, 6\ns_lshr_b32 s57, s85, 13\ns_cmp_eq_u32 s67, 0\ns_cselect_b32 s56, 10240, s56\ns_cselect_b32 s57, 64, s57\ns_mul_i32 s56, s56, s2')
        A(f's_cmp_ge_u32 s2, {START2}\ns_cselect_b32 s48, s67, 0\ns_cmp_lg_u32 s48, 0\ns_cselect_b32 s57, 0, s57')
        A('v_lshlrev_b32 v34, 7, v2\nv_cmp_gt_u32 vcc, s57, v2\ns_nop 1\nv_cndmask_b32 v34, v29, v34, vcc')
        A('buffer_load_dword v36, v34, s[80:83], s56 offen')
        A('s_cmp_lg_u32 s67, 0\ns_cbranch_scc1 L_nor0')
        A('s_add_u32 s56, s56, 8192\ns_mov_b64 exec, 0xffff\nbuffer_load_dword v37, v34, s[80:83], s56 offen\ns_mov_b64 exec, -1\nv_mov_b32 v30, v29')
        A('s_branch L_nor0')
    A('s_cmp_eq_u32 s20, 0\ns_cbranch_scc1 L_nor0' if not R0LATE else 's_cmp_lg_u32 s20, 1\ns_cbranch_scc1 L_nor0')
    A('s_mov_b32 exec_hi, 0\nbuffer_load_dword v36, v30, s[80:83], s56 offen\ns_mov_b32 exec_hi, -1')
    A('L_nor0:')
    A('s_barrier')
    A('s_cmp_eq_u32 s55, 0\ns_cbranch_scc1 L_nogw0')
    srd(A, 44, 14, 1280)
    A('v_lshlrev_b32 v40, 1, v2')
    for j in range(10):
        A(f'buffer_load_ushort v{50+j}, v40, s[44:47], 0 offen offset:{128*j}')
    A('L_nogw0:')
    A('v_lshrrev_b32 v3, 3, v2\nv_and_b32 v4, 7, v2')
    A('s_lshl_b32 s48, s18, 7\ns_lshl_b32 s56, s67, 5\ns_add_u32 s48, s48, s56\nv_add_u32 v7, s48, v3\nv_mul_u32_u24 v7, 1280, v7')
    A('v_lshrrev_b32 v8, 4, v2\nv_xor_b32 v8, v8, v4\nv_lshl_add_u32 v16, v8, 4, v7')
    A('v_xor_b32 v8, 4, v8\nv_lshl_add_u32 v17, v8, 4, v7\nv_add_u32 v17, 10240, v17')
    A('v_add_u32 v18, 20480, v16\nv_add_u32 v19, 20480, v17')
    A('s_lshl_b32 s56, s67, 3\nv_add_u32 v5, s56, v3')
    A('s_and_b32 s56, s67, 1\ns_lshl_b32 s56, s56, 2\nv_and_b32 v6, 2, v3\nv_xor_b32 v6, v6, v4\nv_xor_b32 v6, s56, v6')
    A('v_mul_u32_u24 v7, s68, v5\nv_lshl_add_u32 v8, v6, 4, v7\nv_add_u32 v10, s60, v8\nv_add_u32 v11, 128, v10')
    A('v_xor_b32 v9, s62, v6\nv_lshl_add_u32 v8, v9, 4, v7\nv_add_u32 v12, s61, v8\nv_add_u32 v13, 128, v12')
    A('v_lshrrev_b32 v8, 2, v6\nv_and_b32 v9, s62, v8\nv_and_b32 v6, 3, v6\nv_xor_b32 v6, v6, v9\nv_mul_u32_u24 v7, 3840, v5')
    A('v_lshl_add_u32 v7, v6, 4, v7\nv_mul_u32_u24 v8, s64, v8\nv_add3_u32 v14, v7, v8, s63')
    A(f's_mov_b32 s76, {32*3840}\ns_mov_b32 s70, 0\ns_mov_b32 s72, 0\ns_mov_b32 s74, 0')
    A(f's_mul_i32 s77, s67, 5120\ns_add_u32 s77, s77, {WBASE}\ns_lshl_b32 s78, s67, 12')
    issueX(); issueW()
    if L2PF:
        A('s_cmp_eq_u32 s67, 2\ns_cselect_b32 s48, s60, s61\ns_cselect_b32 s4, s28, s32\ns_cselect_b32 s5, s29, s33\ns_mov_b32 s6, s30\ns_mov_b32 s49, s68\ns_movk_i32 s56, 128')
        A('s_cmp_eq_u32 s67, 1\ns_cselect_b32 s48, s63, s48\ns_cselect_b32 s4, s36, s4\ns_cselect_b32 s5, s37, s5\ns_cselect_b32 s6, s38, s6\ns_cselect_b32 s49, 3840, s49\ns_cselect_b32 s56, s64, s56')
        A('s_lshl_b32 s94, s49, 6\ns_lshl_b32 s57, s23, 3\nv_add_u32 v33, s57, v4\nv_bfe_u32 v34, v2, 4, 1\nv_lshl_add_u32 v33, v34, 6, v33\nv_mul_u32_u24 v33, s49, v33')
        A('v_bfe_u32 v34, v2, 3, 1\nv_mul_u32_u24 v34, s56, v34\nv_add3_u32 v33, v33, v34, s48\nv_cmp_gt_u32 vcc, 32, v2\ns_mov_b32 s7, 0x20000\ns_nop 0\nv_cndmask_b32 v33, v29, v33, vcc')
        A('s_cmp_lg_u32 s67, 0\ns_cbranch_scc1 L_l2x')
        A('s_mov_b32 s4, s24\ns_mov_b32 s5, s25\ns_mov_b32 s6, s26\ns_movk_i32 s94, 128\ns_lshl_b32 s48, s18, 7\ns_lshl_b32 s49, s20, 5\ns_add_u32 s48, s48, s49')
        A('v_and_b32 v33, 31, v2\nv_add_u32 v33, s48, v33\nv_mul_u32_u24 v33, 1280, v33\nv_lshrrev_b32 v34, 5, v2\nv_lshl_add_u32 v33, v34, 7, v33')
        A('L_l2x:')
        A(f's_mul_i32 s95, s94, {L2PF}\ns_lshl_b32 s94, s94, 1')
    A('s_load_dwordx2 s[86:87], s[0:1], 72')
    A('s_cmp_eq_u32 s55, 0\ns_cbranch_scc1 L_nogw')
    A('v_and_b32 v41, 3, v2\nv_lshlrev_b32 v41, 3, v41')
    A('v_bfe_u32 v40, v2, 2, 1\nv_lshl_add_u32 v41, v40, 9, v41')
    A('v_bfe_u32 v40, v2, 3, 2\nv_lshl_add_u32 v41, v40, 5, v41')
    A(f'v_bfe_u32 v40, v2, 5, 1\nv_mul_u32_u24 v40, {GWS}, v40\nv_add_u32 v41, v40, v41')
    A(f'v_add_u32 v41, {GWBASE}, v41')
    A('s_waitcnt vmcnt(9)')
    for j in range(10):
        A(f'v_lshl_or_b32 v{80+2*j}, v{50+j}, 16, v{50+j}\nv_mov_b32 v{81+2*j}, v{80+2*j}')
        A(f'ds_write_b64 v41, v[{80+2*j}:{81+2*j}] offset:{2*GWS*j}')
    A('L_nogw:')
    srd(A, 40, 16, WS_USED)
    srd(A, 44, 12, 1966080)
    A('s_waitcnt lgkmcnt(0)')
    A('s_lshl_b32 s48, s2, 2\ns_add_u32 s48, s48, s67\ns_cmp_lg_u32 s48, 0\ns_cbranch_scc1 L_noep')
    A('s_memrealtime s[88:89]\ns_waitcnt lgkmcnt(0)\ns_or_b32 s88, s88, 1\nv_mov_b32 v42, s88\nv_mov_b32 v43, s89')
    A('s_mov_b64 exec, 1\nglobal_store_dwordx2 v44, v[42:43], s[86:87] sc1\ns_mov_b64 exec, -1')
    A('L_noep:')
    A('v_lshlrev_b32 v5, 4, v2\nv_lshlrev_b32 v6, 3, v2\nv_add_u32 v7, 4096, v5')
    assert RPORD.index(10) >= 8
    tab = sum(RPORD.index(t) << (4 * t) for t in range(12))
    A(f's_mov_b32 s56, {hex(tab & 0xffffffff)}\ns_mov_b32 s57, {hex(tab >> 32)}\ns_lshl_b32 s48, s22, 2\ns_lshr_b64 s[56:57], s[56:57], s48\ns_and_b32 s48, s56, 15\ns_lshl_b32 s48, s48, 4\ns_add_u32 s48, s48, s18')
    A('s_sub_u32 s60, s48, 120\ns_lshl_b32 s60, s60, 2\ns_add_u32 s60, s60, s67\ns_lshl_b32 s92, s48, 1\ns_add_u32 s92, s92, s67')
    A('s_cmp_lt_u32 s67, 2\ns_cselect_b32 s92, s92, 999\ns_cmp_lt_u32 s92, 240\ns_cselect_b32 s64, 1, 0\ns_cmp_lt_u32 s60, 256\ns_cselect_b32 s64, 2, s64')
    A('s_mul_i32 s62, s92, 52429\ns_lshr_b32 s62, s62, 18\ns_mul_i32 s63, s62, 5\ns_sub_u32 s63, s92, s63')
    A(f's_mul_i32 s79, s62, {32*1280}\ns_lshl_b32 s56, s63, 8\ns_add_u32 s79, s79, s56\ns_lshl_b32 s63, s63, 3\ns_mul_i32 s62, s62, 5')
    A(f's_lshl_b32 s92, s92, 3\ns_add_u32 s92, s92, {FW_OFF}\ns_lshl_b32 s93, s67, 12\ns_add_u32 s93, s93, {RPK}')
    A(f's_lshl_b32 s48, s60, 3\ns_add_u32 s48, s48, {FP_OFF}\ns_cmp_eq_u32 s64, 2\ns_cselect_b32 s92, s48, s92')
    A('v_and_b32 v8, 2, v3\nv_xor_b32 v8, v8, v4\nv_mul_u32_u24 v9, 1280, v3\nv_lshl_add_u32 v20, v8, 4, v9')
    A('v_xor_b32 v8, 4, v8\nv_lshl_add_u32 v21, v8, 4, v9\nv_add_u32 v21, 10240, v21\nv_add_u32 v22, 20480, v20\nv_add_u32 v23, 20480, v21')
    A('v_lshrrev_b32 v8, 2, v2\nv_and_b32 v9, 3, v2\nv_lshlrev_b32 v8, 7, v8\nv_lshl_add_u32 v8, v9, 3, v8\nv_add_u32 v8, s93, v8')
    A('v_bfe_u32 v9, v2, 3, 1\nv_lshrrev_b32 v28, 5, v2\nv_lshl_add_u32 v9, v28, 1, v9')
    for tl in range(4):
        A(f'v_xor_b32 v28, {tl}, v9\nv_lshl_add_u32 v{24+tl}, v28, 5, v8')
    A('v_mul_u32_u24 v31, 1280, v2')
    if 'NODUTY' in EXP: A('s_mov_b32 s64, 0')
    pk = {m: sum(((t | (b0 << 4)) << (8 * k)) for k, (t, b0) in enumerate(EV[m][1])) | (0xFF << (8 * len(EV[m][1]))) for m in EV}
    A(f's_mov_b32 s84, -1\ns_cmp_eq_u32 s20, 1\ns_cselect_b32 s84, {hex(pk[1])}, s84\ns_cmp_eq_u32 s20, 2\ns_cselect_b32 s84, {hex(pk[2])}, s84\ns_cmp_eq_u32 s20, 3\ns_cselect_b32 s84, {hex(pk[3])}, s84\ns_and_b32 s58, s84, 15')
    AC = 24; WR = 104; HBUF = 224
    def a2(rt, t): return AC + 20 * rt + 4 * t
    regset = {0: 0, 1: 1, 2: 2, 9: 3, 10: 4, 11: 5}
    lds_unit = {3: WBASE, 4: WBASE + WSLOT, 5: WBASE + 2*WSLOT, 6: WBASE + 3*WSLOT, 7: 20480, 8: WBASE + 4*WSLOT}
    def kidx(i, dst):
        A(f's_add_u32 s{dst}, s23, {i}\ns_cmp_ge_u32 s{dst}, 12\ns_cselect_b32 s48, 12, 0\ns_sub_u32 s{dst}, s{dst}, s48')
    def w2reg(i):
        kidx(i, 56)
        A('s_mul_i32 s56, s56, 5120\ns_add_u32 s56, s56, s50')
        for t in range(5):
            b = WR + 20 * regset[i] + 4 * t
            if t == 0: A(f's_waitcnt vmcnt({STG_THR})')
            A(f'buffer_load_dwordx4 {vr(b)}, v{5 if t < 4 else 7}, s[40:43], s56 offen offset:{1024*(t&3)} sc1')
    def w2lds(i):
        kidx(i, 56)
        A('s_mul_i32 s56, s56, 5120\ns_add_u32 s56, s56, s50')
        A(f's_add_u32 m0, s52, {lds_unit[i]}\ns_waitcnt vmcnt({STG_THR})')
        for t in range(4):
            A(f'buffer_load_dwordx4 v5, s[40:43], s56 offen offset:{1024*t} sc1 lds')
        A(f's_add_u32 m0, s52, {lds_unit[i] + 4096}\ns_nop 0')
        A('buffer_load_dwordx4 v7, s[40:43], s56 offen sc1 lds')
    def trace():
        if STAMP and 'quiet' not in EXP:
            A('s_memtime s[98:99]\ns_add_u32 s48, s65, 38\ns_mov_b32 m0, s48\ns_waitcnt lgkmcnt(0)\nv_writelane_b32 v1, s98, m0')
    def ensure_free():
        if 'nofree' in EXP: return
        l = A.label('L_free')
        A(f's_sub_u32 s57, s65, 4\ns_cmp_ge_i32 s66, s57\ns_cbranch_scc1 {l}')
        tbeg(A)
        lds_wait(A, 39, 0, 48, 's57', four='free', sdst=66, sleep=LSLEEP)
        tend(A, 100)
        A(f'{l}:')
    stamp(A, 2)
    table_srd(A, 8)
    A('s_mov_b32 s65, 1\ns_mov_b32 s66, 0')
    flag()
    if R0LATE:
        A('s_cmp_lt_u32 s20, 2\ns_cbranch_scc1 L_nor1')
        A('s_mov_b32 exec_hi, 0\nbuffer_load_dword v36, v30, s[80:83], s97 offen\ns_mov_b32 exec_hi, -1')
        A('L_nor1:')
    A('s_branch L_ld_odd')
    A('.p2align 3')
    A('L_ld_loop:')
    ensure_free()
    if L2PF:
        A(f's_bitcmp1_b32 s65, 1\ns_cbranch_scc0 L_nol2\ns_cmp_gt_u32 s65, {2 + 4 * ((9 - L2PF) // 2)}\ns_cbranch_scc1 L_nol2')
        A('buffer_load_dword v35, v33, s[4:7], s95 offen\ns_add_u32 s95, s95, s94')
        A('L_nol2:')
    issueX(); issueW()
    trace()
    A('s_add_u32 s65, s65, 1')
    flag()
    A('L_ld_odd:')
    ensure_free()
    issueW()
    trace()
    A('s_lshr_b32 s49, s65, 1\ns_add_u32 s65, s65, 1')
    flag()
    A('s_cmp_eq_u32 s49, s58\ns_cbranch_scc1 L_ev_round')
    A('L_ev_r1:')
    A('s_cmp_lt_u32 s65, 20\ns_cbranch_scc1 L_ld_loop')
    A('s_branch L_ld_done')
    A('L_ev_round:')
    A('s_bfe_u32 s59, s84, 0x40004\ns_lshr_b32 s84, s84, 8\ns_and_b32 s58, s84, 15')
    A('s_cmp_gt_u32 s59, 9\ns_cbranch_scc1 L_ev_flag')
    lds_wait(A, 38, 0, 48, 's65')
    A('s_mul_i32 s56, s85, s59\nbuffer_load_dword v36, v30, s[80:83], s56 offen')
    if THIRD:
        A(f's_cmp_lg_u32 s59, {THIRD}\ns_cbranch_scc1 L_ev_no3')
        A('s_mul_i32 s56, s85, 9\ns_mov_b32 exec_hi, 0\nbuffer_load_dword v37, v30, s[80:83], s56 offen\ns_mov_b32 exec_hi, -1')
        A('L_ev_no3:')
    A('s_cmp_eq_u32 s64, 0\ns_cbranch_scc1 L_ev_rw')
    A('global_load_dwordx2 v[42:43], v44, s[86:87] sc1')
    A('s_cmp_eq_u32 s64, 2\ns_cbranch_scc1 L_ev_poison')
    A('s_mov_b32 exec_hi, 0\nbuffer_load_dword v37, v31, s[44:47], s79 offen offset:128\ns_mov_b32 exec_hi, -1')
    for e in range(2):
        for g in range(4):
            dma(A, f's_add_u32 m0, s93, {g*1024}', 20 + g, 44, 79)
        A('s_add_u32 s79, s79, 128')
        A('s_waitcnt vmcnt(0)')
        for tl in range(4):
            A(f'ds_read_b64_tr_b16 {vr(64+16*e+4*tl,2)}, v{24+tl}\nds_read_b64_tr_b16 {vr(66+16*e+4*tl,2)}, v{24+tl} offset:2048')
        A('s_waitcnt lgkmcnt(0)')
    if not DEFER:
        for tl in range(8):
            A(f's_add_u32 s56, s63, {tl}\ns_mul_i32 s57, s56, 52429\ns_lshr_b32 s57, s57, 18\ns_mul_i32 s57, s57, 235\ns_add_u32 s57, s57, s56\ns_add_u32 s57, s57, s62\ns_lshl_b32 s57, s57, 10\ns_add_u32 s57, s57, {W2_OFF}')
            A(f'buffer_store_dwordx4 {vr(64+4*tl)}, v5, s[40:43], s57 offen sc1')
    A('s_branch L_ev_r1')
    A('L_ev_poison:')
    A('v_mov_b32 v64, -1\nv_mov_b32 v65, -1\nv_mov_b32 v66, -1\nv_mov_b32 v67, -1')
    A(f's_mul_i32 s56, s60, 3200\ns_add_u32 s56, s56, {M_OFF}\ns_lshl_b32 s57, s60, 7\ns_add_u32 s57, s57, {ZB_OFF}\ns_cmp_lt_u32 s60, 128\ns_cselect_b32 s57, s57, {OOB}')
    for k in range(3):
        A(f'buffer_store_dwordx4 v[64:67], v5, s[40:43], s56 offen offset:{1024*k} sc1')
    A('s_mov_b64 exec, 0xff\nbuffer_store_dwordx4 v[64:67], v5, s[40:43], s56 offen offset:3072 sc1')
    A('buffer_store_dwordx4 v[64:67], v5, s[40:43], s57 offen sc1\ns_mov_b64 exec, -1')
    A('L_ev_rw:')
    A('s_waitcnt vmcnt(0)')
    A('s_branch L_ev_r1')
    A('L_ev_flag:')
    A('s_cmp_eq_u32 s64, 0\ns_cbranch_scc1 L_ev_r1')
    if DEFER:
        A('s_cmp_eq_u32 s59, 15\ns_cbranch_scc1 L_ev_fl2\ns_cmp_lg_u32 s64, 1\ns_cbranch_scc1 L_ev_r1')
        for tl in range(8):
            A(f's_add_u32 s56, s63, {tl}\ns_mul_i32 s57, s56, 52429\ns_lshr_b32 s57, s57, 18\ns_mul_i32 s57, s57, 235\ns_add_u32 s57, s57, s56\ns_add_u32 s57, s57, s62\ns_lshl_b32 s57, s57, 10\ns_add_u32 s57, s57, {W2_OFF}')
            A(f'buffer_store_dwordx4 {vr(64+4*tl)}, v5, s[40:43], s57 offen sc1')
        A('s_branch L_ev_r1')
        A('L_ev_fl2:')
    l0 = A.label('L_ep'); l1 = A.label('L_epok')
    A('s_mov_b32 s90, 0\ns_waitcnt vmcnt(15)')
    A(f'{l0}:')
    A('v_readfirstlane_b32 s88, v42')
    A(f's_cmp_lg_u32 s88, 0\ns_cbranch_scc1 {l1}')
    A('s_sleep 4\nglobal_load_dwordx2 v[42:43], v44, s[86:87] sc1\ns_waitcnt vmcnt(0)')
    A(f's_add_u32 s90, s90, 1\ns_cmp_lt_u32 s90, {SPIN_MAX}\ns_cbranch_scc1 {l0}')
    A(f'{l1}:')
    A('s_mov_b64 exec, 1\nbuffer_store_dwordx2 v[42:43], v44, s[40:43], s92 offen sc1\ns_mov_b64 exec, -1')
    A('s_branch L_ev_r1')
    A('L_ld_done:')
    trace()
    if 'p1' in EXP: finish(A)
    A('s_cmp_lg_u32 s20, 0\ns_cbranch_scc1 L_nowo')
    if PAX:
        A('s_and_b32 s69, s2, 7\ns_lshl_b32 s69, s69, 3\ns_bfe_u32 s48, s2, 0x30003\ns_add_u32 s69, s69, s48')
    A('s_load_dwordx2 s[24:25], s[0:1], 16\ns_mov_b32 s26, 819200\ns_mov_b32 s27, 0x20000')
    A('s_lshr_b32 s48, s69, 2\ns_lshl_b32 s48, s48, 1\ns_and_b32 s49, s67, 1\ns_add_u32 s48, s48, s49\ns_mul_i32 s48, s48, 25600')
    A('s_and_b32 s49, s69, 3\ns_lshl_b32 s49, s49, 1\ns_lshr_b32 s56, s67, 1\ns_add_u32 s49, s49, s56\ns_mul_i32 s49, s49, 160\ns_add_u32 s48, s48, s49')
    A('v_lshrrev_b32 v8, 1, v2\nv_mul_u32_u24 v8, 1280, v8\nv_and_b32 v9, 1, v2\nv_mul_u32_u24 v9, 156, v9\nv_add_u32 v8, v8, v9')
    A('s_mov_b32 s73, s48\ns_waitcnt lgkmcnt(0)\nbuffer_load_dword v36, v8, s[24:27], s48 offen')
    A('L_nowo:')
    def bsetup():
        p2_ids(A)
        A('s_mul_i32 s23, s19, 3\ns_lshr_b32 s23, s23, 1\ns_and_b32 s48, s18, 3\ns_mul_i32 s48, s48, 3\ns_add_u32 s23, s23, s48\ns_cmp_ge_u32 s23, 12\ns_cselect_b32 s48, 12, 0\ns_sub_u32 s23, s23, s48')
        A(f's_mul_i32 s48, s67, 12\ns_mul_i32 s50, s19, 48\ns_add_u32 s50, s50, s48\ns_mul_i32 s50, s50, 5120\ns_add_u32 s50, s50, {W2_OFF}')
        A('s_mul_i32 s51, s18, 68\ns_add_u32 s51, s51, s48\ns_lshl_b32 s51, s51, 12')
        A('s_mul_i32 s52, s67, 5120')
    A(f'v_mov_b32 v0, {CT}')
    bsetup()
    A(f's_mul_i32 s53, s67, 480\ns_mul_i32 s48, s19, 5\ns_lshr_b32 s48, s48, 2\ns_add_u32 s53, s53, {FW_OFF}')
    A('v_lshrrev_b32 v8, 1, v2\nv_mul_u32_u24 v8, 40, v8\nv_and_b32 v9, 1, v2\nv_add_u32 v9, s48, v9\nv_lshrrev_b32 v9, 1, v9\nv_lshl_add_u32 v28, v9, 3, v8')
    A(f's_lshr_b32 s48, s18, 1\ns_lshl_b32 s54, s48, {FSH}\ns_add_u32 s54, s54, {FG_OFF}')
    A(f's_mov_b32 s55, {FP_OFF}\ns_mov_b32 s90, 0\nv_cmp_gt_u32 s[58:59], 24, v2')
    A('L_b_chk:')
    A('global_load_dwordx2 v[42:43], v44, s[86:87] sc1')
    A('s_mov_b64 exec, s[58:59]\nbuffer_load_dwordx2 v[46:47], v28, s[40:43], s53 offen sc1\ns_mov_b64 exec, -1')
    A('s_cmp_lg_u32 s67, 1\ns_cbranch_scc1 L_b_chk1')
    A('buffer_load_dwordx4 v[48:51], v5, s[40:43], s55 offen sc1\nbuffer_load_dwordx4 v[52:55], v5, s[40:43], s55 offen offset:1024 sc1')
    A('L_b_chk1:')
    A('s_waitcnt vmcnt(0)')
    A('v_readfirstlane_b32 s88, v42\nv_readfirstlane_b32 s89, v43\ns_nop 1')
    A('v_cmp_ne_u64 s[60:61], s[88:89], v[46:47]\ns_and_b64 s[60:61], s[60:61], s[58:59]')
    A('s_cmp_lg_u32 s67, 1\ns_cbranch_scc1 L_b_chk2')
    A('v_cmp_ne_u64 s[62:63], s[88:89], v[48:49]\ns_or_b64 s[60:61], s[60:61], s[62:63]\nv_cmp_ne_u64 s[62:63], s[88:89], v[50:51]\ns_or_b64 s[60:61], s[60:61], s[62:63]')
    A('v_cmp_ne_u64 s[62:63], s[88:89], v[52:53]\ns_or_b64 s[60:61], s[60:61], s[62:63]\nv_cmp_ne_u64 s[62:63], s[88:89], v[54:55]\ns_or_b64 s[60:61], s[60:61], s[62:63]')
    A('L_b_chk2:')
    A('s_cmp_eq_u32 s88, 0\ns_cselect_b32 s60, 1, s60\ns_cmp_eq_u64 s[60:61], 0\ns_cbranch_scc1 L_b_chkok')
    if 'NODUTY' in EXP: A('s_branch L_b_chkok')
    A(f's_sleep 24\ns_add_u32 s90, s90, 1\ns_cmp_lt_u32 s90, {SPIN_MAX}\ns_cbranch_scc1 L_b_chk')
    A('L_b_chkok:')
    A('s_cmp_lg_u32 s67, 1\ns_cbranch_scc1 L_b_nofp')
    A('v_mov_b32 v46, 1\ns_mov_b64 exec, 1\nds_write_b64 v0, v[42:43] offset:32\nds_write_b32 v0, v46 offset:72\ns_mov_b64 exec, -1')
    A('L_b_nofp:')
    stamp(A, 37)
    rest = []
    A('s_cmp_eq_u32 s20, 0\ns_cbranch_scc1 L_b_kv')
    for i in (0, 1, 2, 9, 10, 11):
        w2reg(i)
    stamp(A, 22)
    lds_wait(A, 39, 0, 48, 20, four='free', sleep=LSLEEP)
    for k, i in enumerate((3, 4, 5, 6, 7, 8)):
        if k == GEARLY:
            lds_wait(A, 38, 48, 48, 1, sleep=4)
            stamp(A, 9)
        w2lds(i); stamp(A, 16 + k)
    A('s_branch L_b_common')
    A('L_b_kv:')
    pre = [0, 1, 2, 9, 10, 11]
    for need, i in ((16, 3), (17, 4), (18, 5), (18, 7), (19, 6), (20, 8)):
        lds_wait(A, 39, 0, 48, need, four='free', sleep=LSLEEP)
        w2lds(i)
    for i in range(5):
        A(f'v_add_u32 v12, {64*i}, v2\nv_mul_u32_u24 v13, 6554, v12\nv_lshrrev_b32 v13, 16, v13\nv_mul_u32_u24 v14, 10, v13\nv_sub_u32 v14, v12, v14')
        A(f'v_mul_u32_u24 v13, 1280, v13\nv_lshl_add_u32 v13, v14, 4, v13\ns_add_u32 m0, s52, {1024*i}\ns_nop 0')
        A('buffer_load_dwordx4 v13, s[24:27], s73 offen lds')
    stamp(A, 9)
    for i in pre[:KVPRE]:
        w2reg(i)
    stamp(A, 8)
    A('s_lshr_b32 s18, s69, 2\ns_lshl_b32 s18, s18, 1\ns_and_b32 s48, s67, 1\ns_add_u32 s18, s18, s48\ns_and_b32 s19, s69, 3\ns_lshl_b32 s19, s19, 1\ns_lshr_b32 s48, s67, 1\ns_add_u32 s19, s19, s48')
    phase_a(A)
    bsetup()
    for i in pre[KVPRE:]:
        w2reg(i)
    A('L_b_common:')
    hbufs = [HBUF, HBUF + 16, WR + 40]
    def hb(i, rt):
        k = i if i < 2 else (0 if i == 2 else (i - 3 + 1) % 3 if False else None)
        return None
    hmap = {0: 0, 1: 1, 2: 0, 3: 1}
    for i in range(4, 12):
        hmap[i] = [0, 2, 1][(i - 4) % 3]
    def hb(i, rt): return hbufs[hmap[i]] + 4 * rt
    A('v_add_u32 v8, s52, v5')
    A(f'v_add_u32 v9, {WBASE + 2*WSLOT}, v8')
    def rdW(i, rs):
        u = lds_unit[i]
        va, off = (8, u) if u < WBASE + WSLOT - 5120 else ((9, u - (WBASE + 2*WSLOT)) if u >= WBASE + 2*WSLOT else (12, 0))
        for t in range(5):
            A(f'ds_read_b128 {vr(WR+20*rs+4*t)}, v{va} offset:{off + 1024*t}')
    A(f'v_add_u32 v12, {WBASE + WSLOT}, v8')
    A('s_load_dwordx2 s[28:29], s[0:1], 64\ns_mov_b32 s30, 2621440\ns_mov_b32 s31, 0x20000')
    A(f's_lshl_b32 s48, s67, 2\nv_add_u32 v13, s48, v0\nv_mov_b32 v14, 1\ns_mul_i32 s48, s67, {WSLOT}\ns_add_u32 s48, s48, {WBASE}\nv_add_u32 v15, s48, v5')
    A(f's_mul_i32 s48, s67, 15360\ns_cmp_eq_u32 s67, 3\ns_cselect_b32 s48, {XCH[3]}, s48\nv_add_u32 v16, s48, v5')
    A(f's_lshl_b32 s48, s67, 11\ns_add_u32 s48, s48, {XCH[3] + 15360}\nv_add_u32 v17, s48, v5\ns_lshl_b32 s48, s67, 8\nv_lshlrev_b32 v19, 2, v2\nv_add_u32 v19, s48, v19')
    A('s_lshl_b32 s48, s18, 6\ns_lshl_b32 s49, s67, 4\ns_add_u32 s48, s48, s49\nv_and_b32 v20, 15, v2\nv_add_u32 v20, s48, v20\nv_mul_u32_u24 v20, 1280, v20\nv_lshrrev_b32 v21, 4, v2\nv_lshl_add_u32 v20, v21, 3, v20\ns_mul_i32 s55, s19, 160')
    A('s_mul_i32 s48, s67, 5\ns_mul_i32 s57, s18, 68\ns_add_u32 s57, s57, s48\ns_add_u32 s57, s57, 48\ns_lshl_b32 s57, s57, 12')
    A(f's_lshl_b32 s58, s18, 8\ns_add_u32 s58, s58, {G_OFF}\nv_and_b32 v3, 15, v2\nv_lshlrev_b32 v11, 2, v3')
    A(f's_mul_i32 s48, s67, 320\ns_add_u32 s48, s48, {CT + 1536}\nv_mul_u32_u24 v4, 80, v21\nv_add_u32 v4, s48, v4')
    A('v_lshrrev_b32 v10, 2, v3\nv_cmp_eq_u32 s[64:65], v10, v21\nv_and_b32 v10, 1, v3\nv_cmp_eq_u32 s[62:63], 0, v10')
    A(f's_and_b64 s[60:61], s[64:65], s[62:63]\ns_andn2_b64 s[62:63], s[64:65], s[62:63]\ns_mov_b32 s64, {EPS}\ns_mov_b32 s65, 0xffff0000')
    A(f's_setprio {BPRIO}')
    stamp(A, 3)
    if GPOLL == 'B':
        A('s_cmp_lg_u32 s67, 3\ns_cbranch_scc1 L_b_nopoll')
        poll(A, 54, 48, 10, 6)
        A('v_mov_b32 v10, 1\ns_mov_b64 exec, 1\nds_write_b32 v0, v10 offset:64\ns_mov_b64 exec, -1')
        A('L_b_nopoll:')
    A('s_lshl_b32 s59, 1, s67' if FINEG else 's_mov_b32 s59, 15')
    lds_wait_mask(A, 0, 64, 10, 's59')
    A('s_waitcnt vmcnt(0)')
    stamp(A, 4)
    Q = []
    def wait(tag):
        last = max(k for k, t in enumerate(Q) if t == tag)
        A(f's_waitcnt vmcnt({min(63, len(Q) - 1 - last)})')
    def issueH(i):
        kidx(i, 56)
        A('s_lshl_b32 s56, s56, 12\ns_add_u32 s56, s56, s51')
        for rt in range(4):
            A(f'buffer_load_dwordx4 {vr(hb(i,rt))}, v5, s[40:43], s56 offen offset:{1024*rt} {LL}')
            Q.append(('H', i))
    assert not rest[KPRE:]
    issueH(0); issueH(1)
    nH = 2
    dump = [(8, WBASE), (12, 0), (9, 0), (9, WSLOT)]
    def haddr(i, dst):
        return [f's_add_u32 s{dst}, s23, {i}', f's_cmp_ge_u32 s{dst}, 12', 's_cselect_b32 s48, 12, 0', f's_sub_u32 s{dst}, s{dst}, s48',
                f's_lshl_b32 s{dst}, s{dst}, 12', f's_add_u32 s{dst}, s{dst}, s51']
    def rdW_l(i, rs):
        u = lds_unit[i]
        va, off = (8, u) if u < WBASE + WSLOT - 5120 else ((9, u - (WBASE + 2*WSLOT)) if u >= WBASE + 2*WSLOT else (12, 0))
        return [f'ds_read_b128 {vr(WR+20*rs+4*t)}, v{va} offset:{off + 1024*t}' for t in range(5)]
    pendW = []
    for i in range(12):
        rs = regset[i] if i in regset else (i - 3) % 2
        gaps = {k: [] for k in range(20)}
        for k, l in zip((1, 3, 6, 8, 11), pendW): gaps[k].append(l)
        reuse = nH if nH < 12 and hmap[nH] == hmap[i] else None
        extra = None
        if reuse is not None:
            for k, l in enumerate(haddr(reuse, 56)): gaps[k // 2].append(l)
            nH += 1
        if nH < 12 and hmap[nH] == 2 and i == 3:
            pass
        first = Q.index(('H', i))
        for rt in range(4):
            A(f's_waitcnt vmcnt({len(Q) - 1 - (first + rt)})')
            if rt == 0:
                if i == 0: stamp(A, 5)
                if BST: stamp(A, 25 + i)
                if i not in regset:
                    A('s_waitcnt lgkmcnt(0)')
                if i == PQ_AT:
                    A('s_mov_b64 exec, 1\nds_write_b32 v13, v14 offset:144\ns_mov_b64 exec, -1')
                if i == 8:
                    A('s_mov_b64 exec, 1\nds_write_b32 v13, v14 offset:96\ns_mov_b64 exec, -1')
            for t in range(5):
                d = vr(a2(rt, t))
                A(f'v_mfma_f32_16x16x32_bf16 {d}, {vr(WR+20*rs+4*t)}, {vr(hb(i,rt))}, {d if i else 0}')
                for l in gaps[5 * rt + t]: A(l)
                if i == 11 and rt >= 2:
                    A(f'ds_write_b128 v{dump[rt-2][0]}, {vr(a2(rt-2,t))} offset:{dump[rt-2][1] + t*1024}')
            if reuse is not None:
                A(f'buffer_load_dwordx4 {vr(hb(reuse,rt))}, v5, s[40:43], s56 offen offset:{1024*rt} {LL}')
                Q.append(('H', reuse))
        if NRC == 2 and i in (9, 10):
            j = i - 7
            A(f's_add_u32 s48, s67, {j+1}\ns_and_b32 s48, s48, 3\ns_lshl_b32 s49, s48, 10\ns_add_u32 s56, s57, s49\ns_lshl_b32 s49, s48, 6\ns_add_u32 s49, s49, s58')
            for kk in range(5):
                A(f'buffer_load_dwordx4 {vr(WR + 8*kk + 4*(j-2))}, v5, s[40:43], s56 offen {LL}')
                if kk < 4: A('s_add_u32 s56, s56, 4096')
                Q.append(('P', j))
            A(f'buffer_load_dword v{20+j}, v11, s[40:43], s49 offen {LL}')
            Q.append(('P', j))
        while nH < 12 and all(hmap[j] != hmap[nH] for j in range(i + 1, nH)) and not (hmap[nH] == 2 and i < 2):
            issueH(nH); nH += 1
        tgt = {0: 3, 2: 4}.get(i, i + 2 if 5 <= i + 2 <= 8 else None)
        pendW = rdW_l(tgt, (tgt - 3) % 2) if tgt is not None else []
    stamp(A, 6)
    if NRC == 2:
        ZR = HBUF; DN = AC; SC = HBUF + 20; T0 = HBUF + 24
        lds_wait(A, 0, 68, 10, 1, four=False, sleep=1)
        for kk in range(5):
            A(f'ds_read_b128 {vr(ZR+4*kk)}, v4 offset:{16*kk}')
        A('s_waitcnt lgkmcnt(0)')
        for kk in range(5):
            for j in range(4):
                m = 's[62:63]' if (4 * kk + j) >= 10 else 's[60:61]'
                A(f'v_cndmask_b32 v{ZR+4*kk+j}, 0, v{ZR+4*kk+j}, {m}')
        A('s_waitcnt vmcnt(0)\ns_nop 0')
        for kk in range(5):
            for r in range(2):
                d = vr(DN + 4 * r)
                A(f'v_mfma_f32_16x16x32_bf16 {d}, {vr(ZR+4*kk)}, {vr(WR+8*kk+4*r)}, {d if kk else 0}')
        A('s_nop 7')
        for r in range(2):
            A(f'v_add_f32 v{DN+4*r}, s64, v{DN+4*r}\nv_add_f32 v{DN+4*r+1}, s64, v{DN+4*r+1}')
        for r in range(2):
            A(f'v_rcp_f32 v{DN+4*r}, v{DN+4*r}\nv_rcp_f32 v{DN+4*r+1}, v{DN+4*r+1}')
        A('s_nop 0')
        for r in range(2):
            A(f'v_mul_f32 v{SC+2*r}, v{22+r}, v{DN+4*r}\nv_mul_f32 v{SC+2*r+1}, v{22+r}, v{DN+4*r+1}')
        for kk in range(5):
            for r in range(2):
                b = WR + 8 * kk + 4 * r
                for j in range(4):
                    A(f'v_lshlrev_b32 v{T0+2*j}, 16, v{b+j}\nv_and_b32 v{T0+2*j+1}, s65, v{b+j}')
                for j in range(4):
                    odd = 1 if (4 * kk + j) >= 10 else 0
                    A(f'v_mul_f32 v{T0+2*j}, v{SC+2*r+odd}, v{T0+2*j}\nv_mul_f32 v{T0+2*j+1}, v{SC+2*r+odd}, v{T0+2*j+1}')
                for j in range(4):
                    A(f'v_cvt_pk_bf16_f32 v{b+j}, v{T0+2*j}, v{T0+2*j+1}')
                A(f'ds_write_b128 v9, {vr(b)} offset:{r*WSLOT + 1024*kk}')
            A(f'v_mov_b32 v10, {kk+1}\ns_mov_b64 exec, 1\nds_write_b32 v13, v10 offset:160\ns_mov_b64 exec, -1')
        lds_wait(A, 13, 176, 10, 1, four=False, sleep=1)
    for rt in (2, 3):
        for t in range(5):
            A(f'ds_write_b128 v{dump[rt][0]}, {vr(a2(rt,t))} offset:{dump[rt][1] + t*1024}')
    A('s_waitcnt lgkmcnt(0)')
    stamp(A, 7)
    A('s_barrier')
    R = WR
    for r in range(4):
        for t in (3, 4):
            A(f'ds_read_b128 {vr(R+8*r+4*(t-3))}, v15 offset:{r*5120 + 1024*t}')
    A(f'ds_read_b32 v18, v19 offset:{46080}')
    A('s_waitcnt lgkmcnt(5)')
    for r in range(3):
        for t in (3, 4):
            A(f'ds_read_b128 {vr(R+32+8*r+4*(t-3))}, v16 offset:{r*5120 + 1024*t}')
    for t in (3, 4):
        A(f'ds_read_b128 {vr(R+56+4*(t-3))}, v17 offset:{1024*(t-3)}')
    for k in range(0, 8, 2):
        A(f'v_pk_add_f32 {vr(R+k,2)}, {vr(R+k,2)}, {vr(R+8+k,2)}')
    A('s_waitcnt lgkmcnt(8)\nv_mov_b32 v19, v18')
    for k in range(0, 8, 2):
        A(f'v_pk_add_f32 {vr(R+16+k,2)}, {vr(R+16+k,2)}, {vr(R+24+k,2)}')
    for k in range(0, 8, 2):
        A(f'v_pk_add_f32 {vr(R+k,2)}, {vr(R+k,2)}, {vr(R+16+k,2)}')
    A('s_waitcnt lgkmcnt(0)')
    for k in range(0, 8, 2):
        A(f'v_pk_fma_f32 {vr(R+k,2)}, {vr(R+k,2)}, v[18:19], {vr(R+56+k,2)}')
    for sl in range(3):
        for k in range(0, 8, 2):
            A(f'v_pk_add_f32 {vr(R+k,2)}, {vr(R+k,2)}, {vr(R+32+8*sl+k,2)}')
    for t in (3, 4):
        b = R + 4 * (t - 3)
        A(f'v_cvt_pk_bf16_f32 v{b}, v{b}, v{b+1}\nv_cvt_pk_bf16_f32 v{b+1}, v{b+2}, v{b+3}')
        A(f'buffer_store_dwordx2 {vr(b,2)}, v20, s[28:31], s55 offen offset:{32*t}')
    finish(A)


def gen(A):
    K = NAME + '_kernel'
    A(f'.globl {K}\n.p2align 8\n.type {K},@function\n{K}:')
    A('s_cmp_ge_u32 s2, 256\ns_cbranch_scc1 L_end')
    A('s_load_dwordx4 s[4:7], s[0:1], 0')
    A('s_load_dwordx4 s[8:11], s[0:1], 32')
    A('s_load_dwordx4 s[12:15], s[0:1], 48')
    A('s_load_dwordx2 s[16:17], s[0:1], 80')
    A.c('decode: s18 rb, s19 cq, s20 m, s21 wave, s22 gtype, s23 rbl, s55 is_gc')
    A('v_lshrrev_b32 v1, 6, v0\nv_and_b32 v2, 63, v0')
    A('s_bfe_u32 s23, s2, 0x10003\ns_and_b32 s18, s2, 7\ns_lshl_b32 s18, s18, 1\ns_add_u32 s18, s18, s23' if not MAP84 else 's_bfe_u32 s23, s2, 0x30003\ns_and_b32 s18, s2, 1\ns_lshl_b32 s18, s18, 3\ns_add_u32 s18, s18, s23')
    A('v_readfirstlane_b32 s21, v1')
    A('s_bfe_u32 s19, s2, 0x20004\ns_lshr_b32 s20, s2, 6' if not MAP84 else ('s_bfe_u32 s19, s2, 0x20001\ns_lshr_b32 s20, s2, 6' if not KVX else 's_bfe_u32 s20, s2, 0x20001\ns_lshr_b32 s19, s2, 6'))
    A('s_mul_i32 s22, s19, 3\ns_add_u32 s22, s22, s20\ns_sub_u32 s22, s22, 1')
    A('s_cmp_eq_u32 s22, 10\ns_cselect_b32 s55, 1, 0\ns_cmp_ge_i32 s22, 10\ns_cselect_b32 s91, 1, 0')
    if STAMP:
        A('v_mov_b32 v1, 0\ns_mov_b32 s100, 0\ns_mov_b32 s101, 0')
        stamp(A, 0); stamp_rt(A, 62)
    A('s_cmp_lt_u32 s21, 4\ns_cbranch_scc1 L_compute')
    gen_loader(A)
    gen_compute(A)
    A('L_end:\ns_endpgm')
    A('.p2align 7\nL_table:')
    for i in range(32):
        A(f'.long {i}')


def main(out):
    A = Asm()
    gen(A)
    K = NAME + '_kernel'
    hdr = open('cdna_kernels/' + NAME + '.s.ref').read().split('; Override')[0]
    txt = hdr + f'; @launch grid=(256,1,1) block=(512,1,1) lds={LDS_TOTAL}\n'
    txt += '.amdgcn_target "amdgcn-amd-amdhsa--gfx950"\n.text\n' + A.text()
    txt += f'''.section .rodata,"a"
.p2align 6
.amdhsa_kernel {K}
  .amdhsa_next_free_vgpr 256
  .amdhsa_next_free_sgpr 102
  .amdhsa_accum_offset 256
  .amdhsa_group_segment_fixed_size 0
  .amdhsa_kernarg_size 88
  .amdhsa_user_sgpr_count 2
  .amdhsa_user_sgpr_kernarg_segment_ptr 1
  .amdhsa_system_sgpr_workgroup_id_x 1
.end_amdhsa_kernel
'''
    open(out, 'w').write(txt)

if __name__ == '__main__':
    for a in sys.argv[2:]:
        k, v = a.split('=', 1)
        globals()[k] = eval(v)
    main(sys.argv[1] if len(sys.argv) > 1 else 'cdna_kernels/' + NAME + '.s')
```

```python
import sys

NAME = 'gated_mix__linear_attn_block__glu_gated_glu__prompt'

HB_OFF = 0
W2_OFF = 0x900000
M_OFF = 0xB00000
KVS = 3584
KVP_OFF = 0xC00000
G_OFF = 0xF00000
ZB_OFF = 0xF10000
FSH = 13
FG_OFF = 0xF40000
FP_OFF = 0xF60800
FM_OFF = 0xF81000
FW_OFF = 0xFA1800
STAMP_OFF = 0x1000000
WS_USED = 0x1100000
OOB = 0x7FFF0000

XSLOT = 16384; NX = 3
WBASE = NX * XSLOT
WSLOT = 20480; NW = 5
GWBASE = WBASE + NW * WSLOT
LDS_TOTAL = 163840
CT = 159744
P2_SCR = 0
RPK = GWBASE
CODEPF = True
EV = {1: (0, [(0, 3), (2, 15)]), 2: (1, [(1, 5), (3, 15)]), 3: (2, [(2, 7), (4, 15)])}
THIRD = 3
RPORD = (11, 1, 4, 7, 2, 5, 8, 0, 3, 6, 9, 10)
STAMP = False
GWS = 320
PRIO = 2
LSLEEP = 3
DEPTH = 2
EXP = ''
ENTRYT = False
KVFAST = 1
WOAT = 2
KVN = 12
NOPF = 0
DIAG = None
DBGOUT = False
DEFER = False
BURST = 0
FINEG = True
GEARLY = 0
START2 = 0
RTS = False
WSM = 1
KVACK = True
R0LATE = False
L2PF = 0
KVPRE = 6
PAX = 2
ZM = 255
MACK = False
SPEC_M = True
NRC = 4
BST = True
PQ_AT = 4
NLEAD = 2
COOP_P = True
COOP_M = True
MK0 = 2
NPK = True
KVX = False
APRIO = 2
BPRIO = 0
MAP84 = True
LS = 'sc1'
LL = 'sc1'
KPRE = 6
LPS = 1
LP0 = 0
GPOLL = 'A'
GD = 8
KVG = 1
T1N = 6
PRETOUCH = False
STG_THR = 6
PSLEEP = 8
MSLEEP = 12
MDELAY = 64
GDELAY = 0
STG_EARLY = False
SPIN_MAX = 0x20000


class Asm:
    def __init__(self):
        self.L = []
        self.nl = 0
    def __call__(self, s):
        for line in s.split('\n'):
            line = line.strip()
            if line:
                self.L.append(line if line.endswith(':') else '    ' + line)
    def c(self, s):
        self.L.append('    ; ' + s)
    def label(self, p='L'):
        self.nl += 1
        return f'{p}_{self.nl}'
    def text(self):
        return '\n'.join(self.L) + '\n'


def vr(b, n=4):
    return f'v[{b}:{b+n-1}]'

def srd(A, d, lo, nbytes):
    A(f's_mov_b32 s{d}, s{lo}\ns_mov_b32 s{d+1}, s{lo+1}\ns_mov_b32 s{d+2}, {nbytes}\ns_mov_b32 s{d+3}, 0x20000')

def stamp(A, n):
    if STAMP:
        A(f'{"s_memrealtime" if RTS else "s_memtime"} s[98:99]\ns_waitcnt lgkmcnt(0)\nv_writelane_b32 v1, s98, {n}')
def stamp_rt(A, n):
    if STAMP:
        A(f's_memrealtime s[98:99]\ns_waitcnt lgkmcnt(0)\nv_writelane_b32 v1, s98, {n}')
def tbeg(A):
    if STAMP and 'quiet' not in EXP: A('s_memtime s[98:99]\ns_waitcnt lgkmcnt(0)\ns_mov_b32 s3, s98')
def tend(A, r):
    if STAMP and 'quiet' not in EXP: A(f's_memtime s[98:99]\ns_waitcnt lgkmcnt(0)\ns_sub_u32 s3, s98, s3\ns_add_u32 s{r}, s{r}, s3')
def finish(A):
    if STAMP:
        A('s_waitcnt vmcnt(0)')
        stamp(A, 61); stamp_rt(A, 63)
        A('v_writelane_b32 v1, s100, 59\nv_writelane_b32 v1, s101, 60')
        if DIAG:
            slot, mult = DIAG
            l = A.label('L_dg'); l2 = A.label('L_dg')
            A(f's_cmp_lg_u32 s21, 0\ns_cbranch_scc1 {l2}')
            A(f'v_readlane_b32 s48, v1, {slot}\nv_readlane_b32 s49, v1, 0\nv_readlane_b32 s50, v1, 61\ns_sub_u32 s48, s48, s49\ns_mul_i32 s48, s48, {mult}\ns_min_u32 s48, s48, 20000')
            A(f'{l}:\ns_memrealtime s[98:99]\ns_waitcnt lgkmcnt(0)\ns_sub_u32 s51, s98, s50\ns_cmp_lt_u32 s51, s48\ns_cbranch_scc1 {l}')
            A(f'{l2}:')
        A('s_mov_b64 exec, -1')
        A(f's_lshl_b32 s3, s2, 3\ns_add_u32 s3, s3, s21\ns_lshl_b32 s3, s3, 8\ns_add_u32 s3, s3, {STAMP_OFF}\nv_lshlrev_b32 v2, 2, v2')
        A('buffer_store_dword v1, v2, s[40:43], s3 offen')
        if DBGOUT:
            l = A.label('L_dbg')
            A(f's_cmp_lg_u32 s21, 0\ns_cbranch_scc1 {l}\ns_and_b32 s3, s2, 0xbf\ns_cmp_lg_u32 s3, 6\ns_cbranch_scc1 {l}')
            A('s_load_dwordx2 s[86:87], s[0:1], 72\ns_lshr_b32 s3, s2, 6\ns_mul_i32 s3, s3, 28\ns_add_u32 s3, s3, 8\ns_waitcnt lgkmcnt(0)\ns_mov_b64 exec, 1')
            for k, slot in enumerate((0, 2, 3, 5, 10, 12, 61)):
                A(f'v_readlane_b32 s48, v1, {slot}\nv_mov_b32 v3, s3\ns_nop 1\nv_mov_b32 v4, s48\nglobal_store_dword v3, v4, s[86:87] offset:{4*k}')
            A(f'{l}:')
    A('s_endpgm')

LOG2E = 0x3fb8aa3b
NLOG2E = 0xbfb8aa3b
EPS = 0x358637bd

ACC = 96; XF = 64; WF = 24
def acc(i, t): return ACC + 20 * i + 4 * t


THR = 0
def dma(A, m0expr, voff, sr, so):
    A(m0expr)
    A(f's_waitcnt vmcnt({THR-1})' if THR else 's_nop 0')
    A(f'buffer_load_dwordx4 v{voff}, s[{sr}:{sr+3}], s{so} offen lds')


def poll(A, soff, nl, vt, vaddr, sleep=None, first_sleep=False):
    l0 = A.label('L_poll'); l1 = A.label('L_polled')
    A('s_mov_b32 s90, 0')
    A(f's_mov_b64 exec, {hex((1 << nl) - 1)}' if nl <= 31 else f's_mov_b32 exec_lo, -1\ns_mov_b32 exec_hi, {hex((1 << (nl - 32)) - 1)}')
    A(f'{l0}:')
    A(f'buffer_load_dwordx2 {vr(vt,2)}, v{vaddr}, s[40:43], s{soff} offen sc1')
    A('s_waitcnt vmcnt(0)')
    A(f'v_cmp_ne_u64 vcc, s[88:89], {vr(vt,2)}')
    A(f's_cbranch_vccz {l1}')
    A(f's_sleep {PSLEEP if sleep is None else sleep}\ns_add_u32 s90, s90, 1\ns_cmp_lt_u32 s90, {SPIN_MAX}\ns_cbranch_scc1 {l0}')
    A(f'{l1}:')
    A('s_mov_b64 exec, -1')


def spoll(A, parts, sleep=2):
    l0 = A.label('L_sp'); l1 = A.label('L_spd')
    A('s_mov_b32 s96, 0')
    A(f'{l0}:')
    regs = []
    for so, imm, n, sb in parts:
        A(f's_load_dwordx{2*n} s[{sb}:{sb+2*n-1}], s[16:17], s{so} offset:{imm} glc')
        regs += [sb + 2 * k for k in range(n)]
    A('s_waitcnt lgkmcnt(0)')
    for r in regs:
        A(f's_xor_b64 s[{r}:{r+1}], s[{r}:{r+1}], s[88:89]')
    for r in regs[1:]:
        A(f's_or_b64 s[{regs[0]}:{regs[0]+1}], s[{regs[0]}:{regs[0]+1}], s[{r}:{r+1}]')
    A(f's_cbranch_scc0 {l1}')
    A(f's_sleep {sleep}\ns_add_u32 s96, s96, 1\ns_cmp_lt_u32 s96, {SPIN_MAX}\ns_cbranch_scc1 {l0}')
    A(f'{l1}:')


def set_flag(A, soff, vt):
    A(f'v_mov_b32 v{vt}, s88\nv_mov_b32 v{vt+1}, s89\nv_mov_b32 v{vt+2}, 0')
    A('s_waitcnt vmcnt(0)')
    A('s_mov_b64 exec, 1')
    A(f'buffer_store_dwordx2 {vr(vt,2)}, v{vt+2}, s[40:43], s{soff} offen sc1')
    A('s_mov_b64 exec, -1')


def table_srd(A, d):
    l = A.label('L_pc')
    A(f's_getpc_b64 s[{d}:{d+1}]\n{l}:\ns_add_u32 s{d}, s{d}, L_table-{l}\ns_addc_u32 s{d+1}, s{d+1}, 0\ns_movk_i32 s{d+2}, 128\ns_mov_b32 s{d+3}, 0x20000')


def lds_free(A, vaddr, vt, sdst):
    A(f'ds_read_b32 v{vt}, v{vaddr}\ns_waitcnt lgkmcnt(0)')
    A(f'v_readlane_b32 s{sdst}, v{vt}, 0\nv_readlane_b32 s48, v{vt}, 1\ns_min_u32 s{sdst}, s{sdst}, s48\nv_readlane_b32 s48, v{vt}, 2\ns_min_u32 s{sdst}, s{sdst}, s48\nv_readlane_b32 s48, v{vt}, 3\ns_min_u32 s{sdst}, s{sdst}, s48')


def lds_min4(A, vaddr, off, vt, sdst):
    A(f'ds_read_b128 {vr(vt)}, v{vaddr} offset:{off}\ns_waitcnt lgkmcnt(0)')
    A(f'v_min3_u32 v{vt}, v{vt}, v{vt+1}, v{vt+2}\nv_min_u32 v{vt}, v{vt}, v{vt+3}\ns_nop 0\nv_readfirstlane_b32 s{sdst}, v{vt}')


def lds_wait(A, vaddr, off, vt, need, four=True, sdst=90, sleep=1):
    l0 = A.label('L_lw'); l1 = A.label('L_lwd')
    if sleep in (2, 4): sleep *= WSM
    A('s_mov_b32 s96, 0')
    A(f'{l0}:')
    if four == 'free':
        lds_free(A, vaddr, vt, sdst)
    elif four:
        lds_min4(A, vaddr, off, vt, sdst)
    else:
        A(f'ds_read_b32 v{vt}, v{vaddr} offset:{off}\ns_waitcnt lgkmcnt(0)\nv_readfirstlane_b32 s{sdst}, v{vt}')
    A(f's_cmp_ge_i32 s{sdst}, {need}\ns_cbranch_scc1 {l1}')
    A(f's_sleep {sleep}\ns_add_u32 s96, s96, 1\ns_cmp_lt_u32 s96, {SPIN_MAX*16}\ns_cbranch_scc1 {l0}')
    A(f'{l1}:')


def lds_wait_mask(A, vaddr, off, vt, smask, sleep=2):
    l0 = A.label('L_mw'); l1 = A.label('L_mwd')
    A('s_mov_b32 s96, 0')
    A(f'{l0}:')
    A(f'ds_read_b32 v{vt}, v{vaddr} offset:{off}\ns_waitcnt lgkmcnt(0)\nv_readfirstlane_b32 s90, v{vt}')
    A(f's_andn2_b32 s90, {smask}, s90\ns_cbranch_scc0 {l1}')
    A(f's_sleep {sleep}\ns_add_u32 s96, s96, 1\ns_cmp_lt_u32 s96, {SPIN_MAX*16}\ns_cbranch_scc1 {l0}')
    A(f'{l1}:')


def mainloop(A, kv, tag):
    def upd_s():
        L = [f's_add_u32 s50, s50, {WSLOT}', f's_cmp_ge_u32 s50, {WBASE + NW*WSLOT}', f's_cselect_b32 s50, {WBASE}, s50']
        if not kv:
            L += ['s_add_u32 s52, s52, s53', 's_cmp_ge_u32 s52, s57', f's_cselect_b32 s52, {WBASE}, s52']
        return L
    def set_w():
        return [f'v_add_u32 v{15+t}, s50, v{10+t}' for t in range(4)] + [f'v_add_u32 v19, s{50 if kv else 52}, v14']
    def upd_blk():
        return [f's_add_u32 s51, s51, {XSLOT}', f's_cmp_ge_u32 s51, {NX*XSLOT}', 's_cselect_b32 s51, 0, s51']
    def set_x(par):
        return [f'v_add_u32 v{4+par}, s51, v{20+par}']
    def rdW(p, t, h):
        b = WF + 20 * p + 4 * t + 2 * h
        return f'ds_read_b64_tr_b16 {vr(b,2)}, v{15+t} offset:{512*h}'
    def rdX(i, par):
        return f'ds_read_b128 {vr(XF+4*i)}, v{4+par} offset:{2048*i}'
    def mfma(i, t, p):
        w = vr(WF + 20 * p + 4 * t); x = vr(XF + 4 * i); d = vr(acc(i, t))
        A(f'v_mfma_f32_16x16x32_bf16 {d}, {x}, {w}, {d}' if kv else f'v_mfma_f32_16x16x32_bf16 {d}, {w}, {x}, {d}')
    A(f's_mov_b32 s50, {WBASE}\ns_mov_b32 s51, 0\ns_mov_b32 s54, 0')
    if not kv:
        A(f's_cmp_lg_u32 s55, 0\ns_cselect_b32 s52, {GWBASE}, s50\ns_movk_i32 s53, {WSLOT}\ns_cselect_b32 s53, {GWS}, s53\ns_mov_b32 s57, {WBASE + NW*WSLOT}\ns_cselect_b32 s57, -1, s57')
    for l in set_w() + set_x(0) + set_x(1):
        A(l)
    A(f'v_mov_b32 v3, {CT}\ns_lshl_b32 s48, s21, 8\ns_add_u32 m0, s48, {CT+256}\nv_mov_b32 v0, {OOB}\nv_writelane_b32 v0, 0, 0')
    table_srd(A, 44)
    stamp(A, 1)
    lds_wait(A, 3, 0, 6, 1, sdst=59)
    A('s_waitcnt vmcnt(0)')
    A(f's_setprio {PRIO}')
    stamp(A, 2)
    for t in range(5):
        A(rdW(0, t, 0)); A(rdW(0, t, 1))
    A('s_waitcnt lgkmcnt(6)')
    for i in range(8):
        A(rdX(i, 0))
    for l in upd_s() + set_w():
        A(l)
    A('s_mov_b32 s58, 2\ns_cmp_ge_i32 s59, s58')
    A(f's_cbranch_scc0 L_{tag}_slow0')
    A('.p2align 3')
    for p in range(2):
        gap = {k: [] for k in range(40)}
        for i in range(5):
            gap[5*i].append(rdW(1 - p, i, 0)); gap[5*i + 2].append(rdW(1 - p, i, 1))
        for i in range(8):
            gap[5*i + 4].append(rdX(i, 1 - p))
        gap[9].append('s_waitcnt lgkmcnt(6)')
        gap[1].append('s_add_u32 s54, s54, 4')
        gap[11].append('buffer_load_dword v0, s[44:47], s54 offen lds')
        gap[6].append('s_add_u32 s58, s58, 1'); gap[8].append('s_min_u32 s58, s58, 20')
        sal = upd_s() + (upd_blk() if p == 0 else [])
        for k in (13, 13, 16, 16, 18, 18, 21, 21, 23):
            if sal: gap[k].append(sal.pop(0))
        assert not sal
        gap[23].append('ds_read_b128 v[6:9], v3')
        for k, l in zip((25, 26, 27, 28, 30, 31), set_w() + set_x(p)):
            gap[k].append(l)
        gap[32].append('s_waitcnt lgkmcnt(2)'); gap[32].append('v_min3_u32 v6, v6, v7, v8')
        gap[33].append('v_min_u32 v6, v6, v9')
        gap[35].append('v_readfirstlane_b32 s59, v6')
        if p == 1:
            gap[36].append('s_cmp_lt_u32 s54, 80'); gap[37].append(f's_cbranch_scc0 L_{tag}_last')
        gap[38].append('s_cmp_ge_i32 s59, s58' if 'nowait' not in EXP else 's_cmp_eq_u32 s59, s59')
        if 'novalu' in EXP:
            for k in gap: gap[k] = [l for l in gap[k] if not l.startswith('v_')]
        if 'nods' in EXP:
            for k in gap: gap[k] = [l for l in gap[k] if not l.startswith('ds_')]
        if 'nosalu' in EXP:
            for k in gap: gap[k] = [l for l in gap[k] if not (l.startswith('s_') and 13 <= k <= 23)]
        if 'noctl' in EXP:
            for k in gap: gap[k] = [l for l in gap[k] if not (' v6' in l or 'v[6:9]' in l)]
        if 'nowr' in EXP:
            for k in gap: gap[k] = [l for l in gap[k] if not l.startswith('ds_write')]
        if 'now32' in EXP:
            gap[32] = [l for l in gap[32] if not l.startswith('s_waitcnt')]
        if 'nopub' in EXP: pass
        if p == 0:
            A(f'L_{tag}_go0:')
        else:
            A(f's_cbranch_scc0 L_{tag}_slow1')
            A(f'L_{tag}_go1:')
        A('s_waitcnt lgkmcnt(2)')
        for i in range(8):
            for t in range(5):
                mfma(i, t, p)
                for l in gap[5*i + t]: A(l)
    A(f's_cbranch_scc1 L_{tag}_go0')
    for p in range(2):
        A(f'L_{tag}_slow{p}:')
        tbeg(A)
        lds_wait(A, 3, 0, 6, 's58', sdst=59)
        tend(A, 100)
        if STAMP: A('s_add_u32 s101, s101, 1')
        A(f's_branch L_{tag}_go{p}')
    A(f'L_{tag}_last:')
    mfma(7, 3, 1); mfma(7, 4, 1)
    A('s_waitcnt lgkmcnt(0)')
    stamp(A, 3)
    A('s_nop 6')
    if 'p1' in EXP: finish(A)


def phi_q(A, b, t, dst=None):
    dst = b if dst is None else dst
    A(f'v_pk_mul_f32 {vr(t,2)}, {vr(b,2)}, s[60:61]\nv_pk_mul_f32 {vr(t+2,2)}, {vr(b+2,2)}, s[60:61]')
    for j in range(4):
        A(f'v_exp_f32 v{t+j}, v{t+j} clamp')
    for j in range(4):
        A(f'v_max_f32 v{dst+j}, s66, v{b+j}')
    A(f'v_pk_add_f32 {vr(dst,2)}, {vr(dst,2)}, {vr(t,2)}\nv_pk_add_f32 {vr(dst+2,2)}, {vr(dst+2,2)}, {vr(t+2,2)}')


def gen_compute(A):
    A('L_compute:')
    if CODEPF:
        A('s_cmp_lg_u32 s21, 0\ns_cbranch_scc1 L_nocpf')
        A(f's_getpc_b64 s[44:45]\nL_pc:\ns_sub_u32 s44, s44, L_pc-{NAME}_kernel\ns_subb_u32 s45, s45, 0\ns_mov_b32 s46, L_end-{NAME}_kernel\ns_mov_b32 s47, 0x20000')
        A('s_lshr_b32 s48, s2, 3\ns_lshl_b32 s48, s48, 11\nv_lshlrev_b32 v3, 7, v2\ns_mov_b64 exec, 0xffff')
        A('buffer_load_dword v95, v3, s[44:47], s48 offen\ns_mov_b64 exec, -1')
        A('L_nocpf:')
    A('s_barrier')
    A.c('compute wave setup: v3=q v4=r v5=c v6=f<<5 v7=rowpart')
    for r in range(ACC, 256, 2):
        A(f'v_mov_b64 {vr(r,2)}, 0')
    A('v_lshrrev_b32 v3, 4, v2\nv_bfe_u32 v4, v2, 2, 2\nv_and_b32 v5, 3, v2')
    A('v_lshrrev_b32 v6, 1, v4\nv_and_b32 v8, 1, v3\nv_lshl_add_u32 v6, v8, 1, v6\nv_lshlrev_b32 v6, 5, v6')
    A('v_mul_u32_u24 v7, 5120, v3\nv_lshl_add_u32 v7, v4, 7, v7')
    A('v_and_b32 v8, 15, v2\nv_lshrrev_b32 v9, 1, v8\nv_xor_b32 v9, v9, v3\nv_lshlrev_b32 v9, 4, v9\nv_lshl_add_u32 v20, v8, 7, v9\nv_xor_b32 v21, 64, v20')
    A(f's_mov_b32 s60, {LOG2E}\ns_mov_b32 s61, {LOG2E}\ns_mov_b32 s62, {NLOG2E}\ns_mov_b32 s63, {NLOG2E}')
    A(f's_mov_b32 s64, 1.0\ns_mov_b32 s65, 1.0\ns_mov_b32 s66, {EPS}')
    A('s_waitcnt lgkmcnt(0)')
    srd(A, 40, 16, WS_USED)
    if PRETOUCH:
        A('s_cmp_lg_u32 s21, 1\ns_cbranch_scc1 L_nopt')
        A('s_load_dwordx2 s[28:29], s[0:1], 64\ns_load_dwordx2 s[32:33], s[0:1], 16\ns_mov_b32 s30, 2621440\ns_mov_b32 s31, 0x20000\ns_mov_b32 s34, 819200\ns_mov_b32 s35, 0x20000')
        srd(A, 36, 12, 1966080)
        A('v_lshlrev_b32 v8, 18, v2\nv_lshlrev_b32 v9, 16, v2')
        A('buffer_load_dword v92, v8, s[40:43], 0 offen\nbuffer_load_dword v93, v9, s[36:39], 0 offen\ns_waitcnt lgkmcnt(0)')
        A('buffer_load_dword v94, v9, s[28:31], 0 offen\nbuffer_load_dword v95, v9, s[32:35], 0 offen')
        A('L_nopt:')
    A('s_cmp_eq_u32 s20, 0\ns_cbranch_scc1 L_kv')

    A('s_lshr_b32 s48, s21, 1\ns_lshl_b32 s48, s48, 10\ns_and_b32 s49, s21, 1\ns_lshl_b32 s49, s49, 3')
    A('v_add_u32 v8, s49, v5\nv_lshlrev_b32 v8, 3, v8\nv_xor_b32 v9, v8, v6\nv_add3_u32 v10, v9, v7, s48')
    A('v_add_u32 v8, 32, v8\nv_xor_b32 v9, v8, v6\nv_add3_u32 v11, v9, v7, s48')
    A('v_add_u32 v12, 2048, v10\nv_add_u32 v13, 2048, v11')
    A('s_lshl_b32 s49, s21, 2\nv_add_u32 v8, s49, v5\nv_lshlrev_b32 v8, 3, v8\nv_xor_b32 v9, v8, v6\nv_add_u32 v14, v9, v7\nv_add_u32 v14, 4096, v14')
    A('s_cmp_eq_u32 s55, 0\ns_cbranch_scc1 L_g_notgc')
    A('v_lshlrev_b32 v14, 5, v3\nv_lshl_add_u32 v14, v4, 3, v14')
    A('L_g_notgc:')
    A('v_lshlrev_b32 v22, 4, v2')
    A(f's_mul_i32 s72, s18, {2*68*4096}\ns_add_u32 s73, s72, {68*4096}')
    A('s_lshl_b32 s48, s22, 2\ns_add_u32 s48, s48, s21\ns_lshl_b32 s49, s48, 12\ns_add_u32 s70, s72, s49\ns_add_u32 s71, s73, s49')
    A(f's_lshl_b32 s74, s18, {FSH}\ns_lshl_b32 s49, s48, 3\ns_add_u32 s74, s74, s49\ns_add_u32 s74, s74, {FG_OFF}')
    A('s_lshl_b32 s48, s48, 2\nv_add_u32 v5, s48, v3')
    A('v_mul_u32_u24 v6, 6554, v5\nv_lshrrev_b32 v6, 16, v6\nv_mul_u32_u24 v7, 10, v6\nv_sub_u32 v7, v5, v7')
    A('v_lshrrev_b32 v8, 2, v6\nv_and_b32 v6, 3, v6')
    A('v_mul_u32_u24 v8, 5, v8\nv_lshrrev_b32 v9, 1, v7\nv_add3_u32 v8, v8, v9, 48\nv_lshlrev_b32 v8, 12, v8')
    A('v_and_b32 v9, 15, v2\nv_lshl_add_u32 v9, v6, 4, v9\nv_lshl_add_u32 v8, v9, 4, v8')
    A('v_and_b32 v7, 1, v7\nv_lshl_add_u32 v23, v7, 10, v8')
    mainloop(A, False, 'g')
    A.c('h = u * sigmoid(g)')
    hst = []; pst = []
    for i in range(8):
        g = acc(i, 0); u = acc(i, 2)
        for j in range(4):
            A(f'v_pk_mul_f32 {vr(g+2*j,2)}, {vr(g+2*j,2)}, s[62:63]')
        for j in range(8):
            A(f'v_exp_f32 v{g+j}, v{g+j}')
        for j in range(4):
            A(f'v_pk_add_f32 {vr(g+2*j,2)}, {vr(g+2*j,2)}, s[64:65]')
        for j in range(8):
            A(f'v_rcp_f32 v{g+j}, v{g+j}')
        for j in range(4):
            A(f'v_pk_mul_f32 {vr(u+2*j,2)}, {vr(u+2*j,2)}, {vr(g+2*j,2)}')
        for j in range(4):
            A(f'v_cvt_pk_bf16_f32 v{g+j}, v{u+2*j}, v{u+2*j+1}')
        hst.append(f'buffer_store_dwordx4 {vr(g)}, v22, s[40:43], s{70 + (i>>2)} offen offset:{(i&3)*1024} {LS}')
        if not BURST: A(hst.pop())
    if BURST == 1:
        for l in hst: A(l)
        hst = []
    A('s_cmp_lg_u32 s91, 0\ns_cbranch_scc1 L_gc_epi')
    A.c('pq = phi(q)')
    for i in range(0, 8, 2):
        a0 = acc(i, 4); b0 = acc(i + 1, 4)
        phi_q(A, a0, 24 + 8 * ((i >> 1) & 1))
        phi_q(A, b0, 28 + 8 * ((i >> 1) & 1))
        A(f'v_cvt_pk_bf16_f32 v{a0}, v{a0}, v{a0+1}\nv_cvt_pk_bf16_f32 v{a0+1}, v{a0+2}, v{a0+3}')
        A(f'v_cvt_pk_bf16_f32 v{a0+2}, v{b0}, v{b0+1}\nv_cvt_pk_bf16_f32 v{a0+3}, v{b0+2}, v{b0+3}')
        A('s_nop 1')
        A(f'v_permlane16_swap_b32 v{a0}, v{a0+2}\nv_permlane16_swap_b32 v{a0+1}, v{a0+3}')
        pst.append(f'buffer_store_dwordx4 {vr(a0)}, v23, s[40:43], s{72 + (i>>2)} offen offset:{(i&3)*1024} {LS}')
        if BURST != 2: A(pst.pop())
    for l in hst + pst: A(l)
    A('s_branch L_p1_done')
    A('L_gc_epi:')
    for l in hst: A(l)
    A.c('gate g = sigmoid(logit); stored by gtype 10, wave 0')
    A('v_and_b32 v8, 15, v2\nv_lshlrev_b32 v8, 2, v8')
    A(f's_lshl_b32 s48, s18, 9\ns_add_u32 s48, s48, {G_OFF}\ns_lshl_b32 s49, s22, 2\ns_add_u32 s49, s49, s21')
    A(f's_cmp_eq_u32 s49, 40\ns_cselect_b32 s48, s48, {OOB}')
    for i in range(8):
        A(f'v_mul_f32 v{acc(i,4)}, s62, v{acc(i,4)}')
    for i in range(8):
        A(f'v_exp_f32 v{acc(i,4)}, v{acc(i,4)}')
    for i in range(8):
        A(f'v_add_f32 v{acc(i,4)}, 1.0, v{acc(i,4)}')
    for i in range(8):
        A(f'v_rcp_f32 v{acc(i,4)}, v{acc(i,4)}')
    A('s_nop 0\ns_mov_b64 exec, 0xffff')
    for i in range(8):
        A(f'buffer_store_dword v{acc(i,4)}, v8, s[40:43], s48 offen offset:{64*i} {LS}')
    A('s_mov_b64 exec, -1')
    A('s_branch L_p1_done')

    A('L_kv:')
    A('s_mul_i32 s48, s21, 10\ns_and_b32 s49, s19, 1\ns_lshl_b32 s49, s49, 3\ns_sub_u32 s48, s48, s49')
    def kvaddr(dst, u, isv):
        A(f'v_add_u32 v9, 40, {u}\nv_cmp_gt_i32 vcc, 0, {u}\ns_nop 1\nv_cndmask_b32 v8, {u}, v9, vcc')
        A(f'v_lshrrev_b32 v9, 4, v8\nv_lshl_add_u32 v9, {isv}, 1, v9\nv_and_b32 v23, 15, v8')
        A(f'v_lshl_add_u32 v22, {isv}, 3, v23')
        A('v_cmp_gt_u32 vcc, 32, v8\ns_nop 1\nv_cndmask_b32 v9, 4, v9, vcc\nv_cndmask_b32 v23, v22, v23, vcc')
        A(f'v_lshlrev_b32 v23, 3, v23\nv_xor_b32 v23, v23, v6\nv_lshlrev_b32 v22, 4, {isv}\nv_xor_b32 v23, v23, v22')
        A(f'v_lshl_add_u32 v23, v9, 10, v23\nv_add_u32 v{dst}, v23, v7')
    A('v_mov_b32 v16, 0\nv_mov_b32 v17, 1\nv_add_u32 v15, s48, v5')
    kvaddr(10, 'v15', 'v16'); kvaddr(12, 'v15', 'v17')
    A('v_add_u32 v15, 5, v15')
    kvaddr(11, 'v15', 'v16'); kvaddr(13, 'v15', 'v17')
    A('v_and_b32 v15, 1, v5\nv_mul_u32_u24 v15, 5, v15\nv_add3_u32 v15, v15, s48, 4\nv_lshrrev_b32 v16, 1, v5')
    kvaddr(14, 'v15', 'v16')
    A('v_lshlrev_b32 v22, 4, v2\nv_lshlrev_b32 v23, 4, v3')
    A('v_and_b32 v8, 15, v2\nv_cmp_gt_u32 s[68:69], 8, v8')
    A(f's_lshl_b32 s48, s19, 2\ns_add_u32 s48, s48, s21\ns_lshl_b32 s48, s48, 4\ns_add_u32 s48, s48, s18\ns_mul_i32 s70, s48, {KVS}\ns_add_u32 s70, s70, {KVP_OFF}')
    prods = [(0, 0), (1, 1), (2, 0), (2, 1), (0, 2), (1, 2), (2, 2)]
    A(f's_lshr_b32 s71, s21, 1\ns_mul_i32 s71, s71, {RPK - 40960}\ns_and_b32 s49, s21, 1\ns_lshl_b32 s49, s49, 12\ns_add_u32 s71, s71, s49\ns_add_u32 s71, s71, 40960')
    A('v_mul_u32_u24 v23, 5, v8\nv_add_u32 v23, v23, v3\nv_lshlrev_b32 v23, 4, v23\nv_add_u32 v23, s71, v23')
    mainloop(A, True, 'kv')
    A.c('KV epilogue')
    A('v_mov_b32 v12, 0x3f803f80\nv_mov_b32 v13, v12\nv_mov_b32 v14, v12\nv_mov_b32 v15, v12')
    KT = {0: 0, 1: 1, 2: 4}; VT = {0: 2, 1: 3, 2: 4}
    PR = 24
    pend = []
    def flush(k):
        for _ in range(k):
            if pend: A(pend.pop(0))
    for kk in range(4):
        n = 0
        for i in (2 * kk, 2 * kk + 1):
            for t in (0, 1):
                phi_q(A, acc(i, t), 64 + 4 * (n % 4)); n += 1
                flush(2)
            b = acc(i, 4); s = 80 + 4 * (i & 1)
            phi_q(A, b, 64 + 4 * (n % 4), s); n += 1
            for j in range(4):
                A(f'v_cndmask_b32 v{b+j}, v{b+j}, v{s+j}, s[68:69]')
            flush(1)
        assert not pend
        for t in range(5):
            a = acc(2 * kk, t); b = acc(2 * kk + 1, t)
            A(f'v_cvt_pk_bf16_f32 v{a}, v{a}, v{a+1}\nv_cvt_pk_bf16_f32 v{a+1}, v{a+2}, v{a+3}')
            A(f'v_cvt_pk_bf16_f32 v{a+2}, v{b}, v{b+1}\nv_cvt_pk_bf16_f32 v{a+3}, v{b+2}, v{b+3}')
        for n, (tv, tk) in enumerate(prods):
            d = vr(PR + 4 * n)
            pend.append(f'v_mfma_f32_16x16x32_bf16 {d}, {vr(acc(2*kk,VT[tv]))}, {vr(acc(2*kk,KT[tk]))}, {d if kk else 0}')
        for tk in range(3):
            d = vr(52 + 4 * tk)
            pend.append(f'v_mfma_f32_16x16x32_bf16 {d}, {vr(acc(2*kk,KT[tk]))}, v[12:15], {d if kk else 0}')
    A('s_nop 1')
    flush(10)
    get_epoch(A, 3, 6)
    A(f'v_and_b32 v9, 3, v2\nv_lshlrev_b32 v9, 8, v9\nv_add_u32 v9, {CT+256}, v9')
    lds_wait(A, 9, 0, 8, 18, four='free', sleep=1)
    HB_ = 1792
    wr = [(0, None, 0), (1, None, HB_), (2, (0, 0xffff), 32), (3, (0, 0xffff0000), HB_ + 16), (4, (0x000f000f, 0x000f000f), 1280),
          (5, (0x00f000f0, 0x00f000f0), HB_ + 960), (6, (0, 0x0000000f), 1280 + 32), (6, (0, 0x00f00000), HB_ + 960 + 16),
          (7, (0x00010001, 0x00010001), 1600), (8, (0x00010001, 0x00010001), HB_ + 1600), (9, (1, 0), 1664), (9, (0x10000, 0), HB_ + 1648)]
    for n, m, off in wr:
        if m: A(f's_mov_b32 exec_lo, {hex(m[0])}\ns_mov_b32 exec_hi, {hex(m[1])}')
        A(f'ds_write_b128 v23, {vr(PR+4*n)} offset:{off}')
    A('s_mov_b64 exec, -1\nv_add_u32 v9, s71, v22')
    for i in range(4):
        A(f'ds_read_b128 {vr(64+4*i)}, v9 offset:{1024*i}')
    A('s_and_b32 s76, s88, 0xfff\ns_bfe_u32 s77, s88, 0xc000c\ns_lshr_b64 s[78:79], s[88:89], 24\ns_xor_b32 s78, s78, s88\ns_bfe_u32 s79, s78, 0xc000c\ns_and_b32 s78, s78, 0xfff')
    A('v_mov_b32 v6, 0xfffff000')
    for i in range(4):
        A(f's_waitcnt lgkmcnt({3-i})')
        for r in range(64 + 4 * i, 68 + 4 * i):
            A(f'v_and_or_b32 v{r}, v{r}, v6, s{76 + (r & 3)}')
        if i == 3: A('s_mov_b32 exec_hi, 0')
        A(f'buffer_store_dwordx4 {vr(64+4*i)}, v22, s[40:43], s70 offen offset:{1024*i} sc1')
    A('s_mov_b64 exec, -1')
    A('L_p1_done:')
    stamp(A, 4)
    gen_awave(A)


def p2_ids(A):
    A('s_and_b32 s18, s2, 7\ns_lshl_b32 s18, s18, 2\ns_lshr_b32 s48, s2, 6\ns_add_u32 s18, s18, s48')
    A('s_bfe_u32 s19, s2, 0x30003')


def gpoll(A, soff, vt):
    l0 = A.label('L_gp'); l1 = A.label('L_gs'); l2 = A.label('L_gd')
    A('s_mov_b32 s96, 0\ns_mov_b32 s75, 0')
    A(f'{l0}:')
    A(f's_mov_b32 exec_hi, 0xffff\nbuffer_load_dwordx2 {vr(vt,2)}, v6, s[40:43], s{soff} offen sc1\ns_waitcnt vmcnt(0)\nv_cmp_ne_u64 vcc, s[88:89], {vr(vt,2)}\ns_mov_b32 exec_hi, -1')
    A('s_mov_b32 s74, 0')
    for g in range(4):
        A(f's_bfe_u64 s[76:77], vcc, {hex((12 << 16) | (12 * g))}\ns_cselect_b32 s48, 0, {1 << g}\ns_or_b32 s74, s74, s48')
    A(f's_cmp_eq_u32 s74, s75\ns_cbranch_scc1 {l1}')
    A(f's_mov_b32 s75, s74\nv_mov_b32 v{vt}, s74\ns_mov_b64 exec, 1\nds_write_b32 v0, v{vt} offset:64\ns_mov_b64 exec, -1')
    A(f'{l1}:')
    A(f's_cmp_eq_u32 s74, 15\ns_cbranch_scc1 {l2}')
    A(f's_sleep {PSLEEP}\ns_add_u32 s96, s96, 1\ns_cmp_lt_u32 s96, {SPIN_MAX}\ns_cbranch_scc1 {l0}')
    A(f'{l2}:')


def get_epoch(A, vct, vt):
    l0 = A.label('L_ep')
    A('s_mov_b32 s96, 0')
    A(f'{l0}:')
    A(f'ds_read_b64 {vr(vt,2)}, v{vct} offset:32\ns_waitcnt lgkmcnt(0)\nv_readfirstlane_b32 s88, v{vt}\nv_readfirstlane_b32 s89, v{vt+1}')
    A(f's_add_u32 s96, s96, 1\ns_cmp_eq_u32 s88, 0\ns_cselect_b32 s48, s96, -1\ns_cmp_lt_u32 s48, {SPIN_MAX*16}\ns_cbranch_scc1 {l0}')


def phase_a(A):
    WOI = 0; HS = 0; HSTR = 5120
    A('v_lshrrev_b32 v3, 4, v2\nv_and_b32 v4, 15, v2')
    A('s_mul_i32 s70, s21, 5120')
    A('s_lshr_b32 s50, s18, 1\ns_and_b32 s51, s18, 1')
    A(f's_mul_i32 s48, s51, 1792\nv_add_u32 v10, s48, v5\nv_add_u32 v11, 1024, v10\nv_mov_b32 v15, {OOB}\nv_cmp_lt_u32 vcc, 40, v2\ns_nop 1\nv_cndmask_b32 v11, v11, v15, vcc')
    A('v_mov_b32 v19, v5\nv_add_u32 v20, 1024, v5\nv_mul_u32_u24 v21, 80, v4\nv_lshl_add_u32 v12, v3, 5, v21\nv_lshlrev_b32 v13, 3, v4')
    A('v_bfe_u32 v14, v2, 2, 2\nv_lshl_add_u32 v14, v3, 3, v14\nv_mul_u32_u24 v14, 160, v14\nv_and_b32 v15, 3, v2\nv_lshl_add_u32 v14, v15, 3, v14\nv_add_u32 v14, s70, v14')
    A(f'v_add_u32 v19, s70, v19\nv_add_u32 v20, s70, v20\ns_mul_i32 s48, s51, 5120\nv_add_u32 v12, s48, v12\nv_add_u32 v13, s48, v13')
    A('v_cmp_gt_u32 s[60:61], 3, v3\nv_cmp_gt_u32 s[62:63], 2, v3\nv_cmp_gt_u32 s[64:65], 41, v2')
    A(f's_mul_i32 s48, s51, 5\ns_lshr_b32 s49, s21, 1\ns_mul_i32 s49, s49, {RPK - 40960}\ns_add_u32 s49, s49, 40960')
    for mt in range(2):
        A(f'v_add3_u32 v15, v3, s48, {4*mt}\nv_lshrrev_b32 v16, 1, v15\nv_mul_u32_u24 v16, 1280, v16\nv_and_b32 v15, 1, v15\nv_lshl_add_u32 v16, v15, 3, v16')
        A(f'v_lshl_add_u32 v16, v4, 4, v16\nv_add_u32 v{17+mt}, s49, v16')
    A('s_mul_i32 s48, s51, 40\ns_add_u32 s48, s48, s49\ns_add_u32 s48, s48, 6400\nv_lshlrev_b32 v22, 2, v2\nv_add_u32 v22, s48, v22')
    A('s_mul_i32 s48, s51, 3328\ns_add_u32 s48, s48, s49\nv_add_u32 v21, s48, v5\nv_lshlrev_b32 v15, 10, v3\nv_lshl_add_u32 v15, v4, 4, v15')
    A(f's_lshr_b32 s48, s18, 3\ns_mul_i32 s48, s48, 5\ns_mul_i32 s49, s19, 20\ns_add_u32 s48, s48, s49\ns_mul_i32 s48, s48, 5120\ns_and_b32 s49, s50, 3\ns_lshl_b32 s49, s49, 8\ns_add_u32 s48, s48, s49')
    A(f's_mul_i32 s49, s51, 13312\ns_add_u32 s48, s48, s49\ns_add_u32 s55, s48, {M_OFF}\ns_add_u32 s56, s55, 4096\ns_add_u32 s57, s55, 8192\ns_add_u32 s48, s55, 12288')
    A(f's_lshl_b32 s54, s19, 11\ns_lshl_b32 s49, s50, 7\ns_add_u32 s54, s54, s49\ns_add_u32 s54, s54, {ZB_OFF}')
    A(f's_cmp_eq_u32 s51, 0\ns_cselect_b32 s54, s48, s54\ns_movk_i32 s48, {ZM}\ns_cselect_b32 s58, 0xffff, s48\ns_mov_b32 s59, 0')
    A('s_and_b32 s76, s88, 0xfff\ns_bfe_u32 s77, s88, 0xc000c\ns_lshr_b64 s[78:79], s[88:89], 24\ns_xor_b32 s78, s78, s88\ns_bfe_u32 s79, s78, 0xc000c\ns_and_b32 s78, s78, 0xfff')
    A(f's_mul_i32 s52, s50, {16*KVS}\ns_lshr_b32 s49, s21, 1\ns_mul_i32 s49, s49, {8*KVS}\ns_add_u32 s52, s52, s49\ns_add_u32 s52, s52, {KVP_OFF}')
    A(f's_lshl_b32 s48, s21, 2\nv_add_u32 v23, s48, v0\nv_mov_b32 v244, 1\nv_mov_b32 v245, 2\nv_mov_b32 v246, 3')
    A('s_mov_b64 exec, 1\nds_write_b32 v23, v244 offset:192\ns_mov_b64 exec, -1')
    lds_wait(A, 23, 112, 248, 1, four=False, sleep=1)
    for t in range(5):
        A(f'ds_read_b64_tr_b16 {vr(224+4*t,2)}, v14 offset:{32*t}\nds_read_b64_tr_b16 {vr(226+4*t,2)}, v14 offset:{32*t + 640}')
    stamp(A, 25)
    lds_wait(A, 0, 72, 248, 1, four=False, sleep=2)
    if KVACK: A('s_waitcnt vmcnt(0)')
    if GDELAY: A(f's_sleep {GDELAY}')
    stamp(A, 26)
    A('s_mov_b32 s96, 0')
    A('L_pa_gather:')
    for p in range(8):
        if PAX:
            A(f's_lshl_b32 s53, s69, 1\ns_add_u32 s53, s53, {p}\ns_and_b32 s53, s53, 7\ns_mul_i32 s53, s53, {KVS}\ns_add_u32 s53, s53, s52')
            if p == 2 and PAX == 2: A('s_waitcnt vmcnt(0)')
        else:
            A(f's_add_u32 s53, s52, {KVS*p}')
        for ldi in range(2):
            A(f'buffer_load_dwordx4 {vr(24 + 8*p + 4*ldi)}, v{10+ldi}, s[40:43], s53 offen sc1')
    for p in range(8):
        A(f's_waitcnt vmcnt({2*(7-p)})')
        for r in range(24 + 8 * p, 32 + 8 * p):
            A(f'v_xor_b32 v{r}, s{76 + (r & 3)}, v{r}')
        for ldi in range(2):
            r = 24 + 8 * p + 4 * ldi; d = 8 + ldi
            if p == 0:
                A(f'v_or3_b32 v{d}, v{r}, v{r+1}, v{r+2}\nv_or_b32 v{d}, v{d}, v{r+3}')
            else:
                A(f'v_or3_b32 v{d}, v{d}, v{r}, v{r+1}\nv_or3_b32 v{d}, v{d}, v{r+2}, v{r+3}')
        if p:
            for j in range(0, 8, 2):
                A(f'v_pk_add_f32 {vr(24+j,2)}, {vr(24+j,2)}, {vr(24+8*p+j,2)}')
    A('v_cndmask_b32 v9, 0, v9, s[64:65]\nv_or_b32 v8, v8, v9\nv_and_b32 v8, 0xfff, v8\nv_cmp_ne_u32 vcc, 0, v8')
    A('s_cbranch_vccz L_pa_got')
    stamp(A, 35)
    A(f's_sleep {PSLEEP}\ns_add_u32 s96, s96, 1\ns_cmp_lt_u32 s96, {SPIN_MAX}\ns_cbranch_scc1 L_pa_gather')
    A('L_pa_got:')
    if STAMP: A('v_writelane_b32 v1, s96, 36')
    stamp(A, 27)
    A('ds_write_b128 v19, v[24:27]\nds_write_b128 v20, v[28:31]')
    A('s_mov_b64 exec, 1\nds_write_b32 v23, v244 offset:80\ns_mov_b64 exec, -1')
    lds_wait(A, 0, 80, 248, 1, sleep=0)
    stamp(A, 28)
    for w in range(2):
        for mt in range(2):
            A(f'ds_read_b128 {vr(24+20*w+8*mt)}, v12 offset:{2*w*HSTR + 1280*mt}\nds_read_b128 {vr(28+20*w+8*mt)}, v12 offset:{2*w*HSTR + 1280*mt + 16}')
        A(f'ds_read_b64 {vr(40+20*w,2)}, v13 offset:{2*w*HSTR + 1600}')
    A('s_waitcnt lgkmcnt(0)')
    for j in range(0, 18, 2):
        A(f'v_pk_add_f32 {vr(24+j,2)}, {vr(24+j,2)}, {vr(44+j,2)}')
    for mt in range(2):
        b = 24 + 8 * mt
        for j in range(4):
            A(f'v_cvt_pk_bf16_f32 v{b+j}, v{b+2*j}, v{b+2*j+1}')
        for j in range(4):
            A(f'v_cndmask_b32 v{b+j}, 0, v{b+j}, {"s[60:61]" if j < 2 else "s[62:63]"}')
    A('v_cvt_pk_bf16_f32 v40, v40, v41\ns_nop 0')
    for mt in range(2):
        for t in range(5):
            A(f'v_mfma_f32_16x16x32_bf16 {vr(64+20*mt+4*t)}, {vr(24+8*mt)}, {vr(224+4*t)}, 0')
    A('s_mov_b64 exec, 0x3ff\nds_write_b32 v22, v40\ns_mov_b64 exec, -1\ns_nop 0')
    for mt in range(2):
        if mt == 1: A('s_mov_b64 exec, 0xffff')
        for t in range(5):
            b = 64 + 20 * mt + 4 * t
            A(f'v_cvt_pk_bf16_f32 v{b}, v{b}, v{b+1}\nv_cvt_pk_bf16_f32 v{b+1}, v{b+2}, v{b+3}')
            A(f'ds_write_b64 v{17+mt}, {vr(b,2)} offset:{256*t}')
    A('s_mov_b64 exec, 1\nds_write_b32 v23, v245 offset:80\ns_mov_b64 exec, -1')
    lds_wait(A, 0, 80, 248, 2, sleep=0)
    for i in range(4):
        A(f'ds_read_b128 {vr(24+4*i)}, v21 offset:{1024*i}')
    for i in range(3):
        A(f's_waitcnt lgkmcnt({3-i})\nbuffer_store_dwordx4 {vr(24+4*i)}, v15, s[40:43], s{55+i} offen sc1')
    A('s_waitcnt lgkmcnt(0)\ns_mov_b64 exec, s[58:59]\nbuffer_store_dwordx4 v[36:39], v15, s[40:43], s54 offen sc1')
    stamp(A, 29)
    if MACK: A('s_waitcnt vmcnt(0)')
    A('s_mov_b64 exec, 1\nds_write_b32 v23, v246 offset:80\ns_mov_b64 exec, -1')
    lds_wait(A, 0, 80, 248, 3, sleep=1)
    stamp(A, 30)


XCH = [0, 15360, 30720, WBASE + 4 * WSLOT]
def gen_awave(A):
    AC = 16; PQ = 96; MB = 176
    def a2(rt, t): return AC + 20 * rt + 4 * t
    def pq(kk, rt): return PQ + 16 * kk + 4 * rt
    A('s_load_dwordx2 s[8:9], s[0:1], 64')
    A(f'v_mov_b32 v0, {CT}')
    A('v_lshrrev_b32 v3, 4, v2\nv_and_b32 v4, 15, v2\nv_lshlrev_b32 v5, 4, v2\nv_lshlrev_b32 v6, 3, v2\nv_add_u32 v7, 4096, v5')
    A('s_cmp_lg_u32 s20, 0\ns_cbranch_scc1 L_a_g')
    A('s_and_b32 s69, s2, 7\ns_lshl_b32 s69, s69, 3\ns_bfe_u32 s48, s2, 0x30003\ns_add_u32 s69, s69, s48')
    A('s_lshr_b32 s18, s69, 2\ns_lshl_b32 s18, s18, 1\ns_and_b32 s48, s21, 1\ns_add_u32 s18, s18, s48\ns_and_b32 s19, s69, 3\ns_lshl_b32 s19, s19, 1\ns_lshr_b32 s48, s21, 1\ns_add_u32 s19, s19, s48')
    phase_a(A)
    A('s_branch L_a_sig')
    A('L_a_g:')
    get_epoch(A, 0, 8)
    set_flag(A, 74, 8)
    A('L_a_sig:')
    A(f'v_mov_b32 v8, 1\ns_lshl_b32 s48, s21, 2\nv_add_u32 v9, s48, v0\ns_mov_b64 exec, 1\nds_write_b32 v9, v8 offset:48\ns_mov_b64 exec, -1')
    stamp(A, 5)
    A('s_waitcnt lgkmcnt(0)')
    srd(A, 28, 8, 2621440)
    A('L_a_main:')
    A(f's_setprio {APRIO}')
    p2_ids(A)
    A(f's_lshr_b32 s48, s18, 1\ns_lshl_b32 s59, s48, {FSH}\ns_add_u32 s59, s59, {FG_OFF}')
    A('s_mul_i32 s48, s21, 5\ns_mul_i32 s54, s18, 68\ns_add_u32 s54, s54, s48\ns_add_u32 s54, s54, 48\ns_lshl_b32 s54, s54, 12')
    A(f's_mul_i32 s55, s19, 20\ns_add_u32 s55, s55, s48\ns_mul_i32 s55, s55, 5120\ns_add_u32 s55, s55, {M_OFF}')
    A(f's_lshl_b32 s53, s18, 8\ns_add_u32 s53, s53, {G_OFF}')
    A(f's_lshl_b32 s52, s19, 11\ns_lshl_b32 s49, s21, 9\ns_add_u32 s52, s52, s49\ns_add_u32 s52, s52, {ZB_OFF}')
    A(f's_lshl_b32 s58, s19, 11\ns_add_u32 s58, s58, {ZB_OFF}')
    A('v_lshlrev_b32 v14, 2, v4\nv_lshlrev_b32 v15, 7, v3')
    A('v_lshrrev_b32 v12, 2, v4\nv_cmp_eq_u32 s[60:61], v12, v3\nv_and_b32 v12, 1, v4\nv_cmp_eq_u32 s[62:63], 0, v12')
    A('s_and_b64 s[64:65], s[60:61], s[62:63]\ns_andn2_b64 s[66:67], s[60:61], s[62:63]')
    A(f's_mov_b32 s68, {EPS}\ns_mov_b32 s69, 0xffff0000')
    Q = []
    def ld(tag, txt):
        A(txt); Q.append(tag)
    def wait(tag):
        last = max(k for k, t in enumerate(Q) if t == tag)
        A(f's_waitcnt vmcnt({len(Q) - 1 - last})')
    def issueM(kk):
        A(f's_add_u32 s57, s55, {5120*kk}')
        for t in range(4):
            ld(('M', kk), f'buffer_load_dwordx4 {vr(mb(kk,t))}, v5, s[40:43], s57 offen offset:{1024*t} sc1')
        ld(('M', kk), f'buffer_load_dwordx4 {vr(mb(kk,4))}, v7, s[40:43], s57 offen sc1')
    ZR = 236
    ZIMG = CT + 1536
    mbuf = {0: MB, 1: MB + 20, 2: MB + 40, 3: MB, 4: MB + 20}
    def mb(kk, t): return mbuf[kk] + 4 * t
    for j in range(4):
        A(f's_add_u32 s48, s21, {j+1}\ns_and_b32 s{70+j}, s48, 3')
    A('s_cmp_lg_u32 s21, 2\ns_cbranch_scc1 L_a_nopollg')
    A('s_cmp_eq_u32 s20, 0\ns_cbranch_scc1 L_a_nopollg')
    lds_wait(A, 0, 48, 8, 1, sleep=2)
    gpoll(A, 59, 8)
    A('L_a_nopollg:')
    if FINEG:
        A('s_lshl_b32 s74, 3, s21\ns_lshr_b32 s74, s74, 1')
    else:
        A('s_mov_b32 s74, 15')
    lds_wait_mask(A, 0, 64, 8, 's74')
    stamp(A, 11)
    if COOP_P:
        if KVFAST: A('s_cmp_eq_u32 s20, 0\ns_cbranch_scc1 L_a_nocp')
        A('s_mul_i32 s49, s19, 2560\ns_add_u32 s48, s54, s49')
        A('v_lshlrev_b32 v8, 7, v2\ns_mov_b64 exec, 0xfffff\nbuffer_load_dword v9, v8, s[40:43], s48 offen sc1\ns_mov_b64 exec, -1\ns_waitcnt vmcnt(0)')
        A('L_a_nocp:')
    stamp(A, 21)
    for j in range(4):
        A(f's_lshl_b32 s48, s{70+j}, 10\ns_add_u32 s56, s54, s48')
        for kk in range(5 if j < NRC else 0):
            A(f'buffer_load_dwordx4 {vr(pq(kk,j))}, v5, s[40:43], s56 offen {LL}')
            if kk < 4: A('s_add_u32 s56, s56, 4096')
    stamp(A, 22)
    lds_wait_mask(A, 0, 64, 8, 8)
    stamp(A, 23)
    for j in range(4):
        A(f's_lshl_b32 s48, s{70+j}, 6\ns_add_u32 s56, s53, s48\nbuffer_load_dword v{10+j}, v14, s[40:43], s56 offen {LL}')
    A(f'v_lshrrev_b32 v8, 2, v2\nv_and_b32 v9, 3, v2\nv_mul_u32_u24 v24, 80, v8\nv_lshl_add_u32 v24, v9, 4, v24\nv_add_u32 v24, {ZIMG}, v24\nv_lshlrev_b32 v26, 7, v8\nv_lshl_add_u32 v26, v9, 4, v26')
    A(f's_mul_i32 s76, s19, 102400\ns_and_b32 s49, s18, 3\ns_mul_i32 s49, s49, 25600\ns_add_u32 s76, s76, s49\ns_mul_i32 s49, s21, 6400\ns_add_u32 s76, s76, s49\ns_add_u32 s76, s76, {M_OFF}\nv_lshlrev_b32 v27, 7, v2')
    lds_wait(A, 0, 72, 8, 1, four=False, sleep=2)
    A('s_cmp_lg_u32 s21, 1\ns_cbranch_scc1 L_a_oth2')
    if KVFAST == 2: A('s_cmp_eq_u32 s20, 0\ns_cbranch_scc1 L_a_nogate')
    lds_wait(A, 0, 144, 16, 1, sleep=1)
    A('L_a_nogate:')
    stamp(A, 24)
    A('buffer_load_dwordx4 v[16:19], v26, s[40:43], s58 offen sc1\nbuffer_load_dwordx4 v[20:23], v26, s[40:43], s58 offen offset:16 sc1')
    A('v_mov_b32 v8, 1\ns_mov_b64 exec, 1\nds_write_b32 v0, v8 offset:76\ns_mov_b64 exec, -1')
    A('L_a_oth2:')
    lds_wait(A, 0, 76, 8, 1, four=False, sleep=2)
    A('s_mov_b32 exec_hi, 0x3ffff\nbuffer_load_dword v95, v27, s[40:43], s76 offen sc1\ns_mov_b32 exec_hi, -1')
    A('s_cmp_lg_u32 s21, 1\ns_cbranch_scc1 L_a_nopoll')
    A('s_mov_b32 s96, 0\ns_waitcnt vmcnt(1)\ns_branch L_a_zchk')
    A('L_a_zpoll:')
    A('buffer_load_dwordx4 v[16:19], v26, s[40:43], s58 offen sc1\nbuffer_load_dwordx4 v[20:23], v26, s[40:43], s58 offen offset:16 sc1\ns_waitcnt vmcnt(0)')
    A('L_a_zchk:')
    A('v_max3_u32 v9, v16, v18, v20\nv_max_u32 v9, v9, v22\nv_cmp_eq_u32 vcc, -1, v9')
    A('s_cbranch_vccz L_a_zok')
    A(f's_sleep {MSLEEP}\ns_add_u32 s96, s96, 1\ns_cmp_lt_u32 s96, {SPIN_MAX}\ns_cbranch_scc1 L_a_zpoll')
    A('L_a_zok:')
    if STAMP: A('v_writelane_b32 v1, s96, 36')
    A('ds_write_b128 v24, v[16:19]\nds_write_b128 v24, v[20:23] offset:16')
    A('v_mov_b32 v8, 1\ns_mov_b64 exec, 1\nds_write_b32 v0, v8 offset:68\ns_mov_b64 exec, -1')
    A('L_a_nopoll:')
    A(f's_mul_i32 s48, s21, 320\ns_add_u32 s48, s48, {ZIMG}\nv_mul_u32_u24 v15, 80, v3\nv_add_u32 v15, s48, v15')
    lds_wait(A, 0, 68, 8, 1, four=False, sleep=2)
    stamp(A, 10)
    for kk in range(5):
        A(f'ds_read_b128 {vr(ZR+4*kk)}, v15 offset:{16*kk}')
    if SPEC_M:
        A('s_waitcnt vmcnt(1)')
    elif COOP_M:
        A(f's_mul_i32 s48, s19, 102400\ns_and_b32 s49, s18, 3\ns_mul_i32 s49, s49, 25600\ns_add_u32 s48, s48, s49\ns_mul_i32 s49, s21, 6400\ns_add_u32 s48, s48, s49\ns_add_u32 s48, s48, {M_OFF}')
        A('v_lshlrev_b32 v8, 7, v2\ns_mov_b32 exec_hi, 0x3ffff\nbuffer_load_dword v9, v8, s[40:43], s48 offen sc1\ns_mov_b32 exec_hi, -1')
    else:
        issueM(0); issueM(1); issueM(2)
    A('s_waitcnt lgkmcnt(0)')
    for kk in range(5):
        for j in range(4):
            m = 's[66:67]' if (4 * kk + j) >= 10 else 's[64:65]'
            A(f'v_cndmask_b32 v{ZR+4*kk+j}, 0, v{ZR+4*kk+j}, {m}')
    den = [AC + 4 * rt for rt in range(4)]
    if not SPEC_M: A(f's_waitcnt vmcnt({1 if COOP_M else 15})')
    stamp(A, 17)
    A('s_nop 0')
    for kk in range(5):
        for rt in range(NRC):
            d = vr(den[rt])
            A(f'v_mfma_f32_16x16x32_bf16 {d}, {vr(ZR+4*kk)}, {vr(pq(kk,rt))}, {d if kk else 0}')
    A('s_nop 7')
    SC = ZR; T0 = ZR + 8
    for rt in range(NRC):
        A(f'v_add_f32 v{den[rt]}, s68, v{den[rt]}\nv_add_f32 v{den[rt]+1}, s68, v{den[rt]+1}')
    for rt in range(NRC):
        A(f'v_rcp_f32 v{den[rt]}, v{den[rt]}\nv_rcp_f32 v{den[rt]+1}, v{den[rt]+1}')
    A('s_nop 0')
    for rt in range(NRC):
        A(f'v_mul_f32 v{SC+2*rt}, v{10+rt}, v{den[rt]}\nv_mul_f32 v{SC+2*rt+1}, v{10+rt}, v{den[rt]+1}')
    def norm_ops(kk):
        L = []
        for rt in range(NRC):
            r = pq(kk, rt)
            for j in range(4):
                L += [f'v_lshlrev_b32 v{T0+2*j}, 16, v{r+j}', f'v_and_b32 v{T0+2*j+1}, s69, v{r+j}']
            for j in range(4):
                odd = 1 if (4 * kk + j) >= 10 else 0
                L += [f'v_mul_f32 v{T0+2*j}, v{SC+2*rt+odd}, v{T0+2*j}', f'v_mul_f32 v{T0+2*j+1}, v{SC+2*rt+odd}, v{T0+2*j+1}']
            for j in range(4):
                L += [f'v_cvt_pk_bf16_f32 v{r+j}, v{T0+2*j}, v{T0+2*j+1}']
        return L
    stamp(A, 20)
    A('s_waitcnt vmcnt(0)')
    issueM(0); issueM(1)
    for kk in range(NLEAD):
        for l in norm_ops(kk): A(l)
        if kk == 0: issueM(2)
    stamp(A, 6)
    A('v_sub_f32 v14, 1.0, v13')
    for j in range(3):
        A(f's_mul_i32 s48, s{70+j}, 15360\ns_cmp_eq_u32 s{70+j}, 3\ns_cselect_b32 s48, {XCH[3]}, s48\ns_add_u32 s48, s48, {(2-j)*5120}\nv_add_u32 v{10+j}, s48, v5')
    A(f's_lshl_b32 s48, s21, 11\ns_add_u32 s48, s48, {XCH[3] + 15360 - 3072}\nv_add_u32 v13, s48, v5')
    A(f's_mul_i32 s48, s21, 5120\ns_add_u32 s48, s48, {WBASE + 2*WSLOT}\nv_add_u32 v15, s48, v5\ns_lshl_b32 s48, s21, 2\nv_add_u32 v6, s48, v0')
    for kk in range(5):
        nxt = norm_ops(kk + NLEAD) if kk + NLEAD < 5 else []
        wait(('M', kk))
        A('s_mov_b32 s96, 0')
        A(f'L_a_mchk{kk}:')
        m0 = mb(kk, 0)
        A(f'v_max3_u32 v8, v{m0}, v{m0+2}, v{m0+4}')
        for k in (3, 5, 7):
            A(f'v_max3_u32 v8, v8, v{m0+2*k}, v{m0+2*k+2}')
        A(f'v_max_u32 v8, v8, v{m0+18}\nv_cmp_eq_u32 vcc, -1, v8')
        A(f's_cbranch_vccnz L_a_mre{kk}')
        A(f'L_a_mok{kk}:')
        stamp(A, 31 + kk)
        if kk == 4:
            lds_wait(A, 0, 96, PQ, 1, sleep=1)
        if NRC == 2:
            lds_wait(A, 6, 160, 8, kk + 1, four=False, sleep=1)
            A(f'ds_read_b128 {vr(pq(kk,2))}, v15 offset:{1024*kk}\nds_read_b128 {vr(pq(kk,3))}, v15 offset:{WSLOT + 1024*kk}')
        for rt in range(4):
            if NRC == 2 and rt == 2:
                A('s_waitcnt lgkmcnt(0)')
                if kk == 4:
                    A('v_mov_b32 v8, 1\ns_mov_b64 exec, 1\nds_write_b32 v6, v8 offset:176\ns_mov_b64 exec, -1')
            for t in range(5):
                d = vr(a2(rt, t))
                A(f'v_mfma_f32_16x16x32_bf16 {d}, {vr(mb(kk,t))}, {vr(pq(kk,rt))}, {d if kk else 0}')
                for _ in range(NRC):
                    if nxt: A(nxt.pop(0))
                if kk == 4 and rt >= 2:
                    A(f'ds_write_b128 v{10+rt-2}, {vr(a2(rt-2,t))} offset:{t*1024}')
        if kk < 2:
            issueM(kk + 3)
    stamp(A, 12)
    for t in range(5):
        A(f'ds_write_b128 v12, {vr(a2(2,t))} offset:{t*1024}')
    A(f's_lshl_b32 s48, s21, 8\nv_lshlrev_b32 v8, 2, v2\nv_add_u32 v8, s48, v8\nds_write_b32 v8, v14 offset:{46080}')
    for t in (3, 4):
        A(f'ds_write_b128 v13, {vr(a2(3,t))} offset:{t*1024}')
    OWN = a2(3, 0)
    A(f's_mul_i32 s50, s21, 15360\ns_cmp_eq_u32 s21, 3\ns_cselect_b32 s50, {XCH[3]}, s50')
    A(f's_mul_i32 s48, s21, {WSLOT}\ns_add_u32 s48, s48, {WBASE}\nv_add_u32 v8, s48, v5\nv_mov_b32 v15, v14\nv_add_u32 v7, s50, v5')
    A('s_lshl_b32 s48, s18, 6\ns_lshl_b32 s49, s21, 4\ns_add_u32 s48, s48, s49\nv_add_u32 v9, s48, v4\nv_mul_u32_u24 v9, 1280, v9\nv_lshl_add_u32 v9, v3, 3, v9\ns_mul_i32 s48, s19, 160')
    A('s_waitcnt lgkmcnt(0)')
    A('s_barrier')
    stamp(A, 13)
    for r in range(4):
        for t in range(3):
            A(f'ds_read_b128 {vr(PQ+12*r+4*t)}, v8 offset:{r*5120 + 1024*t}')
    A('s_waitcnt lgkmcnt(6)')
    for r in range(3):
        for t in range(3):
            A(f'ds_read_b128 {vr(AC+12*r+4*t)}, v7 offset:{r*5120 + 1024*t}')
    for k in range(0, 12, 2):
        A(f'v_pk_add_f32 {vr(PQ+k,2)}, {vr(PQ+k,2)}, {vr(PQ+12+k,2)}')
    A('s_waitcnt lgkmcnt(9)')
    for k in range(0, 12, 2):
        A(f'v_pk_add_f32 {vr(PQ+24+k,2)}, {vr(PQ+24+k,2)}, {vr(PQ+36+k,2)}')
    for k in range(0, 12, 2):
        A(f'v_pk_add_f32 {vr(PQ+k,2)}, {vr(PQ+k,2)}, {vr(PQ+24+k,2)}')
    for k in range(0, 12, 2):
        A(f'v_pk_fma_f32 {vr(OWN+k,2)}, {vr(PQ+k,2)}, v[14:15], {vr(OWN+k,2)}')
    for sl in range(3):
        A(f's_waitcnt lgkmcnt({6 - 3*sl})')
        for k in range(0, 12, 2):
            A(f'v_pk_add_f32 {vr(OWN+k,2)}, {vr(OWN+k,2)}, {vr(AC+12*sl+k,2)}')
    for t in range(3):
        b = OWN + 4 * t
        A(f'v_cvt_pk_bf16_f32 v{b}, v{b}, v{b+1}\nv_cvt_pk_bf16_f32 v{b+1}, v{b+2}, v{b+3}')
        A(f'buffer_store_dwordx2 {vr(b,2)}, v9, s[28:31], s48 offen offset:{32*t}')
    stamp(A, 14)
    finish(A)
    for kk in range(5):
        A(f'L_a_mre{kk}:')
        A('s_sleep 4')
        issueM(kk)
        A(f's_waitcnt vmcnt(0)\ns_add_u32 s96, s96, 1\ns_cmp_lt_u32 s96, {SPIN_MAX}\ns_cbranch_scc1 L_a_mchk{kk}')
        A(f's_branch L_a_mok{kk}')


def gen_loader(A):
    A.c('s67 = lw ; role constants: s68 strideA, s60 cA, s61 cB, s62 xB, s63 c4, s64 hi-mult')
    A('s_sub_u32 s67, s21, 4')
    A('s_mul_i32 s48, s19, 320\ns_add_u32 s48, s48, 1280\ns_and_b32 s57, s19, 1\ns_lshl_b32 s58, s57, 6\ns_add_u32 s58, s58, s48')
    A('s_xor_b32 s57, s57, 1\ns_lshl_b32 s57, s57, 8\ns_add_u32 s57, s57, s48\ns_add_u32 s59, s58, 1280')
    A('s_lshl_b32 s48, s22, 8\ns_lshl_b32 s49, s22, 7\ns_movk_i32 s56, 3072')
    A('s_cmp_eq_u32 s20, 0')
    A('s_cselect_b32 s68, 3840, s56\ns_cselect_b32 s60, s58, s48\ns_cselect_b32 s61, s59, s48\ns_cselect_b32 s62, 1, 0\ns_cselect_b32 s63, s57, s49\ns_cselect_b32 s64, 1280, 64')
    A(f's_cmp_lg_u32 s91, 0\ns_cselect_b32 s63, {OOB}, s63')
    A(f'v_mov_b32 v29, {OOB}\ns_lshl_b32 s75, s68, 5\ns_lshl_b32 s69, s18, 2\ns_add_u32 s69, s69, s19\nv_and_b32 v3, 31, v2\nv_lshrrev_b32 v4, 5, v2')
    A('s_movk_i32 s48, 3072\ns_cmp_eq_u32 s67, 1\ns_cselect_b32 s48, 3840, s48\ns_lshr_b32 s49, s48, 7\ns_lshl_b32 s85, s48, 6\ns_movk_i32 s56, 128')
    A('s_cmp_eq_u32 s67, 0\ns_cselect_b32 s48, 40960, s48\ns_cselect_b32 s49, 32, s49\ns_cselect_b32 s85, 128, s85\ns_cselect_b32 s56, 1280, s56\ns_mul_i32 s48, s48, s69')
    A('v_mul_u32_u24 v5, s56, v3\nv_mul_u32_u24 v6, s85, v4\nv_add3_u32 v5, v5, v6, s48\nv_cmp_gt_u32 vcc, s49, v3')
    st0 = sum(EV[m][0] << (4 * m) for m in EV)
    A(f's_lshl_b32 s56, s20, 2\ns_lshr_b32 s56, {hex(st0)}, s56\ns_and_b32 s56, s56, 15\nv_cndmask_b32 v30, v29, v5, vcc\ns_mul_i32 s56, s56, s85')
    A('s_mov_b32 s26, 2621440\ns_mov_b32 s27, 0x20000\ns_mov_b32 s31, 0x20000\ns_mov_b32 s35, 0x20000\ns_mov_b32 s39, 0x20000\ns_mov_b32 s83, 0x20000\ns_mov_b32 s48, 1966080\ns_mov_b32 s38, 2457600')
    A('s_cmp_eq_u32 s20, 0\ns_cselect_b32 s30, s38, s48\ns_mov_b32 s34, s30')
    A(f'v_mov_b32 v38, {CT}\nv_lshl_add_u32 v39, v2, 2, v38\nv_mov_b32 v44, 0\ns_lshl_b32 s71, s67, 8\nds_write_b32 v39, v44\nv_add_u32 v39, s71, v39\nds_write_b32 v39, v44 offset:256')
    A(f'v_and_b32 v39, 3, v2\nv_lshlrev_b32 v39, 8, v39\nv_add_u32 v39, {CT+256}, v39\ns_lshl_b32 s71, s67, 2\ns_add_u32 s71, s71, {CT}')
    A('s_cmp_eq_u32 s20, 0')
    A('s_waitcnt lgkmcnt(0)')
    A('s_mov_b32 s24, s4\ns_mov_b32 s25, s5\ns_mov_b32 s36, s6\ns_mov_b32 s37, s7')
    A('s_cselect_b32 s28, s6, s8\ns_cselect_b32 s29, s7, s9\ns_cselect_b32 s32, s6, s10\ns_cselect_b32 s33, s7, s11')
    A('s_cmp_eq_u32 s67, 2\ns_cselect_b32 s80, s8, s10\ns_cselect_b32 s81, s9, s11')
    A('s_cmp_eq_u32 s67, 1\ns_cselect_b32 s80, s6, s80\ns_cselect_b32 s81, s7, s81\ns_cselect_b32 s82, s38, s48')
    A('s_cmp_eq_u32 s67, 0\ns_cselect_b32 s80, s4, s80\ns_cselect_b32 s81, s5, s81\ns_cselect_b32 s82, s26, s82')
    stamp(A, 1)
    def issueW():
        for L in range(5):
            sr = 28 if L < 2 else (32 if L < 4 else 36)
            dma(A, f's_add_u32 m0, s77, {L*1024}', 10 + L, sr, 70 if L < 4 else 72)
        A('s_add_u32 s70, s70, s75\ns_add_u32 s72, s72, s76')
        A(f's_add_u32 s77, s77, {WSLOT}\ns_cmp_ge_u32 s77, {WBASE + NW*WSLOT}\ns_cselect_b32 s48, {NW*WSLOT}, 0\ns_sub_u32 s77, s77, s48')
    def issueX():
        for i in range(4):
            dma(A, f's_add_u32 m0, s78, {i*1024}', 16 + i, 24, 74)
        A('s_add_u32 s74, s74, 128')
        A(f's_add_u32 s78, s78, {XSLOT}\ns_cmp_ge_u32 s78, {NX*XSLOT}\ns_cselect_b32 s48, {NX*XSLOT}, 0\ns_sub_u32 s78, s78, s48')
    def flag():
        A('s_mov_b32 m0, s71\ns_lshl_b32 s48, s65, 2\ns_mov_b64 exec, 1\nbuffer_load_dword v44, s[8:11], s48 offen offset:0 lds\ns_mov_b64 exec, -1')
    A('s_mov_b32 s97, s56')
    if START2:
        A('s_lshr_b32 s56, s85, 6\ns_lshr_b32 s57, s85, 13\ns_cmp_eq_u32 s67, 0\ns_cselect_b32 s56, 10240, s56\ns_cselect_b32 s57, 64, s57\ns_mul_i32 s56, s56, s2')
        A(f's_cmp_ge_u32 s2, {START2}\ns_cselect_b32 s48, s67, 0\ns_cmp_lg_u32 s48, 0\ns_cselect_b32 s57, 0, s57')
        A('v_lshlrev_b32 v34, 7, v2\nv_cmp_gt_u32 vcc, s57, v2\ns_nop 1\nv_cndmask_b32 v34, v29, v34, vcc')
        A('buffer_load_dword v36, v34, s[80:83], s56 offen')
        A('s_cmp_lg_u32 s67, 0\ns_cbranch_scc1 L_nor0')
        A('s_add_u32 s56, s56, 8192\ns_mov_b64 exec, 0xffff\nbuffer_load_dword v37, v34, s[80:83], s56 offen\ns_mov_b64 exec, -1\nv_mov_b32 v30, v29')
        A('s_branch L_nor0')
    A('s_cmp_eq_u32 s20, 0\ns_cbranch_scc1 L_nor0' if not R0LATE else 's_cmp_lg_u32 s20, 1\ns_cbranch_scc1 L_nor0')
    if NOPF != 2: A('s_mov_b32 exec_hi, 0\nbuffer_load_dword v36, v30, s[80:83], s56 offen\ns_mov_b32 exec_hi, -1')
    A('L_nor0:')
    A('s_barrier')
    A('s_cmp_eq_u32 s55, 0\ns_cbranch_scc1 L_nogw0')
    srd(A, 44, 14, 1280)
    A('v_lshlrev_b32 v40, 1, v2')
    for j in range(10):
        A(f'buffer_load_ushort v{50+j}, v40, s[44:47], 0 offen offset:{128*j}')
    A('L_nogw0:')
    A('v_lshrrev_b32 v3, 3, v2\nv_and_b32 v4, 7, v2')
    A('s_lshl_b32 s48, s18, 7\ns_lshl_b32 s56, s67, 5\ns_add_u32 s48, s48, s56\nv_add_u32 v7, s48, v3\nv_mul_u32_u24 v7, 1280, v7')
    A('v_lshrrev_b32 v8, 4, v2\nv_xor_b32 v8, v8, v4\nv_lshl_add_u32 v16, v8, 4, v7')
    A('v_xor_b32 v8, 4, v8\nv_lshl_add_u32 v17, v8, 4, v7\nv_add_u32 v17, 10240, v17')
    A('v_add_u32 v18, 20480, v16\nv_add_u32 v19, 20480, v17')
    A('s_lshl_b32 s56, s67, 3\nv_add_u32 v5, s56, v3')
    A('s_and_b32 s56, s67, 1\ns_lshl_b32 s56, s56, 2\nv_and_b32 v6, 2, v3\nv_xor_b32 v6, v6, v4\nv_xor_b32 v6, s56, v6')
    A('v_mul_u32_u24 v7, s68, v5\nv_lshl_add_u32 v8, v6, 4, v7\nv_add_u32 v10, s60, v8\nv_add_u32 v11, 128, v10')
    A('v_xor_b32 v9, s62, v6\nv_lshl_add_u32 v8, v9, 4, v7\nv_add_u32 v12, s61, v8\nv_add_u32 v13, 128, v12')
    A('v_lshrrev_b32 v8, 2, v6\nv_and_b32 v9, s62, v8\nv_and_b32 v6, 3, v6\nv_xor_b32 v6, v6, v9\nv_mul_u32_u24 v7, 3840, v5')
    A('v_lshl_add_u32 v7, v6, 4, v7\nv_mul_u32_u24 v8, s64, v8\nv_add3_u32 v14, v7, v8, s63')
    A(f's_mov_b32 s76, {32*3840}\ns_mov_b32 s70, 0\ns_mov_b32 s72, 0\ns_mov_b32 s74, 0')
    A(f's_mul_i32 s77, s67, 5120\ns_add_u32 s77, s77, {WBASE}\ns_lshl_b32 s78, s67, 12')
    issueX(); issueW()
    if L2PF:
        A('s_cmp_eq_u32 s67, 2\ns_cselect_b32 s48, s60, s61\ns_cselect_b32 s4, s28, s32\ns_cselect_b32 s5, s29, s33\ns_mov_b32 s6, s30\ns_mov_b32 s49, s68\ns_movk_i32 s56, 128')
        A('s_cmp_eq_u32 s67, 1\ns_cselect_b32 s48, s63, s48\ns_cselect_b32 s4, s36, s4\ns_cselect_b32 s5, s37, s5\ns_cselect_b32 s6, s38, s6\ns_cselect_b32 s49, 3840, s49\ns_cselect_b32 s56, s64, s56')
        A('s_lshl_b32 s94, s49, 6\ns_lshl_b32 s57, s23, 3\nv_add_u32 v33, s57, v4\nv_bfe_u32 v34, v2, 4, 1\nv_lshl_add_u32 v33, v34, 6, v33\nv_mul_u32_u24 v33, s49, v33')
        A('v_bfe_u32 v34, v2, 3, 1\nv_mul_u32_u24 v34, s56, v34\nv_add3_u32 v33, v33, v34, s48\nv_cmp_gt_u32 vcc, 32, v2\ns_mov_b32 s7, 0x20000\ns_nop 0\nv_cndmask_b32 v33, v29, v33, vcc')
        A('s_cmp_lg_u32 s67, 0\ns_cbranch_scc1 L_l2x')
        A('s_mov_b32 s4, s24\ns_mov_b32 s5, s25\ns_mov_b32 s6, s26\ns_movk_i32 s94, 128\ns_lshl_b32 s48, s18, 7\ns_lshl_b32 s49, s20, 5\ns_add_u32 s48, s48, s49')
        A('v_and_b32 v33, 31, v2\nv_add_u32 v33, s48, v33\nv_mul_u32_u24 v33, 1280, v33\nv_lshrrev_b32 v34, 5, v2\nv_lshl_add_u32 v33, v34, 7, v33')
        A('L_l2x:')
        A(f's_mul_i32 s95, s94, {L2PF}\ns_lshl_b32 s94, s94, 1')
    A('s_load_dwordx2 s[86:87], s[0:1], 72')
    A('s_cmp_eq_u32 s55, 0\ns_cbranch_scc1 L_nogw')
    A('v_and_b32 v41, 3, v2\nv_lshlrev_b32 v41, 3, v41')
    A('v_bfe_u32 v40, v2, 2, 1\nv_lshl_add_u32 v41, v40, 9, v41')
    A('v_bfe_u32 v40, v2, 3, 2\nv_lshl_add_u32 v41, v40, 5, v41')
    A(f'v_bfe_u32 v40, v2, 5, 1\nv_mul_u32_u24 v40, {GWS}, v40\nv_add_u32 v41, v40, v41')
    A(f'v_add_u32 v41, {GWBASE}, v41')
    A('s_waitcnt vmcnt(9)')
    for j in range(10):
        A(f'v_lshl_or_b32 v{80+2*j}, v{50+j}, 16, v{50+j}\nv_mov_b32 v{81+2*j}, v{80+2*j}')
        A(f'ds_write_b64 v41, v[{80+2*j}:{81+2*j}] offset:{2*GWS*j}')
    A('L_nogw:')
    srd(A, 40, 16, WS_USED)
    srd(A, 44, 12, 1966080)
    A('s_waitcnt lgkmcnt(0)')
    A('s_lshl_b32 s48, s2, 2\ns_add_u32 s48, s48, s67\ns_cmp_lg_u32 s48, 0\ns_cbranch_scc1 L_noep')
    A('s_memrealtime s[88:89]\ns_waitcnt lgkmcnt(0)\ns_or_b32 s88, s88, 1\nv_mov_b32 v42, s88\nv_mov_b32 v43, s89')
    A('s_mov_b64 exec, 1\nglobal_store_dwordx2 v44, v[42:43], s[86:87] sc1\ns_mov_b64 exec, -1')
    A('L_noep:')
    A('v_lshlrev_b32 v5, 4, v2\nv_lshlrev_b32 v6, 3, v2\nv_add_u32 v7, 4096, v5')
    assert RPORD.index(10) >= 8
    tab = sum(RPORD.index(t) << (4 * t) for t in range(12))
    A(f's_mov_b32 s56, {hex(tab & 0xffffffff)}\ns_mov_b32 s57, {hex(tab >> 32)}\ns_lshl_b32 s48, s22, 2\ns_lshr_b64 s[56:57], s[56:57], s48\ns_and_b32 s48, s56, 15\ns_lshl_b32 s48, s48, 4\ns_add_u32 s48, s48, s18')
    A('s_sub_u32 s60, s48, 120\ns_lshl_b32 s60, s60, 2\ns_add_u32 s60, s60, s67\ns_lshl_b32 s92, s48, 1\ns_add_u32 s92, s92, s67')
    A('s_cmp_lt_u32 s67, 2\ns_cselect_b32 s92, s92, 999\ns_cmp_lt_u32 s92, 240\ns_cselect_b32 s64, 1, 0\ns_cmp_lt_u32 s60, 256\ns_cselect_b32 s64, 2, s64')
    A('s_mul_i32 s62, s92, 52429\ns_lshr_b32 s62, s62, 18\ns_mul_i32 s63, s62, 5\ns_sub_u32 s63, s92, s63')
    A(f's_mul_i32 s79, s62, {32*1280}\ns_lshl_b32 s56, s63, 8\ns_add_u32 s79, s79, s56\ns_lshl_b32 s63, s63, 3\ns_mul_i32 s62, s62, 5')
    A(f's_lshl_b32 s92, s92, 3\ns_add_u32 s92, s92, {FW_OFF}\ns_lshl_b32 s93, s67, 12\ns_add_u32 s93, s93, {RPK}')
    A(f's_lshl_b32 s48, s60, 3\ns_add_u32 s48, s48, {FP_OFF}\ns_cmp_eq_u32 s64, 2\ns_cselect_b32 s92, s48, s92')
    A('v_and_b32 v8, 2, v3\nv_xor_b32 v8, v8, v4\nv_mul_u32_u24 v9, 1280, v3\nv_lshl_add_u32 v20, v8, 4, v9')
    A('v_xor_b32 v8, 4, v8\nv_lshl_add_u32 v21, v8, 4, v9\nv_add_u32 v21, 10240, v21\nv_add_u32 v22, 20480, v20\nv_add_u32 v23, 20480, v21')
    A('v_lshrrev_b32 v8, 2, v2\nv_and_b32 v9, 3, v2\nv_lshlrev_b32 v8, 7, v8\nv_lshl_add_u32 v8, v9, 3, v8\nv_add_u32 v8, s93, v8')
    A('v_bfe_u32 v9, v2, 3, 1\nv_lshrrev_b32 v28, 5, v2\nv_lshl_add_u32 v9, v28, 1, v9')
    for tl in range(4):
        A(f'v_xor_b32 v28, {tl}, v9\nv_lshl_add_u32 v{24+tl}, v28, 5, v8')
    A('v_mul_u32_u24 v31, 1280, v2')
    if 'NODUTY' in EXP: A('s_mov_b32 s64, 0')
    pk = {m: sum(((t | (b0 << 4)) << (8 * k)) for k, (t, b0) in enumerate(EV[m][1])) | (0xFF << (8 * len(EV[m][1]))) for m in EV}
    A(f's_mov_b32 s84, -1\ns_cmp_eq_u32 s20, 1\ns_cselect_b32 s84, {hex(pk[1])}, s84\ns_cmp_eq_u32 s20, 2\ns_cselect_b32 s84, {hex(pk[2])}, s84\ns_cmp_eq_u32 s20, 3\ns_cselect_b32 s84, {hex(pk[3])}, s84\ns_and_b32 s58, s84, 15')
    AC = 24; WR = 104; HBUF = 224
    def a2(rt, t): return AC + 20 * rt + 4 * t
    regset = {0: 0, 1: 1, 2: 2, 9: 3, 10: 4, 11: 5}
    lds_unit = {3: WBASE, 4: WBASE + WSLOT, 5: WBASE + 2*WSLOT, 6: WBASE + 3*WSLOT, 7: 20480, 8: WBASE + 4*WSLOT}
    def kidx(i, dst):
        A(f's_add_u32 s{dst}, s23, {i}\ns_cmp_ge_u32 s{dst}, 12\ns_cselect_b32 s48, 12, 0\ns_sub_u32 s{dst}, s{dst}, s48')
    def w2reg(i):
        kidx(i, 56)
        A('s_mul_i32 s56, s56, 5120\ns_add_u32 s56, s56, s50')
        for t in range(5):
            b = WR + 20 * regset[i] + 4 * t
            if t == 0: A(f's_waitcnt vmcnt({STG_THR})')
            A(f'buffer_load_dwordx4 {vr(b)}, v{5 if t < 4 else 7}, s[40:43], s56 offen offset:{1024*(t&3)} sc1')
    def w2lds(i):
        kidx(i, 56)
        A('s_mul_i32 s56, s56, 5120\ns_add_u32 s56, s56, s50')
        A(f's_add_u32 m0, s52, {lds_unit[i]}\ns_waitcnt vmcnt({STG_THR})')
        for t in range(4):
            A(f'buffer_load_dwordx4 v5, s[40:43], s56 offen offset:{1024*t} sc1 lds')
        A(f's_add_u32 m0, s52, {lds_unit[i] + 4096}\ns_nop 0')
        A('buffer_load_dwordx4 v7, s[40:43], s56 offen sc1 lds')
    def trace():
        if STAMP and 'quiet' not in EXP:
            A('s_memtime s[98:99]\ns_add_u32 s48, s65, 38\ns_mov_b32 m0, s48\ns_waitcnt lgkmcnt(0)\nv_writelane_b32 v1, s98, m0')
    def ensure_free():
        if 'nofree' in EXP: return
        l = A.label('L_free')
        A(f's_sub_u32 s57, s65, 4\ns_cmp_ge_i32 s66, s57\ns_cbranch_scc1 {l}')
        tbeg(A)
        lds_wait(A, 39, 0, 48, 's57', four='free', sdst=66, sleep=LSLEEP)
        tend(A, 100)
        A(f'{l}:')
    stamp(A, 2)
    table_srd(A, 8)
    A('s_mov_b32 s65, 1\ns_mov_b32 s66, 0')
    flag()
    if R0LATE:
        A('s_cmp_lt_u32 s20, 2\ns_cbranch_scc1 L_nor1')
        A('s_mov_b32 exec_hi, 0\nbuffer_load_dword v36, v30, s[80:83], s97 offen\ns_mov_b32 exec_hi, -1')
        A('L_nor1:')
    A('s_branch L_ld_odd')
    A('.p2align 3')
    A('L_ld_loop:')
    ensure_free()
    if L2PF:
        A(f's_bitcmp1_b32 s65, 1\ns_cbranch_scc0 L_nol2\ns_cmp_gt_u32 s65, {2 + 4 * ((9 - L2PF) // 2)}\ns_cbranch_scc1 L_nol2')
        A('buffer_load_dword v35, v33, s[4:7], s95 offen\ns_add_u32 s95, s95, s94')
        A('L_nol2:')
    issueX(); issueW()
    trace()
    A('s_add_u32 s65, s65, 1')
    flag()
    A('L_ld_odd:')
    ensure_free()
    issueW()
    trace()
    A('s_lshr_b32 s49, s65, 1\ns_add_u32 s65, s65, 1')
    flag()
    A('s_cmp_eq_u32 s49, s58\ns_cbranch_scc1 L_ev_round')
    A('L_ev_r1:')
    A('s_cmp_lt_u32 s65, 20\ns_cbranch_scc1 L_ld_loop')
    A('s_branch L_ld_done')
    A('L_ev_round:')
    A('s_bfe_u32 s59, s84, 0x40004\ns_lshr_b32 s84, s84, 8\ns_and_b32 s58, s84, 15')
    A('s_cmp_gt_u32 s59, 9\ns_cbranch_scc1 L_ev_flag')
    if NOPF:
        A('s_cmp_eq_u32 s64, 0\ns_cbranch_scc1 L_ev_r1')
    else:
        lds_wait(A, 38, 0, 48, 's65')
    if NOPF:
        pass
    else:
        A('s_mul_i32 s56, s85, s59\nbuffer_load_dword v36, v30, s[80:83], s56 offen')
    if THIRD and not NOPF:
        A(f's_cmp_lg_u32 s59, {THIRD}\ns_cbranch_scc1 L_ev_no3')
        A('s_mul_i32 s56, s85, 9\ns_mov_b32 exec_hi, 0\nbuffer_load_dword v37, v30, s[80:83], s56 offen\ns_mov_b32 exec_hi, -1')
        A('L_ev_no3:')
    A('s_cmp_eq_u32 s64, 0\ns_cbranch_scc1 L_ev_rw')
    A('global_load_dwordx2 v[42:43], v44, s[86:87] sc1')
    A('s_cmp_eq_u32 s64, 2\ns_cbranch_scc1 L_ev_poison')
    A('s_mov_b32 exec_hi, 0\nbuffer_load_dword v37, v31, s[44:47], s79 offen offset:128\ns_mov_b32 exec_hi, -1')
    for e in range(2):
        for g in range(4):
            dma(A, f's_add_u32 m0, s93, {g*1024}', 20 + g, 44, 79)
        A('s_add_u32 s79, s79, 128')
        A('s_waitcnt vmcnt(0)')
        for tl in range(4):
            A(f'ds_read_b64_tr_b16 {vr(64+16*e+4*tl,2)}, v{24+tl}\nds_read_b64_tr_b16 {vr(66+16*e+4*tl,2)}, v{24+tl} offset:2048')
        A('s_waitcnt lgkmcnt(0)')
    if not DEFER:
        for tl in range(8):
            A(f's_add_u32 s56, s63, {tl}\ns_mul_i32 s57, s56, 52429\ns_lshr_b32 s57, s57, 18\ns_mul_i32 s57, s57, 235\ns_add_u32 s57, s57, s56\ns_add_u32 s57, s57, s62\ns_lshl_b32 s57, s57, 10\ns_add_u32 s57, s57, {W2_OFF}')
            A(f'buffer_store_dwordx4 {vr(64+4*tl)}, v5, s[40:43], s57 offen sc1')
    A('s_branch L_ev_r1')
    A('L_ev_poison:')
    A('v_mov_b32 v64, -1\nv_mov_b32 v65, -1\nv_mov_b32 v66, -1\nv_mov_b32 v67, -1')
    A(f's_mul_i32 s56, s60, 3200\ns_add_u32 s56, s56, {M_OFF}\ns_lshl_b32 s57, s60, 7\ns_add_u32 s57, s57, {ZB_OFF}\ns_cmp_lt_u32 s60, 128\ns_cselect_b32 s57, s57, {OOB}')
    for k in range(3):
        A(f'buffer_store_dwordx4 v[64:67], v5, s[40:43], s56 offen offset:{1024*k} sc1')
    A('s_mov_b64 exec, 0xff\nbuffer_store_dwordx4 v[64:67], v5, s[40:43], s56 offen offset:3072 sc1')
    A('buffer_store_dwordx4 v[64:67], v5, s[40:43], s57 offen sc1\ns_mov_b64 exec, -1')
    A('L_ev_rw:')
    A('s_waitcnt vmcnt(0)')
    A('s_branch L_ev_r1')
    A('L_ev_flag:')
    A('s_cmp_eq_u32 s64, 0\ns_cbranch_scc1 L_ev_r1')
    if DEFER:
        A('s_cmp_eq_u32 s59, 15\ns_cbranch_scc1 L_ev_fl2\ns_cmp_lg_u32 s64, 1\ns_cbranch_scc1 L_ev_r1')
        for tl in range(8):
            A(f's_add_u32 s56, s63, {tl}\ns_mul_i32 s57, s56, 52429\ns_lshr_b32 s57, s57, 18\ns_mul_i32 s57, s57, 235\ns_add_u32 s57, s57, s56\ns_add_u32 s57, s57, s62\ns_lshl_b32 s57, s57, 10\ns_add_u32 s57, s57, {W2_OFF}')
            A(f'buffer_store_dwordx4 {vr(64+4*tl)}, v5, s[40:43], s57 offen sc1')
        A('s_branch L_ev_r1')
        A('L_ev_fl2:')
    l0 = A.label('L_ep'); l1 = A.label('L_epok')
    A('s_mov_b32 s90, 0\ns_waitcnt vmcnt(15)')
    A(f'{l0}:')
    A('v_readfirstlane_b32 s88, v42')
    A(f's_cmp_lg_u32 s88, 0\ns_cbranch_scc1 {l1}')
    A('s_sleep 4\nglobal_load_dwordx2 v[42:43], v44, s[86:87] sc1\ns_waitcnt vmcnt(0)')
    A(f's_add_u32 s90, s90, 1\ns_cmp_lt_u32 s90, {SPIN_MAX}\ns_cbranch_scc1 {l0}')
    A(f'{l1}:')
    A('s_mov_b64 exec, 1\nbuffer_store_dwordx2 v[42:43], v44, s[40:43], s92 offen sc1\ns_mov_b64 exec, -1')
    A('s_branch L_ev_r1')
    A('L_ld_done:')
    trace()
    if 'p1' in EXP: finish(A)
    A('s_cmp_lg_u32 s20, 0\ns_cbranch_scc1 L_nowo')
    if PAX:
        A('s_and_b32 s69, s2, 7\ns_lshl_b32 s69, s69, 3\ns_bfe_u32 s48, s2, 0x30003\ns_add_u32 s69, s69, s48')
    A('s_load_dwordx2 s[24:25], s[0:1], 16\ns_mov_b32 s26, 819200\ns_mov_b32 s27, 0x20000')
    A('s_lshr_b32 s48, s69, 2\ns_lshl_b32 s48, s48, 1\ns_and_b32 s49, s67, 1\ns_add_u32 s48, s48, s49\ns_mul_i32 s48, s48, 25600')
    A('s_and_b32 s49, s69, 3\ns_lshl_b32 s49, s49, 1\ns_lshr_b32 s56, s67, 1\ns_add_u32 s49, s49, s56\ns_mul_i32 s49, s49, 160\ns_add_u32 s48, s48, s49')
    A('v_lshrrev_b32 v8, 1, v2\nv_mul_u32_u24 v8, 1280, v8\nv_and_b32 v9, 1, v2\nv_mul_u32_u24 v9, 156, v9\nv_add_u32 v8, v8, v9')
    A('s_mov_b32 s73, s48\ns_waitcnt lgkmcnt(0)\nbuffer_load_dword v36, v8, s[24:27], s48 offen')
    A('L_nowo:')
    def bsetup():
        p2_ids(A)
        A('s_mul_i32 s23, s19, 3\ns_lshr_b32 s23, s23, 1\ns_and_b32 s48, s18, 3\ns_mul_i32 s48, s48, 3\ns_add_u32 s23, s23, s48\ns_cmp_ge_u32 s23, 12\ns_cselect_b32 s48, 12, 0\ns_sub_u32 s23, s23, s48')
        A(f's_mul_i32 s48, s67, 12\ns_mul_i32 s50, s19, 48\ns_add_u32 s50, s50, s48\ns_mul_i32 s50, s50, 5120\ns_add_u32 s50, s50, {W2_OFF}')
        A('s_mul_i32 s51, s18, 68\ns_add_u32 s51, s51, s48\ns_lshl_b32 s51, s51, 12')
        A('s_mul_i32 s52, s67, 5120')
    A(f'v_mov_b32 v0, {CT}')
    bsetup()
    A(f's_mul_i32 s53, s67, 480\ns_mul_i32 s48, s19, 5\ns_lshr_b32 s48, s48, 2\ns_add_u32 s53, s53, {FW_OFF}')
    A('v_lshrrev_b32 v8, 1, v2\nv_mul_u32_u24 v8, 40, v8\nv_and_b32 v9, 1, v2\nv_add_u32 v9, s48, v9\nv_lshrrev_b32 v9, 1, v9\nv_lshl_add_u32 v28, v9, 3, v8')
    A(f's_lshr_b32 s48, s18, 1\ns_lshl_b32 s54, s48, {FSH}\ns_add_u32 s54, s54, {FG_OFF}')
    A(f's_mov_b32 s55, {FP_OFF}\ns_mov_b32 s90, 0\nv_cmp_gt_u32 s[58:59], 24, v2')
    A('L_b_chk:')
    A('global_load_dwordx2 v[42:43], v44, s[86:87] sc1')
    A('s_mov_b64 exec, s[58:59]\nbuffer_load_dwordx2 v[46:47], v28, s[40:43], s53 offen sc1\ns_mov_b64 exec, -1')
    A('s_cmp_lg_u32 s67, 1\ns_cbranch_scc1 L_b_chk1')
    A('buffer_load_dwordx4 v[48:51], v5, s[40:43], s55 offen sc1\nbuffer_load_dwordx4 v[52:55], v5, s[40:43], s55 offen offset:1024 sc1')
    A('L_b_chk1:')
    A('s_waitcnt vmcnt(0)')
    A('v_readfirstlane_b32 s88, v42\nv_readfirstlane_b32 s89, v43\ns_nop 1')
    A('v_cmp_ne_u64 s[60:61], s[88:89], v[46:47]\ns_and_b64 s[60:61], s[60:61], s[58:59]')
    A('s_cmp_lg_u32 s67, 1\ns_cbranch_scc1 L_b_chk2')
    A('v_cmp_ne_u64 s[62:63], s[88:89], v[48:49]\ns_or_b64 s[60:61], s[60:61], s[62:63]\nv_cmp_ne_u64 s[62:63], s[88:89], v[50:51]\ns_or_b64 s[60:61], s[60:61], s[62:63]')
    A('v_cmp_ne_u64 s[62:63], s[88:89], v[52:53]\ns_or_b64 s[60:61], s[60:61], s[62:63]\nv_cmp_ne_u64 s[62:63], s[88:89], v[54:55]\ns_or_b64 s[60:61], s[60:61], s[62:63]')
    A('L_b_chk2:')
    A('s_cmp_eq_u32 s88, 0\ns_cselect_b32 s60, 1, s60\ns_cmp_eq_u64 s[60:61], 0\ns_cbranch_scc1 L_b_chkok')
    if 'NODUTY' in EXP: A('s_branch L_b_chkok')
    A(f's_sleep 24\ns_add_u32 s90, s90, 1\ns_cmp_lt_u32 s90, {SPIN_MAX}\ns_cbranch_scc1 L_b_chk')
    A('L_b_chkok:')
    A('s_cmp_lg_u32 s67, 1\ns_cbranch_scc1 L_b_nofp')
    A('v_mov_b32 v46, 1\ns_mov_b64 exec, 1\nds_write_b64 v0, v[42:43] offset:32\nds_write_b32 v0, v46 offset:72\ns_mov_b64 exec, -1')
    A('L_b_nofp:')
    stamp(A, 37)
    rest = []
    A('s_cmp_eq_u32 s20, 0\ns_cbranch_scc1 L_b_kv')
    for i in (0, 1, 2, 9, 10, 11):
        w2reg(i)
    stamp(A, 22)
    lds_wait(A, 39, 0, 48, 20, four='free', sleep=LSLEEP)
    for k, i in enumerate((3, 4, 5, 6, 7, 8)):
        if k == GEARLY:
            lds_wait(A, 38, 48, 48, 1, sleep=4)
            stamp(A, 9)
        w2lds(i); stamp(A, 16 + k)
    A('s_branch L_b_common')
    A('L_b_kv:')
    order = [3, 4, 5, 7, 6, 8, 0, 1, 2, 9, 10, 11]
    need = {3: 16, 4: 17, 5: 18}
    def stage(i):
        (w2reg if i in regset else w2lds)(i)
    for i in order[:WOAT]:
        lds_wait(A, 39, 0, 48, need[i], four='free', sleep=LSLEEP)
        w2lds(i)
    lds_wait(A, 39, 0, 48, 20, four='free', sleep=LSLEEP)
    for i in range(5):
        A(f'v_add_u32 v12, {64*i}, v2\nv_mul_u32_u24 v13, 6554, v12\nv_lshrrev_b32 v13, 16, v13\nv_mul_u32_u24 v14, 10, v13\nv_sub_u32 v14, v12, v14')
        A(f'v_mul_u32_u24 v13, 1280, v13\nv_lshl_add_u32 v13, v14, 4, v13\ns_add_u32 m0, s52, {1024*i}\ns_nop 0')
        A('buffer_load_dwordx4 v13, s[24:27], s73 offen lds')
    A(f's_lshl_b32 s48, s67, 2\ns_add_u32 m0, s48, {CT + 112}\ns_mov_b64 exec, 1\nbuffer_load_dword v44, s[8:11], 4 offen lds\ns_mov_b64 exec, -1')
    stamp(A, 9)
    for i in order[WOAT:KVN]:
        stage(i)
    stamp(A, 8)
    if KVN < 12:
        lds_wait(A, 0, 192, 48, 1, sleep=4)
        for i in order[KVN:]:
            stage(i)
    stamp(A, 10)
    lds_wait(A, 0, 80, 48, KVG, sleep=4)
    A('s_cmp_lg_u32 s67, 3\ns_cbranch_scc1 L_b_common')
    gpoll(A, 54, 46)
    A('L_b_common:')
    hbufs = [HBUF, HBUF + 16, WR + 40]
    def hb(i, rt):
        k = i if i < 2 else (0 if i == 2 else (i - 3 + 1) % 3 if False else None)
        return None
    hmap = {0: 0, 1: 1, 2: 0, 3: 1}
    for i in range(4, 12):
        hmap[i] = [0, 2, 1][(i - 4) % 3]
    def hb(i, rt): return hbufs[hmap[i]] + 4 * rt
    A('v_add_u32 v8, s52, v5')
    A(f'v_add_u32 v9, {WBASE + 2*WSLOT}, v8')
    def rdW(i, rs):
        u = lds_unit[i]
        va, off = (8, u) if u < WBASE + WSLOT - 5120 else ((9, u - (WBASE + 2*WSLOT)) if u >= WBASE + 2*WSLOT else (12, 0))
        for t in range(5):
            A(f'ds_read_b128 {vr(WR+20*rs+4*t)}, v{va} offset:{off + 1024*t}')
    A(f'v_add_u32 v12, {WBASE + WSLOT}, v8')
    A('s_load_dwordx2 s[28:29], s[0:1], 64\ns_mov_b32 s30, 2621440\ns_mov_b32 s31, 0x20000')
    A(f's_lshl_b32 s48, s67, 2\nv_add_u32 v13, s48, v0\nv_mov_b32 v14, 1\ns_mul_i32 s48, s67, {WSLOT}\ns_add_u32 s48, s48, {WBASE}\nv_add_u32 v15, s48, v5')
    A(f's_mul_i32 s48, s67, 15360\ns_cmp_eq_u32 s67, 3\ns_cselect_b32 s48, {XCH[3]}, s48\nv_add_u32 v16, s48, v5')
    A(f's_lshl_b32 s48, s67, 11\ns_add_u32 s48, s48, {XCH[3] + 15360}\nv_add_u32 v17, s48, v5\ns_lshl_b32 s48, s67, 8\nv_lshlrev_b32 v19, 2, v2\nv_add_u32 v19, s48, v19')
    A('s_lshl_b32 s48, s18, 6\ns_lshl_b32 s49, s67, 4\ns_add_u32 s48, s48, s49\nv_and_b32 v20, 15, v2\nv_add_u32 v20, s48, v20\nv_mul_u32_u24 v20, 1280, v20\nv_lshrrev_b32 v21, 4, v2\nv_lshl_add_u32 v20, v21, 3, v20\ns_mul_i32 s55, s19, 160')
    A('s_mul_i32 s48, s67, 5\ns_mul_i32 s57, s18, 68\ns_add_u32 s57, s57, s48\ns_add_u32 s57, s57, 48\ns_lshl_b32 s57, s57, 12')
    A(f's_lshl_b32 s58, s18, 8\ns_add_u32 s58, s58, {G_OFF}\nv_and_b32 v3, 15, v2\nv_lshlrev_b32 v11, 2, v3')
    A(f's_mul_i32 s48, s67, 320\ns_add_u32 s48, s48, {CT + 1536}\nv_mul_u32_u24 v4, 80, v21\nv_add_u32 v4, s48, v4')
    A('v_lshrrev_b32 v10, 2, v3\nv_cmp_eq_u32 s[64:65], v10, v21\nv_and_b32 v10, 1, v3\nv_cmp_eq_u32 s[62:63], 0, v10')
    A(f's_and_b64 s[60:61], s[64:65], s[62:63]\ns_andn2_b64 s[62:63], s[64:65], s[62:63]\ns_mov_b32 s64, {EPS}\ns_mov_b32 s65, 0xffff0000')
    A(f's_setprio {BPRIO}')
    stamp(A, 3)
    if GPOLL == 'B':
        A('s_cmp_lg_u32 s67, 3\ns_cbranch_scc1 L_b_nopoll')
        poll(A, 54, 48, 10, 6)
        A('v_mov_b32 v10, 1\ns_mov_b64 exec, 1\nds_write_b32 v0, v10 offset:64\ns_mov_b64 exec, -1')
        A('L_b_nopoll:')
    A('s_lshl_b32 s59, 1, s67' if FINEG else 's_mov_b32 s59, 15')
    lds_wait_mask(A, 0, 64, 10, 's59')
    A('s_waitcnt vmcnt(0)')
    stamp(A, 4)
    Q = []
    def wait(tag):
        last = max(k for k, t in enumerate(Q) if t == tag)
        A(f's_waitcnt vmcnt({min(63, len(Q) - 1 - last)})')
    def issueH(i):
        kidx(i, 56)
        A('s_lshl_b32 s56, s56, 12\ns_add_u32 s56, s56, s51')
        for rt in range(4):
            A(f'buffer_load_dwordx4 {vr(hb(i,rt))}, v5, s[40:43], s56 offen offset:{1024*rt} {LL}')
            Q.append(('H', i))
    assert not rest[KPRE:]
    issueH(0); issueH(1)
    nH = 2
    dump = [(8, WBASE), (12, 0), (9, 0), (9, WSLOT)]
    def haddr(i, dst):
        return [f's_add_u32 s{dst}, s23, {i}', f's_cmp_ge_u32 s{dst}, 12', 's_cselect_b32 s48, 12, 0', f's_sub_u32 s{dst}, s{dst}, s48',
                f's_lshl_b32 s{dst}, s{dst}, 12', f's_add_u32 s{dst}, s{dst}, s51']
    def rdW_l(i, rs):
        u = lds_unit[i]
        va, off = (8, u) if u < WBASE + WSLOT - 5120 else ((9, u - (WBASE + 2*WSLOT)) if u >= WBASE + 2*WSLOT else (12, 0))
        return [f'ds_read_b128 {vr(WR+20*rs+4*t)}, v{va} offset:{off + 1024*t}' for t in range(5)]
    pendW = []
    for i in range(12):
        rs = regset[i] if i in regset else (i - 3) % 2
        gaps = {k: [] for k in range(20)}
        for k, l in zip((1, 3, 6, 8, 11), pendW): gaps[k].append(l)
        reuse = nH if nH < 12 and hmap[nH] == hmap[i] else None
        extra = None
        if reuse is not None:
            for k, l in enumerate(haddr(reuse, 56)): gaps[k // 2].append(l)
            nH += 1
        if nH < 12 and hmap[nH] == 2 and i == 3:
            pass
        first = Q.index(('H', i))
        for rt in range(4):
            A(f's_waitcnt vmcnt({len(Q) - 1 - (first + rt)})')
            if rt == 0:
                if i == 0: stamp(A, 5)
                if BST: stamp(A, 25 + i)
                if i not in regset:
                    A('s_waitcnt lgkmcnt(0)')
                if i == PQ_AT:
                    A('s_mov_b64 exec, 1\nds_write_b32 v13, v14 offset:144\ns_mov_b64 exec, -1')
                if i == 8:
                    A('s_mov_b64 exec, 1\nds_write_b32 v13, v14 offset:96\ns_mov_b64 exec, -1')
            for t in range(5):
                d = vr(a2(rt, t))
                A(f'v_mfma_f32_16x16x32_bf16 {d}, {vr(WR+20*rs+4*t)}, {vr(hb(i,rt))}, {d if i else 0}')
                for l in gaps[5 * rt + t]: A(l)
                if i == 11 and rt >= 2:
                    A(f'ds_write_b128 v{dump[rt-2][0]}, {vr(a2(rt-2,t))} offset:{dump[rt-2][1] + t*1024}')
            if reuse is not None:
                A(f'buffer_load_dwordx4 {vr(hb(reuse,rt))}, v5, s[40:43], s56 offen offset:{1024*rt} {LL}')
                Q.append(('H', reuse))
        if NRC == 2 and i in (9, 10):
            j = i - 7
            A(f's_add_u32 s48, s67, {j+1}\ns_and_b32 s48, s48, 3\ns_lshl_b32 s49, s48, 10\ns_add_u32 s56, s57, s49\ns_lshl_b32 s49, s48, 6\ns_add_u32 s49, s49, s58')
            for kk in range(5):
                A(f'buffer_load_dwordx4 {vr(WR + 8*kk + 4*(j-2))}, v5, s[40:43], s56 offen {LL}')
                if kk < 4: A('s_add_u32 s56, s56, 4096')
                Q.append(('P', j))
            A(f'buffer_load_dword v{20+j}, v11, s[40:43], s49 offen {LL}')
            Q.append(('P', j))
        while nH < 12 and all(hmap[j] != hmap[nH] for j in range(i + 1, nH)) and not (hmap[nH] == 2 and i < 2):
            issueH(nH); nH += 1
        tgt = {0: 3, 2: 4}.get(i, i + 2 if 5 <= i + 2 <= 8 else None)
        pendW = rdW_l(tgt, (tgt - 3) % 2) if tgt is not None else []
    stamp(A, 6)
    if NRC == 2:
        ZR = HBUF; DN = AC; SC = HBUF + 20; T0 = HBUF + 24
        lds_wait(A, 0, 68, 10, 1, four=False, sleep=1)
        for kk in range(5):
            A(f'ds_read_b128 {vr(ZR+4*kk)}, v4 offset:{16*kk}')
        A('s_waitcnt lgkmcnt(0)')
        for kk in range(5):
            for j in range(4):
                m = 's[62:63]' if (4 * kk + j) >= 10 else 's[60:61]'
                A(f'v_cndmask_b32 v{ZR+4*kk+j}, 0, v{ZR+4*kk+j}, {m}')
        A('s_waitcnt vmcnt(0)\ns_nop 0')
        for kk in range(5):
            for r in range(2):
                d = vr(DN + 4 * r)
                A(f'v_mfma_f32_16x16x32_bf16 {d}, {vr(ZR+4*kk)}, {vr(WR+8*kk+4*r)}, {d if kk else 0}')
        A('s_nop 7')
        for r in range(2):
            A(f'v_add_f32 v{DN+4*r}, s64, v{DN+4*r}\nv_add_f32 v{DN+4*r+1}, s64, v{DN+4*r+1}')
        for r in range(2):
            A(f'v_rcp_f32 v{DN+4*r}, v{DN+4*r}\nv_rcp_f32 v{DN+4*r+1}, v{DN+4*r+1}')
        A('s_nop 0')
        for r in range(2):
            A(f'v_mul_f32 v{SC+2*r}, v{22+r}, v{DN+4*r}\nv_mul_f32 v{SC+2*r+1}, v{22+r}, v{DN+4*r+1}')
        for kk in range(5):
            for r in range(2):
                b = WR + 8 * kk + 4 * r
                for j in range(4):
                    A(f'v_lshlrev_b32 v{T0+2*j}, 16, v{b+j}\nv_and_b32 v{T0+2*j+1}, s65, v{b+j}')
                for j in range(4):
                    odd = 1 if (4 * kk + j) >= 10 else 0
                    A(f'v_mul_f32 v{T0+2*j}, v{SC+2*r+odd}, v{T0+2*j}\nv_mul_f32 v{T0+2*j+1}, v{SC+2*r+odd}, v{T0+2*j+1}')
                for j in range(4):
                    A(f'v_cvt_pk_bf16_f32 v{b+j}, v{T0+2*j}, v{T0+2*j+1}')
                A(f'ds_write_b128 v9, {vr(b)} offset:{r*WSLOT + 1024*kk}')
            A(f'v_mov_b32 v10, {kk+1}\ns_mov_b64 exec, 1\nds_write_b32 v13, v10 offset:160\ns_mov_b64 exec, -1')
        lds_wait(A, 13, 176, 10, 1, four=False, sleep=1)
    for rt in (2, 3):
        for t in range(5):
            A(f'ds_write_b128 v{dump[rt][0]}, {vr(a2(rt,t))} offset:{dump[rt][1] + t*1024}')
    A('s_waitcnt lgkmcnt(0)')
    stamp(A, 7)
    A('s_barrier')
    R = WR
    for r in range(4):
        for t in (3, 4):
            A(f'ds_read_b128 {vr(R+8*r+4*(t-3))}, v15 offset:{r*5120 + 1024*t}')
    A(f'ds_read_b32 v18, v19 offset:{46080}')
    A('s_waitcnt lgkmcnt(5)')
    for r in range(3):
        for t in (3, 4):
            A(f'ds_read_b128 {vr(R+32+8*r+4*(t-3))}, v16 offset:{r*5120 + 1024*t}')
    for t in (3, 4):
        A(f'ds_read_b128 {vr(R+56+4*(t-3))}, v17 offset:{1024*(t-3)}')
    for k in range(0, 8, 2):
        A(f'v_pk_add_f32 {vr(R+k,2)}, {vr(R+k,2)}, {vr(R+8+k,2)}')
    A('s_waitcnt lgkmcnt(8)\nv_mov_b32 v19, v18')
    for k in range(0, 8, 2):
        A(f'v_pk_add_f32 {vr(R+16+k,2)}, {vr(R+16+k,2)}, {vr(R+24+k,2)}')
    for k in range(0, 8, 2):
        A(f'v_pk_add_f32 {vr(R+k,2)}, {vr(R+k,2)}, {vr(R+16+k,2)}')
    A('s_waitcnt lgkmcnt(0)')
    for k in range(0, 8, 2):
        A(f'v_pk_fma_f32 {vr(R+k,2)}, {vr(R+k,2)}, v[18:19], {vr(R+56+k,2)}')
    for sl in range(3):
        for k in range(0, 8, 2):
            A(f'v_pk_add_f32 {vr(R+k,2)}, {vr(R+k,2)}, {vr(R+32+8*sl+k,2)}')
    for t in (3, 4):
        b = R + 4 * (t - 3)
        A(f'v_cvt_pk_bf16_f32 v{b}, v{b}, v{b+1}\nv_cvt_pk_bf16_f32 v{b+1}, v{b+2}, v{b+3}')
        A(f'buffer_store_dwordx2 {vr(b,2)}, v20, s[28:31], s55 offen offset:{32*t}')
    finish(A)


def gen(A):
    K = NAME + '_kernel'
    A(f'.globl {K}\n.p2align 8\n.type {K},@function\n{K}:')
    if ENTRYT: A('s_memrealtime s[92:93]')
    A('s_cmp_ge_u32 s2, 256\ns_cbranch_scc1 L_end')
    A('s_load_dwordx4 s[4:7], s[0:1], 0')
    A('s_load_dwordx4 s[8:11], s[0:1], 32')
    A('s_load_dwordx4 s[12:15], s[0:1], 48')
    A('s_load_dwordx2 s[16:17], s[0:1], 80')
    A.c('decode: s18 rb, s19 cq, s20 m, s21 wave, s22 gtype, s23 rbl, s55 is_gc')
    A('v_lshrrev_b32 v1, 6, v0\nv_and_b32 v2, 63, v0')
    A('s_bfe_u32 s23, s2, 0x10003\ns_and_b32 s18, s2, 7\ns_lshl_b32 s18, s18, 1\ns_add_u32 s18, s18, s23' if not MAP84 else 's_bfe_u32 s23, s2, 0x30003\ns_and_b32 s18, s2, 1\ns_lshl_b32 s18, s18, 3\ns_add_u32 s18, s18, s23')
    A('v_readfirstlane_b32 s21, v1')
    A('s_bfe_u32 s19, s2, 0x20004\ns_lshr_b32 s20, s2, 6' if not MAP84 else ('s_bfe_u32 s19, s2, 0x20001\ns_lshr_b32 s20, s2, 6' if not KVX else 's_bfe_u32 s20, s2, 0x20001\ns_lshr_b32 s19, s2, 6'))
    A('s_mul_i32 s22, s19, 3\ns_add_u32 s22, s22, s20\ns_sub_u32 s22, s22, 1')
    A('s_cmp_eq_u32 s22, 10\ns_cselect_b32 s55, 1, 0\ns_cmp_ge_i32 s22, 10\ns_cselect_b32 s91, 1, 0')
    if STAMP:
        A('v_mov_b32 v1, 0\ns_mov_b32 s100, 0\ns_mov_b32 s101, 0')
        stamp(A, 0); stamp_rt(A, 62)
        if ENTRYT: A('v_readlane_b32 s93, v1, 0\nv_writelane_b32 v1, s92, 0\ns_nop 1\nv_writelane_b32 v1, s93, 58')
    A('s_cmp_lt_u32 s21, 4\ns_cbranch_scc1 L_compute')
    gen_loader(A)
    gen_compute(A)
    A('L_end:\ns_endpgm')
    A('.p2align 7\nL_table:')
    for i in range(32):
        A(f'.long {i}')


def main(out):
    A = Asm()
    gen(A)
    K = NAME + '_kernel'
    hdr = open('cdna_kernels/' + NAME + '.s.ref').read().split('; Override')[0]
    txt = hdr + f'; @launch grid=(256,1,1) block=(512,1,1) lds={LDS_TOTAL}\n'
    txt += '.amdgcn_target "amdgcn-amd-amdhsa--gfx950"\n.text\n' + A.text()
    txt += f'''.section .rodata,"a"
.p2align 6
.amdhsa_kernel {K}
  .amdhsa_next_free_vgpr 256
  .amdhsa_next_free_sgpr 102
  .amdhsa_accum_offset 256
  .amdhsa_group_segment_fixed_size 0
  .amdhsa_kernarg_size 88
  .amdhsa_user_sgpr_count 2
  .amdhsa_user_sgpr_kernarg_segment_ptr 1
  .amdhsa_system_sgpr_workgroup_id_x 1
.end_amdhsa_kernel
'''
    open(out, 'w').write(txt)

if __name__ == '__main__':
    for a in sys.argv[2:]:
        k, v = a.split('=', 1)
        globals()[k] = eval(v)
    main(sys.argv[1] if len(sys.argv) > 1 else 'cdna_kernels/' + NAME + '.s')
```

```python
import sys

NAME = 'gated_mix__linear_attn_block__glu_gated_glu__prompt'

HB_OFF = 0
W2_OFF = 0x900000
M_OFF = 0xB00000
KVS = 3584
KVP_OFF = 0xC00000
G_OFF = 0xF00000
ZB_OFF = 0xF10000
FSH = 13
FG_OFF = 0xF40000
FP_OFF = 0xF60800
FM_OFF = 0xF81000
FW_OFF = 0xFA1800
STAMP_OFF = 0x1000000
WS_USED = 0x1100000
OOB = 0x7FFF0000

XSLOT = 16384; NX = 3
WBASE = NX * XSLOT
WSLOT = 20480; NW = 5
GWBASE = WBASE + NW * WSLOT
LDS_TOTAL = 163840
CT = 159744
P2_SCR = 0
RPK = GWBASE
CODEPF = True
EV = {1: (0, [(0, 3), (2, 15)]), 2: (1, [(1, 5), (3, 15)]), 3: (2, [(2, 7), (4, 15)])}
THIRD = 5
RPORD = (11, 9, 4, 7, 2, 5, 8, 1, 0, 3, 6, 10)
STAMP = False
GWS = 320
PRIO = 2
LSLEEP = 1
DEPTH = 2
EXP = ''
P84 = False
EVW = 0
LATEF = True
XROT = 12
ZEARLY = True
ZC = 0
ZM0 = 2
ENTRYT = False
KVFAST = 1
WOAT = 2
KVN = 12
NOPF = 0
DIAG = None
DBGOUT = False
DEFER = False
BURST = 0
FINEG = True
GEARLY = 0
START2 = 0
RTS = False
WSM = 1
KVACK = True
R0LATE = False
L2PF = 0
KVPRE = 6
PAX = 1
ZM = 255
MACK = False
SPEC_M = True
NRC = 4
BST = True
PQ_AT = 2
NLEAD = 3
COOP_P = True
COOP_M = True
MK0 = 2
NPK = True
KVX = False
APRIO = 2
BPRIO = 0
MAP84 = True
LS = 'sc1'
LL = 'sc1'
KPRE = 6
LPS = 1
LP0 = 0
GPOLL = 'A'
GD = 8
KVG = 1
T1N = 6
PRETOUCH = False
STG_THR = 6
PSLEEP = 8
MSLEEP = 12
MDELAY = 64
GDELAY = 0
STG_EARLY = False
SPIN_MAX = 0x20000


class Asm:
    def __init__(self):
        self.L = []
        self.nl = 0
    def __call__(self, s):
        for line in s.split('\n'):
            line = line.strip()
            if line:
                self.L.append(line if line.endswith(':') else '    ' + line)
    def c(self, s):
        self.L.append('    ; ' + s)
    def label(self, p='L'):
        self.nl += 1
        return f'{p}_{self.nl}'
    def text(self):
        return '\n'.join(self.L) + '\n'


def vr(b, n=4):
    return f'v[{b}:{b+n-1}]'

def srd(A, d, lo, nbytes):
    A(f's_mov_b32 s{d}, s{lo}\ns_mov_b32 s{d+1}, s{lo+1}\ns_mov_b32 s{d+2}, {nbytes}\ns_mov_b32 s{d+3}, 0x20000')

def stamp(A, n):
    if STAMP:
        A(f'{"s_memrealtime" if RTS else "s_memtime"} s[98:99]\ns_waitcnt lgkmcnt(0)\nv_writelane_b32 v1, s98, {n}')
def stamp_rt(A, n):
    if STAMP:
        A(f's_memrealtime s[98:99]\ns_waitcnt lgkmcnt(0)\nv_writelane_b32 v1, s98, {n}')
def tbeg(A):
    if STAMP and 'quiet' not in EXP: A('s_memtime s[98:99]\ns_waitcnt lgkmcnt(0)\ns_mov_b32 s3, s98')
def tend(A, r):
    if STAMP and 'quiet' not in EXP: A(f's_memtime s[98:99]\ns_waitcnt lgkmcnt(0)\ns_sub_u32 s3, s98, s3\ns_add_u32 s{r}, s{r}, s3')
def finish(A):
    if STAMP:
        A('s_waitcnt vmcnt(0)')
        stamp(A, 61); stamp_rt(A, 63)
        A('v_writelane_b32 v1, s100, 59\nv_writelane_b32 v1, s101, 60')
        if DIAG:
            slot, mult = DIAG
            l = A.label('L_dg'); l2 = A.label('L_dg')
            A(f's_cmp_lg_u32 s21, 0\ns_cbranch_scc1 {l2}')
            A(f'v_readlane_b32 s48, v1, {slot}\nv_readlane_b32 s49, v1, 0\nv_readlane_b32 s50, v1, 61\ns_sub_u32 s48, s48, s49\ns_mul_i32 s48, s48, {mult}\ns_min_u32 s48, s48, 20000')
            A(f'{l}:\ns_memrealtime s[98:99]\ns_waitcnt lgkmcnt(0)\ns_sub_u32 s51, s98, s50\ns_cmp_lt_u32 s51, s48\ns_cbranch_scc1 {l}')
            A(f'{l2}:')
        A('s_mov_b64 exec, -1')
        A(f's_lshl_b32 s3, s2, 3\ns_add_u32 s3, s3, s21\ns_lshl_b32 s3, s3, 8\ns_add_u32 s3, s3, {STAMP_OFF}\nv_lshlrev_b32 v2, 2, v2')
        A('buffer_store_dword v1, v2, s[40:43], s3 offen')
        if DBGOUT:
            l = A.label('L_dbg')
            A(f's_cmp_lg_u32 s21, 0\ns_cbranch_scc1 {l}\ns_and_b32 s3, s2, 0xbf\ns_cmp_lg_u32 s3, 6\ns_cbranch_scc1 {l}')
            A('s_load_dwordx2 s[86:87], s[0:1], 72\ns_lshr_b32 s3, s2, 6\ns_mul_i32 s3, s3, 28\ns_add_u32 s3, s3, 8\ns_waitcnt lgkmcnt(0)\ns_mov_b64 exec, 1')
            for k, slot in enumerate((0, 2, 3, 5, 10, 12, 61)):
                A(f'v_readlane_b32 s48, v1, {slot}\nv_mov_b32 v3, s3\ns_nop 1\nv_mov_b32 v4, s48\nglobal_store_dword v3, v4, s[86:87] offset:{4*k}')
            A(f'{l}:')
    A('s_endpgm')

LOG2E = 0x3fb8aa3b
NLOG2E = 0xbfb8aa3b
EPS = 0x358637bd

ACC = 96; XF = 64; WF = 24
def acc(i, t): return ACC + 20 * i + 4 * t


THR = 0
def dma(A, m0expr, voff, sr, so):
    A(m0expr)
    A(f's_waitcnt vmcnt({THR-1})' if THR else 's_nop 0')
    A(f'buffer_load_dwordx4 v{voff}, s[{sr}:{sr+3}], s{so} offen lds')


def poll(A, soff, nl, vt, vaddr, sleep=None, first_sleep=False):
    l0 = A.label('L_poll'); l1 = A.label('L_polled')
    A('s_mov_b32 s90, 0')
    A(f's_mov_b64 exec, {hex((1 << nl) - 1)}' if nl <= 31 else f's_mov_b32 exec_lo, -1\ns_mov_b32 exec_hi, {hex((1 << (nl - 32)) - 1)}')
    A(f'{l0}:')
    A(f'buffer_load_dwordx2 {vr(vt,2)}, v{vaddr}, s[40:43], s{soff} offen sc1')
    A('s_waitcnt vmcnt(0)')
    A(f'v_cmp_ne_u64 vcc, s[88:89], {vr(vt,2)}')
    A(f's_cbranch_vccz {l1}')
    A(f's_sleep {PSLEEP if sleep is None else sleep}\ns_add_u32 s90, s90, 1\ns_cmp_lt_u32 s90, {SPIN_MAX}\ns_cbranch_scc1 {l0}')
    A(f'{l1}:')
    A('s_mov_b64 exec, -1')


def spoll(A, parts, sleep=2):
    l0 = A.label('L_sp'); l1 = A.label('L_spd')
    A('s_mov_b32 s96, 0')
    A(f'{l0}:')
    regs = []
    for so, imm, n, sb in parts:
        A(f's_load_dwordx{2*n} s[{sb}:{sb+2*n-1}], s[16:17], s{so} offset:{imm} glc')
        regs += [sb + 2 * k for k in range(n)]
    A('s_waitcnt lgkmcnt(0)')
    for r in regs:
        A(f's_xor_b64 s[{r}:{r+1}], s[{r}:{r+1}], s[88:89]')
    for r in regs[1:]:
        A(f's_or_b64 s[{regs[0]}:{regs[0]+1}], s[{regs[0]}:{regs[0]+1}], s[{r}:{r+1}]')
    A(f's_cbranch_scc0 {l1}')
    A(f's_sleep {sleep}\ns_add_u32 s96, s96, 1\ns_cmp_lt_u32 s96, {SPIN_MAX}\ns_cbranch_scc1 {l0}')
    A(f'{l1}:')


def set_flag(A, soff, vt):
    A(f'v_mov_b32 v{vt}, s88\nv_mov_b32 v{vt+1}, s89\nv_mov_b32 v{vt+2}, 0')
    A('s_waitcnt vmcnt(0)')
    A('s_mov_b64 exec, 1')
    A(f'buffer_store_dwordx2 {vr(vt,2)}, v{vt+2}, s[40:43], s{soff} offen sc1')
    A('s_mov_b64 exec, -1')


def table_srd(A, d):
    l = A.label('L_pc')
    A(f's_getpc_b64 s[{d}:{d+1}]\n{l}:\ns_add_u32 s{d}, s{d}, L_table-{l}\ns_addc_u32 s{d+1}, s{d+1}, 0\ns_movk_i32 s{d+2}, 128\ns_mov_b32 s{d+3}, 0x20000')


def lds_free(A, vaddr, vt, sdst):
    A(f'ds_read_b32 v{vt}, v{vaddr}\ns_waitcnt lgkmcnt(0)')
    A(f'v_readlane_b32 s{sdst}, v{vt}, 0\nv_readlane_b32 s48, v{vt}, 1\ns_min_u32 s{sdst}, s{sdst}, s48\nv_readlane_b32 s48, v{vt}, 2\ns_min_u32 s{sdst}, s{sdst}, s48\nv_readlane_b32 s48, v{vt}, 3\ns_min_u32 s{sdst}, s{sdst}, s48')


def lds_min4(A, vaddr, off, vt, sdst):
    A(f'ds_read_b128 {vr(vt)}, v{vaddr} offset:{off}\ns_waitcnt lgkmcnt(0)')
    A(f'v_min3_u32 v{vt}, v{vt}, v{vt+1}, v{vt+2}\nv_min_u32 v{vt}, v{vt}, v{vt+3}\ns_nop 0\nv_readfirstlane_b32 s{sdst}, v{vt}')


def lds_wait(A, vaddr, off, vt, need, four=True, sdst=90, sleep=1):
    l0 = A.label('L_lw'); l1 = A.label('L_lwd')
    if sleep in (2, 4): sleep *= WSM
    A('s_mov_b32 s96, 0')
    A(f'{l0}:')
    if four == 'free':
        lds_free(A, vaddr, vt, sdst)
    elif four:
        lds_min4(A, vaddr, off, vt, sdst)
    else:
        A(f'ds_read_b32 v{vt}, v{vaddr} offset:{off}\ns_waitcnt lgkmcnt(0)\nv_readfirstlane_b32 s{sdst}, v{vt}')
    A(f's_cmp_ge_i32 s{sdst}, {need}\ns_cbranch_scc1 {l1}')
    A(f's_sleep {sleep}\ns_add_u32 s96, s96, 1\ns_cmp_lt_u32 s96, {SPIN_MAX*16}\ns_cbranch_scc1 {l0}')
    A(f'{l1}:')


def lds_wait_mask(A, vaddr, off, vt, smask, sleep=2):
    l0 = A.label('L_mw'); l1 = A.label('L_mwd')
    A('s_mov_b32 s96, 0')
    A(f'{l0}:')
    A(f'ds_read_b32 v{vt}, v{vaddr} offset:{off}\ns_waitcnt lgkmcnt(0)\nv_readfirstlane_b32 s90, v{vt}')
    A(f's_andn2_b32 s90, {smask}, s90\ns_cbranch_scc0 {l1}')
    A(f's_sleep {sleep}\ns_add_u32 s96, s96, 1\ns_cmp_lt_u32 s96, {SPIN_MAX*16}\ns_cbranch_scc1 {l0}')
    A(f'{l1}:')


def mainloop(A, kv, tag):
    def upd_s():
        L = [f's_add_u32 s50, s50, {WSLOT}', f's_cmp_ge_u32 s50, {WBASE + NW*WSLOT}', f's_cselect_b32 s50, {WBASE}, s50']
        if not kv:
            L += ['s_add_u32 s52, s52, s53', 's_cmp_ge_u32 s52, s57', f's_cselect_b32 s52, {WBASE}, s52']
        return L
    def set_w():
        return [f'v_add_u32 v{15+t}, s50, v{10+t}' for t in range(4)] + [f'v_add_u32 v19, s{50 if kv else 52}, v14']
    def upd_blk():
        return [f's_add_u32 s51, s51, {XSLOT}', f's_cmp_ge_u32 s51, {NX*XSLOT}', 's_cselect_b32 s51, 0, s51']
    def set_x(par):
        return [f'v_add_u32 v{4+par}, s51, v{20+par}']
    def rdW(p, t, h):
        b = WF + 20 * p + 4 * t + 2 * h
        return f'ds_read_b64_tr_b16 {vr(b,2)}, v{15+t} offset:{512*h}'
    def rdX(i, par):
        return f'ds_read_b128 {vr(XF+4*i)}, v{4+par} offset:{2048*i}'
    def mfma(i, t, p):
        w = vr(WF + 20 * p + 4 * t); x = vr(XF + 4 * i); d = vr(acc(i, t))
        if 'm32' in EXP:
            n = 5 * i + t
            if n % 2 == 0:
                d = vr(ACC + 16 * ((n // 2) % 10), 16)
                A(f'v_mfma_f32_32x32x16_bf16 {d}, {w}, {x}, {d}')
            return
        A(f'v_mfma_f32_16x16x32_bf16 {d}, {x}, {w}, {d}' if kv else f'v_mfma_f32_16x16x32_bf16 {d}, {w}, {x}, {d}')
    A(f's_mov_b32 s50, {WBASE}\ns_mov_b32 s51, 0\ns_mov_b32 s54, 0')
    if not kv:
        A(f's_cmp_lg_u32 s55, 0\ns_cselect_b32 s52, {GWBASE}, s50\ns_movk_i32 s53, {WSLOT}\ns_cselect_b32 s53, {GWS}, s53\ns_mov_b32 s57, {WBASE + NW*WSLOT}\ns_cselect_b32 s57, -1, s57')
    for l in set_w() + set_x(0) + set_x(1):
        A(l)
    A(f'v_mov_b32 v3, {CT}\ns_lshl_b32 s48, s21, 8\ns_add_u32 m0, s48, {CT+256}\nv_mov_b32 v0, {OOB}\nv_writelane_b32 v0, 0, 0')
    table_srd(A, 44)
    stamp(A, 1)
    lds_wait(A, 3, 0, 6, 1, sdst=59)
    A('s_waitcnt vmcnt(0)')
    A(f's_setprio {PRIO}')
    stamp(A, 2)
    for t in range(5):
        A(rdW(0, t, 0)); A(rdW(0, t, 1))
    A('s_waitcnt lgkmcnt(6)')
    for i in range(8):
        A(rdX(i, 0))
    for l in upd_s() + set_w():
        A(l)
    A('s_mov_b32 s58, 2\ns_cmp_ge_i32 s59, s58')
    A(f's_cbranch_scc0 L_{tag}_slow0')
    A('.p2align 3')
    for p in range(2):
        gap = {k: [] for k in range(40)}
        for i in range(5):
            gap[5*i].append(rdW(1 - p, i, 0)); gap[5*i + 2].append(rdW(1 - p, i, 1))
        for i in range(8):
            gap[5*i + 4].append(rdX(i, 1 - p))
        gap[9].append('s_waitcnt lgkmcnt(6)')
        gap[1].append('s_add_u32 s54, s54, 4')
        gap[11].append('buffer_load_dword v0, s[44:47], s54 offen lds')
        gap[6].append('s_add_u32 s58, s58, 1'); gap[8].append('s_min_u32 s58, s58, 20')
        sal = upd_s() + (upd_blk() if p == 0 else [])
        for k in (13, 13, 16, 16, 18, 18, 21, 21, 23):
            if sal: gap[k].append(sal.pop(0))
        assert not sal
        if LATEF:
            for k, l in zip((23, 25, 26, 27, 28, 30), set_w() + set_x(p)):
                gap[k].append(l)
            gap[31].append('ds_read_b128 v[6:9], v3')
            gap[36].append('s_waitcnt lgkmcnt(1)'); gap[36].append('v_min3_u32 v6, v6, v7, v8')
            gap[37].append('v_min_u32 v6, v6, v9')
            gap[38].append('v_readfirstlane_b32 s59, v6')
        else:
            gap[23].append('ds_read_b128 v[6:9], v3')
            for k, l in zip((25, 26, 27, 28, 30, 31), set_w() + set_x(p)):
                gap[k].append(l)
            gap[32].append('s_waitcnt lgkmcnt(2)'); gap[32].append('v_min3_u32 v6, v6, v7, v8')
            gap[33].append('v_min_u32 v6, v6, v9')
            gap[35].append('v_readfirstlane_b32 s59, v6')
        if p == 1:
            gap[35 if LATEF else 36].append('s_cmp_lt_u32 s54, 80'); gap[37].append(f's_cbranch_scc0 L_{tag}_last')
        gap[39 if LATEF else 38].append('s_cmp_ge_i32 s59, s58' if 'nowait' not in EXP else 's_cmp_eq_u32 s59, s59')
        if 'novalu' in EXP:
            for k in gap: gap[k] = [l for l in gap[k] if not l.startswith('v_')]
        if 'nods' in EXP:
            for k in gap: gap[k] = [l for l in gap[k] if not l.startswith('ds_')]
        if 'nosalu' in EXP:
            for k in gap: gap[k] = [l for l in gap[k] if not (l.startswith('s_') and 13 <= k <= 23)]
        if 'noctl' in EXP:
            for k in gap: gap[k] = [l for l in gap[k] if not (' v6' in l or 'v[6:9]' in l)]
        if 'halfx' in EXP:
            for k in (9, 19, 29, 39): gap[k] = [l.replace('ds_read_b128', 'ds_read_b32').replace(l.split()[1], l.split()[1].split(':')[0].replace('[', '') + ',') if l.startswith('ds_read_b128 v[') else l for l in gap[k]]
        if 'nowr' in EXP:
            for k in gap: gap[k] = [l for l in gap[k] if not l.startswith('ds_write')]
        if 'now32' in EXP:
            gap[32] = [l for l in gap[32] if not l.startswith('s_waitcnt')]
        if 'nopub' in EXP: pass
        if p == 0:
            A(f'L_{tag}_go0:')
        else:
            A(f's_cbranch_scc0 L_{tag}_slow1')
            A(f'L_{tag}_go1:')
        A('s_waitcnt lgkmcnt(2)')
        for i in range(8):
            for t in range(5):
                mfma(i, t, p)
                for l in gap[5*i + t]: A(l)
    A(f's_cbranch_scc1 L_{tag}_go0')
    for p in range(2):
        A(f'L_{tag}_slow{p}:')
        tbeg(A)
        lds_wait(A, 3, 0, 6, 's58', sdst=59)
        tend(A, 100)
        if STAMP: A('s_add_u32 s101, s101, 1')
        A(f's_branch L_{tag}_go{p}')
    A(f'L_{tag}_last:')
    mfma(7, 3, 1); mfma(7, 4, 1)
    A('s_waitcnt lgkmcnt(0)')
    stamp(A, 3)
    A('s_nop 6')
    if 'p1' in EXP: finish(A)


def phi_q(A, b, t, dst=None):
    dst = b if dst is None else dst
    A(f'v_pk_mul_f32 {vr(t,2)}, {vr(b,2)}, s[60:61]\nv_pk_mul_f32 {vr(t+2,2)}, {vr(b+2,2)}, s[60:61]')
    for j in range(4):
        A(f'v_exp_f32 v{t+j}, v{t+j} clamp')
    for j in range(4):
        A(f'v_max_f32 v{dst+j}, s66, v{b+j}')
    A(f'v_pk_add_f32 {vr(dst,2)}, {vr(dst,2)}, {vr(t,2)}\nv_pk_add_f32 {vr(dst+2,2)}, {vr(dst+2,2)}, {vr(t+2,2)}')


def gen_compute(A):
    A('L_compute:')
    if CODEPF:
        A('s_cmp_lg_u32 s21, 0\ns_cbranch_scc1 L_nocpf')
        A(f's_getpc_b64 s[44:45]\nL_pc:\ns_sub_u32 s44, s44, L_pc-{NAME}_kernel\ns_subb_u32 s45, s45, 0\ns_mov_b32 s46, L_end-{NAME}_kernel\ns_mov_b32 s47, 0x20000')
        A('s_lshr_b32 s48, s2, 3\ns_lshl_b32 s48, s48, 11\nv_lshlrev_b32 v3, 7, v2\ns_mov_b64 exec, 0xffff')
        A('buffer_load_dword v95, v3, s[44:47], s48 offen\ns_mov_b64 exec, -1')
        A('L_nocpf:')
    A('s_barrier')
    A.c('compute wave setup: v3=q v4=r v5=c v6=f<<5 v7=rowpart')
    for r in range(ACC, 256, 2):
        A(f'v_mov_b64 {vr(r,2)}, 0')
    A('v_lshrrev_b32 v3, 4, v2\nv_bfe_u32 v4, v2, 2, 2\nv_and_b32 v5, 3, v2')
    A('v_lshrrev_b32 v6, 1, v4\nv_and_b32 v8, 1, v3\nv_lshl_add_u32 v6, v8, 1, v6\nv_lshlrev_b32 v6, 5, v6')
    A('v_mul_u32_u24 v7, 5120, v3\nv_lshl_add_u32 v7, v4, 7, v7')
    A('v_and_b32 v8, 15, v2\nv_lshrrev_b32 v9, 1, v8\nv_xor_b32 v9, v9, v3\nv_lshlrev_b32 v9, 4, v9\nv_lshl_add_u32 v20, v8, 7, v9\nv_xor_b32 v21, 64, v20')
    A(f's_mov_b32 s60, {LOG2E}\ns_mov_b32 s61, {LOG2E}\ns_mov_b32 s62, {NLOG2E}\ns_mov_b32 s63, {NLOG2E}')
    A(f's_mov_b32 s64, 1.0\ns_mov_b32 s65, 1.0\ns_mov_b32 s66, {EPS}')
    A('s_waitcnt lgkmcnt(0)')
    srd(A, 40, 16, WS_USED)
    if PRETOUCH:
        A('s_cmp_lg_u32 s21, 1\ns_cbranch_scc1 L_nopt')
        A('s_load_dwordx2 s[28:29], s[0:1], 64\ns_load_dwordx2 s[32:33], s[0:1], 16\ns_mov_b32 s30, 2621440\ns_mov_b32 s31, 0x20000\ns_mov_b32 s34, 819200\ns_mov_b32 s35, 0x20000')
        srd(A, 36, 12, 1966080)
        A('v_lshlrev_b32 v8, 18, v2\nv_lshlrev_b32 v9, 16, v2')
        A('buffer_load_dword v92, v8, s[40:43], 0 offen\nbuffer_load_dword v93, v9, s[36:39], 0 offen\ns_waitcnt lgkmcnt(0)')
        A('buffer_load_dword v94, v9, s[28:31], 0 offen\nbuffer_load_dword v95, v9, s[32:35], 0 offen')
        A('L_nopt:')
    A('s_cmp_eq_u32 s20, 0\ns_cbranch_scc1 L_kv')

    A('s_lshr_b32 s48, s21, 1\ns_lshl_b32 s48, s48, 10\ns_and_b32 s49, s21, 1\ns_lshl_b32 s49, s49, 3')
    A('v_add_u32 v8, s49, v5\nv_lshlrev_b32 v8, 3, v8\nv_xor_b32 v9, v8, v6\nv_add3_u32 v10, v9, v7, s48')
    A('v_add_u32 v8, 32, v8\nv_xor_b32 v9, v8, v6\nv_add3_u32 v11, v9, v7, s48')
    A('v_add_u32 v12, 2048, v10\nv_add_u32 v13, 2048, v11')
    A('s_lshl_b32 s49, s21, 2\nv_add_u32 v8, s49, v5\nv_lshlrev_b32 v8, 3, v8\nv_xor_b32 v9, v8, v6\nv_add_u32 v14, v9, v7\nv_add_u32 v14, 4096, v14')
    A('s_cmp_eq_u32 s55, 0\ns_cbranch_scc1 L_g_notgc')
    A('v_lshlrev_b32 v14, 5, v3\nv_lshl_add_u32 v14, v4, 3, v14')
    A('L_g_notgc:')
    A('v_lshlrev_b32 v22, 4, v2')
    A(f's_mul_i32 s72, s18, {2*68*4096}\ns_add_u32 s73, s72, {68*4096}')
    A('s_lshl_b32 s48, s22, 2\ns_add_u32 s48, s48, s21\ns_lshl_b32 s49, s48, 12\ns_add_u32 s70, s72, s49\ns_add_u32 s71, s73, s49')
    A(f's_lshl_b32 s74, s18, {FSH}\ns_lshl_b32 s49, s48, 3\ns_add_u32 s74, s74, s49\ns_add_u32 s74, s74, {FG_OFF}')
    A('s_lshl_b32 s48, s48, 2\nv_add_u32 v5, s48, v3')
    A('v_mul_u32_u24 v6, 6554, v5\nv_lshrrev_b32 v6, 16, v6\nv_mul_u32_u24 v7, 10, v6\nv_sub_u32 v7, v5, v7')
    A('v_lshrrev_b32 v8, 2, v6\nv_and_b32 v6, 3, v6')
    A('v_mul_u32_u24 v8, 5, v8\nv_lshrrev_b32 v9, 1, v7\nv_add3_u32 v8, v8, v9, 48\nv_lshlrev_b32 v8, 12, v8')
    A('v_and_b32 v9, 15, v2\nv_lshl_add_u32 v9, v6, 4, v9\nv_lshl_add_u32 v8, v9, 4, v8')
    A('v_and_b32 v7, 1, v7\nv_lshl_add_u32 v23, v7, 10, v8')
    mainloop(A, False, 'g')
    A.c('h = u * sigmoid(g)')
    hst = []; pst = []
    for i in range(8):
        g = acc(i, 0); u = acc(i, 2)
        for j in range(4):
            A(f'v_pk_mul_f32 {vr(g+2*j,2)}, {vr(g+2*j,2)}, s[62:63]')
        for j in range(8):
            A(f'v_exp_f32 v{g+j}, v{g+j}')
        for j in range(4):
            A(f'v_pk_add_f32 {vr(g+2*j,2)}, {vr(g+2*j,2)}, s[64:65]')
        for j in range(8):
            A(f'v_rcp_f32 v{g+j}, v{g+j}')
        for j in range(4):
            A(f'v_pk_mul_f32 {vr(u+2*j,2)}, {vr(u+2*j,2)}, {vr(g+2*j,2)}')
        for j in range(4):
            A(f'v_cvt_pk_bf16_f32 v{g+j}, v{u+2*j}, v{u+2*j+1}')
        hst.append(f'buffer_store_dwordx4 {vr(g)}, v22, s[40:43], s{70 + (i>>2)} offen offset:{(i&3)*1024} {LS}')
        if not BURST: A(hst.pop())
    if BURST == 1:
        for l in hst: A(l)
        hst = []
    A('s_cmp_lg_u32 s91, 0\ns_cbranch_scc1 L_gc_epi')
    A.c('pq = phi(q)')
    for i in range(0, 8, 2):
        a0 = acc(i, 4); b0 = acc(i + 1, 4)
        phi_q(A, a0, 24 + 8 * ((i >> 1) & 1))
        phi_q(A, b0, 28 + 8 * ((i >> 1) & 1))
        A(f'v_cvt_pk_bf16_f32 v{a0}, v{a0}, v{a0+1}\nv_cvt_pk_bf16_f32 v{a0+1}, v{a0+2}, v{a0+3}')
        A(f'v_cvt_pk_bf16_f32 v{a0+2}, v{b0}, v{b0+1}\nv_cvt_pk_bf16_f32 v{a0+3}, v{b0+2}, v{b0+3}')
        A('s_nop 1')
        A(f'v_permlane16_swap_b32 v{a0}, v{a0+2}\nv_permlane16_swap_b32 v{a0+1}, v{a0+3}')
        pst.append(f'buffer_store_dwordx4 {vr(a0)}, v23, s[40:43], s{72 + (i>>2)} offen offset:{(i&3)*1024} {LS}')
        if BURST != 2: A(pst.pop())
    for l in hst + pst: A(l)
    A('s_branch L_p1_done')
    A('L_gc_epi:')
    for l in hst: A(l)
    A.c('gate g = sigmoid(logit); stored by gtype 10, wave 0')
    A('v_and_b32 v8, 15, v2\nv_lshlrev_b32 v8, 2, v8')
    A(f's_lshl_b32 s48, s18, 9\ns_add_u32 s48, s48, {G_OFF}\ns_lshl_b32 s49, s22, 2\ns_add_u32 s49, s49, s21')
    A(f's_cmp_eq_u32 s49, 40\ns_cselect_b32 s48, s48, {OOB}')
    for i in range(8):
        A(f'v_mul_f32 v{acc(i,4)}, s62, v{acc(i,4)}')
    for i in range(8):
        A(f'v_exp_f32 v{acc(i,4)}, v{acc(i,4)}')
    for i in range(8):
        A(f'v_add_f32 v{acc(i,4)}, 1.0, v{acc(i,4)}')
    for i in range(8):
        A(f'v_rcp_f32 v{acc(i,4)}, v{acc(i,4)}')
    A('s_nop 0\ns_mov_b64 exec, 0xffff')
    for i in range(8):
        A(f'buffer_store_dword v{acc(i,4)}, v8, s[40:43], s48 offen offset:{64*i} {LS}')
    A('s_mov_b64 exec, -1')
    A('s_branch L_p1_done')

    A('L_kv:')
    A('s_mul_i32 s48, s21, 10\ns_and_b32 s49, s19, 1\ns_lshl_b32 s49, s49, 3\ns_sub_u32 s48, s48, s49')
    def kvaddr(dst, u, isv):
        A(f'v_add_u32 v9, 40, {u}\nv_cmp_gt_i32 vcc, 0, {u}\ns_nop 1\nv_cndmask_b32 v8, {u}, v9, vcc')
        A(f'v_lshrrev_b32 v9, 4, v8\nv_lshl_add_u32 v9, {isv}, 1, v9\nv_and_b32 v23, 15, v8')
        A(f'v_lshl_add_u32 v22, {isv}, 3, v23')
        A('v_cmp_gt_u32 vcc, 32, v8\ns_nop 1\nv_cndmask_b32 v9, 4, v9, vcc\nv_cndmask_b32 v23, v22, v23, vcc')
        A(f'v_lshlrev_b32 v23, 3, v23\nv_xor_b32 v23, v23, v6\nv_lshlrev_b32 v22, 4, {isv}\nv_xor_b32 v23, v23, v22')
        A(f'v_lshl_add_u32 v23, v9, 10, v23\nv_add_u32 v{dst}, v23, v7')
    A('v_mov_b32 v16, 0\nv_mov_b32 v17, 1\nv_add_u32 v15, s48, v5')
    kvaddr(10, 'v15', 'v16'); kvaddr(12, 'v15', 'v17')
    A('v_add_u32 v15, 5, v15')
    kvaddr(11, 'v15', 'v16'); kvaddr(13, 'v15', 'v17')
    A('v_and_b32 v15, 1, v5\nv_mul_u32_u24 v15, 5, v15\nv_add3_u32 v15, v15, s48, 4\nv_lshrrev_b32 v16, 1, v5')
    kvaddr(14, 'v15', 'v16')
    A('v_lshlrev_b32 v22, 4, v2\nv_lshlrev_b32 v23, 4, v3')
    A('v_and_b32 v8, 15, v2\nv_cmp_gt_u32 s[68:69], 8, v8')
    A(f's_lshl_b32 s48, s19, 2\ns_add_u32 s48, s48, s21\ns_lshl_b32 s48, s48, 4\ns_add_u32 s48, s48, s18\ns_mul_i32 s70, s48, {KVS}\ns_add_u32 s70, s70, {KVP_OFF}')
    prods = [(0, 0), (1, 1), (2, 0), (2, 1), (0, 2), (1, 2), (2, 2)]
    A(f's_lshr_b32 s71, s21, 1\ns_mul_i32 s71, s71, {RPK - 40960}\ns_and_b32 s49, s21, 1\ns_lshl_b32 s49, s49, 12\ns_add_u32 s71, s71, s49\ns_add_u32 s71, s71, 40960')
    A('v_mul_u32_u24 v23, 5, v8\nv_add_u32 v23, v23, v3\nv_lshlrev_b32 v23, 4, v23\nv_add_u32 v23, s71, v23')
    mainloop(A, True, 'kv')
    A.c('KV epilogue')
    A('v_mov_b32 v12, 0x3f803f80\nv_mov_b32 v13, v12\nv_mov_b32 v14, v12\nv_mov_b32 v15, v12')
    KT = {0: 0, 1: 1, 2: 4}; VT = {0: 2, 1: 3, 2: 4}
    PR = 24
    pend = []
    def flush(k):
        for _ in range(k):
            if pend: A(pend.pop(0))
    for kk in range(4):
        n = 0
        for i in (2 * kk, 2 * kk + 1):
            for t in (0, 1):
                phi_q(A, acc(i, t), 64 + 4 * (n % 4)); n += 1
                flush(2)
            b = acc(i, 4); s = 80 + 4 * (i & 1)
            phi_q(A, b, 64 + 4 * (n % 4), s); n += 1
            for j in range(4):
                A(f'v_cndmask_b32 v{b+j}, v{b+j}, v{s+j}, s[68:69]')
            flush(1)
        assert not pend
        for t in range(5):
            a = acc(2 * kk, t); b = acc(2 * kk + 1, t)
            A(f'v_cvt_pk_bf16_f32 v{a}, v{a}, v{a+1}\nv_cvt_pk_bf16_f32 v{a+1}, v{a+2}, v{a+3}')
            A(f'v_cvt_pk_bf16_f32 v{a+2}, v{b}, v{b+1}\nv_cvt_pk_bf16_f32 v{a+3}, v{b+2}, v{b+3}')
        for n, (tv, tk) in enumerate(prods):
            d = vr(PR + 4 * n)
            pend.append(f'v_mfma_f32_16x16x32_bf16 {d}, {vr(acc(2*kk,VT[tv]))}, {vr(acc(2*kk,KT[tk]))}, {d if kk else 0}')
        for tk in range(3):
            d = vr(52 + 4 * tk)
            pend.append(f'v_mfma_f32_16x16x32_bf16 {d}, {vr(acc(2*kk,KT[tk]))}, v[12:15], {d if kk else 0}')
    A('s_nop 1')
    flush(10)
    get_epoch(A, 3, 6)
    A(f'v_and_b32 v9, 3, v2\nv_lshlrev_b32 v9, 8, v9\nv_add_u32 v9, {CT+256}, v9')
    lds_wait(A, 9, 0, 8, 18, four='free', sleep=1)
    HB_ = 1792
    wr = [(0, None, 0), (1, None, HB_), (2, (0, 0xffff), 32), (3, (0, 0xffff0000), HB_ + 16), (4, (0x000f000f, 0x000f000f), 1280),
          (5, (0x00f000f0, 0x00f000f0), HB_ + 960), (6, (0, 0x0000000f), 1280 + 32), (6, (0, 0x00f00000), HB_ + 960 + 16),
          (7, (0x00010001, 0x00010001), 1600), (8, (0x00010001, 0x00010001), HB_ + 1600), (9, (1, 0), 1664), (9, (0x10000, 0), HB_ + 1648)]
    for n, m, off in wr:
        if m: A(f's_mov_b32 exec_lo, {hex(m[0])}\ns_mov_b32 exec_hi, {hex(m[1])}')
        A(f'ds_write_b128 v23, {vr(PR+4*n)} offset:{off}')
    A('s_mov_b64 exec, -1\nv_add_u32 v9, s71, v22')
    for i in range(4):
        A(f'ds_read_b128 {vr(64+4*i)}, v9 offset:{1024*i}')
    A('s_and_b32 s76, s88, 0xfff\ns_bfe_u32 s77, s88, 0xc000c\ns_lshr_b64 s[78:79], s[88:89], 24\ns_xor_b32 s78, s78, s88\ns_bfe_u32 s79, s78, 0xc000c\ns_and_b32 s78, s78, 0xfff')
    A('v_mov_b32 v6, 0xfffff000')
    for i in range(4):
        A(f's_waitcnt lgkmcnt({3-i})')
        for r in range(64 + 4 * i, 68 + 4 * i):
            A(f'v_and_or_b32 v{r}, v{r}, v6, s{76 + (r & 3)}')
        if i == 3: A('s_mov_b32 exec_hi, 0')
        A(f'buffer_store_dwordx4 {vr(64+4*i)}, v22, s[40:43], s70 offen offset:{1024*i} sc1')
    A('s_mov_b64 exec, -1')
    A('L_p1_done:')
    stamp(A, 4)
    gen_awave(A)


def p2_ids(A):
    if P84:
        A('s_bfe_u32 s18, s2, 0x20001\ns_lshl_b32 s18, s18, 3\ns_lshr_b32 s48, s2, 5\ns_add_u32 s18, s18, s48')
        A('s_and_b32 s19, s2, 1\ns_lshl_b32 s19, s19, 2\ns_bfe_u32 s48, s2, 0x20003\ns_add_u32 s19, s19, s48')
        return
    A('s_and_b32 s18, s2, 7\ns_lshl_b32 s18, s18, 2\ns_lshr_b32 s48, s2, 6\ns_add_u32 s18, s18, s48')
    A('s_bfe_u32 s19, s2, 0x30003')


def gpoll(A, soff, vt):
    l0 = A.label('L_gp'); l1 = A.label('L_gs'); l2 = A.label('L_gd')
    A('s_mov_b32 s96, 0\ns_mov_b32 s75, 0')
    A(f'{l0}:')
    A(f's_mov_b32 exec_hi, 0xffff\nbuffer_load_dwordx2 {vr(vt,2)}, v6, s[40:43], s{soff} offen sc1\ns_waitcnt vmcnt(0)\nv_cmp_ne_u64 vcc, s[88:89], {vr(vt,2)}\ns_mov_b32 exec_hi, -1')
    A('s_mov_b32 s74, 0')
    for g in range(4):
        A(f's_bfe_u64 s[76:77], vcc, {hex((12 << 16) | (12 * g))}\ns_cselect_b32 s48, 0, {1 << g}\ns_or_b32 s74, s74, s48')
    A(f's_cmp_eq_u32 s74, s75\ns_cbranch_scc1 {l1}')
    A(f's_mov_b32 s75, s74\nv_mov_b32 v{vt}, s74\ns_mov_b64 exec, 1\nds_write_b32 v0, v{vt} offset:64\ns_mov_b64 exec, -1')
    A(f'{l1}:')
    A(f's_cmp_eq_u32 s74, 15\ns_cbranch_scc1 {l2}')
    A(f's_sleep {PSLEEP}\ns_add_u32 s96, s96, 1\ns_cmp_lt_u32 s96, {SPIN_MAX}\ns_cbranch_scc1 {l0}')
    A(f'{l2}:')


def get_epoch(A, vct, vt):
    l0 = A.label('L_ep')
    A('s_mov_b32 s96, 0')
    A(f'{l0}:')
    A(f'ds_read_b64 {vr(vt,2)}, v{vct} offset:32\ns_waitcnt lgkmcnt(0)\nv_readfirstlane_b32 s88, v{vt}\nv_readfirstlane_b32 s89, v{vt+1}')
    A(f's_add_u32 s96, s96, 1\ns_cmp_eq_u32 s88, 0\ns_cselect_b32 s48, s96, -1\ns_cmp_lt_u32 s48, {SPIN_MAX*16}\ns_cbranch_scc1 {l0}')


def phase_a(A):
    WOI = 0; HS = 0; HSTR = 5120
    A('v_lshrrev_b32 v3, 4, v2\nv_and_b32 v4, 15, v2')
    A('s_mul_i32 s70, s21, 5120')
    A('s_lshr_b32 s50, s18, 1\ns_and_b32 s51, s18, 1')
    A(f's_mul_i32 s48, s51, 1792\nv_add_u32 v10, s48, v5\nv_add_u32 v11, 1024, v10\nv_mov_b32 v15, {OOB}\nv_cmp_lt_u32 vcc, 40, v2\ns_nop 1\nv_cndmask_b32 v11, v11, v15, vcc')
    A('v_mov_b32 v19, v5\nv_add_u32 v20, 1024, v5\nv_mul_u32_u24 v21, 80, v4\nv_lshl_add_u32 v12, v3, 5, v21\nv_lshlrev_b32 v13, 3, v4')
    A('v_bfe_u32 v14, v2, 2, 2\nv_lshl_add_u32 v14, v3, 3, v14\nv_mul_u32_u24 v14, 160, v14\nv_and_b32 v15, 3, v2\nv_lshl_add_u32 v14, v15, 3, v14\nv_add_u32 v14, s70, v14')
    A(f'v_add_u32 v19, s70, v19\nv_add_u32 v20, s70, v20\ns_mul_i32 s48, s51, 5120\nv_add_u32 v12, s48, v12\nv_add_u32 v13, s48, v13')
    A('v_cmp_gt_u32 s[60:61], 3, v3\nv_cmp_gt_u32 s[62:63], 2, v3\nv_cmp_gt_u32 s[64:65], 41, v2')
    A(f's_mul_i32 s48, s51, 5\ns_lshr_b32 s49, s21, 1\ns_mul_i32 s49, s49, {RPK - 40960}\ns_add_u32 s49, s49, 40960')
    for mt in range(2):
        A(f'v_add3_u32 v15, v3, s48, {4*mt}\nv_lshrrev_b32 v16, 1, v15\nv_mul_u32_u24 v16, 1280, v16\nv_and_b32 v15, 1, v15\nv_lshl_add_u32 v16, v15, 3, v16')
        A(f'v_lshl_add_u32 v16, v4, 4, v16\nv_add_u32 v{17+mt}, s49, v16')
    A('s_mul_i32 s48, s51, 40\ns_add_u32 s48, s48, s49\ns_add_u32 s48, s48, 6400\nv_lshlrev_b32 v22, 2, v2\nv_add_u32 v22, s48, v22')
    A('s_mul_i32 s48, s51, 3328\ns_add_u32 s48, s48, s49\nv_add_u32 v21, s48, v5\nv_lshlrev_b32 v15, 10, v3\nv_lshl_add_u32 v15, v4, 4, v15')
    A(f's_lshr_b32 s48, s18, 3\ns_mul_i32 s48, s48, 5\ns_mul_i32 s49, s19, 20\ns_add_u32 s48, s48, s49\ns_mul_i32 s48, s48, 5120\ns_and_b32 s49, s50, 3\ns_lshl_b32 s49, s49, 8\ns_add_u32 s48, s48, s49')
    A(f's_mul_i32 s49, s51, 13312\ns_add_u32 s48, s48, s49\ns_add_u32 s55, s48, {M_OFF}\ns_add_u32 s56, s55, 4096\ns_add_u32 s57, s55, 8192\ns_add_u32 s48, s55, 12288')
    A(f's_lshl_b32 s54, s19, 11\ns_lshl_b32 s49, s50, 7\ns_add_u32 s54, s54, s49\ns_add_u32 s54, s54, {ZB_OFF}')
    A(f's_cmp_eq_u32 s51, 0\ns_cselect_b32 s54, s48, s54\ns_movk_i32 s48, {ZM}\ns_cselect_b32 s58, 0xffff, s48\ns_mov_b32 s59, 0')
    A('s_and_b32 s76, s88, 0xfff\ns_bfe_u32 s77, s88, 0xc000c\ns_lshr_b64 s[78:79], s[88:89], 24\ns_xor_b32 s78, s78, s88\ns_bfe_u32 s79, s78, 0xc000c\ns_and_b32 s78, s78, 0xfff')
    A(f's_mul_i32 s52, s50, {16*KVS}\ns_lshr_b32 s49, s21, 1\ns_mul_i32 s49, s49, {8*KVS}\ns_add_u32 s52, s52, s49\ns_add_u32 s52, s52, {KVP_OFF}')
    if ZEARLY:
        for reg, add in ((13, 0), (22, 1)):
            A(f'v_and_b32 v8, 7, v2\nv_lshl_add_u32 v8, v8, 1, {add}\nv_lshlrev_b32 v9, 4, v8\nv_add_u32 v{reg}, 1600, v9\nv_add_u32 v9, {1600 + HSTR - 80}, v9\nv_cmp_lt_u32 vcc, 4, v8\ns_nop 1\nv_cndmask_b32 v{reg}, v{reg}, v9, vcc')
    A(f's_lshl_b32 s48, s21, 2\nv_add_u32 v23, s48, v0\nv_mov_b32 v244, 1\nv_mov_b32 v245, 2\nv_mov_b32 v246, 3')
    A('s_mov_b64 exec, 1\nds_write_b32 v23, v244 offset:192\ns_mov_b64 exec, -1')
    lds_wait(A, 23, 112, 248, 1, four=False, sleep=1)
    for t in range(5):
        A(f'ds_read_b64_tr_b16 {vr(224+4*t,2)}, v14 offset:{32*t}\nds_read_b64_tr_b16 {vr(226+4*t,2)}, v14 offset:{32*t + 640}')
    stamp(A, 25)
    lds_wait(A, 0, 72, 248, 1, four=False, sleep=2)
    if KVACK: A('s_waitcnt vmcnt(0)')
    if GDELAY: A(f's_sleep {GDELAY}')
    stamp(A, 26)
    A('s_mov_b32 s96, 0')
    A('L_pa_gather:')
    for p in range(8):
        if PAX:
            A(f's_lshl_b32 s53, s69, 1\ns_add_u32 s53, s53, {p}\ns_and_b32 s53, s53, 7\ns_mul_i32 s53, s53, {KVS}\ns_add_u32 s53, s53, s52')
            if p == 2 and PAX == 2: A('s_waitcnt vmcnt(0)')
        else:
            A(f's_add_u32 s53, s52, {KVS*p}')
        for ldi in range(2):
            A(f'buffer_load_dwordx4 {vr(24 + 8*p + 4*ldi)}, v{10+ldi}, s[40:43], s53 offen sc1')
    for p in range(8):
        A(f's_waitcnt vmcnt({2*(7-p)})')
        for r in range(24 + 8 * p, 32 + 8 * p):
            A(f'v_xor_b32 v{r}, s{76 + (r & 3)}, v{r}')
        for ldi in range(2):
            r = 24 + 8 * p + 4 * ldi; d = 8 + ldi
            if p == 0:
                A(f'v_or3_b32 v{d}, v{r}, v{r+1}, v{r+2}\nv_or_b32 v{d}, v{d}, v{r+3}')
            else:
                A(f'v_or3_b32 v{d}, v{d}, v{r}, v{r+1}\nv_or3_b32 v{d}, v{d}, v{r+2}, v{r+3}')
        if p:
            for j in range(0, 8, 2):
                A(f'v_pk_add_f32 {vr(24+j,2)}, {vr(24+j,2)}, {vr(24+8*p+j,2)}')
    A('v_cndmask_b32 v9, 0, v9, s[64:65]\nv_or_b32 v8, v8, v9\nv_and_b32 v8, 0xfff, v8\nv_cmp_ne_u32 vcc, 0, v8')
    A('s_cbranch_vccz L_pa_got')
    stamp(A, 35)
    A(f's_sleep {PSLEEP}\ns_add_u32 s96, s96, 1\ns_cmp_lt_u32 s96, {SPIN_MAX}\ns_cbranch_scc1 L_pa_gather')
    A('L_pa_got:')
    if STAMP: A('v_writelane_b32 v1, s96, 36')
    stamp(A, 27)
    A('ds_write_b128 v19, v[24:27]\nds_write_b128 v20, v[28:31]')
    A('s_mov_b64 exec, 1\nds_write_b32 v23, v244 offset:80\ns_mov_b64 exec, -1')
    lds_wait(A, 0, 80, 248, 1, sleep=0)
    stamp(A, 28)
    if ZEARLY:
        A('s_cmp_eq_u32 s51, 0\ns_cbranch_scc1 L_pa_noz')
        A(f'ds_read_b128 v[64:67], v13\nds_read_b128 v[68:71], v22\nds_read_b128 v[72:75], v13 offset:{2*HSTR}\nds_read_b128 v[76:79], v22 offset:{2*HSTR}\ns_waitcnt lgkmcnt(0)')
        for j in range(0, 8, 2):
            A(f'v_pk_add_f32 {vr(64+j,2)}, {vr(64+j,2)}, {vr(72+j,2)}')
        for j in range(4):
            A(f'v_cvt_pk_bf16_f32 v{80+j}, v{64+2*j}, v{65+2*j}')
        A('s_mov_b64 exec, 0xff\nbuffer_store_dwordx4 v[80:83], v15, s[40:43], s54 offen sc1\ns_mov_b64 exec, -1')
        A('L_pa_noz:')
    for w in range(2):
        for mt in range(2):
            A(f'ds_read_b128 {vr(24+20*w+8*mt)}, v12 offset:{2*w*HSTR + 1280*mt}\nds_read_b128 {vr(28+20*w+8*mt)}, v12 offset:{2*w*HSTR + 1280*mt + 16}')
        if not ZEARLY: A(f'ds_read_b64 {vr(40+20*w,2)}, v13 offset:{2*w*HSTR + 1600}')
    A('s_waitcnt lgkmcnt(0)')
    for j in range(0, 18, 2):
        A(f'v_pk_add_f32 {vr(24+j,2)}, {vr(24+j,2)}, {vr(44+j,2)}')
    for mt in range(2):
        b = 24 + 8 * mt
        for j in range(4):
            A(f'v_cvt_pk_bf16_f32 v{b+j}, v{b+2*j}, v{b+2*j+1}')
        for j in range(4):
            A(f'v_cndmask_b32 v{b+j}, 0, v{b+j}, {"s[60:61]" if j < 2 else "s[62:63]"}')
    A('v_cvt_pk_bf16_f32 v40, v40, v41\ns_nop 0')
    for mt in range(2):
        for t in range(5):
            A(f'v_mfma_f32_16x16x32_bf16 {vr(64+20*mt+4*t)}, {vr(24+8*mt)}, {vr(224+4*t)}, 0')
    A('s_mov_b64 exec, 0x3ff\nds_write_b32 v22, v40\ns_mov_b64 exec, -1\ns_nop 0' if not ZEARLY else 's_nop 3')
    for mt in range(2):
        if mt == 1: A('s_mov_b64 exec, 0xffff')
        for t in range(5):
            b = 64 + 20 * mt + 4 * t
            A(f'v_cvt_pk_bf16_f32 v{b}, v{b}, v{b+1}\nv_cvt_pk_bf16_f32 v{b+1}, v{b+2}, v{b+3}')
            A(f'ds_write_b64 v{17+mt}, {vr(b,2)} offset:{256*t}')
    A('s_mov_b64 exec, 1\nds_write_b32 v23, v245 offset:80\ns_mov_b64 exec, -1')
    lds_wait(A, 0, 80, 248, 2, sleep=0)
    for i in range(4):
        A(f'ds_read_b128 {vr(24+4*i)}, v21 offset:{1024*i}')
    for i in range(3):
        A(f's_waitcnt lgkmcnt({3-i})\nbuffer_store_dwordx4 {vr(24+4*i)}, v15, s[40:43], s{55+i} offen sc1')
    if ZEARLY: A('s_cmp_lg_u32 s51, 0\ns_cbranch_scc1 L_pa_no4')
    A('s_waitcnt lgkmcnt(0)\ns_mov_b64 exec, s[58:59]\nbuffer_store_dwordx4 v[36:39], v15, s[40:43], s54 offen sc1')
    A('L_pa_no4:')
    stamp(A, 29)
    if MACK: A('s_waitcnt vmcnt(0)')
    A('s_mov_b64 exec, 1\nds_write_b32 v23, v246 offset:80\ns_mov_b64 exec, -1')
    lds_wait(A, 0, 80, 248, 3, sleep=1)
    stamp(A, 30)


XCH = [0, 15360, 30720, WBASE + 4 * WSLOT]
def gen_awave(A):
    AC = 16; PQ = 96; MB = 176
    def a2(rt, t): return AC + 20 * rt + 4 * t
    def pq(kk, rt): return PQ + 16 * kk + 4 * rt
    A('s_load_dwordx2 s[8:9], s[0:1], 64')
    A(f'v_mov_b32 v0, {CT}')
    A('v_lshrrev_b32 v3, 4, v2\nv_and_b32 v4, 15, v2\nv_lshlrev_b32 v5, 4, v2\nv_lshlrev_b32 v6, 3, v2\nv_add_u32 v7, 4096, v5')
    A('s_cmp_lg_u32 s20, 0\ns_cbranch_scc1 L_a_g')
    A('s_and_b32 s69, s2, 7\ns_lshl_b32 s69, s69, 3\ns_bfe_u32 s48, s2, 0x30003\ns_add_u32 s69, s69, s48')
    A('s_lshr_b32 s18, s69, 2\ns_lshl_b32 s18, s18, 1\ns_and_b32 s48, s21, 1\ns_add_u32 s18, s18, s48\ns_and_b32 s19, s69, 3\ns_lshl_b32 s19, s19, 1\ns_lshr_b32 s48, s21, 1\ns_add_u32 s19, s19, s48')
    phase_a(A)
    A('s_branch L_a_sig')
    A('L_a_g:')
    get_epoch(A, 0, 8)
    set_flag(A, 74, 8)
    A('L_a_sig:')
    A(f'v_mov_b32 v8, 1\ns_lshl_b32 s48, s21, 2\nv_add_u32 v9, s48, v0\ns_mov_b64 exec, 1\nds_write_b32 v9, v8 offset:48\ns_mov_b64 exec, -1')
    stamp(A, 5)
    A('s_waitcnt lgkmcnt(0)')
    srd(A, 28, 8, 2621440)
    A('L_a_main:')
    A(f's_setprio {APRIO}')
    p2_ids(A)
    A(f's_lshr_b32 s48, s18, 1\ns_lshl_b32 s59, s48, {FSH}\ns_add_u32 s59, s59, {FG_OFF}')
    A('s_mul_i32 s48, s21, 5\ns_mul_i32 s54, s18, 68\ns_add_u32 s54, s54, s48\ns_add_u32 s54, s54, 48\ns_lshl_b32 s54, s54, 12')
    A(f's_mul_i32 s55, s19, 20\ns_add_u32 s55, s55, s48\ns_mul_i32 s55, s55, 5120\ns_add_u32 s55, s55, {M_OFF}')
    A(f's_lshl_b32 s53, s18, 8\ns_add_u32 s53, s53, {G_OFF}')
    A(f's_lshl_b32 s52, s19, 11\ns_lshl_b32 s49, s21, 9\ns_add_u32 s52, s52, s49\ns_add_u32 s52, s52, {ZB_OFF}')
    A(f's_lshl_b32 s58, s19, 11\ns_add_u32 s58, s58, {ZB_OFF}')
    A('v_lshlrev_b32 v14, 2, v4\nv_lshlrev_b32 v15, 7, v3')
    A('v_lshrrev_b32 v12, 2, v4\nv_cmp_eq_u32 s[60:61], v12, v3\nv_and_b32 v12, 1, v4\nv_cmp_eq_u32 s[62:63], 0, v12')
    A('s_and_b64 s[64:65], s[60:61], s[62:63]\ns_andn2_b64 s[66:67], s[60:61], s[62:63]')
    A(f's_mov_b32 s68, {EPS}\ns_mov_b32 s69, 0xffff0000')
    Q = []
    def ld(tag, txt):
        A(txt); Q.append(tag)
    def wait(tag):
        last = max(k for k, t in enumerate(Q) if t == tag)
        A(f's_waitcnt vmcnt({len(Q) - 1 - last})')
    def issueM(kk):
        A(f's_add_u32 s57, s55, {5120*kk}')
        for t in range(4):
            ld(('M', kk), f'buffer_load_dwordx4 {vr(mb(kk,t))}, v5, s[40:43], s57 offen offset:{1024*t} sc1')
        ld(('M', kk), f'buffer_load_dwordx4 {vr(mb(kk,4))}, v7, s[40:43], s57 offen sc1')
    ZR = 236
    ZIMG = CT + 1536
    mbuf = {0: MB, 1: MB + 20, 2: MB + 40, 3: MB, 4: MB + 20}
    def mb(kk, t): return mbuf[kk] + 4 * t
    for j in range(4):
        A(f's_add_u32 s48, s21, {j+1}\ns_and_b32 s{70+j}, s48, 3')
    A('s_cmp_lg_u32 s21, 2\ns_cbranch_scc1 L_a_nopollg')
    A('s_cmp_eq_u32 s20, 0\ns_cbranch_scc1 L_a_nopollg')
    lds_wait(A, 0, 48, 8, 1, sleep=2)
    gpoll(A, 59, 8)
    A('L_a_nopollg:')
    if FINEG:
        A('s_lshl_b32 s74, 3, s21\ns_lshr_b32 s74, s74, 1')
    else:
        A('s_mov_b32 s74, 15')
    lds_wait_mask(A, 0, 64, 8, 's74')
    stamp(A, 11)
    if COOP_P:
        if KVFAST: A('s_cmp_eq_u32 s20, 0\ns_cbranch_scc1 L_a_nocp')
        A('s_mul_i32 s49, s19, 2560\ns_add_u32 s48, s54, s49' if not P84 else 's_and_b32 s49, s19, 3\ns_mul_i32 s49, s49, 5120\ns_add_u32 s48, s54, s49')
        A('v_lshlrev_b32 v8, 7, v2\n' + ('s_mov_b64 exec, 0xfffff' if not P84 else 's_mov_b32 exec_hi, 0xff') + '\nbuffer_load_dword v9, v8, s[40:43], s48 offen sc1\ns_mov_b64 exec, -1\ns_waitcnt vmcnt(0)')
        A('L_a_nocp:')
    stamp(A, 21)
    for j in range(4):
        A(f's_lshl_b32 s48, s{70+j}, 10\ns_add_u32 s56, s54, s48')
        for kk in range(5 if j < NRC else 0):
            A(f'buffer_load_dwordx4 {vr(pq(kk,j))}, v5, s[40:43], s56 offen {LL}')
            if kk < 4: A('s_add_u32 s56, s56, 4096')
    stamp(A, 22)
    lds_wait_mask(A, 0, 64, 8, 8)
    stamp(A, 23)
    for j in range(4):
        A(f's_lshl_b32 s48, s{70+j}, 6\ns_add_u32 s56, s53, s48\nbuffer_load_dword v{10+j}, v14, s[40:43], s56 offen {LL}')
    A(f'v_lshrrev_b32 v8, 2, v2\nv_and_b32 v9, 3, v2\nv_mul_u32_u24 v24, 80, v8\nv_lshl_add_u32 v24, v9, 4, v24\nv_add_u32 v24, {ZIMG}, v24\nv_lshlrev_b32 v26, 7, v8\nv_lshl_add_u32 v26, v9, 4, v26')
    A(f's_mul_i32 s76, s19, 102400\ns_and_b32 s49, s18, {7 if P84 else 3}\ns_mul_i32 s49, s49, {12800 if P84 else 25600}\ns_add_u32 s76, s76, s49\ns_mul_i32 s49, s21, {3200 if P84 else 6400}\ns_add_u32 s76, s76, s49\ns_add_u32 s76, s76, {M_OFF}\nv_lshlrev_b32 v27, 7, v2')
    lds_wait(A, 0, 72, 8, 1, four=False, sleep=2)
    A('s_cmp_lg_u32 s21, 1\ns_cbranch_scc1 L_a_oth2')
    if KVFAST == 2: A('s_cmp_eq_u32 s20, 0\ns_cbranch_scc1 L_a_nogate')
    lds_wait(A, 0, 144, 16, 1, sleep=1)
    A('L_a_nogate:')
    stamp(A, 24)
    A('buffer_load_dwordx4 v[16:19], v26, s[40:43], s58 offen sc1\nbuffer_load_dwordx4 v[20:23], v26, s[40:43], s58 offen offset:16 sc1')
    if not ZEARLY: A('v_mov_b32 v8, 1\ns_mov_b64 exec, 1\nds_write_b32 v0, v8 offset:76\ns_mov_b64 exec, -1')
    A('L_a_oth2:')
    if not ZEARLY:
        lds_wait(A, 0, 76, 8, 1, four=False, sleep=2)
        A('s_mov_b32 exec_hi, 0x3ffff\nbuffer_load_dword v95, v27, s[40:43], s76 offen sc1\ns_mov_b32 exec_hi, -1')
    A('s_cmp_lg_u32 s21, 1\ns_cbranch_scc1 L_a_nopoll')
    A(f's_mov_b32 s96, 0\ns_waitcnt vmcnt({0 if ZEARLY else 1})\ns_branch L_a_zchk')
    A('L_a_zpoll:')
    A('buffer_load_dwordx4 v[16:19], v26, s[40:43], s58 offen sc1\nbuffer_load_dwordx4 v[20:23], v26, s[40:43], s58 offen offset:16 sc1\ns_waitcnt vmcnt(0)')
    A('L_a_zchk:')
    A('v_max3_u32 v9, v16, v18, v20\nv_max_u32 v9, v9, v22\nv_cmp_eq_u32 vcc, -1, v9')
    A('s_cbranch_vccz L_a_zok')
    A(f's_sleep {MSLEEP}\ns_add_u32 s96, s96, 1\ns_cmp_lt_u32 s96, {SPIN_MAX}\ns_cbranch_scc1 L_a_zpoll')
    A('L_a_zok:')
    if STAMP: A('v_writelane_b32 v1, s96, 36')
    A('ds_write_b128 v24, v[16:19]\nds_write_b128 v24, v[20:23] offset:16')
    A('v_mov_b32 v8, 1\ns_mov_b64 exec, 1\nds_write_b32 v0, v8 offset:68\ns_mov_b64 exec, -1')
    A('L_a_nopoll:')
    A(f's_mul_i32 s48, s21, 320\ns_add_u32 s48, s48, {ZIMG}\nv_mul_u32_u24 v15, 80, v3\nv_add_u32 v15, s48, v15')
    lds_wait(A, 0, 68, 8, 1, four=False, sleep=2)
    stamp(A, 10)
    for kk in range(5):
        A(f'ds_read_b128 {vr(ZR+4*kk)}, v15 offset:{16*kk}')
    if SPEC_M:
        A(f's_waitcnt vmcnt({0 if ZEARLY else 1})')
        if ZEARLY: A('v_mov_b32 v94, v27')
    elif COOP_M:
        A(f's_mul_i32 s48, s19, 102400\ns_and_b32 s49, s18, 3\ns_mul_i32 s49, s49, 25600\ns_add_u32 s48, s48, s49\ns_mul_i32 s49, s21, 6400\ns_add_u32 s48, s48, s49\ns_add_u32 s48, s48, {M_OFF}')
        A('v_lshlrev_b32 v8, 7, v2\ns_mov_b32 exec_hi, 0x3ffff\nbuffer_load_dword v9, v8, s[40:43], s48 offen sc1\ns_mov_b32 exec_hi, -1')
    else:
        issueM(0); issueM(1); issueM(2)
    A('s_waitcnt lgkmcnt(0)')
    for kk in range(5):
        for j in range(4):
            m = 's[66:67]' if (4 * kk + j) >= 10 else 's[64:65]'
            A(f'v_cndmask_b32 v{ZR+4*kk+j}, 0, v{ZR+4*kk+j}, {m}')
    den = [AC + 4 * rt for rt in range(4)]
    if not SPEC_M: A(f's_waitcnt vmcnt({1 if COOP_M else 15})')
    stamp(A, 17)
    A('s_nop 0')
    for kk in range(5):
        for rt in range(NRC):
            d = vr(den[rt])
            A(f'v_mfma_f32_16x16x32_bf16 {d}, {vr(ZR+4*kk)}, {vr(pq(kk,rt))}, {d if kk else 0}')
    A('s_nop 7')
    SC = ZR; T0 = ZR + 8
    for rt in range(NRC):
        A(f'v_add_f32 v{den[rt]}, s68, v{den[rt]}\nv_add_f32 v{den[rt]+1}, s68, v{den[rt]+1}')
    for rt in range(NRC):
        A(f'v_rcp_f32 v{den[rt]}, v{den[rt]}\nv_rcp_f32 v{den[rt]+1}, v{den[rt]+1}')
    A('s_nop 0')
    for rt in range(NRC):
        A(f'v_mul_f32 v{SC+2*rt}, v{10+rt}, v{den[rt]}\nv_mul_f32 v{SC+2*rt+1}, v{10+rt}, v{den[rt]+1}')
    def norm_ops(kk):
        L = []
        for rt in range(NRC):
            r = pq(kk, rt)
            for j in range(4):
                L += [f'v_lshlrev_b32 v{T0+2*j}, 16, v{r+j}', f'v_and_b32 v{T0+2*j+1}, s69, v{r+j}']
            for j in range(4):
                odd = 1 if (4 * kk + j) >= 10 else 0
                L += [f'v_mul_f32 v{T0+2*j}, v{SC+2*rt+odd}, v{T0+2*j}', f'v_mul_f32 v{T0+2*j+1}, v{SC+2*rt+odd}, v{T0+2*j+1}']
            for j in range(4):
                L += [f'v_cvt_pk_bf16_f32 v{r+j}, v{T0+2*j}, v{T0+2*j+1}']
        return L
    stamp(A, 20)
    if ZEARLY:
        for kk in range(NLEAD):
            if kk == ZC: A(('s_mov_b32 exec_hi, 0x3ffff' if not P84 else 's_mov_b64 exec, 0x1ffffff') + '\nbuffer_load_dword v95, v94, s[40:43], s76 offen sc1\ns_mov_b64 exec, -1')
            if kk == ZM0:
                A('s_waitcnt vmcnt(0)')
                issueM(0); issueM(1)
            for l in norm_ops(kk): A(l)
        issueM(2)
    else:
        A('s_waitcnt vmcnt(0)')
        issueM(0); issueM(1)
        for kk in range(NLEAD):
            for l in norm_ops(kk): A(l)
            if kk == 0: issueM(2)
    stamp(A, 6)
    A('v_sub_f32 v14, 1.0, v13')
    for j in range(3):
        A(f's_mul_i32 s48, s{70+j}, 15360\ns_cmp_eq_u32 s{70+j}, 3\ns_cselect_b32 s48, {XCH[3]}, s48\ns_add_u32 s48, s48, {(2-j)*5120}\nv_add_u32 v{10+j}, s48, v5')
    A(f's_lshl_b32 s48, s21, 11\ns_add_u32 s48, s48, {XCH[3] + 15360 - 3072}\nv_add_u32 v13, s48, v5')
    A(f's_mul_i32 s48, s21, 5120\ns_add_u32 s48, s48, {WBASE + 2*WSLOT}\nv_add_u32 v15, s48, v5\ns_lshl_b32 s48, s21, 2\nv_add_u32 v6, s48, v0')
    for kk in range(5):
        nxt = norm_ops(kk + NLEAD) if kk + NLEAD < 5 else []
        wait(('M', kk))
        A('s_mov_b32 s96, 0')
        A(f'L_a_mchk{kk}:')
        m0 = mb(kk, 0)
        A(f'v_max3_u32 v8, v{m0}, v{m0+2}, v{m0+4}')
        for k in (3, 5, 7):
            A(f'v_max3_u32 v8, v8, v{m0+2*k}, v{m0+2*k+2}')
        A(f'v_max_u32 v8, v8, v{m0+18}\nv_cmp_eq_u32 vcc, -1, v8')
        A(f's_cbranch_vccnz L_a_mre{kk}')
        A(f'L_a_mok{kk}:')
        stamp(A, 31 + kk)
        if kk == 4:
            lds_wait(A, 0, 96, PQ, 1, sleep=1)
        if NRC == 2:
            lds_wait(A, 6, 160, 8, kk + 1, four=False, sleep=1)
            A(f'ds_read_b128 {vr(pq(kk,2))}, v15 offset:{1024*kk}\nds_read_b128 {vr(pq(kk,3))}, v15 offset:{WSLOT + 1024*kk}')
        for rt in range(4):
            if NRC == 2 and rt == 2:
                A('s_waitcnt lgkmcnt(0)')
                if kk == 4:
                    A('v_mov_b32 v8, 1\ns_mov_b64 exec, 1\nds_write_b32 v6, v8 offset:176\ns_mov_b64 exec, -1')
            for t in range(5):
                d = vr(a2(rt, t))
                A(f'v_mfma_f32_16x16x32_bf16 {d}, {vr(mb(kk,t))}, {vr(pq(kk,rt))}, {d if kk else 0}')
                for _ in range(NRC):
                    if nxt: A(nxt.pop(0))
                if kk == 4 and rt >= 2:
                    A(f'ds_write_b128 v{10+rt-2}, {vr(a2(rt-2,t))} offset:{t*1024}')
        if kk < 2:
            issueM(kk + 3)
    stamp(A, 12)
    for t in range(5):
        A(f'ds_write_b128 v12, {vr(a2(2,t))} offset:{t*1024}')
    A(f's_lshl_b32 s48, s21, 8\nv_lshlrev_b32 v8, 2, v2\nv_add_u32 v8, s48, v8\nds_write_b32 v8, v14 offset:{46080}')
    for t in (3, 4):
        A(f'ds_write_b128 v13, {vr(a2(3,t))} offset:{t*1024}')
    OWN = a2(3, 0)
    A(f's_mul_i32 s50, s21, 15360\ns_cmp_eq_u32 s21, 3\ns_cselect_b32 s50, {XCH[3]}, s50')
    A(f's_mul_i32 s48, s21, {WSLOT}\ns_add_u32 s48, s48, {WBASE}\nv_add_u32 v8, s48, v5\nv_mov_b32 v15, v14\nv_add_u32 v7, s50, v5')
    A('s_lshl_b32 s48, s18, 6\ns_lshl_b32 s49, s21, 4\ns_add_u32 s48, s48, s49\nv_add_u32 v9, s48, v4\nv_mul_u32_u24 v9, 1280, v9\nv_lshl_add_u32 v9, v3, 3, v9\ns_mul_i32 s48, s19, 160')
    A('s_waitcnt lgkmcnt(0)')
    A('s_barrier')
    stamp(A, 13)
    for r in range(4):
        for t in range(3):
            A(f'ds_read_b128 {vr(PQ+12*r+4*t)}, v8 offset:{r*5120 + 1024*t}')
    A('s_waitcnt lgkmcnt(6)')
    for r in range(3):
        for t in range(3):
            A(f'ds_read_b128 {vr(AC+12*r+4*t)}, v7 offset:{r*5120 + 1024*t}')
    for k in range(0, 12, 2):
        A(f'v_pk_add_f32 {vr(PQ+k,2)}, {vr(PQ+k,2)}, {vr(PQ+12+k,2)}')
    A('s_waitcnt lgkmcnt(9)')
    for k in range(0, 12, 2):
        A(f'v_pk_add_f32 {vr(PQ+24+k,2)}, {vr(PQ+24+k,2)}, {vr(PQ+36+k,2)}')
    for k in range(0, 12, 2):
        A(f'v_pk_add_f32 {vr(PQ+k,2)}, {vr(PQ+k,2)}, {vr(PQ+24+k,2)}')
    for k in range(0, 12, 2):
        A(f'v_pk_fma_f32 {vr(OWN+k,2)}, {vr(PQ+k,2)}, v[14:15], {vr(OWN+k,2)}')
    for sl in range(3):
        A(f's_waitcnt lgkmcnt({6 - 3*sl})')
        for k in range(0, 12, 2):
            A(f'v_pk_add_f32 {vr(OWN+k,2)}, {vr(OWN+k,2)}, {vr(AC+12*sl+k,2)}')
    for t in range(3):
        b = OWN + 4 * t
        A(f'v_cvt_pk_bf16_f32 v{b}, v{b}, v{b+1}\nv_cvt_pk_bf16_f32 v{b+1}, v{b+2}, v{b+3}')
        A(f'buffer_store_dwordx2 {vr(b,2)}, v9, s[28:31], s48 offen offset:{32*t}')
    stamp(A, 14)
    finish(A)
    for kk in range(5):
        A(f'L_a_mre{kk}:')
        A('s_sleep 4')
        issueM(kk)
        A(f's_waitcnt vmcnt(0)\ns_add_u32 s96, s96, 1\ns_cmp_lt_u32 s96, {SPIN_MAX}\ns_cbranch_scc1 L_a_mchk{kk}')
        A(f's_branch L_a_mok{kk}')


def gen_loader(A):
    A.c('s67 = lw ; role constants: s68 strideA, s60 cA, s61 cB, s62 xB, s63 c4, s64 hi-mult')
    A('s_sub_u32 s67, s21, 4')
    A('s_mul_i32 s48, s19, 320\ns_add_u32 s48, s48, 1280\ns_and_b32 s57, s19, 1\ns_lshl_b32 s58, s57, 6\ns_add_u32 s58, s58, s48')
    A('s_xor_b32 s57, s57, 1\ns_lshl_b32 s57, s57, 8\ns_add_u32 s57, s57, s48\ns_add_u32 s59, s58, 1280')
    A('s_lshl_b32 s48, s22, 8\ns_lshl_b32 s49, s22, 7\ns_movk_i32 s56, 3072')
    A('s_cmp_eq_u32 s20, 0')
    A('s_cselect_b32 s68, 3840, s56\ns_cselect_b32 s60, s58, s48\ns_cselect_b32 s61, s59, s48\ns_cselect_b32 s62, 1, 0\ns_cselect_b32 s63, s57, s49\ns_cselect_b32 s64, 1280, 64')
    A(f's_cmp_lg_u32 s91, 0\ns_cselect_b32 s63, {OOB}, s63')
    A(f'v_mov_b32 v29, {OOB}\ns_lshl_b32 s75, s68, 5\ns_lshl_b32 s69, s18, 2\ns_add_u32 s69, s69, s19\nv_and_b32 v3, 31, v2\nv_lshrrev_b32 v4, 5, v2')
    A('s_movk_i32 s48, 3072\ns_cmp_eq_u32 s67, 1\ns_cselect_b32 s48, 3840, s48\ns_lshr_b32 s49, s48, 7\ns_lshl_b32 s85, s48, 6\ns_movk_i32 s56, 128')
    A('s_cmp_eq_u32 s67, 0\ns_cselect_b32 s48, 40960, s48\ns_cselect_b32 s49, 32, s49\ns_cselect_b32 s85, 128, s85\ns_cselect_b32 s56, 1280, s56\ns_mul_i32 s48, s48, s69')
    A('v_mul_u32_u24 v5, s56, v3\nv_mul_u32_u24 v6, s85, v4\nv_add3_u32 v5, v5, v6, s48\nv_cmp_gt_u32 vcc, s49, v3')
    st0 = sum(EV[m][0] << (4 * m) for m in EV)
    A(f's_lshl_b32 s56, s20, 2\ns_lshr_b32 s56, {hex(st0)}, s56\ns_and_b32 s56, s56, 15\nv_cndmask_b32 v30, v29, v5, vcc\ns_mul_i32 s56, s56, s85')
    A('s_mov_b32 s26, 2621440\ns_mov_b32 s27, 0x20000\ns_mov_b32 s31, 0x20000\ns_mov_b32 s35, 0x20000\ns_mov_b32 s39, 0x20000\ns_mov_b32 s83, 0x20000\ns_mov_b32 s48, 1966080\ns_mov_b32 s38, 2457600')
    A('s_cmp_eq_u32 s20, 0\ns_cselect_b32 s30, s38, s48\ns_mov_b32 s34, s30')
    A(f'v_mov_b32 v38, {CT}\nv_lshl_add_u32 v39, v2, 2, v38\nv_mov_b32 v44, 0\ns_lshl_b32 s71, s67, 8\nds_write_b32 v39, v44\nv_add_u32 v39, s71, v39\nds_write_b32 v39, v44 offset:256')
    A(f'v_and_b32 v39, 3, v2\nv_lshlrev_b32 v39, 8, v39\nv_add_u32 v39, {CT+256}, v39\ns_lshl_b32 s71, s67, 2\ns_add_u32 s71, s71, {CT}')
    A('s_cmp_eq_u32 s20, 0')
    A('s_waitcnt lgkmcnt(0)')
    A('s_mov_b32 s24, s4\ns_mov_b32 s25, s5\ns_mov_b32 s36, s6\ns_mov_b32 s37, s7')
    A('s_cselect_b32 s28, s6, s8\ns_cselect_b32 s29, s7, s9\ns_cselect_b32 s32, s6, s10\ns_cselect_b32 s33, s7, s11')
    A('s_cmp_eq_u32 s67, 2\ns_cselect_b32 s80, s8, s10\ns_cselect_b32 s81, s9, s11')
    A('s_cmp_eq_u32 s67, 1\ns_cselect_b32 s80, s6, s80\ns_cselect_b32 s81, s7, s81\ns_cselect_b32 s82, s38, s48')
    A('s_cmp_eq_u32 s67, 0\ns_cselect_b32 s80, s4, s80\ns_cselect_b32 s81, s5, s81\ns_cselect_b32 s82, s26, s82')
    stamp(A, 1)
    def issueW():
        for L in range(5):
            sr = 28 if L < 2 else (32 if L < 4 else 36)
            dma(A, f's_add_u32 m0, s77, {L*1024}', 10 + L, sr, 70 if L < 4 else 72)
        A('s_add_u32 s70, s70, s75\ns_add_u32 s72, s72, s76')
        A(f's_add_u32 s77, s77, {WSLOT}\ns_cmp_ge_u32 s77, {WBASE + NW*WSLOT}\ns_cselect_b32 s48, {NW*WSLOT}, 0\ns_sub_u32 s77, s77, s48')
    def issueX():
        for i in range(4):
            dma(A, f's_add_u32 m0, s78, {i*1024}', 16 + i, 24, 74)
        A('s_add_u32 s74, s74, 128')
        A(f's_add_u32 s78, s78, {XSLOT}\ns_cmp_ge_u32 s78, {NX*XSLOT}\ns_cselect_b32 s48, {NX*XSLOT}, 0\ns_sub_u32 s78, s78, s48')
    def flag():
        A('s_mov_b32 m0, s71\ns_lshl_b32 s48, s65, 2\ns_mov_b64 exec, 1\nbuffer_load_dword v44, s[8:11], s48 offen offset:0 lds\ns_mov_b64 exec, -1')
    A('s_mov_b32 s97, s56')
    if START2:
        A('s_lshr_b32 s56, s85, 6\ns_lshr_b32 s57, s85, 13\ns_cmp_eq_u32 s67, 0\ns_cselect_b32 s56, 10240, s56\ns_cselect_b32 s57, 64, s57\ns_mul_i32 s56, s56, s2')
        A(f's_cmp_ge_u32 s2, {START2}\ns_cselect_b32 s48, s67, 0\ns_cmp_lg_u32 s48, 0\ns_cselect_b32 s57, 0, s57')
        A('v_lshlrev_b32 v34, 7, v2\nv_cmp_gt_u32 vcc, s57, v2\ns_nop 1\nv_cndmask_b32 v34, v29, v34, vcc')
        A('buffer_load_dword v36, v34, s[80:83], s56 offen')
        A('s_cmp_lg_u32 s67, 0\ns_cbranch_scc1 L_nor0')
        A('s_add_u32 s56, s56, 8192\ns_mov_b64 exec, 0xffff\nbuffer_load_dword v37, v34, s[80:83], s56 offen\ns_mov_b64 exec, -1\nv_mov_b32 v30, v29')
        A('s_branch L_nor0')
    A('s_cmp_eq_u32 s20, 0\ns_cbranch_scc1 L_nor0' if not R0LATE else 's_cmp_lg_u32 s20, 1\ns_cbranch_scc1 L_nor0')
    if NOPF != 2: A('s_mov_b32 exec_hi, 0\nbuffer_load_dword v36, v30, s[80:83], s56 offen\ns_mov_b32 exec_hi, -1')
    A('L_nor0:')
    A('s_barrier')
    A('s_cmp_eq_u32 s55, 0\ns_cbranch_scc1 L_nogw0')
    srd(A, 44, 14, 1280)
    A('v_lshlrev_b32 v40, 1, v2')
    for j in range(10):
        A(f'buffer_load_ushort v{50+j}, v40, s[44:47], 0 offen offset:{128*j}')
    A('L_nogw0:')
    A('v_lshrrev_b32 v3, 3, v2\nv_and_b32 v4, 7, v2')
    A('s_lshl_b32 s48, s18, 7\ns_lshl_b32 s56, s67, 5\ns_add_u32 s48, s48, s56\nv_add_u32 v7, s48, v3\nv_mul_u32_u24 v7, 1280, v7')
    A('v_lshrrev_b32 v8, 4, v2\nv_xor_b32 v8, v8, v4\nv_lshl_add_u32 v16, v8, 4, v7')
    A('v_xor_b32 v8, 4, v8\nv_lshl_add_u32 v17, v8, 4, v7\nv_add_u32 v17, 10240, v17')
    A('v_add_u32 v18, 20480, v16\nv_add_u32 v19, 20480, v17')
    A('s_lshl_b32 s56, s67, 3\nv_add_u32 v5, s56, v3')
    A('s_and_b32 s56, s67, 1\ns_lshl_b32 s56, s56, 2\nv_and_b32 v6, 2, v3\nv_xor_b32 v6, v6, v4\nv_xor_b32 v6, s56, v6')
    A('v_mul_u32_u24 v7, s68, v5\nv_lshl_add_u32 v8, v6, 4, v7\nv_add_u32 v10, s60, v8\nv_add_u32 v11, 128, v10')
    A('v_xor_b32 v9, s62, v6\nv_lshl_add_u32 v8, v9, 4, v7\nv_add_u32 v12, s61, v8\nv_add_u32 v13, 128, v12')
    A('v_lshrrev_b32 v8, 2, v6\nv_and_b32 v9, s62, v8\nv_and_b32 v6, 3, v6\nv_xor_b32 v6, v6, v9\nv_mul_u32_u24 v7, 3840, v5')
    A('v_lshl_add_u32 v7, v6, 4, v7\nv_mul_u32_u24 v8, s64, v8\nv_add3_u32 v14, v7, v8, s63')
    A(f's_mov_b32 s76, {32*3840}\ns_mov_b32 s70, 0\ns_mov_b32 s72, 0\ns_mov_b32 s74, 0')
    A(f's_mul_i32 s77, s67, 5120\ns_add_u32 s77, s77, {WBASE}\ns_lshl_b32 s78, s67, 12')
    issueX(); issueW()
    if L2PF:
        A('s_cmp_eq_u32 s67, 2\ns_cselect_b32 s48, s60, s61\ns_cselect_b32 s4, s28, s32\ns_cselect_b32 s5, s29, s33\ns_mov_b32 s6, s30\ns_mov_b32 s49, s68\ns_movk_i32 s56, 128')
        A('s_cmp_eq_u32 s67, 1\ns_cselect_b32 s48, s63, s48\ns_cselect_b32 s4, s36, s4\ns_cselect_b32 s5, s37, s5\ns_cselect_b32 s6, s38, s6\ns_cselect_b32 s49, 3840, s49\ns_cselect_b32 s56, s64, s56')
        A('s_lshl_b32 s94, s49, 6\ns_lshl_b32 s57, s23, 3\nv_add_u32 v33, s57, v4\nv_bfe_u32 v34, v2, 4, 1\nv_lshl_add_u32 v33, v34, 6, v33\nv_mul_u32_u24 v33, s49, v33')
        A('v_bfe_u32 v34, v2, 3, 1\nv_mul_u32_u24 v34, s56, v34\nv_add3_u32 v33, v33, v34, s48\nv_cmp_gt_u32 vcc, 32, v2\ns_mov_b32 s7, 0x20000\ns_nop 0\nv_cndmask_b32 v33, v29, v33, vcc')
        A('s_cmp_lg_u32 s67, 0\ns_cbranch_scc1 L_l2x')
        A('s_mov_b32 s4, s24\ns_mov_b32 s5, s25\ns_mov_b32 s6, s26\ns_movk_i32 s94, 128\ns_lshl_b32 s48, s18, 7\ns_lshl_b32 s49, s20, 5\ns_add_u32 s48, s48, s49')
        A('v_and_b32 v33, 31, v2\nv_add_u32 v33, s48, v33\nv_mul_u32_u24 v33, 1280, v33\nv_lshrrev_b32 v34, 5, v2\nv_lshl_add_u32 v33, v34, 7, v33')
        A('L_l2x:')
        A(f's_mul_i32 s95, s94, {L2PF}\ns_lshl_b32 s94, s94, 1')
    A('s_load_dwordx2 s[86:87], s[0:1], 72')
    A('s_cmp_eq_u32 s55, 0\ns_cbranch_scc1 L_nogw')
    A('v_and_b32 v41, 3, v2\nv_lshlrev_b32 v41, 3, v41')
    A('v_bfe_u32 v40, v2, 2, 1\nv_lshl_add_u32 v41, v40, 9, v41')
    A('v_bfe_u32 v40, v2, 3, 2\nv_lshl_add_u32 v41, v40, 5, v41')
    A(f'v_bfe_u32 v40, v2, 5, 1\nv_mul_u32_u24 v40, {GWS}, v40\nv_add_u32 v41, v40, v41')
    A(f'v_add_u32 v41, {GWBASE}, v41')
    A('s_waitcnt vmcnt(9)')
    for j in range(10):
        A(f'v_lshl_or_b32 v{80+2*j}, v{50+j}, 16, v{50+j}\nv_mov_b32 v{81+2*j}, v{80+2*j}')
        A(f'ds_write_b64 v41, v[{80+2*j}:{81+2*j}] offset:{2*GWS*j}')
    A('L_nogw:')
    srd(A, 40, 16, WS_USED)
    srd(A, 44, 12, 1966080)
    A('s_waitcnt lgkmcnt(0)')
    A('s_lshl_b32 s48, s2, 2\ns_add_u32 s48, s48, s67\ns_cmp_lg_u32 s48, 0\ns_cbranch_scc1 L_noep')
    A('s_memrealtime s[88:89]\ns_waitcnt lgkmcnt(0)\ns_or_b32 s88, s88, 1\nv_mov_b32 v42, s88\nv_mov_b32 v43, s89')
    A('s_mov_b64 exec, 1\nglobal_store_dwordx2 v44, v[42:43], s[86:87] sc1\ns_mov_b64 exec, -1')
    A('L_noep:')
    A('v_lshlrev_b32 v5, 4, v2\nv_lshlrev_b32 v6, 3, v2\nv_add_u32 v7, 4096, v5')
    assert RPORD.index(10) >= 8
    tab = sum(RPORD.index(t) << (4 * t) for t in range(12))
    A(f's_mov_b32 s56, {hex(tab & 0xffffffff)}\ns_mov_b32 s57, {hex(tab >> 32)}\ns_lshl_b32 s48, s22, 2\ns_lshr_b64 s[56:57], s[56:57], s48\ns_and_b32 s48, s56, 15\ns_lshl_b32 s48, s48, 4\ns_add_u32 s48, s48, s18')
    A('s_sub_u32 s60, s48, 120\ns_lshl_b32 s60, s60, 2\ns_add_u32 s60, s60, s67\ns_lshl_b32 s92, s48, 1\ns_add_u32 s92, s92, s67')
    A('s_cmp_lt_u32 s67, 2\ns_cselect_b32 s92, s92, 999\ns_cmp_lt_u32 s92, 240\ns_cselect_b32 s64, 1, 0\ns_cmp_lt_u32 s60, 256\ns_cselect_b32 s64, 2, s64')
    A('s_mul_i32 s62, s92, 52429\ns_lshr_b32 s62, s62, 18\ns_mul_i32 s63, s62, 5\ns_sub_u32 s63, s92, s63')
    A(f's_mul_i32 s79, s62, {32*1280}\ns_lshl_b32 s56, s63, 8\ns_add_u32 s79, s79, s56\ns_lshl_b32 s63, s63, 3\ns_mul_i32 s62, s62, 5')
    A(f's_lshl_b32 s92, s92, 3\ns_add_u32 s92, s92, {FW_OFF}\ns_lshl_b32 s93, s67, 12\ns_add_u32 s93, s93, {RPK}')
    A(f's_lshl_b32 s48, s60, 3\ns_add_u32 s48, s48, {FP_OFF}\ns_cmp_eq_u32 s64, 2\ns_cselect_b32 s92, s48, s92')
    A('v_and_b32 v8, 2, v3\nv_xor_b32 v8, v8, v4\nv_mul_u32_u24 v9, 1280, v3\nv_lshl_add_u32 v20, v8, 4, v9')
    A('v_xor_b32 v8, 4, v8\nv_lshl_add_u32 v21, v8, 4, v9\nv_add_u32 v21, 10240, v21\nv_add_u32 v22, 20480, v20\nv_add_u32 v23, 20480, v21')
    A('v_lshrrev_b32 v8, 2, v2\nv_and_b32 v9, 3, v2\nv_lshlrev_b32 v8, 7, v8\nv_lshl_add_u32 v8, v9, 3, v8\nv_add_u32 v8, s93, v8')
    A('v_bfe_u32 v9, v2, 3, 1\nv_lshrrev_b32 v28, 5, v2\nv_lshl_add_u32 v9, v28, 1, v9')
    for tl in range(4):
        A(f'v_xor_b32 v28, {tl}, v9\nv_lshl_add_u32 v{24+tl}, v28, 5, v8')
    A('v_mul_u32_u24 v31, 1280, v2')
    if 'NODUTY' in EXP: A('s_mov_b32 s64, 0')
    pk = {m: sum(((t | (b0 << 4)) << (8 * k)) for k, (t, b0) in enumerate(EV[m][1])) | (0xFF << (8 * len(EV[m][1]))) for m in EV}
    A(f's_mov_b32 s84, -1\ns_cmp_eq_u32 s20, 1\ns_cselect_b32 s84, {hex(pk[1])}, s84\ns_cmp_eq_u32 s20, 2\ns_cselect_b32 s84, {hex(pk[2])}, s84\ns_cmp_eq_u32 s20, 3\ns_cselect_b32 s84, {hex(pk[3])}, s84\ns_and_b32 s58, s84, 15')
    AC = 24; WR = 104; HBUF = 224
    def a2(rt, t): return AC + 20 * rt + 4 * t
    regset = {0: 0, 1: 1, 2: 2, 9: 3, 10: 4, 11: 5}
    lds_unit = {3: WBASE, 4: WBASE + WSLOT, 5: WBASE + 2*WSLOT, 6: WBASE + 3*WSLOT, 7: 20480, 8: WBASE + 4*WSLOT}
    def kidx(i, dst):
        A(f's_add_u32 s{dst}, s23, {i}\ns_cmp_ge_u32 s{dst}, 12\ns_cselect_b32 s48, 12, 0\ns_sub_u32 s{dst}, s{dst}, s48')
    def w2reg(i):
        kidx(i, 56)
        A('s_mul_i32 s56, s56, 5120\ns_add_u32 s56, s56, s50')
        for t in range(5):
            b = WR + 20 * regset[i] + 4 * t
            if t == 0: A(f's_waitcnt vmcnt({STG_THR})')
            A(f'buffer_load_dwordx4 {vr(b)}, v{5 if t < 4 else 7}, s[40:43], s56 offen offset:{1024*(t&3)} sc1')
    def w2lds(i):
        kidx(i, 56)
        A('s_mul_i32 s56, s56, 5120\ns_add_u32 s56, s56, s50')
        A(f's_add_u32 m0, s52, {lds_unit[i]}\ns_waitcnt vmcnt({STG_THR})')
        for t in range(4):
            A(f'buffer_load_dwordx4 v5, s[40:43], s56 offen offset:{1024*t} sc1 lds')
        A(f's_add_u32 m0, s52, {lds_unit[i] + 4096}\ns_nop 0')
        A('buffer_load_dwordx4 v7, s[40:43], s56 offen sc1 lds')
    def trace():
        if STAMP and 'quiet' not in EXP:
            A('s_memtime s[98:99]\ns_add_u32 s48, s65, 38\ns_mov_b32 m0, s48\ns_waitcnt lgkmcnt(0)\nv_writelane_b32 v1, s98, m0')
    def ensure_free():
        if 'nofree' in EXP: return
        l = A.label('L_free')
        A(f's_sub_u32 s57, s65, 4\ns_cmp_ge_i32 s66, s57\ns_cbranch_scc1 {l}')
        tbeg(A)
        lds_wait(A, 39, 0, 48, 's57', four='free', sdst=66, sleep=LSLEEP)
        tend(A, 100)
        A(f'{l}:')
    stamp(A, 2)
    table_srd(A, 8)
    A('s_mov_b32 s65, 1\ns_mov_b32 s66, 0')
    flag()
    if R0LATE:
        A('s_cmp_lt_u32 s20, 2\ns_cbranch_scc1 L_nor1')
        A('s_mov_b32 exec_hi, 0\nbuffer_load_dword v36, v30, s[80:83], s97 offen\ns_mov_b32 exec_hi, -1')
        A('L_nor1:')
    A('s_branch L_ld_odd')
    A('.p2align 3')
    A('L_ld_loop:')
    ensure_free()
    if L2PF:
        A(f's_bitcmp1_b32 s65, 1\ns_cbranch_scc0 L_nol2\ns_cmp_gt_u32 s65, {2 + 4 * ((9 - L2PF) // 2)}\ns_cbranch_scc1 L_nol2')
        A('buffer_load_dword v35, v33, s[4:7], s95 offen\ns_add_u32 s95, s95, s94')
        A('L_nol2:')
    issueX(); issueW()
    trace()
    A('s_add_u32 s65, s65, 1')
    flag()
    A('L_ld_odd:')
    ensure_free()
    issueW()
    trace()
    A('s_lshr_b32 s49, s65, 1\ns_add_u32 s65, s65, 1')
    flag()
    A('s_cmp_eq_u32 s49, s58\ns_cbranch_scc1 L_ev_round')
    A('L_ev_r1:')
    A('s_cmp_lt_u32 s65, 20\ns_cbranch_scc1 L_ld_loop')
    A('s_branch L_ld_done')
    A('L_ev_round:')
    A('s_bfe_u32 s59, s84, 0x40004\ns_lshr_b32 s84, s84, 8\ns_and_b32 s58, s84, 15')
    A('s_cmp_gt_u32 s59, 9\ns_cbranch_scc1 L_ev_flag')
    if NOPF:
        A('s_cmp_eq_u32 s64, 0\ns_cbranch_scc1 L_ev_r1')
    elif EVW & 1:
        lds_wait(A, 38, 0, 48, 's65')
    if NOPF:
        pass
    else:
        A('s_mul_i32 s56, s85, s59\nbuffer_load_dword v36, v30, s[80:83], s56 offen')
    if THIRD and not NOPF:
        A(f's_cmp_lg_u32 s59, {THIRD}\ns_cbranch_scc1 L_ev_no3')
        A('s_mul_i32 s56, s85, 9\ns_mov_b32 exec_hi, 0\nbuffer_load_dword v37, v30, s[80:83], s56 offen\ns_mov_b32 exec_hi, -1')
        A('L_ev_no3:')
    A('s_cmp_eq_u32 s64, 0\ns_cbranch_scc1 L_ev_rw')
    A('global_load_dwordx2 v[42:43], v44, s[86:87] sc1')
    A('s_cmp_eq_u32 s64, 2\ns_cbranch_scc1 L_ev_poison')
    A('s_mov_b32 exec_hi, 0\nbuffer_load_dword v37, v31, s[44:47], s79 offen offset:128\ns_mov_b32 exec_hi, -1')
    for e in range(2):
        for g in range(4):
            dma(A, f's_add_u32 m0, s93, {g*1024}', 20 + g, 44, 79)
        A('s_add_u32 s79, s79, 128')
        A('s_waitcnt vmcnt(0)')
        for tl in range(4):
            A(f'ds_read_b64_tr_b16 {vr(64+16*e+4*tl,2)}, v{24+tl}\nds_read_b64_tr_b16 {vr(66+16*e+4*tl,2)}, v{24+tl} offset:2048')
        A('s_waitcnt lgkmcnt(0)')
    if not DEFER:
        for tl in range(8):
            A(f's_add_u32 s56, s63, {tl}\ns_mul_i32 s57, s56, 52429\ns_lshr_b32 s57, s57, 18\ns_mul_i32 s57, s57, 235\ns_add_u32 s57, s57, s56\ns_add_u32 s57, s57, s62\ns_lshl_b32 s57, s57, 10\ns_add_u32 s57, s57, {W2_OFF}')
            A(f'buffer_store_dwordx4 {vr(64+4*tl)}, v5, s[40:43], s57 offen sc1')
    A('s_branch L_ev_r1')
    A('L_ev_poison:')
    A('v_mov_b32 v64, -1\nv_mov_b32 v65, -1\nv_mov_b32 v66, -1\nv_mov_b32 v67, -1')
    A(f's_mul_i32 s56, s60, 3200\ns_add_u32 s56, s56, {M_OFF}\ns_lshl_b32 s57, s60, 7\ns_add_u32 s57, s57, {ZB_OFF}\ns_cmp_lt_u32 s60, 128\ns_cselect_b32 s57, s57, {OOB}')
    for k in range(3):
        A(f'buffer_store_dwordx4 v[64:67], v5, s[40:43], s56 offen offset:{1024*k} sc1')
    A('s_mov_b64 exec, 0xff\nbuffer_store_dwordx4 v[64:67], v5, s[40:43], s56 offen offset:3072 sc1')
    A('buffer_store_dwordx4 v[64:67], v5, s[40:43], s57 offen sc1\ns_mov_b64 exec, -1')
    A('L_ev_rw:')
    if EVW & 2: A('s_waitcnt vmcnt(0)')
    A('s_branch L_ev_r1')
    A('L_ev_flag:')
    A('s_cmp_eq_u32 s64, 0\ns_cbranch_scc1 L_ev_r1')
    if DEFER:
        A('s_cmp_eq_u32 s59, 15\ns_cbranch_scc1 L_ev_fl2\ns_cmp_lg_u32 s64, 1\ns_cbranch_scc1 L_ev_r1')
        for tl in range(8):
            A(f's_add_u32 s56, s63, {tl}\ns_mul_i32 s57, s56, 52429\ns_lshr_b32 s57, s57, 18\ns_mul_i32 s57, s57, 235\ns_add_u32 s57, s57, s56\ns_add_u32 s57, s57, s62\ns_lshl_b32 s57, s57, 10\ns_add_u32 s57, s57, {W2_OFF}')
            A(f'buffer_store_dwordx4 {vr(64+4*tl)}, v5, s[40:43], s57 offen sc1')
        A('s_branch L_ev_r1')
        A('L_ev_fl2:')
    l0 = A.label('L_ep'); l1 = A.label('L_epok')
    A('s_mov_b32 s90, 0\ns_waitcnt vmcnt(15)')
    A(f'{l0}:')
    A('v_readfirstlane_b32 s88, v42')
    A(f's_cmp_lg_u32 s88, 0\ns_cbranch_scc1 {l1}')
    A('s_sleep 4\nglobal_load_dwordx2 v[42:43], v44, s[86:87] sc1\ns_waitcnt vmcnt(0)')
    A(f's_add_u32 s90, s90, 1\ns_cmp_lt_u32 s90, {SPIN_MAX}\ns_cbranch_scc1 {l0}')
    A(f'{l1}:')
    A('s_mov_b64 exec, 1\nbuffer_store_dwordx2 v[42:43], v44, s[40:43], s92 offen sc1\ns_mov_b64 exec, -1')
    A('s_branch L_ev_r1')
    A('L_ld_done:')
    trace()
    if 'p1' in EXP: finish(A)
    A('s_cmp_lg_u32 s20, 0\ns_cbranch_scc1 L_nowo')
    if PAX:
        A('s_and_b32 s69, s2, 7\ns_lshl_b32 s69, s69, 3\ns_bfe_u32 s48, s2, 0x30003\ns_add_u32 s69, s69, s48')
    A('s_load_dwordx2 s[24:25], s[0:1], 16\ns_mov_b32 s26, 819200\ns_mov_b32 s27, 0x20000')
    A('s_lshr_b32 s48, s69, 2\ns_lshl_b32 s48, s48, 1\ns_and_b32 s49, s67, 1\ns_add_u32 s48, s48, s49\ns_mul_i32 s48, s48, 25600')
    A('s_and_b32 s49, s69, 3\ns_lshl_b32 s49, s49, 1\ns_lshr_b32 s56, s67, 1\ns_add_u32 s49, s49, s56\ns_mul_i32 s49, s49, 160\ns_add_u32 s48, s48, s49')
    A('v_lshrrev_b32 v8, 1, v2\nv_mul_u32_u24 v8, 1280, v8\nv_and_b32 v9, 1, v2\nv_mul_u32_u24 v9, 156, v9\nv_add_u32 v8, v8, v9')
    A('s_mov_b32 s73, s48\ns_waitcnt lgkmcnt(0)\nbuffer_load_dword v36, v8, s[24:27], s48 offen')
    A('L_nowo:')
    def bsetup():
        p2_ids(A)
        A(('s_mul_i32 s23, s19, 3\ns_lshr_b32 s23, s23, 1\ns_and_b32 s48, s18, 3' if not P84 else 's_bfe_u32 s23, s18, 0x20001\ns_and_b32 s48, s18, 1\ns_lshl_b32 s48, s48, 2\ns_add_u32 s23, s23, s48\ns_mul_i32 s23, s23, 3\ns_lshr_b32 s23, s23, 1\ns_and_b32 s48, s19, 3') + '\ns_mul_i32 s48, s48, 3\ns_add_u32 s23, s23, s48\ns_cmp_ge_u32 s23, 12\ns_cselect_b32 s48, 12, 0\ns_sub_u32 s23, s23, s48')
        if XROT: A(f's_and_b32 s48, s2, 7\ns_mul_i32 s48, s48, {XROT}\ns_lshr_b32 s48, s48, 3\ns_add_u32 s23, s23, s48\ns_cmp_ge_u32 s23, 12\ns_cselect_b32 s48, 12, 0\ns_sub_u32 s23, s23, s48')
        A(f's_mul_i32 s48, s67, 12\ns_mul_i32 s50, s19, 48\ns_add_u32 s50, s50, s48\ns_mul_i32 s50, s50, 5120\ns_add_u32 s50, s50, {W2_OFF}')
        A('s_mul_i32 s51, s18, 68\ns_add_u32 s51, s51, s48\ns_lshl_b32 s51, s51, 12')
        A('s_mul_i32 s52, s67, 5120')
    A(f'v_mov_b32 v0, {CT}')
    bsetup()
    A(f's_mul_i32 s53, s67, 480\ns_mul_i32 s48, s19, 5\ns_lshr_b32 s48, s48, 2\ns_add_u32 s53, s53, {FW_OFF}')
    A('v_lshrrev_b32 v8, 1, v2\nv_mul_u32_u24 v8, 40, v8\nv_and_b32 v9, 1, v2\nv_add_u32 v9, s48, v9\nv_lshrrev_b32 v9, 1, v9\nv_lshl_add_u32 v28, v9, 3, v8')
    A(f's_lshr_b32 s48, s18, 1\ns_lshl_b32 s54, s48, {FSH}\ns_add_u32 s54, s54, {FG_OFF}')
    A(f's_mov_b32 s55, {FP_OFF}\ns_mov_b32 s90, 0\nv_cmp_gt_u32 s[58:59], 24, v2')
    A('L_b_chk:')
    A('global_load_dwordx2 v[42:43], v44, s[86:87] sc1')
    A('s_mov_b64 exec, s[58:59]\nbuffer_load_dwordx2 v[46:47], v28, s[40:43], s53 offen sc1\ns_mov_b64 exec, -1')
    A('s_cmp_lg_u32 s67, 1\ns_cbranch_scc1 L_b_chk1')
    A('buffer_load_dwordx4 v[48:51], v5, s[40:43], s55 offen sc1\nbuffer_load_dwordx4 v[52:55], v5, s[40:43], s55 offen offset:1024 sc1')
    A('L_b_chk1:')
    A('s_waitcnt vmcnt(0)')
    A('v_readfirstlane_b32 s88, v42\nv_readfirstlane_b32 s89, v43\ns_nop 1')
    A('v_cmp_ne_u64 s[60:61], s[88:89], v[46:47]\ns_and_b64 s[60:61], s[60:61], s[58:59]')
    A('s_cmp_lg_u32 s67, 1\ns_cbranch_scc1 L_b_chk2')
    A('v_cmp_ne_u64 s[62:63], s[88:89], v[48:49]\ns_or_b64 s[60:61], s[60:61], s[62:63]\nv_cmp_ne_u64 s[62:63], s[88:89], v[50:51]\ns_or_b64 s[60:61], s[60:61], s[62:63]')
    A('v_cmp_ne_u64 s[62:63], s[88:89], v[52:53]\ns_or_b64 s[60:61], s[60:61], s[62:63]\nv_cmp_ne_u64 s[62:63], s[88:89], v[54:55]\ns_or_b64 s[60:61], s[60:61], s[62:63]')
    A('L_b_chk2:')
    A('s_cmp_eq_u32 s88, 0\ns_cselect_b32 s60, 1, s60\ns_cmp_eq_u64 s[60:61], 0\ns_cbranch_scc1 L_b_chkok')
    if 'NODUTY' in EXP: A('s_branch L_b_chkok')
    A(f's_sleep 24\ns_add_u32 s90, s90, 1\ns_cmp_lt_u32 s90, {SPIN_MAX}\ns_cbranch_scc1 L_b_chk')
    A('L_b_chkok:')
    A('s_cmp_lg_u32 s67, 1\ns_cbranch_scc1 L_b_nofp')
    A('v_mov_b32 v46, 1\ns_mov_b64 exec, 1\nds_write_b64 v0, v[42:43] offset:32\nds_write_b32 v0, v46 offset:72\ns_mov_b64 exec, -1')
    A('L_b_nofp:')
    stamp(A, 37)
    rest = []
    A('s_cmp_eq_u32 s20, 0\ns_cbranch_scc1 L_b_kv')
    for i in (0, 1, 2, 9, 10, 11):
        w2reg(i)
    stamp(A, 22)
    lds_wait(A, 39, 0, 48, 20, four='free', sleep=LSLEEP)
    for k, i in enumerate((3, 4, 5, 6, 7, 8)):
        if k == GEARLY:
            lds_wait(A, 38, 48, 48, 1, sleep=4)
            stamp(A, 9)
        w2lds(i); stamp(A, 16 + k)
    A('s_branch L_b_common')
    A('L_b_kv:')
    order = [3, 4, 5, 7, 6, 8, 0, 1, 2, 9, 10, 11]
    need = {3: 16, 4: 17, 5: 18}
    def stage(i):
        (w2reg if i in regset else w2lds)(i)
    for i in order[:WOAT]:
        lds_wait(A, 39, 0, 48, need[i], four='free', sleep=LSLEEP)
        w2lds(i)
    lds_wait(A, 39, 0, 48, 20, four='free', sleep=LSLEEP)
    for i in range(5):
        A(f'v_add_u32 v12, {64*i}, v2\nv_mul_u32_u24 v13, 6554, v12\nv_lshrrev_b32 v13, 16, v13\nv_mul_u32_u24 v14, 10, v13\nv_sub_u32 v14, v12, v14')
        A(f'v_mul_u32_u24 v13, 1280, v13\nv_lshl_add_u32 v13, v14, 4, v13\ns_add_u32 m0, s52, {1024*i}\ns_nop 0')
        A('buffer_load_dwordx4 v13, s[24:27], s73 offen lds')
    A(f's_lshl_b32 s48, s67, 2\ns_add_u32 m0, s48, {CT + 112}\ns_mov_b64 exec, 1\nbuffer_load_dword v44, s[8:11], 4 offen lds\ns_mov_b64 exec, -1')
    stamp(A, 9)
    for i in order[WOAT:KVN]:
        stage(i)
    stamp(A, 8)
    if KVN < 12:
        lds_wait(A, 0, 192, 48, 1, sleep=4)
        for i in order[KVN:]:
            stage(i)
    stamp(A, 10)
    lds_wait(A, 0, 80, 48, KVG, sleep=4)
    A('s_cmp_lg_u32 s67, 3\ns_cbranch_scc1 L_b_common')
    gpoll(A, 54, 46)
    A('L_b_common:')
    hbufs = [HBUF, HBUF + 16, WR + 40]
    def hb(i, rt):
        k = i if i < 2 else (0 if i == 2 else (i - 3 + 1) % 3 if False else None)
        return None
    hmap = {0: 0, 1: 1, 2: 0, 3: 1}
    for i in range(4, 12):
        hmap[i] = [0, 2, 1][(i - 4) % 3]
    def hb(i, rt): return hbufs[hmap[i]] + 4 * rt
    A('v_add_u32 v8, s52, v5')
    A(f'v_add_u32 v9, {WBASE + 2*WSLOT}, v8')
    def rdW(i, rs):
        u = lds_unit[i]
        va, off = (8, u) if u < WBASE + WSLOT - 5120 else ((9, u - (WBASE + 2*WSLOT)) if u >= WBASE + 2*WSLOT else (12, 0))
        for t in range(5):
            A(f'ds_read_b128 {vr(WR+20*rs+4*t)}, v{va} offset:{off + 1024*t}')
    A(f'v_add_u32 v12, {WBASE + WSLOT}, v8')
    A('s_load_dwordx2 s[28:29], s[0:1], 64\ns_mov_b32 s30, 2621440\ns_mov_b32 s31, 0x20000')
    A(f's_lshl_b32 s48, s67, 2\nv_add_u32 v13, s48, v0\nv_mov_b32 v14, 1\ns_mul_i32 s48, s67, {WSLOT}\ns_add_u32 s48, s48, {WBASE}\nv_add_u32 v15, s48, v5')
    A(f's_mul_i32 s48, s67, 15360\ns_cmp_eq_u32 s67, 3\ns_cselect_b32 s48, {XCH[3]}, s48\nv_add_u32 v16, s48, v5')
    A(f's_lshl_b32 s48, s67, 11\ns_add_u32 s48, s48, {XCH[3] + 15360}\nv_add_u32 v17, s48, v5\ns_lshl_b32 s48, s67, 8\nv_lshlrev_b32 v19, 2, v2\nv_add_u32 v19, s48, v19')
    A('s_lshl_b32 s48, s18, 6\ns_lshl_b32 s49, s67, 4\ns_add_u32 s48, s48, s49\nv_and_b32 v20, 15, v2\nv_add_u32 v20, s48, v20\nv_mul_u32_u24 v20, 1280, v20\nv_lshrrev_b32 v21, 4, v2\nv_lshl_add_u32 v20, v21, 3, v20\ns_mul_i32 s55, s19, 160')
    A('s_mul_i32 s48, s67, 5\ns_mul_i32 s57, s18, 68\ns_add_u32 s57, s57, s48\ns_add_u32 s57, s57, 48\ns_lshl_b32 s57, s57, 12')
    A(f's_lshl_b32 s58, s18, 8\ns_add_u32 s58, s58, {G_OFF}\nv_and_b32 v3, 15, v2\nv_lshlrev_b32 v11, 2, v3')
    A(f's_mul_i32 s48, s67, 320\ns_add_u32 s48, s48, {CT + 1536}\nv_mul_u32_u24 v4, 80, v21\nv_add_u32 v4, s48, v4')
    A('v_lshrrev_b32 v10, 2, v3\nv_cmp_eq_u32 s[64:65], v10, v21\nv_and_b32 v10, 1, v3\nv_cmp_eq_u32 s[62:63], 0, v10')
    A(f's_and_b64 s[60:61], s[64:65], s[62:63]\ns_andn2_b64 s[62:63], s[64:65], s[62:63]\ns_mov_b32 s64, {EPS}\ns_mov_b32 s65, 0xffff0000')
    A(f's_setprio {BPRIO}')
    stamp(A, 3)
    if GPOLL == 'B':
        A('s_cmp_lg_u32 s67, 3\ns_cbranch_scc1 L_b_nopoll')
        poll(A, 54, 48, 10, 6)
        A('v_mov_b32 v10, 1\ns_mov_b64 exec, 1\nds_write_b32 v0, v10 offset:64\ns_mov_b64 exec, -1')
        A('L_b_nopoll:')
    A('s_lshl_b32 s59, 1, s67' if FINEG else 's_mov_b32 s59, 15')
    lds_wait_mask(A, 0, 64, 10, 's59')
    A('s_waitcnt vmcnt(0)')
    stamp(A, 4)
    Q = []
    def wait(tag):
        last = max(k for k, t in enumerate(Q) if t == tag)
        A(f's_waitcnt vmcnt({min(63, len(Q) - 1 - last)})')
    def issueH(i):
        kidx(i, 56)
        A('s_lshl_b32 s56, s56, 12\ns_add_u32 s56, s56, s51')
        for rt in range(4):
            A(f'buffer_load_dwordx4 {vr(hb(i,rt))}, v5, s[40:43], s56 offen offset:{1024*rt} {LL}')
            Q.append(('H', i))
    assert not rest[KPRE:]
    issueH(0); issueH(1)
    nH = 2
    dump = [(8, WBASE), (12, 0), (9, 0), (9, WSLOT)]
    def haddr(i, dst):
        return [f's_add_u32 s{dst}, s23, {i}', f's_cmp_ge_u32 s{dst}, 12', 's_cselect_b32 s48, 12, 0', f's_sub_u32 s{dst}, s{dst}, s48',
                f's_lshl_b32 s{dst}, s{dst}, 12', f's_add_u32 s{dst}, s{dst}, s51']
    def rdW_l(i, rs):
        u = lds_unit[i]
        va, off = (8, u) if u < WBASE + WSLOT - 5120 else ((9, u - (WBASE + 2*WSLOT)) if u >= WBASE + 2*WSLOT else (12, 0))
        return [f'ds_read_b128 {vr(WR+20*rs+4*t)}, v{va} offset:{off + 1024*t}' for t in range(5)]
    pendW = []
    for i in range(12):
        rs = regset[i] if i in regset else (i - 3) % 2
        gaps = {k: [] for k in range(20)}
        for k, l in zip((1, 3, 6, 8, 11), pendW): gaps[k].append(l)
        reuse = nH if nH < 12 and hmap[nH] == hmap[i] else None
        extra = None
        if reuse is not None:
            for k, l in enumerate(haddr(reuse, 56)): gaps[k // 2].append(l)
            nH += 1
        if nH < 12 and hmap[nH] == 2 and i == 3:
            pass
        first = Q.index(('H', i))
        for rt in range(4):
            A(f's_waitcnt vmcnt({len(Q) - 1 - (first + rt)})')
            if rt == 0:
                if i == 0: stamp(A, 5)
                if BST: stamp(A, 25 + i)
                if i not in regset:
                    A('s_waitcnt lgkmcnt(0)')
                if i == PQ_AT:
                    A('s_mov_b64 exec, 1\nds_write_b32 v13, v14 offset:144\ns_mov_b64 exec, -1')
                if i == 8:
                    A('s_mov_b64 exec, 1\nds_write_b32 v13, v14 offset:96\ns_mov_b64 exec, -1')
            for t in range(5):
                d = vr(a2(rt, t))
                A(f'v_mfma_f32_16x16x32_bf16 {d}, {vr(WR+20*rs+4*t)}, {vr(hb(i,rt))}, {d if i else 0}')
                for l in gaps[5 * rt + t]: A(l)
                if i == 11 and rt >= 2:
                    A(f'ds_write_b128 v{dump[rt-2][0]}, {vr(a2(rt-2,t))} offset:{dump[rt-2][1] + t*1024}')
            if reuse is not None:
                A(f'buffer_load_dwordx4 {vr(hb(reuse,rt))}, v5, s[40:43], s56 offen offset:{1024*rt} {LL}')
                Q.append(('H', reuse))
        if NRC == 2 and i in (9, 10):
            j = i - 7
            A(f's_add_u32 s48, s67, {j+1}\ns_and_b32 s48, s48, 3\ns_lshl_b32 s49, s48, 10\ns_add_u32 s56, s57, s49\ns_lshl_b32 s49, s48, 6\ns_add_u32 s49, s49, s58')
            for kk in range(5):
                A(f'buffer_load_dwordx4 {vr(WR + 8*kk + 4*(j-2))}, v5, s[40:43], s56 offen {LL}')
                if kk < 4: A('s_add_u32 s56, s56, 4096')
                Q.append(('P', j))
            A(f'buffer_load_dword v{20+j}, v11, s[40:43], s49 offen {LL}')
            Q.append(('P', j))
        while nH < 12 and all(hmap[j] != hmap[nH] for j in range(i + 1, nH)) and not (hmap[nH] == 2 and i < 2):
            issueH(nH); nH += 1
        tgt = {0: 3, 2: 4}.get(i, i + 2 if 5 <= i + 2 <= 8 else None)
        pendW = rdW_l(tgt, (tgt - 3) % 2) if tgt is not None else []
    stamp(A, 6)
    if NRC == 2:
        ZR = HBUF; DN = AC; SC = HBUF + 20; T0 = HBUF + 24
        lds_wait(A, 0, 68, 10, 1, four=False, sleep=1)
        for kk in range(5):
            A(f'ds_read_b128 {vr(ZR+4*kk)}, v4 offset:{16*kk}')
        A('s_waitcnt lgkmcnt(0)')
        for kk in range(5):
            for j in range(4):
                m = 's[62:63]' if (4 * kk + j) >= 10 else 's[60:61]'
                A(f'v_cndmask_b32 v{ZR+4*kk+j}, 0, v{ZR+4*kk+j}, {m}')
        A('s_waitcnt vmcnt(0)\ns_nop 0')
        for kk in range(5):
            for r in range(2):
                d = vr(DN + 4 * r)
                A(f'v_mfma_f32_16x16x32_bf16 {d}, {vr(ZR+4*kk)}, {vr(WR+8*kk+4*r)}, {d if kk else 0}')
        A('s_nop 7')
        for r in range(2):
            A(f'v_add_f32 v{DN+4*r}, s64, v{DN+4*r}\nv_add_f32 v{DN+4*r+1}, s64, v{DN+4*r+1}')
        for r in range(2):
            A(f'v_rcp_f32 v{DN+4*r}, v{DN+4*r}\nv_rcp_f32 v{DN+4*r+1}, v{DN+4*r+1}')
        A('s_nop 0')
        for r in range(2):
            A(f'v_mul_f32 v{SC+2*r}, v{22+r}, v{DN+4*r}\nv_mul_f32 v{SC+2*r+1}, v{22+r}, v{DN+4*r+1}')
        for kk in range(5):
            for r in range(2):
                b = WR + 8 * kk + 4 * r
                for j in range(4):
                    A(f'v_lshlrev_b32 v{T0+2*j}, 16, v{b+j}\nv_and_b32 v{T0+2*j+1}, s65, v{b+j}')
                for j in range(4):
                    odd = 1 if (4 * kk + j) >= 10 else 0
                    A(f'v_mul_f32 v{T0+2*j}, v{SC+2*r+odd}, v{T0+2*j}\nv_mul_f32 v{T0+2*j+1}, v{SC+2*r+odd}, v{T0+2*j+1}')
                for j in range(4):
                    A(f'v_cvt_pk_bf16_f32 v{b+j}, v{T0+2*j}, v{T0+2*j+1}')
                A(f'ds_write_b128 v9, {vr(b)} offset:{r*WSLOT + 1024*kk}')
            A(f'v_mov_b32 v10, {kk+1}\ns_mov_b64 exec, 1\nds_write_b32 v13, v10 offset:160\ns_mov_b64 exec, -1')
        lds_wait(A, 13, 176, 10, 1, four=False, sleep=1)
    for rt in (2, 3):
        for t in range(5):
            A(f'ds_write_b128 v{dump[rt][0]}, {vr(a2(rt,t))} offset:{dump[rt][1] + t*1024}')
    A('s_waitcnt lgkmcnt(0)')
    stamp(A, 7)
    A('s_barrier')
    R = WR
    for r in range(4):
        for t in (3, 4):
            A(f'ds_read_b128 {vr(R+8*r+4*(t-3))}, v15 offset:{r*5120 + 1024*t}')
    A(f'ds_read_b32 v18, v19 offset:{46080}')
    A('s_waitcnt lgkmcnt(5)')
    for r in range(3):
        for t in (3, 4):
            A(f'ds_read_b128 {vr(R+32+8*r+4*(t-3))}, v16 offset:{r*5120 + 1024*t}')
    for t in (3, 4):
        A(f'ds_read_b128 {vr(R+56+4*(t-3))}, v17 offset:{1024*(t-3)}')
    for k in range(0, 8, 2):
        A(f'v_pk_add_f32 {vr(R+k,2)}, {vr(R+k,2)}, {vr(R+8+k,2)}')
    A('s_waitcnt lgkmcnt(8)\nv_mov_b32 v19, v18')
    for k in range(0, 8, 2):
        A(f'v_pk_add_f32 {vr(R+16+k,2)}, {vr(R+16+k,2)}, {vr(R+24+k,2)}')
    for k in range(0, 8, 2):
        A(f'v_pk_add_f32 {vr(R+k,2)}, {vr(R+k,2)}, {vr(R+16+k,2)}')
    A('s_waitcnt lgkmcnt(0)')
    for k in range(0, 8, 2):
        A(f'v_pk_fma_f32 {vr(R+k,2)}, {vr(R+k,2)}, v[18:19], {vr(R+56+k,2)}')
    for sl in range(3):
        for k in range(0, 8, 2):
            A(f'v_pk_add_f32 {vr(R+k,2)}, {vr(R+k,2)}, {vr(R+32+8*sl+k,2)}')
    for t in (3, 4):
        b = R + 4 * (t - 3)
        A(f'v_cvt_pk_bf16_f32 v{b}, v{b}, v{b+1}\nv_cvt_pk_bf16_f32 v{b+1}, v{b+2}, v{b+3}')
        A(f'buffer_store_dwordx2 {vr(b,2)}, v20, s[28:31], s55 offen offset:{32*t}')
    finish(A)


def gen(A):
    K = NAME + '_kernel'
    A(f'.globl {K}\n.p2align 8\n.type {K},@function\n{K}:')
    if ENTRYT: A('s_memrealtime s[92:93]')
    A('s_cmp_ge_u32 s2, 256\ns_cbranch_scc1 L_end')
    A('s_load_dwordx4 s[4:7], s[0:1], 0')
    A('s_load_dwordx4 s[8:11], s[0:1], 32')
    A('s_load_dwordx4 s[12:15], s[0:1], 48')
    A('s_load_dwordx2 s[16:17], s[0:1], 80')
    A.c('decode: s18 rb, s19 cq, s20 m, s21 wave, s22 gtype, s23 rbl, s55 is_gc')
    A('v_lshrrev_b32 v1, 6, v0\nv_and_b32 v2, 63, v0')
    A('s_bfe_u32 s23, s2, 0x10003\ns_and_b32 s18, s2, 7\ns_lshl_b32 s18, s18, 1\ns_add_u32 s18, s18, s23' if not MAP84 else 's_bfe_u32 s23, s2, 0x30003\ns_and_b32 s18, s2, 1\ns_lshl_b32 s18, s18, 3\ns_add_u32 s18, s18, s23')
    A('v_readfirstlane_b32 s21, v1')
    A('s_bfe_u32 s19, s2, 0x20004\ns_lshr_b32 s20, s2, 6' if not MAP84 else ('s_bfe_u32 s19, s2, 0x20001\ns_lshr_b32 s20, s2, 6' if not KVX else 's_bfe_u32 s20, s2, 0x20001\ns_lshr_b32 s19, s2, 6'))
    A('s_mul_i32 s22, s19, 3\ns_add_u32 s22, s22, s20\ns_sub_u32 s22, s22, 1')
    A('s_cmp_eq_u32 s22, 10\ns_cselect_b32 s55, 1, 0\ns_cmp_ge_i32 s22, 10\ns_cselect_b32 s91, 1, 0')
    if STAMP:
        A('v_mov_b32 v1, 0\ns_mov_b32 s100, 0\ns_mov_b32 s101, 0')
        stamp(A, 0); stamp_rt(A, 62)
        if ENTRYT: A('v_readlane_b32 s93, v1, 0\nv_writelane_b32 v1, s92, 0\ns_nop 1\nv_writelane_b32 v1, s93, 58')
    A('s_cmp_lt_u32 s21, 4\ns_cbranch_scc1 L_compute')
    gen_loader(A)
    gen_compute(A)
    A('L_end:\ns_endpgm')
    A('.p2align 7\nL_table:')
    for i in range(32):
        A(f'.long {i}')


DOC = """
; ---------------------------------------------------------------------------------------------
; ---------------------------------------------------------------------------------------------
"""


def main(out):
    A = Asm()
    gen(A)
    K = NAME + '_kernel'
    hdr = open('cdna_kernels/' + NAME + '.s.ref').read().split('; Override')[0]
    txt = hdr + f'; @launch grid=(256,1,1) block=(512,1,1) lds={LDS_TOTAL}\n'
    txt += '.amdgcn_target "amdgcn-amd-amdhsa--gfx950"\n' + DOC.lstrip('\n') + '.text\n' + A.text()
    txt += f'''.section .rodata,"a"
.p2align 6
.amdhsa_kernel {K}
  .amdhsa_next_free_vgpr 256
  .amdhsa_next_free_sgpr 102
  .amdhsa_accum_offset 256
  .amdhsa_group_segment_fixed_size 0
  .amdhsa_kernarg_size 88
  .amdhsa_user_sgpr_count 2
  .amdhsa_user_sgpr_kernarg_segment_ptr 1
  .amdhsa_system_sgpr_workgroup_id_x 1
.end_amdhsa_kernel
'''
    open(out, 'w').write(txt)

if __name__ == '__main__':
    for a in sys.argv[2:]:
        k, v = a.split('=', 1)
        globals()[k] = eval(v)
    main(sys.argv[1] if len(sys.argv) > 1 else 'cdna_kernels/' + NAME + '.s')
```

```python
import sys

NAME = 'gated_mix__linear_attn_block__glu_gated_glu__prompt'

HB_OFF = 0
W2_OFF = 0x900000
M_OFF = 0xB00000
KVS = 3584
KVP_OFF = 0xC00000
G_OFF = 0xF00000
ZB_OFF = 0xF10000
FSH = 13
FG_OFF = 0xF40000
FP_OFF = 0xF60800
FM_OFF = 0xF81000
FW_OFF = 0xFA1800
STAMP_OFF = 0x1000000
WS_USED = 0x1100000
OOB = 0x7FFF0000

XSLOT = 16384; NX = 3
WBASE = NX * XSLOT
WSLOT = 20480; NW = 5
GWBASE = WBASE + NW * WSLOT
LDS_TOTAL = 163840
CT = 159744
P2_SCR = 0
RPK = GWBASE
CODEPF = True
EV = {1: (0, [(0, 3), (2, 15)]), 2: (1, [(1, 5), (3, 15)]), 3: (2, [(2, 7), (4, 15)])}
THIRD = 5
RPORD = (11, 9, 4, 7, 2, 5, 8, 1, 0, 3, 6, 10)
STAMP = False
GWS = 320
PRIO = 2
LSLEEP = 1
DEPTH = 2
EXP = ''
M4 = False
P84 = False
EVW = 0
LATEF = True
XROT = 12
ZEARLY = True
ZC = 2
ZM0 = 4
ENTRYT = False
KVFAST = 1
WOAT = 2
KVN = 12
NOPF = 0
DIAG = None
DBGOUT = False
DEFER = False
BURST = 0
FINEG = True
GEARLY = 0
START2 = 0
RTS = False
WSM = 1
KVACK = True
R0LATE = False
L2PF = 0
KVPRE = 6
PAX = 1
ZM = 255
MACK = False
SPEC_M = True
NRC = 4
BST = True
PQ_AT = None
NLEAD = 5
COOP_P = True
COOP_M = True
MK0 = 2
NPK = True
KVX = False
APRIO = 2
BPRIO = 0
MAP84 = True
LS = 'sc1'
LL = 'sc1'
KPRE = 6
LPS = 1
LP0 = 0
GPOLL = 'A'
GD = 8
KVG = 1
T1N = 6
PRETOUCH = False
STG_THR = 6
PSLEEP = 8
MSLEEP = 4
MDELAY = 64
GDELAY = 0
STG_EARLY = False
SPIN_MAX = 0x20000


class Asm:
    def __init__(self):
        self.L = []
        self.nl = 0
    def __call__(self, s):
        for line in s.split('\n'):
            line = line.strip()
            if line:
                self.L.append(line if line.endswith(':') else '    ' + line)
    def c(self, s):
        self.L.append('    ; ' + s)
    def label(self, p='L'):
        self.nl += 1
        return f'{p}_{self.nl}'
    def text(self):
        return '\n'.join(self.L) + '\n'


def vr(b, n=4):
    return f'v[{b}:{b+n-1}]'

def srd(A, d, lo, nbytes):
    A(f's_mov_b32 s{d}, s{lo}\ns_mov_b32 s{d+1}, s{lo+1}\ns_mov_b32 s{d+2}, {nbytes}\ns_mov_b32 s{d+3}, 0x20000')

def stamp(A, n):
    if STAMP:
        A(f'{"s_memrealtime" if RTS else "s_memtime"} s[98:99]\ns_waitcnt lgkmcnt(0)\nv_writelane_b32 v1, s98, {n}')
def stamp_rt(A, n):
    if STAMP:
        A(f's_memrealtime s[98:99]\ns_waitcnt lgkmcnt(0)\nv_writelane_b32 v1, s98, {n}')
def tbeg(A):
    if STAMP and 'quiet' not in EXP: A('s_memtime s[98:99]\ns_waitcnt lgkmcnt(0)\ns_mov_b32 s3, s98')
def tend(A, r):
    if STAMP and 'quiet' not in EXP: A(f's_memtime s[98:99]\ns_waitcnt lgkmcnt(0)\ns_sub_u32 s3, s98, s3\ns_add_u32 s{r}, s{r}, s3')
def finish(A):
    if STAMP:
        A('s_waitcnt vmcnt(0)')
        stamp(A, 61); stamp_rt(A, 63)
        A('v_writelane_b32 v1, s100, 59\nv_writelane_b32 v1, s101, 60')
        if DIAG:
            slot, mult = DIAG
            l = A.label('L_dg'); l2 = A.label('L_dg')
            A(f's_cmp_lg_u32 s21, 0\ns_cbranch_scc1 {l2}')
            A(f'v_readlane_b32 s48, v1, {slot}\nv_readlane_b32 s49, v1, 0\nv_readlane_b32 s50, v1, 61\ns_sub_u32 s48, s48, s49\ns_mul_i32 s48, s48, {mult}\ns_min_u32 s48, s48, 20000')
            A(f'{l}:\ns_memrealtime s[98:99]\ns_waitcnt lgkmcnt(0)\ns_sub_u32 s51, s98, s50\ns_cmp_lt_u32 s51, s48\ns_cbranch_scc1 {l}')
            A(f'{l2}:')
        A('s_mov_b64 exec, -1')
        A(f's_lshl_b32 s3, s2, 3\ns_add_u32 s3, s3, s21\ns_lshl_b32 s3, s3, 8\ns_add_u32 s3, s3, {STAMP_OFF}\nv_lshlrev_b32 v2, 2, v2')
        A('buffer_store_dword v1, v2, s[40:43], s3 offen')
        if DBGOUT:
            l = A.label('L_dbg')
            A(f's_cmp_lg_u32 s21, 0\ns_cbranch_scc1 {l}\ns_and_b32 s3, s2, 0xbf\ns_cmp_lg_u32 s3, 6\ns_cbranch_scc1 {l}')
            A('s_load_dwordx2 s[86:87], s[0:1], 72\ns_lshr_b32 s3, s2, 6\ns_mul_i32 s3, s3, 28\ns_add_u32 s3, s3, 8\ns_waitcnt lgkmcnt(0)\ns_mov_b64 exec, 1')
            for k, slot in enumerate((0, 2, 3, 5, 10, 12, 61)):
                A(f'v_readlane_b32 s48, v1, {slot}\nv_mov_b32 v3, s3\ns_nop 1\nv_mov_b32 v4, s48\nglobal_store_dword v3, v4, s[86:87] offset:{4*k}')
            A(f'{l}:')
    A('s_endpgm')

LOG2E = 0x3fb8aa3b
NLOG2E = 0xbfb8aa3b
EPS = 0x358637bd

ACC = 96; XF = 64; WF = 24
def acc(i, t): return ACC + 20 * i + 4 * t


THR = 0
def dma(A, m0expr, voff, sr, so):
    A(m0expr)
    A(f's_waitcnt vmcnt({THR-1})' if THR else 's_nop 0')
    A(f'buffer_load_dwordx4 v{voff}, s[{sr}:{sr+3}], s{so} offen lds')


def poll(A, soff, nl, vt, vaddr, sleep=None, first_sleep=False):
    l0 = A.label('L_poll'); l1 = A.label('L_polled')
    A('s_mov_b32 s90, 0')
    A(f's_mov_b64 exec, {hex((1 << nl) - 1)}' if nl <= 31 else f's_mov_b32 exec_lo, -1\ns_mov_b32 exec_hi, {hex((1 << (nl - 32)) - 1)}')
    A(f'{l0}:')
    A(f'buffer_load_dwordx2 {vr(vt,2)}, v{vaddr}, s[40:43], s{soff} offen sc1')
    A('s_waitcnt vmcnt(0)')
    A(f'v_cmp_ne_u64 vcc, s[88:89], {vr(vt,2)}')
    A(f's_cbranch_vccz {l1}')
    A(f's_sleep {PSLEEP if sleep is None else sleep}\ns_add_u32 s90, s90, 1\ns_cmp_lt_u32 s90, {SPIN_MAX}\ns_cbranch_scc1 {l0}')
    A(f'{l1}:')
    A('s_mov_b64 exec, -1')


def spoll(A, parts, sleep=2):
    l0 = A.label('L_sp'); l1 = A.label('L_spd')
    A('s_mov_b32 s96, 0')
    A(f'{l0}:')
    regs = []
    for so, imm, n, sb in parts:
        A(f's_load_dwordx{2*n} s[{sb}:{sb+2*n-1}], s[16:17], s{so} offset:{imm} glc')
        regs += [sb + 2 * k for k in range(n)]
    A('s_waitcnt lgkmcnt(0)')
    for r in regs:
        A(f's_xor_b64 s[{r}:{r+1}], s[{r}:{r+1}], s[88:89]')
    for r in regs[1:]:
        A(f's_or_b64 s[{regs[0]}:{regs[0]+1}], s[{regs[0]}:{regs[0]+1}], s[{r}:{r+1}]')
    A(f's_cbranch_scc0 {l1}')
    A(f's_sleep {sleep}\ns_add_u32 s96, s96, 1\ns_cmp_lt_u32 s96, {SPIN_MAX}\ns_cbranch_scc1 {l0}')
    A(f'{l1}:')


def set_flag(A, soff, vt):
    A(f'v_mov_b32 v{vt}, s88\nv_mov_b32 v{vt+1}, s89\nv_mov_b32 v{vt+2}, 0')
    A('s_waitcnt vmcnt(0)')
    A('s_mov_b64 exec, 1')
    A(f'buffer_store_dwordx2 {vr(vt,2)}, v{vt+2}, s[40:43], s{soff} offen sc1')
    A('s_mov_b64 exec, -1')


def table_srd(A, d):
    l = A.label('L_pc')
    A(f's_getpc_b64 s[{d}:{d+1}]\n{l}:\ns_add_u32 s{d}, s{d}, L_table-{l}\ns_addc_u32 s{d+1}, s{d+1}, 0\ns_movk_i32 s{d+2}, 128\ns_mov_b32 s{d+3}, 0x20000')


def lds_free(A, vaddr, vt, sdst):
    A(f'ds_read_b32 v{vt}, v{vaddr}\ns_waitcnt lgkmcnt(0)')
    A(f'v_readlane_b32 s{sdst}, v{vt}, 0\nv_readlane_b32 s48, v{vt}, 1\ns_min_u32 s{sdst}, s{sdst}, s48\nv_readlane_b32 s48, v{vt}, 2\ns_min_u32 s{sdst}, s{sdst}, s48\nv_readlane_b32 s48, v{vt}, 3\ns_min_u32 s{sdst}, s{sdst}, s48')


def lds_min4(A, vaddr, off, vt, sdst):
    A(f'ds_read_b128 {vr(vt)}, v{vaddr} offset:{off}\ns_waitcnt lgkmcnt(0)')
    A(f'v_min3_u32 v{vt}, v{vt}, v{vt+1}, v{vt+2}\nv_min_u32 v{vt}, v{vt}, v{vt+3}\ns_nop 0\nv_readfirstlane_b32 s{sdst}, v{vt}')


def lds_wait(A, vaddr, off, vt, need, four=True, sdst=90, sleep=1):
    l0 = A.label('L_lw'); l1 = A.label('L_lwd')
    if sleep in (2, 4): sleep *= WSM
    A('s_mov_b32 s96, 0')
    A(f'{l0}:')
    if four == 'free':
        lds_free(A, vaddr, vt, sdst)
    elif four:
        lds_min4(A, vaddr, off, vt, sdst)
    else:
        A(f'ds_read_b32 v{vt}, v{vaddr} offset:{off}\ns_waitcnt lgkmcnt(0)\nv_readfirstlane_b32 s{sdst}, v{vt}')
    A(f's_cmp_ge_i32 s{sdst}, {need}\ns_cbranch_scc1 {l1}')
    A(f's_sleep {sleep}\ns_add_u32 s96, s96, 1\ns_cmp_lt_u32 s96, {SPIN_MAX*16}\ns_cbranch_scc1 {l0}')
    A(f'{l1}:')


def lds_wait_mask(A, vaddr, off, vt, smask, sleep=2):
    l0 = A.label('L_mw'); l1 = A.label('L_mwd')
    A('s_mov_b32 s96, 0')
    A(f'{l0}:')
    A(f'ds_read_b32 v{vt}, v{vaddr} offset:{off}\ns_waitcnt lgkmcnt(0)\nv_readfirstlane_b32 s90, v{vt}')
    A(f's_andn2_b32 s90, {smask}, s90\ns_cbranch_scc0 {l1}')
    A(f's_sleep {sleep}\ns_add_u32 s96, s96, 1\ns_cmp_lt_u32 s96, {SPIN_MAX*16}\ns_cbranch_scc1 {l0}')
    A(f'{l1}:')


def mainloop(A, kv, tag):
    def upd_s():
        L = [f's_add_u32 s50, s50, {WSLOT}', f's_cmp_ge_u32 s50, {WBASE + NW*WSLOT}', f's_cselect_b32 s50, {WBASE}, s50']
        if not kv:
            L += ['s_add_u32 s52, s52, s53', 's_cmp_ge_u32 s52, s57', f's_cselect_b32 s52, {WBASE}, s52']
        return L
    def set_w():
        return [f'v_add_u32 v{15+t}, s50, v{10+t}' for t in range(4)] + [f'v_add_u32 v19, s{50 if kv else 52}, v14']
    def upd_blk():
        return [f's_add_u32 s51, s51, {XSLOT}', f's_cmp_ge_u32 s51, {NX*XSLOT}', 's_cselect_b32 s51, 0, s51']
    def set_x(par):
        return [f'v_add_u32 v{4+par}, s51, v{20+par}']
    def rdW(p, t, h):
        b = WF + 20 * p + 4 * t + 2 * h
        return f'ds_read_b64_tr_b16 {vr(b,2)}, v{15+t} offset:{512*h}'
    def rdX(i, par):
        return f'ds_read_b128 {vr(XF+4*i)}, v{4+par} offset:{2048*i}'
    def mfma(i, t, p):
        w = vr(WF + 20 * p + 4 * t); x = vr(XF + 4 * i); d = vr(acc(i, t))
        if 'm32' in EXP:
            n = 5 * i + t
            if n % 2 == 0:
                d = vr(ACC + 16 * ((n // 2) % 10), 16)
                A(f'v_mfma_f32_32x32x16_bf16 {d}, {w}, {x}, {d}')
            return
        A(f'v_mfma_f32_16x16x32_bf16 {d}, {x}, {w}, {d}' if kv else f'v_mfma_f32_16x16x32_bf16 {d}, {w}, {x}, {d}')
    A(f's_mov_b32 s50, {WBASE}\ns_mov_b32 s51, 0\ns_mov_b32 s54, 0')
    if not kv:
        A(f's_cmp_lg_u32 s55, 0\ns_cselect_b32 s52, {GWBASE}, s50\ns_movk_i32 s53, {WSLOT}\ns_cselect_b32 s53, {GWS}, s53\ns_mov_b32 s57, {WBASE + NW*WSLOT}\ns_cselect_b32 s57, -1, s57')
    for l in set_w() + set_x(0) + set_x(1):
        A(l)
    A(f'v_mov_b32 v3, {CT}\ns_lshl_b32 s48, s21, 8\ns_add_u32 m0, s48, {CT+256}\nv_mov_b32 v0, {OOB}\nv_writelane_b32 v0, 0, 0')
    table_srd(A, 44)
    stamp(A, 1)
    lds_wait(A, 3, 0, 6, 1, sdst=59)
    A('s_waitcnt vmcnt(0)')
    A(f's_setprio {PRIO}')
    stamp(A, 2)
    for t in range(5):
        A(rdW(0, t, 0)); A(rdW(0, t, 1))
    A('s_waitcnt lgkmcnt(6)')
    for i in range(8):
        A(rdX(i, 0))
    for l in upd_s() + set_w():
        A(l)
    A('s_mov_b32 s58, 2\ns_cmp_ge_i32 s59, s58')
    A(f's_cbranch_scc0 L_{tag}_slow0')
    A('.p2align 3')
    for p in range(2):
        gap = {k: [] for k in range(40)}
        for i in range(5):
            gap[5*i].append(rdW(1 - p, i, 0)); gap[5*i + 2].append(rdW(1 - p, i, 1))
        for i in range(8):
            gap[5*i + 4].append(rdX(i, 1 - p))
        gap[9].append('s_waitcnt lgkmcnt(6)')
        gap[1].append('s_add_u32 s54, s54, 4')
        gap[11].append('buffer_load_dword v0, s[44:47], s54 offen lds')
        gap[6].append('s_add_u32 s58, s58, 1'); gap[8].append('s_min_u32 s58, s58, 20')
        sal = upd_s() + (upd_blk() if p == 0 else [])
        for k in (13, 13, 16, 16, 18, 18, 21, 21, 23):
            if sal: gap[k].append(sal.pop(0))
        assert not sal
        if LATEF:
            for k, l in zip((23, 25, 26, 27, 28, 30), set_w() + set_x(p)):
                gap[k].append(l)
            gap[31].append('ds_read_b128 v[6:9], v3')
            gap[36].append('s_waitcnt lgkmcnt(1)'); gap[36].append('v_min3_u32 v6, v6, v7, v8')
            gap[37].append('v_min_u32 v6, v6, v9')
            gap[38].append('v_readfirstlane_b32 s59, v6')
        else:
            gap[23].append('ds_read_b128 v[6:9], v3')
            for k, l in zip((25, 26, 27, 28, 30, 31), set_w() + set_x(p)):
                gap[k].append(l)
            gap[32].append('s_waitcnt lgkmcnt(2)'); gap[32].append('v_min3_u32 v6, v6, v7, v8')
            gap[33].append('v_min_u32 v6, v6, v9')
            gap[35].append('v_readfirstlane_b32 s59, v6')
        if p == 1:
            gap[35 if LATEF else 36].append('s_cmp_lt_u32 s54, 80'); gap[37].append(f's_cbranch_scc0 L_{tag}_last')
        gap[39 if LATEF else 38].append('s_cmp_ge_i32 s59, s58' if 'nowait' not in EXP else 's_cmp_eq_u32 s59, s59')
        if 'novalu' in EXP:
            for k in gap: gap[k] = [l for l in gap[k] if not l.startswith('v_')]
        if 'nods' in EXP:
            for k in gap: gap[k] = [l for l in gap[k] if not l.startswith('ds_')]
        if 'nosalu' in EXP:
            for k in gap: gap[k] = [l for l in gap[k] if not (l.startswith('s_') and 13 <= k <= 23)]
        if 'noctl' in EXP:
            for k in gap: gap[k] = [l for l in gap[k] if not (' v6' in l or 'v[6:9]' in l)]
        if 'halfx' in EXP:
            for k in (9, 19, 29, 39): gap[k] = [l.replace('ds_read_b128', 'ds_read_b32').replace(l.split()[1], l.split()[1].split(':')[0].replace('[', '') + ',') if l.startswith('ds_read_b128 v[') else l for l in gap[k]]
        if 'nowr' in EXP:
            for k in gap: gap[k] = [l for l in gap[k] if not l.startswith('ds_write')]
        if 'now32' in EXP:
            gap[32] = [l for l in gap[32] if not l.startswith('s_waitcnt')]
        if 'nopub' in EXP: pass
        if p == 0:
            A(f'L_{tag}_go0:')
        else:
            A(f's_cbranch_scc0 L_{tag}_slow1')
            A(f'L_{tag}_go1:')
        A('s_waitcnt lgkmcnt(2)')
        for i in range(8):
            for t in range(5):
                mfma(i, t, p)
                for l in gap[5*i + t]: A(l)
    A(f's_cbranch_scc1 L_{tag}_go0')
    for p in range(2):
        A(f'L_{tag}_slow{p}:')
        tbeg(A)
        lds_wait(A, 3, 0, 6, 's58', sdst=59)
        tend(A, 100)
        if STAMP: A('s_add_u32 s101, s101, 1')
        A(f's_branch L_{tag}_go{p}')
    A(f'L_{tag}_last:')
    mfma(7, 3, 1); mfma(7, 4, 1)
    A('s_waitcnt lgkmcnt(0)')
    stamp(A, 3)
    A('s_nop 6')
    if 'p1' in EXP: finish(A)


def phi_q(A, b, t, dst=None):
    dst = b if dst is None else dst
    A(f'v_pk_mul_f32 {vr(t,2)}, {vr(b,2)}, s[60:61]\nv_pk_mul_f32 {vr(t+2,2)}, {vr(b+2,2)}, s[60:61]')
    for j in range(4):
        A(f'v_exp_f32 v{t+j}, v{t+j} clamp')
    for j in range(4):
        A(f'v_max_f32 v{dst+j}, s66, v{b+j}')
    A(f'v_pk_add_f32 {vr(dst,2)}, {vr(dst,2)}, {vr(t,2)}\nv_pk_add_f32 {vr(dst+2,2)}, {vr(dst+2,2)}, {vr(t+2,2)}')


def gen_compute(A):
    A('L_compute:')
    if CODEPF:
        A('s_cmp_lg_u32 s21, 0\ns_cbranch_scc1 L_nocpf')
        A(f's_getpc_b64 s[44:45]\nL_pc:\ns_sub_u32 s44, s44, L_pc-{NAME}_kernel\ns_subb_u32 s45, s45, 0\ns_mov_b32 s46, L_end-{NAME}_kernel\ns_mov_b32 s47, 0x20000')
        A('s_lshr_b32 s48, s2, 3\ns_lshl_b32 s48, s48, 11\nv_lshlrev_b32 v3, 7, v2\ns_mov_b64 exec, 0xffff')
        A('buffer_load_dword v95, v3, s[44:47], s48 offen\ns_mov_b64 exec, -1')
        A('L_nocpf:')
    A('s_barrier')
    A.c('compute wave setup: v3=q v4=r v5=c v6=f<<5 v7=rowpart')
    for r in range(ACC, 256, 2):
        A(f'v_mov_b64 {vr(r,2)}, 0')
    A('v_lshrrev_b32 v3, 4, v2\nv_bfe_u32 v4, v2, 2, 2\nv_and_b32 v5, 3, v2')
    A('v_lshrrev_b32 v6, 1, v4\nv_and_b32 v8, 1, v3\nv_lshl_add_u32 v6, v8, 1, v6\nv_lshlrev_b32 v6, 5, v6')
    A('v_mul_u32_u24 v7, 5120, v3\nv_lshl_add_u32 v7, v4, 7, v7')
    A('v_and_b32 v8, 15, v2\nv_lshrrev_b32 v9, 1, v8\nv_xor_b32 v9, v9, v3\nv_lshlrev_b32 v9, 4, v9\nv_lshl_add_u32 v20, v8, 7, v9\nv_xor_b32 v21, 64, v20')
    A(f's_mov_b32 s60, {LOG2E}\ns_mov_b32 s61, {LOG2E}\ns_mov_b32 s62, {NLOG2E}\ns_mov_b32 s63, {NLOG2E}')
    A(f's_mov_b32 s64, 1.0\ns_mov_b32 s65, 1.0\ns_mov_b32 s66, {EPS}')
    A('s_waitcnt lgkmcnt(0)')
    srd(A, 40, 16, WS_USED)
    if PRETOUCH:
        A('s_cmp_lg_u32 s21, 1\ns_cbranch_scc1 L_nopt')
        A('s_load_dwordx2 s[28:29], s[0:1], 64\ns_load_dwordx2 s[32:33], s[0:1], 16\ns_mov_b32 s30, 2621440\ns_mov_b32 s31, 0x20000\ns_mov_b32 s34, 819200\ns_mov_b32 s35, 0x20000')
        srd(A, 36, 12, 1966080)
        A('v_lshlrev_b32 v8, 18, v2\nv_lshlrev_b32 v9, 16, v2')
        A('buffer_load_dword v92, v8, s[40:43], 0 offen\nbuffer_load_dword v93, v9, s[36:39], 0 offen\ns_waitcnt lgkmcnt(0)')
        A('buffer_load_dword v94, v9, s[28:31], 0 offen\nbuffer_load_dword v95, v9, s[32:35], 0 offen')
        A('L_nopt:')
    A('s_cmp_eq_u32 s20, 0\ns_cbranch_scc1 L_kv')

    A('s_lshr_b32 s48, s21, 1\ns_lshl_b32 s48, s48, 10\ns_and_b32 s49, s21, 1\ns_lshl_b32 s49, s49, 3')
    A('v_add_u32 v8, s49, v5\nv_lshlrev_b32 v8, 3, v8\nv_xor_b32 v9, v8, v6\nv_add3_u32 v10, v9, v7, s48')
    A('v_add_u32 v8, 32, v8\nv_xor_b32 v9, v8, v6\nv_add3_u32 v11, v9, v7, s48')
    A('v_add_u32 v12, 2048, v10\nv_add_u32 v13, 2048, v11')
    A('s_lshl_b32 s49, s21, 2\nv_add_u32 v8, s49, v5\nv_lshlrev_b32 v8, 3, v8\nv_xor_b32 v9, v8, v6\nv_add_u32 v14, v9, v7\nv_add_u32 v14, 4096, v14')
    A('s_cmp_eq_u32 s55, 0\ns_cbranch_scc1 L_g_notgc')
    A('v_lshlrev_b32 v14, 5, v3\nv_lshl_add_u32 v14, v4, 3, v14')
    A('L_g_notgc:')
    A('v_lshlrev_b32 v22, 4, v2')
    A(f's_mul_i32 s72, s18, {2*68*4096}\ns_add_u32 s73, s72, {68*4096}')
    A('s_lshl_b32 s48, s22, 2\ns_add_u32 s48, s48, s21\ns_lshl_b32 s49, s48, 12\ns_add_u32 s70, s72, s49\ns_add_u32 s71, s73, s49')
    A(f's_lshl_b32 s74, s18, {FSH}\ns_lshl_b32 s49, s48, 3\ns_add_u32 s74, s74, s49\ns_add_u32 s74, s74, {FG_OFF}')
    A('s_lshl_b32 s48, s48, 2\nv_add_u32 v5, s48, v3')
    A('v_mul_u32_u24 v6, 6554, v5\nv_lshrrev_b32 v6, 16, v6\nv_mul_u32_u24 v7, 10, v6\nv_sub_u32 v7, v5, v7')
    A('v_lshrrev_b32 v8, 2, v6\nv_and_b32 v6, 3, v6')
    A('v_mul_u32_u24 v8, 5, v8\nv_lshrrev_b32 v9, 1, v7\nv_add3_u32 v8, v8, v9, 48\nv_lshlrev_b32 v8, 12, v8')
    A('v_and_b32 v9, 15, v2\nv_lshl_add_u32 v9, v6, 4, v9\nv_lshl_add_u32 v8, v9, 4, v8')
    A('v_and_b32 v7, 1, v7\nv_lshl_add_u32 v23, v7, 10, v8')
    mainloop(A, False, 'g')
    A.c('h = u * sigmoid(g)')
    hst = []; pst = []
    for i in range(8):
        g = acc(i, 0); u = acc(i, 2)
        for j in range(4):
            A(f'v_pk_mul_f32 {vr(g+2*j,2)}, {vr(g+2*j,2)}, s[62:63]')
        for j in range(8):
            A(f'v_exp_f32 v{g+j}, v{g+j}')
        for j in range(4):
            A(f'v_pk_add_f32 {vr(g+2*j,2)}, {vr(g+2*j,2)}, s[64:65]')
        for j in range(8):
            A(f'v_rcp_f32 v{g+j}, v{g+j}')
        for j in range(4):
            A(f'v_pk_mul_f32 {vr(u+2*j,2)}, {vr(u+2*j,2)}, {vr(g+2*j,2)}')
        for j in range(4):
            A(f'v_cvt_pk_bf16_f32 v{g+j}, v{u+2*j}, v{u+2*j+1}')
        hst.append(f'buffer_store_dwordx4 {vr(g)}, v22, s[40:43], s{70 + (i>>2)} offen offset:{(i&3)*1024} {LS}')
        if not BURST: A(hst.pop())
    if BURST == 1:
        for l in hst: A(l)
        hst = []
    A('s_cmp_lg_u32 s91, 0\ns_cbranch_scc1 L_gc_epi')
    A.c('pq = phi(q)')
    for i in range(0, 8, 2):
        a0 = acc(i, 4); b0 = acc(i + 1, 4)
        phi_q(A, a0, 24 + 8 * ((i >> 1) & 1))
        phi_q(A, b0, 28 + 8 * ((i >> 1) & 1))
        A(f'v_cvt_pk_bf16_f32 v{a0}, v{a0}, v{a0+1}\nv_cvt_pk_bf16_f32 v{a0+1}, v{a0+2}, v{a0+3}')
        A(f'v_cvt_pk_bf16_f32 v{a0+2}, v{b0}, v{b0+1}\nv_cvt_pk_bf16_f32 v{a0+3}, v{b0+2}, v{b0+3}')
        A('s_nop 1')
        A(f'v_permlane16_swap_b32 v{a0}, v{a0+2}\nv_permlane16_swap_b32 v{a0+1}, v{a0+3}')
        pst.append(f'buffer_store_dwordx4 {vr(a0)}, v23, s[40:43], s{72 + (i>>2)} offen offset:{(i&3)*1024} {LS}')
        if BURST != 2: A(pst.pop())
    for l in hst + pst: A(l)
    A('s_branch L_p1_done')
    A('L_gc_epi:')
    for l in hst: A(l)
    A.c('gate g = sigmoid(logit); stored by gtype 10, wave 0')
    A('v_and_b32 v8, 15, v2\nv_lshlrev_b32 v8, 2, v8')
    A(f's_lshl_b32 s48, s18, 9\ns_add_u32 s48, s48, {G_OFF}\ns_lshl_b32 s49, s22, 2\ns_add_u32 s49, s49, s21')
    A(f's_cmp_eq_u32 s49, 40\ns_cselect_b32 s48, s48, {OOB}')
    for i in range(8):
        A(f'v_mul_f32 v{acc(i,4)}, s62, v{acc(i,4)}')
    for i in range(8):
        A(f'v_exp_f32 v{acc(i,4)}, v{acc(i,4)}')
    for i in range(8):
        A(f'v_add_f32 v{acc(i,4)}, 1.0, v{acc(i,4)}')
    for i in range(8):
        A(f'v_rcp_f32 v{acc(i,4)}, v{acc(i,4)}')
    A('s_nop 0\ns_mov_b64 exec, 0xffff')
    for i in range(8):
        A(f'buffer_store_dword v{acc(i,4)}, v8, s[40:43], s48 offen offset:{64*i} {LS}')
    A('s_mov_b64 exec, -1')
    A('s_branch L_p1_done')

    A('L_kv:')
    A('s_mul_i32 s48, s21, 10\ns_and_b32 s49, s19, 1\ns_lshl_b32 s49, s49, 3\ns_sub_u32 s48, s48, s49')
    def kvaddr(dst, u, isv):
        A(f'v_add_u32 v9, 40, {u}\nv_cmp_gt_i32 vcc, 0, {u}\ns_nop 1\nv_cndmask_b32 v8, {u}, v9, vcc')
        A(f'v_lshrrev_b32 v9, 4, v8\nv_lshl_add_u32 v9, {isv}, 1, v9\nv_and_b32 v23, 15, v8')
        A(f'v_lshl_add_u32 v22, {isv}, 3, v23')
        A('v_cmp_gt_u32 vcc, 32, v8\ns_nop 1\nv_cndmask_b32 v9, 4, v9, vcc\nv_cndmask_b32 v23, v22, v23, vcc')
        A(f'v_lshlrev_b32 v23, 3, v23\nv_xor_b32 v23, v23, v6\nv_lshlrev_b32 v22, 4, {isv}\nv_xor_b32 v23, v23, v22')
        A(f'v_lshl_add_u32 v23, v9, 10, v23\nv_add_u32 v{dst}, v23, v7')
    A('v_mov_b32 v16, 0\nv_mov_b32 v17, 1\nv_add_u32 v15, s48, v5')
    kvaddr(10, 'v15', 'v16'); kvaddr(12, 'v15', 'v17')
    A('v_add_u32 v15, 5, v15')
    kvaddr(11, 'v15', 'v16'); kvaddr(13, 'v15', 'v17')
    A('v_and_b32 v15, 1, v5\nv_mul_u32_u24 v15, 5, v15\nv_add3_u32 v15, v15, s48, 4\nv_lshrrev_b32 v16, 1, v5')
    kvaddr(14, 'v15', 'v16')
    A('v_lshlrev_b32 v22, 4, v2\nv_lshlrev_b32 v23, 4, v3')
    A('v_and_b32 v8, 15, v2\nv_cmp_gt_u32 s[68:69], 8, v8')
    A(f's_lshl_b32 s48, s19, 2\ns_add_u32 s48, s48, s21\ns_lshl_b32 s48, s48, 4\ns_add_u32 s48, s48, s18\ns_mul_i32 s70, s48, {KVS}\ns_add_u32 s70, s70, {KVP_OFF}')
    prods = [(0, 0), (1, 1), (2, 0), (2, 1), (0, 2), (1, 2), (2, 2)]
    A(f's_lshr_b32 s71, s21, 1\ns_mul_i32 s71, s71, {RPK - 40960}\ns_and_b32 s49, s21, 1\ns_lshl_b32 s49, s49, 12\ns_add_u32 s71, s71, s49\ns_add_u32 s71, s71, 40960')
    A('v_mul_u32_u24 v23, 5, v8\nv_add_u32 v23, v23, v3\nv_lshlrev_b32 v23, 4, v23\nv_add_u32 v23, s71, v23')
    mainloop(A, True, 'kv')
    A.c('KV epilogue')
    A('v_mov_b32 v12, 0x3f803f80\nv_mov_b32 v13, v12\nv_mov_b32 v14, v12\nv_mov_b32 v15, v12')
    KT = {0: 0, 1: 1, 2: 4}; VT = {0: 2, 1: 3, 2: 4}
    PR = 24
    pend = []
    def flush(k):
        for _ in range(k):
            if pend: A(pend.pop(0))
    for kk in range(4):
        n = 0
        for i in (2 * kk, 2 * kk + 1):
            for t in (0, 1):
                phi_q(A, acc(i, t), 64 + 4 * (n % 4)); n += 1
                flush(2)
            b = acc(i, 4); s = 80 + 4 * (i & 1)
            phi_q(A, b, 64 + 4 * (n % 4), s); n += 1
            for j in range(4):
                A(f'v_cndmask_b32 v{b+j}, v{b+j}, v{s+j}, s[68:69]')
            flush(1)
        assert not pend
        for t in range(5):
            a = acc(2 * kk, t); b = acc(2 * kk + 1, t)
            A(f'v_cvt_pk_bf16_f32 v{a}, v{a}, v{a+1}\nv_cvt_pk_bf16_f32 v{a+1}, v{a+2}, v{a+3}')
            A(f'v_cvt_pk_bf16_f32 v{a+2}, v{b}, v{b+1}\nv_cvt_pk_bf16_f32 v{a+3}, v{b+2}, v{b+3}')
        for n, (tv, tk) in enumerate(prods):
            d = vr(PR + 4 * n)
            pend.append(f'v_mfma_f32_16x16x32_bf16 {d}, {vr(acc(2*kk,VT[tv]))}, {vr(acc(2*kk,KT[tk]))}, {d if kk else 0}')
        for tk in range(3):
            d = vr(52 + 4 * tk)
            pend.append(f'v_mfma_f32_16x16x32_bf16 {d}, {vr(acc(2*kk,KT[tk]))}, v[12:15], {d if kk else 0}')
    A('s_nop 1')
    flush(10)
    get_epoch(A, 3, 6)
    A(f'v_and_b32 v9, 3, v2\nv_lshlrev_b32 v9, 8, v9\nv_add_u32 v9, {CT+256}, v9')
    lds_wait(A, 9, 0, 8, 18, four='free', sleep=1)
    HB_ = 1792
    wr = [(0, None, 0), (1, None, HB_), (2, (0, 0xffff), 32), (3, (0, 0xffff0000), HB_ + 16), (4, (0x000f000f, 0x000f000f), 1280),
          (5, (0x00f000f0, 0x00f000f0), HB_ + 960), (6, (0, 0x0000000f), 1280 + 32), (6, (0, 0x00f00000), HB_ + 960 + 16),
          (7, (0x00010001, 0x00010001), 1600), (8, (0x00010001, 0x00010001), HB_ + 1600), (9, (1, 0), 1664), (9, (0x10000, 0), HB_ + 1648)]
    for n, m, off in wr:
        if m: A(f's_mov_b32 exec_lo, {hex(m[0])}\ns_mov_b32 exec_hi, {hex(m[1])}')
        A(f'ds_write_b128 v23, {vr(PR+4*n)} offset:{off}')
    A('s_mov_b64 exec, -1\nv_add_u32 v9, s71, v22')
    for i in range(4):
        A(f'ds_read_b128 {vr(64+4*i)}, v9 offset:{1024*i}')
    A('s_and_b32 s76, s88, 0xfff\ns_bfe_u32 s77, s88, 0xc000c\ns_lshr_b64 s[78:79], s[88:89], 24\ns_xor_b32 s78, s78, s88\ns_bfe_u32 s79, s78, 0xc000c\ns_and_b32 s78, s78, 0xfff')
    A('v_mov_b32 v6, 0xfffff000')
    for i in range(4):
        A(f's_waitcnt lgkmcnt({3-i})')
        for r in range(64 + 4 * i, 68 + 4 * i):
            A(f'v_and_or_b32 v{r}, v{r}, v6, s{76 + (r & 3)}')
        if i == 3: A('s_mov_b32 exec_hi, 0')
        A(f'buffer_store_dwordx4 {vr(64+4*i)}, v22, s[40:43], s70 offen offset:{1024*i} sc1')
    A('s_mov_b64 exec, -1')
    A('L_p1_done:')
    stamp(A, 4)
    gen_awave(A)


def p2_ids(A):
    if P84:
        A('s_bfe_u32 s18, s2, 0x20001\ns_lshl_b32 s18, s18, 3\ns_lshr_b32 s48, s2, 5\ns_add_u32 s18, s18, s48')
        A('s_and_b32 s19, s2, 1\ns_lshl_b32 s19, s19, 2\ns_bfe_u32 s48, s2, 0x20003\ns_add_u32 s19, s19, s48')
        return
    A('s_and_b32 s18, s2, 7\ns_lshl_b32 s18, s18, 2\ns_lshr_b32 s48, s2, 6\ns_add_u32 s18, s18, s48')
    A('s_bfe_u32 s19, s2, 0x30003')


def gpoll(A, soff, vt):
    l0 = A.label('L_gp'); l1 = A.label('L_gs'); l2 = A.label('L_gd')
    A('s_mov_b32 s96, 0\ns_mov_b32 s75, 0')
    A(f'{l0}:')
    A(f's_mov_b32 exec_hi, 0xffff\nbuffer_load_dwordx2 {vr(vt,2)}, v6, s[40:43], s{soff} offen sc1\ns_waitcnt vmcnt(0)\nv_cmp_ne_u64 vcc, s[88:89], {vr(vt,2)}\ns_mov_b32 exec_hi, -1')
    A('s_mov_b32 s74, 0')
    for g in range(4):
        A(f's_bfe_u64 s[76:77], vcc, {hex((12 << 16) | (12 * g))}\ns_cselect_b32 s48, 0, {1 << g}\ns_or_b32 s74, s74, s48')
    A(f's_cmp_eq_u32 s74, s75\ns_cbranch_scc1 {l1}')
    A(f's_mov_b32 s75, s74\nv_mov_b32 v{vt}, s74\ns_mov_b64 exec, 1\nds_write_b32 v0, v{vt} offset:64\ns_mov_b64 exec, -1')
    A(f'{l1}:')
    A(f's_cmp_eq_u32 s74, 15\ns_cbranch_scc1 {l2}')
    A(f's_sleep {PSLEEP}\ns_add_u32 s96, s96, 1\ns_cmp_lt_u32 s96, {SPIN_MAX}\ns_cbranch_scc1 {l0}')
    A(f'{l2}:')


def get_epoch(A, vct, vt):
    l0 = A.label('L_ep')
    A('s_mov_b32 s96, 0')
    A(f'{l0}:')
    A(f'ds_read_b64 {vr(vt,2)}, v{vct} offset:32\ns_waitcnt lgkmcnt(0)\nv_readfirstlane_b32 s88, v{vt}\nv_readfirstlane_b32 s89, v{vt+1}')
    A(f's_add_u32 s96, s96, 1\ns_cmp_eq_u32 s88, 0\ns_cselect_b32 s48, s96, -1\ns_cmp_lt_u32 s48, {SPIN_MAX*16}\ns_cbranch_scc1 {l0}')


def phase_a(A):
    WOI = 0; HS = 0; HSTR = 5120
    A('v_lshrrev_b32 v3, 4, v2\nv_and_b32 v4, 15, v2')
    A('s_mul_i32 s70, s21, 5120')
    A('s_lshr_b32 s50, s18, 1\ns_and_b32 s51, s18, 1')
    A(f's_mul_i32 s48, s51, 1792\nv_add_u32 v10, s48, v5\nv_add_u32 v11, 1024, v10\nv_mov_b32 v15, {OOB}\nv_cmp_lt_u32 vcc, 40, v2\ns_nop 1\nv_cndmask_b32 v11, v11, v15, vcc')
    A('v_mov_b32 v19, v5\nv_add_u32 v20, 1024, v5\nv_mul_u32_u24 v21, 80, v4\nv_lshl_add_u32 v12, v3, 5, v21\nv_lshlrev_b32 v13, 3, v4')
    A('v_bfe_u32 v14, v2, 2, 2\nv_lshl_add_u32 v14, v3, 3, v14\nv_mul_u32_u24 v14, 160, v14\nv_and_b32 v15, 3, v2\nv_lshl_add_u32 v14, v15, 3, v14\nv_add_u32 v14, s70, v14')
    A(f'v_add_u32 v19, s70, v19\nv_add_u32 v20, s70, v20\ns_mul_i32 s48, s51, 5120\nv_add_u32 v12, s48, v12\nv_add_u32 v13, s48, v13')
    A('v_cmp_gt_u32 s[60:61], 3, v3\nv_cmp_gt_u32 s[62:63], 2, v3\nv_cmp_gt_u32 s[64:65], 41, v2')
    A(f's_mul_i32 s48, s51, 5\ns_lshr_b32 s49, s21, 1\ns_mul_i32 s49, s49, {RPK - 40960}\ns_add_u32 s49, s49, 40960')
    for mt in range(2):
        A(f'v_add3_u32 v15, v3, s48, {4*mt}\nv_lshrrev_b32 v16, 1, v15\nv_mul_u32_u24 v16, 1280, v16\nv_and_b32 v15, 1, v15\nv_lshl_add_u32 v16, v15, 3, v16')
        A(f'v_lshl_add_u32 v16, v4, 4, v16\nv_add_u32 v{17+mt}, s49, v16')
    A('s_mul_i32 s48, s51, 40\ns_add_u32 s48, s48, s49\ns_add_u32 s48, s48, 6400\nv_lshlrev_b32 v22, 2, v2\nv_add_u32 v22, s48, v22')
    A('s_mul_i32 s48, s51, 3328\ns_add_u32 s48, s48, s49\nv_add_u32 v21, s48, v5\nv_lshlrev_b32 v15, 10, v3\nv_lshl_add_u32 v15, v4, 4, v15')
    A(f's_lshr_b32 s48, s18, 3\ns_mul_i32 s48, s48, 5\ns_mul_i32 s49, s19, 20\ns_add_u32 s48, s48, s49\ns_mul_i32 s48, s48, 5120\ns_and_b32 s49, s50, 3\ns_lshl_b32 s49, s49, 8\ns_add_u32 s48, s48, s49')
    A(f's_mul_i32 s49, s51, 13312\ns_add_u32 s48, s48, s49\ns_add_u32 s55, s48, {M_OFF}\ns_add_u32 s56, s55, 4096\ns_add_u32 s57, s55, 8192\ns_add_u32 s48, s55, 12288')
    A(f's_lshl_b32 s54, s19, 11\ns_lshl_b32 s49, s50, 7\ns_add_u32 s54, s54, s49\ns_add_u32 s54, s54, {ZB_OFF}')
    A(f's_cmp_eq_u32 s51, 0\ns_cselect_b32 s54, s48, s54\ns_movk_i32 s48, {ZM}\ns_cselect_b32 s58, 0xffff, s48\ns_mov_b32 s59, 0')
    A('s_and_b32 s76, s88, 0xfff\ns_bfe_u32 s77, s88, 0xc000c\ns_lshr_b64 s[78:79], s[88:89], 24\ns_xor_b32 s78, s78, s88\ns_bfe_u32 s79, s78, 0xc000c\ns_and_b32 s78, s78, 0xfff')
    A(f's_mul_i32 s52, s50, {16*KVS}\ns_lshr_b32 s49, s21, 1\ns_mul_i32 s49, s49, {8*KVS}\ns_add_u32 s52, s52, s49\ns_add_u32 s52, s52, {KVP_OFF}')
    if ZEARLY:
        for reg, add in ((13, 0), (22, 1)):
            A(f'v_and_b32 v8, 7, v2\nv_lshl_add_u32 v8, v8, 1, {add}\nv_lshlrev_b32 v9, 4, v8\nv_add_u32 v{reg}, 1600, v9\nv_add_u32 v9, {1600 + HSTR - 80}, v9\nv_cmp_lt_u32 vcc, 4, v8\ns_nop 1\nv_cndmask_b32 v{reg}, v{reg}, v9, vcc')
    A(f's_lshl_b32 s48, s21, 2\nv_add_u32 v23, s48, v0\nv_mov_b32 v244, 1\nv_mov_b32 v245, 2\nv_mov_b32 v246, 3')
    A('s_mov_b64 exec, 1\nds_write_b32 v23, v244 offset:192\ns_mov_b64 exec, -1')
    lds_wait(A, 23, 112, 248, 1, four=False, sleep=1)
    for t in range(5):
        A(f'ds_read_b64_tr_b16 {vr(224+4*t,2)}, v14 offset:{32*t}\nds_read_b64_tr_b16 {vr(226+4*t,2)}, v14 offset:{32*t + 640}')
    stamp(A, 25)
    lds_wait(A, 0, 72, 248, 1, four=False, sleep=2)
    if KVACK: A('s_waitcnt vmcnt(0)')
    if GDELAY: A(f's_sleep {GDELAY}')
    stamp(A, 26)
    A('s_mov_b32 s96, 0')
    A('L_pa_gather:')
    for p in range(8):
        if PAX:
            A(f's_lshl_b32 s53, s69, 1\ns_add_u32 s53, s53, {p}\ns_and_b32 s53, s53, 7\ns_mul_i32 s53, s53, {KVS}\ns_add_u32 s53, s53, s52')
            if p == 2 and PAX == 2: A('s_waitcnt vmcnt(0)')
        else:
            A(f's_add_u32 s53, s52, {KVS*p}')
        for ldi in range(2):
            A(f'buffer_load_dwordx4 {vr(24 + 8*p + 4*ldi)}, v{10+ldi}, s[40:43], s53 offen sc1')
    for p in range(8):
        A(f's_waitcnt vmcnt({2*(7-p)})')
        for r in range(24 + 8 * p, 32 + 8 * p):
            A(f'v_xor_b32 v{r}, s{76 + (r & 3)}, v{r}')
        for ldi in range(2):
            r = 24 + 8 * p + 4 * ldi; d = 8 + ldi
            if p == 0:
                A(f'v_or3_b32 v{d}, v{r}, v{r+1}, v{r+2}\nv_or_b32 v{d}, v{d}, v{r+3}')
            else:
                A(f'v_or3_b32 v{d}, v{d}, v{r}, v{r+1}\nv_or3_b32 v{d}, v{d}, v{r+2}, v{r+3}')
        if p:
            for j in range(0, 8, 2):
                A(f'v_pk_add_f32 {vr(24+j,2)}, {vr(24+j,2)}, {vr(24+8*p+j,2)}')
    A('v_cndmask_b32 v9, 0, v9, s[64:65]\nv_or_b32 v8, v8, v9\nv_and_b32 v8, 0xfff, v8\nv_cmp_ne_u32 vcc, 0, v8')
    A('s_cbranch_vccz L_pa_got')
    stamp(A, 35)
    A(f's_sleep {PSLEEP}\ns_add_u32 s96, s96, 1\ns_cmp_lt_u32 s96, {SPIN_MAX}\ns_cbranch_scc1 L_pa_gather')
    A('L_pa_got:')
    if STAMP: A('v_writelane_b32 v1, s96, 36')
    stamp(A, 27)
    A('ds_write_b128 v19, v[24:27]\nds_write_b128 v20, v[28:31]')
    A('s_mov_b64 exec, 1\nds_write_b32 v23, v244 offset:80\ns_mov_b64 exec, -1')
    lds_wait(A, 0, 80, 248, 1, sleep=0)
    stamp(A, 28)
    if ZEARLY:
        A('s_cmp_eq_u32 s51, 0\ns_cbranch_scc1 L_pa_noz')
        A(f'ds_read_b128 v[64:67], v13\nds_read_b128 v[68:71], v22\nds_read_b128 v[72:75], v13 offset:{2*HSTR}\nds_read_b128 v[76:79], v22 offset:{2*HSTR}\ns_waitcnt lgkmcnt(0)')
        for j in range(0, 8, 2):
            A(f'v_pk_add_f32 {vr(64+j,2)}, {vr(64+j,2)}, {vr(72+j,2)}')
        for j in range(4):
            A(f'v_cvt_pk_bf16_f32 v{80+j}, v{64+2*j}, v{65+2*j}')
        A('s_mov_b64 exec, 0xff\nbuffer_store_dwordx4 v[80:83], v15, s[40:43], s54 offen sc1\ns_mov_b64 exec, -1')
        A('L_pa_noz:')
    for w in range(2):
        for mt in range(2):
            A(f'ds_read_b128 {vr(24+20*w+8*mt)}, v12 offset:{2*w*HSTR + 1280*mt}\nds_read_b128 {vr(28+20*w+8*mt)}, v12 offset:{2*w*HSTR + 1280*mt + 16}')
        if not ZEARLY: A(f'ds_read_b64 {vr(40+20*w,2)}, v13 offset:{2*w*HSTR + 1600}')
    A('s_waitcnt lgkmcnt(0)')
    for j in range(0, 18, 2):
        A(f'v_pk_add_f32 {vr(24+j,2)}, {vr(24+j,2)}, {vr(44+j,2)}')
    for mt in range(2):
        b = 24 + 8 * mt
        for j in range(4):
            A(f'v_cvt_pk_bf16_f32 v{b+j}, v{b+2*j}, v{b+2*j+1}')
        for j in range(4):
            A(f'v_cndmask_b32 v{b+j}, 0, v{b+j}, {"s[60:61]" if j < 2 else "s[62:63]"}')
    A('v_cvt_pk_bf16_f32 v40, v40, v41\ns_nop 0')
    for mt in range(2):
        for t in range(5):
            A(f'v_mfma_f32_16x16x32_bf16 {vr(64+20*mt+4*t)}, {vr(24+8*mt)}, {vr(224+4*t)}, 0')
    A('s_mov_b64 exec, 0x3ff\nds_write_b32 v22, v40\ns_mov_b64 exec, -1\ns_nop 0' if not ZEARLY else 's_nop 3')
    for mt in range(2):
        if mt == 1: A('s_mov_b64 exec, 0xffff')
        for t in range(5):
            b = 64 + 20 * mt + 4 * t
            A(f'v_cvt_pk_bf16_f32 v{b}, v{b}, v{b+1}\nv_cvt_pk_bf16_f32 v{b+1}, v{b+2}, v{b+3}')
            A(f'ds_write_b64 v{17+mt}, {vr(b,2)} offset:{256*t}')
    A('s_mov_b64 exec, 1\nds_write_b32 v23, v245 offset:80\ns_mov_b64 exec, -1')
    lds_wait(A, 0, 80, 248, 2, sleep=0)
    for i in range(4):
        A(f'ds_read_b128 {vr(24+4*i)}, v21 offset:{1024*i}')
    for i in range(3):
        A(f's_waitcnt lgkmcnt({3-i})\nbuffer_store_dwordx4 {vr(24+4*i)}, v15, s[40:43], s{55+i} offen sc1')
    if ZEARLY: A('s_cmp_lg_u32 s51, 0\ns_cbranch_scc1 L_pa_no4')
    A('s_waitcnt lgkmcnt(0)\ns_mov_b64 exec, s[58:59]\nbuffer_store_dwordx4 v[36:39], v15, s[40:43], s54 offen sc1')
    A('L_pa_no4:')
    stamp(A, 29)
    if MACK: A('s_waitcnt vmcnt(0)')
    A('s_mov_b64 exec, 1\nds_write_b32 v23, v246 offset:80\ns_mov_b64 exec, -1')
    lds_wait(A, 0, 80, 248, 3, sleep=1)
    stamp(A, 30)


XCH = [0, 15360, 30720, WBASE + 4 * WSLOT]
def gen_awave(A):
    AC = 16; PQ = 96; MB = 176
    def a2(rt, t): return AC + 20 * rt + 4 * t
    def pq(kk, rt): return PQ + 16 * kk + 4 * rt
    A('s_load_dwordx2 s[8:9], s[0:1], 64')
    A(f'v_mov_b32 v0, {CT}')
    A('v_lshrrev_b32 v3, 4, v2\nv_and_b32 v4, 15, v2\nv_lshlrev_b32 v5, 4, v2\nv_lshlrev_b32 v6, 3, v2\nv_add_u32 v7, 4096, v5')
    A('s_cmp_lg_u32 s20, 0\ns_cbranch_scc1 L_a_g')
    A('s_and_b32 s69, s2, 7\ns_lshl_b32 s69, s69, 3\ns_bfe_u32 s48, s2, 0x30003\ns_add_u32 s69, s69, s48')
    A('s_lshr_b32 s18, s69, 2\ns_lshl_b32 s18, s18, 1\ns_and_b32 s48, s21, 1\ns_add_u32 s18, s18, s48\ns_and_b32 s19, s69, 3\ns_lshl_b32 s19, s19, 1\ns_lshr_b32 s48, s21, 1\ns_add_u32 s19, s19, s48')
    phase_a(A)
    A('s_branch L_a_sig')
    A('L_a_g:')
    get_epoch(A, 0, 8)
    set_flag(A, 74, 8)
    A('L_a_sig:')
    A(f'v_mov_b32 v8, 1\ns_lshl_b32 s48, s21, 2\nv_add_u32 v9, s48, v0\ns_mov_b64 exec, 1\nds_write_b32 v9, v8 offset:48\ns_mov_b64 exec, -1')
    stamp(A, 5)
    A('s_waitcnt lgkmcnt(0)')
    srd(A, 28, 8, 2621440)
    A('L_a_main:')
    A(f's_setprio {APRIO}')
    p2_ids(A)
    A(f's_lshr_b32 s48, s18, 1\ns_lshl_b32 s59, s48, {FSH}\ns_add_u32 s59, s59, {FG_OFF}')
    A('s_mul_i32 s48, s21, 5\ns_mul_i32 s54, s18, 68\ns_add_u32 s54, s54, s48\ns_add_u32 s54, s54, 48\ns_lshl_b32 s54, s54, 12')
    A(f's_mul_i32 s55, s19, 20\ns_add_u32 s55, s55, s48\ns_mul_i32 s55, s55, 5120\ns_add_u32 s55, s55, {M_OFF}')
    A(f's_lshl_b32 s53, s18, 8\ns_add_u32 s53, s53, {G_OFF}')
    A(f's_lshl_b32 s52, s19, 11\ns_lshl_b32 s49, s21, 9\ns_add_u32 s52, s52, s49\ns_add_u32 s52, s52, {ZB_OFF}')
    A(f's_lshl_b32 s58, s19, 11\ns_add_u32 s58, s58, {ZB_OFF}')
    A('v_lshlrev_b32 v14, 2, v4\nv_lshlrev_b32 v15, 7, v3')
    A('v_lshrrev_b32 v12, 2, v4\nv_cmp_eq_u32 s[60:61], v12, v3\nv_and_b32 v12, 1, v4\nv_cmp_eq_u32 s[62:63], 0, v12')
    A('s_and_b64 s[64:65], s[60:61], s[62:63]\ns_andn2_b64 s[66:67], s[60:61], s[62:63]')
    A(f's_mov_b32 s68, {EPS}\ns_mov_b32 s69, 0xffff0000')
    Q = []
    def ld(tag, txt):
        A(txt); Q.append(tag)
    def wait(tag):
        last = max(k for k, t in enumerate(Q) if t == tag)
        A(f's_waitcnt vmcnt({len(Q) - 1 - last})')
    def issueM(kk):
        A(f's_add_u32 s57, s55, {5120*kk}')
        for t in range(4):
            ld(('M', kk), f'buffer_load_dwordx4 {vr(mb(kk,t))}, v5, s[40:43], s57 offen offset:{1024*t} sc1')
        ld(('M', kk), f'buffer_load_dwordx4 {vr(mb(kk,4))}, v7, s[40:43], s57 offen sc1')
    ZR = 236
    ZIMG = CT + 1536
    mbuf = {0: MB, 1: MB + 20, 2: MB + 40, 3: MB, 4: MB + 20} if not M4 else {0: MB, 1: MB + 20, 2: MB + 40, 3: ZR, 4: MB}
    def mb(kk, t): return mbuf[kk] + 4 * t
    for j in range(4):
        A(f's_add_u32 s48, s21, {j+1}\ns_and_b32 s{70+j}, s48, 3')
    A('s_cmp_lg_u32 s21, 2\ns_cbranch_scc1 L_a_nopollg')
    A('s_cmp_eq_u32 s20, 0\ns_cbranch_scc1 L_a_nopollg')
    lds_wait(A, 0, 48, 8, 1, sleep=2)
    gpoll(A, 59, 8)
    A('L_a_nopollg:')
    if FINEG:
        A('s_lshl_b32 s74, 3, s21\ns_lshr_b32 s74, s74, 1')
    else:
        A('s_mov_b32 s74, 15')
    lds_wait_mask(A, 0, 64, 8, 's74')
    stamp(A, 11)
    if COOP_P:
        if KVFAST: A('s_cmp_eq_u32 s20, 0\ns_cbranch_scc1 L_a_nocp')
        A('s_mul_i32 s49, s19, 2560\ns_add_u32 s48, s54, s49' if not P84 else 's_and_b32 s49, s19, 3\ns_mul_i32 s49, s49, 5120\ns_add_u32 s48, s54, s49')
        A('v_lshlrev_b32 v8, 7, v2\n' + ('s_mov_b64 exec, 0xfffff' if not P84 else 's_mov_b32 exec_hi, 0xff') + '\nbuffer_load_dword v9, v8, s[40:43], s48 offen sc1\ns_mov_b64 exec, -1\ns_waitcnt vmcnt(0)')
        A('L_a_nocp:')
    stamp(A, 21)
    for j in range(4):
        A(f's_lshl_b32 s48, s{70+j}, 10\ns_add_u32 s56, s54, s48')
        for kk in range(5 if j < NRC else 0):
            A(f'buffer_load_dwordx4 {vr(pq(kk,j))}, v5, s[40:43], s56 offen {LL}')
            if kk < 4: A('s_add_u32 s56, s56, 4096')
    stamp(A, 22)
    lds_wait_mask(A, 0, 64, 8, 8)
    stamp(A, 23)
    for j in range(4):
        A(f's_lshl_b32 s48, s{70+j}, 6\ns_add_u32 s56, s53, s48\nbuffer_load_dword v{10+j}, v14, s[40:43], s56 offen {LL}')
    A(f'v_lshrrev_b32 v8, 2, v2\nv_and_b32 v9, 3, v2\nv_mul_u32_u24 v24, 80, v8\nv_lshl_add_u32 v24, v9, 4, v24\nv_add_u32 v24, {ZIMG}, v24\nv_lshlrev_b32 v26, 7, v8\nv_lshl_add_u32 v26, v9, 4, v26')
    A(f's_mul_i32 s76, s19, 102400\ns_and_b32 s49, s18, {7 if P84 else 3}\ns_mul_i32 s49, s49, {12800 if P84 else 25600}\ns_add_u32 s76, s76, s49\ns_mul_i32 s49, s21, {3200 if P84 else 6400}\ns_add_u32 s76, s76, s49\ns_add_u32 s76, s76, {M_OFF}\nv_lshlrev_b32 v27, 7, v2')
    lds_wait(A, 0, 72, 8, 1, four=False, sleep=2)
    A('s_cmp_lg_u32 s21, 1\ns_cbranch_scc1 L_a_oth2')
    if KVFAST == 2: A('s_cmp_eq_u32 s20, 0\ns_cbranch_scc1 L_a_nogate')
    if PQ_AT is not None: lds_wait(A, 0, 144, 16, 1, sleep=1)
    A('L_a_nogate:')
    stamp(A, 24)
    A('buffer_load_dwordx4 v[16:19], v26, s[40:43], s58 offen sc1\nbuffer_load_dwordx4 v[20:23], v26, s[40:43], s58 offen offset:16 sc1')
    if not ZEARLY: A('v_mov_b32 v8, 1\ns_mov_b64 exec, 1\nds_write_b32 v0, v8 offset:76\ns_mov_b64 exec, -1')
    A('L_a_oth2:')
    if not ZEARLY:
        lds_wait(A, 0, 76, 8, 1, four=False, sleep=2)
        A('s_mov_b32 exec_hi, 0x3ffff\nbuffer_load_dword v95, v27, s[40:43], s76 offen sc1\ns_mov_b32 exec_hi, -1')
    A('s_cmp_lg_u32 s21, 1\ns_cbranch_scc1 L_a_nopoll')
    A(f's_mov_b32 s96, 0\ns_waitcnt vmcnt({0 if ZEARLY else 1})\ns_branch L_a_zchk')
    A('L_a_zpoll:')
    A('buffer_load_dwordx4 v[16:19], v26, s[40:43], s58 offen sc1\nbuffer_load_dwordx4 v[20:23], v26, s[40:43], s58 offen offset:16 sc1\ns_waitcnt vmcnt(0)')
    A('L_a_zchk:')
    A('v_max3_u32 v9, v16, v18, v20\nv_max_u32 v9, v9, v22\nv_cmp_eq_u32 vcc, -1, v9')
    A('s_cbranch_vccz L_a_zok')
    A(f's_sleep {MSLEEP}\ns_add_u32 s96, s96, 1\ns_cmp_lt_u32 s96, {SPIN_MAX}\ns_cbranch_scc1 L_a_zpoll')
    A('L_a_zok:')
    if STAMP: A('v_writelane_b32 v1, s96, 36')
    A('ds_write_b128 v24, v[16:19]\nds_write_b128 v24, v[20:23] offset:16')
    A('v_mov_b32 v8, 1\ns_mov_b64 exec, 1\nds_write_b32 v0, v8 offset:68\ns_mov_b64 exec, -1')
    A('L_a_nopoll:')
    A(f's_mul_i32 s48, s21, 320\ns_add_u32 s48, s48, {ZIMG}\nv_mul_u32_u24 v15, 80, v3\nv_add_u32 v15, s48, v15')
    lds_wait(A, 0, 68, 8, 1, four=False, sleep=2)
    stamp(A, 10)
    for kk in range(5):
        A(f'ds_read_b128 {vr(ZR+4*kk)}, v15 offset:{16*kk}')
    if SPEC_M:
        A(f's_waitcnt vmcnt({0 if ZEARLY else 1})')
        if ZEARLY: A('v_mov_b32 v94, v27')
    elif COOP_M:
        A(f's_mul_i32 s48, s19, 102400\ns_and_b32 s49, s18, 3\ns_mul_i32 s49, s49, 25600\ns_add_u32 s48, s48, s49\ns_mul_i32 s49, s21, 6400\ns_add_u32 s48, s48, s49\ns_add_u32 s48, s48, {M_OFF}')
        A('v_lshlrev_b32 v8, 7, v2\ns_mov_b32 exec_hi, 0x3ffff\nbuffer_load_dword v9, v8, s[40:43], s48 offen sc1\ns_mov_b32 exec_hi, -1')
    else:
        issueM(0); issueM(1); issueM(2)
    A('s_waitcnt lgkmcnt(0)')
    for kk in range(5):
        for j in range(4):
            m = 's[66:67]' if (4 * kk + j) >= 10 else 's[64:65]'
            A(f'v_cndmask_b32 v{ZR+4*kk+j}, 0, v{ZR+4*kk+j}, {m}')
    den = [AC + 4 * rt for rt in range(4)]
    if not SPEC_M: A(f's_waitcnt vmcnt({1 if COOP_M else 15})')
    stamp(A, 17)
    A('s_nop 0')
    for kk in range(5):
        for rt in range(NRC):
            d = vr(den[rt])
            A(f'v_mfma_f32_16x16x32_bf16 {d}, {vr(ZR+4*kk)}, {vr(pq(kk,rt))}, {d if kk else 0}')
    A('s_nop 7')
    SC = ZR; T0 = ZR + 8
    for rt in range(NRC):
        A(f'v_add_f32 v{den[rt]}, s68, v{den[rt]}\nv_add_f32 v{den[rt]+1}, s68, v{den[rt]+1}')
    for rt in range(NRC):
        A(f'v_rcp_f32 v{den[rt]}, v{den[rt]}\nv_rcp_f32 v{den[rt]+1}, v{den[rt]+1}')
    A('s_nop 0')
    for rt in range(NRC):
        A(f'v_mul_f32 v{SC+2*rt}, v{10+rt}, v{den[rt]}\nv_mul_f32 v{SC+2*rt+1}, v{10+rt}, v{den[rt]+1}')
    def norm_ops(kk):
        L = []
        for rt in range(NRC):
            r = pq(kk, rt)
            for j in range(4):
                L += [f'v_lshlrev_b32 v{T0+2*j}, 16, v{r+j}', f'v_and_b32 v{T0+2*j+1}, s69, v{r+j}']
            for j in range(4):
                odd = 1 if (4 * kk + j) >= 10 else 0
                L += [f'v_mul_f32 v{T0+2*j}, v{SC+2*rt+odd}, v{T0+2*j}', f'v_mul_f32 v{T0+2*j+1}, v{SC+2*rt+odd}, v{T0+2*j+1}']
            for j in range(4):
                L += [f'v_cvt_pk_bf16_f32 v{r+j}, v{T0+2*j}, v{T0+2*j+1}']
        return L
    stamp(A, 20)
    if ZEARLY:
        for kk in range(NLEAD):
            if kk == ZC: A(('s_mov_b32 exec_hi, 0x3ffff' if not P84 else 's_mov_b64 exec, 0x1ffffff') + '\nbuffer_load_dword v95, v94, s[40:43], s76 offen sc1\ns_mov_b64 exec, -1')
            if kk == ZM0:
                A('s_waitcnt vmcnt(0)')
                issueM(0); issueM(1)
            if M4 and kk == ZM0 + 1: issueM(2)
            for l in norm_ops(kk): A(l)
        if not (M4 and ZM0 + 1 < NLEAD): issueM(2)
        if M4: issueM(3)
    else:
        A('s_waitcnt vmcnt(0)')
        issueM(0); issueM(1)
        for kk in range(NLEAD):
            for l in norm_ops(kk): A(l)
            if kk == 0: issueM(2)
    stamp(A, 6)
    A('v_sub_f32 v14, 1.0, v13')
    for j in range(3):
        A(f's_mul_i32 s48, s{70+j}, 15360\ns_cmp_eq_u32 s{70+j}, 3\ns_cselect_b32 s48, {XCH[3]}, s48\ns_add_u32 s48, s48, {(2-j)*5120}\nv_add_u32 v{10+j}, s48, v5')
    A(f's_lshl_b32 s48, s21, 11\ns_add_u32 s48, s48, {XCH[3] + 15360 - 3072}\nv_add_u32 v13, s48, v5')
    A(f's_mul_i32 s48, s21, 5120\ns_add_u32 s48, s48, {WBASE + 2*WSLOT}\nv_add_u32 v15, s48, v5\ns_lshl_b32 s48, s21, 2\nv_add_u32 v6, s48, v0')
    for kk in range(5):
        nxt = norm_ops(kk + NLEAD) if kk + NLEAD < 5 else []
        wait(('M', kk))
        A('s_mov_b32 s96, 0')
        A(f'L_a_mchk{kk}:')
        m0 = mb(kk, 0)
        A(f'v_max3_u32 v8, v{m0}, v{m0+2}, v{m0+4}')
        for k in (3, 5, 7):
            A(f'v_max3_u32 v8, v8, v{m0+2*k}, v{m0+2*k+2}')
        A(f'v_max_u32 v8, v8, v{m0+18}\nv_cmp_eq_u32 vcc, -1, v8')
        A(f's_cbranch_vccnz L_a_mre{kk}')
        A(f'L_a_mok{kk}:')
        stamp(A, 31 + kk)
        if kk == 4:
            lds_wait(A, 0, 96, PQ, 1, sleep=1)
        if NRC == 2:
            lds_wait(A, 6, 160, 8, kk + 1, four=False, sleep=1)
            A(f'ds_read_b128 {vr(pq(kk,2))}, v15 offset:{1024*kk}\nds_read_b128 {vr(pq(kk,3))}, v15 offset:{WSLOT + 1024*kk}')
        for rt in range(4):
            if NRC == 2 and rt == 2:
                A('s_waitcnt lgkmcnt(0)')
                if kk == 4:
                    A('v_mov_b32 v8, 1\ns_mov_b64 exec, 1\nds_write_b32 v6, v8 offset:176\ns_mov_b64 exec, -1')
            for t in range(5):
                d = vr(a2(rt, t))
                A(f'v_mfma_f32_16x16x32_bf16 {d}, {vr(mb(kk,t))}, {vr(pq(kk,rt))}, {d if kk else 0}')
                for _ in range(NRC):
                    if nxt: A(nxt.pop(0))
                if kk == 4 and rt >= 2:
                    A(f'ds_write_b128 v{10+rt-2}, {vr(a2(rt-2,t))} offset:{t*1024}')
        if M4:
            if kk == 0: issueM(4)
        elif kk < 2:
            issueM(kk + 3)
    stamp(A, 12)
    for t in range(5):
        A(f'ds_write_b128 v12, {vr(a2(2,t))} offset:{t*1024}')
    A(f's_lshl_b32 s48, s21, 8\nv_lshlrev_b32 v8, 2, v2\nv_add_u32 v8, s48, v8\nds_write_b32 v8, v14 offset:{46080}')
    for t in (3, 4):
        A(f'ds_write_b128 v13, {vr(a2(3,t))} offset:{t*1024}')
    OWN = a2(3, 0)
    A(f's_mul_i32 s50, s21, 15360\ns_cmp_eq_u32 s21, 3\ns_cselect_b32 s50, {XCH[3]}, s50')
    A(f's_mul_i32 s48, s21, {WSLOT}\ns_add_u32 s48, s48, {WBASE}\nv_add_u32 v8, s48, v5\nv_mov_b32 v15, v14\nv_add_u32 v7, s50, v5')
    A('s_lshl_b32 s48, s18, 6\ns_lshl_b32 s49, s21, 4\ns_add_u32 s48, s48, s49\nv_add_u32 v9, s48, v4\nv_mul_u32_u24 v9, 1280, v9\nv_lshl_add_u32 v9, v3, 3, v9\ns_mul_i32 s48, s19, 160')
    A('s_waitcnt lgkmcnt(0)')
    A('s_barrier')
    stamp(A, 13)
    for r in range(4):
        for t in range(3):
            A(f'ds_read_b128 {vr(PQ+12*r+4*t)}, v8 offset:{r*5120 + 1024*t}')
    A('s_waitcnt lgkmcnt(6)')
    for r in range(3):
        for t in range(3):
            A(f'ds_read_b128 {vr(AC+12*r+4*t)}, v7 offset:{r*5120 + 1024*t}')
    for k in range(0, 12, 2):
        A(f'v_pk_add_f32 {vr(PQ+k,2)}, {vr(PQ+k,2)}, {vr(PQ+12+k,2)}')
    A('s_waitcnt lgkmcnt(9)')
    for k in range(0, 12, 2):
        A(f'v_pk_add_f32 {vr(PQ+24+k,2)}, {vr(PQ+24+k,2)}, {vr(PQ+36+k,2)}')
    for k in range(0, 12, 2):
        A(f'v_pk_add_f32 {vr(PQ+k,2)}, {vr(PQ+k,2)}, {vr(PQ+24+k,2)}')
    for k in range(0, 12, 2):
        A(f'v_pk_fma_f32 {vr(OWN+k,2)}, {vr(PQ+k,2)}, v[14:15], {vr(OWN+k,2)}')
    for sl in range(3):
        A(f's_waitcnt lgkmcnt({6 - 3*sl})')
        for k in range(0, 12, 2):
            A(f'v_pk_add_f32 {vr(OWN+k,2)}, {vr(OWN+k,2)}, {vr(AC+12*sl+k,2)}')
    for t in range(3):
        b = OWN + 4 * t
        A(f'v_cvt_pk_bf16_f32 v{b}, v{b}, v{b+1}\nv_cvt_pk_bf16_f32 v{b+1}, v{b+2}, v{b+3}')
        A(f'buffer_store_dwordx2 {vr(b,2)}, v9, s[28:31], s48 offen offset:{32*t}')
    stamp(A, 14)
    finish(A)
    for kk in range(5):
        A(f'L_a_mre{kk}:')
        A('s_sleep 4')
        issueM(kk)
        A(f's_waitcnt vmcnt(0)\ns_add_u32 s96, s96, 1\ns_cmp_lt_u32 s96, {SPIN_MAX}\ns_cbranch_scc1 L_a_mchk{kk}')
        A(f's_branch L_a_mok{kk}')


def gen_loader(A):
    A.c('s67 = lw ; role constants: s68 strideA, s60 cA, s61 cB, s62 xB, s63 c4, s64 hi-mult')
    A('s_sub_u32 s67, s21, 4')
    A('s_mul_i32 s48, s19, 320\ns_add_u32 s48, s48, 1280\ns_and_b32 s57, s19, 1\ns_lshl_b32 s58, s57, 6\ns_add_u32 s58, s58, s48')
    A('s_xor_b32 s57, s57, 1\ns_lshl_b32 s57, s57, 8\ns_add_u32 s57, s57, s48\ns_add_u32 s59, s58, 1280')
    A('s_lshl_b32 s48, s22, 8\ns_lshl_b32 s49, s22, 7\ns_movk_i32 s56, 3072')
    A('s_cmp_eq_u32 s20, 0')
    A('s_cselect_b32 s68, 3840, s56\ns_cselect_b32 s60, s58, s48\ns_cselect_b32 s61, s59, s48\ns_cselect_b32 s62, 1, 0\ns_cselect_b32 s63, s57, s49\ns_cselect_b32 s64, 1280, 64')
    A(f's_cmp_lg_u32 s91, 0\ns_cselect_b32 s63, {OOB}, s63')
    A(f'v_mov_b32 v29, {OOB}\ns_lshl_b32 s75, s68, 5\ns_lshl_b32 s69, s18, 2\ns_add_u32 s69, s69, s19\nv_and_b32 v3, 31, v2\nv_lshrrev_b32 v4, 5, v2')
    A('s_movk_i32 s48, 3072\ns_cmp_eq_u32 s67, 1\ns_cselect_b32 s48, 3840, s48\ns_lshr_b32 s49, s48, 7\ns_lshl_b32 s85, s48, 6\ns_movk_i32 s56, 128')
    A('s_cmp_eq_u32 s67, 0\ns_cselect_b32 s48, 40960, s48\ns_cselect_b32 s49, 32, s49\ns_cselect_b32 s85, 128, s85\ns_cselect_b32 s56, 1280, s56\ns_mul_i32 s48, s48, s69')
    A('v_mul_u32_u24 v5, s56, v3\nv_mul_u32_u24 v6, s85, v4\nv_add3_u32 v5, v5, v6, s48\nv_cmp_gt_u32 vcc, s49, v3')
    st0 = sum(EV[m][0] << (4 * m) for m in EV)
    A(f's_lshl_b32 s56, s20, 2\ns_lshr_b32 s56, {hex(st0)}, s56\ns_and_b32 s56, s56, 15\nv_cndmask_b32 v30, v29, v5, vcc\ns_mul_i32 s56, s56, s85')
    A('s_mov_b32 s26, 2621440\ns_mov_b32 s27, 0x20000\ns_mov_b32 s31, 0x20000\ns_mov_b32 s35, 0x20000\ns_mov_b32 s39, 0x20000\ns_mov_b32 s83, 0x20000\ns_mov_b32 s48, 1966080\ns_mov_b32 s38, 2457600')
    A('s_cmp_eq_u32 s20, 0\ns_cselect_b32 s30, s38, s48\ns_mov_b32 s34, s30')
    A(f'v_mov_b32 v38, {CT}\nv_lshl_add_u32 v39, v2, 2, v38\nv_mov_b32 v44, 0\ns_lshl_b32 s71, s67, 8\nds_write_b32 v39, v44\nv_add_u32 v39, s71, v39\nds_write_b32 v39, v44 offset:256')
    A(f'v_and_b32 v39, 3, v2\nv_lshlrev_b32 v39, 8, v39\nv_add_u32 v39, {CT+256}, v39\ns_lshl_b32 s71, s67, 2\ns_add_u32 s71, s71, {CT}')
    A('s_cmp_eq_u32 s20, 0')
    A('s_waitcnt lgkmcnt(0)')
    A('s_mov_b32 s24, s4\ns_mov_b32 s25, s5\ns_mov_b32 s36, s6\ns_mov_b32 s37, s7')
    A('s_cselect_b32 s28, s6, s8\ns_cselect_b32 s29, s7, s9\ns_cselect_b32 s32, s6, s10\ns_cselect_b32 s33, s7, s11')
    A('s_cmp_eq_u32 s67, 2\ns_cselect_b32 s80, s8, s10\ns_cselect_b32 s81, s9, s11')
    A('s_cmp_eq_u32 s67, 1\ns_cselect_b32 s80, s6, s80\ns_cselect_b32 s81, s7, s81\ns_cselect_b32 s82, s38, s48')
    A('s_cmp_eq_u32 s67, 0\ns_cselect_b32 s80, s4, s80\ns_cselect_b32 s81, s5, s81\ns_cselect_b32 s82, s26, s82')
    stamp(A, 1)
    def issueW():
        for L in range(5):
            sr = 28 if L < 2 else (32 if L < 4 else 36)
            dma(A, f's_add_u32 m0, s77, {L*1024}', 10 + L, sr, 70 if L < 4 else 72)
        A('s_add_u32 s70, s70, s75\ns_add_u32 s72, s72, s76')
        A(f's_add_u32 s77, s77, {WSLOT}\ns_cmp_ge_u32 s77, {WBASE + NW*WSLOT}\ns_cselect_b32 s48, {NW*WSLOT}, 0\ns_sub_u32 s77, s77, s48')
    def issueX():
        for i in range(4):
            dma(A, f's_add_u32 m0, s78, {i*1024}', 16 + i, 24, 74)
        A('s_add_u32 s74, s74, 128')
        A(f's_add_u32 s78, s78, {XSLOT}\ns_cmp_ge_u32 s78, {NX*XSLOT}\ns_cselect_b32 s48, {NX*XSLOT}, 0\ns_sub_u32 s78, s78, s48')
    def flag():
        A('s_mov_b32 m0, s71\ns_lshl_b32 s48, s65, 2\ns_mov_b64 exec, 1\nbuffer_load_dword v44, s[8:11], s48 offen offset:0 lds\ns_mov_b64 exec, -1')
    A('s_mov_b32 s97, s56')
    if START2:
        A('s_lshr_b32 s56, s85, 6\ns_lshr_b32 s57, s85, 13\ns_cmp_eq_u32 s67, 0\ns_cselect_b32 s56, 10240, s56\ns_cselect_b32 s57, 64, s57\ns_mul_i32 s56, s56, s2')
        A(f's_cmp_ge_u32 s2, {START2}\ns_cselect_b32 s48, s67, 0\ns_cmp_lg_u32 s48, 0\ns_cselect_b32 s57, 0, s57')
        A('v_lshlrev_b32 v34, 7, v2\nv_cmp_gt_u32 vcc, s57, v2\ns_nop 1\nv_cndmask_b32 v34, v29, v34, vcc')
        A('buffer_load_dword v36, v34, s[80:83], s56 offen')
        A('s_cmp_lg_u32 s67, 0\ns_cbranch_scc1 L_nor0')
        A('s_add_u32 s56, s56, 8192\ns_mov_b64 exec, 0xffff\nbuffer_load_dword v37, v34, s[80:83], s56 offen\ns_mov_b64 exec, -1\nv_mov_b32 v30, v29')
        A('s_branch L_nor0')
    A('s_cmp_eq_u32 s20, 0\ns_cbranch_scc1 L_nor0' if not R0LATE else 's_cmp_lg_u32 s20, 1\ns_cbranch_scc1 L_nor0')
    if NOPF != 2: A('s_mov_b32 exec_hi, 0\nbuffer_load_dword v36, v30, s[80:83], s56 offen\ns_mov_b32 exec_hi, -1')
    A('L_nor0:')
    A('s_barrier')
    A('s_cmp_eq_u32 s55, 0\ns_cbranch_scc1 L_nogw0')
    srd(A, 44, 14, 1280)
    A('v_lshlrev_b32 v40, 1, v2')
    for j in range(10):
        A(f'buffer_load_ushort v{50+j}, v40, s[44:47], 0 offen offset:{128*j}')
    A('L_nogw0:')
    A('v_lshrrev_b32 v3, 3, v2\nv_and_b32 v4, 7, v2')
    A('s_lshl_b32 s48, s18, 7\ns_lshl_b32 s56, s67, 5\ns_add_u32 s48, s48, s56\nv_add_u32 v7, s48, v3\nv_mul_u32_u24 v7, 1280, v7')
    A('v_lshrrev_b32 v8, 4, v2\nv_xor_b32 v8, v8, v4\nv_lshl_add_u32 v16, v8, 4, v7')
    A('v_xor_b32 v8, 4, v8\nv_lshl_add_u32 v17, v8, 4, v7\nv_add_u32 v17, 10240, v17')
    A('v_add_u32 v18, 20480, v16\nv_add_u32 v19, 20480, v17')
    A('s_lshl_b32 s56, s67, 3\nv_add_u32 v5, s56, v3')
    A('s_and_b32 s56, s67, 1\ns_lshl_b32 s56, s56, 2\nv_and_b32 v6, 2, v3\nv_xor_b32 v6, v6, v4\nv_xor_b32 v6, s56, v6')
    A('v_mul_u32_u24 v7, s68, v5\nv_lshl_add_u32 v8, v6, 4, v7\nv_add_u32 v10, s60, v8\nv_add_u32 v11, 128, v10')
    A('v_xor_b32 v9, s62, v6\nv_lshl_add_u32 v8, v9, 4, v7\nv_add_u32 v12, s61, v8\nv_add_u32 v13, 128, v12')
    A('v_lshrrev_b32 v8, 2, v6\nv_and_b32 v9, s62, v8\nv_and_b32 v6, 3, v6\nv_xor_b32 v6, v6, v9\nv_mul_u32_u24 v7, 3840, v5')
    A('v_lshl_add_u32 v7, v6, 4, v7\nv_mul_u32_u24 v8, s64, v8\nv_add3_u32 v14, v7, v8, s63')
    A(f's_mov_b32 s76, {32*3840}\ns_mov_b32 s70, 0\ns_mov_b32 s72, 0\ns_mov_b32 s74, 0')
    A(f's_mul_i32 s77, s67, 5120\ns_add_u32 s77, s77, {WBASE}\ns_lshl_b32 s78, s67, 12')
    issueX(); issueW()
    if L2PF:
        A('s_cmp_eq_u32 s67, 2\ns_cselect_b32 s48, s60, s61\ns_cselect_b32 s4, s28, s32\ns_cselect_b32 s5, s29, s33\ns_mov_b32 s6, s30\ns_mov_b32 s49, s68\ns_movk_i32 s56, 128')
        A('s_cmp_eq_u32 s67, 1\ns_cselect_b32 s48, s63, s48\ns_cselect_b32 s4, s36, s4\ns_cselect_b32 s5, s37, s5\ns_cselect_b32 s6, s38, s6\ns_cselect_b32 s49, 3840, s49\ns_cselect_b32 s56, s64, s56')
        A('s_lshl_b32 s94, s49, 6\ns_lshl_b32 s57, s23, 3\nv_add_u32 v33, s57, v4\nv_bfe_u32 v34, v2, 4, 1\nv_lshl_add_u32 v33, v34, 6, v33\nv_mul_u32_u24 v33, s49, v33')
        A('v_bfe_u32 v34, v2, 3, 1\nv_mul_u32_u24 v34, s56, v34\nv_add3_u32 v33, v33, v34, s48\nv_cmp_gt_u32 vcc, 32, v2\ns_mov_b32 s7, 0x20000\ns_nop 0\nv_cndmask_b32 v33, v29, v33, vcc')
        A('s_cmp_lg_u32 s67, 0\ns_cbranch_scc1 L_l2x')
        A('s_mov_b32 s4, s24\ns_mov_b32 s5, s25\ns_mov_b32 s6, s26\ns_movk_i32 s94, 128\ns_lshl_b32 s48, s18, 7\ns_lshl_b32 s49, s20, 5\ns_add_u32 s48, s48, s49')
        A('v_and_b32 v33, 31, v2\nv_add_u32 v33, s48, v33\nv_mul_u32_u24 v33, 1280, v33\nv_lshrrev_b32 v34, 5, v2\nv_lshl_add_u32 v33, v34, 7, v33')
        A('L_l2x:')
        A(f's_mul_i32 s95, s94, {L2PF}\ns_lshl_b32 s94, s94, 1')
    A('s_load_dwordx2 s[86:87], s[0:1], 72')
    A('s_cmp_eq_u32 s55, 0\ns_cbranch_scc1 L_nogw')
    A('v_and_b32 v41, 3, v2\nv_lshlrev_b32 v41, 3, v41')
    A('v_bfe_u32 v40, v2, 2, 1\nv_lshl_add_u32 v41, v40, 9, v41')
    A('v_bfe_u32 v40, v2, 3, 2\nv_lshl_add_u32 v41, v40, 5, v41')
    A(f'v_bfe_u32 v40, v2, 5, 1\nv_mul_u32_u24 v40, {GWS}, v40\nv_add_u32 v41, v40, v41')
    A(f'v_add_u32 v41, {GWBASE}, v41')
    A('s_waitcnt vmcnt(9)')
    for j in range(10):
        A(f'v_lshl_or_b32 v{80+2*j}, v{50+j}, 16, v{50+j}\nv_mov_b32 v{81+2*j}, v{80+2*j}')
        A(f'ds_write_b64 v41, v[{80+2*j}:{81+2*j}] offset:{2*GWS*j}')
    A('L_nogw:')
    srd(A, 40, 16, WS_USED)
    srd(A, 44, 12, 1966080)
    A('s_waitcnt lgkmcnt(0)')
    A('s_lshl_b32 s48, s2, 2\ns_add_u32 s48, s48, s67\ns_cmp_lg_u32 s48, 0\ns_cbranch_scc1 L_noep')
    A('s_memrealtime s[88:89]\ns_waitcnt lgkmcnt(0)\ns_or_b32 s88, s88, 1\nv_mov_b32 v42, s88\nv_mov_b32 v43, s89')
    A('s_mov_b64 exec, 1\nglobal_store_dwordx2 v44, v[42:43], s[86:87] sc1\ns_mov_b64 exec, -1')
    A('L_noep:')
    A('v_lshlrev_b32 v5, 4, v2\nv_lshlrev_b32 v6, 3, v2\nv_add_u32 v7, 4096, v5')
    assert RPORD.index(10) >= 8
    tab = sum(RPORD.index(t) << (4 * t) for t in range(12))
    A(f's_mov_b32 s56, {hex(tab & 0xffffffff)}\ns_mov_b32 s57, {hex(tab >> 32)}\ns_lshl_b32 s48, s22, 2\ns_lshr_b64 s[56:57], s[56:57], s48\ns_and_b32 s48, s56, 15\ns_lshl_b32 s48, s48, 4\ns_add_u32 s48, s48, s18')
    A('s_sub_u32 s60, s48, 120\ns_lshl_b32 s60, s60, 2\ns_add_u32 s60, s60, s67\ns_lshl_b32 s92, s48, 1\ns_add_u32 s92, s92, s67')
    A('s_cmp_lt_u32 s67, 2\ns_cselect_b32 s92, s92, 999\ns_cmp_lt_u32 s92, 240\ns_cselect_b32 s64, 1, 0\ns_cmp_lt_u32 s60, 256\ns_cselect_b32 s64, 2, s64')
    A('s_mul_i32 s62, s92, 52429\ns_lshr_b32 s62, s62, 18\ns_mul_i32 s63, s62, 5\ns_sub_u32 s63, s92, s63')
    A(f's_mul_i32 s79, s62, {32*1280}\ns_lshl_b32 s56, s63, 8\ns_add_u32 s79, s79, s56\ns_lshl_b32 s63, s63, 3\ns_mul_i32 s62, s62, 5')
    A(f's_lshl_b32 s92, s92, 3\ns_add_u32 s92, s92, {FW_OFF}\ns_lshl_b32 s93, s67, 12\ns_add_u32 s93, s93, {RPK}')
    A(f's_lshl_b32 s48, s60, 3\ns_add_u32 s48, s48, {FP_OFF}\ns_cmp_eq_u32 s64, 2\ns_cselect_b32 s92, s48, s92')
    A('v_and_b32 v8, 2, v3\nv_xor_b32 v8, v8, v4\nv_mul_u32_u24 v9, 1280, v3\nv_lshl_add_u32 v20, v8, 4, v9')
    A('v_xor_b32 v8, 4, v8\nv_lshl_add_u32 v21, v8, 4, v9\nv_add_u32 v21, 10240, v21\nv_add_u32 v22, 20480, v20\nv_add_u32 v23, 20480, v21')
    A('v_lshrrev_b32 v8, 2, v2\nv_and_b32 v9, 3, v2\nv_lshlrev_b32 v8, 7, v8\nv_lshl_add_u32 v8, v9, 3, v8\nv_add_u32 v8, s93, v8')
    A('v_bfe_u32 v9, v2, 3, 1\nv_lshrrev_b32 v28, 5, v2\nv_lshl_add_u32 v9, v28, 1, v9')
    for tl in range(4):
        A(f'v_xor_b32 v28, {tl}, v9\nv_lshl_add_u32 v{24+tl}, v28, 5, v8')
    A('v_mul_u32_u24 v31, 1280, v2')
    if 'NODUTY' in EXP: A('s_mov_b32 s64, 0')
    pk = {m: sum(((t | (b0 << 4)) << (8 * k)) for k, (t, b0) in enumerate(EV[m][1])) | (0xFF << (8 * len(EV[m][1]))) for m in EV}
    A(f's_mov_b32 s84, -1\ns_cmp_eq_u32 s20, 1\ns_cselect_b32 s84, {hex(pk[1])}, s84\ns_cmp_eq_u32 s20, 2\ns_cselect_b32 s84, {hex(pk[2])}, s84\ns_cmp_eq_u32 s20, 3\ns_cselect_b32 s84, {hex(pk[3])}, s84\ns_and_b32 s58, s84, 15')
    AC = 24; WR = 104; HBUF = 224
    def a2(rt, t): return AC + 20 * rt + 4 * t
    regset = {0: 0, 1: 1, 2: 2, 9: 3, 10: 4, 11: 5}
    lds_unit = {3: WBASE, 4: WBASE + WSLOT, 5: WBASE + 2*WSLOT, 6: WBASE + 3*WSLOT, 7: 20480, 8: WBASE + 4*WSLOT}
    def kidx(i, dst):
        A(f's_add_u32 s{dst}, s23, {i}\ns_cmp_ge_u32 s{dst}, 12\ns_cselect_b32 s48, 12, 0\ns_sub_u32 s{dst}, s{dst}, s48')
    def w2reg(i):
        kidx(i, 56)
        A('s_mul_i32 s56, s56, 5120\ns_add_u32 s56, s56, s50')
        for t in range(5):
            b = WR + 20 * regset[i] + 4 * t
            if t == 0: A(f's_waitcnt vmcnt({STG_THR})')
            A(f'buffer_load_dwordx4 {vr(b)}, v{5 if t < 4 else 7}, s[40:43], s56 offen offset:{1024*(t&3)} sc1')
    def w2lds(i):
        kidx(i, 56)
        A('s_mul_i32 s56, s56, 5120\ns_add_u32 s56, s56, s50')
        A(f's_add_u32 m0, s52, {lds_unit[i]}\ns_waitcnt vmcnt({STG_THR})')
        for t in range(4):
            A(f'buffer_load_dwordx4 v5, s[40:43], s56 offen offset:{1024*t} sc1 lds')
        A(f's_add_u32 m0, s52, {lds_unit[i] + 4096}\ns_nop 0')
        A('buffer_load_dwordx4 v7, s[40:43], s56 offen sc1 lds')
    def trace():
        if STAMP and 'quiet' not in EXP:
            A('s_memtime s[98:99]\ns_add_u32 s48, s65, 38\ns_mov_b32 m0, s48\ns_waitcnt lgkmcnt(0)\nv_writelane_b32 v1, s98, m0')
    def ensure_free():
        if 'nofree' in EXP: return
        l = A.label('L_free')
        A(f's_sub_u32 s57, s65, 4\ns_cmp_ge_i32 s66, s57\ns_cbranch_scc1 {l}')
        tbeg(A)
        lds_wait(A, 39, 0, 48, 's57', four='free', sdst=66, sleep=LSLEEP)
        tend(A, 100)
        A(f'{l}:')
    stamp(A, 2)
    table_srd(A, 8)
    A('s_mov_b32 s65, 1\ns_mov_b32 s66, 0')
    flag()
    if R0LATE:
        A('s_cmp_lt_u32 s20, 2\ns_cbranch_scc1 L_nor1')
        A('s_mov_b32 exec_hi, 0\nbuffer_load_dword v36, v30, s[80:83], s97 offen\ns_mov_b32 exec_hi, -1')
        A('L_nor1:')
    A('s_branch L_ld_odd')
    A('.p2align 3')
    A('L_ld_loop:')
    ensure_free()
    if L2PF:
        A(f's_bitcmp1_b32 s65, 1\ns_cbranch_scc0 L_nol2\ns_cmp_gt_u32 s65, {2 + 4 * ((9 - L2PF) // 2)}\ns_cbranch_scc1 L_nol2')
        A('buffer_load_dword v35, v33, s[4:7], s95 offen\ns_add_u32 s95, s95, s94')
        A('L_nol2:')
    issueX(); issueW()
    trace()
    A('s_add_u32 s65, s65, 1')
    flag()
    A('L_ld_odd:')
    ensure_free()
    issueW()
    trace()
    A('s_lshr_b32 s49, s65, 1\ns_add_u32 s65, s65, 1')
    flag()
    A('s_cmp_eq_u32 s49, s58\ns_cbranch_scc1 L_ev_round')
    A('L_ev_r1:')
    A('s_cmp_lt_u32 s65, 20\ns_cbranch_scc1 L_ld_loop')
    A('s_branch L_ld_done')
    A('L_ev_round:')
    A('s_bfe_u32 s59, s84, 0x40004\ns_lshr_b32 s84, s84, 8\ns_and_b32 s58, s84, 15')
    A('s_cmp_gt_u32 s59, 9\ns_cbranch_scc1 L_ev_flag')
    if NOPF:
        A('s_cmp_eq_u32 s64, 0\ns_cbranch_scc1 L_ev_r1')
    elif EVW & 1:
        lds_wait(A, 38, 0, 48, 's65')
    if NOPF:
        pass
    else:
        A('s_mul_i32 s56, s85, s59\nbuffer_load_dword v36, v30, s[80:83], s56 offen')
    if THIRD and not NOPF:
        A(f's_cmp_lg_u32 s59, {THIRD}\ns_cbranch_scc1 L_ev_no3')
        A('s_mul_i32 s56, s85, 9\ns_mov_b32 exec_hi, 0\nbuffer_load_dword v37, v30, s[80:83], s56 offen\ns_mov_b32 exec_hi, -1')
        A('L_ev_no3:')
    A('s_cmp_eq_u32 s64, 0\ns_cbranch_scc1 L_ev_rw')
    A('global_load_dwordx2 v[42:43], v44, s[86:87] sc1')
    A('s_cmp_eq_u32 s64, 2\ns_cbranch_scc1 L_ev_poison')
    A('s_mov_b32 exec_hi, 0\nbuffer_load_dword v37, v31, s[44:47], s79 offen offset:128\ns_mov_b32 exec_hi, -1')
    for e in range(2):
        for g in range(4):
            dma(A, f's_add_u32 m0, s93, {g*1024}', 20 + g, 44, 79)
        A('s_add_u32 s79, s79, 128')
        A('s_waitcnt vmcnt(0)')
        for tl in range(4):
            A(f'ds_read_b64_tr_b16 {vr(64+16*e+4*tl,2)}, v{24+tl}\nds_read_b64_tr_b16 {vr(66+16*e+4*tl,2)}, v{24+tl} offset:2048')
        A('s_waitcnt lgkmcnt(0)')
    if not DEFER:
        for tl in range(8):
            A(f's_add_u32 s56, s63, {tl}\ns_mul_i32 s57, s56, 52429\ns_lshr_b32 s57, s57, 18\ns_mul_i32 s57, s57, 235\ns_add_u32 s57, s57, s56\ns_add_u32 s57, s57, s62\ns_lshl_b32 s57, s57, 10\ns_add_u32 s57, s57, {W2_OFF}')
            A(f'buffer_store_dwordx4 {vr(64+4*tl)}, v5, s[40:43], s57 offen sc1')
    A('s_branch L_ev_r1')
    A('L_ev_poison:')
    A('v_mov_b32 v64, -1\nv_mov_b32 v65, -1\nv_mov_b32 v66, -1\nv_mov_b32 v67, -1')
    A(f's_mul_i32 s56, s60, 3200\ns_add_u32 s56, s56, {M_OFF}\ns_lshl_b32 s57, s60, 7\ns_add_u32 s57, s57, {ZB_OFF}\ns_cmp_lt_u32 s60, 128\ns_cselect_b32 s57, s57, {OOB}')
    for k in range(3):
        A(f'buffer_store_dwordx4 v[64:67], v5, s[40:43], s56 offen offset:{1024*k} sc1')
    A('s_mov_b64 exec, 0xff\nbuffer_store_dwordx4 v[64:67], v5, s[40:43], s56 offen offset:3072 sc1')
    A('buffer_store_dwordx4 v[64:67], v5, s[40:43], s57 offen sc1\ns_mov_b64 exec, -1')
    A('L_ev_rw:')
    if EVW & 2: A('s_waitcnt vmcnt(0)')
    A('s_branch L_ev_r1')
    A('L_ev_flag:')
    A('s_cmp_eq_u32 s64, 0\ns_cbranch_scc1 L_ev_r1')
    if DEFER:
        A('s_cmp_eq_u32 s59, 15\ns_cbranch_scc1 L_ev_fl2\ns_cmp_lg_u32 s64, 1\ns_cbranch_scc1 L_ev_r1')
        for tl in range(8):
            A(f's_add_u32 s56, s63, {tl}\ns_mul_i32 s57, s56, 52429\ns_lshr_b32 s57, s57, 18\ns_mul_i32 s57, s57, 235\ns_add_u32 s57, s57, s56\ns_add_u32 s57, s57, s62\ns_lshl_b32 s57, s57, 10\ns_add_u32 s57, s57, {W2_OFF}')
            A(f'buffer_store_dwordx4 {vr(64+4*tl)}, v5, s[40:43], s57 offen sc1')
        A('s_branch L_ev_r1')
        A('L_ev_fl2:')
    l0 = A.label('L_ep'); l1 = A.label('L_epok')
    A('s_mov_b32 s90, 0\ns_waitcnt vmcnt(15)')
    A(f'{l0}:')
    A('v_readfirstlane_b32 s88, v42')
    A(f's_cmp_lg_u32 s88, 0\ns_cbranch_scc1 {l1}')
    A('s_sleep 4\nglobal_load_dwordx2 v[42:43], v44, s[86:87] sc1\ns_waitcnt vmcnt(0)')
    A(f's_add_u32 s90, s90, 1\ns_cmp_lt_u32 s90, {SPIN_MAX}\ns_cbranch_scc1 {l0}')
    A(f'{l1}:')
    A('s_mov_b64 exec, 1\nbuffer_store_dwordx2 v[42:43], v44, s[40:43], s92 offen sc1\ns_mov_b64 exec, -1')
    A('s_branch L_ev_r1')
    A('L_ld_done:')
    trace()
    if 'p1' in EXP: finish(A)
    A('s_cmp_lg_u32 s20, 0\ns_cbranch_scc1 L_nowo')
    if PAX:
        A('s_and_b32 s69, s2, 7\ns_lshl_b32 s69, s69, 3\ns_bfe_u32 s48, s2, 0x30003\ns_add_u32 s69, s69, s48')
    A('s_load_dwordx2 s[24:25], s[0:1], 16\ns_mov_b32 s26, 819200\ns_mov_b32 s27, 0x20000')
    A('s_lshr_b32 s48, s69, 2\ns_lshl_b32 s48, s48, 1\ns_and_b32 s49, s67, 1\ns_add_u32 s48, s48, s49\ns_mul_i32 s48, s48, 25600')
    A('s_and_b32 s49, s69, 3\ns_lshl_b32 s49, s49, 1\ns_lshr_b32 s56, s67, 1\ns_add_u32 s49, s49, s56\ns_mul_i32 s49, s49, 160\ns_add_u32 s48, s48, s49')
    A('v_lshrrev_b32 v8, 1, v2\nv_mul_u32_u24 v8, 1280, v8\nv_and_b32 v9, 1, v2\nv_mul_u32_u24 v9, 156, v9\nv_add_u32 v8, v8, v9')
    A('s_mov_b32 s73, s48\ns_waitcnt lgkmcnt(0)\nbuffer_load_dword v36, v8, s[24:27], s48 offen')
    A('L_nowo:')
    def bsetup():
        p2_ids(A)
        A(('s_mul_i32 s23, s19, 3\ns_lshr_b32 s23, s23, 1\ns_and_b32 s48, s18, 3' if not P84 else 's_bfe_u32 s23, s18, 0x20001\ns_and_b32 s48, s18, 1\ns_lshl_b32 s48, s48, 2\ns_add_u32 s23, s23, s48\ns_mul_i32 s23, s23, 3\ns_lshr_b32 s23, s23, 1\ns_and_b32 s48, s19, 3') + '\ns_mul_i32 s48, s48, 3\ns_add_u32 s23, s23, s48\ns_cmp_ge_u32 s23, 12\ns_cselect_b32 s48, 12, 0\ns_sub_u32 s23, s23, s48')
        if XROT: A(f's_and_b32 s48, s2, 7\ns_mul_i32 s48, s48, {XROT}\ns_lshr_b32 s48, s48, 3\ns_add_u32 s23, s23, s48\ns_cmp_ge_u32 s23, 12\ns_cselect_b32 s48, 12, 0\ns_sub_u32 s23, s23, s48')
        A(f's_mul_i32 s48, s67, 12\ns_mul_i32 s50, s19, 48\ns_add_u32 s50, s50, s48\ns_mul_i32 s50, s50, 5120\ns_add_u32 s50, s50, {W2_OFF}')
        A('s_mul_i32 s51, s18, 68\ns_add_u32 s51, s51, s48\ns_lshl_b32 s51, s51, 12')
        A('s_mul_i32 s52, s67, 5120')
    A(f'v_mov_b32 v0, {CT}')
    bsetup()
    A(f's_mul_i32 s53, s67, 480\ns_mul_i32 s48, s19, 5\ns_lshr_b32 s48, s48, 2\ns_add_u32 s53, s53, {FW_OFF}')
    A('v_lshrrev_b32 v8, 1, v2\nv_mul_u32_u24 v8, 40, v8\nv_and_b32 v9, 1, v2\nv_add_u32 v9, s48, v9\nv_lshrrev_b32 v9, 1, v9\nv_lshl_add_u32 v28, v9, 3, v8')
    A(f's_lshr_b32 s48, s18, 1\ns_lshl_b32 s54, s48, {FSH}\ns_add_u32 s54, s54, {FG_OFF}')
    A(f's_mov_b32 s55, {FP_OFF}\ns_mov_b32 s90, 0\nv_cmp_gt_u32 s[58:59], 24, v2')
    A('L_b_chk:')
    A('global_load_dwordx2 v[42:43], v44, s[86:87] sc1')
    A('s_mov_b64 exec, s[58:59]\nbuffer_load_dwordx2 v[46:47], v28, s[40:43], s53 offen sc1\ns_mov_b64 exec, -1')
    A('s_cmp_lg_u32 s67, 1\ns_cbranch_scc1 L_b_chk1')
    A('buffer_load_dwordx4 v[48:51], v5, s[40:43], s55 offen sc1\nbuffer_load_dwordx4 v[52:55], v5, s[40:43], s55 offen offset:1024 sc1')
    A('L_b_chk1:')
    A('s_waitcnt vmcnt(0)')
    A('v_readfirstlane_b32 s88, v42\nv_readfirstlane_b32 s89, v43\ns_nop 1')
    A('v_cmp_ne_u64 s[60:61], s[88:89], v[46:47]\ns_and_b64 s[60:61], s[60:61], s[58:59]')
    A('s_cmp_lg_u32 s67, 1\ns_cbranch_scc1 L_b_chk2')
    A('v_cmp_ne_u64 s[62:63], s[88:89], v[48:49]\ns_or_b64 s[60:61], s[60:61], s[62:63]\nv_cmp_ne_u64 s[62:63], s[88:89], v[50:51]\ns_or_b64 s[60:61], s[60:61], s[62:63]')
    A('v_cmp_ne_u64 s[62:63], s[88:89], v[52:53]\ns_or_b64 s[60:61], s[60:61], s[62:63]\nv_cmp_ne_u64 s[62:63], s[88:89], v[54:55]\ns_or_b64 s[60:61], s[60:61], s[62:63]')
    A('L_b_chk2:')
    A('s_cmp_eq_u32 s88, 0\ns_cselect_b32 s60, 1, s60\ns_cmp_eq_u64 s[60:61], 0\ns_cbranch_scc1 L_b_chkok')
    if 'NODUTY' in EXP: A('s_branch L_b_chkok')
    A(f's_sleep 24\ns_add_u32 s90, s90, 1\ns_cmp_lt_u32 s90, {SPIN_MAX}\ns_cbranch_scc1 L_b_chk')
    A('L_b_chkok:')
    A('s_cmp_lg_u32 s67, 1\ns_cbranch_scc1 L_b_nofp')
    A('v_mov_b32 v46, 1\ns_mov_b64 exec, 1\nds_write_b64 v0, v[42:43] offset:32\nds_write_b32 v0, v46 offset:72\ns_mov_b64 exec, -1')
    A('L_b_nofp:')
    stamp(A, 37)
    rest = []
    A('s_cmp_eq_u32 s20, 0\ns_cbranch_scc1 L_b_kv')
    for i in (0, 1, 2, 9, 10, 11):
        w2reg(i)
    stamp(A, 22)
    lds_wait(A, 39, 0, 48, 20, four='free', sleep=LSLEEP)
    for k, i in enumerate((3, 4, 5, 6, 7, 8)):
        if k == GEARLY:
            lds_wait(A, 38, 48, 48, 1, sleep=4)
            stamp(A, 9)
        w2lds(i); stamp(A, 16 + k)
    A('s_branch L_b_common')
    A('L_b_kv:')
    order = [3, 4, 5, 7, 6, 8, 0, 1, 2, 9, 10, 11]
    need = {3: 16, 4: 17, 5: 18}
    def stage(i):
        (w2reg if i in regset else w2lds)(i)
    for i in order[:WOAT]:
        lds_wait(A, 39, 0, 48, need[i], four='free', sleep=LSLEEP)
        w2lds(i)
    lds_wait(A, 39, 0, 48, 20, four='free', sleep=LSLEEP)
    for i in range(5):
        A(f'v_add_u32 v12, {64*i}, v2\nv_mul_u32_u24 v13, 6554, v12\nv_lshrrev_b32 v13, 16, v13\nv_mul_u32_u24 v14, 10, v13\nv_sub_u32 v14, v12, v14')
        A(f'v_mul_u32_u24 v13, 1280, v13\nv_lshl_add_u32 v13, v14, 4, v13\ns_add_u32 m0, s52, {1024*i}\ns_nop 0')
        A('buffer_load_dwordx4 v13, s[24:27], s73 offen lds')
    A(f's_lshl_b32 s48, s67, 2\ns_add_u32 m0, s48, {CT + 112}\ns_mov_b64 exec, 1\nbuffer_load_dword v44, s[8:11], 4 offen lds\ns_mov_b64 exec, -1')
    stamp(A, 9)
    for i in order[WOAT:KVN]:
        stage(i)
    stamp(A, 8)
    if KVN < 12:
        lds_wait(A, 0, 192, 48, 1, sleep=4)
        for i in order[KVN:]:
            stage(i)
    stamp(A, 10)
    lds_wait(A, 0, 80, 48, KVG, sleep=4)
    A('s_cmp_lg_u32 s67, 3\ns_cbranch_scc1 L_b_common')
    gpoll(A, 54, 46)
    A('L_b_common:')
    hbufs = [HBUF, HBUF + 16, WR + 40]
    def hb(i, rt):
        k = i if i < 2 else (0 if i == 2 else (i - 3 + 1) % 3 if False else None)
        return None
    hmap = {0: 0, 1: 1, 2: 0, 3: 1}
    for i in range(4, 12):
        hmap[i] = [0, 2, 1][(i - 4) % 3]
    def hb(i, rt): return hbufs[hmap[i]] + 4 * rt
    A('v_add_u32 v8, s52, v5')
    A(f'v_add_u32 v9, {WBASE + 2*WSLOT}, v8')
    def rdW(i, rs):
        u = lds_unit[i]
        va, off = (8, u) if u < WBASE + WSLOT - 5120 else ((9, u - (WBASE + 2*WSLOT)) if u >= WBASE + 2*WSLOT else (12, 0))
        for t in range(5):
            A(f'ds_read_b128 {vr(WR+20*rs+4*t)}, v{va} offset:{off + 1024*t}')
    A(f'v_add_u32 v12, {WBASE + WSLOT}, v8')
    A('s_load_dwordx2 s[28:29], s[0:1], 64\ns_mov_b32 s30, 2621440\ns_mov_b32 s31, 0x20000')
    A(f's_lshl_b32 s48, s67, 2\nv_add_u32 v13, s48, v0\nv_mov_b32 v14, 1\ns_mul_i32 s48, s67, {WSLOT}\ns_add_u32 s48, s48, {WBASE}\nv_add_u32 v15, s48, v5')
    A(f's_mul_i32 s48, s67, 15360\ns_cmp_eq_u32 s67, 3\ns_cselect_b32 s48, {XCH[3]}, s48\nv_add_u32 v16, s48, v5')
    A(f's_lshl_b32 s48, s67, 11\ns_add_u32 s48, s48, {XCH[3] + 15360}\nv_add_u32 v17, s48, v5\ns_lshl_b32 s48, s67, 8\nv_lshlrev_b32 v19, 2, v2\nv_add_u32 v19, s48, v19')
    A('s_lshl_b32 s48, s18, 6\ns_lshl_b32 s49, s67, 4\ns_add_u32 s48, s48, s49\nv_and_b32 v20, 15, v2\nv_add_u32 v20, s48, v20\nv_mul_u32_u24 v20, 1280, v20\nv_lshrrev_b32 v21, 4, v2\nv_lshl_add_u32 v20, v21, 3, v20\ns_mul_i32 s55, s19, 160')
    A('s_mul_i32 s48, s67, 5\ns_mul_i32 s57, s18, 68\ns_add_u32 s57, s57, s48\ns_add_u32 s57, s57, 48\ns_lshl_b32 s57, s57, 12')
    A(f's_lshl_b32 s58, s18, 8\ns_add_u32 s58, s58, {G_OFF}\nv_and_b32 v3, 15, v2\nv_lshlrev_b32 v11, 2, v3')
    A(f's_mul_i32 s48, s67, 320\ns_add_u32 s48, s48, {CT + 1536}\nv_mul_u32_u24 v4, 80, v21\nv_add_u32 v4, s48, v4')
    A('v_lshrrev_b32 v10, 2, v3\nv_cmp_eq_u32 s[64:65], v10, v21\nv_and_b32 v10, 1, v3\nv_cmp_eq_u32 s[62:63], 0, v10')
    A(f's_and_b64 s[60:61], s[64:65], s[62:63]\ns_andn2_b64 s[62:63], s[64:65], s[62:63]\ns_mov_b32 s64, {EPS}\ns_mov_b32 s65, 0xffff0000')
    A(f's_setprio {BPRIO}')
    stamp(A, 3)
    if GPOLL == 'B':
        A('s_cmp_lg_u32 s67, 3\ns_cbranch_scc1 L_b_nopoll')
        poll(A, 54, 48, 10, 6)
        A('v_mov_b32 v10, 1\ns_mov_b64 exec, 1\nds_write_b32 v0, v10 offset:64\ns_mov_b64 exec, -1')
        A('L_b_nopoll:')
    A('s_lshl_b32 s59, 1, s67' if FINEG else 's_mov_b32 s59, 15')
    lds_wait_mask(A, 0, 64, 10, 's59')
    A('s_waitcnt vmcnt(0)')
    stamp(A, 4)
    Q = []
    def wait(tag):
        last = max(k for k, t in enumerate(Q) if t == tag)
        A(f's_waitcnt vmcnt({min(63, len(Q) - 1 - last)})')
    def issueH(i):
        kidx(i, 56)
        A('s_lshl_b32 s56, s56, 12\ns_add_u32 s56, s56, s51')
        for rt in range(4):
            A(f'buffer_load_dwordx4 {vr(hb(i,rt))}, v5, s[40:43], s56 offen offset:{1024*rt} {LL}')
            Q.append(('H', i))
    assert not rest[KPRE:]
    issueH(0); issueH(1)
    nH = 2
    dump = [(8, WBASE), (12, 0), (9, 0), (9, WSLOT)]
    def haddr(i, dst):
        return [f's_add_u32 s{dst}, s23, {i}', f's_cmp_ge_u32 s{dst}, 12', 's_cselect_b32 s48, 12, 0', f's_sub_u32 s{dst}, s{dst}, s48',
                f's_lshl_b32 s{dst}, s{dst}, 12', f's_add_u32 s{dst}, s{dst}, s51']
    def rdW_l(i, rs):
        u = lds_unit[i]
        va, off = (8, u) if u < WBASE + WSLOT - 5120 else ((9, u - (WBASE + 2*WSLOT)) if u >= WBASE + 2*WSLOT else (12, 0))
        return [f'ds_read_b128 {vr(WR+20*rs+4*t)}, v{va} offset:{off + 1024*t}' for t in range(5)]
    pendW = []
    for i in range(12):
        rs = regset[i] if i in regset else (i - 3) % 2
        gaps = {k: [] for k in range(20)}
        for k, l in zip((1, 3, 6, 8, 11), pendW): gaps[k].append(l)
        reuse = nH if nH < 12 and hmap[nH] == hmap[i] else None
        extra = None
        if reuse is not None:
            for k, l in enumerate(haddr(reuse, 56)): gaps[k // 2].append(l)
            nH += 1
        if nH < 12 and hmap[nH] == 2 and i == 3:
            pass
        first = Q.index(('H', i))
        for rt in range(4):
            A(f's_waitcnt vmcnt({len(Q) - 1 - (first + rt)})')
            if rt == 0:
                if i == 0: stamp(A, 5)
                if BST: stamp(A, 25 + i)
                if i not in regset:
                    A('s_waitcnt lgkmcnt(0)')
                if i == PQ_AT:
                    A('s_mov_b64 exec, 1\nds_write_b32 v13, v14 offset:144\ns_mov_b64 exec, -1')
                if i == 8:
                    A('s_mov_b64 exec, 1\nds_write_b32 v13, v14 offset:96\ns_mov_b64 exec, -1')
            for t in range(5):
                d = vr(a2(rt, t))
                A(f'v_mfma_f32_16x16x32_bf16 {d}, {vr(WR+20*rs+4*t)}, {vr(hb(i,rt))}, {d if i else 0}')
                for l in gaps[5 * rt + t]: A(l)
                if i == 11 and rt >= 2:
                    A(f'ds_write_b128 v{dump[rt-2][0]}, {vr(a2(rt-2,t))} offset:{dump[rt-2][1] + t*1024}')
            if reuse is not None:
                A(f'buffer_load_dwordx4 {vr(hb(reuse,rt))}, v5, s[40:43], s56 offen offset:{1024*rt} {LL}')
                Q.append(('H', reuse))
        if NRC == 2 and i in (9, 10):
            j = i - 7
            A(f's_add_u32 s48, s67, {j+1}\ns_and_b32 s48, s48, 3\ns_lshl_b32 s49, s48, 10\ns_add_u32 s56, s57, s49\ns_lshl_b32 s49, s48, 6\ns_add_u32 s49, s49, s58')
            for kk in range(5):
                A(f'buffer_load_dwordx4 {vr(WR + 8*kk + 4*(j-2))}, v5, s[40:43], s56 offen {LL}')
                if kk < 4: A('s_add_u32 s56, s56, 4096')
                Q.append(('P', j))
            A(f'buffer_load_dword v{20+j}, v11, s[40:43], s49 offen {LL}')
            Q.append(('P', j))
        while nH < 12 and all(hmap[j] != hmap[nH] for j in range(i + 1, nH)) and not (hmap[nH] == 2 and i < 2):
            issueH(nH); nH += 1
        tgt = {0: 3, 2: 4}.get(i, i + 2 if 5 <= i + 2 <= 8 else None)
        pendW = rdW_l(tgt, (tgt - 3) % 2) if tgt is not None else []
    stamp(A, 6)
    if NRC == 2:
        ZR = HBUF; DN = AC; SC = HBUF + 20; T0 = HBUF + 24
        lds_wait(A, 0, 68, 10, 1, four=False, sleep=1)
        for kk in range(5):
            A(f'ds_read_b128 {vr(ZR+4*kk)}, v4 offset:{16*kk}')
        A('s_waitcnt lgkmcnt(0)')
        for kk in range(5):
            for j in range(4):
                m = 's[62:63]' if (4 * kk + j) >= 10 else 's[60:61]'
                A(f'v_cndmask_b32 v{ZR+4*kk+j}, 0, v{ZR+4*kk+j}, {m}')
        A('s_waitcnt vmcnt(0)\ns_nop 0')
        for kk in range(5):
            for r in range(2):
                d = vr(DN + 4 * r)
                A(f'v_mfma_f32_16x16x32_bf16 {d}, {vr(ZR+4*kk)}, {vr(WR+8*kk+4*r)}, {d if kk else 0}')
        A('s_nop 7')
        for r in range(2):
            A(f'v_add_f32 v{DN+4*r}, s64, v{DN+4*r}\nv_add_f32 v{DN+4*r+1}, s64, v{DN+4*r+1}')
        for r in range(2):
            A(f'v_rcp_f32 v{DN+4*r}, v{DN+4*r}\nv_rcp_f32 v{DN+4*r+1}, v{DN+4*r+1}')
        A('s_nop 0')
        for r in range(2):
            A(f'v_mul_f32 v{SC+2*r}, v{22+r}, v{DN+4*r}\nv_mul_f32 v{SC+2*r+1}, v{22+r}, v{DN+4*r+1}')
        for kk in range(5):
            for r in range(2):
                b = WR + 8 * kk + 4 * r
                for j in range(4):
                    A(f'v_lshlrev_b32 v{T0+2*j}, 16, v{b+j}\nv_and_b32 v{T0+2*j+1}, s65, v{b+j}')
                for j in range(4):
                    odd = 1 if (4 * kk + j) >= 10 else 0
                    A(f'v_mul_f32 v{T0+2*j}, v{SC+2*r+odd}, v{T0+2*j}\nv_mul_f32 v{T0+2*j+1}, v{SC+2*r+odd}, v{T0+2*j+1}')
                for j in range(4):
                    A(f'v_cvt_pk_bf16_f32 v{b+j}, v{T0+2*j}, v{T0+2*j+1}')
                A(f'ds_write_b128 v9, {vr(b)} offset:{r*WSLOT + 1024*kk}')
            A(f'v_mov_b32 v10, {kk+1}\ns_mov_b64 exec, 1\nds_write_b32 v13, v10 offset:160\ns_mov_b64 exec, -1')
        lds_wait(A, 13, 176, 10, 1, four=False, sleep=1)
    for rt in (2, 3):
        for t in range(5):
            A(f'ds_write_b128 v{dump[rt][0]}, {vr(a2(rt,t))} offset:{dump[rt][1] + t*1024}')
    A('s_waitcnt lgkmcnt(0)')
    stamp(A, 7)
    A('s_barrier')
    R = WR
    for r in range(4):
        for t in (3, 4):
            A(f'ds_read_b128 {vr(R+8*r+4*(t-3))}, v15 offset:{r*5120 + 1024*t}')
    A(f'ds_read_b32 v18, v19 offset:{46080}')
    A('s_waitcnt lgkmcnt(5)')
    for r in range(3):
        for t in (3, 4):
            A(f'ds_read_b128 {vr(R+32+8*r+4*(t-3))}, v16 offset:{r*5120 + 1024*t}')
    for t in (3, 4):
        A(f'ds_read_b128 {vr(R+56+4*(t-3))}, v17 offset:{1024*(t-3)}')
    for k in range(0, 8, 2):
        A(f'v_pk_add_f32 {vr(R+k,2)}, {vr(R+k,2)}, {vr(R+8+k,2)}')
    A('s_waitcnt lgkmcnt(8)\nv_mov_b32 v19, v18')
    for k in range(0, 8, 2):
        A(f'v_pk_add_f32 {vr(R+16+k,2)}, {vr(R+16+k,2)}, {vr(R+24+k,2)}')
    for k in range(0, 8, 2):
        A(f'v_pk_add_f32 {vr(R+k,2)}, {vr(R+k,2)}, {vr(R+16+k,2)}')
    A('s_waitcnt lgkmcnt(0)')
    for k in range(0, 8, 2):
        A(f'v_pk_fma_f32 {vr(R+k,2)}, {vr(R+k,2)}, v[18:19], {vr(R+56+k,2)}')
    for sl in range(3):
        for k in range(0, 8, 2):
            A(f'v_pk_add_f32 {vr(R+k,2)}, {vr(R+k,2)}, {vr(R+32+8*sl+k,2)}')
    for t in (3, 4):
        b = R + 4 * (t - 3)
        A(f'v_cvt_pk_bf16_f32 v{b}, v{b}, v{b+1}\nv_cvt_pk_bf16_f32 v{b+1}, v{b+2}, v{b+3}')
        A(f'buffer_store_dwordx2 {vr(b,2)}, v20, s[28:31], s55 offen offset:{32*t}')
    finish(A)


def gen(A):
    K = NAME + '_kernel'
    A(f'.globl {K}\n.p2align 8\n.type {K},@function\n{K}:')
    if ENTRYT: A('s_memrealtime s[92:93]')
    A('s_cmp_ge_u32 s2, 256\ns_cbranch_scc1 L_end')
    A('s_load_dwordx4 s[4:7], s[0:1], 0')
    A('s_load_dwordx4 s[8:11], s[0:1], 32')
    A('s_load_dwordx4 s[12:15], s[0:1], 48')
    A('s_load_dwordx2 s[16:17], s[0:1], 80')
    A.c('decode: s18 rb, s19 cq, s20 m, s21 wave, s22 gtype, s23 rbl, s55 is_gc')
    A('v_lshrrev_b32 v1, 6, v0\nv_and_b32 v2, 63, v0')
    A('s_bfe_u32 s23, s2, 0x10003\ns_and_b32 s18, s2, 7\ns_lshl_b32 s18, s18, 1\ns_add_u32 s18, s18, s23' if not MAP84 else 's_bfe_u32 s23, s2, 0x30003\ns_and_b32 s18, s2, 1\ns_lshl_b32 s18, s18, 3\ns_add_u32 s18, s18, s23')
    A('v_readfirstlane_b32 s21, v1')
    A('s_bfe_u32 s19, s2, 0x20004\ns_lshr_b32 s20, s2, 6' if not MAP84 else ('s_bfe_u32 s19, s2, 0x20001\ns_lshr_b32 s20, s2, 6' if not KVX else 's_bfe_u32 s20, s2, 0x20001\ns_lshr_b32 s19, s2, 6'))
    A('s_mul_i32 s22, s19, 3\ns_add_u32 s22, s22, s20\ns_sub_u32 s22, s22, 1')
    A('s_cmp_eq_u32 s22, 10\ns_cselect_b32 s55, 1, 0\ns_cmp_ge_i32 s22, 10\ns_cselect_b32 s91, 1, 0')
    if STAMP:
        A('v_mov_b32 v1, 0\ns_mov_b32 s100, 0\ns_mov_b32 s101, 0')
        stamp(A, 0); stamp_rt(A, 62)
        if ENTRYT: A('v_readlane_b32 s93, v1, 0\nv_writelane_b32 v1, s92, 0\ns_nop 1\nv_writelane_b32 v1, s93, 58')
    A('s_cmp_lt_u32 s21, 4\ns_cbranch_scc1 L_compute')
    gen_loader(A)
    gen_compute(A)
    A('L_end:\ns_endpgm')
    A('.p2align 7\nL_table:')
    for i in range(32):
        A(f'.long {i}')


DOC = """
; ---------------------------------------------------------------------------------------------
; ---------------------------------------------------------------------------------------------
"""


def main(out):
    A = Asm()
    gen(A)
    K = NAME + '_kernel'
    hdr = open('cdna_kernels/' + NAME + '.s.ref').read().split('; Override')[0]
    txt = hdr + f'; @launch grid=(256,1,1) block=(512,1,1) lds={LDS_TOTAL}\n'
    txt += '.amdgcn_target "amdgcn-amd-amdhsa--gfx950"\n' + DOC.lstrip('\n') + '.text\n' + A.text()
    txt += f'''.section .rodata,"a"
.p2align 6
.amdhsa_kernel {K}
  .amdhsa_next_free_vgpr 256
  .amdhsa_next_free_sgpr 102
  .amdhsa_accum_offset 256
  .amdhsa_group_segment_fixed_size 0
  .amdhsa_kernarg_size 88
  .amdhsa_user_sgpr_count 2
  .amdhsa_user_sgpr_kernarg_segment_ptr 1
  .amdhsa_system_sgpr_workgroup_id_x 1
.end_amdhsa_kernel
'''
    open(out, 'w').write(txt)

if __name__ == '__main__':
    for a in sys.argv[2:]:
        k, v = a.split('=', 1)
        globals()[k] = eval(v)
    main(sys.argv[1] if len(sys.argv) > 1 else 'cdna_kernels/' + NAME + '.s')
```

```python
import sys

NAME = 'gated_mix__linear_attn_block__glu_gated_glu__prompt'

HB_OFF = 0
W2_OFF = 0x900000
M_OFF = 0xB00000
KVS = 3584
KVP_OFF = 0xC00000
G_OFF = 0xF00000
ZB_OFF = 0xF10000
FSH = 13
FG_OFF = 0xF40000
FP_OFF = 0xF60800
FM_OFF = 0xF81000
FW_OFF = 0xFA1800
STAMP_OFF = 0x1000000
WS_USED = 0x1100000
OOB = 0x7FFF0000

XSLOT = 16384; NX = 3
WBASE = NX * XSLOT
WSLOT = 20480; NW = 5
GWBASE = WBASE + NW * WSLOT
LDS_TOTAL = 163840
CT = 159744
P2_SCR = 0
RPK = GWBASE
CODEPF = True
EV = {1: (0, [(0, 3), (2, 15)]), 2: (1, [(1, 5), (3, 15)]), 3: (2, [(2, 7), (4, 15)])}
THIRD = 5
RPORD = (11, 9, 4, 7, 2, 5, 8, 1, 0, 3, 6, 10)
STAMP = False
GWS = 320
PRIO = 2
LSLEEP = 1
DEPTH = 2
EXP = ''
KVE = 5
KVP_AT = 6
EPI2 = True
T1THR = 6
KVR = 1
M4 = False
P84 = False
EVW = 0
LATEF = True
XROT = 12
ZEARLY = True
ZC = 2
ZM0 = 4
ENTRYT = False
KVFAST = 1
WOAT = 2
KVN = 12
NOPF = 0
DIAG = None
DBGOUT = False
DEFER = False
BURST = 0
FINEG = True
GEARLY = 0
START2 = 0
RTS = False
WSM = 1
KVACK = True
R0LATE = False
L2PF = 0
KVPRE = 6
PAX = 1
ZM = 255
MACK = False
SPEC_M = True
NRC = 4
BST = True
PQ_AT = None
NLEAD = 5
COOP_P = True
COOP_M = True
MK0 = 2
NPK = True
KVX = False
APRIO = 2
BPRIO = 0
MAP84 = True
LS = 'sc1'
LL = 'sc1'
KPRE = 6
LPS = 1
LP0 = 0
GPOLL = 'A'
GD = 8
KVG = 1
T1N = 6
PRETOUCH = False
STG_THR = 6
PSLEEP = 8
MSLEEP = 4
MDELAY = 64
GDELAY = 0
STG_EARLY = False
SPIN_MAX = 0x20000


class Asm:
    def __init__(self):
        self.L = []
        self.nl = 0
    def __call__(self, s):
        for line in s.split('\n'):
            line = line.strip()
            if line:
                self.L.append(line if line.endswith(':') else '    ' + line)
    def c(self, s):
        self.L.append('    ; ' + s)
    def label(self, p='L'):
        self.nl += 1
        return f'{p}_{self.nl}'
    def text(self):
        return '\n'.join(self.L) + '\n'


def vr(b, n=4):
    return f'v[{b}:{b+n-1}]'

def srd(A, d, lo, nbytes):
    A(f's_mov_b32 s{d}, s{lo}\ns_mov_b32 s{d+1}, s{lo+1}\ns_mov_b32 s{d+2}, {nbytes}\ns_mov_b32 s{d+3}, 0x20000')

def stamp(A, n):
    if STAMP:
        A(f'{"s_memrealtime" if RTS else "s_memtime"} s[98:99]\ns_waitcnt lgkmcnt(0)\nv_writelane_b32 v1, s98, {n}')
def stamp_rt(A, n):
    if STAMP:
        A(f's_memrealtime s[98:99]\ns_waitcnt lgkmcnt(0)\nv_writelane_b32 v1, s98, {n}')
def tbeg(A):
    if STAMP and 'quiet' not in EXP: A('s_memtime s[98:99]\ns_waitcnt lgkmcnt(0)\ns_mov_b32 s3, s98')
def tend(A, r):
    if STAMP and 'quiet' not in EXP: A(f's_memtime s[98:99]\ns_waitcnt lgkmcnt(0)\ns_sub_u32 s3, s98, s3\ns_add_u32 s{r}, s{r}, s3')
def finish(A):
    if STAMP:
        A('s_waitcnt vmcnt(0)')
        stamp(A, 61); stamp_rt(A, 63)
        A('v_writelane_b32 v1, s100, 59\nv_writelane_b32 v1, s101, 60')
        if DIAG:
            slot, mult = DIAG
            l = A.label('L_dg'); l2 = A.label('L_dg')
            A(f's_cmp_lg_u32 s21, 0\ns_cbranch_scc1 {l2}')
            A(f'v_readlane_b32 s48, v1, {slot}\nv_readlane_b32 s49, v1, 0\nv_readlane_b32 s50, v1, 61\ns_cmp_eq_u32 s48, 0\ns_cselect_b32 s48, s49, s48\ns_sub_u32 s48, s48, s49\ns_mul_i32 s48, s48, {mult}\ns_min_u32 s48, s48, 20000')
            A(f'{l}:\ns_memrealtime s[98:99]\ns_waitcnt lgkmcnt(0)\ns_sub_u32 s51, s98, s50\ns_cmp_lt_u32 s51, s48\ns_cbranch_scc1 {l}')
            A(f'{l2}:')
        A('s_mov_b64 exec, -1')
        A(f's_lshl_b32 s3, s2, 3\ns_add_u32 s3, s3, s21\ns_lshl_b32 s3, s3, 8\ns_add_u32 s3, s3, {STAMP_OFF}\nv_lshlrev_b32 v2, 2, v2')
        A('buffer_store_dword v1, v2, s[40:43], s3 offen')
        if DBGOUT:
            l = A.label('L_dbg')
            A(f's_cmp_lg_u32 s21, 0\ns_cbranch_scc1 {l}\ns_and_b32 s3, s2, 0xbf\ns_cmp_lg_u32 s3, 6\ns_cbranch_scc1 {l}')
            A('s_load_dwordx2 s[86:87], s[0:1], 72\ns_lshr_b32 s3, s2, 6\ns_mul_i32 s3, s3, 28\ns_add_u32 s3, s3, 8\ns_waitcnt lgkmcnt(0)\ns_mov_b64 exec, 1')
            for k, slot in enumerate((0, 2, 3, 5, 10, 12, 61)):
                A(f'v_readlane_b32 s48, v1, {slot}\nv_mov_b32 v3, s3\ns_nop 1\nv_mov_b32 v4, s48\nglobal_store_dword v3, v4, s[86:87] offset:{4*k}')
            A(f'{l}:')
    A('s_endpgm')

LOG2E = 0x3fb8aa3b
NLOG2E = 0xbfb8aa3b
EPS = 0x358637bd

ACC = 96; XF = 64; WF = 24
def acc(i, t): return ACC + 20 * i + 4 * t


THR = 0
def dma(A, m0expr, voff, sr, so):
    A(m0expr)
    A(f's_waitcnt vmcnt({THR-1})' if THR else 's_nop 0')
    A(f'buffer_load_dwordx4 v{voff}, s[{sr}:{sr+3}], s{so} offen lds')


def poll(A, soff, nl, vt, vaddr, sleep=None, first_sleep=False):
    l0 = A.label('L_poll'); l1 = A.label('L_polled')
    A('s_mov_b32 s90, 0')
    A(f's_mov_b64 exec, {hex((1 << nl) - 1)}' if nl <= 31 else f's_mov_b32 exec_lo, -1\ns_mov_b32 exec_hi, {hex((1 << (nl - 32)) - 1)}')
    A(f'{l0}:')
    A(f'buffer_load_dwordx2 {vr(vt,2)}, v{vaddr}, s[40:43], s{soff} offen sc1')
    A('s_waitcnt vmcnt(0)')
    A(f'v_cmp_ne_u64 vcc, s[88:89], {vr(vt,2)}')
    A(f's_cbranch_vccz {l1}')
    A(f's_sleep {PSLEEP if sleep is None else sleep}\ns_add_u32 s90, s90, 1\ns_cmp_lt_u32 s90, {SPIN_MAX}\ns_cbranch_scc1 {l0}')
    A(f'{l1}:')
    A('s_mov_b64 exec, -1')


def spoll(A, parts, sleep=2):
    l0 = A.label('L_sp'); l1 = A.label('L_spd')
    A('s_mov_b32 s96, 0')
    A(f'{l0}:')
    regs = []
    for so, imm, n, sb in parts:
        A(f's_load_dwordx{2*n} s[{sb}:{sb+2*n-1}], s[16:17], s{so} offset:{imm} glc')
        regs += [sb + 2 * k for k in range(n)]
    A('s_waitcnt lgkmcnt(0)')
    for r in regs:
        A(f's_xor_b64 s[{r}:{r+1}], s[{r}:{r+1}], s[88:89]')
    for r in regs[1:]:
        A(f's_or_b64 s[{regs[0]}:{regs[0]+1}], s[{regs[0]}:{regs[0]+1}], s[{r}:{r+1}]')
    A(f's_cbranch_scc0 {l1}')
    A(f's_sleep {sleep}\ns_add_u32 s96, s96, 1\ns_cmp_lt_u32 s96, {SPIN_MAX}\ns_cbranch_scc1 {l0}')
    A(f'{l1}:')


def set_flag(A, soff, vt):
    A(f'v_mov_b32 v{vt}, s88\nv_mov_b32 v{vt+1}, s89\nv_mov_b32 v{vt+2}, 0')
    A('s_waitcnt vmcnt(0)')
    A('s_mov_b64 exec, 1')
    A(f'buffer_store_dwordx2 {vr(vt,2)}, v{vt+2}, s[40:43], s{soff} offen sc1')
    A('s_mov_b64 exec, -1')


def table_srd(A, d):
    l = A.label('L_pc')
    A(f's_getpc_b64 s[{d}:{d+1}]\n{l}:\ns_add_u32 s{d}, s{d}, L_table-{l}\ns_addc_u32 s{d+1}, s{d+1}, 0\ns_movk_i32 s{d+2}, 128\ns_mov_b32 s{d+3}, 0x20000')


def lds_free(A, vaddr, vt, sdst):
    A(f'ds_read_b32 v{vt}, v{vaddr}\ns_waitcnt lgkmcnt(0)')
    A(f'v_readlane_b32 s{sdst}, v{vt}, 0\nv_readlane_b32 s48, v{vt}, 1\ns_min_u32 s{sdst}, s{sdst}, s48\nv_readlane_b32 s48, v{vt}, 2\ns_min_u32 s{sdst}, s{sdst}, s48\nv_readlane_b32 s48, v{vt}, 3\ns_min_u32 s{sdst}, s{sdst}, s48')


def lds_min4(A, vaddr, off, vt, sdst):
    A(f'ds_read_b128 {vr(vt)}, v{vaddr} offset:{off}\ns_waitcnt lgkmcnt(0)')
    A(f'v_min3_u32 v{vt}, v{vt}, v{vt+1}, v{vt+2}\nv_min_u32 v{vt}, v{vt}, v{vt+3}\ns_nop 0\nv_readfirstlane_b32 s{sdst}, v{vt}')


def lds_wait(A, vaddr, off, vt, need, four=True, sdst=90, sleep=1):
    l0 = A.label('L_lw'); l1 = A.label('L_lwd')
    if sleep in (2, 4): sleep *= WSM
    A('s_mov_b32 s96, 0')
    A(f'{l0}:')
    if four == 'free':
        lds_free(A, vaddr, vt, sdst)
    elif four:
        lds_min4(A, vaddr, off, vt, sdst)
    else:
        A(f'ds_read_b32 v{vt}, v{vaddr} offset:{off}\ns_waitcnt lgkmcnt(0)\nv_readfirstlane_b32 s{sdst}, v{vt}')
    A(f's_cmp_ge_i32 s{sdst}, {need}\ns_cbranch_scc1 {l1}')
    A(f's_sleep {sleep}\ns_add_u32 s96, s96, 1\ns_cmp_lt_u32 s96, {SPIN_MAX*16}\ns_cbranch_scc1 {l0}')
    A(f'{l1}:')


def lds_wait_mask(A, vaddr, off, vt, smask, sleep=2):
    l0 = A.label('L_mw'); l1 = A.label('L_mwd')
    A('s_mov_b32 s96, 0')
    A(f'{l0}:')
    A(f'ds_read_b32 v{vt}, v{vaddr} offset:{off}\ns_waitcnt lgkmcnt(0)\nv_readfirstlane_b32 s90, v{vt}')
    A(f's_andn2_b32 s90, {smask}, s90\ns_cbranch_scc0 {l1}')
    A(f's_sleep {sleep}\ns_add_u32 s96, s96, 1\ns_cmp_lt_u32 s96, {SPIN_MAX*16}\ns_cbranch_scc1 {l0}')
    A(f'{l1}:')


def mainloop(A, kv, tag):
    def upd_s():
        L = [f's_add_u32 s50, s50, {WSLOT}', f's_cmp_ge_u32 s50, {WBASE + NW*WSLOT}', f's_cselect_b32 s50, {WBASE}, s50']
        if not kv:
            L += ['s_add_u32 s52, s52, s53', 's_cmp_ge_u32 s52, s57', f's_cselect_b32 s52, {WBASE}, s52']
        return L
    def set_w():
        return [f'v_add_u32 v{15+t}, s50, v{10+t}' for t in range(4)] + [f'v_add_u32 v19, s{50 if kv else 52}, v14']
    def upd_blk():
        return [f's_add_u32 s51, s51, {XSLOT}', f's_cmp_ge_u32 s51, {NX*XSLOT}', 's_cselect_b32 s51, 0, s51']
    def set_x(par):
        return [f'v_add_u32 v{4+par}, s51, v{20+par}']
    def rdW(p, t, h):
        b = WF + 20 * p + 4 * t + 2 * h
        return f'ds_read_b64_tr_b16 {vr(b,2)}, v{15+t} offset:{512*h}'
    def rdX(i, par):
        return f'ds_read_b128 {vr(XF+4*i)}, v{4+par} offset:{2048*i}'
    def mfma(i, t, p):
        w = vr(WF + 20 * p + 4 * t); x = vr(XF + 4 * i); d = vr(acc(i, t))
        if 'm32' in EXP:
            n = 5 * i + t
            if n % 2 == 0:
                d = vr(ACC + 16 * ((n // 2) % 10), 16)
                A(f'v_mfma_f32_32x32x16_bf16 {d}, {w}, {x}, {d}')
            return
        A(f'v_mfma_f32_16x16x32_bf16 {d}, {x}, {w}, {d}' if kv else f'v_mfma_f32_16x16x32_bf16 {d}, {w}, {x}, {d}')
    A(f's_mov_b32 s50, {WBASE}\ns_mov_b32 s51, 0\ns_mov_b32 s54, 0')
    if not kv:
        A(f's_cmp_lg_u32 s55, 0\ns_cselect_b32 s52, {GWBASE}, s50\ns_movk_i32 s53, {WSLOT}\ns_cselect_b32 s53, {GWS}, s53\ns_mov_b32 s57, {WBASE + NW*WSLOT}\ns_cselect_b32 s57, -1, s57')
    for l in set_w() + set_x(0) + set_x(1):
        A(l)
    A(f'v_mov_b32 v3, {CT}\ns_lshl_b32 s48, s21, 8\ns_add_u32 m0, s48, {CT+256}\nv_mov_b32 v0, {OOB}\nv_writelane_b32 v0, 0, 0')
    table_srd(A, 44)
    stamp(A, 1)
    lds_wait(A, 3, 0, 6, 1, sdst=59)
    A('s_waitcnt vmcnt(0)')
    A(f's_setprio {PRIO}')
    stamp(A, 2)
    for t in range(5):
        A(rdW(0, t, 0)); A(rdW(0, t, 1))
    A('s_waitcnt lgkmcnt(6)')
    for i in range(8):
        A(rdX(i, 0))
    for l in upd_s() + set_w():
        A(l)
    A('s_mov_b32 s58, 2\ns_cmp_ge_i32 s59, s58')
    A(f's_cbranch_scc0 L_{tag}_slow0')
    A('.p2align 3')
    for p in range(2):
        gap = {k: [] for k in range(40)}
        for i in range(5):
            gap[5*i].append(rdW(1 - p, i, 0)); gap[5*i + 2].append(rdW(1 - p, i, 1))
        for i in range(8):
            gap[5*i + 4].append(rdX(i, 1 - p))
        gap[9].append('s_waitcnt lgkmcnt(6)')
        gap[1].append('s_add_u32 s54, s54, 4')
        gap[11].append('buffer_load_dword v0, s[44:47], s54 offen lds')
        gap[6].append('s_add_u32 s58, s58, 1'); gap[8].append('s_min_u32 s58, s58, 20')
        sal = upd_s() + (upd_blk() if p == 0 else [])
        for k in (13, 13, 16, 16, 18, 18, 21, 21, 23):
            if sal: gap[k].append(sal.pop(0))
        assert not sal
        if LATEF:
            for k, l in zip((23, 25, 26, 27, 28, 30), set_w() + set_x(p)):
                gap[k].append(l)
            gap[31].append('ds_read_b128 v[6:9], v3')
            gap[36].append('s_waitcnt lgkmcnt(1)'); gap[36].append('v_min3_u32 v6, v6, v7, v8')
            gap[37].append('v_min_u32 v6, v6, v9')
            gap[38].append('v_readfirstlane_b32 s59, v6')
        else:
            gap[23].append('ds_read_b128 v[6:9], v3')
            for k, l in zip((25, 26, 27, 28, 30, 31), set_w() + set_x(p)):
                gap[k].append(l)
            gap[32].append('s_waitcnt lgkmcnt(2)'); gap[32].append('v_min3_u32 v6, v6, v7, v8')
            gap[33].append('v_min_u32 v6, v6, v9')
            gap[35].append('v_readfirstlane_b32 s59, v6')
        if p == 1:
            gap[35 if LATEF else 36].append('s_cmp_lt_u32 s54, 80'); gap[37].append(f's_cbranch_scc0 L_{tag}_last')
        gap[39 if LATEF else 38].append('s_cmp_ge_i32 s59, s58' if 'nowait' not in EXP else 's_cmp_eq_u32 s59, s59')
        if 'novalu' in EXP:
            for k in gap: gap[k] = [l for l in gap[k] if not l.startswith('v_')]
        if 'nods' in EXP:
            for k in gap: gap[k] = [l for l in gap[k] if not l.startswith('ds_')]
        if 'nosalu' in EXP:
            for k in gap: gap[k] = [l for l in gap[k] if not (l.startswith('s_') and 13 <= k <= 23)]
        if 'noctl' in EXP:
            for k in gap: gap[k] = [l for l in gap[k] if not (' v6' in l or 'v[6:9]' in l)]
        if 'halfx' in EXP:
            for k in (9, 19, 29, 39): gap[k] = [l.replace('ds_read_b128', 'ds_read_b32').replace(l.split()[1], l.split()[1].split(':')[0].replace('[', '') + ',') if l.startswith('ds_read_b128 v[') else l for l in gap[k]]
        if 'nowr' in EXP:
            for k in gap: gap[k] = [l for l in gap[k] if not l.startswith('ds_write')]
        if 'now32' in EXP:
            gap[32] = [l for l in gap[32] if not l.startswith('s_waitcnt')]
        if 'nopub' in EXP: pass
        if p == 0:
            A(f'L_{tag}_go0:')
        else:
            A(f's_cbranch_scc0 L_{tag}_slow1')
            A(f'L_{tag}_go1:')
        A('s_waitcnt lgkmcnt(2)')
        for i in range(8):
            for t in range(5):
                mfma(i, t, p)
                for l in gap[5*i + t]: A(l)
    A(f's_cbranch_scc1 L_{tag}_go0')
    for p in range(2):
        A(f'L_{tag}_slow{p}:')
        tbeg(A)
        lds_wait(A, 3, 0, 6, 's58', sdst=59)
        tend(A, 100)
        if STAMP: A('s_add_u32 s101, s101, 1')
        A(f's_branch L_{tag}_go{p}')
    A(f'L_{tag}_last:')
    mfma(7, 3, 1); mfma(7, 4, 1)
    A('s_waitcnt lgkmcnt(0)')
    stamp(A, 3)
    A('s_nop 6')
    if 'p1' in EXP: finish(A)


def phi_q(A, b, t, dst=None):
    dst = b if dst is None else dst
    A(f'v_pk_mul_f32 {vr(t,2)}, {vr(b,2)}, s[60:61]\nv_pk_mul_f32 {vr(t+2,2)}, {vr(b+2,2)}, s[60:61]')
    for j in range(4):
        A(f'v_exp_f32 v{t+j}, v{t+j} clamp')
    for j in range(4):
        A(f'v_max_f32 v{dst+j}, s66, v{b+j}')
    A(f'v_pk_add_f32 {vr(dst,2)}, {vr(dst,2)}, {vr(t,2)}\nv_pk_add_f32 {vr(dst+2,2)}, {vr(dst+2,2)}, {vr(t+2,2)}')


def gen_compute(A):
    A('L_compute:')
    if CODEPF:
        A('s_cmp_lg_u32 s21, 0\ns_cbranch_scc1 L_nocpf')
        A(f's_getpc_b64 s[44:45]\nL_pc:\ns_sub_u32 s44, s44, L_pc-{NAME}_kernel\ns_subb_u32 s45, s45, 0\ns_mov_b32 s46, L_end-{NAME}_kernel\ns_mov_b32 s47, 0x20000')
        A('s_lshr_b32 s48, s2, 3\ns_lshl_b32 s48, s48, 11\nv_lshlrev_b32 v3, 7, v2\ns_mov_b64 exec, 0xffff')
        A('buffer_load_dword v95, v3, s[44:47], s48 offen\ns_mov_b64 exec, -1')
        A('L_nocpf:')
    A('s_barrier')
    A.c('compute wave setup: v3=q v4=r v5=c v6=f<<5 v7=rowpart')
    for r in range(ACC, 256, 2):
        A(f'v_mov_b64 {vr(r,2)}, 0')
    A('v_lshrrev_b32 v3, 4, v2\nv_bfe_u32 v4, v2, 2, 2\nv_and_b32 v5, 3, v2')
    A('v_lshrrev_b32 v6, 1, v4\nv_and_b32 v8, 1, v3\nv_lshl_add_u32 v6, v8, 1, v6\nv_lshlrev_b32 v6, 5, v6')
    A('v_mul_u32_u24 v7, 5120, v3\nv_lshl_add_u32 v7, v4, 7, v7')
    A('v_and_b32 v8, 15, v2\nv_lshrrev_b32 v9, 1, v8\nv_xor_b32 v9, v9, v3\nv_lshlrev_b32 v9, 4, v9\nv_lshl_add_u32 v20, v8, 7, v9\nv_xor_b32 v21, 64, v20')
    A(f's_mov_b32 s60, {LOG2E}\ns_mov_b32 s61, {LOG2E}\ns_mov_b32 s62, {NLOG2E}\ns_mov_b32 s63, {NLOG2E}')
    A(f's_mov_b32 s64, 1.0\ns_mov_b32 s65, 1.0\ns_mov_b32 s66, {EPS}')
    A('s_waitcnt lgkmcnt(0)')
    srd(A, 40, 16, WS_USED)
    if PRETOUCH:
        A('s_cmp_lg_u32 s21, 1\ns_cbranch_scc1 L_nopt')
        A('s_load_dwordx2 s[28:29], s[0:1], 64\ns_load_dwordx2 s[32:33], s[0:1], 16\ns_mov_b32 s30, 2621440\ns_mov_b32 s31, 0x20000\ns_mov_b32 s34, 819200\ns_mov_b32 s35, 0x20000')
        srd(A, 36, 12, 1966080)
        A('v_lshlrev_b32 v8, 18, v2\nv_lshlrev_b32 v9, 16, v2')
        A('buffer_load_dword v92, v8, s[40:43], 0 offen\nbuffer_load_dword v93, v9, s[36:39], 0 offen\ns_waitcnt lgkmcnt(0)')
        A('buffer_load_dword v94, v9, s[28:31], 0 offen\nbuffer_load_dword v95, v9, s[32:35], 0 offen')
        A('L_nopt:')
    A('s_cmp_eq_u32 s20, 0\ns_cbranch_scc1 L_kv')

    A('s_cmp_lg_u32 s20, 3\ns_cbranch_scc1 L_g_nowo')
    A('s_load_dwordx2 s[24:25], s[0:1], 16\ns_mov_b32 s26, 819200\ns_mov_b32 s27, 0x20000')
    wo_offset(A, 's21')
    A('v_lshrrev_b32 v8, 1, v2\nv_mul_u32_u24 v8, 1280, v8\nv_and_b32 v9, 1, v2\nv_mul_u32_u24 v9, 156, v9\nv_add_u32 v8, v8, v9')
    A('s_waitcnt lgkmcnt(0)\nbuffer_load_dword v92, v8, s[24:27], s73 offen')
    A('L_g_nowo:')
    A('s_lshr_b32 s48, s21, 1\ns_lshl_b32 s48, s48, 10\ns_and_b32 s49, s21, 1\ns_lshl_b32 s49, s49, 3')
    A('v_add_u32 v8, s49, v5\nv_lshlrev_b32 v8, 3, v8\nv_xor_b32 v9, v8, v6\nv_add3_u32 v10, v9, v7, s48')
    A('v_add_u32 v8, 32, v8\nv_xor_b32 v9, v8, v6\nv_add3_u32 v11, v9, v7, s48')
    A('v_add_u32 v12, 2048, v10\nv_add_u32 v13, 2048, v11')
    A('s_lshl_b32 s49, s21, 2\nv_add_u32 v8, s49, v5\nv_lshlrev_b32 v8, 3, v8\nv_xor_b32 v9, v8, v6\nv_add_u32 v14, v9, v7\nv_add_u32 v14, 4096, v14')
    A('s_cmp_eq_u32 s55, 0\ns_cbranch_scc1 L_g_notgc')
    A('v_lshlrev_b32 v14, 5, v3\nv_lshl_add_u32 v14, v4, 3, v14')
    A('L_g_notgc:')
    A('v_lshlrev_b32 v22, 4, v2')
    A(f's_mul_i32 s72, s18, {2*68*4096}\ns_add_u32 s73, s72, {68*4096}')
    A('s_lshl_b32 s48, s22, 2\ns_add_u32 s48, s48, s21\ns_lshl_b32 s49, s48, 12\ns_add_u32 s70, s72, s49\ns_add_u32 s71, s73, s49')
    A(f's_lshl_b32 s74, s18, {FSH}\ns_lshl_b32 s49, s48, 3\ns_add_u32 s74, s74, s49\ns_add_u32 s74, s74, {FG_OFF}')
    A('s_lshl_b32 s48, s48, 2\nv_add_u32 v5, s48, v3')
    A('v_mul_u32_u24 v6, 6554, v5\nv_lshrrev_b32 v6, 16, v6\nv_mul_u32_u24 v7, 10, v6\nv_sub_u32 v7, v5, v7')
    A('v_lshrrev_b32 v8, 2, v6\nv_and_b32 v6, 3, v6')
    A('v_mul_u32_u24 v8, 5, v8\nv_lshrrev_b32 v9, 1, v7\nv_add3_u32 v8, v8, v9, 48\nv_lshlrev_b32 v8, 12, v8')
    A('v_and_b32 v9, 15, v2\nv_lshl_add_u32 v9, v6, 4, v9\nv_lshl_add_u32 v8, v9, 4, v8')
    A('v_and_b32 v7, 1, v7\nv_lshl_add_u32 v23, v7, 10, v8')
    mainloop(A, False, 'g')
    A.c('h = u * sigmoid(g)')
    hst = []; pst = []
    for i in range(8):
        g = acc(i, 0); u = acc(i, 2)
        for j in range(4):
            A(f'v_pk_mul_f32 {vr(g+2*j,2)}, {vr(g+2*j,2)}, s[62:63]')
        for j in range(8):
            A(f'v_exp_f32 v{g+j}, v{g+j}')
        for j in range(4):
            A(f'v_pk_add_f32 {vr(g+2*j,2)}, {vr(g+2*j,2)}, s[64:65]')
        for j in range(8):
            A(f'v_rcp_f32 v{g+j}, v{g+j}')
        for j in range(4):
            A(f'v_pk_mul_f32 {vr(u+2*j,2)}, {vr(u+2*j,2)}, {vr(g+2*j,2)}')
        for j in range(4):
            A(f'v_cvt_pk_bf16_f32 v{g+j}, v{u+2*j}, v{u+2*j+1}')
        hst.append(f'buffer_store_dwordx4 {vr(g)}, v22, s[40:43], s{70 + (i>>2)} offen offset:{(i&3)*1024} {LS}')
        if not BURST: A(hst.pop())
    if BURST == 1:
        for l in hst: A(l)
        hst = []
    A('s_cmp_lg_u32 s91, 0\ns_cbranch_scc1 L_gc_epi')
    A.c('pq = phi(q)')
    for i in range(0, 8, 2):
        a0 = acc(i, 4); b0 = acc(i + 1, 4)
        phi_q(A, a0, 24 + 8 * ((i >> 1) & 1))
        phi_q(A, b0, 28 + 8 * ((i >> 1) & 1))
        A(f'v_cvt_pk_bf16_f32 v{a0}, v{a0}, v{a0+1}\nv_cvt_pk_bf16_f32 v{a0+1}, v{a0+2}, v{a0+3}')
        A(f'v_cvt_pk_bf16_f32 v{a0+2}, v{b0}, v{b0+1}\nv_cvt_pk_bf16_f32 v{a0+3}, v{b0+2}, v{b0+3}')
        A('s_nop 1')
        A(f'v_permlane16_swap_b32 v{a0}, v{a0+2}\nv_permlane16_swap_b32 v{a0+1}, v{a0+3}')
        pst.append(f'buffer_store_dwordx4 {vr(a0)}, v23, s[40:43], s{72 + (i>>2)} offen offset:{(i&3)*1024} {LS}')
        if BURST != 2: A(pst.pop())
    for l in hst + pst: A(l)
    A('s_branch L_p1_done')
    A('L_gc_epi:')
    for l in hst: A(l)
    A.c('gate g = sigmoid(logit); stored by gtype 10, wave 0')
    A('v_and_b32 v8, 15, v2\nv_lshlrev_b32 v8, 2, v8')
    A(f's_lshl_b32 s48, s18, 9\ns_add_u32 s48, s48, {G_OFF}\ns_lshl_b32 s49, s22, 2\ns_add_u32 s49, s49, s21')
    A(f's_cmp_eq_u32 s49, 40\ns_cselect_b32 s48, s48, {OOB}')
    for i in range(8):
        A(f'v_mul_f32 v{acc(i,4)}, s62, v{acc(i,4)}')
    for i in range(8):
        A(f'v_exp_f32 v{acc(i,4)}, v{acc(i,4)}')
    for i in range(8):
        A(f'v_add_f32 v{acc(i,4)}, 1.0, v{acc(i,4)}')
    for i in range(8):
        A(f'v_rcp_f32 v{acc(i,4)}, v{acc(i,4)}')
    A('s_nop 0\ns_mov_b64 exec, 0xffff')
    for i in range(8):
        A(f'buffer_store_dword v{acc(i,4)}, v8, s[40:43], s48 offen offset:{64*i} {LS}')
    A('s_mov_b64 exec, -1')
    A('s_branch L_p1_done')

    A('L_kv:')
    A('s_mul_i32 s48, s21, 10\ns_and_b32 s49, s19, 1\ns_lshl_b32 s49, s49, 3\ns_sub_u32 s48, s48, s49')
    def kvaddr(dst, u, isv):
        A(f'v_add_u32 v9, 40, {u}\nv_cmp_gt_i32 vcc, 0, {u}\ns_nop 1\nv_cndmask_b32 v8, {u}, v9, vcc')
        A(f'v_lshrrev_b32 v9, 4, v8\nv_lshl_add_u32 v9, {isv}, 1, v9\nv_and_b32 v23, 15, v8')
        A(f'v_lshl_add_u32 v22, {isv}, 3, v23')
        A('v_cmp_gt_u32 vcc, 32, v8\ns_nop 1\nv_cndmask_b32 v9, 4, v9, vcc\nv_cndmask_b32 v23, v22, v23, vcc')
        A(f'v_lshlrev_b32 v23, 3, v23\nv_xor_b32 v23, v23, v6\nv_lshlrev_b32 v22, 4, {isv}\nv_xor_b32 v23, v23, v22')
        A(f'v_lshl_add_u32 v23, v9, 10, v23\nv_add_u32 v{dst}, v23, v7')
    A('v_mov_b32 v16, 0\nv_mov_b32 v17, 1\nv_add_u32 v15, s48, v5')
    kvaddr(10, 'v15', 'v16'); kvaddr(12, 'v15', 'v17')
    A('v_add_u32 v15, 5, v15')
    kvaddr(11, 'v15', 'v16'); kvaddr(13, 'v15', 'v17')
    A('v_and_b32 v15, 1, v5\nv_mul_u32_u24 v15, 5, v15\nv_add3_u32 v15, v15, s48, 4\nv_lshrrev_b32 v16, 1, v5')
    kvaddr(14, 'v15', 'v16')
    A('v_lshlrev_b32 v22, 4, v2\nv_lshlrev_b32 v23, 4, v3')
    A('v_and_b32 v8, 15, v2\nv_cmp_gt_u32 s[68:69], 8, v8')
    A(f's_lshl_b32 s48, s19, 2\ns_add_u32 s48, s48, s21\ns_lshl_b32 s48, s48, 4\ns_add_u32 s48, s48, s18\ns_mul_i32 s70, s48, {KVS}\ns_add_u32 s70, s70, {KVP_OFF}')
    prods = [(0, 0), (1, 1), (2, 0), (2, 1), (0, 2), (1, 2), (2, 2)]
    A(f's_lshr_b32 s71, s21, 1\ns_mul_i32 s71, s71, {RPK - 40960}\ns_and_b32 s49, s21, 1\ns_lshl_b32 s49, s49, 12\ns_add_u32 s71, s71, s49\ns_add_u32 s71, s71, 40960')
    A('v_mul_u32_u24 v23, 5, v8\nv_add_u32 v23, v23, v3\nv_lshlrev_b32 v23, 4, v23\nv_add_u32 v23, s71, v23')
    mainloop(A, True, 'kv')
    A.c('KV epilogue')
    A('v_mov_b32 v12, 0x3f803f80\nv_mov_b32 v13, v12\nv_mov_b32 v14, v12\nv_mov_b32 v15, v12')
    KT = {0: 0, 1: 1, 2: 4}; VT = {0: 2, 1: 3, 2: 4}
    PR = 24
    if EPI2:
        get_epoch(A, 3, 6)
        A(f'v_and_b32 v9, 3, v2\nv_lshlrev_b32 v9, 8, v9\nv_add_u32 v9, {CT+256}, v9')
        lds_wait(A, 9, 0, 8, 18, four='free', sleep=1)
        n = 0
        vcv = []
        for i in range(8):
            for t in (0, 1):
                phi_q(A, acc(i, t), 64 + 4 * (n % 4)); n += 1
            b = acc(i, 4); sv = 80 + 4 * (i & 1)
            phi_q(A, b, 64 + 4 * (n % 4), sv); n += 1
            for j in range(4):
                A(f'v_cndmask_b32 v{b+j}, v{b+j}, v{sv+j}, s[68:69]')
            if KVP_AT is not None and i == KVP_AT: A('s_movk_i32 s54, 84\nbuffer_load_dword v0, s[44:47], s54 offen lds')
        stamp(A, 43)
        pend = []
        for kk in range(4):
            c = 0
            for t in range(5):
                a = acc(2 * kk, t); b = acc(2 * kk + 1, t)
                for l in (f'v_cvt_pk_bf16_f32 v{a}, v{a}, v{a+1}', f'v_cvt_pk_bf16_f32 v{a+1}, v{a+2}, v{a+3}',
                          f'v_cvt_pk_bf16_f32 v{a+2}, v{b}, v{b+1}', f'v_cvt_pk_bf16_f32 v{a+3}, v{b+2}, v{b+3}'):
                    A(l); c += 1
                    if c % 2 == 0 and pend: A(pend.pop(0))
            assert not pend
            for n, (tv, tk) in enumerate(prods):
                d = vr(PR + 4 * n)
                pend.append(f'v_mfma_f32_16x16x32_bf16 {d}, {vr(acc(2*kk,VT[tv]))}, {vr(acc(2*kk,KT[tk]))}, {d if kk else 0}')
            for tk in range(3):
                d = vr(52 + 4 * tk)
                pend.append(f'v_mfma_f32_16x16x32_bf16 {d}, {vr(acc(2*kk,KT[tk]))}, v[12:15], {d if kk else 0}')
        A('s_nop 1')
        for l in pend: A(l)
        stamp(A, 18)
    else:
        pend = []
        def flush(k):
            for _ in range(k):
                if pend: A(pend.pop(0))
        for kk in range(4):
            n = 0
            for i in (2 * kk, 2 * kk + 1):
                for t in (0, 1):
                    phi_q(A, acc(i, t), 64 + 4 * (n % 4)); n += 1
                    flush(2)
                b = acc(i, 4); s = 80 + 4 * (i & 1)
                phi_q(A, b, 64 + 4 * (n % 4), s); n += 1
                for j in range(4):
                    A(f'v_cndmask_b32 v{b+j}, v{b+j}, v{s+j}, s[68:69]')
                flush(1)
            assert not pend
            stamp(A, 40 + kk)
            for t in range(5):
                a = acc(2 * kk, t); b = acc(2 * kk + 1, t)
                A(f'v_cvt_pk_bf16_f32 v{a}, v{a}, v{a+1}\nv_cvt_pk_bf16_f32 v{a+1}, v{a+2}, v{a+3}')
                A(f'v_cvt_pk_bf16_f32 v{a+2}, v{b}, v{b+1}\nv_cvt_pk_bf16_f32 v{a+3}, v{b+2}, v{b+3}')
            for n, (tv, tk) in enumerate(prods):
                d = vr(PR + 4 * n)
                pend.append(f'v_mfma_f32_16x16x32_bf16 {d}, {vr(acc(2*kk,VT[tv]))}, {vr(acc(2*kk,KT[tk]))}, {d if kk else 0}')
            for tk in range(3):
                d = vr(52 + 4 * tk)
                pend.append(f'v_mfma_f32_16x16x32_bf16 {d}, {vr(acc(2*kk,KT[tk]))}, v[12:15], {d if kk else 0}')
        A('s_nop 1')
        flush(10)
        stamp(A, 18)
        get_epoch(A, 3, 6)
        A(f'v_and_b32 v9, 3, v2\nv_lshlrev_b32 v9, 8, v9\nv_add_u32 v9, {CT+256}, v9')
        lds_wait(A, 9, 0, 8, 18, four='free', sleep=1)
    stamp(A, 19)
    HB_ = 1792
    wr = [(0, None, 0), (1, None, HB_), (2, (0, 0xffff), 32), (3, (0, 0xffff0000), HB_ + 16), (4, (0x000f000f, 0x000f000f), 1280),
          (5, (0x00f000f0, 0x00f000f0), HB_ + 960), (6, (0, 0x0000000f), 1280 + 32), (6, (0, 0x00f00000), HB_ + 960 + 16),
          (7, (0x00010001, 0x00010001), 1600), (8, (0x00010001, 0x00010001), HB_ + 1600), (9, (1, 0), 1664), (9, (0x10000, 0), HB_ + 1648)]
    for n, m, off in wr:
        if m: A(f's_mov_b32 exec_lo, {hex(m[0])}\ns_mov_b32 exec_hi, {hex(m[1])}')
        A(f'ds_write_b128 v23, {vr(PR+4*n)} offset:{off}')
    A('s_mov_b64 exec, -1\nv_add_u32 v9, s71, v22')
    stamp(A, 38)
    for i in range(4):
        A(f'ds_read_b128 {vr(64+4*i)}, v9 offset:{1024*i}')
    A('s_and_b32 s76, s88, 0xfff\ns_bfe_u32 s77, s88, 0xc000c\ns_lshr_b64 s[78:79], s[88:89], 24\ns_xor_b32 s78, s78, s88\ns_bfe_u32 s79, s78, 0xc000c\ns_and_b32 s78, s78, 0xfff')
    A('v_mov_b32 v6, 0xfffff000')
    for i in range(4):
        A(f's_waitcnt lgkmcnt({3-i})')
        for r in range(64 + 4 * i, 68 + 4 * i):
            A(f'v_and_or_b32 v{r}, v{r}, v6, s{76 + (r & 3)}')
        if i == 3: A('s_mov_b32 exec_hi, 0')
        A(f'buffer_store_dwordx4 {vr(64+4*i)}, v22, s[40:43], s70 offen offset:{1024*i} sc1')
    A('s_mov_b64 exec, -1')
    if KVP_AT is not None: A('s_movk_i32 s54, 88\nbuffer_load_dword v0, s[44:47], s54 offen lds')
    A('L_p1_done:')
    stamp(A, 4)
    gen_awave(A)


def p2_ids(A):
    if P84:
        A('s_bfe_u32 s18, s2, 0x20001\ns_lshl_b32 s18, s18, 3\ns_lshr_b32 s48, s2, 5\ns_add_u32 s18, s18, s48')
        A('s_and_b32 s19, s2, 1\ns_lshl_b32 s19, s19, 2\ns_bfe_u32 s48, s2, 0x20003\ns_add_u32 s19, s19, s48')
        return
    A('s_and_b32 s18, s2, 7\ns_lshl_b32 s18, s18, 2\ns_lshr_b32 s48, s2, 6\ns_add_u32 s18, s18, s48')
    A('s_bfe_u32 s19, s2, 0x30003')


def wo_offset(A, w):
    A('s_and_b32 s69, s2, 7\ns_lshl_b32 s69, s69, 3\ns_bfe_u32 s48, s2, 0x30003\ns_add_u32 s69, s69, s48')
    A(f's_lshr_b32 s48, s69, 2\ns_lshl_b32 s48, s48, 1\ns_and_b32 s49, {w}, 1\ns_add_u32 s48, s48, s49\ns_mul_i32 s48, s48, 25600')
    A(f's_and_b32 s49, s69, 3\ns_lshl_b32 s49, s49, 1\ns_lshr_b32 s56, {w}, 1\ns_add_u32 s49, s49, s56\ns_mul_i32 s49, s49, 160\ns_add_u32 s73, s48, s49')


def gpoll(A, soff, vt):
    l0 = A.label('L_gp'); l1 = A.label('L_gs'); l2 = A.label('L_gd')
    A('s_mov_b32 s96, 0\ns_mov_b32 s75, 0')
    A(f'{l0}:')
    A(f's_mov_b32 exec_hi, 0xffff\nbuffer_load_dwordx2 {vr(vt,2)}, v6, s[40:43], s{soff} offen sc1\ns_waitcnt vmcnt(0)\nv_cmp_ne_u64 vcc, s[88:89], {vr(vt,2)}\ns_mov_b32 exec_hi, -1')
    A('s_mov_b32 s74, 0')
    for g in range(4):
        A(f's_bfe_u64 s[76:77], vcc, {hex((12 << 16) | (12 * g))}\ns_cselect_b32 s48, 0, {1 << g}\ns_or_b32 s74, s74, s48')
    A(f's_cmp_eq_u32 s74, s75\ns_cbranch_scc1 {l1}')
    A(f's_mov_b32 s75, s74\nv_mov_b32 v{vt}, s74\ns_mov_b64 exec, 1\nds_write_b32 v0, v{vt} offset:64\ns_mov_b64 exec, -1')
    A(f'{l1}:')
    A(f's_cmp_eq_u32 s74, 15\ns_cbranch_scc1 {l2}')
    A(f's_sleep {PSLEEP}\ns_add_u32 s96, s96, 1\ns_cmp_lt_u32 s96, {SPIN_MAX}\ns_cbranch_scc1 {l0}')
    A(f'{l2}:')


def get_epoch(A, vct, vt):
    l0 = A.label('L_ep')
    A('s_mov_b32 s96, 0')
    A(f'{l0}:')
    A(f'ds_read_b64 {vr(vt,2)}, v{vct} offset:32\ns_waitcnt lgkmcnt(0)\nv_readfirstlane_b32 s88, v{vt}\nv_readfirstlane_b32 s89, v{vt+1}')
    A(f's_add_u32 s96, s96, 1\ns_cmp_eq_u32 s88, 0\ns_cselect_b32 s48, s96, -1\ns_cmp_lt_u32 s48, {SPIN_MAX*16}\ns_cbranch_scc1 {l0}')


def phase_a(A):
    WOI = 0; HS = 0; HSTR = 5120
    A('v_lshrrev_b32 v3, 4, v2\nv_and_b32 v4, 15, v2')
    A('s_mul_i32 s70, s21, 5120')
    A('s_lshr_b32 s50, s18, 1\ns_and_b32 s51, s18, 1')
    A(f's_mul_i32 s48, s51, 1792\nv_add_u32 v10, s48, v5\nv_add_u32 v11, 1024, v10\nv_mov_b32 v15, {OOB}\nv_cmp_lt_u32 vcc, 40, v2\ns_nop 1\nv_cndmask_b32 v11, v11, v15, vcc')
    A('v_mov_b32 v19, v5\nv_add_u32 v20, 1024, v5\nv_mul_u32_u24 v21, 80, v4\nv_lshl_add_u32 v12, v3, 5, v21\nv_lshlrev_b32 v13, 3, v4')
    A('v_bfe_u32 v14, v2, 2, 2\nv_lshl_add_u32 v14, v3, 3, v14\nv_mul_u32_u24 v14, 160, v14\nv_and_b32 v15, 3, v2\nv_lshl_add_u32 v14, v15, 3, v14\nv_add_u32 v14, s70, v14')
    A(f'v_add_u32 v19, s70, v19\nv_add_u32 v20, s70, v20\ns_mul_i32 s48, s51, 5120\nv_add_u32 v12, s48, v12\nv_add_u32 v13, s48, v13')
    A('v_cmp_gt_u32 s[60:61], 3, v3\nv_cmp_gt_u32 s[62:63], 2, v3\nv_cmp_gt_u32 s[64:65], 41, v2')
    A(f's_mul_i32 s48, s51, 5\ns_lshr_b32 s49, s21, 1\ns_mul_i32 s49, s49, {RPK - 40960}\ns_add_u32 s49, s49, 40960')
    for mt in range(2):
        A(f'v_add3_u32 v15, v3, s48, {4*mt}\nv_lshrrev_b32 v16, 1, v15\nv_mul_u32_u24 v16, 1280, v16\nv_and_b32 v15, 1, v15\nv_lshl_add_u32 v16, v15, 3, v16')
        A(f'v_lshl_add_u32 v16, v4, 4, v16\nv_add_u32 v{17+mt}, s49, v16')
    A('s_mul_i32 s48, s51, 40\ns_add_u32 s48, s48, s49\ns_add_u32 s48, s48, 6400\nv_lshlrev_b32 v22, 2, v2\nv_add_u32 v22, s48, v22')
    A('s_mul_i32 s48, s51, 3328\ns_add_u32 s48, s48, s49\nv_add_u32 v21, s48, v5\nv_lshlrev_b32 v15, 10, v3\nv_lshl_add_u32 v15, v4, 4, v15')
    A(f's_lshr_b32 s48, s18, 3\ns_mul_i32 s48, s48, 5\ns_mul_i32 s49, s19, 20\ns_add_u32 s48, s48, s49\ns_mul_i32 s48, s48, 5120\ns_and_b32 s49, s50, 3\ns_lshl_b32 s49, s49, 8\ns_add_u32 s48, s48, s49')
    A(f's_mul_i32 s49, s51, 13312\ns_add_u32 s48, s48, s49\ns_add_u32 s55, s48, {M_OFF}\ns_add_u32 s56, s55, 4096\ns_add_u32 s57, s55, 8192\ns_add_u32 s48, s55, 12288')
    A(f's_lshl_b32 s54, s19, 11\ns_lshl_b32 s49, s50, 7\ns_add_u32 s54, s54, s49\ns_add_u32 s54, s54, {ZB_OFF}')
    A(f's_cmp_eq_u32 s51, 0\ns_cselect_b32 s54, s48, s54\ns_movk_i32 s48, {ZM}\ns_cselect_b32 s58, 0xffff, s48\ns_mov_b32 s59, 0')
    A('s_and_b32 s76, s88, 0xfff\ns_bfe_u32 s77, s88, 0xc000c\ns_lshr_b64 s[78:79], s[88:89], 24\ns_xor_b32 s78, s78, s88\ns_bfe_u32 s79, s78, 0xc000c\ns_and_b32 s78, s78, 0xfff')
    A(f's_mul_i32 s52, s50, {16*KVS}\ns_lshr_b32 s49, s21, 1\ns_mul_i32 s49, s49, {8*KVS}\ns_add_u32 s52, s52, s49\ns_add_u32 s52, s52, {KVP_OFF}')
    if ZEARLY:
        for reg, add in ((13, 0), (22, 1)):
            A(f'v_and_b32 v8, 7, v2\nv_lshl_add_u32 v8, v8, 1, {add}\nv_lshlrev_b32 v9, 4, v8\nv_add_u32 v{reg}, 1600, v9\nv_add_u32 v9, {1600 + HSTR - 80}, v9\nv_cmp_lt_u32 vcc, 4, v8\ns_nop 1\nv_cndmask_b32 v{reg}, v{reg}, v9, vcc')
    A(f's_lshl_b32 s48, s21, 2\nv_add_u32 v23, s48, v0\nv_mov_b32 v244, 1\nv_mov_b32 v245, 2\nv_mov_b32 v246, 3')
    A('s_mov_b64 exec, 1\nds_write_b32 v23, v244 offset:192\ns_mov_b64 exec, -1')
    lds_wait(A, 23, 112, 248, 1, four=False, sleep=1)
    for t in range(5):
        A(f'ds_read_b64_tr_b16 {vr(224+4*t,2)}, v14 offset:{32*t}\nds_read_b64_tr_b16 {vr(226+4*t,2)}, v14 offset:{32*t + 640}')
    stamp(A, 25)
    lds_wait(A, 0, 72, 248, 1, four=False, sleep=2)
    if KVACK: A('s_waitcnt vmcnt(0)')
    if GDELAY: A(f's_sleep {GDELAY}')
    stamp(A, 26)
    A('s_mov_b32 s96, 0')
    A('L_pa_gather:')
    for p in range(8):
        if PAX:
            A(f's_lshl_b32 s53, s69, 1\ns_add_u32 s53, s53, {p}\ns_and_b32 s53, s53, 7\ns_mul_i32 s53, s53, {KVS}\ns_add_u32 s53, s53, s52')
            if p == 2 and PAX == 2: A('s_waitcnt vmcnt(0)')
        else:
            A(f's_add_u32 s53, s52, {KVS*p}')
        for ldi in range(2):
            A(f'buffer_load_dwordx4 {vr(24 + 8*p + 4*ldi)}, v{10+ldi}, s[40:43], s53 offen sc1')
    for p in range(8):
        A(f's_waitcnt vmcnt({2*(7-p)})')
        for r in range(24 + 8 * p, 32 + 8 * p):
            A(f'v_xor_b32 v{r}, s{76 + (r & 3)}, v{r}')
        for ldi in range(2):
            r = 24 + 8 * p + 4 * ldi; d = 8 + ldi
            if p == 0:
                A(f'v_or3_b32 v{d}, v{r}, v{r+1}, v{r+2}\nv_or_b32 v{d}, v{d}, v{r+3}')
            else:
                A(f'v_or3_b32 v{d}, v{d}, v{r}, v{r+1}\nv_or3_b32 v{d}, v{d}, v{r+2}, v{r+3}')
        if p:
            for j in range(0, 8, 2):
                A(f'v_pk_add_f32 {vr(24+j,2)}, {vr(24+j,2)}, {vr(24+8*p+j,2)}')
    A('v_cndmask_b32 v9, 0, v9, s[64:65]\nv_or_b32 v8, v8, v9\nv_and_b32 v8, 0xfff, v8\nv_cmp_ne_u32 vcc, 0, v8')
    A('s_cbranch_vccz L_pa_got')
    stamp(A, 35)
    A(f's_sleep {PSLEEP}\ns_add_u32 s96, s96, 1\ns_cmp_lt_u32 s96, {SPIN_MAX}\ns_cbranch_scc1 L_pa_gather')
    A('L_pa_got:')
    if STAMP: A('v_writelane_b32 v1, s96, 36')
    stamp(A, 27)
    A('ds_write_b128 v19, v[24:27]\nds_write_b128 v20, v[28:31]')
    A('s_mov_b64 exec, 1\nds_write_b32 v23, v244 offset:80\ns_mov_b64 exec, -1')
    lds_wait(A, 0, 80, 248, 1, sleep=0)
    stamp(A, 28)
    if ZEARLY:
        A('s_cmp_eq_u32 s51, 0\ns_cbranch_scc1 L_pa_noz')
        A(f'ds_read_b128 v[64:67], v13\nds_read_b128 v[68:71], v22\nds_read_b128 v[72:75], v13 offset:{2*HSTR}\nds_read_b128 v[76:79], v22 offset:{2*HSTR}\ns_waitcnt lgkmcnt(0)')
        for j in range(0, 8, 2):
            A(f'v_pk_add_f32 {vr(64+j,2)}, {vr(64+j,2)}, {vr(72+j,2)}')
        for j in range(4):
            A(f'v_cvt_pk_bf16_f32 v{80+j}, v{64+2*j}, v{65+2*j}')
        A('s_mov_b64 exec, 0xff\nbuffer_store_dwordx4 v[80:83], v15, s[40:43], s54 offen sc1\ns_mov_b64 exec, -1')
        A('L_pa_noz:')
    for w in range(2):
        for mt in range(2):
            A(f'ds_read_b128 {vr(24+20*w+8*mt)}, v12 offset:{2*w*HSTR + 1280*mt}\nds_read_b128 {vr(28+20*w+8*mt)}, v12 offset:{2*w*HSTR + 1280*mt + 16}')
        if not ZEARLY: A(f'ds_read_b64 {vr(40+20*w,2)}, v13 offset:{2*w*HSTR + 1600}')
    A('s_waitcnt lgkmcnt(0)')
    for j in range(0, 18, 2):
        A(f'v_pk_add_f32 {vr(24+j,2)}, {vr(24+j,2)}, {vr(44+j,2)}')
    for mt in range(2):
        b = 24 + 8 * mt
        for j in range(4):
            A(f'v_cvt_pk_bf16_f32 v{b+j}, v{b+2*j}, v{b+2*j+1}')
        for j in range(4):
            A(f'v_cndmask_b32 v{b+j}, 0, v{b+j}, {"s[60:61]" if j < 2 else "s[62:63]"}')
    A('v_cvt_pk_bf16_f32 v40, v40, v41\ns_nop 0')
    for mt in range(2):
        for t in range(5):
            A(f'v_mfma_f32_16x16x32_bf16 {vr(64+20*mt+4*t)}, {vr(24+8*mt)}, {vr(224+4*t)}, 0')
    A('s_mov_b64 exec, 0x3ff\nds_write_b32 v22, v40\ns_mov_b64 exec, -1\ns_nop 0' if not ZEARLY else 's_nop 3')
    for mt in range(2):
        if mt == 1: A('s_mov_b64 exec, 0xffff')
        for t in range(5):
            b = 64 + 20 * mt + 4 * t
            A(f'v_cvt_pk_bf16_f32 v{b}, v{b}, v{b+1}\nv_cvt_pk_bf16_f32 v{b+1}, v{b+2}, v{b+3}')
            A(f'ds_write_b64 v{17+mt}, {vr(b,2)} offset:{256*t}')
    A('s_mov_b64 exec, 1\nds_write_b32 v23, v245 offset:80\ns_mov_b64 exec, -1')
    lds_wait(A, 0, 80, 248, 2, sleep=0)
    for i in range(4):
        A(f'ds_read_b128 {vr(24+4*i)}, v21 offset:{1024*i}')
    for i in range(3):
        A(f's_waitcnt lgkmcnt({3-i})\nbuffer_store_dwordx4 {vr(24+4*i)}, v15, s[40:43], s{55+i} offen sc1')
    if ZEARLY: A('s_cmp_lg_u32 s51, 0\ns_cbranch_scc1 L_pa_no4')
    A('s_waitcnt lgkmcnt(0)\ns_mov_b64 exec, s[58:59]\nbuffer_store_dwordx4 v[36:39], v15, s[40:43], s54 offen sc1')
    A('L_pa_no4:')
    stamp(A, 29)
    if MACK: A('s_waitcnt vmcnt(0)')
    A('s_mov_b64 exec, 1\nds_write_b32 v23, v246 offset:80\ns_mov_b64 exec, -1')
    lds_wait(A, 0, 80, 248, 3, sleep=1)
    stamp(A, 30)


XCH = [0, 15360, 30720, WBASE + 4 * WSLOT]
def gen_awave(A):
    AC = 16; PQ = 96; MB = 176
    def a2(rt, t): return AC + 20 * rt + 4 * t
    def pq(kk, rt): return PQ + 16 * kk + 4 * rt
    A('s_load_dwordx2 s[8:9], s[0:1], 64')
    A(f'v_mov_b32 v0, {CT}')
    A('v_lshrrev_b32 v3, 4, v2\nv_and_b32 v4, 15, v2\nv_lshlrev_b32 v5, 4, v2\nv_lshlrev_b32 v6, 3, v2\nv_add_u32 v7, 4096, v5')
    A('s_cmp_lg_u32 s20, 0\ns_cbranch_scc1 L_a_g')
    A('s_and_b32 s69, s2, 7\ns_lshl_b32 s69, s69, 3\ns_bfe_u32 s48, s2, 0x30003\ns_add_u32 s69, s69, s48')
    A('s_lshr_b32 s18, s69, 2\ns_lshl_b32 s18, s18, 1\ns_and_b32 s48, s21, 1\ns_add_u32 s18, s18, s48\ns_and_b32 s19, s69, 3\ns_lshl_b32 s19, s19, 1\ns_lshr_b32 s48, s21, 1\ns_add_u32 s19, s19, s48')
    phase_a(A)
    A('s_branch L_a_sig')
    A('L_a_g:')
    get_epoch(A, 0, 8)
    set_flag(A, 74, 8)
    A('L_a_sig:')
    A(f'v_mov_b32 v8, 1\ns_lshl_b32 s48, s21, 2\nv_add_u32 v9, s48, v0\ns_mov_b64 exec, 1\nds_write_b32 v9, v8 offset:48\ns_mov_b64 exec, -1')
    stamp(A, 5)
    A('s_waitcnt lgkmcnt(0)')
    srd(A, 28, 8, 2621440)
    A('L_a_main:')
    A(f's_setprio {APRIO}')
    p2_ids(A)
    A(f's_lshr_b32 s48, s18, 1\ns_lshl_b32 s59, s48, {FSH}\ns_add_u32 s59, s59, {FG_OFF}')
    A('s_mul_i32 s48, s21, 5\ns_mul_i32 s54, s18, 68\ns_add_u32 s54, s54, s48\ns_add_u32 s54, s54, 48\ns_lshl_b32 s54, s54, 12')
    A(f's_mul_i32 s55, s19, 20\ns_add_u32 s55, s55, s48\ns_mul_i32 s55, s55, 5120\ns_add_u32 s55, s55, {M_OFF}')
    A(f's_lshl_b32 s53, s18, 8\ns_add_u32 s53, s53, {G_OFF}')
    A(f's_lshl_b32 s52, s19, 11\ns_lshl_b32 s49, s21, 9\ns_add_u32 s52, s52, s49\ns_add_u32 s52, s52, {ZB_OFF}')
    A(f's_lshl_b32 s58, s19, 11\ns_add_u32 s58, s58, {ZB_OFF}')
    A('v_lshlrev_b32 v14, 2, v4\nv_lshlrev_b32 v15, 7, v3')
    A('v_lshrrev_b32 v12, 2, v4\nv_cmp_eq_u32 s[60:61], v12, v3\nv_and_b32 v12, 1, v4\nv_cmp_eq_u32 s[62:63], 0, v12')
    A('s_and_b64 s[64:65], s[60:61], s[62:63]\ns_andn2_b64 s[66:67], s[60:61], s[62:63]')
    A(f's_mov_b32 s68, {EPS}\ns_mov_b32 s69, 0xffff0000')
    Q = []
    def ld(tag, txt):
        A(txt); Q.append(tag)
    def wait(tag):
        last = max(k for k, t in enumerate(Q) if t == tag)
        A(f's_waitcnt vmcnt({len(Q) - 1 - last})')
    def issueM(kk):
        A(f's_add_u32 s57, s55, {5120*kk}')
        for t in range(4):
            ld(('M', kk), f'buffer_load_dwordx4 {vr(mb(kk,t))}, v5, s[40:43], s57 offen offset:{1024*t} sc1')
        ld(('M', kk), f'buffer_load_dwordx4 {vr(mb(kk,4))}, v7, s[40:43], s57 offen sc1')
    ZR = 236
    ZIMG = CT + 1536
    mbuf = {0: MB, 1: MB + 20, 2: MB + 40, 3: MB, 4: MB + 20} if not M4 else {0: MB, 1: MB + 20, 2: MB + 40, 3: ZR, 4: MB}
    def mb(kk, t): return mbuf[kk] + 4 * t
    for j in range(4):
        A(f's_add_u32 s48, s21, {j+1}\ns_and_b32 s{70+j}, s48, 3')
    A('s_cmp_lg_u32 s21, 2\ns_cbranch_scc1 L_a_nopollg')
    A('s_cmp_eq_u32 s20, 0\ns_cbranch_scc1 L_a_nopollg')
    lds_wait(A, 0, 48, 8, 1, sleep=2)
    gpoll(A, 59, 8)
    A('L_a_nopollg:')
    if FINEG:
        A('s_lshl_b32 s74, 3, s21\ns_lshr_b32 s74, s74, 1')
    else:
        A('s_mov_b32 s74, 15')
    lds_wait_mask(A, 0, 64, 8, 's74')
    stamp(A, 11)
    if COOP_P:
        if KVFAST: A('s_cmp_eq_u32 s20, 0\ns_cbranch_scc1 L_a_nocp')
        A('s_mul_i32 s49, s19, 2560\ns_add_u32 s48, s54, s49' if not P84 else 's_and_b32 s49, s19, 3\ns_mul_i32 s49, s49, 5120\ns_add_u32 s48, s54, s49')
        A('v_lshlrev_b32 v8, 7, v2\n' + ('s_mov_b64 exec, 0xfffff' if not P84 else 's_mov_b32 exec_hi, 0xff') + '\nbuffer_load_dword v9, v8, s[40:43], s48 offen sc1\ns_mov_b64 exec, -1\ns_waitcnt vmcnt(0)')
        A('L_a_nocp:')
    stamp(A, 21)
    for j in range(4):
        A(f's_lshl_b32 s48, s{70+j}, 10\ns_add_u32 s56, s54, s48')
        for kk in range(5 if j < NRC else 0):
            A(f'buffer_load_dwordx4 {vr(pq(kk,j))}, v5, s[40:43], s56 offen {LL}')
            if kk < 4: A('s_add_u32 s56, s56, 4096')
    stamp(A, 22)
    lds_wait_mask(A, 0, 64, 8, 8)
    stamp(A, 23)
    for j in range(4):
        A(f's_lshl_b32 s48, s{70+j}, 6\ns_add_u32 s56, s53, s48\nbuffer_load_dword v{10+j}, v14, s[40:43], s56 offen {LL}')
    A(f'v_lshrrev_b32 v8, 2, v2\nv_and_b32 v9, 3, v2\nv_mul_u32_u24 v24, 80, v8\nv_lshl_add_u32 v24, v9, 4, v24\nv_add_u32 v24, {ZIMG}, v24\nv_lshlrev_b32 v26, 7, v8\nv_lshl_add_u32 v26, v9, 4, v26')
    A(f's_mul_i32 s76, s19, 102400\ns_and_b32 s49, s18, {7 if P84 else 3}\ns_mul_i32 s49, s49, {12800 if P84 else 25600}\ns_add_u32 s76, s76, s49\ns_mul_i32 s49, s21, {3200 if P84 else 6400}\ns_add_u32 s76, s76, s49\ns_add_u32 s76, s76, {M_OFF}\nv_lshlrev_b32 v27, 7, v2')
    lds_wait(A, 0, 72, 8, 1, four=False, sleep=2)
    A('s_cmp_lg_u32 s21, 1\ns_cbranch_scc1 L_a_oth2')
    if KVFAST == 2: A('s_cmp_eq_u32 s20, 0\ns_cbranch_scc1 L_a_nogate')
    if PQ_AT is not None: lds_wait(A, 0, 144, 16, 1, sleep=1)
    A('L_a_nogate:')
    stamp(A, 24)
    A('buffer_load_dwordx4 v[16:19], v26, s[40:43], s58 offen sc1\nbuffer_load_dwordx4 v[20:23], v26, s[40:43], s58 offen offset:16 sc1')
    if not ZEARLY: A('v_mov_b32 v8, 1\ns_mov_b64 exec, 1\nds_write_b32 v0, v8 offset:76\ns_mov_b64 exec, -1')
    A('L_a_oth2:')
    if not ZEARLY:
        lds_wait(A, 0, 76, 8, 1, four=False, sleep=2)
        A('s_mov_b32 exec_hi, 0x3ffff\nbuffer_load_dword v95, v27, s[40:43], s76 offen sc1\ns_mov_b32 exec_hi, -1')
    A('s_cmp_lg_u32 s21, 1\ns_cbranch_scc1 L_a_nopoll')
    A(f's_mov_b32 s96, 0\ns_waitcnt vmcnt({0 if ZEARLY else 1})\ns_branch L_a_zchk')
    A('L_a_zpoll:')
    A('buffer_load_dwordx4 v[16:19], v26, s[40:43], s58 offen sc1\nbuffer_load_dwordx4 v[20:23], v26, s[40:43], s58 offen offset:16 sc1\ns_waitcnt vmcnt(0)')
    A('L_a_zchk:')
    A('v_max3_u32 v9, v16, v18, v20\nv_max_u32 v9, v9, v22\nv_cmp_eq_u32 vcc, -1, v9')
    A('s_cbranch_vccz L_a_zok')
    A(f's_sleep {MSLEEP}\ns_add_u32 s96, s96, 1\ns_cmp_lt_u32 s96, {SPIN_MAX}\ns_cbranch_scc1 L_a_zpoll')
    A('L_a_zok:')
    if STAMP: A('v_writelane_b32 v1, s96, 36')
    A('ds_write_b128 v24, v[16:19]\nds_write_b128 v24, v[20:23] offset:16')
    A('v_mov_b32 v8, 1\ns_mov_b64 exec, 1\nds_write_b32 v0, v8 offset:68\ns_mov_b64 exec, -1')
    A('L_a_nopoll:')
    A(f's_mul_i32 s48, s21, 320\ns_add_u32 s48, s48, {ZIMG}\nv_mul_u32_u24 v15, 80, v3\nv_add_u32 v15, s48, v15')
    lds_wait(A, 0, 68, 8, 1, four=False, sleep=2)
    stamp(A, 10)
    for kk in range(5):
        A(f'ds_read_b128 {vr(ZR+4*kk)}, v15 offset:{16*kk}')
    if SPEC_M:
        A(f's_waitcnt vmcnt({0 if ZEARLY else 1})')
        if ZEARLY: A('v_mov_b32 v94, v27')
    elif COOP_M:
        A(f's_mul_i32 s48, s19, 102400\ns_and_b32 s49, s18, 3\ns_mul_i32 s49, s49, 25600\ns_add_u32 s48, s48, s49\ns_mul_i32 s49, s21, 6400\ns_add_u32 s48, s48, s49\ns_add_u32 s48, s48, {M_OFF}')
        A('v_lshlrev_b32 v8, 7, v2\ns_mov_b32 exec_hi, 0x3ffff\nbuffer_load_dword v9, v8, s[40:43], s48 offen sc1\ns_mov_b32 exec_hi, -1')
    else:
        issueM(0); issueM(1); issueM(2)
    A('s_waitcnt lgkmcnt(0)')
    for kk in range(5):
        for j in range(4):
            m = 's[66:67]' if (4 * kk + j) >= 10 else 's[64:65]'
            A(f'v_cndmask_b32 v{ZR+4*kk+j}, 0, v{ZR+4*kk+j}, {m}')
    den = [AC + 4 * rt for rt in range(4)]
    if not SPEC_M: A(f's_waitcnt vmcnt({1 if COOP_M else 15})')
    stamp(A, 17)
    A('s_nop 0')
    for kk in range(5):
        for rt in range(NRC):
            d = vr(den[rt])
            A(f'v_mfma_f32_16x16x32_bf16 {d}, {vr(ZR+4*kk)}, {vr(pq(kk,rt))}, {d if kk else 0}')
    A('s_nop 7')
    SC = ZR; T0 = ZR + 8
    for rt in range(NRC):
        A(f'v_add_f32 v{den[rt]}, s68, v{den[rt]}\nv_add_f32 v{den[rt]+1}, s68, v{den[rt]+1}')
    for rt in range(NRC):
        A(f'v_rcp_f32 v{den[rt]}, v{den[rt]}\nv_rcp_f32 v{den[rt]+1}, v{den[rt]+1}')
    A('s_nop 0')
    for rt in range(NRC):
        A(f'v_mul_f32 v{SC+2*rt}, v{10+rt}, v{den[rt]}\nv_mul_f32 v{SC+2*rt+1}, v{10+rt}, v{den[rt]+1}')
    def norm_ops(kk):
        L = []
        for rt in range(NRC):
            r = pq(kk, rt)
            for j in range(4):
                L += [f'v_lshlrev_b32 v{T0+2*j}, 16, v{r+j}', f'v_and_b32 v{T0+2*j+1}, s69, v{r+j}']
            for j in range(4):
                odd = 1 if (4 * kk + j) >= 10 else 0
                L += [f'v_mul_f32 v{T0+2*j}, v{SC+2*rt+odd}, v{T0+2*j}', f'v_mul_f32 v{T0+2*j+1}, v{SC+2*rt+odd}, v{T0+2*j+1}']
            for j in range(4):
                L += [f'v_cvt_pk_bf16_f32 v{r+j}, v{T0+2*j}, v{T0+2*j+1}']
        return L
    stamp(A, 20)
    if ZEARLY:
        for kk in range(NLEAD):
            if kk == ZC: A(('s_mov_b32 exec_hi, 0x3ffff' if not P84 else 's_mov_b64 exec, 0x1ffffff') + '\nbuffer_load_dword v95, v94, s[40:43], s76 offen sc1\ns_mov_b64 exec, -1')
            if kk == ZM0:
                A('s_waitcnt vmcnt(0)')
                issueM(0); issueM(1)
            if M4 and kk == ZM0 + 1: issueM(2)
            for l in norm_ops(kk): A(l)
        if not (M4 and ZM0 + 1 < NLEAD): issueM(2)
        if M4: issueM(3)
    else:
        A('s_waitcnt vmcnt(0)')
        issueM(0); issueM(1)
        for kk in range(NLEAD):
            for l in norm_ops(kk): A(l)
            if kk == 0: issueM(2)
    stamp(A, 6)
    A('v_sub_f32 v14, 1.0, v13')
    for j in range(3):
        A(f's_mul_i32 s48, s{70+j}, 15360\ns_cmp_eq_u32 s{70+j}, 3\ns_cselect_b32 s48, {XCH[3]}, s48\ns_add_u32 s48, s48, {(2-j)*5120}\nv_add_u32 v{10+j}, s48, v5')
    A(f's_lshl_b32 s48, s21, 11\ns_add_u32 s48, s48, {XCH[3] + 15360 - 3072}\nv_add_u32 v13, s48, v5')
    A(f's_mul_i32 s48, s21, 5120\ns_add_u32 s48, s48, {WBASE + 2*WSLOT}\nv_add_u32 v15, s48, v5\ns_lshl_b32 s48, s21, 2\nv_add_u32 v6, s48, v0')
    for kk in range(5):
        nxt = norm_ops(kk + NLEAD) if kk + NLEAD < 5 else []
        wait(('M', kk))
        A('s_mov_b32 s96, 0')
        A(f'L_a_mchk{kk}:')
        m0 = mb(kk, 0)
        A(f'v_max3_u32 v8, v{m0}, v{m0+2}, v{m0+4}')
        for k in (3, 5, 7):
            A(f'v_max3_u32 v8, v8, v{m0+2*k}, v{m0+2*k+2}')
        A(f'v_max_u32 v8, v8, v{m0+18}\nv_cmp_eq_u32 vcc, -1, v8')
        A(f's_cbranch_vccnz L_a_mre{kk}')
        A(f'L_a_mok{kk}:')
        stamp(A, 31 + kk)
        if kk == 4:
            lds_wait(A, 0, 96, PQ, 1, sleep=1)
        if NRC == 2:
            lds_wait(A, 6, 160, 8, kk + 1, four=False, sleep=1)
            A(f'ds_read_b128 {vr(pq(kk,2))}, v15 offset:{1024*kk}\nds_read_b128 {vr(pq(kk,3))}, v15 offset:{WSLOT + 1024*kk}')
        for rt in range(4):
            if NRC == 2 and rt == 2:
                A('s_waitcnt lgkmcnt(0)')
                if kk == 4:
                    A('v_mov_b32 v8, 1\ns_mov_b64 exec, 1\nds_write_b32 v6, v8 offset:176\ns_mov_b64 exec, -1')
            for t in range(5):
                d = vr(a2(rt, t))
                A(f'v_mfma_f32_16x16x32_bf16 {d}, {vr(mb(kk,t))}, {vr(pq(kk,rt))}, {d if kk else 0}')
                for _ in range(NRC):
                    if nxt: A(nxt.pop(0))
                if kk == 4 and rt >= 2:
                    A(f'ds_write_b128 v{10+rt-2}, {vr(a2(rt-2,t))} offset:{t*1024}')
        if M4:
            if kk == 0: issueM(4)
        elif kk < 2:
            issueM(kk + 3)
    stamp(A, 12)
    for t in range(5):
        A(f'ds_write_b128 v12, {vr(a2(2,t))} offset:{t*1024}')
    A(f's_lshl_b32 s48, s21, 8\nv_lshlrev_b32 v8, 2, v2\nv_add_u32 v8, s48, v8\nds_write_b32 v8, v14 offset:{46080}')
    for t in (3, 4):
        A(f'ds_write_b128 v13, {vr(a2(3,t))} offset:{t*1024}')
    OWN = a2(3, 0)
    A(f's_mul_i32 s50, s21, 15360\ns_cmp_eq_u32 s21, 3\ns_cselect_b32 s50, {XCH[3]}, s50')
    A(f's_mul_i32 s48, s21, {WSLOT}\ns_add_u32 s48, s48, {WBASE}\nv_add_u32 v8, s48, v5\nv_mov_b32 v15, v14\nv_add_u32 v7, s50, v5')
    A('s_lshl_b32 s48, s18, 6\ns_lshl_b32 s49, s21, 4\ns_add_u32 s48, s48, s49\nv_add_u32 v9, s48, v4\nv_mul_u32_u24 v9, 1280, v9\nv_lshl_add_u32 v9, v3, 3, v9\ns_mul_i32 s48, s19, 160')
    A('s_waitcnt lgkmcnt(0)')
    A('s_barrier')
    stamp(A, 13)
    for r in range(4):
        for t in range(3):
            A(f'ds_read_b128 {vr(PQ+12*r+4*t)}, v8 offset:{r*5120 + 1024*t}')
    A('s_waitcnt lgkmcnt(6)')
    for r in range(3):
        for t in range(3):
            A(f'ds_read_b128 {vr(AC+12*r+4*t)}, v7 offset:{r*5120 + 1024*t}')
    for k in range(0, 12, 2):
        A(f'v_pk_add_f32 {vr(PQ+k,2)}, {vr(PQ+k,2)}, {vr(PQ+12+k,2)}')
    A('s_waitcnt lgkmcnt(9)')
    for k in range(0, 12, 2):
        A(f'v_pk_add_f32 {vr(PQ+24+k,2)}, {vr(PQ+24+k,2)}, {vr(PQ+36+k,2)}')
    for k in range(0, 12, 2):
        A(f'v_pk_add_f32 {vr(PQ+k,2)}, {vr(PQ+k,2)}, {vr(PQ+24+k,2)}')
    for k in range(0, 12, 2):
        A(f'v_pk_fma_f32 {vr(OWN+k,2)}, {vr(PQ+k,2)}, v[14:15], {vr(OWN+k,2)}')
    for sl in range(3):
        A(f's_waitcnt lgkmcnt({6 - 3*sl})')
        for k in range(0, 12, 2):
            A(f'v_pk_add_f32 {vr(OWN+k,2)}, {vr(OWN+k,2)}, {vr(AC+12*sl+k,2)}')
    for t in range(3):
        b = OWN + 4 * t
        A(f'v_cvt_pk_bf16_f32 v{b}, v{b}, v{b+1}\nv_cvt_pk_bf16_f32 v{b+1}, v{b+2}, v{b+3}')
        A(f'buffer_store_dwordx2 {vr(b,2)}, v9, s[28:31], s48 offen offset:{32*t}')
    stamp(A, 14)
    finish(A)
    for kk in range(5):
        A(f'L_a_mre{kk}:')
        A('s_sleep 4')
        issueM(kk)
        A(f's_waitcnt vmcnt(0)\ns_add_u32 s96, s96, 1\ns_cmp_lt_u32 s96, {SPIN_MAX}\ns_cbranch_scc1 L_a_mchk{kk}')
        A(f's_branch L_a_mok{kk}')


def gen_loader(A):
    A.c('s67 = lw ; role constants: s68 strideA, s60 cA, s61 cB, s62 xB, s63 c4, s64 hi-mult')
    A('s_sub_u32 s67, s21, 4')
    A('s_mul_i32 s48, s19, 320\ns_add_u32 s48, s48, 1280\ns_and_b32 s57, s19, 1\ns_lshl_b32 s58, s57, 6\ns_add_u32 s58, s58, s48')
    A('s_xor_b32 s57, s57, 1\ns_lshl_b32 s57, s57, 8\ns_add_u32 s57, s57, s48\ns_add_u32 s59, s58, 1280')
    A('s_lshl_b32 s48, s22, 8\ns_lshl_b32 s49, s22, 7\ns_movk_i32 s56, 3072')
    A('s_cmp_eq_u32 s20, 0')
    A('s_cselect_b32 s68, 3840, s56\ns_cselect_b32 s60, s58, s48\ns_cselect_b32 s61, s59, s48\ns_cselect_b32 s62, 1, 0\ns_cselect_b32 s63, s57, s49\ns_cselect_b32 s64, 1280, 64')
    A(f's_cmp_lg_u32 s91, 0\ns_cselect_b32 s63, {OOB}, s63')
    A(f'v_mov_b32 v29, {OOB}\ns_lshl_b32 s75, s68, 5\ns_lshl_b32 s69, s18, 2\ns_add_u32 s69, s69, s19\nv_and_b32 v3, 31, v2\nv_lshrrev_b32 v4, 5, v2')
    A('s_movk_i32 s48, 3072\ns_cmp_eq_u32 s67, 1\ns_cselect_b32 s48, 3840, s48\ns_lshr_b32 s49, s48, 7\ns_lshl_b32 s85, s48, 6\ns_movk_i32 s56, 128')
    A('s_cmp_eq_u32 s67, 0\ns_cselect_b32 s48, 40960, s48\ns_cselect_b32 s49, 32, s49\ns_cselect_b32 s85, 128, s85\ns_cselect_b32 s56, 1280, s56\ns_mul_i32 s48, s48, s69')
    A('v_mul_u32_u24 v5, s56, v3\nv_mul_u32_u24 v6, s85, v4\nv_add3_u32 v5, v5, v6, s48\nv_cmp_gt_u32 vcc, s49, v3')
    st0 = sum(EV[m][0] << (4 * m) for m in EV)
    A(f's_lshl_b32 s56, s20, 2\ns_lshr_b32 s56, {hex(st0)}, s56\ns_and_b32 s56, s56, 15\nv_cndmask_b32 v30, v29, v5, vcc\ns_mul_i32 s56, s56, s85')
    A('s_mov_b32 s26, 2621440\ns_mov_b32 s27, 0x20000\ns_mov_b32 s31, 0x20000\ns_mov_b32 s35, 0x20000\ns_mov_b32 s39, 0x20000\ns_mov_b32 s83, 0x20000\ns_mov_b32 s48, 1966080\ns_mov_b32 s38, 2457600')
    A('s_cmp_eq_u32 s20, 0\ns_cselect_b32 s30, s38, s48\ns_mov_b32 s34, s30')
    A(f'v_mov_b32 v38, {CT}\nv_lshl_add_u32 v39, v2, 2, v38\nv_mov_b32 v44, 0\ns_lshl_b32 s71, s67, 8\nds_write_b32 v39, v44\nv_add_u32 v39, s71, v39\nds_write_b32 v39, v44 offset:256')
    A(f'v_and_b32 v39, 3, v2\nv_lshlrev_b32 v39, 8, v39\nv_add_u32 v39, {CT+256}, v39\ns_lshl_b32 s71, s67, 2\ns_add_u32 s71, s71, {CT}')
    A('s_cmp_eq_u32 s20, 0')
    A('s_waitcnt lgkmcnt(0)')
    A('s_mov_b32 s24, s4\ns_mov_b32 s25, s5\ns_mov_b32 s36, s6\ns_mov_b32 s37, s7')
    A('s_cselect_b32 s28, s6, s8\ns_cselect_b32 s29, s7, s9\ns_cselect_b32 s32, s6, s10\ns_cselect_b32 s33, s7, s11')
    A('s_cmp_eq_u32 s67, 2\ns_cselect_b32 s80, s8, s10\ns_cselect_b32 s81, s9, s11')
    A('s_cmp_eq_u32 s67, 1\ns_cselect_b32 s80, s6, s80\ns_cselect_b32 s81, s7, s81\ns_cselect_b32 s82, s38, s48')
    A('s_cmp_eq_u32 s67, 0\ns_cselect_b32 s80, s4, s80\ns_cselect_b32 s81, s5, s81\ns_cselect_b32 s82, s26, s82')
    stamp(A, 1)
    def issueW():
        for L in range(5):
            sr = 28 if L < 2 else (32 if L < 4 else 36)
            dma(A, f's_add_u32 m0, s77, {L*1024}', 10 + L, sr, 70 if L < 4 else 72)
        A('s_add_u32 s70, s70, s75\ns_add_u32 s72, s72, s76')
        A(f's_add_u32 s77, s77, {WSLOT}\ns_cmp_ge_u32 s77, {WBASE + NW*WSLOT}\ns_cselect_b32 s48, {NW*WSLOT}, 0\ns_sub_u32 s77, s77, s48')
    def issueX():
        for i in range(4):
            dma(A, f's_add_u32 m0, s78, {i*1024}', 16 + i, 24, 74)
        A('s_add_u32 s74, s74, 128')
        A(f's_add_u32 s78, s78, {XSLOT}\ns_cmp_ge_u32 s78, {NX*XSLOT}\ns_cselect_b32 s48, {NX*XSLOT}, 0\ns_sub_u32 s78, s78, s48')
    def flag():
        A('s_mov_b32 m0, s71\ns_lshl_b32 s48, s65, 2\ns_mov_b64 exec, 1\nbuffer_load_dword v44, s[8:11], s48 offen offset:0 lds\ns_mov_b64 exec, -1')
    A('s_mov_b32 s97, s56')
    if START2:
        A('s_lshr_b32 s56, s85, 6\ns_lshr_b32 s57, s85, 13\ns_cmp_eq_u32 s67, 0\ns_cselect_b32 s56, 10240, s56\ns_cselect_b32 s57, 64, s57\ns_mul_i32 s56, s56, s2')
        A(f's_cmp_ge_u32 s2, {START2}\ns_cselect_b32 s48, s67, 0\ns_cmp_lg_u32 s48, 0\ns_cselect_b32 s57, 0, s57')
        A('v_lshlrev_b32 v34, 7, v2\nv_cmp_gt_u32 vcc, s57, v2\ns_nop 1\nv_cndmask_b32 v34, v29, v34, vcc')
        A('buffer_load_dword v36, v34, s[80:83], s56 offen')
        A('s_cmp_lg_u32 s67, 0\ns_cbranch_scc1 L_nor0')
        A('s_add_u32 s56, s56, 8192\ns_mov_b64 exec, 0xffff\nbuffer_load_dword v37, v34, s[80:83], s56 offen\ns_mov_b64 exec, -1\nv_mov_b32 v30, v29')
        A('s_branch L_nor0')
    A('s_cmp_eq_u32 s20, 0\ns_cbranch_scc1 L_nor0' if not R0LATE else 's_cmp_lg_u32 s20, 1\ns_cbranch_scc1 L_nor0')
    if NOPF != 2: A('s_mov_b32 exec_hi, 0\nbuffer_load_dword v36, v30, s[80:83], s56 offen\ns_mov_b32 exec_hi, -1')
    A('L_nor0:')
    A('s_barrier')
    A('s_cmp_eq_u32 s55, 0\ns_cbranch_scc1 L_nogw0')
    srd(A, 44, 14, 1280)
    A('v_lshlrev_b32 v40, 1, v2')
    for j in range(10):
        A(f'buffer_load_ushort v{50+j}, v40, s[44:47], 0 offen offset:{128*j}')
    A('L_nogw0:')
    A('v_lshrrev_b32 v3, 3, v2\nv_and_b32 v4, 7, v2')
    A('s_lshl_b32 s48, s18, 7\ns_lshl_b32 s56, s67, 5\ns_add_u32 s48, s48, s56\nv_add_u32 v7, s48, v3\nv_mul_u32_u24 v7, 1280, v7')
    A('v_lshrrev_b32 v8, 4, v2\nv_xor_b32 v8, v8, v4\nv_lshl_add_u32 v16, v8, 4, v7')
    A('v_xor_b32 v8, 4, v8\nv_lshl_add_u32 v17, v8, 4, v7\nv_add_u32 v17, 10240, v17')
    A('v_add_u32 v18, 20480, v16\nv_add_u32 v19, 20480, v17')
    A('s_lshl_b32 s56, s67, 3\nv_add_u32 v5, s56, v3')
    A('s_and_b32 s56, s67, 1\ns_lshl_b32 s56, s56, 2\nv_and_b32 v6, 2, v3\nv_xor_b32 v6, v6, v4\nv_xor_b32 v6, s56, v6')
    A('v_mul_u32_u24 v7, s68, v5\nv_lshl_add_u32 v8, v6, 4, v7\nv_add_u32 v10, s60, v8\nv_add_u32 v11, 128, v10')
    A('v_xor_b32 v9, s62, v6\nv_lshl_add_u32 v8, v9, 4, v7\nv_add_u32 v12, s61, v8\nv_add_u32 v13, 128, v12')
    A('v_lshrrev_b32 v8, 2, v6\nv_and_b32 v9, s62, v8\nv_and_b32 v6, 3, v6\nv_xor_b32 v6, v6, v9\nv_mul_u32_u24 v7, 3840, v5')
    A('v_lshl_add_u32 v7, v6, 4, v7\nv_mul_u32_u24 v8, s64, v8\nv_add3_u32 v14, v7, v8, s63')
    A(f's_mov_b32 s76, {32*3840}\ns_mov_b32 s70, 0\ns_mov_b32 s72, 0\ns_mov_b32 s74, 0')
    A(f's_mul_i32 s77, s67, 5120\ns_add_u32 s77, s77, {WBASE}\ns_lshl_b32 s78, s67, 12')
    issueX(); issueW()
    if L2PF:
        A('s_cmp_eq_u32 s67, 2\ns_cselect_b32 s48, s60, s61\ns_cselect_b32 s4, s28, s32\ns_cselect_b32 s5, s29, s33\ns_mov_b32 s6, s30\ns_mov_b32 s49, s68\ns_movk_i32 s56, 128')
        A('s_cmp_eq_u32 s67, 1\ns_cselect_b32 s48, s63, s48\ns_cselect_b32 s4, s36, s4\ns_cselect_b32 s5, s37, s5\ns_cselect_b32 s6, s38, s6\ns_cselect_b32 s49, 3840, s49\ns_cselect_b32 s56, s64, s56')
        A('s_lshl_b32 s94, s49, 6\ns_lshl_b32 s57, s23, 3\nv_add_u32 v33, s57, v4\nv_bfe_u32 v34, v2, 4, 1\nv_lshl_add_u32 v33, v34, 6, v33\nv_mul_u32_u24 v33, s49, v33')
        A('v_bfe_u32 v34, v2, 3, 1\nv_mul_u32_u24 v34, s56, v34\nv_add3_u32 v33, v33, v34, s48\nv_cmp_gt_u32 vcc, 32, v2\ns_mov_b32 s7, 0x20000\ns_nop 0\nv_cndmask_b32 v33, v29, v33, vcc')
        A('s_cmp_lg_u32 s67, 0\ns_cbranch_scc1 L_l2x')
        A('s_mov_b32 s4, s24\ns_mov_b32 s5, s25\ns_mov_b32 s6, s26\ns_movk_i32 s94, 128\ns_lshl_b32 s48, s18, 7\ns_lshl_b32 s49, s20, 5\ns_add_u32 s48, s48, s49')
        A('v_and_b32 v33, 31, v2\nv_add_u32 v33, s48, v33\nv_mul_u32_u24 v33, 1280, v33\nv_lshrrev_b32 v34, 5, v2\nv_lshl_add_u32 v33, v34, 7, v33')
        A('L_l2x:')
        A(f's_mul_i32 s95, s94, {L2PF}\ns_lshl_b32 s94, s94, 1')
    A('s_load_dwordx2 s[86:87], s[0:1], 72')
    A('s_cmp_eq_u32 s55, 0\ns_cbranch_scc1 L_nogw')
    A('v_and_b32 v41, 3, v2\nv_lshlrev_b32 v41, 3, v41')
    A('v_bfe_u32 v40, v2, 2, 1\nv_lshl_add_u32 v41, v40, 9, v41')
    A('v_bfe_u32 v40, v2, 3, 2\nv_lshl_add_u32 v41, v40, 5, v41')
    A(f'v_bfe_u32 v40, v2, 5, 1\nv_mul_u32_u24 v40, {GWS}, v40\nv_add_u32 v41, v40, v41')
    A(f'v_add_u32 v41, {GWBASE}, v41')
    A('s_waitcnt vmcnt(9)')
    for j in range(10):
        A(f'v_lshl_or_b32 v{80+2*j}, v{50+j}, 16, v{50+j}\nv_mov_b32 v{81+2*j}, v{80+2*j}')
        A(f'ds_write_b64 v41, v[{80+2*j}:{81+2*j}] offset:{2*GWS*j}')
    A('L_nogw:')
    srd(A, 40, 16, WS_USED)
    srd(A, 44, 12, 1966080)
    A('s_waitcnt lgkmcnt(0)')
    A('s_lshl_b32 s48, s2, 2\ns_add_u32 s48, s48, s67\ns_cmp_lg_u32 s48, 0\ns_cbranch_scc1 L_noep')
    A('s_memrealtime s[88:89]\ns_waitcnt lgkmcnt(0)\ns_or_b32 s88, s88, 1\nv_mov_b32 v42, s88\nv_mov_b32 v43, s89')
    A('s_mov_b64 exec, 1\nglobal_store_dwordx2 v44, v[42:43], s[86:87] sc1\ns_mov_b64 exec, -1')
    A('L_noep:')
    A('v_lshlrev_b32 v5, 4, v2\nv_lshlrev_b32 v6, 3, v2\nv_add_u32 v7, 4096, v5')
    assert RPORD.index(10) >= 8
    tab = sum(RPORD.index(t) << (4 * t) for t in range(12))
    A(f's_mov_b32 s56, {hex(tab & 0xffffffff)}\ns_mov_b32 s57, {hex(tab >> 32)}\ns_lshl_b32 s48, s22, 2\ns_lshr_b64 s[56:57], s[56:57], s48\ns_and_b32 s48, s56, 15\ns_lshl_b32 s48, s48, 4\ns_add_u32 s48, s48, s18')
    A('s_sub_u32 s60, s48, 120\ns_lshl_b32 s60, s60, 2\ns_add_u32 s60, s60, s67\ns_lshl_b32 s92, s48, 1\ns_add_u32 s92, s92, s67')
    A('s_cmp_lt_u32 s67, 2\ns_cselect_b32 s92, s92, 999\ns_cmp_lt_u32 s92, 240\ns_cselect_b32 s64, 1, 0\ns_cmp_lt_u32 s60, 256\ns_cselect_b32 s64, 2, s64')
    A('s_mul_i32 s62, s92, 52429\ns_lshr_b32 s62, s62, 18\ns_mul_i32 s63, s62, 5\ns_sub_u32 s63, s92, s63')
    A(f's_mul_i32 s79, s62, {32*1280}\ns_lshl_b32 s56, s63, 8\ns_add_u32 s79, s79, s56\ns_lshl_b32 s63, s63, 3\ns_mul_i32 s62, s62, 5')
    A(f's_lshl_b32 s92, s92, 3\ns_add_u32 s92, s92, {FW_OFF}\ns_lshl_b32 s93, s67, 12\ns_add_u32 s93, s93, {RPK}')
    A(f's_lshl_b32 s48, s60, 3\ns_add_u32 s48, s48, {FP_OFF}\ns_cmp_eq_u32 s64, 2\ns_cselect_b32 s92, s48, s92')
    A('v_and_b32 v8, 2, v3\nv_xor_b32 v8, v8, v4\nv_mul_u32_u24 v9, 1280, v3\nv_lshl_add_u32 v20, v8, 4, v9')
    A('v_xor_b32 v8, 4, v8\nv_lshl_add_u32 v21, v8, 4, v9\nv_add_u32 v21, 10240, v21\nv_add_u32 v22, 20480, v20\nv_add_u32 v23, 20480, v21')
    A('v_lshrrev_b32 v8, 2, v2\nv_and_b32 v9, 3, v2\nv_lshlrev_b32 v8, 7, v8\nv_lshl_add_u32 v8, v9, 3, v8\nv_add_u32 v8, s93, v8')
    A('v_bfe_u32 v9, v2, 3, 1\nv_lshrrev_b32 v28, 5, v2\nv_lshl_add_u32 v9, v28, 1, v9')
    for tl in range(4):
        A(f'v_xor_b32 v28, {tl}, v9\nv_lshl_add_u32 v{24+tl}, v28, 5, v8')
    A('v_mul_u32_u24 v31, 1280, v2')
    if 'NODUTY' in EXP: A('s_mov_b32 s64, 0')
    pk = {m: sum(((t | (b0 << 4)) << (8 * k)) for k, (t, b0) in enumerate(EV[m][1])) | (0xFF << (8 * len(EV[m][1]))) for m in EV}
    A(f's_mov_b32 s84, -1\ns_cmp_eq_u32 s20, 1\ns_cselect_b32 s84, {hex(pk[1])}, s84\ns_cmp_eq_u32 s20, 2\ns_cselect_b32 s84, {hex(pk[2])}, s84\ns_cmp_eq_u32 s20, 3\ns_cselect_b32 s84, {hex(pk[3])}, s84\ns_and_b32 s58, s84, 15')
    AC = 24; WR = 104; HBUF = 224
    def a2(rt, t): return AC + 20 * rt + 4 * t
    regset = {0: 0, 1: 1, 2: 2, 9: 3, 10: 4, 11: 5}
    lds_unit = {3: WBASE, 4: WBASE + WSLOT, 5: WBASE + 2*WSLOT, 6: WBASE + 3*WSLOT, 7: 20480, 8: WBASE + 4*WSLOT}
    def kidx(i, dst):
        A(f's_add_u32 s{dst}, s23, {i}\ns_cmp_ge_u32 s{dst}, 12\ns_cselect_b32 s48, 12, 0\ns_sub_u32 s{dst}, s{dst}, s48')
    def w2reg(i, thr=None):
        kidx(i, 56)
        A('s_mul_i32 s56, s56, 5120\ns_add_u32 s56, s56, s50')
        for t in range(5):
            b = WR + 20 * regset[i] + 4 * t
            if t == 0: A(f's_waitcnt vmcnt({STG_THR if thr is None else thr})')
            A(f'buffer_load_dwordx4 {vr(b)}, v{5 if t < 4 else 7}, s[40:43], s56 offen offset:{1024*(t&3)} sc1')
    def w2lds(i):
        kidx(i, 56)
        A('s_mul_i32 s56, s56, 5120\ns_add_u32 s56, s56, s50')
        A(f's_add_u32 m0, s52, {lds_unit[i]}\ns_waitcnt vmcnt({STG_THR})')
        for t in range(4):
            A(f'buffer_load_dwordx4 v5, s[40:43], s56 offen offset:{1024*t} sc1 lds')
        A(f's_add_u32 m0, s52, {lds_unit[i] + 4096}\ns_nop 0')
        A('buffer_load_dwordx4 v7, s[40:43], s56 offen sc1 lds')
    def trace():
        if STAMP and 'quiet' not in EXP:
            A('s_memtime s[98:99]\ns_add_u32 s48, s65, 38\ns_mov_b32 m0, s48\ns_waitcnt lgkmcnt(0)\nv_writelane_b32 v1, s98, m0')
    def ensure_free():
        if 'nofree' in EXP: return
        l = A.label('L_free')
        A(f's_sub_u32 s57, s65, 4\ns_cmp_ge_i32 s66, s57\ns_cbranch_scc1 {l}')
        tbeg(A)
        lds_wait(A, 39, 0, 48, 's57', four='free', sdst=66, sleep=LSLEEP)
        tend(A, 100)
        A(f'{l}:')
    stamp(A, 2)
    table_srd(A, 8)
    A('s_mov_b32 s65, 1\ns_mov_b32 s66, 0')
    flag()
    issueW()
    trace()
    A('s_mov_b32 s65, 2')
    flag()
    A('s_mov_b32 s65, 1')
    def bsetup():
        p2_ids(A)
        A(('s_mul_i32 s23, s19, 3\ns_lshr_b32 s23, s23, 1\ns_and_b32 s48, s18, 3' if not P84 else 's_bfe_u32 s23, s18, 0x20001\ns_and_b32 s48, s18, 1\ns_lshl_b32 s48, s48, 2\ns_add_u32 s23, s23, s48\ns_mul_i32 s23, s23, 3\ns_lshr_b32 s23, s23, 1\ns_and_b32 s48, s19, 3') + '\ns_mul_i32 s48, s48, 3\ns_add_u32 s23, s23, s48\ns_cmp_ge_u32 s23, 12\ns_cselect_b32 s48, 12, 0\ns_sub_u32 s23, s23, s48')
        if XROT: A(f's_and_b32 s48, s2, 7\ns_mul_i32 s48, s48, {XROT}\ns_lshr_b32 s48, s48, 3\ns_add_u32 s23, s23, s48\ns_cmp_ge_u32 s23, 12\ns_cselect_b32 s48, 12, 0\ns_sub_u32 s23, s23, s48')
        A(f's_mul_i32 s48, s67, 12\ns_mul_i32 s50, s19, 48\ns_add_u32 s50, s50, s48\ns_mul_i32 s50, s50, 5120\ns_add_u32 s50, s50, {W2_OFF}')
        A('s_mul_i32 s51, s18, 68\ns_add_u32 s51, s51, s48\ns_lshl_b32 s51, s51, 12')
        A('s_mul_i32 s52, s67, 5120')
    A(f'v_mov_b32 v0, {CT}')
    bsetup()
    A(f's_mul_i32 s53, s67, 480\ns_mul_i32 s48, s19, 5\ns_lshr_b32 s48, s48, 2\ns_add_u32 s53, s53, {FW_OFF}')
    A('v_lshrrev_b32 v8, 1, v2\nv_mul_u32_u24 v8, 40, v8\nv_and_b32 v9, 1, v2\nv_add_u32 v9, s48, v9\nv_lshrrev_b32 v9, 1, v9\nv_lshl_add_u32 v28, v9, 3, v8')
    A(f's_lshr_b32 s48, s18, 1\ns_lshl_b32 s54, s48, {FSH}\ns_add_u32 s54, s54, {FG_OFF}')
    A(f's_mov_b32 s55, {FP_OFF}')
    A('s_load_dwordx2 s[4:5], s[0:1], 16\ns_mov_b32 s6, 819200\ns_mov_b32 s7, 0x20000')
    wo_offset(A, 's67')
    for i in range(5):
        A(f'v_add_u32 v58, {64*i}, v2\nv_mul_u32_u24 v59, 6554, v58\nv_lshrrev_b32 v59, 16, v59\nv_mul_u32_u24 v60, 10, v59\nv_sub_u32 v60, v58, v60')
        A(f'v_mul_u32_u24 v59, 1280, v59\nv_lshl_add_u32 v{224+i}, v60, 4, v59')
    A('s_waitcnt lgkmcnt(0)')
    def chk_issue():
        l = A.label('L_ci')
        A('global_load_dwordx2 v[56:57], v44, s[86:87] sc1')
        A('s_mov_b64 exec, 0xffffff\nbuffer_load_dwordx2 v[46:47], v28, s[40:43], s53 offen sc1\ns_mov_b64 exec, -1')
        A(f's_cmp_lg_u32 s67, 1\ns_cbranch_scc1 {l}')
        A('buffer_load_dwordx4 v[96:99], v5, s[40:43], s55 offen sc1\nbuffer_load_dwordx4 v[100:103], v5, s[40:43], s55 offen offset:1024 sc1')
        A(f'{l}:')
    def chk_eval():
        l = A.label('L_ce')
        A('v_readfirstlane_b32 s88, v56\nv_readfirstlane_b32 s89, v57\ns_nop 1')
        A('s_mov_b64 exec, 0xffffff\nv_cmp_ne_u64 s[60:61], s[88:89], v[46:47]\ns_mov_b64 exec, -1')
        A(f's_cmp_lg_u32 s67, 1\ns_cbranch_scc1 {l}')
        for r in (96, 98, 100, 102):
            A(f'v_cmp_ne_u64 vcc, s[88:89], {vr(r,2)}\ns_or_b64 s[60:61], s[60:61], vcc')
        A(f'{l}:')
        A('s_cmp_eq_u32 s88, 0\ns_cselect_b32 s60, 1, s60\ns_cmp_eq_u64 s[60:61], 0')
    if R0LATE:
        A('s_cmp_lt_u32 s20, 2\ns_cbranch_scc1 L_nor1')
        A('s_mov_b32 exec_hi, 0\nbuffer_load_dword v36, v30, s[80:83], s97 offen\ns_mov_b32 exec_hi, -1')
        A('L_nor1:')
    A('s_branch L_ld_join')
    A('.p2align 3')
    A('L_ld_loop:')
    ensure_free()
    if L2PF:
        A(f's_bitcmp1_b32 s65, 1\ns_cbranch_scc0 L_nol2\ns_cmp_gt_u32 s65, {2 + 4 * ((9 - L2PF) // 2)}\ns_cbranch_scc1 L_nol2')
        A('buffer_load_dword v35, v33, s[4:7], s95 offen\ns_add_u32 s95, s95, s94')
        A('L_nol2:')
    issueX(); issueW()
    trace()
    A('s_add_u32 s65, s65, 1')
    flag()
    A('L_ld_odd:')
    ensure_free()
    issueW()
    trace()
    A('L_ld_join:')
    A('s_lshr_b32 s49, s65, 1\ns_add_u32 s65, s65, 1')
    flag()
    A('s_cmp_eq_u32 s49, s58\ns_cbranch_scc1 L_ev_round')
    A('L_ev_r1:')
    A('s_cmp_lg_u32 s65, 18\ns_cbranch_scc1 L_ev_r2')
    chk_issue()
    A('L_ev_r2:')
    A('s_cmp_lt_u32 s65, 20\ns_cbranch_scc1 L_ld_loop')
    A('s_branch L_ld_done')
    A('L_ev_round:')
    A('s_bfe_u32 s59, s84, 0x40004\ns_lshr_b32 s84, s84, 8\ns_and_b32 s58, s84, 15')
    A('s_cmp_gt_u32 s59, 9\ns_cbranch_scc1 L_ev_flag')
    if NOPF:
        A('s_cmp_eq_u32 s64, 0\ns_cbranch_scc1 L_ev_r1')
    elif EVW & 1:
        lds_wait(A, 38, 0, 48, 's65')
    if NOPF:
        pass
    else:
        A('s_mul_i32 s56, s85, s59\nbuffer_load_dword v36, v30, s[80:83], s56 offen')
    if THIRD and not NOPF:
        A(f's_cmp_lg_u32 s59, {THIRD}\ns_cbranch_scc1 L_ev_no3')
        A('s_mul_i32 s56, s85, 9\ns_mov_b32 exec_hi, 0\nbuffer_load_dword v37, v30, s[80:83], s56 offen\ns_mov_b32 exec_hi, -1')
        A('L_ev_no3:')
    A('s_cmp_eq_u32 s64, 0\ns_cbranch_scc1 L_ev_rw')
    A('global_load_dwordx2 v[42:43], v44, s[86:87] sc1')
    A('s_cmp_eq_u32 s64, 2\ns_cbranch_scc1 L_ev_poison')
    A('s_mov_b32 exec_hi, 0\nbuffer_load_dword v37, v31, s[44:47], s79 offen offset:128\ns_mov_b32 exec_hi, -1')
    for e in range(2):
        for g in range(4):
            dma(A, f's_add_u32 m0, s93, {g*1024}', 20 + g, 44, 79)
        A('s_add_u32 s79, s79, 128')
        A('s_waitcnt vmcnt(0)')
        for tl in range(4):
            A(f'ds_read_b64_tr_b16 {vr(64+16*e+4*tl,2)}, v{24+tl}\nds_read_b64_tr_b16 {vr(66+16*e+4*tl,2)}, v{24+tl} offset:2048')
        A('s_waitcnt lgkmcnt(0)')
    if not DEFER:
        for tl in range(8):
            A(f's_add_u32 s56, s63, {tl}\ns_mul_i32 s57, s56, 52429\ns_lshr_b32 s57, s57, 18\ns_mul_i32 s57, s57, 235\ns_add_u32 s57, s57, s56\ns_add_u32 s57, s57, s62\ns_lshl_b32 s57, s57, 10\ns_add_u32 s57, s57, {W2_OFF}')
            A(f'buffer_store_dwordx4 {vr(64+4*tl)}, v5, s[40:43], s57 offen sc1')
    A('s_branch L_ev_r1')
    A('L_ev_poison:')
    A('v_mov_b32 v64, -1\nv_mov_b32 v65, -1\nv_mov_b32 v66, -1\nv_mov_b32 v67, -1')
    A(f's_mul_i32 s56, s60, 3200\ns_add_u32 s56, s56, {M_OFF}\ns_lshl_b32 s57, s60, 7\ns_add_u32 s57, s57, {ZB_OFF}\ns_cmp_lt_u32 s60, 128\ns_cselect_b32 s57, s57, {OOB}')
    for k in range(3):
        A(f'buffer_store_dwordx4 v[64:67], v5, s[40:43], s56 offen offset:{1024*k} sc1')
    A('s_mov_b64 exec, 0xff\nbuffer_store_dwordx4 v[64:67], v5, s[40:43], s56 offen offset:3072 sc1')
    A('buffer_store_dwordx4 v[64:67], v5, s[40:43], s57 offen sc1\ns_mov_b64 exec, -1')
    A('L_ev_rw:')
    if EVW & 2: A('s_waitcnt vmcnt(0)')
    A('s_branch L_ev_r1')
    A('L_ev_flag:')
    A('s_cmp_eq_u32 s64, 0\ns_cbranch_scc1 L_ev_r1')
    if DEFER:
        A('s_cmp_eq_u32 s59, 15\ns_cbranch_scc1 L_ev_fl2\ns_cmp_lg_u32 s64, 1\ns_cbranch_scc1 L_ev_r1')
        for tl in range(8):
            A(f's_add_u32 s56, s63, {tl}\ns_mul_i32 s57, s56, 52429\ns_lshr_b32 s57, s57, 18\ns_mul_i32 s57, s57, 235\ns_add_u32 s57, s57, s56\ns_add_u32 s57, s57, s62\ns_lshl_b32 s57, s57, 10\ns_add_u32 s57, s57, {W2_OFF}')
            A(f'buffer_store_dwordx4 {vr(64+4*tl)}, v5, s[40:43], s57 offen sc1')
        A('s_branch L_ev_r1')
        A('L_ev_fl2:')
    l0 = A.label('L_ep'); l1 = A.label('L_epok')
    A('s_mov_b32 s90, 0\ns_waitcnt vmcnt(15)')
    A(f'{l0}:')
    A('v_readfirstlane_b32 s88, v42')
    A(f's_cmp_lg_u32 s88, 0\ns_cbranch_scc1 {l1}')
    A('s_sleep 4\nglobal_load_dwordx2 v[42:43], v44, s[86:87] sc1\ns_waitcnt vmcnt(0)')
    A(f's_add_u32 s90, s90, 1\ns_cmp_lt_u32 s90, {SPIN_MAX}\ns_cbranch_scc1 {l0}')
    A(f'{l1}:')
    A('s_mov_b64 exec, 1\nbuffer_store_dwordx2 v[42:43], v44, s[40:43], s92 offen sc1\ns_mov_b64 exec, -1')
    A('s_branch L_ev_r1')
    A('L_ld_done:')
    trace()
    stamp(A, 57)
    if 'p1' in EXP: finish(A)
    A('s_mov_b32 s90, 0\ns_waitcnt vmcnt(16)')
    A('L_b_chk:')
    chk_eval()
    A('s_cbranch_scc1 L_b_chkok')
    A('s_sleep 16')
    chk_issue()
    A(f's_waitcnt vmcnt(0)\ns_add_u32 s90, s90, 1\ns_cmp_lt_u32 s90, {SPIN_MAX}\ns_cbranch_scc1 L_b_chk')
    A('L_b_chkok:')
    A('s_cmp_lg_u32 s67, 1\ns_cbranch_scc1 L_b_nofp')
    A('v_mov_b32 v46, 1\ns_mov_b64 exec, 1\nds_write_b64 v0, v[56:57] offset:32\nds_write_b32 v0, v46 offset:72\ns_mov_b64 exec, -1')
    A('L_b_nofp:')
    stamp(A, 37)
    rest = []
    A('s_cmp_eq_u32 s20, 0\ns_cbranch_scc1 L_b_kv')
    for k, i in enumerate((0, 1, 2, 9, 10, 11)):
        w2reg(i, T1THR if k < 4 else None)
    stamp(A, 22)
    lds_wait(A, 39, 0, 48, 20, four='free', sleep=LSLEEP)
    for k, i in enumerate((3, 4, 5, 6, 7, 8)):
        if k == GEARLY:
            lds_wait(A, 38, 48, 48, 1, sleep=4)
            stamp(A, 9)
        w2lds(i); stamp(A, 16 + k)
    A('s_branch L_b_common')
    A('L_b_kv:')
    def pause():
        if KVP_AT is None: return
        l = A.label('L_ps')
        lds_free(A, 39, 48, 90)
        A(f's_cmp_lt_i32 s90, 21\ns_cbranch_scc1 {l}')
        lds_wait(A, 39, 0, 48, 22, four='free', sleep=2)
        A(f'{l}:')
    for k, i in enumerate((0, 1, 2, 9, 10, 11)[:KVR]):
        w2reg(i, T1THR); stamp(A, 40 + k)
    kl = ((16, 3), (17, 4), (18, 5), (18, 7), (19, 6))
    for need, i in kl[:KVE]:
        lds_wait(A, 39, 0, 48, need, four='free', sleep=LSLEEP)
        w2lds(i)
    lds_wait(A, 39, 0, 48, 20, four='free', sleep=LSLEEP)
    for i in range(5):
        dma(A, f's_add_u32 m0, s52, {1024*i}', 224 + i, 4, 73)
    A(f's_lshl_b32 s48, s67, 2\ns_add_u32 m0, s48, {CT + 112}\ns_mov_b64 exec, 1\nbuffer_load_dword v44, s[8:11], 4 offen lds\ns_mov_b64 exec, -1')
    stamp(A, 9)
    for k, i in enumerate([x[1] for x in kl[KVE:]] + [8]):
        if k: pause()
        w2lds(i)
        if k < 4: stamp(A, 46 + k)
    for i in (0, 1, 2, 9, 10, 11)[KVR:]:
        pause()
        w2reg(i)
    stamp(A, 8)
    if KVN < 12:
        lds_wait(A, 0, 192, 48, 1, sleep=4)
        for i in order[KVN:]:
            stage(i)
    stamp(A, 10)
    lds_wait(A, 0, 80, 48, KVG, sleep=4)
    A('s_cmp_lg_u32 s67, 3\ns_cbranch_scc1 L_b_common')
    gpoll(A, 54, 46)
    A('L_b_common:')
    hbufs = [HBUF, HBUF + 16, WR + 40]
    def hb(i, rt):
        k = i if i < 2 else (0 if i == 2 else (i - 3 + 1) % 3 if False else None)
        return None
    hmap = {0: 0, 1: 1, 2: 0, 3: 1}
    for i in range(4, 12):
        hmap[i] = [0, 2, 1][(i - 4) % 3]
    def hb(i, rt): return hbufs[hmap[i]] + 4 * rt
    A('v_add_u32 v8, s52, v5')
    A(f'v_add_u32 v9, {WBASE + 2*WSLOT}, v8')
    def rdW(i, rs):
        u = lds_unit[i]
        va, off = (8, u) if u < WBASE + WSLOT - 5120 else ((9, u - (WBASE + 2*WSLOT)) if u >= WBASE + 2*WSLOT else (12, 0))
        for t in range(5):
            A(f'ds_read_b128 {vr(WR+20*rs+4*t)}, v{va} offset:{off + 1024*t}')
    A(f'v_add_u32 v12, {WBASE + WSLOT}, v8')
    A('s_load_dwordx2 s[28:29], s[0:1], 64\ns_mov_b32 s30, 2621440\ns_mov_b32 s31, 0x20000')
    A(f's_lshl_b32 s48, s67, 2\nv_add_u32 v13, s48, v0\nv_mov_b32 v14, 1\ns_mul_i32 s48, s67, {WSLOT}\ns_add_u32 s48, s48, {WBASE}\nv_add_u32 v15, s48, v5')
    A(f's_mul_i32 s48, s67, 15360\ns_cmp_eq_u32 s67, 3\ns_cselect_b32 s48, {XCH[3]}, s48\nv_add_u32 v16, s48, v5')
    A(f's_lshl_b32 s48, s67, 11\ns_add_u32 s48, s48, {XCH[3] + 15360}\nv_add_u32 v17, s48, v5\ns_lshl_b32 s48, s67, 8\nv_lshlrev_b32 v19, 2, v2\nv_add_u32 v19, s48, v19')
    A('s_lshl_b32 s48, s18, 6\ns_lshl_b32 s49, s67, 4\ns_add_u32 s48, s48, s49\nv_and_b32 v20, 15, v2\nv_add_u32 v20, s48, v20\nv_mul_u32_u24 v20, 1280, v20\nv_lshrrev_b32 v21, 4, v2\nv_lshl_add_u32 v20, v21, 3, v20\ns_mul_i32 s55, s19, 160')
    A('s_mul_i32 s48, s67, 5\ns_mul_i32 s57, s18, 68\ns_add_u32 s57, s57, s48\ns_add_u32 s57, s57, 48\ns_lshl_b32 s57, s57, 12')
    A(f's_lshl_b32 s58, s18, 8\ns_add_u32 s58, s58, {G_OFF}\nv_and_b32 v3, 15, v2\nv_lshlrev_b32 v11, 2, v3')
    A(f's_mul_i32 s48, s67, 320\ns_add_u32 s48, s48, {CT + 1536}\nv_mul_u32_u24 v4, 80, v21\nv_add_u32 v4, s48, v4')
    A('v_lshrrev_b32 v10, 2, v3\nv_cmp_eq_u32 s[64:65], v10, v21\nv_and_b32 v10, 1, v3\nv_cmp_eq_u32 s[62:63], 0, v10')
    A(f's_and_b64 s[60:61], s[64:65], s[62:63]\ns_andn2_b64 s[62:63], s[64:65], s[62:63]\ns_mov_b32 s64, {EPS}\ns_mov_b32 s65, 0xffff0000')
    A(f's_setprio {BPRIO}')
    stamp(A, 3)
    if GPOLL == 'B':
        A('s_cmp_lg_u32 s67, 3\ns_cbranch_scc1 L_b_nopoll')
        poll(A, 54, 48, 10, 6)
        A('v_mov_b32 v10, 1\ns_mov_b64 exec, 1\nds_write_b32 v0, v10 offset:64\ns_mov_b64 exec, -1')
        A('L_b_nopoll:')
    A('s_lshl_b32 s59, 1, s67' if FINEG else 's_mov_b32 s59, 15')
    lds_wait_mask(A, 0, 64, 10, 's59')
    A('s_waitcnt vmcnt(0)')
    stamp(A, 4)
    Q = []
    def wait(tag):
        last = max(k for k, t in enumerate(Q) if t == tag)
        A(f's_waitcnt vmcnt({min(63, len(Q) - 1 - last)})')
    def issueH(i):
        kidx(i, 56)
        A('s_lshl_b32 s56, s56, 12\ns_add_u32 s56, s56, s51')
        for rt in range(4):
            A(f'buffer_load_dwordx4 {vr(hb(i,rt))}, v5, s[40:43], s56 offen offset:{1024*rt} {LL}')
            Q.append(('H', i))
    assert not rest[KPRE:]
    issueH(0); issueH(1)
    nH = 2
    dump = [(8, WBASE), (12, 0), (9, 0), (9, WSLOT)]
    def haddr(i, dst):
        return [f's_add_u32 s{dst}, s23, {i}', f's_cmp_ge_u32 s{dst}, 12', 's_cselect_b32 s48, 12, 0', f's_sub_u32 s{dst}, s{dst}, s48',
                f's_lshl_b32 s{dst}, s{dst}, 12', f's_add_u32 s{dst}, s{dst}, s51']
    def rdW_l(i, rs):
        u = lds_unit[i]
        va, off = (8, u) if u < WBASE + WSLOT - 5120 else ((9, u - (WBASE + 2*WSLOT)) if u >= WBASE + 2*WSLOT else (12, 0))
        return [f'ds_read_b128 {vr(WR+20*rs+4*t)}, v{va} offset:{off + 1024*t}' for t in range(5)]
    pendW = []
    for i in range(12):
        rs = regset[i] if i in regset else (i - 3) % 2
        gaps = {k: [] for k in range(20)}
        for k, l in zip((1, 3, 6, 8, 11), pendW): gaps[k].append(l)
        reuse = nH if nH < 12 and hmap[nH] == hmap[i] else None
        extra = None
        if reuse is not None:
            for k, l in enumerate(haddr(reuse, 56)): gaps[k // 2].append(l)
            nH += 1
        if nH < 12 and hmap[nH] == 2 and i == 3:
            pass
        first = Q.index(('H', i))
        for rt in range(4):
            A(f's_waitcnt vmcnt({len(Q) - 1 - (first + rt)})')
            if rt == 0:
                if i == 0: stamp(A, 5)
                if BST: stamp(A, 25 + i)
                if i not in regset:
                    A('s_waitcnt lgkmcnt(0)')
                if i == PQ_AT:
                    A('s_mov_b64 exec, 1\nds_write_b32 v13, v14 offset:144\ns_mov_b64 exec, -1')
                if i == 8:
                    A('s_mov_b64 exec, 1\nds_write_b32 v13, v14 offset:96\ns_mov_b64 exec, -1')
            for t in range(5):
                d = vr(a2(rt, t))
                A(f'v_mfma_f32_16x16x32_bf16 {d}, {vr(WR+20*rs+4*t)}, {vr(hb(i,rt))}, {d if i else 0}')
                for l in gaps[5 * rt + t]: A(l)
                if i == 11 and rt >= 2:
                    A(f'ds_write_b128 v{dump[rt-2][0]}, {vr(a2(rt-2,t))} offset:{dump[rt-2][1] + t*1024}')
            if reuse is not None:
                A(f'buffer_load_dwordx4 {vr(hb(reuse,rt))}, v5, s[40:43], s56 offen offset:{1024*rt} {LL}')
                Q.append(('H', reuse))
        if NRC == 2 and i in (9, 10):
            j = i - 7
            A(f's_add_u32 s48, s67, {j+1}\ns_and_b32 s48, s48, 3\ns_lshl_b32 s49, s48, 10\ns_add_u32 s56, s57, s49\ns_lshl_b32 s49, s48, 6\ns_add_u32 s49, s49, s58')
            for kk in range(5):
                A(f'buffer_load_dwordx4 {vr(WR + 8*kk + 4*(j-2))}, v5, s[40:43], s56 offen {LL}')
                if kk < 4: A('s_add_u32 s56, s56, 4096')
                Q.append(('P', j))
            A(f'buffer_load_dword v{20+j}, v11, s[40:43], s49 offen {LL}')
            Q.append(('P', j))
        while nH < 12 and all(hmap[j] != hmap[nH] for j in range(i + 1, nH)) and not (hmap[nH] == 2 and i < 2):
            issueH(nH); nH += 1
        tgt = {0: 3, 2: 4}.get(i, i + 2 if 5 <= i + 2 <= 8 else None)
        pendW = rdW_l(tgt, (tgt - 3) % 2) if tgt is not None else []
    stamp(A, 6)
    if NRC == 2:
        ZR = HBUF; DN = AC; SC = HBUF + 20; T0 = HBUF + 24
        lds_wait(A, 0, 68, 10, 1, four=False, sleep=1)
        for kk in range(5):
            A(f'ds_read_b128 {vr(ZR+4*kk)}, v4 offset:{16*kk}')
        A('s_waitcnt lgkmcnt(0)')
        for kk in range(5):
            for j in range(4):
                m = 's[62:63]' if (4 * kk + j) >= 10 else 's[60:61]'
                A(f'v_cndmask_b32 v{ZR+4*kk+j}, 0, v{ZR+4*kk+j}, {m}')
        A('s_waitcnt vmcnt(0)\ns_nop 0')
        for kk in range(5):
            for r in range(2):
                d = vr(DN + 4 * r)
                A(f'v_mfma_f32_16x16x32_bf16 {d}, {vr(ZR+4*kk)}, {vr(WR+8*kk+4*r)}, {d if kk else 0}')
        A('s_nop 7')
        for r in range(2):
            A(f'v_add_f32 v{DN+4*r}, s64, v{DN+4*r}\nv_add_f32 v{DN+4*r+1}, s64, v{DN+4*r+1}')
        for r in range(2):
            A(f'v_rcp_f32 v{DN+4*r}, v{DN+4*r}\nv_rcp_f32 v{DN+4*r+1}, v{DN+4*r+1}')
        A('s_nop 0')
        for r in range(2):
            A(f'v_mul_f32 v{SC+2*r}, v{22+r}, v{DN+4*r}\nv_mul_f32 v{SC+2*r+1}, v{22+r}, v{DN+4*r+1}')
        for kk in range(5):
            for r in range(2):
                b = WR + 8 * kk + 4 * r
                for j in range(4):
                    A(f'v_lshlrev_b32 v{T0+2*j}, 16, v{b+j}\nv_and_b32 v{T0+2*j+1}, s65, v{b+j}')
                for j in range(4):
                    odd = 1 if (4 * kk + j) >= 10 else 0
                    A(f'v_mul_f32 v{T0+2*j}, v{SC+2*r+odd}, v{T0+2*j}\nv_mul_f32 v{T0+2*j+1}, v{SC+2*r+odd}, v{T0+2*j+1}')
                for j in range(4):
                    A(f'v_cvt_pk_bf16_f32 v{b+j}, v{T0+2*j}, v{T0+2*j+1}')
                A(f'ds_write_b128 v9, {vr(b)} offset:{r*WSLOT + 1024*kk}')
            A(f'v_mov_b32 v10, {kk+1}\ns_mov_b64 exec, 1\nds_write_b32 v13, v10 offset:160\ns_mov_b64 exec, -1')
        lds_wait(A, 13, 176, 10, 1, four=False, sleep=1)
    for rt in (2, 3):
        for t in range(5):
            A(f'ds_write_b128 v{dump[rt][0]}, {vr(a2(rt,t))} offset:{dump[rt][1] + t*1024}')
    A('s_waitcnt lgkmcnt(0)')
    stamp(A, 7)
    A('s_barrier')
    R = WR
    for r in range(4):
        for t in (3, 4):
            A(f'ds_read_b128 {vr(R+8*r+4*(t-3))}, v15 offset:{r*5120 + 1024*t}')
    A(f'ds_read_b32 v18, v19 offset:{46080}')
    A('s_waitcnt lgkmcnt(5)')
    for r in range(3):
        for t in (3, 4):
            A(f'ds_read_b128 {vr(R+32+8*r+4*(t-3))}, v16 offset:{r*5120 + 1024*t}')
    for t in (3, 4):
        A(f'ds_read_b128 {vr(R+56+4*(t-3))}, v17 offset:{1024*(t-3)}')
    for k in range(0, 8, 2):
        A(f'v_pk_add_f32 {vr(R+k,2)}, {vr(R+k,2)}, {vr(R+8+k,2)}')
    A('s_waitcnt lgkmcnt(8)\nv_mov_b32 v19, v18')
    for k in range(0, 8, 2):
        A(f'v_pk_add_f32 {vr(R+16+k,2)}, {vr(R+16+k,2)}, {vr(R+24+k,2)}')
    for k in range(0, 8, 2):
        A(f'v_pk_add_f32 {vr(R+k,2)}, {vr(R+k,2)}, {vr(R+16+k,2)}')
    A('s_waitcnt lgkmcnt(0)')
    for k in range(0, 8, 2):
        A(f'v_pk_fma_f32 {vr(R+k,2)}, {vr(R+k,2)}, v[18:19], {vr(R+56+k,2)}')
    for sl in range(3):
        for k in range(0, 8, 2):
            A(f'v_pk_add_f32 {vr(R+k,2)}, {vr(R+k,2)}, {vr(R+32+8*sl+k,2)}')
    for t in (3, 4):
        b = R + 4 * (t - 3)
        A(f'v_cvt_pk_bf16_f32 v{b}, v{b}, v{b+1}\nv_cvt_pk_bf16_f32 v{b+1}, v{b+2}, v{b+3}')
        A(f'buffer_store_dwordx2 {vr(b,2)}, v20, s[28:31], s55 offen offset:{32*t}')
    finish(A)


def gen(A):
    K = NAME + '_kernel'
    A(f'.globl {K}\n.p2align 8\n.type {K},@function\n{K}:')
    if ENTRYT: A('s_memrealtime s[92:93]')
    A('s_cmp_ge_u32 s2, 256\ns_cbranch_scc1 L_end')
    A('s_load_dwordx4 s[4:7], s[0:1], 0')
    A('s_load_dwordx4 s[8:11], s[0:1], 32')
    A('s_load_dwordx4 s[12:15], s[0:1], 48')
    A('s_load_dwordx2 s[16:17], s[0:1], 80')
    A.c('decode: s18 rb, s19 cq, s20 m, s21 wave, s22 gtype, s23 rbl, s55 is_gc')
    A('v_lshrrev_b32 v1, 6, v0\nv_and_b32 v2, 63, v0')
    A('s_bfe_u32 s23, s2, 0x10003\ns_and_b32 s18, s2, 7\ns_lshl_b32 s18, s18, 1\ns_add_u32 s18, s18, s23' if not MAP84 else 's_bfe_u32 s23, s2, 0x30003\ns_and_b32 s18, s2, 1\ns_lshl_b32 s18, s18, 3\ns_add_u32 s18, s18, s23')
    A('v_readfirstlane_b32 s21, v1')
    A('s_bfe_u32 s19, s2, 0x20004\ns_lshr_b32 s20, s2, 6' if not MAP84 else ('s_bfe_u32 s19, s2, 0x20001\ns_lshr_b32 s20, s2, 6' if not KVX else 's_bfe_u32 s20, s2, 0x20001\ns_lshr_b32 s19, s2, 6'))
    A('s_mul_i32 s22, s19, 3\ns_add_u32 s22, s22, s20\ns_sub_u32 s22, s22, 1')
    A('s_cmp_eq_u32 s22, 10\ns_cselect_b32 s55, 1, 0\ns_cmp_ge_i32 s22, 10\ns_cselect_b32 s91, 1, 0')
    if STAMP:
        A('v_mov_b32 v1, 0\ns_mov_b32 s100, 0\ns_mov_b32 s101, 0')
        stamp(A, 0); stamp_rt(A, 62)
        if ENTRYT: A('v_readlane_b32 s93, v1, 0\nv_writelane_b32 v1, s92, 0\ns_nop 1\nv_writelane_b32 v1, s93, 58')
    A('s_cmp_lt_u32 s21, 4\ns_cbranch_scc1 L_compute')
    gen_loader(A)
    gen_compute(A)
    A('L_end:\ns_endpgm')
    A('.p2align 7\nL_table:')
    for i in range(32):
        A(f'.long {i}')


DOC = """
; ---------------------------------------------------------------------------------------------
; ---------------------------------------------------------------------------------------------
"""


def main(out):
    A = Asm()
    gen(A)
    K = NAME + '_kernel'
    hdr = open('cdna_kernels/' + NAME + '.s.ref').read().split('; Override')[0]
    txt = hdr + f'; @launch grid=(256,1,1) block=(512,1,1) lds={LDS_TOTAL}\n'
    txt += '.amdgcn_target "amdgcn-amd-amdhsa--gfx950"\n' + DOC.lstrip('\n') + '.text\n' + A.text()
    txt += f'''.section .rodata,"a"
.p2align 6
.amdhsa_kernel {K}
  .amdhsa_next_free_vgpr 256
  .amdhsa_next_free_sgpr 102
  .amdhsa_accum_offset 256
  .amdhsa_group_segment_fixed_size 0
  .amdhsa_kernarg_size 88
  .amdhsa_user_sgpr_count 2
  .amdhsa_user_sgpr_kernarg_segment_ptr 1
  .amdhsa_system_sgpr_workgroup_id_x 1
.end_amdhsa_kernel
'''
    open(out, 'w').write(txt)

if __name__ == '__main__':
    for a in sys.argv[2:]:
        k, v = a.split('=', 1)
        globals()[k] = eval(v)
    main(sys.argv[1] if len(sys.argv) > 1 else 'cdna_kernels/' + NAME + '.s')
```

```python
import sys

NAME = 'gated_mix__linear_attn_block__glu_gated_glu__prompt'

HB_OFF = 0
W2_OFF = 0x900000
M_OFF = 0xB00000
KVS = 3584
KVP_OFF = 0xC00000
G_OFF = 0xF00000
ZB_OFF = 0xF10000
FSH = 13
FG_OFF = 0xF40000
FP_OFF = 0xF60800
FM_OFF = 0xF81000
FW_OFF = 0xFA1800
STAMP_OFF = 0x1000000
WS_USED = 0x1100000
OOB = 0x7FFF0000

XSLOT = 16384; NX = 3
WBASE = NX * XSLOT
WSLOT = 20480; NW = 5
GWBASE = WBASE + NW * WSLOT
LDS_TOTAL = 163840
CT = 159744
P2_SCR = 0
RPK = GWBASE
CODEPF = True
EV = {1: (0, [(0, 3), (2, 15)]), 2: (1, [(1, 5), (3, 15)]), 3: (2, [(2, 7), (4, 15)])}
THIRD = 5
RPORD = (11, 9, 4, 7, 2, 5, 8, 1, 0, 3, 6, 10)
STAMP = False
GWS = 320
PRIO = 2
LSLEEP = 1
DEPTH = 2
EXP = ''
EVSTEP = 1
WOM = 3
CHKI = True
ZJ = None
KVE = 5
KVP_AT = 6
EPI2 = True
T1THR = 6
KVR = 1
M4 = False
P84 = False
EVW = 0
LATEF = True
XROT = 12
ZEARLY = True
ZC = 2
ZM0 = 4
ENTRYT = False
KVFAST = 1
WOAT = 2
KVN = 12
NOPF = 0
DIAG = None
DBGOUT = False
DEFER = False
BURST = 0
FINEG = True
GEARLY = 0
START2 = 0
RTS = False
WSM = 1
KVACK = True
R0LATE = False
L2PF = 0
KVPRE = 6
PAX = 1
ZM = 255
MACK = False
SPEC_M = True
NRC = 4
BST = True
PQ_AT = None
NLEAD = 5
COOP_P = True
COOP_M = True
MK0 = 2
NPK = True
KVX = False
APRIO = 2
BPRIO = 0
MAP84 = True
LS = 'sc1'
LL = 'sc1'
KPRE = 6
LPS = 1
LP0 = 0
GPOLL = 'A'
GD = 8
KVG = 1
T1N = 6
PRETOUCH = False
STG_THR = 6
PSLEEP = 8
MSLEEP = 4
MDELAY = 64
GDELAY = 0
STG_EARLY = False
SPIN_MAX = 0x20000


class Asm:
    def __init__(self):
        self.L = []
        self.nl = 0
    def __call__(self, s):
        for line in s.split('\n'):
            line = line.strip()
            if line:
                self.L.append(line if line.endswith(':') else '    ' + line)
    def c(self, s):
        self.L.append('    ; ' + s)
    def label(self, p='L'):
        self.nl += 1
        return f'{p}_{self.nl}'
    def text(self):
        return '\n'.join(self.L) + '\n'


def vr(b, n=4):
    return f'v[{b}:{b+n-1}]'

def srd(A, d, lo, nbytes):
    A(f's_mov_b32 s{d}, s{lo}\ns_mov_b32 s{d+1}, s{lo+1}\ns_mov_b32 s{d+2}, {nbytes}\ns_mov_b32 s{d+3}, 0x20000')

def stamp(A, n):
    if STAMP:
        A(f'{"s_memrealtime" if RTS else "s_memtime"} s[98:99]\ns_waitcnt lgkmcnt(0)\nv_writelane_b32 v1, s98, {n}')
def stamp_rt(A, n):
    if STAMP:
        A(f's_memrealtime s[98:99]\ns_waitcnt lgkmcnt(0)\nv_writelane_b32 v1, s98, {n}')
def tbeg(A):
    if STAMP and 'quiet' not in EXP: A('s_memtime s[98:99]\ns_waitcnt lgkmcnt(0)\ns_mov_b32 s3, s98')
def tend(A, r):
    if STAMP and 'quiet' not in EXP: A(f's_memtime s[98:99]\ns_waitcnt lgkmcnt(0)\ns_sub_u32 s3, s98, s3\ns_add_u32 s{r}, s{r}, s3')
def finish(A):
    if STAMP:
        A('s_waitcnt vmcnt(0)')
        stamp(A, 61); stamp_rt(A, 63)
        A('v_writelane_b32 v1, s100, 59\nv_writelane_b32 v1, s101, 60')
        if DIAG:
            slot, mult = DIAG
            l = A.label('L_dg'); l2 = A.label('L_dg')
            A(f's_cmp_lg_u32 s21, 0\ns_cbranch_scc1 {l2}')
            A(f'v_readlane_b32 s48, v1, {slot}\nv_readlane_b32 s49, v1, 0\nv_readlane_b32 s50, v1, 61\ns_cmp_eq_u32 s48, 0\ns_cselect_b32 s48, s49, s48\ns_sub_u32 s48, s48, s49\ns_mul_i32 s48, s48, {mult}\ns_min_u32 s48, s48, 20000')
            A(f'{l}:\ns_memrealtime s[98:99]\ns_waitcnt lgkmcnt(0)\ns_sub_u32 s51, s98, s50\ns_cmp_lt_u32 s51, s48\ns_cbranch_scc1 {l}')
            A(f'{l2}:')
        A('s_mov_b64 exec, -1')
        A(f's_lshl_b32 s3, s2, 3\ns_add_u32 s3, s3, s21\ns_lshl_b32 s3, s3, 8\ns_add_u32 s3, s3, {STAMP_OFF}\nv_lshlrev_b32 v2, 2, v2')
        A('buffer_store_dword v1, v2, s[40:43], s3 offen')
        if DBGOUT:
            l = A.label('L_dbg')
            A(f's_cmp_lg_u32 s21, 0\ns_cbranch_scc1 {l}\ns_and_b32 s3, s2, 0xbf\ns_cmp_lg_u32 s3, 6\ns_cbranch_scc1 {l}')
            A('s_load_dwordx2 s[86:87], s[0:1], 72\ns_lshr_b32 s3, s2, 6\ns_mul_i32 s3, s3, 28\ns_add_u32 s3, s3, 8\ns_waitcnt lgkmcnt(0)\ns_mov_b64 exec, 1')
            for k, slot in enumerate((0, 2, 3, 5, 10, 12, 61)):
                A(f'v_readlane_b32 s48, v1, {slot}\nv_mov_b32 v3, s3\ns_nop 1\nv_mov_b32 v4, s48\nglobal_store_dword v3, v4, s[86:87] offset:{4*k}')
            A(f'{l}:')
    A('s_endpgm')

LOG2E = 0x3fb8aa3b
NLOG2E = 0xbfb8aa3b
EPS = 0x358637bd

ACC = 96; XF = 64; WF = 24
def acc(i, t): return ACC + 20 * i + 4 * t


THR = 0
def dma(A, m0expr, voff, sr, so):
    A(m0expr)
    A(f's_waitcnt vmcnt({THR-1})' if THR else 's_nop 0')
    A(f'buffer_load_dwordx4 v{voff}, s[{sr}:{sr+3}], s{so} offen lds')


def poll(A, soff, nl, vt, vaddr, sleep=None, first_sleep=False):
    l0 = A.label('L_poll'); l1 = A.label('L_polled')
    A('s_mov_b32 s90, 0')
    A(f's_mov_b64 exec, {hex((1 << nl) - 1)}' if nl <= 31 else f's_mov_b32 exec_lo, -1\ns_mov_b32 exec_hi, {hex((1 << (nl - 32)) - 1)}')
    A(f'{l0}:')
    A(f'buffer_load_dwordx2 {vr(vt,2)}, v{vaddr}, s[40:43], s{soff} offen sc1')
    A('s_waitcnt vmcnt(0)')
    A(f'v_cmp_ne_u64 vcc, s[88:89], {vr(vt,2)}')
    A(f's_cbranch_vccz {l1}')
    A(f's_sleep {PSLEEP if sleep is None else sleep}\ns_add_u32 s90, s90, 1\ns_cmp_lt_u32 s90, {SPIN_MAX}\ns_cbranch_scc1 {l0}')
    A(f'{l1}:')
    A('s_mov_b64 exec, -1')


def spoll(A, parts, sleep=2):
    l0 = A.label('L_sp'); l1 = A.label('L_spd')
    A('s_mov_b32 s96, 0')
    A(f'{l0}:')
    regs = []
    for so, imm, n, sb in parts:
        A(f's_load_dwordx{2*n} s[{sb}:{sb+2*n-1}], s[16:17], s{so} offset:{imm} glc')
        regs += [sb + 2 * k for k in range(n)]
    A('s_waitcnt lgkmcnt(0)')
    for r in regs:
        A(f's_xor_b64 s[{r}:{r+1}], s[{r}:{r+1}], s[88:89]')
    for r in regs[1:]:
        A(f's_or_b64 s[{regs[0]}:{regs[0]+1}], s[{regs[0]}:{regs[0]+1}], s[{r}:{r+1}]')
    A(f's_cbranch_scc0 {l1}')
    A(f's_sleep {sleep}\ns_add_u32 s96, s96, 1\ns_cmp_lt_u32 s96, {SPIN_MAX}\ns_cbranch_scc1 {l0}')
    A(f'{l1}:')


def set_flag(A, soff, vt):
    A(f'v_mov_b32 v{vt}, s88\nv_mov_b32 v{vt+1}, s89\nv_mov_b32 v{vt+2}, 0')
    A('s_waitcnt vmcnt(0)')
    A('s_mov_b64 exec, 1')
    A(f'buffer_store_dwordx2 {vr(vt,2)}, v{vt+2}, s[40:43], s{soff} offen sc1')
    A('s_mov_b64 exec, -1')


def table_srd(A, d):
    l = A.label('L_pc')
    A(f's_getpc_b64 s[{d}:{d+1}]\n{l}:\ns_add_u32 s{d}, s{d}, L_table-{l}\ns_addc_u32 s{d+1}, s{d+1}, 0\ns_movk_i32 s{d+2}, 128\ns_mov_b32 s{d+3}, 0x20000')


def lds_free(A, vaddr, vt, sdst):
    A(f'ds_read_b32 v{vt}, v{vaddr}\ns_waitcnt lgkmcnt(0)')
    A(f'v_readlane_b32 s{sdst}, v{vt}, 0\nv_readlane_b32 s48, v{vt}, 1\ns_min_u32 s{sdst}, s{sdst}, s48\nv_readlane_b32 s48, v{vt}, 2\ns_min_u32 s{sdst}, s{sdst}, s48\nv_readlane_b32 s48, v{vt}, 3\ns_min_u32 s{sdst}, s{sdst}, s48')


def lds_min4(A, vaddr, off, vt, sdst):
    A(f'ds_read_b128 {vr(vt)}, v{vaddr} offset:{off}\ns_waitcnt lgkmcnt(0)')
    A(f'v_min3_u32 v{vt}, v{vt}, v{vt+1}, v{vt+2}\nv_min_u32 v{vt}, v{vt}, v{vt+3}\ns_nop 0\nv_readfirstlane_b32 s{sdst}, v{vt}')


def lds_wait(A, vaddr, off, vt, need, four=True, sdst=90, sleep=1):
    l0 = A.label('L_lw'); l1 = A.label('L_lwd')
    if sleep in (2, 4): sleep *= WSM
    A('s_mov_b32 s96, 0')
    A(f'{l0}:')
    if four == 'free':
        lds_free(A, vaddr, vt, sdst)
    elif four:
        lds_min4(A, vaddr, off, vt, sdst)
    else:
        A(f'ds_read_b32 v{vt}, v{vaddr} offset:{off}\ns_waitcnt lgkmcnt(0)\nv_readfirstlane_b32 s{sdst}, v{vt}')
    A(f's_cmp_ge_i32 s{sdst}, {need}\ns_cbranch_scc1 {l1}')
    A(f's_sleep {sleep}\ns_add_u32 s96, s96, 1\ns_cmp_lt_u32 s96, {SPIN_MAX*16}\ns_cbranch_scc1 {l0}')
    A(f'{l1}:')


def lds_wait_mask(A, vaddr, off, vt, smask, sleep=2):
    l0 = A.label('L_mw'); l1 = A.label('L_mwd')
    A('s_mov_b32 s96, 0')
    A(f'{l0}:')
    A(f'ds_read_b32 v{vt}, v{vaddr} offset:{off}\ns_waitcnt lgkmcnt(0)\nv_readfirstlane_b32 s90, v{vt}')
    A(f's_andn2_b32 s90, {smask}, s90\ns_cbranch_scc0 {l1}')
    A(f's_sleep {sleep}\ns_add_u32 s96, s96, 1\ns_cmp_lt_u32 s96, {SPIN_MAX*16}\ns_cbranch_scc1 {l0}')
    A(f'{l1}:')


def mainloop(A, kv, tag):
    def upd_s():
        L = [f's_add_u32 s50, s50, {WSLOT}', f's_cmp_ge_u32 s50, {WBASE + NW*WSLOT}', f's_cselect_b32 s50, {WBASE}, s50']
        if not kv:
            L += ['s_add_u32 s52, s52, s53', 's_cmp_ge_u32 s52, s57', f's_cselect_b32 s52, {WBASE}, s52']
        return L
    def set_w():
        return [f'v_add_u32 v{15+t}, s50, v{10+t}' for t in range(4)] + [f'v_add_u32 v19, s{50 if kv else 52}, v14']
    def upd_blk():
        return [f's_add_u32 s51, s51, {XSLOT}', f's_cmp_ge_u32 s51, {NX*XSLOT}', 's_cselect_b32 s51, 0, s51']
    def set_x(par):
        return [f'v_add_u32 v{4+par}, s51, v{20+par}']
    def rdW(p, t, h):
        b = WF + 20 * p + 4 * t + 2 * h
        return f'ds_read_b64_tr_b16 {vr(b,2)}, v{15+t} offset:{512*h}'
    def rdX(i, par):
        return f'ds_read_b128 {vr(XF+4*i)}, v{4+par} offset:{2048*i}'
    def mfma(i, t, p):
        w = vr(WF + 20 * p + 4 * t); x = vr(XF + 4 * i); d = vr(acc(i, t))
        if 'm32' in EXP:
            n = 5 * i + t
            if n % 2 == 0:
                d = vr(ACC + 16 * ((n // 2) % 10), 16)
                A(f'v_mfma_f32_32x32x16_bf16 {d}, {w}, {x}, {d}')
            return
        A(f'v_mfma_f32_16x16x32_bf16 {d}, {x}, {w}, {d}' if kv else f'v_mfma_f32_16x16x32_bf16 {d}, {w}, {x}, {d}')
    A(f's_mov_b32 s50, {WBASE}\ns_mov_b32 s51, 0\ns_mov_b32 s54, 0')
    if not kv:
        A(f's_cmp_lg_u32 s55, 0\ns_cselect_b32 s52, {GWBASE}, s50\ns_movk_i32 s53, {WSLOT}\ns_cselect_b32 s53, {GWS}, s53\ns_mov_b32 s57, {WBASE + NW*WSLOT}\ns_cselect_b32 s57, -1, s57')
    for l in set_w() + set_x(0) + set_x(1):
        A(l)
    A(f'v_mov_b32 v3, {CT}\ns_lshl_b32 s48, s21, 8\ns_add_u32 m0, s48, {CT+256}\nv_mov_b32 v0, {OOB}\nv_writelane_b32 v0, 0, 0')
    table_srd(A, 44)
    stamp(A, 1)
    lds_wait(A, 3, 0, 6, 1, sdst=59)
    A('s_waitcnt vmcnt(0)')
    A(f's_setprio {PRIO}')
    stamp(A, 2)
    for t in range(5):
        A(rdW(0, t, 0)); A(rdW(0, t, 1))
    A('s_waitcnt lgkmcnt(6)')
    for i in range(8):
        A(rdX(i, 0))
    for l in upd_s() + set_w():
        A(l)
    A('s_mov_b32 s58, 2\ns_cmp_ge_i32 s59, s58')
    A(f's_cbranch_scc0 L_{tag}_slow0')
    A('.p2align 3')
    for p in range(2):
        gap = {k: [] for k in range(40)}
        for i in range(5):
            gap[5*i].append(rdW(1 - p, i, 0)); gap[5*i + 2].append(rdW(1 - p, i, 1))
        for i in range(8):
            gap[5*i + 4].append(rdX(i, 1 - p))
        gap[9].append('s_waitcnt lgkmcnt(6)')
        gap[1].append('s_add_u32 s54, s54, 4')
        gap[11].append('buffer_load_dword v0, s[44:47], s54 offen lds')
        gap[6].append('s_add_u32 s58, s58, 1'); gap[8].append('s_min_u32 s58, s58, 20')
        sal = upd_s() + (upd_blk() if p == 0 else [])
        for k in (13, 13, 16, 16, 18, 18, 21, 21, 23):
            if sal: gap[k].append(sal.pop(0))
        assert not sal
        if LATEF:
            for k, l in zip((23, 25, 26, 27, 28, 30), set_w() + set_x(p)):
                gap[k].append(l)
            gap[31].append('ds_read_b128 v[6:9], v3')
            gap[36].append('s_waitcnt lgkmcnt(1)'); gap[36].append('v_min3_u32 v6, v6, v7, v8')
            gap[37].append('v_min_u32 v6, v6, v9')
            gap[38].append('v_readfirstlane_b32 s59, v6')
        else:
            gap[23].append('ds_read_b128 v[6:9], v3')
            for k, l in zip((25, 26, 27, 28, 30, 31), set_w() + set_x(p)):
                gap[k].append(l)
            gap[32].append('s_waitcnt lgkmcnt(2)'); gap[32].append('v_min3_u32 v6, v6, v7, v8')
            gap[33].append('v_min_u32 v6, v6, v9')
            gap[35].append('v_readfirstlane_b32 s59, v6')
        if p == 1:
            gap[35 if LATEF else 36].append('s_cmp_lt_u32 s54, 80'); gap[37].append(f's_cbranch_scc0 L_{tag}_last')
        gap[39 if LATEF else 38].append('s_cmp_ge_i32 s59, s58' if 'nowait' not in EXP else 's_cmp_eq_u32 s59, s59')
        if 'novalu' in EXP:
            for k in gap: gap[k] = [l for l in gap[k] if not l.startswith('v_')]
        if 'nods' in EXP:
            for k in gap: gap[k] = [l for l in gap[k] if not l.startswith('ds_')]
        if 'nosalu' in EXP:
            for k in gap: gap[k] = [l for l in gap[k] if not (l.startswith('s_') and 13 <= k <= 23)]
        if 'noctl' in EXP:
            for k in gap: gap[k] = [l for l in gap[k] if not (' v6' in l or 'v[6:9]' in l)]
        if 'halfx' in EXP:
            for k in (9, 19, 29, 39): gap[k] = [l.replace('ds_read_b128', 'ds_read_b32').replace(l.split()[1], l.split()[1].split(':')[0].replace('[', '') + ',') if l.startswith('ds_read_b128 v[') else l for l in gap[k]]
        if 'nowr' in EXP:
            for k in gap: gap[k] = [l for l in gap[k] if not l.startswith('ds_write')]
        if 'now32' in EXP:
            gap[32] = [l for l in gap[32] if not l.startswith('s_waitcnt')]
        if 'nopub' in EXP: pass
        if p == 0:
            A(f'L_{tag}_go0:')
        else:
            A(f's_cbranch_scc0 L_{tag}_slow1')
            A(f'L_{tag}_go1:')
        A('s_waitcnt lgkmcnt(2)')
        for i in range(8):
            for t in range(5):
                mfma(i, t, p)
                for l in gap[5*i + t]: A(l)
    A(f's_cbranch_scc1 L_{tag}_go0')
    for p in range(2):
        A(f'L_{tag}_slow{p}:')
        tbeg(A)
        lds_wait(A, 3, 0, 6, 's58', sdst=59)
        tend(A, 100)
        if STAMP: A('s_add_u32 s101, s101, 1')
        A(f's_branch L_{tag}_go{p}')
    A(f'L_{tag}_last:')
    mfma(7, 3, 1); mfma(7, 4, 1)
    A('s_waitcnt lgkmcnt(0)')
    stamp(A, 3)
    A('s_nop 6')
    if 'p1' in EXP: finish(A)


def phi_q(A, b, t, dst=None):
    dst = b if dst is None else dst
    A(f'v_pk_mul_f32 {vr(t,2)}, {vr(b,2)}, s[60:61]\nv_pk_mul_f32 {vr(t+2,2)}, {vr(b+2,2)}, s[60:61]')
    for j in range(4):
        A(f'v_exp_f32 v{t+j}, v{t+j} clamp')
    for j in range(4):
        A(f'v_max_f32 v{dst+j}, s66, v{b+j}')
    A(f'v_pk_add_f32 {vr(dst,2)}, {vr(dst,2)}, {vr(t,2)}\nv_pk_add_f32 {vr(dst+2,2)}, {vr(dst+2,2)}, {vr(t+2,2)}')


def gen_compute(A):
    A('L_compute:')
    if CODEPF:
        A('s_cmp_lg_u32 s21, 0\ns_cbranch_scc1 L_nocpf')
        A(f's_getpc_b64 s[44:45]\nL_pc:\ns_sub_u32 s44, s44, L_pc-{NAME}_kernel\ns_subb_u32 s45, s45, 0\ns_mov_b32 s46, L_end-{NAME}_kernel\ns_mov_b32 s47, 0x20000')
        A('s_lshr_b32 s48, s2, 3\ns_lshl_b32 s48, s48, 11\nv_lshlrev_b32 v3, 7, v2\ns_mov_b64 exec, 0xffff')
        A('buffer_load_dword v95, v3, s[44:47], s48 offen\ns_mov_b64 exec, -1')
        A('L_nocpf:')
    A('s_barrier')
    A.c('compute wave setup: v3=q v4=r v5=c v6=f<<5 v7=rowpart')
    for r in range(ACC, 256, 2):
        A(f'v_mov_b64 {vr(r,2)}, 0')
    A('v_lshrrev_b32 v3, 4, v2\nv_bfe_u32 v4, v2, 2, 2\nv_and_b32 v5, 3, v2')
    A('v_lshrrev_b32 v6, 1, v4\nv_and_b32 v8, 1, v3\nv_lshl_add_u32 v6, v8, 1, v6\nv_lshlrev_b32 v6, 5, v6')
    A('v_mul_u32_u24 v7, 5120, v3\nv_lshl_add_u32 v7, v4, 7, v7')
    A('v_and_b32 v8, 15, v2\nv_lshrrev_b32 v9, 1, v8\nv_xor_b32 v9, v9, v3\nv_lshlrev_b32 v9, 4, v9\nv_lshl_add_u32 v20, v8, 7, v9\nv_xor_b32 v21, 64, v20')
    A(f's_mov_b32 s60, {LOG2E}\ns_mov_b32 s61, {LOG2E}\ns_mov_b32 s62, {NLOG2E}\ns_mov_b32 s63, {NLOG2E}')
    A(f's_mov_b32 s64, 1.0\ns_mov_b32 s65, 1.0\ns_mov_b32 s66, {EPS}')
    A('s_waitcnt lgkmcnt(0)')
    srd(A, 40, 16, WS_USED)
    if PRETOUCH:
        A('s_cmp_lg_u32 s21, 1\ns_cbranch_scc1 L_nopt')
        A('s_load_dwordx2 s[28:29], s[0:1], 64\ns_load_dwordx2 s[32:33], s[0:1], 16\ns_mov_b32 s30, 2621440\ns_mov_b32 s31, 0x20000\ns_mov_b32 s34, 819200\ns_mov_b32 s35, 0x20000')
        srd(A, 36, 12, 1966080)
        A('v_lshlrev_b32 v8, 18, v2\nv_lshlrev_b32 v9, 16, v2')
        A('buffer_load_dword v92, v8, s[40:43], 0 offen\nbuffer_load_dword v93, v9, s[36:39], 0 offen\ns_waitcnt lgkmcnt(0)')
        A('buffer_load_dword v94, v9, s[28:31], 0 offen\nbuffer_load_dword v95, v9, s[32:35], 0 offen')
        A('L_nopt:')
    A('s_cmp_eq_u32 s20, 0\ns_cbranch_scc1 L_kv')

    A(f's_cmp_lg_u32 s20, {WOM}\ns_cbranch_scc1 L_g_nowo')
    A('s_load_dwordx2 s[24:25], s[0:1], 16\ns_mov_b32 s26, 819200\ns_mov_b32 s27, 0x20000')
    wo_offset(A, 's21')
    A('v_lshrrev_b32 v8, 1, v2\nv_mul_u32_u24 v8, 1280, v8\nv_and_b32 v9, 1, v2\nv_mul_u32_u24 v9, 156, v9\nv_add_u32 v8, v8, v9')
    A('s_waitcnt lgkmcnt(0)\nbuffer_load_dword v92, v8, s[24:27], s73 offen')
    A('L_g_nowo:')
    A('s_lshr_b32 s48, s21, 1\ns_lshl_b32 s48, s48, 10\ns_and_b32 s49, s21, 1\ns_lshl_b32 s49, s49, 3')
    A('v_add_u32 v8, s49, v5\nv_lshlrev_b32 v8, 3, v8\nv_xor_b32 v9, v8, v6\nv_add3_u32 v10, v9, v7, s48')
    A('v_add_u32 v8, 32, v8\nv_xor_b32 v9, v8, v6\nv_add3_u32 v11, v9, v7, s48')
    A('v_add_u32 v12, 2048, v10\nv_add_u32 v13, 2048, v11')
    A('s_lshl_b32 s49, s21, 2\nv_add_u32 v8, s49, v5\nv_lshlrev_b32 v8, 3, v8\nv_xor_b32 v9, v8, v6\nv_add_u32 v14, v9, v7\nv_add_u32 v14, 4096, v14')
    A('s_cmp_eq_u32 s55, 0\ns_cbranch_scc1 L_g_notgc')
    A('v_lshlrev_b32 v14, 5, v3\nv_lshl_add_u32 v14, v4, 3, v14')
    A('L_g_notgc:')
    A('v_lshlrev_b32 v22, 4, v2')
    A(f's_mul_i32 s72, s18, {2*68*4096}\ns_add_u32 s73, s72, {68*4096}')
    A('s_lshl_b32 s48, s22, 2\ns_add_u32 s48, s48, s21\ns_lshl_b32 s49, s48, 12\ns_add_u32 s70, s72, s49\ns_add_u32 s71, s73, s49')
    A(f's_lshl_b32 s74, s18, {FSH}\ns_lshl_b32 s49, s48, 3\ns_add_u32 s74, s74, s49\ns_add_u32 s74, s74, {FG_OFF}')
    A('s_lshl_b32 s48, s48, 2\nv_add_u32 v5, s48, v3')
    A('v_mul_u32_u24 v6, 6554, v5\nv_lshrrev_b32 v6, 16, v6\nv_mul_u32_u24 v7, 10, v6\nv_sub_u32 v7, v5, v7')
    A('v_lshrrev_b32 v8, 2, v6\nv_and_b32 v6, 3, v6')
    A('v_mul_u32_u24 v8, 5, v8\nv_lshrrev_b32 v9, 1, v7\nv_add3_u32 v8, v8, v9, 48\nv_lshlrev_b32 v8, 12, v8')
    A('v_and_b32 v9, 15, v2\nv_lshl_add_u32 v9, v6, 4, v9\nv_lshl_add_u32 v8, v9, 4, v8')
    A('v_and_b32 v7, 1, v7\nv_lshl_add_u32 v23, v7, 10, v8')
    mainloop(A, False, 'g')
    A.c('h = u * sigmoid(g)')
    hst = []; pst = []
    for i in range(8):
        g = acc(i, 0); u = acc(i, 2)
        for j in range(4):
            A(f'v_pk_mul_f32 {vr(g+2*j,2)}, {vr(g+2*j,2)}, s[62:63]')
        for j in range(8):
            A(f'v_exp_f32 v{g+j}, v{g+j}')
        for j in range(4):
            A(f'v_pk_add_f32 {vr(g+2*j,2)}, {vr(g+2*j,2)}, s[64:65]')
        for j in range(8):
            A(f'v_rcp_f32 v{g+j}, v{g+j}')
        for j in range(4):
            A(f'v_pk_mul_f32 {vr(u+2*j,2)}, {vr(u+2*j,2)}, {vr(g+2*j,2)}')
        for j in range(4):
            A(f'v_cvt_pk_bf16_f32 v{g+j}, v{u+2*j}, v{u+2*j+1}')
        hst.append(f'buffer_store_dwordx4 {vr(g)}, v22, s[40:43], s{70 + (i>>2)} offen offset:{(i&3)*1024} {LS}')
        if not BURST: A(hst.pop())
    if BURST == 1:
        for l in hst: A(l)
        hst = []
    A('s_cmp_lg_u32 s91, 0\ns_cbranch_scc1 L_gc_epi')
    A.c('pq = phi(q)')
    for i in range(0, 8, 2):
        a0 = acc(i, 4); b0 = acc(i + 1, 4)
        phi_q(A, a0, 24 + 8 * ((i >> 1) & 1))
        phi_q(A, b0, 28 + 8 * ((i >> 1) & 1))
        A(f'v_cvt_pk_bf16_f32 v{a0}, v{a0}, v{a0+1}\nv_cvt_pk_bf16_f32 v{a0+1}, v{a0+2}, v{a0+3}')
        A(f'v_cvt_pk_bf16_f32 v{a0+2}, v{b0}, v{b0+1}\nv_cvt_pk_bf16_f32 v{a0+3}, v{b0+2}, v{b0+3}')
        A('s_nop 1')
        A(f'v_permlane16_swap_b32 v{a0}, v{a0+2}\nv_permlane16_swap_b32 v{a0+1}, v{a0+3}')
        pst.append(f'buffer_store_dwordx4 {vr(a0)}, v23, s[40:43], s{72 + (i>>2)} offen offset:{(i&3)*1024} {LS}')
        if BURST != 2: A(pst.pop())
    for l in hst + pst: A(l)
    A('s_branch L_p1_done')
    A('L_gc_epi:')
    for l in hst: A(l)
    A.c('gate g = sigmoid(logit); stored by gtype 10, wave 0')
    A('v_and_b32 v8, 15, v2\nv_lshlrev_b32 v8, 2, v8')
    A(f's_lshl_b32 s48, s18, 9\ns_add_u32 s48, s48, {G_OFF}\ns_lshl_b32 s49, s22, 2\ns_add_u32 s49, s49, s21')
    A(f's_cmp_eq_u32 s49, 40\ns_cselect_b32 s48, s48, {OOB}')
    for i in range(8):
        A(f'v_mul_f32 v{acc(i,4)}, s62, v{acc(i,4)}')
    for i in range(8):
        A(f'v_exp_f32 v{acc(i,4)}, v{acc(i,4)}')
    for i in range(8):
        A(f'v_add_f32 v{acc(i,4)}, 1.0, v{acc(i,4)}')
    for i in range(8):
        A(f'v_rcp_f32 v{acc(i,4)}, v{acc(i,4)}')
    A('s_nop 0\ns_mov_b64 exec, 0xffff')
    for i in range(8):
        A(f'buffer_store_dword v{acc(i,4)}, v8, s[40:43], s48 offen offset:{64*i} {LS}')
    A('s_mov_b64 exec, -1')
    A('s_branch L_p1_done')

    A('L_kv:')
    A('s_mul_i32 s48, s21, 10\ns_and_b32 s49, s19, 1\ns_lshl_b32 s49, s49, 3\ns_sub_u32 s48, s48, s49')
    def kvaddr(dst, u, isv):
        A(f'v_add_u32 v9, 40, {u}\nv_cmp_gt_i32 vcc, 0, {u}\ns_nop 1\nv_cndmask_b32 v8, {u}, v9, vcc')
        A(f'v_lshrrev_b32 v9, 4, v8\nv_lshl_add_u32 v9, {isv}, 1, v9\nv_and_b32 v23, 15, v8')
        A(f'v_lshl_add_u32 v22, {isv}, 3, v23')
        A('v_cmp_gt_u32 vcc, 32, v8\ns_nop 1\nv_cndmask_b32 v9, 4, v9, vcc\nv_cndmask_b32 v23, v22, v23, vcc')
        A(f'v_lshlrev_b32 v23, 3, v23\nv_xor_b32 v23, v23, v6\nv_lshlrev_b32 v22, 4, {isv}\nv_xor_b32 v23, v23, v22')
        A(f'v_lshl_add_u32 v23, v9, 10, v23\nv_add_u32 v{dst}, v23, v7')
    A('v_mov_b32 v16, 0\nv_mov_b32 v17, 1\nv_add_u32 v15, s48, v5')
    kvaddr(10, 'v15', 'v16'); kvaddr(12, 'v15', 'v17')
    A('v_add_u32 v15, 5, v15')
    kvaddr(11, 'v15', 'v16'); kvaddr(13, 'v15', 'v17')
    A('v_and_b32 v15, 1, v5\nv_mul_u32_u24 v15, 5, v15\nv_add3_u32 v15, v15, s48, 4\nv_lshrrev_b32 v16, 1, v5')
    kvaddr(14, 'v15', 'v16')
    A('v_lshlrev_b32 v22, 4, v2\nv_lshlrev_b32 v23, 4, v3')
    A('v_and_b32 v8, 15, v2\nv_cmp_gt_u32 s[68:69], 8, v8')
    A(f's_lshl_b32 s48, s19, 2\ns_add_u32 s48, s48, s21\ns_lshl_b32 s48, s48, 4\ns_add_u32 s48, s48, s18\ns_mul_i32 s70, s48, {KVS}\ns_add_u32 s70, s70, {KVP_OFF}')
    prods = [(0, 0), (1, 1), (2, 0), (2, 1), (0, 2), (1, 2), (2, 2)]
    A(f's_lshr_b32 s71, s21, 1\ns_mul_i32 s71, s71, {RPK - 40960}\ns_and_b32 s49, s21, 1\ns_lshl_b32 s49, s49, 12\ns_add_u32 s71, s71, s49\ns_add_u32 s71, s71, 40960')
    A('v_mul_u32_u24 v23, 5, v8\nv_add_u32 v23, v23, v3\nv_lshlrev_b32 v23, 4, v23\nv_add_u32 v23, s71, v23')
    mainloop(A, True, 'kv')
    A.c('KV epilogue')
    A('v_mov_b32 v12, 0x3f803f80\nv_mov_b32 v13, v12\nv_mov_b32 v14, v12\nv_mov_b32 v15, v12')
    KT = {0: 0, 1: 1, 2: 4}; VT = {0: 2, 1: 3, 2: 4}
    PR = 24
    if EPI2:
        A(f'v_and_b32 v9, 3, v2\nv_lshlrev_b32 v9, 8, v9\nv_add_u32 v9, {CT+256}, v9')
        n = 0
        vcv = []
        for i in range(8):
            for t in (0, 1):
                phi_q(A, acc(i, t), 64 + 4 * (n % 4)); n += 1
            b = acc(i, 4); sv = 80 + 4 * (i & 1)
            phi_q(A, b, 64 + 4 * (n % 4), sv); n += 1
            for j in range(4):
                A(f'v_cndmask_b32 v{b+j}, v{b+j}, v{sv+j}, s[68:69]')
            if KVP_AT is not None and i == KVP_AT: A('s_movk_i32 s54, 84\nbuffer_load_dword v0, s[44:47], s54 offen lds')
        stamp(A, 43)
        A('ds_read_b64 v[4:5], v3 offset:32\nds_read_b32 v8, v9')
        pend = []
        for kk in range(4):
            c = 0
            for t in range(5):
                a = acc(2 * kk, t); b = acc(2 * kk + 1, t)
                for l in (f'v_cvt_pk_bf16_f32 v{a}, v{a}, v{a+1}', f'v_cvt_pk_bf16_f32 v{a+1}, v{a+2}, v{a+3}',
                          f'v_cvt_pk_bf16_f32 v{a+2}, v{b}, v{b+1}', f'v_cvt_pk_bf16_f32 v{a+3}, v{b+2}, v{b+3}'):
                    A(l); c += 1
                    if c % 2 == 0 and pend: A(pend.pop(0))
            assert not pend
            for n, (tv, tk) in enumerate(prods):
                d = vr(PR + 4 * n)
                pend.append(f'v_mfma_f32_16x16x32_bf16 {d}, {vr(acc(2*kk,VT[tv]))}, {vr(acc(2*kk,KT[tk]))}, {d if kk else 0}')
            for tk in range(3):
                d = vr(52 + 4 * tk)
                pend.append(f'v_mfma_f32_16x16x32_bf16 {d}, {vr(acc(2*kk,KT[tk]))}, v[12:15], {d if kk else 0}')
        A('s_waitcnt lgkmcnt(0)\nv_cmp_gt_u32 vcc, 18, v8')
        chk = ['v_readfirstlane_b32 s88, v4', 'v_readfirstlane_b32 s89, v5', 's_cmp_eq_u32 s88, 0', 's_cselect_b32 vcc_lo, 1, vcc_lo', 's_cmp_eq_u64 vcc, 0']
        for l in pend:
            A(l)
            if chk: A(chk.pop(0))
        A('s_cbranch_scc1 L_kv_chkok')
        get_epoch(A, 3, 6)
        lds_wait(A, 9, 0, 8, 18, four='free', sleep=1)
        A('L_kv_chkok:')
        stamp(A, 18)
    else:
        pend = []
        def flush(k):
            for _ in range(k):
                if pend: A(pend.pop(0))
        for kk in range(4):
            n = 0
            for i in (2 * kk, 2 * kk + 1):
                for t in (0, 1):
                    phi_q(A, acc(i, t), 64 + 4 * (n % 4)); n += 1
                    flush(2)
                b = acc(i, 4); s = 80 + 4 * (i & 1)
                phi_q(A, b, 64 + 4 * (n % 4), s); n += 1
                for j in range(4):
                    A(f'v_cndmask_b32 v{b+j}, v{b+j}, v{s+j}, s[68:69]')
                flush(1)
            assert not pend
            stamp(A, 40 + kk)
            for t in range(5):
                a = acc(2 * kk, t); b = acc(2 * kk + 1, t)
                A(f'v_cvt_pk_bf16_f32 v{a}, v{a}, v{a+1}\nv_cvt_pk_bf16_f32 v{a+1}, v{a+2}, v{a+3}')
                A(f'v_cvt_pk_bf16_f32 v{a+2}, v{b}, v{b+1}\nv_cvt_pk_bf16_f32 v{a+3}, v{b+2}, v{b+3}')
            for n, (tv, tk) in enumerate(prods):
                d = vr(PR + 4 * n)
                pend.append(f'v_mfma_f32_16x16x32_bf16 {d}, {vr(acc(2*kk,VT[tv]))}, {vr(acc(2*kk,KT[tk]))}, {d if kk else 0}')
            for tk in range(3):
                d = vr(52 + 4 * tk)
                pend.append(f'v_mfma_f32_16x16x32_bf16 {d}, {vr(acc(2*kk,KT[tk]))}, v[12:15], {d if kk else 0}')
        A('s_nop 1')
        flush(10)
        stamp(A, 18)
        get_epoch(A, 3, 6)
        A(f'v_and_b32 v9, 3, v2\nv_lshlrev_b32 v9, 8, v9\nv_add_u32 v9, {CT+256}, v9')
        lds_wait(A, 9, 0, 8, 18, four='free', sleep=1)
    stamp(A, 19)
    HB_ = 1792
    wr = [(0, None, 0), (1, None, HB_), (2, (0, 0xffff), 32), (3, (0, 0xffff0000), HB_ + 16), (4, (0x000f000f, 0x000f000f), 1280),
          (5, (0x00f000f0, 0x00f000f0), HB_ + 960), (6, (0, 0x0000000f), 1280 + 32), (6, (0, 0x00f00000), HB_ + 960 + 16),
          (7, (0x00010001, 0x00010001), 1600), (8, (0x00010001, 0x00010001), HB_ + 1600), (9, (1, 0), 1664), (9, (0x10000, 0), HB_ + 1648)]
    for n, m, off in wr:
        if m: A(f's_mov_b32 exec_lo, {hex(m[0])}\ns_mov_b32 exec_hi, {hex(m[1])}')
        A(f'ds_write_b128 v23, {vr(PR+4*n)} offset:{off}')
    A('s_mov_b64 exec, -1\nv_add_u32 v9, s71, v22')
    stamp(A, 38)
    for i in range(4):
        A(f'ds_read_b128 {vr(64+4*i)}, v9 offset:{1024*i}')
    A('s_and_b32 s76, s88, 0xfff\ns_bfe_u32 s77, s88, 0xc000c\ns_lshr_b64 s[78:79], s[88:89], 24\ns_xor_b32 s78, s78, s88\ns_bfe_u32 s79, s78, 0xc000c\ns_and_b32 s78, s78, 0xfff')
    A('v_mov_b32 v6, 0xfffff000')
    for i in range(4):
        A(f's_waitcnt lgkmcnt({3-i})')
        for r in range(64 + 4 * i, 68 + 4 * i):
            A(f'v_and_or_b32 v{r}, v{r}, v6, s{76 + (r & 3)}')
        if i == 3: A('s_mov_b32 exec_hi, 0')
        A(f'buffer_store_dwordx4 {vr(64+4*i)}, v22, s[40:43], s70 offen offset:{1024*i} sc1')
    A('s_mov_b64 exec, -1')
    if KVP_AT is not None: A('s_movk_i32 s54, 88\nbuffer_load_dword v0, s[44:47], s54 offen lds')
    A('L_p1_done:')
    stamp(A, 4)
    gen_awave(A)


def p2_ids(A):
    if P84:
        A('s_bfe_u32 s18, s2, 0x20001\ns_lshl_b32 s18, s18, 3\ns_lshr_b32 s48, s2, 5\ns_add_u32 s18, s18, s48')
        A('s_and_b32 s19, s2, 1\ns_lshl_b32 s19, s19, 2\ns_bfe_u32 s48, s2, 0x20003\ns_add_u32 s19, s19, s48')
        return
    A('s_and_b32 s18, s2, 7\ns_lshl_b32 s18, s18, 2\ns_lshr_b32 s48, s2, 6\ns_add_u32 s18, s18, s48')
    A('s_bfe_u32 s19, s2, 0x30003')


def wo_offset(A, w):
    A('s_and_b32 s69, s2, 7\ns_lshl_b32 s69, s69, 3\ns_bfe_u32 s48, s2, 0x30003\ns_add_u32 s69, s69, s48')
    A(f's_lshr_b32 s48, s69, 2\ns_lshl_b32 s48, s48, 1\ns_and_b32 s49, {w}, 1\ns_add_u32 s48, s48, s49\ns_mul_i32 s48, s48, 25600')
    A(f's_and_b32 s49, s69, 3\ns_lshl_b32 s49, s49, 1\ns_lshr_b32 s56, {w}, 1\ns_add_u32 s49, s49, s56\ns_mul_i32 s49, s49, 160\ns_add_u32 s73, s48, s49')


def gpoll(A, soff, vt):
    l0 = A.label('L_gp'); l1 = A.label('L_gs'); l2 = A.label('L_gd')
    A('s_mov_b32 s96, 0\ns_mov_b32 s75, 0')
    A(f'{l0}:')
    A(f's_mov_b32 exec_hi, 0xffff\nbuffer_load_dwordx2 {vr(vt,2)}, v6, s[40:43], s{soff} offen sc1\ns_waitcnt vmcnt(0)\nv_cmp_ne_u64 vcc, s[88:89], {vr(vt,2)}\ns_mov_b32 exec_hi, -1')
    A('s_mov_b32 s74, 0')
    for g in range(4):
        A(f's_bfe_u64 s[76:77], vcc, {hex((12 << 16) | (12 * g))}\ns_cselect_b32 s48, 0, {1 << g}\ns_or_b32 s74, s74, s48')
    A(f's_cmp_eq_u32 s74, s75\ns_cbranch_scc1 {l1}')
    A(f's_mov_b32 s75, s74\nv_mov_b32 v{vt}, s74\ns_mov_b64 exec, 1\nds_write_b32 v0, v{vt} offset:64\ns_mov_b64 exec, -1')
    A(f'{l1}:')
    A(f's_cmp_eq_u32 s74, 15\ns_cbranch_scc1 {l2}')
    A(f's_sleep {PSLEEP}\ns_add_u32 s96, s96, 1\ns_cmp_lt_u32 s96, {SPIN_MAX}\ns_cbranch_scc1 {l0}')
    A(f'{l2}:')


def get_epoch(A, vct, vt):
    l0 = A.label('L_ep')
    A('s_mov_b32 s96, 0')
    A(f'{l0}:')
    A(f'ds_read_b64 {vr(vt,2)}, v{vct} offset:32\ns_waitcnt lgkmcnt(0)\nv_readfirstlane_b32 s88, v{vt}\nv_readfirstlane_b32 s89, v{vt+1}')
    A(f's_add_u32 s96, s96, 1\ns_cmp_eq_u32 s88, 0\ns_cselect_b32 s48, s96, -1\ns_cmp_lt_u32 s48, {SPIN_MAX*16}\ns_cbranch_scc1 {l0}')


def phase_a(A):
    WOI = 0; HS = 0; HSTR = 5120
    A('v_lshrrev_b32 v3, 4, v2\nv_and_b32 v4, 15, v2')
    A('s_mul_i32 s70, s21, 5120')
    A('s_lshr_b32 s50, s18, 1\ns_and_b32 s51, s18, 1')
    A(f's_mul_i32 s48, s51, 1792\nv_add_u32 v10, s48, v5\nv_add_u32 v11, 1024, v10\nv_mov_b32 v15, {OOB}\nv_cmp_lt_u32 vcc, 40, v2\ns_nop 1\nv_cndmask_b32 v11, v11, v15, vcc')
    A('v_mov_b32 v19, v5\nv_add_u32 v20, 1024, v5\nv_mul_u32_u24 v21, 80, v4\nv_lshl_add_u32 v12, v3, 5, v21\nv_lshlrev_b32 v13, 3, v4')
    A('v_bfe_u32 v14, v2, 2, 2\nv_lshl_add_u32 v14, v3, 3, v14\nv_mul_u32_u24 v14, 160, v14\nv_and_b32 v15, 3, v2\nv_lshl_add_u32 v14, v15, 3, v14\nv_add_u32 v14, s70, v14')
    A(f'v_add_u32 v19, s70, v19\nv_add_u32 v20, s70, v20\ns_mul_i32 s48, s51, 5120\nv_add_u32 v12, s48, v12\nv_add_u32 v13, s48, v13')
    A('v_cmp_gt_u32 s[60:61], 3, v3\nv_cmp_gt_u32 s[62:63], 2, v3\nv_cmp_gt_u32 s[64:65], 41, v2')
    A(f's_mul_i32 s48, s51, 5\ns_lshr_b32 s49, s21, 1\ns_mul_i32 s49, s49, {RPK - 40960}\ns_add_u32 s49, s49, 40960')
    for mt in range(2):
        A(f'v_add3_u32 v15, v3, s48, {4*mt}\nv_lshrrev_b32 v16, 1, v15\nv_mul_u32_u24 v16, 1280, v16\nv_and_b32 v15, 1, v15\nv_lshl_add_u32 v16, v15, 3, v16')
        A(f'v_lshl_add_u32 v16, v4, 4, v16\nv_add_u32 v{17+mt}, s49, v16')
    A('s_mul_i32 s48, s51, 40\ns_add_u32 s48, s48, s49\ns_add_u32 s48, s48, 6400\nv_lshlrev_b32 v22, 2, v2\nv_add_u32 v22, s48, v22')
    A('s_mul_i32 s48, s51, 3328\ns_add_u32 s48, s48, s49\nv_add_u32 v21, s48, v5\nv_lshlrev_b32 v15, 10, v3\nv_lshl_add_u32 v15, v4, 4, v15')
    A(f's_lshr_b32 s48, s18, 3\ns_mul_i32 s48, s48, 5\ns_mul_i32 s49, s19, 20\ns_add_u32 s48, s48, s49\ns_mul_i32 s48, s48, 5120\ns_and_b32 s49, s50, 3\ns_lshl_b32 s49, s49, 8\ns_add_u32 s48, s48, s49')
    A(f's_mul_i32 s49, s51, 13312\ns_add_u32 s48, s48, s49\ns_add_u32 s55, s48, {M_OFF}\ns_add_u32 s56, s55, 4096\ns_add_u32 s57, s55, 8192\ns_add_u32 s48, s55, 12288')
    A(f's_lshl_b32 s54, s19, 11\ns_lshl_b32 s49, s50, 7\ns_add_u32 s54, s54, s49\ns_add_u32 s54, s54, {ZB_OFF}')
    A(f's_cmp_eq_u32 s51, 0\ns_cselect_b32 s54, s48, s54\ns_movk_i32 s48, {ZM}\ns_cselect_b32 s58, 0xffff, s48\ns_mov_b32 s59, 0')
    A('s_and_b32 s76, s88, 0xfff\ns_bfe_u32 s77, s88, 0xc000c\ns_lshr_b64 s[78:79], s[88:89], 24\ns_xor_b32 s78, s78, s88\ns_bfe_u32 s79, s78, 0xc000c\ns_and_b32 s78, s78, 0xfff')
    A(f's_mul_i32 s52, s50, {16*KVS}\ns_lshr_b32 s49, s21, 1\ns_mul_i32 s49, s49, {8*KVS}\ns_add_u32 s52, s52, s49\ns_add_u32 s52, s52, {KVP_OFF}')
    if ZEARLY:
        for reg, add in ((13, 0), (22, 1)):
            A(f'v_and_b32 v8, 7, v2\nv_lshl_add_u32 v8, v8, 1, {add}\nv_lshlrev_b32 v9, 4, v8\nv_add_u32 v{reg}, 1600, v9\nv_add_u32 v9, {1600 + HSTR - 80}, v9\nv_cmp_lt_u32 vcc, 4, v8\ns_nop 1\nv_cndmask_b32 v{reg}, v{reg}, v9, vcc')
    A(f's_lshl_b32 s48, s21, 2\nv_add_u32 v23, s48, v0\nv_mov_b32 v244, 1\nv_mov_b32 v245, 2\nv_mov_b32 v246, 3')
    A('s_mov_b64 exec, 1\nds_write_b32 v23, v244 offset:192\ns_mov_b64 exec, -1')
    lds_wait(A, 23, 112, 248, 1, four=False, sleep=1)
    for t in range(5):
        A(f'ds_read_b64_tr_b16 {vr(224+4*t,2)}, v14 offset:{32*t}\nds_read_b64_tr_b16 {vr(226+4*t,2)}, v14 offset:{32*t + 640}')
    stamp(A, 25)
    lds_wait(A, 0, 72, 248, 1, four=False, sleep=2)
    if KVACK: A('s_waitcnt vmcnt(0)')
    if GDELAY: A(f's_sleep {GDELAY}')
    stamp(A, 26)
    A('s_mov_b32 s96, 0')
    A('L_pa_gather:')
    for p in range(8):
        if PAX:
            A(f's_lshl_b32 s53, s69, 1\ns_add_u32 s53, s53, {p}\ns_and_b32 s53, s53, 7\ns_mul_i32 s53, s53, {KVS}\ns_add_u32 s53, s53, s52')
            if p == 2 and PAX == 2: A('s_waitcnt vmcnt(0)')
        else:
            A(f's_add_u32 s53, s52, {KVS*p}')
        for ldi in range(2):
            A(f'buffer_load_dwordx4 {vr(24 + 8*p + 4*ldi)}, v{10+ldi}, s[40:43], s53 offen sc1')
    for p in range(8):
        A(f's_waitcnt vmcnt({2*(7-p)})')
        for r in range(24 + 8 * p, 32 + 8 * p):
            A(f'v_xor_b32 v{r}, s{76 + (r & 3)}, v{r}')
        for ldi in range(2):
            r = 24 + 8 * p + 4 * ldi; d = 8 + ldi
            if p == 0:
                A(f'v_or3_b32 v{d}, v{r}, v{r+1}, v{r+2}\nv_or_b32 v{d}, v{d}, v{r+3}')
            else:
                A(f'v_or3_b32 v{d}, v{d}, v{r}, v{r+1}\nv_or3_b32 v{d}, v{d}, v{r+2}, v{r+3}')
        if p:
            for j in range(0, 8, 2):
                A(f'v_pk_add_f32 {vr(24+j,2)}, {vr(24+j,2)}, {vr(24+8*p+j,2)}')
    A('v_cndmask_b32 v9, 0, v9, s[64:65]\nv_or_b32 v8, v8, v9\nv_and_b32 v8, 0xfff, v8\nv_cmp_ne_u32 vcc, 0, v8')
    A('s_cbranch_vccz L_pa_got')
    stamp(A, 35)
    A(f's_sleep {PSLEEP}\ns_add_u32 s96, s96, 1\ns_cmp_lt_u32 s96, {SPIN_MAX}\ns_cbranch_scc1 L_pa_gather')
    A('L_pa_got:')
    if STAMP: A('v_writelane_b32 v1, s96, 36')
    stamp(A, 27)
    A('ds_write_b128 v19, v[24:27]\nds_write_b128 v20, v[28:31]')
    A('s_mov_b64 exec, 1\nds_write_b32 v23, v244 offset:80\ns_mov_b64 exec, -1')
    lds_wait(A, 0, 80, 248, 1, sleep=0)
    stamp(A, 28)
    if ZEARLY:
        A('s_cmp_eq_u32 s51, 0\ns_cbranch_scc1 L_pa_noz')
        A(f'ds_read_b128 v[64:67], v13\nds_read_b128 v[68:71], v22\nds_read_b128 v[72:75], v13 offset:{2*HSTR}\nds_read_b128 v[76:79], v22 offset:{2*HSTR}\ns_waitcnt lgkmcnt(0)')
        for j in range(0, 8, 2):
            A(f'v_pk_add_f32 {vr(64+j,2)}, {vr(64+j,2)}, {vr(72+j,2)}')
        for j in range(4):
            A(f'v_cvt_pk_bf16_f32 v{80+j}, v{64+2*j}, v{65+2*j}')
        A('s_mov_b64 exec, 0xff\nbuffer_store_dwordx4 v[80:83], v15, s[40:43], s54 offen sc1\ns_mov_b64 exec, -1')
        A('L_pa_noz:')
    for w in range(2):
        for mt in range(2):
            A(f'ds_read_b128 {vr(24+20*w+8*mt)}, v12 offset:{2*w*HSTR + 1280*mt}\nds_read_b128 {vr(28+20*w+8*mt)}, v12 offset:{2*w*HSTR + 1280*mt + 16}')
        if not ZEARLY: A(f'ds_read_b64 {vr(40+20*w,2)}, v13 offset:{2*w*HSTR + 1600}')
    A('s_waitcnt lgkmcnt(0)')
    for j in range(0, 18, 2):
        A(f'v_pk_add_f32 {vr(24+j,2)}, {vr(24+j,2)}, {vr(44+j,2)}')
    for mt in range(2):
        b = 24 + 8 * mt
        for j in range(4):
            A(f'v_cvt_pk_bf16_f32 v{b+j}, v{b+2*j}, v{b+2*j+1}')
        for j in range(4):
            A(f'v_cndmask_b32 v{b+j}, 0, v{b+j}, {"s[60:61]" if j < 2 else "s[62:63]"}')
    A('v_cvt_pk_bf16_f32 v40, v40, v41\ns_nop 0')
    for mt in range(2):
        for t in range(5):
            A(f'v_mfma_f32_16x16x32_bf16 {vr(64+20*mt+4*t)}, {vr(24+8*mt)}, {vr(224+4*t)}, 0')
    A('s_mov_b64 exec, 0x3ff\nds_write_b32 v22, v40\ns_mov_b64 exec, -1\ns_nop 0' if not ZEARLY else 's_nop 3')
    for mt in range(2):
        if mt == 1: A('s_mov_b64 exec, 0xffff')
        for t in range(5):
            b = 64 + 20 * mt + 4 * t
            A(f'v_cvt_pk_bf16_f32 v{b}, v{b}, v{b+1}\nv_cvt_pk_bf16_f32 v{b+1}, v{b+2}, v{b+3}')
            A(f'ds_write_b64 v{17+mt}, {vr(b,2)} offset:{256*t}')
    A('s_mov_b64 exec, 1\nds_write_b32 v23, v245 offset:80\ns_mov_b64 exec, -1')
    lds_wait(A, 0, 80, 248, 2, sleep=0)
    for i in range(4):
        A(f'ds_read_b128 {vr(24+4*i)}, v21 offset:{1024*i}')
    for i in range(3):
        A(f's_waitcnt lgkmcnt({3-i})\nbuffer_store_dwordx4 {vr(24+4*i)}, v15, s[40:43], s{55+i} offen sc1')
    if ZEARLY: A('s_cmp_lg_u32 s51, 0\ns_cbranch_scc1 L_pa_no4')
    A('s_waitcnt lgkmcnt(0)\ns_mov_b64 exec, s[58:59]\nbuffer_store_dwordx4 v[36:39], v15, s[40:43], s54 offen sc1')
    A('L_pa_no4:')
    stamp(A, 29)
    if MACK: A('s_waitcnt vmcnt(0)')
    A('s_mov_b64 exec, 1\nds_write_b32 v23, v246 offset:80\ns_mov_b64 exec, -1')
    lds_wait(A, 0, 80, 248, 3, sleep=1)
    stamp(A, 30)


XCH = [0, 15360, 30720, WBASE + 4 * WSLOT]
def gen_awave(A):
    AC = 16; PQ = 96; MB = 176
    def a2(rt, t): return AC + 20 * rt + 4 * t
    def pq(kk, rt): return PQ + 16 * kk + 4 * rt
    A('s_load_dwordx2 s[8:9], s[0:1], 64')
    A(f'v_mov_b32 v0, {CT}')
    A('v_lshrrev_b32 v3, 4, v2\nv_and_b32 v4, 15, v2\nv_lshlrev_b32 v5, 4, v2\nv_lshlrev_b32 v6, 3, v2\nv_add_u32 v7, 4096, v5')
    A('s_cmp_lg_u32 s20, 0\ns_cbranch_scc1 L_a_g')
    A('s_and_b32 s69, s2, 7\ns_lshl_b32 s69, s69, 3\ns_bfe_u32 s48, s2, 0x30003\ns_add_u32 s69, s69, s48')
    A('s_lshr_b32 s18, s69, 2\ns_lshl_b32 s18, s18, 1\ns_and_b32 s48, s21, 1\ns_add_u32 s18, s18, s48\ns_and_b32 s19, s69, 3\ns_lshl_b32 s19, s19, 1\ns_lshr_b32 s48, s21, 1\ns_add_u32 s19, s19, s48')
    phase_a(A)
    A('s_branch L_a_sig')
    A('L_a_g:')
    get_epoch(A, 0, 8)
    set_flag(A, 74, 8)
    A('L_a_sig:')
    A(f'v_mov_b32 v8, 1\ns_lshl_b32 s48, s21, 2\nv_add_u32 v9, s48, v0\ns_mov_b64 exec, 1\nds_write_b32 v9, v8 offset:48\ns_mov_b64 exec, -1')
    stamp(A, 5)
    A('s_waitcnt lgkmcnt(0)')
    srd(A, 28, 8, 2621440)
    A('L_a_main:')
    A(f's_setprio {APRIO}')
    p2_ids(A)
    A(f's_lshr_b32 s48, s18, 1\ns_lshl_b32 s59, s48, {FSH}\ns_add_u32 s59, s59, {FG_OFF}')
    A('s_mul_i32 s48, s21, 5\ns_mul_i32 s54, s18, 68\ns_add_u32 s54, s54, s48\ns_add_u32 s54, s54, 48\ns_lshl_b32 s54, s54, 12')
    A(f's_mul_i32 s55, s19, 20\ns_add_u32 s55, s55, s48\ns_mul_i32 s55, s55, 5120\ns_add_u32 s55, s55, {M_OFF}')
    A(f's_lshl_b32 s53, s18, 8\ns_add_u32 s53, s53, {G_OFF}')
    A(f's_lshl_b32 s52, s19, 11\ns_lshl_b32 s49, s21, 9\ns_add_u32 s52, s52, s49\ns_add_u32 s52, s52, {ZB_OFF}')
    A(f's_lshl_b32 s58, s19, 11\ns_add_u32 s58, s58, {ZB_OFF}')
    A('v_lshlrev_b32 v14, 2, v4\nv_lshlrev_b32 v15, 7, v3')
    A('v_lshrrev_b32 v12, 2, v4\nv_cmp_eq_u32 s[60:61], v12, v3\nv_and_b32 v12, 1, v4\nv_cmp_eq_u32 s[62:63], 0, v12')
    A('s_and_b64 s[64:65], s[60:61], s[62:63]\ns_andn2_b64 s[66:67], s[60:61], s[62:63]')
    A(f's_mov_b32 s68, {EPS}\ns_mov_b32 s69, 0xffff0000')
    Q = []
    def ld(tag, txt):
        A(txt); Q.append(tag)
    def wait(tag):
        last = max(k for k, t in enumerate(Q) if t == tag)
        A(f's_waitcnt vmcnt({len(Q) - 1 - last})')
    def issueM(kk):
        A(f's_add_u32 s57, s55, {5120*kk}')
        for t in range(4):
            ld(('M', kk), f'buffer_load_dwordx4 {vr(mb(kk,t))}, v5, s[40:43], s57 offen offset:{1024*t} sc1')
        ld(('M', kk), f'buffer_load_dwordx4 {vr(mb(kk,4))}, v7, s[40:43], s57 offen sc1')
    ZR = 236
    ZIMG = CT + 1536
    mbuf = {0: MB, 1: MB + 20, 2: MB + 40, 3: MB, 4: MB + 20} if not M4 else {0: MB, 1: MB + 20, 2: MB + 40, 3: ZR, 4: MB}
    def mb(kk, t): return mbuf[kk] + 4 * t
    for j in range(4):
        A(f's_add_u32 s48, s21, {j+1}\ns_and_b32 s{70+j}, s48, 3')
    A(f'v_lshrrev_b32 v8, 2, v2\nv_and_b32 v9, 3, v2\nv_mul_u32_u24 v24, 80, v8\nv_lshl_add_u32 v24, v9, 4, v24\nv_add_u32 v24, {ZIMG}, v24\nv_lshlrev_b32 v26, 7, v8\nv_lshl_add_u32 v26, v9, 4, v26')
    A(f's_mul_i32 s78, s19, 102400\ns_and_b32 s49, s18, {7 if P84 else 3}\ns_mul_i32 s49, s49, {12800 if P84 else 25600}\ns_add_u32 s78, s78, s49\ns_mul_i32 s49, s21, {3200 if P84 else 6400}\ns_add_u32 s78, s78, s49\ns_add_u32 s78, s78, {M_OFF}\nv_lshlrev_b32 v27, 7, v2')
    lds_wait(A, 0, 72, 8, 1, four=False, sleep=2)
    A('s_cmp_lg_u32 s21, 2\ns_cbranch_scc1 L_a_nopollg')
    A('s_cmp_eq_u32 s20, 0\ns_cbranch_scc1 L_a_nopollg')
    lds_wait(A, 0, 48, 8, 1, sleep=2)
    gpoll(A, 59, 8)
    A('L_a_nopollg:')
    if FINEG:
        A('s_lshl_b32 s74, 3, s21\ns_lshr_b32 s74, s74, 1')
    else:
        A('s_mov_b32 s74, 15')
    lds_wait_mask(A, 0, 64, 8, 's74')
    stamp(A, 11)
    if COOP_P:
        if KVFAST: A('s_cmp_eq_u32 s20, 0\ns_cbranch_scc1 L_a_nocp')
        A('s_mul_i32 s49, s19, 2560\ns_add_u32 s48, s54, s49' if not P84 else 's_and_b32 s49, s19, 3\ns_mul_i32 s49, s49, 5120\ns_add_u32 s48, s54, s49')
        A('v_lshlrev_b32 v8, 7, v2\n' + ('s_mov_b64 exec, 0xfffff' if not P84 else 's_mov_b32 exec_hi, 0xff') + '\nbuffer_load_dword v9, v8, s[40:43], s48 offen sc1\ns_mov_b64 exec, -1\ns_waitcnt vmcnt(0)')
        A('L_a_nocp:')
    stamp(A, 21)
    for j in range(4):
        if j == ZJ:
            A('s_cmp_lg_u32 s21, 1\ns_cbranch_scc1 L_a_nz1')
            A('buffer_load_dwordx4 v[16:19], v26, s[40:43], s58 offen sc1\nbuffer_load_dwordx4 v[20:23], v26, s[40:43], s58 offen offset:16 sc1')
            A('L_a_nz1:')
        A(f's_lshl_b32 s48, s{70+j}, 10\ns_add_u32 s56, s54, s48')
        for kk in range(5 if j < NRC else 0):
            A(f'buffer_load_dwordx4 {vr(pq(kk,j))}, v5, s[40:43], s56 offen {LL}')
            if kk < 4: A('s_add_u32 s56, s56, 4096')
    stamp(A, 22)
    lds_wait_mask(A, 0, 64, 8, 8)
    stamp(A, 23)
    for j in range(4):
        A(f's_lshl_b32 s48, s{70+j}, 6\ns_add_u32 s56, s53, s48\nbuffer_load_dword v{10+j}, v14, s[40:43], s56 offen {LL}')
    A('s_cmp_lg_u32 s21, 1\ns_cbranch_scc1 L_a_oth2')
    if KVFAST == 2: A('s_cmp_eq_u32 s20, 0\ns_cbranch_scc1 L_a_nogate')
    if PQ_AT is not None: lds_wait(A, 0, 144, 16, 1, sleep=1)
    A('L_a_nogate:')
    stamp(A, 24)
    if ZJ is None: A('buffer_load_dwordx4 v[16:19], v26, s[40:43], s58 offen sc1\nbuffer_load_dwordx4 v[20:23], v26, s[40:43], s58 offen offset:16 sc1')
    if not ZEARLY: A('v_mov_b32 v8, 1\ns_mov_b64 exec, 1\nds_write_b32 v0, v8 offset:76\ns_mov_b64 exec, -1')
    A('L_a_oth2:')
    if not ZEARLY:
        lds_wait(A, 0, 76, 8, 1, four=False, sleep=2)
        A('s_mov_b32 exec_hi, 0x3ffff\nbuffer_load_dword v95, v27, s[40:43], s78 offen sc1\ns_mov_b32 exec_hi, -1')
    A('s_cmp_lg_u32 s21, 1\ns_cbranch_scc1 L_a_nopoll')
    A(f's_mov_b32 s96, 0\ns_waitcnt vmcnt({0 if ZJ is None else 4 + 5 * (4 - ZJ)})\ns_branch L_a_zchk')
    A('L_a_zpoll:')
    A('buffer_load_dwordx4 v[16:19], v26, s[40:43], s58 offen sc1\nbuffer_load_dwordx4 v[20:23], v26, s[40:43], s58 offen offset:16 sc1\ns_waitcnt vmcnt(0)')
    A('L_a_zchk:')
    A('v_max3_u32 v9, v16, v18, v20\nv_max_u32 v9, v9, v22\nv_cmp_eq_u32 vcc, -1, v9')
    A('s_cbranch_vccz L_a_zok')
    A(f's_sleep {MSLEEP}\ns_add_u32 s96, s96, 1\ns_cmp_lt_u32 s96, {SPIN_MAX}\ns_cbranch_scc1 L_a_zpoll')
    A('L_a_zok:')
    if STAMP: A('v_writelane_b32 v1, s96, 36')
    A('ds_write_b128 v24, v[16:19]\nds_write_b128 v24, v[20:23] offset:16')
    A('v_mov_b32 v8, 1\ns_mov_b64 exec, 1\nds_write_b32 v0, v8 offset:68\ns_mov_b64 exec, -1')
    A('L_a_nopoll:')
    A(f's_mul_i32 s48, s21, 320\ns_add_u32 s48, s48, {ZIMG}\nv_mul_u32_u24 v15, 80, v3\nv_add_u32 v15, s48, v15')
    lds_wait(A, 0, 68, 8, 1, four=False, sleep=2)
    stamp(A, 10)
    for kk in range(5):
        A(f'ds_read_b128 {vr(ZR+4*kk)}, v15 offset:{16*kk}')
    if SPEC_M:
        A(f's_waitcnt vmcnt({0 if ZEARLY else 1})')
        if ZEARLY: A('v_mov_b32 v94, v27')
    elif COOP_M:
        A(f's_mul_i32 s48, s19, 102400\ns_and_b32 s49, s18, 3\ns_mul_i32 s49, s49, 25600\ns_add_u32 s48, s48, s49\ns_mul_i32 s49, s21, 6400\ns_add_u32 s48, s48, s49\ns_add_u32 s48, s48, {M_OFF}')
        A('v_lshlrev_b32 v8, 7, v2\ns_mov_b32 exec_hi, 0x3ffff\nbuffer_load_dword v9, v8, s[40:43], s48 offen sc1\ns_mov_b32 exec_hi, -1')
    else:
        issueM(0); issueM(1); issueM(2)
    A('s_waitcnt lgkmcnt(0)')
    for kk in range(5):
        for j in range(4):
            m = 's[66:67]' if (4 * kk + j) >= 10 else 's[64:65]'
            A(f'v_cndmask_b32 v{ZR+4*kk+j}, 0, v{ZR+4*kk+j}, {m}')
    den = [AC + 4 * rt for rt in range(4)]
    if not SPEC_M: A(f's_waitcnt vmcnt({1 if COOP_M else 15})')
    stamp(A, 17)
    A('s_nop 0')
    for kk in range(5):
        for rt in range(NRC):
            d = vr(den[rt])
            A(f'v_mfma_f32_16x16x32_bf16 {d}, {vr(ZR+4*kk)}, {vr(pq(kk,rt))}, {d if kk else 0}')
    A('s_nop 7')
    SC = ZR; T0 = ZR + 8
    for rt in range(NRC):
        A(f'v_add_f32 v{den[rt]}, s68, v{den[rt]}\nv_add_f32 v{den[rt]+1}, s68, v{den[rt]+1}')
    for rt in range(NRC):
        A(f'v_rcp_f32 v{den[rt]}, v{den[rt]}\nv_rcp_f32 v{den[rt]+1}, v{den[rt]+1}')
    A('s_nop 0')
    for rt in range(NRC):
        A(f'v_mul_f32 v{SC+2*rt}, v{10+rt}, v{den[rt]}\nv_mul_f32 v{SC+2*rt+1}, v{10+rt}, v{den[rt]+1}')
    def norm_ops(kk):
        L = []
        for rt in range(NRC):
            r = pq(kk, rt)
            for j in range(4):
                L += [f'v_lshlrev_b32 v{T0+2*j}, 16, v{r+j}', f'v_and_b32 v{T0+2*j+1}, s69, v{r+j}']
            for j in range(4):
                odd = 1 if (4 * kk + j) >= 10 else 0
                L += [f'v_mul_f32 v{T0+2*j}, v{SC+2*rt+odd}, v{T0+2*j}', f'v_mul_f32 v{T0+2*j+1}, v{SC+2*rt+odd}, v{T0+2*j+1}']
            for j in range(4):
                L += [f'v_cvt_pk_bf16_f32 v{r+j}, v{T0+2*j}, v{T0+2*j+1}']
        return L
    stamp(A, 20)
    if ZEARLY:
        for kk in range(NLEAD):
            if kk == ZC: A(('s_mov_b32 exec_hi, 0x3ffff' if not P84 else 's_mov_b64 exec, 0x1ffffff') + '\nbuffer_load_dword v95, v94, s[40:43], s78 offen sc1\ns_mov_b64 exec, -1')
            if kk == ZM0:
                A('s_waitcnt vmcnt(0)')
                issueM(0); issueM(1)
            if M4 and kk == ZM0 + 1: issueM(2)
            for l in norm_ops(kk): A(l)
        if not (M4 and ZM0 + 1 < NLEAD): issueM(2)
        if M4: issueM(3)
    else:
        A('s_waitcnt vmcnt(0)')
        issueM(0); issueM(1)
        for kk in range(NLEAD):
            for l in norm_ops(kk): A(l)
            if kk == 0: issueM(2)
    stamp(A, 6)
    A('v_sub_f32 v14, 1.0, v13')
    for j in range(3):
        A(f's_mul_i32 s48, s{70+j}, 15360\ns_cmp_eq_u32 s{70+j}, 3\ns_cselect_b32 s48, {XCH[3]}, s48\ns_add_u32 s48, s48, {(2-j)*5120}\nv_add_u32 v{10+j}, s48, v5')
    A(f's_lshl_b32 s48, s21, 11\ns_add_u32 s48, s48, {XCH[3] + 15360 - 3072}\nv_add_u32 v13, s48, v5')
    A(f's_mul_i32 s48, s21, 5120\ns_add_u32 s48, s48, {WBASE + 2*WSLOT}\nv_add_u32 v15, s48, v5\ns_lshl_b32 s48, s21, 2\nv_add_u32 v6, s48, v0')
    def chk_ops(kk):
        m0 = mb(kk, 0)
        return [f'v_max3_u32 v8, v{m0}, v{m0+2}, v{m0+4}'] + [f'v_max3_u32 v8, v8, v{m0+2*k}, v{m0+2*k+2}' for k in (3, 5, 7)] + \
               [f'v_max_u32 v8, v8, v{m0+18}', 'v_cmp_eq_u32 vcc, -1, v8']
    for kk in range(5):
        nxt = norm_ops(kk + NLEAD) if kk + NLEAD < 5 else []
        if kk == 0 or not CHKI:
            wait(('M', kk))
            for l in chk_ops(kk): A(l)
        A(f's_cbranch_vccnz L_a_mre{kk}')
        A(f'L_a_mok{kk}:')
        stamp(A, 31 + kk)
        late = chk_ops(kk + 1) if CHKI and kk < 4 else []
        if kk == (2 if CHKI else 4):
            lds_wait(A, 0, 96, PQ, 1, sleep=1)
        if kk == 4:
            pass
        if NRC == 2:
            lds_wait(A, 6, 160, 8, kk + 1, four=False, sleep=1)
            A(f'ds_read_b128 {vr(pq(kk,2))}, v15 offset:{1024*kk}\nds_read_b128 {vr(pq(kk,3))}, v15 offset:{WSLOT + 1024*kk}')
        for rt in range(4):
            if NRC == 2 and rt == 2:
                A('s_waitcnt lgkmcnt(0)')
                if kk == 4:
                    A('v_mov_b32 v8, 1\ns_mov_b64 exec, 1\nds_write_b32 v6, v8 offset:176\ns_mov_b64 exec, -1')
            for t in range(5):
                d = vr(a2(rt, t))
                A(f'v_mfma_f32_16x16x32_bf16 {d}, {vr(mb(kk,t))}, {vr(pq(kk,rt))}, {d if kk else 0}')
                for _ in range(NRC):
                    if nxt: A(nxt.pop(0))
                if late and 5 * rt + t >= 13:
                    if 5 * rt + t == 13: wait(('M', kk + 1))
                    A(late.pop(0))
                if kk == 4 and rt >= 2:
                    A(f'ds_write_b128 v{10+rt-2}, {vr(a2(rt-2,t))} offset:{t*1024}')
        if M4:
            if kk == 0: issueM(4)
        elif kk < 2:
            issueM(kk + 3)
    stamp(A, 12)
    for t in range(5):
        A(f'ds_write_b128 v12, {vr(a2(2,t))} offset:{t*1024}')
    A(f's_lshl_b32 s48, s21, 8\nv_lshlrev_b32 v8, 2, v2\nv_add_u32 v8, s48, v8\nds_write_b32 v8, v14 offset:{46080}')
    for t in (3, 4):
        A(f'ds_write_b128 v13, {vr(a2(3,t))} offset:{t*1024}')
    OWN = a2(3, 0)
    A(f's_mul_i32 s50, s21, 15360\ns_cmp_eq_u32 s21, 3\ns_cselect_b32 s50, {XCH[3]}, s50')
    A(f's_mul_i32 s48, s21, {WSLOT}\ns_add_u32 s48, s48, {WBASE}\nv_add_u32 v8, s48, v5\nv_mov_b32 v15, v14\nv_add_u32 v7, s50, v5')
    A('s_lshl_b32 s48, s18, 6\ns_lshl_b32 s49, s21, 4\ns_add_u32 s48, s48, s49\nv_add_u32 v9, s48, v4\nv_mul_u32_u24 v9, 1280, v9\nv_lshl_add_u32 v9, v3, 3, v9\ns_mul_i32 s48, s19, 160')
    A('s_waitcnt lgkmcnt(0)')
    A('s_barrier')
    stamp(A, 13)
    for r in range(4):
        for t in range(3):
            A(f'ds_read_b128 {vr(PQ+12*r+4*t)}, v8 offset:{r*5120 + 1024*t}')
    A('s_waitcnt lgkmcnt(6)')
    for r in range(3):
        for t in range(3):
            A(f'ds_read_b128 {vr(AC+12*r+4*t)}, v7 offset:{r*5120 + 1024*t}')
    for k in range(0, 12, 2):
        A(f'v_pk_add_f32 {vr(PQ+k,2)}, {vr(PQ+k,2)}, {vr(PQ+12+k,2)}')
    A('s_waitcnt lgkmcnt(9)')
    for k in range(0, 12, 2):
        A(f'v_pk_add_f32 {vr(PQ+24+k,2)}, {vr(PQ+24+k,2)}, {vr(PQ+36+k,2)}')
    for k in range(0, 12, 2):
        A(f'v_pk_add_f32 {vr(PQ+k,2)}, {vr(PQ+k,2)}, {vr(PQ+24+k,2)}')
    for k in range(0, 12, 2):
        A(f'v_pk_fma_f32 {vr(OWN+k,2)}, {vr(PQ+k,2)}, v[14:15], {vr(OWN+k,2)}')
    for sl in range(3):
        A(f's_waitcnt lgkmcnt({6 - 3*sl})')
        for k in range(0, 12, 2):
            A(f'v_pk_add_f32 {vr(OWN+k,2)}, {vr(OWN+k,2)}, {vr(AC+12*sl+k,2)}')
    for t in range(3):
        b = OWN + 4 * t
        A(f'v_cvt_pk_bf16_f32 v{b}, v{b}, v{b+1}\nv_cvt_pk_bf16_f32 v{b+1}, v{b+2}, v{b+3}')
        A(f'buffer_store_dwordx2 {vr(b,2)}, v9, s[28:31], s48 offen offset:{32*t}')
    stamp(A, 14)
    finish(A)
    for kk in range(5):
        A(f'L_a_mre{kk}:')
        A('s_mov_b32 s96, 0')
        A(f'L_a_mrl{kk}:')
        A('s_sleep 4')
        issueM(kk)
        A('s_waitcnt vmcnt(0)')
        for l in chk_ops(kk): A(l)
        A(f's_cbranch_vccz L_a_mok{kk}')
        A(f's_add_u32 s96, s96, 1\ns_cmp_lt_u32 s96, {SPIN_MAX}\ns_cbranch_scc1 L_a_mrl{kk}')
        A(f's_branch L_a_mok{kk}')


def gen_loader(A):
    A.c('s67 = lw ; role constants: s68 strideA, s60 cA, s61 cB, s62 xB, s63 c4, s64 hi-mult')
    A('s_sub_u32 s67, s21, 4')
    A('s_mul_i32 s48, s19, 320\ns_add_u32 s48, s48, 1280\ns_and_b32 s57, s19, 1\ns_lshl_b32 s58, s57, 6\ns_add_u32 s58, s58, s48')
    A('s_xor_b32 s57, s57, 1\ns_lshl_b32 s57, s57, 8\ns_add_u32 s57, s57, s48\ns_add_u32 s59, s58, 1280')
    A('s_lshl_b32 s48, s22, 8\ns_lshl_b32 s49, s22, 7\ns_movk_i32 s56, 3072')
    A('s_cmp_eq_u32 s20, 0')
    A('s_cselect_b32 s68, 3840, s56\ns_cselect_b32 s60, s58, s48\ns_cselect_b32 s61, s59, s48\ns_cselect_b32 s62, 1, 0\ns_cselect_b32 s63, s57, s49\ns_cselect_b32 s64, 1280, 64')
    A(f's_cmp_lg_u32 s91, 0\ns_cselect_b32 s63, {OOB}, s63')
    A(f'v_mov_b32 v29, {OOB}\ns_lshl_b32 s75, s68, 5\ns_lshl_b32 s69, s18, 2\ns_add_u32 s69, s69, s19\nv_and_b32 v3, 31, v2\nv_lshrrev_b32 v4, 5, v2')
    A('s_movk_i32 s48, 3072\ns_cmp_eq_u32 s67, 1\ns_cselect_b32 s48, 3840, s48\ns_lshr_b32 s49, s48, 7\ns_lshl_b32 s85, s48, 6\ns_movk_i32 s56, 128')
    A('s_cmp_eq_u32 s67, 0\ns_cselect_b32 s48, 40960, s48\ns_cselect_b32 s49, 32, s49\ns_cselect_b32 s85, 128, s85\ns_cselect_b32 s56, 1280, s56\ns_mul_i32 s48, s48, s69')
    A('v_mul_u32_u24 v5, s56, v3\nv_mul_u32_u24 v6, s85, v4\nv_add3_u32 v5, v5, v6, s48\nv_cmp_gt_u32 vcc, s49, v3')
    st0 = sum(EV[m][0] << (4 * m) for m in EV)
    A(f's_lshl_b32 s56, s20, 2\ns_lshr_b32 s56, {hex(st0)}, s56\ns_and_b32 s56, s56, 15\nv_cndmask_b32 v30, v29, v5, vcc\ns_mul_i32 s56, s56, s85')
    A('s_mov_b32 s26, 2621440\ns_mov_b32 s27, 0x20000\ns_mov_b32 s31, 0x20000\ns_mov_b32 s35, 0x20000\ns_mov_b32 s39, 0x20000\ns_mov_b32 s83, 0x20000\ns_mov_b32 s48, 1966080\ns_mov_b32 s38, 2457600')
    A('s_cmp_eq_u32 s20, 0\ns_cselect_b32 s30, s38, s48\ns_mov_b32 s34, s30')
    A(f'v_mov_b32 v38, {CT}\nv_lshl_add_u32 v39, v2, 2, v38\nv_mov_b32 v44, 0\ns_lshl_b32 s71, s67, 8\nds_write_b32 v39, v44\nv_add_u32 v39, s71, v39\nds_write_b32 v39, v44 offset:256')
    A(f'v_and_b32 v39, 3, v2\nv_lshlrev_b32 v39, 8, v39\nv_add_u32 v39, {CT+256}, v39\ns_lshl_b32 s71, s67, 2\ns_add_u32 s71, s71, {CT}')
    A('s_cmp_eq_u32 s20, 0')
    A('s_waitcnt lgkmcnt(0)')
    A('s_mov_b32 s24, s4\ns_mov_b32 s25, s5\ns_mov_b32 s36, s6\ns_mov_b32 s37, s7')
    A('s_cselect_b32 s28, s6, s8\ns_cselect_b32 s29, s7, s9\ns_cselect_b32 s32, s6, s10\ns_cselect_b32 s33, s7, s11')
    A('s_cmp_eq_u32 s67, 2\ns_cselect_b32 s80, s8, s10\ns_cselect_b32 s81, s9, s11')
    A('s_cmp_eq_u32 s67, 1\ns_cselect_b32 s80, s6, s80\ns_cselect_b32 s81, s7, s81\ns_cselect_b32 s82, s38, s48')
    A('s_cmp_eq_u32 s67, 0\ns_cselect_b32 s80, s4, s80\ns_cselect_b32 s81, s5, s81\ns_cselect_b32 s82, s26, s82')
    stamp(A, 1)
    def issueW():
        for L in range(5):
            sr = 28 if L < 2 else (32 if L < 4 else 36)
            dma(A, f's_add_u32 m0, s77, {L*1024}', 10 + L, sr, 70 if L < 4 else 72)
        A('s_add_u32 s70, s70, s75\ns_add_u32 s72, s72, s76')
        A(f's_add_u32 s77, s77, {WSLOT}\ns_cmp_ge_u32 s77, {WBASE + NW*WSLOT}\ns_cselect_b32 s48, {NW*WSLOT}, 0\ns_sub_u32 s77, s77, s48')
    def issueX():
        for i in range(4):
            dma(A, f's_add_u32 m0, s78, {i*1024}', 16 + i, 24, 74)
        A('s_add_u32 s74, s74, 128')
        A(f's_add_u32 s78, s78, {XSLOT}\ns_cmp_ge_u32 s78, {NX*XSLOT}\ns_cselect_b32 s48, {NX*XSLOT}, 0\ns_sub_u32 s78, s78, s48')
    def flag():
        A('s_mov_b32 m0, s71\ns_lshl_b32 s48, s65, 2\ns_mov_b64 exec, 1\nbuffer_load_dword v44, s[8:11], s48 offen offset:0 lds\ns_mov_b64 exec, -1')
    A('s_mov_b32 s97, s56')
    if START2:
        A('s_lshr_b32 s56, s85, 6\ns_lshr_b32 s57, s85, 13\ns_cmp_eq_u32 s67, 0\ns_cselect_b32 s56, 10240, s56\ns_cselect_b32 s57, 64, s57\ns_mul_i32 s56, s56, s2')
        A(f's_cmp_ge_u32 s2, {START2}\ns_cselect_b32 s48, s67, 0\ns_cmp_lg_u32 s48, 0\ns_cselect_b32 s57, 0, s57')
        A('v_lshlrev_b32 v34, 7, v2\nv_cmp_gt_u32 vcc, s57, v2\ns_nop 1\nv_cndmask_b32 v34, v29, v34, vcc')
        A('buffer_load_dword v36, v34, s[80:83], s56 offen')
        A('s_cmp_lg_u32 s67, 0\ns_cbranch_scc1 L_nor0')
        A('s_add_u32 s56, s56, 8192\ns_mov_b64 exec, 0xffff\nbuffer_load_dword v37, v34, s[80:83], s56 offen\ns_mov_b64 exec, -1\nv_mov_b32 v30, v29')
        A('s_branch L_nor0')
    A('s_cmp_eq_u32 s20, 0\ns_cbranch_scc1 L_nor0' if not R0LATE else 's_cmp_lg_u32 s20, 1\ns_cbranch_scc1 L_nor0')
    if NOPF != 2: A('s_mov_b32 exec_hi, 0\nbuffer_load_dword v36, v30, s[80:83], s56 offen\ns_mov_b32 exec_hi, -1')
    A('L_nor0:')
    A('s_barrier')
    A('s_cmp_eq_u32 s55, 0\ns_cbranch_scc1 L_nogw0')
    srd(A, 44, 14, 1280)
    A('v_lshlrev_b32 v40, 1, v2')
    for j in range(10):
        A(f'buffer_load_ushort v{50+j}, v40, s[44:47], 0 offen offset:{128*j}')
    A('L_nogw0:')
    A('v_lshrrev_b32 v3, 3, v2\nv_and_b32 v4, 7, v2')
    A('s_lshl_b32 s48, s18, 7\ns_lshl_b32 s56, s67, 5\ns_add_u32 s48, s48, s56\nv_add_u32 v7, s48, v3\nv_mul_u32_u24 v7, 1280, v7')
    A('v_lshrrev_b32 v8, 4, v2\nv_xor_b32 v8, v8, v4\nv_lshl_add_u32 v16, v8, 4, v7')
    A('v_xor_b32 v8, 4, v8\nv_lshl_add_u32 v17, v8, 4, v7\nv_add_u32 v17, 10240, v17')
    A('v_add_u32 v18, 20480, v16\nv_add_u32 v19, 20480, v17')
    A('s_lshl_b32 s56, s67, 3\nv_add_u32 v5, s56, v3')
    A('s_and_b32 s56, s67, 1\ns_lshl_b32 s56, s56, 2\nv_and_b32 v6, 2, v3\nv_xor_b32 v6, v6, v4\nv_xor_b32 v6, s56, v6')
    A('v_mul_u32_u24 v7, s68, v5\nv_lshl_add_u32 v8, v6, 4, v7\nv_add_u32 v10, s60, v8\nv_add_u32 v11, 128, v10')
    A('v_xor_b32 v9, s62, v6\nv_lshl_add_u32 v8, v9, 4, v7\nv_add_u32 v12, s61, v8\nv_add_u32 v13, 128, v12')
    A('v_lshrrev_b32 v8, 2, v6\nv_and_b32 v9, s62, v8\nv_and_b32 v6, 3, v6\nv_xor_b32 v6, v6, v9\nv_mul_u32_u24 v7, 3840, v5')
    A('v_lshl_add_u32 v7, v6, 4, v7\nv_mul_u32_u24 v8, s64, v8\nv_add3_u32 v14, v7, v8, s63')
    A(f's_mov_b32 s76, {32*3840}\ns_mov_b32 s70, 0\ns_mov_b32 s72, 0\ns_mov_b32 s74, 0')
    A(f's_mul_i32 s77, s67, 5120\ns_add_u32 s77, s77, {WBASE}\ns_lshl_b32 s78, s67, 12')
    issueX(); issueW()
    if L2PF:
        A('s_cmp_eq_u32 s67, 2\ns_cselect_b32 s48, s60, s61\ns_cselect_b32 s4, s28, s32\ns_cselect_b32 s5, s29, s33\ns_mov_b32 s6, s30\ns_mov_b32 s49, s68\ns_movk_i32 s56, 128')
        A('s_cmp_eq_u32 s67, 1\ns_cselect_b32 s48, s63, s48\ns_cselect_b32 s4, s36, s4\ns_cselect_b32 s5, s37, s5\ns_cselect_b32 s6, s38, s6\ns_cselect_b32 s49, 3840, s49\ns_cselect_b32 s56, s64, s56')
        A('s_lshl_b32 s94, s49, 6\ns_lshl_b32 s57, s23, 3\nv_add_u32 v33, s57, v4\nv_bfe_u32 v34, v2, 4, 1\nv_lshl_add_u32 v33, v34, 6, v33\nv_mul_u32_u24 v33, s49, v33')
        A('v_bfe_u32 v34, v2, 3, 1\nv_mul_u32_u24 v34, s56, v34\nv_add3_u32 v33, v33, v34, s48\nv_cmp_gt_u32 vcc, 32, v2\ns_mov_b32 s7, 0x20000\ns_nop 0\nv_cndmask_b32 v33, v29, v33, vcc')
        A('s_cmp_lg_u32 s67, 0\ns_cbranch_scc1 L_l2x')
        A('s_mov_b32 s4, s24\ns_mov_b32 s5, s25\ns_mov_b32 s6, s26\ns_movk_i32 s94, 128\ns_lshl_b32 s48, s18, 7\ns_lshl_b32 s49, s20, 5\ns_add_u32 s48, s48, s49')
        A('v_and_b32 v33, 31, v2\nv_add_u32 v33, s48, v33\nv_mul_u32_u24 v33, 1280, v33\nv_lshrrev_b32 v34, 5, v2\nv_lshl_add_u32 v33, v34, 7, v33')
        A('L_l2x:')
        A(f's_mul_i32 s95, s94, {L2PF}\ns_lshl_b32 s94, s94, 1')
    A('s_load_dwordx2 s[86:87], s[0:1], 72')
    A('s_cmp_eq_u32 s55, 0\ns_cbranch_scc1 L_nogw')
    A('v_and_b32 v41, 3, v2\nv_lshlrev_b32 v41, 3, v41')
    A('v_bfe_u32 v40, v2, 2, 1\nv_lshl_add_u32 v41, v40, 9, v41')
    A('v_bfe_u32 v40, v2, 3, 2\nv_lshl_add_u32 v41, v40, 5, v41')
    A(f'v_bfe_u32 v40, v2, 5, 1\nv_mul_u32_u24 v40, {GWS}, v40\nv_add_u32 v41, v40, v41')
    A(f'v_add_u32 v41, {GWBASE}, v41')
    A('s_waitcnt vmcnt(9)')
    for j in range(10):
        A(f'v_lshl_or_b32 v{80+2*j}, v{50+j}, 16, v{50+j}\nv_mov_b32 v{81+2*j}, v{80+2*j}')
        A(f'ds_write_b64 v41, v[{80+2*j}:{81+2*j}] offset:{2*GWS*j}')
    A('L_nogw:')
    srd(A, 40, 16, WS_USED)
    srd(A, 44, 12, 1966080)
    A('s_waitcnt lgkmcnt(0)')
    A('s_lshl_b32 s48, s2, 2\ns_add_u32 s48, s48, s67\ns_cmp_lg_u32 s48, 0\ns_cbranch_scc1 L_noep')
    A('s_memrealtime s[88:89]\ns_waitcnt lgkmcnt(0)\ns_or_b32 s88, s88, 1\nv_mov_b32 v42, s88\nv_mov_b32 v43, s89')
    A('s_mov_b64 exec, 1\nglobal_store_dwordx2 v44, v[42:43], s[86:87] sc1\ns_mov_b64 exec, -1')
    A('L_noep:')
    A('v_lshlrev_b32 v5, 4, v2\nv_lshlrev_b32 v6, 3, v2\nv_add_u32 v7, 4096, v5')
    assert RPORD.index(10) >= 8
    tab = sum(RPORD.index(t) << (4 * t) for t in range(12))
    A(f's_mov_b32 s56, {hex(tab & 0xffffffff)}\ns_mov_b32 s57, {hex(tab >> 32)}\ns_lshl_b32 s48, s22, 2\ns_lshr_b64 s[56:57], s[56:57], s48\ns_and_b32 s48, s56, 15\ns_lshl_b32 s48, s48, 4\ns_add_u32 s48, s48, s18')
    A('s_sub_u32 s60, s48, 120\ns_lshl_b32 s60, s60, 2\ns_add_u32 s60, s60, s67\ns_lshl_b32 s92, s48, 1\ns_add_u32 s92, s92, s67')
    A('s_cmp_lt_u32 s67, 2\ns_cselect_b32 s92, s92, 999\ns_cmp_lt_u32 s92, 240\ns_cselect_b32 s64, 1, 0\ns_cmp_lt_u32 s60, 256\ns_cselect_b32 s64, 2, s64')
    A('s_mul_i32 s62, s92, 52429\ns_lshr_b32 s62, s62, 18\ns_mul_i32 s63, s62, 5\ns_sub_u32 s63, s92, s63')
    A(f's_mul_i32 s79, s62, {32*1280}\ns_lshl_b32 s56, s63, 8\ns_add_u32 s79, s79, s56\ns_lshl_b32 s63, s63, 3\ns_mul_i32 s62, s62, 5')
    A(f's_lshl_b32 s92, s92, 3\ns_add_u32 s92, s92, {FW_OFF}\ns_lshl_b32 s93, s67, 12\ns_add_u32 s93, s93, {RPK}')
    A(f's_lshl_b32 s48, s60, 3\ns_add_u32 s48, s48, {FP_OFF}\ns_cmp_eq_u32 s64, 2\ns_cselect_b32 s92, s48, s92')
    A('v_and_b32 v8, 2, v3\nv_xor_b32 v8, v8, v4\nv_mul_u32_u24 v9, 1280, v3\nv_lshl_add_u32 v20, v8, 4, v9')
    A('v_xor_b32 v8, 4, v8\nv_lshl_add_u32 v21, v8, 4, v9\nv_add_u32 v21, 10240, v21\nv_add_u32 v22, 20480, v20\nv_add_u32 v23, 20480, v21')
    A('v_lshrrev_b32 v8, 2, v2\nv_and_b32 v9, 3, v2\nv_lshlrev_b32 v8, 7, v8\nv_lshl_add_u32 v8, v9, 3, v8\nv_add_u32 v8, s93, v8')
    A('v_bfe_u32 v9, v2, 3, 1\nv_lshrrev_b32 v28, 5, v2\nv_lshl_add_u32 v9, v28, 1, v9')
    for tl in range(4):
        A(f'v_xor_b32 v28, {tl}, v9\nv_lshl_add_u32 v{24+tl}, v28, 5, v8')
    A('v_mul_u32_u24 v31, 1280, v2')
    if 'NODUTY' in EXP: A('s_mov_b32 s64, 0')
    A('s_mov_b32 s94, 0')
    pk = {m: sum(((t | (b0 << 4)) << (8 * k)) for k, (t, b0) in enumerate(EV[m][1])) | (0xFF << (8 * len(EV[m][1]))) for m in EV}
    A(f's_mov_b32 s84, -1\ns_cmp_eq_u32 s20, 1\ns_cselect_b32 s84, {hex(pk[1])}, s84\ns_cmp_eq_u32 s20, 2\ns_cselect_b32 s84, {hex(pk[2])}, s84\ns_cmp_eq_u32 s20, 3\ns_cselect_b32 s84, {hex(pk[3])}, s84\ns_and_b32 s58, s84, 15')
    AC = 24; WR = 104; HBUF = 224
    def a2(rt, t): return AC + 20 * rt + 4 * t
    regset = {0: 0, 1: 1, 2: 2, 9: 3, 10: 4, 11: 5}
    lds_unit = {3: WBASE, 4: WBASE + WSLOT, 5: WBASE + 2*WSLOT, 6: WBASE + 3*WSLOT, 7: 20480, 8: WBASE + 4*WSLOT}
    def kidx(i, dst):
        A(f's_add_u32 s{dst}, s23, {i}\ns_cmp_ge_u32 s{dst}, 12\ns_cselect_b32 s48, 12, 0\ns_sub_u32 s{dst}, s{dst}, s48')
    def w2reg(i, thr=None):
        kidx(i, 56)
        A('s_mul_i32 s56, s56, 5120\ns_add_u32 s56, s56, s50')
        for t in range(5):
            b = WR + 20 * regset[i] + 4 * t
            if t == 0: A(f's_waitcnt vmcnt({STG_THR if thr is None else thr})')
            A(f'buffer_load_dwordx4 {vr(b)}, v{5 if t < 4 else 7}, s[40:43], s56 offen offset:{1024*(t&3)} sc1')
    def w2lds(i):
        kidx(i, 56)
        A('s_mul_i32 s56, s56, 5120\ns_add_u32 s56, s56, s50')
        A(f's_add_u32 m0, s52, {lds_unit[i]}\ns_waitcnt vmcnt({STG_THR})')
        for t in range(4):
            A(f'buffer_load_dwordx4 v5, s[40:43], s56 offen offset:{1024*t} sc1 lds')
        A(f's_add_u32 m0, s52, {lds_unit[i] + 4096}\ns_nop 0')
        A('buffer_load_dwordx4 v7, s[40:43], s56 offen sc1 lds')
    def trace():
        if STAMP and 'quiet' not in EXP:
            A('s_memtime s[98:99]\ns_add_u32 s48, s65, 38\ns_mov_b32 m0, s48\ns_waitcnt lgkmcnt(0)\nv_writelane_b32 v1, s98, m0')
    def ensure_free():
        if 'nofree' in EXP: return
        l = A.label('L_free')
        A(f's_sub_u32 s57, s65, 4\ns_cmp_ge_i32 s66, s57\ns_cbranch_scc1 {l}')
        tbeg(A)
        lds_wait(A, 39, 0, 48, 's57', four='free', sdst=66, sleep=LSLEEP)
        tend(A, 100)
        A(f'{l}:')
    stamp(A, 2)
    table_srd(A, 8)
    A('s_mov_b32 s65, 1\ns_mov_b32 s66, 0')
    flag()
    issueW()
    trace()
    A('s_mov_b32 s65, 2')
    flag()
    A('s_mov_b32 s65, 1')
    def bsetup():
        p2_ids(A)
        A(('s_mul_i32 s23, s19, 3\ns_lshr_b32 s23, s23, 1\ns_and_b32 s48, s18, 3' if not P84 else 's_bfe_u32 s23, s18, 0x20001\ns_and_b32 s48, s18, 1\ns_lshl_b32 s48, s48, 2\ns_add_u32 s23, s23, s48\ns_mul_i32 s23, s23, 3\ns_lshr_b32 s23, s23, 1\ns_and_b32 s48, s19, 3') + '\ns_mul_i32 s48, s48, 3\ns_add_u32 s23, s23, s48\ns_cmp_ge_u32 s23, 12\ns_cselect_b32 s48, 12, 0\ns_sub_u32 s23, s23, s48')
        if XROT: A(f's_and_b32 s48, s2, 7\ns_mul_i32 s48, s48, {XROT}\ns_lshr_b32 s48, s48, 3\ns_add_u32 s23, s23, s48\ns_cmp_ge_u32 s23, 12\ns_cselect_b32 s48, 12, 0\ns_sub_u32 s23, s23, s48')
        A(f's_mul_i32 s48, s67, 12\ns_mul_i32 s50, s19, 48\ns_add_u32 s50, s50, s48\ns_mul_i32 s50, s50, 5120\ns_add_u32 s50, s50, {W2_OFF}')
        A('s_mul_i32 s51, s18, 68\ns_add_u32 s51, s51, s48\ns_lshl_b32 s51, s51, 12')
        A('s_mul_i32 s52, s67, 5120')
    A(f'v_mov_b32 v0, {CT}')
    bsetup()
    A(f's_mul_i32 s53, s67, 480\ns_mul_i32 s48, s19, 5\ns_lshr_b32 s48, s48, 2\ns_add_u32 s53, s53, {FW_OFF}')
    A('v_lshrrev_b32 v8, 1, v2\nv_mul_u32_u24 v8, 40, v8\nv_and_b32 v9, 1, v2\nv_add_u32 v9, s48, v9\nv_lshrrev_b32 v9, 1, v9\nv_lshl_add_u32 v28, v9, 3, v8')
    A(f's_lshr_b32 s48, s18, 1\ns_lshl_b32 s54, s48, {FSH}\ns_add_u32 s54, s54, {FG_OFF}')
    A(f's_mov_b32 s55, {FP_OFF}')
    A('s_load_dwordx2 s[4:5], s[0:1], 16\ns_mov_b32 s6, 819200\ns_mov_b32 s7, 0x20000')
    wo_offset(A, 's67')
    for i in range(5):
        A(f'v_add_u32 v58, {64*i}, v2\nv_mul_u32_u24 v59, 6554, v58\nv_lshrrev_b32 v59, 16, v59\nv_mul_u32_u24 v60, 10, v59\nv_sub_u32 v60, v58, v60')
        A(f'v_mul_u32_u24 v59, 1280, v59\nv_lshl_add_u32 v{224+i}, v60, 4, v59')
    A('s_waitcnt lgkmcnt(0)')
    def chk_issue():
        l = A.label('L_ci')
        A('global_load_dwordx2 v[56:57], v44, s[86:87] sc1')
        A('s_mov_b64 exec, 0xffffff\nbuffer_load_dwordx2 v[46:47], v28, s[40:43], s53 offen sc1\ns_mov_b64 exec, -1')
        A(f's_cmp_lg_u32 s67, 1\ns_cbranch_scc1 {l}')
        A('buffer_load_dwordx4 v[96:99], v5, s[40:43], s55 offen sc1\nbuffer_load_dwordx4 v[100:103], v5, s[40:43], s55 offen offset:1024 sc1')
        A(f'{l}:')
    def chk_eval():
        l = A.label('L_ce')
        A('v_readfirstlane_b32 s88, v56\nv_readfirstlane_b32 s89, v57\ns_nop 1')
        A('s_mov_b64 exec, 0xffffff\nv_cmp_ne_u64 s[60:61], s[88:89], v[46:47]\ns_mov_b64 exec, -1')
        A(f's_cmp_lg_u32 s67, 1\ns_cbranch_scc1 {l}')
        for r in (96, 98, 100, 102):
            A(f'v_cmp_ne_u64 vcc, s[88:89], {vr(r,2)}\ns_or_b64 s[60:61], s[60:61], vcc')
        A(f'{l}:')
        A('s_cmp_eq_u32 s88, 0\ns_cselect_b32 s60, 1, s60\ns_cmp_eq_u64 s[60:61], 0')
    if R0LATE:
        A('s_cmp_lt_u32 s20, 2\ns_cbranch_scc1 L_nor1')
        A('s_mov_b32 exec_hi, 0\nbuffer_load_dword v36, v30, s[80:83], s97 offen\ns_mov_b32 exec_hi, -1')
        A('L_nor1:')
    A('s_branch L_ld_join')
    A('.p2align 3')
    A('L_ld_loop:')
    ensure_free()
    if L2PF:
        A(f's_bitcmp1_b32 s65, 1\ns_cbranch_scc0 L_nol2\ns_cmp_gt_u32 s65, {2 + 4 * ((9 - L2PF) // 2)}\ns_cbranch_scc1 L_nol2')
        A('buffer_load_dword v35, v33, s[4:7], s95 offen\ns_add_u32 s95, s95, s94')
        A('L_nol2:')
    issueX(); issueW()
    trace()
    A('s_add_u32 s65, s65, 1')
    flag()
    A('L_ld_odd:')
    ensure_free()
    issueW()
    trace()
    A('L_ld_join:')
    A('s_lshr_b32 s49, s65, 1\ns_add_u32 s65, s65, 1')
    flag()
    A('s_cmp_eq_u32 s49, s58\ns_cbranch_scc1 L_ev_round')
    A('L_ev_r1:')
    A('s_cmp_lg_u32 s65, 18\ns_cbranch_scc1 L_ev_r2')
    chk_issue()
    A('L_ev_r2:')
    A('s_cmp_lt_u32 s65, 20\ns_cbranch_scc1 L_ld_loop')
    A('s_branch L_ld_done')
    A('L_ev_round:')
    A(f's_add_u32 s58, s58, {EVSTEP}\ns_add_u32 s94, s94, 1')
    A('s_cmp_eq_u32 s94, 2\ns_cbranch_scc1 L_ev_s1\ns_cmp_eq_u32 s94, 3\ns_cbranch_scc1 L_ev_s2\ns_cmp_eq_u32 s94, 4\ns_cbranch_scc1 L_ev_flag')
    A('s_bfe_u32 s59, s84, 0x40004')
    A('s_mul_i32 s56, s85, s59\nbuffer_load_dword v36, v30, s[80:83], s56 offen')
    A(f's_cmp_lg_u32 s59, {THIRD}\ns_cbranch_scc1 L_ev_no3')
    A('s_mul_i32 s56, s85, 9\ns_mov_b32 exec_hi, 0\nbuffer_load_dword v37, v30, s[80:83], s56 offen\ns_mov_b32 exec_hi, -1')
    A('L_ev_no3:')
    A('s_cmp_eq_u32 s64, 0\ns_cselect_b32 s58, 15, s58\ns_cbranch_scc1 L_ev_r1')
    A('global_load_dwordx2 v[42:43], v44, s[86:87] sc1')
    A('s_cmp_eq_u32 s64, 2\ns_cbranch_scc1 L_ev_poison')
    A('s_mov_b32 exec_hi, 0\nbuffer_load_dword v37, v31, s[44:47], s79 offen offset:128\ns_mov_b32 exec_hi, -1')
    A('L_ev_dma:')
    for g in range(4):
        dma(A, f's_add_u32 m0, s93, {g*1024}', 20 + g, 44, 79)
    A('s_add_u32 s79, s79, 128')
    A('s_branch L_ev_r1')
    for e in range(2):
        A(f'L_ev_s{e+1}:')
        A('s_waitcnt vmcnt(16)')
        for tl in range(4):
            A(f'ds_read_b64_tr_b16 {vr(64+16*e+4*tl,2)}, v{24+tl}\nds_read_b64_tr_b16 {vr(66+16*e+4*tl,2)}, v{24+tl} offset:2048')
        A('s_waitcnt lgkmcnt(0)')
        if e == 0: A('s_branch L_ev_dma')
    for tl in range(8):
        A(f's_add_u32 s56, s63, {tl}\ns_mul_i32 s57, s56, 52429\ns_lshr_b32 s57, s57, 18\ns_mul_i32 s57, s57, 235\ns_add_u32 s57, s57, s56\ns_add_u32 s57, s57, s62\ns_lshl_b32 s57, s57, 10\ns_add_u32 s57, s57, {W2_OFF}')
        A(f'buffer_store_dwordx4 {vr(64+4*tl)}, v5, s[40:43], s57 offen sc1')
    A('s_branch L_ev_r1')
    A('L_ev_poison:')
    A('s_mov_b32 s94, 3')
    A('v_mov_b32 v64, -1\nv_mov_b32 v65, -1\nv_mov_b32 v66, -1\nv_mov_b32 v67, -1')
    A(f's_mul_i32 s56, s60, 3200\ns_add_u32 s56, s56, {M_OFF}\ns_lshl_b32 s57, s60, 7\ns_add_u32 s57, s57, {ZB_OFF}\ns_cmp_lt_u32 s60, 128\ns_cselect_b32 s57, s57, {OOB}')
    for k in range(3):
        A(f'buffer_store_dwordx4 v[64:67], v5, s[40:43], s56 offen offset:{1024*k} sc1')
    A('s_mov_b64 exec, 0xff\nbuffer_store_dwordx4 v[64:67], v5, s[40:43], s56 offen offset:3072 sc1')
    A('buffer_store_dwordx4 v[64:67], v5, s[40:43], s57 offen sc1\ns_mov_b64 exec, -1')
    A('L_ev_rw:')
    if EVW & 2: A('s_waitcnt vmcnt(0)')
    A('s_branch L_ev_r1')
    A('L_ev_flag:')
    A('s_movk_i32 s58, 15')
    l0 = A.label('L_ep'); l1 = A.label('L_epok')
    A('s_mov_b32 s90, 0\ns_waitcnt vmcnt(15)')
    A(f'{l0}:')
    A('v_readfirstlane_b32 s88, v42')
    A(f's_cmp_lg_u32 s88, 0\ns_cbranch_scc1 {l1}')
    A('s_sleep 4\nglobal_load_dwordx2 v[42:43], v44, s[86:87] sc1\ns_waitcnt vmcnt(0)')
    A(f's_add_u32 s90, s90, 1\ns_cmp_lt_u32 s90, {SPIN_MAX}\ns_cbranch_scc1 {l0}')
    A(f'{l1}:')
    A('s_mov_b64 exec, 1\nbuffer_store_dwordx2 v[42:43], v44, s[40:43], s92 offen sc1\ns_mov_b64 exec, -1')
    A('s_branch L_ev_r1')
    A('L_ld_done:')
    trace()
    stamp(A, 57)
    if 'p1' in EXP: finish(A)
    A('s_mov_b32 s90, 0\ns_waitcnt vmcnt(16)')
    A('L_b_chk:')
    chk_eval()
    A('s_cbranch_scc1 L_b_chkok')
    A('s_sleep 16')
    chk_issue()
    A(f's_waitcnt vmcnt(0)\ns_add_u32 s90, s90, 1\ns_cmp_lt_u32 s90, {SPIN_MAX}\ns_cbranch_scc1 L_b_chk')
    A('L_b_chkok:')
    A('s_cmp_lg_u32 s67, 1\ns_cbranch_scc1 L_b_nofp')
    A('v_mov_b32 v46, 1\ns_mov_b64 exec, 1\nds_write_b64 v0, v[56:57] offset:32\nds_write_b32 v0, v46 offset:72\ns_mov_b64 exec, -1')
    A('L_b_nofp:')
    stamp(A, 37)
    rest = []
    A('s_cmp_eq_u32 s20, 0\ns_cbranch_scc1 L_b_kv')
    for k, i in enumerate((0, 1, 2, 9, 10, 11)):
        w2reg(i, T1THR if k < 4 else None)
    stamp(A, 22)
    lds_wait(A, 39, 0, 48, 20, four='free', sleep=LSLEEP)
    for k, i in enumerate((3, 4, 5, 6, 7, 8)):
        if k == GEARLY:
            lds_wait(A, 38, 48, 48, 1, sleep=4)
            stamp(A, 9)
        w2lds(i); stamp(A, 16 + k)
    A('s_branch L_b_common')
    A('L_b_kv:')
    def pause():
        if KVP_AT is None: return
        l = A.label('L_ps')
        lds_free(A, 39, 48, 90)
        A(f's_cmp_lt_i32 s90, 21\ns_cbranch_scc1 {l}')
        lds_wait(A, 39, 0, 48, 22, four='free', sleep=2)
        A(f'{l}:')
    for k, i in enumerate((0, 1, 2, 9, 10, 11)[:KVR]):
        w2reg(i, T1THR); stamp(A, 40 + k)
    kl = ((16, 3), (17, 4), (18, 5), (18, 7), (19, 6))
    for need, i in kl[:KVE]:
        lds_wait(A, 39, 0, 48, need, four='free', sleep=LSLEEP)
        w2lds(i)
    lds_wait(A, 39, 0, 48, 20, four='free', sleep=LSLEEP)
    for i in range(5):
        dma(A, f's_add_u32 m0, s52, {1024*i}', 224 + i, 4, 73)
    A(f's_lshl_b32 s48, s67, 2\ns_add_u32 m0, s48, {CT + 112}\ns_mov_b64 exec, 1\nbuffer_load_dword v44, s[8:11], 4 offen lds\ns_mov_b64 exec, -1')
    stamp(A, 9)
    for k, i in enumerate([x[1] for x in kl[KVE:]] + [8]):
        if k: pause()
        w2lds(i)
        if k < 4: stamp(A, 46 + k)
    for i in (0, 1, 2, 9, 10, 11)[KVR:]:
        pause()
        w2reg(i)
    stamp(A, 8)
    if KVN < 12:
        lds_wait(A, 0, 192, 48, 1, sleep=4)
        for i in order[KVN:]:
            stage(i)
    stamp(A, 10)
    lds_wait(A, 0, 80, 48, KVG, sleep=4)
    A('s_cmp_lg_u32 s67, 3\ns_cbranch_scc1 L_b_common')
    gpoll(A, 54, 46)
    A('L_b_common:')
    hbufs = [HBUF, HBUF + 16, WR + 40]
    def hb(i, rt):
        k = i if i < 2 else (0 if i == 2 else (i - 3 + 1) % 3 if False else None)
        return None
    hmap = {0: 0, 1: 1, 2: 0, 3: 1}
    for i in range(4, 12):
        hmap[i] = [0, 2, 1][(i - 4) % 3]
    def hb(i, rt): return hbufs[hmap[i]] + 4 * rt
    A('v_add_u32 v8, s52, v5')
    A(f'v_add_u32 v9, {WBASE + 2*WSLOT}, v8')
    def rdW(i, rs):
        u = lds_unit[i]
        va, off = (8, u) if u < WBASE + WSLOT - 5120 else ((9, u - (WBASE + 2*WSLOT)) if u >= WBASE + 2*WSLOT else (12, 0))
        for t in range(5):
            A(f'ds_read_b128 {vr(WR+20*rs+4*t)}, v{va} offset:{off + 1024*t}')
    A(f'v_add_u32 v12, {WBASE + WSLOT}, v8')
    A('s_load_dwordx2 s[28:29], s[0:1], 64\ns_mov_b32 s30, 2621440\ns_mov_b32 s31, 0x20000')
    A(f's_lshl_b32 s48, s67, 2\nv_add_u32 v13, s48, v0\nv_mov_b32 v14, 1\ns_mul_i32 s48, s67, {WSLOT}\ns_add_u32 s48, s48, {WBASE}\nv_add_u32 v15, s48, v5')
    A(f's_mul_i32 s48, s67, 15360\ns_cmp_eq_u32 s67, 3\ns_cselect_b32 s48, {XCH[3]}, s48\nv_add_u32 v16, s48, v5')
    A(f's_lshl_b32 s48, s67, 11\ns_add_u32 s48, s48, {XCH[3] + 15360}\nv_add_u32 v17, s48, v5\ns_lshl_b32 s48, s67, 8\nv_lshlrev_b32 v19, 2, v2\nv_add_u32 v19, s48, v19')
    A('s_lshl_b32 s48, s18, 6\ns_lshl_b32 s49, s67, 4\ns_add_u32 s48, s48, s49\nv_and_b32 v20, 15, v2\nv_add_u32 v20, s48, v20\nv_mul_u32_u24 v20, 1280, v20\nv_lshrrev_b32 v21, 4, v2\nv_lshl_add_u32 v20, v21, 3, v20\ns_mul_i32 s55, s19, 160')
    A('s_mul_i32 s48, s67, 5\ns_mul_i32 s57, s18, 68\ns_add_u32 s57, s57, s48\ns_add_u32 s57, s57, 48\ns_lshl_b32 s57, s57, 12')
    A(f's_lshl_b32 s58, s18, 8\ns_add_u32 s58, s58, {G_OFF}\nv_and_b32 v3, 15, v2\nv_lshlrev_b32 v11, 2, v3')
    A(f's_mul_i32 s48, s67, 320\ns_add_u32 s48, s48, {CT + 1536}\nv_mul_u32_u24 v4, 80, v21\nv_add_u32 v4, s48, v4')
    A('v_lshrrev_b32 v10, 2, v3\nv_cmp_eq_u32 s[64:65], v10, v21\nv_and_b32 v10, 1, v3\nv_cmp_eq_u32 s[62:63], 0, v10')
    A(f's_and_b64 s[60:61], s[64:65], s[62:63]\ns_andn2_b64 s[62:63], s[64:65], s[62:63]\ns_mov_b32 s64, {EPS}\ns_mov_b32 s65, 0xffff0000')
    A(f's_setprio {BPRIO}')
    stamp(A, 3)
    if GPOLL == 'B':
        A('s_cmp_lg_u32 s67, 3\ns_cbranch_scc1 L_b_nopoll')
        poll(A, 54, 48, 10, 6)
        A('v_mov_b32 v10, 1\ns_mov_b64 exec, 1\nds_write_b32 v0, v10 offset:64\ns_mov_b64 exec, -1')
        A('L_b_nopoll:')
    A('s_lshl_b32 s59, 1, s67' if FINEG else 's_mov_b32 s59, 15')
    lds_wait_mask(A, 0, 64, 10, 's59')
    A('s_waitcnt vmcnt(0)')
    stamp(A, 4)
    Q = []
    def wait(tag):
        last = max(k for k, t in enumerate(Q) if t == tag)
        A(f's_waitcnt vmcnt({min(63, len(Q) - 1 - last)})')
    def issueH(i):
        kidx(i, 56)
        A('s_lshl_b32 s56, s56, 12\ns_add_u32 s56, s56, s51')
        for rt in range(4):
            A(f'buffer_load_dwordx4 {vr(hb(i,rt))}, v5, s[40:43], s56 offen offset:{1024*rt} {LL}')
            Q.append(('H', i))
    assert not rest[KPRE:]
    issueH(0); issueH(1)
    nH = 2
    dump = [(8, WBASE), (12, 0), (9, 0), (9, WSLOT)]
    def haddr(i, dst):
        return [f's_add_u32 s{dst}, s23, {i}', f's_cmp_ge_u32 s{dst}, 12', 's_cselect_b32 s48, 12, 0', f's_sub_u32 s{dst}, s{dst}, s48',
                f's_lshl_b32 s{dst}, s{dst}, 12', f's_add_u32 s{dst}, s{dst}, s51']
    def rdW_l(i, rs):
        u = lds_unit[i]
        va, off = (8, u) if u < WBASE + WSLOT - 5120 else ((9, u - (WBASE + 2*WSLOT)) if u >= WBASE + 2*WSLOT else (12, 0))
        return [f'ds_read_b128 {vr(WR+20*rs+4*t)}, v{va} offset:{off + 1024*t}' for t in range(5)]
    pendW = []
    for i in range(12):
        rs = regset[i] if i in regset else (i - 3) % 2
        gaps = {k: [] for k in range(20)}
        for k, l in zip((1, 3, 6, 8, 11), pendW): gaps[k].append(l)
        reuse = nH if nH < 12 and hmap[nH] == hmap[i] else None
        extra = None
        if reuse is not None:
            for k, l in enumerate(haddr(reuse, 56)): gaps[k // 2].append(l)
            nH += 1
        if nH < 12 and hmap[nH] == 2 and i == 3:
            pass
        first = Q.index(('H', i))
        for rt in range(4):
            A(f's_waitcnt vmcnt({len(Q) - 1 - (first + rt)})')
            if rt == 0:
                if i == 0: stamp(A, 5)
                if BST: stamp(A, 25 + i)
                if i not in regset:
                    A('s_waitcnt lgkmcnt(0)')
                if i == PQ_AT:
                    A('s_mov_b64 exec, 1\nds_write_b32 v13, v14 offset:144\ns_mov_b64 exec, -1')
                if i == 8:
                    A('s_mov_b64 exec, 1\nds_write_b32 v13, v14 offset:96\ns_mov_b64 exec, -1')
            for t in range(5):
                d = vr(a2(rt, t))
                A(f'v_mfma_f32_16x16x32_bf16 {d}, {vr(WR+20*rs+4*t)}, {vr(hb(i,rt))}, {d if i else 0}')
                for l in gaps[5 * rt + t]: A(l)
                if i == 11 and rt >= 2:
                    A(f'ds_write_b128 v{dump[rt-2][0]}, {vr(a2(rt-2,t))} offset:{dump[rt-2][1] + t*1024}')
            if reuse is not None:
                A(f'buffer_load_dwordx4 {vr(hb(reuse,rt))}, v5, s[40:43], s56 offen offset:{1024*rt} {LL}')
                Q.append(('H', reuse))
        if NRC == 2 and i in (9, 10):
            j = i - 7
            A(f's_add_u32 s48, s67, {j+1}\ns_and_b32 s48, s48, 3\ns_lshl_b32 s49, s48, 10\ns_add_u32 s56, s57, s49\ns_lshl_b32 s49, s48, 6\ns_add_u32 s49, s49, s58')
            for kk in range(5):
                A(f'buffer_load_dwordx4 {vr(WR + 8*kk + 4*(j-2))}, v5, s[40:43], s56 offen {LL}')
                if kk < 4: A('s_add_u32 s56, s56, 4096')
                Q.append(('P', j))
            A(f'buffer_load_dword v{20+j}, v11, s[40:43], s49 offen {LL}')
            Q.append(('P', j))
        while nH < 12 and all(hmap[j] != hmap[nH] for j in range(i + 1, nH)) and not (hmap[nH] == 2 and i < 2):
            issueH(nH); nH += 1
        tgt = {0: 3, 2: 4}.get(i, i + 2 if 5 <= i + 2 <= 8 else None)
        pendW = rdW_l(tgt, (tgt - 3) % 2) if tgt is not None else []
    stamp(A, 6)
    if NRC == 2:
        ZR = HBUF; DN = AC; SC = HBUF + 20; T0 = HBUF + 24
        lds_wait(A, 0, 68, 10, 1, four=False, sleep=1)
        for kk in range(5):
            A(f'ds_read_b128 {vr(ZR+4*kk)}, v4 offset:{16*kk}')
        A('s_waitcnt lgkmcnt(0)')
        for kk in range(5):
            for j in range(4):
                m = 's[62:63]' if (4 * kk + j) >= 10 else 's[60:61]'
                A(f'v_cndmask_b32 v{ZR+4*kk+j}, 0, v{ZR+4*kk+j}, {m}')
        A('s_waitcnt vmcnt(0)\ns_nop 0')
        for kk in range(5):
            for r in range(2):
                d = vr(DN + 4 * r)
                A(f'v_mfma_f32_16x16x32_bf16 {d}, {vr(ZR+4*kk)}, {vr(WR+8*kk+4*r)}, {d if kk else 0}')
        A('s_nop 7')
        for r in range(2):
            A(f'v_add_f32 v{DN+4*r}, s64, v{DN+4*r}\nv_add_f32 v{DN+4*r+1}, s64, v{DN+4*r+1}')
        for r in range(2):
            A(f'v_rcp_f32 v{DN+4*r}, v{DN+4*r}\nv_rcp_f32 v{DN+4*r+1}, v{DN+4*r+1}')
        A('s_nop 0')
        for r in range(2):
            A(f'v_mul_f32 v{SC+2*r}, v{22+r}, v{DN+4*r}\nv_mul_f32 v{SC+2*r+1}, v{22+r}, v{DN+4*r+1}')
        for kk in range(5):
            for r in range(2):
                b = WR + 8 * kk + 4 * r
                for j in range(4):
                    A(f'v_lshlrev_b32 v{T0+2*j}, 16, v{b+j}\nv_and_b32 v{T0+2*j+1}, s65, v{b+j}')
                for j in range(4):
                    odd = 1 if (4 * kk + j) >= 10 else 0
                    A(f'v_mul_f32 v{T0+2*j}, v{SC+2*r+odd}, v{T0+2*j}\nv_mul_f32 v{T0+2*j+1}, v{SC+2*r+odd}, v{T0+2*j+1}')
                for j in range(4):
                    A(f'v_cvt_pk_bf16_f32 v{b+j}, v{T0+2*j}, v{T0+2*j+1}')
                A(f'ds_write_b128 v9, {vr(b)} offset:{r*WSLOT + 1024*kk}')
            A(f'v_mov_b32 v10, {kk+1}\ns_mov_b64 exec, 1\nds_write_b32 v13, v10 offset:160\ns_mov_b64 exec, -1')
        lds_wait(A, 13, 176, 10, 1, four=False, sleep=1)
    for rt in (2, 3):
        for t in range(5):
            A(f'ds_write_b128 v{dump[rt][0]}, {vr(a2(rt,t))} offset:{dump[rt][1] + t*1024}')
    A('s_waitcnt lgkmcnt(0)')
    stamp(A, 7)
    A('s_barrier')
    R = WR
    for r in range(4):
        for t in (3, 4):
            A(f'ds_read_b128 {vr(R+8*r+4*(t-3))}, v15 offset:{r*5120 + 1024*t}')
    A(f'ds_read_b32 v18, v19 offset:{46080}')
    A('s_waitcnt lgkmcnt(5)')
    for r in range(3):
        for t in (3, 4):
            A(f'ds_read_b128 {vr(R+32+8*r+4*(t-3))}, v16 offset:{r*5120 + 1024*t}')
    for t in (3, 4):
        A(f'ds_read_b128 {vr(R+56+4*(t-3))}, v17 offset:{1024*(t-3)}')
    for k in range(0, 8, 2):
        A(f'v_pk_add_f32 {vr(R+k,2)}, {vr(R+k,2)}, {vr(R+8+k,2)}')
    A('s_waitcnt lgkmcnt(8)\nv_mov_b32 v19, v18')
    for k in range(0, 8, 2):
        A(f'v_pk_add_f32 {vr(R+16+k,2)}, {vr(R+16+k,2)}, {vr(R+24+k,2)}')
    for k in range(0, 8, 2):
        A(f'v_pk_add_f32 {vr(R+k,2)}, {vr(R+k,2)}, {vr(R+16+k,2)}')
    A('s_waitcnt lgkmcnt(0)')
    for k in range(0, 8, 2):
        A(f'v_pk_fma_f32 {vr(R+k,2)}, {vr(R+k,2)}, v[18:19], {vr(R+56+k,2)}')
    for sl in range(3):
        for k in range(0, 8, 2):
            A(f'v_pk_add_f32 {vr(R+k,2)}, {vr(R+k,2)}, {vr(R+32+8*sl+k,2)}')
    for t in (3, 4):
        b = R + 4 * (t - 3)
        A(f'v_cvt_pk_bf16_f32 v{b}, v{b}, v{b+1}\nv_cvt_pk_bf16_f32 v{b+1}, v{b+2}, v{b+3}')
        A(f'buffer_store_dwordx2 {vr(b,2)}, v20, s[28:31], s55 offen offset:{32*t}')
    finish(A)


def gen(A):
    K = NAME + '_kernel'
    A(f'.globl {K}\n.p2align 8\n.type {K},@function\n{K}:')
    if ENTRYT: A('s_memrealtime s[92:93]')
    A('s_cmp_ge_u32 s2, 256\ns_cbranch_scc1 L_end')
    A('s_load_dwordx4 s[4:7], s[0:1], 0')
    A('s_load_dwordx4 s[8:11], s[0:1], 32')
    A('s_load_dwordx4 s[12:15], s[0:1], 48')
    A('s_load_dwordx2 s[16:17], s[0:1], 80')
    A.c('decode: s18 rb, s19 cq, s20 m, s21 wave, s22 gtype, s23 rbl, s55 is_gc')
    A('v_lshrrev_b32 v1, 6, v0\nv_and_b32 v2, 63, v0')
    A('s_bfe_u32 s23, s2, 0x10003\ns_and_b32 s18, s2, 7\ns_lshl_b32 s18, s18, 1\ns_add_u32 s18, s18, s23' if not MAP84 else 's_bfe_u32 s23, s2, 0x30003\ns_and_b32 s18, s2, 1\ns_lshl_b32 s18, s18, 3\ns_add_u32 s18, s18, s23')
    A('v_readfirstlane_b32 s21, v1')
    A('s_bfe_u32 s19, s2, 0x20004\ns_lshr_b32 s20, s2, 6' if not MAP84 else ('s_bfe_u32 s19, s2, 0x20001\ns_lshr_b32 s20, s2, 6' if not KVX else 's_bfe_u32 s20, s2, 0x20001\ns_lshr_b32 s19, s2, 6'))
    A('s_mul_i32 s22, s19, 3\ns_add_u32 s22, s22, s20\ns_sub_u32 s22, s22, 1')
    A('s_cmp_eq_u32 s22, 10\ns_cselect_b32 s55, 1, 0\ns_cmp_ge_i32 s22, 10\ns_cselect_b32 s91, 1, 0')
    if STAMP:
        A('v_mov_b32 v1, 0\ns_mov_b32 s100, 0\ns_mov_b32 s101, 0')
        stamp(A, 0); stamp_rt(A, 62)
        if ENTRYT: A('v_readlane_b32 s93, v1, 0\nv_writelane_b32 v1, s92, 0\ns_nop 1\nv_writelane_b32 v1, s93, 58')
    A('s_cmp_lt_u32 s21, 4\ns_cbranch_scc1 L_compute')
    gen_loader(A)
    gen_compute(A)
    A('L_end:\ns_endpgm')
    A('.p2align 7\nL_table:')
    for i in range(32):
        A(f'.long {i}')


DOC = """
; ---------------------------------------------------------------------------------------------
; ---------------------------------------------------------------------------------------------
"""


def main(out):
    A = Asm()
    gen(A)
    K = NAME + '_kernel'
    hdr = open('cdna_kernels/' + NAME + '.s.ref').read().split('; Override')[0]
    txt = hdr + f'; @launch grid=(256,1,1) block=(512,1,1) lds={LDS_TOTAL}\n'
    txt += '.amdgcn_target "amdgcn-amd-amdhsa--gfx950"\n' + DOC.lstrip('\n') + '.text\n' + A.text()
    txt += f'''.section .rodata,"a"
.p2align 6
.amdhsa_kernel {K}
  .amdhsa_next_free_vgpr 256
  .amdhsa_next_free_sgpr 102
  .amdhsa_accum_offset 256
  .amdhsa_group_segment_fixed_size 0
  .amdhsa_kernarg_size 88
  .amdhsa_user_sgpr_count 2
  .amdhsa_user_sgpr_kernarg_segment_ptr 1
  .amdhsa_system_sgpr_workgroup_id_x 1
.end_amdhsa_kernel
'''
    open(out, 'w').write(txt)

if __name__ == '__main__':
    for a in sys.argv[2:]:
        k, v = a.split('=', 1)
        globals()[k] = eval(v)
    main(sys.argv[1] if len(sys.argv) > 1 else 'cdna_kernels/' + NAME + '.s')
```

```python
import sys

NAME = 'gated_mix__linear_attn_block__glu_gated_glu__prompt'

HB_OFF = 0
W2_OFF = 0x900000
M_OFF = 0xB00000
KVS = 3584
KVP_OFF = 0xC00000
G_OFF = 0xF00000
ZB_OFF = 0xF10000
FSH = 13
FG_OFF = 0xF40000
FP_OFF = 0xF60800
FM_OFF = 0xF81000
FW_OFF = 0xFA1800
STAMP_OFF = 0x1000000
WS_USED = 0x1100000
OOB = 0x7FFF0000

XSLOT = 16384; NX = 3
WBASE = NX * XSLOT
WSLOT = 20480; NW = 5
GWBASE = WBASE + NW * WSLOT
LDS_TOTAL = 163840
CT = 159744
P2_SCR = 0
RPK = GWBASE
CODEPF = True
EV = {1: (0, [(0, 3), (2, 15)]), 2: (1, [(1, 5), (3, 15)]), 3: (2, [(2, 7), (4, 15)])}
THIRD = 5
RPORD = (11, 9, 4, 7, 2, 5, 8, 1, 0, 3, 6, 10)
STAMP = False
GWS = 320
PRIO = 2
LSLEEP = 1
DEPTH = 2
EXP = ''
KVZ = False
FUSE = True
EVSTEP = 1
WOM = 3
CHKI = True
ZJ = None
KVE = 5
KVP_AT = 6
EPI2 = True
T1THR = 6
KVR = 1
M4 = False
P84 = False
EVW = 0
LATEF = True
XROT = 12
ZEARLY = True
ZC = 2
ZM0 = 4
ENTRYT = False
KVFAST = 1
WOAT = 2
KVN = 12
NOPF = 0
DIAG = None
DBGOUT = False
DEFER = False
BURST = 0
FINEG = True
GEARLY = 0
START2 = 0
RTS = False
WSM = 1
KVACK = True
R0LATE = False
L2PF = 0
KVPRE = 6
PAX = 1
ZM = 255
MACK = False
SPEC_M = True
NRC = 4
BST = True
PQ_AT = None
NLEAD = 5
COOP_P = True
COOP_M = True
MK0 = 2
NPK = True
KVX = False
APRIO = 2
BPRIO = 0
MAP84 = True
LS = 'sc1'
LL = 'sc1'
KPRE = 6
LPS = 1
LP0 = 0
GPOLL = 'A'
GD = 8
KVG = 1
T1N = 6
PRETOUCH = False
STG_THR = 6
PSLEEP = 8
MSLEEP = 4
MDELAY = 64
GDELAY = 0
STG_EARLY = False
SPIN_MAX = 0x20000


class Asm:
    def __init__(self):
        self.L = []
        self.nl = 0
    def __call__(self, s):
        for line in s.split('\n'):
            line = line.strip()
            if line:
                self.L.append(line if line.endswith(':') else '    ' + line)
    def c(self, s):
        self.L.append('    ; ' + s)
    def label(self, p='L'):
        self.nl += 1
        return f'{p}_{self.nl}'
    def text(self):
        return '\n'.join(self.L) + '\n'


def vr(b, n=4):
    return f'v[{b}:{b+n-1}]'

def srd(A, d, lo, nbytes):
    A(f's_mov_b32 s{d}, s{lo}\ns_mov_b32 s{d+1}, s{lo+1}\ns_mov_b32 s{d+2}, {nbytes}\ns_mov_b32 s{d+3}, 0x20000')

def stamp(A, n):
    if STAMP:
        A(f'{"s_memrealtime" if RTS else "s_memtime"} s[98:99]\ns_waitcnt lgkmcnt(0)\nv_writelane_b32 v1, s98, {n}')
def stamp_rt(A, n):
    if STAMP:
        A(f's_memrealtime s[98:99]\ns_waitcnt lgkmcnt(0)\nv_writelane_b32 v1, s98, {n}')
def tbeg(A):
    if STAMP and 'quiet' not in EXP: A('s_memtime s[98:99]\ns_waitcnt lgkmcnt(0)\ns_mov_b32 s3, s98')
def tend(A, r):
    if STAMP and 'quiet' not in EXP: A(f's_memtime s[98:99]\ns_waitcnt lgkmcnt(0)\ns_sub_u32 s3, s98, s3\ns_add_u32 s{r}, s{r}, s3')
def finish(A):
    if STAMP:
        A('s_waitcnt vmcnt(0)')
        stamp(A, 61); stamp_rt(A, 63)
        A('v_writelane_b32 v1, s100, 59\nv_writelane_b32 v1, s101, 60')
        if DIAG:
            slot, mult = DIAG
            l = A.label('L_dg'); l2 = A.label('L_dg')
            A(f's_cmp_lg_u32 s21, 0\ns_cbranch_scc1 {l2}')
            A(f'v_readlane_b32 s48, v1, {slot}\nv_readlane_b32 s49, v1, 0\nv_readlane_b32 s50, v1, 61\ns_cmp_eq_u32 s48, 0\ns_cselect_b32 s48, s49, s48\ns_sub_u32 s48, s48, s49\ns_mul_i32 s48, s48, {mult}\ns_min_u32 s48, s48, 20000')
            A(f'{l}:\ns_memrealtime s[98:99]\ns_waitcnt lgkmcnt(0)\ns_sub_u32 s51, s98, s50\ns_cmp_lt_u32 s51, s48\ns_cbranch_scc1 {l}')
            A(f'{l2}:')
        A('s_mov_b64 exec, -1')
        A(f's_lshl_b32 s3, s2, 3\ns_add_u32 s3, s3, s21\ns_lshl_b32 s3, s3, 8\ns_add_u32 s3, s3, {STAMP_OFF}\nv_lshlrev_b32 v2, 2, v2')
        A('buffer_store_dword v1, v2, s[40:43], s3 offen')
        if DBGOUT:
            l = A.label('L_dbg')
            A(f's_cmp_lg_u32 s21, 0\ns_cbranch_scc1 {l}\ns_and_b32 s3, s2, 0xbf\ns_cmp_lg_u32 s3, 6\ns_cbranch_scc1 {l}')
            A('s_load_dwordx2 s[86:87], s[0:1], 72\ns_lshr_b32 s3, s2, 6\ns_mul_i32 s3, s3, 28\ns_add_u32 s3, s3, 8\ns_waitcnt lgkmcnt(0)\ns_mov_b64 exec, 1')
            for k, slot in enumerate((0, 2, 3, 5, 10, 12, 61)):
                A(f'v_readlane_b32 s48, v1, {slot}\nv_mov_b32 v3, s3\ns_nop 1\nv_mov_b32 v4, s48\nglobal_store_dword v3, v4, s[86:87] offset:{4*k}')
            A(f'{l}:')
    A('s_endpgm')

LOG2E = 0x3fb8aa3b
NLOG2E = 0xbfb8aa3b
EPS = 0x358637bd

ACC = 96; XF = 64; WF = 24
def acc(i, t): return ACC + 20 * i + 4 * t


THR = 0
def dma(A, m0expr, voff, sr, so):
    A(m0expr)
    A(f's_waitcnt vmcnt({THR-1})' if THR else 's_nop 0')
    A(f'buffer_load_dwordx4 v{voff}, s[{sr}:{sr+3}], s{so} offen lds')


def poll(A, soff, nl, vt, vaddr, sleep=None, first_sleep=False):
    l0 = A.label('L_poll'); l1 = A.label('L_polled')
    A('s_mov_b32 s90, 0')
    A(f's_mov_b64 exec, {hex((1 << nl) - 1)}' if nl <= 31 else f's_mov_b32 exec_lo, -1\ns_mov_b32 exec_hi, {hex((1 << (nl - 32)) - 1)}')
    A(f'{l0}:')
    A(f'buffer_load_dwordx2 {vr(vt,2)}, v{vaddr}, s[40:43], s{soff} offen sc1')
    A('s_waitcnt vmcnt(0)')
    A(f'v_cmp_ne_u64 vcc, s[88:89], {vr(vt,2)}')
    A(f's_cbranch_vccz {l1}')
    A(f's_sleep {PSLEEP if sleep is None else sleep}\ns_add_u32 s90, s90, 1\ns_cmp_lt_u32 s90, {SPIN_MAX}\ns_cbranch_scc1 {l0}')
    A(f'{l1}:')
    A('s_mov_b64 exec, -1')


def spoll(A, parts, sleep=2):
    l0 = A.label('L_sp'); l1 = A.label('L_spd')
    A('s_mov_b32 s96, 0')
    A(f'{l0}:')
    regs = []
    for so, imm, n, sb in parts:
        A(f's_load_dwordx{2*n} s[{sb}:{sb+2*n-1}], s[16:17], s{so} offset:{imm} glc')
        regs += [sb + 2 * k for k in range(n)]
    A('s_waitcnt lgkmcnt(0)')
    for r in regs:
        A(f's_xor_b64 s[{r}:{r+1}], s[{r}:{r+1}], s[88:89]')
    for r in regs[1:]:
        A(f's_or_b64 s[{regs[0]}:{regs[0]+1}], s[{regs[0]}:{regs[0]+1}], s[{r}:{r+1}]')
    A(f's_cbranch_scc0 {l1}')
    A(f's_sleep {sleep}\ns_add_u32 s96, s96, 1\ns_cmp_lt_u32 s96, {SPIN_MAX}\ns_cbranch_scc1 {l0}')
    A(f'{l1}:')


def set_flag(A, soff, vt):
    A(f'v_mov_b32 v{vt}, s88\nv_mov_b32 v{vt+1}, s89\nv_mov_b32 v{vt+2}, 0')
    A('s_waitcnt vmcnt(0)')
    A('s_mov_b64 exec, 1')
    A(f'buffer_store_dwordx2 {vr(vt,2)}, v{vt+2}, s[40:43], s{soff} offen sc1')
    A('s_mov_b64 exec, -1')


def table_srd(A, d):
    l = A.label('L_pc')
    A(f's_getpc_b64 s[{d}:{d+1}]\n{l}:\ns_add_u32 s{d}, s{d}, L_table-{l}\ns_addc_u32 s{d+1}, s{d+1}, 0\ns_movk_i32 s{d+2}, 128\ns_mov_b32 s{d+3}, 0x20000')


def lds_free(A, vaddr, vt, sdst):
    A(f'ds_read_b32 v{vt}, v{vaddr}\ns_waitcnt lgkmcnt(0)')
    A(f'v_readlane_b32 s{sdst}, v{vt}, 0\nv_readlane_b32 s48, v{vt}, 1\ns_min_u32 s{sdst}, s{sdst}, s48\nv_readlane_b32 s48, v{vt}, 2\ns_min_u32 s{sdst}, s{sdst}, s48\nv_readlane_b32 s48, v{vt}, 3\ns_min_u32 s{sdst}, s{sdst}, s48')


def lds_min4(A, vaddr, off, vt, sdst):
    A(f'ds_read_b128 {vr(vt)}, v{vaddr} offset:{off}\ns_waitcnt lgkmcnt(0)')
    A(f'v_min3_u32 v{vt}, v{vt}, v{vt+1}, v{vt+2}\nv_min_u32 v{vt}, v{vt}, v{vt+3}\ns_nop 0\nv_readfirstlane_b32 s{sdst}, v{vt}')


def lds_wait(A, vaddr, off, vt, need, four=True, sdst=90, sleep=1):
    l0 = A.label('L_lw'); l1 = A.label('L_lwd')
    if sleep in (2, 4): sleep *= WSM
    A('s_mov_b32 s96, 0')
    A(f'{l0}:')
    if four == 'free':
        lds_free(A, vaddr, vt, sdst)
    elif four:
        lds_min4(A, vaddr, off, vt, sdst)
    else:
        A(f'ds_read_b32 v{vt}, v{vaddr} offset:{off}\ns_waitcnt lgkmcnt(0)\nv_readfirstlane_b32 s{sdst}, v{vt}')
    A(f's_cmp_ge_i32 s{sdst}, {need}\ns_cbranch_scc1 {l1}')
    A(f's_sleep {sleep}\ns_add_u32 s96, s96, 1\ns_cmp_lt_u32 s96, {SPIN_MAX*16}\ns_cbranch_scc1 {l0}')
    A(f'{l1}:')


def lds_wait_mask(A, vaddr, off, vt, smask, sleep=2):
    l0 = A.label('L_mw'); l1 = A.label('L_mwd')
    A('s_mov_b32 s96, 0')
    A(f'{l0}:')
    A(f'ds_read_b32 v{vt}, v{vaddr} offset:{off}\ns_waitcnt lgkmcnt(0)\nv_readfirstlane_b32 s90, v{vt}')
    A(f's_andn2_b32 s90, {smask}, s90\ns_cbranch_scc0 {l1}')
    A(f's_sleep {sleep}\ns_add_u32 s96, s96, 1\ns_cmp_lt_u32 s96, {SPIN_MAX*16}\ns_cbranch_scc1 {l0}')
    A(f'{l1}:')


def mainloop(A, kv, tag):
    def upd_s():
        L = [f's_add_u32 s50, s50, {WSLOT}', f's_cmp_ge_u32 s50, {WBASE + NW*WSLOT}', f's_cselect_b32 s50, {WBASE}, s50']
        if not kv:
            L += ['s_add_u32 s52, s52, s53', 's_cmp_ge_u32 s52, s57', f's_cselect_b32 s52, {WBASE}, s52']
        return L
    def set_w():
        return [f'v_add_u32 v{15+t}, s50, v{10+t}' for t in range(4)] + [f'v_add_u32 v19, s{50 if kv else 52}, v14']
    def upd_blk():
        return [f's_add_u32 s51, s51, {XSLOT}', f's_cmp_ge_u32 s51, {NX*XSLOT}', 's_cselect_b32 s51, 0, s51']
    def set_x(par):
        return [f'v_add_u32 v{4+par}, s51, v{20+par}']
    def rdW(p, t, h):
        b = WF + 20 * p + 4 * t + 2 * h
        return f'ds_read_b64_tr_b16 {vr(b,2)}, v{15+t} offset:{512*h}'
    def rdX(i, par):
        return f'ds_read_b128 {vr(XF+4*i)}, v{4+par} offset:{2048*i}'
    def mfma(i, t, p):
        w = vr(WF + 20 * p + 4 * t); x = vr(XF + 4 * i); d = vr(acc(i, t))
        if 'm32' in EXP:
            n = 5 * i + t
            if n % 2 == 0:
                d = vr(ACC + 16 * ((n // 2) % 10), 16)
                A(f'v_mfma_f32_32x32x16_bf16 {d}, {w}, {x}, {d}')
            return
        A(f'v_mfma_f32_16x16x32_bf16 {d}, {x}, {w}, {d}' if kv else f'v_mfma_f32_16x16x32_bf16 {d}, {w}, {x}, {d}')
    A(f's_mov_b32 s50, {WBASE}\ns_mov_b32 s51, 0\ns_mov_b32 s54, 0')
    if not kv:
        A(f's_cmp_lg_u32 s55, 0\ns_cselect_b32 s52, {GWBASE}, s50\ns_movk_i32 s53, {WSLOT}\ns_cselect_b32 s53, {GWS}, s53\ns_mov_b32 s57, {WBASE + NW*WSLOT}\ns_cselect_b32 s57, -1, s57')
    for l in set_w() + set_x(0) + set_x(1):
        A(l)
    A(f'v_mov_b32 v3, {CT}\ns_lshl_b32 s48, s21, 8\ns_add_u32 m0, s48, {CT+256}\nv_mov_b32 v0, {OOB}\nv_writelane_b32 v0, 0, 0')
    table_srd(A, 44)
    stamp(A, 1)
    lds_wait(A, 3, 0, 6, 1, sdst=59)
    A('s_waitcnt vmcnt(0)')
    A(f's_setprio {PRIO}')
    stamp(A, 2)
    for t in range(5):
        A(rdW(0, t, 0)); A(rdW(0, t, 1))
    A('s_waitcnt lgkmcnt(6)')
    for i in range(8):
        A(rdX(i, 0))
    for l in upd_s() + set_w():
        A(l)
    A('s_mov_b32 s58, 2\ns_cmp_ge_i32 s59, s58')
    A(f's_cbranch_scc0 L_{tag}_slow0')
    A('.p2align 3')
    for p in range(2):
        gap = {k: [] for k in range(40)}
        for i in range(5):
            gap[5*i].append(rdW(1 - p, i, 0)); gap[5*i + 2].append(rdW(1 - p, i, 1))
        for i in range(8):
            gap[5*i + 4].append(rdX(i, 1 - p))
        gap[9].append('s_waitcnt lgkmcnt(6)')
        gap[1].append('s_add_u32 s54, s54, 4')
        gap[11].append('buffer_load_dword v0, s[44:47], s54 offen lds')
        gap[6].append('s_add_u32 s58, s58, 1'); gap[8].append('s_min_u32 s58, s58, 20')
        sal = upd_s() + (upd_blk() if p == 0 else [])
        for k in (13, 13, 16, 16, 18, 18, 21, 21, 23):
            if sal: gap[k].append(sal.pop(0))
        assert not sal
        if LATEF:
            for k, l in zip((23, 25, 26, 27, 28, 30), set_w() + set_x(p)):
                gap[k].append(l)
            gap[31].append('ds_read_b128 v[6:9], v3')
            gap[36].append('s_waitcnt lgkmcnt(1)'); gap[36].append('v_min3_u32 v6, v6, v7, v8')
            gap[37].append('v_min_u32 v6, v6, v9')
            gap[38].append('v_readfirstlane_b32 s59, v6')
        else:
            gap[23].append('ds_read_b128 v[6:9], v3')
            for k, l in zip((25, 26, 27, 28, 30, 31), set_w() + set_x(p)):
                gap[k].append(l)
            gap[32].append('s_waitcnt lgkmcnt(2)'); gap[32].append('v_min3_u32 v6, v6, v7, v8')
            gap[33].append('v_min_u32 v6, v6, v9')
            gap[35].append('v_readfirstlane_b32 s59, v6')
        if p == 1:
            gap[35 if LATEF else 36].append('s_cmp_lt_u32 s54, 80'); gap[37].append(f's_cbranch_scc0 L_{tag}_last')
        gap[39 if LATEF else 38].append('s_cmp_ge_i32 s59, s58' if 'nowait' not in EXP else 's_cmp_eq_u32 s59, s59')
        if 'novalu' in EXP:
            for k in gap: gap[k] = [l for l in gap[k] if not l.startswith('v_')]
        if 'nods' in EXP:
            for k in gap: gap[k] = [l for l in gap[k] if not l.startswith('ds_')]
        if 'nosalu' in EXP:
            for k in gap: gap[k] = [l for l in gap[k] if not (l.startswith('s_') and 13 <= k <= 23)]
        if 'noctl' in EXP:
            for k in gap: gap[k] = [l for l in gap[k] if not (' v6' in l or 'v[6:9]' in l)]
        if 'halfx' in EXP:
            for k in (9, 19, 29, 39): gap[k] = [l.replace('ds_read_b128', 'ds_read_b32').replace(l.split()[1], l.split()[1].split(':')[0].replace('[', '') + ',') if l.startswith('ds_read_b128 v[') else l for l in gap[k]]
        if 'nowr' in EXP:
            for k in gap: gap[k] = [l for l in gap[k] if not l.startswith('ds_write')]
        if 'now32' in EXP:
            gap[32] = [l for l in gap[32] if not l.startswith('s_waitcnt')]
        if 'nopub' in EXP: pass
        if p == 0:
            A(f'L_{tag}_go0:')
        else:
            A(f's_cbranch_scc0 L_{tag}_slow1')
            A(f'L_{tag}_go1:')
        A('s_waitcnt lgkmcnt(2)')
        for i in range(8):
            for t in range(5):
                mfma(i, t, p)
                for l in gap[5*i + t]: A(l)
    A(f's_cbranch_scc1 L_{tag}_go0')
    for p in range(2):
        A(f'L_{tag}_slow{p}:')
        tbeg(A)
        lds_wait(A, 3, 0, 6, 's58', sdst=59)
        tend(A, 100)
        if STAMP: A('s_add_u32 s101, s101, 1')
        A(f's_branch L_{tag}_go{p}')
    A(f'L_{tag}_last:')
    mfma(7, 3, 1); mfma(7, 4, 1)
    A('s_waitcnt lgkmcnt(0)')
    stamp(A, 3)
    A('s_nop 6')
    if 'p1' in EXP: finish(A)


def phi_q(A, b, t, dst=None):
    dst = b if dst is None else dst
    A(f'v_pk_mul_f32 {vr(t,2)}, {vr(b,2)}, s[60:61]\nv_pk_mul_f32 {vr(t+2,2)}, {vr(b+2,2)}, s[60:61]')
    for j in range(4):
        A(f'v_exp_f32 v{t+j}, v{t+j} clamp')
    for j in range(4):
        A(f'v_max_f32 v{dst+j}, s66, v{b+j}')
    A(f'v_pk_add_f32 {vr(dst,2)}, {vr(dst,2)}, {vr(t,2)}\nv_pk_add_f32 {vr(dst+2,2)}, {vr(dst+2,2)}, {vr(t+2,2)}')


def gen_compute(A):
    A('L_compute:')
    if CODEPF:
        A('s_cmp_lg_u32 s21, 0\ns_cbranch_scc1 L_nocpf')
        A(f's_getpc_b64 s[44:45]\nL_pc:\ns_sub_u32 s44, s44, L_pc-{NAME}_kernel\ns_subb_u32 s45, s45, 0\ns_mov_b32 s46, L_end-{NAME}_kernel\ns_mov_b32 s47, 0x20000')
        A('s_lshr_b32 s48, s2, 3\ns_lshl_b32 s48, s48, 11\nv_lshlrev_b32 v3, 7, v2\ns_mov_b64 exec, 0xffff')
        A('buffer_load_dword v95, v3, s[44:47], s48 offen\ns_mov_b64 exec, -1')
        A('L_nocpf:')
    A('s_barrier')
    A.c('compute wave setup: v3=q v4=r v5=c v6=f<<5 v7=rowpart')
    for r in range(ACC, 256, 2):
        A(f'v_mov_b64 {vr(r,2)}, 0')
    A('v_lshrrev_b32 v3, 4, v2\nv_bfe_u32 v4, v2, 2, 2\nv_and_b32 v5, 3, v2')
    A('v_lshrrev_b32 v6, 1, v4\nv_and_b32 v8, 1, v3\nv_lshl_add_u32 v6, v8, 1, v6\nv_lshlrev_b32 v6, 5, v6')
    A('v_mul_u32_u24 v7, 5120, v3\nv_lshl_add_u32 v7, v4, 7, v7')
    A('v_and_b32 v8, 15, v2\nv_lshrrev_b32 v9, 1, v8\nv_xor_b32 v9, v9, v3\nv_lshlrev_b32 v9, 4, v9\nv_lshl_add_u32 v20, v8, 7, v9\nv_xor_b32 v21, 64, v20')
    A(f's_mov_b32 s60, {LOG2E}\ns_mov_b32 s61, {LOG2E}\ns_mov_b32 s62, {NLOG2E}\ns_mov_b32 s63, {NLOG2E}')
    A(f's_mov_b32 s64, 1.0\ns_mov_b32 s65, 1.0\ns_mov_b32 s66, {EPS}')
    A('s_waitcnt lgkmcnt(0)')
    srd(A, 40, 16, WS_USED)
    if PRETOUCH:
        A('s_cmp_lg_u32 s21, 1\ns_cbranch_scc1 L_nopt')
        A('s_load_dwordx2 s[28:29], s[0:1], 64\ns_load_dwordx2 s[32:33], s[0:1], 16\ns_mov_b32 s30, 2621440\ns_mov_b32 s31, 0x20000\ns_mov_b32 s34, 819200\ns_mov_b32 s35, 0x20000')
        srd(A, 36, 12, 1966080)
        A('v_lshlrev_b32 v8, 18, v2\nv_lshlrev_b32 v9, 16, v2')
        A('buffer_load_dword v92, v8, s[40:43], 0 offen\nbuffer_load_dword v93, v9, s[36:39], 0 offen\ns_waitcnt lgkmcnt(0)')
        A('buffer_load_dword v94, v9, s[28:31], 0 offen\nbuffer_load_dword v95, v9, s[32:35], 0 offen')
        A('L_nopt:')
    A('s_cmp_eq_u32 s20, 0\ns_cbranch_scc1 L_kv')

    A(f's_cmp_lg_u32 s20, {WOM}\ns_cbranch_scc1 L_g_nowo')
    A('s_load_dwordx2 s[24:25], s[0:1], 16\ns_mov_b32 s26, 819200\ns_mov_b32 s27, 0x20000')
    wo_offset(A, 's21')
    A('v_lshrrev_b32 v8, 1, v2\nv_mul_u32_u24 v8, 1280, v8\nv_and_b32 v9, 1, v2\nv_mul_u32_u24 v9, 156, v9\nv_add_u32 v8, v8, v9')
    A('s_waitcnt lgkmcnt(0)\nbuffer_load_dword v92, v8, s[24:27], s73 offen')
    A('L_g_nowo:')
    A('s_lshr_b32 s48, s21, 1\ns_lshl_b32 s48, s48, 10\ns_and_b32 s49, s21, 1\ns_lshl_b32 s49, s49, 3')
    A('v_add_u32 v8, s49, v5\nv_lshlrev_b32 v8, 3, v8\nv_xor_b32 v9, v8, v6\nv_add3_u32 v10, v9, v7, s48')
    A('v_add_u32 v8, 32, v8\nv_xor_b32 v9, v8, v6\nv_add3_u32 v11, v9, v7, s48')
    A('v_add_u32 v12, 2048, v10\nv_add_u32 v13, 2048, v11')
    A('s_lshl_b32 s49, s21, 2\nv_add_u32 v8, s49, v5\nv_lshlrev_b32 v8, 3, v8\nv_xor_b32 v9, v8, v6\nv_add_u32 v14, v9, v7\nv_add_u32 v14, 4096, v14')
    A('s_cmp_eq_u32 s55, 0\ns_cbranch_scc1 L_g_notgc')
    A('v_lshlrev_b32 v14, 5, v3\nv_lshl_add_u32 v14, v4, 3, v14')
    A('L_g_notgc:')
    A('v_lshlrev_b32 v22, 4, v2')
    A(f's_mul_i32 s72, s18, {2*68*4096}\ns_add_u32 s73, s72, {68*4096}')
    A('s_lshl_b32 s48, s22, 2\ns_add_u32 s48, s48, s21\ns_lshl_b32 s49, s48, 12\ns_add_u32 s70, s72, s49\ns_add_u32 s71, s73, s49')
    A(f's_lshl_b32 s74, s18, {FSH}\ns_lshl_b32 s49, s48, 3\ns_add_u32 s74, s74, s49\ns_add_u32 s74, s74, {FG_OFF}')
    A('s_lshl_b32 s48, s48, 2\nv_add_u32 v5, s48, v3')
    A('v_mul_u32_u24 v6, 6554, v5\nv_lshrrev_b32 v6, 16, v6\nv_mul_u32_u24 v7, 10, v6\nv_sub_u32 v7, v5, v7')
    A('v_lshrrev_b32 v8, 2, v6\nv_and_b32 v6, 3, v6')
    A('v_mul_u32_u24 v8, 5, v8\nv_lshrrev_b32 v9, 1, v7\nv_add3_u32 v8, v8, v9, 48\nv_lshlrev_b32 v8, 12, v8')
    A('v_and_b32 v9, 15, v2\nv_lshl_add_u32 v9, v6, 4, v9\nv_lshl_add_u32 v8, v9, 4, v8')
    A('v_and_b32 v7, 1, v7\nv_lshl_add_u32 v23, v7, 10, v8')
    mainloop(A, False, 'g')
    A.c('h = u * sigmoid(g)')
    hst = []; pst = []
    for i in range(8):
        g = acc(i, 0); u = acc(i, 2)
        for j in range(4):
            A(f'v_pk_mul_f32 {vr(g+2*j,2)}, {vr(g+2*j,2)}, s[62:63]')
        for j in range(8):
            A(f'v_exp_f32 v{g+j}, v{g+j}')
        for j in range(4):
            A(f'v_pk_add_f32 {vr(g+2*j,2)}, {vr(g+2*j,2)}, s[64:65]')
        for j in range(8):
            A(f'v_rcp_f32 v{g+j}, v{g+j}')
        for j in range(4):
            A(f'v_pk_mul_f32 {vr(u+2*j,2)}, {vr(u+2*j,2)}, {vr(g+2*j,2)}')
        for j in range(4):
            A(f'v_cvt_pk_bf16_f32 v{g+j}, v{u+2*j}, v{u+2*j+1}')
        hst.append(f'buffer_store_dwordx4 {vr(g)}, v22, s[40:43], s{70 + (i>>2)} offen offset:{(i&3)*1024} {LS}')
        if not BURST: A(hst.pop())
    if BURST == 1:
        for l in hst: A(l)
        hst = []
    A('s_cmp_lg_u32 s91, 0\ns_cbranch_scc1 L_gc_epi')
    A.c('pq = phi(q)')
    for i in range(0, 8, 2):
        a0 = acc(i, 4); b0 = acc(i + 1, 4)
        phi_q(A, a0, 24 + 8 * ((i >> 1) & 1))
        phi_q(A, b0, 28 + 8 * ((i >> 1) & 1))
        A(f'v_cvt_pk_bf16_f32 v{a0}, v{a0}, v{a0+1}\nv_cvt_pk_bf16_f32 v{a0+1}, v{a0+2}, v{a0+3}')
        A(f'v_cvt_pk_bf16_f32 v{a0+2}, v{b0}, v{b0+1}\nv_cvt_pk_bf16_f32 v{a0+3}, v{b0+2}, v{b0+3}')
        A('s_nop 1')
        A(f'v_permlane16_swap_b32 v{a0}, v{a0+2}\nv_permlane16_swap_b32 v{a0+1}, v{a0+3}')
        pst.append(f'buffer_store_dwordx4 {vr(a0)}, v23, s[40:43], s{72 + (i>>2)} offen offset:{(i&3)*1024} {LS}')
        if BURST != 2: A(pst.pop())
    for l in hst + pst: A(l)
    A('s_branch L_p1_done')
    A('L_gc_epi:')
    for l in hst: A(l)
    A.c('gate g = sigmoid(logit); stored by gtype 10, wave 0')
    A('v_and_b32 v8, 15, v2\nv_lshlrev_b32 v8, 2, v8')
    A(f's_lshl_b32 s48, s18, 9\ns_add_u32 s48, s48, {G_OFF}\ns_lshl_b32 s49, s22, 2\ns_add_u32 s49, s49, s21')
    A(f's_cmp_eq_u32 s49, 40\ns_cselect_b32 s48, s48, {OOB}')
    for i in range(8):
        A(f'v_mul_f32 v{acc(i,4)}, s62, v{acc(i,4)}')
    for i in range(8):
        A(f'v_exp_f32 v{acc(i,4)}, v{acc(i,4)}')
    for i in range(8):
        A(f'v_add_f32 v{acc(i,4)}, 1.0, v{acc(i,4)}')
    for i in range(8):
        A(f'v_rcp_f32 v{acc(i,4)}, v{acc(i,4)}')
    A('s_nop 0\ns_mov_b64 exec, 0xffff')
    for i in range(8):
        A(f'buffer_store_dword v{acc(i,4)}, v8, s[40:43], s48 offen offset:{64*i} {LS}')
    A('s_mov_b64 exec, -1')
    A('s_branch L_p1_done')

    A('L_kv:')
    A('s_mul_i32 s48, s21, 10\ns_and_b32 s49, s19, 1\ns_lshl_b32 s49, s49, 3\ns_sub_u32 s48, s48, s49')
    def kvaddr(dst, u, isv):
        A(f'v_add_u32 v9, 40, {u}\nv_cmp_gt_i32 vcc, 0, {u}\ns_nop 1\nv_cndmask_b32 v8, {u}, v9, vcc')
        A(f'v_lshrrev_b32 v9, 4, v8\nv_lshl_add_u32 v9, {isv}, 1, v9\nv_and_b32 v23, 15, v8')
        A(f'v_lshl_add_u32 v22, {isv}, 3, v23')
        A('v_cmp_gt_u32 vcc, 32, v8\ns_nop 1\nv_cndmask_b32 v9, 4, v9, vcc\nv_cndmask_b32 v23, v22, v23, vcc')
        A(f'v_lshlrev_b32 v23, 3, v23\nv_xor_b32 v23, v23, v6\nv_lshlrev_b32 v22, 4, {isv}\nv_xor_b32 v23, v23, v22')
        A(f'v_lshl_add_u32 v23, v9, 10, v23\nv_add_u32 v{dst}, v23, v7')
    A('v_mov_b32 v16, 0\nv_mov_b32 v17, 1\nv_add_u32 v15, s48, v5')
    kvaddr(10, 'v15', 'v16'); kvaddr(12, 'v15', 'v17')
    A('v_add_u32 v15, 5, v15')
    kvaddr(11, 'v15', 'v16'); kvaddr(13, 'v15', 'v17')
    A('v_and_b32 v15, 1, v5\nv_mul_u32_u24 v15, 5, v15\nv_add3_u32 v15, v15, s48, 4\nv_lshrrev_b32 v16, 1, v5')
    kvaddr(14, 'v15', 'v16')
    A('v_lshlrev_b32 v22, 4, v2\nv_lshlrev_b32 v23, 4, v3')
    A('v_and_b32 v8, 15, v2\nv_cmp_gt_u32 s[68:69], 8, v8')
    A(f's_lshl_b32 s48, s19, 2\ns_add_u32 s48, s48, s21\ns_lshl_b32 s48, s48, 4\ns_add_u32 s48, s48, s18\ns_mul_i32 s70, s48, {KVS}\ns_add_u32 s70, s70, {KVP_OFF}')
    prods = [(0, 0), (1, 1), (2, 0), (2, 1), (0, 2), (1, 2), (2, 2)]
    A(f's_lshr_b32 s71, s21, 1\ns_mul_i32 s71, s71, {RPK - 40960}\ns_and_b32 s49, s21, 1\ns_lshl_b32 s49, s49, 12\ns_add_u32 s71, s71, s49\ns_add_u32 s71, s71, 40960')
    A('v_mul_u32_u24 v23, 5, v8\nv_add_u32 v23, v23, v3\nv_lshlrev_b32 v23, 4, v23\nv_add_u32 v23, s71, v23')
    mainloop(A, True, 'kv')
    A.c('KV epilogue')
    A('v_mov_b32 v12, 0x3f803f80\nv_mov_b32 v13, v12\nv_mov_b32 v14, v12\nv_mov_b32 v15, v12')
    KT = {0: 0, 1: 1, 2: 4}; VT = {0: 2, 1: 3, 2: 4}
    PR = 24
    if EPI2:
        A(f'v_and_b32 v9, 3, v2\nv_lshlrev_b32 v9, 8, v9\nv_add_u32 v9, {CT+256}, v9')
        n = 0
        vcv = []
        for i in range(8):
            for t in (0, 1):
                phi_q(A, acc(i, t), 64 + 4 * (n % 4)); n += 1
            b = acc(i, 4); sv = 80 + 4 * (i & 1)
            phi_q(A, b, 64 + 4 * (n % 4), sv); n += 1
            for j in range(4):
                A(f'v_cndmask_b32 v{b+j}, v{b+j}, v{sv+j}, s[68:69]')
            if KVP_AT is not None and i == KVP_AT: A('s_movk_i32 s54, 84\nbuffer_load_dword v0, s[44:47], s54 offen lds')
        stamp(A, 43)
        A('ds_read_b64 v[4:5], v3 offset:32\nds_read_b32 v8, v9')
        pend = []
        for kk in range(4):
            c = 0
            for t in range(5):
                a = acc(2 * kk, t); b = acc(2 * kk + 1, t)
                for l in (f'v_cvt_pk_bf16_f32 v{a}, v{a}, v{a+1}', f'v_cvt_pk_bf16_f32 v{a+1}, v{a+2}, v{a+3}',
                          f'v_cvt_pk_bf16_f32 v{a+2}, v{b}, v{b+1}', f'v_cvt_pk_bf16_f32 v{a+3}, v{b+2}, v{b+3}'):
                    A(l); c += 1
                    if c % 2 == 0 and pend: A(pend.pop(0))
            assert not pend
            for n, (tv, tk) in enumerate(prods):
                d = vr(PR + 4 * n)
                pend.append(f'v_mfma_f32_16x16x32_bf16 {d}, {vr(acc(2*kk,VT[tv]))}, {vr(acc(2*kk,KT[tk]))}, {d if kk else 0}')
            for tk in range(3):
                d = vr(52 + 4 * tk)
                pend.append(f'v_mfma_f32_16x16x32_bf16 {d}, {vr(acc(2*kk,KT[tk]))}, v[12:15], {d if kk else 0}')
        A('s_waitcnt lgkmcnt(0)\nv_cmp_gt_u32 vcc, 18, v8')
        chk = ['v_readfirstlane_b32 s88, v4', 'v_readfirstlane_b32 s89, v5', 's_cmp_eq_u32 s88, 0', 's_cselect_b32 vcc_lo, 1, vcc_lo', 's_cmp_eq_u64 vcc, 0']
        for l in pend:
            A(l)
            if chk: A(chk.pop(0))
        A('s_cbranch_scc1 L_kv_chkok')
        get_epoch(A, 3, 6)
        lds_wait(A, 9, 0, 8, 18, four='free', sleep=1)
        A('L_kv_chkok:')
        stamp(A, 18)
    else:
        pend = []
        def flush(k):
            for _ in range(k):
                if pend: A(pend.pop(0))
        for kk in range(4):
            n = 0
            for i in (2 * kk, 2 * kk + 1):
                for t in (0, 1):
                    phi_q(A, acc(i, t), 64 + 4 * (n % 4)); n += 1
                    flush(2)
                b = acc(i, 4); s = 80 + 4 * (i & 1)
                phi_q(A, b, 64 + 4 * (n % 4), s); n += 1
                for j in range(4):
                    A(f'v_cndmask_b32 v{b+j}, v{b+j}, v{s+j}, s[68:69]')
                flush(1)
            assert not pend
            stamp(A, 40 + kk)
            for t in range(5):
                a = acc(2 * kk, t); b = acc(2 * kk + 1, t)
                A(f'v_cvt_pk_bf16_f32 v{a}, v{a}, v{a+1}\nv_cvt_pk_bf16_f32 v{a+1}, v{a+2}, v{a+3}')
                A(f'v_cvt_pk_bf16_f32 v{a+2}, v{b}, v{b+1}\nv_cvt_pk_bf16_f32 v{a+3}, v{b+2}, v{b+3}')
            for n, (tv, tk) in enumerate(prods):
                d = vr(PR + 4 * n)
                pend.append(f'v_mfma_f32_16x16x32_bf16 {d}, {vr(acc(2*kk,VT[tv]))}, {vr(acc(2*kk,KT[tk]))}, {d if kk else 0}')
            for tk in range(3):
                d = vr(52 + 4 * tk)
                pend.append(f'v_mfma_f32_16x16x32_bf16 {d}, {vr(acc(2*kk,KT[tk]))}, v[12:15], {d if kk else 0}')
        A('s_nop 1')
        flush(10)
        stamp(A, 18)
        get_epoch(A, 3, 6)
        A(f'v_and_b32 v9, 3, v2\nv_lshlrev_b32 v9, 8, v9\nv_add_u32 v9, {CT+256}, v9')
        lds_wait(A, 9, 0, 8, 18, four='free', sleep=1)
    stamp(A, 19)
    HB_ = 1792
    wr = [(0, None, 0), (1, None, HB_), (2, (0, 0xffff), 32), (3, (0, 0xffff0000), HB_ + 16), (4, (0x000f000f, 0x000f000f), 1280),
          (5, (0x00f000f0, 0x00f000f0), HB_ + 960), (6, (0, 0x0000000f), 1280 + 32), (6, (0, 0x00f00000), HB_ + 960 + 16),
          (7, (0x00010001, 0x00010001), 1600), (8, (0x00010001, 0x00010001), HB_ + 1600), (9, (1, 0), 1664), (9, (0x10000, 0), HB_ + 1648)]
    for n, m, off in wr:
        if m: A(f's_mov_b32 exec_lo, {hex(m[0])}\ns_mov_b32 exec_hi, {hex(m[1])}')
        A(f'ds_write_b128 v23, {vr(PR+4*n)} offset:{off}')
    A('s_mov_b64 exec, -1\nv_add_u32 v9, s71, v22')
    stamp(A, 38)
    for i in range(4):
        A(f'ds_read_b128 {vr(64+4*i)}, v9 offset:{1024*i}')
    A('s_and_b32 s76, s88, 0xfff\ns_bfe_u32 s77, s88, 0xc000c\ns_lshr_b64 s[78:79], s[88:89], 24\ns_xor_b32 s78, s78, s88\ns_bfe_u32 s79, s78, 0xc000c\ns_and_b32 s78, s78, 0xfff')
    A('v_mov_b32 v6, 0xfffff000')
    for i in range(4):
        A(f's_waitcnt lgkmcnt({3-i})')
        for r in range(64 + 4 * i, 68 + 4 * i):
            A(f'v_and_or_b32 v{r}, v{r}, v6, s{76 + (r & 3)}')
        if i == 3: A('s_mov_b32 exec_hi, 0')
        A(f'buffer_store_dwordx4 {vr(64+4*i)}, v22, s[40:43], s70 offen offset:{1024*i} sc1')
    A('s_mov_b64 exec, -1')
    if KVP_AT is not None: A('s_movk_i32 s54, 88\nbuffer_load_dword v0, s[44:47], s54 offen lds')
    A('L_p1_done:')
    stamp(A, 4)
    gen_awave(A)


def p2_ids(A):
    if P84:
        A('s_bfe_u32 s18, s2, 0x20001\ns_lshl_b32 s18, s18, 3\ns_lshr_b32 s48, s2, 5\ns_add_u32 s18, s18, s48')
        A('s_and_b32 s19, s2, 1\ns_lshl_b32 s19, s19, 2\ns_bfe_u32 s48, s2, 0x20003\ns_add_u32 s19, s19, s48')
        return
    A('s_and_b32 s18, s2, 7\ns_lshl_b32 s18, s18, 2\ns_lshr_b32 s48, s2, 6\ns_add_u32 s18, s18, s48')
    A('s_bfe_u32 s19, s2, 0x30003')


def wo_offset(A, w):
    A('s_and_b32 s69, s2, 7\ns_lshl_b32 s69, s69, 3\ns_bfe_u32 s48, s2, 0x30003\ns_add_u32 s69, s69, s48')
    A(f's_lshr_b32 s48, s69, 2\ns_lshl_b32 s48, s48, 1\ns_and_b32 s49, {w}, 1\ns_add_u32 s48, s48, s49\ns_mul_i32 s48, s48, 25600')
    A(f's_and_b32 s49, s69, 3\ns_lshl_b32 s49, s49, 1\ns_lshr_b32 s56, {w}, 1\ns_add_u32 s49, s49, s56\ns_mul_i32 s49, s49, 160\ns_add_u32 s73, s48, s49')


def gpoll(A, soff, vt):
    l0 = A.label('L_gp'); l1 = A.label('L_gs'); l2 = A.label('L_gd')
    A('s_mov_b32 s96, 0\ns_mov_b32 s75, 0')
    A(f'{l0}:')
    A(f's_mov_b32 exec_hi, 0xffff\nbuffer_load_dwordx2 {vr(vt,2)}, v6, s[40:43], s{soff} offen sc1\ns_waitcnt vmcnt(0)\nv_cmp_ne_u64 vcc, s[88:89], {vr(vt,2)}\ns_mov_b32 exec_hi, -1')
    A('s_mov_b32 s74, 0')
    for g in range(4):
        A(f's_bfe_u64 s[76:77], vcc, {hex((12 << 16) | (12 * g))}\ns_cselect_b32 s48, 0, {1 << g}\ns_or_b32 s74, s74, s48')
    A(f's_cmp_eq_u32 s74, s75\ns_cbranch_scc1 {l1}')
    A(f's_mov_b32 s75, s74\nv_mov_b32 v{vt}, s74\ns_mov_b64 exec, 1\nds_write_b32 v0, v{vt} offset:64\ns_mov_b64 exec, -1')
    A(f'{l1}:')
    A(f's_cmp_eq_u32 s74, 15\ns_cbranch_scc1 {l2}')
    A(f's_sleep {PSLEEP}\ns_add_u32 s96, s96, 1\ns_cmp_lt_u32 s96, {SPIN_MAX}\ns_cbranch_scc1 {l0}')
    A(f'{l2}:')


def get_epoch(A, vct, vt):
    l0 = A.label('L_ep')
    A('s_mov_b32 s96, 0')
    A(f'{l0}:')
    A(f'ds_read_b64 {vr(vt,2)}, v{vct} offset:32\ns_waitcnt lgkmcnt(0)\nv_readfirstlane_b32 s88, v{vt}\nv_readfirstlane_b32 s89, v{vt+1}')
    A(f's_add_u32 s96, s96, 1\ns_cmp_eq_u32 s88, 0\ns_cselect_b32 s48, s96, -1\ns_cmp_lt_u32 s48, {SPIN_MAX*16}\ns_cbranch_scc1 {l0}')


def phase_a(A):
    WOI = 0; HS = 0; HSTR = 5120
    A('v_lshrrev_b32 v3, 4, v2\nv_and_b32 v4, 15, v2')
    A('s_mul_i32 s70, s21, 5120')
    A('s_lshr_b32 s50, s18, 1\ns_and_b32 s51, s18, 1')
    A(f's_mul_i32 s48, s51, 1792\nv_add_u32 v10, s48, v5\nv_add_u32 v11, 1024, v10\nv_mov_b32 v15, {OOB}\nv_cmp_lt_u32 vcc, 40, v2\ns_nop 1\nv_cndmask_b32 v11, v11, v15, vcc')
    A('v_mov_b32 v19, v5\nv_add_u32 v20, 1024, v5\nv_mul_u32_u24 v21, 80, v4\nv_lshl_add_u32 v12, v3, 5, v21\nv_lshlrev_b32 v13, 3, v4')
    A('v_bfe_u32 v14, v2, 2, 2\nv_lshl_add_u32 v14, v3, 3, v14\nv_mul_u32_u24 v14, 160, v14\nv_and_b32 v15, 3, v2\nv_lshl_add_u32 v14, v15, 3, v14\nv_add_u32 v14, s70, v14')
    A(f'v_add_u32 v19, s70, v19\nv_add_u32 v20, s70, v20\ns_mul_i32 s48, s51, 5120\nv_add_u32 v12, s48, v12\nv_add_u32 v13, s48, v13')
    A('v_cmp_gt_u32 s[60:61], 3, v3\nv_cmp_gt_u32 s[62:63], 2, v3\nv_cmp_gt_u32 s[64:65], 41, v2')
    A(f's_mul_i32 s48, s51, 5\ns_lshr_b32 s49, s21, 1\ns_mul_i32 s49, s49, {RPK - 40960}\ns_add_u32 s49, s49, 40960')
    for mt in range(2):
        A(f'v_add3_u32 v15, v3, s48, {4*mt}\nv_lshrrev_b32 v16, 1, v15\nv_mul_u32_u24 v16, 1280, v16\nv_and_b32 v15, 1, v15\nv_lshl_add_u32 v16, v15, 3, v16')
        A(f'v_lshl_add_u32 v16, v4, 4, v16\nv_add_u32 v{17+mt}, s49, v16')
    A('s_mul_i32 s48, s51, 40\ns_add_u32 s48, s48, s49\ns_add_u32 s48, s48, 6400\nv_lshlrev_b32 v22, 2, v2\nv_add_u32 v22, s48, v22')
    A('s_mul_i32 s48, s51, 3328\ns_add_u32 s48, s48, s49\nv_add_u32 v21, s48, v5\nv_lshlrev_b32 v15, 10, v3\nv_lshl_add_u32 v15, v4, 4, v15')
    A(f's_lshr_b32 s48, s18, 3\ns_mul_i32 s48, s48, 5\ns_mul_i32 s49, s19, 20\ns_add_u32 s48, s48, s49\ns_mul_i32 s48, s48, 5120\ns_and_b32 s49, s50, 3\ns_lshl_b32 s49, s49, 8\ns_add_u32 s48, s48, s49')
    A(f's_mul_i32 s49, s51, 13312\ns_add_u32 s48, s48, s49\ns_add_u32 s55, s48, {M_OFF}\ns_add_u32 s56, s55, 4096\ns_add_u32 s57, s55, 8192\ns_add_u32 s48, s55, 12288')
    A(f's_lshl_b32 s54, s19, 11\ns_lshl_b32 s49, s50, 7\ns_add_u32 s54, s54, s49\ns_add_u32 s54, s54, {ZB_OFF}')
    A(f's_cmp_eq_u32 s51, 0\ns_cselect_b32 s54, s48, s54\ns_movk_i32 s48, {ZM}\ns_cselect_b32 s58, 0xffff, s48\ns_mov_b32 s59, 0')
    A('s_and_b32 s76, s88, 0xfff\ns_bfe_u32 s77, s88, 0xc000c\ns_lshr_b64 s[78:79], s[88:89], 24\ns_xor_b32 s78, s78, s88\ns_bfe_u32 s79, s78, 0xc000c\ns_and_b32 s78, s78, 0xfff')
    A(f's_mul_i32 s52, s50, {16*KVS}\ns_lshr_b32 s49, s21, 1\ns_mul_i32 s49, s49, {8*KVS}\ns_add_u32 s52, s52, s49\ns_add_u32 s52, s52, {KVP_OFF}')
    if ZEARLY:
        for reg, add in ((13, 0), (22, 1)):
            A(f'v_and_b32 v8, 7, v2\nv_lshl_add_u32 v8, v8, 1, {add}\nv_lshlrev_b32 v9, 4, v8\nv_add_u32 v{reg}, 1600, v9\nv_add_u32 v9, {1600 + HSTR - 80}, v9\nv_cmp_lt_u32 vcc, 4, v8\ns_nop 1\nv_cndmask_b32 v{reg}, v{reg}, v9, vcc')
    A(f's_lshl_b32 s48, s21, 2\nv_add_u32 v23, s48, v0\nv_mov_b32 v244, 1\nv_mov_b32 v245, 2\nv_mov_b32 v246, 3')
    A('s_mov_b64 exec, 1\nds_write_b32 v23, v244 offset:192\ns_mov_b64 exec, -1')
    lds_wait(A, 23, 112, 248, 1, four=False, sleep=1)
    for t in range(5):
        A(f'ds_read_b64_tr_b16 {vr(224+4*t,2)}, v14 offset:{32*t}\nds_read_b64_tr_b16 {vr(226+4*t,2)}, v14 offset:{32*t + 640}')
    stamp(A, 25)
    lds_wait(A, 0, 72, 248, 1, four=False, sleep=2)
    if KVACK: A('s_waitcnt vmcnt(0)')
    if GDELAY: A(f's_sleep {GDELAY}')
    stamp(A, 26)
    A('s_mov_b32 s96, 0')
    A('L_pa_gather:')
    for p in range(8):
        if PAX:
            A(f's_lshl_b32 s53, s69, 1\ns_add_u32 s53, s53, {p}\ns_and_b32 s53, s53, 7\ns_mul_i32 s53, s53, {KVS}\ns_add_u32 s53, s53, s52')
            if p == 2 and PAX == 2: A('s_waitcnt vmcnt(0)')
        else:
            A(f's_add_u32 s53, s52, {KVS*p}')
        for ldi in range(2):
            A(f'buffer_load_dwordx4 {vr(24 + 8*p + 4*ldi)}, v{10+ldi}, s[40:43], s53 offen sc1')
    for p in range(8):
        A(f's_waitcnt vmcnt({2*(7-p)})')
        for r in range(24 + 8 * p, 32 + 8 * p):
            A(f'v_xor_b32 v{r}, s{76 + (r & 3)}, v{r}')
        for ldi in range(2):
            r = 24 + 8 * p + 4 * ldi; d = 8 + ldi
            if p == 0:
                A(f'v_or3_b32 v{d}, v{r}, v{r+1}, v{r+2}\nv_or_b32 v{d}, v{d}, v{r+3}')
            else:
                A(f'v_or3_b32 v{d}, v{d}, v{r}, v{r+1}\nv_or3_b32 v{d}, v{d}, v{r+2}, v{r+3}')
        if p:
            for j in range(0, 8, 2):
                A(f'v_pk_add_f32 {vr(24+j,2)}, {vr(24+j,2)}, {vr(24+8*p+j,2)}')
    A('v_cndmask_b32 v9, 0, v9, s[64:65]\nv_or_b32 v8, v8, v9\nv_and_b32 v8, 0xfff, v8\nv_cmp_ne_u32 vcc, 0, v8')
    A('s_cbranch_vccz L_pa_got')
    stamp(A, 35)
    A(f's_sleep {PSLEEP}\ns_add_u32 s96, s96, 1\ns_cmp_lt_u32 s96, {SPIN_MAX}\ns_cbranch_scc1 L_pa_gather')
    A('L_pa_got:')
    if STAMP: A('v_writelane_b32 v1, s96, 36')
    stamp(A, 27)
    A('ds_write_b128 v19, v[24:27]\nds_write_b128 v20, v[28:31]')
    A('s_mov_b64 exec, 1\nds_write_b32 v23, v244 offset:80\ns_mov_b64 exec, -1')
    lds_wait(A, 0, 80, 248, 1, sleep=0)
    stamp(A, 28)
    if ZEARLY:
        A('s_cmp_eq_u32 s51, 0\ns_cbranch_scc1 L_pa_noz')
        A(f'ds_read_b128 v[64:67], v13\nds_read_b128 v[68:71], v22\nds_read_b128 v[72:75], v13 offset:{2*HSTR}\nds_read_b128 v[76:79], v22 offset:{2*HSTR}\ns_waitcnt lgkmcnt(0)')
        for j in range(0, 8, 2):
            A(f'v_pk_add_f32 {vr(64+j,2)}, {vr(64+j,2)}, {vr(72+j,2)}')
        for j in range(4):
            A(f'v_cvt_pk_bf16_f32 v{80+j}, v{64+2*j}, v{65+2*j}')
        A('s_mov_b64 exec, 0xff\nbuffer_store_dwordx4 v[80:83], v15, s[40:43], s54 offen sc1\ns_mov_b64 exec, -1')
        A('L_pa_noz:')
    for w in range(2):
        for mt in range(2):
            A(f'ds_read_b128 {vr(24+20*w+8*mt)}, v12 offset:{2*w*HSTR + 1280*mt}\nds_read_b128 {vr(28+20*w+8*mt)}, v12 offset:{2*w*HSTR + 1280*mt + 16}')
        if not ZEARLY: A(f'ds_read_b64 {vr(40+20*w,2)}, v13 offset:{2*w*HSTR + 1600}')
    A('s_waitcnt lgkmcnt(0)')
    for j in range(0, 18, 2):
        A(f'v_pk_add_f32 {vr(24+j,2)}, {vr(24+j,2)}, {vr(44+j,2)}')
    for mt in range(2):
        b = 24 + 8 * mt
        for j in range(4):
            A(f'v_cvt_pk_bf16_f32 v{b+j}, v{b+2*j}, v{b+2*j+1}')
        for j in range(4):
            A(f'v_cndmask_b32 v{b+j}, 0, v{b+j}, {"s[60:61]" if j < 2 else "s[62:63]"}')
    A('v_cvt_pk_bf16_f32 v40, v40, v41\ns_nop 0')
    for mt in range(2):
        for t in range(5):
            A(f'v_mfma_f32_16x16x32_bf16 {vr(64+20*mt+4*t)}, {vr(24+8*mt)}, {vr(224+4*t)}, 0')
    A('s_mov_b64 exec, 0x3ff\nds_write_b32 v22, v40\ns_mov_b64 exec, -1\ns_nop 0' if not ZEARLY else 's_nop 3')
    for mt in range(2):
        if mt == 1: A('s_mov_b64 exec, 0xffff')
        for t in range(5):
            b = 64 + 20 * mt + 4 * t
            A(f'v_cvt_pk_bf16_f32 v{b}, v{b}, v{b+1}\nv_cvt_pk_bf16_f32 v{b+1}, v{b+2}, v{b+3}')
            A(f'ds_write_b64 v{17+mt}, {vr(b,2)} offset:{256*t}')
    A('s_mov_b64 exec, 1\nds_write_b32 v23, v245 offset:80\ns_mov_b64 exec, -1')
    lds_wait(A, 0, 80, 248, 2, sleep=0)
    for i in range(4):
        A(f'ds_read_b128 {vr(24+4*i)}, v21 offset:{1024*i}')
    for i in range(3):
        A(f's_waitcnt lgkmcnt({3-i})\nbuffer_store_dwordx4 {vr(24+4*i)}, v15, s[40:43], s{55+i} offen sc1')
    if ZEARLY: A('s_cmp_lg_u32 s51, 0\ns_cbranch_scc1 L_pa_no4')
    A('s_waitcnt lgkmcnt(0)\ns_mov_b64 exec, s[58:59]\nbuffer_store_dwordx4 v[36:39], v15, s[40:43], s54 offen sc1')
    A('L_pa_no4:')
    stamp(A, 29)
    if MACK: A('s_waitcnt vmcnt(0)')
    A('s_mov_b64 exec, 1\nds_write_b32 v23, v246 offset:80\ns_mov_b64 exec, -1')
    stamp(A, 30)


XCH = [0, 15360, 30720, WBASE + 4 * WSLOT]
def gen_awave(A):
    AC = 16; PQ = 96; MB = 176
    def a2(rt, t): return AC + 20 * rt + 4 * t
    def pq(kk, rt): return PQ + 16 * kk + 4 * rt
    A('s_load_dwordx2 s[8:9], s[0:1], 64')
    A(f'v_mov_b32 v0, {CT}')
    A('v_lshrrev_b32 v3, 4, v2\nv_and_b32 v4, 15, v2\nv_lshlrev_b32 v5, 4, v2\nv_lshlrev_b32 v6, 3, v2\nv_add_u32 v7, 4096, v5')
    A('s_cmp_lg_u32 s20, 0\ns_cbranch_scc1 L_a_g')
    A('s_and_b32 s69, s2, 7\ns_lshl_b32 s69, s69, 3\ns_bfe_u32 s48, s2, 0x30003\ns_add_u32 s69, s69, s48')
    A('s_lshr_b32 s18, s69, 2\ns_lshl_b32 s18, s18, 1\ns_and_b32 s48, s21, 1\ns_add_u32 s18, s18, s48\ns_and_b32 s19, s69, 3\ns_lshl_b32 s19, s19, 1\ns_lshr_b32 s48, s21, 1\ns_add_u32 s19, s19, s48')
    phase_a(A)
    A('s_branch L_a_sig')
    A('L_a_g:')
    get_epoch(A, 0, 8)
    set_flag(A, 74, 8)
    A('L_a_sig:')
    A(f'v_mov_b32 v8, 1\ns_lshl_b32 s48, s21, 2\nv_add_u32 v9, s48, v0\ns_mov_b64 exec, 1\nds_write_b32 v9, v8 offset:48\ns_mov_b64 exec, -1')
    stamp(A, 5)
    A('s_waitcnt lgkmcnt(0)')
    srd(A, 28, 8, 2621440)
    A('L_a_main:')
    A(f's_setprio {APRIO}')
    p2_ids(A)
    A(f's_lshr_b32 s48, s18, 1\ns_lshl_b32 s59, s48, {FSH}\ns_add_u32 s59, s59, {FG_OFF}')
    A('s_mul_i32 s48, s21, 5\ns_mul_i32 s54, s18, 68\ns_add_u32 s54, s54, s48\ns_add_u32 s54, s54, 48\ns_lshl_b32 s54, s54, 12')
    A(f's_mul_i32 s55, s19, 20\ns_add_u32 s55, s55, s48\ns_mul_i32 s55, s55, 5120\ns_add_u32 s55, s55, {M_OFF}')
    A(f's_lshl_b32 s53, s18, 8\ns_add_u32 s53, s53, {G_OFF}')
    A(f's_lshl_b32 s52, s19, 11\ns_lshl_b32 s49, s21, 9\ns_add_u32 s52, s52, s49\ns_add_u32 s52, s52, {ZB_OFF}')
    A(f's_lshl_b32 s58, s19, 11\ns_add_u32 s58, s58, {ZB_OFF}')
    A('v_lshlrev_b32 v14, 2, v4\nv_lshlrev_b32 v15, 7, v3')
    A('v_lshrrev_b32 v12, 2, v4\nv_cmp_eq_u32 s[60:61], v12, v3\nv_and_b32 v12, 1, v4\nv_cmp_eq_u32 s[62:63], 0, v12')
    A('s_and_b64 s[64:65], s[60:61], s[62:63]\ns_andn2_b64 s[66:67], s[60:61], s[62:63]')
    A(f's_mov_b32 s68, {EPS}\ns_mov_b32 s69, 0xffff0000')
    Q = []
    def ld(tag, txt):
        A(txt); Q.append(tag)
    def wait(tag):
        last = max(k for k, t in enumerate(Q) if t == tag)
        A(f's_waitcnt vmcnt({len(Q) - 1 - last})')
    def issueM(kk):
        A(f's_add_u32 s57, s55, {5120*kk}')
        for t in range(4):
            ld(('M', kk), f'buffer_load_dwordx4 {vr(mb(kk,t))}, v5, s[40:43], s57 offen offset:{1024*t} sc1')
        ld(('M', kk), f'buffer_load_dwordx4 {vr(mb(kk,4))}, v7, s[40:43], s57 offen sc1')
    ZR = 236
    ZIMG = CT + 1536
    mbuf = {0: MB, 1: MB + 20, 2: MB + 40, 3: MB, 4: MB + 20} if not M4 else {0: MB, 1: MB + 20, 2: MB + 40, 3: ZR, 4: MB}
    def mb(kk, t): return mbuf[kk] + 4 * t
    for j in range(4):
        A(f's_add_u32 s48, s21, {j+1}\ns_and_b32 s{70+j}, s48, 3')
    A(f'v_lshrrev_b32 v8, 2, v2\nv_and_b32 v9, 3, v2\nv_mul_u32_u24 v24, 80, v8\nv_lshl_add_u32 v24, v9, 4, v24\nv_add_u32 v24, {ZIMG}, v24\nv_lshlrev_b32 v26, 7, v8\nv_lshl_add_u32 v26, v9, 4, v26')
    A(f's_mul_i32 s78, s19, 102400\ns_and_b32 s49, s18, {7 if P84 else 3}\ns_mul_i32 s49, s49, {12800 if P84 else 25600}\ns_add_u32 s78, s78, s49\ns_mul_i32 s49, s21, {3200 if P84 else 6400}\ns_add_u32 s78, s78, s49\ns_add_u32 s78, s78, {M_OFF}\nv_lshlrev_b32 v27, 7, v2')
    lds_wait(A, 0, 72, 8, 1, four=False, sleep=2)
    A('s_cmp_lg_u32 s21, 2\ns_cbranch_scc1 L_a_nopollg')
    A('s_cmp_eq_u32 s20, 0\ns_cbranch_scc1 L_a_nopollg')
    lds_wait(A, 0, 48, 8, 1, sleep=2)
    gpoll(A, 59, 8)
    A('L_a_nopollg:')
    if FINEG:
        A('s_lshl_b32 s74, 3, s21\ns_lshr_b32 s74, s74, 1')
    else:
        A('s_mov_b32 s74, 15')
    lds_wait_mask(A, 0, 64, 8, 's74')
    stamp(A, 11)
    if COOP_P:
        if KVFAST: A('s_cmp_eq_u32 s20, 0\ns_cbranch_scc1 L_a_nocp')
        A('s_mul_i32 s49, s19, 2560\ns_add_u32 s48, s54, s49' if not P84 else 's_and_b32 s49, s19, 3\ns_mul_i32 s49, s49, 5120\ns_add_u32 s48, s54, s49')
        A('v_lshlrev_b32 v8, 7, v2\n' + ('s_mov_b64 exec, 0xfffff' if not P84 else 's_mov_b32 exec_hi, 0xff') + '\nbuffer_load_dword v9, v8, s[40:43], s48 offen sc1\ns_mov_b64 exec, -1\ns_waitcnt vmcnt(0)')
        A('L_a_nocp:')
    stamp(A, 21)
    if KVZ:
        A('s_lshl_b32 s48, s20, 2\ns_add_u32 s79, s48, s21\ns_cmp_lg_u32 s79, 1\ns_cbranch_scc1 L_a_nz0')
        A('buffer_load_dwordx4 v[16:19], v26, s[40:43], s58 offen sc1\nbuffer_load_dwordx4 v[20:23], v26, s[40:43], s58 offen offset:16 sc1')
        A('L_a_nz0:')
    for j in range(4):
        if j == ZJ:
            A('s_cmp_lg_u32 s21, 1\ns_cbranch_scc1 L_a_nz1')
            A('buffer_load_dwordx4 v[16:19], v26, s[40:43], s58 offen sc1\nbuffer_load_dwordx4 v[20:23], v26, s[40:43], s58 offen offset:16 sc1')
            A('L_a_nz1:')
        A(f's_lshl_b32 s48, s{70+j}, 10\ns_add_u32 s56, s54, s48')
        for kk in range(5 if j < NRC else 0):
            A(f'buffer_load_dwordx4 {vr(pq(kk,j))}, v5, s[40:43], s56 offen {LL}')
            if kk < 4: A('s_add_u32 s56, s56, 4096')
    stamp(A, 22)
    lds_wait_mask(A, 0, 64, 8, 8)
    stamp(A, 23)
    for j in range(4):
        A(f's_lshl_b32 s48, s{70+j}, 6\ns_add_u32 s56, s53, s48\nbuffer_load_dword v{10+j}, v14, s[40:43], s56 offen {LL}')
    A('s_cmp_lg_u32 s21, 1\ns_cbranch_scc1 L_a_oth2')
    if KVZ: A('s_cmp_lg_u32 s79, 1\ns_cbranch_scc1 L_a_nkz\ns_mov_b32 s96, 0\ns_waitcnt vmcnt(24)\ns_branch L_a_zchk\nL_a_nkz:')
    if KVFAST == 2: A('s_cmp_eq_u32 s20, 0\ns_cbranch_scc1 L_a_nogate')
    if PQ_AT is not None: lds_wait(A, 0, 144, 16, 1, sleep=1)
    A('L_a_nogate:')
    stamp(A, 24)
    if ZJ is None: A('buffer_load_dwordx4 v[16:19], v26, s[40:43], s58 offen sc1\nbuffer_load_dwordx4 v[20:23], v26, s[40:43], s58 offen offset:16 sc1')
    if not ZEARLY: A('v_mov_b32 v8, 1\ns_mov_b64 exec, 1\nds_write_b32 v0, v8 offset:76\ns_mov_b64 exec, -1')
    A('L_a_oth2:')
    if not ZEARLY:
        lds_wait(A, 0, 76, 8, 1, four=False, sleep=2)
        A('s_mov_b32 exec_hi, 0x3ffff\nbuffer_load_dword v95, v27, s[40:43], s78 offen sc1\ns_mov_b32 exec_hi, -1')
    A('s_cmp_lg_u32 s21, 1\ns_cbranch_scc1 L_a_nopoll')
    A(f's_mov_b32 s96, 0\ns_waitcnt vmcnt({0 if ZJ is None else 4 + 5 * (4 - ZJ)})\ns_branch L_a_zchk')
    A('L_a_zpoll:')
    A('buffer_load_dwordx4 v[16:19], v26, s[40:43], s58 offen sc1\nbuffer_load_dwordx4 v[20:23], v26, s[40:43], s58 offen offset:16 sc1\ns_waitcnt vmcnt(0)')
    A('L_a_zchk:')
    A('v_max3_u32 v9, v16, v18, v20\nv_max_u32 v9, v9, v22\nv_cmp_eq_u32 vcc, -1, v9')
    A('s_cbranch_vccz L_a_zok')
    A(f's_sleep {MSLEEP}\ns_add_u32 s96, s96, 1\ns_cmp_lt_u32 s96, {SPIN_MAX}\ns_cbranch_scc1 L_a_zpoll')
    A('L_a_zok:')
    if STAMP: A('v_writelane_b32 v1, s96, 36')
    A('ds_write_b128 v24, v[16:19]\nds_write_b128 v24, v[20:23] offset:16')
    A('v_mov_b32 v8, 1\ns_mov_b64 exec, 1\nds_write_b32 v0, v8 offset:68\ns_mov_b64 exec, -1')
    A('L_a_nopoll:')
    A(f's_mul_i32 s48, s21, 320\ns_add_u32 s48, s48, {ZIMG}\nv_mul_u32_u24 v15, 80, v3\nv_add_u32 v15, s48, v15')
    lds_wait(A, 0, 68, 8, 1, four=False, sleep=2)
    stamp(A, 10)
    for kk in range(5):
        A(f'ds_read_b128 {vr(ZR+4*kk)}, v15 offset:{16*kk}')
    if SPEC_M:
        A(f's_waitcnt vmcnt({0 if ZEARLY else 1})')
        if ZEARLY: A('v_mov_b32 v94, v27')
    elif COOP_M:
        A(f's_mul_i32 s48, s19, 102400\ns_and_b32 s49, s18, 3\ns_mul_i32 s49, s49, 25600\ns_add_u32 s48, s48, s49\ns_mul_i32 s49, s21, 6400\ns_add_u32 s48, s48, s49\ns_add_u32 s48, s48, {M_OFF}')
        A('v_lshlrev_b32 v8, 7, v2\ns_mov_b32 exec_hi, 0x3ffff\nbuffer_load_dword v9, v8, s[40:43], s48 offen sc1\ns_mov_b32 exec_hi, -1')
    else:
        issueM(0); issueM(1); issueM(2)
    A('s_waitcnt lgkmcnt(0)')
    for kk in range(5):
        for j in range(4):
            m = 's[66:67]' if (4 * kk + j) >= 10 else 's[64:65]'
            A(f'v_cndmask_b32 v{ZR+4*kk+j}, 0, v{ZR+4*kk+j}, {m}')
    den = [AC + 4 * rt for rt in range(4)]
    if not SPEC_M: A(f's_waitcnt vmcnt({1 if COOP_M else 15})')
    stamp(A, 17)
    A('s_nop 0')
    for kk in range(5):
        for rt in range(NRC):
            d = vr(den[rt])
            A(f'v_mfma_f32_16x16x32_bf16 {d}, {vr(ZR+4*kk)}, {vr(pq(kk,rt))}, {d if kk else 0}')
    A('s_nop 7')
    SC = ZR; T0 = ZR + 8
    for rt in range(NRC):
        A(f'v_add_f32 v{den[rt]}, s68, v{den[rt]}\nv_add_f32 v{den[rt]+1}, s68, v{den[rt]+1}')
    for rt in range(NRC):
        A(f'v_rcp_f32 v{den[rt]}, v{den[rt]}\nv_rcp_f32 v{den[rt]+1}, v{den[rt]+1}')
    A('s_nop 0')
    for rt in range(NRC):
        A(f'v_mul_f32 v{SC+2*rt}, v{10+rt}, v{den[rt]}\nv_mul_f32 v{SC+2*rt+1}, v{10+rt}, v{den[rt]+1}')
    def norm_ops(kk):
        L = []
        for rt in range(NRC):
            r = pq(kk, rt)
            for j in range(4):
                L += [f'v_lshlrev_b32 v{T0+2*j}, 16, v{r+j}', f'v_and_b32 v{T0+2*j+1}, s69, v{r+j}']
            for j in range(4):
                odd = 1 if (4 * kk + j) >= 10 else 0
                L += [f'v_mul_f32 v{T0+2*j}, v{SC+2*rt+odd}, v{T0+2*j}', f'v_mul_f32 v{T0+2*j+1}, v{SC+2*rt+odd}, v{T0+2*j+1}']
            for j in range(4):
                L += [f'v_cvt_pk_bf16_f32 v{r+j}, v{T0+2*j}, v{T0+2*j+1}']
        return L
    stamp(A, 20)
    if ZEARLY:
        for kk in range(NLEAD):
            if kk == ZC: A(('s_mov_b32 exec_hi, 0x3ffff' if not P84 else 's_mov_b64 exec, 0x1ffffff') + '\nbuffer_load_dword v95, v94, s[40:43], s78 offen sc1\ns_mov_b64 exec, -1')
            if kk == ZM0:
                A('s_waitcnt vmcnt(0)')
                issueM(0); issueM(1)
            if M4 and kk == ZM0 + 1: issueM(2)
            for l in norm_ops(kk): A(l)
        if not (M4 and ZM0 + 1 < NLEAD): issueM(2)
        if M4: issueM(3)
    else:
        A('s_waitcnt vmcnt(0)')
        issueM(0); issueM(1)
        for kk in range(NLEAD):
            for l in norm_ops(kk): A(l)
            if kk == 0: issueM(2)
    stamp(A, 6)
    A('v_sub_f32 v14, 1.0, v13')
    for j in range(3):
        A(f's_mul_i32 s48, s{70+j}, 15360\ns_cmp_eq_u32 s{70+j}, 3\ns_cselect_b32 s48, {XCH[3]}, s48\ns_add_u32 s48, s48, {(2-j)*5120}\nv_add_u32 v{10+j}, s48, v5')
    A(f's_lshl_b32 s48, s21, 11\ns_add_u32 s48, s48, {XCH[3] + 15360 - 3072}\nv_add_u32 v13, s48, v5')
    A(f's_mul_i32 s48, s21, 5120\ns_add_u32 s48, s48, {WBASE + 2*WSLOT}\nv_add_u32 v15, s48, v5\ns_lshl_b32 s48, s21, 2\nv_add_u32 v6, s48, v0')
    def chk_ops(kk):
        m0 = mb(kk, 0)
        return [f'v_max3_u32 v8, v{m0}, v{m0+2}, v{m0+4}'] + [f'v_max3_u32 v8, v8, v{m0+2*k}, v{m0+2*k+2}' for k in (3, 5, 7)] + \
               [f'v_max_u32 v8, v8, v{m0+18}', 'v_cmp_eq_u32 vcc, -1, v8']
    for kk in range(3 if FUSE else 5):
        nxt = norm_ops(kk + NLEAD) if kk + NLEAD < 5 else []
        if kk == 0 or not CHKI:
            wait(('M', kk))
            for l in chk_ops(kk): A(l)
        A(f's_cbranch_vccnz L_a_mre{kk}')
        A(f'L_a_mok{kk}:')
        stamp(A, 31 + kk)
        late = chk_ops(kk + 1) if CHKI and kk < 4 else []
        if kk == (2 if CHKI else 4):
            lds_wait(A, 0, 96, PQ, 1, sleep=1)
            lds_wait(A, 0, 48, PQ, 1, sleep=1)
        if kk == 4:
            pass
        if NRC == 2:
            lds_wait(A, 6, 160, 8, kk + 1, four=False, sleep=1)
            A(f'ds_read_b128 {vr(pq(kk,2))}, v15 offset:{1024*kk}\nds_read_b128 {vr(pq(kk,3))}, v15 offset:{WSLOT + 1024*kk}')
        for rt in range(4):
            if NRC == 2 and rt == 2:
                A('s_waitcnt lgkmcnt(0)')
                if kk == 4:
                    A('v_mov_b32 v8, 1\ns_mov_b64 exec, 1\nds_write_b32 v6, v8 offset:176\ns_mov_b64 exec, -1')
            for t in range(5):
                d = vr(a2(rt, t))
                A(f'v_mfma_f32_16x16x32_bf16 {d}, {vr(mb(kk,t))}, {vr(pq(kk,rt))}, {d if kk else 0}')
                for _ in range(NRC):
                    if nxt: A(nxt.pop(0))
                if late and 5 * rt + t >= 13:
                    if 5 * rt + t == 13: wait(('M', kk + 1))
                    A(late.pop(0))
                if kk == 4 and rt >= 2:
                    A(f'ds_write_b128 v{10+rt-2}, {vr(a2(rt-2,t))} offset:{t*1024}')
        if M4:
            if kk == 0: issueM(4)
        elif kk < 2:
            issueM(kk + 3)
    if FUSE:
        assert CHKI and NLEAD == 5
        A('s_cbranch_vccnz L_a_mre3')
        A('L_a_mok3:')
        seq = []
        for rt in range(4):
            for kk in (3, 4):
                for t in ((3, 4, 0, 1, 2) if rt == 3 else range(5)):
                    seq.append((rt, kk, t))
        late = chk_ops(4)
        for n, (rt, kk, t) in enumerate(seq):
            if n == 5:
                A('s_cbranch_vccnz L_a_mre4')
                A('L_a_mok4:')
            d = vr(a2(rt, t))
            A(f'v_mfma_f32_16x16x32_bf16 {d}, {vr(mb(kk,t))}, {vr(pq(kk,rt))}, {d}')
            if n == 0: wait(('M', 4))
            for _ in range(2):
                if late and n < 5: A(late.pop(0))
            if n == 6: A('s_lshl_b32 s48, s21, 8\nv_lshlrev_b32 v8, 2, v2')
            if n == 7: A(f'v_add_u32 v8, s48, v8\nds_write_b32 v8, v14 offset:{46080}')
            r, w = (n - 14) // 10, (n - 14) % 10
            if n >= 14 and w < 5:
                A(f'ds_write_b128 v{10+r}, {vr(a2(r,w))} offset:{w*1024}')
        stamp(A, 12)
        A('s_nop 1')
        for t in (3, 4):
            A(f'ds_write_b128 v13, {vr(a2(3,t))} offset:{t*1024}')
    else:
        stamp(A, 12)
        for t in range(5):
            A(f'ds_write_b128 v12, {vr(a2(2,t))} offset:{t*1024}')
        A(f's_lshl_b32 s48, s21, 8\nv_lshlrev_b32 v8, 2, v2\nv_add_u32 v8, s48, v8\nds_write_b32 v8, v14 offset:{46080}')
        for t in (3, 4):
            A(f'ds_write_b128 v13, {vr(a2(3,t))} offset:{t*1024}')
    OWN = a2(3, 0)
    A(f's_mul_i32 s50, s21, 15360\ns_cmp_eq_u32 s21, 3\ns_cselect_b32 s50, {XCH[3]}, s50')
    A(f's_mul_i32 s48, s21, {WSLOT}\ns_add_u32 s48, s48, {WBASE}\nv_add_u32 v8, s48, v5\nv_mov_b32 v15, v14\nv_add_u32 v7, s50, v5')
    A('s_lshl_b32 s48, s18, 6\ns_lshl_b32 s49, s21, 4\ns_add_u32 s48, s48, s49\nv_add_u32 v9, s48, v4\nv_mul_u32_u24 v9, 1280, v9\nv_lshl_add_u32 v9, v3, 3, v9\ns_mul_i32 s48, s19, 160')
    A('s_waitcnt lgkmcnt(0)')
    A('s_barrier')
    stamp(A, 13)
    for r in range(4):
        for t in range(3):
            A(f'ds_read_b128 {vr(PQ+12*r+4*t)}, v8 offset:{r*5120 + 1024*t}')
    A('s_waitcnt lgkmcnt(6)')
    for r in range(3):
        for t in range(3):
            A(f'ds_read_b128 {vr(AC+12*r+4*t)}, v7 offset:{r*5120 + 1024*t}')
    for k in range(0, 12, 2):
        A(f'v_pk_add_f32 {vr(PQ+k,2)}, {vr(PQ+k,2)}, {vr(PQ+12+k,2)}')
    A('s_waitcnt lgkmcnt(9)')
    for k in range(0, 12, 2):
        A(f'v_pk_add_f32 {vr(PQ+24+k,2)}, {vr(PQ+24+k,2)}, {vr(PQ+36+k,2)}')
    for k in range(0, 12, 2):
        A(f'v_pk_add_f32 {vr(PQ+k,2)}, {vr(PQ+k,2)}, {vr(PQ+24+k,2)}')
    for k in range(0, 12, 2):
        A(f'v_pk_fma_f32 {vr(OWN+k,2)}, {vr(PQ+k,2)}, v[14:15], {vr(OWN+k,2)}')
    for sl in range(3):
        A(f's_waitcnt lgkmcnt({6 - 3*sl})')
        for k in range(0, 12, 2):
            A(f'v_pk_add_f32 {vr(OWN+k,2)}, {vr(OWN+k,2)}, {vr(AC+12*sl+k,2)}')
    for t in range(3):
        b = OWN + 4 * t
        A(f'v_cvt_pk_bf16_f32 v{b}, v{b}, v{b+1}\nv_cvt_pk_bf16_f32 v{b+1}, v{b+2}, v{b+3}')
        A(f'buffer_store_dwordx2 {vr(b,2)}, v9, s[28:31], s48 offen offset:{32*t}')
    stamp(A, 14)
    finish(A)
    for kk in range(5):
        A(f'L_a_mre{kk}:')
        A('s_mov_b32 s96, 0')
        A(f'L_a_mrl{kk}:')
        A('s_sleep 4')
        issueM(kk)
        A('s_waitcnt vmcnt(0)')
        for l in chk_ops(kk): A(l)
        A(f's_cbranch_vccz L_a_mok{kk}')
        A(f's_add_u32 s96, s96, 1\ns_cmp_lt_u32 s96, {SPIN_MAX}\ns_cbranch_scc1 L_a_mrl{kk}')
        A(f's_branch L_a_mok{kk}')


def gen_loader(A):
    A.c('s67 = lw ; role constants: s68 strideA, s60 cA, s61 cB, s62 xB, s63 c4, s64 hi-mult')
    A('s_sub_u32 s67, s21, 4')
    A('s_mul_i32 s48, s19, 320\ns_add_u32 s48, s48, 1280\ns_and_b32 s57, s19, 1\ns_lshl_b32 s58, s57, 6\ns_add_u32 s58, s58, s48')
    A('s_xor_b32 s57, s57, 1\ns_lshl_b32 s57, s57, 8\ns_add_u32 s57, s57, s48\ns_add_u32 s59, s58, 1280')
    A('s_lshl_b32 s48, s22, 8\ns_lshl_b32 s49, s22, 7\ns_movk_i32 s56, 3072')
    A('s_cmp_eq_u32 s20, 0')
    A('s_cselect_b32 s68, 3840, s56\ns_cselect_b32 s60, s58, s48\ns_cselect_b32 s61, s59, s48\ns_cselect_b32 s62, 1, 0\ns_cselect_b32 s63, s57, s49\ns_cselect_b32 s64, 1280, 64')
    A(f's_cmp_lg_u32 s91, 0\ns_cselect_b32 s63, {OOB}, s63')
    A(f'v_mov_b32 v29, {OOB}\ns_lshl_b32 s75, s68, 5\ns_lshl_b32 s69, s18, 2\ns_add_u32 s69, s69, s19\nv_and_b32 v3, 31, v2\nv_lshrrev_b32 v4, 5, v2')
    A('s_movk_i32 s48, 3072\ns_cmp_eq_u32 s67, 1\ns_cselect_b32 s48, 3840, s48\ns_lshr_b32 s49, s48, 7\ns_lshl_b32 s85, s48, 6\ns_movk_i32 s56, 128')
    A('s_cmp_eq_u32 s67, 0\ns_cselect_b32 s48, 40960, s48\ns_cselect_b32 s49, 32, s49\ns_cselect_b32 s85, 128, s85\ns_cselect_b32 s56, 1280, s56\ns_mul_i32 s48, s48, s69')
    A('v_mul_u32_u24 v5, s56, v3\nv_mul_u32_u24 v6, s85, v4\nv_add3_u32 v5, v5, v6, s48\nv_cmp_gt_u32 vcc, s49, v3')
    st0 = sum(EV[m][0] << (4 * m) for m in EV)
    A(f's_lshl_b32 s56, s20, 2\ns_lshr_b32 s56, {hex(st0)}, s56\ns_and_b32 s56, s56, 15\nv_cndmask_b32 v30, v29, v5, vcc\ns_mul_i32 s56, s56, s85')
    A('s_mov_b32 s26, 2621440\ns_mov_b32 s27, 0x20000\ns_mov_b32 s31, 0x20000\ns_mov_b32 s35, 0x20000\ns_mov_b32 s39, 0x20000\ns_mov_b32 s83, 0x20000\ns_mov_b32 s48, 1966080\ns_mov_b32 s38, 2457600')
    A('s_cmp_eq_u32 s20, 0\ns_cselect_b32 s30, s38, s48\ns_mov_b32 s34, s30')
    A(f'v_mov_b32 v38, {CT}\nv_lshl_add_u32 v39, v2, 2, v38\nv_mov_b32 v44, 0\ns_lshl_b32 s71, s67, 8\nds_write_b32 v39, v44\nv_add_u32 v39, s71, v39\nds_write_b32 v39, v44 offset:256')
    A(f'v_and_b32 v39, 3, v2\nv_lshlrev_b32 v39, 8, v39\nv_add_u32 v39, {CT+256}, v39\ns_lshl_b32 s71, s67, 2\ns_add_u32 s71, s71, {CT}')
    A('s_cmp_eq_u32 s20, 0')
    A('s_waitcnt lgkmcnt(0)')
    A('s_mov_b32 s24, s4\ns_mov_b32 s25, s5\ns_mov_b32 s36, s6\ns_mov_b32 s37, s7')
    A('s_cselect_b32 s28, s6, s8\ns_cselect_b32 s29, s7, s9\ns_cselect_b32 s32, s6, s10\ns_cselect_b32 s33, s7, s11')
    A('s_cmp_eq_u32 s67, 2\ns_cselect_b32 s80, s8, s10\ns_cselect_b32 s81, s9, s11')
    A('s_cmp_eq_u32 s67, 1\ns_cselect_b32 s80, s6, s80\ns_cselect_b32 s81, s7, s81\ns_cselect_b32 s82, s38, s48')
    A('s_cmp_eq_u32 s67, 0\ns_cselect_b32 s80, s4, s80\ns_cselect_b32 s81, s5, s81\ns_cselect_b32 s82, s26, s82')
    stamp(A, 1)
    def issueW():
        for L in range(5):
            sr = 28 if L < 2 else (32 if L < 4 else 36)
            dma(A, f's_add_u32 m0, s77, {L*1024}', 10 + L, sr, 70 if L < 4 else 72)
        A('s_add_u32 s70, s70, s75\ns_add_u32 s72, s72, s76')
        A(f's_add_u32 s77, s77, {WSLOT}\ns_cmp_ge_u32 s77, {WBASE + NW*WSLOT}\ns_cselect_b32 s48, {NW*WSLOT}, 0\ns_sub_u32 s77, s77, s48')
    def issueX():
        for i in range(4):
            dma(A, f's_add_u32 m0, s78, {i*1024}', 16 + i, 24, 74)
        A('s_add_u32 s74, s74, 128')
        A(f's_add_u32 s78, s78, {XSLOT}\ns_cmp_ge_u32 s78, {NX*XSLOT}\ns_cselect_b32 s48, {NX*XSLOT}, 0\ns_sub_u32 s78, s78, s48')
    def flag():
        A('s_mov_b32 m0, s71\ns_lshl_b32 s48, s65, 2\ns_mov_b64 exec, 1\nbuffer_load_dword v44, s[8:11], s48 offen offset:0 lds\ns_mov_b64 exec, -1')
    A('s_mov_b32 s97, s56')
    if START2:
        A('s_lshr_b32 s56, s85, 6\ns_lshr_b32 s57, s85, 13\ns_cmp_eq_u32 s67, 0\ns_cselect_b32 s56, 10240, s56\ns_cselect_b32 s57, 64, s57\ns_mul_i32 s56, s56, s2')
        A(f's_cmp_ge_u32 s2, {START2}\ns_cselect_b32 s48, s67, 0\ns_cmp_lg_u32 s48, 0\ns_cselect_b32 s57, 0, s57')
        A('v_lshlrev_b32 v34, 7, v2\nv_cmp_gt_u32 vcc, s57, v2\ns_nop 1\nv_cndmask_b32 v34, v29, v34, vcc')
        A('buffer_load_dword v36, v34, s[80:83], s56 offen')
        A('s_cmp_lg_u32 s67, 0\ns_cbranch_scc1 L_nor0')
        A('s_add_u32 s56, s56, 8192\ns_mov_b64 exec, 0xffff\nbuffer_load_dword v37, v34, s[80:83], s56 offen\ns_mov_b64 exec, -1\nv_mov_b32 v30, v29')
        A('s_branch L_nor0')
    A('s_cmp_eq_u32 s20, 0\ns_cbranch_scc1 L_nor0' if not R0LATE else 's_cmp_lg_u32 s20, 1\ns_cbranch_scc1 L_nor0')
    if NOPF != 2: A('s_mov_b32 exec_hi, 0\nbuffer_load_dword v36, v30, s[80:83], s56 offen\ns_mov_b32 exec_hi, -1')
    A('L_nor0:')
    A('s_barrier')
    A('s_cmp_eq_u32 s55, 0\ns_cbranch_scc1 L_nogw0')
    srd(A, 44, 14, 1280)
    A('v_lshlrev_b32 v40, 1, v2')
    for j in range(10):
        A(f'buffer_load_ushort v{50+j}, v40, s[44:47], 0 offen offset:{128*j}')
    A('L_nogw0:')
    A('v_lshrrev_b32 v3, 3, v2\nv_and_b32 v4, 7, v2')
    A('s_lshl_b32 s48, s18, 7\ns_lshl_b32 s56, s67, 5\ns_add_u32 s48, s48, s56\nv_add_u32 v7, s48, v3\nv_mul_u32_u24 v7, 1280, v7')
    A('v_lshrrev_b32 v8, 4, v2\nv_xor_b32 v8, v8, v4\nv_lshl_add_u32 v16, v8, 4, v7')
    A('v_xor_b32 v8, 4, v8\nv_lshl_add_u32 v17, v8, 4, v7\nv_add_u32 v17, 10240, v17')
    A('v_add_u32 v18, 20480, v16\nv_add_u32 v19, 20480, v17')
    A('s_lshl_b32 s56, s67, 3\nv_add_u32 v5, s56, v3')
    A('s_and_b32 s56, s67, 1\ns_lshl_b32 s56, s56, 2\nv_and_b32 v6, 2, v3\nv_xor_b32 v6, v6, v4\nv_xor_b32 v6, s56, v6')
    A('v_mul_u32_u24 v7, s68, v5\nv_lshl_add_u32 v8, v6, 4, v7\nv_add_u32 v10, s60, v8\nv_add_u32 v11, 128, v10')
    A('v_xor_b32 v9, s62, v6\nv_lshl_add_u32 v8, v9, 4, v7\nv_add_u32 v12, s61, v8\nv_add_u32 v13, 128, v12')
    A('v_lshrrev_b32 v8, 2, v6\nv_and_b32 v9, s62, v8\nv_and_b32 v6, 3, v6\nv_xor_b32 v6, v6, v9\nv_mul_u32_u24 v7, 3840, v5')
    A('v_lshl_add_u32 v7, v6, 4, v7\nv_mul_u32_u24 v8, s64, v8\nv_add3_u32 v14, v7, v8, s63')
    A(f's_mov_b32 s76, {32*3840}\ns_mov_b32 s70, 0\ns_mov_b32 s72, 0\ns_mov_b32 s74, 0')
    A(f's_mul_i32 s77, s67, 5120\ns_add_u32 s77, s77, {WBASE}\ns_lshl_b32 s78, s67, 12')
    issueX(); issueW()
    if L2PF:
        A('s_cmp_eq_u32 s67, 2\ns_cselect_b32 s48, s60, s61\ns_cselect_b32 s4, s28, s32\ns_cselect_b32 s5, s29, s33\ns_mov_b32 s6, s30\ns_mov_b32 s49, s68\ns_movk_i32 s56, 128')
        A('s_cmp_eq_u32 s67, 1\ns_cselect_b32 s48, s63, s48\ns_cselect_b32 s4, s36, s4\ns_cselect_b32 s5, s37, s5\ns_cselect_b32 s6, s38, s6\ns_cselect_b32 s49, 3840, s49\ns_cselect_b32 s56, s64, s56')
        A('s_lshl_b32 s94, s49, 6\ns_lshl_b32 s57, s23, 3\nv_add_u32 v33, s57, v4\nv_bfe_u32 v34, v2, 4, 1\nv_lshl_add_u32 v33, v34, 6, v33\nv_mul_u32_u24 v33, s49, v33')
        A('v_bfe_u32 v34, v2, 3, 1\nv_mul_u32_u24 v34, s56, v34\nv_add3_u32 v33, v33, v34, s48\nv_cmp_gt_u32 vcc, 32, v2\ns_mov_b32 s7, 0x20000\ns_nop 0\nv_cndmask_b32 v33, v29, v33, vcc')
        A('s_cmp_lg_u32 s67, 0\ns_cbranch_scc1 L_l2x')
        A('s_mov_b32 s4, s24\ns_mov_b32 s5, s25\ns_mov_b32 s6, s26\ns_movk_i32 s94, 128\ns_lshl_b32 s48, s18, 7\ns_lshl_b32 s49, s20, 5\ns_add_u32 s48, s48, s49')
        A('v_and_b32 v33, 31, v2\nv_add_u32 v33, s48, v33\nv_mul_u32_u24 v33, 1280, v33\nv_lshrrev_b32 v34, 5, v2\nv_lshl_add_u32 v33, v34, 7, v33')
        A('L_l2x:')
        A(f's_mul_i32 s95, s94, {L2PF}\ns_lshl_b32 s94, s94, 1')
    A('s_load_dwordx2 s[86:87], s[0:1], 72')
    A('s_cmp_eq_u32 s55, 0\ns_cbranch_scc1 L_nogw')
    A('v_and_b32 v41, 3, v2\nv_lshlrev_b32 v41, 3, v41')
    A('v_bfe_u32 v40, v2, 2, 1\nv_lshl_add_u32 v41, v40, 9, v41')
    A('v_bfe_u32 v40, v2, 3, 2\nv_lshl_add_u32 v41, v40, 5, v41')
    A(f'v_bfe_u32 v40, v2, 5, 1\nv_mul_u32_u24 v40, {GWS}, v40\nv_add_u32 v41, v40, v41')
    A(f'v_add_u32 v41, {GWBASE}, v41')
    A('s_waitcnt vmcnt(9)')
    for j in range(10):
        A(f'v_lshl_or_b32 v{80+2*j}, v{50+j}, 16, v{50+j}\nv_mov_b32 v{81+2*j}, v{80+2*j}')
        A(f'ds_write_b64 v41, v[{80+2*j}:{81+2*j}] offset:{2*GWS*j}')
    A('L_nogw:')
    srd(A, 40, 16, WS_USED)
    srd(A, 44, 12, 1966080)
    A('s_waitcnt lgkmcnt(0)')
    A('s_lshl_b32 s48, s2, 2\ns_add_u32 s48, s48, s67\ns_cmp_lg_u32 s48, 0\ns_cbranch_scc1 L_noep')
    A('s_memrealtime s[88:89]\ns_waitcnt lgkmcnt(0)\ns_or_b32 s88, s88, 1\nv_mov_b32 v42, s88\nv_mov_b32 v43, s89')
    A('s_mov_b64 exec, 1\nglobal_store_dwordx2 v44, v[42:43], s[86:87] sc1\ns_mov_b64 exec, -1')
    A('L_noep:')
    A('v_lshlrev_b32 v5, 4, v2\nv_lshlrev_b32 v6, 3, v2\nv_add_u32 v7, 4096, v5')
    assert RPORD.index(10) >= 8
    tab = sum(RPORD.index(t) << (4 * t) for t in range(12))
    A(f's_mov_b32 s56, {hex(tab & 0xffffffff)}\ns_mov_b32 s57, {hex(tab >> 32)}\ns_lshl_b32 s48, s22, 2\ns_lshr_b64 s[56:57], s[56:57], s48\ns_and_b32 s48, s56, 15\ns_lshl_b32 s48, s48, 4\ns_add_u32 s48, s48, s18')
    A('s_sub_u32 s60, s48, 120\ns_lshl_b32 s60, s60, 2\ns_add_u32 s60, s60, s67\ns_lshl_b32 s92, s48, 1\ns_add_u32 s92, s92, s67')
    A('s_cmp_lt_u32 s67, 2\ns_cselect_b32 s92, s92, 999\ns_cmp_lt_u32 s92, 240\ns_cselect_b32 s64, 1, 0\ns_cmp_lt_u32 s60, 256\ns_cselect_b32 s64, 2, s64')
    A('s_mul_i32 s62, s92, 52429\ns_lshr_b32 s62, s62, 18\ns_mul_i32 s63, s62, 5\ns_sub_u32 s63, s92, s63')
    A(f's_mul_i32 s79, s62, {32*1280}\ns_lshl_b32 s56, s63, 8\ns_add_u32 s79, s79, s56\ns_lshl_b32 s63, s63, 3\ns_mul_i32 s62, s62, 5')
    A(f's_lshl_b32 s92, s92, 3\ns_add_u32 s92, s92, {FW_OFF}\ns_lshl_b32 s93, s67, 12\ns_add_u32 s93, s93, {RPK}')
    A(f's_lshl_b32 s48, s60, 3\ns_add_u32 s48, s48, {FP_OFF}\ns_cmp_eq_u32 s64, 2\ns_cselect_b32 s92, s48, s92')
    A('v_and_b32 v8, 2, v3\nv_xor_b32 v8, v8, v4\nv_mul_u32_u24 v9, 1280, v3\nv_lshl_add_u32 v20, v8, 4, v9')
    A('v_xor_b32 v8, 4, v8\nv_lshl_add_u32 v21, v8, 4, v9\nv_add_u32 v21, 10240, v21\nv_add_u32 v22, 20480, v20\nv_add_u32 v23, 20480, v21')
    A('v_lshrrev_b32 v8, 2, v2\nv_and_b32 v9, 3, v2\nv_lshlrev_b32 v8, 7, v8\nv_lshl_add_u32 v8, v9, 3, v8\nv_add_u32 v8, s93, v8')
    A('v_bfe_u32 v9, v2, 3, 1\nv_lshrrev_b32 v28, 5, v2\nv_lshl_add_u32 v9, v28, 1, v9')
    for tl in range(4):
        A(f'v_xor_b32 v28, {tl}, v9\nv_lshl_add_u32 v{24+tl}, v28, 5, v8')
    A('v_mul_u32_u24 v31, 1280, v2')
    if 'NODUTY' in EXP: A('s_mov_b32 s64, 0')
    A('s_mov_b32 s94, 0')
    pk = {m: sum(((t | (b0 << 4)) << (8 * k)) for k, (t, b0) in enumerate(EV[m][1])) | (0xFF << (8 * len(EV[m][1]))) for m in EV}
    A(f's_mov_b32 s84, -1\ns_cmp_eq_u32 s20, 1\ns_cselect_b32 s84, {hex(pk[1])}, s84\ns_cmp_eq_u32 s20, 2\ns_cselect_b32 s84, {hex(pk[2])}, s84\ns_cmp_eq_u32 s20, 3\ns_cselect_b32 s84, {hex(pk[3])}, s84\ns_and_b32 s58, s84, 15')
    AC = 24; WR = 104; HBUF = 224
    def a2(rt, t): return AC + 20 * rt + 4 * t
    regset = {0: 0, 1: 1, 2: 2, 9: 3, 10: 4, 11: 5}
    lds_unit = {3: WBASE, 4: WBASE + WSLOT, 5: WBASE + 2*WSLOT, 6: WBASE + 3*WSLOT, 7: 20480, 8: WBASE + 4*WSLOT}
    def kidx(i, dst):
        A(f's_add_u32 s{dst}, s23, {i}\ns_cmp_ge_u32 s{dst}, 12\ns_cselect_b32 s48, 12, 0\ns_sub_u32 s{dst}, s{dst}, s48')
    def w2reg(i, thr=None):
        kidx(i, 56)
        A('s_mul_i32 s56, s56, 5120\ns_add_u32 s56, s56, s50')
        for t in range(5):
            b = WR + 20 * regset[i] + 4 * t
            if t == 0: A(f's_waitcnt vmcnt({STG_THR if thr is None else thr})')
            A(f'buffer_load_dwordx4 {vr(b)}, v{5 if t < 4 else 7}, s[40:43], s56 offen offset:{1024*(t&3)} sc1')
    def w2lds(i):
        kidx(i, 56)
        A('s_mul_i32 s56, s56, 5120\ns_add_u32 s56, s56, s50')
        A(f's_add_u32 m0, s52, {lds_unit[i]}\ns_waitcnt vmcnt({STG_THR})')
        for t in range(4):
            A(f'buffer_load_dwordx4 v5, s[40:43], s56 offen offset:{1024*t} sc1 lds')
        A(f's_add_u32 m0, s52, {lds_unit[i] + 4096}\ns_nop 0')
        A('buffer_load_dwordx4 v7, s[40:43], s56 offen sc1 lds')
    def trace():
        if STAMP and 'quiet' not in EXP:
            A('s_memtime s[98:99]\ns_add_u32 s48, s65, 38\ns_mov_b32 m0, s48\ns_waitcnt lgkmcnt(0)\nv_writelane_b32 v1, s98, m0')
    def ensure_free():
        if 'nofree' in EXP: return
        l = A.label('L_free')
        A(f's_sub_u32 s57, s65, 4\ns_cmp_ge_i32 s66, s57\ns_cbranch_scc1 {l}')
        tbeg(A)
        lds_wait(A, 39, 0, 48, 's57', four='free', sdst=66, sleep=LSLEEP)
        tend(A, 100)
        A(f'{l}:')
    stamp(A, 2)
    table_srd(A, 8)
    A('s_mov_b32 s65, 1\ns_mov_b32 s66, 0')
    flag()
    issueW()
    trace()
    A('s_mov_b32 s65, 2')
    flag()
    A('s_mov_b32 s65, 1')
    def bsetup():
        p2_ids(A)
        A(('s_mul_i32 s23, s19, 3\ns_lshr_b32 s23, s23, 1\ns_and_b32 s48, s18, 3' if not P84 else 's_bfe_u32 s23, s18, 0x20001\ns_and_b32 s48, s18, 1\ns_lshl_b32 s48, s48, 2\ns_add_u32 s23, s23, s48\ns_mul_i32 s23, s23, 3\ns_lshr_b32 s23, s23, 1\ns_and_b32 s48, s19, 3') + '\ns_mul_i32 s48, s48, 3\ns_add_u32 s23, s23, s48\ns_cmp_ge_u32 s23, 12\ns_cselect_b32 s48, 12, 0\ns_sub_u32 s23, s23, s48')
        if XROT: A(f's_and_b32 s48, s2, 7\ns_mul_i32 s48, s48, {XROT}\ns_lshr_b32 s48, s48, 3\ns_add_u32 s23, s23, s48\ns_cmp_ge_u32 s23, 12\ns_cselect_b32 s48, 12, 0\ns_sub_u32 s23, s23, s48')
        A(f's_mul_i32 s48, s67, 12\ns_mul_i32 s50, s19, 48\ns_add_u32 s50, s50, s48\ns_mul_i32 s50, s50, 5120\ns_add_u32 s50, s50, {W2_OFF}')
        A('s_mul_i32 s51, s18, 68\ns_add_u32 s51, s51, s48\ns_lshl_b32 s51, s51, 12')
        A('s_mul_i32 s52, s67, 5120')
    A(f'v_mov_b32 v0, {CT}')
    bsetup()
    A(f's_mul_i32 s53, s67, 480\ns_mul_i32 s48, s19, 5\ns_lshr_b32 s48, s48, 2\ns_add_u32 s53, s53, {FW_OFF}')
    A('v_lshrrev_b32 v8, 1, v2\nv_mul_u32_u24 v8, 40, v8\nv_and_b32 v9, 1, v2\nv_add_u32 v9, s48, v9\nv_lshrrev_b32 v9, 1, v9\nv_lshl_add_u32 v28, v9, 3, v8')
    A(f's_lshr_b32 s48, s18, 1\ns_lshl_b32 s54, s48, {FSH}\ns_add_u32 s54, s54, {FG_OFF}')
    A(f's_mov_b32 s55, {FP_OFF}')
    A('s_load_dwordx2 s[4:5], s[0:1], 16\ns_mov_b32 s6, 819200\ns_mov_b32 s7, 0x20000')
    wo_offset(A, 's67')
    for i in range(5):
        A(f'v_add_u32 v58, {64*i}, v2\nv_mul_u32_u24 v59, 6554, v58\nv_lshrrev_b32 v59, 16, v59\nv_mul_u32_u24 v60, 10, v59\nv_sub_u32 v60, v58, v60')
        A(f'v_mul_u32_u24 v59, 1280, v59\nv_lshl_add_u32 v{224+i}, v60, 4, v59')
    A('s_waitcnt lgkmcnt(0)')
    def chk_issue():
        l = A.label('L_ci')
        A('global_load_dwordx2 v[56:57], v44, s[86:87] sc1')
        A('s_mov_b64 exec, 0xffffff\nbuffer_load_dwordx2 v[46:47], v28, s[40:43], s53 offen sc1\ns_mov_b64 exec, -1')
        A(f's_cmp_lg_u32 s67, 1\ns_cbranch_scc1 {l}')
        A('buffer_load_dwordx4 v[96:99], v5, s[40:43], s55 offen sc1\nbuffer_load_dwordx4 v[100:103], v5, s[40:43], s55 offen offset:1024 sc1')
        A(f'{l}:')
    def chk_eval():
        l = A.label('L_ce')
        A('v_readfirstlane_b32 s88, v56\nv_readfirstlane_b32 s89, v57\ns_nop 1')
        A('s_mov_b64 exec, 0xffffff\nv_cmp_ne_u64 s[60:61], s[88:89], v[46:47]\ns_mov_b64 exec, -1')
        A(f's_cmp_lg_u32 s67, 1\ns_cbranch_scc1 {l}')
        for r in (96, 98, 100, 102):
            A(f'v_cmp_ne_u64 vcc, s[88:89], {vr(r,2)}\ns_or_b64 s[60:61], s[60:61], vcc')
        A(f'{l}:')
        A('s_cmp_eq_u32 s88, 0\ns_cselect_b32 s60, 1, s60\ns_cmp_eq_u64 s[60:61], 0')
    if R0LATE:
        A('s_cmp_lt_u32 s20, 2\ns_cbranch_scc1 L_nor1')
        A('s_mov_b32 exec_hi, 0\nbuffer_load_dword v36, v30, s[80:83], s97 offen\ns_mov_b32 exec_hi, -1')
        A('L_nor1:')
    A('s_branch L_ld_join')
    A('.p2align 3')
    A('L_ld_loop:')
    ensure_free()
    if L2PF:
        A(f's_bitcmp1_b32 s65, 1\ns_cbranch_scc0 L_nol2\ns_cmp_gt_u32 s65, {2 + 4 * ((9 - L2PF) // 2)}\ns_cbranch_scc1 L_nol2')
        A('buffer_load_dword v35, v33, s[4:7], s95 offen\ns_add_u32 s95, s95, s94')
        A('L_nol2:')
    issueX(); issueW()
    trace()
    A('s_add_u32 s65, s65, 1')
    flag()
    A('L_ld_odd:')
    ensure_free()
    issueW()
    trace()
    A('L_ld_join:')
    A('s_lshr_b32 s49, s65, 1\ns_add_u32 s65, s65, 1')
    flag()
    A('s_cmp_eq_u32 s49, s58\ns_cbranch_scc1 L_ev_round')
    A('L_ev_r1:')
    A('s_cmp_lg_u32 s65, 18\ns_cbranch_scc1 L_ev_r2')
    chk_issue()
    A('L_ev_r2:')
    A('s_cmp_lt_u32 s65, 20\ns_cbranch_scc1 L_ld_loop')
    A('s_branch L_ld_done')
    A('L_ev_round:')
    A(f's_add_u32 s58, s58, {EVSTEP}\ns_add_u32 s94, s94, 1')
    A('s_cmp_eq_u32 s94, 2\ns_cbranch_scc1 L_ev_s1\ns_cmp_eq_u32 s94, 3\ns_cbranch_scc1 L_ev_s2\ns_cmp_eq_u32 s94, 4\ns_cbranch_scc1 L_ev_flag')
    A('s_bfe_u32 s59, s84, 0x40004')
    A('s_mul_i32 s56, s85, s59\nbuffer_load_dword v36, v30, s[80:83], s56 offen')
    A(f's_cmp_lg_u32 s59, {THIRD}\ns_cbranch_scc1 L_ev_no3')
    A('s_mul_i32 s56, s85, 9\ns_mov_b32 exec_hi, 0\nbuffer_load_dword v37, v30, s[80:83], s56 offen\ns_mov_b32 exec_hi, -1')
    A('L_ev_no3:')
    A('s_cmp_eq_u32 s64, 0\ns_cselect_b32 s58, 15, s58\ns_cbranch_scc1 L_ev_r1')
    A('global_load_dwordx2 v[42:43], v44, s[86:87] sc1')
    A('s_cmp_eq_u32 s64, 2\ns_cbranch_scc1 L_ev_poison')
    A('s_mov_b32 exec_hi, 0\nbuffer_load_dword v37, v31, s[44:47], s79 offen offset:128\ns_mov_b32 exec_hi, -1')
    A('L_ev_dma:')
    for g in range(4):
        dma(A, f's_add_u32 m0, s93, {g*1024}', 20 + g, 44, 79)
    A('s_add_u32 s79, s79, 128')
    A('s_branch L_ev_r1')
    for e in range(2):
        A(f'L_ev_s{e+1}:')
        A('s_waitcnt vmcnt(16)')
        for tl in range(4):
            A(f'ds_read_b64_tr_b16 {vr(64+16*e+4*tl,2)}, v{24+tl}\nds_read_b64_tr_b16 {vr(66+16*e+4*tl,2)}, v{24+tl} offset:2048')
        A('s_waitcnt lgkmcnt(0)')
        if e == 0: A('s_branch L_ev_dma')
    for tl in range(8):
        A(f's_add_u32 s56, s63, {tl}\ns_mul_i32 s57, s56, 52429\ns_lshr_b32 s57, s57, 18\ns_mul_i32 s57, s57, 235\ns_add_u32 s57, s57, s56\ns_add_u32 s57, s57, s62\ns_lshl_b32 s57, s57, 10\ns_add_u32 s57, s57, {W2_OFF}')
        A(f'buffer_store_dwordx4 {vr(64+4*tl)}, v5, s[40:43], s57 offen sc1')
    A('s_branch L_ev_r1')
    A('L_ev_poison:')
    A('s_mov_b32 s94, 3')
    A('v_mov_b32 v64, -1\nv_mov_b32 v65, -1\nv_mov_b32 v66, -1\nv_mov_b32 v67, -1')
    A(f's_mul_i32 s56, s60, 3200\ns_add_u32 s56, s56, {M_OFF}\ns_lshl_b32 s57, s60, 7\ns_add_u32 s57, s57, {ZB_OFF}\ns_cmp_lt_u32 s60, 128\ns_cselect_b32 s57, s57, {OOB}')
    for k in range(3):
        A(f'buffer_store_dwordx4 v[64:67], v5, s[40:43], s56 offen offset:{1024*k} sc1')
    A('s_mov_b64 exec, 0xff\nbuffer_store_dwordx4 v[64:67], v5, s[40:43], s56 offen offset:3072 sc1')
    A('buffer_store_dwordx4 v[64:67], v5, s[40:43], s57 offen sc1\ns_mov_b64 exec, -1')
    A('L_ev_rw:')
    if EVW & 2: A('s_waitcnt vmcnt(0)')
    A('s_branch L_ev_r1')
    A('L_ev_flag:')
    A('s_movk_i32 s58, 15')
    l0 = A.label('L_ep'); l1 = A.label('L_epok')
    A('s_mov_b32 s90, 0\ns_waitcnt vmcnt(15)')
    A(f'{l0}:')
    A('v_readfirstlane_b32 s88, v42')
    A(f's_cmp_lg_u32 s88, 0\ns_cbranch_scc1 {l1}')
    A('s_sleep 4\nglobal_load_dwordx2 v[42:43], v44, s[86:87] sc1\ns_waitcnt vmcnt(0)')
    A(f's_add_u32 s90, s90, 1\ns_cmp_lt_u32 s90, {SPIN_MAX}\ns_cbranch_scc1 {l0}')
    A(f'{l1}:')
    A('s_mov_b64 exec, 1\nbuffer_store_dwordx2 v[42:43], v44, s[40:43], s92 offen sc1\ns_mov_b64 exec, -1')
    A('s_branch L_ev_r1')
    A('L_ld_done:')
    trace()
    stamp(A, 57)
    if 'p1' in EXP: finish(A)
    A('s_mov_b32 s90, 0\ns_waitcnt vmcnt(16)')
    A('L_b_chk:')
    chk_eval()
    A('s_cbranch_scc1 L_b_chkok')
    A('s_sleep 16')
    chk_issue()
    A(f's_waitcnt vmcnt(0)\ns_add_u32 s90, s90, 1\ns_cmp_lt_u32 s90, {SPIN_MAX}\ns_cbranch_scc1 L_b_chk')
    A('L_b_chkok:')
    A('s_cmp_lg_u32 s67, 1\ns_cbranch_scc1 L_b_nofp')
    A('v_mov_b32 v46, 1\ns_mov_b64 exec, 1\nds_write_b64 v0, v[56:57] offset:32\nds_write_b32 v0, v46 offset:72\ns_mov_b64 exec, -1')
    A('L_b_nofp:')
    stamp(A, 37)
    rest = []
    A('s_cmp_eq_u32 s20, 0\ns_cbranch_scc1 L_b_kv')
    for k, i in enumerate((0, 1, 2, 9, 10, 11)):
        w2reg(i, T1THR if k < 4 else None)
    stamp(A, 22)
    lds_wait(A, 39, 0, 48, 20, four='free', sleep=LSLEEP)
    for k, i in enumerate((3, 4, 5, 6, 7, 8)):
        if k == GEARLY:
            lds_wait(A, 38, 48, 48, 1, sleep=4)
            stamp(A, 9)
        w2lds(i); stamp(A, 16 + k)
    A('s_branch L_b_common')
    A('L_b_kv:')
    def pause():
        if KVP_AT is None: return
        l = A.label('L_ps')
        lds_free(A, 39, 48, 90)
        A(f's_cmp_lt_i32 s90, 21\ns_cbranch_scc1 {l}')
        lds_wait(A, 39, 0, 48, 22, four='free', sleep=2)
        A(f'{l}:')
    for k, i in enumerate((0, 1, 2, 9, 10, 11)[:KVR]):
        w2reg(i, T1THR); stamp(A, 40 + k)
    kl = ((16, 3), (17, 4), (18, 5), (18, 7), (19, 6))
    for need, i in kl[:KVE]:
        lds_wait(A, 39, 0, 48, need, four='free', sleep=LSLEEP)
        w2lds(i)
    lds_wait(A, 39, 0, 48, 20, four='free', sleep=LSLEEP)
    for i in range(5):
        dma(A, f's_add_u32 m0, s52, {1024*i}', 224 + i, 4, 73)
    A(f's_lshl_b32 s48, s67, 2\ns_add_u32 m0, s48, {CT + 112}\ns_mov_b64 exec, 1\nbuffer_load_dword v44, s[8:11], 4 offen lds\ns_mov_b64 exec, -1')
    stamp(A, 9)
    for k, i in enumerate([x[1] for x in kl[KVE:]] + [8]):
        if k: pause()
        w2lds(i)
        if k < 4: stamp(A, 46 + k)
    for i in (0, 1, 2, 9, 10, 11)[KVR:]:
        pause()
        w2reg(i)
    stamp(A, 8)
    if KVN < 12:
        lds_wait(A, 0, 192, 48, 1, sleep=4)
        for i in order[KVN:]:
            stage(i)
    stamp(A, 10)
    lds_wait(A, 0, 80, 48, KVG, sleep=4)
    A('s_cmp_lg_u32 s67, 3\ns_cbranch_scc1 L_b_common')
    gpoll(A, 54, 46)
    A('L_b_common:')
    hbufs = [HBUF, HBUF + 16, WR + 40]
    def hb(i, rt):
        k = i if i < 2 else (0 if i == 2 else (i - 3 + 1) % 3 if False else None)
        return None
    hmap = {0: 0, 1: 1, 2: 0, 3: 1}
    for i in range(4, 12):
        hmap[i] = [0, 2, 1][(i - 4) % 3]
    def hb(i, rt): return hbufs[hmap[i]] + 4 * rt
    A('v_add_u32 v8, s52, v5')
    A(f'v_add_u32 v9, {WBASE + 2*WSLOT}, v8')
    def rdW(i, rs):
        u = lds_unit[i]
        va, off = (8, u) if u < WBASE + WSLOT - 5120 else ((9, u - (WBASE + 2*WSLOT)) if u >= WBASE + 2*WSLOT else (12, 0))
        for t in range(5):
            A(f'ds_read_b128 {vr(WR+20*rs+4*t)}, v{va} offset:{off + 1024*t}')
    A(f'v_add_u32 v12, {WBASE + WSLOT}, v8')
    A('s_load_dwordx2 s[28:29], s[0:1], 64\ns_mov_b32 s30, 2621440\ns_mov_b32 s31, 0x20000')
    A(f's_lshl_b32 s48, s67, 2\nv_add_u32 v13, s48, v0\nv_mov_b32 v14, 1\ns_mul_i32 s48, s67, {WSLOT}\ns_add_u32 s48, s48, {WBASE}\nv_add_u32 v15, s48, v5')
    A(f's_mul_i32 s48, s67, 15360\ns_cmp_eq_u32 s67, 3\ns_cselect_b32 s48, {XCH[3]}, s48\nv_add_u32 v16, s48, v5')
    A(f's_lshl_b32 s48, s67, 11\ns_add_u32 s48, s48, {XCH[3] + 15360}\nv_add_u32 v17, s48, v5\ns_lshl_b32 s48, s67, 8\nv_lshlrev_b32 v19, 2, v2\nv_add_u32 v19, s48, v19')
    A('s_lshl_b32 s48, s18, 6\ns_lshl_b32 s49, s67, 4\ns_add_u32 s48, s48, s49\nv_and_b32 v20, 15, v2\nv_add_u32 v20, s48, v20\nv_mul_u32_u24 v20, 1280, v20\nv_lshrrev_b32 v21, 4, v2\nv_lshl_add_u32 v20, v21, 3, v20\ns_mul_i32 s55, s19, 160')
    A('s_mul_i32 s48, s67, 5\ns_mul_i32 s57, s18, 68\ns_add_u32 s57, s57, s48\ns_add_u32 s57, s57, 48\ns_lshl_b32 s57, s57, 12')
    A(f's_lshl_b32 s58, s18, 8\ns_add_u32 s58, s58, {G_OFF}\nv_and_b32 v3, 15, v2\nv_lshlrev_b32 v11, 2, v3')
    A(f's_mul_i32 s48, s67, 320\ns_add_u32 s48, s48, {CT + 1536}\nv_mul_u32_u24 v4, 80, v21\nv_add_u32 v4, s48, v4')
    A('v_lshrrev_b32 v10, 2, v3\nv_cmp_eq_u32 s[64:65], v10, v21\nv_and_b32 v10, 1, v3\nv_cmp_eq_u32 s[62:63], 0, v10')
    A(f's_and_b64 s[60:61], s[64:65], s[62:63]\ns_andn2_b64 s[62:63], s[64:65], s[62:63]\ns_mov_b32 s64, {EPS}\ns_mov_b32 s65, 0xffff0000')
    A(f's_setprio {BPRIO}')
    stamp(A, 3)
    if GPOLL == 'B':
        A('s_cmp_lg_u32 s67, 3\ns_cbranch_scc1 L_b_nopoll')
        poll(A, 54, 48, 10, 6)
        A('v_mov_b32 v10, 1\ns_mov_b64 exec, 1\nds_write_b32 v0, v10 offset:64\ns_mov_b64 exec, -1')
        A('L_b_nopoll:')
    A('s_lshl_b32 s59, 1, s67' if FINEG else 's_mov_b32 s59, 15')
    lds_wait_mask(A, 0, 64, 10, 's59')
    A('s_waitcnt vmcnt(0)')
    stamp(A, 4)
    Q = []
    def wait(tag):
        last = max(k for k, t in enumerate(Q) if t == tag)
        A(f's_waitcnt vmcnt({min(63, len(Q) - 1 - last)})')
    def issueH(i):
        kidx(i, 56)
        A('s_lshl_b32 s56, s56, 12\ns_add_u32 s56, s56, s51')
        for rt in range(4):
            A(f'buffer_load_dwordx4 {vr(hb(i,rt))}, v5, s[40:43], s56 offen offset:{1024*rt} {LL}')
            Q.append(('H', i))
    assert not rest[KPRE:]
    issueH(0); issueH(1)
    nH = 2
    dump = [(8, WBASE), (12, 0), (9, 0), (9, WSLOT)]
    def haddr(i, dst):
        return [f's_add_u32 s{dst}, s23, {i}', f's_cmp_ge_u32 s{dst}, 12', 's_cselect_b32 s48, 12, 0', f's_sub_u32 s{dst}, s{dst}, s48',
                f's_lshl_b32 s{dst}, s{dst}, 12', f's_add_u32 s{dst}, s{dst}, s51']
    def rdW_l(i, rs):
        u = lds_unit[i]
        va, off = (8, u) if u < WBASE + WSLOT - 5120 else ((9, u - (WBASE + 2*WSLOT)) if u >= WBASE + 2*WSLOT else (12, 0))
        return [f'ds_read_b128 {vr(WR+20*rs+4*t)}, v{va} offset:{off + 1024*t}' for t in range(5)]
    pendW = []
    for i in range(12):
        rs = regset[i] if i in regset else (i - 3) % 2
        gaps = {k: [] for k in range(20)}
        for k, l in zip((1, 3, 6, 8, 11), pendW): gaps[k].append(l)
        reuse = nH if nH < 12 and hmap[nH] == hmap[i] else None
        extra = None
        if reuse is not None:
            for k, l in enumerate(haddr(reuse, 56)): gaps[k // 2].append(l)
            nH += 1
        if nH < 12 and hmap[nH] == 2 and i == 3:
            pass
        first = Q.index(('H', i))
        for rt in range(4):
            A(f's_waitcnt vmcnt({len(Q) - 1 - (first + rt)})')
            if rt == 0:
                if i == 0: stamp(A, 5)
                if BST: stamp(A, 25 + i)
                if i not in regset:
                    A('s_waitcnt lgkmcnt(0)')
                if i == PQ_AT:
                    A('s_mov_b64 exec, 1\nds_write_b32 v13, v14 offset:144\ns_mov_b64 exec, -1')
                if i == 8:
                    A('s_mov_b64 exec, 1\nds_write_b32 v13, v14 offset:96\ns_mov_b64 exec, -1')
            for t in range(5):
                d = vr(a2(rt, t))
                A(f'v_mfma_f32_16x16x32_bf16 {d}, {vr(WR+20*rs+4*t)}, {vr(hb(i,rt))}, {d if i else 0}')
                for l in gaps[5 * rt + t]: A(l)
                if i == 11 and rt >= 2:
                    A(f'ds_write_b128 v{dump[rt-2][0]}, {vr(a2(rt-2,t))} offset:{dump[rt-2][1] + t*1024}')
            if reuse is not None:
                A(f'buffer_load_dwordx4 {vr(hb(reuse,rt))}, v5, s[40:43], s56 offen offset:{1024*rt} {LL}')
                Q.append(('H', reuse))
        if NRC == 2 and i in (9, 10):
            j = i - 7
            A(f's_add_u32 s48, s67, {j+1}\ns_and_b32 s48, s48, 3\ns_lshl_b32 s49, s48, 10\ns_add_u32 s56, s57, s49\ns_lshl_b32 s49, s48, 6\ns_add_u32 s49, s49, s58')
            for kk in range(5):
                A(f'buffer_load_dwordx4 {vr(WR + 8*kk + 4*(j-2))}, v5, s[40:43], s56 offen {LL}')
                if kk < 4: A('s_add_u32 s56, s56, 4096')
                Q.append(('P', j))
            A(f'buffer_load_dword v{20+j}, v11, s[40:43], s49 offen {LL}')
            Q.append(('P', j))
        while nH < 12 and all(hmap[j] != hmap[nH] for j in range(i + 1, nH)) and not (hmap[nH] == 2 and i < 2):
            issueH(nH); nH += 1
        tgt = {0: 3, 2: 4}.get(i, i + 2 if 5 <= i + 2 <= 8 else None)
        pendW = rdW_l(tgt, (tgt - 3) % 2) if tgt is not None else []
    stamp(A, 6)
    if NRC == 2:
        ZR = HBUF; DN = AC; SC = HBUF + 20; T0 = HBUF + 24
        lds_wait(A, 0, 68, 10, 1, four=False, sleep=1)
        for kk in range(5):
            A(f'ds_read_b128 {vr(ZR+4*kk)}, v4 offset:{16*kk}')
        A('s_waitcnt lgkmcnt(0)')
        for kk in range(5):
            for j in range(4):
                m = 's[62:63]' if (4 * kk + j) >= 10 else 's[60:61]'
                A(f'v_cndmask_b32 v{ZR+4*kk+j}, 0, v{ZR+4*kk+j}, {m}')
        A('s_waitcnt vmcnt(0)\ns_nop 0')
        for kk in range(5):
            for r in range(2):
                d = vr(DN + 4 * r)
                A(f'v_mfma_f32_16x16x32_bf16 {d}, {vr(ZR+4*kk)}, {vr(WR+8*kk+4*r)}, {d if kk else 0}')
        A('s_nop 7')
        for r in range(2):
            A(f'v_add_f32 v{DN+4*r}, s64, v{DN+4*r}\nv_add_f32 v{DN+4*r+1}, s64, v{DN+4*r+1}')
        for r in range(2):
            A(f'v_rcp_f32 v{DN+4*r}, v{DN+4*r}\nv_rcp_f32 v{DN+4*r+1}, v{DN+4*r+1}')
        A('s_nop 0')
        for r in range(2):
            A(f'v_mul_f32 v{SC+2*r}, v{22+r}, v{DN+4*r}\nv_mul_f32 v{SC+2*r+1}, v{22+r}, v{DN+4*r+1}')
        for kk in range(5):
            for r in range(2):
                b = WR + 8 * kk + 4 * r
                for j in range(4):
                    A(f'v_lshlrev_b32 v{T0+2*j}, 16, v{b+j}\nv_and_b32 v{T0+2*j+1}, s65, v{b+j}')
                for j in range(4):
                    odd = 1 if (4 * kk + j) >= 10 else 0
                    A(f'v_mul_f32 v{T0+2*j}, v{SC+2*r+odd}, v{T0+2*j}\nv_mul_f32 v{T0+2*j+1}, v{SC+2*r+odd}, v{T0+2*j+1}')
                for j in range(4):
                    A(f'v_cvt_pk_bf16_f32 v{b+j}, v{T0+2*j}, v{T0+2*j+1}')
                A(f'ds_write_b128 v9, {vr(b)} offset:{r*WSLOT + 1024*kk}')
            A(f'v_mov_b32 v10, {kk+1}\ns_mov_b64 exec, 1\nds_write_b32 v13, v10 offset:160\ns_mov_b64 exec, -1')
        lds_wait(A, 13, 176, 10, 1, four=False, sleep=1)
    for rt in (2, 3):
        for t in range(5):
            A(f'ds_write_b128 v{dump[rt][0]}, {vr(a2(rt,t))} offset:{dump[rt][1] + t*1024}')
    A('s_waitcnt lgkmcnt(0)')
    stamp(A, 7)
    A('s_barrier')
    R = WR
    for r in range(4):
        for t in (3, 4):
            A(f'ds_read_b128 {vr(R+8*r+4*(t-3))}, v15 offset:{r*5120 + 1024*t}')
    A(f'ds_read_b32 v18, v19 offset:{46080}')
    A('s_waitcnt lgkmcnt(5)')
    for r in range(3):
        for t in (3, 4):
            A(f'ds_read_b128 {vr(R+32+8*r+4*(t-3))}, v16 offset:{r*5120 + 1024*t}')
    for t in (3, 4):
        A(f'ds_read_b128 {vr(R+56+4*(t-3))}, v17 offset:{1024*(t-3)}')
    for k in range(0, 8, 2):
        A(f'v_pk_add_f32 {vr(R+k,2)}, {vr(R+k,2)}, {vr(R+8+k,2)}')
    A('s_waitcnt lgkmcnt(8)\nv_mov_b32 v19, v18')
    for k in range(0, 8, 2):
        A(f'v_pk_add_f32 {vr(R+16+k,2)}, {vr(R+16+k,2)}, {vr(R+24+k,2)}')
    for k in range(0, 8, 2):
        A(f'v_pk_add_f32 {vr(R+k,2)}, {vr(R+k,2)}, {vr(R+16+k,2)}')
    A('s_waitcnt lgkmcnt(0)')
    for k in range(0, 8, 2):
        A(f'v_pk_fma_f32 {vr(R+k,2)}, {vr(R+k,2)}, v[18:19], {vr(R+56+k,2)}')
    for sl in range(3):
        for k in range(0, 8, 2):
            A(f'v_pk_add_f32 {vr(R+k,2)}, {vr(R+k,2)}, {vr(R+32+8*sl+k,2)}')
    for t in (3, 4):
        b = R + 4 * (t - 3)
        A(f'v_cvt_pk_bf16_f32 v{b}, v{b}, v{b+1}\nv_cvt_pk_bf16_f32 v{b+1}, v{b+2}, v{b+3}')
        A(f'buffer_store_dwordx2 {vr(b,2)}, v20, s[28:31], s55 offen offset:{32*t}')
    finish(A)


def gen(A):
    K = NAME + '_kernel'
    A(f'.globl {K}\n.p2align 8\n.type {K},@function\n{K}:')
    if ENTRYT: A('s_memrealtime s[92:93]')
    A('s_cmp_ge_u32 s2, 256\ns_cbranch_scc1 L_end')
    A('s_load_dwordx4 s[4:7], s[0:1], 0')
    A('s_load_dwordx4 s[8:11], s[0:1], 32')
    A('s_load_dwordx4 s[12:15], s[0:1], 48')
    A('s_load_dwordx2 s[16:17], s[0:1], 80')
    A.c('decode: s18 rb, s19 cq, s20 m, s21 wave, s22 gtype, s23 rbl, s55 is_gc')
    A('v_lshrrev_b32 v1, 6, v0\nv_and_b32 v2, 63, v0')
    A('s_bfe_u32 s23, s2, 0x10003\ns_and_b32 s18, s2, 7\ns_lshl_b32 s18, s18, 1\ns_add_u32 s18, s18, s23' if not MAP84 else 's_bfe_u32 s23, s2, 0x30003\ns_and_b32 s18, s2, 1\ns_lshl_b32 s18, s18, 3\ns_add_u32 s18, s18, s23')
    A('v_readfirstlane_b32 s21, v1')
    A('s_bfe_u32 s19, s2, 0x20004\ns_lshr_b32 s20, s2, 6' if not MAP84 else ('s_bfe_u32 s19, s2, 0x20001\ns_lshr_b32 s20, s2, 6' if not KVX else 's_bfe_u32 s20, s2, 0x20001\ns_lshr_b32 s19, s2, 6'))
    A('s_mul_i32 s22, s19, 3\ns_add_u32 s22, s22, s20\ns_sub_u32 s22, s22, 1')
    A('s_cmp_eq_u32 s22, 10\ns_cselect_b32 s55, 1, 0\ns_cmp_ge_i32 s22, 10\ns_cselect_b32 s91, 1, 0')
    if STAMP:
        A('v_mov_b32 v1, 0\ns_mov_b32 s100, 0\ns_mov_b32 s101, 0')
        stamp(A, 0); stamp_rt(A, 62)
        if ENTRYT: A('v_readlane_b32 s93, v1, 0\nv_writelane_b32 v1, s92, 0\ns_nop 1\nv_writelane_b32 v1, s93, 58')
    A('s_cmp_lt_u32 s21, 4\ns_cbranch_scc1 L_compute')
    gen_loader(A)
    gen_compute(A)
    A('L_end:\ns_endpgm')
    A('.p2align 7\nL_table:')
    for i in range(32):
        A(f'.long {i}')


DOC = """
; ---------------------------------------------------------------------------------------------
; ---------------------------------------------------------------------------------------------
"""


def main(out):
    A = Asm()
    gen(A)
    K = NAME + '_kernel'
    hdr = open('cdna_kernels/' + NAME + '.s.ref').read().split('; Override')[0]
    txt = hdr + f'; @launch grid=(256,1,1) block=(512,1,1) lds={LDS_TOTAL}\n'
    txt += '.amdgcn_target "amdgcn-amd-amdhsa--gfx950"\n' + DOC.lstrip('\n') + '.text\n' + A.text()
    txt += f'''.section .rodata,"a"
.p2align 6
.amdhsa_kernel {K}
  .amdhsa_next_free_vgpr 256
  .amdhsa_next_free_sgpr 102
  .amdhsa_accum_offset 256
  .amdhsa_group_segment_fixed_size 0
  .amdhsa_kernarg_size 88
  .amdhsa_user_sgpr_count 2
  .amdhsa_user_sgpr_kernarg_segment_ptr 1
  .amdhsa_system_sgpr_workgroup_id_x 1
.end_amdhsa_kernel
'''
    open(out, 'w').write(txt)

if __name__ == '__main__':
    for a in sys.argv[2:]:
        k, v = a.split('=', 1)
        globals()[k] = eval(v)
    main(sys.argv[1] if len(sys.argv) > 1 else 'cdna_kernels/' + NAME + '.s')
```
